```python
import torch

def _softmax(x, axis=-1):
    return torch.softmax(x, dim=axis)
def _gelu(x):
    return torch.nn.functional.gelu(x, approximate="tanh")
def _silu(x):
    return torch.nn.functional.silu(x)
def _sigmoid(x):
    return torch.sigmoid(x)
def _layernorm(x, axis=-1, eps=1e-5):
    m = x.mean(dim=axis, keepdim=True)
    v = x.var(dim=axis, keepdim=True, unbiased=False)
    return (x - m) / torch.sqrt(v + eps)
def _scatter_add(tgt, idx, src, axis=0):
    return tgt.clone().index_add_(axis, idx, src)
def _segment_sum(src, seg, n):
    out = torch.zeros((n,) + src.shape[1:], dtype=src.dtype)
    return out.index_add_(0, seg, src)
def _pad(x, pw):
    flat = tuple(v for pair in reversed(pw) for v in pair)
    return torch.nn.functional.pad(x, flat)

kernel_name = 'gated_mix__compressed_kv_cla__dense_activation_gelu__decode'

def setup_inputs():

    _w = (lambda a: (lambda t: t.to(torch.bfloat16) if t.is_floating_point() else t)(torch.as_tensor(a)))
    def _A_setup():
        B, H, Sq, Sk, D, M = 2, 32, 1, 4096, 128, 576
        Dc = 4 * D
        return {
            "x": _w((lambda *s: torch.randn(*s, dtype=torch.bfloat16) * 0.05)(B, Sq, M)),
            "c_kv": _w((lambda *s: torch.randn(*s, dtype=torch.bfloat16) * 0.8)(B, Sk, Dc)),
            "w_q": _w((lambda *s: torch.randn(*s, dtype=torch.bfloat16) * 6.4)(M, H, D) * (M ** -0.5)),
            "w_uk": _w((lambda *s: torch.randn(*s, dtype=torch.bfloat16) * 6.4)(Dc, H, D) * (Dc ** -0.5)),
            "w_uv": _w((lambda *s: torch.randn(*s, dtype=torch.bfloat16) * 0.8)(Dc, H, D) * (Dc ** -0.5)),
            "w_o": _w((lambda *s: torch.randn(*s, dtype=torch.bfloat16) * 0.8)(H, D, M) * ((H * D) ** -0.5)),
        }
    _A_in = _A_setup()

    def _B_setup():
        B, S, D, F = 2, 1, 576, 4608
        return {
            "x": _w((lambda *s: torch.randn(*s, dtype=torch.bfloat16) * 0.05)(B, S, D)),
            "w1": _w((lambda *s: torch.randn(*s, dtype=torch.bfloat16) * 3.2)(D, F) * (D ** -0.5)),
            "b1": _w((lambda *s: torch.randn(*s, dtype=torch.bfloat16) * 3.2)(F) * 0.01),
            "w2": _w((lambda *s: torch.randn(*s, dtype=torch.bfloat16) * 0.8)(F, D) * (F ** -0.5)),
            "b2": _w((lambda *s: torch.randn(*s, dtype=torch.bfloat16) * 1.6)(D) * 0.01),
        }
    _B_in = _B_setup()

    return {
        "A_x": _A_in["x"],
        "A_c_kv": _A_in["c_kv"],
        "A_w_q": _A_in["w_q"],
        "A_w_uk": _A_in["w_uk"],
        "A_w_uv": _A_in["w_uv"],
        "A_w_o": _A_in["w_o"],
        "B_x": _B_in["x"],
        "B_w1": _B_in["w1"],
        "B_b1": _B_in["b1"],
        "B_w2": _B_in["w2"],
        "B_b2": _B_in["b2"],
        "gate_w": _w((lambda *s: torch.randn(*s, dtype=torch.bfloat16) * 0.05)(576) * 16.0),
    }

def reference(A_x, A_c_kv, A_w_q, A_w_uk, A_w_uv, A_w_o, B_x, B_w1, B_b1, B_w2, B_b2, gate_w):
    def _A_ref(x, c_kv, w_q, w_uk, w_uv, w_o):
        B, Sq, M = x.shape[0], x.shape[1], x.shape[2]
        Sk = c_kv.shape[1]
        H, D = w_q.shape[1], w_q.shape[2]
        q = torch.einsum("bqm,mhd->bhqd", x, w_q)
        k = torch.einsum("bkc,chd->bhkd", c_kv, w_uk)
        v = torch.einsum("bkc,chd->bhkd", c_kv, w_uv)
        scores = torch.einsum("bhqd,bhkd->bhqk", q, k) * (D ** -0.5)
        off = Sk - Sq
        qi = torch.arange(Sq)[:, None]
        kj = torch.arange(Sk)[None, :]
        cmask = kj <= (qi + off)
        scores = torch.where(cmask[None, None], scores, -1e9)
        p = _softmax(scores, axis=-1)
        ctx = torch.einsum("bhqk,bhkd->bhqd", p, v)
        return torch.einsum("bhqd,hdm->bqm", ctx, w_o)

    def _B_ref(x, w1, b1, w2, b2):
        h = torch.einsum("bsd,df->bsf", x, w1) + b1
        h = _gelu(h)
        return torch.einsum("bsf,fd->bsd", h, w2) + b2

    x = A_x
    g = _sigmoid((x * gate_w).sum(-1, keepdims=True))
    a = _A_ref(x, A_c_kv, A_w_q, A_w_uk, A_w_uv, A_w_o)
    b = _B_ref(x, B_w1, B_b1, B_w2, B_b2)
    return g * a + (1 - g) * b
```

```python
import re

TRANS = ("v_exp_f32", "v_log_f32", "v_rcp_f32", "v_rsq_f32", "v_sqrt_f32", "v_sin_f32", "v_cos_f32")

def regs(op):
    op = op.strip()
    neg = op.lstrip("-")
    m = re.fullmatch(r"abs\((.*)\)", neg)
    if m: neg = m.group(1)
    m = re.fullmatch(r"([vas])(\d+)", neg)
    if m: return {(m.group(1), int(m.group(2)))}
    m = re.fullmatch(r"([vas])\[(\d+):(\d+)\]", neg)
    if m: return {(m.group(1), i) for i in range(int(m.group(2)), int(m.group(3)) + 1)}
    if neg == "vcc": return {("s", 106), ("s", 107)}
    if neg == "vcc_lo": return {("s", 106)}
    if neg == "vcc_hi": return {("s", 107)}
    if neg == "m0": return {("s", 124)}
    if neg == "exec": return {("s", 126), ("s", 127)}
    if neg == "exec_lo": return {("s", 126)}
    if neg == "exec_hi": return {("s", 127)}
    return set()

def isv(r): return r[0] in "va"

class Ins:
    def __init__(self, line):
        self.line = line
        code = line.split(";")[0].strip()
        self.mn = None
        if not code or code.endswith(":") or code.startswith("."):
            return
        parts = code.split(None, 1)
        self.mn = parts[0]
        rest = parts[1] if len(parts) > 1 else ""
        ops = [o.strip() for o in re.split(r",(?![^\[]*\])", rest)] if rest else []
        self.mods = ""
        if ops:
            t = ops[-1].split(None, 1)
            ops[-1] = t[0]
            self.mods = t[1] if len(t) > 1 else ""
        self.ops = ops
        mn = self.mn
        self.kind = None
        self.w = set(); self.r = set()
        self.slots = 1
        R = [regs(o) for o in ops]
        if mn == "s_nop":
            self.kind = "nop"; self.slots = int(ops[0], 0) + 1
        elif mn.startswith("v_mfma"):
            self.kind = "mfma"; self.w = R[0]; self.A = R[1]; self.B = R[2]; self.C = R[3]; self.r = R[1] | R[2] | R[3]
            self.passes = 8 if "32x32" in mn else 4
        elif mn.startswith("v_"):
            self.kind = "valu"
            self.dpp = ("_dpp" in mn) or ("quad_perm" in self.mods) or ("row_" in self.mods)
            self.perm = mn.startswith("v_permlane")
            self.trans = mn.replace("_e32", "").replace("_e64", "") in TRANS
            self.rl = mn.startswith("v_readlane") or mn.startswith("v_readfirstlane")
            if self.perm:
                self.w = R[0] | R[1]; self.r = R[0] | R[1]
            else:
                self.w = set(R[0])
                for x in R[1:]: self.r |= x
                if mn.startswith(("v_fmac", "v_dot2c", "v_writelane")) or self.dpp: self.r |= R[0]
                if mn.startswith(("v_add_co", "v_sub_co", "v_addc_co", "v_subb_co")):
                    self.w |= R[1]
                if mn.startswith("v_cmpx"): self.w |= regs("exec")
        elif mn.startswith(("buffer_", "global_")):
            self.kind = "vmem"
            self.lds = " lds" in (" " + self.mods)
            self.store = ("store" in mn) or ("atomic" in mn)
            self.wide = mn.endswith(("x3", "x4"))
            self.data = set()
            if mn.startswith("buffer_wbl2") or mn.startswith("buffer_inv"):
                pass
            elif self.store:
                for x in R: self.r |= x
                self.data = R[0] if mn.startswith("buffer_") else R[1]
            elif self.lds:
                for x in R: self.r |= x
                self.r |= regs("m0")
            else:
                self.w = R[0]
                for x in R[1:]: self.r |= x
        elif mn.startswith("ds_"):
            self.kind = "ds"
            if mn.startswith(("ds_read", "ds_bpermute", "ds_swizzle", "ds_permute")):
                self.w = R[0]
                for x in R[1:]: self.r |= x
            else:
                for x in R: self.r |= x
        elif mn.startswith("s_"):
            self.kind = "salu"
            if mn.startswith(("s_cmp", "s_cbranch", "s_branch", "s_waitcnt", "s_barrier", "s_endpgm", "s_setprio", "s_sleep", "s_bitcmp")):
                for x in R: self.r |= x
            else:
                if R: self.w = R[0]
                for x in R[1:]: self.r |= x
                if "saveexec" in mn: self.w |= regs("exec")
        else:
            raise ValueError("unknown instr: " + line)

def need(p, c):
    n = 0
    if p.kind == "valu":
        wv = {r for r in p.w if isv(r)}; ws = {r for r in p.w if not isv(r)}
        if c.kind == "mfma" and wv & c.r: n = max(n, 2)
        if c.kind == "valu":
            if c.dpp and wv & c.r: n = max(n, 2)
            if c.perm and wv & c.r: n = max(n, 2)
            if p.trans and wv & c.r: n = max(n, 1)
            if c.rl and wv & c.r: n = max(n, 1)
            if ws & c.r: n = max(n, 4 if (c.rl or c.mn.startswith("v_writelane")) else 2)
        if c.kind == "vmem" and ws & c.r: n = max(n, 5)
        if c.kind == "salu" and ws & c.r: n = max(n, 1)
        if p.trans and c.kind in ("vmem", "ds") and wv & c.r: n = max(n, 1)
    elif p.kind == "mfma":
        P = p.passes
        big = {4: 8, 8: 12}[P]
        if c.kind == "mfma":
            if p.w & (c.A | c.B): n = max(n, big)
            if p.w & c.C and not (p.w == c.C and p.mn == c.mn): n = max(n, {4: 6, 8: 10}[P])
            if p.w & c.w and not (p.w == c.C): n = max(n, big)
        elif c.kind in ("valu", "vmem", "ds"):
            if p.w & (c.r | c.w): n = max(n, big)
            if c.kind == "valu" and p.C & c.w: n = max(n, {4: 3, 8: 7}[P])
    elif p.kind == "salu":
        if ("s", 124) in p.w and c.kind == "vmem" and c.lds: n = max(n, 1)
        if ("s", 124) in p.w and c.kind == "valu" and ("s", 124) in c.r: n = max(n, 1)
    elif p.kind == "vmem":
        if p.store and p.wide and p.data & c.w: n = max(n, 2)
    return n

def _req(hist, ins):
    req = 0; dist = 0
    for p in reversed(hist):
        n = need(p, ins)
        if n > dist: req = max(req, n - dist)
        dist += p.slots
        if dist >= 12: break
    return req

def _trim(h):
    d = 0; k = len(h)
    while k > 0 and d < 12:
        k -= 1; d += h[k].slots
    return h[k:]

def pad(lines):
    out = []
    hists = [[]]
    pending = {}
    seen = {}
    back = []
    added = 0
    for line in lines:
        ins = Ins(line)
        if ins.mn is None:
            code = line.split(";")[0].strip()
            if code.endswith(":"):
                lab = code[:-1]
                hists = hists + pending.pop(lab, [])
                if not hists: hists = [[]]
                seen[lab] = len(out)
            out.append((line, None)); continue
        req = max(_req(h, ins) for h in hists) if hists else 0
        if req > 0:
            nop = Ins("    s_nop %d" % (req - 1))
            out.append((nop.line + "  ; pad", nop)); added += req
            hists = [h + [nop] for h in hists]
        out.append((line, ins))
        hists = [_trim(h + [ins]) for h in hists]
        uniq = {}
        for h in hists: uniq[tuple(id(x) for x in h)] = h
        hists = list(uniq.values())
        if ins.mn.startswith("s_cbranch") or ins.mn == "s_branch":
            lab = ins.ops[0]
            if lab in seen: back.append((lab, [list(h) for h in hists]))
            else: pending.setdefault(lab, []).extend([list(h) for h in hists])
        if ins.mn in ("s_branch", "s_endpgm"):
            hists = []
    for lab, hs in back:
        for h in hs:
            h = list(h); d = 0
            for line, ins in out[seen[lab]:]:
                if ins is None: continue
                if _req(h, ins) > 0:
                    raise RuntimeError("hazard on backward edge to %s at: %s" % (lab, line))
                h.append(ins); d += ins.slots
                if d >= 12 or ins.mn in ("s_branch", "s_endpgm"): break
    assert not pending, pending.keys()
    return [l for l, _ in out], added
```

```python
import sys, os, math, struct
sys.path.insert(0, os.path.dirname(os.path.abspath(__file__)))
from hazard import pad

KNAME = "gated_mix__compressed_kv_cla__dense_activation_gelu__decode_kernel"

WS_BYTES = 256 << 20
EPOCH = 0x0
D1 = 0x4000
D3 = 0x8000
D2 = 0x10000
HB = 0x20000
H0 = 0x40000
QB = 0x80000
H3 = 0x100000
USTR = 32768 + 256
HH = 0x240000
OB = 0x400000
OSTR = 16384 + 256
STAMP = 0x800000
POISON = 0xFFA5FFA5
K0, K1 = 0x9E3779B9, 0x7F4A7C15
SPIN = 1 << 20

A_WUV = 0
A_QL = 32768
A_ZERO = 33280
A_CTXC = 33536
A_WT = 34048
A_RED = 34304
A_WO = 35840
B_QF = 0
B_PB = 16384
B_MX = 20480
B_HL = 21504
B_ZERO = 21760
B_CKV = 22528
B_W1 = B_CKV
B_W2 = B_CKV + 43008
LDS_BYTES = 153600

def f16sw(i):
    return (((i & 7) ^ ((i >> 3) << 2)) << 1) | (i >> 3)

def fbits(x):
    return struct.unpack("<I", struct.pack("<f", x))[0]

class G:
    def __init__(self, opt):
        self.l = []
        self.opt = opt
        self.nst = 0
    def __call__(self, s):
        for x in s.strip("\n").split("\n"):
            x = x.strip()
            if x: self.l.append("    " + x)
    def lab(self, n): self.l.append(n + ":")
    def c(self, s): self.l.append("    ; " + s)
    def stamp(self, i):
        if self.opt.get("stamps"):
            self(f"s_memrealtime s[{70+2*i}:{71+2*i}]")

def v(a, n=1): return f"v{a}" if n == 1 else f"v[{a}:{a+n-1}]"
def A(a, n=1): return f"a{a}" if n == 1 else f"a[{a}:{a+n-1}]"
def S(a, n=1): return f"s{a}" if n == 1 else f"s[{a}:{a+n-1}]"

sW = 3
WS, X = "s[4:7]", "s[8:11]"
sT = 40
sXCD, sI = 42, 43
sA, sH, sJ = 44, 45, 46
sHG, sB, sMSG, sU2 = 44, 45, 46, 47
sO, sO2, sO3, sCNT = 48, 49, 50, 51
sM1, sM2, sM3, sM4 = 52, 54, 56, 58
sPR = 60
sG0, sG1 = 61, 62
sTMP = 64
sPC = 66
sPOI = 68
sC = 69

def srd(g, base, slot, nbytes):
    g(f"s_load_dwordx2 s[{base}:{base+1}], s[0:1], {slot*8}")
    g(f"s_mov_b32 s{base+2}, {nbytes}")
    g(f"s_mov_b32 s{base+3}, 0x00020000")

def dump_stamps(g, n, tmpv):
    if not g.opt.get("stamps"): return
    g("s_waitcnt lgkmcnt(0)")
    g("s_mov_b64 exec, 1")
    g(f"s_lshl_b32 s{sO}, s2, 2")
    g(f"s_add_u32 s{sO}, s{sO}, s{sW}")
    g(f"s_lshl_b32 s{sO}, s{sO}, 6")
    g(f"s_add_u32 s{sO}, s{sO}, {STAMP}")
    g(f"v_mov_b32 v{tmpv+4}, 0")
    for q in range(0, 16, 4):
        for k in range(4):
            g(f"v_mov_b32 v{tmpv+k}, s{70+2*(q+k)}")
        g(f"buffer_store_dwordx4 {v(tmpv,4)}, v{tmpv+4}, {WS}, s{sO} offen offset:{q*4}")
        g("s_nop 1")
    g("s_waitcnt vmcnt(0)")

def spin_guard(g, out):
    g(f"s_add_u32 s{sCNT}, s{sCNT}, 1")
    g(f"s_cmp_gt_u32 s{sCNT}, {g.opt.get('spin', SPIN)}")
    g(f"s_cbranch_scc1 {out}")

def selectors(g, vSel, vL, t0, t1, t2):
    g(f"v_and_b32 v{t0}, 1, v{vL}")
    g(f"v_cmp_eq_u32 vcc, 1, v{t0}")
    g(f"v_mov_b32 v{t1}, 0x0c0c0100")
    g(f"v_mov_b32 v{t2}, 0x01000c0c")
    g(f"v_cndmask_b32 v{vSel+3}, v{t1}, v{t2}, vcc")
    g(f"v_mov_b32 v{t1}, 0x0c0c0302")
    g(f"v_mov_b32 v{t2}, 0x03020c0c")
    g(f"v_cndmask_b32 v{vSel+7}, v{t1}, v{t2}, vcc")
    g(f"v_bfe_u32 v{t0}, v{vL}, 1, 2")
    g(f"v_mov_b32 v{t1}, 0x0c0c0c0c")
    for d in range(4):
        g(f"v_cmp_eq_u32 vcc, {d}, v{t0}")
        g(f"v_cndmask_b32 v{vSel+d}, v{t1}, v{vSel+3}, vcc")
        g(f"v_cndmask_b32 v{vSel+4+d}, v{t1}, v{vSel+7}, vcc")

def unit_pattern(g, dst, vL, i_expr_sgpr, i_const, pitch, t0, t1):
    if i_expr_sgpr is not None:
        g(f"v_lshl_add_u32 v{t0}, s{i_expr_sgpr}, 6, v{vL}")
    else:
        g(f"v_add_u32 v{t0}, {64*i_const}, v{vL}")
    g(f"v_mul_u32_u24 v{t1}, 911, v{t0}")
    g(f"v_lshrrev_b32 v{t1}, 16, v{t1}")
    g(f"v_and_b32 v{dst}, 6, v{t1}")
    g(f"v_xor_b32 v{dst}, v{dst}, v{t0}")
    g(f"v_lshlrev_b32 v{dst}, 4, v{dst}")
    if pitch != 1152:
        g(f"v_mul_u32_u24 v{t1}, {pitch-1152}, v{t1}")
        g(f"v_add_u32 v{dst}, v{dst}, v{t1}")
assert all((911 * u) >> 16 == u // 72 for u in range(640))

def h3_addr(g, vH3, vH3x, vL, vN, vG, t0):
    g(f"v_lshrrev_b32 v{t0}, 3, v{vL}")
    g(f"v_mul_u32_u24 v{vH3}, {USTR}, v{t0}")
    g(f"v_and_b32 v{t0}, 7, v{vL}")
    g(f"v_lshl_add_u32 v{vH3}, v{t0}, 4, v{vH3}")
    g(f"v_lshrrev_b32 v{t0}, 5, v{vL}")
    g(f"v_mul_u32_u24 v{vH3x}, {USTR}, v{t0}")
    g(f"v_and_b32 v{t0}, 31, v{vL}")
    g(f"v_lshl_add_u32 v{vH3x}, v{t0}, 2, v{vH3x}")

def h3_soffs(g, s_main, s_left):
    g(f"s_lshl_b32 s{s_left}, s{sPR}, 7")
    g(f"s_add_u32 s{s_left}, s{s_left}, {H3}")
    g(f"s_mul_i32 s{s_main}, s{sW}, {8*USTR}")
    g(f"s_add_u32 s{s_main}, s{s_main}, s{s_left}")
    g(f"s_mul_i32 s{sTMP}, s{sW}, {2*USTR}")
    g(f"s_add_u32 s{s_left}, s{s_left}, s{sTMP}")
    g(f"s_add_u32 s{s_left}, s{s_left}, {32*USTR}")

def tr_pair_bases(g, vB0, vB1, vK0, vK1, vL, base, t0, t1, t2):
    g(f"v_lshrrev_b32 v{t0}, 2, v{vL}")
    g(f"v_bfe_u32 v{t1}, v{vL}, 1, 1")
    g(f"v_lshl_add_u32 v{t1}, s{sW}, 2, v{t1}")
    g(f"v_and_b32 v{t2}, 6, v{t0}")
    g(f"v_xor_b32 v{t2}, v{t2}, v{t1}")
    g(f"v_lshlrev_b32 v{t2}, 4, v{t2}")
    g(f"v_mul_u32_u24 v{vB0}, 1152, v{t0}")
    g(f"v_add_u32 v{vB0}, v{vB0}, v{t2}")
    g(f"v_and_b32 v{t2}, 1, v{vL}")
    g(f"v_lshlrev_b32 v{t2}, 3, v{t2}")
    g(f"v_add_u32 v{vB0}, v{vB0}, v{t2}")
    g(f"v_xor_b32 v{vB1}, 32, v{vB0}")
    if base:
        g(f"v_add_u32 v{vB0}, {base}, v{vB0}")
        g(f"v_add_u32 v{vB1}, {base}, v{vB1}")
    if vK0 is not None:
        g(f"v_and_b32 v{t0}, 3, v{t0}")
        g(f"v_and_b32 v{vK0}, 2, v{t0}")
        g(f"v_xor_b32 v{vK0}, v{vK0}, v{t1}")
        g(f"v_lshlrev_b32 v{vK0}, 4, v{vK0}")
        g(f"v_mul_u32_u24 v{t0}, 1152, v{t0}")
        g(f"v_add3_u32 v{vK0}, v{vK0}, v{t0}, v{t2}")
        g(f"v_xor_b32 v{vK1}, 32, v{vK0}")
        g(f"v_add_u32 v{vK0}, {base + 32*1152}, v{vK0}")
        g(f"v_add_u32 v{vK1}, {base + 32*1152}, v{vK1}")

MF = "v_mfma_f32_16x16x32_bf16"
MF16 = "v_mfma_f32_16x16x16_bf16"

def gen(opt):
    g = G(opt)
    NT = opt.get("nt", "nt")
    PFL = opt.get("pf_lines", 6)
    CODE_BYTES = 32 * 128 * PFL
    vL, vN, vG = 1, 2, 3
    g.stamp(0)
    g(f"s_getpc_b64 s[{sPC}:{sPC+1}]")
    g("s_cmp_ge_u32 s2, 256")
    g("s_cbranch_scc1 L_end")
    srd(g, 4, 14, WS_BYTES)
    srd(g, 8, 0, 2304)
    g(f"""
    v_lshrrev_b32 v4, 6, v0
    v_and_b32 v{vL}, 63, v0
    s_and_b32 s{sXCD}, s2, 7
    v_readfirstlane_b32 s{sW}, v4
    s_bfe_u32 s{sI}, s2, 0x40003
    v_and_b32 v{vN}, 15, v0
    v_bfe_u32 v{vG}, v0, 4, 2
    s_mov_b32 s{sPOI}, {POISON}
    s_cmp_ge_u32 s2, 128
    s_cbranch_scc1 L_B
    """)
    gen_A(g, NT, PFL, vL, vN, vG)
    g.lab("L_B")
    gen_B(g, NT, PFL, vL, vN, vG)
    g.lab("L_end")
    lines, added = pad(g.l)
    body = "\n".join(lines)
    hdr = open(os.path.join(os.path.dirname(os.path.abspath(__file__)), "header.txt")).read()
    return f"""{hdr}; @launch grid=(256,1,1) block=(256,1,1) lds={LDS_BYTES}
.amdgcn_target "amdgcn-amd-amdhsa--gfx950"
.text
.globl {KNAME}
.p2align 8
.type {KNAME},@function
{KNAME}:
{body}
    s_endpgm
L_code_end:
.fill ({CODE_BYTES} + 256 - (L_code_end - {KNAME})) / 4, 4, 0xbf800000
.section .rodata,"a"
.p2align 6
.amdhsa_kernel {KNAME}
  .amdhsa_next_free_vgpr 512
  .amdhsa_next_free_sgpr 102
  .amdhsa_accum_offset 256
  .amdhsa_group_segment_fixed_size 0
  .amdhsa_kernarg_size 120
  .amdhsa_user_sgpr_count 2
  .amdhsa_user_sgpr_kernarg_segment_ptr 1
  .amdhsa_system_sgpr_workgroup_id_x 1
.end_amdhsa_kernel
"""

def code_prefetch(g, PFL, vL, t0, t1):
    g(f"s_lshr_b32 s{sO}, s2, 3")
    g(f"s_mul_i32 s{sO}, s{sO}, {PFL*128}")
    g(f"v_lshl_add_u32 v{t0}, v{vL}, 7, s{sO}")
    g(f"s_mov_b64 exec, {(1 << PFL) - 1}")
    g(f"global_load_dword v255, v{t0}, s[{sPC}:{sPC+1}]")
    g("s_mov_b64 exec, -1")

def load_tag(g):
    g(f"s_load_dwordx2 s[{sT}:{sT+1}], s[4:5], {EPOCH}")

def finish_tag(g):
    g("s_waitcnt lgkmcnt(0)")
    g(f"s_add_u32 s{sT}, s{sT}, {K0}")
    g(f"s_add_u32 s{sT+1}, s{sT+1}, {K1}")

def gen_A(g, NT, PFL, vL, vN, vG):
    WQ, WUK, WUV, WO, B2, GATE, OUT = "s[12:15]", "s[16:19]", "s[20:23]", "s[24:27]", "s[28:31]", "s[32:35]", "s[36:39]"
    t0, t1, t2, t3 = 4, 5, 6, 7
    vPOI = 8
    vSel = 12
    vX = 20
    vF = 40
    vQ = 48
    vR = 56
    vQlo, vQhi = 80, 84
    vAcc = 88
    vGr = 104
    vA_wq, vA_uk, vA_h1, vA_l16 = 108, 109, 110, 111
    vA_qlo, vA_qhi = 112, 113
    vTag = 114
    aWQ, aUK = 0, 144
    srd(g, 12, 2, 576 * 8192)
    srd(g, 16, 3, 512 * 8192)
    g(f"""
    s_lshr_b32 s{sH}, s{sI}, 2
    s_lshl_b32 s{sH}, s{sH}, 3
    s_add_u32 s{sH}, s{sH}, s{sXCD}
    s_and_b32 s{sJ}, s{sI}, 3
    s_lshl_b32 s{sA}, s{sH}, 2
    s_add_u32 s{sA}, s{sA}, s{sJ}
    s_mov_b32 s{sPR}, s{sA}
    """)
    g(f"""
    v_bfe_u32 v{t0}, v{vL}, 2, 2
    v_lshlrev_b32 v{vA_uk}, 16, v{t0}
    v_lshl_add_u32 v{vA_uk}, v{vG}, 6, v{vA_uk}
    v_and_b32 v{t1}, 3, v{vL}
    v_lshl_add_u32 v{vA_uk}, v{t1}, 4, v{vA_uk}
    s_lshl_b32 s{sO2}, s{sJ}, 2
    s_add_u32 s{sO2}, s{sO2}, s{sW}
    s_lshl_b32 s{sO2}, s{sO2}, 18
    s_lshl_b32 s{sO3}, s{sH}, 8
    s_add_u32 s{sO2}, s{sO2}, s{sO3}
    s_cmp_lg_u32 s{sW}, 0
    s_cbranch_scc1 L_A_w123
    """)
    g(f"""
    v_bfe_u32 v{t0}, v{vL}, 3, 1
    v_mul_u32_u24 v{t0}, 1152, v{t0}
    v_mul_u32_u24 v{t1}, 72, v{vG}
    v_add_u32 v{t0}, v{t0}, v{t1}
    s_mul_i32 s{sO}, s{sJ}, 288
    v_mul_u32_u24 v{vA_wq}, {36*8192}, v{vG}
    v_lshl_add_u32 v{vA_wq}, v{vN}, 4, v{vA_wq}
    s_mul_i32 s{sTMP}, s{sJ}, {144*8192}
    s_add_u32 s{sO3}, s{sO3}, s{sTMP}
    s_waitcnt lgkmcnt(0)
    """)
    load_tag(g)
    for k in range(4):
        g(f"buffer_load_dwordx4 {v(vX+4*k,4)}, v{t0}, {X}, s{sO} offen offset:{16*k}")
    g(f"buffer_load_dwordx2 {v(vX+16,2)}, v{t0}, {X}, s{sO} offen offset:64")
    for i in range(36):
        g(f"buffer_load_dwordx4 {A(aWQ+4*i,4)}, v{vA_wq}, {WQ}, s{sO3} offen {NT}")
        if i != 35: g(f"s_addk_i32 s{sO3}, 0x2000")
    g("s_branch L_A_uk")
    g.lab("L_A_w123")
    g(f"s_cmp_lg_u32 s{sW}, 3")
    g("s_cbranch_scc1 L_A_nopf")
    code_prefetch(g, PFL, vL, t0, t1)
    g.lab("L_A_nopf")
    g("s_waitcnt lgkmcnt(0)")
    load_tag(g)
    g("s_barrier")
    g.lab("L_A_uk")
    for u in range(8):
        t, half = u >> 1, u & 1
        g(f"s_add_u32 s{sO}, s{sO2}, {(4*half+t)*8192}")
        g(f"buffer_load_dwordx4 {A(aUK+4*u,4)}, v{vA_uk}, {WUK}, s{sO} offen {NT}")
    g(f"s_cmp_lg_u32 s{sW}, 0")
    g("s_cbranch_scc1 L_A_nb0")
    g("s_barrier")
    g.lab("L_A_nb0")
    g.stamp(1)
    srd(g, 20, 4, 512 * 8192)
    srd(g, 24, 5, 4096 * 1152)
    srd(g, 28, 10, 1152)
    srd(g, 32, 11, 1152)
    srd(g, 36, 12, 2304)
    for k in range(4): g(f"v_mov_b32 v{vPOI+k}, s{sPOI}")
    g(f"""
    v_bfe_u32 v{t0}, v{vL}, 2, 2
    v_lshlrev_b32 v{vA_h1}, 15, v{vG}
    v_lshl_add_u32 v{vA_h1}, v{t0}, 4, v{vA_h1}
    s_lshl_b32 s{sO2}, s{sA}, 8
    s_lshl_b32 s{sO}, s{sW}, 6
    s_add_u32 s{sO2}, s{sO2}, s{sO}
    s_add_u32 s{sO2}, s{sO2}, {QB}
    s_mov_b64 exec, 0x11111111
    buffer_store_dwordx4 {v(vPOI,4)}, v{vA_h1}, {WS}, s{sO2} offen sc1
    s_mov_b64 exec, -1
    v_lshlrev_b32 v{vA_l16}, 4, v{vL}
    """)
    selectors(g, vSel, vL, t0, t1, t2)
    g(f"""
    v_bfe_u32 v{t0}, v{vL}, 2, 1
    v_lshlrev_b32 v{t0}, 8, v{t0}
    v_lshl_add_u32 v{t0}, v{vG}, 6, v{t0}
    v_and_b32 v{t1}, 3, v{vL}
    v_lshl_add_u32 v{t0}, v{t1}, 4, v{t0}
    v_add_u32 v{t0}, {A_QL}, v{t0}
    v_mov_b32 v{t1}, {A_ZERO}
    v_cmp_gt_u32 vcc, 8, v{vN}
    v_cndmask_b32 v{vA_qlo}, v{t1}, v{t0}, vcc
    v_cndmask_b32 v{vA_qhi}, v{t0}, v{t1}, vcc
    v_and_b32 v{t0}, 1, v{vL}
    v_cmp_eq_u32 s[{sM1}:{sM1+1}], 1, v{t0}
    v_and_b32 v{t0}, 2, v{vL}
    v_cmp_eq_u32 s[{sM2}:{sM2+1}], 2, v{t0}
    """)
    finish_tag(g)
    g(f"v_mov_b32 v{vTag}, s{sT}")
    g(f"v_mov_b32 v{vTag+1}, s{sT+1}")
    g(f"s_cmp_lg_u32 s{sW}, 0")
    g("s_cbranch_scc1 L_A_h0wait")
    g(f"""
    v_mov_b32 v{vQ}, s{sT}
    v_mov_b32 v{vQ+1}, s{sT+1}
    v_mov_b32 v{vQ+6}, s{sT}
    v_mov_b32 v{vQ+7}, s{sT+1}
    v_mov_b32 v{t0}, 0
    v_mov_b32 v{t1}, 0
    v_mov_b32 v{t2}, {A_ZERO}
    ds_write_b64 v{t2}, {v(t0,2)}
    ds_write_b64 v{t2}, {v(t0,2)} offset:8
    s_lshl_b32 s{sO}, s{sA}, 11
    s_add_u32 s{sO}, s{sO}, {H0}
    s_waitcnt vmcnt({36+8+1})
    """)
    def frag(i):
        for d in range(4):
            g(f"v_perm_b32 v{vF+4*(i&1)+d}, v{vX+(i>>1)}, v{vX+(i>>1)}, v{vSel+4*(i&1)+d}")
    frag(0)
    for i in range(36):
        if i + 1 < 36: frag(i + 1)
        g(f"s_waitcnt vmcnt({35-i+8+1})")
        g(f"{MF} {v(vQ+2,4)}, {v(vF+4*(i&1),4)}, {A(aWQ+4*i,4)}, {'0' if i == 0 else v(vQ+2,4)}")
    g.stamp(2)
    g(f"buffer_store_dwordx4 {v(vQ,4)}, v{vA_l16}, {WS}, s{sO} offen sc1")
    g(f"buffer_store_dwordx4 {v(vQ+4,4)}, v{vA_l16}, {WS}, s{sO} offen offset:1024 sc1")
    for k in range(1, 4):
        g(f"s_xor_b32 s{sTMP}, s{sA}, {k}")
        g(f"s_lshl_b32 s{sTMP}, s{sTMP}, 11")
        g(f"s_add_u32 s{[0,sO,sO3,sC][k]}, s{sTMP}, {H0}")
    sib = [0, sO, sO3, sC]
    g(f"s_mov_b32 s{sCNT}, 0")
    g.lab("L_A_h0poll")
    for k in range(1, 4):
        g(f"buffer_load_dwordx4 {v(vR+8*(k-1),4)}, v{vA_l16}, {WS}, s{sib[k]} offen sc1")
        g(f"buffer_load_dwordx4 {v(vR+8*(k-1)+4,4)}, v{vA_l16}, {WS}, s{sib[k]} offen offset:1024 sc1")
    spin_guard(g, "L_A_h0done")
    g("s_waitcnt vmcnt(0)")
    for k in range(3):
        g(f"v_cmp_ne_u64 vcc, s[{sT}:{sT+1}], {v(vR+8*k,2)}")
        g(f"v_cmp_ne_u64 s[{sM3}:{sM3+1}], s[{sT}:{sT+1}], {v(vR+8*k+6,2)}")
        if k == 0: g(f"s_or_b64 s[{sM4}:{sM4+1}], vcc, s[{sM3}:{sM3+1}]")
        else:
            g(f"s_or_b64 s[{sM4}:{sM4+1}], s[{sM4}:{sM4+1}], vcc")
            g(f"s_or_b64 s[{sM4}:{sM4+1}], s[{sM4}:{sM4+1}], s[{sM3}:{sM3+1}]")
    g("s_cbranch_scc1 L_A_h0poll")
    g.lab("L_A_h0done")
    g("s_waitcnt vmcnt(0)")
    g(f"v_pk_add_f32 {v(vQ+2,2)}, {v(vQ+2,2)}, {v(vR+2,2)}")
    g(f"v_pk_add_f32 {v(vQ+4,2)}, {v(vQ+4,2)}, {v(vR+4,2)}")
    g(f"v_pk_add_f32 {v(vR+10,2)}, {v(vR+10,2)}, {v(vR+18,2)}")
    g(f"v_pk_add_f32 {v(vR+12,2)}, {v(vR+12,2)}, {v(vR+20,2)}")
    g(f"v_pk_add_f32 {v(vQ+2,2)}, {v(vQ+2,2)}, {v(vR+10,2)}")
    g(f"v_pk_add_f32 {v(vQ+4,2)}, {v(vQ+4,2)}, {v(vR+12,2)}")
    g(f"""
    v_lshrrev_b32 v{t0}, 1, v{vG}
    v_lshlrev_b32 v{t0}, 8, v{t0}
    v_lshl_add_u32 v{t0}, v{vN}, 4, v{t0}
    v_and_b32 v{t1}, 1, v{vG}
    v_lshl_add_u32 v{t0}, v{t1}, 3, v{t0}
    v_cvt_pk_bf16_f32 v{vQ}, v{vQ+2}, v{vQ+3}
    v_cvt_pk_bf16_f32 v{vQ+1}, v{vQ+4}, v{vQ+5}
    ds_write_b64 v{t0}, {v(vQ,2)} offset:{A_QL}
    """)
    g.lab("L_A_h0wait")
    g("s_waitcnt vmcnt(0) lgkmcnt(0)")
    g("s_barrier")
    g.stamp(3)
    g(f"ds_read_b128 {v(vQlo,4)}, v{vA_qlo}")
    g(f"ds_read_b128 {v(vQhi,4)}, v{vA_qhi}")
    g(f"s_cmp_lg_u32 s{sW}, 1")
    g("s_cbranch_scc1 L_A_nod1")
    g(f"""
    s_lshl_b32 s{sO}, s{sA}, 7
    s_add_u32 s{sO}, s{sO}, {D1}
    s_mov_b64 exec, 1
    buffer_store_dwordx2 {v(vTag,2)}, v{vA_l16}, {WS}, s{sO} offen sc1
    s_mov_b64 exec, -1
    """)
    g.lab("L_A_nod1")
    g("s_waitcnt lgkmcnt(0)")
    for t in range(4):
        g(f"{MF} {v(vAcc+4*t,4)}, {v(vQlo,4)}, {A(aUK+8*t,4)}, 0")
    for t in range(4):
        g(f"{MF} {v(vAcc+4*t,4)}, {v(vQhi,4)}, {A(aUK+8*t+4,4)}, {v(vAcc+4*t,4)}")
    for t in range(4):
        a0 = vAcc + 4 * t
        g(f"v_cndmask_b32 v{a0}, v{a0}, v{a0+1}, s[{sM1}:{sM1+1}]")
        g(f"v_cndmask_b32 v{a0+2}, v{a0+2}, v{a0+3}, s[{sM1}:{sM1+1}]")
        g(f"v_cndmask_b32 v{a0}, v{a0}, v{a0+2}, s[{sM2}:{sM2+1}]")
    for t in range(4):
        a0 = vAcc + 4 * t
        g(f"v_add_f32_dpp v{a0+1}, v{a0}, v{a0} quad_perm:[1,0,3,2] row_mask:0xf bank_mask:0xf")
    for t in range(4):
        a0 = vAcc + 4 * t
        g(f"v_add_f32_dpp v{a0}, v{a0+1}, v{a0+1} quad_perm:[2,3,0,1] row_mask:0xf bank_mask:0xf")
    g(f"v_cvt_pk_bf16_f32 v{vGr}, v{vAcc}, v{vAcc+4}")
    g(f"v_cvt_pk_bf16_f32 v{vGr+1}, v{vAcc+8}, v{vAcc+12}")
    g(f"v_permlane32_swap_b32 v{vGr}, v{vGr+2}")
    g(f"v_permlane32_swap_b32 v{vGr+1}, v{vGr+3}")
    g(f"""
    s_mov_b64 exec, 0x11111111
    buffer_store_dwordx4 {v(vGr,4)}, v{vA_h1}, {WS}, s{sO2} offen sc1
    s_mov_b64 exec, -1
    """)
    g.stamp(4)
    vUV0, vUV1 = 20, 21
    vP = 22
    vH3, vH3x = 31, 32
    sH3m, sH3l = 63, 47
    g(f"""
    v_lshlrev_b32 v{t0}, 1, v{vG}
    v_xor_b32 v{t0}, v{t0}, v{vN}
    v_lshlrev_b32 v{vUV0}, 17, v{vG}
    v_lshl_add_u32 v{vUV0}, v{t0}, 4, v{vUV0}
    v_xor_b32 v{vUV1}, 128, v{vUV0}
    s_lshl_b32 s{sO}, s{sJ}, 5
    s_add_u32 s{sO}, s{sO}, s{sW}
    s_lshl_b32 s{sO}, s{sO}, 15
    s_lshl_b32 s{sO3}, s{sH}, 8
    s_add_u32 s{sO}, s{sO}, s{sO3}
    s_lshl_b32 s{sO3}, s{sW}, 13
    """)
    for z in range(8):
        hi, gg = z >> 2, z & 3
        g(f"s_add_u32 m0, s{sO3}, {A_WUV + z*1024}")
        g(f"s_add_u32 s{sTMP}, s{sO}, {(64*hi+gg)*8192}")
        g(f"buffer_load_dwordx4 v{vUV1 if z & 1 else vUV0}, {WUV}, s{sTMP} offen {NT} lds")
    h3_addr(g, vH3, vH3x, vL, vN, vG, t0)
    h3_soffs(g, sH3m, sH3l)
    g(f"buffer_store_dwordx4 {v(vPOI,4)}, v{vH3}, {WS}, s{sH3m} offen sc1")
    g(f"s_cmp_gt_u32 s{sW}, 1")
    g("s_cbranch_scc1 L_A_nor3")
    g(f"buffer_store_dword v{vPOI}, v{vH3x}, {WS}, s{sH3l} offen sc1")
    g.lab("L_A_nor3")
    g(f"""
    s_lshl_b32 s{sO}, s{sA}, 2
    s_add_u32 s{sO}, s{sO}, s{sW}
    s_mul_i32 s{sO}, s{sO}, 9216
    s_mul_i32 s{sO3}, s{sW}, 9216
    """)
    for i in range(9):
        unit_pattern(g, vP + i, vL, None, i, 1152, t0, t1)
        g(f"s_add_u32 m0, s{sO3}, {A_WO + i*1024}")
        g(f"buffer_load_dwordx4 v{vP+i}, {WO}, s{sO} offen {NT} lds")
    vTU0, vTU1, vTO0, vTO1 = 33, 34, 35, 36
    vCX, vCW, vHBs, vHBl, vD2, vOg, vWTw, vWTr = 37, 38, 39, 40, 41, 42, 43, 44
    g(f"""
    v_lshrrev_b32 v{t0}, 2, v{vL}
    v_bfe_u32 v{t1}, v{vL}, 1, 1
    v_lshl_add_u32 v{t1}, s{sW}, 2, v{t1}
    v_and_b32 v{t2}, 7, v{t0}
    v_lshlrev_b32 v{t2}, 1, v{t2}
    v_xor_b32 v{t1}, v{t1}, v{t2}
    v_lshlrev_b32 v{vTU0}, 8, v{t0}
    v_lshl_add_u32 v{vTU0}, v{t1}, 4, v{vTU0}
    v_and_b32 v{t1}, 1, v{vL}
    v_lshl_add_u32 v{vTU0}, v{t1}, 3, v{vTU0}
    v_xor_b32 v{vTU1}, 32, v{vTU0}
    """)
    assert A_WUV == 0
    tr_pair_bases(g, vTO0, vTO1, None, None, vL, A_WO, t0, t1, t2)
    g(f"""
    v_and_b32 v{t0}, 1, v{vL}
    v_lshlrev_b32 v{vCX}, 8, v{t0}
    v_lshl_add_u32 v{vCX}, v{vG}, 4, v{vCX}
    v_add_u32 v{vCX}, {A_CTXC}, v{vCX}
    v_and_b32 v{t0}, 1, v{vG}
    v_lshlrev_b32 v{vCW}, 3, v{t0}
    v_lshl_add_u32 v{vCW}, v{vN}, 4, v{vCW}
    v_lshl_add_u32 v{vCW}, s{sW}, 8, v{vCW}
    v_lshlrev_b32 v{vHBs}, 6, v{vG}
    v_lshl_add_u32 v{vHBs}, v{vN}, 4, v{vHBs}
    v_and_b32 v{t0}, 3, v{vL}
    v_lshlrev_b32 v{vHBl}, 8, v{t0}
    v_lshl_add_u32 v{vHBl}, v{vG}, 6, v{vHBl}
    v_bfe_u32 v{t0}, v{vL}, 2, 1
    v_lshl_add_u32 v{vHBl}, v{t0}, 4, v{vHBl}
    v_and_b32 v{t0}, 31, v{vL}
    v_lshlrev_b32 v{vD2}, 8, v{t0}
    v_lshlrev_b32 v{vOg}, 11, v{vG}
    v_lshl_add_u32 v{vOg}, v{vN}, 4, v{vOg}
    v_lshlrev_b32 v{vWTw}, 1, v{t0}
    v_lshl_add_u32 v{vWTw}, s{sW}, 6, v{vWTw}
    v_lshlrev_b32 v{vWTr}, 4, v{vG}
    v_lshl_add_u32 v{vWTr}, s{sW}, 6, v{vWTr}
    v_cmp_gt_u32 s[{sM1}:{sM1+1}], 8, v{vN}
    """)
    vGx, vGw, vB2 = 48, 60, 72
    vOA, vFB = 73, 74
    g(f"v_mov_b32 v{vOA}, 0")
    g(f"s_cmp_lg_u32 s{sW}, 0")
    g("s_cbranch_scc1 L_A_nogate")
    g(f"s_cmp_ge_u32 s{sA}, 36")
    g("s_cbranch_scc1 L_A_nogate")
    g(f"""
    v_and_b32 v{t0}, 31, v{vL}
    v_mul_u32_u24 v{t1}, 36, v{t0}
    v_lshrrev_b32 v{t2}, 5, v{vL}
    v_mul_u32_u24 v{t2}, 1152, v{t2}
    v_add_u32 v{t2}, v{t2}, v{t1}
    buffer_load_dwordx4 {v(vGx,4)}, v{t2}, {X}, 0 offen
    buffer_load_dwordx4 {v(vGx+4,4)}, v{t2}, {X}, 0 offen offset:16
    buffer_load_dword v{vGx+8}, v{t2}, {X}, 0 offen offset:32
    buffer_load_dwordx4 {v(vGw,4)}, v{t1}, {GATE}, 0 offen
    buffer_load_dwordx4 {v(vGw+4,4)}, v{t1}, {GATE}, 0 offen offset:16
    buffer_load_dword v{vGw+8}, v{t1}, {GATE}, 0 offen offset:32
    """)
    g(f"""
    s_cmp_ge_u32 s{sA}, 32
    s_cbranch_scc1 L_A_uleft
    s_lshr_b32 s{sO}, s{sA}, 2
    s_lshl_b32 s{sO}, s{sO}, 4
    s_and_b32 s{sO3}, s{sA}, 1
    s_lshl_b32 s{sO3}, s{sO3}, 3
    s_add_u32 s{sO}, s{sO}, s{sO3}
    v_and_b32 v{t1}, 3, v{t0}
    v_lshlrev_b32 v{t1}, 7, v{t1}
    v_lshrrev_b32 v{t2}, 2, v{t0}
    v_add3_u32 v{t1}, v{t1}, v{t2}, s{sO}
    s_bfe_u32 s{sO3}, s{sA}, 0x10001
    v_mov_b32 v{vFB}, s{sO3}
    s_branch L_A_ujoin
    """)
    g.lab("L_A_uleft")
    g(f"""
    s_lshl_b32 s{sO}, s{sA}, 4
    v_and_b32 v{t1}, 15, v{t0}
    v_add_u32 v{t1}, s{sO}, v{t1}
    v_lshrrev_b32 v{vFB}, 4, v{t0}
    """)
    g.lab("L_A_ujoin")
    g(f"""
    v_lshlrev_b32 v{t1}, 1, v{t1}
    buffer_load_ushort v{vB2}, v{t1}, {B2}, 0 offen
    v_mul_u32_u24 v{vOA}, 1152, v{vFB}
    v_add_u32 v{vOA}, v{vOA}, v{t1}
    s_waitcnt vmcnt(0)
    v_mov_b32 v{t0}, 0
    """)
    for k in range(9):
        g(f"v_dot2_f32_bf16 v{t0}, v{vGx+k}, v{vGw+k}, v{t0}")
    g("s_nop 2")
    for r in (8, 4, 2, 1):
        g(f"v_add_f32_dpp v{t0}, v{t0}, v{t0} row_ror:{r} row_mask:0xf bank_mask:0xf")
    g(f"""
    v_mov_b32 v{t1}, v{t0}
    v_permlane16_swap_b32 v{t0}, v{t1}
    v_add_f32 v{t0}, v{t0}, v{t1}
    v_mul_f32 v{t0}, {hex(fbits(-math.log2(math.e)))}, v{t0}
    v_exp_f32 v{t0}, v{t0}
    v_add_f32 v{t0}, 1.0, v{t0}
    v_rcp_f32 v{t0}, v{t0}
    v_readlane_b32 s{sG0}, v{t0}, 0
    v_readlane_b32 s{sG1}, v{t0}, 32
    v_cmp_eq_u32 vcc, 1, v{vFB}
    v_mov_b32 v{t0}, s{sG0}
    v_mov_b32 v{t1}, s{sG1}
    v_cndmask_b32 v{vFB}, v{t0}, v{t1}, vcc
    v_lshlrev_b32 v{vB2}, 16, v{vB2}
    """)
    g.lab("L_A_nogate")
    g("s_waitcnt vmcnt(0)")
    g("s_barrier")
    g.stamp(5)
    aUV, aWO = 0, 32
    for tau in range(2):
        for ks in range(4):
            for hi in range(2):
                g(f"ds_read_b64_tr_b16 {A(aUV+(tau*4+ks)*4+2*hi,2)}, v{vTU1 if tau else vTU0} offset:{ks*8192+hi*4096}")
    for t in range(5):
        if t == 4:
            g(f"s_cmp_gt_u32 s{sW}, 1")
            g("s_cbranch_scc1 L_A_ctxwait")
        for x in range(2):
            for hi in range(2):
                g(f"ds_read_b64_tr_b16 {A(aWO+(t*2+x)*4+2*hi,2)}, v{vTO1 if x else vTO0} offset:{hi*16*1152+t*256}")
    vDB = 76
    vO = 80
    vFr = 116
    vWt = 148
    vD = 152
    vLs = 156
    g(f"""
    s_lshr_b32 s{sO}, s{sH}, 4
    s_lshl_b32 s{sO}, s{sO}, 1
    s_add_u32 s{sO}, s{sO}, s{sW}
    s_lshl_b32 s{sO}, s{sO}, 13
    s_and_b32 s{sO3}, s{sH}, 15
    s_lshl_b32 s{sO3}, s{sO3}, 4
    s_add_u32 s{sO}, s{sO}, s{sO3}
    s_add_u32 s{sO}, s{sO}, {D2}
    s_mul_i32 s{sO3}, s{sA}, {OSTR}
    s_lshl_b32 s{sTMP}, s{sW}, 13
    s_add_u32 s{sO3}, s{sO3}, s{sTMP}
    s_add_u32 s{sO3}, s{sO3}, {OB}
    s_mov_b32 s{sCNT}, 0
    """)
    g.lab("L_A_d2poll")
    g(f"buffer_load_dwordx4 {v(vDB,4)}, v{vD2}, {WS}, s{sO} offen sc1")
    spin_guard(g, "L_A_d2done")
    g("s_waitcnt vmcnt(0)")
    g(f"v_cmp_ne_u64 vcc, s[{sT}:{sT+1}], {v(vDB+2,2)}")
    g("s_cbranch_vccnz L_A_d2poll")
    g.lab("L_A_d2done")
    g("s_waitcnt vmcnt(0)")
    g.stamp(6)
    def ogather():
        for u in range(8):
            g(f"buffer_load_dwordx4 {v(vO+4*u,4)}, v{vOg}, {WS}, s{sO3} offen offset:{u*256} sc1")
    early = g.opt.get("o_early", 1)
    if early: ogather()
    g(f"v_max_f32_dpp v{t0}, v{vDB}, v{vDB} row_ror:8 row_mask:0xf bank_mask:0xf")
    for r in (4, 2, 1):
        g(f"v_max_f32_dpp v{t0}, v{t0}, v{t0} row_ror:{r} row_mask:0xf bank_mask:0xf")
    g(f"""
    v_mov_b32 v{t1}, v{t0}
    v_permlane16_swap_b32 v{t0}, v{t1}
    v_max_f32 v{t0}, v{t0}, v{t1}
    v_sub_f32 v{t0}, v{vDB}, v{t0}
    v_exp_f32 v{t0}, v{t0}
    v_cvt_pk_bf16_f32 v{t0}, v{t0}, v{t0}
    ds_write_b16 v{vWTw}, v{t0} offset:{A_WT}
    v_and_b32 v{t0}, 0xffff0000, v{t0}
    v_mul_f32 v{vLs}, v{t0}, v{vDB+1}
    s_waitcnt lgkmcnt(0)
    ds_read_b128 {v(vWt,4)}, v{vWTr} offset:{A_WT}
    """)
    for r in (8, 4, 2, 1):
        g(f"v_add_f32_dpp v{vLs}, v{vLs}, v{vLs} row_ror:{r} row_mask:0xf bank_mask:0xf")
    g(f"""
    v_mov_b32 v{t1}, v{vLs}
    v_permlane16_swap_b32 v{vLs}, v{t1}
    v_add_f32 v{vLs}, v{vLs}, v{t1}
    v_rcp_f32 v{vLs}, v{vLs}
    s_waitcnt lgkmcnt(0)
    """)
    for u in range(8):
        for d in range(4):
            g(f"v_perm_b32 v{vFr+4*u+d}, v{vWt+(u>>1)}, v{vWt+(u>>1)}, v{vSel+4*(u&1)+d}")
    g(f"s_mov_b32 s{sCNT}, 0")
    if early: g("s_branch L_A_ocomb")
    g.lab("L_A_oretry")
    ogather()
    g.lab("L_A_ocomb")
    for u in range(8):
        g(f"s_waitcnt vmcnt({7-u})")
        g(f"{MF} {v(vD,4)}, {v(vFr+4*u,4)}, {v(vO+4*u,4)}, {'0' if u == 0 else v(vD,4)}")
    g(f"v_cmp_u_f32 vcc, v{vD}, v{vD}")
    g("s_cbranch_vccz L_A_ook")
    spin_guard(g, "L_A_ook")
    g(f"s_mov_b64 s[{sM4}:{sM4+1}], 0")
    for u in range(8):
        g(f"v_cmp_eq_u32 vcc, s{sPOI}, v{vO+4*u}")
        g(f"s_or_b64 s[{sM4}:{sM4+1}], s[{sM4}:{sM4+1}], vcc")
    g("s_cbranch_scc1 L_A_oretry")
    g.lab("L_A_ook")
    for r in range(4):
        g(f"v_mul_f32 v{vD+r}, v{vLs}, v{vD+r}")
    g(f"v_cvt_pk_bf16_f32 v{vD}, v{vD}, v{vD+1}")
    g(f"v_cvt_pk_bf16_f32 v{vD+1}, v{vD+2}, v{vD+3}")
    g(f"ds_write_b64 v{vCW}, {v(vD,2)} offset:{A_CTXC}")
    g.lab("L_A_ctxwait")
    g("s_waitcnt lgkmcnt(0)")
    g("s_barrier")
    g.stamp(7)
    vC = 80
    vU = 96
    vG1, vG2 = 104, 108
    vAe, vAo = 116, 120
    vY = 124
    for ks in range(4):
        g(f"ds_read_b128 {v(vC+4*ks,4)}, v{vCX} offset:{ks*64}")
    g(f"""
    s_lshl_b32 s{sO}, s{sH}, 2
    s_add_u32 s{sO}, s{sO}, s{sW}
    s_lshl_b32 s{sO}, s{sO}, 2
    s_add_u32 s{sO}, s{sO}, s{sJ}
    s_lshl_b32 s{sO}, s{sO}, 8
    s_add_u32 s{sO}, s{sO}, {HB}
    s_lshl_b32 s{sO3}, s{sA}, 10
    s_add_u32 s{sO3}, s{sO3}, {HB}
    """)
    for ks in range(4):
        g(f"s_waitcnt lgkmcnt({3-ks})")
        for tau in range(2):
            g(f"{MF} {v(vU+4*tau,4)}, {A(aUV+(tau*4+ks)*4,4)}, {v(vC+4*ks,4)}, {'0' if ks == 0 else v(vU+4*tau,4)}")
    g(f"""
    v_cvt_pk_bf16_f32 v{vU}, v{vU}, v{vU+1}
    v_cvt_pk_bf16_f32 v{vU+1}, v{vU+2}, v{vU+3}
    v_cvt_pk_bf16_f32 v{vU+4}, v{vU+4}, v{vU+5}
    v_cvt_pk_bf16_f32 v{vU+5}, v{vU+6}, v{vU+7}
    v_cndmask_b32 v{vTag-2}, v{vU}, v{vU+4}, s[{sM2}:{sM2+1}]
    v_cndmask_b32 v{vTag-1}, v{vU+1}, v{vU+5}, s[{sM2}:{sM2+1}]
    s_mov_b32 exec_lo, 0x000f000f
    s_mov_b32 exec_hi, 0x000f000f
    buffer_store_dwordx4 {v(vTag-2,4)}, v{vHBs}, {WS}, s{sO} offen sc1
    s_mov_b64 exec, -1
    s_mov_b32 s{sCNT}, 0
    """)
    g.stamp(8)
    g.lab("L_A_hbpoll")
    g(f"buffer_load_dwordx4 {v(vG1,4)}, v{vHBl}, {WS}, s{sO3} offen sc1")
    g(f"buffer_load_dwordx4 {v(vG2,4)}, v{vHBl}, {WS}, s{sO3} offen offset:32 sc1")
    spin_guard(g, "L_A_hbdone")
    g("s_waitcnt vmcnt(0)")
    g(f"v_cmp_ne_u64 vcc, s[{sT}:{sT+1}], {v(vG1+2,2)}")
    g(f"v_cmp_ne_u64 s[{sM3}:{sM3+1}], s[{sT}:{sT+1}], {v(vG2+2,2)}")
    g(f"s_or_b64 vcc, vcc, s[{sM3}:{sM3+1}]")
    g("s_cbranch_scc1 L_A_hbpoll")
    g.lab("L_A_hbdone")
    g("s_waitcnt vmcnt(0)")
    g.stamp(9)
    g(f"s_cmp_lg_u32 s{sW}, 3")
    g("s_cbranch_scc1 L_A_nod3")
    g(f"""
    s_lshl_b32 s{sO}, s{sPR}, 7
    s_add_u32 s{sO}, s{sO}, {D3}
    s_mov_b64 exec, 1
    buffer_store_dwordx2 {v(vTag,2)}, v{vD2}, {WS}, s{sO} offen sc1
    s_mov_b64 exec, -1
    """)
    g.lab("L_A_nod3")
    src = [vG1, vG1 + 1, vG2, vG2 + 1]
    for d in range(4):
        g(f"v_cndmask_b32 v{vAe+d}, 0, v{src[d]}, s[{sM1}:{sM1+1}]")
    for d in range(4):
        g(f"v_cndmask_b32 v{vAo+d}, v{src[d]}, 0, s[{sM1}:{sM1+1}]")
    for t in range(4):
        g(f"{MF} {v(vY+4*t,4)}, {v(vAe,4)}, {A(aWO+(t*2)*4,4)}, 0")
    for t in range(4):
        g(f"{MF} {v(vY+4*t,4)}, {v(vAo,4)}, {A(aWO+(t*2+1)*4,4)}, {v(vY+4*t,4)}")
    g(f"s_cmp_gt_u32 s{sW}, 1")
    g("s_cbranch_scc1 L_A_no5")
    g(f"{MF} {v(vY+16,4)}, {v(vAe,4)}, {A(aWO+32,4)}, 0")
    g(f"{MF} {v(vY+16,4)}, {v(vAo,4)}, {A(aWO+36,4)}, {v(vY+16,4)}")
    g.lab("L_A_no5")
    for t in range(4):
        g(f"v_pk_add_f32 {v(vY+4*t,2)}, {v(vY+4*t,2)}, {v(vY+4*t+2,2)}")
    for t in range(4):
        g(f"v_add_f32 v{vAe+t}, v{vY+4*t}, v{vY+4*t+1}")
    g(f"buffer_store_dwordx4 {v(vAe,4)}, v{vH3}, {WS}, s{sH3m} offen sc1")
    g(f"s_cmp_gt_u32 s{sW}, 1")
    g("s_cbranch_scc1 L_A_no5b")
    g(f"v_pk_add_f32 {v(vY+16,2)}, {v(vY+16,2)}, {v(vY+18,2)}")
    g(f"v_add_f32 v{vY+16}, v{vY+16}, v{vY+17}")
    g(f"buffer_store_dword v{vY+16}, v{vH3x}, {WS}, s{sH3l} offen sc1")
    g.lab("L_A_no5b")
    g.stamp(10)
    g(f"s_cmp_ge_u32 s{sA}, 36")
    g("s_cbranch_scc1 L_A_exit")
    vRd = 80
    vDa, vRw = 96, 97
    order = g.opt.get("red_order", (1, 0))
    g(f"""
    v_and_b32 v{t0}, 31, v{vL}
    v_lshlrev_b32 v{vDa}, 7, v{t0}
    v_lshlrev_b32 v{vA_l16}, 4, v{vL}
    v_and_b32 v{t0}, 7, v{vL}
    v_lshlrev_b32 v{vRw}, 6, v{t0}
    v_lshrrev_b32 v{t0}, 5, v{vL}
    v_lshl_add_u32 v{vRw}, v{t0}, 4, v{vRw}
    v_bfe_u32 v{t0}, v{vL}, 4, 1
    v_lshl_add_u32 v{vRw}, v{t0}, 5, v{vRw}
    v_lshl_add_u32 v{vRw}, s{sW}, 2, v{vRw}
    s_lshl_b32 s{sO2}, s{sW}, 12
    s_mul_i32 s{sO3}, s{sA}, {USTR}
    s_add_u32 s{sO3}, s{sO3}, s{sO2}
    """)
    for part in order:
        P = f"L_A_r{part}"
        g(f"s_add_u32 s{sO}, s{sO2}, {D3 + part*16384}")
        g(f"s_mov_b32 s{sCNT}, 0")
        g.lab(P + "poll")
        g(f"buffer_load_dwordx2 {v(t0,2)}, v{vDa}, {WS}, s{sO} offen sc1")
        spin_guard(g, P + "go")
        g("s_waitcnt vmcnt(0)")
        g(f"v_cmp_ne_u64 vcc, s[{sT}:{sT+1}], {v(t0,2)}")
        g(f"s_cbranch_vccnz {P}poll")
        g.lab(P + "go")
        g(f"s_add_u32 s{sO}, s{sO3}, {H3 + part*16384}")
        g(f"s_mov_b32 s{sCNT}, 0")
        g.lab(P + "get")
        for u in range(4):
            g(f"buffer_load_dwordx4 {v(vRd+4*u,4)}, v{vA_l16}, {WS}, s{sO} offen offset:{u*1024} sc1")
        g("s_waitcnt vmcnt(2)")
        g(f"v_pk_add_f32 {v(vY,2)}, {v(vRd,2)}, {v(vRd+4,2)}")
        g(f"v_pk_add_f32 {v(vY+2,2)}, {v(vRd+2,2)}, {v(vRd+6,2)}")
        g("s_waitcnt vmcnt(0)")
        g(f"v_pk_add_f32 {v(vY+4,2)}, {v(vRd+8,2)}, {v(vRd+12,2)}")
        g(f"v_pk_add_f32 {v(vY+6,2)}, {v(vRd+10,2)}, {v(vRd+14,2)}")
        g(f"v_pk_add_f32 {v(vY,2)}, {v(vY,2)}, {v(vY+4,2)}")
        g(f"v_pk_add_f32 {v(vY+2,2)}, {v(vY+2,2)}, {v(vY+6,2)}")
        g(f"v_permlane32_swap_b32 v{vY}, v{vY+1}")
        g(f"v_permlane32_swap_b32 v{vY+2}, v{vY+3}")
        g(f"v_add_f32 v{vY}, v{vY}, v{vY+1}")
        g(f"v_add_f32 v{vY+2}, v{vY+2}, v{vY+3}")
        g(f"v_permlane16_swap_b32 v{vY}, v{vY+2}")
        g(f"v_add_f32 v{vY}, v{vY}, v{vY+2}")
        g(f"v_cmp_u_f32 vcc, v{vY}, v{vY}")
        g(f"s_cbranch_vccz {P}ok")
        spin_guard(g, P + "ok")
        g(f"s_mov_b64 s[{sM4}:{sM4+1}], 0")
        for k in range(16):
            g(f"v_cmp_eq_u32 vcc, s{sPOI}, v{vRd+k}")
            g(f"s_or_b64 s[{sM4}:{sM4+1}], s[{sM4}:{sM4+1}], vcc")
        g(f"s_cbranch_scc1 {P}get")
        g.lab(P + "ok")
        g(f"v_add_f32_dpp v{vY}, v{vY}, v{vY} row_ror:8 row_mask:0xf bank_mask:0xf")
        g(f"ds_write_b32 v{vRw}, v{vY} offset:{A_RED + part*512}")
        g.stamp(11 + order.index(part))
    g("s_waitcnt lgkmcnt(0)")
    g("s_barrier")
    g(f"s_cmp_lg_u32 s{sW}, 0")
    g("s_cbranch_scc1 L_A_exit")
    g(f"""
    s_mov_b32 exec_hi, 0
    ds_read_b128 {v(vRd,4)}, v{vA_l16} offset:{A_RED}
    ds_read_b128 {v(vRd+4,4)}, v{vA_l16} offset:{A_RED+512}
    s_waitcnt lgkmcnt(0)
    v_pk_add_f32 {v(vRd,2)}, {v(vRd,2)}, {v(vRd+2,2)}
    v_pk_add_f32 {v(vRd+4,2)}, {v(vRd+4,2)}, {v(vRd+6,2)}
    v_add_f32 v{vRd}, v{vRd}, v{vRd+1}
    v_add_f32 v{vRd+4}, v{vRd+4}, v{vRd+5}
    v_add_f32 v{vRd+4}, v{vRd+4}, v{vB2}
    v_sub_f32 v{t0}, 1.0, v{vFB}
    v_mul_f32 v{vRd+4}, v{t0}, v{vRd+4}
    v_fma_f32 v{vRd}, v{vFB}, v{vRd}, v{vRd+4}
    v_cvt_pk_bf16_f32 v{vRd}, v{vRd}, v{vRd}
    buffer_store_short v{vRd}, v{vOA}, {OUT}, 0 offen
    s_cmp_lg_u32 s{sA}, 0
    s_cbranch_scc1 L_A_exit
    s_mov_b64 exec, 1
    buffer_store_dwordx2 {v(vTag,2)}, v{vA_l16}, {WS}, 0 offen offset:{EPOCH} sc1
    """)
    g.lab("L_A_exit")
    g.stamp(13)
    dump_stamps(g, 16, 160)
    g("s_endpgm")

def gen_B(g, NT, PFL, vL, vN, vG):
    CKV, W1, W2, B1 = "s[12:15]", "s[16:19]", "s[20:23]", "s[24:27]"
    t0, t1, t2, t3 = 4, 5, 6, 7
    vPOI = 8
    vL16 = 12
    vOa = 13
    vH3, vH3x = 14, 15
    vXr = 16
    vB1 = 22
    vSB = 24
    vQBs = 28
    vPVb = 32
    vTag = 36
    vML = 34
    vMXw, vMXr = 38, 39
    vD1 = 40
    aS, aP = 0, 128
    sOo = 61
    sH3m, sH3l = 62, 63
    srd(g, 12, 1, 2 * 4096 * 1024)
    srd(g, 24, 8, 9216)
    g(f"""
    s_and_b32 s{sHG}, s{sI}, 1
    s_and_b32 s{sB}, s{sXCD}, 1
    s_lshr_b32 s{sMSG}, s{sI}, 1
    s_lshl_b32 s{sMSG}, s{sMSG}, 2
    s_lshr_b32 s{sO}, s{sXCD}, 1
    s_add_u32 s{sMSG}, s{sMSG}, s{sO}
    s_lshl_b32 s{sO}, s{sB}, 5
    s_add_u32 s{sMSG}, s{sMSG}, s{sO}
    s_lshl_b32 s{sU2}, s{sXCD}, 4
    s_add_u32 s{sU2}, s{sU2}, s{sI}
    s_add_u32 s{sPR}, s{sU2}, 128
    v_lshlrev_b32 v{vL16}, 4, v{vL}
    """)
    for k in range(4): g(f"v_mov_b32 v{vPOI+k}, s{sPOI}")
    g(f"""
    v_mul_u32_u24 v{vOa}, {16*OSTR}, v{vG}
    v_lshl_add_u32 v{vOa}, v{vN}, 4, v{vOa}
    s_lshl_b32 s{sOo}, s{sHG}, 6
    s_add_u32 s{sOo}, s{sOo}, s{sW}
    s_mul_i32 s{sOo}, s{sOo}, {OSTR}
    s_lshl_b32 s{sO}, s{sMSG}, 8
    s_add_u32 s{sOo}, s{sOo}, s{sO}
    s_add_u32 s{sOo}, s{sOo}, {OB}
    """)
    h3_addr(g, vH3, vH3x, vL, vN, vG, t0)
    h3_soffs(g, sH3m, sH3l)
    g(f"s_cmp_lg_u32 s{sW}, 3")
    g("s_cbranch_scc1 L_B_nopf")
    code_prefetch(g, PFL, vL, t0, t1)
    g.lab("L_B_nopf")
    g("s_waitcnt lgkmcnt(0)")
    load_tag(g)
    for r in range(4):
        g(f"s_add_u32 s{sO}, s{sOo}, {4*r*OSTR}")
        g(f"buffer_store_dwordx4 {v(vPOI,4)}, v{vOa}, {WS}, s{sO} offen sc1")
    g(f"buffer_store_dwordx4 {v(vPOI,4)}, v{vH3}, {WS}, s{sH3m} offen sc1")
    g(f"s_cmp_gt_u32 s{sW}, 1")
    g("s_cbranch_scc1 L_B_nor3")
    g(f"buffer_store_dword v{vPOI}, v{vH3x}, {WS}, s{sH3l} offen sc1")
    g.lab("L_B_nor3")
    g(f"""
    s_lshl_b32 s{sO}, s{sMSG}, 2
    s_add_u32 s{sO}, s{sO}, s{sW}
    s_lshl_b32 s{sO}, s{sO}, 15
    s_lshl_b32 m0, s{sW}, 15
    s_add_u32 m0, m0, {B_CKV}
    """)
    for k in range(32):
        f = f16sw(k & 15)
        if k % 4 == 0 and k:
            g(f"s_addk_i32 s{sO}, 0x1000")
            g(f"s_add_u32 m0, m0, 0x1000")
        tmp = t0 + (k & 1)
        g(f"v_xor_b32 v{tmp}, {f*16}, v{vL16}")
        g(f"buffer_load_dwordx4 v{tmp}, {CKV}, s{sO} offen offset:{(k%4)*1024} {NT} lds")
    g.stamp(1)
    srd(g, 16, 7, 576 * 9216)
    srd(g, 20, 9, 4608 * 1152)
    g(f"""
    v_and_b32 v{t0}, 1, v{vL}
    v_mul_u32_u24 v{t0}, 1152, v{t0}
    s_mul_i32 s{sO}, s{sI}, 72
    buffer_load_dwordx2 {v(vXr+4,2)}, v{t0}, {X}, s{sO} offen offset:64
    v_lshl_add_u32 v{t0}, v{vG}, 3, v{t0}
    buffer_load_dwordx2 {v(vXr,2)}, v{t0}, {X}, s{sO} offen
    buffer_load_dwordx2 {v(vXr+2,2)}, v{t0}, {X}, s{sO} offen offset:32
    s_mul_i32 s{sO}, s{sU2}, 72
    s_mul_i32 s{sO3}, s{sW}, 18
    s_add_u32 s{sO}, s{sO}, s{sO3}
    v_lshlrev_b32 v{t0}, 1, v{vN}
    buffer_load_ushort v{vB1}, v{t0}, {B1}, s{sO} offen
    """)
    def fsw(dst, src, tmp):
        g(f"v_lshrrev_b32 v{tmp}, 3, v{src}")
        g(f"v_and_b32 v{dst}, 7, v{src}")
        g(f"v_lshl_add_u32 v{dst}, v{dst}, 1, v{tmp}")
        g(f"v_lshlrev_b32 v{tmp}, 3, v{tmp}")
        g(f"v_xor_b32 v{dst}, v{dst}, v{tmp}")
    fsw(t2, vN, t3)
    g(f"""
    v_xor_b32 v{t2}, v{t2}, v{vG}
    v_lshlrev_b32 v{t2}, 4, v{t2}
    v_lshl_add_u32 v{t2}, v{vN}, 10, v{t2}
    s_lshl_b32 s{sO}, s{sW}, 15
    s_add_u32 s{sO}, s{sO}, {B_CKV}
    """)
    assert B_QF == 0
    for q in range(4):
        g(f"v_xor_b32 v{vQBs+q}, {q*64}, v{t2}")
        g(f"v_add_u32 v{vSB+q}, s{sO}, v{vQBs+q}")
    g(f"v_lshrrev_b32 v{t0}, 2, v{vL}")
    fsw(t2, t0, t3)
    g(f"""
    v_bfe_u32 v{t3}, v{vL}, 1, 1
    v_xor_b32 v{t2}, v{t2}, v{t3}
    v_lshlrev_b32 v{vPVb}, 10, v{t0}
    v_lshl_add_u32 v{vPVb}, v{t2}, 4, v{vPVb}
    v_and_b32 v{t3}, 1, v{vL}
    v_lshl_add_u32 v{vPVb}, v{t3}, 3, v{vPVb}
    v_lshl_add_u32 v{vPVb}, s{sW}, 8, v{vPVb}
    v_add_u32 v{vPVb}, {B_CKV}, v{vPVb}
    v_add_u32 v{vPVb+1}, 0x10000, v{vPVb}
    v_lshlrev_b32 v{vMXr}, 4, v{vN}
    v_lshl_add_u32 v{vMXw}, v{vG}, 2, v{vMXr}
    v_lshl_add_u32 v{vMXw}, s{sW}, 8, v{vMXw}
    v_lshlrev_b32 v{vD1}, 7, v{vN}
    """)
    vP1, vP2 = 42, 53
    for i in range(9):
        unit_pattern(g, vP2 + i, vL, None, i, 1152, t0, t1)
        g(f"v_mul_u32_u24 v{t1}, {9216-1152}, v{t1}")
        g(f"v_add_u32 v{vP1+i}, v{vP2+i}, v{t1}")
    unit_pattern(g, vP2 + 9, vL, sW, None, 1152, t0, t1)
    g(f"v_mul_u32_u24 v{t1}, {9216-1152}, v{t1}")
    g(f"v_add_u32 v{vP1+9}, v{vP2+9}, v{t1}")
    finish_tag(g)
    g(f"v_mov_b32 v{vTag}, s{sT}")
    g(f"v_mov_b32 v{vTag+1}, s{sT+1}")
    g(f"""
    v_mov_b32 v{t0}, 0
    v_lshlrev_b32 v{t1}, 2, v{vL}
    s_mov_b32 exec_hi, 0
    ds_write_b32 v{t1}, v{t0} offset:{B_ZERO}
    s_mov_b64 exec, -1
    """)
    g(f"s_waitcnt vmcnt({16+4})")
    for ks in range(16):
        g(f"ds_read_b128 {A(aS+ks*4,4)}, v{vSB+(ks&3)} offset:{(ks>>2)*256}")
    g("s_waitcnt vmcnt(0)")
    g.stamp(2)
    vDB = 64
    g(f"""
    s_lshl_b32 s{sO2}, s{sHG}, 2
    s_add_u32 s{sO2}, s{sO2}, s{sW}
    s_lshl_b32 s{sO2}, s{sO2}, 11
    s_add_u32 s{sO2}, s{sO2}, {D1}
    buffer_load_dwordx2 {v(vDB,2)}, v{vD1}, {WS}, s{sO2} offen sc1
    """)
    for ks in range(16):
        g(f"ds_read_b128 {A(aS+64+ks*4,4)}, v{vSB+(ks&3)} offset:{16384+(ks>>2)*256}")
    g("s_barrier")
    for half in range(2):
        for ct in range(8):
            tmp = t0 + (ct & 1)
            g(f"v_xor_b32 v{tmp}, {ct<<5}, v{vPVb+half}")
            for k2 in range(2):
                for hi in range(2):
                    ks = half * 2 + k2
                    g(f"ds_read_b64_tr_b16 {A(aP+(ct*4+ks)*4+2*hi,2)}, v{tmp} offset:{k2*32768+hi*16384}")
    vXA = 128
    g(f"v_lshrrev_b32 v{t0}, 1, v{vN}")
    g(f"v_lshrrev_b32 v{t1}, 1, v{vL}")
    for z in range(4):
        g(f"v_cmp_eq_u32 vcc, {2*z}, v{t0}")
        g(f"v_cmp_eq_u32 s[{sM3}:{sM3+1}], {2*z}, v{t1}")
        for d in range(4):
            g(f"v_cndmask_b32 v{vXA+6*z+d}, 0, v{vXr+d}, vcc")
        for d in range(4, 6):
            g(f"v_cndmask_b32 v{vXA+6*z+d}, 0, v{vXr+d}, s[{sM3}:{sM3+1}]")
    vQd = 152
    g(f"""
    s_lshl_b32 s{sO3}, s{sB}, 1
    s_add_u32 s{sO3}, s{sO3}, s{sHG}
    s_lshl_b32 s{sO3}, s{sO3}, 2
    s_add_u32 s{sO3}, s{sO3}, s{sW}
    s_lshl_b32 s{sO3}, s{sO3}, 12
    s_add_u32 s{sO3}, s{sO3}, {QB}
    """)
    g(f"""
    s_lshr_b32 s{sTMP}, s{sW}, 1
    s_xor_b32 s{sTMP+1}, s{sW}, s{sTMP}
    s_and_b32 s{sTMP+1}, s{sTMP+1}, 1
    s_lshl_b32 s{sTMP+1}, s{sTMP+1}, 3
    s_add_u32 s{sTMP}, s{sTMP}, s{sTMP+1}
    s_lshl_b32 s{sTMP}, s{sTMP}, 4
    v_xor_b32 v{vQd}, s{sTMP}, v{vL16}
    v_xor_b32 v{vQd+1}, 32, v{vQd}
    v_xor_b32 v{vQd+2}, 64, v{vQd}
    v_xor_b32 v{vQd+3}, 0x60, v{vQd}
    s_lshl_b32 m0, s{sW}, 12
    s_mov_b32 s{sCNT}, 0
    s_branch L_B_d1chk
    """)
    g.lab("L_B_d1poll")
    g(f"buffer_load_dwordx2 {v(vDB,2)}, v{vD1}, {WS}, s{sO2} offen sc1")
    spin_guard(g, "L_B_qget")
    g.lab("L_B_d1chk")
    g("s_waitcnt vmcnt(0)")
    g(f"v_cmp_ne_u64 vcc, s[{sT}:{sT+1}], {v(vDB,2)}")
    g("s_cbranch_vccnz L_B_d1poll")
    g(f"s_mov_b32 s{sCNT}, 0")
    g.stamp(3)
    g.lab("L_B_qget")
    for k in range(4):
        g(f"buffer_load_dwordx4 v{vQd+k}, {WS}, s{sO3} offen offset:{k*1024} sc1 lds")
    g("s_waitcnt vmcnt(0) lgkmcnt(0)")
    g("s_barrier")
    g.stamp(4)
    vQ = 64
    vS = 156
    for ks in range(16):
        g(f"ds_read_b128 {v(vQ+4*ks,4)}, v{vQBs+(ks&3)} offset:{(ks>>2)*256}")
        if ks == 14: g("s_waitcnt lgkmcnt(14)")
    for ks in range(16):
        g(f"s_waitcnt lgkmcnt({min(15-ks, 15)})")
        for kt in range(2):
            g(f"{MF} {v(vS+4*kt,4)}, {A(aS+(kt*16+ks)*4,4)}, {v(vQ+4*ks,4)}, {'0' if ks == 0 else v(vS+4*kt,4)}")
    g(f"v_cmp_u_f32 vcc, v{vS}, v{vS}")
    g("s_cbranch_vccz L_B_qok")
    spin_guard(g, "L_B_qok")
    g(f"s_mov_b64 s[{sM4}:{sM4+1}], 0")
    for ks in range(16):
        g(f"v_cmp_eq_u32 vcc, s{sPOI}, v{vQ+4*ks}")
        g(f"s_or_b64 s[{sM4}:{sM4+1}], s[{sM4}:{sM4+1}], vcc")
    g("s_cbranch_scc0 L_B_qok")
    g("s_barrier")
    g("s_branch L_B_qget")
    g.lab("L_B_qok")
    g(f"""
    v_max3_f32 v{t0}, v{vS}, v{vS+1}, v{vS+2}
    v_max3_f32 v{t1}, v{vS+3}, v{vS+4}, v{vS+5}
    v_max3_f32 v{t0}, v{t0}, v{vS+6}, v{vS+7}
    v_max_f32 v{t0}, v{t0}, v{t1}
    ds_write_b32 v{vMXw}, v{t0} offset:{B_MX}
    s_waitcnt lgkmcnt(0)
    s_barrier
    """)
    g.stamp(5)
    vM = 64
    for q in range(4):
        g(f"ds_read_b128 {v(vM+4*q,4)}, v{vMXr} offset:{B_MX+q*256}")
    def unit_dma(SRD, vP, ldsbase, s_unit_base, pitch, tag):
        g(f"s_mul_i32 s{sO}, s{sW}, {8*pitch}")
        g(f"s_add_u32 s{sO}, s{sO}, s{s_unit_base}")
        g(f"s_mul_i32 s{sTMP}, s{sW}, 9216")
        for i in range(9):
            g(f"s_add_u32 m0, s{sTMP}, {ldsbase + i*1024}")
            g(f"buffer_load_dwordx4 v{vP+i}, {SRD}, s{sO} offen {NT} lds")
        g(f"s_add_u32 s{sO}, s{s_unit_base}, {32*pitch}")
        g(f"s_lshl_b32 s{sTMP}, s{sW}, 10")
        g(f"s_add_u32 m0, s{sTMP}, {ldsbase + 36864}")
        g(f"buffer_load_dwordx4 v{vP+9}, {SRD}, s{sO} offen {NT} lds")
        g(f"s_cmp_lg_u32 s{sW}, 0")
        g(f"s_cbranch_scc1 L_B_not{tag}")
        g(f"s_mov_b32 m0, {ldsbase + 36864 + 4096}")
        g("s_mov_b32 exec_hi, 0")
        g(f"buffer_load_dwordx4 v{vP+4}, {SRD}, s{sO} offen {NT} lds")
        g("s_mov_b64 exec, -1")
        g.lab(f"L_B_not{tag}")
    def w1_dma():
        g(f"s_mul_i32 s{sO2}, s{sI}, {36*9216}")
        g(f"s_mul_i32 s{sO3}, s{sXCD}, 1152")
        g(f"s_add_u32 s{sO2}, s{sO2}, s{sO3}")
        unit_dma(W1, vP1, B_W1, sO2, 9216, "w1")
    CS = math.log2(math.e) * 128 ** -0.5
    g(f"s_mov_b32 s{sC}, {hex(fbits(CS))}")
    g("s_waitcnt lgkmcnt(0)")
    g(f"""
    v_max3_f32 v{vM}, v{vM}, v{vM+1}, v{vM+2}
    v_max3_f32 v{vM+3}, v{vM+3}, v{vM+4}, v{vM+5}
    v_max3_f32 v{vM+6}, v{vM+6}, v{vM+7}, v{vM+8}
    v_max3_f32 v{vM+9}, v{vM+9}, v{vM+10}, v{vM+11}
    v_max3_f32 v{vM+12}, v{vM+12}, v{vM+13}, v{vM+14}
    v_max3_f32 v{vM}, v{vM}, v{vM+3}, v{vM+6}
    v_max3_f32 v{vM+9}, v{vM+9}, v{vM+12}, v{vM+15}
    v_max_f32 v{vM}, v{vM}, v{vM+9}
    v_mul_f32 v{vML}, s{sC}, v{vM}
    """)
    for k in range(8):
        g(f"v_fma_f32 v{vS+k}, v{vS+k}, s{sC}, -v{vML}")
    for k in range(8):
        g(f"v_exp_f32 v{vS+k}, v{vS+k}")
    vPf = 80
    for k in range(4):
        g(f"v_cvt_pk_bf16_f32 v{vS+k}, v{vS+2*k}, v{vS+2*k+1}")
    g(f"""
    v_lshl_add_u32 v{t0}, s{sW}, 10, v{vL16}
    ds_write_b128 v{t0}, {v(vS,4)} offset:{B_PB}
    v_mov_b32 v{vM}, 0x3f803f80
    v_mov_b32 v{vM+1}, 0x3f803f80
    v_mov_b32 v{vM+2}, 0x3f803f80
    v_mov_b32 v{vM+3}, 0x3f803f80
    s_waitcnt lgkmcnt(0)
    s_barrier
    """)
    g.stamp(6)
    for ks in range(4):
        g(f"ds_read_b128 {v(vPf+4*ks,4)}, v{vL16} offset:{B_PB+ks*1024}")
    vO = 96
    vLa = 68
    g(f"""
    s_lshl_b32 s{sO3}, s{sHG}, 6
    s_add_u32 s{sO3}, s{sO3}, s{sMSG}
    s_lshl_b32 s{sO3}, s{sO3}, 8
    s_add_u32 s{sO3}, s{sO3}, {D2}
    """)
    dbpos = g.opt.get("d2_pos", 2)
    for ks in range(4):
        g(f"s_waitcnt lgkmcnt({3-ks})")
        g(f"{MF} {v(vLa,4)}, {v(vM,4)}, {v(vPf+4*ks,4)}, {'0' if ks == 0 else v(vLa,4)}")
    for ks in range(4):
        if ks == dbpos:
            g(f"s_cmp_lg_u32 s{sW}, 0")
            g("s_cbranch_scc1 L_B_nod2")
            g(f"v_mov_b32 v{vML+1}, v{vLa}")
            g("s_mov_b64 exec, 0xffff")
            g(f"buffer_store_dwordx4 {v(vML,4)}, v{vL16}, {WS}, s{sO3} offen sc1")
            g("s_mov_b64 exec, -1")
            g.lab("L_B_nod2")
        for ct in range(8):
            g(f"{MF} {v(vO+4*ct,4)}, {v(vPf+4*ks,4)}, {A(aP+(ct*4+ks)*4,4)}, {'0' if ks == 0 else v(vO+4*ct,4)}")
    vOo = 64
    for r in range(4):
        for k in range(4):
            g(f"v_cvt_pk_bf16_f32 v{vOo+4*r+k}, v{vO+8*k+r}, v{vO+8*k+4+r}")
        g(f"s_add_u32 s{sO}, s{sOo}, {4*r*OSTR}")
        g(f"buffer_store_dwordx4 {v(vOo+4*r,4)}, v{vOa}, {WS}, s{sO} offen sc1")
    g.stamp(7)
    w1_dma()
    g(f"s_mul_i32 s{sO2}, s{sU2}, {36*1152}")
    unit_dma(W2, vP2, B_W2, sO2, 1152, "w2")
    vT1, vK1 = 16, 17
    vT20, vT21, vK20, vK21 = 18, 19, 20, 21
    vHs, vHg, vHw = 24, 25, 26
    vHe, vHo, vHke, vHko = 27, 28, 29, 30
    g(f"""
    v_lshrrev_b32 v{t0}, 2, v{vL}
    v_bfe_u32 v{t1}, v{vL}, 1, 1
    v_lshl_add_u32 v{t1}, s{sW}, 1, v{t1}
    v_and_b32 v{t2}, 6, v{t0}
    v_xor_b32 v{t2}, v{t2}, v{t1}
    v_lshlrev_b32 v{t2}, 4, v{t2}
    v_mul_u32_u24 v{vT1}, 1152, v{t0}
    v_and_b32 v{t3}, 1, v{vL}
    v_lshlrev_b32 v{t3}, 3, v{t3}
    v_add3_u32 v{vT1}, v{vT1}, v{t2}, v{t3}
    v_and_b32 v{t0}, 3, v{t0}
    v_and_b32 v{t2}, 2, v{t0}
    v_xor_b32 v{t2}, v{t2}, v{t1}
    v_lshlrev_b32 v{t2}, 4, v{t2}
    v_mul_u32_u24 v{vK1}, 1152, v{t0}
    v_add3_u32 v{vK1}, v{vK1}, v{t2}, v{t3}
    """)
    tr_pair_bases(g, vT20, vT21, vK20, vK21, vL, B_W2, t0, t1, t2)
    g(f"""
    v_lshlrev_b32 v{vHs}, 10, v{vG}
    v_lshl_add_u32 v{vHs}, v{vN}, 4, v{vHs}
    v_mul_u32_u24 v{vHg}, 9216, v{vG}
    v_lshl_add_u32 v{vHg}, v{vN}, 4, v{vHg}
    v_lshrrev_b32 v{t0}, 5, v{vL}
    v_lshlrev_b32 v{vHw}, 7, v{t0}
    v_lshl_add_u32 v{vHw}, v{vN}, 1, v{vHw}
    s_mul_i32 s{sO}, s{sW}, 18
    v_add_u32 v{vHw}, s{sO}, v{vHw}
    v_bfe_u32 v{t0}, v{vL}, 2, 1
    v_lshlrev_b32 v{t0}, 7, v{t0}
    v_add_u32 v{t0}, {B_HL}, v{t0}
    v_lshl_add_u32 v{t1}, v{vG}, 3, v{t0}
    v_add_u32 v{t0}, 64, v{t0}
    v_mov_b32 v{t2}, {B_ZERO}
    v_cmp_gt_u32 vcc, 8, v{vN}
    v_cndmask_b32 v{vHe}, v{t2}, v{t1}, vcc
    v_cndmask_b32 v{vHo}, v{t1}, v{t2}, vcc
    v_lshrrev_b32 v{t1}, 3, v{vL}
    v_cmp_eq_u32 vcc, 0, v{t1}
    v_cndmask_b32 v{vHke}, v{t2}, v{t0}, vcc
    v_cmp_eq_u32 vcc, 1, v{t1}
    v_cndmask_b32 v{vHko}, v{t2}, v{t0}, vcc
    v_lshlrev_b32 v{vB1}, 16, v{vB1}
    """)
    g(f"s_cmp_lg_u32 s{sW}, 0")
    g("s_cbranch_scc1 L_B_w1a")
    g("s_waitcnt vmcnt(11)")
    g("s_branch L_B_w1b")
    g.lab("L_B_w1a")
    g("s_waitcnt vmcnt(10)")
    g.lab("L_B_w1b")
    g("s_barrier")
    g.stamp(8)
    aW = 0
    vH = 64
    for t in range(9):
        g(f"ds_read_b64_tr_b16 {A(aW+6*t,2)}, v{vT1} offset:{B_W1+t*128}")
        g(f"ds_read_b64_tr_b16 {A(aW+6*t+2,2)}, v{vT1} offset:{B_W1+16*1152+t*128}")
        if t >= 4:
            tt = t - 4
            g("s_waitcnt lgkmcnt(8)")
            g(f"{MF} {v(vH+4*(tt>>2),4)}, {v(vXA+6*(tt&3),4)}, {A(aW+6*tt,4)}, {'0' if tt & 3 == 0 else v(vH+4*(tt>>2),4)}")
    for t in range(9):
        g(f"ds_read_b64_tr_b16 {A(aW+6*t+4,2)}, v{vK1} offset:{B_W1+32*1152+t*128}")
        if t < 4:
            tt = t + 5
            g(f"s_waitcnt lgkmcnt({2*(8-tt)+t+1})")
            g(f"{MF} {v(vH+4*(tt>>2),4)}, {v(vXA+6*(tt&3),4)}, {A(aW+6*tt,4)}, {'0' if tt & 3 == 0 else v(vH+4*(tt>>2),4)}")
    for tt in range(9):
        g(f"s_waitcnt lgkmcnt({8-tt})")
        g(f"{MF16} {v(vH+4*(tt>>2),4)}, {v(vXA+6*(tt&3)+4,2)}, {A(aW+6*tt+4,2)}, {v(vH+4*(tt>>2),4)}")
    g(f"""
    s_mul_i32 s{sO}, s{sU2}, 9216
    s_lshl_b32 s{sO3}, s{sW}, 8
    s_add_u32 s{sO}, s{sO}, s{sO3}
    s_add_u32 s{sO}, s{sO}, {HH}
    """)
    for y in range(3):
        g(f"v_mov_b32 v{vH+4*y+2}, s{sT}")
        g(f"v_mov_b32 v{vH+4*y+3}, s{sT+1}")
        if y == 2: g("s_mov_b64 exec, 0xffff")
        g(f"buffer_store_dwordx4 {v(vH+4*y,4)}, v{vHs}, {WS}, s{sO} offen sc1")
        if y < 2: g(f"s_addk_i32 s{sO}, 0x1000")
    g.stamp(9)
    vHr = 80
    g(f"""
    s_mul_i32 s{sO}, s{sXCD}, {16*9216}
    s_mul_i32 s{sO3}, s{sI}, 576
    s_add_u32 s{sO}, s{sO}, s{sO3}
    s_mul_i32 s{sO3}, s{sW}, 144
    s_add_u32 s{sO}, s{sO}, s{sO3}
    s_add_u32 s{sO}, s{sO}, {HH}
    s_add_u32 s{sO2}, s{sO}, {4*9216}
    s_add_u32 s{sO3}, s{sO}, {8*9216}
    s_add_u32 s{sC}, s{sO}, {12*9216}
    s_mov_b32 exec_lo, 0x01ff01ff
    s_mov_b32 exec_hi, 0x01ff01ff
    s_mov_b32 s{sCNT}, 0
    """)
    g.lab("L_B_hpoll")
    for u, so in enumerate((sO, sO2, sO3, sC)):
        g(f"buffer_load_dwordx4 {v(vHr+4*u,4)}, v{vHg}, {WS}, s{so} offen sc1")
    spin_guard(g, "L_B_hdone")
    g("s_waitcnt vmcnt(0)")
    g(f"v_cmp_ne_u64 vcc, s[{sT}:{sT+1}], {v(vHr+2,2)}")
    for u in range(1, 4):
        g(f"v_cmp_ne_u64 s[{sM3}:{sM3+1}], s[{sT}:{sT+1}], {v(vHr+4*u+2,2)}")
        g(f"s_or_b64 vcc, vcc, s[{sM3}:{sM3+1}]")
    g("s_cbranch_scc1 L_B_hpoll")
    g.lab("L_B_hdone")
    g("s_waitcnt vmcnt(0)")
    g.stamp(10)
    c1 = -2.0 * math.log2(math.e) * math.sqrt(2.0 / math.pi)
    g(f"""
    v_pk_add_f32 {v(vHr,2)}, {v(vHr,2)}, {v(vHr+4,2)}
    v_pk_add_f32 {v(vHr+8,2)}, {v(vHr+8,2)}, {v(vHr+12,2)}
    v_pk_add_f32 {v(vHr,2)}, {v(vHr,2)}, {v(vHr+8,2)}
    v_permlane32_swap_b32 v{vHr}, v{vHr+1}
    v_add_f32 v{vHr}, v{vHr}, v{vHr+1}
    v_mov_b32 v{vHr+1}, v{vHr}
    v_permlane16_swap_b32 v{vHr}, v{vHr+1}
    v_add_f32 v{vHr}, v{vHr}, v{vHr+1}
    v_add_f32 v{vHr}, v{vHr}, v{vB1}
    v_mul_f32 v{t0}, v{vHr}, v{vHr}
    v_mov_b32 v{t1}, {hex(fbits(c1))}
    s_mov_b32 s{sC}, {hex(fbits(c1*0.044715))}
    v_fma_f32 v{t0}, v{t0}, s{sC}, v{t1}
    v_mul_f32 v{t0}, v{t0}, v{vHr}
    v_exp_f32 v{t0}, v{t0}
    v_add_f32 v{t0}, 1.0, v{t0}
    v_rcp_f32 v{t0}, v{t0}
    v_mul_f32 v{t0}, v{t0}, v{vHr}
    v_cvt_pk_bf16_f32 v{t0}, v{t0}, v{t0}
    ds_write_b16 v{vHw}, v{t0} offset:{B_HL}
    s_mov_b64 exec, -1
    s_waitcnt lgkmcnt(0)
    s_barrier
    """)
    g.stamp(11)
    g(f"s_cmp_lg_u32 s{sW}, 3")
    g("s_cbranch_scc1 L_B_nod3")
    g(f"""
    s_lshl_b32 s{sO}, s{sPR}, 7
    s_add_u32 s{sO}, s{sO}, {D3}
    s_mov_b64 exec, 1
    buffer_store_dwordx2 {v(vTag,2)}, v{vL16}, {WS}, s{sO} offen sc1
    s_mov_b64 exec, -1
    """)
    g.lab("L_B_nod3")
    vHA = 64
    vY = 96
    g(f"ds_read2_b64 {v(vHA,4)}, v{vHe} offset0:0 offset1:4")
    g(f"ds_read_b64 {v(vHA+4,2)}, v{vHke}")
    g(f"ds_read2_b64 {v(vHA+6,4)}, v{vHo} offset0:0 offset1:4")
    g(f"ds_read_b64 {v(vHA+10,2)}, v{vHko}")
    def w2reads(t):
        for x in range(2):
            b = aW + (t * 2 + x) * 6
            g(f"ds_read_b64_tr_b16 {A(b,2)}, v{vT21 if x else vT20} offset:{t*256}")
            g(f"ds_read_b64_tr_b16 {A(b+2,2)}, v{vT21 if x else vT20} offset:{16*1152+t*256}")
            g(f"ds_read_b64_tr_b16 {A(b+4,2)}, v{vK21 if x else vK20} offset:{t*256}")
    def w2mf(t):
        for x in range(2):
            b = aW + (t * 2 + x) * 6
            g(f"{MF} {v(vY+4*t,4)}, {v(vHA+6*x,4)}, {A(b,4)}, {'0' if x == 0 else v(vY+4*t,4)}")
    def w2mf16(t):
        for x in range(2):
            b = aW + (t * 2 + x) * 6
            g(f"{MF16} {v(vY+4*t,4)}, {v(vHA+6*x+4,2)}, {A(b+4,2)}, {v(vY+4*t,4)}")
    w2reads(0)
    for t in range(4):
        if t < 3:
            w2reads(t + 1)
            g("s_waitcnt lgkmcnt(6)")
        else:
            g("s_waitcnt lgkmcnt(0)")
        w2mf(t)
    for t in range(4):
        w2mf16(t)
    g(f"s_cmp_gt_u32 s{sW}, 1")
    g("s_cbranch_scc1 L_B_no5")
    w2reads(4)
    g("s_waitcnt lgkmcnt(0)")
    w2mf(4)
    w2mf16(4)
    g.lab("L_B_no5")
    for t in range(1, 4):
        g(f"v_mov_b32 v{vY+t}, v{vY+4*t}")
    g(f"buffer_store_dwordx4 {v(vY,4)}, v{vH3}, {WS}, s{sH3m} offen sc1")
    g(f"s_cmp_gt_u32 s{sW}, 1")
    g("s_cbranch_scc1 L_B_no5b")
    g(f"buffer_store_dword v{vY+16}, v{vH3x}, {WS}, s{sH3l} offen sc1")
    g.lab("L_B_no5b")
    g.stamp(12)
    dump_stamps(g, 16, 160)

if __name__ == "__main__":
    opt = eval("dict(%s)" % (sys.argv[2] if len(sys.argv) > 2 else ""))
    open(sys.argv[1], "w").write(gen(opt))
```

```python
import sys, os, math, struct
sys.path.insert(0, os.path.dirname(os.path.abspath(__file__)))
from hazard import pad

KNAME = "gated_mix__compressed_kv_cla__dense_activation_gelu__decode_kernel"

WS_BYTES = 256 << 20
EPOCH = 0x0
D1 = 0x4000
D3 = 0x8000
D2 = 0x10000
HB = 0x20000
H0 = 0x40000
QB = 0x80000
H3 = 0x100000
USTR = 32768 + 256
HH = 0x240000
OB = 0x400000
OSTR = 16384 + 256
STAMP = 0x800000
POISON = 0xFFA5FFA5
K0, K1 = 0x9E3779B9, 0x7F4A7C15
SPIN = 1 << 20

A_WUV = 0
A_QL = 32768
A_ZERO = 33280
A_CTXC = 33536
A_WT = 34048
A_RED = 34304
A_WO = 35840
B_QF = 0
B_PB = 16384
B_MX = 20480
B_HL = 21504
B_ZERO = 21760
B_CKV = 22528
B_W1 = B_CKV
B_W2 = B_CKV + 43008
LDS_BYTES = 153600

def f16sw(i):
    return (((i & 7) ^ ((i >> 3) << 2)) << 1) | (i >> 3)

def fbits(x):
    return struct.unpack("<I", struct.pack("<f", x))[0]

class G:
    def __init__(self, opt):
        self.l = []
        self.opt = opt
        self.nst = 0
    def __call__(self, s):
        for x in s.strip("\n").split("\n"):
            x = x.strip()
            if x: self.l.append("    " + x)
    def lab(self, n): self.l.append(n + ":")
    def c(self, s): self.l.append("    ; " + s)
    def stamp(self, i):
        if self.opt.get("stamps"):
            self(f"s_memrealtime s[{70+2*i}:{71+2*i}]")

def v(a, n=1): return f"v{a}" if n == 1 else f"v[{a}:{a+n-1}]"
def A(a, n=1): return f"a{a}" if n == 1 else f"a[{a}:{a+n-1}]"
def S(a, n=1): return f"s{a}" if n == 1 else f"s[{a}:{a+n-1}]"

sW = 3
WS, X = "s[4:7]", "s[8:11]"
sT = 40
sXCD, sI = 42, 43
sA, sH, sJ = 44, 45, 46
sHG, sB, sMSG, sU2 = 44, 45, 46, 47
sO, sO2, sO3, sCNT = 48, 49, 50, 51
sM1, sM2, sM3, sM4 = 52, 54, 56, 58
sPR = 60
sG0, sG1 = 61, 62
sTMP = 64
sPC = 66
sPOI = 68
sC = 69

def srd(g, base, slot, nbytes):
    g(f"s_load_dwordx2 s[{base}:{base+1}], s[0:1], {slot*8}")
    g(f"s_mov_b32 s{base+2}, {nbytes}")
    g(f"s_mov_b32 s{base+3}, 0x00020000")

def dump_stamps(g, n, tmpv):
    if not g.opt.get("stamps") or g.opt.get("probe") is not None: return
    g("s_waitcnt lgkmcnt(0)")
    g("s_mov_b64 exec, 1")
    g(f"s_lshl_b32 s{sO}, s2, 2")
    g(f"s_add_u32 s{sO}, s{sO}, s{sW}")
    g(f"s_lshl_b32 s{sO}, s{sO}, 6")
    g(f"s_add_u32 s{sO}, s{sO}, {STAMP}")
    g(f"v_mov_b32 v{tmpv+4}, 0")
    for q in range(0, 16, 4):
        for k in range(4):
            g(f"v_mov_b32 v{tmpv+k}, s{70+2*(q+k)}")
        g(f"buffer_store_dwordx4 {v(tmpv,4)}, v{tmpv+4}, {WS}, s{sO} offen offset:{q*4}")
        g("s_nop 1")
    g("s_waitcnt vmcnt(0)")

def spin_guard(g, out):
    g(f"s_add_u32 s{sCNT}, s{sCNT}, 1")
    g(f"s_cmp_gt_u32 s{sCNT}, {g.opt.get('spin', SPIN)}")
    g(f"s_cbranch_scc1 {out}")

def selectors(g, vSel, vL, t0, t1, t2):
    g(f"v_and_b32 v{t0}, 1, v{vL}")
    g(f"v_cmp_eq_u32 vcc, 1, v{t0}")
    g(f"v_mov_b32 v{t1}, 0x0c0c0100")
    g(f"v_mov_b32 v{t2}, 0x01000c0c")
    g(f"v_cndmask_b32 v{vSel+3}, v{t1}, v{t2}, vcc")
    g(f"v_mov_b32 v{t1}, 0x0c0c0302")
    g(f"v_mov_b32 v{t2}, 0x03020c0c")
    g(f"v_cndmask_b32 v{vSel+7}, v{t1}, v{t2}, vcc")
    g(f"v_bfe_u32 v{t0}, v{vL}, 1, 2")
    g(f"v_mov_b32 v{t1}, 0x0c0c0c0c")
    for d in range(4):
        g(f"v_cmp_eq_u32 vcc, {d}, v{t0}")
        g(f"v_cndmask_b32 v{vSel+d}, v{t1}, v{vSel+3}, vcc")
        g(f"v_cndmask_b32 v{vSel+4+d}, v{t1}, v{vSel+7}, vcc")

def unit_pattern(g, dst, vL, i_expr_sgpr, i_const, pitch, t0, t1):
    if i_expr_sgpr is not None:
        g(f"v_lshl_add_u32 v{t0}, s{i_expr_sgpr}, 6, v{vL}")
    else:
        g(f"v_add_u32 v{t0}, {64*i_const}, v{vL}")
    g(f"v_mul_u32_u24 v{t1}, 911, v{t0}")
    g(f"v_lshrrev_b32 v{t1}, 16, v{t1}")
    g(f"v_and_b32 v{dst}, 6, v{t1}")
    g(f"v_xor_b32 v{dst}, v{dst}, v{t0}")
    g(f"v_lshlrev_b32 v{dst}, 4, v{dst}")
    if pitch != 1152:
        g(f"v_mul_u32_u24 v{t1}, {pitch-1152}, v{t1}")
        g(f"v_add_u32 v{dst}, v{dst}, v{t1}")
assert all((911 * u) >> 16 == u // 72 for u in range(640))

def h3_addr(g, vH3, vH3x, vL, vN, vG, t0):
    g(f"v_lshrrev_b32 v{t0}, 3, v{vL}")
    g(f"v_mul_u32_u24 v{vH3}, {USTR}, v{t0}")
    g(f"v_and_b32 v{t0}, 7, v{vL}")
    g(f"v_lshl_add_u32 v{vH3}, v{t0}, 4, v{vH3}")
    g(f"v_lshrrev_b32 v{t0}, 5, v{vL}")
    g(f"v_mul_u32_u24 v{vH3x}, {USTR}, v{t0}")
    g(f"v_and_b32 v{t0}, 31, v{vL}")
    g(f"v_lshl_add_u32 v{vH3x}, v{t0}, 2, v{vH3x}")

def h3_soffs(g, s_main, s_left):
    g(f"s_lshl_b32 s{s_left}, s{sPR}, 7")
    g(f"s_add_u32 s{s_left}, s{s_left}, {H3}")
    g(f"s_mul_i32 s{s_main}, s{sW}, {8*USTR}")
    g(f"s_add_u32 s{s_main}, s{s_main}, s{s_left}")
    g(f"s_mul_i32 s{sTMP}, s{sW}, {2*USTR}")
    g(f"s_add_u32 s{s_left}, s{s_left}, s{sTMP}")
    g(f"s_add_u32 s{s_left}, s{s_left}, {32*USTR}")

def tr_pair_bases(g, vB0, vB1, vK0, vK1, vL, base, t0, t1, t2):
    g(f"v_lshrrev_b32 v{t0}, 2, v{vL}")
    g(f"v_bfe_u32 v{t1}, v{vL}, 1, 1")
    g(f"v_lshl_add_u32 v{t1}, s{sW}, 2, v{t1}")
    g(f"v_and_b32 v{t2}, 6, v{t0}")
    g(f"v_xor_b32 v{t2}, v{t2}, v{t1}")
    g(f"v_lshlrev_b32 v{t2}, 4, v{t2}")
    g(f"v_mul_u32_u24 v{vB0}, 1152, v{t0}")
    g(f"v_add_u32 v{vB0}, v{vB0}, v{t2}")
    g(f"v_and_b32 v{t2}, 1, v{vL}")
    g(f"v_lshlrev_b32 v{t2}, 3, v{t2}")
    g(f"v_add_u32 v{vB0}, v{vB0}, v{t2}")
    g(f"v_xor_b32 v{vB1}, 32, v{vB0}")
    if base:
        g(f"v_add_u32 v{vB0}, {base}, v{vB0}")
        g(f"v_add_u32 v{vB1}, {base}, v{vB1}")
    if vK0 is not None:
        g(f"v_and_b32 v{t0}, 3, v{t0}")
        g(f"v_and_b32 v{vK0}, 2, v{t0}")
        g(f"v_xor_b32 v{vK0}, v{vK0}, v{t1}")
        g(f"v_lshlrev_b32 v{vK0}, 4, v{vK0}")
        g(f"v_mul_u32_u24 v{t0}, 1152, v{t0}")
        g(f"v_add3_u32 v{vK0}, v{vK0}, v{t0}, v{t2}")
        g(f"v_xor_b32 v{vK1}, 32, v{vK0}")
        g(f"v_add_u32 v{vK0}, {base + 32*1152}, v{vK0}")
        g(f"v_add_u32 v{vK1}, {base + 32*1152}, v{vK1}")

MF = "v_mfma_f32_16x16x32_bf16"
MF16 = "v_mfma_f32_16x16x16_bf16"

def gen(opt):
    g = G(opt)
    NT = opt.get("nt", "nt")
    PFL = opt.get("pf_lines", 6)
    CODE_BYTES = 32 * 128 * PFL
    vL, vN, vG = 1, 2, 3
    g.stamp(0)
    g(f"s_getpc_b64 s[{sPC}:{sPC+1}]")
    g("s_cmp_ge_u32 s2, 256")
    g("s_cbranch_scc1 L_end")
    srd(g, 4, 14, WS_BYTES)
    srd(g, 8, 0, 2304)
    g(f"""
    v_lshrrev_b32 v4, 6, v0
    v_and_b32 v{vL}, 63, v0
    s_and_b32 s{sXCD}, s2, 7
    v_readfirstlane_b32 s{sW}, v4
    s_bfe_u32 s{sI}, s2, 0x40003
    v_and_b32 v{vN}, 15, v0
    v_bfe_u32 v{vG}, v0, 4, 2
    s_mov_b32 s{sPOI}, {POISON}
    s_cmp_ge_u32 s2, 128
    s_cbranch_scc1 L_B
    """)
    gen_A(g, NT, PFL, vL, vN, vG)
    g.lab("L_B")
    gen_B(g, NT, PFL, vL, vN, vG)
    g.lab("L_end")
    lines, added = pad(g.l)
    body = "\n".join(lines)
    hdr = open(os.path.join(os.path.dirname(os.path.abspath(__file__)), "header.txt")).read()
    return f"""{hdr}; @launch grid=(256,1,1) block=(256,1,1) lds={LDS_BYTES}
.amdgcn_target "amdgcn-amd-amdhsa--gfx950"
.text
.globl {KNAME}
.p2align 8
.type {KNAME},@function
{KNAME}:
{body}
    s_endpgm
L_code_end:
.fill ({CODE_BYTES} + 256 - (L_code_end - {KNAME})) / 4, 4, 0xbf800000
.section .rodata,"a"
.p2align 6
.amdhsa_kernel {KNAME}
  .amdhsa_next_free_vgpr 512
  .amdhsa_next_free_sgpr 102
  .amdhsa_accum_offset 256
  .amdhsa_group_segment_fixed_size 0
  .amdhsa_kernarg_size 120
  .amdhsa_user_sgpr_count 2
  .amdhsa_user_sgpr_kernarg_segment_ptr 1
  .amdhsa_system_sgpr_workgroup_id_x 1
.end_amdhsa_kernel
"""

def code_prefetch(g, PFL, vL, t0, t1):
    g(f"s_lshr_b32 s{sO}, s2, 3")
    g(f"s_mul_i32 s{sO}, s{sO}, {PFL*128}")
    g(f"v_lshl_add_u32 v{t0}, v{vL}, 7, s{sO}")
    g(f"s_mov_b64 exec, {(1 << PFL) - 1}")
    g(f"global_load_dword v255, v{t0}, s[{sPC}:{sPC+1}]")
    g("s_mov_b64 exec, -1")

def load_tag(g):
    g(f"s_load_dwordx2 s[{sT}:{sT+1}], s[4:5], {EPOCH}")

def finish_tag(g):
    g("s_waitcnt lgkmcnt(0)")
    g(f"s_add_u32 s{sT}, s{sT}, {K0}")
    g(f"s_add_u32 s{sT+1}, s{sT+1}, {K1}")

def gen_A(g, NT, PFL, vL, vN, vG):
    WQ, WUK, WUV, WO, B2, GATE, OUT = "s[12:15]", "s[16:19]", "s[20:23]", "s[24:27]", "s[28:31]", "s[32:35]", "s[36:39]"
    t0, t1, t2, t3 = 4, 5, 6, 7
    vPOI = 8
    vSel = 12
    vX = 20
    vF = 40
    vQ = 48
    vR = 56
    vQlo, vQhi = 80, 84
    vAcc = 88
    vGr = 104
    vA_wq, vA_uk, vA_h1, vA_l16 = 108, 109, 110, 111
    vA_qlo, vA_qhi = 112, 113
    vTag = 114
    aWQ, aUK = 0, 144
    srd(g, 12, 2, 576 * 8192)
    srd(g, 16, 3, 512 * 8192)
    g(f"""
    s_lshr_b32 s{sH}, s{sI}, 2
    s_lshl_b32 s{sH}, s{sH}, 3
    s_add_u32 s{sH}, s{sH}, s{sXCD}
    s_and_b32 s{sJ}, s{sI}, 3
    s_lshl_b32 s{sA}, s{sH}, 2
    s_add_u32 s{sA}, s{sA}, s{sJ}
    s_mov_b32 s{sPR}, s{sA}
    """)
    g(f"""
    v_bfe_u32 v{t0}, v{vL}, 2, 2
    v_lshlrev_b32 v{vA_uk}, 16, v{t0}
    v_lshl_add_u32 v{vA_uk}, v{vG}, 6, v{vA_uk}
    v_and_b32 v{t1}, 3, v{vL}
    v_lshl_add_u32 v{vA_uk}, v{t1}, 4, v{vA_uk}
    s_lshl_b32 s{sO2}, s{sJ}, 2
    s_add_u32 s{sO2}, s{sO2}, s{sW}
    s_lshl_b32 s{sO2}, s{sO2}, 18
    s_lshl_b32 s{sO3}, s{sH}, 8
    s_add_u32 s{sO2}, s{sO2}, s{sO3}
    s_cmp_lg_u32 s{sW}, 0
    s_cbranch_scc1 L_A_w123
    """)
    g(f"""
    v_bfe_u32 v{t0}, v{vL}, 3, 1
    v_mul_u32_u24 v{t0}, 1152, v{t0}
    v_mul_u32_u24 v{t1}, 72, v{vG}
    v_add_u32 v{t0}, v{t0}, v{t1}
    s_mul_i32 s{sO}, s{sJ}, 288
    v_mul_u32_u24 v{vA_wq}, {36*8192}, v{vG}
    v_lshl_add_u32 v{vA_wq}, v{vN}, 4, v{vA_wq}
    s_mul_i32 s{sTMP}, s{sJ}, {144*8192}
    s_add_u32 s{sO3}, s{sO3}, s{sTMP}
    s_waitcnt lgkmcnt(0)
    """)
    load_tag(g)
    for k in range(4):
        g(f"buffer_load_dwordx4 {v(vX+4*k,4)}, v{t0}, {X}, s{sO} offen offset:{16*k}")
    g(f"buffer_load_dwordx2 {v(vX+16,2)}, v{t0}, {X}, s{sO} offen offset:64")
    for i in range(36):
        g(f"buffer_load_dwordx4 {A(aWQ+4*i,4)}, v{vA_wq}, {WQ}, s{sO3} offen {NT}")
        if i != 35: g(f"s_addk_i32 s{sO3}, 0x2000")
    g("s_branch L_A_uk")
    g.lab("L_A_w123")
    g(f"s_cmp_lg_u32 s{sW}, 3")
    g("s_cbranch_scc1 L_A_nopf")
    code_prefetch(g, PFL, vL, t0, t1)
    g.lab("L_A_nopf")
    g("s_waitcnt lgkmcnt(0)")
    load_tag(g)
    g("s_barrier")
    g.lab("L_A_uk")
    for u in range(8):
        t, half = u >> 1, u & 1
        g(f"s_add_u32 s{sO}, s{sO2}, {(4*half+t)*8192}")
        g(f"buffer_load_dwordx4 {A(aUK+4*u,4)}, v{vA_uk}, {WUK}, s{sO} offen {NT}")
    g(f"s_cmp_lg_u32 s{sW}, 0")
    g("s_cbranch_scc1 L_A_nb0")
    g("s_barrier")
    g.lab("L_A_nb0")
    g.stamp(1)
    srd(g, 20, 4, 512 * 8192)
    srd(g, 24, 5, 4096 * 1152)
    srd(g, 28, 10, 1152)
    srd(g, 32, 11, 1152)
    srd(g, 36, 12, 2304)
    for k in range(4): g(f"v_mov_b32 v{vPOI+k}, s{sPOI}")
    g(f"""
    v_bfe_u32 v{t0}, v{vL}, 2, 2
    v_lshlrev_b32 v{vA_h1}, 15, v{vG}
    v_lshl_add_u32 v{vA_h1}, v{t0}, 4, v{vA_h1}
    s_lshl_b32 s{sO2}, s{sA}, 8
    s_lshl_b32 s{sO}, s{sW}, 6
    s_add_u32 s{sO2}, s{sO2}, s{sO}
    s_add_u32 s{sO2}, s{sO2}, {QB}
    s_mov_b64 exec, 0x11111111
    buffer_store_dwordx4 {v(vPOI,4)}, v{vA_h1}, {WS}, s{sO2} offen sc1
    s_mov_b64 exec, -1
    v_lshlrev_b32 v{vA_l16}, 4, v{vL}
    """)
    selectors(g, vSel, vL, t0, t1, t2)
    g(f"""
    v_bfe_u32 v{t0}, v{vL}, 2, 1
    v_lshlrev_b32 v{t0}, 8, v{t0}
    v_lshl_add_u32 v{t0}, v{vG}, 6, v{t0}
    v_and_b32 v{t1}, 3, v{vL}
    v_lshl_add_u32 v{t0}, v{t1}, 4, v{t0}
    v_add_u32 v{t0}, {A_QL}, v{t0}
    v_mov_b32 v{t1}, {A_ZERO}
    v_cmp_gt_u32 vcc, 8, v{vN}
    v_cndmask_b32 v{vA_qlo}, v{t1}, v{t0}, vcc
    v_cndmask_b32 v{vA_qhi}, v{t0}, v{t1}, vcc
    v_and_b32 v{t0}, 1, v{vL}
    v_cmp_eq_u32 s[{sM1}:{sM1+1}], 1, v{t0}
    v_and_b32 v{t0}, 2, v{vL}
    v_cmp_eq_u32 s[{sM2}:{sM2+1}], 2, v{t0}
    """)
    finish_tag(g)
    g(f"v_mov_b32 v{vTag}, s{sT}")
    g(f"v_mov_b32 v{vTag+1}, s{sT+1}")
    g(f"s_cmp_lg_u32 s{sW}, 0")
    g("s_cbranch_scc1 L_A_h0wait")
    g(f"""
    v_mov_b32 v{vQ}, s{sT}
    v_mov_b32 v{vQ+1}, s{sT+1}
    v_mov_b32 v{vQ+6}, s{sT}
    v_mov_b32 v{vQ+7}, s{sT+1}
    v_mov_b32 v{t0}, 0
    v_mov_b32 v{t1}, 0
    v_mov_b32 v{t2}, {A_ZERO}
    ds_write_b64 v{t2}, {v(t0,2)}
    ds_write_b64 v{t2}, {v(t0,2)} offset:8
    s_lshl_b32 s{sO}, s{sA}, 11
    s_add_u32 s{sO}, s{sO}, {H0}
    s_waitcnt vmcnt({36+8+1})
    """)
    def frag(i):
        for d in range(4):
            g(f"v_perm_b32 v{vF+4*(i&1)+d}, v{vX+(i>>1)}, v{vX+(i>>1)}, v{vSel+4*(i&1)+d}")
    frag(0)
    for i in range(36):
        if i + 1 < 36: frag(i + 1)
        g(f"s_waitcnt vmcnt({35-i+8+1})")
        g(f"{MF} {v(vQ+2,4)}, {v(vF+4*(i&1),4)}, {A(aWQ+4*i,4)}, {'0' if i == 0 else v(vQ+2,4)}")
    g.stamp(2)
    g(f"buffer_store_dwordx4 {v(vQ,4)}, v{vA_l16}, {WS}, s{sO} offen sc1")
    g(f"buffer_store_dwordx4 {v(vQ+4,4)}, v{vA_l16}, {WS}, s{sO} offen offset:1024 sc1")
    for k in range(1, 4):
        g(f"s_xor_b32 s{sTMP}, s{sA}, {k}")
        g(f"s_lshl_b32 s{sTMP}, s{sTMP}, 11")
        g(f"s_add_u32 s{[0,sO,sO3,sC][k]}, s{sTMP}, {H0}")
    sib = [0, sO, sO3, sC]
    g(f"s_mov_b32 s{sCNT}, 0")
    g.lab("L_A_h0poll")
    for k in range(1, 4):
        g(f"buffer_load_dwordx4 {v(vR+8*(k-1),4)}, v{vA_l16}, {WS}, s{sib[k]} offen sc1")
        g(f"buffer_load_dwordx4 {v(vR+8*(k-1)+4,4)}, v{vA_l16}, {WS}, s{sib[k]} offen offset:1024 sc1")
    spin_guard(g, "L_A_h0done")
    g("s_waitcnt vmcnt(0)")
    for k in range(3):
        g(f"v_cmp_ne_u64 vcc, s[{sT}:{sT+1}], {v(vR+8*k,2)}")
        g(f"v_cmp_ne_u64 s[{sM3}:{sM3+1}], s[{sT}:{sT+1}], {v(vR+8*k+6,2)}")
        if k == 0: g(f"s_or_b64 s[{sM4}:{sM4+1}], vcc, s[{sM3}:{sM3+1}]")
        else:
            g(f"s_or_b64 s[{sM4}:{sM4+1}], s[{sM4}:{sM4+1}], vcc")
            g(f"s_or_b64 s[{sM4}:{sM4+1}], s[{sM4}:{sM4+1}], s[{sM3}:{sM3+1}]")
    g("s_cbranch_scc1 L_A_h0poll")
    g.lab("L_A_h0done")
    g("s_waitcnt vmcnt(0)")
    g(f"v_pk_add_f32 {v(vQ+2,2)}, {v(vQ+2,2)}, {v(vR+2,2)}")
    g(f"v_pk_add_f32 {v(vQ+4,2)}, {v(vQ+4,2)}, {v(vR+4,2)}")
    g(f"v_pk_add_f32 {v(vR+10,2)}, {v(vR+10,2)}, {v(vR+18,2)}")
    g(f"v_pk_add_f32 {v(vR+12,2)}, {v(vR+12,2)}, {v(vR+20,2)}")
    g(f"v_pk_add_f32 {v(vQ+2,2)}, {v(vQ+2,2)}, {v(vR+10,2)}")
    g(f"v_pk_add_f32 {v(vQ+4,2)}, {v(vQ+4,2)}, {v(vR+12,2)}")
    g(f"""
    v_lshrrev_b32 v{t0}, 1, v{vG}
    v_lshlrev_b32 v{t0}, 8, v{t0}
    v_lshl_add_u32 v{t0}, v{vN}, 4, v{t0}
    v_and_b32 v{t1}, 1, v{vG}
    v_lshl_add_u32 v{t0}, v{t1}, 3, v{t0}
    v_cvt_pk_bf16_f32 v{vQ}, v{vQ+2}, v{vQ+3}
    v_cvt_pk_bf16_f32 v{vQ+1}, v{vQ+4}, v{vQ+5}
    ds_write_b64 v{t0}, {v(vQ,2)} offset:{A_QL}
    """)
    g.lab("L_A_h0wait")
    g("s_waitcnt vmcnt(0) lgkmcnt(0)")
    g("s_barrier")
    g.stamp(3)
    g(f"ds_read_b128 {v(vQlo,4)}, v{vA_qlo}")
    g(f"ds_read_b128 {v(vQhi,4)}, v{vA_qhi}")
    g(f"s_cmp_lg_u32 s{sW}, 1")
    g("s_cbranch_scc1 L_A_nod1")
    g(f"""
    s_lshl_b32 s{sO}, s{sA}, 7
    s_add_u32 s{sO}, s{sO}, {D1}
    s_mov_b64 exec, 1
    buffer_store_dwordx2 {v(vTag,2)}, v{vA_l16}, {WS}, s{sO} offen sc1
    s_mov_b64 exec, -1
    """)
    g.lab("L_A_nod1")
    g("s_waitcnt lgkmcnt(0)")
    for t in range(4):
        g(f"{MF} {v(vAcc+4*t,4)}, {v(vQlo,4)}, {A(aUK+8*t,4)}, 0")
    for t in range(4):
        g(f"{MF} {v(vAcc+4*t,4)}, {v(vQhi,4)}, {A(aUK+8*t+4,4)}, {v(vAcc+4*t,4)}")
    for t in range(4):
        a0 = vAcc + 4 * t
        g(f"v_cndmask_b32 v{a0}, v{a0}, v{a0+1}, s[{sM1}:{sM1+1}]")
        g(f"v_cndmask_b32 v{a0+2}, v{a0+2}, v{a0+3}, s[{sM1}:{sM1+1}]")
        g(f"v_cndmask_b32 v{a0}, v{a0}, v{a0+2}, s[{sM2}:{sM2+1}]")
    for t in range(4):
        a0 = vAcc + 4 * t
        g(f"v_add_f32_dpp v{a0+1}, v{a0}, v{a0} quad_perm:[1,0,3,2] row_mask:0xf bank_mask:0xf")
    for t in range(4):
        a0 = vAcc + 4 * t
        g(f"v_add_f32_dpp v{a0}, v{a0+1}, v{a0+1} quad_perm:[2,3,0,1] row_mask:0xf bank_mask:0xf")
    g(f"v_cvt_pk_bf16_f32 v{vGr}, v{vAcc}, v{vAcc+4}")
    g(f"v_cvt_pk_bf16_f32 v{vGr+1}, v{vAcc+8}, v{vAcc+12}")
    g(f"v_permlane32_swap_b32 v{vGr}, v{vGr+2}")
    g(f"v_permlane32_swap_b32 v{vGr+1}, v{vGr+3}")
    g(f"""
    s_mov_b64 exec, 0x11111111
    buffer_store_dwordx4 {v(vGr,4)}, v{vA_h1}, {WS}, s{sO2} offen sc1
    s_mov_b64 exec, -1
    """)
    g.stamp(4)
    vUV0, vUV1 = 20, 21
    vP = 22
    vH3, vH3x = 31, 32
    sH3m, sH3l = 63, 47
    g(f"""
    v_lshlrev_b32 v{t0}, 1, v{vG}
    v_xor_b32 v{t0}, v{t0}, v{vN}
    v_lshlrev_b32 v{vUV0}, 17, v{vG}
    v_lshl_add_u32 v{vUV0}, v{t0}, 4, v{vUV0}
    v_xor_b32 v{vUV1}, 128, v{vUV0}
    s_lshl_b32 s{sO}, s{sJ}, 5
    s_add_u32 s{sO}, s{sO}, s{sW}
    s_lshl_b32 s{sO}, s{sO}, 15
    s_lshl_b32 s{sO3}, s{sH}, 8
    s_add_u32 s{sO}, s{sO}, s{sO3}
    s_lshl_b32 s{sO3}, s{sW}, 13
    """)
    for z in range(8):
        hi, gg = z >> 2, z & 3
        g(f"s_add_u32 m0, s{sO3}, {A_WUV + z*1024}")
        g(f"s_add_u32 s{sTMP}, s{sO}, {(64*hi+gg)*8192}")
        g(f"buffer_load_dwordx4 v{vUV1 if z & 1 else vUV0}, {WUV}, s{sTMP} offen {NT} lds")
    h3_addr(g, vH3, vH3x, vL, vN, vG, t0)
    h3_soffs(g, sH3m, sH3l)
    g(f"buffer_store_dwordx4 {v(vPOI,4)}, v{vH3}, {WS}, s{sH3m} offen sc1")
    g(f"s_cmp_gt_u32 s{sW}, 1")
    g("s_cbranch_scc1 L_A_nor3")
    g(f"buffer_store_dword v{vPOI}, v{vH3x}, {WS}, s{sH3l} offen sc1")
    g.lab("L_A_nor3")
    g(f"""
    s_lshl_b32 s{sO}, s{sA}, 2
    s_add_u32 s{sO}, s{sO}, s{sW}
    s_mul_i32 s{sO}, s{sO}, 9216
    s_mul_i32 s{sO3}, s{sW}, 9216
    """)
    for i in range(9):
        unit_pattern(g, vP + i, vL, None, i, 1152, t0, t1)
        g(f"s_add_u32 m0, s{sO3}, {A_WO + i*1024}")
        g(f"buffer_load_dwordx4 v{vP+i}, {WO}, s{sO} offen {NT} lds")
    vTU0, vTU1, vTO0, vTO1 = 33, 34, 35, 36
    vCX, vCW, vHBs, vHBl, vD2, vOg, vWTw, vWTr = 37, 38, 39, 40, 41, 42, 43, 44
    g(f"""
    v_lshrrev_b32 v{t0}, 2, v{vL}
    v_bfe_u32 v{t1}, v{vL}, 1, 1
    v_lshl_add_u32 v{t1}, s{sW}, 2, v{t1}
    v_and_b32 v{t2}, 7, v{t0}
    v_lshlrev_b32 v{t2}, 1, v{t2}
    v_xor_b32 v{t1}, v{t1}, v{t2}
    v_lshlrev_b32 v{vTU0}, 8, v{t0}
    v_lshl_add_u32 v{vTU0}, v{t1}, 4, v{vTU0}
    v_and_b32 v{t1}, 1, v{vL}
    v_lshl_add_u32 v{vTU0}, v{t1}, 3, v{vTU0}
    v_xor_b32 v{vTU1}, 32, v{vTU0}
    """)
    assert A_WUV == 0
    tr_pair_bases(g, vTO0, vTO1, None, None, vL, A_WO, t0, t1, t2)
    g(f"""
    v_and_b32 v{t0}, 1, v{vL}
    v_lshlrev_b32 v{vCX}, 8, v{t0}
    v_lshl_add_u32 v{vCX}, v{vG}, 4, v{vCX}
    v_add_u32 v{vCX}, {A_CTXC}, v{vCX}
    v_and_b32 v{t0}, 1, v{vG}
    v_lshlrev_b32 v{vCW}, 3, v{t0}
    v_lshl_add_u32 v{vCW}, v{vN}, 4, v{vCW}
    v_lshl_add_u32 v{vCW}, s{sW}, 8, v{vCW}
    v_lshlrev_b32 v{vHBs}, 6, v{vG}
    v_lshl_add_u32 v{vHBs}, v{vN}, 4, v{vHBs}
    v_and_b32 v{t0}, 3, v{vL}
    v_lshlrev_b32 v{vHBl}, 8, v{t0}
    v_lshl_add_u32 v{vHBl}, v{vG}, 6, v{vHBl}
    v_bfe_u32 v{t0}, v{vL}, 2, 1
    v_lshl_add_u32 v{vHBl}, v{t0}, 4, v{vHBl}
    v_and_b32 v{t0}, 31, v{vL}
    v_lshlrev_b32 v{vD2}, 8, v{t0}
    v_lshlrev_b32 v{vOg}, 11, v{vG}
    v_lshl_add_u32 v{vOg}, v{vN}, 4, v{vOg}
    v_lshlrev_b32 v{vWTw}, 1, v{t0}
    v_lshl_add_u32 v{vWTw}, s{sW}, 6, v{vWTw}
    v_lshlrev_b32 v{vWTr}, 4, v{vG}
    v_lshl_add_u32 v{vWTr}, s{sW}, 6, v{vWTr}
    v_cmp_gt_u32 s[{sM1}:{sM1+1}], 8, v{vN}
    """)
    vGx, vGw, vB2 = 48, 60, 72
    vOA, vFB = 73, 74
    g(f"v_mov_b32 v{vOA}, 0")
    g(f"s_cmp_lg_u32 s{sW}, 0")
    g("s_cbranch_scc1 L_A_nogate")
    g(f"s_cmp_ge_u32 s{sA}, 36")
    g("s_cbranch_scc1 L_A_nogate")
    g(f"""
    v_and_b32 v{t0}, 31, v{vL}
    v_mul_u32_u24 v{t1}, 36, v{t0}
    v_lshrrev_b32 v{t2}, 5, v{vL}
    v_mul_u32_u24 v{t2}, 1152, v{t2}
    v_add_u32 v{t2}, v{t2}, v{t1}
    buffer_load_dwordx4 {v(vGx,4)}, v{t2}, {X}, 0 offen
    buffer_load_dwordx4 {v(vGx+4,4)}, v{t2}, {X}, 0 offen offset:16
    buffer_load_dword v{vGx+8}, v{t2}, {X}, 0 offen offset:32
    buffer_load_dwordx4 {v(vGw,4)}, v{t1}, {GATE}, 0 offen
    buffer_load_dwordx4 {v(vGw+4,4)}, v{t1}, {GATE}, 0 offen offset:16
    buffer_load_dword v{vGw+8}, v{t1}, {GATE}, 0 offen offset:32
    """)
    g(f"""
    s_cmp_ge_u32 s{sA}, 32
    s_cbranch_scc1 L_A_uleft
    s_lshr_b32 s{sO}, s{sA}, 2
    s_lshl_b32 s{sO}, s{sO}, 4
    s_and_b32 s{sO3}, s{sA}, 1
    s_lshl_b32 s{sO3}, s{sO3}, 3
    s_add_u32 s{sO}, s{sO}, s{sO3}
    v_and_b32 v{t1}, 3, v{t0}
    v_lshlrev_b32 v{t1}, 7, v{t1}
    v_lshrrev_b32 v{t2}, 2, v{t0}
    v_add3_u32 v{t1}, v{t1}, v{t2}, s{sO}
    s_bfe_u32 s{sO3}, s{sA}, 0x10001
    v_mov_b32 v{vFB}, s{sO3}
    s_branch L_A_ujoin
    """)
    g.lab("L_A_uleft")
    g(f"""
    s_lshl_b32 s{sO}, s{sA}, 4
    v_and_b32 v{t1}, 15, v{t0}
    v_add_u32 v{t1}, s{sO}, v{t1}
    v_lshrrev_b32 v{vFB}, 4, v{t0}
    """)
    g.lab("L_A_ujoin")
    g(f"""
    v_lshlrev_b32 v{t1}, 1, v{t1}
    buffer_load_ushort v{vB2}, v{t1}, {B2}, 0 offen
    v_mul_u32_u24 v{vOA}, 1152, v{vFB}
    v_add_u32 v{vOA}, v{vOA}, v{t1}
    s_waitcnt vmcnt(0)
    v_mov_b32 v{t0}, 0
    """)
    for k in range(9):
        g(f"v_dot2_f32_bf16 v{t0}, v{vGx+k}, v{vGw+k}, v{t0}")
    g("s_nop 2")
    for r in (8, 4, 2, 1):
        g(f"v_add_f32_dpp v{t0}, v{t0}, v{t0} row_ror:{r} row_mask:0xf bank_mask:0xf")
    g(f"""
    v_mov_b32 v{t1}, v{t0}
    v_permlane16_swap_b32 v{t0}, v{t1}
    v_add_f32 v{t0}, v{t0}, v{t1}
    v_mul_f32 v{t0}, {hex(fbits(-math.log2(math.e)))}, v{t0}
    v_exp_f32 v{t0}, v{t0}
    v_add_f32 v{t0}, 1.0, v{t0}
    v_rcp_f32 v{t0}, v{t0}
    v_readlane_b32 s{sG0}, v{t0}, 0
    v_readlane_b32 s{sG1}, v{t0}, 32
    v_cmp_eq_u32 vcc, 1, v{vFB}
    v_mov_b32 v{t0}, s{sG0}
    v_mov_b32 v{t1}, s{sG1}
    v_cndmask_b32 v{vFB}, v{t0}, v{t1}, vcc
    v_lshlrev_b32 v{vB2}, 16, v{vB2}
    """)
    g.lab("L_A_nogate")
    g("s_waitcnt vmcnt(0)")
    g("s_barrier")
    g.stamp(5)
    aUV, aWO = 0, 32
    for tau in range(2):
        for ks in range(4):
            for hi in range(2):
                g(f"ds_read_b64_tr_b16 {A(aUV+(tau*4+ks)*4+2*hi,2)}, v{vTU1 if tau else vTU0} offset:{ks*8192+hi*4096}")
    for t in range(5):
        if t == 4:
            g(f"s_cmp_gt_u32 s{sW}, 1")
            g("s_cbranch_scc1 L_A_ctxwait")
        for x in range(2):
            for hi in range(2):
                g(f"ds_read_b64_tr_b16 {A(aWO+(t*2+x)*4+2*hi,2)}, v{vTO1 if x else vTO0} offset:{hi*16*1152+t*256}")
    vDB = 76
    vO = 80
    vFr = 116
    vWt = 148
    vD = 152
    vLs = 156
    g(f"""
    s_lshr_b32 s{sO}, s{sH}, 4
    s_lshl_b32 s{sO}, s{sO}, 1
    s_add_u32 s{sO}, s{sO}, s{sW}
    s_lshl_b32 s{sO}, s{sO}, 13
    s_and_b32 s{sO3}, s{sH}, 15
    s_lshl_b32 s{sO3}, s{sO3}, 4
    s_add_u32 s{sO}, s{sO}, s{sO3}
    s_add_u32 s{sO}, s{sO}, {D2}
    s_mul_i32 s{sO3}, s{sA}, {OSTR}
    s_lshl_b32 s{sTMP}, s{sW}, 13
    s_add_u32 s{sO3}, s{sO3}, s{sTMP}
    s_add_u32 s{sO3}, s{sO3}, {OB}
    s_mov_b32 s{sCNT}, 0
    """)
    g.lab("L_A_d2poll")
    g(f"buffer_load_dwordx4 {v(vDB,4)}, v{vD2}, {WS}, s{sO} offen sc1")
    spin_guard(g, "L_A_d2done")
    g("s_waitcnt vmcnt(0)")
    g(f"v_cmp_ne_u64 vcc, s[{sT}:{sT+1}], {v(vDB+2,2)}")
    g("s_cbranch_vccnz L_A_d2poll")
    g.lab("L_A_d2done")
    g("s_waitcnt vmcnt(0)")
    g.stamp(6)
    def ogather():
        for u in range(8):
            g(f"buffer_load_dwordx4 {v(vO+4*u,4)}, v{vOg}, {WS}, s{sO3} offen offset:{u*256} sc1")
    early = g.opt.get("o_early", 1)
    if early: ogather()
    g(f"v_max_f32_dpp v{t0}, v{vDB}, v{vDB} row_ror:8 row_mask:0xf bank_mask:0xf")
    for r in (4, 2, 1):
        g(f"v_max_f32_dpp v{t0}, v{t0}, v{t0} row_ror:{r} row_mask:0xf bank_mask:0xf")
    g(f"""
    v_mov_b32 v{t1}, v{t0}
    v_permlane16_swap_b32 v{t0}, v{t1}
    v_max_f32 v{t0}, v{t0}, v{t1}
    v_sub_f32 v{t0}, v{vDB}, v{t0}
    v_exp_f32 v{t0}, v{t0}
    v_cvt_pk_bf16_f32 v{t0}, v{t0}, v{t0}
    ds_write_b16 v{vWTw}, v{t0} offset:{A_WT}
    v_and_b32 v{t0}, 0xffff0000, v{t0}
    v_mul_f32 v{vLs}, v{t0}, v{vDB+1}
    s_waitcnt lgkmcnt(0)
    ds_read_b128 {v(vWt,4)}, v{vWTr} offset:{A_WT}
    """)
    for r in (8, 4, 2, 1):
        g(f"v_add_f32_dpp v{vLs}, v{vLs}, v{vLs} row_ror:{r} row_mask:0xf bank_mask:0xf")
    g(f"""
    v_mov_b32 v{t1}, v{vLs}
    v_permlane16_swap_b32 v{vLs}, v{t1}
    v_add_f32 v{vLs}, v{vLs}, v{t1}
    v_rcp_f32 v{vLs}, v{vLs}
    s_waitcnt lgkmcnt(0)
    """)
    for u in range(8):
        for d in range(4):
            g(f"v_perm_b32 v{vFr+4*u+d}, v{vWt+(u>>1)}, v{vWt+(u>>1)}, v{vSel+4*(u&1)+d}")
    g(f"s_mov_b32 s{sCNT}, 0")
    if early: g("s_branch L_A_ocomb")
    g.lab("L_A_oretry")
    ogather()
    g.lab("L_A_ocomb")
    for u in range(8):
        g(f"s_waitcnt vmcnt({7-u})")
        g(f"{MF} {v(vD,4)}, {v(vFr+4*u,4)}, {v(vO+4*u,4)}, {'0' if u == 0 else v(vD,4)}")
    g(f"v_cmp_u_f32 vcc, v{vD}, v{vD}")
    g("s_cbranch_vccz L_A_ook")
    spin_guard(g, "L_A_ook")
    g(f"s_mov_b64 s[{sM4}:{sM4+1}], 0")
    for u in range(8):
        g(f"v_cmp_eq_u32 vcc, s{sPOI}, v{vO+4*u}")
        g(f"s_or_b64 s[{sM4}:{sM4+1}], s[{sM4}:{sM4+1}], vcc")
    g("s_cbranch_scc1 L_A_oretry")
    g.lab("L_A_ook")
    for r in range(4):
        g(f"v_mul_f32 v{vD+r}, v{vLs}, v{vD+r}")
    g(f"v_cvt_pk_bf16_f32 v{vD}, v{vD}, v{vD+1}")
    g(f"v_cvt_pk_bf16_f32 v{vD+1}, v{vD+2}, v{vD+3}")
    g(f"ds_write_b64 v{vCW}, {v(vD,2)} offset:{A_CTXC}")
    g.lab("L_A_ctxwait")
    g("s_waitcnt lgkmcnt(0)")
    g("s_barrier")
    g.stamp(7)
    vC = 80
    vU = 96
    vG1, vG2 = 104, 108
    vAe, vAo = 116, 120
    vY = 124
    for ks in range(4):
        g(f"ds_read_b128 {v(vC+4*ks,4)}, v{vCX} offset:{ks*64}")
    g(f"""
    s_lshl_b32 s{sO}, s{sH}, 2
    s_add_u32 s{sO}, s{sO}, s{sW}
    s_lshl_b32 s{sO}, s{sO}, 2
    s_add_u32 s{sO}, s{sO}, s{sJ}
    s_lshl_b32 s{sO}, s{sO}, 8
    s_add_u32 s{sO}, s{sO}, {HB}
    s_lshl_b32 s{sO3}, s{sA}, 10
    s_add_u32 s{sO3}, s{sO3}, {HB}
    """)
    for ks in range(4):
        g(f"s_waitcnt lgkmcnt({3-ks})")
        for tau in range(2):
            g(f"{MF} {v(vU+4*tau,4)}, {A(aUV+(tau*4+ks)*4,4)}, {v(vC+4*ks,4)}, {'0' if ks == 0 else v(vU+4*tau,4)}")
    g(f"""
    v_cvt_pk_bf16_f32 v{vU}, v{vU}, v{vU+1}
    v_cvt_pk_bf16_f32 v{vU+1}, v{vU+2}, v{vU+3}
    v_cvt_pk_bf16_f32 v{vU+4}, v{vU+4}, v{vU+5}
    v_cvt_pk_bf16_f32 v{vU+5}, v{vU+6}, v{vU+7}
    v_cndmask_b32 v{vTag-2}, v{vU}, v{vU+4}, s[{sM2}:{sM2+1}]
    v_cndmask_b32 v{vTag-1}, v{vU+1}, v{vU+5}, s[{sM2}:{sM2+1}]
    s_mov_b32 exec_lo, 0x000f000f
    s_mov_b32 exec_hi, 0x000f000f
    buffer_store_dwordx4 {v(vTag-2,4)}, v{vHBs}, {WS}, s{sO} offen sc1
    s_mov_b64 exec, -1
    s_mov_b32 s{sCNT}, 0
    """)
    g.stamp(8)
    g.lab("L_A_hbpoll")
    g(f"buffer_load_dwordx4 {v(vG1,4)}, v{vHBl}, {WS}, s{sO3} offen sc1")
    g(f"buffer_load_dwordx4 {v(vG2,4)}, v{vHBl}, {WS}, s{sO3} offen offset:32 sc1")
    spin_guard(g, "L_A_hbdone")
    g("s_waitcnt vmcnt(0)")
    g(f"v_cmp_ne_u64 vcc, s[{sT}:{sT+1}], {v(vG1+2,2)}")
    g(f"v_cmp_ne_u64 s[{sM3}:{sM3+1}], s[{sT}:{sT+1}], {v(vG2+2,2)}")
    g(f"s_or_b64 vcc, vcc, s[{sM3}:{sM3+1}]")
    g("s_cbranch_scc1 L_A_hbpoll")
    g.lab("L_A_hbdone")
    g("s_waitcnt vmcnt(0)")
    g.stamp(9)
    g(f"s_cmp_lg_u32 s{sW}, 3")
    g("s_cbranch_scc1 L_A_nod3")
    g(f"""
    s_lshl_b32 s{sO}, s{sPR}, 7
    s_add_u32 s{sO}, s{sO}, {D3}
    s_mov_b64 exec, 1
    buffer_store_dwordx2 {v(vTag,2)}, v{vD2}, {WS}, s{sO} offen sc1
    s_mov_b64 exec, -1
    """)
    g.lab("L_A_nod3")
    src = [vG1, vG1 + 1, vG2, vG2 + 1]
    for d in range(4):
        g(f"v_cndmask_b32 v{vAe+d}, 0, v{src[d]}, s[{sM1}:{sM1+1}]")
    for d in range(4):
        g(f"v_cndmask_b32 v{vAo+d}, v{src[d]}, 0, s[{sM1}:{sM1+1}]")
    for t in range(4):
        g(f"{MF} {v(vY+4*t,4)}, {v(vAe,4)}, {A(aWO+(t*2)*4,4)}, 0")
    for t in range(4):
        g(f"{MF} {v(vY+4*t,4)}, {v(vAo,4)}, {A(aWO+(t*2+1)*4,4)}, {v(vY+4*t,4)}")
    g(f"s_cmp_gt_u32 s{sW}, 1")
    g("s_cbranch_scc1 L_A_no5")
    g(f"{MF} {v(vY+16,4)}, {v(vAe,4)}, {A(aWO+32,4)}, 0")
    g(f"{MF} {v(vY+16,4)}, {v(vAo,4)}, {A(aWO+36,4)}, {v(vY+16,4)}")
    g.lab("L_A_no5")
    for t in range(4):
        g(f"v_pk_add_f32 {v(vY+4*t,2)}, {v(vY+4*t,2)}, {v(vY+4*t+2,2)}")
    for t in range(4):
        g(f"v_add_f32 v{vAe+t}, v{vY+4*t}, v{vY+4*t+1}")
    g(f"buffer_store_dwordx4 {v(vAe,4)}, v{vH3}, {WS}, s{sH3m} offen sc1")
    g(f"s_cmp_gt_u32 s{sW}, 1")
    g("s_cbranch_scc1 L_A_no5b")
    g(f"v_pk_add_f32 {v(vY+16,2)}, {v(vY+16,2)}, {v(vY+18,2)}")
    g(f"v_add_f32 v{vY+16}, v{vY+16}, v{vY+17}")
    g(f"buffer_store_dword v{vY+16}, v{vH3x}, {WS}, s{sH3l} offen sc1")
    g.lab("L_A_no5b")
    g.stamp(10)
    g(f"s_cmp_ge_u32 s{sA}, 36")
    g("s_cbranch_scc1 L_A_exit")
    vRd = 80
    vDa, vRw = 96, 97
    order = g.opt.get("red_order", (1, 0))
    g(f"""
    v_and_b32 v{t0}, 31, v{vL}
    v_lshlrev_b32 v{vDa}, 7, v{t0}
    v_lshlrev_b32 v{vA_l16}, 4, v{vL}
    v_and_b32 v{t0}, 7, v{vL}
    v_lshlrev_b32 v{vRw}, 6, v{t0}
    v_lshrrev_b32 v{t0}, 5, v{vL}
    v_lshl_add_u32 v{vRw}, v{t0}, 4, v{vRw}
    v_bfe_u32 v{t0}, v{vL}, 4, 1
    v_lshl_add_u32 v{vRw}, v{t0}, 5, v{vRw}
    v_lshl_add_u32 v{vRw}, s{sW}, 2, v{vRw}
    s_lshl_b32 s{sO2}, s{sW}, 12
    s_mul_i32 s{sO3}, s{sA}, {USTR}
    s_add_u32 s{sO3}, s{sO3}, s{sO2}
    """)
    for part in order:
        P = f"L_A_r{part}"
        g(f"s_add_u32 s{sO}, s{sO2}, {D3 + part*16384}")
        g(f"s_mov_b32 s{sCNT}, 0")
        g.lab(P + "poll")
        g(f"buffer_load_dwordx2 {v(t0,2)}, v{vDa}, {WS}, s{sO} offen sc1")
        spin_guard(g, P + "go")
        g("s_waitcnt vmcnt(0)")
        g(f"v_cmp_ne_u64 vcc, s[{sT}:{sT+1}], {v(t0,2)}")
        g(f"s_cbranch_vccnz {P}poll")
        g.lab(P + "go")
        g(f"s_add_u32 s{sO}, s{sO3}, {H3 + part*16384}")
        g(f"s_mov_b32 s{sCNT}, 0")
        g.lab(P + "get")
        for u in range(4):
            g(f"buffer_load_dwordx4 {v(vRd+4*u,4)}, v{vA_l16}, {WS}, s{sO} offen offset:{u*1024} sc1")
        g("s_waitcnt vmcnt(2)")
        g(f"v_pk_add_f32 {v(vY,2)}, {v(vRd,2)}, {v(vRd+4,2)}")
        g(f"v_pk_add_f32 {v(vY+2,2)}, {v(vRd+2,2)}, {v(vRd+6,2)}")
        g("s_waitcnt vmcnt(0)")
        g(f"v_pk_add_f32 {v(vY+4,2)}, {v(vRd+8,2)}, {v(vRd+12,2)}")
        g(f"v_pk_add_f32 {v(vY+6,2)}, {v(vRd+10,2)}, {v(vRd+14,2)}")
        g(f"v_pk_add_f32 {v(vY,2)}, {v(vY,2)}, {v(vY+4,2)}")
        g(f"v_pk_add_f32 {v(vY+2,2)}, {v(vY+2,2)}, {v(vY+6,2)}")
        g(f"v_permlane32_swap_b32 v{vY}, v{vY+1}")
        g(f"v_permlane32_swap_b32 v{vY+2}, v{vY+3}")
        g(f"v_add_f32 v{vY}, v{vY}, v{vY+1}")
        g(f"v_add_f32 v{vY+2}, v{vY+2}, v{vY+3}")
        g(f"v_permlane16_swap_b32 v{vY}, v{vY+2}")
        g(f"v_add_f32 v{vY}, v{vY}, v{vY+2}")
        g(f"v_cmp_u_f32 vcc, v{vY}, v{vY}")
        g(f"s_cbranch_vccz {P}ok")
        spin_guard(g, P + "ok")
        g(f"s_mov_b64 s[{sM4}:{sM4+1}], 0")
        for k in range(16):
            g(f"v_cmp_eq_u32 vcc, s{sPOI}, v{vRd+k}")
            g(f"s_or_b64 s[{sM4}:{sM4+1}], s[{sM4}:{sM4+1}], vcc")
        g(f"s_cbranch_scc1 {P}get")
        g.lab(P + "ok")
        g(f"v_add_f32_dpp v{vY}, v{vY}, v{vY} row_ror:8 row_mask:0xf bank_mask:0xf")
        g(f"ds_write_b32 v{vRw}, v{vY} offset:{A_RED + part*512}")
        g.stamp(11 + order.index(part))
    g("s_waitcnt lgkmcnt(0)")
    g("s_barrier")
    g(f"s_cmp_lg_u32 s{sW}, 0")
    g("s_cbranch_scc1 L_A_exit")
    g(f"""
    s_mov_b32 exec_hi, 0
    ds_read_b128 {v(vRd,4)}, v{vA_l16} offset:{A_RED}
    ds_read_b128 {v(vRd+4,4)}, v{vA_l16} offset:{A_RED+512}
    s_waitcnt lgkmcnt(0)
    v_pk_add_f32 {v(vRd,2)}, {v(vRd,2)}, {v(vRd+2,2)}
    v_pk_add_f32 {v(vRd+4,2)}, {v(vRd+4,2)}, {v(vRd+6,2)}
    v_add_f32 v{vRd}, v{vRd}, v{vRd+1}
    v_add_f32 v{vRd+4}, v{vRd+4}, v{vRd+5}
    v_add_f32 v{vRd+4}, v{vRd+4}, v{vB2}
    v_sub_f32 v{t0}, 1.0, v{vFB}
    v_mul_f32 v{vRd+4}, v{t0}, v{vRd+4}
    v_fma_f32 v{vRd}, v{vFB}, v{vRd}, v{vRd+4}
    v_cvt_pk_bf16_f32 v{vRd}, v{vRd}, v{vRd}
    buffer_store_short v{vRd}, v{vOA}, {OUT}, 0 offen
    s_cmp_lg_u32 s{sA}, 0
    s_cbranch_scc1 L_A_exit
    s_mov_b64 exec, 1
    buffer_store_dwordx2 {v(vTag,2)}, v{vA_l16}, {WS}, 0 offen offset:{EPOCH} sc1
    """)
    if g.opt.get("probe") is not None:
        i = g.opt["probe"]
        g.stamp(13)
        g("s_waitcnt lgkmcnt(0)")
        g(f"s_sub_u32 s{sO}, s{70+2*i}, s70")
        g(f"s_lshl_b32 s{sO}, s{sO}, 2")
        g(f"s_add_u32 s{sO}, s{sO}, 4000")
        g.lab("L_probe")
        g(f"s_memrealtime s[{sTMP}:{sTMP+1}]")
        g("s_waitcnt lgkmcnt(0)")
        g(f"s_sub_u32 s{sTMP}, s{sTMP}, s70")
        g(f"s_cmp_lt_u32 s{sTMP}, s{sO}")
        g("s_cbranch_scc1 L_probe")
        g("s_endpgm")
    g.lab("L_A_exit")
    g.stamp(13)
    dump_stamps(g, 16, 160)
    g("s_endpgm")

def gen_B(g, NT, PFL, vL, vN, vG):
    CKV, W1, W2, B1 = "s[12:15]", "s[16:19]", "s[20:23]", "s[24:27]"
    t0, t1, t2, t3 = 4, 5, 6, 7
    vPOI = 8
    vL16 = 12
    vOa = 13
    vH3, vH3x = 14, 15
    vXr = 16
    vB1 = 22
    vSB = 24
    vQBs = 28
    vPVb = 32
    vTag = 36
    vML = 34
    vMXw, vMXr = 38, 39
    vD1 = 40
    aS, aP = 0, 128
    sOo = 61
    sH3m, sH3l = 62, 63
    srd(g, 12, 1, 2 * 4096 * 1024)
    srd(g, 24, 8, 9216)
    g(f"""
    s_and_b32 s{sHG}, s{sI}, 1
    s_and_b32 s{sB}, s{sXCD}, 1
    s_lshr_b32 s{sMSG}, s{sI}, 1
    s_lshl_b32 s{sMSG}, s{sMSG}, 2
    s_lshr_b32 s{sO}, s{sXCD}, 1
    s_add_u32 s{sMSG}, s{sMSG}, s{sO}
    s_lshl_b32 s{sO}, s{sB}, 5
    s_add_u32 s{sMSG}, s{sMSG}, s{sO}
    s_lshl_b32 s{sU2}, s{sXCD}, 4
    s_add_u32 s{sU2}, s{sU2}, s{sI}
    s_add_u32 s{sPR}, s{sU2}, 128
    v_lshlrev_b32 v{vL16}, 4, v{vL}
    """)
    for k in range(4): g(f"v_mov_b32 v{vPOI+k}, s{sPOI}")
    g(f"""
    v_mul_u32_u24 v{vOa}, {16*OSTR}, v{vG}
    v_lshl_add_u32 v{vOa}, v{vN}, 4, v{vOa}
    s_lshl_b32 s{sOo}, s{sHG}, 6
    s_add_u32 s{sOo}, s{sOo}, s{sW}
    s_mul_i32 s{sOo}, s{sOo}, {OSTR}
    s_lshl_b32 s{sO}, s{sMSG}, 8
    s_add_u32 s{sOo}, s{sOo}, s{sO}
    s_add_u32 s{sOo}, s{sOo}, {OB}
    """)
    h3_addr(g, vH3, vH3x, vL, vN, vG, t0)
    h3_soffs(g, sH3m, sH3l)
    g(f"s_cmp_lg_u32 s{sW}, 3")
    g("s_cbranch_scc1 L_B_nopf")
    code_prefetch(g, PFL, vL, t0, t1)
    g.lab("L_B_nopf")
    g("s_waitcnt lgkmcnt(0)")
    load_tag(g)
    for r in range(4):
        g(f"s_add_u32 s{sO}, s{sOo}, {4*r*OSTR}")
        g(f"buffer_store_dwordx4 {v(vPOI,4)}, v{vOa}, {WS}, s{sO} offen sc1")
    g(f"buffer_store_dwordx4 {v(vPOI,4)}, v{vH3}, {WS}, s{sH3m} offen sc1")
    g(f"s_cmp_gt_u32 s{sW}, 1")
    g("s_cbranch_scc1 L_B_nor3")
    g(f"buffer_store_dword v{vPOI}, v{vH3x}, {WS}, s{sH3l} offen sc1")
    g.lab("L_B_nor3")
    g(f"""
    s_lshl_b32 s{sO}, s{sMSG}, 2
    s_add_u32 s{sO}, s{sO}, s{sW}
    s_lshl_b32 s{sO}, s{sO}, 15
    s_lshl_b32 m0, s{sW}, 15
    s_add_u32 m0, m0, {B_CKV}
    """)
    for k in range(32):
        f = f16sw(k & 15)
        if k % 4 == 0 and k:
            g(f"s_addk_i32 s{sO}, 0x1000")
            g(f"s_add_u32 m0, m0, 0x1000")
        tmp = t0 + (k & 1)
        g(f"v_xor_b32 v{tmp}, {f*16}, v{vL16}")
        g(f"buffer_load_dwordx4 v{tmp}, {CKV}, s{sO} offen offset:{(k%4)*1024} {NT} lds")
    g.stamp(1)
    srd(g, 16, 7, 576 * 9216)
    srd(g, 20, 9, 4608 * 1152)
    g(f"""
    v_and_b32 v{t0}, 1, v{vL}
    v_mul_u32_u24 v{t0}, 1152, v{t0}
    s_mul_i32 s{sO}, s{sI}, 72
    buffer_load_dwordx2 {v(vXr+4,2)}, v{t0}, {X}, s{sO} offen offset:64
    v_lshl_add_u32 v{t0}, v{vG}, 3, v{t0}
    buffer_load_dwordx2 {v(vXr,2)}, v{t0}, {X}, s{sO} offen
    buffer_load_dwordx2 {v(vXr+2,2)}, v{t0}, {X}, s{sO} offen offset:32
    s_mul_i32 s{sO}, s{sU2}, 72
    s_mul_i32 s{sO3}, s{sW}, 18
    s_add_u32 s{sO}, s{sO}, s{sO3}
    v_lshlrev_b32 v{t0}, 1, v{vN}
    buffer_load_ushort v{vB1}, v{t0}, {B1}, s{sO} offen
    """)
    def fsw(dst, src, tmp):
        g(f"v_lshrrev_b32 v{tmp}, 3, v{src}")
        g(f"v_and_b32 v{dst}, 7, v{src}")
        g(f"v_lshl_add_u32 v{dst}, v{dst}, 1, v{tmp}")
        g(f"v_lshlrev_b32 v{tmp}, 3, v{tmp}")
        g(f"v_xor_b32 v{dst}, v{dst}, v{tmp}")
    fsw(t2, vN, t3)
    g(f"""
    v_xor_b32 v{t2}, v{t2}, v{vG}
    v_lshlrev_b32 v{t2}, 4, v{t2}
    v_lshl_add_u32 v{t2}, v{vN}, 10, v{t2}
    s_lshl_b32 s{sO}, s{sW}, 15
    s_add_u32 s{sO}, s{sO}, {B_CKV}
    """)
    assert B_QF == 0
    for q in range(4):
        g(f"v_xor_b32 v{vQBs+q}, {q*64}, v{t2}")
        g(f"v_add_u32 v{vSB+q}, s{sO}, v{vQBs+q}")
    g(f"v_lshrrev_b32 v{t0}, 2, v{vL}")
    fsw(t2, t0, t3)
    g(f"""
    v_bfe_u32 v{t3}, v{vL}, 1, 1
    v_xor_b32 v{t2}, v{t2}, v{t3}
    v_lshlrev_b32 v{vPVb}, 10, v{t0}
    v_lshl_add_u32 v{vPVb}, v{t2}, 4, v{vPVb}
    v_and_b32 v{t3}, 1, v{vL}
    v_lshl_add_u32 v{vPVb}, v{t3}, 3, v{vPVb}
    v_lshl_add_u32 v{vPVb}, s{sW}, 8, v{vPVb}
    v_add_u32 v{vPVb}, {B_CKV}, v{vPVb}
    v_add_u32 v{vPVb+1}, 0x10000, v{vPVb}
    v_lshlrev_b32 v{vMXr}, 4, v{vN}
    v_lshl_add_u32 v{vMXw}, v{vG}, 2, v{vMXr}
    v_lshl_add_u32 v{vMXw}, s{sW}, 8, v{vMXw}
    v_lshlrev_b32 v{vD1}, 7, v{vN}
    """)
    vP1, vP2 = 42, 53
    for i in range(9):
        unit_pattern(g, vP2 + i, vL, None, i, 1152, t0, t1)
        g(f"v_mul_u32_u24 v{t1}, {9216-1152}, v{t1}")
        g(f"v_add_u32 v{vP1+i}, v{vP2+i}, v{t1}")
    unit_pattern(g, vP2 + 9, vL, sW, None, 1152, t0, t1)
    g(f"v_mul_u32_u24 v{t1}, {9216-1152}, v{t1}")
    g(f"v_add_u32 v{vP1+9}, v{vP2+9}, v{t1}")
    finish_tag(g)
    g(f"v_mov_b32 v{vTag}, s{sT}")
    g(f"v_mov_b32 v{vTag+1}, s{sT+1}")
    g(f"""
    v_mov_b32 v{t0}, 0
    v_lshlrev_b32 v{t1}, 2, v{vL}
    s_mov_b32 exec_hi, 0
    ds_write_b32 v{t1}, v{t0} offset:{B_ZERO}
    s_mov_b64 exec, -1
    """)
    g(f"s_waitcnt vmcnt({16+4})")
    for ks in range(16):
        g(f"ds_read_b128 {A(aS+ks*4,4)}, v{vSB+(ks&3)} offset:{(ks>>2)*256}")
    g("s_waitcnt vmcnt(0)")
    g.stamp(2)
    vDB = 64
    g(f"""
    s_lshl_b32 s{sO2}, s{sHG}, 2
    s_add_u32 s{sO2}, s{sO2}, s{sW}
    s_lshl_b32 s{sO2}, s{sO2}, 11
    s_add_u32 s{sO2}, s{sO2}, {D1}
    buffer_load_dwordx2 {v(vDB,2)}, v{vD1}, {WS}, s{sO2} offen sc1
    """)
    for ks in range(16):
        g(f"ds_read_b128 {A(aS+64+ks*4,4)}, v{vSB+(ks&3)} offset:{16384+(ks>>2)*256}")
    g("s_barrier")
    for half in range(2):
        for ct in range(8):
            tmp = t0 + (ct & 1)
            g(f"v_xor_b32 v{tmp}, {ct<<5}, v{vPVb+half}")
            for k2 in range(2):
                for hi in range(2):
                    ks = half * 2 + k2
                    g(f"ds_read_b64_tr_b16 {A(aP+(ct*4+ks)*4+2*hi,2)}, v{tmp} offset:{k2*32768+hi*16384}")
    vXA = 128
    g(f"v_lshrrev_b32 v{t0}, 1, v{vN}")
    g(f"v_lshrrev_b32 v{t1}, 1, v{vL}")
    for z in range(4):
        g(f"v_cmp_eq_u32 vcc, {2*z}, v{t0}")
        g(f"v_cmp_eq_u32 s[{sM3}:{sM3+1}], {2*z}, v{t1}")
        for d in range(4):
            g(f"v_cndmask_b32 v{vXA+6*z+d}, 0, v{vXr+d}, vcc")
        for d in range(4, 6):
            g(f"v_cndmask_b32 v{vXA+6*z+d}, 0, v{vXr+d}, s[{sM3}:{sM3+1}]")
    vQd = 152
    g(f"""
    s_lshl_b32 s{sO3}, s{sB}, 1
    s_add_u32 s{sO3}, s{sO3}, s{sHG}
    s_lshl_b32 s{sO3}, s{sO3}, 2
    s_add_u32 s{sO3}, s{sO3}, s{sW}
    s_lshl_b32 s{sO3}, s{sO3}, 12
    s_add_u32 s{sO3}, s{sO3}, {QB}
    """)
    g(f"""
    s_lshr_b32 s{sTMP}, s{sW}, 1
    s_xor_b32 s{sTMP+1}, s{sW}, s{sTMP}
    s_and_b32 s{sTMP+1}, s{sTMP+1}, 1
    s_lshl_b32 s{sTMP+1}, s{sTMP+1}, 3
    s_add_u32 s{sTMP}, s{sTMP}, s{sTMP+1}
    s_lshl_b32 s{sTMP}, s{sTMP}, 4
    v_xor_b32 v{vQd}, s{sTMP}, v{vL16}
    v_xor_b32 v{vQd+1}, 32, v{vQd}
    v_xor_b32 v{vQd+2}, 64, v{vQd}
    v_xor_b32 v{vQd+3}, 0x60, v{vQd}
    s_lshl_b32 m0, s{sW}, 12
    s_mov_b32 s{sCNT}, 0
    s_branch L_B_d1chk
    """)
    g.lab("L_B_d1poll")
    g(f"buffer_load_dwordx2 {v(vDB,2)}, v{vD1}, {WS}, s{sO2} offen sc1")
    spin_guard(g, "L_B_qget")
    g.lab("L_B_d1chk")
    g("s_waitcnt vmcnt(0)")
    g(f"v_cmp_ne_u64 vcc, s[{sT}:{sT+1}], {v(vDB,2)}")
    g("s_cbranch_vccnz L_B_d1poll")
    g(f"s_mov_b32 s{sCNT}, 0")
    g.stamp(3)
    g.lab("L_B_qget")
    for k in range(4):
        g(f"buffer_load_dwordx4 v{vQd+k}, {WS}, s{sO3} offen offset:{k*1024} sc1 lds")
    g("s_waitcnt vmcnt(0) lgkmcnt(0)")
    g("s_barrier")
    g.stamp(4)
    vQ = 64
    vS = 156
    for ks in range(16):
        g(f"ds_read_b128 {v(vQ+4*ks,4)}, v{vQBs+(ks&3)} offset:{(ks>>2)*256}")
        if ks == 14: g("s_waitcnt lgkmcnt(14)")
    for ks in range(16):
        g(f"s_waitcnt lgkmcnt({min(15-ks, 15)})")
        for kt in range(2):
            g(f"{MF} {v(vS+4*kt,4)}, {A(aS+(kt*16+ks)*4,4)}, {v(vQ+4*ks,4)}, {'0' if ks == 0 else v(vS+4*kt,4)}")
    g(f"v_cmp_u_f32 vcc, v{vS}, v{vS}")
    g("s_cbranch_vccz L_B_qok")
    spin_guard(g, "L_B_qok")
    g(f"s_mov_b64 s[{sM4}:{sM4+1}], 0")
    for ks in range(16):
        g(f"v_cmp_eq_u32 vcc, s{sPOI}, v{vQ+4*ks}")
        g(f"s_or_b64 s[{sM4}:{sM4+1}], s[{sM4}:{sM4+1}], vcc")
    g("s_cbranch_scc0 L_B_qok")
    g("s_barrier")
    g("s_branch L_B_qget")
    g.lab("L_B_qok")
    g(f"""
    v_max3_f32 v{t0}, v{vS}, v{vS+1}, v{vS+2}
    v_max3_f32 v{t1}, v{vS+3}, v{vS+4}, v{vS+5}
    v_max3_f32 v{t0}, v{t0}, v{vS+6}, v{vS+7}
    v_max_f32 v{t0}, v{t0}, v{t1}
    ds_write_b32 v{vMXw}, v{t0} offset:{B_MX}
    s_waitcnt lgkmcnt(0)
    s_barrier
    """)
    g.stamp(5)
    vM = 64
    for q in range(4):
        g(f"ds_read_b128 {v(vM+4*q,4)}, v{vMXr} offset:{B_MX+q*256}")
    def unit_dma(SRD, vP, ldsbase, s_unit_base, pitch, tag):
        g(f"s_mul_i32 s{sO}, s{sW}, {8*pitch}")
        g(f"s_add_u32 s{sO}, s{sO}, s{s_unit_base}")
        g(f"s_mul_i32 s{sTMP}, s{sW}, 9216")
        for i in range(9):
            g(f"s_add_u32 m0, s{sTMP}, {ldsbase + i*1024}")
            g(f"buffer_load_dwordx4 v{vP+i}, {SRD}, s{sO} offen {NT} lds")
        g(f"s_add_u32 s{sO}, s{s_unit_base}, {32*pitch}")
        g(f"s_lshl_b32 s{sTMP}, s{sW}, 10")
        g(f"s_add_u32 m0, s{sTMP}, {ldsbase + 36864}")
        g(f"buffer_load_dwordx4 v{vP+9}, {SRD}, s{sO} offen {NT} lds")
        g(f"s_cmp_lg_u32 s{sW}, 0")
        g(f"s_cbranch_scc1 L_B_not{tag}")
        g(f"s_mov_b32 m0, {ldsbase + 36864 + 4096}")
        g("s_mov_b32 exec_hi, 0")
        g(f"buffer_load_dwordx4 v{vP+4}, {SRD}, s{sO} offen {NT} lds")
        g("s_mov_b64 exec, -1")
        g.lab(f"L_B_not{tag}")
    def w1_dma():
        g(f"s_mul_i32 s{sO2}, s{sI}, {36*9216}")
        g(f"s_mul_i32 s{sO3}, s{sXCD}, 1152")
        g(f"s_add_u32 s{sO2}, s{sO2}, s{sO3}")
        unit_dma(W1, vP1, B_W1, sO2, 9216, "w1")
    CS = math.log2(math.e) * 128 ** -0.5
    g(f"s_mov_b32 s{sC}, {hex(fbits(CS))}")
    g("s_waitcnt lgkmcnt(0)")
    g(f"""
    v_max3_f32 v{vM}, v{vM}, v{vM+1}, v{vM+2}
    v_max3_f32 v{vM+3}, v{vM+3}, v{vM+4}, v{vM+5}
    v_max3_f32 v{vM+6}, v{vM+6}, v{vM+7}, v{vM+8}
    v_max3_f32 v{vM+9}, v{vM+9}, v{vM+10}, v{vM+11}
    v_max3_f32 v{vM+12}, v{vM+12}, v{vM+13}, v{vM+14}
    v_max3_f32 v{vM}, v{vM}, v{vM+3}, v{vM+6}
    v_max3_f32 v{vM+9}, v{vM+9}, v{vM+12}, v{vM+15}
    v_max_f32 v{vM}, v{vM}, v{vM+9}
    v_mul_f32 v{vML}, s{sC}, v{vM}
    """)
    for k in range(8):
        g(f"v_fma_f32 v{vS+k}, v{vS+k}, s{sC}, -v{vML}")
    for k in range(8):
        g(f"v_exp_f32 v{vS+k}, v{vS+k}")
    vPf = 80
    for k in range(4):
        g(f"v_cvt_pk_bf16_f32 v{vS+k}, v{vS+2*k}, v{vS+2*k+1}")
    g(f"""
    v_lshl_add_u32 v{t0}, s{sW}, 10, v{vL16}
    ds_write_b128 v{t0}, {v(vS,4)} offset:{B_PB}
    v_mov_b32 v{vM}, 0x3f803f80
    v_mov_b32 v{vM+1}, 0x3f803f80
    v_mov_b32 v{vM+2}, 0x3f803f80
    v_mov_b32 v{vM+3}, 0x3f803f80
    s_waitcnt lgkmcnt(0)
    s_barrier
    """)
    g.stamp(6)
    for ks in range(4):
        g(f"ds_read_b128 {v(vPf+4*ks,4)}, v{vL16} offset:{B_PB+ks*1024}")
    vO = 96
    vLa = 68
    g(f"""
    s_lshl_b32 s{sO3}, s{sHG}, 6
    s_add_u32 s{sO3}, s{sO3}, s{sMSG}
    s_lshl_b32 s{sO3}, s{sO3}, 8
    s_add_u32 s{sO3}, s{sO3}, {D2}
    """)
    dbpos = g.opt.get("d2_pos", 2)
    for ks in range(4):
        g(f"s_waitcnt lgkmcnt({3-ks})")
        g(f"{MF} {v(vLa,4)}, {v(vM,4)}, {v(vPf+4*ks,4)}, {'0' if ks == 0 else v(vLa,4)}")
    for ks in range(4):
        if ks == dbpos:
            g(f"s_cmp_lg_u32 s{sW}, 0")
            g("s_cbranch_scc1 L_B_nod2")
            g(f"v_mov_b32 v{vML+1}, v{vLa}")
            g("s_mov_b64 exec, 0xffff")
            g(f"buffer_store_dwordx4 {v(vML,4)}, v{vL16}, {WS}, s{sO3} offen sc1")
            g("s_mov_b64 exec, -1")
            g.lab("L_B_nod2")
        for ct in range(8):
            g(f"{MF} {v(vO+4*ct,4)}, {v(vPf+4*ks,4)}, {A(aP+(ct*4+ks)*4,4)}, {'0' if ks == 0 else v(vO+4*ct,4)}")
    vOo = 64
    for r in range(4):
        for k in range(4):
            g(f"v_cvt_pk_bf16_f32 v{vOo+4*r+k}, v{vO+8*k+r}, v{vO+8*k+4+r}")
        g(f"s_add_u32 s{sO}, s{sOo}, {4*r*OSTR}")
        g(f"buffer_store_dwordx4 {v(vOo+4*r,4)}, v{vOa}, {WS}, s{sO} offen sc1")
    g.stamp(7)
    w1_dma()
    g(f"s_mul_i32 s{sO2}, s{sU2}, {36*1152}")
    unit_dma(W2, vP2, B_W2, sO2, 1152, "w2")
    vT1, vK1 = 16, 17
    vT20, vT21, vK20, vK21 = 18, 19, 20, 21
    vHs, vHg, vHw = 24, 25, 26
    vHe, vHo, vHke, vHko = 27, 28, 29, 30
    g(f"""
    v_lshrrev_b32 v{t0}, 2, v{vL}
    v_bfe_u32 v{t1}, v{vL}, 1, 1
    v_lshl_add_u32 v{t1}, s{sW}, 1, v{t1}
    v_and_b32 v{t2}, 6, v{t0}
    v_xor_b32 v{t2}, v{t2}, v{t1}
    v_lshlrev_b32 v{t2}, 4, v{t2}
    v_mul_u32_u24 v{vT1}, 1152, v{t0}
    v_and_b32 v{t3}, 1, v{vL}
    v_lshlrev_b32 v{t3}, 3, v{t3}
    v_add3_u32 v{vT1}, v{vT1}, v{t2}, v{t3}
    v_and_b32 v{t0}, 3, v{t0}
    v_and_b32 v{t2}, 2, v{t0}
    v_xor_b32 v{t2}, v{t2}, v{t1}
    v_lshlrev_b32 v{t2}, 4, v{t2}
    v_mul_u32_u24 v{vK1}, 1152, v{t0}
    v_add3_u32 v{vK1}, v{vK1}, v{t2}, v{t3}
    """)
    tr_pair_bases(g, vT20, vT21, vK20, vK21, vL, B_W2, t0, t1, t2)
    g(f"""
    v_lshlrev_b32 v{vHs}, 10, v{vG}
    v_lshl_add_u32 v{vHs}, v{vN}, 4, v{vHs}
    v_mul_u32_u24 v{vHg}, 9216, v{vG}
    v_lshl_add_u32 v{vHg}, v{vN}, 4, v{vHg}
    v_lshrrev_b32 v{t0}, 5, v{vL}
    v_lshlrev_b32 v{vHw}, 7, v{t0}
    v_lshl_add_u32 v{vHw}, v{vN}, 1, v{vHw}
    s_mul_i32 s{sO}, s{sW}, 18
    v_add_u32 v{vHw}, s{sO}, v{vHw}
    v_bfe_u32 v{t0}, v{vL}, 2, 1
    v_lshlrev_b32 v{t0}, 7, v{t0}
    v_add_u32 v{t0}, {B_HL}, v{t0}
    v_lshl_add_u32 v{t1}, v{vG}, 3, v{t0}
    v_add_u32 v{t0}, 64, v{t0}
    v_mov_b32 v{t2}, {B_ZERO}
    v_cmp_gt_u32 vcc, 8, v{vN}
    v_cndmask_b32 v{vHe}, v{t2}, v{t1}, vcc
    v_cndmask_b32 v{vHo}, v{t1}, v{t2}, vcc
    v_lshrrev_b32 v{t1}, 3, v{vL}
    v_cmp_eq_u32 vcc, 0, v{t1}
    v_cndmask_b32 v{vHke}, v{t2}, v{t0}, vcc
    v_cmp_eq_u32 vcc, 1, v{t1}
    v_cndmask_b32 v{vHko}, v{t2}, v{t0}, vcc
    v_lshlrev_b32 v{vB1}, 16, v{vB1}
    """)
    g(f"s_cmp_lg_u32 s{sW}, 0")
    g("s_cbranch_scc1 L_B_w1a")
    g("s_waitcnt vmcnt(11)")
    g("s_branch L_B_w1b")
    g.lab("L_B_w1a")
    g("s_waitcnt vmcnt(10)")
    g.lab("L_B_w1b")
    g("s_barrier")
    g.stamp(8)
    aW = 0
    vH = 64
    for t in range(9):
        g(f"ds_read_b64_tr_b16 {A(aW+6*t,2)}, v{vT1} offset:{B_W1+t*128}")
        g(f"ds_read_b64_tr_b16 {A(aW+6*t+2,2)}, v{vT1} offset:{B_W1+16*1152+t*128}")
        if t >= 4:
            tt = t - 4
            g("s_waitcnt lgkmcnt(8)")
            g(f"{MF} {v(vH+4*(tt>>2),4)}, {v(vXA+6*(tt&3),4)}, {A(aW+6*tt,4)}, {'0' if tt & 3 == 0 else v(vH+4*(tt>>2),4)}")
    for t in range(9):
        g(f"ds_read_b64_tr_b16 {A(aW+6*t+4,2)}, v{vK1} offset:{B_W1+32*1152+t*128}")
        if t < 4:
            tt = t + 5
            g(f"s_waitcnt lgkmcnt({2*(8-tt)+t+1})")
            g(f"{MF} {v(vH+4*(tt>>2),4)}, {v(vXA+6*(tt&3),4)}, {A(aW+6*tt,4)}, {'0' if tt & 3 == 0 else v(vH+4*(tt>>2),4)}")
    for tt in range(9):
        g(f"s_waitcnt lgkmcnt({8-tt})")
        g(f"{MF16} {v(vH+4*(tt>>2),4)}, {v(vXA+6*(tt&3)+4,2)}, {A(aW+6*tt+4,2)}, {v(vH+4*(tt>>2),4)}")
    g(f"""
    s_mul_i32 s{sO}, s{sU2}, 9216
    s_lshl_b32 s{sO3}, s{sW}, 8
    s_add_u32 s{sO}, s{sO}, s{sO3}
    s_add_u32 s{sO}, s{sO}, {HH}
    """)
    for y in range(3):
        g(f"v_mov_b32 v{vH+4*y+2}, s{sT}")
        g(f"v_mov_b32 v{vH+4*y+3}, s{sT+1}")
        if y == 2: g("s_mov_b64 exec, 0xffff")
        g(f"buffer_store_dwordx4 {v(vH+4*y,4)}, v{vHs}, {WS}, s{sO} offen sc1")
        if y < 2: g(f"s_addk_i32 s{sO}, 0x1000")
    g.stamp(9)
    vHr = 80
    g(f"""
    s_mul_i32 s{sO}, s{sXCD}, {16*9216}
    s_mul_i32 s{sO3}, s{sI}, 576
    s_add_u32 s{sO}, s{sO}, s{sO3}
    s_mul_i32 s{sO3}, s{sW}, 144
    s_add_u32 s{sO}, s{sO}, s{sO3}
    s_add_u32 s{sO}, s{sO}, {HH}
    s_add_u32 s{sO2}, s{sO}, {4*9216}
    s_add_u32 s{sO3}, s{sO}, {8*9216}
    s_add_u32 s{sC}, s{sO}, {12*9216}
    s_mov_b32 exec_lo, 0x01ff01ff
    s_mov_b32 exec_hi, 0x01ff01ff
    s_mov_b32 s{sCNT}, 0
    """)
    g.lab("L_B_hpoll")
    for u, so in enumerate((sO, sO2, sO3, sC)):
        g(f"buffer_load_dwordx4 {v(vHr+4*u,4)}, v{vHg}, {WS}, s{so} offen sc1")
    spin_guard(g, "L_B_hdone")
    g("s_waitcnt vmcnt(0)")
    g(f"v_cmp_ne_u64 vcc, s[{sT}:{sT+1}], {v(vHr+2,2)}")
    for u in range(1, 4):
        g(f"v_cmp_ne_u64 s[{sM3}:{sM3+1}], s[{sT}:{sT+1}], {v(vHr+4*u+2,2)}")
        g(f"s_or_b64 vcc, vcc, s[{sM3}:{sM3+1}]")
    g("s_cbranch_scc1 L_B_hpoll")
    g.lab("L_B_hdone")
    g("s_waitcnt vmcnt(0)")
    g.stamp(10)
    c1 = -2.0 * math.log2(math.e) * math.sqrt(2.0 / math.pi)
    g(f"""
    v_pk_add_f32 {v(vHr,2)}, {v(vHr,2)}, {v(vHr+4,2)}
    v_pk_add_f32 {v(vHr+8,2)}, {v(vHr+8,2)}, {v(vHr+12,2)}
    v_pk_add_f32 {v(vHr,2)}, {v(vHr,2)}, {v(vHr+8,2)}
    v_permlane32_swap_b32 v{vHr}, v{vHr+1}
    v_add_f32 v{vHr}, v{vHr}, v{vHr+1}
    v_mov_b32 v{vHr+1}, v{vHr}
    v_permlane16_swap_b32 v{vHr}, v{vHr+1}
    v_add_f32 v{vHr}, v{vHr}, v{vHr+1}
    v_add_f32 v{vHr}, v{vHr}, v{vB1}
    v_mul_f32 v{t0}, v{vHr}, v{vHr}
    v_mov_b32 v{t1}, {hex(fbits(c1))}
    s_mov_b32 s{sC}, {hex(fbits(c1*0.044715))}
    v_fma_f32 v{t0}, v{t0}, s{sC}, v{t1}
    v_mul_f32 v{t0}, v{t0}, v{vHr}
    v_exp_f32 v{t0}, v{t0}
    v_add_f32 v{t0}, 1.0, v{t0}
    v_rcp_f32 v{t0}, v{t0}
    v_mul_f32 v{t0}, v{t0}, v{vHr}
    v_cvt_pk_bf16_f32 v{t0}, v{t0}, v{t0}
    ds_write_b16 v{vHw}, v{t0} offset:{B_HL}
    s_mov_b64 exec, -1
    s_waitcnt lgkmcnt(0)
    s_barrier
    """)
    g.stamp(11)
    g(f"s_cmp_lg_u32 s{sW}, 3")
    g("s_cbranch_scc1 L_B_nod3")
    g(f"""
    s_lshl_b32 s{sO}, s{sPR}, 7
    s_add_u32 s{sO}, s{sO}, {D3}
    s_mov_b64 exec, 1
    buffer_store_dwordx2 {v(vTag,2)}, v{vL16}, {WS}, s{sO} offen sc1
    s_mov_b64 exec, -1
    """)
    g.lab("L_B_nod3")
    vHA = 64
    vY = 96
    g(f"ds_read2_b64 {v(vHA,4)}, v{vHe} offset0:0 offset1:4")
    g(f"ds_read_b64 {v(vHA+4,2)}, v{vHke}")
    g(f"ds_read2_b64 {v(vHA+6,4)}, v{vHo} offset0:0 offset1:4")
    g(f"ds_read_b64 {v(vHA+10,2)}, v{vHko}")
    def w2reads(t):
        for x in range(2):
            b = aW + (t * 2 + x) * 6
            g(f"ds_read_b64_tr_b16 {A(b,2)}, v{vT21 if x else vT20} offset:{t*256}")
            g(f"ds_read_b64_tr_b16 {A(b+2,2)}, v{vT21 if x else vT20} offset:{16*1152+t*256}")
            g(f"ds_read_b64_tr_b16 {A(b+4,2)}, v{vK21 if x else vK20} offset:{t*256}")
    def w2mf(t):
        for x in range(2):
            b = aW + (t * 2 + x) * 6
            g(f"{MF} {v(vY+4*t,4)}, {v(vHA+6*x,4)}, {A(b,4)}, {'0' if x == 0 else v(vY+4*t,4)}")
    def w2mf16(t):
        for x in range(2):
            b = aW + (t * 2 + x) * 6
            g(f"{MF16} {v(vY+4*t,4)}, {v(vHA+6*x+4,2)}, {A(b+4,2)}, {v(vY+4*t,4)}")
    w2reads(0)
    for t in range(4):
        if t < 3:
            w2reads(t + 1)
            g("s_waitcnt lgkmcnt(6)")
        else:
            g("s_waitcnt lgkmcnt(0)")
        w2mf(t)
    for t in range(4):
        w2mf16(t)
    g(f"s_cmp_gt_u32 s{sW}, 1")
    g("s_cbranch_scc1 L_B_no5")
    w2reads(4)
    g("s_waitcnt lgkmcnt(0)")
    w2mf(4)
    w2mf16(4)
    g.lab("L_B_no5")
    for t in range(1, 4):
        g(f"v_mov_b32 v{vY+t}, v{vY+4*t}")
    g(f"buffer_store_dwordx4 {v(vY,4)}, v{vH3}, {WS}, s{sH3m} offen sc1")
    g(f"s_cmp_gt_u32 s{sW}, 1")
    g("s_cbranch_scc1 L_B_no5b")
    g(f"buffer_store_dword v{vY+16}, v{vH3x}, {WS}, s{sH3l} offen sc1")
    g.lab("L_B_no5b")
    g.stamp(12)
    dump_stamps(g, 16, 160)

if __name__ == "__main__":
    opt = eval("dict(%s)" % (sys.argv[2] if len(sys.argv) > 2 else ""))
    open(sys.argv[1], "w").write(gen(opt))
```

```python
import sys, os, math, struct
sys.path.insert(0, os.path.dirname(os.path.abspath(__file__)))
from hazard import pad

KNAME = "gated_mix__compressed_kv_cla__dense_activation_gelu__decode_kernel"

WS_BYTES = 256 << 20
EPOCH = 0x0
D1 = 0x4000
D3 = 0x8000
D2 = 0x10000
HB = 0x20000
H0 = 0x40000
QB = 0x80000
H3 = 0x100000
USTR = 32768 + 256
HH = 0x240000
OB = 0x400000
OSTR = 16384 + 256
STAMP = 0x800000
POISON = 0xFFA5FFA5
K0, K1 = 0x9E3779B9, 0x7F4A7C15
SPIN = 1 << 20

A_WUV = 0
A_QL = 32768
A_ZERO = 33280
A_CTXC = 33536
A_WT = 34048
A_RED = 34304
A_WO = 35840
B_QF = 0
B_PB = 16384
B_MX = 20480
B_HL = 21504
B_ZERO = 21760
B_CKV = 22528
B_W1 = B_CKV
B_W2 = B_CKV + 43008
LDS_BYTES = 153600

def f16sw(i):
    return (((i & 7) ^ ((i >> 3) << 2)) << 1) | (i >> 3)

def fbits(x):
    return struct.unpack("<I", struct.pack("<f", x))[0]

class G:
    def __init__(self, opt):
        self.l = []
        self.opt = opt
        self.nst = 0
    def __call__(self, s):
        for x in s.strip("\n").split("\n"):
            x = x.strip()
            if x: self.l.append("    " + x)
    def lab(self, n): self.l.append(n + ":")
    def c(self, s): self.l.append("    ; " + s)
    def stamp(self, i):
        if self.opt.get("stamps"):
            self(f"s_memrealtime s[{70+2*i}:{71+2*i}]")

def v(a, n=1): return f"v{a}" if n == 1 else f"v[{a}:{a+n-1}]"
def A(a, n=1): return f"a{a}" if n == 1 else f"a[{a}:{a+n-1}]"
def S(a, n=1): return f"s{a}" if n == 1 else f"s[{a}:{a+n-1}]"

sW = 3
WS, X = "s[4:7]", "s[8:11]"
sT = 40
sXCD, sI = 42, 43
sA, sH, sJ = 44, 45, 46
sHG, sB, sMSG, sU2 = 44, 45, 46, 47
sO, sO2, sO3, sCNT = 48, 49, 50, 51
sM1, sM2, sM3, sM4 = 52, 54, 56, 58
sPR = 60
sG0, sG1 = 61, 62
sTMP = 64
sPC = 66
sPOI = 68
sC = 69

def srd(g, base, slot, nbytes):
    g(f"s_load_dwordx2 s[{base}:{base+1}], s[0:1], {slot*8}")
    g(f"s_mov_b32 s{base+2}, {nbytes}")
    g(f"s_mov_b32 s{base+3}, 0x00020000")

def dump_stamps(g, n, tmpv):
    if not g.opt.get("stamps") or g.opt.get("probe") is not None: return
    g("s_waitcnt lgkmcnt(0)")
    g("s_mov_b64 exec, 1")
    g(f"s_lshl_b32 s{sO}, s2, 2")
    g(f"s_add_u32 s{sO}, s{sO}, s{sW}")
    g(f"s_lshl_b32 s{sO}, s{sO}, 6")
    g(f"s_add_u32 s{sO}, s{sO}, {STAMP}")
    g(f"v_mov_b32 v{tmpv+4}, 0")
    for q in range(0, 16, 4):
        for k in range(4):
            g(f"v_mov_b32 v{tmpv+k}, s{70+2*(q+k)}")
        g(f"buffer_store_dwordx4 {v(tmpv,4)}, v{tmpv+4}, {WS}, s{sO} offen offset:{q*4}")
        g("s_nop 1")
    g("s_waitcnt vmcnt(0)")

def spin_guard(g, out):
    g(f"s_add_u32 s{sCNT}, s{sCNT}, 1")
    g(f"s_cmp_gt_u32 s{sCNT}, {g.opt.get('spin', SPIN)}")
    g(f"s_cbranch_scc1 {out}")

def selectors(g, vSel, vL, t0, t1, t2):
    g(f"v_and_b32 v{t0}, 1, v{vL}")
    g(f"v_cmp_eq_u32 vcc, 1, v{t0}")
    g(f"v_mov_b32 v{t1}, 0x0c0c0100")
    g(f"v_mov_b32 v{t2}, 0x01000c0c")
    g(f"v_cndmask_b32 v{vSel+3}, v{t1}, v{t2}, vcc")
    g(f"v_mov_b32 v{t1}, 0x0c0c0302")
    g(f"v_mov_b32 v{t2}, 0x03020c0c")
    g(f"v_cndmask_b32 v{vSel+7}, v{t1}, v{t2}, vcc")
    g(f"v_bfe_u32 v{t0}, v{vL}, 1, 2")
    g(f"v_mov_b32 v{t1}, 0x0c0c0c0c")
    for d in range(4):
        g(f"v_cmp_eq_u32 vcc, {d}, v{t0}")
        g(f"v_cndmask_b32 v{vSel+d}, v{t1}, v{vSel+3}, vcc")
        g(f"v_cndmask_b32 v{vSel+4+d}, v{t1}, v{vSel+7}, vcc")

def unit_pattern(g, dst, vL, i_expr_sgpr, i_const, pitch, t0, t1):
    if i_expr_sgpr is not None:
        g(f"v_lshl_add_u32 v{t0}, s{i_expr_sgpr}, 6, v{vL}")
    else:
        g(f"v_add_u32 v{t0}, {64*i_const}, v{vL}")
    g(f"v_mul_u32_u24 v{t1}, 911, v{t0}")
    g(f"v_lshrrev_b32 v{t1}, 16, v{t1}")
    g(f"v_and_b32 v{dst}, 6, v{t1}")
    g(f"v_xor_b32 v{dst}, v{dst}, v{t0}")
    g(f"v_lshlrev_b32 v{dst}, 4, v{dst}")
    if pitch != 1152:
        g(f"v_mul_u32_u24 v{t1}, {pitch-1152}, v{t1}")
        g(f"v_add_u32 v{dst}, v{dst}, v{t1}")
assert all((911 * u) >> 16 == u // 72 for u in range(640))

def h3_addr(g, vH3, vH3x, vL, vN, vG, t0):
    g(f"v_lshrrev_b32 v{t0}, 3, v{vL}")
    g(f"v_mul_u32_u24 v{vH3}, {USTR}, v{t0}")
    g(f"v_and_b32 v{t0}, 7, v{vL}")
    g(f"v_lshl_add_u32 v{vH3}, v{t0}, 4, v{vH3}")
    g(f"v_lshrrev_b32 v{t0}, 5, v{vL}")
    g(f"v_mul_u32_u24 v{vH3x}, {USTR}, v{t0}")
    g(f"v_and_b32 v{t0}, 31, v{vL}")
    g(f"v_lshl_add_u32 v{vH3x}, v{t0}, 2, v{vH3x}")

def h3_soffs(g, s_main, s_left):
    g(f"s_lshl_b32 s{s_left}, s{sPR}, 7")
    g(f"s_add_u32 s{s_left}, s{s_left}, {H3}")
    g(f"s_mul_i32 s{s_main}, s{sW}, {8*USTR}")
    g(f"s_add_u32 s{s_main}, s{s_main}, s{s_left}")
    g(f"s_mul_i32 s{sTMP}, s{sW}, {2*USTR}")
    g(f"s_add_u32 s{s_left}, s{s_left}, s{sTMP}")
    g(f"s_add_u32 s{s_left}, s{s_left}, {32*USTR}")

def tr_pair_bases(g, vB0, vB1, vK0, vK1, vL, base, t0, t1, t2):
    g(f"v_lshrrev_b32 v{t0}, 2, v{vL}")
    g(f"v_bfe_u32 v{t1}, v{vL}, 1, 1")
    g(f"v_lshl_add_u32 v{t1}, s{sW}, 2, v{t1}")
    g(f"v_and_b32 v{t2}, 6, v{t0}")
    g(f"v_xor_b32 v{t2}, v{t2}, v{t1}")
    g(f"v_lshlrev_b32 v{t2}, 4, v{t2}")
    g(f"v_mul_u32_u24 v{vB0}, 1152, v{t0}")
    g(f"v_add_u32 v{vB0}, v{vB0}, v{t2}")
    g(f"v_and_b32 v{t2}, 1, v{vL}")
    g(f"v_lshlrev_b32 v{t2}, 3, v{t2}")
    g(f"v_add_u32 v{vB0}, v{vB0}, v{t2}")
    g(f"v_xor_b32 v{vB1}, 32, v{vB0}")
    if base:
        g(f"v_add_u32 v{vB0}, {base}, v{vB0}")
        g(f"v_add_u32 v{vB1}, {base}, v{vB1}")
    if vK0 is not None:
        g(f"v_and_b32 v{t0}, 3, v{t0}")
        g(f"v_and_b32 v{vK0}, 2, v{t0}")
        g(f"v_xor_b32 v{vK0}, v{vK0}, v{t1}")
        g(f"v_lshlrev_b32 v{vK0}, 4, v{vK0}")
        g(f"v_mul_u32_u24 v{t0}, 1152, v{t0}")
        g(f"v_add3_u32 v{vK0}, v{vK0}, v{t0}, v{t2}")
        g(f"v_xor_b32 v{vK1}, 32, v{vK0}")
        g(f"v_add_u32 v{vK0}, {base + 32*1152}, v{vK0}")
        g(f"v_add_u32 v{vK1}, {base + 32*1152}, v{vK1}")

MF = "v_mfma_f32_16x16x32_bf16"
MF16 = "v_mfma_f32_16x16x16_bf16"

def gen(opt):
    g = G(opt)
    NT = opt.get("nt", "nt")
    PFL = opt.get("pf_lines", 6)
    CODE_BYTES = 32 * 128 * PFL
    vL, vN, vG = 1, 2, 3
    g.stamp(0)
    g(f"s_getpc_b64 s[{sPC}:{sPC+1}]")
    g("s_cmp_ge_u32 s2, 256")
    g("s_cbranch_scc1 L_end")
    if opt.get("pre") is not None:
        for k, slot in enumerate((1, 2, 3, 4, 5, 7, 9)):
            srd(g, 12 + 4 * k, slot, 4 << 20 if slot != 1 else 8 << 20)
        g("v_lshlrev_b32 v4, 4, v0")
        g("s_waitcnt lgkmcnt(0)")
        r = 8
        for k in range(7):
            n = 8 if k == 0 else 4
            g(f"s_mul_i32 s{sO}, s2, {n*4096}")
            for i in range(n):
                g(f"buffer_load_dwordx4 v[{r}:{r+3}], v4, s[{12+4*k}:{15+4*k}], s{sO} offen {opt['pre']}")
                g(f"s_addk_i32 s{sO}, 0x1000")
                r += 4
        g("s_waitcnt vmcnt(0)")
        g.stamp(14)
    srd(g, 4, 14, WS_BYTES)
    srd(g, 8, 0, 2304)
    g(f"""
    v_lshrrev_b32 v4, 6, v0
    v_and_b32 v{vL}, 63, v0
    s_and_b32 s{sXCD}, s2, 7
    v_readfirstlane_b32 s{sW}, v4
    s_bfe_u32 s{sI}, s2, 0x40003
    v_and_b32 v{vN}, 15, v0
    v_bfe_u32 v{vG}, v0, 4, 2
    s_mov_b32 s{sPOI}, {POISON}
    s_cmp_ge_u32 s2, 128
    s_cbranch_scc1 L_B
    """)
    gen_A(g, NT, PFL, vL, vN, vG)
    g.lab("L_B")
    gen_B(g, NT, PFL, vL, vN, vG)
    g.lab("L_end")
    lines, added = pad(g.l)
    body = "\n".join(lines)
    hdr = open(os.path.join(os.path.dirname(os.path.abspath(__file__)), "header.txt")).read()
    return f"""{hdr}; @launch grid=(256,1,1) block=(256,1,1) lds={LDS_BYTES}
.amdgcn_target "amdgcn-amd-amdhsa--gfx950"
.text
.globl {KNAME}
.p2align 8
.type {KNAME},@function
{KNAME}:
{body}
    s_endpgm
L_code_end:
.fill ({CODE_BYTES} + 256 - (L_code_end - {KNAME})) / 4, 4, 0xbf800000
.section .rodata,"a"
.p2align 6
.amdhsa_kernel {KNAME}
  .amdhsa_next_free_vgpr 512
  .amdhsa_next_free_sgpr 102
  .amdhsa_accum_offset 256
  .amdhsa_group_segment_fixed_size 0
  .amdhsa_kernarg_size 120
  .amdhsa_user_sgpr_count 2
  .amdhsa_user_sgpr_kernarg_segment_ptr 1
  .amdhsa_system_sgpr_workgroup_id_x 1
.end_amdhsa_kernel
"""

def code_prefetch(g, PFL, vL, t0, t1):
    g(f"s_lshr_b32 s{sO}, s2, 3")
    g(f"s_mul_i32 s{sO}, s{sO}, {PFL*128}")
    g(f"v_lshl_add_u32 v{t0}, v{vL}, 7, s{sO}")
    g(f"s_mov_b64 exec, {(1 << PFL) - 1}")
    g(f"global_load_dword v255, v{t0}, s[{sPC}:{sPC+1}]")
    g("s_mov_b64 exec, -1")

def load_tag(g):
    g(f"s_load_dwordx2 s[{sT}:{sT+1}], s[4:5], {EPOCH}")

def finish_tag(g):
    g("s_waitcnt lgkmcnt(0)")
    g(f"s_add_u32 s{sT}, s{sT}, {K0}")
    g(f"s_add_u32 s{sT+1}, s{sT+1}, {K1}")

def gen_A(g, NT, PFL, vL, vN, vG):
    WQ, WUK, WUV, WO, B2, GATE, OUT = "s[12:15]", "s[16:19]", "s[20:23]", "s[24:27]", "s[28:31]", "s[32:35]", "s[36:39]"
    t0, t1, t2, t3 = 4, 5, 6, 7
    vPOI = 8
    vSel = 12
    vX = 20
    vF = 40
    vQ = 48
    vR = 56
    vQlo, vQhi = 80, 84
    vAcc = 88
    vGr = 104
    vA_wq, vA_uk, vA_h1, vA_l16 = 108, 109, 110, 111
    vA_qlo, vA_qhi = 112, 113
    vTag = 114
    aWQ, aUK = 0, 144
    srd(g, 12, 2, 576 * 8192)
    srd(g, 16, 3, 512 * 8192)
    g(f"""
    s_lshr_b32 s{sH}, s{sI}, 2
    s_lshl_b32 s{sH}, s{sH}, 3
    s_add_u32 s{sH}, s{sH}, s{sXCD}
    s_and_b32 s{sJ}, s{sI}, 3
    s_lshl_b32 s{sA}, s{sH}, 2
    s_add_u32 s{sA}, s{sA}, s{sJ}
    s_mov_b32 s{sPR}, s{sA}
    """)
    g(f"""
    v_bfe_u32 v{t0}, v{vL}, 2, 2
    v_lshlrev_b32 v{vA_uk}, 16, v{t0}
    v_lshl_add_u32 v{vA_uk}, v{vG}, 6, v{vA_uk}
    v_and_b32 v{t1}, 3, v{vL}
    v_lshl_add_u32 v{vA_uk}, v{t1}, 4, v{vA_uk}
    s_lshl_b32 s{sO2}, s{sJ}, 2
    s_add_u32 s{sO2}, s{sO2}, s{sW}
    s_lshl_b32 s{sO2}, s{sO2}, 18
    s_lshl_b32 s{sO3}, s{sH}, 8
    s_add_u32 s{sO2}, s{sO2}, s{sO3}
    s_cmp_lg_u32 s{sW}, 0
    s_cbranch_scc1 L_A_w123
    """)
    g(f"""
    v_bfe_u32 v{t0}, v{vL}, 3, 1
    v_mul_u32_u24 v{t0}, 1152, v{t0}
    v_mul_u32_u24 v{t1}, 72, v{vG}
    v_add_u32 v{t0}, v{t0}, v{t1}
    s_mul_i32 s{sO}, s{sJ}, 288
    v_mul_u32_u24 v{vA_wq}, {36*8192}, v{vG}
    v_lshl_add_u32 v{vA_wq}, v{vN}, 4, v{vA_wq}
    s_mul_i32 s{sTMP}, s{sJ}, {144*8192}
    s_add_u32 s{sO3}, s{sO3}, s{sTMP}
    s_waitcnt lgkmcnt(0)
    """)
    load_tag(g)
    for k in range(4):
        g(f"buffer_load_dwordx4 {v(vX+4*k,4)}, v{t0}, {X}, s{sO} offen offset:{16*k}")
    g(f"buffer_load_dwordx2 {v(vX+16,2)}, v{t0}, {X}, s{sO} offen offset:64")
    for i in range(36):
        g(f"buffer_load_dwordx4 {A(aWQ+4*i,4)}, v{vA_wq}, {WQ}, s{sO3} offen {NT}")
        if i != 35: g(f"s_addk_i32 s{sO3}, 0x2000")
    g("s_branch L_A_uk")
    g.lab("L_A_w123")
    g(f"s_cmp_lg_u32 s{sW}, 3")
    g("s_cbranch_scc1 L_A_nopf")
    code_prefetch(g, PFL, vL, t0, t1)
    g.lab("L_A_nopf")
    g("s_waitcnt lgkmcnt(0)")
    load_tag(g)
    g("s_barrier")
    g.lab("L_A_uk")
    for u in range(8):
        t, half = u >> 1, u & 1
        g(f"s_add_u32 s{sO}, s{sO2}, {(4*half+t)*8192}")
        g(f"buffer_load_dwordx4 {A(aUK+4*u,4)}, v{vA_uk}, {WUK}, s{sO} offen {NT}")
    g(f"s_cmp_lg_u32 s{sW}, 0")
    g("s_cbranch_scc1 L_A_nb0")
    g("s_barrier")
    g.lab("L_A_nb0")
    g.stamp(1)
    srd(g, 20, 4, 512 * 8192)
    srd(g, 24, 5, 4096 * 1152)
    srd(g, 28, 10, 1152)
    srd(g, 32, 11, 1152)
    srd(g, 36, 12, 2304)
    for k in range(4): g(f"v_mov_b32 v{vPOI+k}, s{sPOI}")
    g(f"""
    v_bfe_u32 v{t0}, v{vL}, 2, 2
    v_lshlrev_b32 v{vA_h1}, 15, v{vG}
    v_lshl_add_u32 v{vA_h1}, v{t0}, 4, v{vA_h1}
    s_lshl_b32 s{sO2}, s{sA}, 8
    s_lshl_b32 s{sO}, s{sW}, 6
    s_add_u32 s{sO2}, s{sO2}, s{sO}
    s_add_u32 s{sO2}, s{sO2}, {QB}
    s_mov_b64 exec, 0x11111111
    buffer_store_dwordx4 {v(vPOI,4)}, v{vA_h1}, {WS}, s{sO2} offen sc1
    s_mov_b64 exec, -1
    v_lshlrev_b32 v{vA_l16}, 4, v{vL}
    """)
    selectors(g, vSel, vL, t0, t1, t2)
    g(f"""
    v_bfe_u32 v{t0}, v{vL}, 2, 1
    v_lshlrev_b32 v{t0}, 8, v{t0}
    v_lshl_add_u32 v{t0}, v{vG}, 6, v{t0}
    v_and_b32 v{t1}, 3, v{vL}
    v_lshl_add_u32 v{t0}, v{t1}, 4, v{t0}
    v_add_u32 v{t0}, {A_QL}, v{t0}
    v_mov_b32 v{t1}, {A_ZERO}
    v_cmp_gt_u32 vcc, 8, v{vN}
    v_cndmask_b32 v{vA_qlo}, v{t1}, v{t0}, vcc
    v_cndmask_b32 v{vA_qhi}, v{t0}, v{t1}, vcc
    v_and_b32 v{t0}, 1, v{vL}
    v_cmp_eq_u32 s[{sM1}:{sM1+1}], 1, v{t0}
    v_and_b32 v{t0}, 2, v{vL}
    v_cmp_eq_u32 s[{sM2}:{sM2+1}], 2, v{t0}
    """)
    finish_tag(g)
    g(f"v_mov_b32 v{vTag}, s{sT}")
    g(f"v_mov_b32 v{vTag+1}, s{sT+1}")
    g(f"s_cmp_lg_u32 s{sW}, 0")
    g("s_cbranch_scc1 L_A_h0wait")
    g(f"""
    v_mov_b32 v{vQ}, s{sT}
    v_mov_b32 v{vQ+1}, s{sT+1}
    v_mov_b32 v{vQ+6}, s{sT}
    v_mov_b32 v{vQ+7}, s{sT+1}
    v_mov_b32 v{t0}, 0
    v_mov_b32 v{t1}, 0
    v_mov_b32 v{t2}, {A_ZERO}
    ds_write_b64 v{t2}, {v(t0,2)}
    ds_write_b64 v{t2}, {v(t0,2)} offset:8
    s_lshl_b32 s{sO}, s{sA}, 11
    s_add_u32 s{sO}, s{sO}, {H0}
    s_waitcnt vmcnt({36+8+1})
    """)
    def frag(i):
        for d in range(4):
            g(f"v_perm_b32 v{vF+4*(i&1)+d}, v{vX+(i>>1)}, v{vX+(i>>1)}, v{vSel+4*(i&1)+d}")
    frag(0)
    for i in range(36):
        if i + 1 < 36: frag(i + 1)
        g(f"s_waitcnt vmcnt({35-i+8+1})")
        g(f"{MF} {v(vQ+2,4)}, {v(vF+4*(i&1),4)}, {A(aWQ+4*i,4)}, {'0' if i == 0 else v(vQ+2,4)}")
    g.stamp(2)
    g(f"buffer_store_dwordx4 {v(vQ,4)}, v{vA_l16}, {WS}, s{sO} offen sc1")
    g(f"buffer_store_dwordx4 {v(vQ+4,4)}, v{vA_l16}, {WS}, s{sO} offen offset:1024 sc1")
    for k in range(1, 4):
        g(f"s_xor_b32 s{sTMP}, s{sA}, {k}")
        g(f"s_lshl_b32 s{sTMP}, s{sTMP}, 11")
        g(f"s_add_u32 s{[0,sO,sO3,sC][k]}, s{sTMP}, {H0}")
    sib = [0, sO, sO3, sC]
    g(f"s_mov_b32 s{sCNT}, 0")
    g.lab("L_A_h0poll")
    for k in range(1, 4):
        g(f"buffer_load_dwordx4 {v(vR+8*(k-1),4)}, v{vA_l16}, {WS}, s{sib[k]} offen sc1")
        g(f"buffer_load_dwordx4 {v(vR+8*(k-1)+4,4)}, v{vA_l16}, {WS}, s{sib[k]} offen offset:1024 sc1")
    spin_guard(g, "L_A_h0done")
    g("s_waitcnt vmcnt(0)")
    for k in range(3):
        g(f"v_cmp_ne_u64 vcc, s[{sT}:{sT+1}], {v(vR+8*k,2)}")
        g(f"v_cmp_ne_u64 s[{sM3}:{sM3+1}], s[{sT}:{sT+1}], {v(vR+8*k+6,2)}")
        if k == 0: g(f"s_or_b64 s[{sM4}:{sM4+1}], vcc, s[{sM3}:{sM3+1}]")
        else:
            g(f"s_or_b64 s[{sM4}:{sM4+1}], s[{sM4}:{sM4+1}], vcc")
            g(f"s_or_b64 s[{sM4}:{sM4+1}], s[{sM4}:{sM4+1}], s[{sM3}:{sM3+1}]")
    g("s_cbranch_scc1 L_A_h0poll")
    g.lab("L_A_h0done")
    g("s_waitcnt vmcnt(0)")
    g(f"v_pk_add_f32 {v(vQ+2,2)}, {v(vQ+2,2)}, {v(vR+2,2)}")
    g(f"v_pk_add_f32 {v(vQ+4,2)}, {v(vQ+4,2)}, {v(vR+4,2)}")
    g(f"v_pk_add_f32 {v(vR+10,2)}, {v(vR+10,2)}, {v(vR+18,2)}")
    g(f"v_pk_add_f32 {v(vR+12,2)}, {v(vR+12,2)}, {v(vR+20,2)}")
    g(f"v_pk_add_f32 {v(vQ+2,2)}, {v(vQ+2,2)}, {v(vR+10,2)}")
    g(f"v_pk_add_f32 {v(vQ+4,2)}, {v(vQ+4,2)}, {v(vR+12,2)}")
    g(f"""
    v_lshrrev_b32 v{t0}, 1, v{vG}
    v_lshlrev_b32 v{t0}, 8, v{t0}
    v_lshl_add_u32 v{t0}, v{vN}, 4, v{t0}
    v_and_b32 v{t1}, 1, v{vG}
    v_lshl_add_u32 v{t0}, v{t1}, 3, v{t0}
    v_cvt_pk_bf16_f32 v{vQ}, v{vQ+2}, v{vQ+3}
    v_cvt_pk_bf16_f32 v{vQ+1}, v{vQ+4}, v{vQ+5}
    ds_write_b64 v{t0}, {v(vQ,2)} offset:{A_QL}
    """)
    g.lab("L_A_h0wait")
    g("s_waitcnt vmcnt(0) lgkmcnt(0)")
    g("s_barrier")
    g.stamp(3)
    g(f"ds_read_b128 {v(vQlo,4)}, v{vA_qlo}")
    g(f"ds_read_b128 {v(vQhi,4)}, v{vA_qhi}")
    g(f"s_cmp_lg_u32 s{sW}, 1")
    g("s_cbranch_scc1 L_A_nod1")
    g(f"""
    s_lshl_b32 s{sO}, s{sA}, 7
    s_add_u32 s{sO}, s{sO}, {D1}
    s_mov_b64 exec, 1
    buffer_store_dwordx2 {v(vTag,2)}, v{vA_l16}, {WS}, s{sO} offen sc1
    s_mov_b64 exec, -1
    """)
    g.lab("L_A_nod1")
    g("s_waitcnt lgkmcnt(0)")
    for t in range(4):
        g(f"{MF} {v(vAcc+4*t,4)}, {v(vQlo,4)}, {A(aUK+8*t,4)}, 0")
    for t in range(4):
        g(f"{MF} {v(vAcc+4*t,4)}, {v(vQhi,4)}, {A(aUK+8*t+4,4)}, {v(vAcc+4*t,4)}")
    for t in range(4):
        a0 = vAcc + 4 * t
        g(f"v_cndmask_b32 v{a0}, v{a0}, v{a0+1}, s[{sM1}:{sM1+1}]")
        g(f"v_cndmask_b32 v{a0+2}, v{a0+2}, v{a0+3}, s[{sM1}:{sM1+1}]")
        g(f"v_cndmask_b32 v{a0}, v{a0}, v{a0+2}, s[{sM2}:{sM2+1}]")
    for t in range(4):
        a0 = vAcc + 4 * t
        g(f"v_add_f32_dpp v{a0+1}, v{a0}, v{a0} quad_perm:[1,0,3,2] row_mask:0xf bank_mask:0xf")
    for t in range(4):
        a0 = vAcc + 4 * t
        g(f"v_add_f32_dpp v{a0}, v{a0+1}, v{a0+1} quad_perm:[2,3,0,1] row_mask:0xf bank_mask:0xf")
    g(f"v_cvt_pk_bf16_f32 v{vGr}, v{vAcc}, v{vAcc+4}")
    g(f"v_cvt_pk_bf16_f32 v{vGr+1}, v{vAcc+8}, v{vAcc+12}")
    g(f"v_permlane32_swap_b32 v{vGr}, v{vGr+2}")
    g(f"v_permlane32_swap_b32 v{vGr+1}, v{vGr+3}")
    g(f"""
    s_mov_b64 exec, 0x11111111
    buffer_store_dwordx4 {v(vGr,4)}, v{vA_h1}, {WS}, s{sO2} offen sc1
    s_mov_b64 exec, -1
    """)
    g.stamp(4)
    vUV0, vUV1 = 20, 21
    vP = 22
    vH3, vH3x = 31, 32
    sH3m, sH3l = 63, 47
    g(f"""
    v_lshlrev_b32 v{t0}, 1, v{vG}
    v_xor_b32 v{t0}, v{t0}, v{vN}
    v_lshlrev_b32 v{vUV0}, 17, v{vG}
    v_lshl_add_u32 v{vUV0}, v{t0}, 4, v{vUV0}
    v_xor_b32 v{vUV1}, 128, v{vUV0}
    s_lshl_b32 s{sO}, s{sJ}, 5
    s_add_u32 s{sO}, s{sO}, s{sW}
    s_lshl_b32 s{sO}, s{sO}, 15
    s_lshl_b32 s{sO3}, s{sH}, 8
    s_add_u32 s{sO}, s{sO}, s{sO3}
    s_lshl_b32 s{sO3}, s{sW}, 13
    """)
    for z in range(8):
        hi, gg = z >> 2, z & 3
        g(f"s_add_u32 m0, s{sO3}, {A_WUV + z*1024}")
        g(f"s_add_u32 s{sTMP}, s{sO}, {(64*hi+gg)*8192}")
        g(f"buffer_load_dwordx4 v{vUV1 if z & 1 else vUV0}, {WUV}, s{sTMP} offen {NT} lds")
    h3_addr(g, vH3, vH3x, vL, vN, vG, t0)
    h3_soffs(g, sH3m, sH3l)
    g(f"buffer_store_dwordx4 {v(vPOI,4)}, v{vH3}, {WS}, s{sH3m} offen sc1")
    g(f"s_cmp_gt_u32 s{sW}, 1")
    g("s_cbranch_scc1 L_A_nor3")
    g(f"buffer_store_dword v{vPOI}, v{vH3x}, {WS}, s{sH3l} offen sc1")
    g.lab("L_A_nor3")
    g(f"""
    s_lshl_b32 s{sO}, s{sA}, 2
    s_add_u32 s{sO}, s{sO}, s{sW}
    s_mul_i32 s{sO}, s{sO}, 9216
    s_mul_i32 s{sO3}, s{sW}, 9216
    """)
    for i in range(9):
        unit_pattern(g, vP + i, vL, None, i, 1152, t0, t1)
        g(f"s_add_u32 m0, s{sO3}, {A_WO + i*1024}")
        g(f"buffer_load_dwordx4 v{vP+i}, {WO}, s{sO} offen {NT} lds")
    vTU0, vTU1, vTO0, vTO1 = 33, 34, 35, 36
    vCX, vCW, vHBs, vHBl, vD2, vOg, vWTw, vWTr = 37, 38, 39, 40, 41, 42, 43, 44
    g(f"""
    v_lshrrev_b32 v{t0}, 2, v{vL}
    v_bfe_u32 v{t1}, v{vL}, 1, 1
    v_lshl_add_u32 v{t1}, s{sW}, 2, v{t1}
    v_and_b32 v{t2}, 7, v{t0}
    v_lshlrev_b32 v{t2}, 1, v{t2}
    v_xor_b32 v{t1}, v{t1}, v{t2}
    v_lshlrev_b32 v{vTU0}, 8, v{t0}
    v_lshl_add_u32 v{vTU0}, v{t1}, 4, v{vTU0}
    v_and_b32 v{t1}, 1, v{vL}
    v_lshl_add_u32 v{vTU0}, v{t1}, 3, v{vTU0}
    v_xor_b32 v{vTU1}, 32, v{vTU0}
    """)
    assert A_WUV == 0
    tr_pair_bases(g, vTO0, vTO1, None, None, vL, A_WO, t0, t1, t2)
    g(f"""
    v_and_b32 v{t0}, 1, v{vL}
    v_lshlrev_b32 v{vCX}, 8, v{t0}
    v_lshl_add_u32 v{vCX}, v{vG}, 4, v{vCX}
    v_add_u32 v{vCX}, {A_CTXC}, v{vCX}
    v_and_b32 v{t0}, 1, v{vG}
    v_lshlrev_b32 v{vCW}, 3, v{t0}
    v_lshl_add_u32 v{vCW}, v{vN}, 4, v{vCW}
    v_lshl_add_u32 v{vCW}, s{sW}, 8, v{vCW}
    v_lshlrev_b32 v{vHBs}, 6, v{vG}
    v_lshl_add_u32 v{vHBs}, v{vN}, 4, v{vHBs}
    v_and_b32 v{t0}, 3, v{vL}
    v_lshlrev_b32 v{vHBl}, 8, v{t0}
    v_lshl_add_u32 v{vHBl}, v{vG}, 6, v{vHBl}
    v_bfe_u32 v{t0}, v{vL}, 2, 1
    v_lshl_add_u32 v{vHBl}, v{t0}, 4, v{vHBl}
    v_and_b32 v{t0}, 31, v{vL}
    v_lshlrev_b32 v{vD2}, 8, v{t0}
    v_lshlrev_b32 v{vOg}, 11, v{vG}
    v_lshl_add_u32 v{vOg}, v{vN}, 4, v{vOg}
    v_lshlrev_b32 v{vWTw}, 1, v{t0}
    v_lshl_add_u32 v{vWTw}, s{sW}, 6, v{vWTw}
    v_lshlrev_b32 v{vWTr}, 4, v{vG}
    v_lshl_add_u32 v{vWTr}, s{sW}, 6, v{vWTr}
    v_cmp_gt_u32 s[{sM1}:{sM1+1}], 8, v{vN}
    """)
    vGx, vGw, vB2 = 48, 60, 72
    vOA, vFB = 73, 74
    g(f"v_mov_b32 v{vOA}, 0")
    g(f"s_cmp_lg_u32 s{sW}, 0")
    g("s_cbranch_scc1 L_A_nogate")
    g(f"s_cmp_ge_u32 s{sA}, 36")
    g("s_cbranch_scc1 L_A_nogate")
    g(f"""
    v_and_b32 v{t0}, 31, v{vL}
    v_mul_u32_u24 v{t1}, 36, v{t0}
    v_lshrrev_b32 v{t2}, 5, v{vL}
    v_mul_u32_u24 v{t2}, 1152, v{t2}
    v_add_u32 v{t2}, v{t2}, v{t1}
    buffer_load_dwordx4 {v(vGx,4)}, v{t2}, {X}, 0 offen
    buffer_load_dwordx4 {v(vGx+4,4)}, v{t2}, {X}, 0 offen offset:16
    buffer_load_dword v{vGx+8}, v{t2}, {X}, 0 offen offset:32
    buffer_load_dwordx4 {v(vGw,4)}, v{t1}, {GATE}, 0 offen
    buffer_load_dwordx4 {v(vGw+4,4)}, v{t1}, {GATE}, 0 offen offset:16
    buffer_load_dword v{vGw+8}, v{t1}, {GATE}, 0 offen offset:32
    """)
    g(f"""
    s_cmp_ge_u32 s{sA}, 32
    s_cbranch_scc1 L_A_uleft
    s_lshr_b32 s{sO}, s{sA}, 2
    s_lshl_b32 s{sO}, s{sO}, 4
    s_and_b32 s{sO3}, s{sA}, 1
    s_lshl_b32 s{sO3}, s{sO3}, 3
    s_add_u32 s{sO}, s{sO}, s{sO3}
    v_and_b32 v{t1}, 3, v{t0}
    v_lshlrev_b32 v{t1}, 7, v{t1}
    v_lshrrev_b32 v{t2}, 2, v{t0}
    v_add3_u32 v{t1}, v{t1}, v{t2}, s{sO}
    s_bfe_u32 s{sO3}, s{sA}, 0x10001
    v_mov_b32 v{vFB}, s{sO3}
    s_branch L_A_ujoin
    """)
    g.lab("L_A_uleft")
    g(f"""
    s_lshl_b32 s{sO}, s{sA}, 4
    v_and_b32 v{t1}, 15, v{t0}
    v_add_u32 v{t1}, s{sO}, v{t1}
    v_lshrrev_b32 v{vFB}, 4, v{t0}
    """)
    g.lab("L_A_ujoin")
    g(f"""
    v_lshlrev_b32 v{t1}, 1, v{t1}
    buffer_load_ushort v{vB2}, v{t1}, {B2}, 0 offen
    v_mul_u32_u24 v{vOA}, 1152, v{vFB}
    v_add_u32 v{vOA}, v{vOA}, v{t1}
    s_waitcnt vmcnt(0)
    v_mov_b32 v{t0}, 0
    """)
    for k in range(9):
        g(f"v_dot2_f32_bf16 v{t0}, v{vGx+k}, v{vGw+k}, v{t0}")
    g("s_nop 2")
    for r in (8, 4, 2, 1):
        g(f"v_add_f32_dpp v{t0}, v{t0}, v{t0} row_ror:{r} row_mask:0xf bank_mask:0xf")
    g(f"""
    v_mov_b32 v{t1}, v{t0}
    v_permlane16_swap_b32 v{t0}, v{t1}
    v_add_f32 v{t0}, v{t0}, v{t1}
    v_mul_f32 v{t0}, {hex(fbits(-math.log2(math.e)))}, v{t0}
    v_exp_f32 v{t0}, v{t0}
    v_add_f32 v{t0}, 1.0, v{t0}
    v_rcp_f32 v{t0}, v{t0}
    v_readlane_b32 s{sG0}, v{t0}, 0
    v_readlane_b32 s{sG1}, v{t0}, 32
    v_cmp_eq_u32 vcc, 1, v{vFB}
    v_mov_b32 v{t0}, s{sG0}
    v_mov_b32 v{t1}, s{sG1}
    v_cndmask_b32 v{vFB}, v{t0}, v{t1}, vcc
    v_lshlrev_b32 v{vB2}, 16, v{vB2}
    """)
    g.lab("L_A_nogate")
    g("s_waitcnt vmcnt(0)")
    g("s_barrier")
    g.stamp(5)
    aUV, aWO = 0, 32
    for tau in range(2):
        for ks in range(4):
            for hi in range(2):
                g(f"ds_read_b64_tr_b16 {A(aUV+(tau*4+ks)*4+2*hi,2)}, v{vTU1 if tau else vTU0} offset:{ks*8192+hi*4096}")
    for t in range(5):
        if t == 4:
            g(f"s_cmp_gt_u32 s{sW}, 1")
            g("s_cbranch_scc1 L_A_ctxwait")
        for x in range(2):
            for hi in range(2):
                g(f"ds_read_b64_tr_b16 {A(aWO+(t*2+x)*4+2*hi,2)}, v{vTO1 if x else vTO0} offset:{hi*16*1152+t*256}")
    vDB = 76
    vO = 80
    vFr = 116
    vWt = 148
    vD = 152
    vLs = 156
    g(f"""
    s_lshr_b32 s{sO}, s{sH}, 4
    s_lshl_b32 s{sO}, s{sO}, 1
    s_add_u32 s{sO}, s{sO}, s{sW}
    s_lshl_b32 s{sO}, s{sO}, 13
    s_and_b32 s{sO3}, s{sH}, 15
    s_lshl_b32 s{sO3}, s{sO3}, 4
    s_add_u32 s{sO}, s{sO}, s{sO3}
    s_add_u32 s{sO}, s{sO}, {D2}
    s_mul_i32 s{sO3}, s{sA}, {OSTR}
    s_lshl_b32 s{sTMP}, s{sW}, 13
    s_add_u32 s{sO3}, s{sO3}, s{sTMP}
    s_add_u32 s{sO3}, s{sO3}, {OB}
    s_mov_b32 s{sCNT}, 0
    """)
    g.lab("L_A_d2poll")
    g(f"buffer_load_dwordx4 {v(vDB,4)}, v{vD2}, {WS}, s{sO} offen sc1")
    spin_guard(g, "L_A_d2done")
    g("s_waitcnt vmcnt(0)")
    g(f"v_cmp_ne_u64 vcc, s[{sT}:{sT+1}], {v(vDB+2,2)}")
    g("s_cbranch_vccnz L_A_d2poll")
    g.lab("L_A_d2done")
    g("s_waitcnt vmcnt(0)")
    g.stamp(6)
    def ogather():
        for u in range(8):
            g(f"buffer_load_dwordx4 {v(vO+4*u,4)}, v{vOg}, {WS}, s{sO3} offen offset:{u*256} sc1")
    early = g.opt.get("o_early", 1)
    if early: ogather()
    g(f"v_max_f32_dpp v{t0}, v{vDB}, v{vDB} row_ror:8 row_mask:0xf bank_mask:0xf")
    for r in (4, 2, 1):
        g(f"v_max_f32_dpp v{t0}, v{t0}, v{t0} row_ror:{r} row_mask:0xf bank_mask:0xf")
    g(f"""
    v_mov_b32 v{t1}, v{t0}
    v_permlane16_swap_b32 v{t0}, v{t1}
    v_max_f32 v{t0}, v{t0}, v{t1}
    v_sub_f32 v{t0}, v{vDB}, v{t0}
    v_exp_f32 v{t0}, v{t0}
    v_cvt_pk_bf16_f32 v{t0}, v{t0}, v{t0}
    ds_write_b16 v{vWTw}, v{t0} offset:{A_WT}
    v_and_b32 v{t0}, 0xffff0000, v{t0}
    v_mul_f32 v{vLs}, v{t0}, v{vDB+1}
    s_waitcnt lgkmcnt(0)
    ds_read_b128 {v(vWt,4)}, v{vWTr} offset:{A_WT}
    """)
    for r in (8, 4, 2, 1):
        g(f"v_add_f32_dpp v{vLs}, v{vLs}, v{vLs} row_ror:{r} row_mask:0xf bank_mask:0xf")
    g(f"""
    v_mov_b32 v{t1}, v{vLs}
    v_permlane16_swap_b32 v{vLs}, v{t1}
    v_add_f32 v{vLs}, v{vLs}, v{t1}
    v_rcp_f32 v{vLs}, v{vLs}
    s_waitcnt lgkmcnt(0)
    """)
    for u in range(8):
        for d in range(4):
            g(f"v_perm_b32 v{vFr+4*u+d}, v{vWt+(u>>1)}, v{vWt+(u>>1)}, v{vSel+4*(u&1)+d}")
    g(f"s_mov_b32 s{sCNT}, 0")
    if early: g("s_branch L_A_ocomb")
    g.lab("L_A_oretry")
    ogather()
    g.lab("L_A_ocomb")
    for u in range(8):
        g(f"s_waitcnt vmcnt({7-u})")
        g(f"{MF} {v(vD,4)}, {v(vFr+4*u,4)}, {v(vO+4*u,4)}, {'0' if u == 0 else v(vD,4)}")
    g(f"v_cmp_u_f32 vcc, v{vD}, v{vD}")
    g("s_cbranch_vccz L_A_ook")
    spin_guard(g, "L_A_ook")
    g(f"s_mov_b64 s[{sM4}:{sM4+1}], 0")
    for u in range(8):
        g(f"v_cmp_eq_u32 vcc, s{sPOI}, v{vO+4*u}")
        g(f"s_or_b64 s[{sM4}:{sM4+1}], s[{sM4}:{sM4+1}], vcc")
    g("s_cbranch_scc1 L_A_oretry")
    g.lab("L_A_ook")
    for r in range(4):
        g(f"v_mul_f32 v{vD+r}, v{vLs}, v{vD+r}")
    g(f"v_cvt_pk_bf16_f32 v{vD}, v{vD}, v{vD+1}")
    g(f"v_cvt_pk_bf16_f32 v{vD+1}, v{vD+2}, v{vD+3}")
    g(f"ds_write_b64 v{vCW}, {v(vD,2)} offset:{A_CTXC}")
    g.lab("L_A_ctxwait")
    g("s_waitcnt lgkmcnt(0)")
    g("s_barrier")
    g.stamp(7)
    vC = 80
    vU = 96
    vG1, vG2 = 104, 108
    vAe, vAo = 116, 120
    vY = 124
    for ks in range(4):
        g(f"ds_read_b128 {v(vC+4*ks,4)}, v{vCX} offset:{ks*64}")
    g(f"""
    s_lshl_b32 s{sO}, s{sH}, 2
    s_add_u32 s{sO}, s{sO}, s{sW}
    s_lshl_b32 s{sO}, s{sO}, 2
    s_add_u32 s{sO}, s{sO}, s{sJ}
    s_lshl_b32 s{sO}, s{sO}, 8
    s_add_u32 s{sO}, s{sO}, {HB}
    s_lshl_b32 s{sO3}, s{sA}, 10
    s_add_u32 s{sO3}, s{sO3}, {HB}
    """)
    for ks in range(4):
        g(f"s_waitcnt lgkmcnt({3-ks})")
        for tau in range(2):
            g(f"{MF} {v(vU+4*tau,4)}, {A(aUV+(tau*4+ks)*4,4)}, {v(vC+4*ks,4)}, {'0' if ks == 0 else v(vU+4*tau,4)}")
    g(f"""
    v_cvt_pk_bf16_f32 v{vU}, v{vU}, v{vU+1}
    v_cvt_pk_bf16_f32 v{vU+1}, v{vU+2}, v{vU+3}
    v_cvt_pk_bf16_f32 v{vU+4}, v{vU+4}, v{vU+5}
    v_cvt_pk_bf16_f32 v{vU+5}, v{vU+6}, v{vU+7}
    v_cndmask_b32 v{vTag-2}, v{vU}, v{vU+4}, s[{sM2}:{sM2+1}]
    v_cndmask_b32 v{vTag-1}, v{vU+1}, v{vU+5}, s[{sM2}:{sM2+1}]
    s_mov_b32 exec_lo, 0x000f000f
    s_mov_b32 exec_hi, 0x000f000f
    buffer_store_dwordx4 {v(vTag-2,4)}, v{vHBs}, {WS}, s{sO} offen sc1
    s_mov_b64 exec, -1
    s_mov_b32 s{sCNT}, 0
    """)
    g.stamp(8)
    g.lab("L_A_hbpoll")
    g(f"buffer_load_dwordx4 {v(vG1,4)}, v{vHBl}, {WS}, s{sO3} offen sc1")
    g(f"buffer_load_dwordx4 {v(vG2,4)}, v{vHBl}, {WS}, s{sO3} offen offset:32 sc1")
    spin_guard(g, "L_A_hbdone")
    g("s_waitcnt vmcnt(0)")
    g(f"v_cmp_ne_u64 vcc, s[{sT}:{sT+1}], {v(vG1+2,2)}")
    g(f"v_cmp_ne_u64 s[{sM3}:{sM3+1}], s[{sT}:{sT+1}], {v(vG2+2,2)}")
    g(f"s_or_b64 vcc, vcc, s[{sM3}:{sM3+1}]")
    g("s_cbranch_scc1 L_A_hbpoll")
    g.lab("L_A_hbdone")
    g("s_waitcnt vmcnt(0)")
    g.stamp(9)
    g(f"s_cmp_lg_u32 s{sW}, 3")
    g("s_cbranch_scc1 L_A_nod3")
    g(f"""
    s_lshl_b32 s{sO}, s{sPR}, 7
    s_add_u32 s{sO}, s{sO}, {D3}
    s_mov_b64 exec, 1
    buffer_store_dwordx2 {v(vTag,2)}, v{vD2}, {WS}, s{sO} offen sc1
    s_mov_b64 exec, -1
    """)
    g.lab("L_A_nod3")
    src = [vG1, vG1 + 1, vG2, vG2 + 1]
    for d in range(4):
        g(f"v_cndmask_b32 v{vAe+d}, 0, v{src[d]}, s[{sM1}:{sM1+1}]")
    for d in range(4):
        g(f"v_cndmask_b32 v{vAo+d}, v{src[d]}, 0, s[{sM1}:{sM1+1}]")
    for t in range(4):
        g(f"{MF} {v(vY+4*t,4)}, {v(vAe,4)}, {A(aWO+(t*2)*4,4)}, 0")
    for t in range(4):
        g(f"{MF} {v(vY+4*t,4)}, {v(vAo,4)}, {A(aWO+(t*2+1)*4,4)}, {v(vY+4*t,4)}")
    g(f"s_cmp_gt_u32 s{sW}, 1")
    g("s_cbranch_scc1 L_A_no5")
    g(f"{MF} {v(vY+16,4)}, {v(vAe,4)}, {A(aWO+32,4)}, 0")
    g(f"{MF} {v(vY+16,4)}, {v(vAo,4)}, {A(aWO+36,4)}, {v(vY+16,4)}")
    g.lab("L_A_no5")
    for t in range(4):
        g(f"v_pk_add_f32 {v(vY+4*t,2)}, {v(vY+4*t,2)}, {v(vY+4*t+2,2)}")
    for t in range(4):
        g(f"v_add_f32 v{vAe+t}, v{vY+4*t}, v{vY+4*t+1}")
    g(f"buffer_store_dwordx4 {v(vAe,4)}, v{vH3}, {WS}, s{sH3m} offen sc1")
    g(f"s_cmp_gt_u32 s{sW}, 1")
    g("s_cbranch_scc1 L_A_no5b")
    g(f"v_pk_add_f32 {v(vY+16,2)}, {v(vY+16,2)}, {v(vY+18,2)}")
    g(f"v_add_f32 v{vY+16}, v{vY+16}, v{vY+17}")
    g(f"buffer_store_dword v{vY+16}, v{vH3x}, {WS}, s{sH3l} offen sc1")
    g.lab("L_A_no5b")
    g.stamp(10)
    g(f"s_cmp_ge_u32 s{sA}, 36")
    g("s_cbranch_scc1 L_A_exit")
    vRd = 80
    vDa, vRw = 96, 97
    order = g.opt.get("red_order", (1, 0))
    g(f"""
    v_and_b32 v{t0}, 31, v{vL}
    v_lshlrev_b32 v{vDa}, 7, v{t0}
    v_lshlrev_b32 v{vA_l16}, 4, v{vL}
    v_and_b32 v{t0}, 7, v{vL}
    v_lshlrev_b32 v{vRw}, 6, v{t0}
    v_lshrrev_b32 v{t0}, 5, v{vL}
    v_lshl_add_u32 v{vRw}, v{t0}, 4, v{vRw}
    v_bfe_u32 v{t0}, v{vL}, 4, 1
    v_lshl_add_u32 v{vRw}, v{t0}, 5, v{vRw}
    v_lshl_add_u32 v{vRw}, s{sW}, 2, v{vRw}
    s_lshl_b32 s{sO2}, s{sW}, 12
    s_mul_i32 s{sO3}, s{sA}, {USTR}
    s_add_u32 s{sO3}, s{sO3}, s{sO2}
    """)
    for part in order:
        P = f"L_A_r{part}"
        g(f"s_add_u32 s{sO}, s{sO2}, {D3 + part*16384}")
        g(f"s_mov_b32 s{sCNT}, 0")
        g.lab(P + "poll")
        g(f"buffer_load_dwordx2 {v(t0,2)}, v{vDa}, {WS}, s{sO} offen sc1")
        spin_guard(g, P + "go")
        g("s_waitcnt vmcnt(0)")
        g(f"v_cmp_ne_u64 vcc, s[{sT}:{sT+1}], {v(t0,2)}")
        g(f"s_cbranch_vccnz {P}poll")
        g.lab(P + "go")
        g(f"s_add_u32 s{sO}, s{sO3}, {H3 + part*16384}")
        g(f"s_mov_b32 s{sCNT}, 0")
        g.lab(P + "get")
        for u in range(4):
            g(f"buffer_load_dwordx4 {v(vRd+4*u,4)}, v{vA_l16}, {WS}, s{sO} offen offset:{u*1024} sc1")
        g("s_waitcnt vmcnt(2)")
        g(f"v_pk_add_f32 {v(vY,2)}, {v(vRd,2)}, {v(vRd+4,2)}")
        g(f"v_pk_add_f32 {v(vY+2,2)}, {v(vRd+2,2)}, {v(vRd+6,2)}")
        g("s_waitcnt vmcnt(0)")
        g(f"v_pk_add_f32 {v(vY+4,2)}, {v(vRd+8,2)}, {v(vRd+12,2)}")
        g(f"v_pk_add_f32 {v(vY+6,2)}, {v(vRd+10,2)}, {v(vRd+14,2)}")
        g(f"v_pk_add_f32 {v(vY,2)}, {v(vY,2)}, {v(vY+4,2)}")
        g(f"v_pk_add_f32 {v(vY+2,2)}, {v(vY+2,2)}, {v(vY+6,2)}")
        g(f"v_permlane32_swap_b32 v{vY}, v{vY+1}")
        g(f"v_permlane32_swap_b32 v{vY+2}, v{vY+3}")
        g(f"v_add_f32 v{vY}, v{vY}, v{vY+1}")
        g(f"v_add_f32 v{vY+2}, v{vY+2}, v{vY+3}")
        g(f"v_permlane16_swap_b32 v{vY}, v{vY+2}")
        g(f"v_add_f32 v{vY}, v{vY}, v{vY+2}")
        g(f"v_cmp_u_f32 vcc, v{vY}, v{vY}")
        g(f"s_cbranch_vccz {P}ok")
        spin_guard(g, P + "ok")
        g(f"s_mov_b64 s[{sM4}:{sM4+1}], 0")
        for k in range(16):
            g(f"v_cmp_eq_u32 vcc, s{sPOI}, v{vRd+k}")
            g(f"s_or_b64 s[{sM4}:{sM4+1}], s[{sM4}:{sM4+1}], vcc")
        g(f"s_cbranch_scc1 {P}get")
        g.lab(P + "ok")
        g(f"v_add_f32_dpp v{vY}, v{vY}, v{vY} row_ror:8 row_mask:0xf bank_mask:0xf")
        g(f"ds_write_b32 v{vRw}, v{vY} offset:{A_RED + part*512}")
        g.stamp(11 + order.index(part))
    g("s_waitcnt lgkmcnt(0)")
    g("s_barrier")
    g(f"s_cmp_lg_u32 s{sW}, 0")
    g("s_cbranch_scc1 L_A_exit")
    g(f"""
    s_mov_b32 exec_hi, 0
    ds_read_b128 {v(vRd,4)}, v{vA_l16} offset:{A_RED}
    ds_read_b128 {v(vRd+4,4)}, v{vA_l16} offset:{A_RED+512}
    s_waitcnt lgkmcnt(0)
    v_pk_add_f32 {v(vRd,2)}, {v(vRd,2)}, {v(vRd+2,2)}
    v_pk_add_f32 {v(vRd+4,2)}, {v(vRd+4,2)}, {v(vRd+6,2)}
    v_add_f32 v{vRd}, v{vRd}, v{vRd+1}
    v_add_f32 v{vRd+4}, v{vRd+4}, v{vRd+5}
    v_add_f32 v{vRd+4}, v{vRd+4}, v{vB2}
    v_sub_f32 v{t0}, 1.0, v{vFB}
    v_mul_f32 v{vRd+4}, v{t0}, v{vRd+4}
    v_fma_f32 v{vRd}, v{vFB}, v{vRd}, v{vRd+4}
    v_cvt_pk_bf16_f32 v{vRd}, v{vRd}, v{vRd}
    buffer_store_short v{vRd}, v{vOA}, {OUT}, 0 offen
    s_cmp_lg_u32 s{sA}, 0
    s_cbranch_scc1 L_A_exit
    s_mov_b64 exec, 1
    buffer_store_dwordx2 {v(vTag,2)}, v{vA_l16}, {WS}, 0 offen offset:{EPOCH} sc1
    """)
    if g.opt.get("probe") is not None:
        i = g.opt["probe"]
        g.stamp(13)
        g("s_waitcnt lgkmcnt(0)")
        g(f"s_sub_u32 s{sO}, s{70+2*i}, s70")
        g(f"s_lshl_b32 s{sO}, s{sO}, 2")
        g(f"s_add_u32 s{sO}, s{sO}, 4000")
        g.lab("L_probe")
        g(f"s_memrealtime s[{sTMP}:{sTMP+1}]")
        g("s_waitcnt lgkmcnt(0)")
        g(f"s_sub_u32 s{sTMP}, s{sTMP}, s70")
        g(f"s_cmp_lt_u32 s{sTMP}, s{sO}")
        g("s_cbranch_scc1 L_probe")
        g("s_endpgm")
    g.lab("L_A_exit")
    g.stamp(13)
    dump_stamps(g, 16, 160)
    g("s_endpgm")

def gen_B(g, NT, PFL, vL, vN, vG):
    CKV, W1, W2, B1 = "s[12:15]", "s[16:19]", "s[20:23]", "s[24:27]"
    t0, t1, t2, t3 = 4, 5, 6, 7
    vPOI = 8
    vL16 = 12
    vOa = 13
    vH3, vH3x = 14, 15
    vXr = 16
    vB1 = 22
    vSB = 24
    vQBs = 28
    vPVb = 32
    vTag = 36
    vML = 34
    vMXw, vMXr = 38, 39
    vD1 = 40
    aS, aP = 0, 128
    sOo = 61
    sH3m, sH3l = 62, 63
    srd(g, 12, 1, 2 * 4096 * 1024)
    srd(g, 24, 8, 9216)
    g(f"""
    s_and_b32 s{sHG}, s{sI}, 1
    s_and_b32 s{sB}, s{sXCD}, 1
    s_lshr_b32 s{sMSG}, s{sI}, 1
    s_lshl_b32 s{sMSG}, s{sMSG}, 2
    s_lshr_b32 s{sO}, s{sXCD}, 1
    s_add_u32 s{sMSG}, s{sMSG}, s{sO}
    s_lshl_b32 s{sO}, s{sB}, 5
    s_add_u32 s{sMSG}, s{sMSG}, s{sO}
    s_lshl_b32 s{sU2}, s{sXCD}, 4
    s_add_u32 s{sU2}, s{sU2}, s{sI}
    s_add_u32 s{sPR}, s{sU2}, 128
    v_lshlrev_b32 v{vL16}, 4, v{vL}
    """)
    for k in range(4): g(f"v_mov_b32 v{vPOI+k}, s{sPOI}")
    g(f"""
    v_mul_u32_u24 v{vOa}, {16*OSTR}, v{vG}
    v_lshl_add_u32 v{vOa}, v{vN}, 4, v{vOa}
    s_lshl_b32 s{sOo}, s{sHG}, 6
    s_add_u32 s{sOo}, s{sOo}, s{sW}
    s_mul_i32 s{sOo}, s{sOo}, {OSTR}
    s_lshl_b32 s{sO}, s{sMSG}, 8
    s_add_u32 s{sOo}, s{sOo}, s{sO}
    s_add_u32 s{sOo}, s{sOo}, {OB}
    """)
    h3_addr(g, vH3, vH3x, vL, vN, vG, t0)
    h3_soffs(g, sH3m, sH3l)
    g(f"s_cmp_lg_u32 s{sW}, 3")
    g("s_cbranch_scc1 L_B_nopf")
    code_prefetch(g, PFL, vL, t0, t1)
    g.lab("L_B_nopf")
    g("s_waitcnt lgkmcnt(0)")
    load_tag(g)
    for r in range(4):
        g(f"s_add_u32 s{sO}, s{sOo}, {4*r*OSTR}")
        g(f"buffer_store_dwordx4 {v(vPOI,4)}, v{vOa}, {WS}, s{sO} offen sc1")
    g(f"buffer_store_dwordx4 {v(vPOI,4)}, v{vH3}, {WS}, s{sH3m} offen sc1")
    g(f"s_cmp_gt_u32 s{sW}, 1")
    g("s_cbranch_scc1 L_B_nor3")
    g(f"buffer_store_dword v{vPOI}, v{vH3x}, {WS}, s{sH3l} offen sc1")
    g.lab("L_B_nor3")
    g(f"""
    s_lshl_b32 s{sO}, s{sMSG}, 2
    s_add_u32 s{sO}, s{sO}, s{sW}
    s_lshl_b32 s{sO}, s{sO}, 15
    s_lshl_b32 m0, s{sW}, 15
    s_add_u32 m0, m0, {B_CKV}
    """)
    for k in range(32):
        f = f16sw(k & 15)
        if k % 4 == 0 and k:
            g(f"s_addk_i32 s{sO}, 0x1000")
            g(f"s_add_u32 m0, m0, 0x1000")
        tmp = t0 + (k & 1)
        g(f"v_xor_b32 v{tmp}, {f*16}, v{vL16}")
        g(f"buffer_load_dwordx4 v{tmp}, {CKV}, s{sO} offen offset:{(k%4)*1024} {NT} lds")
    g.stamp(1)
    srd(g, 16, 7, 576 * 9216)
    srd(g, 20, 9, 4608 * 1152)
    g(f"""
    v_and_b32 v{t0}, 1, v{vL}
    v_mul_u32_u24 v{t0}, 1152, v{t0}
    s_mul_i32 s{sO}, s{sI}, 72
    buffer_load_dwordx2 {v(vXr+4,2)}, v{t0}, {X}, s{sO} offen offset:64
    v_lshl_add_u32 v{t0}, v{vG}, 3, v{t0}
    buffer_load_dwordx2 {v(vXr,2)}, v{t0}, {X}, s{sO} offen
    buffer_load_dwordx2 {v(vXr+2,2)}, v{t0}, {X}, s{sO} offen offset:32
    s_mul_i32 s{sO}, s{sU2}, 72
    s_mul_i32 s{sO3}, s{sW}, 18
    s_add_u32 s{sO}, s{sO}, s{sO3}
    v_lshlrev_b32 v{t0}, 1, v{vN}
    buffer_load_ushort v{vB1}, v{t0}, {B1}, s{sO} offen
    """)
    def fsw(dst, src, tmp):
        g(f"v_lshrrev_b32 v{tmp}, 3, v{src}")
        g(f"v_and_b32 v{dst}, 7, v{src}")
        g(f"v_lshl_add_u32 v{dst}, v{dst}, 1, v{tmp}")
        g(f"v_lshlrev_b32 v{tmp}, 3, v{tmp}")
        g(f"v_xor_b32 v{dst}, v{dst}, v{tmp}")
    fsw(t2, vN, t3)
    g(f"""
    v_xor_b32 v{t2}, v{t2}, v{vG}
    v_lshlrev_b32 v{t2}, 4, v{t2}
    v_lshl_add_u32 v{t2}, v{vN}, 10, v{t2}
    s_lshl_b32 s{sO}, s{sW}, 15
    s_add_u32 s{sO}, s{sO}, {B_CKV}
    """)
    assert B_QF == 0
    for q in range(4):
        g(f"v_xor_b32 v{vQBs+q}, {q*64}, v{t2}")
        g(f"v_add_u32 v{vSB+q}, s{sO}, v{vQBs+q}")
    g(f"v_lshrrev_b32 v{t0}, 2, v{vL}")
    fsw(t2, t0, t3)
    g(f"""
    v_bfe_u32 v{t3}, v{vL}, 1, 1
    v_xor_b32 v{t2}, v{t2}, v{t3}
    v_lshlrev_b32 v{vPVb}, 10, v{t0}
    v_lshl_add_u32 v{vPVb}, v{t2}, 4, v{vPVb}
    v_and_b32 v{t3}, 1, v{vL}
    v_lshl_add_u32 v{vPVb}, v{t3}, 3, v{vPVb}
    v_lshl_add_u32 v{vPVb}, s{sW}, 8, v{vPVb}
    v_add_u32 v{vPVb}, {B_CKV}, v{vPVb}
    v_add_u32 v{vPVb+1}, 0x10000, v{vPVb}
    v_lshlrev_b32 v{vMXr}, 4, v{vN}
    v_lshl_add_u32 v{vMXw}, v{vG}, 2, v{vMXr}
    v_lshl_add_u32 v{vMXw}, s{sW}, 8, v{vMXw}
    v_lshlrev_b32 v{vD1}, 7, v{vN}
    """)
    vP1, vP2 = 42, 53
    for i in range(9):
        unit_pattern(g, vP2 + i, vL, None, i, 1152, t0, t1)
        g(f"v_mul_u32_u24 v{t1}, {9216-1152}, v{t1}")
        g(f"v_add_u32 v{vP1+i}, v{vP2+i}, v{t1}")
    unit_pattern(g, vP2 + 9, vL, sW, None, 1152, t0, t1)
    g(f"v_mul_u32_u24 v{t1}, {9216-1152}, v{t1}")
    g(f"v_add_u32 v{vP1+9}, v{vP2+9}, v{t1}")
    finish_tag(g)
    g(f"v_mov_b32 v{vTag}, s{sT}")
    g(f"v_mov_b32 v{vTag+1}, s{sT+1}")
    g(f"""
    v_mov_b32 v{t0}, 0
    v_lshlrev_b32 v{t1}, 2, v{vL}
    s_mov_b32 exec_hi, 0
    ds_write_b32 v{t1}, v{t0} offset:{B_ZERO}
    s_mov_b64 exec, -1
    """)
    g(f"s_waitcnt vmcnt({16+4})")
    for ks in range(16):
        g(f"ds_read_b128 {A(aS+ks*4,4)}, v{vSB+(ks&3)} offset:{(ks>>2)*256}")
    g("s_waitcnt vmcnt(0)")
    g.stamp(2)
    vDB = 64
    g(f"""
    s_lshl_b32 s{sO2}, s{sHG}, 2
    s_add_u32 s{sO2}, s{sO2}, s{sW}
    s_lshl_b32 s{sO2}, s{sO2}, 11
    s_add_u32 s{sO2}, s{sO2}, {D1}
    buffer_load_dwordx2 {v(vDB,2)}, v{vD1}, {WS}, s{sO2} offen sc1
    """)
    for ks in range(16):
        g(f"ds_read_b128 {A(aS+64+ks*4,4)}, v{vSB+(ks&3)} offset:{16384+(ks>>2)*256}")
    g("s_barrier")
    for half in range(2):
        for ct in range(8):
            tmp = t0 + (ct & 1)
            g(f"v_xor_b32 v{tmp}, {ct<<5}, v{vPVb+half}")
            for k2 in range(2):
                for hi in range(2):
                    ks = half * 2 + k2
                    g(f"ds_read_b64_tr_b16 {A(aP+(ct*4+ks)*4+2*hi,2)}, v{tmp} offset:{k2*32768+hi*16384}")
    vXA = 128
    g(f"v_lshrrev_b32 v{t0}, 1, v{vN}")
    g(f"v_lshrrev_b32 v{t1}, 1, v{vL}")
    for z in range(4):
        g(f"v_cmp_eq_u32 vcc, {2*z}, v{t0}")
        g(f"v_cmp_eq_u32 s[{sM3}:{sM3+1}], {2*z}, v{t1}")
        for d in range(4):
            g(f"v_cndmask_b32 v{vXA+6*z+d}, 0, v{vXr+d}, vcc")
        for d in range(4, 6):
            g(f"v_cndmask_b32 v{vXA+6*z+d}, 0, v{vXr+d}, s[{sM3}:{sM3+1}]")
    vQd = 152
    g(f"""
    s_lshl_b32 s{sO3}, s{sB}, 1
    s_add_u32 s{sO3}, s{sO3}, s{sHG}
    s_lshl_b32 s{sO3}, s{sO3}, 2
    s_add_u32 s{sO3}, s{sO3}, s{sW}
    s_lshl_b32 s{sO3}, s{sO3}, 12
    s_add_u32 s{sO3}, s{sO3}, {QB}
    """)
    g(f"""
    s_lshr_b32 s{sTMP}, s{sW}, 1
    s_xor_b32 s{sTMP+1}, s{sW}, s{sTMP}
    s_and_b32 s{sTMP+1}, s{sTMP+1}, 1
    s_lshl_b32 s{sTMP+1}, s{sTMP+1}, 3
    s_add_u32 s{sTMP}, s{sTMP}, s{sTMP+1}
    s_lshl_b32 s{sTMP}, s{sTMP}, 4
    v_xor_b32 v{vQd}, s{sTMP}, v{vL16}
    v_xor_b32 v{vQd+1}, 32, v{vQd}
    v_xor_b32 v{vQd+2}, 64, v{vQd}
    v_xor_b32 v{vQd+3}, 0x60, v{vQd}
    s_lshl_b32 m0, s{sW}, 12
    s_mov_b32 s{sCNT}, 0
    s_branch L_B_d1chk
    """)
    g.lab("L_B_d1poll")
    g(f"buffer_load_dwordx2 {v(vDB,2)}, v{vD1}, {WS}, s{sO2} offen sc1")
    spin_guard(g, "L_B_qget")
    g.lab("L_B_d1chk")
    g("s_waitcnt vmcnt(0)")
    g(f"v_cmp_ne_u64 vcc, s[{sT}:{sT+1}], {v(vDB,2)}")
    g("s_cbranch_vccnz L_B_d1poll")
    g(f"s_mov_b32 s{sCNT}, 0")
    g.stamp(3)
    g.lab("L_B_qget")
    for k in range(4):
        g(f"buffer_load_dwordx4 v{vQd+k}, {WS}, s{sO3} offen offset:{k*1024} sc1 lds")
    g("s_waitcnt vmcnt(0) lgkmcnt(0)")
    g("s_barrier")
    g.stamp(4)
    vQ = 64
    vS = 156
    for ks in range(16):
        g(f"ds_read_b128 {v(vQ+4*ks,4)}, v{vQBs+(ks&3)} offset:{(ks>>2)*256}")
        if ks == 14: g("s_waitcnt lgkmcnt(14)")
    for ks in range(16):
        g(f"s_waitcnt lgkmcnt({min(15-ks, 15)})")
        for kt in range(2):
            g(f"{MF} {v(vS+4*kt,4)}, {A(aS+(kt*16+ks)*4,4)}, {v(vQ+4*ks,4)}, {'0' if ks == 0 else v(vS+4*kt,4)}")
    g(f"v_cmp_u_f32 vcc, v{vS}, v{vS}")
    g("s_cbranch_vccz L_B_qok")
    spin_guard(g, "L_B_qok")
    g(f"s_mov_b64 s[{sM4}:{sM4+1}], 0")
    for ks in range(16):
        g(f"v_cmp_eq_u32 vcc, s{sPOI}, v{vQ+4*ks}")
        g(f"s_or_b64 s[{sM4}:{sM4+1}], s[{sM4}:{sM4+1}], vcc")
    g("s_cbranch_scc0 L_B_qok")
    g("s_barrier")
    g("s_branch L_B_qget")
    g.lab("L_B_qok")
    g(f"""
    v_max3_f32 v{t0}, v{vS}, v{vS+1}, v{vS+2}
    v_max3_f32 v{t1}, v{vS+3}, v{vS+4}, v{vS+5}
    v_max3_f32 v{t0}, v{t0}, v{vS+6}, v{vS+7}
    v_max_f32 v{t0}, v{t0}, v{t1}
    ds_write_b32 v{vMXw}, v{t0} offset:{B_MX}
    s_waitcnt lgkmcnt(0)
    s_barrier
    """)
    g.stamp(5)
    vM = 64
    for q in range(4):
        g(f"ds_read_b128 {v(vM+4*q,4)}, v{vMXr} offset:{B_MX+q*256}")
    def unit_dma(SRD, vP, ldsbase, s_unit_base, pitch, tag):
        g(f"s_mul_i32 s{sO}, s{sW}, {8*pitch}")
        g(f"s_add_u32 s{sO}, s{sO}, s{s_unit_base}")
        g(f"s_mul_i32 s{sTMP}, s{sW}, 9216")
        for i in range(9):
            g(f"s_add_u32 m0, s{sTMP}, {ldsbase + i*1024}")
            g(f"buffer_load_dwordx4 v{vP+i}, {SRD}, s{sO} offen {NT} lds")
        g(f"s_add_u32 s{sO}, s{s_unit_base}, {32*pitch}")
        g(f"s_lshl_b32 s{sTMP}, s{sW}, 10")
        g(f"s_add_u32 m0, s{sTMP}, {ldsbase + 36864}")
        g(f"buffer_load_dwordx4 v{vP+9}, {SRD}, s{sO} offen {NT} lds")
        g(f"s_cmp_lg_u32 s{sW}, 0")
        g(f"s_cbranch_scc1 L_B_not{tag}")
        g(f"s_mov_b32 m0, {ldsbase + 36864 + 4096}")
        g("s_mov_b32 exec_hi, 0")
        g(f"buffer_load_dwordx4 v{vP+4}, {SRD}, s{sO} offen {NT} lds")
        g("s_mov_b64 exec, -1")
        g.lab(f"L_B_not{tag}")
    def w1_dma():
        g(f"s_mul_i32 s{sO2}, s{sI}, {36*9216}")
        g(f"s_mul_i32 s{sO3}, s{sXCD}, 1152")
        g(f"s_add_u32 s{sO2}, s{sO2}, s{sO3}")
        unit_dma(W1, vP1, B_W1, sO2, 9216, "w1")
    CS = math.log2(math.e) * 128 ** -0.5
    g(f"s_mov_b32 s{sC}, {hex(fbits(CS))}")
    g("s_waitcnt lgkmcnt(0)")
    g(f"""
    v_max3_f32 v{vM}, v{vM}, v{vM+1}, v{vM+2}
    v_max3_f32 v{vM+3}, v{vM+3}, v{vM+4}, v{vM+5}
    v_max3_f32 v{vM+6}, v{vM+6}, v{vM+7}, v{vM+8}
    v_max3_f32 v{vM+9}, v{vM+9}, v{vM+10}, v{vM+11}
    v_max3_f32 v{vM+12}, v{vM+12}, v{vM+13}, v{vM+14}
    v_max3_f32 v{vM}, v{vM}, v{vM+3}, v{vM+6}
    v_max3_f32 v{vM+9}, v{vM+9}, v{vM+12}, v{vM+15}
    v_max_f32 v{vM}, v{vM}, v{vM+9}
    v_mul_f32 v{vML}, s{sC}, v{vM}
    """)
    for k in range(8):
        g(f"v_fma_f32 v{vS+k}, v{vS+k}, s{sC}, -v{vML}")
    for k in range(8):
        g(f"v_exp_f32 v{vS+k}, v{vS+k}")
    vPf = 80
    for k in range(4):
        g(f"v_cvt_pk_bf16_f32 v{vS+k}, v{vS+2*k}, v{vS+2*k+1}")
    g(f"""
    v_lshl_add_u32 v{t0}, s{sW}, 10, v{vL16}
    ds_write_b128 v{t0}, {v(vS,4)} offset:{B_PB}
    v_mov_b32 v{vM}, 0x3f803f80
    v_mov_b32 v{vM+1}, 0x3f803f80
    v_mov_b32 v{vM+2}, 0x3f803f80
    v_mov_b32 v{vM+3}, 0x3f803f80
    s_waitcnt lgkmcnt(0)
    s_barrier
    """)
    g.stamp(6)
    for ks in range(4):
        g(f"ds_read_b128 {v(vPf+4*ks,4)}, v{vL16} offset:{B_PB+ks*1024}")
    vO = 96
    vLa = 68
    g(f"""
    s_lshl_b32 s{sO3}, s{sHG}, 6
    s_add_u32 s{sO3}, s{sO3}, s{sMSG}
    s_lshl_b32 s{sO3}, s{sO3}, 8
    s_add_u32 s{sO3}, s{sO3}, {D2}
    """)
    dbpos = g.opt.get("d2_pos", 2)
    for ks in range(4):
        g(f"s_waitcnt lgkmcnt({3-ks})")
        g(f"{MF} {v(vLa,4)}, {v(vM,4)}, {v(vPf+4*ks,4)}, {'0' if ks == 0 else v(vLa,4)}")
    for ks in range(4):
        if ks == dbpos:
            g(f"s_cmp_lg_u32 s{sW}, 0")
            g("s_cbranch_scc1 L_B_nod2")
            g(f"v_mov_b32 v{vML+1}, v{vLa}")
            g("s_mov_b64 exec, 0xffff")
            g(f"buffer_store_dwordx4 {v(vML,4)}, v{vL16}, {WS}, s{sO3} offen sc1")
            g("s_mov_b64 exec, -1")
            g.lab("L_B_nod2")
        for ct in range(8):
            g(f"{MF} {v(vO+4*ct,4)}, {v(vPf+4*ks,4)}, {A(aP+(ct*4+ks)*4,4)}, {'0' if ks == 0 else v(vO+4*ct,4)}")
    vOo = 64
    for r in range(4):
        for k in range(4):
            g(f"v_cvt_pk_bf16_f32 v{vOo+4*r+k}, v{vO+8*k+r}, v{vO+8*k+4+r}")
        g(f"s_add_u32 s{sO}, s{sOo}, {4*r*OSTR}")
        g(f"buffer_store_dwordx4 {v(vOo+4*r,4)}, v{vOa}, {WS}, s{sO} offen sc1")
    g.stamp(7)
    w1_dma()
    g(f"s_mul_i32 s{sO2}, s{sU2}, {36*1152}")
    unit_dma(W2, vP2, B_W2, sO2, 1152, "w2")
    vT1, vK1 = 16, 17
    vT20, vT21, vK20, vK21 = 18, 19, 20, 21
    vHs, vHg, vHw = 24, 25, 26
    vHe, vHo, vHke, vHko = 27, 28, 29, 30
    g(f"""
    v_lshrrev_b32 v{t0}, 2, v{vL}
    v_bfe_u32 v{t1}, v{vL}, 1, 1
    v_lshl_add_u32 v{t1}, s{sW}, 1, v{t1}
    v_and_b32 v{t2}, 6, v{t0}
    v_xor_b32 v{t2}, v{t2}, v{t1}
    v_lshlrev_b32 v{t2}, 4, v{t2}
    v_mul_u32_u24 v{vT1}, 1152, v{t0}
    v_and_b32 v{t3}, 1, v{vL}
    v_lshlrev_b32 v{t3}, 3, v{t3}
    v_add3_u32 v{vT1}, v{vT1}, v{t2}, v{t3}
    v_and_b32 v{t0}, 3, v{t0}
    v_and_b32 v{t2}, 2, v{t0}
    v_xor_b32 v{t2}, v{t2}, v{t1}
    v_lshlrev_b32 v{t2}, 4, v{t2}
    v_mul_u32_u24 v{vK1}, 1152, v{t0}
    v_add3_u32 v{vK1}, v{vK1}, v{t2}, v{t3}
    """)
    tr_pair_bases(g, vT20, vT21, vK20, vK21, vL, B_W2, t0, t1, t2)
    g(f"""
    v_lshlrev_b32 v{vHs}, 10, v{vG}
    v_lshl_add_u32 v{vHs}, v{vN}, 4, v{vHs}
    v_mul_u32_u24 v{vHg}, 9216, v{vG}
    v_lshl_add_u32 v{vHg}, v{vN}, 4, v{vHg}
    v_lshrrev_b32 v{t0}, 5, v{vL}
    v_lshlrev_b32 v{vHw}, 7, v{t0}
    v_lshl_add_u32 v{vHw}, v{vN}, 1, v{vHw}
    s_mul_i32 s{sO}, s{sW}, 18
    v_add_u32 v{vHw}, s{sO}, v{vHw}
    v_bfe_u32 v{t0}, v{vL}, 2, 1
    v_lshlrev_b32 v{t0}, 7, v{t0}
    v_add_u32 v{t0}, {B_HL}, v{t0}
    v_lshl_add_u32 v{t1}, v{vG}, 3, v{t0}
    v_add_u32 v{t0}, 64, v{t0}
    v_mov_b32 v{t2}, {B_ZERO}
    v_cmp_gt_u32 vcc, 8, v{vN}
    v_cndmask_b32 v{vHe}, v{t2}, v{t1}, vcc
    v_cndmask_b32 v{vHo}, v{t1}, v{t2}, vcc
    v_lshrrev_b32 v{t1}, 3, v{vL}
    v_cmp_eq_u32 vcc, 0, v{t1}
    v_cndmask_b32 v{vHke}, v{t2}, v{t0}, vcc
    v_cmp_eq_u32 vcc, 1, v{t1}
    v_cndmask_b32 v{vHko}, v{t2}, v{t0}, vcc
    v_lshlrev_b32 v{vB1}, 16, v{vB1}
    """)
    g(f"s_cmp_lg_u32 s{sW}, 0")
    g("s_cbranch_scc1 L_B_w1a")
    g("s_waitcnt vmcnt(11)")
    g("s_branch L_B_w1b")
    g.lab("L_B_w1a")
    g("s_waitcnt vmcnt(10)")
    g.lab("L_B_w1b")
    g("s_barrier")
    g.stamp(8)
    aW = 0
    vH = 64
    for t in range(9):
        g(f"ds_read_b64_tr_b16 {A(aW+6*t,2)}, v{vT1} offset:{B_W1+t*128}")
        g(f"ds_read_b64_tr_b16 {A(aW+6*t+2,2)}, v{vT1} offset:{B_W1+16*1152+t*128}")
        if t >= 4:
            tt = t - 4
            g("s_waitcnt lgkmcnt(8)")
            g(f"{MF} {v(vH+4*(tt>>2),4)}, {v(vXA+6*(tt&3),4)}, {A(aW+6*tt,4)}, {'0' if tt & 3 == 0 else v(vH+4*(tt>>2),4)}")
    for t in range(9):
        g(f"ds_read_b64_tr_b16 {A(aW+6*t+4,2)}, v{vK1} offset:{B_W1+32*1152+t*128}")
        if t < 4:
            tt = t + 5
            g(f"s_waitcnt lgkmcnt({2*(8-tt)+t+1})")
            g(f"{MF} {v(vH+4*(tt>>2),4)}, {v(vXA+6*(tt&3),4)}, {A(aW+6*tt,4)}, {'0' if tt & 3 == 0 else v(vH+4*(tt>>2),4)}")
    for tt in range(9):
        g(f"s_waitcnt lgkmcnt({8-tt})")
        g(f"{MF16} {v(vH+4*(tt>>2),4)}, {v(vXA+6*(tt&3)+4,2)}, {A(aW+6*tt+4,2)}, {v(vH+4*(tt>>2),4)}")
    g(f"""
    s_mul_i32 s{sO}, s{sU2}, 9216
    s_lshl_b32 s{sO3}, s{sW}, 8
    s_add_u32 s{sO}, s{sO}, s{sO3}
    s_add_u32 s{sO}, s{sO}, {HH}
    """)
    for y in range(3):
        g(f"v_mov_b32 v{vH+4*y+2}, s{sT}")
        g(f"v_mov_b32 v{vH+4*y+3}, s{sT+1}")
        if y == 2: g("s_mov_b64 exec, 0xffff")
        g(f"buffer_store_dwordx4 {v(vH+4*y,4)}, v{vHs}, {WS}, s{sO} offen sc1")
        if y < 2: g(f"s_addk_i32 s{sO}, 0x1000")
    g.stamp(9)
    vHr = 80
    g(f"""
    s_mul_i32 s{sO}, s{sXCD}, {16*9216}
    s_mul_i32 s{sO3}, s{sI}, 576
    s_add_u32 s{sO}, s{sO}, s{sO3}
    s_mul_i32 s{sO3}, s{sW}, 144
    s_add_u32 s{sO}, s{sO}, s{sO3}
    s_add_u32 s{sO}, s{sO}, {HH}
    s_add_u32 s{sO2}, s{sO}, {4*9216}
    s_add_u32 s{sO3}, s{sO}, {8*9216}
    s_add_u32 s{sC}, s{sO}, {12*9216}
    s_mov_b32 exec_lo, 0x01ff01ff
    s_mov_b32 exec_hi, 0x01ff01ff
    s_mov_b32 s{sCNT}, 0
    """)
    g.lab("L_B_hpoll")
    for u, so in enumerate((sO, sO2, sO3, sC)):
        g(f"buffer_load_dwordx4 {v(vHr+4*u,4)}, v{vHg}, {WS}, s{so} offen sc1")
    spin_guard(g, "L_B_hdone")
    g("s_waitcnt vmcnt(0)")
    g(f"v_cmp_ne_u64 vcc, s[{sT}:{sT+1}], {v(vHr+2,2)}")
    for u in range(1, 4):
        g(f"v_cmp_ne_u64 s[{sM3}:{sM3+1}], s[{sT}:{sT+1}], {v(vHr+4*u+2,2)}")
        g(f"s_or_b64 vcc, vcc, s[{sM3}:{sM3+1}]")
    g("s_cbranch_scc1 L_B_hpoll")
    g.lab("L_B_hdone")
    g("s_waitcnt vmcnt(0)")
    g.stamp(10)
    c1 = -2.0 * math.log2(math.e) * math.sqrt(2.0 / math.pi)
    g(f"""
    v_pk_add_f32 {v(vHr,2)}, {v(vHr,2)}, {v(vHr+4,2)}
    v_pk_add_f32 {v(vHr+8,2)}, {v(vHr+8,2)}, {v(vHr+12,2)}
    v_pk_add_f32 {v(vHr,2)}, {v(vHr,2)}, {v(vHr+8,2)}
    v_permlane32_swap_b32 v{vHr}, v{vHr+1}
    v_add_f32 v{vHr}, v{vHr}, v{vHr+1}
    v_mov_b32 v{vHr+1}, v{vHr}
    v_permlane16_swap_b32 v{vHr}, v{vHr+1}
    v_add_f32 v{vHr}, v{vHr}, v{vHr+1}
    v_add_f32 v{vHr}, v{vHr}, v{vB1}
    v_mul_f32 v{t0}, v{vHr}, v{vHr}
    v_mov_b32 v{t1}, {hex(fbits(c1))}
    s_mov_b32 s{sC}, {hex(fbits(c1*0.044715))}
    v_fma_f32 v{t0}, v{t0}, s{sC}, v{t1}
    v_mul_f32 v{t0}, v{t0}, v{vHr}
    v_exp_f32 v{t0}, v{t0}
    v_add_f32 v{t0}, 1.0, v{t0}
    v_rcp_f32 v{t0}, v{t0}
    v_mul_f32 v{t0}, v{t0}, v{vHr}
    v_cvt_pk_bf16_f32 v{t0}, v{t0}, v{t0}
    ds_write_b16 v{vHw}, v{t0} offset:{B_HL}
    s_mov_b64 exec, -1
    s_waitcnt lgkmcnt(0)
    s_barrier
    """)
    g.stamp(11)
    g(f"s_cmp_lg_u32 s{sW}, 3")
    g("s_cbranch_scc1 L_B_nod3")
    g(f"""
    s_lshl_b32 s{sO}, s{sPR}, 7
    s_add_u32 s{sO}, s{sO}, {D3}
    s_mov_b64 exec, 1
    buffer_store_dwordx2 {v(vTag,2)}, v{vL16}, {WS}, s{sO} offen sc1
    s_mov_b64 exec, -1
    """)
    g.lab("L_B_nod3")
    vHA = 64
    vY = 96
    g(f"ds_read2_b64 {v(vHA,4)}, v{vHe} offset0:0 offset1:4")
    g(f"ds_read_b64 {v(vHA+4,2)}, v{vHke}")
    g(f"ds_read2_b64 {v(vHA+6,4)}, v{vHo} offset0:0 offset1:4")
    g(f"ds_read_b64 {v(vHA+10,2)}, v{vHko}")
    def w2reads(t):
        for x in range(2):
            b = aW + (t * 2 + x) * 6
            g(f"ds_read_b64_tr_b16 {A(b,2)}, v{vT21 if x else vT20} offset:{t*256}")
            g(f"ds_read_b64_tr_b16 {A(b+2,2)}, v{vT21 if x else vT20} offset:{16*1152+t*256}")
            g(f"ds_read_b64_tr_b16 {A(b+4,2)}, v{vK21 if x else vK20} offset:{t*256}")
    def w2mf(t):
        for x in range(2):
            b = aW + (t * 2 + x) * 6
            g(f"{MF} {v(vY+4*t,4)}, {v(vHA+6*x,4)}, {A(b,4)}, {'0' if x == 0 else v(vY+4*t,4)}")
    def w2mf16(t):
        for x in range(2):
            b = aW + (t * 2 + x) * 6
            g(f"{MF16} {v(vY+4*t,4)}, {v(vHA+6*x+4,2)}, {A(b+4,2)}, {v(vY+4*t,4)}")
    w2reads(0)
    for t in range(4):
        if t < 3:
            w2reads(t + 1)
            g("s_waitcnt lgkmcnt(6)")
        else:
            g("s_waitcnt lgkmcnt(0)")
        w2mf(t)
    for t in range(4):
        w2mf16(t)
    g(f"s_cmp_gt_u32 s{sW}, 1")
    g("s_cbranch_scc1 L_B_no5")
    w2reads(4)
    g("s_waitcnt lgkmcnt(0)")
    w2mf(4)
    w2mf16(4)
    g.lab("L_B_no5")
    for t in range(1, 4):
        g(f"v_mov_b32 v{vY+t}, v{vY+4*t}")
    g(f"buffer_store_dwordx4 {v(vY,4)}, v{vH3}, {WS}, s{sH3m} offen sc1")
    g(f"s_cmp_gt_u32 s{sW}, 1")
    g("s_cbranch_scc1 L_B_no5b")
    g(f"buffer_store_dword v{vY+16}, v{vH3x}, {WS}, s{sH3l} offen sc1")
    g.lab("L_B_no5b")
    g.stamp(12)
    dump_stamps(g, 16, 160)

if __name__ == "__main__":
    opt = eval("dict(%s)" % (sys.argv[2] if len(sys.argv) > 2 else ""))
    open(sys.argv[1], "w").write(gen(opt))
```

```python
import sys, os, math, struct
sys.path.insert(0, os.path.dirname(os.path.abspath(__file__)))
from hazard import pad

KNAME = "gated_mix__compressed_kv_cla__dense_activation_gelu__decode_kernel"

WS_BYTES = 256 << 20
EPOCH = 0x0
D1 = 0x4000
D3 = 0x8000
D2 = 0x10000
HB = 0x20000
H0 = 0x40000
QB = 0x80000
H3 = 0x100000
USTR = 32768 + 256
HH = 0x240000
OB = 0x400000
OSTR = 16384 + 256
LOC = 0x800000
STAMP = 0x1000000
POISON = 0xFFA5FFA5
K0, K1 = 0x9E3779B9, 0x7F4A7C15
SPIN = 1 << 20

A_WUV = 0
A_QL = 32768
A_ZERO = 33280
A_CTXC = 33536
A_WT = 34048
A_RED = 34304
A_PR = 35328
A_WO = 35840
A_W1 = A_WO + 36864
A_QP = A_WO
B_QF = 0
B_PB = 16384
B_MX = 20480
B_HL = 21504
B_ZERO = 21760
B_LS = 22528
B_CKV = 23552
B_W2 = B_CKV
LDS_BYTES = 154624

def f16sw(i):
    return (((i & 7) ^ ((i >> 3) << 2)) << 1) | (i >> 3)

def fbits(x):
    return struct.unpack("<I", struct.pack("<f", x))[0]

class G:
    def __init__(self, opt):
        self.l = []
        self.opt = opt
        self.nst = 0
        self.inA = False
    def __call__(self, s):
        for x in s.strip("\n").split("\n"):
            x = x.strip()
            if x: self.l.append("    " + x)
    def lab(self, n): self.l.append(n + ":")
    def c(self, s): self.l.append("    ; " + s)
    def stamp(self, i):
        if self.opt.get("stamps") and not (self.opt.get("fst") and 5 <= i <= 12 and self.inA):
            self(f"s_memrealtime s[{70+2*i}:{71+2*i}]")
    def fstamp(self, i):
        if self.opt.get("stamps") and self.opt.get("fst"):
            self(f"s_memrealtime s[{70+2*i}:{71+2*i}]")

def v(a, n=1): return f"v{a}" if n == 1 else f"v[{a}:{a+n-1}]"
def A(a, n=1): return f"a{a}" if n == 1 else f"a[{a}:{a+n-1}]"
def S(a, n=1): return f"s{a}" if n == 1 else f"s[{a}:{a+n-1}]"

sW = 3
WS, X = "s[4:7]", "s[8:11]"
sT = 40
sXCD, sI = 42, 43
sA, sH, sJ = 44, 45, 46
sHG, sB, sMSG, sU2 = 44, 45, 46, 47
sO, sO2, sO3, sCNT = 48, 49, 50, 51
sM1, sM2, sM3, sM4 = 52, 54, 56, 58
sPR = 60
sG0, sG1 = 61, 62
sTMP = 64
sPC = 66
sPOI = 68
sC = 69

def srd(g, base, slot, nbytes):
    g(f"s_load_dwordx2 s[{base}:{base+1}], s[0:1], {slot*8}")
    g(f"s_mov_b32 s{base+2}, {nbytes}")
    g(f"s_mov_b32 s{base+3}, 0x00020000")

def dump_stamps(g, n, tmpv):
    if not g.opt.get("stamps") or g.opt.get("probe") is not None: return
    g("s_waitcnt lgkmcnt(0)")
    g("s_mov_b64 exec, 1")
    g(f"s_lshl_b32 s{sO}, s2, 2")
    g(f"s_add_u32 s{sO}, s{sO}, s{sW}")
    g(f"s_lshl_b32 s{sO}, s{sO}, 6")
    g(f"s_add_u32 s{sO}, s{sO}, {STAMP}")
    g(f"v_mov_b32 v{tmpv+4}, 0")
    for q in range(0, 16, 4):
        for k in range(4):
            g(f"v_mov_b32 v{tmpv+k}, s{70+2*(q+k)}")
        g(f"buffer_store_dwordx4 {v(tmpv,4)}, v{tmpv+4}, {WS}, s{sO} offen offset:{q*4}")
        g("s_nop 1")
    g("s_waitcnt vmcnt(0)")

def dual_next(g, regs):
    if not g.opt.get("dual", 1): return
    g(f"s_and_b32 s{sTMP}, s{sCNT}, 14")
    g(f"s_cmp_eq_u32 s{sTMP}, 14")
    g(f"s_cselect_b32 s{sTMP}, {LOC}, 0")
    for r in regs:
        g(f"s_xor_b32 s{r}, s{r}, s{sTMP}")

def spin_guard(g, out):
    g(f"s_add_u32 s{sCNT}, s{sCNT}, 1")
    g(f"s_cmp_gt_u32 s{sCNT}, {g.opt.get('spin', SPIN)}")
    g(f"s_cbranch_scc1 {out}")

def selectors(g, vSel, vL, t0, t1, t2):
    g(f"v_and_b32 v{t0}, 1, v{vL}")
    g(f"v_cmp_eq_u32 vcc, 1, v{t0}")
    g(f"v_mov_b32 v{t1}, 0x0c0c0100")
    g(f"v_mov_b32 v{t2}, 0x01000c0c")
    g(f"v_cndmask_b32 v{vSel+3}, v{t1}, v{t2}, vcc")
    g(f"v_mov_b32 v{t1}, 0x0c0c0302")
    g(f"v_mov_b32 v{t2}, 0x03020c0c")
    g(f"v_cndmask_b32 v{vSel+7}, v{t1}, v{t2}, vcc")
    g(f"v_bfe_u32 v{t0}, v{vL}, 1, 2")
    g(f"v_mov_b32 v{t1}, 0x0c0c0c0c")
    for d in range(4):
        g(f"v_cmp_eq_u32 vcc, {d}, v{t0}")
        g(f"v_cndmask_b32 v{vSel+d}, v{t1}, v{vSel+3}, vcc")
        g(f"v_cndmask_b32 v{vSel+4+d}, v{t1}, v{vSel+7}, vcc")

def unit_pattern(g, dst, vL, i_expr_sgpr, i_const, pitch, t0, t1):
    if i_expr_sgpr is not None:
        g(f"v_lshl_add_u32 v{t0}, s{i_expr_sgpr}, 6, v{vL}")
    else:
        g(f"v_add_u32 v{t0}, {64*i_const}, v{vL}")
    g(f"v_mul_u32_u24 v{t1}, 911, v{t0}")
    g(f"v_lshrrev_b32 v{t1}, 16, v{t1}")
    g(f"v_and_b32 v{dst}, 6, v{t1}")
    g(f"v_xor_b32 v{dst}, v{dst}, v{t0}")
    g(f"v_lshlrev_b32 v{dst}, 4, v{dst}")
    if pitch != 1152:
        g(f"v_mul_u32_u24 v{t1}, {pitch-1152}, v{t1}")
        g(f"v_add_u32 v{dst}, v{dst}, v{t1}")
assert all((911 * u) >> 16 == u // 72 for u in range(640))

def h3_addr(g, vH3, vH3x, vL, vN, vG, t0):
    g(f"v_lshrrev_b32 v{t0}, 3, v{vL}")
    g(f"v_mul_u32_u24 v{vH3}, {USTR}, v{t0}")
    g(f"v_and_b32 v{t0}, 7, v{vL}")
    g(f"v_lshl_add_u32 v{vH3}, v{t0}, 4, v{vH3}")
    g(f"v_lshrrev_b32 v{t0}, 5, v{vL}")
    g(f"v_mul_u32_u24 v{vH3x}, {USTR}, v{t0}")
    g(f"v_and_b32 v{t0}, 31, v{vL}")
    g(f"v_lshl_add_u32 v{vH3x}, v{t0}, 2, v{vH3x}")

def h3_soffs(g, s_main, s_left):
    g(f"s_lshl_b32 s{s_left}, s{sPR}, 7")
    g(f"s_add_u32 s{s_left}, s{s_left}, {H3}")
    g(f"s_mul_i32 s{s_main}, s{sW}, {8*USTR}")
    g(f"s_add_u32 s{s_main}, s{s_main}, s{s_left}")
    g(f"s_mul_i32 s{sTMP}, s{sW}, {2*USTR}")
    g(f"s_add_u32 s{s_left}, s{s_left}, s{sTMP}")
    g(f"s_add_u32 s{s_left}, s{s_left}, {32*USTR}")

def tr_pair_bases(g, vB0, vB1, vK0, vK1, vL, base, t0, t1, t2):
    g(f"v_lshrrev_b32 v{t0}, 2, v{vL}")
    g(f"v_bfe_u32 v{t1}, v{vL}, 1, 1")
    g(f"v_lshl_add_u32 v{t1}, s{sW}, 2, v{t1}")
    g(f"v_and_b32 v{t2}, 6, v{t0}")
    g(f"v_xor_b32 v{t2}, v{t2}, v{t1}")
    g(f"v_lshlrev_b32 v{t2}, 4, v{t2}")
    g(f"v_mul_u32_u24 v{vB0}, 1152, v{t0}")
    g(f"v_add_u32 v{vB0}, v{vB0}, v{t2}")
    g(f"v_and_b32 v{t2}, 1, v{vL}")
    g(f"v_lshlrev_b32 v{t2}, 3, v{t2}")
    g(f"v_add_u32 v{vB0}, v{vB0}, v{t2}")
    g(f"v_xor_b32 v{vB1}, 32, v{vB0}")
    if base:
        g(f"v_add_u32 v{vB0}, {base}, v{vB0}")
        g(f"v_add_u32 v{vB1}, {base}, v{vB1}")
    if vK0 is not None:
        g(f"v_and_b32 v{t0}, 3, v{t0}")
        g(f"v_and_b32 v{vK0}, 2, v{t0}")
        g(f"v_xor_b32 v{vK0}, v{vK0}, v{t1}")
        g(f"v_lshlrev_b32 v{vK0}, 4, v{vK0}")
        g(f"v_mul_u32_u24 v{t0}, 1152, v{t0}")
        g(f"v_add3_u32 v{vK0}, v{vK0}, v{t0}, v{t2}")
        g(f"v_xor_b32 v{vK1}, 32, v{vK0}")
        g(f"v_add_u32 v{vK0}, {base + 32*1152}, v{vK0}")
        g(f"v_add_u32 v{vK1}, {base + 32*1152}, v{vK1}")

MF = "v_mfma_f32_16x16x32_bf16"
MF16 = "v_mfma_f32_16x16x16_bf16"

def role_is_A(wg, opt):
    return wg < 128

def gen(opt):
    g = G(opt)
    NT = opt.get("nt", "")
    PFL = opt.get("pf_lines", 4)
    CODE_BYTES = 32 * 128 * PFL
    vL, vN, vG = 1, 2, 3
    g.stamp(0)
    g(f"s_getpc_b64 s[{sPC}:{sPC+1}]")
    g("s_cmp_ge_u32 s2, 256")
    g("s_cbranch_scc1 L_end")
    g(f"""
    s_load_dwordx2 s[4:5], s[0:1], 112
    s_load_dwordx2 s[8:9], s[0:1], 0
    s_load_dwordx2 s[28:29], s[0:1], 8
    s_load_dwordx2 s[12:13], s[0:1], 16
    s_load_dwordx2 s[16:17], s[0:1], 24
    v_lshrrev_b32 v4, 6, v0
    s_sub_u32 s{sO}, s2, 128
    s_lshr_b32 s{sO}, s{sO}, 3
    v_readfirstlane_b32 s{sW}, v4
    s_mul_i32 s{sO}, s{sO}, {2*PFL*128}
    s_cmp_ge_u32 s2, 128
    s_cselect_b32 s{sTMP}, {2*PFL}, 0
    v_lshl_add_u32 v5, v0, 7, s{sO}
    v_cmp_gt_u32 vcc, s{sTMP}, v0
    s_and_saveexec_b64 s[{sTMP}:{sTMP+1}], vcc
    s_cbranch_execz L_nopf
    global_load_dword v255, v5, s[{sPC}:{sPC+1}]
    """)
    g.lab("L_nopf")
    g(f"""
    s_mov_b64 exec, -1
    v_and_b32 v{vL}, 63, v0
    s_and_b32 s{sXCD}, s2, 7
    s_bfe_u32 s{sI}, s2, 0x40003
    v_and_b32 v{vN}, 15, v0
    v_bfe_u32 v{vG}, v0, 4, 2
    s_mov_b32 s6, {WS_BYTES}
    s_mov_b32 s7, 0x00020000
    s_cmp_ge_u32 s2, 128
    s_cbranch_scc1 L_B
    """)
    a = RoleA(g, NT, vL, vN, vG)
    b = RoleB(g, NT, vL, vN, vG)
    a.issue()
    g("s_branch L_A_rest")
    g.lab("L_B")
    b.issue()
    g("s_branch L_B_rest")
    g.lab("L_A_rest")
    g.inA = True
    a.rest()
    g.inA = False
    g.lab("L_B_rest")
    b.rest()
    g.lab("L_end")
    lines, added = pad(g.l)
    body = "\n".join(lines)
    hdr = open(os.path.join(os.path.dirname(os.path.abspath(__file__)), "header.txt")).read()
    return f"""{hdr}; @launch grid=(256,1,1) block=(256,1,1) lds={LDS_BYTES}
.amdgcn_target "amdgcn-amd-amdhsa--gfx950"
.text
.globl {KNAME}
.p2align 8
.type {KNAME},@function
{KNAME}:
{body}
    s_endpgm
L_code_end:
.fill ({CODE_BYTES} + 256 - (L_code_end - {KNAME})) / 4, 4, 0xbf800000
.section .rodata,"a"
.p2align 6
.amdhsa_kernel {KNAME}
  .amdhsa_next_free_vgpr 512
  .amdhsa_next_free_sgpr 102
  .amdhsa_accum_offset 256
  .amdhsa_group_segment_fixed_size 0
  .amdhsa_kernarg_size 120
  .amdhsa_user_sgpr_count 2
  .amdhsa_user_sgpr_kernarg_segment_ptr 1
  .amdhsa_system_sgpr_workgroup_id_x 1
.end_amdhsa_kernel
"""

def srd_tail(g, base, nbytes):
    g(f"s_mov_b32 s{base+2}, {nbytes}")
    g(f"s_mov_b32 s{base+3}, 0x00020000")

def load_tag(g):
    g(f"s_load_dwordx2 s[{sT}:{sT+1}], s[4:5], {EPOCH}")

def finish_tag(g):
    g("s_waitcnt lgkmcnt(0)")
    g(f"s_add_u32 s{sT}, s{sT}, {K0}")
    g(f"s_add_u32 s{sT+1}, s{sT+1}, {K1}")

def bell(g, vdata, vzero, s_index, base, wave, tag):
    g(f"s_cmp_lg_u32 s{sW}, {wave}")
    g(f"s_cbranch_scc1 L_nobell_{tag}")
    g(f"s_lshl_b32 s{sTMP}, s{s_index}, 7")
    g(f"s_add_u32 s{sTMP}, s{sTMP}, {base}")
    g("s_mov_b64 exec, 1")
    g(f"buffer_store_dwordx2 {v(vdata,2)}, v{vzero}, {WS}, s{sTMP} offen sc1")
    g("s_mov_b64 exec, -1")
    g.lab(f"L_nobell_{tag}")

def unit_load(g, SRD, vP, ldsbase, s_unit_base, pitch, tag, NT, rows36=True, vdst=None, thr=None):
    g(f"s_mul_i32 s{sO}, s{sW}, {8*pitch}")
    g(f"s_add_u32 s{sO}, s{sO}, s{s_unit_base}")
    if vdst is None: g(f"s_mul_i32 s{sTMP}, s{sW}, 9216")
    for i in range(9):
        if thr: g(f"s_waitcnt vmcnt({thr-1})")
        if vdst is None:
            g(f"s_add_u32 m0, s{sTMP}, {ldsbase + i*1024}")
            g(f"buffer_load_dwordx4 v{vP+i}, {SRD}, s{sO} offen {NT} lds")
        else:
            g(f"buffer_load_dwordx4 {v(vdst+4*i,4)}, v{vP+i}, {SRD}, s{sO} offen {NT}")
    if not rows36: return
    g(f"s_add_u32 s{sO}, s{s_unit_base}, {32*pitch}")
    if vdst is None:
        g(f"s_lshl_b32 s{sTMP}, s{sW}, 10")
        g(f"s_add_u32 m0, s{sTMP}, {ldsbase + 36864}")
        g(f"buffer_load_dwordx4 v{vP+9}, {SRD}, s{sO} offen {NT} lds")
    else:
        g(f"buffer_load_dwordx4 {v(vdst+36,4)}, v{vP+9}, {SRD}, s{sO} offen {NT}")
    g(f"s_cmp_lg_u32 s{sW}, 0")
    g(f"s_cbranch_scc1 L_not{tag}")
    g("s_mov_b32 exec_hi, 0")
    if vdst is None:
        g(f"s_mov_b32 m0, {ldsbase + 36864 + 4096}")
        g(f"buffer_load_dwordx4 v{vP+4}, {SRD}, s{sO} offen {NT} lds")
    else:
        g(f"buffer_load_dwordx4 {v(vdst+40,4)}, v{vP+4}, {SRD}, s{sO} offen {NT}")
    g("s_mov_b64 exec, -1")
    g.lab(f"L_not{tag}")

class RoleA:
    def __init__(self, g, NT, vL, vN, vG):
        self.g, self.NT, self.vL, self.vN, self.vG = g, NT, vL, vN, vG
    vX = 20
    vA_wq, vA_uk = 108, 109
    aWQ, aUK = 0, 36

    def issue(self):
        g, NT, vL, vN, vG = self.g, self.NT, self.vL, self.vN, self.vG
        WQ, WUK = "s[12:15]", "s[16:19]"
        t0, t1 = 4, 5
        vX, vA_wq, vA_uk, aWQ, aUK = self.vX, self.vA_wq, self.vA_uk, self.aWQ, self.aUK
        srd_tail(g, 12, 576 * 8192)
        srd_tail(g, 8, 2304)
        g(f"""
        s_lshr_b32 s{sH}, s{sI}, 2
        s_lshl_b32 s{sH}, s{sH}, 3
        s_add_u32 s{sH}, s{sH}, s{sXCD}
        s_and_b32 s{sJ}, s{sI}, 3
        v_mul_u32_u24 v{vA_wq}, {36*8192}, v{vG}
        v_lshl_add_u32 v{vA_wq}, v{vN}, 4, v{vA_wq}
        s_lshl_b32 s{sO2}, s{sJ}, 4
        s_add_u32 s{sO2}, s{sO2}, s{sW}
        s_mul_i32 s{sO2}, s{sO2}, 9
        s_lshl_b32 s{sO3}, s{sO2}, 13
        s_lshl_b32 s{sC}, s{sH}, 8
        s_add_u32 s{sO3}, s{sO3}, s{sC}
        v_bfe_u32 v{t0}, v{vL}, 3, 1
        v_mul_u32_u24 v{t0}, 1152, v{t0}
        v_mad_u32_u24 v{t0}, v{vG}, 64, v{t0}
        v_lshl_add_u32 v{t0}, v{vG}, 3, v{t0}
        s_lshr_b32 s{sO2}, s{sO2}, 1
        s_lshl_b32 s{sO2}, s{sO2}, 2
        s_waitcnt lgkmcnt(0)
        """)
        g.fstamp(5)
        g(f"""
        buffer_load_dwordx4 {v(vX,4)}, v{t0}, {X}, s{sO2} offen
        buffer_load_dword v{vX+4}, v{t0}, {X}, s{sO2} offen offset:16
        """)
        for i in range(9):
            g(f"buffer_load_dwordx4 {A(aWQ+4*i,4)}, v{vA_wq}, {WQ}, s{sO3} offen {NT}")
            if i != 8: g(f"s_addk_i32 s{sO3}, 0x2000")
        load_tag(g)
        srd_tail(g, 16, 512 * 8192)
        g(f"""
        v_bfe_u32 v{t0}, v{vL}, 2, 2
        v_lshlrev_b32 v{vA_uk}, 16, v{t0}
        v_lshl_add_u32 v{vA_uk}, v{vG}, 6, v{vA_uk}
        v_and_b32 v{t1}, 3, v{vL}
        v_lshl_add_u32 v{vA_uk}, v{t1}, 4, v{vA_uk}
        s_lshl_b32 s{sO2}, s{sJ}, 2
        s_add_u32 s{sO2}, s{sO2}, s{sW}
        s_lshl_b32 s{sO2}, s{sO2}, 18
        s_add_u32 s{sO2}, s{sO2}, s{sC}
        """)
        self.uk_split = g.opt.get("uk_early", 2)
        self.uk(range(self.uk_split))

    def uk(self, rows):
        g = self.g
        for r in rows:
            u = 2 * (r & 3) + (r >> 2)
            g(f"buffer_load_dwordx4 {A(self.aUK+4*u,4)}, v{self.vA_uk}, s[16:19], s{sO2} offen {self.NT}")
            g(f"s_addk_i32 s{sO2}, 0x2000")

    def rest(self):
        g, NT, vL, vN, vG = self.g, self.NT, self.vL, self.vN, self.vG
        opt = g.opt
        WUV, WO, W1, B2, GATE, OUT = "s[20:23]", "s[24:27]", "s[12:15]", "s[28:31]", "s[32:35]", "s[36:39]"
        t0, t1, t2, t3 = 4, 5, 6, 7
        vPOI = 8
        vSel = 12
        vX = self.vX
        vF = 160
        vQ = 48
        vR = 56
        vQlo, vQhi = 80, 84
        vAcc = 88
        vGr = 104
        vA_h1, vA_l16 = 110, 111
        vA_qlo, vA_qhi = 112, 113
        vTag = 114
        vQw = 46
        aWQ, aUK = self.aWQ, self.aUK
        sQ = 63
        g.stamp(1)
        selectors(g, vSel, vL, t0, t1, t2)
        g(f"""
        s_lshl_b32 s{sA}, s{sH}, 2
        s_add_u32 s{sA}, s{sA}, s{sJ}
        s_mov_b32 s{sPR}, s{sA}
        s_and_b32 s{sO}, s{sW}, 1
        s_lshl_b32 s{sO}, s{sO}, 4
        v_lshlrev_b32 v{vA_l16}, 4, v{vL}
        """)
        dual = 1 if opt.get("dual", 1) else 0
        g(f"s_mov_b32 s{sPOI}, {g.opt.get('poison', POISON)}")
        for k in range(4): g(f"v_mov_b32 v{vPOI+k}, s{sPOI}")
        g(f"s_cmp_gt_u32 s{sW}, 1")
        g("s_cbranch_scc1 L_A_e2")
        g(f"s_cmp_eq_u32 s{sW}, 1")
        g("s_cbranch_scc1 L_A_e1")
        if dual and not opt.get("b_touch"):
            g(f"""
            s_lshl_b32 s{sTMP}, s{sA}, 11
            s_add_u32 s{sTMP}, s{sTMP}, {H0+LOC}
            buffer_store_dwordx4 {v(vPOI,4)}, v{vA_l16}, {WS}, s{sTMP} offen
            buffer_store_dwordx4 {v(vPOI,4)}, v{vA_l16}, {WS}, s{sTMP} offen offset:1024
            """)
        g("s_branch L_A_e2")
        g.lab("L_A_e1")
        g(f"""
        v_lshlrev_b32 v{t0}, 15, v{vG}
        v_lshl_add_u32 v{t0}, v{vN}, 4, v{t0}
        s_lshl_b32 s{sTMP}, s{sA}, 8
        s_add_u32 s{sTMP}, s{sTMP}, {QB}
        s_mov_b32 exec_hi, 0
        buffer_store_dwordx4 {v(vPOI,4)}, v{t0}, {WS}, s{sTMP} offen sc1
        s_lshl_b32 s{sTMP}, s{sA}, 7
        s_add_u32 s{sTMP}, s{sTMP}, {D1}
        s_mov_b64 exec, 0xff
        buffer_store_dwordx4 {v(vPOI,4)}, v{vA_l16}, {WS}, s{sTMP} offen sc1
        s_mov_b64 exec, -1
        """)
        g.lab("L_A_e2")
        g.fstamp(6)
        g(f"s_waitcnt vmcnt({9+self.uk_split})")
        g.fstamp(7)
        for k in range(5):
            g(f"v_alignbit_b32 v{vX+k}, v{vX+k+1}, v{vX+k}, s{sO}")
        for i in range(9):
            for d in range(4):
                g(f"v_perm_b32 v{vF+4*i+d}, v{vX+(i>>1)}, v{vX+(i>>1)}, v{vSel+4*(i&1)+d}")
        g.fstamp(8)
        self.uk(range(self.uk_split, 8))
        g.fstamp(9)
        for i in range(9):
            g(f"s_waitcnt vmcnt({8-i+8})")
            g(f"{MF} {v(vQ+2,4)}, {v(vF+4*i,4)}, {A(aWQ+4*i,4)}, {'0' if i == 0 else v(vQ+2,4)}")
        g.fstamp(10)
        g(f"s_cmp_eq_u32 s{sW}, 0")
        g("s_cbranch_scc1 L_A_w0a")
        g(f"v_lshl_add_u32 v{t0}, s{sW}, 10, v{vA_l16}")
        g(f"ds_write_b128 v{t0}, {v(vQ+2,4)} offset:{A_QP-1024}")
        g("s_waitcnt lgkmcnt(0)")
        g("s_barrier")
        g(f"s_add_u32 s{sT}, s{sT}, {K0}")
        g(f"s_add_u32 s{sT+1}, s{sT+1}, {K1}")
        g("s_branch L_A_setup")
        g.lab("L_A_w0a")
        finish_tag(g)
        g(f"""
        v_mov_b32 v{vQ}, s{sT}
        v_mov_b32 v{vQ+1}, s{sT+1}
        v_mov_b32 v{vQ+6}, s{sT}
        v_mov_b32 v{vQ+7}, s{sT+1}
        s_barrier
        """)
        for k in range(3):
            g(f"ds_read_b128 {v(vR+4*k,4)}, v{vA_l16} offset:{A_QP+k*1024}")
        g("s_waitcnt lgkmcnt(1)")
        g(f"v_pk_add_f32 {v(vQ+2,2)}, {v(vQ+2,2)}, {v(vR,2)}")
        g(f"v_pk_add_f32 {v(vQ+4,2)}, {v(vQ+4,2)}, {v(vR+2,2)}")
        g("s_waitcnt lgkmcnt(0)")
        g(f"v_pk_add_f32 {v(vR+4,2)}, {v(vR+4,2)}, {v(vR+8,2)}")
        g(f"v_pk_add_f32 {v(vR+6,2)}, {v(vR+6,2)}, {v(vR+10,2)}")
        g(f"v_pk_add_f32 {v(vQ+2,2)}, {v(vQ+2,2)}, {v(vR+4,2)}")
        g(f"v_pk_add_f32 {v(vQ+4,2)}, {v(vQ+4,2)}, {v(vR+6,2)}")
        def h0_st(local):
            g(f"s_lshl_b32 s{sTMP+1}, s{sA}, 11")
            g(f"s_add_u32 s{sTMP+1}, s{sTMP+1}, {H0+(LOC if local else 0)}")
            g(f"buffer_store_dwordx4 {v(vQ,4)}, v{vA_l16}, {WS}, s{sTMP+1} offen {'' if local else 'sc1'}")
            g(f"buffer_store_dwordx4 {v(vQ+4,4)}, v{vA_l16}, {WS}, s{sTMP+1} offen offset:1024 {'' if local else 'sc1'}")
        h0_st(dual)
        g.stamp(2)
        g.lab("L_A_setup")
        g(f"""
        v_bfe_u32 v{t0}, v{vL}, 2, 2
        v_lshlrev_b32 v{vA_h1}, 15, v{vG}
        v_lshl_add_u32 v{vA_h1}, v{t0}, 4, v{vA_h1}
        s_lshl_b32 s{sQ}, s{sA}, 8
        s_lshl_b32 s{sO}, s{sW}, 6
        s_add_u32 s{sQ}, s{sQ}, s{sO}
        s_add_u32 s{sQ}, s{sQ}, {QB}
        v_bfe_u32 v{t0}, v{vL}, 2, 1
        v_lshlrev_b32 v{t0}, 8, v{t0}
        v_lshl_add_u32 v{t0}, v{vG}, 6, v{t0}
        v_and_b32 v{t1}, 3, v{vL}
        v_lshl_add_u32 v{t0}, v{t1}, 4, v{t0}
        v_add_u32 v{t0}, {A_QL}, v{t0}
        v_mov_b32 v{t1}, {A_ZERO}
        v_cmp_gt_u32 vcc, 8, v{vN}
        v_cndmask_b32 v{vA_qlo}, v{t1}, v{t0}, vcc
        v_cndmask_b32 v{vA_qhi}, v{t0}, v{t1}, vcc
        v_and_b32 v{t0}, 1, v{vL}
        v_cmp_eq_u32 s[{sM1}:{sM1+1}], 1, v{t0}
        v_and_b32 v{t0}, 2, v{vL}
        v_cmp_eq_u32 s[{sM2}:{sM2+1}], 2, v{t0}
        v_mov_b32 v{vTag}, s{sT}
        v_mov_b32 v{vTag+1}, s{sT+1}
        """)
        srd(g, 20, 4, 512 * 8192)
        srd(g, 24, 5, 4096 * 1152)
        srd(g, 12, 7, 576 * 9216)
        srd(g, 28, 10, 1152)
        srd(g, 32, 11, 1152)
        srd(g, 36, 12, 2304)
        vUV0, vUV1 = 20, 21
        vP2, vP1 = 22, 116
        def patterns():
            g(f"""
            v_lshlrev_b32 v{t0}, 1, v{vG}
            v_xor_b32 v{t0}, v{t0}, v{vN}
            v_lshlrev_b32 v{vUV0}, 17, v{vG}
            v_lshl_add_u32 v{vUV0}, v{t0}, 4, v{vUV0}
            v_xor_b32 v{vUV1}, 128, v{vUV0}
            """)
            for i in range(10):
                unit_pattern(g, vP2 + i, vL, sW if i == 9 else None, i, 1152, t0, t1)
                g(f"v_mul_u32_u24 v{t1}, {9216-1152}, v{t1}")
                g(f"v_add_u32 v{vP1+i}, v{vP2+i}, v{t1}")
        g(f"s_cmp_eq_u32 s{sW}, 0")
        g("s_cbranch_scc1 L_A_w0b")
        g(f"""
        v_mov_b32 v{t0}, 0
        v_mov_b32 v{t1}, 0
        v_mov_b32 v{t2}, {A_ZERO}
        ds_write_b64 v{t2}, {v(t0,2)}
        ds_write_b64 v{t2}, {v(t0,2)} offset:8
        """)
        patterns()
        g("s_branch L_A_h0wait")
        g.lab("L_A_w0b")
        sib = [0, sO, sO3, sC]
        for k in range(1, 4):
            g(f"s_xor_b32 s{sTMP}, s{sA}, {k}")
            g(f"s_lshl_b32 s{sTMP}, s{sTMP}, 11")
            g(f"s_add_u32 s{sib[k]}, s{sTMP}, {H0+dual*LOC}")
        g(f"""
        v_lshrrev_b32 v{vQw}, 1, v{vG}
        v_lshlrev_b32 v{vQw}, 8, v{vQw}
        v_lshl_add_u32 v{vQw}, v{vN}, 4, v{vQw}
        v_and_b32 v{t1}, 1, v{vG}
        v_lshl_add_u32 v{vQw}, v{t1}, 3, v{vQw}
        s_mov_b32 s{sCNT}, 0
        """)
        def h0loads():
            for k in range(1, 4):
                g(f"buffer_load_dwordx4 {v(vR+8*(k-1),4)}, v{vA_l16}, {WS}, s{sib[k]} offen sc1")
                g(f"buffer_load_dwordx4 {v(vR+8*(k-1)+4,4)}, v{vA_l16}, {WS}, s{sib[k]} offen offset:1024 sc1")
        h0loads()
        patterns()
        g("s_branch L_A_h0chk")
        g.lab("L_A_h0poll")
        if dual:
            g(f"s_cmp_lg_u32 s{sCNT}, 8")
            g("s_cbranch_scc1 L_A_h0ns")
            h0_st(False)
            g.lab("L_A_h0ns")
        dual_next(g, sib[1:])
        h0loads()
        spin_guard(g, "L_A_h0done")
        g.lab("L_A_h0chk")
        g("s_waitcnt vmcnt(0)")
        if opt.get("fst"):
            g(f"s_cmp_lg_u32 s{sCNT}, 0")
            g("s_cbranch_scc1 L_A_fs11")
            g.fstamp(11)
            g.lab("L_A_fs11")
        for k in range(3):
            g(f"v_cmp_ne_u64 vcc, s[{sT}:{sT+1}], {v(vR+8*k,2)}")
            g(f"v_cmp_ne_u64 s[{sM3}:{sM3+1}], s[{sT}:{sT+1}], {v(vR+8*k+6,2)}")
            if k == 0: g(f"s_or_b64 s[{sM4}:{sM4+1}], vcc, s[{sM3}:{sM3+1}]")
            else:
                g(f"s_or_b64 s[{sM4}:{sM4+1}], s[{sM4}:{sM4+1}], vcc")
                g(f"s_or_b64 s[{sM4}:{sM4+1}], s[{sM4}:{sM4+1}], s[{sM3}:{sM3+1}]")
        g("s_cbranch_scc1 L_A_h0poll")
        g.lab("L_A_h0done")
        g("s_waitcnt vmcnt(0)")
        g(f"v_pk_add_f32 {v(vR+2,2)}, {v(vQ+2,2)}, {v(vR+2,2)}")
        g(f"v_pk_add_f32 {v(vR+4,2)}, {v(vQ+4,2)}, {v(vR+4,2)}")
        g(f"v_pk_add_f32 {v(vR+10,2)}, {v(vR+10,2)}, {v(vR+18,2)}")
        g(f"v_pk_add_f32 {v(vR+12,2)}, {v(vR+12,2)}, {v(vR+20,2)}")
        g(f"v_pk_add_f32 {v(vR+2,2)}, {v(vR+2,2)}, {v(vR+10,2)}")
        g(f"v_pk_add_f32 {v(vR+4,2)}, {v(vR+4,2)}, {v(vR+12,2)}")
        g(f"v_cvt_pk_bf16_f32 v{vR}, v{vR+2}, v{vR+3}")
        g(f"v_cvt_pk_bf16_f32 v{vR+1}, v{vR+4}, v{vR+5}")
        g(f"ds_write_b64 v{vQw}, {v(vR,2)} offset:{A_QL}")
        g.lab("L_A_h0wait")
        g("s_waitcnt vmcnt(0) lgkmcnt(0)")
        g.fstamp(12)
        g("s_barrier")
        g.stamp(3)
        g(f"ds_read_b128 {v(vQlo,4)}, v{vA_qlo}")
        g(f"ds_read_b128 {v(vQhi,4)}, v{vA_qhi}")
        if opt.get("d1_pos", 0) == 0: bell(g, vTag, vA_l16, sA, D1, 1, "d1")
        g("s_waitcnt lgkmcnt(0)")
        for t in range(4):
            g(f"{MF} {v(vAcc+4*t,4)}, {v(vQlo,4)}, {A(aUK+8*t,4)}, 0")
        for t in range(4):
            g(f"{MF} {v(vAcc+4*t,4)}, {v(vQhi,4)}, {A(aUK+8*t+4,4)}, {v(vAcc+4*t,4)}")
        if opt.get("d1_pos", 0) == 1: bell(g, vTag, vA_l16, sA, D1, 1, "d1")
        for t in range(4):
            a0 = vAcc + 4 * t
            g(f"v_cndmask_b32 v{a0}, v{a0}, v{a0+1}, s[{sM1}:{sM1+1}]")
            g(f"v_cndmask_b32 v{a0+2}, v{a0+2}, v{a0+3}, s[{sM1}:{sM1+1}]")
            g(f"v_cndmask_b32 v{a0}, v{a0}, v{a0+2}, s[{sM2}:{sM2+1}]")
        for t in range(4):
            a0 = vAcc + 4 * t
            g(f"v_add_f32_dpp v{a0+1}, v{a0}, v{a0} quad_perm:[1,0,3,2] row_mask:0xf bank_mask:0xf")
        for t in range(4):
            a0 = vAcc + 4 * t
            g(f"v_add_f32_dpp v{a0}, v{a0+1}, v{a0+1} quad_perm:[2,3,0,1] row_mask:0xf bank_mask:0xf")
        g(f"v_cvt_pk_bf16_f32 v{vGr}, v{vAcc}, v{vAcc+4}")
        g(f"v_cvt_pk_bf16_f32 v{vGr+1}, v{vAcc+8}, v{vAcc+12}")
        g(f"v_permlane32_swap_b32 v{vGr}, v{vGr+2}")
        g(f"v_permlane32_swap_b32 v{vGr+1}, v{vGr+3}")
        g(f"""
        s_mov_b64 exec, 0x11111111
        buffer_store_dwordx4 {v(vGr,4)}, v{vA_h1}, {WS}, s{sQ} offen sc1
        s_mov_b64 exec, -1
        """)
        if opt.get("d1_pos", 0) == 2: bell(g, vTag, vA_l16, sA, D1, 1, "d1")
        g.stamp(4)
        g(f"""
        s_lshl_b32 s{sO}, s{sJ}, 5
        s_add_u32 s{sO}, s{sO}, s{sW}
        s_lshl_b32 s{sO}, s{sO}, 15
        s_lshl_b32 s{sO3}, s{sH}, 8
        s_add_u32 s{sO}, s{sO}, s{sO3}
        s_lshl_b32 s{sO3}, s{sW}, 13
        """)
        for z in range(8):
            hi, gg = z >> 2, z & 3
            if opt.get("uv_thr"): g(f"s_waitcnt vmcnt({opt['uv_thr']-1})")
            g(f"s_add_u32 m0, s{sO3}, {A_WUV + z*1024}")
            g(f"s_add_u32 s{sTMP}, s{sO}, {(64*hi+gg)*8192}")
            g(f"buffer_load_dwordx4 v{vUV1 if z & 1 else vUV0}, {WUV}, s{sTMP} offen {NT} lds")
        g(f"s_mul_i32 s{sO2}, s{sI}, {36*9216}")
        g(f"s_mul_i32 s{sO3}, s{sXCD}, 1152")
        g(f"s_add_u32 s{sO2}, s{sO2}, s{sO3}")
        unit_load(g, W1, vP1, A_W1, sO2, 9216, "w1", NT, thr=opt.get("a_thr"))
        g(f"s_mul_i32 s{sO2}, s{sA}, {32*1152}")
        unit_load(g, WO, vP2, A_WO, sO2, 1152, "wo", NT, rows36=False, thr=opt.get("a_thr"))
        if dual:
            g(f"s_cmp_lg_u32 s{sW}, 0")
            g("s_cbranch_scc1 L_A_h0s2")
            h0_st(False)
            g.lab("L_A_h0s2")
        vH3, vH3x = 32, 33
        vHBs, vHs = 39, 45
        sH3m, sH3l, sHB, sHH = 63, 47, 61, 62
        h3_addr(g, vH3, vH3x, vL, vN, vG, t0)
        h3_soffs(g, sH3m, sH3l)
        if not opt.get("noreset"): g(f"buffer_store_dwordx4 {v(vPOI,4)}, v{vH3}, {WS}, s{sH3m} offen sc1")
        g(f"""
        v_lshlrev_b32 v{vHBs}, 6, v{vG}
        v_lshl_add_u32 v{vHBs}, v{vN}, 4, v{vHBs}
        s_lshl_b32 s{sHB}, s{sH}, 2
        s_add_u32 s{sHB}, s{sHB}, s{sW}
        s_lshl_b32 s{sHB}, s{sHB}, 2
        s_add_u32 s{sHB}, s{sHB}, s{sJ}
        s_lshl_b32 s{sHB}, s{sHB}, 8
        s_add_u32 s{sHB}, s{sHB}, {HB}
        v_lshrrev_b32 v{t0}, 1, v{vG}
        v_lshlrev_b32 v{vHs}, 10, v{t0}
        v_and_b32 v{t0}, 31, v{vL}
        v_lshl_add_u32 v{vHs}, v{t0}, 4, v{vHs}
        s_lshl_b32 s{sHH}, s{sXCD}, 4
        s_add_u32 s{sHH}, s{sHH}, s{sI}
        s_mul_i32 s{sHH}, s{sHH}, 9216
        s_and_b32 s{sTMP}, s{sW}, 1
        s_lshl_b32 s{sTMP}, s{sTMP}, 9
        s_add_u32 s{sHH}, s{sHH}, s{sTMP}
        s_add_u32 s{sHH}, s{sHH}, {HH}
        """)
        if opt.get("touch", 1):
            g(f"""
            s_mov_b64 exec, 0xffff
            s_add_u32 s{sTMP}, s{sHB}, {dual*LOC}
            buffer_store_dwordx4 {v(vPOI,4)}, v{vA_l16}, {WS}, s{sTMP} offen {"" if dual else "sc1"}
            s_mov_b64 exec, -1
            """)
            bell(g, vPOI, vA_l16, sPR, D3, 3, "d3t")
        g(f"s_cmp_gt_u32 s{sW}, 1")
        g("s_cbranch_scc1 L_A_nor3")
        g(f"buffer_store_dword v{vPOI}, v{vH3x}, {WS}, s{sH3l} offen sc1")
        if opt.get("touch", 1):
            for y in range(5):
                if y == 4: g("s_mov_b32 exec_hi, 0")
                g(f"s_add_u32 s{sTMP}, s{sHH}, {y*2048+dual*LOC}")
                g(f"buffer_store_dwordx4 {v(vPOI,4)}, v{vHs}, {WS}, s{sTMP} offen {'' if dual else 'sc1'}")
            g("s_mov_b64 exec, -1")
        g.lab("L_A_nor3")
        vTU0, vTU1, vTO0, vTO1 = 34, 35, 36, 37
        vCX, vCW, vHBl, vD2, vOg, vWTw, vWTr = 38, 46, 40, 41, 42, 43, 44
        g(f"""
        v_lshrrev_b32 v{t0}, 2, v{vL}
        v_bfe_u32 v{t1}, v{vL}, 1, 1
        v_lshl_add_u32 v{t1}, s{sW}, 2, v{t1}
        v_and_b32 v{t2}, 7, v{t0}
        v_lshlrev_b32 v{t2}, 1, v{t2}
        v_xor_b32 v{t1}, v{t1}, v{t2}
        v_lshlrev_b32 v{vTU0}, 8, v{t0}
        v_lshl_add_u32 v{vTU0}, v{t1}, 4, v{vTU0}
        v_and_b32 v{t1}, 1, v{vL}
        v_lshl_add_u32 v{vTU0}, v{t1}, 3, v{vTU0}
        v_xor_b32 v{vTU1}, 32, v{vTU0}
        """)
        assert A_WUV == 0
        vK0, vK1 = 22, 23
        tr_pair_bases(g, vTO0, vTO1, vK0, vK1, vL, A_WO, t0, t1, t2)
        g(f"""
        v_and_b32 v{t0}, 1, v{vL}
        v_lshlrev_b32 v{vCX}, 8, v{t0}
        v_lshl_add_u32 v{vCX}, v{vG}, 4, v{vCX}
        v_and_b32 v{t0}, 1, v{vG}
        v_lshlrev_b32 v{vCW}, 3, v{t0}
        v_lshl_add_u32 v{vCW}, v{vN}, 4, v{vCW}
        v_lshl_add_u32 v{vCW}, s{sW}, 8, v{vCW}
        v_and_b32 v{t0}, 3, v{vL}
        v_lshlrev_b32 v{vHBl}, 8, v{t0}
        v_lshl_add_u32 v{vHBl}, v{vG}, 6, v{vHBl}
        v_bfe_u32 v{t0}, v{vL}, 2, 1
        v_lshl_add_u32 v{vHBl}, v{t0}, 4, v{vHBl}
        v_and_b32 v{t0}, 31, v{vL}
        v_lshlrev_b32 v{vD2}, 8, v{t0}
        v_lshlrev_b32 v{vOg}, 11, v{vG}
        v_lshl_add_u32 v{vOg}, v{vN}, 4, v{vOg}
        v_lshlrev_b32 v{vWTw}, 1, v{t0}
        v_lshl_add_u32 v{vWTw}, s{sW}, 6, v{vWTw}
        v_lshlrev_b32 v{vWTr}, 4, v{vG}
        v_lshl_add_u32 v{vWTr}, s{sW}, 6, v{vWTr}
        v_cmp_gt_u32 s[{sM1}:{sM1+1}], 8, v{vN}
        """)
        vGx, vGw, vB2 = 48, 60, 72
        vOA, vFB = 73, 74
        vXr = 48
        vXA = 128
        g(f"v_mov_b32 v{vOA}, 0")
        g(f"s_cmp_gt_u32 s{sW}, 1")
        g("s_cbranch_scc1 L_A_xfrag")
        g(f"s_cmp_lg_u32 s{sW}, 0")
        g("s_cbranch_scc1 L_A_nogate")
        g(f"s_cmp_ge_u32 s{sA}, 36")
        g("s_cbranch_scc1 L_A_nogate")
        g(f"""
        v_and_b32 v{t0}, 31, v{vL}
        v_mul_u32_u24 v{t1}, 36, v{t0}
        v_lshrrev_b32 v{t2}, 5, v{vL}
        v_mul_u32_u24 v{t2}, 1152, v{t2}
        v_add_u32 v{t2}, v{t2}, v{t1}
        buffer_load_dwordx4 {v(vGx,4)}, v{t2}, {X}, 0 offen
        buffer_load_dwordx4 {v(vGx+4,4)}, v{t2}, {X}, 0 offen offset:16
        buffer_load_dword v{vGx+8}, v{t2}, {X}, 0 offen offset:32
        buffer_load_dwordx4 {v(vGw,4)}, v{t1}, {GATE}, 0 offen
        buffer_load_dwordx4 {v(vGw+4,4)}, v{t1}, {GATE}, 0 offen offset:16
        buffer_load_dword v{vGw+8}, v{t1}, {GATE}, 0 offen offset:32
        s_cmp_ge_u32 s{sA}, 32
        s_cbranch_scc1 L_A_uleft
        s_lshr_b32 s{sO}, s{sA}, 2
        s_lshl_b32 s{sO}, s{sO}, 4
        s_and_b32 s{sO3}, s{sA}, 1
        s_lshl_b32 s{sO3}, s{sO3}, 3
        s_add_u32 s{sO}, s{sO}, s{sO3}
        v_and_b32 v{t1}, 3, v{t0}
        v_lshlrev_b32 v{t1}, 7, v{t1}
        v_lshrrev_b32 v{t2}, 2, v{t0}
        v_add3_u32 v{t1}, v{t1}, v{t2}, s{sO}
        s_bfe_u32 s{sO3}, s{sA}, 0x10001
        v_mov_b32 v{vFB}, s{sO3}
        s_branch L_A_ujoin
        """)
        g.lab("L_A_uleft")
        g(f"""
        s_lshl_b32 s{sO}, s{sA}, 4
        v_and_b32 v{t1}, 15, v{t0}
        v_add_u32 v{t1}, s{sO}, v{t1}
        v_lshrrev_b32 v{vFB}, 4, v{t0}
        """)
        g.lab("L_A_ujoin")
        g(f"""
        v_lshlrev_b32 v{t1}, 1, v{t1}
        buffer_load_ushort v{vB2}, v{t1}, {B2}, 0 offen
        v_mul_u32_u24 v{vOA}, 1152, v{vFB}
        v_add_u32 v{vOA}, v{vOA}, v{t1}
        s_branch L_A_nogate
        """)
        g.lab("L_A_xfrag")
        g(f"""
        v_and_b32 v{t0}, 1, v{vL}
        v_mul_u32_u24 v{t0}, 1152, v{t0}
        s_mul_i32 s{sO}, s{sI}, 72
        buffer_load_dwordx2 {v(vXr+4,2)}, v{t0}, {X}, s{sO} offen offset:64
        v_lshl_add_u32 v{t0}, v{vG}, 3, v{t0}
        buffer_load_dwordx2 {v(vXr,2)}, v{t0}, {X}, s{sO} offen
        buffer_load_dwordx2 {v(vXr+2,2)}, v{t0}, {X}, s{sO} offen offset:32
        """)
        g.lab("L_A_nogate")
        g("s_waitcnt vmcnt(0)")
        g("s_barrier")
        g.stamp(5)
        aUV, aWO, aW1 = 0, 32, 80
        def own_frags(npair):
            for tau in range(2):
                for ks in range(4):
                    for hi in range(2):
                        g(f"ds_read_b64_tr_b16 {A(aUV+(tau*4+ks)*4+2*hi,2)}, v{vTU1 if tau else vTU0} offset:{ks*8192+hi*4096}")
            for t in range(npair):
                for x in range(2):
                    for hi in range(2):
                        g(f"ds_read_b64_tr_b16 {A(aWO+(t*2+x)*4+2*hi,2)}, v{vTO1 if x else vTO0} offset:{hi*16*1152+t*256}")
        g(f"s_cmp_lt_u32 s{sW}, 2")
        g("s_cbranch_scc1 L_A_comb")
        dW = A_W1 - A_WO - 128
        vH = 76
        def w1rd(s):
            t, x = s >> 1, s & 1
            g(f"ds_read_b64_tr_b16 {A(aW1+6*s,2)}, v{vTO1 if x else vTO0} offset:{dW+t*128}")
            g(f"ds_read_b64_tr_b16 {A(aW1+6*s+2,2)}, v{vTO1 if x else vTO0} offset:{dW+16*1152+t*128}")
        def w1rk(s):
            t, x = s >> 1, s & 1
            g(f"ds_read_b64_tr_b16 {A(aW1+6*s+4,2)}, v{vK1 if x else vK0} offset:{dW+t*128}")
        def w1mf(s):
            g(f"{MF} {v(vH+4*(s>>2),4)}, {v(vXA+6*(s&3),4)}, {A(aW1+6*s,4)}, {'0' if s & 3 == 0 else v(vH+4*(s>>2),4)}")
        for s in range(6): w1rd(s)
        g(f"v_lshrrev_b32 v{t0}, 1, v{vN}")
        g(f"v_lshrrev_b32 v{t1}, 1, v{vL}")
        for z in range(4):
            g(f"v_cmp_eq_u32 vcc, {2*z}, v{t0}")
            g(f"v_cmp_eq_u32 s[{sM3}:{sM3+1}], {2*z}, v{t1}")
            for d in range(4):
                g(f"v_cndmask_b32 v{vXA+6*z+d}, 0, v{vXr+d}, vcc")
            for d in range(4, 6):
                g(f"v_cndmask_b32 v{vXA+6*z+d}, 0, v{vXr+d}, s[{sM3}:{sM3+1}]")
        for s in range(6, 18):
            w1rd(s)
            g("s_waitcnt lgkmcnt(12)")
            w1mf(s - 6)
        for k in range(6):
            for s in range(3 * k, 3 * k + 3): w1rk(s)
            g(f"s_waitcnt lgkmcnt({min(15, 2*(5-k)+3*(k+1))})")
            w1mf(12 + k)
        for s in range(18):
            g(f"s_waitcnt lgkmcnt({min(15, 17-s)})")
            g(f"{MF16} {v(vH+4*(s>>2),4)}, {v(vXA+6*(s&3)+4,2)}, {A(aW1+6*s+4,2)}, {v(vH+4*(s>>2),4)}")
        for y in range(5):
            g(f"v_mov_b32 v{vH+4*y+2}, s{sT}")
            g(f"v_mov_b32 v{vH+4*y+3}, s{sT+1}")
            if y == 4: g("s_mov_b32 exec_hi, 0")
            if dual and opt.get("hh_dual", 1):
                g(f"s_add_u32 s{sTMP}, s{sHH}, {LOC}")
                g(f"buffer_store_dwordx4 {v(vH+4*y,4)}, v{vHs}, {WS}, s{sTMP} offen")
            g(f"buffer_store_dwordx4 {v(vH+4*y,4)}, v{vHs}, {WS}, s{sHH} offen sc1")
            if y < 4: g(f"s_addk_i32 s{sHH}, 0x800")
        g("s_mov_b64 exec, -1")
        g.stamp(6)
        own_frags(4)
        g("s_branch L_A_ctxwait")
        g.lab("L_A_comb")
        vDB = 76
        vO = 80
        vFr = 116
        vWt = 148
        vD = 152
        vLs = 156
        g(f"""
        s_lshr_b32 s{sO}, s{sH}, 4
        s_lshl_b32 s{sO}, s{sO}, 1
        s_add_u32 s{sO}, s{sO}, s{sW}
        s_lshl_b32 s{sO}, s{sO}, 13
        s_and_b32 s{sO3}, s{sH}, 15
        s_lshl_b32 s{sO3}, s{sO3}, 4
        s_add_u32 s{sO}, s{sO}, s{sO3}
        s_add_u32 s{sO}, s{sO}, {D2}
        buffer_load_dwordx4 {v(vDB,4)}, v{vD2}, {WS}, s{sO} offen sc1
        s_mul_i32 s{sO3}, s{sA}, {OSTR}
        s_lshl_b32 s{sTMP}, s{sW}, 13
        s_add_u32 s{sO3}, s{sO3}, s{sTMP}
        s_add_u32 s{sO3}, s{sO3}, {OB}
        s_mov_b32 s{sCNT}, 0
        """)
        own_frags(5)
        g(f"v_mov_b32 v{t0}, 0")
        for k in range(9):
            g(f"v_dot2_f32_bf16 v{t0}, v{vGx+k}, v{vGw+k}, v{t0}")
        g("s_nop 2")
        for r in (8, 4, 2, 1):
            g(f"v_add_f32_dpp v{t0}, v{t0}, v{t0} row_ror:{r} row_mask:0xf bank_mask:0xf")
        g(f"""
        v_mov_b32 v{t1}, v{t0}
        v_permlane16_swap_b32 v{t0}, v{t1}
        v_add_f32 v{t0}, v{t0}, v{t1}
        v_mul_f32 v{t0}, {hex(fbits(-math.log2(math.e)))}, v{t0}
        v_exp_f32 v{t0}, v{t0}
        v_add_f32 v{t0}, 1.0, v{t0}
        v_rcp_f32 v{t0}, v{t0}
        v_cmp_eq_u32 vcc, 1, v{vFB}
        v_mov_b32 v{t1}, v{t0}
        v_permlane32_swap_b32 v{t0}, v{t1}
        v_cndmask_b32 v{vFB}, v{t0}, v{t1}, vcc
        v_lshlrev_b32 v{vB2}, 16, v{vB2}
        s_branch L_A_d2chk
        """)
        g.lab("L_A_d2poll")
        g(f"buffer_load_dwordx4 {v(vDB,4)}, v{vD2}, {WS}, s{sO} offen sc1")
        spin_guard(g, "L_A_d2done")
        g.lab("L_A_d2chk")
        g("s_waitcnt vmcnt(0)")
        g(f"v_cmp_ne_u64 vcc, s[{sT}:{sT+1}], {v(vDB+2,2)}")
        g("s_cbranch_vccnz L_A_d2poll")
        g.lab("L_A_d2done")
        g("s_waitcnt vmcnt(0)")
        g.stamp(6)
        def ogather():
            for u in range(8):
                g(f"buffer_load_dwordx4 {v(vO+4*u,4)}, v{vOg}, {WS}, s{sO3} offen offset:{u*256} sc1")
        early = opt.get("o_early", 1)
        if early: ogather()
        g(f"v_max_f32_dpp v{t0}, v{vDB}, v{vDB} row_ror:8 row_mask:0xf bank_mask:0xf")
        for r in (4, 2, 1):
            g(f"v_max_f32_dpp v{t0}, v{t0}, v{t0} row_ror:{r} row_mask:0xf bank_mask:0xf")
        g(f"""
        v_mov_b32 v{t1}, v{t0}
        v_permlane16_swap_b32 v{t0}, v{t1}
        v_max_f32 v{t0}, v{t0}, v{t1}
        v_sub_f32 v{t0}, v{vDB}, v{t0}
        v_exp_f32 v{t0}, v{t0}
        v_cvt_pk_bf16_f32 v{t0}, v{t0}, v{t0}
        ds_write_b16 v{vWTw}, v{t0} offset:{A_WT}
        v_and_b32 v{t0}, 0xffff0000, v{t0}
        v_mul_f32 v{vLs}, v{t0}, v{vDB+1}
        s_waitcnt lgkmcnt(0)
        ds_read_b128 {v(vWt,4)}, v{vWTr} offset:{A_WT}
        """)
        for r in (8, 4, 2, 1):
            g(f"v_add_f32_dpp v{vLs}, v{vLs}, v{vLs} row_ror:{r} row_mask:0xf bank_mask:0xf")
        g(f"""
        v_mov_b32 v{t1}, v{vLs}
        v_permlane16_swap_b32 v{vLs}, v{t1}
        v_add_f32 v{vLs}, v{vLs}, v{t1}
        v_rcp_f32 v{vLs}, v{vLs}
        s_waitcnt lgkmcnt(0)
        """)
        for u in range(8):
            for d in range(4):
                g(f"v_perm_b32 v{vFr+4*u+d}, v{vWt+(u>>1)}, v{vWt+(u>>1)}, v{vSel+4*(u&1)+d}")
        g(f"s_mov_b32 s{sCNT}, 0")
        if early: g("s_branch L_A_ocomb")
        g.lab("L_A_oretry")
        ogather()
        g.lab("L_A_ocomb")
        for u in range(8):
            g(f"s_waitcnt vmcnt({7-u})")
            g(f"{MF} {v(vD,4)}, {v(vFr+4*u,4)}, {v(vO+4*u,4)}, {'0' if u == 0 else v(vD,4)}")
        g(f"v_cmp_u_f32 vcc, v{vD}, v{vD}")
        g("s_cbranch_vccnz L_A_oslow")
        g.lab("L_A_ook")
        if opt.get("stamps"): g(f"s_mov_b32 s100, s{sCNT}")
        for r in range(4):
            g(f"v_mul_f32 v{vD+r}, v{vLs}, v{vD+r}")
        g(f"v_cvt_pk_bf16_f32 v{vD}, v{vD}, v{vD+1}")
        g(f"v_cvt_pk_bf16_f32 v{vD+1}, v{vD+2}, v{vD+3}")
        g(f"ds_write_b64 v{vCW}, {v(vD,2)} offset:{A_CTXC}")
        g.lab("L_A_ctxwait")
        g("s_waitcnt lgkmcnt(0)")
        g("s_barrier")
        g.stamp(7)
        vC = 80
        vU = 96
        vG1, vG2 = 104, 108
        vAe, vAo = 116, 120
        vY = 124
        for ks in range(4):
            g(f"ds_read_b128 {v(vC+4*ks,4)}, v{vCX} offset:{A_CTXC+ks*64}")
        g(f"s_lshl_b32 s{sO3}, s{sA}, 10")
        g(f"s_add_u32 s{sO3}, s{sO3}, {HB+dual*LOC}")
        g(f"s_add_u32 s{sO}, s{sHB}, {LOC}")
        for ks in range(4):
            g(f"s_waitcnt lgkmcnt({3-ks})")
            for tau in range(2):
                g(f"{MF} {v(vU+4*tau,4)}, {A(aUV+(tau*4+ks)*4,4)}, {v(vC+4*ks,4)}, {'0' if ks == 0 else v(vU+4*tau,4)}")
        g(f"""
        v_cvt_pk_bf16_f32 v{vU}, v{vU}, v{vU+1}
        v_cvt_pk_bf16_f32 v{vU+1}, v{vU+2}, v{vU+3}
        v_cvt_pk_bf16_f32 v{vU+4}, v{vU+4}, v{vU+5}
        v_cvt_pk_bf16_f32 v{vU+5}, v{vU+6}, v{vU+7}
        v_cndmask_b32 v{vTag-2}, v{vU}, v{vU+4}, s[{sM2}:{sM2+1}]
        v_cndmask_b32 v{vTag-1}, v{vU+1}, v{vU+5}, s[{sM2}:{sM2+1}]
        s_mov_b32 exec_lo, 0x000f000f
        s_mov_b32 exec_hi, 0x000f000f
        """)
        if dual: g(f"buffer_store_dwordx4 {v(vTag-2,4)}, v{vHBs}, {WS}, s{sO} offen")
        else: g(f"buffer_store_dwordx4 {v(vTag-2,4)}, v{vHBs}, {WS}, s{sHB} offen sc1")
        def hb_st():
            g("s_mov_b32 exec_lo, 0x000f000f")
            g("s_mov_b32 exec_hi, 0x000f000f")
            g(f"buffer_store_dwordx4 {v(vTag-2,4)}, v{vHBs}, {WS}, s{sHB} offen sc1")
            g("s_mov_b64 exec, -1")
        g(f"""
        s_mov_b64 exec, -1
        s_mov_b32 s{sCNT}, 0
        """)
        g.stamp(8)
        g.lab("L_A_hbpoll")
        if dual:
            g(f"s_cmp_lg_u32 s{sCNT}, 8")
            g("s_cbranch_scc1 L_A_hbns")
            hb_st()
            g.lab("L_A_hbns")
        dual_next(g, [sO3])
        g(f"buffer_load_dwordx4 {v(vG1,4)}, v{vHBl}, {WS}, s{sO3} offen sc1")
        g(f"buffer_load_dwordx4 {v(vG2,4)}, v{vHBl}, {WS}, s{sO3} offen offset:32 sc1")
        spin_guard(g, "L_A_hbdone")
        g("s_waitcnt vmcnt(0)")
        g(f"v_cmp_ne_u64 vcc, s[{sT}:{sT+1}], {v(vG1+2,2)}")
        g(f"v_cmp_ne_u64 s[{sM3}:{sM3+1}], s[{sT}:{sT+1}], {v(vG2+2,2)}")
        g(f"s_or_b64 vcc, vcc, s[{sM3}:{sM3+1}]")
        g("s_cbranch_scc1 L_A_hbpoll")
        g.lab("L_A_hbdone")
        g("s_waitcnt vmcnt(0)")
        g.stamp(9)
        bell(g, vTag, vD2, sPR, D3, 3, "d3a")
        src = [vG1, vG1 + 1, vG2, vG2 + 1]
        for d in range(4):
            g(f"v_cndmask_b32 v{vAe+d}, 0, v{src[d]}, s[{sM1}:{sM1+1}]")
        for d in range(4):
            g(f"v_cndmask_b32 v{vAo+d}, v{src[d]}, 0, s[{sM1}:{sM1+1}]")
        for t in range(4):
            g(f"{MF} {v(vY+4*t,4)}, {v(vAe,4)}, {A(aWO+(t*2)*4,4)}, 0")
        for t in range(4):
            g(f"{MF} {v(vY+4*t,4)}, {v(vAo,4)}, {A(aWO+(t*2+1)*4,4)}, {v(vY+4*t,4)}")
        g(f"s_cmp_gt_u32 s{sW}, 1")
        g("s_cbranch_scc1 L_A_no5")
        g(f"{MF} {v(vY+16,4)}, {v(vAe,4)}, {A(aWO+32,4)}, 0")
        g(f"{MF} {v(vY+16,4)}, {v(vAo,4)}, {A(aWO+36,4)}, {v(vY+16,4)}")
        g.lab("L_A_no5")
        for t in range(4):
            g(f"v_pk_add_f32 {v(vY+4*t,2)}, {v(vY+4*t,2)}, {v(vY+4*t+2,2)}")
        for t in range(4):
            g(f"v_add_f32 v{vAe+t}, v{vY+4*t}, v{vY+4*t+1}")
        g(f"buffer_store_dwordx4 {v(vAe,4)}, v{vH3}, {WS}, s{sH3m} offen sc1")
        g(f"s_cmp_gt_u32 s{sW}, 1")
        g("s_cbranch_scc1 L_A_no5b")
        g(f"v_pk_add_f32 {v(vY+16,2)}, {v(vY+16,2)}, {v(vY+18,2)}")
        g(f"v_add_f32 v{vY+16}, v{vY+16}, v{vY+17}")
        g(f"buffer_store_dword v{vY+16}, v{vH3x}, {WS}, s{sH3l} offen sc1")
        g.lab("L_A_no5b")
        if dual: hb_st()
        g.stamp(10)
        g(f"s_cmp_ge_u32 s{sA}, 36")
        g("s_cbranch_scc1 L_A_exit")
        vRd = 80
        vDa, vRw = 96, 97
        order = opt.get("red_order", (1, 0))
        g(f"""
        v_and_b32 v{t0}, 31, v{vL}
        v_lshlrev_b32 v{vDa}, 7, v{t0}
        v_lshlrev_b32 v{vA_l16}, 4, v{vL}
        v_and_b32 v{t0}, 7, v{vL}
        v_lshlrev_b32 v{vRw}, 6, v{t0}
        v_lshrrev_b32 v{t0}, 5, v{vL}
        v_lshl_add_u32 v{vRw}, v{t0}, 4, v{vRw}
        v_bfe_u32 v{t0}, v{vL}, 4, 1
        v_lshl_add_u32 v{vRw}, v{t0}, 5, v{vRw}
        v_lshl_add_u32 v{vRw}, s{sW}, 2, v{vRw}
        s_lshl_b32 s{sO2}, s{sW}, 12
        s_mul_i32 s{sO3}, s{sA}, {USTR}
        s_add_u32 s{sO3}, s{sO3}, s{sO2}
        """)
        for part in order:
            P = f"L_A_r{part}"
            g(f"s_add_u32 s{sO}, s{sO2}, {D3 + part*16384}")
            g(f"s_mov_b32 s{sCNT}, 0")
            g.lab(P + "poll")
            g(f"buffer_load_dwordx2 {v(t0,2)}, v{vDa}, {WS}, s{sO} offen sc1")
            spin_guard(g, P + "go")
            g("s_waitcnt vmcnt(0)")
            g(f"v_cmp_ne_u64 vcc, s[{sT}:{sT+1}], {v(t0,2)}")
            g(f"s_cbranch_vccnz {P}poll")
            g.lab(P + "go")
            g(f"s_add_u32 s{sO}, s{sO3}, {H3 + part*16384}")
            g(f"s_mov_b32 s{sCNT}, 0")
            g.lab(P + "get")
            for u in range(4):
                g(f"buffer_load_dwordx4 {v(vRd+4*u,4)}, v{vA_l16}, {WS}, s{sO} offen offset:{u*1024} sc1")
            g("s_waitcnt vmcnt(2)")
            g(f"v_pk_add_f32 {v(vY,2)}, {v(vRd,2)}, {v(vRd+4,2)}")
            g(f"v_pk_add_f32 {v(vY+2,2)}, {v(vRd+2,2)}, {v(vRd+6,2)}")
            g("s_waitcnt vmcnt(0)")
            g(f"v_pk_add_f32 {v(vY+4,2)}, {v(vRd+8,2)}, {v(vRd+12,2)}")
            g(f"v_pk_add_f32 {v(vY+6,2)}, {v(vRd+10,2)}, {v(vRd+14,2)}")
            g(f"v_pk_add_f32 {v(vY,2)}, {v(vY,2)}, {v(vY+4,2)}")
            g(f"v_pk_add_f32 {v(vY+2,2)}, {v(vY+2,2)}, {v(vY+6,2)}")
            g(f"v_permlane32_swap_b32 v{vY}, v{vY+1}")
            g(f"v_permlane32_swap_b32 v{vY+2}, v{vY+3}")
            g(f"v_add_f32 v{vY}, v{vY}, v{vY+1}")
            g(f"v_add_f32 v{vY+2}, v{vY+2}, v{vY+3}")
            g(f"v_permlane16_swap_b32 v{vY}, v{vY+2}")
            g(f"v_add_f32 v{vY}, v{vY}, v{vY+2}")
            g(f"v_cmp_u_f32 vcc, v{vY}, v{vY}")
            g(f"s_cbranch_vccnz {P}slow")
            g.lab(P + "ok")
            g(f"v_add_f32_dpp v{vY}, v{vY}, v{vY} row_ror:8 row_mask:0xf bank_mask:0xf")
            g(f"ds_write_b32 v{vRw}, v{vY} offset:{A_RED + part*512}")
            g.stamp(11 + order.index(part))
        g("s_waitcnt lgkmcnt(0)")
        g("s_barrier")
        g(f"s_cmp_lg_u32 s{sW}, 0")
        g("s_cbranch_scc1 L_A_exit")
        g(f"""
        s_mov_b32 exec_hi, 0
        ds_read_b128 {v(vRd,4)}, v{vA_l16} offset:{A_RED}
        ds_read_b128 {v(vRd+4,4)}, v{vA_l16} offset:{A_RED+512}
        v_sub_f32 v{t0}, 1.0, v{vFB}
        s_waitcnt lgkmcnt(0)
        v_pk_add_f32 {v(vRd,2)}, {v(vRd,2)}, {v(vRd+2,2)}
        v_pk_add_f32 {v(vRd+4,2)}, {v(vRd+4,2)}, {v(vRd+6,2)}
        v_add_f32 v{vRd}, v{vRd}, v{vRd+1}
        v_add_f32 v{vRd+4}, v{vRd+4}, v{vRd+5}
        v_add_f32 v{vRd+4}, v{vRd+4}, v{vB2}
        v_mul_f32 v{vRd+4}, v{t0}, v{vRd+4}
        v_fma_f32 v{vRd}, v{vFB}, v{vRd}, v{vRd+4}
        v_cvt_pk_bf16_f32 v{vRd}, v{vRd}, v{vRd}
        buffer_store_short v{vRd}, v{vOA}, {OUT}, 0 offen
        s_cmp_lg_u32 s{sA}, 0
        s_cbranch_scc1 L_A_exit
        s_mov_b64 exec, 1
        buffer_store_dwordx2 {v(vTag,2)}, v{vA_l16}, {WS}, 0 offen offset:{EPOCH} sc1
        """)
        if opt.get("probe") is not None:
            i = opt["probe"]
            g.stamp(13)
            g("s_waitcnt lgkmcnt(0)")
            g(f"s_sub_u32 s{sO}, s{70+2*i}, s70")
            g(f"s_lshl_b32 s{sO}, s{sO}, 2")
            g(f"s_add_u32 s{sO}, s{sO}, 4000")
            g.lab("L_probe")
            g(f"s_memrealtime s[{sTMP}:{sTMP+1}]")
            g("s_waitcnt lgkmcnt(0)")
            g(f"s_sub_u32 s{sTMP}, s{sTMP}, s70")
            g(f"s_cmp_lt_u32 s{sTMP}, s{sO}")
            g("s_cbranch_scc1 L_probe")
            g("s_endpgm")
        g.lab("L_A_exit")
        g.stamp(13)
        dump_stamps(g, 16, 160)
        g("s_endpgm")
        g.lab("L_A_oslow")
        spin_guard(g, "L_A_ook")
        g(f"s_mov_b64 s[{sM4}:{sM4+1}], 0")
        for u in range(8):
            g(f"v_cmp_eq_u32 vcc, s{sPOI}, v{vO+4*u}")
            g(f"s_or_b64 s[{sM4}:{sM4+1}], s[{sM4}:{sM4+1}], vcc")
        g("s_cbranch_scc1 L_A_oretry")
        g("s_branch L_A_ook")
        for part in order:
            P = f"L_A_r{part}"
            g.lab(P + "slow")
            spin_guard(g, P + "ok")
            g(f"s_mov_b64 s[{sM4}:{sM4+1}], 0")
            for k in range(16):
                g(f"v_cmp_eq_u32 vcc, s{sPOI}, v{vRd+k}")
                g(f"s_or_b64 s[{sM4}:{sM4+1}], s[{sM4}:{sM4+1}], vcc")
            g(f"s_cbranch_scc1 {P}get")
            g(f"s_branch {P}ok")

class RoleB:
    def __init__(self, g, NT, vL, vN, vG):
        self.g, self.NT, self.vL, self.vN, self.vG = g, NT, vL, vN, vG
    vL16 = 12

    def issue(self):
        g, NT, vL = self.g, self.NT, self.vL
        CKV = "s[28:31]"
        t0 = 4
        srd_tail(g, 28, 2 * 4096 * 1024)
        g(f"""
        s_and_b32 s{sB}, s{sXCD}, 1
        s_lshr_b32 s{sMSG}, s{sI}, 1
        s_lshl_b32 s{sMSG}, s{sMSG}, 2
        s_lshr_b32 s{sO}, s{sXCD}, 1
        s_add_u32 s{sMSG}, s{sMSG}, s{sO}
        s_lshl_b32 s{sO}, s{sB}, 5
        s_add_u32 s{sMSG}, s{sMSG}, s{sO}
        v_lshlrev_b32 v{self.vL16}, 4, v{vL}
        s_waitcnt lgkmcnt(0)
        """)
        load_tag(g)
        if g.opt.get("b_touch"):
            g(f"""
            s_lshr_b32 s{sO}, s{sI}, 2
            s_lshl_b32 s{sO}, s{sO}, 3
            s_add_u32 s{sO}, s{sO}, s{sXCD}
            s_lshl_b32 s{sO}, s{sO}, 2
            s_and_b32 s{sO2}, s{sI}, 3
            s_add_u32 s{sO}, s{sO}, s{sO2}
            s_lshl_b32 s{sO2}, s{sO}, 11
            s_add_u32 s{sO2}, s{sO2}, {H0+LOC}
            s_lshl_b32 s{sO}, s{sO}, 10
            s_add_u32 s{sO}, s{sO}, {HB+LOC}
            s_cmp_eq_u32 s{sW}, 1
            s_cselect_b32 s{sO}, s{sO}, s{sO2}
            v_lshlrev_b32 v4, 7, v{vL}
            s_mov_b64 exec, 0xffff
            buffer_load_dword v254, v4, {WS}, s{sO} offen
            s_mov_b64 exec, -1
            """)
        if g.opt.get("b_reset_first", 1):
            self.resets()
        g(f"""
        s_lshl_b32 s{sO}, s{sMSG}, 2
        s_add_u32 s{sO}, s{sO}, s{sW}
        s_lshl_b32 s{sO}, s{sO}, 15
        s_lshl_b32 m0, s{sW}, 15
        s_add_u32 m0, m0, {B_CKV}
        s_mov_b32 s{sCNT}, 0
        """)
        if g.opt.get("b_wait", 1): g("s_waitcnt vmcnt(0)")
        if g.opt.get("b_sleep"): g(f"s_sleep {g.opt['b_sleep']}")
        g.stamp(8)
        g.lab("L_B_ckv")
        thr = g.opt.get("ckv_thr")
        for k in range(16):
            f = f16sw(k)
            tmp = t0 + (k & 1)
            g(f"v_xor_b32 v{tmp}, {f*16}, v{self.vL16}")
            if thr is not None: g(f"s_waitcnt vmcnt({thr-1})")
            g(f"buffer_load_dwordx4 v{tmp}, {CKV}, s{sO} offen offset:{(k%4)*1024} {NT} lds")
            if k % 4 == 3:
                g(f"s_addk_i32 s{sO}, 0x1000")
                g(f"s_add_u32 m0, m0, 0x1000")
        g(f"s_add_u32 s{sCNT}, s{sCNT}, 1")
        g(f"s_cmp_lt_u32 s{sCNT}, 2")
        g("s_cbranch_scc1 L_B_ckv")

    def resets(self):
        g, vL, vN, vG = self.g, self.vL, self.vN, self.vG
        t0 = 4
        vPOI, vL16, vOa, vH3, vH3x = 8, self.vL16, 13, 14, 15
        sOo, sH3m, sH3l = 61, 62, 63
        g(f"""
        s_and_b32 s{sHG}, s{sI}, 1
        s_lshl_b32 s{sU2}, s{sXCD}, 4
        s_add_u32 s{sU2}, s{sU2}, s{sI}
        s_add_u32 s{sPR}, s{sU2}, 128
        s_mov_b32 s{sPOI}, {g.opt.get('poison', POISON)}
        """)
        for k in range(4): g(f"v_mov_b32 v{vPOI+k}, s{sPOI}")
        g(f"""
        v_mul_u32_u24 v{vOa}, {16*OSTR}, v{vG}
        v_lshl_add_u32 v{vOa}, v{vN}, 4, v{vOa}
        s_lshl_b32 s{sOo}, s{sHG}, 6
        s_add_u32 s{sOo}, s{sOo}, s{sW}
        s_mul_i32 s{sOo}, s{sOo}, {OSTR}
        s_lshl_b32 s{sO}, s{sMSG}, 8
        s_add_u32 s{sOo}, s{sOo}, s{sO}
        s_add_u32 s{sOo}, s{sOo}, {OB}
        """)
        for r in range(4):
            g(f"s_add_u32 s{sO}, s{sOo}, {4*r*OSTR}")
            if not g.opt.get("noreset"): g(f"buffer_store_dwordx4 {v(vPOI,4)}, v{vOa}, {WS}, s{sO} offen sc1")
        h3_addr(g, vH3, vH3x, vL, vN, vG, t0)
        h3_soffs(g, sH3m, sH3l)
        if not g.opt.get("noreset"): g(f"buffer_store_dwordx4 {v(vPOI,4)}, v{vH3}, {WS}, s{sH3m} offen sc1")
        sD2 = 59
        g(f"""
        s_lshl_b32 s{sD2}, s{sHG}, 6
        s_add_u32 s{sD2}, s{sD2}, s{sMSG}
        s_lshl_b32 s{sD2}, s{sD2}, 8
        s_add_u32 s{sD2}, s{sD2}, {D2}
        """)
        g(f"s_cmp_gt_u32 s{sW}, 1")
        g("s_cbranch_scc1 L_B_nor3")
        g(f"buffer_store_dword v{vPOI}, v{vH3x}, {WS}, s{sH3l} offen sc1")
        g("s_branch L_B_r3j")
        g.lab("L_B_nor3")
        g(f"""
        s_lshl_b32 s{sTMP}, s{sPR}, 7
        s_add_u32 s{sTMP}, s{sTMP}, {D3}
        s_cmp_eq_u32 s{sW}, 2
        s_cselect_b32 s{sTMP}, s{sD2}, s{sTMP}
        s_cselect_b64 exec, 0xffff, 1
        buffer_store_dwordx4 {v(vPOI,4)}, v{vL16}, {WS}, s{sTMP} offen sc1
        s_mov_b64 exec, -1
        """)
        g.lab("L_B_r3j")

    def rest(self):
        g, NT, vL, vN, vG = self.g, self.NT, self.vL, self.vN, self.vG
        opt = g.opt
        W2, B1 = "s[20:23]", "s[24:27]"
        t0, t1, t2, t3 = 4, 5, 6, 7
        vPOI = 8
        vL16 = self.vL16
        vOa = 13
        vH3, vH3x = 14, 15
        vB1 = 22
        vSB = 24
        vQBs = 28
        vPVb = 16
        vPr = 20
        vTag = 36
        vML = 34
        vMXw, vMXr = 38, 39
        vD1 = 40
        vP2 = 42
        vW2 = 168
        aS, aP = 0, 128
        sOo = 61
        sH3m, sH3l = 62, 63
        w2e = opt.get("w2_early", 0)
        g.stamp(1)
        srd(g, 20, 9, 4608 * 1152)
        srd(g, 24, 8, 9216)
        if not opt.get('b_reset_first', 1): self.resets()
        sD2 = 59
        NY = 0 if opt.get('b_reset_first', 1) else 6
        def fsw(dst, src, tmp):
            g(f"v_lshrrev_b32 v{tmp}, 3, v{src}")
            g(f"v_and_b32 v{dst}, 7, v{src}")
            g(f"v_lshl_add_u32 v{dst}, v{dst}, 1, v{tmp}")
            g(f"v_lshlrev_b32 v{tmp}, 3, v{tmp}")
            g(f"v_xor_b32 v{dst}, v{dst}, v{tmp}")
        fsw(t2, vN, t3)
        g(f"""
        v_xor_b32 v{t2}, v{t2}, v{vG}
        v_lshlrev_b32 v{t2}, 4, v{t2}
        v_lshl_add_u32 v{t2}, v{vN}, 10, v{t2}
        s_lshl_b32 s{sO}, s{sW}, 15
        s_add_u32 s{sO}, s{sO}, {B_CKV}
        """)
        assert B_QF == 0
        for q in range(4):
            g(f"v_xor_b32 v{vQBs+q}, {q*64}, v{t2}")
            g(f"v_add_u32 v{vSB+q}, s{sO}, v{vQBs+q}")
        g(f"s_waitcnt vmcnt({16+NY})")
        for ks in range(16):
            g(f"ds_read_b128 {A(aS+ks*4,4)}, v{vSB+(ks&3)} offset:{(ks>>2)*256}")
        g(f"v_lshrrev_b32 v{t0}, 2, v{vL}")
        fsw(t2, t0, t3)
        g(f"""
        v_bfe_u32 v{t3}, v{vL}, 1, 1
        v_xor_b32 v{t2}, v{t2}, v{t3}
        v_lshlrev_b32 v{t1}, 10, v{t0}
        v_lshl_add_u32 v{t1}, v{t2}, 4, v{t1}
        v_and_b32 v{t3}, 1, v{vL}
        v_lshl_add_u32 v{t1}, v{t3}, 3, v{t1}
        v_lshl_add_u32 v{t1}, s{sW}, 8, v{t1}
        """)
        for k in range(4):
            g(f"s_add_u32 s{sO}, s{sW}, {k}")
            g(f"s_and_b32 s{sO}, s{sO}, 3")
            if k:
                g(f"v_lshl_add_u32 v{[0,20,21,23][k]}, s{sO}, 10, v{vL16}")
            g(f"s_lshl_b32 s{sO}, s{sO}, 15")
            g(f"s_add_u32 s{sO}, s{sO}, {B_CKV}")
            g(f"v_add_u32 v{vPVb+k}, s{sO}, v{t1}")
        g(f"""
        v_lshlrev_b32 v{vMXr}, 4, v{vN}
        v_lshl_add_u32 v{vMXw}, v{vG}, 2, v{vMXr}
        v_lshl_add_u32 v{vMXw}, s{sW}, 8, v{vMXw}
        v_lshlrev_b32 v{vD1}, 7, v{vN}
        """)
        for i in range(10):
            unit_pattern(g, vP2 + i, vL, sW if i == 9 else None, i, 1152, t0, t1)
        vQd = 152
        g(f"""
        s_lshl_b32 s{sO3}, s{sB}, 1
        s_add_u32 s{sO3}, s{sO3}, s{sHG}
        s_lshl_b32 s{sO3}, s{sO3}, 2
        s_add_u32 s{sO3}, s{sO3}, s{sW}
        s_lshl_b32 s{sO3}, s{sO3}, 12
        s_add_u32 s{sO3}, s{sO3}, {QB}
        s_lshr_b32 s{sTMP}, s{sW}, 1
        s_xor_b32 s{sTMP+1}, s{sW}, s{sTMP}
        s_and_b32 s{sTMP+1}, s{sTMP+1}, 1
        s_lshl_b32 s{sTMP+1}, s{sTMP+1}, 3
        s_add_u32 s{sTMP}, s{sTMP}, s{sTMP+1}
        s_lshl_b32 s{sTMP}, s{sTMP}, 4
        v_xor_b32 v{vQd}, s{sTMP}, v{vL16}
        v_xor_b32 v{vQd+1}, 32, v{vQd}
        v_xor_b32 v{vQd+2}, 64, v{vQd}
        v_xor_b32 v{vQd+3}, 0x60, v{vQd}
        s_lshl_b32 m0, s{sW}, 12
        v_mov_b32 v{t0}, 0
        v_lshlrev_b32 v{t1}, 2, v{vL}
        s_mov_b32 exec_hi, 0
        ds_write_b32 v{t1}, v{t0} offset:{B_ZERO}
        s_mov_b64 exec, -1
        """)
        finish_tag(g)
        g(f"v_mov_b32 v{vTag}, s{sT}")
        g(f"v_mov_b32 v{vTag+1}, s{sT+1}")
        g(f"""
        s_mul_i32 s{sO}, s{sU2}, 72
        s_mul_i32 s{sTMP}, s{sW}, 18
        s_add_u32 s{sO}, s{sO}, s{sTMP}
        v_lshlrev_b32 v{t0}, 1, v{vN}
        buffer_load_ushort v{vB1}, v{t0}, {B1}, s{sO} offen
        """)
        if w2e:
            g(f"s_mul_i32 s{sO2}, s{sU2}, {36*1152}")
            unit_load(g, W2, vP2, None, sO2, 1152, "w2e", NT, vdst=vW2)
        vDB = 64
        g(f"""
        s_lshl_b32 s{sO2}, s{sHG}, 2
        s_add_u32 s{sO2}, s{sO2}, s{sW}
        s_lshl_b32 s{sO2}, s{sO2}, 11
        s_add_u32 s{sO2}, s{sO2}, {D1}
        buffer_load_dwordx2 {v(vDB,2)}, v{vD1}, {WS}, s{sO2} offen sc1
        s_waitcnt vmcnt({NY + 2 + (10 if w2e else 0)})
        """)
        g.stamp(2)
        for ks in range(16):
            g(f"ds_read_b128 {A(aS+64+ks*4,4)}, v{vSB+(ks&3)} offset:{16384+(ks>>2)*256}")
        g("s_barrier")
        def pvgroup(k):
            for ct in range(8):
                tmp = t0 + (ct & 1)
                g(f"v_xor_b32 v{tmp}, {ct<<5}, v{vPVb+k}")
                for hi in range(2):
                    g(f"ds_read_b64_tr_b16 {A(aP+(ct*4+k)*4+2*hi,2)}, v{tmp} offset:{hi*16384}")
        def qdma():
            for k in range(4):
                g(f"buffer_load_dwordx4 v{vQd+k}, {WS}, s{sO3} offen offset:{k*1024} sc1 lds")
        sGot = 58
        g(f"s_mov_b32 s{sGot}, 0")
        for k in range(4):
            g(f"s_cmp_lg_u32 s{sGot}, 0")
            g(f"s_cbranch_scc1 L_B_pv{k}")
            g("s_waitcnt vmcnt(0)")
            g(f"v_cmp_ne_u64 vcc, s[{sT}:{sT+1}], {v(vDB,2)}")
            g(f"s_cbranch_vccnz L_B_pp{k}")
            g.stamp(3)
            qdma()
            g(f"s_mov_b32 s{sGot}, 1")
            g(f"s_branch L_B_pv{k}")
            g.lab(f"L_B_pp{k}")
            g(f"buffer_load_dwordx2 {v(vDB,2)}, v{vD1}, {WS}, s{sO2} offen sc1")
            g.lab(f"L_B_pv{k}")
            pvgroup(k)
        g(f"s_mov_b32 s{sCNT}, 0")
        g(f"s_cmp_lg_u32 s{sGot}, 0")
        g("s_cbranch_scc1 L_B_qwait")
        g("s_branch L_B_d1chk")
        g.lab("L_B_d1poll")
        g(f"buffer_load_dwordx2 {v(vDB,2)}, v{vD1}, {WS}, s{sO2} offen sc1")
        spin_guard(g, "L_B_qget0")
        g.lab("L_B_d1chk")
        g("s_waitcnt vmcnt(0)")
        g(f"v_cmp_ne_u64 vcc, s[{sT}:{sT+1}], {v(vDB,2)}")
        g("s_cbranch_vccnz L_B_d1poll")
        g.stamp(3)
        g.lab("L_B_qget0")
        g(f"s_mov_b32 s{sCNT}, 0")
        g.lab("L_B_qget")
        qdma()
        g.lab("L_B_qwait")
        g("s_waitcnt vmcnt(0) lgkmcnt(0)")
        g("s_barrier")
        g.stamp(4)
        vQ = 64
        vS = 156
        PRE = 6
        for ks in range(PRE):
            g(f"ds_read_b128 {v(vQ+4*ks,4)}, v{vQBs+(ks&3)} offset:{(ks>>2)*256}")
        for ks in range(16):
            if ks + PRE < 16:
                k2 = ks + PRE
                g(f"ds_read_b128 {v(vQ+4*k2,4)}, v{vQBs+(k2&3)} offset:{(k2>>2)*256}")
            g(f"s_waitcnt lgkmcnt({min(PRE, 15-ks)})")
            for kt in range(2):
                g(f"{MF} {v(vS+4*kt,4)}, {A(aS+(kt*16+ks)*4,4)}, {v(vQ+4*ks,4)}, {'0' if ks == 0 else v(vS+4*kt,4)}")
        CS = math.log2(math.e) * 128 ** -0.5
        g(f"s_mov_b32 s{sC}, {hex(fbits(CS))}")
        g(f"""
        v_cmp_u_f32 vcc, v{vS}, v{vS}
        v_max3_f32 v{t0}, v{vS}, v{vS+1}, v{vS+2}
        v_max3_f32 v{t1}, v{vS+3}, v{vS+4}, v{vS+5}
        v_max3_f32 v{t0}, v{t0}, v{vS+6}, v{vS+7}
        v_max_f32 v{t0}, v{t0}, v{t1}
        s_cbranch_vccnz L_B_qslow
        """)
        g.lab("L_B_qok")
        if opt.get("stamps"): g(f"s_mov_b32 s100, s{sCNT}")
        g(f"""
        ds_write_b32 v{vMXw}, v{t0} offset:{B_MX}
        s_waitcnt lgkmcnt(0)
        s_barrier
        """)
        g.stamp(5)
        vM = 64
        for q in range(4):
            g(f"ds_read_b128 {v(vM+4*q,4)}, v{vMXr} offset:{B_MX+q*256}")
        g(f"""
        v_lshl_add_u32 v{t2}, s{sW}, 10, v{vL16}
        s_waitcnt lgkmcnt(2)
        v_max3_f32 v{vM}, v{vM}, v{vM+1}, v{vM+2}
        v_max3_f32 v{vM+3}, v{vM+3}, v{vM+4}, v{vM+5}
        v_max3_f32 v{vM}, v{vM}, v{vM+6}, v{vM+7}
        s_waitcnt lgkmcnt(0)
        v_max3_f32 v{vM+8}, v{vM+8}, v{vM+9}, v{vM+10}
        v_max3_f32 v{vM+11}, v{vM+11}, v{vM+12}, v{vM+13}
        v_max3_f32 v{vM+8}, v{vM+8}, v{vM+14}, v{vM+15}
        v_max3_f32 v{vM}, v{vM}, v{vM+3}, v{vM+11}
        v_max_f32 v{vM}, v{vM}, v{vM+8}
        v_mul_f32 v{vML}, s{sC}, v{vM}
        """)
        for k in range(8):
            g(f"v_fma_f32 v{vS+k}, v{vS+k}, s{sC}, -v{vML}")
        for k in range(8):
            g(f"v_exp_f32 v{vS+k}, v{vS+k}")
        vPf = 80
        vO = 96
        for k in range(4):
            g(f"v_cvt_pk_bf16_f32 v{vPf+k}, v{vS+2*k}, v{vS+2*k+1}")
        g(f"ds_write_b128 v{t2}, {v(vPf,4)} offset:{B_PB}")
        g(f"""
        v_pk_add_f32 {v(vS,2)}, {v(vS,2)}, {v(vS+2,2)}
        v_pk_add_f32 {v(vS+4,2)}, {v(vS+4,2)}, {v(vS+6,2)}
        v_pk_add_f32 {v(vS,2)}, {v(vS,2)}, {v(vS+4,2)}
        v_add_f32 v{vS}, v{vS}, v{vS+1}
        ds_write_b32 v{vMXw}, v{vS} offset:{B_LS}
        """)
        def pv(k, cts=range(8)):
            for ct in cts:
                g(f"{MF} {v(vO+4*ct,4)}, {v(vPf+4*k,4)}, {A(aP+(ct*4+k)*4,4)}, {'0' if k == 0 else v(vO+4*ct,4)}")
        pv(0, range(3))
        g("s_waitcnt lgkmcnt(0)")
        g("s_barrier")
        g.stamp(6)
        for k in range(1, 4):
            g(f"ds_read_b128 {v(vPf+4*k,4)}, v{[0,20,21,23][k]} offset:{B_PB}")
        for q in range(4):
            g(f"ds_read_b128 {v(vM+4*q,4)}, v{vMXr} offset:{B_LS+q*256}")
        pv(0, range(3, 8))
        g("s_waitcnt lgkmcnt(6)")
        adds = [f"v_pk_add_f32 {v(vM,2)}, {v(vM,2)}, {v(vM+2,2)}", f"v_pk_add_f32 {v(vM+4,2)}, {v(vM+4,2)}, {v(vM+6,2)}",
                f"v_pk_add_f32 {v(vM+8,2)}, {v(vM+8,2)}, {v(vM+10,2)}", f"v_pk_add_f32 {v(vM+12,2)}, {v(vM+12,2)}, {v(vM+14,2)}",
                f"v_pk_add_f32 {v(vM,2)}, {v(vM,2)}, {v(vM+4,2)}", f"v_pk_add_f32 {v(vM+8,2)}, {v(vM+8,2)}, {v(vM+12,2)}",
                f"v_pk_add_f32 {v(vM,2)}, {v(vM,2)}, {v(vM+8,2)}", f"v_add_f32 v{vML+1}, v{vM}, v{vM+1}"]
        pv(1, range(4))
        g("s_waitcnt lgkmcnt(0)")
        for ct in range(4, 8):
            pv(1, [ct])
            g(adds[2 * (ct - 4)]); g(adds[2 * (ct - 4) + 1])
        def d2bell():
            g(f"s_cmp_lg_u32 s{sW}, 0")
            g("s_cbranch_scc1 L_B_nod2")
            g("s_mov_b64 exec, 0xffff")
            g(f"buffer_store_dwordx4 {v(vML,4)}, v{vL16}, {WS}, s{sD2} offen sc1")
            g("s_mov_b64 exec, -1")
            g.lab("L_B_nod2")
        dbpos = opt.get("d2_pos", 2)
        if dbpos == 2: d2bell()
        pv(2)
        if dbpos == 3: d2bell()
        vOo = 64
        def cv(k):
            for r in range(4):
                g(f"v_cvt_pk_bf16_f32 v{vOo+4*r+k}, v{vO+8*k+r}, v{vO+8*k+4+r}")
        pv(3)
        cv(0); cv(1); cv(2)
        for r in range(4):
            g(f"v_cvt_pk_bf16_f32 v{vOo+4*r+3}, v{vO+24+r}, v{vO+28+r}")
            g(f"s_add_u32 s{sO}, s{sOo}, {4*r*OSTR}")
            g(f"buffer_store_dwordx4 {v(vOo+4*r,4)}, v{vOa}, {WS}, s{sO} offen sc1")
        if dbpos == 4: d2bell()
        g.stamp(7)
        if w2e:
            g(f"s_mul_i32 s{sTMP}, s{sW}, 9216")
            g(f"v_add_u32 v{t0}, s{sTMP}, v{vL16}")
            for i in range(9):
                g(f"ds_write_b128 v{t0}, {v(vW2+4*i,4)} offset:{B_W2+i*1024}")
            g(f"ds_write_b128 v{t2}, {v(vW2+36,4)} offset:{B_W2+36864}")
            g(f"s_cmp_lg_u32 s{sW}, 0")
            g("s_cbranch_scc1 L_B_now2t")
            g(f"ds_write_b128 v{vL16}, {v(vW2+40,4)} offset:{B_W2+36864+4096}")
            g.lab("L_B_now2t")
        else:
            g(f"s_mul_i32 s{sO2}, s{sU2}, {36*1152}")
            unit_load(g, W2, vP2, B_W2, sO2, 1152, "w2", NT, thr=opt.get("w2_thr"))
        vT20, vT21, vK20, vK21 = 16, 17, 18, 19
        vHg, vHw = 25, 26
        vHe, vHo, vHke, vHko = 27, 28, 29, 30
        tr_pair_bases(g, vT20, vT21, vK20, vK21, vL, B_W2, t0, t1, t2)
        g(f"""
        v_mul_u32_u24 v{vHg}, 9216, v{vG}
        v_lshl_add_u32 v{vHg}, v{vN}, 4, v{vHg}
        v_lshrrev_b32 v{t0}, 5, v{vL}
        v_lshlrev_b32 v{vHw}, 7, v{t0}
        v_lshl_add_u32 v{vHw}, v{vN}, 1, v{vHw}
        s_mul_i32 s{sO}, s{sW}, 18
        v_add_u32 v{vHw}, s{sO}, v{vHw}
        v_bfe_u32 v{t0}, v{vL}, 2, 1
        v_lshlrev_b32 v{t0}, 7, v{t0}
        v_add_u32 v{t0}, {B_HL}, v{t0}
        v_lshl_add_u32 v{t1}, v{vG}, 3, v{t0}
        v_add_u32 v{t0}, 64, v{t0}
        v_mov_b32 v{t2}, {B_ZERO}
        v_cmp_gt_u32 vcc, 8, v{vN}
        v_cndmask_b32 v{vHe}, v{t2}, v{t1}, vcc
        v_cndmask_b32 v{vHo}, v{t1}, v{t2}, vcc
        v_lshrrev_b32 v{t1}, 3, v{vL}
        v_cmp_eq_u32 vcc, 0, v{t1}
        v_cndmask_b32 v{vHke}, v{t2}, v{t0}, vcc
        v_cmp_eq_u32 vcc, 1, v{t1}
        v_cndmask_b32 v{vHko}, v{t2}, v{t0}, vcc
        v_lshlrev_b32 v{vB1}, 16, v{vB1}
        """)
        vHr = 80
        g(f"""
        s_mul_i32 s{sO}, s{sXCD}, {16*9216}
        s_mul_i32 s{sO3}, s{sI}, 576
        s_add_u32 s{sO}, s{sO}, s{sO3}
        s_mul_i32 s{sO3}, s{sW}, 144
        s_add_u32 s{sO}, s{sO}, s{sO3}
        s_add_u32 s{sO}, s{sO}, {HH+(LOC if opt.get("dual", 1) and opt.get("hh_dual", 1) else 0)}
        s_add_u32 s{sO2}, s{sO}, {4*9216}
        s_add_u32 s{sO3}, s{sO}, {8*9216}
        s_add_u32 s{sC}, s{sO}, {12*9216}
        s_mov_b32 exec_lo, 0x01ff01ff
        s_mov_b32 exec_hi, 0x01ff01ff
        s_mov_b32 s{sCNT}, 0
        """)
        g.lab("L_B_hpoll")
        if opt.get("hh_dual", 1): dual_next(g, [sO, sO2, sO3, sC])
        for u, so in enumerate((sO, sO2, sO3, sC)):
            g(f"buffer_load_dwordx4 {v(vHr+4*u,4)}, v{vHg}, {WS}, s{so} offen sc1")
        spin_guard(g, "L_B_hdone")
        g("s_waitcnt vmcnt(0)")
        g(f"v_cmp_ne_u64 vcc, s[{sT}:{sT+1}], {v(vHr+2,2)}")
        for u in range(1, 4):
            g(f"v_cmp_ne_u64 s[{sM3}:{sM3+1}], s[{sT}:{sT+1}], {v(vHr+4*u+2,2)}")
            g(f"s_or_b64 vcc, vcc, s[{sM3}:{sM3+1}]")
        g("s_cbranch_scc1 L_B_hpoll")
        g.lab("L_B_hdone")
        g("s_waitcnt vmcnt(0)")
        g.stamp(10)
        c1 = -2.0 * math.log2(math.e) * math.sqrt(2.0 / math.pi)
        g(f"""
        v_pk_add_f32 {v(vHr,2)}, {v(vHr,2)}, {v(vHr+4,2)}
        v_pk_add_f32 {v(vHr+8,2)}, {v(vHr+8,2)}, {v(vHr+12,2)}
        v_pk_add_f32 {v(vHr,2)}, {v(vHr,2)}, {v(vHr+8,2)}
        v_permlane32_swap_b32 v{vHr}, v{vHr+1}
        v_add_f32 v{vHr}, v{vHr}, v{vHr+1}
        v_mov_b32 v{vHr+1}, v{vHr}
        v_permlane16_swap_b32 v{vHr}, v{vHr+1}
        v_add_f32 v{vHr}, v{vHr}, v{vHr+1}
        v_add_f32 v{vHr}, v{vHr}, v{vB1}
        v_mul_f32 v{t0}, v{vHr}, v{vHr}
        v_mov_b32 v{t1}, {hex(fbits(c1))}
        s_mov_b32 s{sC}, {hex(fbits(c1*0.044715))}
        v_fma_f32 v{t0}, v{t0}, s{sC}, v{t1}
        v_mul_f32 v{t0}, v{t0}, v{vHr}
        v_exp_f32 v{t0}, v{t0}
        v_add_f32 v{t0}, 1.0, v{t0}
        v_rcp_f32 v{t0}, v{t0}
        v_mul_f32 v{t0}, v{t0}, v{vHr}
        v_cvt_pk_bf16_f32 v{t0}, v{t0}, v{t0}
        ds_write_b16 v{vHw}, v{t0} offset:{B_HL}
        s_mov_b64 exec, -1
        s_waitcnt lgkmcnt(0)
        s_barrier
        """)
        g.stamp(11)
        aW = 0
        vHA = 64
        vY = 96
        g(f"ds_read2_b64 {v(vHA,4)}, v{vHe} offset0:0 offset1:4")
        g(f"ds_read_b64 {v(vHA+4,2)}, v{vHke}")
        g(f"ds_read2_b64 {v(vHA+6,4)}, v{vHo} offset0:0 offset1:4")
        g(f"ds_read_b64 {v(vHA+10,2)}, v{vHko}")
        def w2reads(t):
            for x in range(2):
                b = aW + (t * 2 + x) * 6
                g(f"ds_read_b64_tr_b16 {A(b,2)}, v{vT21 if x else vT20} offset:{t*256}")
                g(f"ds_read_b64_tr_b16 {A(b+2,2)}, v{vT21 if x else vT20} offset:{16*1152+t*256}")
                g(f"ds_read_b64_tr_b16 {A(b+4,2)}, v{vK21 if x else vK20} offset:{t*256}")
        def w2mf(t):
            for x in range(2):
                b = aW + (t * 2 + x) * 6
                g(f"{MF} {v(vY+4*t,4)}, {v(vHA+6*x,4)}, {A(b,4)}, {'0' if x == 0 else v(vY+4*t,4)}")
        def w2mf16(t):
            for x in range(2):
                b = aW + (t * 2 + x) * 6
                g(f"{MF16} {v(vY+4*t,4)}, {v(vHA+6*x+4,2)}, {A(b+4,2)}, {v(vY+4*t,4)}")
        w2reads(0)
        for t in range(4):
            if t < 3:
                w2reads(t + 1)
                g("s_waitcnt lgkmcnt(6)")
            else:
                g("s_waitcnt lgkmcnt(0)")
            w2mf(t)
        bell(g, vTag, vL16, sPR, D3, 3, "d3b")
        for t in range(4):
            w2mf16(t)
        g(f"s_cmp_gt_u32 s{sW}, 1")
        g("s_cbranch_scc1 L_B_no5")
        w2reads(4)
        g("s_waitcnt lgkmcnt(0)")
        w2mf(4)
        w2mf16(4)
        g.lab("L_B_no5")
        for t in range(1, 4):
            g(f"v_mov_b32 v{vY+t}, v{vY+4*t}")
        g(f"buffer_store_dwordx4 {v(vY,4)}, v{vH3}, {WS}, s{sH3m} offen sc1")
        g(f"s_cmp_gt_u32 s{sW}, 1")
        g("s_cbranch_scc1 L_B_no5b")
        g(f"buffer_store_dword v{vY+16}, v{vH3x}, {WS}, s{sH3l} offen sc1")
        g.lab("L_B_no5b")
        g.stamp(12)
        dump_stamps(g, 16, 160)
        g("s_endpgm")
        g.lab("L_B_qslow")
        spin_guard(g, "L_B_qok")
        g(f"s_mov_b64 s[{sM1}:{sM1+1}], 0")
        for ks in range(16):
            g(f"v_cmp_eq_u32 vcc, s{sPOI}, v{vQ+4*ks}")
            g(f"s_or_b64 s[{sM1}:{sM1+1}], s[{sM1}:{sM1+1}], vcc")
        g("s_cbranch_scc0 L_B_qok")
        g("s_barrier")
        g("s_branch L_B_qget")

if __name__ == "__main__":
    opt = eval("dict(%s)" % (sys.argv[2] if len(sys.argv) > 2 else ""))
    open(sys.argv[1], "w").write(gen(opt))
```

```python
import sys, os, math, struct
sys.path.insert(0, os.path.dirname(os.path.abspath(__file__)))
from hazard import pad

KNAME = "gated_mix__compressed_kv_cla__dense_activation_gelu__decode_kernel"

WS_BYTES = 256 << 20
EPOCH = 0x0
D1 = 0x4000
D3 = 0x8000
D2 = 0x10000
HB = 0x20000
H0 = 0x40000
QB = 0x80000
H3 = 0x100000
USTR = 32768 + 256
HH = 0x240000
OB = 0x400000
OSTR = 16384 + 256
LOC = 0x800000
STAMP = 0x1000000
POISON = 0xFFA5FFA5
K0, K1 = 0x9E3779B9, 0x7F4A7C15
SPIN = 1 << 20

A_WUV = 0
A_QL = 32768
A_ZERO = 33280
A_CTXC = 33536
A_WT = 34048
A_RED = 34304
A_PR = 35328
A_WO = 35840
A_W1 = A_WO + 36864
A_QP = A_WO
B_QF = 0
B_PB = 16384
B_MX = 20480
B_HL = 21504
B_ZERO = 21760
B_LS = 22528
B_CKV = 23552
B_W2 = B_CKV
LDS_BYTES = 154624

def f16sw(i):
    return (((i & 7) ^ ((i >> 3) << 2)) << 1) | (i >> 3)

def fbits(x):
    return struct.unpack("<I", struct.pack("<f", x))[0]

class G:
    def __init__(self, opt):
        self.l = []
        self.opt = opt
        self.nst = 0
        self.inA = False
    def __call__(self, s):
        for x in s.strip("\n").split("\n"):
            x = x.strip()
            if x: self.l.append("    " + x)
    def lab(self, n): self.l.append(n + ":")
    def c(self, s): self.l.append("    ; " + s)
    def stamp(self, i):
        if self.opt.get("stamps") and not (self.opt.get("fst") and 5 <= i <= 12 and self.inA):
            self(f"s_memrealtime s[{70+2*i}:{71+2*i}]")
    def fstamp(self, i):
        if self.opt.get("stamps") and self.opt.get("fst"):
            self(f"s_memrealtime s[{70+2*i}:{71+2*i}]")

def v(a, n=1): return f"v{a}" if n == 1 else f"v[{a}:{a+n-1}]"
def A(a, n=1): return f"a{a}" if n == 1 else f"a[{a}:{a+n-1}]"
def S(a, n=1): return f"s{a}" if n == 1 else f"s[{a}:{a+n-1}]"

sW = 3
WS, X = "s[4:7]", "s[8:11]"
sT = 40
sXCD, sI = 42, 43
sA, sH, sJ = 44, 45, 46
sHG, sB, sMSG, sU2 = 44, 45, 46, 47
sO, sO2, sO3, sCNT = 48, 49, 50, 51
sM1, sM2, sM3, sM4 = 52, 54, 56, 58
sPR = 60
sG0, sG1 = 61, 62
sTMP = 64
sPC = 66
sPOI = 68
sC = 69

def srd(g, base, slot, nbytes):
    g(f"s_load_dwordx2 s[{base}:{base+1}], s[0:1], {slot*8}")
    g(f"s_mov_b32 s{base+2}, {nbytes}")
    g(f"s_mov_b32 s{base+3}, 0x00020000")

def dump_stamps(g, n, tmpv):
    if not g.opt.get("stamps") or g.opt.get("probe") is not None: return
    g("s_waitcnt lgkmcnt(0)")
    g("s_mov_b64 exec, 1")
    g(f"s_lshl_b32 s{sO}, s2, 2")
    g(f"s_add_u32 s{sO}, s{sO}, s{sW}")
    g(f"s_lshl_b32 s{sO}, s{sO}, 6")
    g(f"s_add_u32 s{sO}, s{sO}, {STAMP}")
    g(f"v_mov_b32 v{tmpv+4}, 0")
    for q in range(0, 16, 4):
        for k in range(4):
            g(f"v_mov_b32 v{tmpv+k}, s{70+2*(q+k)}")
        g(f"buffer_store_dwordx4 {v(tmpv,4)}, v{tmpv+4}, {WS}, s{sO} offen offset:{q*4}")
        g("s_nop 1")
    g("s_waitcnt vmcnt(0)")

def dual_next(g, regs):
    if not g.opt.get("dual", 1): return
    g(f"s_and_b32 s{sTMP}, s{sCNT}, 14")
    g(f"s_cmp_eq_u32 s{sTMP}, 14")
    g(f"s_cselect_b32 s{sTMP}, {LOC}, 0")
    for r in regs:
        g(f"s_xor_b32 s{r}, s{r}, s{sTMP}")

def spin_guard(g, out):
    g(f"s_add_u32 s{sCNT}, s{sCNT}, 1")
    g(f"s_cmp_gt_u32 s{sCNT}, {g.opt.get('spin', SPIN)}")
    g(f"s_cbranch_scc1 {out}")

def selectors(g, vSel, vL, t0, t1, t2):
    g(f"v_and_b32 v{t0}, 1, v{vL}")
    g(f"v_cmp_eq_u32 vcc, 1, v{t0}")
    g(f"v_mov_b32 v{t1}, 0x0c0c0100")
    g(f"v_mov_b32 v{t2}, 0x01000c0c")
    g(f"v_cndmask_b32 v{vSel+3}, v{t1}, v{t2}, vcc")
    g(f"v_mov_b32 v{t1}, 0x0c0c0302")
    g(f"v_mov_b32 v{t2}, 0x03020c0c")
    g(f"v_cndmask_b32 v{vSel+7}, v{t1}, v{t2}, vcc")
    g(f"v_bfe_u32 v{t0}, v{vL}, 1, 2")
    g(f"v_mov_b32 v{t1}, 0x0c0c0c0c")
    for d in range(4):
        g(f"v_cmp_eq_u32 vcc, {d}, v{t0}")
        g(f"v_cndmask_b32 v{vSel+d}, v{t1}, v{vSel+3}, vcc")
        g(f"v_cndmask_b32 v{vSel+4+d}, v{t1}, v{vSel+7}, vcc")

def unit_pattern(g, dst, vL, i_expr_sgpr, i_const, pitch, t0, t1):
    if i_expr_sgpr is not None:
        g(f"v_lshl_add_u32 v{t0}, s{i_expr_sgpr}, 6, v{vL}")
    else:
        g(f"v_add_u32 v{t0}, {64*i_const}, v{vL}")
    g(f"v_mul_u32_u24 v{t1}, 911, v{t0}")
    g(f"v_lshrrev_b32 v{t1}, 16, v{t1}")
    g(f"v_and_b32 v{dst}, 6, v{t1}")
    g(f"v_xor_b32 v{dst}, v{dst}, v{t0}")
    g(f"v_lshlrev_b32 v{dst}, 4, v{dst}")
    if pitch != 1152:
        g(f"v_mul_u32_u24 v{t1}, {pitch-1152}, v{t1}")
        g(f"v_add_u32 v{dst}, v{dst}, v{t1}")
assert all((911 * u) >> 16 == u // 72 for u in range(640))

def h3_addr(g, vH3, vH3x, vL, vN, vG, t0):
    g(f"v_lshrrev_b32 v{t0}, 3, v{vL}")
    g(f"v_mul_u32_u24 v{vH3}, {USTR}, v{t0}")
    g(f"v_and_b32 v{t0}, 7, v{vL}")
    g(f"v_lshl_add_u32 v{vH3}, v{t0}, 4, v{vH3}")
    g(f"v_lshrrev_b32 v{t0}, 5, v{vL}")
    g(f"v_mul_u32_u24 v{vH3x}, {USTR}, v{t0}")
    g(f"v_and_b32 v{t0}, 31, v{vL}")
    g(f"v_lshl_add_u32 v{vH3x}, v{t0}, 2, v{vH3x}")

def h3_soffs(g, s_main, s_left):
    g(f"s_lshl_b32 s{s_left}, s{sPR}, 7")
    g(f"s_add_u32 s{s_left}, s{s_left}, {H3}")
    g(f"s_mul_i32 s{s_main}, s{sW}, {8*USTR}")
    g(f"s_add_u32 s{s_main}, s{s_main}, s{s_left}")
    g(f"s_mul_i32 s{sTMP}, s{sW}, {2*USTR}")
    g(f"s_add_u32 s{s_left}, s{s_left}, s{sTMP}")
    g(f"s_add_u32 s{s_left}, s{s_left}, {32*USTR}")

def tr_pair_bases(g, vB0, vB1, vK0, vK1, vL, base, t0, t1, t2):
    g(f"v_lshrrev_b32 v{t0}, 2, v{vL}")
    g(f"v_bfe_u32 v{t1}, v{vL}, 1, 1")
    g(f"v_lshl_add_u32 v{t1}, s{sW}, 2, v{t1}")
    g(f"v_and_b32 v{t2}, 6, v{t0}")
    g(f"v_xor_b32 v{t2}, v{t2}, v{t1}")
    g(f"v_lshlrev_b32 v{t2}, 4, v{t2}")
    g(f"v_mul_u32_u24 v{vB0}, 1152, v{t0}")
    g(f"v_add_u32 v{vB0}, v{vB0}, v{t2}")
    g(f"v_and_b32 v{t2}, 1, v{vL}")
    g(f"v_lshlrev_b32 v{t2}, 3, v{t2}")
    g(f"v_add_u32 v{vB0}, v{vB0}, v{t2}")
    g(f"v_xor_b32 v{vB1}, 32, v{vB0}")
    if base:
        g(f"v_add_u32 v{vB0}, {base}, v{vB0}")
        g(f"v_add_u32 v{vB1}, {base}, v{vB1}")
    if vK0 is not None:
        g(f"v_and_b32 v{t0}, 3, v{t0}")
        g(f"v_and_b32 v{vK0}, 2, v{t0}")
        g(f"v_xor_b32 v{vK0}, v{vK0}, v{t1}")
        g(f"v_lshlrev_b32 v{vK0}, 4, v{vK0}")
        g(f"v_mul_u32_u24 v{t0}, 1152, v{t0}")
        g(f"v_add3_u32 v{vK0}, v{vK0}, v{t0}, v{t2}")
        g(f"v_xor_b32 v{vK1}, 32, v{vK0}")
        g(f"v_add_u32 v{vK0}, {base + 32*1152}, v{vK0}")
        g(f"v_add_u32 v{vK1}, {base + 32*1152}, v{vK1}")

MF = "v_mfma_f32_16x16x32_bf16"
MF16 = "v_mfma_f32_16x16x16_bf16"

def role_is_A(wg, opt):
    if opt.get("split"):
        import numpy as np
        return np.isin(wg & 7, list(opt["split"]))
    return wg < 128

def gen(opt):
    g = G(opt)
    NT = opt.get("nt", "")
    PFL = opt.get("pf_lines", 4)
    CODE_BYTES = 32 * 128 * PFL
    vL, vN, vG = 1, 2, 3
    g.stamp(0)
    g(f"s_getpc_b64 s[{sPC}:{sPC+1}]")
    g("s_cmp_ge_u32 s2, 256")
    g("s_cbranch_scc1 L_end")
    g(f"""
    s_load_dwordx2 s[4:5], s[0:1], 112
    s_load_dwordx2 s[8:9], s[0:1], 0
    s_load_dwordx2 s[28:29], s[0:1], 8
    s_load_dwordx2 s[12:13], s[0:1], 16
    s_load_dwordx2 s[16:17], s[0:1], 24
    v_lshrrev_b32 v4, 6, v0
    v_and_b32 v{vL}, 63, v0
    s_and_b32 s{sXCD}, s2, 7
    v_readfirstlane_b32 s{sW}, v4
    s_bfe_u32 s{sI}, s2, 0x40003
    v_and_b32 v{vN}, 15, v0
    v_bfe_u32 v{vG}, v0, 4, 2
    s_mov_b32 s6, {WS_BYTES}
    s_mov_b32 s7, 0x00020000
    """)
    if opt.get("xprobe") is not None:
        g(f"""
        s_load_dwordx2 s[32:33], s[0:1], 104
        s_mov_b32 s34, 256
        s_mov_b32 s35, 0x00020000
        s_waitcnt lgkmcnt(0)
        v_mov_b32 v6, s70
        s_lshl_b32 s{sO}, s{sXCD}, 2
        v_mov_b32 v7, s{sO}
        s_mov_b64 exec, 1
        buffer_atomic_umax v6, v7, s[32:35], 0 offen sc1
        s_mov_b64 exec, -1
        """)
    if opt.get("split"):
        aset = list(opt["split"]); bset = [x for x in range(8) if x not in aset]
        tab = 0
        for x in range(8):
            tab |= ((aset.index(x)) if x in aset else (8 | bset.index(x))) << (4 * x)
        g(f"""
        s_lshl_b32 s{sXCD}, s{sXCD}, 2
        s_lshr_b32 s{sO}, {hex(tab)}, s{sXCD}
        s_and_b32 s{sXCD}, s{sO}, 3
        s_lshr_b32 s{sO2}, s2, 7
        s_lshl_b32 s{sO2}, s{sO2}, 2
        s_add_u32 s{sXCD}, s{sXCD}, s{sO2}
        s_bitcmp1_b32 s{sO}, 3
        s_cbranch_scc1 L_B
        """)
    else:
        g("s_cmp_ge_u32 s2, 128")
        g("s_cbranch_scc1 L_B")
    a = RoleA(g, NT, vL, vN, vG)
    b = RoleB(g, NT, vL, vN, vG)
    def prefetch(nw, idx_sgpr_expr, tag):
        g(idx_sgpr_expr)
        g(f"s_mul_i32 s{sTMP}, s{sTMP}, {nw*128}")
        g(f"v_lshl_add_u32 v5, v{vL}, 7, s{sTMP}")
        g(f"s_cmp_lg_u32 s{sW}, 3")
        g(f"s_cbranch_scc1 L_nopf{tag}")
        g(f"s_mov_b64 exec, {(1 << nw) - 1}")
        g(f"global_load_dword v255, v5, s[{sPC}:{sPC+1}]")
        g("s_mov_b64 exec, -1")
        g.lab(f"L_nopf{tag}")
    if opt.get("split") and opt.get("a_pf_first", 1): prefetch(PFL, f"s_lshr_b32 s{sTMP}, s2, 3", "A")
    a.issue()
    if opt.get("split") and not opt.get("a_pf_first", 1): prefetch(PFL, f"s_lshr_b32 s{sTMP}, s2, 3", "A")
    g("s_branch L_A_rest")
    g.lab("L_B")
    if opt.get("split"): prefetch(PFL, f"s_lshr_b32 s{sTMP}, s2, 3", "B")
    else: prefetch(2 * PFL, f"s_mov_b32 s{sTMP}, s{sI}", "B")
    b.issue()
    g("s_branch L_B_rest")
    g.lab("L_A_rest")
    g.inA = True
    a.rest()
    g.inA = False
    g.lab("L_B_rest")
    b.rest()
    g.lab("L_end")
    lines, added = pad(g.l)
    body = "\n".join(lines)
    hdr = open(os.path.join(os.path.dirname(os.path.abspath(__file__)), "header.txt")).read()
    return f"""{hdr}; @launch grid=(256,1,1) block=(256,1,1) lds={LDS_BYTES}
.amdgcn_target "amdgcn-amd-amdhsa--gfx950"
.text
.globl {KNAME}
.p2align 8
.type {KNAME},@function
{KNAME}:
{body}
    s_endpgm
L_code_end:
.fill ({CODE_BYTES} + 256 - (L_code_end - {KNAME})) / 4, 4, 0xbf800000
.section .rodata,"a"
.p2align 6
.amdhsa_kernel {KNAME}
  .amdhsa_next_free_vgpr 512
  .amdhsa_next_free_sgpr 102
  .amdhsa_accum_offset 256
  .amdhsa_group_segment_fixed_size 0
  .amdhsa_kernarg_size 120
  .amdhsa_user_sgpr_count 2
  .amdhsa_user_sgpr_kernarg_segment_ptr 1
  .amdhsa_system_sgpr_workgroup_id_x 1
.end_amdhsa_kernel
"""

def srd_tail(g, base, nbytes):
    g(f"s_mov_b32 s{base+2}, {nbytes}")
    g(f"s_mov_b32 s{base+3}, 0x00020000")

def load_tag(g):
    g(f"s_load_dwordx2 s[{sT}:{sT+1}], s[4:5], {EPOCH}")

def finish_tag(g):
    g("s_waitcnt lgkmcnt(0)")
    g(f"s_add_u32 s{sT}, s{sT}, {K0}")
    g(f"s_add_u32 s{sT+1}, s{sT+1}, {K1}")

def bell(g, vdata, vzero, s_index, base, wave, tag):
    g(f"s_cmp_lg_u32 s{sW}, {wave}")
    g(f"s_cbranch_scc1 L_nobell_{tag}")
    g(f"s_lshl_b32 s{sTMP}, s{s_index}, 7")
    g(f"s_add_u32 s{sTMP}, s{sTMP}, {base}")
    g("s_mov_b64 exec, 1")
    g(f"buffer_store_dwordx2 {v(vdata,2)}, v{vzero}, {WS}, s{sTMP} offen sc1")
    g("s_mov_b64 exec, -1")
    g.lab(f"L_nobell_{tag}")

def unit_load(g, SRD, vP, ldsbase, s_unit_base, pitch, tag, NT, rows36=True, vdst=None, thr=None):
    if tag[:2] in g.opt.get("skip", ""): return
    g(f"s_mul_i32 s{sO}, s{sW}, {8*pitch}")
    g(f"s_add_u32 s{sO}, s{sO}, s{s_unit_base}")
    if vdst is None: g(f"s_mul_i32 s{sTMP}, s{sW}, 9216")
    for i in range(9):
        if thr: g(f"s_waitcnt vmcnt({thr-1})")
        if vdst is None:
            g(f"s_add_u32 m0, s{sTMP}, {ldsbase + i*1024}")
            g(f"buffer_load_dwordx4 v{vP+i}, {SRD}, s{sO} offen {NT} lds")
        else:
            g(f"buffer_load_dwordx4 {v(vdst+4*i,4)}, v{vP+i}, {SRD}, s{sO} offen {NT}")
    if not rows36: return
    g(f"s_add_u32 s{sO}, s{s_unit_base}, {32*pitch}")
    if vdst is None:
        g(f"s_lshl_b32 s{sTMP}, s{sW}, 10")
        g(f"s_add_u32 m0, s{sTMP}, {ldsbase + 36864}")
        g(f"buffer_load_dwordx4 v{vP+9}, {SRD}, s{sO} offen {NT} lds")
    else:
        g(f"buffer_load_dwordx4 {v(vdst+36,4)}, v{vP+9}, {SRD}, s{sO} offen {NT}")
    g(f"s_cmp_lg_u32 s{sW}, 0")
    g(f"s_cbranch_scc1 L_not{tag}")
    g("s_mov_b32 exec_hi, 0")
    if vdst is None:
        g(f"s_mov_b32 m0, {ldsbase + 36864 + 4096}")
        g(f"buffer_load_dwordx4 v{vP+4}, {SRD}, s{sO} offen {NT} lds")
    else:
        g(f"buffer_load_dwordx4 {v(vdst+40,4)}, v{vP+4}, {SRD}, s{sO} offen {NT}")
    g("s_mov_b64 exec, -1")
    g.lab(f"L_not{tag}")

class RoleA:
    def __init__(self, g, NT, vL, vN, vG):
        self.g, self.NT, self.vL, self.vN, self.vG = g, NT, vL, vN, vG
    vX = 20
    vA_wq, vA_uk = 108, 109
    aWQ, aUK = 0, 36

    def issue(self):
        g, NT, vL, vN, vG = self.g, self.NT, self.vL, self.vN, self.vG
        WQ, WUK = "s[12:15]", "s[16:19]"
        t0, t1 = 4, 5
        vX, vA_wq, vA_uk, aWQ, aUK = self.vX, self.vA_wq, self.vA_uk, self.aWQ, self.aUK
        srd_tail(g, 12, 576 * 8192)
        srd_tail(g, 8, 2304)
        g(f"""
        s_lshr_b32 s{sH}, s{sI}, 2
        s_lshl_b32 s{sH}, s{sH}, 3
        s_add_u32 s{sH}, s{sH}, s{sXCD}
        s_and_b32 s{sJ}, s{sI}, 3
        v_mul_u32_u24 v{vA_wq}, {36*8192}, v{vG}
        v_lshl_add_u32 v{vA_wq}, v{vN}, 4, v{vA_wq}
        s_lshl_b32 s{sO2}, s{sJ}, 4
        s_add_u32 s{sO2}, s{sO2}, s{sW}
        s_mul_i32 s{sO2}, s{sO2}, 9
        s_lshl_b32 s{sO3}, s{sO2}, 13
        s_lshl_b32 s{sC}, s{sH}, 8
        s_add_u32 s{sO3}, s{sO3}, s{sC}
        v_bfe_u32 v{t0}, v{vL}, 3, 1
        v_mul_u32_u24 v{t0}, 1152, v{t0}
        v_mad_u32_u24 v{t0}, v{vG}, 64, v{t0}
        v_lshl_add_u32 v{t0}, v{vG}, 3, v{t0}
        s_lshr_b32 s{sO2}, s{sO2}, 1
        s_lshl_b32 s{sO2}, s{sO2}, 2
        s_waitcnt lgkmcnt(0)
        """)
        g.fstamp(5)
        g(f"""
        buffer_load_dwordx4 {v(vX,4)}, v{t0}, {X}, s{sO2} offen
        buffer_load_dword v{vX+4}, v{t0}, {X}, s{sO2} offen offset:16
        """)
        for i in range(9):
            g(f"buffer_load_dwordx4 {A(aWQ+4*i,4)}, v{vA_wq}, {WQ}, s{sO3} offen {NT}")
            if i != 8: g(f"s_addk_i32 s{sO3}, 0x2000")
        load_tag(g)
        srd_tail(g, 16, 512 * 8192)
        g(f"""
        v_bfe_u32 v{t0}, v{vL}, 2, 2
        v_lshlrev_b32 v{vA_uk}, 16, v{t0}
        v_lshl_add_u32 v{vA_uk}, v{vG}, 6, v{vA_uk}
        v_and_b32 v{t1}, 3, v{vL}
        v_lshl_add_u32 v{vA_uk}, v{t1}, 4, v{vA_uk}
        s_lshl_b32 s{sO2}, s{sJ}, 2
        s_add_u32 s{sO2}, s{sO2}, s{sW}
        s_lshl_b32 s{sO2}, s{sO2}, 18
        s_add_u32 s{sO2}, s{sO2}, s{sC}
        """)
        self.uk_split = g.opt.get("uk_early", 2)
        self.uk(range(self.uk_split))

    def uk(self, rows):
        g = self.g
        for r in rows:
            u = 2 * (r & 3) + (r >> 2)
            g(f"buffer_load_dwordx4 {A(self.aUK+4*u,4)}, v{self.vA_uk}, s[16:19], s{sO2} offen {self.NT}")
            g(f"s_addk_i32 s{sO2}, 0x2000")

    def rest(self):
        g, NT, vL, vN, vG = self.g, self.NT, self.vL, self.vN, self.vG
        opt = g.opt
        WUV, WO, W1, B2, GATE, OUT = "s[20:23]", "s[24:27]", "s[12:15]", "s[28:31]", "s[32:35]", "s[36:39]"
        t0, t1, t2, t3 = 4, 5, 6, 7
        vPOI = 8
        vSel = 12
        vX = self.vX
        vF = 160
        vQ = 48
        vR = 56
        vQlo, vQhi = 80, 84
        vAcc = 88
        vGr = 104
        vA_h1, vA_l16 = 110, 111
        vA_qlo, vA_qhi = 112, 113
        vTag = 114
        vQw = 46
        aWQ, aUK = self.aWQ, self.aUK
        sQ = 63
        g.stamp(1)
        selectors(g, vSel, vL, t0, t1, t2)
        g(f"""
        s_lshl_b32 s{sA}, s{sH}, 2
        s_add_u32 s{sA}, s{sA}, s{sJ}
        s_mov_b32 s{sPR}, s{sA}
        s_and_b32 s{sO}, s{sW}, 1
        s_lshl_b32 s{sO}, s{sO}, 4
        v_lshlrev_b32 v{vA_l16}, 4, v{vL}
        """)
        dual = 1 if opt.get("dual", 1) else 0
        g(f"s_mov_b32 s{sPOI}, {g.opt.get('poison', POISON)}")
        for k in range(4): g(f"v_mov_b32 v{vPOI+k}, s{sPOI}")
        g(f"s_cmp_gt_u32 s{sW}, 1")
        g("s_cbranch_scc1 L_A_e2")
        g(f"s_cmp_eq_u32 s{sW}, 1")
        g("s_cbranch_scc1 L_A_e1")
        if dual and not opt.get("b_touch"):
            g(f"""
            s_lshl_b32 s{sTMP}, s{sA}, 11
            s_add_u32 s{sTMP}, s{sTMP}, {H0+LOC}
            buffer_store_dwordx4 {v(vPOI,4)}, v{vA_l16}, {WS}, s{sTMP} offen
            buffer_store_dwordx4 {v(vPOI,4)}, v{vA_l16}, {WS}, s{sTMP} offen offset:1024
            """)
        g("s_branch L_A_e2")
        g.lab("L_A_e1")
        g(f"""
        v_lshlrev_b32 v{t0}, 15, v{vG}
        v_lshl_add_u32 v{t0}, v{vN}, 4, v{t0}
        s_lshl_b32 s{sTMP}, s{sA}, 8
        s_add_u32 s{sTMP}, s{sTMP}, {QB}
        s_mov_b32 exec_hi, 0
        buffer_store_dwordx4 {v(vPOI,4)}, v{t0}, {WS}, s{sTMP} offen sc1
        s_lshl_b32 s{sTMP}, s{sA}, 7
        s_add_u32 s{sTMP}, s{sTMP}, {D1}
        s_mov_b64 exec, 0xff
        buffer_store_dwordx4 {v(vPOI,4)}, v{vA_l16}, {WS}, s{sTMP} offen sc1
        s_mov_b64 exec, -1
        """)
        g.lab("L_A_e2")
        g.fstamp(6)
        g(f"s_waitcnt vmcnt({9+self.uk_split})")
        g.fstamp(7)
        for k in range(5):
            g(f"v_alignbit_b32 v{vX+k}, v{vX+k+1}, v{vX+k}, s{sO}")
        for i in range(9):
            for d in range(4):
                g(f"v_perm_b32 v{vF+4*i+d}, v{vX+(i>>1)}, v{vX+(i>>1)}, v{vSel+4*(i&1)+d}")
        g.fstamp(8)
        self.uk(range(self.uk_split, 8))
        g.fstamp(9)
        for i in range(9):
            g(f"s_waitcnt vmcnt({8-i+8})")
            g(f"{MF} {v(vQ+2,4)}, {v(vF+4*i,4)}, {A(aWQ+4*i,4)}, {'0' if i == 0 else v(vQ+2,4)}")
        g.fstamp(10)
        g(f"s_cmp_eq_u32 s{sW}, 0")
        g("s_cbranch_scc1 L_A_w0a")
        g(f"v_lshl_add_u32 v{t0}, s{sW}, 10, v{vA_l16}")
        g(f"ds_write_b128 v{t0}, {v(vQ+2,4)} offset:{A_QP-1024}")
        g("s_waitcnt lgkmcnt(0)")
        g("s_barrier")
        g(f"s_add_u32 s{sT}, s{sT}, {K0}")
        g(f"s_add_u32 s{sT+1}, s{sT+1}, {K1}")
        g("s_branch L_A_setup")
        g.lab("L_A_w0a")
        finish_tag(g)
        g(f"""
        v_mov_b32 v{vQ}, s{sT}
        v_mov_b32 v{vQ+1}, s{sT+1}
        v_mov_b32 v{vQ+6}, s{sT}
        v_mov_b32 v{vQ+7}, s{sT+1}
        s_barrier
        """)
        for k in range(3):
            g(f"ds_read_b128 {v(vR+4*k,4)}, v{vA_l16} offset:{A_QP+k*1024}")
        g("s_waitcnt lgkmcnt(1)")
        g(f"v_pk_add_f32 {v(vQ+2,2)}, {v(vQ+2,2)}, {v(vR,2)}")
        g(f"v_pk_add_f32 {v(vQ+4,2)}, {v(vQ+4,2)}, {v(vR+2,2)}")
        g("s_waitcnt lgkmcnt(0)")
        g(f"v_pk_add_f32 {v(vR+4,2)}, {v(vR+4,2)}, {v(vR+8,2)}")
        g(f"v_pk_add_f32 {v(vR+6,2)}, {v(vR+6,2)}, {v(vR+10,2)}")
        g(f"v_pk_add_f32 {v(vQ+2,2)}, {v(vQ+2,2)}, {v(vR+4,2)}")
        g(f"v_pk_add_f32 {v(vQ+4,2)}, {v(vQ+4,2)}, {v(vR+6,2)}")
        def h0_st(local):
            g(f"s_lshl_b32 s{sTMP+1}, s{sA}, 11")
            g(f"s_add_u32 s{sTMP+1}, s{sTMP+1}, {H0+(LOC if local else 0)}")
            g(f"buffer_store_dwordx4 {v(vQ,4)}, v{vA_l16}, {WS}, s{sTMP+1} offen {'' if local else 'sc1'}")
            g(f"buffer_store_dwordx4 {v(vQ+4,4)}, v{vA_l16}, {WS}, s{sTMP+1} offen offset:1024 {'' if local else 'sc1'}")
        h0_st(dual)
        g.stamp(2)
        g.lab("L_A_setup")
        g(f"""
        v_bfe_u32 v{t0}, v{vL}, 2, 2
        v_lshlrev_b32 v{vA_h1}, 15, v{vG}
        v_lshl_add_u32 v{vA_h1}, v{t0}, 4, v{vA_h1}
        s_lshl_b32 s{sQ}, s{sA}, 8
        s_lshl_b32 s{sO}, s{sW}, 6
        s_add_u32 s{sQ}, s{sQ}, s{sO}
        s_add_u32 s{sQ}, s{sQ}, {QB}
        v_bfe_u32 v{t0}, v{vL}, 2, 1
        v_lshlrev_b32 v{t0}, 8, v{t0}
        v_lshl_add_u32 v{t0}, v{vG}, 6, v{t0}
        v_and_b32 v{t1}, 3, v{vL}
        v_lshl_add_u32 v{t0}, v{t1}, 4, v{t0}
        v_add_u32 v{t0}, {A_QL}, v{t0}
        v_mov_b32 v{t1}, {A_ZERO}
        v_cmp_gt_u32 vcc, 8, v{vN}
        v_cndmask_b32 v{vA_qlo}, v{t1}, v{t0}, vcc
        v_cndmask_b32 v{vA_qhi}, v{t0}, v{t1}, vcc
        v_and_b32 v{t0}, 1, v{vL}
        v_cmp_eq_u32 s[{sM1}:{sM1+1}], 1, v{t0}
        v_and_b32 v{t0}, 2, v{vL}
        v_cmp_eq_u32 s[{sM2}:{sM2+1}], 2, v{t0}
        v_mov_b32 v{vTag}, s{sT}
        v_mov_b32 v{vTag+1}, s{sT+1}
        """)
        srd(g, 20, 4, 512 * 8192)
        srd(g, 24, 5, 4096 * 1152)
        srd(g, 12, 7, 576 * 9216)
        srd(g, 28, 10, 1152)
        srd(g, 32, 11, 1152)
        srd(g, 36, 12, 2304)
        vUV0, vUV1 = 20, 21
        vP2, vP1 = 22, 116
        def patterns():
            g(f"""
            v_lshlrev_b32 v{t0}, 1, v{vG}
            v_xor_b32 v{t0}, v{t0}, v{vN}
            v_lshlrev_b32 v{vUV0}, 17, v{vG}
            v_lshl_add_u32 v{vUV0}, v{t0}, 4, v{vUV0}
            v_xor_b32 v{vUV1}, 128, v{vUV0}
            """)
            for i in range(10):
                unit_pattern(g, vP2 + i, vL, sW if i == 9 else None, i, 1152, t0, t1)
                g(f"v_mul_u32_u24 v{t1}, {9216-1152}, v{t1}")
                g(f"v_add_u32 v{vP1+i}, v{vP2+i}, v{t1}")
        g(f"s_cmp_eq_u32 s{sW}, 0")
        g("s_cbranch_scc1 L_A_w0b")
        g(f"""
        v_mov_b32 v{t0}, 0
        v_mov_b32 v{t1}, 0
        v_mov_b32 v{t2}, {A_ZERO}
        ds_write_b64 v{t2}, {v(t0,2)}
        ds_write_b64 v{t2}, {v(t0,2)} offset:8
        """)
        patterns()
        g("s_branch L_A_h0wait")
        g.lab("L_A_w0b")
        sib = [0, sO, sO3, sC]
        for k in range(1, 4):
            g(f"s_xor_b32 s{sTMP}, s{sA}, {k}")
            g(f"s_lshl_b32 s{sTMP}, s{sTMP}, 11")
            g(f"s_add_u32 s{sib[k]}, s{sTMP}, {H0+dual*LOC}")
        g(f"""
        v_lshrrev_b32 v{vQw}, 1, v{vG}
        v_lshlrev_b32 v{vQw}, 8, v{vQw}
        v_lshl_add_u32 v{vQw}, v{vN}, 4, v{vQw}
        v_and_b32 v{t1}, 1, v{vG}
        v_lshl_add_u32 v{vQw}, v{t1}, 3, v{vQw}
        s_mov_b32 s{sCNT}, 0
        """)
        def h0loads():
            for k in range(1, 4):
                g(f"buffer_load_dwordx4 {v(vR+8*(k-1),4)}, v{vA_l16}, {WS}, s{sib[k]} offen sc1")
                g(f"buffer_load_dwordx4 {v(vR+8*(k-1)+4,4)}, v{vA_l16}, {WS}, s{sib[k]} offen offset:1024 sc1")
        h0loads()
        patterns()
        g("s_branch L_A_h0chk")
        g.lab("L_A_h0poll")
        if dual:
            g(f"s_cmp_lg_u32 s{sCNT}, 8")
            g("s_cbranch_scc1 L_A_h0ns")
            h0_st(False)
            g.lab("L_A_h0ns")
        dual_next(g, sib[1:])
        h0loads()
        spin_guard(g, "L_A_h0done")
        g.lab("L_A_h0chk")
        g("s_waitcnt vmcnt(0)")
        if opt.get("fst"):
            g(f"s_cmp_lg_u32 s{sCNT}, 0")
            g("s_cbranch_scc1 L_A_fs11")
            g.fstamp(11)
            g.lab("L_A_fs11")
        for k in range(3):
            g(f"v_cmp_ne_u64 vcc, s[{sT}:{sT+1}], {v(vR+8*k,2)}")
            g(f"v_cmp_ne_u64 s[{sM3}:{sM3+1}], s[{sT}:{sT+1}], {v(vR+8*k+6,2)}")
            if k == 0: g(f"s_or_b64 s[{sM4}:{sM4+1}], vcc, s[{sM3}:{sM3+1}]")
            else:
                g(f"s_or_b64 s[{sM4}:{sM4+1}], s[{sM4}:{sM4+1}], vcc")
                g(f"s_or_b64 s[{sM4}:{sM4+1}], s[{sM4}:{sM4+1}], s[{sM3}:{sM3+1}]")
        g("s_cbranch_scc1 L_A_h0poll")
        g.lab("L_A_h0done")
        g("s_waitcnt vmcnt(0)")
        g(f"v_pk_add_f32 {v(vR+2,2)}, {v(vQ+2,2)}, {v(vR+2,2)}")
        g(f"v_pk_add_f32 {v(vR+4,2)}, {v(vQ+4,2)}, {v(vR+4,2)}")
        g(f"v_pk_add_f32 {v(vR+10,2)}, {v(vR+10,2)}, {v(vR+18,2)}")
        g(f"v_pk_add_f32 {v(vR+12,2)}, {v(vR+12,2)}, {v(vR+20,2)}")
        g(f"v_pk_add_f32 {v(vR+2,2)}, {v(vR+2,2)}, {v(vR+10,2)}")
        g(f"v_pk_add_f32 {v(vR+4,2)}, {v(vR+4,2)}, {v(vR+12,2)}")
        g(f"v_cvt_pk_bf16_f32 v{vR}, v{vR+2}, v{vR+3}")
        g(f"v_cvt_pk_bf16_f32 v{vR+1}, v{vR+4}, v{vR+5}")
        g(f"ds_write_b64 v{vQw}, {v(vR,2)} offset:{A_QL}")
        g.lab("L_A_h0wait")
        g("s_waitcnt vmcnt(0) lgkmcnt(0)")
        g.fstamp(12)
        g("s_barrier")
        g.stamp(3)
        g(f"ds_read_b128 {v(vQlo,4)}, v{vA_qlo}")
        g(f"ds_read_b128 {v(vQhi,4)}, v{vA_qhi}")
        if opt.get("d1_pos", 0) == 0: bell(g, vTag, vA_l16, sA, D1, 1, "d1")
        g("s_waitcnt lgkmcnt(0)")
        for t in range(4):
            g(f"{MF} {v(vAcc+4*t,4)}, {v(vQlo,4)}, {A(aUK+8*t,4)}, 0")
        for t in range(4):
            g(f"{MF} {v(vAcc+4*t,4)}, {v(vQhi,4)}, {A(aUK+8*t+4,4)}, {v(vAcc+4*t,4)}")
        if opt.get("d1_pos", 0) == 1: bell(g, vTag, vA_l16, sA, D1, 1, "d1")
        for t in range(4):
            a0 = vAcc + 4 * t
            g(f"v_cndmask_b32 v{a0}, v{a0}, v{a0+1}, s[{sM1}:{sM1+1}]")
            g(f"v_cndmask_b32 v{a0+2}, v{a0+2}, v{a0+3}, s[{sM1}:{sM1+1}]")
            g(f"v_cndmask_b32 v{a0}, v{a0}, v{a0+2}, s[{sM2}:{sM2+1}]")
        for t in range(4):
            a0 = vAcc + 4 * t
            g(f"v_add_f32_dpp v{a0+1}, v{a0}, v{a0} quad_perm:[1,0,3,2] row_mask:0xf bank_mask:0xf")
        for t in range(4):
            a0 = vAcc + 4 * t
            g(f"v_add_f32_dpp v{a0}, v{a0+1}, v{a0+1} quad_perm:[2,3,0,1] row_mask:0xf bank_mask:0xf")
        g(f"v_cvt_pk_bf16_f32 v{vGr}, v{vAcc}, v{vAcc+4}")
        g(f"v_cvt_pk_bf16_f32 v{vGr+1}, v{vAcc+8}, v{vAcc+12}")
        g(f"v_permlane32_swap_b32 v{vGr}, v{vGr+2}")
        g(f"v_permlane32_swap_b32 v{vGr+1}, v{vGr+3}")
        g(f"""
        s_mov_b64 exec, 0x11111111
        buffer_store_dwordx4 {v(vGr,4)}, v{vA_h1}, {WS}, s{sQ} offen sc1
        s_mov_b64 exec, -1
        """)
        if opt.get("d1_pos", 0) == 2: bell(g, vTag, vA_l16, sA, D1, 1, "d1")
        g.stamp(4)
        g(f"""
        s_lshl_b32 s{sO}, s{sJ}, 5
        s_add_u32 s{sO}, s{sO}, s{sW}
        s_lshl_b32 s{sO}, s{sO}, 15
        s_lshl_b32 s{sO3}, s{sH}, 8
        s_add_u32 s{sO}, s{sO}, s{sO3}
        s_lshl_b32 s{sO3}, s{sW}, 13
        """)
        for z in range(8 if "uv" not in opt.get("skip", "") else 0):
            hi, gg = z >> 2, z & 3
            if opt.get("uv_thr"): g(f"s_waitcnt vmcnt({opt['uv_thr']-1})")
            g(f"s_add_u32 m0, s{sO3}, {A_WUV + z*1024}")
            g(f"s_add_u32 s{sTMP}, s{sO}, {(64*hi+gg)*8192}")
            g(f"buffer_load_dwordx4 v{vUV1 if z & 1 else vUV0}, {WUV}, s{sTMP} offen {NT} lds")
        g(f"s_mul_i32 s{sO2}, s{sI}, {36*9216}")
        g(f"s_mul_i32 s{sO3}, s{sXCD}, 1152")
        g(f"s_add_u32 s{sO2}, s{sO2}, s{sO3}")
        unit_load(g, W1, vP1, A_W1, sO2, 9216, "w1", NT, thr=opt.get("a_thr"))
        g(f"s_mul_i32 s{sO2}, s{sA}, {32*1152}")
        unit_load(g, WO, vP2, A_WO, sO2, 1152, "wo", NT, rows36=False, thr=opt.get("a_thr"))
        if dual:
            g(f"s_cmp_lg_u32 s{sW}, 0")
            g("s_cbranch_scc1 L_A_h0s2")
            h0_st(False)
            g.lab("L_A_h0s2")
        vH3, vH3x = 32, 33
        vHBs, vHs = 39, 45
        sH3m, sH3l, sHB, sHH = 63, 47, 61, 62
        h3_addr(g, vH3, vH3x, vL, vN, vG, t0)
        h3_soffs(g, sH3m, sH3l)
        if not opt.get("noreset"): g(f"buffer_store_dwordx4 {v(vPOI,4)}, v{vH3}, {WS}, s{sH3m} offen sc1")
        g(f"""
        v_lshlrev_b32 v{vHBs}, 6, v{vG}
        v_lshl_add_u32 v{vHBs}, v{vN}, 4, v{vHBs}
        s_lshl_b32 s{sHB}, s{sH}, 2
        s_add_u32 s{sHB}, s{sHB}, s{sW}
        s_lshl_b32 s{sHB}, s{sHB}, 2
        s_add_u32 s{sHB}, s{sHB}, s{sJ}
        s_lshl_b32 s{sHB}, s{sHB}, 8
        s_add_u32 s{sHB}, s{sHB}, {HB}
        v_lshrrev_b32 v{t0}, 1, v{vG}
        v_lshlrev_b32 v{vHs}, 10, v{t0}
        v_and_b32 v{t0}, 31, v{vL}
        v_lshl_add_u32 v{vHs}, v{t0}, 4, v{vHs}
        s_lshl_b32 s{sHH}, s{sXCD}, 4
        s_add_u32 s{sHH}, s{sHH}, s{sI}
        s_mul_i32 s{sHH}, s{sHH}, 9216
        s_and_b32 s{sTMP}, s{sW}, 1
        s_lshl_b32 s{sTMP}, s{sTMP}, 9
        s_add_u32 s{sHH}, s{sHH}, s{sTMP}
        s_add_u32 s{sHH}, s{sHH}, {HH}
        """)
        if opt.get("touch", 1):
            g(f"""
            s_mov_b64 exec, 0xffff
            s_add_u32 s{sTMP}, s{sHB}, {dual*LOC}
            buffer_store_dwordx4 {v(vPOI,4)}, v{vA_l16}, {WS}, s{sTMP} offen {"" if dual else "sc1"}
            s_mov_b64 exec, -1
            """)
            bell(g, vPOI, vA_l16, sPR, D3, 3, "d3t")
        g(f"s_cmp_gt_u32 s{sW}, 1")
        g("s_cbranch_scc1 L_A_nor3")
        g(f"buffer_store_dword v{vPOI}, v{vH3x}, {WS}, s{sH3l} offen sc1")
        if opt.get("touch", 1):
            for y in range(5):
                if y == 4: g("s_mov_b32 exec_hi, 0")
                g(f"s_add_u32 s{sTMP}, s{sHH}, {y*2048+dual*LOC}")
                g(f"buffer_store_dwordx4 {v(vPOI,4)}, v{vHs}, {WS}, s{sTMP} offen {'' if dual else 'sc1'}")
            g("s_mov_b64 exec, -1")
        g.lab("L_A_nor3")
        vTU0, vTU1, vTO0, vTO1 = 34, 35, 36, 37
        vCX, vCW, vHBl, vD2, vOg, vWTw, vWTr = 38, 46, 40, 41, 42, 43, 44
        g(f"""
        v_lshrrev_b32 v{t0}, 2, v{vL}
        v_bfe_u32 v{t1}, v{vL}, 1, 1
        v_lshl_add_u32 v{t1}, s{sW}, 2, v{t1}
        v_and_b32 v{t2}, 7, v{t0}
        v_lshlrev_b32 v{t2}, 1, v{t2}
        v_xor_b32 v{t1}, v{t1}, v{t2}
        v_lshlrev_b32 v{vTU0}, 8, v{t0}
        v_lshl_add_u32 v{vTU0}, v{t1}, 4, v{vTU0}
        v_and_b32 v{t1}, 1, v{vL}
        v_lshl_add_u32 v{vTU0}, v{t1}, 3, v{vTU0}
        v_xor_b32 v{vTU1}, 32, v{vTU0}
        """)
        assert A_WUV == 0
        vK0, vK1 = 22, 23
        tr_pair_bases(g, vTO0, vTO1, vK0, vK1, vL, A_WO, t0, t1, t2)
        g(f"""
        v_and_b32 v{t0}, 1, v{vL}
        v_lshlrev_b32 v{vCX}, 8, v{t0}
        v_lshl_add_u32 v{vCX}, v{vG}, 4, v{vCX}
        v_and_b32 v{t0}, 1, v{vG}
        v_lshlrev_b32 v{vCW}, 3, v{t0}
        v_lshl_add_u32 v{vCW}, v{vN}, 4, v{vCW}
        v_lshl_add_u32 v{vCW}, s{sW}, 8, v{vCW}
        v_and_b32 v{t0}, 3, v{vL}
        v_lshlrev_b32 v{vHBl}, 8, v{t0}
        v_lshl_add_u32 v{vHBl}, v{vG}, 6, v{vHBl}
        v_bfe_u32 v{t0}, v{vL}, 2, 1
        v_lshl_add_u32 v{vHBl}, v{t0}, 4, v{vHBl}
        v_and_b32 v{t0}, 31, v{vL}
        v_lshlrev_b32 v{vD2}, 8, v{t0}
        v_lshlrev_b32 v{vOg}, 11, v{vG}
        v_lshl_add_u32 v{vOg}, v{vN}, 4, v{vOg}
        v_lshlrev_b32 v{vWTw}, 1, v{t0}
        v_lshl_add_u32 v{vWTw}, s{sW}, 6, v{vWTw}
        v_lshlrev_b32 v{vWTr}, 4, v{vG}
        v_lshl_add_u32 v{vWTr}, s{sW}, 6, v{vWTr}
        v_cmp_gt_u32 s[{sM1}:{sM1+1}], 8, v{vN}
        """)
        vGx, vGw, vB2 = 48, 60, 72
        vOA, vFB = 73, 74
        vXr = 48
        vXA = 128
        g(f"v_mov_b32 v{vOA}, 0")
        g(f"s_cmp_gt_u32 s{sW}, 1")
        g("s_cbranch_scc1 L_A_xfrag")
        g(f"s_cmp_lg_u32 s{sW}, 0")
        g("s_cbranch_scc1 L_A_nogate")
        g(f"s_cmp_ge_u32 s{sA}, 36")
        g("s_cbranch_scc1 L_A_nogate")
        g(f"""
        v_and_b32 v{t0}, 31, v{vL}
        v_mul_u32_u24 v{t1}, 36, v{t0}
        v_lshrrev_b32 v{t2}, 5, v{vL}
        v_mul_u32_u24 v{t2}, 1152, v{t2}
        v_add_u32 v{t2}, v{t2}, v{t1}
        buffer_load_dwordx4 {v(vGx,4)}, v{t2}, {X}, 0 offen
        buffer_load_dwordx4 {v(vGx+4,4)}, v{t2}, {X}, 0 offen offset:16
        buffer_load_dword v{vGx+8}, v{t2}, {X}, 0 offen offset:32
        buffer_load_dwordx4 {v(vGw,4)}, v{t1}, {GATE}, 0 offen
        buffer_load_dwordx4 {v(vGw+4,4)}, v{t1}, {GATE}, 0 offen offset:16
        buffer_load_dword v{vGw+8}, v{t1}, {GATE}, 0 offen offset:32
        s_cmp_ge_u32 s{sA}, 32
        s_cbranch_scc1 L_A_uleft
        s_lshr_b32 s{sO}, s{sA}, 2
        s_lshl_b32 s{sO}, s{sO}, 4
        s_and_b32 s{sO3}, s{sA}, 1
        s_lshl_b32 s{sO3}, s{sO3}, 3
        s_add_u32 s{sO}, s{sO}, s{sO3}
        v_and_b32 v{t1}, 3, v{t0}
        v_lshlrev_b32 v{t1}, 7, v{t1}
        v_lshrrev_b32 v{t2}, 2, v{t0}
        v_add3_u32 v{t1}, v{t1}, v{t2}, s{sO}
        s_bfe_u32 s{sO3}, s{sA}, 0x10001
        v_mov_b32 v{vFB}, s{sO3}
        s_branch L_A_ujoin
        """)
        g.lab("L_A_uleft")
        g(f"""
        s_lshl_b32 s{sO}, s{sA}, 4
        v_and_b32 v{t1}, 15, v{t0}
        v_add_u32 v{t1}, s{sO}, v{t1}
        v_lshrrev_b32 v{vFB}, 4, v{t0}
        """)
        g.lab("L_A_ujoin")
        g(f"""
        v_lshlrev_b32 v{t1}, 1, v{t1}
        buffer_load_ushort v{vB2}, v{t1}, {B2}, 0 offen
        v_mul_u32_u24 v{vOA}, 1152, v{vFB}
        v_add_u32 v{vOA}, v{vOA}, v{t1}
        s_branch L_A_nogate
        """)
        g.lab("L_A_xfrag")
        g(f"""
        v_and_b32 v{t0}, 1, v{vL}
        v_mul_u32_u24 v{t0}, 1152, v{t0}
        s_mul_i32 s{sO}, s{sI}, 72
        buffer_load_dwordx2 {v(vXr+4,2)}, v{t0}, {X}, s{sO} offen offset:64
        v_lshl_add_u32 v{t0}, v{vG}, 3, v{t0}
        buffer_load_dwordx2 {v(vXr,2)}, v{t0}, {X}, s{sO} offen
        buffer_load_dwordx2 {v(vXr+2,2)}, v{t0}, {X}, s{sO} offen offset:32
        """)
        g.lab("L_A_nogate")
        g("s_waitcnt vmcnt(0)")
        g("s_barrier")
        g.stamp(5)
        aUV, aWO, aW1 = 0, 32, 80
        def own_frags(npair):
            for tau in range(2):
                for ks in range(4):
                    for hi in range(2):
                        g(f"ds_read_b64_tr_b16 {A(aUV+(tau*4+ks)*4+2*hi,2)}, v{vTU1 if tau else vTU0} offset:{ks*8192+hi*4096}")
            for t in range(npair):
                for x in range(2):
                    for hi in range(2):
                        g(f"ds_read_b64_tr_b16 {A(aWO+(t*2+x)*4+2*hi,2)}, v{vTO1 if x else vTO0} offset:{hi*16*1152+t*256}")
        g(f"s_cmp_lt_u32 s{sW}, 2")
        g("s_cbranch_scc1 L_A_comb")
        dW = A_W1 - A_WO - 128
        vH = 76
        def w1rd(s):
            t, x = s >> 1, s & 1
            g(f"ds_read_b64_tr_b16 {A(aW1+6*s,2)}, v{vTO1 if x else vTO0} offset:{dW+t*128}")
            g(f"ds_read_b64_tr_b16 {A(aW1+6*s+2,2)}, v{vTO1 if x else vTO0} offset:{dW+16*1152+t*128}")
        def w1rk(s):
            t, x = s >> 1, s & 1
            g(f"ds_read_b64_tr_b16 {A(aW1+6*s+4,2)}, v{vK1 if x else vK0} offset:{dW+t*128}")
        def w1mf(s):
            g(f"{MF} {v(vH+4*(s>>2),4)}, {v(vXA+6*(s&3),4)}, {A(aW1+6*s,4)}, {'0' if s & 3 == 0 else v(vH+4*(s>>2),4)}")
        for s in range(6): w1rd(s)
        g(f"v_lshrrev_b32 v{t0}, 1, v{vN}")
        g(f"v_lshrrev_b32 v{t1}, 1, v{vL}")
        for z in range(4):
            g(f"v_cmp_eq_u32 vcc, {2*z}, v{t0}")
            g(f"v_cmp_eq_u32 s[{sM3}:{sM3+1}], {2*z}, v{t1}")
            for d in range(4):
                g(f"v_cndmask_b32 v{vXA+6*z+d}, 0, v{vXr+d}, vcc")
            for d in range(4, 6):
                g(f"v_cndmask_b32 v{vXA+6*z+d}, 0, v{vXr+d}, s[{sM3}:{sM3+1}]")
        for s in range(6, 18):
            w1rd(s)
            g("s_waitcnt lgkmcnt(12)")
            w1mf(s - 6)
        for k in range(6):
            for s in range(3 * k, 3 * k + 3): w1rk(s)
            g(f"s_waitcnt lgkmcnt({min(15, 2*(5-k)+3*(k+1))})")
            w1mf(12 + k)
        for s in range(18):
            g(f"s_waitcnt lgkmcnt({min(15, 17-s)})")
            g(f"{MF16} {v(vH+4*(s>>2),4)}, {v(vXA+6*(s&3)+4,2)}, {A(aW1+6*s+4,2)}, {v(vH+4*(s>>2),4)}")
        for y in range(5):
            g(f"v_mov_b32 v{vH+4*y+2}, s{sT}")
            g(f"v_mov_b32 v{vH+4*y+3}, s{sT+1}")
            if y == 4: g("s_mov_b32 exec_hi, 0")
            if dual and opt.get("hh_dual", 1):
                g(f"s_add_u32 s{sTMP}, s{sHH}, {LOC}")
                g(f"buffer_store_dwordx4 {v(vH+4*y,4)}, v{vHs}, {WS}, s{sTMP} offen")
            g(f"buffer_store_dwordx4 {v(vH+4*y,4)}, v{vHs}, {WS}, s{sHH} offen sc1")
            if y < 4: g(f"s_addk_i32 s{sHH}, 0x800")
        g("s_mov_b64 exec, -1")
        g.stamp(6)
        own_frags(4)
        g("s_branch L_A_ctxwait")
        g.lab("L_A_comb")
        vDB = 76
        vO = 80
        vFr = 116
        vWt = 148
        vD = 152
        vLs = 156
        g(f"""
        s_lshr_b32 s{sO}, s{sH}, 4
        s_lshl_b32 s{sO}, s{sO}, 1
        s_add_u32 s{sO}, s{sO}, s{sW}
        s_lshl_b32 s{sO}, s{sO}, 13
        s_and_b32 s{sO3}, s{sH}, 15
        s_lshl_b32 s{sO3}, s{sO3}, 4
        s_add_u32 s{sO}, s{sO}, s{sO3}
        s_add_u32 s{sO}, s{sO}, {D2}
        buffer_load_dwordx4 {v(vDB,4)}, v{vD2}, {WS}, s{sO} offen sc1
        s_mul_i32 s{sO3}, s{sA}, {OSTR}
        s_lshl_b32 s{sTMP}, s{sW}, 13
        s_add_u32 s{sO3}, s{sO3}, s{sTMP}
        s_add_u32 s{sO3}, s{sO3}, {OB}
        s_mov_b32 s{sCNT}, 0
        """)
        own_frags(5)
        g(f"v_mov_b32 v{t0}, 0")
        for k in range(9):
            g(f"v_dot2_f32_bf16 v{t0}, v{vGx+k}, v{vGw+k}, v{t0}")
        g("s_nop 2")
        for r in (8, 4, 2, 1):
            g(f"v_add_f32_dpp v{t0}, v{t0}, v{t0} row_ror:{r} row_mask:0xf bank_mask:0xf")
        g(f"""
        v_mov_b32 v{t1}, v{t0}
        v_permlane16_swap_b32 v{t0}, v{t1}
        v_add_f32 v{t0}, v{t0}, v{t1}
        v_mul_f32 v{t0}, {hex(fbits(-math.log2(math.e)))}, v{t0}
        v_exp_f32 v{t0}, v{t0}
        v_add_f32 v{t0}, 1.0, v{t0}
        v_rcp_f32 v{t0}, v{t0}
        v_cmp_eq_u32 vcc, 1, v{vFB}
        v_mov_b32 v{t1}, v{t0}
        v_permlane32_swap_b32 v{t0}, v{t1}
        v_cndmask_b32 v{vFB}, v{t0}, v{t1}, vcc
        v_lshlrev_b32 v{vB2}, 16, v{vB2}
        s_branch L_A_d2chk
        """)
        g.lab("L_A_d2poll")
        g(f"buffer_load_dwordx4 {v(vDB,4)}, v{vD2}, {WS}, s{sO} offen sc1")
        spin_guard(g, "L_A_d2done")
        g.lab("L_A_d2chk")
        g("s_waitcnt vmcnt(0)")
        g(f"v_cmp_ne_u64 vcc, s[{sT}:{sT+1}], {v(vDB+2,2)}")
        g("s_cbranch_vccnz L_A_d2poll")
        g.lab("L_A_d2done")
        g("s_waitcnt vmcnt(0)")
        g.stamp(6)
        def ogather():
            for u in range(8):
                g(f"buffer_load_dwordx4 {v(vO+4*u,4)}, v{vOg}, {WS}, s{sO3} offen offset:{u*256} sc1")
        early = opt.get("o_early", 1)
        if early: ogather()
        g(f"v_max_f32_dpp v{t0}, v{vDB}, v{vDB} row_ror:8 row_mask:0xf bank_mask:0xf")
        for r in (4, 2, 1):
            g(f"v_max_f32_dpp v{t0}, v{t0}, v{t0} row_ror:{r} row_mask:0xf bank_mask:0xf")
        g(f"""
        v_mov_b32 v{t1}, v{t0}
        v_permlane16_swap_b32 v{t0}, v{t1}
        v_max_f32 v{t0}, v{t0}, v{t1}
        v_sub_f32 v{t0}, v{vDB}, v{t0}
        v_exp_f32 v{t0}, v{t0}
        v_cvt_pk_bf16_f32 v{t0}, v{t0}, v{t0}
        ds_write_b16 v{vWTw}, v{t0} offset:{A_WT}
        v_and_b32 v{t0}, 0xffff0000, v{t0}
        v_mul_f32 v{vLs}, v{t0}, v{vDB+1}
        s_waitcnt lgkmcnt(0)
        ds_read_b128 {v(vWt,4)}, v{vWTr} offset:{A_WT}
        """)
        for r in (8, 4, 2, 1):
            g(f"v_add_f32_dpp v{vLs}, v{vLs}, v{vLs} row_ror:{r} row_mask:0xf bank_mask:0xf")
        g(f"""
        v_mov_b32 v{t1}, v{vLs}
        v_permlane16_swap_b32 v{vLs}, v{t1}
        v_add_f32 v{vLs}, v{vLs}, v{t1}
        v_rcp_f32 v{vLs}, v{vLs}
        s_waitcnt lgkmcnt(0)
        """)
        for u in range(8):
            for d in range(4):
                g(f"v_perm_b32 v{vFr+4*u+d}, v{vWt+(u>>1)}, v{vWt+(u>>1)}, v{vSel+4*(u&1)+d}")
        g(f"s_mov_b32 s{sCNT}, 0")
        if early: g("s_branch L_A_ocomb")
        g.lab("L_A_oretry")
        ogather()
        g.lab("L_A_ocomb")
        for u in range(8):
            g(f"s_waitcnt vmcnt({7-u})")
            g(f"{MF} {v(vD,4)}, {v(vFr+4*u,4)}, {v(vO+4*u,4)}, {'0' if u == 0 else v(vD,4)}")
        g(f"v_cmp_u_f32 vcc, v{vD}, v{vD}")
        g("s_cbranch_vccnz L_A_oslow")
        g.lab("L_A_ook")
        if opt.get("stamps"): g(f"s_mov_b32 s100, s{sCNT}")
        for r in range(4):
            g(f"v_mul_f32 v{vD+r}, v{vLs}, v{vD+r}")
        g(f"v_cvt_pk_bf16_f32 v{vD}, v{vD}, v{vD+1}")
        g(f"v_cvt_pk_bf16_f32 v{vD+1}, v{vD+2}, v{vD+3}")
        g(f"ds_write_b64 v{vCW}, {v(vD,2)} offset:{A_CTXC}")
        g.lab("L_A_ctxwait")
        g("s_waitcnt lgkmcnt(0)")
        g("s_barrier")
        g.stamp(7)
        vC = 80
        vU = 96
        vG1, vG2 = 104, 108
        vAe, vAo = 116, 120
        vY = 124
        for ks in range(4):
            g(f"ds_read_b128 {v(vC+4*ks,4)}, v{vCX} offset:{A_CTXC+ks*64}")
        g(f"s_lshl_b32 s{sO3}, s{sA}, 10")
        g(f"s_add_u32 s{sO3}, s{sO3}, {HB+dual*LOC}")
        g(f"s_add_u32 s{sO}, s{sHB}, {LOC}")
        for ks in range(4):
            g(f"s_waitcnt lgkmcnt({3-ks})")
            for tau in range(2):
                g(f"{MF} {v(vU+4*tau,4)}, {A(aUV+(tau*4+ks)*4,4)}, {v(vC+4*ks,4)}, {'0' if ks == 0 else v(vU+4*tau,4)}")
        g(f"""
        v_cvt_pk_bf16_f32 v{vU}, v{vU}, v{vU+1}
        v_cvt_pk_bf16_f32 v{vU+1}, v{vU+2}, v{vU+3}
        v_cvt_pk_bf16_f32 v{vU+4}, v{vU+4}, v{vU+5}
        v_cvt_pk_bf16_f32 v{vU+5}, v{vU+6}, v{vU+7}
        v_cndmask_b32 v{vTag-2}, v{vU}, v{vU+4}, s[{sM2}:{sM2+1}]
        v_cndmask_b32 v{vTag-1}, v{vU+1}, v{vU+5}, s[{sM2}:{sM2+1}]
        s_mov_b32 exec_lo, 0x000f000f
        s_mov_b32 exec_hi, 0x000f000f
        """)
        if dual: g(f"buffer_store_dwordx4 {v(vTag-2,4)}, v{vHBs}, {WS}, s{sO} offen")
        else: g(f"buffer_store_dwordx4 {v(vTag-2,4)}, v{vHBs}, {WS}, s{sHB} offen sc1")
        def hb_st():
            g("s_mov_b32 exec_lo, 0x000f000f")
            g("s_mov_b32 exec_hi, 0x000f000f")
            g(f"buffer_store_dwordx4 {v(vTag-2,4)}, v{vHBs}, {WS}, s{sHB} offen sc1")
            g("s_mov_b64 exec, -1")
        g(f"""
        s_mov_b64 exec, -1
        s_mov_b32 s{sCNT}, 0
        """)
        g.stamp(8)
        g.lab("L_A_hbpoll")
        if dual:
            g(f"s_cmp_lg_u32 s{sCNT}, 8")
            g("s_cbranch_scc1 L_A_hbns")
            hb_st()
            g.lab("L_A_hbns")
        dual_next(g, [sO3])
        g(f"buffer_load_dwordx4 {v(vG1,4)}, v{vHBl}, {WS}, s{sO3} offen sc1")
        g(f"buffer_load_dwordx4 {v(vG2,4)}, v{vHBl}, {WS}, s{sO3} offen offset:32 sc1")
        spin_guard(g, "L_A_hbdone")
        g("s_waitcnt vmcnt(0)")
        g(f"v_cmp_ne_u64 vcc, s[{sT}:{sT+1}], {v(vG1+2,2)}")
        g(f"v_cmp_ne_u64 s[{sM3}:{sM3+1}], s[{sT}:{sT+1}], {v(vG2+2,2)}")
        g(f"s_or_b64 vcc, vcc, s[{sM3}:{sM3+1}]")
        g("s_cbranch_scc1 L_A_hbpoll")
        g.lab("L_A_hbdone")
        g("s_waitcnt vmcnt(0)")
        g.stamp(9)
        bell(g, vTag, vD2, sPR, D3, 3, "d3a")
        src = [vG1, vG1 + 1, vG2, vG2 + 1]
        for d in range(4):
            g(f"v_cndmask_b32 v{vAe+d}, 0, v{src[d]}, s[{sM1}:{sM1+1}]")
        for d in range(4):
            g(f"v_cndmask_b32 v{vAo+d}, v{src[d]}, 0, s[{sM1}:{sM1+1}]")
        for t in range(4):
            g(f"{MF} {v(vY+4*t,4)}, {v(vAe,4)}, {A(aWO+(t*2)*4,4)}, 0")
        for t in range(4):
            g(f"{MF} {v(vY+4*t,4)}, {v(vAo,4)}, {A(aWO+(t*2+1)*4,4)}, {v(vY+4*t,4)}")
        g(f"s_cmp_gt_u32 s{sW}, 1")
        g("s_cbranch_scc1 L_A_no5")
        g(f"{MF} {v(vY+16,4)}, {v(vAe,4)}, {A(aWO+32,4)}, 0")
        g(f"{MF} {v(vY+16,4)}, {v(vAo,4)}, {A(aWO+36,4)}, {v(vY+16,4)}")
        g.lab("L_A_no5")
        for t in range(4):
            g(f"v_pk_add_f32 {v(vY+4*t,2)}, {v(vY+4*t,2)}, {v(vY+4*t+2,2)}")
        for t in range(4):
            g(f"v_add_f32 v{vAe+t}, v{vY+4*t}, v{vY+4*t+1}")
        g(f"buffer_store_dwordx4 {v(vAe,4)}, v{vH3}, {WS}, s{sH3m} offen sc1")
        g(f"s_cmp_gt_u32 s{sW}, 1")
        g("s_cbranch_scc1 L_A_no5b")
        g(f"v_pk_add_f32 {v(vY+16,2)}, {v(vY+16,2)}, {v(vY+18,2)}")
        g(f"v_add_f32 v{vY+16}, v{vY+16}, v{vY+17}")
        g(f"buffer_store_dword v{vY+16}, v{vH3x}, {WS}, s{sH3l} offen sc1")
        g.lab("L_A_no5b")
        if dual: hb_st()
        g.stamp(10)
        g(f"s_cmp_ge_u32 s{sA}, 36")
        g("s_cbranch_scc1 L_A_exit")
        vRd = 80
        vDa, vRw = 96, 97
        order = opt.get("red_order", (1, 0))
        g(f"""
        v_and_b32 v{t0}, 31, v{vL}
        v_lshlrev_b32 v{vDa}, 7, v{t0}
        v_lshlrev_b32 v{vA_l16}, 4, v{vL}
        v_and_b32 v{t0}, 7, v{vL}
        v_lshlrev_b32 v{vRw}, 6, v{t0}
        v_lshrrev_b32 v{t0}, 5, v{vL}
        v_lshl_add_u32 v{vRw}, v{t0}, 4, v{vRw}
        v_bfe_u32 v{t0}, v{vL}, 4, 1
        v_lshl_add_u32 v{vRw}, v{t0}, 5, v{vRw}
        v_lshl_add_u32 v{vRw}, s{sW}, 2, v{vRw}
        s_lshl_b32 s{sO2}, s{sW}, 12
        s_mul_i32 s{sO3}, s{sA}, {USTR}
        s_add_u32 s{sO3}, s{sO3}, s{sO2}
        """)
        for part in order:
            P = f"L_A_r{part}"
            g(f"s_add_u32 s{sO}, s{sO2}, {D3 + part*16384}")
            g(f"s_mov_b32 s{sCNT}, 0")
            g.lab(P + "poll")
            g(f"buffer_load_dwordx2 {v(t0,2)}, v{vDa}, {WS}, s{sO} offen sc1")
            spin_guard(g, P + "go")
            g("s_waitcnt vmcnt(0)")
            g(f"v_cmp_ne_u64 vcc, s[{sT}:{sT+1}], {v(t0,2)}")
            g(f"s_cbranch_vccnz {P}poll")
            g.lab(P + "go")
            g(f"s_add_u32 s{sO}, s{sO3}, {H3 + part*16384}")
            g(f"s_mov_b32 s{sCNT}, 0")
            g.lab(P + "get")
            for u in range(4):
                g(f"buffer_load_dwordx4 {v(vRd+4*u,4)}, v{vA_l16}, {WS}, s{sO} offen offset:{u*1024} sc1")
            g("s_waitcnt vmcnt(2)")
            g(f"v_pk_add_f32 {v(vY,2)}, {v(vRd,2)}, {v(vRd+4,2)}")
            g(f"v_pk_add_f32 {v(vY+2,2)}, {v(vRd+2,2)}, {v(vRd+6,2)}")
            g("s_waitcnt vmcnt(0)")
            g(f"v_pk_add_f32 {v(vY+4,2)}, {v(vRd+8,2)}, {v(vRd+12,2)}")
            g(f"v_pk_add_f32 {v(vY+6,2)}, {v(vRd+10,2)}, {v(vRd+14,2)}")
            g(f"v_pk_add_f32 {v(vY,2)}, {v(vY,2)}, {v(vY+4,2)}")
            g(f"v_pk_add_f32 {v(vY+2,2)}, {v(vY+2,2)}, {v(vY+6,2)}")
            g(f"v_permlane32_swap_b32 v{vY}, v{vY+1}")
            g(f"v_permlane32_swap_b32 v{vY+2}, v{vY+3}")
            g(f"v_add_f32 v{vY}, v{vY}, v{vY+1}")
            g(f"v_add_f32 v{vY+2}, v{vY+2}, v{vY+3}")
            g(f"v_permlane16_swap_b32 v{vY}, v{vY+2}")
            g(f"v_add_f32 v{vY}, v{vY}, v{vY+2}")
            g(f"v_cmp_u_f32 vcc, v{vY}, v{vY}")
            g(f"s_cbranch_vccnz {P}slow")
            g.lab(P + "ok")
            g(f"v_add_f32_dpp v{vY}, v{vY}, v{vY} row_ror:8 row_mask:0xf bank_mask:0xf")
            g(f"ds_write_b32 v{vRw}, v{vY} offset:{A_RED + part*512}")
            g.stamp(11 + order.index(part))
        g("s_waitcnt lgkmcnt(0)")
        g("s_barrier")
        g(f"s_cmp_lg_u32 s{sW}, 0")
        g("s_cbranch_scc1 L_A_exit")
        g(f"""
        s_mov_b32 exec_hi, 0
        ds_read_b128 {v(vRd,4)}, v{vA_l16} offset:{A_RED}
        ds_read_b128 {v(vRd+4,4)}, v{vA_l16} offset:{A_RED+512}
        v_sub_f32 v{t0}, 1.0, v{vFB}
        s_waitcnt lgkmcnt(0)
        v_pk_add_f32 {v(vRd,2)}, {v(vRd,2)}, {v(vRd+2,2)}
        v_pk_add_f32 {v(vRd+4,2)}, {v(vRd+4,2)}, {v(vRd+6,2)}
        v_add_f32 v{vRd}, v{vRd}, v{vRd+1}
        v_add_f32 v{vRd+4}, v{vRd+4}, v{vRd+5}
        v_add_f32 v{vRd+4}, v{vRd+4}, v{vB2}
        v_mul_f32 v{vRd+4}, v{t0}, v{vRd+4}
        v_fma_f32 v{vRd}, v{vFB}, v{vRd}, v{vRd+4}
        v_cvt_pk_bf16_f32 v{vRd}, v{vRd}, v{vRd}
        buffer_store_short v{vRd}, v{vOA}, {OUT}, 0 offen
        s_cmp_lg_u32 s{sA}, 0
        s_cbranch_scc1 L_A_exit
        s_mov_b64 exec, 1
        buffer_store_dwordx2 {v(vTag,2)}, v{vA_l16}, {WS}, 0 offen offset:{EPOCH} sc1
        """)
        if opt.get("probe") is not None:
            i = opt["probe"]
            g.stamp(13)
            g("s_waitcnt lgkmcnt(0)")
            if opt.get("xprobe") is not None:
                g(f"""
                s_load_dwordx2 s[32:33], s[0:1], 104
                s_mov_b32 s34, 256
                s_mov_b32 s35, 0x00020000
                v_mov_b32 v7, {4*opt["xprobe"]}
                s_waitcnt lgkmcnt(0)
                buffer_load_dword v6, v7, s[32:35], 0 offen sc1
                s_waitcnt vmcnt(0)
                v_readfirstlane_b32 s{70+2*i}, v6
                s_add_u32 s{70+2*i}, s{70+2*i}, 200
                """)
            g(f"s_sub_u32 s{sO}, s{70+2*i}, s70")
            g(f"s_lshl_b32 s{sO}, s{sO}, 2")
            g(f"s_add_u32 s{sO}, s{sO}, 4000")
            g.lab("L_probe")
            g(f"s_memrealtime s[{sTMP}:{sTMP+1}]")
            g("s_waitcnt lgkmcnt(0)")
            g(f"s_sub_u32 s{sTMP}, s{sTMP}, s70")
            g(f"s_cmp_lt_u32 s{sTMP}, s{sO}")
            g("s_cbranch_scc1 L_probe")
            g("s_endpgm")
        g.lab("L_A_exit")
        g.stamp(13)
        dump_stamps(g, 16, 160)
        g("s_endpgm")
        g.lab("L_A_oslow")
        spin_guard(g, "L_A_ook")
        g(f"s_mov_b64 s[{sM4}:{sM4+1}], 0")
        for u in range(8):
            g(f"v_cmp_eq_u32 vcc, s{sPOI}, v{vO+4*u}")
            g(f"s_or_b64 s[{sM4}:{sM4+1}], s[{sM4}:{sM4+1}], vcc")
        g("s_cbranch_scc1 L_A_oretry")
        g("s_branch L_A_ook")
        for part in order:
            P = f"L_A_r{part}"
            g.lab(P + "slow")
            spin_guard(g, P + "ok")
            g(f"s_mov_b64 s[{sM4}:{sM4+1}], 0")
            for k in range(16):
                g(f"v_cmp_eq_u32 vcc, s{sPOI}, v{vRd+k}")
                g(f"s_or_b64 s[{sM4}:{sM4+1}], s[{sM4}:{sM4+1}], vcc")
            g(f"s_cbranch_scc1 {P}get")
            g(f"s_branch {P}ok")

class RoleB:
    def __init__(self, g, NT, vL, vN, vG):
        self.g, self.NT, self.vL, self.vN, self.vG = g, NT, vL, vN, vG
    vL16 = 12

    def issue(self):
        g, NT, vL = self.g, self.NT, self.vL
        CKV = "s[28:31]"
        t0 = 4
        srd_tail(g, 28, 2 * 4096 * 1024)
        g(f"""
        s_and_b32 s{sB}, s{sXCD}, 1
        s_lshr_b32 s{sMSG}, s{sI}, 1
        s_lshl_b32 s{sMSG}, s{sMSG}, 2
        s_lshr_b32 s{sO}, s{sXCD}, 1
        s_add_u32 s{sMSG}, s{sMSG}, s{sO}
        s_lshl_b32 s{sO}, s{sB}, 5
        s_add_u32 s{sMSG}, s{sMSG}, s{sO}
        v_lshlrev_b32 v{self.vL16}, 4, v{vL}
        s_waitcnt lgkmcnt(0)
        """)
        load_tag(g)
        if g.opt.get("b_touch"):
            g(f"""
            s_lshr_b32 s{sO}, s{sI}, 2
            s_lshl_b32 s{sO}, s{sO}, 3
            s_add_u32 s{sO}, s{sO}, s{sXCD}
            s_lshl_b32 s{sO}, s{sO}, 2
            s_and_b32 s{sO2}, s{sI}, 3
            s_add_u32 s{sO}, s{sO}, s{sO2}
            s_lshl_b32 s{sO2}, s{sO}, 11
            s_add_u32 s{sO2}, s{sO2}, {H0+LOC}
            s_lshl_b32 s{sO}, s{sO}, 10
            s_add_u32 s{sO}, s{sO}, {HB+LOC}
            s_cmp_eq_u32 s{sW}, 1
            s_cselect_b32 s{sO}, s{sO}, s{sO2}
            v_lshlrev_b32 v4, 7, v{vL}
            s_mov_b64 exec, 0xffff
            buffer_load_dword v254, v4, {WS}, s{sO} offen
            s_mov_b64 exec, -1
            """)
        if g.opt.get("b_reset_first", 1):
            self.resets()
        g(f"""
        s_lshl_b32 s{sO}, s{sMSG}, 2
        s_add_u32 s{sO}, s{sO}, s{sW}
        s_lshl_b32 s{sO}, s{sO}, 15
        s_lshl_b32 m0, s{sW}, 15
        s_add_u32 m0, m0, {B_CKV}
        s_mov_b32 s{sCNT}, 0
        """)
        if g.opt.get("b_wait", 1): g("s_waitcnt vmcnt(0)")
        if g.opt.get("b_sleep"): g(f"s_sleep {g.opt['b_sleep']}")
        g.stamp(8)
        g.lab("L_B_ckv")
        thr = g.opt.get("ckv_thr")
        for k in range(16):
            f = f16sw(k)
            tmp = t0 + (k & 1)
            g(f"v_xor_b32 v{tmp}, {f*16}, v{self.vL16}")
            if thr is not None: g(f"s_waitcnt vmcnt({thr-1})")
            g(f"buffer_load_dwordx4 v{tmp}, {CKV}, s{sO} offen offset:{(k%4)*1024} {NT} lds")
            if k % 4 == 3:
                g(f"s_addk_i32 s{sO}, 0x1000")
                g(f"s_add_u32 m0, m0, 0x1000")
        g(f"s_add_u32 s{sCNT}, s{sCNT}, 1")
        g(f"s_cmp_lt_u32 s{sCNT}, 2")
        g("s_cbranch_scc1 L_B_ckv")

    def resets(self):
        g, vL, vN, vG = self.g, self.vL, self.vN, self.vG
        t0 = 4
        vPOI, vL16, vOa, vH3, vH3x = 8, self.vL16, 13, 14, 15
        sOo, sH3m, sH3l = 61, 62, 63
        g(f"""
        s_and_b32 s{sHG}, s{sI}, 1
        s_lshl_b32 s{sU2}, s{sXCD}, 4
        s_add_u32 s{sU2}, s{sU2}, s{sI}
        s_add_u32 s{sPR}, s{sU2}, 128
        s_mov_b32 s{sPOI}, {g.opt.get('poison', POISON)}
        """)
        for k in range(4): g(f"v_mov_b32 v{vPOI+k}, s{sPOI}")
        g(f"""
        v_mul_u32_u24 v{vOa}, {16*OSTR}, v{vG}
        v_lshl_add_u32 v{vOa}, v{vN}, 4, v{vOa}
        s_lshl_b32 s{sOo}, s{sHG}, 6
        s_add_u32 s{sOo}, s{sOo}, s{sW}
        s_mul_i32 s{sOo}, s{sOo}, {OSTR}
        s_lshl_b32 s{sO}, s{sMSG}, 8
        s_add_u32 s{sOo}, s{sOo}, s{sO}
        s_add_u32 s{sOo}, s{sOo}, {OB}
        """)
        for r in range(4):
            g(f"s_add_u32 s{sO}, s{sOo}, {4*r*OSTR}")
            if not g.opt.get("noreset"): g(f"buffer_store_dwordx4 {v(vPOI,4)}, v{vOa}, {WS}, s{sO} offen sc1")
        h3_addr(g, vH3, vH3x, vL, vN, vG, t0)
        h3_soffs(g, sH3m, sH3l)
        if not g.opt.get("noreset"): g(f"buffer_store_dwordx4 {v(vPOI,4)}, v{vH3}, {WS}, s{sH3m} offen sc1")
        sD2 = 59
        g(f"""
        s_lshl_b32 s{sD2}, s{sHG}, 6
        s_add_u32 s{sD2}, s{sD2}, s{sMSG}
        s_lshl_b32 s{sD2}, s{sD2}, 8
        s_add_u32 s{sD2}, s{sD2}, {D2}
        """)
        g(f"s_cmp_gt_u32 s{sW}, 1")
        g("s_cbranch_scc1 L_B_nor3")
        g(f"buffer_store_dword v{vPOI}, v{vH3x}, {WS}, s{sH3l} offen sc1")
        g("s_branch L_B_r3j")
        g.lab("L_B_nor3")
        g(f"""
        s_lshl_b32 s{sTMP}, s{sPR}, 7
        s_add_u32 s{sTMP}, s{sTMP}, {D3}
        s_cmp_eq_u32 s{sW}, 2
        s_cselect_b32 s{sTMP}, s{sD2}, s{sTMP}
        s_cselect_b64 exec, 0xffff, 1
        buffer_store_dwordx4 {v(vPOI,4)}, v{vL16}, {WS}, s{sTMP} offen sc1
        s_mov_b64 exec, -1
        """)
        g.lab("L_B_r3j")

    def rest(self):
        g, NT, vL, vN, vG = self.g, self.NT, self.vL, self.vN, self.vG
        opt = g.opt
        W2, B1 = "s[20:23]", "s[24:27]"
        t0, t1, t2, t3 = 4, 5, 6, 7
        vPOI = 8
        vL16 = self.vL16
        vOa = 13
        vH3, vH3x = 14, 15
        vB1 = 22
        vSB = 24
        vQBs = 28
        vPVb = 16
        vPr = 20
        vTag = 36
        vML = 34
        vMXw, vMXr = 38, 39
        vD1 = 40
        vP2 = 42
        vW2 = 168
        aS, aP = 0, 128
        sOo = 61
        sH3m, sH3l = 62, 63
        w2e = opt.get("w2_early", 0)
        g.stamp(1)
        srd(g, 20, 9, 4608 * 1152)
        srd(g, 24, 8, 9216)
        if not opt.get('b_reset_first', 1): self.resets()
        sD2 = 59
        NY = 0 if opt.get('b_reset_first', 1) else 6
        def fsw(dst, src, tmp):
            g(f"v_lshrrev_b32 v{tmp}, 3, v{src}")
            g(f"v_and_b32 v{dst}, 7, v{src}")
            g(f"v_lshl_add_u32 v{dst}, v{dst}, 1, v{tmp}")
            g(f"v_lshlrev_b32 v{tmp}, 3, v{tmp}")
            g(f"v_xor_b32 v{dst}, v{dst}, v{tmp}")
        fsw(t2, vN, t3)
        g(f"""
        v_xor_b32 v{t2}, v{t2}, v{vG}
        v_lshlrev_b32 v{t2}, 4, v{t2}
        v_lshl_add_u32 v{t2}, v{vN}, 10, v{t2}
        s_lshl_b32 s{sO}, s{sW}, 15
        s_add_u32 s{sO}, s{sO}, {B_CKV}
        """)
        assert B_QF == 0
        for q in range(4):
            g(f"v_xor_b32 v{vQBs+q}, {q*64}, v{t2}")
            g(f"v_add_u32 v{vSB+q}, s{sO}, v{vQBs+q}")
        g(f"s_waitcnt vmcnt({16+NY})")
        for ks in range(16):
            g(f"ds_read_b128 {A(aS+ks*4,4)}, v{vSB+(ks&3)} offset:{(ks>>2)*256}")
        g(f"v_lshrrev_b32 v{t0}, 2, v{vL}")
        fsw(t2, t0, t3)
        g(f"""
        v_bfe_u32 v{t3}, v{vL}, 1, 1
        v_xor_b32 v{t2}, v{t2}, v{t3}
        v_lshlrev_b32 v{t1}, 10, v{t0}
        v_lshl_add_u32 v{t1}, v{t2}, 4, v{t1}
        v_and_b32 v{t3}, 1, v{vL}
        v_lshl_add_u32 v{t1}, v{t3}, 3, v{t1}
        v_lshl_add_u32 v{t1}, s{sW}, 8, v{t1}
        """)
        for k in range(4):
            g(f"s_add_u32 s{sO}, s{sW}, {k}")
            g(f"s_and_b32 s{sO}, s{sO}, 3")
            if k:
                g(f"v_lshl_add_u32 v{[0,20,21,23][k]}, s{sO}, 10, v{vL16}")
            g(f"s_lshl_b32 s{sO}, s{sO}, 15")
            g(f"s_add_u32 s{sO}, s{sO}, {B_CKV}")
            g(f"v_add_u32 v{vPVb+k}, s{sO}, v{t1}")
        g(f"""
        v_lshlrev_b32 v{vMXr}, 4, v{vN}
        v_lshl_add_u32 v{vMXw}, v{vG}, 2, v{vMXr}
        v_lshl_add_u32 v{vMXw}, s{sW}, 8, v{vMXw}
        v_lshlrev_b32 v{vD1}, 7, v{vN}
        """)
        for i in range(10):
            unit_pattern(g, vP2 + i, vL, sW if i == 9 else None, i, 1152, t0, t1)
        vQd = 152
        g(f"""
        s_lshl_b32 s{sO3}, s{sB}, 1
        s_add_u32 s{sO3}, s{sO3}, s{sHG}
        s_lshl_b32 s{sO3}, s{sO3}, 2
        s_add_u32 s{sO3}, s{sO3}, s{sW}
        s_lshl_b32 s{sO3}, s{sO3}, 12
        s_add_u32 s{sO3}, s{sO3}, {QB}
        s_lshr_b32 s{sTMP}, s{sW}, 1
        s_xor_b32 s{sTMP+1}, s{sW}, s{sTMP}
        s_and_b32 s{sTMP+1}, s{sTMP+1}, 1
        s_lshl_b32 s{sTMP+1}, s{sTMP+1}, 3
        s_add_u32 s{sTMP}, s{sTMP}, s{sTMP+1}
        s_lshl_b32 s{sTMP}, s{sTMP}, 4
        v_xor_b32 v{vQd}, s{sTMP}, v{vL16}
        v_xor_b32 v{vQd+1}, 32, v{vQd}
        v_xor_b32 v{vQd+2}, 64, v{vQd}
        v_xor_b32 v{vQd+3}, 0x60, v{vQd}
        s_lshl_b32 m0, s{sW}, 12
        v_mov_b32 v{t0}, 0
        v_lshlrev_b32 v{t1}, 2, v{vL}
        s_mov_b32 exec_hi, 0
        ds_write_b32 v{t1}, v{t0} offset:{B_ZERO}
        s_mov_b64 exec, -1
        """)
        finish_tag(g)
        g(f"v_mov_b32 v{vTag}, s{sT}")
        g(f"v_mov_b32 v{vTag+1}, s{sT+1}")
        g(f"""
        s_mul_i32 s{sO}, s{sU2}, 72
        s_mul_i32 s{sTMP}, s{sW}, 18
        s_add_u32 s{sO}, s{sO}, s{sTMP}
        v_lshlrev_b32 v{t0}, 1, v{vN}
        buffer_load_ushort v{vB1}, v{t0}, {B1}, s{sO} offen
        """)
        if w2e:
            g(f"s_mul_i32 s{sO2}, s{sU2}, {36*1152}")
            unit_load(g, W2, vP2, None, sO2, 1152, "w2e", NT, vdst=vW2)
        vDB = 64
        g(f"""
        s_lshl_b32 s{sO2}, s{sHG}, 2
        s_add_u32 s{sO2}, s{sO2}, s{sW}
        s_lshl_b32 s{sO2}, s{sO2}, 11
        s_add_u32 s{sO2}, s{sO2}, {D1}
        buffer_load_dwordx2 {v(vDB,2)}, v{vD1}, {WS}, s{sO2} offen sc1
        s_waitcnt vmcnt({NY + 2 + (10 if w2e else 0)})
        """)
        g.stamp(2)
        for ks in range(16):
            g(f"ds_read_b128 {A(aS+64+ks*4,4)}, v{vSB+(ks&3)} offset:{16384+(ks>>2)*256}")
        g("s_barrier")
        def pvgroup(k):
            for ct in range(8):
                tmp = t0 + (ct & 1)
                g(f"v_xor_b32 v{tmp}, {ct<<5}, v{vPVb+k}")
                for hi in range(2):
                    g(f"ds_read_b64_tr_b16 {A(aP+(ct*4+k)*4+2*hi,2)}, v{tmp} offset:{hi*16384}")
        def qdma():
            for k in range(4):
                g(f"buffer_load_dwordx4 v{vQd+k}, {WS}, s{sO3} offen offset:{k*1024} sc1 lds")
        sGot = 58
        g(f"s_mov_b32 s{sGot}, 0")
        for k in range(4):
            g(f"s_cmp_lg_u32 s{sGot}, 0")
            g(f"s_cbranch_scc1 L_B_pv{k}")
            g("s_waitcnt vmcnt(0)")
            g(f"v_cmp_ne_u64 vcc, s[{sT}:{sT+1}], {v(vDB,2)}")
            g(f"s_cbranch_vccnz L_B_pp{k}")
            g.stamp(3)
            qdma()
            g(f"s_mov_b32 s{sGot}, 1")
            g(f"s_branch L_B_pv{k}")
            g.lab(f"L_B_pp{k}")
            g(f"buffer_load_dwordx2 {v(vDB,2)}, v{vD1}, {WS}, s{sO2} offen sc1")
            g.lab(f"L_B_pv{k}")
            pvgroup(k)
        g(f"s_mov_b32 s{sCNT}, 0")
        g(f"s_cmp_lg_u32 s{sGot}, 0")
        g("s_cbranch_scc1 L_B_qwait")
        g("s_branch L_B_d1chk")
        g.lab("L_B_d1poll")
        g(f"buffer_load_dwordx2 {v(vDB,2)}, v{vD1}, {WS}, s{sO2} offen sc1")
        spin_guard(g, "L_B_qget0")
        g.lab("L_B_d1chk")
        g("s_waitcnt vmcnt(0)")
        g(f"v_cmp_ne_u64 vcc, s[{sT}:{sT+1}], {v(vDB,2)}")
        g("s_cbranch_vccnz L_B_d1poll")
        g.stamp(3)
        g.lab("L_B_qget0")
        g(f"s_mov_b32 s{sCNT}, 0")
        g.lab("L_B_qget")
        qdma()
        g.lab("L_B_qwait")
        g("s_waitcnt vmcnt(0) lgkmcnt(0)")
        g("s_barrier")
        g.stamp(4)
        vQ = 64
        vS = 156
        PRE = 6
        for ks in range(PRE):
            g(f"ds_read_b128 {v(vQ+4*ks,4)}, v{vQBs+(ks&3)} offset:{(ks>>2)*256}")
        for ks in range(16):
            if ks + PRE < 16:
                k2 = ks + PRE
                g(f"ds_read_b128 {v(vQ+4*k2,4)}, v{vQBs+(k2&3)} offset:{(k2>>2)*256}")
            g(f"s_waitcnt lgkmcnt({min(PRE, 15-ks)})")
            for kt in range(2):
                g(f"{MF} {v(vS+4*kt,4)}, {A(aS+(kt*16+ks)*4,4)}, {v(vQ+4*ks,4)}, {'0' if ks == 0 else v(vS+4*kt,4)}")
        CS = math.log2(math.e) * 128 ** -0.5
        g(f"s_mov_b32 s{sC}, {hex(fbits(CS))}")
        g(f"""
        v_cmp_u_f32 vcc, v{vS}, v{vS}
        v_max3_f32 v{t0}, v{vS}, v{vS+1}, v{vS+2}
        v_max3_f32 v{t1}, v{vS+3}, v{vS+4}, v{vS+5}
        v_max3_f32 v{t0}, v{t0}, v{vS+6}, v{vS+7}
        v_max_f32 v{t0}, v{t0}, v{t1}
        s_cbranch_vccnz L_B_qslow
        """)
        g.lab("L_B_qok")
        if opt.get("stamps"): g(f"s_mov_b32 s100, s{sCNT}")
        g(f"""
        ds_write_b32 v{vMXw}, v{t0} offset:{B_MX}
        s_waitcnt lgkmcnt(0)
        s_barrier
        """)
        g.stamp(5)
        vM = 64
        for q in range(4):
            g(f"ds_read_b128 {v(vM+4*q,4)}, v{vMXr} offset:{B_MX+q*256}")
        g(f"""
        v_lshl_add_u32 v{t2}, s{sW}, 10, v{vL16}
        s_waitcnt lgkmcnt(2)
        v_max3_f32 v{vM}, v{vM}, v{vM+1}, v{vM+2}
        v_max3_f32 v{vM+3}, v{vM+3}, v{vM+4}, v{vM+5}
        v_max3_f32 v{vM}, v{vM}, v{vM+6}, v{vM+7}
        s_waitcnt lgkmcnt(0)
        v_max3_f32 v{vM+8}, v{vM+8}, v{vM+9}, v{vM+10}
        v_max3_f32 v{vM+11}, v{vM+11}, v{vM+12}, v{vM+13}
        v_max3_f32 v{vM+8}, v{vM+8}, v{vM+14}, v{vM+15}
        v_max3_f32 v{vM}, v{vM}, v{vM+3}, v{vM+11}
        v_max_f32 v{vM}, v{vM}, v{vM+8}
        v_mul_f32 v{vML}, s{sC}, v{vM}
        """)
        for k in range(8):
            g(f"v_fma_f32 v{vS+k}, v{vS+k}, s{sC}, -v{vML}")
        for k in range(8):
            g(f"v_exp_f32 v{vS+k}, v{vS+k}")
        vPf = 80
        vO = 96
        for k in range(4):
            g(f"v_cvt_pk_bf16_f32 v{vPf+k}, v{vS+2*k}, v{vS+2*k+1}")
        g(f"ds_write_b128 v{t2}, {v(vPf,4)} offset:{B_PB}")
        g(f"""
        v_pk_add_f32 {v(vS,2)}, {v(vS,2)}, {v(vS+2,2)}
        v_pk_add_f32 {v(vS+4,2)}, {v(vS+4,2)}, {v(vS+6,2)}
        v_pk_add_f32 {v(vS,2)}, {v(vS,2)}, {v(vS+4,2)}
        v_add_f32 v{vS}, v{vS}, v{vS+1}
        ds_write_b32 v{vMXw}, v{vS} offset:{B_LS}
        """)
        def pv(k, cts=range(8)):
            for ct in cts:
                g(f"{MF} {v(vO+4*ct,4)}, {v(vPf+4*k,4)}, {A(aP+(ct*4+k)*4,4)}, {'0' if k == 0 else v(vO+4*ct,4)}")
        pv(0, range(3))
        g("s_waitcnt lgkmcnt(0)")
        g("s_barrier")
        g.stamp(6)
        for k in range(1, 4):
            g(f"ds_read_b128 {v(vPf+4*k,4)}, v{[0,20,21,23][k]} offset:{B_PB}")
        for q in range(4):
            g(f"ds_read_b128 {v(vM+4*q,4)}, v{vMXr} offset:{B_LS+q*256}")
        pv(0, range(3, 8))
        g("s_waitcnt lgkmcnt(6)")
        adds = [f"v_pk_add_f32 {v(vM,2)}, {v(vM,2)}, {v(vM+2,2)}", f"v_pk_add_f32 {v(vM+4,2)}, {v(vM+4,2)}, {v(vM+6,2)}",
                f"v_pk_add_f32 {v(vM+8,2)}, {v(vM+8,2)}, {v(vM+10,2)}", f"v_pk_add_f32 {v(vM+12,2)}, {v(vM+12,2)}, {v(vM+14,2)}",
                f"v_pk_add_f32 {v(vM,2)}, {v(vM,2)}, {v(vM+4,2)}", f"v_pk_add_f32 {v(vM+8,2)}, {v(vM+8,2)}, {v(vM+12,2)}",
                f"v_pk_add_f32 {v(vM,2)}, {v(vM,2)}, {v(vM+8,2)}", f"v_add_f32 v{vML+1}, v{vM}, v{vM+1}"]
        pv(1, range(4))
        g("s_waitcnt lgkmcnt(0)")
        for ct in range(4, 8):
            pv(1, [ct])
            g(adds[2 * (ct - 4)]); g(adds[2 * (ct - 4) + 1])
        def d2bell():
            g(f"s_cmp_lg_u32 s{sW}, 0")
            g("s_cbranch_scc1 L_B_nod2")
            g("s_mov_b64 exec, 0xffff")
            g(f"buffer_store_dwordx4 {v(vML,4)}, v{vL16}, {WS}, s{sD2} offen sc1")
            g("s_mov_b64 exec, -1")
            g.lab("L_B_nod2")
        dbpos = opt.get("d2_pos", 2)
        if dbpos == 2: d2bell()
        pv(2)
        if dbpos == 3: d2bell()
        vOo = 64
        def cv(k):
            for r in range(4):
                g(f"v_cvt_pk_bf16_f32 v{vOo+4*r+k}, v{vO+8*k+r}, v{vO+8*k+4+r}")
        pv(3)
        cv(0); cv(1); cv(2)
        for r in range(4):
            g(f"v_cvt_pk_bf16_f32 v{vOo+4*r+3}, v{vO+24+r}, v{vO+28+r}")
            g(f"s_add_u32 s{sO}, s{sOo}, {4*r*OSTR}")
            g(f"buffer_store_dwordx4 {v(vOo+4*r,4)}, v{vOa}, {WS}, s{sO} offen sc1")
        if dbpos == 4: d2bell()
        g.stamp(7)
        if w2e:
            g(f"s_mul_i32 s{sTMP}, s{sW}, 9216")
            g(f"v_add_u32 v{t0}, s{sTMP}, v{vL16}")
            for i in range(9):
                g(f"ds_write_b128 v{t0}, {v(vW2+4*i,4)} offset:{B_W2+i*1024}")
            g(f"ds_write_b128 v{t2}, {v(vW2+36,4)} offset:{B_W2+36864}")
            g(f"s_cmp_lg_u32 s{sW}, 0")
            g("s_cbranch_scc1 L_B_now2t")
            g(f"ds_write_b128 v{vL16}, {v(vW2+40,4)} offset:{B_W2+36864+4096}")
            g.lab("L_B_now2t")
        else:
            g(f"s_mul_i32 s{sO2}, s{sU2}, {36*1152}")
            unit_load(g, W2, vP2, B_W2, sO2, 1152, "w2", NT, thr=opt.get("w2_thr"))
        vT20, vT21, vK20, vK21 = 16, 17, 18, 19
        vHg, vHw = 25, 26
        vHe, vHo, vHke, vHko = 27, 28, 29, 30
        tr_pair_bases(g, vT20, vT21, vK20, vK21, vL, B_W2, t0, t1, t2)
        g(f"""
        v_mul_u32_u24 v{vHg}, 9216, v{vG}
        v_lshl_add_u32 v{vHg}, v{vN}, 4, v{vHg}
        v_lshrrev_b32 v{t0}, 5, v{vL}
        v_lshlrev_b32 v{vHw}, 7, v{t0}
        v_lshl_add_u32 v{vHw}, v{vN}, 1, v{vHw}
        s_mul_i32 s{sO}, s{sW}, 18
        v_add_u32 v{vHw}, s{sO}, v{vHw}
        v_bfe_u32 v{t0}, v{vL}, 2, 1
        v_lshlrev_b32 v{t0}, 7, v{t0}
        v_add_u32 v{t0}, {B_HL}, v{t0}
        v_lshl_add_u32 v{t1}, v{vG}, 3, v{t0}
        v_add_u32 v{t0}, 64, v{t0}
        v_mov_b32 v{t2}, {B_ZERO}
        v_cmp_gt_u32 vcc, 8, v{vN}
        v_cndmask_b32 v{vHe}, v{t2}, v{t1}, vcc
        v_cndmask_b32 v{vHo}, v{t1}, v{t2}, vcc
        v_lshrrev_b32 v{t1}, 3, v{vL}
        v_cmp_eq_u32 vcc, 0, v{t1}
        v_cndmask_b32 v{vHke}, v{t2}, v{t0}, vcc
        v_cmp_eq_u32 vcc, 1, v{t1}
        v_cndmask_b32 v{vHko}, v{t2}, v{t0}, vcc
        v_lshlrev_b32 v{vB1}, 16, v{vB1}
        """)
        vHr = 80
        g(f"""
        s_mul_i32 s{sO}, s{sXCD}, {16*9216}
        s_mul_i32 s{sO3}, s{sI}, 576
        s_add_u32 s{sO}, s{sO}, s{sO3}
        s_mul_i32 s{sO3}, s{sW}, 144
        s_add_u32 s{sO}, s{sO}, s{sO3}
        s_add_u32 s{sO}, s{sO}, {HH+(LOC if opt.get("dual", 1) and opt.get("hh_dual", 1) else 0)}
        s_add_u32 s{sO2}, s{sO}, {4*9216}
        s_add_u32 s{sO3}, s{sO}, {8*9216}
        s_add_u32 s{sC}, s{sO}, {12*9216}
        s_mov_b32 exec_lo, 0x01ff01ff
        s_mov_b32 exec_hi, 0x01ff01ff
        s_mov_b32 s{sCNT}, 0
        """)
        g.lab("L_B_hpoll")
        if opt.get("hh_dual", 1): dual_next(g, [sO, sO2, sO3, sC])
        for u, so in enumerate((sO, sO2, sO3, sC)):
            g(f"buffer_load_dwordx4 {v(vHr+4*u,4)}, v{vHg}, {WS}, s{so} offen sc1")
        spin_guard(g, "L_B_hdone")
        g("s_waitcnt vmcnt(0)")
        g(f"v_cmp_ne_u64 vcc, s[{sT}:{sT+1}], {v(vHr+2,2)}")
        for u in range(1, 4):
            g(f"v_cmp_ne_u64 s[{sM3}:{sM3+1}], s[{sT}:{sT+1}], {v(vHr+4*u+2,2)}")
            g(f"s_or_b64 vcc, vcc, s[{sM3}:{sM3+1}]")
        g("s_cbranch_scc1 L_B_hpoll")
        g.lab("L_B_hdone")
        g("s_waitcnt vmcnt(0)")
        g.stamp(10)
        c1 = -2.0 * math.log2(math.e) * math.sqrt(2.0 / math.pi)
        g(f"""
        v_pk_add_f32 {v(vHr,2)}, {v(vHr,2)}, {v(vHr+4,2)}
        v_pk_add_f32 {v(vHr+8,2)}, {v(vHr+8,2)}, {v(vHr+12,2)}
        v_pk_add_f32 {v(vHr,2)}, {v(vHr,2)}, {v(vHr+8,2)}
        v_permlane32_swap_b32 v{vHr}, v{vHr+1}
        v_add_f32 v{vHr}, v{vHr}, v{vHr+1}
        v_mov_b32 v{vHr+1}, v{vHr}
        v_permlane16_swap_b32 v{vHr}, v{vHr+1}
        v_add_f32 v{vHr}, v{vHr}, v{vHr+1}
        v_add_f32 v{vHr}, v{vHr}, v{vB1}
        v_mul_f32 v{t0}, v{vHr}, v{vHr}
        v_mov_b32 v{t1}, {hex(fbits(c1))}
        s_mov_b32 s{sC}, {hex(fbits(c1*0.044715))}
        v_fma_f32 v{t0}, v{t0}, s{sC}, v{t1}
        v_mul_f32 v{t0}, v{t0}, v{vHr}
        v_exp_f32 v{t0}, v{t0}
        v_add_f32 v{t0}, 1.0, v{t0}
        v_rcp_f32 v{t0}, v{t0}
        v_mul_f32 v{t0}, v{t0}, v{vHr}
        v_cvt_pk_bf16_f32 v{t0}, v{t0}, v{t0}
        ds_write_b16 v{vHw}, v{t0} offset:{B_HL}
        s_mov_b64 exec, -1
        s_waitcnt lgkmcnt(0)
        s_barrier
        """)
        g.stamp(11)
        aW = 0
        vHA = 64
        vY = 96
        g(f"ds_read2_b64 {v(vHA,4)}, v{vHe} offset0:0 offset1:4")
        g(f"ds_read_b64 {v(vHA+4,2)}, v{vHke}")
        g(f"ds_read2_b64 {v(vHA+6,4)}, v{vHo} offset0:0 offset1:4")
        g(f"ds_read_b64 {v(vHA+10,2)}, v{vHko}")
        def w2reads(t):
            for x in range(2):
                b = aW + (t * 2 + x) * 6
                g(f"ds_read_b64_tr_b16 {A(b,2)}, v{vT21 if x else vT20} offset:{t*256}")
                g(f"ds_read_b64_tr_b16 {A(b+2,2)}, v{vT21 if x else vT20} offset:{16*1152+t*256}")
                g(f"ds_read_b64_tr_b16 {A(b+4,2)}, v{vK21 if x else vK20} offset:{t*256}")
        def w2mf(t):
            for x in range(2):
                b = aW + (t * 2 + x) * 6
                g(f"{MF} {v(vY+4*t,4)}, {v(vHA+6*x,4)}, {A(b,4)}, {'0' if x == 0 else v(vY+4*t,4)}")
        def w2mf16(t):
            for x in range(2):
                b = aW + (t * 2 + x) * 6
                g(f"{MF16} {v(vY+4*t,4)}, {v(vHA+6*x+4,2)}, {A(b+4,2)}, {v(vY+4*t,4)}")
        w2reads(0)
        for t in range(4):
            if t < 3:
                w2reads(t + 1)
                g("s_waitcnt lgkmcnt(6)")
            else:
                g("s_waitcnt lgkmcnt(0)")
            w2mf(t)
        bell(g, vTag, vL16, sPR, D3, 3, "d3b")
        for t in range(4):
            w2mf16(t)
        g(f"s_cmp_gt_u32 s{sW}, 1")
        g("s_cbranch_scc1 L_B_no5")
        w2reads(4)
        g("s_waitcnt lgkmcnt(0)")
        w2mf(4)
        w2mf16(4)
        g.lab("L_B_no5")
        for t in range(1, 4):
            g(f"v_mov_b32 v{vY+t}, v{vY+4*t}")
        g(f"buffer_store_dwordx4 {v(vY,4)}, v{vH3}, {WS}, s{sH3m} offen sc1")
        g(f"s_cmp_gt_u32 s{sW}, 1")
        g("s_cbranch_scc1 L_B_no5b")
        g(f"buffer_store_dword v{vY+16}, v{vH3x}, {WS}, s{sH3l} offen sc1")
        g.lab("L_B_no5b")
        g.stamp(12)
        dump_stamps(g, 16, 160)
        g("s_endpgm")
        g.lab("L_B_qslow")
        spin_guard(g, "L_B_qok")
        g(f"s_mov_b64 s[{sM1}:{sM1+1}], 0")
        for ks in range(16):
            g(f"v_cmp_eq_u32 vcc, s{sPOI}, v{vQ+4*ks}")
            g(f"s_or_b64 s[{sM1}:{sM1+1}], s[{sM1}:{sM1+1}], vcc")
        g("s_cbranch_scc0 L_B_qok")
        g("s_barrier")
        g("s_branch L_B_qget")

if __name__ == "__main__":
    opt = eval("dict(%s)" % (sys.argv[2] if len(sys.argv) > 2 else ""))
    open(sys.argv[1], "w").write(gen(opt))
```

```python
import sys, os, math, struct
sys.path.insert(0, os.path.dirname(os.path.abspath(__file__)))
from hazard import pad

KNAME = "gated_mix__compressed_kv_cla__dense_activation_gelu__decode_kernel"

WS_BYTES = 256 << 20
EPOCH = 0x0
D1 = 0x8000
D2 = 0x40000
DL = 0x60000
QB = 0x80000
HB = 0xA0000
H0 = 0xC0000
LOC = 0x100000
H3 = 0x200000
USTR = 32768 + 256
HH = 0x340000
OB = 0x480000
OSTR = 16384 + 256
STAMP = 0x1000000
POISON = 0xFFA5FFA5
K0, K1 = 0x9E3779B9, 0x7F4A7C15
SPIN = 1 << 20

A_WUV = 0
A_QL = 32768
A_ZERO = 33280
A_WT = 33536
A_CTXC = 33792
A_RED = 34816
A_WO = 35840
A_W1 = A_WO + 36864
A_QP = A_WO
B_QF = 0
B_PB = 16384
B_MX = 20480
B_HL = 21504
B_ZERO = 21760
B_LS = 22528
B_CKV = 23552
B_W2 = B_CKV
LDS_BYTES = 154624

def f16sw(i):
    return (((i & 7) ^ ((i >> 3) << 2)) << 1) | (i >> 3)

def fbits(x):
    return struct.unpack("<I", struct.pack("<f", x))[0]

class G:
    def __init__(self, opt):
        self.l = []
        self.opt = opt
        self.nst = 0
        self.inA = False
    def __call__(self, s):
        for x in s.strip("\n").split("\n"):
            x = x.strip()
            if x: self.l.append("    " + x)
    def lab(self, n): self.l.append(n + ":")
    def c(self, s): self.l.append("    ; " + s)
    def stamp(self, i):
        if self.opt.get("stamps") and not (self.opt.get("fst") and 5 <= i <= 12 and self.inA):
            self(f"s_memrealtime s[{70+2*i}:{71+2*i}]")
    def fstamp(self, i):
        if self.opt.get("stamps") and self.opt.get("fst"):
            self(f"s_memrealtime s[{70+2*i}:{71+2*i}]")

def v(a, n=1): return f"v{a}" if n == 1 else f"v[{a}:{a+n-1}]"
def A(a, n=1): return f"a{a}" if n == 1 else f"a[{a}:{a+n-1}]"
def S(a, n=1): return f"s{a}" if n == 1 else f"s[{a}:{a+n-1}]"

sW = 3
WS, X = "s[4:7]", "s[8:11]"
sT = 40
sXCD, sI = 42, 43
sA, sH, sJ = 44, 45, 46
sHG, sB, sMSG, sU2 = 44, 45, 46, 47
sO, sO2, sO3, sCNT = 48, 49, 50, 51
sM1, sM2, sM3, sM4 = 52, 54, 56, 58
sPR = 60
sG0, sG1 = 61, 62
sTMP = 64
sPC = 66
sPOI = 68
sC = 69

def srd(g, base, slot, nbytes):
    g(f"s_load_dwordx2 s[{base}:{base+1}], s[0:1], {slot*8}")
    g(f"s_mov_b32 s{base+2}, {nbytes}")
    g(f"s_mov_b32 s{base+3}, 0x00020000")

def dump_stamps(g, n, tmpv):
    if not g.opt.get("stamps") or g.opt.get("probe") is not None: return
    g("s_waitcnt lgkmcnt(0)")
    g("s_mov_b64 exec, 1")
    g(f"s_lshl_b32 s{sO}, s2, 2")
    g(f"s_add_u32 s{sO}, s{sO}, s{sW}")
    g(f"s_lshl_b32 s{sO}, s{sO}, 6")
    g(f"s_add_u32 s{sO}, s{sO}, {STAMP}")
    g(f"v_mov_b32 v{tmpv+4}, 0")
    for q in range(0, 16, 4):
        for k in range(4):
            g(f"v_mov_b32 v{tmpv+k}, s{70+2*(q+k)}")
        g(f"buffer_store_dwordx4 {v(tmpv,4)}, v{tmpv+4}, {WS}, s{sO} offen offset:{q*4}")
        g("s_nop 1")
    g("s_waitcnt vmcnt(0)")

def dual_next(g, regs):
    if not g.opt.get("dual", 1): return
    g(f"s_and_b32 s{sTMP}, s{sCNT}, 14")
    g(f"s_cmp_eq_u32 s{sTMP}, 14")
    g(f"s_cselect_b32 s{sTMP}, {LOC}, 0")
    for r in regs:
        g(f"s_xor_b32 s{r}, s{r}, s{sTMP}")

def spin_guard(g, out):
    g(f"s_add_u32 s{sCNT}, s{sCNT}, 1")
    g(f"s_cmp_gt_u32 s{sCNT}, {g.opt.get('spin', SPIN)}")
    g(f"s_cbranch_scc1 {out}")

def selectors(g, vSel, vL, t0, t1, t2):
    g(f"v_and_b32 v{t0}, 1, v{vL}")
    g(f"v_cmp_eq_u32 vcc, 1, v{t0}")
    g(f"v_mov_b32 v{t1}, 0x0c0c0100")
    g(f"v_mov_b32 v{t2}, 0x01000c0c")
    g(f"v_cndmask_b32 v{vSel+3}, v{t1}, v{t2}, vcc")
    g(f"v_mov_b32 v{t1}, 0x0c0c0302")
    g(f"v_mov_b32 v{t2}, 0x03020c0c")
    g(f"v_cndmask_b32 v{vSel+7}, v{t1}, v{t2}, vcc")
    g(f"v_bfe_u32 v{t0}, v{vL}, 1, 2")
    g(f"v_mov_b32 v{t1}, 0x0c0c0c0c")
    for d in range(4):
        g(f"v_cmp_eq_u32 vcc, {d}, v{t0}")
        g(f"v_cndmask_b32 v{vSel+d}, v{t1}, v{vSel+3}, vcc")
        g(f"v_cndmask_b32 v{vSel+4+d}, v{t1}, v{vSel+7}, vcc")

def unit_pattern(g, dst, vL, i_expr_sgpr, i_const, pitch, t0, t1):
    if i_expr_sgpr is not None:
        g(f"v_lshl_add_u32 v{t0}, s{i_expr_sgpr}, 6, v{vL}")
    else:
        g(f"v_add_u32 v{t0}, {64*i_const}, v{vL}")
    g(f"v_mul_u32_u24 v{t1}, 911, v{t0}")
    g(f"v_lshrrev_b32 v{t1}, 16, v{t1}")
    g(f"v_and_b32 v{dst}, 6, v{t1}")
    g(f"v_xor_b32 v{dst}, v{dst}, v{t0}")
    g(f"v_lshlrev_b32 v{dst}, 4, v{dst}")
    if pitch != 1152:
        g(f"v_mul_u32_u24 v{t1}, {pitch-1152}, v{t1}")
        g(f"v_add_u32 v{dst}, v{dst}, v{t1}")
assert all((911 * u) >> 16 == u // 72 for u in range(640))

def h3_addr(g, vH3, vH3x, vL, vN, vG, t0):
    g(f"v_lshrrev_b32 v{t0}, 3, v{vL}")
    g(f"v_mul_u32_u24 v{vH3}, {USTR}, v{t0}")
    g(f"v_and_b32 v{t0}, 7, v{vL}")
    g(f"v_lshl_add_u32 v{vH3}, v{t0}, 4, v{vH3}")
    g(f"v_lshrrev_b32 v{t0}, 5, v{vL}")
    g(f"v_mul_u32_u24 v{vH3x}, {USTR}, v{t0}")
    g(f"v_and_b32 v{t0}, 31, v{vL}")
    g(f"v_lshl_add_u32 v{vH3x}, v{t0}, 2, v{vH3x}")

def h3_soffs(g, s_main, s_left):
    g(f"s_lshl_b32 s{s_left}, s{sPR}, 7")
    g(f"s_add_u32 s{s_left}, s{s_left}, {H3}")
    g(f"s_mul_i32 s{s_main}, s{sW}, {8*USTR}")
    g(f"s_add_u32 s{s_main}, s{s_main}, s{s_left}")
    g(f"s_mul_i32 s{sTMP}, s{sW}, {2*USTR}")
    g(f"s_add_u32 s{s_left}, s{s_left}, s{sTMP}")
    g(f"s_add_u32 s{s_left}, s{s_left}, {32*USTR}")

def tr_pair_bases(g, vB0, vB1, vK0, vK1, vL, base, t0, t1, t2):
    g(f"v_lshrrev_b32 v{t0}, 2, v{vL}")
    g(f"v_bfe_u32 v{t1}, v{vL}, 1, 1")
    g(f"v_lshl_add_u32 v{t1}, s{sW}, 2, v{t1}")
    g(f"v_and_b32 v{t2}, 6, v{t0}")
    g(f"v_xor_b32 v{t2}, v{t2}, v{t1}")
    g(f"v_lshlrev_b32 v{t2}, 4, v{t2}")
    g(f"v_mul_u32_u24 v{vB0}, 1152, v{t0}")
    g(f"v_add_u32 v{vB0}, v{vB0}, v{t2}")
    g(f"v_and_b32 v{t2}, 1, v{vL}")
    g(f"v_lshlrev_b32 v{t2}, 3, v{t2}")
    g(f"v_add_u32 v{vB0}, v{vB0}, v{t2}")
    g(f"v_xor_b32 v{vB1}, 32, v{vB0}")
    if base:
        g(f"v_add_u32 v{vB0}, {base}, v{vB0}")
        g(f"v_add_u32 v{vB1}, {base}, v{vB1}")
    if vK0 is not None:
        g(f"v_and_b32 v{t0}, 3, v{t0}")
        g(f"v_and_b32 v{vK0}, 2, v{t0}")
        g(f"v_xor_b32 v{vK0}, v{vK0}, v{t1}")
        g(f"v_lshlrev_b32 v{vK0}, 4, v{vK0}")
        g(f"v_mul_u32_u24 v{t0}, 1152, v{t0}")
        g(f"v_add3_u32 v{vK0}, v{vK0}, v{t0}, v{t2}")
        g(f"v_xor_b32 v{vK1}, 32, v{vK0}")
        g(f"v_add_u32 v{vK0}, {base + 32*1152}, v{vK0}")
        g(f"v_add_u32 v{vK1}, {base + 32*1152}, v{vK1}")

MF = "v_mfma_f32_16x16x32_bf16"
MF16 = "v_mfma_f32_16x16x16_bf16"

def role_is_A(wg, opt):
    if opt.get("split"):
        import numpy as np
        return np.isin(wg & 7, list(opt["split"]))
    return wg < 128

def gen(opt):
    g = G(opt)
    NT = opt.get("nt", "")
    PFL = opt.get("pf_lines", 4)
    CODE_BYTES = 32 * 128 * PFL
    vL, vN, vG = 1, 2, 3
    g.stamp(0)
    g(f"s_getpc_b64 s[{sPC}:{sPC+1}]")
    g("s_cmp_ge_u32 s2, 256")
    g("s_cbranch_scc1 L_end")
    g(f"""
    s_load_dwordx2 s[4:5], s[0:1], 112
    s_load_dwordx2 s[8:9], s[0:1], 0
    s_load_dwordx2 s[28:29], s[0:1], 8
    s_load_dwordx2 s[12:13], s[0:1], 16
    s_load_dwordx2 s[16:17], s[0:1], 24
    v_lshrrev_b32 v4, 6, v0
    v_and_b32 v{vL}, 63, v0
    s_and_b32 s{sXCD}, s2, 7
    v_readfirstlane_b32 s{sW}, v4
    s_bfe_u32 s{sI}, s2, 0x40003
    v_and_b32 v{vN}, 15, v0
    v_bfe_u32 v{vG}, v0, 4, 2
    s_mov_b32 s6, {WS_BYTES - opt.get('ws_base', 0)}
    s_mov_b32 s7, 0x00020000
    """)
    if opt.get("xprobe") is not None:
        g(f"""
        s_load_dwordx2 s[32:33], s[0:1], 104
        s_mov_b32 s34, 256
        s_mov_b32 s35, 0x00020000
        s_waitcnt lgkmcnt(0)
        v_mov_b32 v6, s70
        s_lshl_b32 s{sO}, s{sXCD}, 2
        v_mov_b32 v7, s{sO}
        s_mov_b64 exec, 1
        buffer_atomic_umax v6, v7, s[32:35], 0 offen sc1
        s_mov_b64 exec, -1
        """)
    if opt.get("split"):
        aset = list(opt["split"]); bset = [x for x in range(8) if x not in aset]
        tab = 0
        for x in range(8):
            tab |= ((aset.index(x)) if x in aset else (8 | bset.index(x))) << (4 * x)
        g(f"""
        s_lshl_b32 s{sXCD}, s{sXCD}, 2
        s_lshr_b32 s{sO}, {hex(tab)}, s{sXCD}
        s_and_b32 s{sXCD}, s{sO}, 3
        s_lshr_b32 s{sO2}, s2, 7
        s_lshl_b32 s{sO2}, s{sO2}, 2
        s_add_u32 s{sXCD}, s{sXCD}, s{sO2}
        s_bitcmp1_b32 s{sO}, 3
        s_cbranch_scc1 L_B
        """)
    else:
        g("s_cmp_ge_u32 s2, 128")
        g("s_cbranch_scc1 L_B")
    a = RoleA(g, NT, vL, vN, vG)
    b = RoleB(g, NT, vL, vN, vG)
    def prefetch(nw, idx_sgpr_expr, tag):
        g(idx_sgpr_expr)
        g(f"s_mul_i32 s{sTMP}, s{sTMP}, {nw*128}")
        g(f"v_lshl_add_u32 v5, v{vL}, 7, s{sTMP}")
        g(f"s_cmp_lg_u32 s{sW}, 3")
        g(f"s_cbranch_scc1 L_nopf{tag}")
        g(f"s_mov_b64 exec, {(1 << nw) - 1}")
        g(f"global_load_dword v255, v5, s[{sPC}:{sPC+1}]")
        g("s_mov_b64 exec, -1")
        g.lab(f"L_nopf{tag}")
    if opt.get("split") and opt.get("a_pf_first", 1): prefetch(PFL, f"s_lshr_b32 s{sTMP}, s2, 3", "A")
    a.issue()
    if opt.get("split") and not opt.get("a_pf_first", 1): prefetch(PFL, f"s_lshr_b32 s{sTMP}, s2, 3", "A")
    g("s_branch L_A_rest")
    g.lab("L_B")
    if opt.get("split"): prefetch(PFL, f"s_lshr_b32 s{sTMP}, s2, 3", "B")
    else: prefetch(2 * PFL, f"s_mov_b32 s{sTMP}, s{sI}", "B")
    b.issue()
    g("s_branch L_B_rest")
    g.lab("L_A_rest")
    g.inA = True
    a.rest()
    g.inA = False
    g.lab("L_B_rest")
    b.rest()
    g.lab("L_end")
    lines, added = pad(g.l)
    body = "\n".join(lines)
    hdr = open(os.path.join(os.path.dirname(os.path.abspath(__file__)), "header.txt")).read()
    return f"""{hdr}; @launch grid=(256,1,1) block=(256,1,1) lds={LDS_BYTES}
.amdgcn_target "amdgcn-amd-amdhsa--gfx950"
.text
.globl {KNAME}
.p2align 8
.type {KNAME},@function
{KNAME}:
{body}
    s_endpgm
L_code_end:
.fill ({CODE_BYTES} + 256 - (L_code_end - {KNAME})) / 4, 4, 0xbf800000
.section .rodata,"a"
.p2align 6
.amdhsa_kernel {KNAME}
  .amdhsa_next_free_vgpr 512
  .amdhsa_next_free_sgpr 102
  .amdhsa_accum_offset 256
  .amdhsa_group_segment_fixed_size 0
  .amdhsa_kernarg_size 120
  .amdhsa_user_sgpr_count 2
  .amdhsa_user_sgpr_kernarg_segment_ptr 1
  .amdhsa_system_sgpr_workgroup_id_x 1
.end_amdhsa_kernel
"""

def srd_tail(g, base, nbytes):
    g(f"s_mov_b32 s{base+2}, {nbytes}")
    g(f"s_mov_b32 s{base+3}, 0x00020000")

def load_tag(g):
    wb = g.opt.get("ws_base", 0)
    if wb:
        g(f"s_add_u32 s4, s4, {wb}")
        g("s_addc_u32 s5, s5, 0")
    g(f"s_load_dwordx2 s[{sT}:{sT+1}], s[4:5], {EPOCH}")

def finish_tag(g):
    g("s_waitcnt lgkmcnt(0)")
    g(f"s_add_u32 s{sT}, s{sT}, {K0}")
    g(f"s_add_u32 s{sT+1}, s{sT+1}, {K1}")

def bell(g, vdata, vzero, s_index, base, wave, tag):
    g(f"s_cmp_lg_u32 s{sW}, {wave}")
    g(f"s_cbranch_scc1 L_nobell_{tag}")
    g(f"s_lshl_b32 s{sTMP}, s{s_index}, 7")
    g(f"s_add_u32 s{sTMP}, s{sTMP}, {base}")
    g("s_mov_b64 exec, 1")
    g(f"buffer_store_dwordx2 {v(vdata,2)}, v{vzero}, {WS}, s{sTMP} offen sc1")
    g("s_mov_b64 exec, -1")
    g.lab(f"L_nobell_{tag}")

def unit_load(g, SRD, vP, ldsbase, s_unit_base, pitch, tag, NT, rows36=True, vdst=None, thr=None):
    if tag[:2] in g.opt.get("skip", ""): return
    g(f"s_mul_i32 s{sO}, s{sW}, {8*pitch}")
    g(f"s_add_u32 s{sO}, s{sO}, s{s_unit_base}")
    if vdst is None: g(f"s_mul_i32 s{sTMP}, s{sW}, 9216")
    for i in range(9):
        if thr: g(f"s_waitcnt vmcnt({thr-1})")
        if vdst is None:
            g(f"s_add_u32 m0, s{sTMP}, {ldsbase + i*1024}")
            g(f"buffer_load_dwordx4 v{vP+i}, {SRD}, s{sO} offen {NT} lds")
        else:
            g(f"buffer_load_dwordx4 {v(vdst+4*i,4)}, v{vP+i}, {SRD}, s{sO} offen {NT}")
    if not rows36: return
    g(f"s_add_u32 s{sO}, s{s_unit_base}, {32*pitch}")
    if vdst is None:
        g(f"s_lshl_b32 s{sTMP}, s{sW}, 10")
        g(f"s_add_u32 m0, s{sTMP}, {ldsbase + 36864}")
        g(f"buffer_load_dwordx4 v{vP+9}, {SRD}, s{sO} offen {NT} lds")
    else:
        g(f"buffer_load_dwordx4 {v(vdst+36,4)}, v{vP+9}, {SRD}, s{sO} offen {NT}")
    g(f"s_cmp_lg_u32 s{sW}, 0")
    g(f"s_cbranch_scc1 L_not{tag}")
    g("s_mov_b32 exec_hi, 0")
    if vdst is None:
        g(f"s_mov_b32 m0, {ldsbase + 36864 + 4096}")
        g(f"buffer_load_dwordx4 v{vP+4}, {SRD}, s{sO} offen {NT} lds")
    else:
        g(f"buffer_load_dwordx4 {v(vdst+40,4)}, v{vP+4}, {SRD}, s{sO} offen {NT}")
    g("s_mov_b64 exec, -1")
    g.lab(f"L_not{tag}")

class RoleA:
    def __init__(self, g, NT, vL, vN, vG):
        self.g, self.NT, self.vL, self.vN, self.vG = g, NT, vL, vN, vG
    vX = 20
    vA_wq, vA_uk = 108, 109
    aWQ, aUK = 0, 36

    def issue(self):
        g, NT, vL, vN, vG = self.g, self.NT, self.vL, self.vN, self.vG
        WQ, WUK = "s[12:15]", "s[16:19]"
        t0, t1 = 4, 5
        vX, vA_wq, vA_uk, aWQ, aUK = self.vX, self.vA_wq, self.vA_uk, self.aWQ, self.aUK
        srd_tail(g, 12, 576 * 8192)
        srd_tail(g, 8, 2304)
        g(f"""
        s_lshr_b32 s{sH}, s{sI}, 2
        s_lshl_b32 s{sH}, s{sH}, 3
        s_add_u32 s{sH}, s{sH}, s{sXCD}
        s_and_b32 s{sJ}, s{sI}, 3
        v_mul_u32_u24 v{vA_wq}, {36*8192}, v{vG}
        v_lshl_add_u32 v{vA_wq}, v{vN}, 4, v{vA_wq}
        s_lshl_b32 s{sO2}, s{sJ}, 4
        s_add_u32 s{sO2}, s{sO2}, s{sW}
        s_mul_i32 s{sO2}, s{sO2}, 9
        s_lshl_b32 s{sO3}, s{sO2}, 13
        s_lshl_b32 s{sC}, s{sH}, 8
        s_add_u32 s{sO3}, s{sO3}, s{sC}
        v_bfe_u32 v{t0}, v{vL}, 3, 1
        v_mul_u32_u24 v{t0}, 1152, v{t0}
        v_mad_u32_u24 v{t0}, v{vG}, 64, v{t0}
        v_lshl_add_u32 v{t0}, v{vG}, 3, v{t0}
        s_lshr_b32 s{sO2}, s{sO2}, 1
        s_lshl_b32 s{sO2}, s{sO2}, 2
        s_waitcnt lgkmcnt(0)
        """)
        g.fstamp(5)
        g(f"""
        buffer_load_dwordx4 {v(vX,4)}, v{t0}, {X}, s{sO2} offen
        buffer_load_dword v{vX+4}, v{t0}, {X}, s{sO2} offen offset:16
        """)
        for i in range(9):
            g(f"buffer_load_dwordx4 {A(aWQ+4*i,4)}, v{vA_wq}, {WQ}, s{sO3} offen {NT}")
            if i != 8: g(f"s_addk_i32 s{sO3}, 0x2000")
        load_tag(g)
        srd_tail(g, 16, 512 * 8192)
        g(f"""
        v_bfe_u32 v{t0}, v{vL}, 2, 2
        v_lshlrev_b32 v{vA_uk}, 16, v{t0}
        v_lshl_add_u32 v{vA_uk}, v{vG}, 6, v{vA_uk}
        v_and_b32 v{t1}, 3, v{vL}
        v_lshl_add_u32 v{vA_uk}, v{t1}, 4, v{vA_uk}
        s_lshl_b32 s{sO2}, s{sJ}, 2
        s_add_u32 s{sO2}, s{sO2}, s{sW}
        s_lshl_b32 s{sO2}, s{sO2}, 18
        s_add_u32 s{sO2}, s{sO2}, s{sC}
        """)
        self.uk_split = g.opt.get("uk_early", 2)
        self.uk(range(self.uk_split))

    def uk(self, rows):
        g = self.g
        for r in rows:
            u = 2 * (r & 3) + (r >> 2)
            g(f"buffer_load_dwordx4 {A(self.aUK+4*u,4)}, v{self.vA_uk}, s[16:19], s{sO2} offen {self.NT}")
            g(f"s_addk_i32 s{sO2}, 0x2000")

    def rest(self):
        g, NT, vL, vN, vG = self.g, self.NT, self.vL, self.vN, self.vG
        opt = g.opt
        WUV, WO, W1, B2, GATE, OUT = "s[20:23]", "s[24:27]", "s[12:15]", "s[28:31]", "s[32:35]", "s[36:39]"
        t0, t1, t2, t3 = 4, 5, 6, 7
        vPOI = 8
        vSel = 12
        vX = self.vX
        vF = 160
        vQ = 200
        vR = 56
        vQlo, vQhi = 80, 84
        vAcc = 88
        vGr = 104
        vA_h1, vA_l16 = 110, 47
        vA_qlo, vA_qhi = 112, 113
        vTag = 114
        vQw = 46
        aWQ, aUK = self.aWQ, self.aUK
        sQ = 63
        g.stamp(1)
        selectors(g, vSel, vL, t0, t1, t2)
        g(f"""
        s_lshl_b32 s{sA}, s{sH}, 2
        s_add_u32 s{sA}, s{sA}, s{sJ}
        s_mov_b32 s{sPR}, s{sA}
        s_and_b32 s{sO}, s{sW}, 1
        s_lshl_b32 s{sO}, s{sO}, 4
        v_lshlrev_b32 v{vA_l16}, 4, v{vL}
        s_cmp_lg_u32 s{sW}, 1
        s_cbranch_scc1 L_A_e2
        """)
        for k in range(4): g(f"v_mov_b32 v{vPOI+k}, {hex(POISON)}")
        g(f"""
        v_lshlrev_b32 v{t0}, 15, v{vG}
        v_lshl_add_u32 v{t0}, v{vN}, 4, v{t0}
        s_lshl_b32 s{sTMP}, s{sA}, 8
        s_add_u32 s{sTMP}, s{sTMP}, {QB}
        s_mov_b32 exec_hi, 0
        buffer_store_dwordx4 {v(vPOI,4)}, v{t0}, {WS}, s{sTMP} offen sc1
        s_mov_b64 exec, -1
        """)
        g.lab("L_A_e2")
        g.fstamp(6)
        g(f"s_waitcnt vmcnt({9+self.uk_split})")
        g.fstamp(7)
        for k in range(5):
            g(f"v_alignbit_b32 v{vX+k}, v{vX+k+1}, v{vX+k}, s{sO}")
        for i in range(9):
            for d in range(4):
                g(f"v_perm_b32 v{vF+4*i+d}, v{vX+(i>>1)}, v{vX+(i>>1)}, v{vSel+4*(i&1)+d}")
        g.fstamp(8)
        self.uk(range(self.uk_split, 8))
        g.fstamp(9)
        for i in range(9):
            g(f"s_waitcnt vmcnt({8-i+8})")
            g(f"{MF} {v(vQ+2,4)}, {v(vF+4*i,4)}, {A(aWQ+4*i,4)}, {'0' if i == 0 else v(vQ+2,4)}")
        g.fstamp(10)
        g(f"s_cmp_eq_u32 s{sW}, 0")
        g("s_cbranch_scc1 L_A_w0a")
        g(f"v_lshl_add_u32 v{t0}, s{sW}, 10, v{vA_l16}")
        g(f"ds_write_b128 v{t0}, {v(vQ+2,4)} offset:{A_QP-1024}")
        g(f"s_waitcnt vmcnt({8-self.uk_split}) lgkmcnt(0)")
        g("s_barrier")
        g(f"s_add_u32 s{sT}, s{sT}, {K0}")
        g(f"s_add_u32 s{sT+1}, s{sT+1}, {K1}")
        g("s_branch L_A_setup")
        g.lab("L_A_w0a")
        finish_tag(g)
        sib = [0, sO, sO3, sC]
        for k in range(1, 4):
            g(f"s_xor_b32 s{sTMP}, s{sA}, {k}")
            g(f"s_lshl_b32 s{sTMP}, s{sTMP}, 11")
            g(f"s_add_u32 s{sib[k]}, s{sTMP}, {H0+LOC}")
        g(f"""
        v_mov_b32 v{vQ}, s{sT}
        v_mov_b32 v{vQ+1}, s{sT+1}
        v_mov_b32 v{vQ+6}, s{sT}
        v_mov_b32 v{vQ+7}, s{sT+1}
        s_lshl_b32 s{sTMP+1}, s{sA}, 11
        s_add_u32 s{sTMP+1}, s{sTMP+1}, {H0+LOC}
        s_barrier
        """)
        for k in range(3):
            g(f"ds_read_b128 {v(vR+4*k,4)}, v{vA_l16} offset:{A_QP+k*1024}")
        g("s_waitcnt lgkmcnt(1)")
        g(f"v_pk_add_f32 {v(vQ+2,2)}, {v(vQ+2,2)}, {v(vR,2)}")
        g(f"v_pk_add_f32 {v(vQ+4,2)}, {v(vQ+4,2)}, {v(vR+2,2)}")
        g("s_waitcnt lgkmcnt(0)")
        g(f"v_pk_add_f32 {v(vR+4,2)}, {v(vR+4,2)}, {v(vR+8,2)}")
        g(f"v_pk_add_f32 {v(vR+6,2)}, {v(vR+6,2)}, {v(vR+10,2)}")
        g(f"v_pk_add_f32 {v(vQ+2,2)}, {v(vQ+2,2)}, {v(vR+4,2)}")
        g(f"v_pk_add_f32 {v(vQ+4,2)}, {v(vQ+4,2)}, {v(vR+6,2)}")
        g(f"buffer_store_dwordx4 {v(vQ,4)}, v{vA_l16}, {WS}, s{sTMP+1} offen")
        g(f"buffer_store_dwordx4 {v(vQ+4,4)}, v{vA_l16}, {WS}, s{sTMP+1} offen offset:1024")
        def h0_wt():
            g(f"s_lshl_b32 s{sTMP+1}, s{sA}, 11")
            g(f"s_add_u32 s{sTMP+1}, s{sTMP+1}, {H0}")
            g(f"buffer_store_dwordx4 {v(vQ,4)}, v{vA_l16}, {WS}, s{sTMP+1} offen sc1")
            g(f"buffer_store_dwordx4 {v(vQ+4,4)}, v{vA_l16}, {WS}, s{sTMP+1} offen offset:1024 sc1")
        g.stamp(2)
        g.lab("L_A_setup")
        g(f"""
        v_bfe_u32 v{t0}, v{vL}, 2, 2
        v_lshlrev_b32 v{vA_h1}, 15, v{vG}
        v_lshl_add_u32 v{vA_h1}, v{t0}, 4, v{vA_h1}
        s_lshl_b32 s{sQ}, s{sA}, 2
        s_add_u32 s{sQ}, s{sQ}, s{sW}
        s_lshl_b32 s{sQ}, s{sQ}, 6
        s_add_u32 s{sQ}, s{sQ}, {QB}
        v_bfe_u32 v{t0}, v{vL}, 2, 1
        v_lshlrev_b32 v{t0}, 8, v{t0}
        v_lshl_add_u32 v{t0}, v{vG}, 6, v{t0}
        v_and_b32 v{t1}, 3, v{vL}
        v_lshl_add_u32 v{t0}, v{t1}, 4, v{t0}
        v_add_u32 v{t0}, {A_QL}, v{t0}
        v_mov_b32 v{t1}, {A_ZERO}
        v_cmp_gt_u32 vcc, 8, v{vN}
        v_cndmask_b32 v{vA_qlo}, v{t1}, v{t0}, vcc
        v_cndmask_b32 v{vA_qhi}, v{t0}, v{t1}, vcc
        v_and_b32 v{t0}, 1, v{vL}
        v_cmp_eq_u32 s[{sM1}:{sM1+1}], 1, v{t0}
        v_and_b32 v{t0}, 2, v{vL}
        v_cmp_eq_u32 s[{sM2}:{sM2+1}], 2, v{t0}
        v_mov_b32 v{vTag}, s{sT}
        v_mov_b32 v{vTag+1}, s{sT+1}
        v_lshlrev_b32 v{t3}, 12, v{vL}
        s_lshl_b32 s{sO2}, s{sH}, 5
        s_add_u32 s{sO2}, s{sO2}, s{sJ}
        s_lshl_b32 s{sO2}, s{sO2}, 2
        s_add_u32 s{sO2}, s{sO2}, {D1}
        s_cmp_eq_u32 s{sW}, 0
        s_cbranch_scc1 L_A_w0b
        v_mov_b32 v{t0}, 0
        v_mov_b32 v{t1}, 0
        v_mov_b32 v{t2}, {A_ZERO}
        ds_write_b64 v{t2}, {v(t0,2)}
        ds_write_b64 v{t2}, {v(t0,2)} offset:8
        s_branch L_A_h0wait
        """)
        g.lab("L_A_w0b")
        def h0loads():
            for k in range(1, 4):
                g(f"buffer_load_dwordx4 {v(vR+8*(k-1),4)}, v{vA_l16}, {WS}, s{sib[k]} offen sc1")
                g(f"buffer_load_dwordx4 {v(vR+8*(k-1)+4,4)}, v{vA_l16}, {WS}, s{sib[k]} offen offset:1024 sc1")
        h0loads()
        g(f"""
        v_lshrrev_b32 v{vQw}, 1, v{vG}
        v_lshlrev_b32 v{vQw}, 8, v{vQw}
        v_lshl_add_u32 v{vQw}, v{vN}, 4, v{vQw}
        v_and_b32 v{t1}, 1, v{vG}
        v_lshl_add_u32 v{vQw}, v{t1}, 3, v{vQw}
        s_mov_b32 s{sCNT}, 0
        """)
        g.lab("L_A_h0chk")
        g("s_waitcnt vmcnt(0)")
        if opt.get("fst"):
            g(f"s_cmp_lg_u32 s{sCNT}, 0")
            g("s_cbranch_scc1 L_A_fs11")
            g.fstamp(11)
            g.lab("L_A_fs11")
        for k in range(3):
            g(f"v_cmp_ne_u64 vcc, s[{sT}:{sT+1}], {v(vR+8*k,2)}")
            g(f"v_cmp_ne_u64 s[{sM3}:{sM3+1}], s[{sT}:{sT+1}], {v(vR+8*k+6,2)}")
            if k == 0: g(f"s_or_b64 s[{sM4}:{sM4+1}], vcc, s[{sM3}:{sM3+1}]")
            else:
                g(f"s_or_b64 s[{sM4}:{sM4+1}], s[{sM4}:{sM4+1}], vcc")
                g(f"s_or_b64 s[{sM4}:{sM4+1}], s[{sM4}:{sM4+1}], s[{sM3}:{sM3+1}]")
        g("s_cbranch_scc1 L_A_h0poll")
        g.lab("L_A_h0done")
        def d1bell(tag):
            g("s_mov_b64 exec, 0xff")
            g(f"buffer_store_dword v{vTag}, v{t3}, {WS}, s{sO2} offen sc1")
            g("s_mov_b64 exec, -1")
        d1p = opt.get("d1_pos", 0)
        if d1p == 0: d1bell("")
        g(f"v_pk_add_f32 {v(vR+2,2)}, {v(vQ+2,2)}, {v(vR+2,2)}")
        g(f"v_pk_add_f32 {v(vR+4,2)}, {v(vQ+4,2)}, {v(vR+4,2)}")
        g(f"v_pk_add_f32 {v(vR+10,2)}, {v(vR+10,2)}, {v(vR+18,2)}")
        g(f"v_pk_add_f32 {v(vR+12,2)}, {v(vR+12,2)}, {v(vR+20,2)}")
        g(f"v_pk_add_f32 {v(vR+2,2)}, {v(vR+2,2)}, {v(vR+10,2)}")
        g(f"v_pk_add_f32 {v(vR+4,2)}, {v(vR+4,2)}, {v(vR+12,2)}")
        g(f"v_cvt_pk_bf16_f32 v{vR}, v{vR+2}, v{vR+3}")
        g(f"v_cvt_pk_bf16_f32 v{vR+1}, v{vR+4}, v{vR+5}")
        g(f"ds_write_b64 v{vQw}, {v(vR,2)} offset:{A_QL}")
        g("s_waitcnt lgkmcnt(0)")
        g("s_barrier")
        g(f"ds_read_b128 {v(vQlo,4)}, v{vA_qlo}")
        g(f"ds_read_b128 {v(vQhi,4)}, v{vA_qhi}")
        if d1p == 1: d1bell("")
        g("s_branch L_A_p1b")
        g.lab("L_A_h0wait")
        g("s_waitcnt vmcnt(0) lgkmcnt(0)")
        g.fstamp(12)
        g("s_barrier")
        g(f"ds_read_b128 {v(vQlo,4)}, v{vA_qlo}")
        g(f"ds_read_b128 {v(vQhi,4)}, v{vA_qhi}")
        g.lab("L_A_p1b")
        g.stamp(3)
        g("s_waitcnt lgkmcnt(0)")
        for t in range(4):
            g(f"{MF} {v(vAcc+4*t,4)}, {v(vQlo,4)}, {A(aUK+8*t,4)}, 0")
        for t in range(4):
            g(f"{MF} {v(vAcc+4*t,4)}, {v(vQhi,4)}, {A(aUK+8*t+4,4)}, {v(vAcc+4*t,4)}")
        if d1p == 2:
            g(f"s_cmp_lg_u32 s{sW}, 0")
            g("s_cbranch_scc1 L_A_nod1")
            d1bell("")
            g.lab("L_A_nod1")
        for t in range(4):
            a0 = vAcc + 4 * t
            g(f"v_cndmask_b32 v{a0}, v{a0}, v{a0+1}, s[{sM1}:{sM1+1}]")
            g(f"v_cndmask_b32 v{a0+2}, v{a0+2}, v{a0+3}, s[{sM1}:{sM1+1}]")
            g(f"v_cndmask_b32 v{a0}, v{a0}, v{a0+2}, s[{sM2}:{sM2+1}]")
        for t in range(4):
            a0 = vAcc + 4 * t
            g(f"v_add_f32_dpp v{a0+1}, v{a0}, v{a0} quad_perm:[1,0,3,2] row_mask:0xf bank_mask:0xf")
        for t in range(4):
            a0 = vAcc + 4 * t
            g(f"v_add_f32_dpp v{a0}, v{a0+1}, v{a0+1} quad_perm:[2,3,0,1] row_mask:0xf bank_mask:0xf")
        g(f"v_cvt_pk_bf16_f32 v{vGr}, v{vAcc}, v{vAcc+4}")
        g(f"v_cvt_pk_bf16_f32 v{vGr+1}, v{vAcc+8}, v{vAcc+12}")
        g(f"v_permlane32_swap_b32 v{vGr}, v{vGr+2}")
        g(f"v_permlane32_swap_b32 v{vGr+1}, v{vGr+3}")
        g(f"""
        s_mov_b64 exec, 0x11111111
        buffer_store_dwordx4 {v(vGr,4)}, v{vA_h1}, {WS}, s{sQ} offen sc1
        s_mov_b64 exec, -1
        """)
        if d1p == 3:
            g(f"s_cmp_lg_u32 s{sW}, 0")
            g("s_cbranch_scc1 L_A_nod1")
            d1bell("")
            g.lab("L_A_nod1")
        g.stamp(4)
        srd(g, 20, 4, 512 * 8192)
        srd(g, 24, 5, 4096 * 1152)
        srd(g, 12, 7, 576 * 9216)
        srd(g, 28, 10, 1152)
        srd(g, 32, 11, 1152)
        srd(g, 36, 12, 2304)
        g(f"s_cmp_lg_u32 s{sW}, 0")
        g("s_cbranch_scc1 L_A_h0s2")
        h0_wt()
        g.lab("L_A_h0s2")
        vUV0, vUV1 = 20, 21
        vP2, vP1 = 22, 116
        g(f"""
        v_lshlrev_b32 v{t0}, 1, v{vG}
        v_xor_b32 v{t0}, v{t0}, v{vN}
        v_lshlrev_b32 v{vUV0}, 17, v{vG}
        v_lshl_add_u32 v{vUV0}, v{t0}, 4, v{vUV0}
        v_xor_b32 v{vUV1}, 128, v{vUV0}
        """)
        for i in range(10):
            unit_pattern(g, vP2 + i, vL, sW if i == 9 else None, i, 1152, t0, t1)
            g(f"v_mul_u32_u24 v{t1}, {9216-1152}, v{t1}")
            g(f"v_add_u32 v{vP1+i}, v{vP2+i}, v{t1}")
        vGx, vGw, vB2 = 48, 60, 72
        vOA, vFB = 73, 74
        vXr = 208
        vXA = 128
        g(f"""
        s_waitcnt lgkmcnt(0)
        v_and_b32 v{t0}, 1, v{vL}
        v_mul_u32_u24 v{t0}, 1152, v{t0}
        s_mul_i32 s{sO}, s{sI}, 72
        buffer_load_dwordx2 {v(vXr+4,2)}, v{t0}, {X}, s{sO} offen offset:64
        v_lshl_add_u32 v{t0}, v{vG}, 3, v{t0}
        buffer_load_dwordx2 {v(vXr,2)}, v{t0}, {X}, s{sO} offen
        buffer_load_dwordx2 {v(vXr+2,2)}, v{t0}, {X}, s{sO} offen offset:32
        v_mov_b32 v{vOA}, 0
        s_cmp_lg_u32 s{sW}, 0
        s_cbranch_scc1 L_A_nogate
        s_cmp_ge_u32 s{sA}, 36
        s_cbranch_scc1 L_A_nogate
        v_and_b32 v{t0}, 31, v{vL}
        v_mul_u32_u24 v{t1}, 36, v{t0}
        v_lshrrev_b32 v{t2}, 5, v{vL}
        v_mul_u32_u24 v{t2}, 1152, v{t2}
        v_add_u32 v{t2}, v{t2}, v{t1}
        buffer_load_dwordx4 {v(vGx,4)}, v{t2}, {X}, 0 offen
        buffer_load_dwordx4 {v(vGx+4,4)}, v{t2}, {X}, 0 offen offset:16
        buffer_load_dword v{vGx+8}, v{t2}, {X}, 0 offen offset:32
        buffer_load_dwordx4 {v(vGw,4)}, v{t1}, {GATE}, 0 offen
        buffer_load_dwordx4 {v(vGw+4,4)}, v{t1}, {GATE}, 0 offen offset:16
        buffer_load_dword v{vGw+8}, v{t1}, {GATE}, 0 offen offset:32
        s_cmp_ge_u32 s{sA}, 32
        s_cbranch_scc1 L_A_uleft
        s_lshr_b32 s{sO}, s{sA}, 2
        s_lshl_b32 s{sO}, s{sO}, 4
        s_and_b32 s{sO3}, s{sA}, 1
        s_lshl_b32 s{sO3}, s{sO3}, 3
        s_add_u32 s{sO}, s{sO}, s{sO3}
        v_and_b32 v{t1}, 3, v{t0}
        v_lshlrev_b32 v{t1}, 7, v{t1}
        v_lshrrev_b32 v{t2}, 2, v{t0}
        v_add3_u32 v{t1}, v{t1}, v{t2}, s{sO}
        s_bfe_u32 s{sO3}, s{sA}, 0x10001
        v_mov_b32 v{vFB}, s{sO3}
        s_branch L_A_ujoin
        """)
        g.lab("L_A_uleft")
        g(f"""
        s_lshl_b32 s{sO}, s{sA}, 4
        v_and_b32 v{t1}, 15, v{t0}
        v_add_u32 v{t1}, s{sO}, v{t1}
        v_lshrrev_b32 v{vFB}, 4, v{t0}
        """)
        g.lab("L_A_ujoin")
        g(f"""
        v_lshlrev_b32 v{t1}, 1, v{t1}
        buffer_load_ushort v{vB2}, v{t1}, {B2}, 0 offen
        v_mul_u32_u24 v{vOA}, 1152, v{vFB}
        v_add_u32 v{vOA}, v{vOA}, v{t1}
        """)
        g.lab("L_A_nogate")
        def addr_block():
            pass
        vH3, vH3x = 32, 33
        vHBs, vHs = 39, 45
        sH3m, sH3l, sHB, sHH = 63, 47, 61, 62
        vTU0, vTU1, vTO0, vTO1 = 34, 35, 36, 37
        vCX, vCW, vHBl, vD2, vOg, vWTw, vWTr = 38, 46, 40, 41, 42, 43, 44
        vT1, vK1 = 75, 57
        def later_addresses():
            h3_addr(g, vH3, vH3x, vL, vN, vG, t0)
            h3_soffs(g, sH3m, sH3l)
            g(f"""
            v_lshlrev_b32 v{vHBs}, 6, v{vG}
            v_lshl_add_u32 v{vHBs}, v{vN}, 4, v{vHBs}
            s_lshl_b32 s{sHB}, s{sH}, 2
            s_add_u32 s{sHB}, s{sHB}, s{sW}
            s_lshl_b32 s{sHB}, s{sHB}, 2
            s_add_u32 s{sHB}, s{sHB}, s{sJ}
            s_lshl_b32 s{sHB}, s{sHB}, 8
            s_add_u32 s{sHB}, s{sHB}, {HB}
            v_lshlrev_b32 v{vHs}, 10, v{vG}
            v_lshl_add_u32 v{vHs}, v{vN}, 4, v{vHs}
            s_lshl_b32 s{sHH}, s{sXCD}, 4
            s_add_u32 s{sHH}, s{sHH}, s{sI}
            s_mul_i32 s{sHH}, s{sHH}, 9216
            s_lshl_b32 s{sTMP}, s{sW}, 8
            s_add_u32 s{sHH}, s{sHH}, s{sTMP}
            s_add_u32 s{sHH}, s{sHH}, {HH}
            v_lshrrev_b32 v{t0}, 2, v{vL}
            v_bfe_u32 v{t1}, v{vL}, 1, 1
            v_lshl_add_u32 v{t1}, s{sW}, 2, v{t1}
            v_and_b32 v{t2}, 7, v{t0}
            v_lshlrev_b32 v{t2}, 1, v{t2}
            v_xor_b32 v{t1}, v{t1}, v{t2}
            v_lshlrev_b32 v{vTU0}, 8, v{t0}
            v_lshl_add_u32 v{vTU0}, v{t1}, 4, v{vTU0}
            v_and_b32 v{t1}, 1, v{vL}
            v_lshl_add_u32 v{vTU0}, v{t1}, 3, v{vTU0}
            v_xor_b32 v{vTU1}, 32, v{vTU0}
            """)
            assert A_WUV == 0
            tr_pair_bases(g, vTO0, vTO1, None, None, vL, A_WO, t0, t1, t2)
            g(f"""
            v_lshrrev_b32 v{t0}, 2, v{vL}
            v_bfe_u32 v{t1}, v{vL}, 1, 1
            v_lshl_add_u32 v{t1}, s{sW}, 1, v{t1}
            v_and_b32 v{t2}, 6, v{t0}
            v_xor_b32 v{t2}, v{t2}, v{t1}
            v_lshlrev_b32 v{t2}, 4, v{t2}
            v_mul_u32_u24 v{vT1}, 1152, v{t0}
            v_and_b32 v{t3}, 1, v{vL}
            v_lshlrev_b32 v{t3}, 3, v{t3}
            v_add_u32 v{t3}, {A_W1}, v{t3}
            v_add3_u32 v{vT1}, v{vT1}, v{t2}, v{t3}
            v_and_b32 v{t0}, 3, v{t0}
            v_and_b32 v{t2}, 2, v{t0}
            v_xor_b32 v{t2}, v{t2}, v{t1}
            v_lshlrev_b32 v{t2}, 4, v{t2}
            v_mul_u32_u24 v{vK1}, 1152, v{t0}
            v_add3_u32 v{vK1}, v{vK1}, v{t2}, v{t3}
            v_and_b32 v{t0}, 1, v{vL}
            v_lshlrev_b32 v{vCX}, 9, v{t0}
            v_bfe_u32 v{t0}, v{vL}, 1, 1
            v_lshl_add_u32 v{vCX}, v{t0}, 8, v{vCX}
            v_lshl_add_u32 v{vCX}, v{vG}, 4, v{vCX}
            v_and_b32 v{t0}, 1, v{vG}
            v_lshlrev_b32 v{vCW}, 3, v{t0}
            v_lshl_add_u32 v{vCW}, v{vN}, 4, v{vCW}
            v_lshl_add_u32 v{vCW}, s{sW}, 8, v{vCW}
            v_and_b32 v{t0}, 3, v{vL}
            v_lshlrev_b32 v{vHBl}, 8, v{t0}
            v_lshl_add_u32 v{vHBl}, v{vG}, 6, v{vHBl}
            v_bfe_u32 v{t0}, v{vL}, 2, 1
            v_lshl_add_u32 v{vHBl}, v{t0}, 4, v{vHBl}
            v_and_b32 v{t0}, 31, v{vL}
            v_lshlrev_b32 v{vD2}, 8, v{t0}
            v_lshlrev_b32 v{vOg}, 10, v{vG}
            v_lshl_add_u32 v{vOg}, v{vN}, 4, v{vOg}
            v_lshlrev_b32 v{vWTw}, 1, v{t0}
            v_lshl_add_u32 v{vWTw}, s{sW}, 6, v{vWTw}
            s_and_b32 s{sTMP}, s{sW}, 1
            s_lshl_b32 s{sTMP}, s{sTMP}, 5
            s_lshl_b32 s{sTMP+1}, s{sW}, 6
            s_add_u32 s{sTMP}, s{sTMP}, s{sTMP+1}
            v_lshl_add_u32 v{vWTr}, v{vG}, 3, s{sTMP}
            v_cmp_gt_u32 s[{sM1}:{sM1+1}], 8, v{vN}
            """)
        later_addresses()
        if opt.get("a_wait", 1): g("s_waitcnt vmcnt(0)")
        g.stamp(14)
        g(f"""
        s_lshl_b32 s{sO}, s{sJ}, 5
        s_add_u32 s{sO}, s{sO}, s{sW}
        s_lshl_b32 s{sO}, s{sO}, 15
        s_lshl_b32 s{sO3}, s{sH}, 8
        s_add_u32 s{sO}, s{sO}, s{sO3}
        s_lshl_b32 s{sO3}, s{sW}, 13
        """)
        for z in range(8 if "uv" not in opt.get("skip", "") else 0):
            hi, gg = z >> 2, z & 3
            if opt.get("uv_thr"): g(f"s_waitcnt vmcnt({opt['uv_thr']-1})")
            g(f"s_add_u32 m0, s{sO3}, {A_WUV + z*1024}")
            g(f"s_add_u32 s{sTMP}, s{sO}, {(64*hi+gg)*8192}")
            g(f"buffer_load_dwordx4 v{vUV1 if z & 1 else vUV0}, {WUV}, s{sTMP} offen {NT} lds")
        g(f"s_mul_i32 s{sO2}, s{sI}, {36*9216}")
        g(f"s_mul_i32 s{sO3}, s{sXCD}, 1152")
        g(f"s_add_u32 s{sO2}, s{sO2}, s{sO3}")
        unit_load(g, W1, vP1, A_W1, sO2, 9216, "w1", NT, thr=opt.get("a_thr"))
        g(f"s_mul_i32 s{sO2}, s{sA}, {32*1152}")
        unit_load(g, WO, vP2, A_WO, sO2, 1152, "wo", NT, rows36=False, thr=opt.get("a_thr"))
        g(f"s_waitcnt vmcnt({9 if 'wo' not in opt.get('skip', '') else 0})")
        g("s_barrier")
        g.stamp(5)
        aUV, aWO, aW1 = 0, 32, 80
        vH = 76
        def w1rd(t):
            g(f"ds_read_b64_tr_b16 {A(aW1+6*t,2)}, v{vT1} offset:{t*128}")
            g(f"ds_read_b64_tr_b16 {A(aW1+6*t+2,2)}, v{vT1} offset:{16*1152+t*128}")
        def w1mf(t):
            g(f"{MF} {v(vH+4*(t>>2),4)}, {v(vXA+6*(t&3),4)}, {A(aW1+6*t,4)}, {'0' if t & 3 == 0 else v(vH+4*(t>>2),4)}")
        for t in range(7): w1rd(t)
        g(f"v_lshrrev_b32 v{t0}, 1, v{vN}")
        g(f"v_lshrrev_b32 v{t1}, 1, v{vL}")
        for z in range(4):
            g(f"v_cmp_eq_u32 vcc, {2*z}, v{t0}")
            g(f"v_cmp_eq_u32 s[{sM3}:{sM3+1}], {2*z}, v{t1}")
            for d in range(4):
                g(f"v_cndmask_b32 v{vXA+6*z+d}, 0, v{vXr+d}, vcc")
            for d in range(4, 6):
                g(f"v_cndmask_b32 v{vXA+6*z+d}, 0, v{vXr+d}, s[{sM3}:{sM3+1}]")
        w1rd(7); w1rd(8)
        for t in range(9):
            g(f"ds_read_b64_tr_b16 {A(aW1+6*t+4,2)}, v{vK1} offset:{32*1152+t*128}")
        g("s_waitcnt lgkmcnt(13)")
        for t in range(7): w1mf(t)
        g("s_waitcnt lgkmcnt(9)")
        w1mf(7); w1mf(8)
        g("s_waitcnt lgkmcnt(0)")
        for t in range(9):
            g(f"{MF16} {v(vH+4*(t>>2),4)}, {v(vXA+6*(t&3)+4,2)}, {A(aW1+6*t+4,2)}, {v(vH+4*(t>>2),4)}")
            if t < 8:
                tau, ks = t >> 2, t & 3
                for hi in range(2):
                    g(f"ds_read_b64_tr_b16 {A(aUV+(tau*4+ks)*4+2*hi,2)}, v{vTU1 if tau else vTU0} offset:{ks*8192+hi*4096}")
        vDB = 88
        vDL = 92
        vO = 96
        vFr = 116
        vWt = 132
        vD = 136
        vLs, vWr, vEr = 140, 141, 142
        g(f"""
        s_lshr_b32 s{sO}, s{sH}, 4
        s_lshl_b32 s{sO}, s{sO}, 1
        s_lshr_b32 s{sO3}, s{sW}, 1
        s_add_u32 s{sO}, s{sO}, s{sO3}
        s_lshl_b32 s{sO}, s{sO}, 13
        s_and_b32 s{sO3}, s{sH}, 15
        s_lshl_b32 s{sO3}, s{sO3}, 4
        s_add_u32 s{sO}, s{sO}, s{sO3}
        s_add_u32 s{sO2}, s{sO}, {DL}
        s_add_u32 s{sO}, s{sO}, {D2}
        buffer_load_dwordx4 {v(vDB,4)}, v{vD2}, {WS}, s{sO} offen sc1
        """)
        for y in range(3):
            g(f"v_mov_b32 v{vH+4*y+2}, s{sT}")
            g(f"v_mov_b32 v{vH+4*y+3}, s{sT+1}")
            if y == 2: g("s_mov_b64 exec, 0xffff")
            g(f"buffer_store_dwordx4 {v(vH+4*y,4)}, v{vHs}, {WS}, s{sHH} offen sc1")
            if y < 2: g(f"s_addk_i32 s{sHH}, 0x1000")
        g("s_mov_b64 exec, -1")
        sBP = 34
        sHI, sTT = sPOI, sPC
        sX, sP4 = 32, 33
        g(f"""
        s_and_b32 s{sTMP}, s{sW}, 1
        s_lshl_b32 s{sTMP}, s{sTMP}, 12
        s_add_u32 s{sTMP}, s{sTMP}, s{sO2}
        s_add_u32 s{sBP}, s4, s{sTMP}
        s_addc_u32 s{sBP+1}, s5, 0
        s_mul_i32 s{sO3}, s{sA}, {OSTR}
        s_lshl_b32 s{sTMP}, s{sW}, 12
        s_add_u32 s{sO3}, s{sO3}, s{sTMP}
        s_add_u32 s{sO3}, s{sO3}, {OB}
        s_bitcmp1_b32 s{sT}, 0
        s_cselect_b32 s{sX}, 0x10001, 0
        s_mov_b32 s{sHI}, 0x10000
        s_mov_b32 s{sTT}, s{sT}
        s_mov_b32 s{sTT+1}, s{sT}
        """)
        g(f"v_mov_b32 v{t0}, 0")
        for k in range(9):
            g(f"v_dot2_f32_bf16 v{t0}, v{vGx+k}, v{vGw+k}, v{t0}")
        g("s_nop 2")
        for r in (8, 4, 2, 1):
            g(f"v_add_f32_dpp v{t0}, v{t0}, v{t0} row_ror:{r} row_mask:0xf bank_mask:0xf")
        g(f"""
        v_mov_b32 v{t1}, v{t0}
        v_permlane16_swap_b32 v{t0}, v{t1}
        v_add_f32 v{t0}, v{t0}, v{t1}
        v_mul_f32 v{t0}, {hex(fbits(-math.log2(math.e)))}, v{t0}
        v_exp_f32 v{t0}, v{t0}
        v_add_f32 v{t0}, 1.0, v{t0}
        v_rcp_f32 v{t0}, v{t0}
        v_cmp_eq_u32 vcc, 1, v{vFB}
        v_mov_b32 v{t1}, v{t0}
        v_permlane32_swap_b32 v{t0}, v{t1}
        v_cndmask_b32 v{vFB}, v{t0}, v{t1}, vcc
        v_lshlrev_b32 v{vB2}, 16, v{vB2}
        s_mov_b32 s{sCNT}, 0
        s_waitcnt vmcnt(3)
        s_branch L_A_d2chk
        """)
        g.lab("L_A_d2poll")
        if opt.get("m_shrink"): g("s_mov_b64 exec, vcc")
        if opt.get("m_sleep"): g(f"s_sleep {opt['m_sleep']}")
        g(f"buffer_load_dwordx4 {v(vDB,4)}, v{vD2}, {WS}, s{sO} offen sc1")
        g(f"s_add_u32 s{sCNT}, s{sCNT}, 1")
        g(f"s_cmp_gt_u32 s{sCNT}, {opt.get('spin', SPIN)}")
        g("s_waitcnt vmcnt(0)")
        g("s_cbranch_scc1 L_A_d2done")
        g.lab("L_A_d2chk")
        g(f"v_cmp_ne_u64 vcc, s[{sT}:{sT+1}], {v(vDB+2,2)}")
        g("s_cbranch_vccnz L_A_d2poll")
        g.lab("L_A_d2done")
        if opt.get("m_shrink"): g("s_mov_b64 exec, -1")
        g.stamp(6)
        def lpoll():
            for k in range(16):
                g(f"s_load_dword s{16+k}, s[{sBP}:{sBP+1}], {k*256+8} glc")
        lvec = opt.get("l_vec", 0)
        if lvec == 1: g(f"buffer_load_dwordx4 {v(vDL,4)}, v{vD2}, {WS}, s{sO2} offen sc1")
        elif lvec == 0: lpoll()
        g(f"v_max_f32_dpp v{t0}, v{vDB}, v{vDB} row_ror:8 row_mask:0xf bank_mask:0xf")
        for r in (4, 2, 1):
            g(f"v_max_f32_dpp v{t0}, v{t0}, v{t0} row_ror:{r} row_mask:0xf bank_mask:0xf")
        g(f"""
        v_mov_b32 v{t1}, v{t0}
        v_permlane16_swap_b32 v{t0}, v{t1}
        v_max_f32 v{t0}, v{t0}, v{t1}
        v_sub_f32 v{t0}, v{vDB}, v{t0}
        v_exp_f32 v{t0}, v{t0}
        v_cvt_pk_bf16_f32 v{t0}, v{t0}, v{t0}
        ds_write_b16 v{vWTw}, v{t0} offset:{A_WT}
        ds_read_b64 {v(vWt,2)}, v{vWTr} offset:{A_WT}
        v_and_b32 v{vWr}, 0xffff0000, v{t0}
        s_mov_b32 s{sCNT}, 0
        s_branch {"L_A_lgo" if lvec == 2 else "L_A_lchk"}
        """)
        g.lab("L_A_lpoll")
        if lvec: g(f"buffer_load_dwordx4 {v(vDL,4)}, v{vD2}, {WS}, s{sO2} offen sc1")
        else: lpoll()
        g(f"s_add_u32 s{sCNT}, s{sCNT}, 1")
        g(f"s_cmp_gt_u32 s{sCNT}, {opt.get('spin', SPIN)}")
        g("s_cbranch_scc1 L_A_lgo")
        g.lab("L_A_lchk")
        if lvec:
            g("s_waitcnt vmcnt(0)")
            g(f"v_cmp_ne_u64 vcc, s[{sT}:{sT+1}], {v(vDL+2,2)}")
            g("s_cbranch_vccnz L_A_lpoll")
        else:
            g("s_waitcnt lgkmcnt(0)")
            for k in range(0, 16, 2):
                g(f"s_xor_b64 s[{16+k}:{17+k}], s[{16+k}:{17+k}], s[{sTT}:{sTT+1}]")
            for st_ in (8, 4, 2):
                for k in range(0, st_, 2):
                    g(f"s_or_b64 s[{16+k}:{17+k}], s[{16+k}:{17+k}], s[{16+k+st_}:{17+k+st_}]")
            g("s_cbranch_scc1 L_A_lpoll")
        g.lab("L_A_lgo")
        g(f"s_mov_b32 s{sCNT}, 0")
        g.stamp(11)
        g.lab("L_A_oget")
        g(f"buffer_load_dwordx4 {v(vDL,4)}, v{vD2}, {WS}, s{sO2} offen sc1")
        for u in range(4):
            g(f"buffer_load_dwordx4 {v(vO+4*u,4)}, v{vOg}, {WS}, s{sO3} offen offset:{u*256} sc1")
        g("s_waitcnt lgkmcnt(0)")
        for u in range(4):
            for d in range(4):
                g(f"v_perm_b32 v{vFr+4*u+d}, v{vWt+(u>>1)}, v{vWt+(u>>1)}, v{vSel+4*(u&1)+d}")
        g(f"v_mov_b32 v{vEr}, 0")
        g("s_waitcnt vmcnt(4)")
        g(f"v_mul_f32 v{vLs}, v{vWr}, v{vDL}")
        g(f"v_cmp_ne_u64 s[{sM4}:{sM4+1}], s[{sT}:{sT+1}], {v(vDL+2,2)}")
        for r in (8, 4, 2, 1):
            g(f"v_add_f32_dpp v{vLs}, v{vLs}, v{vLs} row_ror:{r} row_mask:0xf bank_mask:0xf")
        g(f"""
        v_mov_b32 v{t1}, v{vLs}
        v_permlane16_swap_b32 v{vLs}, v{t1}
        v_add_f32 v{vLs}, v{vLs}, v{t1}
        v_rcp_f32 v{vLs}, v{vLs}
        """)
        for u in range(4):
            g(f"s_waitcnt vmcnt({3-u})")
            for d in range(4):
                g(f"v_xor_b32 v{vO+4*u+d}, s{sX}, v{vO+4*u+d}")
            if u:
                for d in range(4):
                    g(f"v_bitop3_b32 v{vEr}, v{vEr}, v{vO+4*(u-1)+d}, s{sHI} bitop3:0xf6")
            g(f"{MF} {v(vD,4)}, {v(vFr+4*u,4)}, {v(vO+4*u,4)}, {'0' if u == 0 else v(vD,4)}")
        for d in range(4):
            g(f"v_bitop3_b32 v{vEr}, v{vEr}, v{vO+12+d}, s{sHI} bitop3:0xf6")
        g(f"v_and_b32 v{vEr}, 0x10001, v{vEr}")
        g(f"v_cmp_ne_u32 vcc, 0, v{vEr}")
        g(f"s_or_b64 vcc, vcc, s[{sM4}:{sM4+1}]")
        g("s_cbranch_scc1 L_A_oslow")
        g.lab("L_A_ook")
        if opt.get("stamps"): g(f"s_mov_b32 s100, s{sCNT}")
        for r in range(4):
            g(f"v_mul_f32 v{vD+r}, v{vLs}, v{vD+r}")
        g(f"v_cvt_pk_bf16_f32 v{vD}, v{vD}, v{vD+1}")
        g(f"v_cvt_pk_bf16_f32 v{vD+1}, v{vD+2}, v{vD+3}")
        g(f"ds_write_b64 v{vCW}, {v(vD,2)} offset:{A_CTXC}")
        g("s_waitcnt lgkmcnt(0)")
        g("s_barrier")
        g.stamp(7)
        vC = 80
        vU = 96
        vG1, vG2 = 104, 108
        vAe, vAo = 116, 120
        vY = 124
        for ks in range(4):
            g(f"ds_read_b128 {v(vC+4*ks,4)}, v{vCX} offset:{A_CTXC+ks*64}")
        g(f"s_lshl_b32 s{sO3}, s{sA}, 10")
        g(f"s_add_u32 s{sO3}, s{sO3}, {HB+LOC}")
        g(f"s_add_u32 s{sO}, s{sHB}, {LOC}")
        g(f"s_and_b32 s{sP4}, s{sT}, 15")
        for ks in range(4):
            g(f"s_waitcnt lgkmcnt({3-ks})")
            for tau in range(2):
                g(f"{MF} {v(vU+4*tau,4)}, {A(aUV+(tau*4+ks)*4,4)}, {v(vC+4*ks,4)}, {'0' if ks == 0 else v(vU+4*tau,4)}")
        for r in range(4):
            g(f"v_cndmask_b32 v{vC+r}, v{vU+r}, v{vU+4+r}, s[{sM2}:{sM2+1}]")
            g(f"v_cndmask_b32 v{vC+4+r}, v{vU+4+r}, v{vU+r}, s[{sM2}:{sM2+1}]")
        for r in range(4):
            g(f"v_add_f32_dpp v{vC+r}, v{vC+4+r}, v{vC+r} quad_perm:[2,3,0,1] row_mask:0xf bank_mask:0xf")
        g(f"""
        v_cvt_pk_bf16_f32 v{vTag-2}, v{vC}, v{vC+1}
        v_cvt_pk_bf16_f32 v{vTag-1}, v{vC+2}, v{vC+3}
        s_mov_b32 exec_lo, 0x000f000f
        s_mov_b32 exec_hi, 0x000f000f
        buffer_store_dwordx4 {v(vTag-2,4)}, v{vHBs}, {WS}, s{sO} offen
        s_mov_b64 exec, -1
        """)
        def hb_wt():
            g("s_mov_b32 exec_lo, 0x000f000f")
            g("s_mov_b32 exec_hi, 0x000f000f")
            g(f"buffer_store_dwordx4 {v(vTag-2,4)}, v{vHBs}, {WS}, s{sHB} offen sc1")
            g("s_mov_b64 exec, -1")
        g.stamp(8)
        for t in range(5):
            for x in range(2):
                for hi in range(2):
                    g(f"ds_read_b64_tr_b16 {A(aWO+(t*2+x)*4+2*hi,2)}, v{vTO1 if x else vTO0} offset:{hi*16*1152+t*256}")
        g(f"s_mov_b32 s{sCNT}, 0")
        g.lab("L_A_hbld")
        g(f"buffer_load_dwordx4 {v(vG1,4)}, v{vHBl}, {WS}, s{sO3} offen sc1")
        g(f"buffer_load_dwordx4 {v(vG2,4)}, v{vHBl}, {WS}, s{sO3} offen offset:32 sc1")
        g("s_waitcnt vmcnt(0)")
        g(f"v_cmp_ne_u64 vcc, s[{sT}:{sT+1}], {v(vG1+2,2)}")
        g(f"v_cmp_ne_u64 s[{sM3}:{sM3+1}], s[{sT}:{sT+1}], {v(vG2+2,2)}")
        src = [vG1, vG1 + 1, vG2, vG2 + 1]
        for d in range(4):
            g(f"v_cndmask_b32 v{vAe+d}, 0, v{src[d]}, s[{sM1}:{sM1+1}]")
        g(f"s_or_b64 vcc, vcc, s[{sM3}:{sM3+1}]")
        g("s_cbranch_scc1 L_A_hbpoll")
        g.lab("L_A_hbdone")
        g.stamp(9)
        for d in range(4):
            g(f"v_cndmask_b32 v{vAo+d}, v{src[d]}, 0, s[{sM1}:{sM1+1}]")
        g("s_waitcnt lgkmcnt(0)")
        for t in range(4):
            g(f"{MF} {v(vY+4*t,4)}, {v(vAe,4)}, {A(aWO+(t*2)*4,4)}, 0")
        for t in range(4):
            g(f"{MF} {v(vY+4*t,4)}, {v(vAo,4)}, {A(aWO+(t*2+1)*4,4)}, {v(vY+4*t,4)}")
        g(f"{MF} {v(vY+16,4)}, {v(vAe,4)}, {A(aWO+32,4)}, 0")
        g(f"{MF} {v(vY+16,4)}, {v(vAo,4)}, {A(aWO+36,4)}, {v(vY+16,4)}")
        for t in range(4):
            g(f"v_pk_add_f32 {v(vY+4*t,2)}, {v(vY+4*t,2)}, {v(vY+4*t+2,2)}")
        for t in range(4):
            g(f"v_add_f32 v{vC+t}, v{vY+4*t}, v{vY+4*t+1}")
        for t in range(4):
            g(f"v_and_or_b32 v{vC+t}, v{vC+t}, -16, s{sP4}")
        g(f"buffer_store_dwordx4 {v(vC,4)}, v{vH3}, {WS}, s{sH3m} offen sc1")
        g(f"s_cmp_gt_u32 s{sW}, 1")
        g("s_cbranch_scc1 L_A_no5b")
        g(f"v_pk_add_f32 {v(vY+16,2)}, {v(vY+16,2)}, {v(vY+18,2)}")
        g(f"v_add_f32 v{vY+16}, v{vY+16}, v{vY+17}")
        g(f"v_and_or_b32 v{vY+16}, v{vY+16}, -16, s{sP4}")
        g(f"buffer_store_dword v{vY+16}, v{vH3x}, {WS}, s{sH3l} offen sc1")
        g.lab("L_A_no5b")
        hb_wt()
        g.stamp(10)
        g(f"s_cmp_ge_u32 s{sA}, 36")
        g("s_cbranch_scc1 L_A_exit")
        vRd = [144, 160]
        vRw = 97
        sR = [sO, sO2]
        g(f"""
        s_lshl_b32 s{sO2}, s{sW}, 12
        s_mul_i32 s{sO3}, s{sA}, {USTR}
        s_add_u32 s{sO3}, s{sO3}, s{sO2}
        s_add_u32 s{sO}, s{sO3}, {H3}
        s_add_u32 s{sO2}, s{sO3}, {H3+16384}
        """)
        def rget(part):
            for u in range(4):
                g(f"buffer_load_dwordx4 {v(vRd[part]+4*u,4)}, v{vA_l16}, {WS}, s{sR[part]} offen offset:{u*1024} sc1")
        rget(1)
        g(f"""
        v_and_b32 v{t0}, 7, v{vL}
        v_lshlrev_b32 v{vRw}, 6, v{t0}
        v_lshrrev_b32 v{t0}, 5, v{vL}
        v_lshl_add_u32 v{vRw}, v{t0}, 4, v{vRw}
        v_bfe_u32 v{t0}, v{vL}, 4, 1
        v_lshl_add_u32 v{vRw}, v{t0}, 5, v{vRw}
        v_lshl_add_u32 v{vRw}, s{sW}, 2, v{vRw}
        s_mov_b32 s{sCNT}, 0
        s_waitcnt vmcnt(4)
        """)
        rget(0)
        def rsum(part, waits):
            R = vRd[part]
            for u in range(4):
                if waits[u] is not None: g(f"s_waitcnt vmcnt({waits[u]})")
                for d in range(4):
                    g(f"v_xor_b32 v{R+4*u+d}, s{sP4}, v{R+4*u+d}")
                if u == 0:
                    g(f"v_or3_b32 v{vEr}, v{R}, v{R+1}, v{R+2}")
                    g(f"v_or_b32 v{vEr}, v{vEr}, v{R+3}")
                else:
                    g(f"v_pk_add_f32 {v(vY,2)}, {v(R if u == 1 else vY,2)}, {v(R+4*u,2)}")
                    g(f"v_pk_add_f32 {v(vY+2,2)}, {v(R+2 if u == 1 else vY+2,2)}, {v(R+4*u+2,2)}")
                    g(f"v_or3_b32 v{vEr}, v{vEr}, v{R+4*u}, v{R+4*u+1}")
                    g(f"v_or3_b32 v{vEr}, v{vEr}, v{R+4*u+2}, v{R+4*u+3}")
            g(f"v_permlane32_swap_b32 v{vY}, v{vY+1}")
            g(f"v_permlane32_swap_b32 v{vY+2}, v{vY+3}")
            g(f"v_and_b32 v{vEr}, 15, v{vEr}")
            g(f"v_add_f32 v{vY}, v{vY}, v{vY+1}")
            g(f"v_add_f32 v{vY+2}, v{vY+2}, v{vY+3}")
            g(f"v_cmp_ne_u32 vcc, 0, v{vEr}")
            g(f"v_permlane16_swap_b32 v{vY}, v{vY+2}")
            g(f"v_add_f32 v{vY}, v{vY}, v{vY+2}")
        def rfin(part):
            g(f"v_add_f32_dpp v{vY}, v{vY}, v{vY} row_ror:8 row_mask:0xf bank_mask:0xf")
            g(f"ds_write_b32 v{vRw}, v{vY} offset:{A_RED + part*512}")
        sPend = sM3
        rsum(1, [4, None, None, None])
        g(f"s_mov_b64 s[{sPend}:{sPend+1}], vcc")
        rfin(1)
        g.lab("L_A_r0sum")
        rsum(0, [3, 2, 1, 0])
        g("s_cbranch_vccnz L_A_r0slow")
        g.lab("L_A_r0ok")
        rfin(0)
        g(f"s_cmp_lg_u64 s[{sPend}:{sPend+1}], 0")
        g("s_cbranch_scc1 L_A_r1slow")
        g.lab("L_A_r1ok")
        g.stamp(12)
        if opt.get("stamps"):
            g(f"s_lshl_b32 s{sCNT}, s{sCNT}, 8")
            g(f"s_or_b32 s100, s100, s{sCNT}")
        g("s_waitcnt lgkmcnt(0)")
        g("s_barrier")
        g(f"s_cmp_lg_u32 s{sW}, 0")
        g("s_cbranch_scc1 L_A_exit")
        R = 144
        g(f"""
        s_mov_b32 exec_hi, 0
        ds_read_b128 {v(R,4)}, v{vA_l16} offset:{A_RED}
        ds_read_b128 {v(R+4,4)}, v{vA_l16} offset:{A_RED+512}
        v_sub_f32 v{t0}, 1.0, v{vFB}
        s_waitcnt lgkmcnt(0)
        v_pk_add_f32 {v(R,2)}, {v(R,2)}, {v(R+2,2)}
        v_pk_add_f32 {v(R+4,2)}, {v(R+4,2)}, {v(R+6,2)}
        v_add_f32 v{R}, v{R}, v{R+1}
        v_add_f32 v{R+4}, v{R+4}, v{R+5}
        v_add_f32 v{R+4}, v{R+4}, v{vB2}
        v_mul_f32 v{R+4}, v{t0}, v{R+4}
        v_fma_f32 v{R}, v{vFB}, v{R}, v{R+4}
        v_cvt_pk_bf16_f32 v{R}, v{R}, v{R}
        buffer_store_short v{R}, v{vOA}, {OUT}, 0 offen
        s_cmp_lg_u32 s{sA}, 0
        s_cbranch_scc1 L_A_exit
        s_mov_b64 exec, 1
        buffer_store_dwordx2 {v(vTag,2)}, v{vA_l16}, {WS}, 0 offen offset:{EPOCH} sc1
        """)
        if opt.get("probe") is not None:
            i = opt["probe"]
            g.stamp(13)
            g("s_waitcnt lgkmcnt(0)")
            g(f"s_sub_u32 s{sO}, s{70+2*i}, s70")
            g(f"s_lshl_b32 s{sO}, s{sO}, 2")
            g(f"s_add_u32 s{sO}, s{sO}, 4000")
            g.lab("L_probe")
            g(f"s_memrealtime s[{sTMP}:{sTMP+1}]")
            g("s_waitcnt lgkmcnt(0)")
            g(f"s_sub_u32 s{sTMP}, s{sTMP}, s70")
            g(f"s_cmp_lt_u32 s{sTMP}, s{sO}")
            g("s_cbranch_scc1 L_probe")
            g("s_endpgm")
        g.lab("L_A_exit")
        g.stamp(13)
        dump_stamps(g, 16, 216)
        g("s_endpgm")
        g.lab("L_A_h0poll")
        spin_guard(g, "L_A_h0done")
        g(f"s_cmp_lg_u32 s{sCNT}, 8")
        g("s_cbranch_scc1 L_A_h0ns")
        h0_wt()
        g.lab("L_A_h0ns")
        dual_next(g, sib[1:])
        h0loads()
        g("s_branch L_A_h0chk")
        g.lab("L_A_oslow")
        spin_guard(g, "L_A_ook")
        g("s_branch L_A_oget")
        g.lab("L_A_hbpoll")
        spin_guard(g, "L_A_hbdone")
        g(f"s_cmp_lg_u32 s{sCNT}, 8")
        g("s_cbranch_scc1 L_A_hbns")
        hb_wt()
        g.lab("L_A_hbns")
        dual_next(g, [sO3])
        g("s_branch L_A_hbld")
        g.lab("L_A_r0slow")
        spin_guard(g, "L_A_r0ok")
        rget(0)
        g("s_branch L_A_r0sum")
        g.lab("L_A_r1slow")
        spin_guard(g, "L_A_r1ok")
        rget(1)
        rsum(1, [3, 2, 1, 0])
        g("s_cbranch_vccnz L_A_r1slow")
        rfin(1)
        g("s_branch L_A_r1ok")

class RoleB:
    def __init__(self, g, NT, vL, vN, vG):
        self.g, self.NT, self.vL, self.vN, self.vG = g, NT, vL, vN, vG

    def issue(self):
        g, vL = self.g, self.vL
        g(f"""
        s_lshr_b32 s{sO}, s{sI}, 2
        s_lshl_b32 s{sO}, s{sO}, 3
        s_add_u32 s{sO}, s{sO}, s{sXCD}
        s_lshl_b32 s{sO}, s{sO}, 2
        s_and_b32 s{sO2}, s{sI}, 3
        s_add_u32 s{sO}, s{sO}, s{sO2}
        s_lshl_b32 s{sO2}, s{sO}, 11
        s_add_u32 s{sO2}, s{sO2}, {H0+LOC}
        s_lshl_b32 s{sO}, s{sO}, 10
        s_add_u32 s{sO}, s{sO}, {HB+LOC}
        s_cmp_eq_u32 s{sW}, 1
        s_cselect_b32 s{sO}, s{sO}, s{sO2}
        v_lshlrev_b32 v4, 7, v{vL}
        s_waitcnt lgkmcnt(0)
        """)
        load_tag(g)
        g(f"""
        s_cmp_gt_u32 s{sW}, 1
        s_cbranch_scc1 L_B_rest
        s_mov_b64 exec, 0xffff
        buffer_load_dword v254, v4, {WS}, s{sO} offen
        s_mov_b64 exec, -1
        """)

    def rest(self):
        g, NT, vL, vN, vG = self.g, self.NT, self.vL, self.vN, self.vG
        opt = g.opt
        CKV, W2, B1 = "s[28:31]", "s[20:23]", "s[24:27]"
        t0, t1, t2, t3 = 4, 5, 6, 7
        vL16 = 12
        vOa = 13
        vH3, vH3x = 14, 15
        vB1 = 22
        vSB = 24
        vQBs = 28
        vPVb = 16
        vTag = 36
        vML = 34
        vMXw, vMXr = 38, 39
        vD2a = 40
        vPw = 41
        vP2 = 42
        vT20, vT21, vK20, vK21 = 52, 53, 54, 55
        vHg, vHw = 56, 57
        vHe, vHo, vHke, vHko = 58, 59, 60, 61
        vQd = 8
        aS, aP = 0, 128
        sOo = 61
        sH3m, sH3l = 62, 63
        sD2, sGot = 59, 58
        sBP, sTT = 34, sPC
        sQg = 33
        sPat, sMk = 32, 36
        srd_tail(g, 28, 2 * 4096 * 1024)
        srd(g, 20, 9, 4608 * 1152)
        srd(g, 24, 8, 9216)
        g(f"""
        s_and_b32 s{sB}, s{sXCD}, 1
        s_lshr_b32 s{sMSG}, s{sI}, 1
        s_lshl_b32 s{sMSG}, s{sMSG}, 2
        s_lshr_b32 s{sO}, s{sXCD}, 1
        s_add_u32 s{sMSG}, s{sMSG}, s{sO}
        s_lshl_b32 s{sO}, s{sB}, 5
        s_add_u32 s{sMSG}, s{sMSG}, s{sO}
        v_lshlrev_b32 v{vL16}, 4, v{vL}
        """)
        def ckv_stream():
            g(f"""
            s_lshl_b32 s{sO}, s{sMSG}, 2
            s_add_u32 s{sO}, s{sO}, s{sW}
            s_lshl_b32 s{sO}, s{sO}, 15
            s_lshl_b32 m0, s{sW}, 15
            s_add_u32 m0, m0, {B_CKV}
            s_mov_b32 s{sCNT}, 0
            """)
            g.lab("L_B_ckv")
            thr = opt.get("ckv_thr")
            for k in range(16):
                f = f16sw(k)
                tmp = t0 + (k & 1)
                g(f"v_xor_b32 v{tmp}, {f*16}, v{vL16}")
                if thr is not None: g(f"s_waitcnt vmcnt({thr-1})")
                g(f"buffer_load_dwordx4 v{tmp}, {CKV}, s{sO} offen offset:{(k%4)*1024} {NT} lds")
                if k % 4 == 3:
                    g(f"s_addk_i32 s{sO}, 0x1000")
                    g(f"s_add_u32 m0, m0, 0x1000")
            g(f"s_add_u32 s{sCNT}, s{sCNT}, 1")
            g(f"s_cmp_lt_u32 s{sCNT}, 2")
            g("s_cbranch_scc1 L_B_ckv")
        g(f"""
        s_and_b32 s{sHG}, s{sI}, 1
        s_lshl_b32 s{sU2}, s{sXCD}, 4
        s_add_u32 s{sU2}, s{sU2}, s{sI}
        s_add_u32 s{sPR}, s{sU2}, 128
        s_mov_b32 s{sPOI}, {POISON}
        v_mul_u32_u24 v{vOa}, {16*OSTR}, v{vG}
        v_lshl_add_u32 v{vOa}, v{vN}, 4, v{vOa}
        s_lshl_b32 s{sOo}, s{sHG}, 6
        s_add_u32 s{sOo}, s{sOo}, s{sW}
        s_mul_i32 s{sOo}, s{sOo}, {OSTR}
        s_lshl_b32 s{sO}, s{sMSG}, 8
        s_add_u32 s{sOo}, s{sOo}, s{sO}
        s_add_u32 s{sOo}, s{sOo}, {OB}
        s_lshl_b32 s{sD2}, s{sHG}, 6
        s_add_u32 s{sD2}, s{sD2}, s{sMSG}
        s_lshl_b32 s{sD2}, s{sD2}, 8
        s_add_u32 s{sD2}, s{sD2}, {D2}
        """)
        h3_addr(g, vH3, vH3x, vL, vN, vG, t0)
        h3_soffs(g, sH3m, sH3l)
        def fsw(dst, src, tmp):
            g(f"v_lshrrev_b32 v{tmp}, 3, v{src}")
            g(f"v_and_b32 v{dst}, 7, v{src}")
            g(f"v_lshl_add_u32 v{dst}, v{dst}, 1, v{tmp}")
            g(f"v_lshlrev_b32 v{tmp}, 3, v{tmp}")
            g(f"v_xor_b32 v{dst}, v{dst}, v{tmp}")
        fsw(t2, vN, t3)
        g(f"""
        v_xor_b32 v{t2}, v{t2}, v{vG}
        v_lshlrev_b32 v{t2}, 4, v{t2}
        v_lshl_add_u32 v{t2}, v{vN}, 10, v{t2}
        s_lshl_b32 s{sO}, s{sW}, 15
        s_add_u32 s{sO}, s{sO}, {B_CKV}
        """)
        assert B_QF == 0
        for q in range(4):
            g(f"v_xor_b32 v{vQBs+q}, {q*64}, v{t2}")
            g(f"v_add_u32 v{vSB+q}, s{sO}, v{vQBs+q}")
        g(f"v_lshrrev_b32 v{t0}, 2, v{vL}")
        fsw(t2, t0, t3)
        g(f"""
        v_bfe_u32 v{t3}, v{vL}, 1, 1
        v_xor_b32 v{t2}, v{t2}, v{t3}
        v_lshlrev_b32 v{t1}, 10, v{t0}
        v_lshl_add_u32 v{t1}, v{t2}, 4, v{t1}
        v_and_b32 v{t3}, 1, v{vL}
        v_lshl_add_u32 v{t1}, v{t3}, 3, v{t1}
        v_lshl_add_u32 v{t1}, s{sW}, 8, v{t1}
        """)
        for k in range(4):
            g(f"s_add_u32 s{sO}, s{sW}, {k}")
            g(f"s_and_b32 s{sO}, s{sO}, 3")
            g(f"v_lshl_add_u32 v{[vPw,20,21,23][k]}, s{sO}, 10, v{vL16}")
            g(f"s_lshl_b32 s{sO}, s{sO}, 15")
            g(f"s_add_u32 s{sO}, s{sO}, {B_CKV}")
            g(f"v_add_u32 v{vPVb+k}, s{sO}, v{t1}")
        g(f"""
        v_lshlrev_b32 v{vMXr}, 4, v{vN}
        v_lshl_add_u32 v{vMXw}, v{vG}, 2, v{vMXr}
        v_lshl_add_u32 v{vMXw}, s{sW}, 8, v{vMXw}
        s_lshl_b32 s{sQg}, s{sB}, 1
        s_add_u32 s{sQg}, s{sQg}, s{sHG}
        s_lshl_b32 s{sQg}, s{sQg}, 2
        s_add_u32 s{sQg}, s{sQg}, s{sW}
        s_lshl_b32 s{sQg}, s{sQg}, 12
        s_add_u32 s{sQg}, s{sQg}, {QB}
        s_lshr_b32 s{sTMP}, s{sW}, 1
        s_xor_b32 s{sTMP+1}, s{sW}, s{sTMP}
        s_and_b32 s{sTMP+1}, s{sTMP+1}, 1
        s_lshl_b32 s{sTMP+1}, s{sTMP+1}, 3
        s_add_u32 s{sTMP}, s{sTMP}, s{sTMP+1}
        s_lshl_b32 s{sTMP}, s{sTMP}, 4
        v_xor_b32 v{vQd}, s{sTMP}, v{vL16}
        v_xor_b32 v{vQd+1}, 32, v{vQd}
        v_xor_b32 v{vQd+2}, 64, v{vQd}
        v_xor_b32 v{vQd+3}, 0x60, v{vQd}
        v_mov_b32 v{t0}, 0
        v_lshlrev_b32 v{t1}, 2, v{vL}
        s_mov_b32 exec_hi, 0
        ds_write_b32 v{t1}, v{t0} offset:{B_ZERO}
        s_mov_b64 exec, -1
        s_lshl_b32 s{sTMP}, s{sXCD}, 3
        s_lshl_b32 s{sTMP+1}, s{sHG}, 2
        s_add_u32 s{sTMP}, s{sTMP}, s{sTMP+1}
        s_add_u32 s{sTMP}, s{sTMP}, s{sW}
        s_lshl_b32 s{sTMP}, s{sTMP}, 9
        s_add_u32 s{sTMP}, s{sTMP}, {D1}
        s_add_u32 s{sBP}, s4, s{sTMP}
        s_addc_u32 s{sBP+1}, s5, 0
        """)
        if opt.get("ckv_pos", 1) == 0:
            g.stamp(8)
            ckv_stream()
        for i in range(10):
            unit_pattern(g, vP2 + i, vL, sW if i == 9 else None, i, 1152, t0, t1)
        tr_pair_bases(g, vT20, vT21, vK20, vK21, vL, B_W2, t0, t1, t2)
        g(f"""
        v_mul_u32_u24 v{vHg}, 9216, v{vG}
        v_lshl_add_u32 v{vHg}, v{vN}, 4, v{vHg}
        v_lshrrev_b32 v{t0}, 5, v{vL}
        v_lshlrev_b32 v{vHw}, 7, v{t0}
        v_lshl_add_u32 v{vHw}, v{vN}, 1, v{vHw}
        s_mul_i32 s{sO}, s{sW}, 18
        v_add_u32 v{vHw}, s{sO}, v{vHw}
        v_bfe_u32 v{t0}, v{vL}, 2, 1
        v_lshlrev_b32 v{t0}, 7, v{t0}
        v_add_u32 v{t0}, {B_HL}, v{t0}
        v_lshl_add_u32 v{t1}, v{vG}, 3, v{t0}
        v_add_u32 v{t0}, 64, v{t0}
        v_mov_b32 v{t2}, {B_ZERO}
        v_cmp_gt_u32 vcc, 8, v{vN}
        v_cndmask_b32 v{vHe}, v{t2}, v{t1}, vcc
        v_cndmask_b32 v{vHo}, v{t1}, v{t2}, vcc
        v_lshrrev_b32 v{t1}, 3, v{vL}
        v_cmp_eq_u32 vcc, 0, v{t1}
        v_cndmask_b32 v{vHke}, v{t2}, v{t0}, vcc
        v_cmp_eq_u32 vcc, 1, v{t1}
        v_cndmask_b32 v{vHko}, v{t2}, v{t0}, vcc
        """)
        finish_tag(g)
        g(f"""
        v_mov_b32 v{vTag}, s{sT}
        v_mov_b32 v{vTag+1}, s{sT+1}
        s_bitcmp1_b32 s{sT}, 0
        s_cselect_b32 s{sPat}, 1, 0x10000
        v_mov_b32 v{vML+1}, s{sPat}
        s_mov_b32 s{sMk}, 0xfffefffe
        s_mov_b32 s{sTT}, s{sT}
        s_mov_b32 s{sTT+1}, s{sT}
        """)
        vPat = 33
        g(f"v_mov_b32 v{vPat}, s{sPat}")
        NY = 0
        for k in range(4):
            g(f"s_load_dwordx4 s[{[8,12,16,52][k]}:{[8,12,16,52][k]+3}], s[{sBP}:{sBP+1}], {k*128} glc")
        if opt.get("ckv_pos", 1) == 1:
            if opt.get("b_wait", 0): g("s_waitcnt vmcnt(0)")
            if opt.get("b_bar", 0): g("s_barrier")
            if opt.get("b_sleep"): g(f"s_sleep {opt['b_sleep']}")
            g.stamp(8)
            ckv_stream()
        g.stamp(1)
        g(f"s_lshl_b32 m0, s{sW}, 12")
        sD = [8, 12, 16, 52]
        def d1poll():
            for k in range(4):
                g(f"s_load_dwordx4 s[{sD[k]}:{sD[k]+3}], s[{sBP}:{sBP+1}], {k*128} glc")
        def d1chk():
            for k in range(4):
                g(f"s_xor_b64 s[{sD[k]}:{sD[k]+1}], s[{sD[k]}:{sD[k]+1}], s[{sTT}:{sTT+1}]")
                g(f"s_xor_b64 s[{sD[k]+2}:{sD[k]+3}], s[{sD[k]+2}:{sD[k]+3}], s[{sTT}:{sTT+1}]")
                g(f"s_or_b64 s[{sD[k]}:{sD[k]+1}], s[{sD[k]}:{sD[k]+1}], s[{sD[k]+2}:{sD[k]+3}]")
            g("s_or_b64 s[8:9], s[8:9], s[12:13]")
            g("s_or_b64 s[16:17], s[16:17], s[52:53]")
            g("s_or_b64 s[8:9], s[8:9], s[16:17]")
        def qdma():
            for k in range(4):
                g(f"buffer_load_dwordx4 v{vQd+k}, {WS}, s{sQg} offen offset:{k*1024} sc1 lds")
        def look(tag):
            g(f"s_cmp_lg_u32 s{sGot}, 0")
            g(f"s_cbranch_scc1 L_B_lk{tag}")
            g("s_waitcnt lgkmcnt(0)")
            d1chk()
            g(f"s_cbranch_scc1 L_B_lp{tag}")
            g.stamp(3)
            qdma()
            g(f"s_mov_b32 s{sGot}, 1")
            g(f"s_branch L_B_lk{tag}")
            g.lab(f"L_B_lp{tag}")
            d1poll()
            g.lab(f"L_B_lk{tag}")
        g("s_waitcnt lgkmcnt(0)")
        d1poll()
        g(f"s_mov_b32 s{sGot}, 0")
        g("s_waitcnt vmcnt(16)")
        for ks in range(16):
            g(f"ds_read_b128 {A(aS+ks*4,4)}, v{vSB+(ks&3)} offset:{(ks>>2)*256}")
        for z in range(opt.get("b_looks", 2)): look(f"a{z}")
        g(f"s_cmp_lg_u32 s{sGot}, 0")
        g("s_cbranch_scc1 L_B_cw1")
        g("s_waitcnt vmcnt(0)")
        g.lab("L_B_cw1")
        g("s_waitcnt vmcnt(4)")
        g.stamp(2)
        look("b")
        for ks in range(16):
            g(f"ds_read_b128 {A(aS+64+ks*4,4)}, v{vSB+(ks&3)} offset:{16384+(ks>>2)*256}")
        g("s_barrier")
        def pvgroup(k):
            for ct in range(8):
                tmp = t0 + (ct & 1)
                g(f"v_xor_b32 v{tmp}, {ct<<5}, v{vPVb+k}")
                for hi in range(2):
                    g(f"ds_read_b64_tr_b16 {A(aP+(ct*4+k)*4+2*hi,2)}, v{tmp} offset:{hi*16384}")
        for k in range(4):
            look(f"c{k}")
            pvgroup(k)
        g(f"s_mov_b32 s{sCNT}, 0")
        g(f"s_cmp_lg_u32 s{sGot}, 0")
        g("s_cbranch_scc1 L_B_qwait")
        g("s_branch L_B_d1chk")
        g.lab("L_B_d1poll")
        d1poll()
        spin_guard(g, "L_B_qget0")
        g.lab("L_B_d1chk")
        g("s_waitcnt lgkmcnt(0)")
        d1chk()
        g("s_cbranch_scc1 L_B_d1poll")
        g.stamp(3)
        g.lab("L_B_qget0")
        g(f"s_mov_b32 s{sCNT}, 0")
        g.lab("L_B_qget")
        qdma()
        g.lab("L_B_qwait")
        g("s_waitcnt vmcnt(0) lgkmcnt(0)")
        g("s_barrier")
        g.stamp(4)
        vQ = 64
        vS = 156
        PRE = 6
        for ks in range(PRE):
            g(f"ds_read_b128 {v(vQ+4*ks,4)}, v{vQBs+(ks&3)} offset:{(ks>>2)*256}")
        for ks in range(16):
            if ks + PRE < 16:
                k2 = ks + PRE
                g(f"ds_read_b128 {v(vQ+4*k2,4)}, v{vQBs+(k2&3)} offset:{(k2>>2)*256}")
            g(f"s_waitcnt lgkmcnt({min(PRE, 15-ks)})")
            for kt in range(2):
                g(f"{MF} {v(vS+4*kt,4)}, {A(aS+(kt*16+ks)*4,4)}, {v(vQ+4*ks,4)}, {'0' if ks == 0 else v(vS+4*kt,4)}")
        CS = math.log2(math.e) * 128 ** -0.5
        g(f"s_mov_b32 s{sC}, {hex(fbits(CS))}")
        g(f"""
        v_cmp_u_f32 vcc, v{vS}, v{vS}
        v_max3_f32 v{t0}, v{vS}, v{vS+1}, v{vS+2}
        v_max3_f32 v{t1}, v{vS+3}, v{vS+4}, v{vS+5}
        v_max3_f32 v{t0}, v{t0}, v{vS+6}, v{vS+7}
        v_max_f32 v{t0}, v{t0}, v{t1}
        s_cbranch_vccnz L_B_qslow
        """)
        g.lab("L_B_qok")
        if opt.get("stamps"): g(f"s_mov_b32 s100, s{sCNT}")
        g(f"""
        ds_write_b32 v{vMXw}, v{t0} offset:{B_MX}
        s_waitcnt lgkmcnt(0)
        s_barrier
        """)
        g.stamp(5)
        vM = 64
        for q in range(4):
            g(f"ds_read_b128 {v(vM+4*q,4)}, v{vMXr} offset:{B_MX+q*256}")
        g(f"""
        s_waitcnt lgkmcnt(2)
        v_max3_f32 v{vM}, v{vM}, v{vM+1}, v{vM+2}
        v_max3_f32 v{vM+3}, v{vM+3}, v{vM+4}, v{vM+5}
        v_max3_f32 v{vM}, v{vM}, v{vM+6}, v{vM+7}
        s_waitcnt lgkmcnt(0)
        v_max3_f32 v{vM+8}, v{vM+8}, v{vM+9}, v{vM+10}
        v_max3_f32 v{vM+11}, v{vM+11}, v{vM+12}, v{vM+13}
        v_max3_f32 v{vM+8}, v{vM+8}, v{vM+14}, v{vM+15}
        v_max3_f32 v{vM}, v{vM}, v{vM+3}, v{vM+11}
        v_max_f32 v{vM}, v{vM}, v{vM+8}
        v_mul_f32 v{vML}, s{sC}, v{vM}
        """)
        def stat(wave, off, tag):
            g(f"s_cmp_lg_u32 s{sW}, {wave}")
            g(f"s_cbranch_scc1 L_B_nost{tag}")
            if off: g(f"s_add_u32 s{sD2}, s{sD2}, {off}")
            g("s_mov_b64 exec, 0xffff")
            g(f"buffer_store_dwordx4 {v(vML,4)}, v{vL16}, {WS}, s{sD2} offen sc1")
            g("s_mov_b64 exec, -1")
            g.lab(f"L_B_nost{tag}")
        if opt.get("m_early"): stat(1, 0, "m")
        for k in range(8):
            g(f"v_fma_f32 v{vS+k}, v{vS+k}, s{sC}, -v{vML}")
        for k in range(8):
            g(f"v_exp_f32 v{vS+k}, v{vS+k}")
        vPf = 80
        vO = 96
        for k in range(4):
            g(f"v_cvt_pk_bf16_f32 v{vPf+k}, v{vS+2*k}, v{vS+2*k+1}")
        g(f"ds_write_b128 v{vPw}, {v(vPf,4)} offset:{B_PB}")
        g(f"""
        v_pk_add_f32 {v(vS,2)}, {v(vS,2)}, {v(vS+2,2)}
        v_pk_add_f32 {v(vS+4,2)}, {v(vS+4,2)}, {v(vS+6,2)}
        v_pk_add_f32 {v(vS,2)}, {v(vS,2)}, {v(vS+4,2)}
        v_add_f32 v{vS}, v{vS}, v{vS+1}
        ds_write_b32 v{vMXw}, v{vS} offset:{B_LS}
        """)
        def pv(k, cts=range(8)):
            for ct in cts:
                g(f"{MF} {v(vO+4*ct,4)}, {v(vPf+4*k,4)}, {A(aP+(ct*4+k)*4,4)}, {'0' if k == 0 else v(vO+4*ct,4)}")
        pv(0, range(2))
        if not opt.get("m_early"): stat(1, 0, "m")
        g("s_waitcnt lgkmcnt(0)")
        g("s_barrier")
        g.stamp(6)
        for k in range(1, 4):
            g(f"ds_read_b128 {v(vPf+4*k,4)}, v{[0,20,21,23][k]} offset:{B_PB}")
        for q in range(4):
            g(f"ds_read_b128 {v(vM+4*q,4)}, v{vMXr} offset:{B_LS+q*256}")
        pv(0, range(2, 8))
        g("s_waitcnt lgkmcnt(6)")
        adds = [f"v_pk_add_f32 {v(vM,2)}, {v(vM,2)}, {v(vM+2,2)}", f"v_pk_add_f32 {v(vM+4,2)}, {v(vM+4,2)}, {v(vM+6,2)}",
                f"v_pk_add_f32 {v(vM+8,2)}, {v(vM+8,2)}, {v(vM+10,2)}", f"v_pk_add_f32 {v(vM+12,2)}, {v(vM+12,2)}, {v(vM+14,2)}",
                f"v_pk_add_f32 {v(vM,2)}, {v(vM,2)}, {v(vM+4,2)}", f"v_pk_add_f32 {v(vM+8,2)}, {v(vM+8,2)}, {v(vM+12,2)}",
                f"v_pk_add_f32 {v(vM,2)}, {v(vM,2)}, {v(vM+8,2)}", f"v_add_f32 v{vML}, v{vM}, v{vM+1}"]
        pv(1, range(4))
        g("s_waitcnt lgkmcnt(0)")
        for ct in range(4, 8):
            pv(1, [ct])
            g(adds[2 * (ct - 4)]); g(adds[2 * (ct - 4) + 1])
        dbpos = opt.get("d2_pos", 2)
        if dbpos == 2: stat(0, DL - D2, "l")
        vOo = 64
        def cv(k, rs=range(4)):
            for r in rs:
                g(f"v_cvt_pk_bf16_f32 v{vOo+4*r+k}, v{vO+8*k+r}, v{vO+8*k+4+r}")
        def tg(k, rs=range(4)):
            for r in rs:
                g(f"v_and_or_b32 v{vOo+4*r+k}, v{vOo+4*r+k}, s{sMk}, v{vPat}")
        for p in range(4):
            pv(2, [2 * p, 2 * p + 1])
            if p >= 2: cv(p - 2, (0, 1))
            pv(3, [2 * p])
            if p >= 2: cv(p - 2, (2, 3))
            pv(3, [2 * p + 1])
            if p >= 2: tg(p - 2)
            if dbpos == 3 and p == 1: stat(0, DL - D2, "l")
        cv(2); tg(2)
        for r in range(4):
            cv(3, [r]); tg(3, [r])
            g(f"s_add_u32 s{sO}, s{sOo}, {4*r*OSTR}")
            g(f"buffer_store_dwordx4 {v(vOo+4*r,4)}, v{vOa}, {WS}, s{sO} offen sc1")
        if dbpos == 4: stat(0, DL - D2, "l")
        g.stamp(7)
        g(f"""
        s_mul_i32 s{sO}, s{sU2}, 72
        s_mul_i32 s{sTMP}, s{sW}, 18
        s_add_u32 s{sO}, s{sO}, s{sTMP}
        v_lshlrev_b32 v{t0}, 1, v{vN}
        buffer_load_ushort v{vB1}, v{t0}, {B1}, s{sO} offen
        """)
        if opt.get("w2_wait", 0): g("s_waitcnt vmcnt(0)")
        g.stamp(9)
        if opt.get("b_sleep2"): g(f"s_sleep {opt['b_sleep2']}")
        g(f"s_mul_i32 s{sO2}, s{sU2}, {36*1152}")
        unit_load(g, W2, vP2, B_W2, sO2, 1152, "w2", NT, thr=opt.get("w2_thr"))
        vHr = 80
        g(f"""
        s_mul_i32 s{sO}, s{sXCD}, {16*9216}
        s_mul_i32 s{sO3}, s{sI}, 576
        s_add_u32 s{sO}, s{sO}, s{sO3}
        s_mul_i32 s{sO3}, s{sW}, 144
        s_add_u32 s{sO}, s{sO}, s{sO3}
        s_add_u32 s{sO}, s{sO}, {HH}
        s_add_u32 s{sO2}, s{sO}, {4*9216}
        s_add_u32 s{sO3}, s{sO}, {8*9216}
        s_add_u32 s{sC}, s{sO}, {12*9216}
        s_mov_b32 exec_lo, 0x01ff01ff
        s_mov_b32 exec_hi, 0x01ff01ff
        s_mov_b32 s{sCNT}, 0
        s_and_b32 s{sPat}, s{sT}, 15
        """)
        g.lab("L_B_hpoll")
        for u, so in enumerate((sO, sO2, sO3, sC)):
            g(f"buffer_load_dwordx4 {v(vHr+4*u,4)}, v{vHg}, {WS}, s{so} offen sc1")
        spin_guard(g, "L_B_hdone")
        g("s_waitcnt vmcnt(0)")
        g(f"v_cmp_ne_u64 vcc, s[{sT}:{sT+1}], {v(vHr+2,2)}")
        for u in range(1, 4):
            g(f"v_cmp_ne_u64 s[{sM3}:{sM3+1}], s[{sT}:{sT+1}], {v(vHr+4*u+2,2)}")
            g(f"s_or_b64 vcc, vcc, s[{sM3}:{sM3+1}]")
        g("s_cbranch_scc1 L_B_hpoll")
        g.lab("L_B_hdone")
        g("s_waitcnt vmcnt(0)")
        g.stamp(10)
        c1 = -2.0 * math.log2(math.e) * math.sqrt(2.0 / math.pi)
        g(f"""
        v_pk_add_f32 {v(vHr,2)}, {v(vHr,2)}, {v(vHr+4,2)}
        v_pk_add_f32 {v(vHr+8,2)}, {v(vHr+8,2)}, {v(vHr+12,2)}
        v_pk_add_f32 {v(vHr,2)}, {v(vHr,2)}, {v(vHr+8,2)}
        v_lshlrev_b32 v{vB1}, 16, v{vB1}
        v_mov_b32 v{t1}, {hex(fbits(c1))}
        v_permlane32_swap_b32 v{vHr}, v{vHr+1}
        v_add_f32 v{vHr}, v{vHr}, v{vHr+1}
        v_mov_b32 v{vHr+1}, v{vHr}
        s_mov_b32 s{sC}, {hex(fbits(c1*0.044715))}
        v_permlane16_swap_b32 v{vHr}, v{vHr+1}
        v_add_f32 v{vHr}, v{vHr}, v{vHr+1}
        v_add_f32 v{vHr}, v{vHr}, v{vB1}
        v_mul_f32 v{t0}, v{vHr}, v{vHr}
        v_fma_f32 v{t0}, v{t0}, s{sC}, v{t1}
        v_mul_f32 v{t0}, v{t0}, v{vHr}
        v_exp_f32 v{t0}, v{t0}
        v_add_f32 v{t0}, 1.0, v{t0}
        v_rcp_f32 v{t0}, v{t0}
        v_mul_f32 v{t0}, v{t0}, v{vHr}
        v_cvt_pk_bf16_f32 v{t0}, v{t0}, v{t0}
        ds_write_b16 v{vHw}, v{t0} offset:{B_HL}
        s_mov_b64 exec, -1
        s_waitcnt lgkmcnt(0)
        s_barrier
        """)
        g.stamp(11)
        aW = 0
        vHA = 64
        vY = 96
        g(f"ds_read2_b64 {v(vHA,4)}, v{vHe} offset0:0 offset1:4")
        g(f"ds_read2_b64 {v(vHA+6,4)}, v{vHo} offset0:0 offset1:4")
        def w2reads(t):
            for x in range(2):
                b = aW + (t * 2 + x) * 6
                g(f"ds_read_b64_tr_b16 {A(b,2)}, v{vT21 if x else vT20} offset:{t*256}")
                g(f"ds_read_b64_tr_b16 {A(b+2,2)}, v{vT21 if x else vT20} offset:{16*1152+t*256}")
        def w2rk(t):
            for x in range(2):
                b = aW + (t * 2 + x) * 6
                g(f"ds_read_b64_tr_b16 {A(b+4,2)}, v{vK21 if x else vK20} offset:{t*256}")
        def w2mf(t):
            for x in range(2):
                b = aW + (t * 2 + x) * 6
                g(f"{MF} {v(vY+4*t,4)}, {v(vHA+6*x,4)}, {A(b,4)}, {'0' if x == 0 else v(vY+4*t,4)}")
        def w2mf16(t):
            for x in range(2):
                b = aW + (t * 2 + x) * 6
                g(f"{MF16} {v(vY+4*t,4)}, {v(vHA+6*x+4,2)}, {A(b+4,2)}, {v(vY+4*t,4)}")
        w2reads(0); w2reads(1); w2reads(2)
        g("s_waitcnt lgkmcnt(8)")
        w2mf(0)
        w2reads(3)
        g("s_waitcnt lgkmcnt(8)")
        w2mf(1)
        w2reads(4)
        g("s_waitcnt lgkmcnt(8)")
        w2mf(2)
        g(f"ds_read_b64 {v(vHA+4,2)}, v{vHke}")
        g(f"ds_read_b64 {v(vHA+10,2)}, v{vHko}")
        w2rk(0); w2rk(1)
        g("s_waitcnt lgkmcnt(10)")
        w2mf(3)
        w2rk(2); w2rk(3); w2rk(4)
        g("s_waitcnt lgkmcnt(12)")
        w2mf(4)
        for t in range(5):
            g(f"s_waitcnt lgkmcnt({2*(4-t)})")
            w2mf16(t)
        for t in range(4):
            g(f"v_and_or_b32 v{vHA+t}, v{vY+4*t}, -16, s{sPat}")
        g(f"buffer_store_dwordx4 {v(vHA,4)}, v{vH3}, {WS}, s{sH3m} offen sc1")
        g(f"s_cmp_gt_u32 s{sW}, 1")
        g("s_cbranch_scc1 L_B_no5b")
        g(f"v_and_or_b32 v{vY+16}, v{vY+16}, -16, s{sPat}")
        g(f"buffer_store_dword v{vY+16}, v{vH3x}, {WS}, s{sH3l} offen sc1")
        g.lab("L_B_no5b")
        g.stamp(12)
        dump_stamps(g, 16, 216)
        g("s_endpgm")
        g.lab("L_B_qslow")
        spin_guard(g, "L_B_qok")
        g(f"s_mov_b64 s[{sM1}:{sM1+1}], 0")
        for ks in range(16):
            g(f"v_cmp_eq_u32 vcc, s{sPOI}, v{vQ+4*ks}")
            g(f"s_or_b64 s[{sM1}:{sM1+1}], s[{sM1}:{sM1+1}], vcc")
        g("s_cbranch_scc0 L_B_qok")
        g("s_barrier")
        g("s_branch L_B_qget")

if __name__ == "__main__":
    opt = eval("dict(%s)" % (sys.argv[2] if len(sys.argv) > 2 else ""))
    open(sys.argv[1], "w").write(gen(opt))
```

```python
import sys, os, math, struct
sys.path.insert(0, os.path.dirname(os.path.abspath(__file__)))
from hazard import pad

KNAME = "gated_mix__compressed_kv_cla__dense_activation_gelu__decode_kernel"

WS_BYTES = 256 << 20
EPOCH = 0x0
D1 = 0x8000
D3 = 0x10000
DH = 0x18000
D2 = 0x20000
DL = 0x28000
QB = 0x80000
HB = 0xA0000
H0 = 0xC0000
LOC = 0x100000
H3 = 0x200000
USTR = 16384 + 256
HH = 0x340000
OB = 0x480000
OSTR = 16384 + 256
STAMP = 0x1000000
POISON = 0xFFA5FFA5
K0, K1 = 0x9E3779B9, 0x7F4A7C15
SPIN = 1 << 20

A_WUV = 0
A_QL = 32768
A_ZERO = 33280
A_WT = 33536
A_CTXC = 33792
A_RED = 34816
A_WO = 35840
A_W1 = A_WO + 36864
A_QP = A_WO
B_QF = 0
B_PB = 16384
B_MX = 20480
B_HL = 21504
B_ZERO = 21760
B_LS = 22528
B_CKV = 23552
B_W1 = B_CKV
B_W2 = B_CKV + 43008
LDS_BYTES = 154624

def f16sw(i):
    return (((i & 7) ^ ((i >> 3) << 2)) << 1) | (i >> 3)

def fbits(x):
    return struct.unpack("<I", struct.pack("<f", x))[0]

class G:
    def __init__(self, opt):
        self.l = []
        self.opt = opt
        self.nst = 0
        self.inA = False
    def __call__(self, s):
        for x in s.strip("\n").split("\n"):
            x = x.strip()
            if x: self.l.append("    " + x)
    def lab(self, n): self.l.append(n + ":")
    def c(self, s): self.l.append("    ; " + s)
    def stamp(self, i):
        if self.opt.get("stamps") and not (self.opt.get("fst") and 5 <= i <= 12 and self.inA):
            self(f"s_memrealtime s[{70+2*i}:{71+2*i}]")
    def fstamp(self, i):
        if self.opt.get("stamps") and self.opt.get("fst"):
            self(f"s_memrealtime s[{70+2*i}:{71+2*i}]")

def v(a, n=1): return f"v{a}" if n == 1 else f"v[{a}:{a+n-1}]"
def A(a, n=1): return f"a{a}" if n == 1 else f"a[{a}:{a+n-1}]"
def S(a, n=1): return f"s{a}" if n == 1 else f"s[{a}:{a+n-1}]"

sW = 3
WS, X = "s[4:7]", "s[8:11]"
sT = 40
sXCD, sI = 42, 43
sA, sH, sJ = 44, 45, 46
sHG, sB, sMSG, sU2 = 44, 45, 46, 47
sO, sO2, sO3, sCNT = 48, 49, 50, 51
sM1, sM2, sM3, sM4 = 52, 54, 56, 58
sPR = 60
sG0, sG1 = 61, 62
sTMP = 64
sPC = 66
sPOI = 68
sC = 69

def srd(g, base, slot, nbytes):
    g(f"s_load_dwordx2 s[{base}:{base+1}], s[0:1], {slot*8}")
    g(f"s_mov_b32 s{base+2}, {nbytes}")
    g(f"s_mov_b32 s{base+3}, 0x00020000")

def dump_stamps(g, n, tmpv):
    if not g.opt.get("stamps") or g.opt.get("probe") is not None: return
    g("s_waitcnt lgkmcnt(0)")
    g("s_mov_b64 exec, 1")
    g(f"s_lshl_b32 s{sO}, s2, 2")
    g(f"s_add_u32 s{sO}, s{sO}, s{sW}")
    g(f"s_lshl_b32 s{sO}, s{sO}, 6")
    g(f"s_add_u32 s{sO}, s{sO}, {STAMP}")
    g(f"v_mov_b32 v{tmpv+4}, 0")
    for q in range(0, 16, 4):
        for k in range(4):
            g(f"v_mov_b32 v{tmpv+k}, s{70+2*(q+k)}")
        g(f"buffer_store_dwordx4 {v(tmpv,4)}, v{tmpv+4}, {WS}, s{sO} offen offset:{q*4}")
        g("s_nop 1")
    g("s_waitcnt vmcnt(0)")

def dual_next(g, regs):
    if not g.opt.get("dual", 1): return
    g(f"s_and_b32 s{sTMP}, s{sCNT}, 14")
    g(f"s_cmp_eq_u32 s{sTMP}, 14")
    g(f"s_cselect_b32 s{sTMP}, {LOC}, 0")
    for r in regs:
        g(f"s_xor_b32 s{r}, s{r}, s{sTMP}")

def spin_guard(g, out):
    g(f"s_add_u32 s{sCNT}, s{sCNT}, 1")
    g(f"s_cmp_gt_u32 s{sCNT}, {g.opt.get('spin', SPIN)}")
    g(f"s_cbranch_scc1 {out}")

def selectors(g, vSel, vL, t0, t1, t2):
    g(f"v_and_b32 v{t0}, 1, v{vL}")
    g(f"v_cmp_eq_u32 vcc, 1, v{t0}")
    g(f"v_mov_b32 v{t1}, 0x0c0c0100")
    g(f"v_mov_b32 v{t2}, 0x01000c0c")
    g(f"v_cndmask_b32 v{vSel+3}, v{t1}, v{t2}, vcc")
    g(f"v_mov_b32 v{t1}, 0x0c0c0302")
    g(f"v_mov_b32 v{t2}, 0x03020c0c")
    g(f"v_cndmask_b32 v{vSel+7}, v{t1}, v{t2}, vcc")
    g(f"v_bfe_u32 v{t0}, v{vL}, 1, 2")
    g(f"v_mov_b32 v{t1}, 0x0c0c0c0c")
    for d in range(4):
        g(f"v_cmp_eq_u32 vcc, {d}, v{t0}")
        g(f"v_cndmask_b32 v{vSel+d}, v{t1}, v{vSel+3}, vcc")
        g(f"v_cndmask_b32 v{vSel+4+d}, v{t1}, v{vSel+7}, vcc")

def unit_pattern(g, dst, vL, i_expr_sgpr, i_const, pitch, t0, t1):
    if i_expr_sgpr is not None:
        g(f"v_lshl_add_u32 v{t0}, s{i_expr_sgpr}, 6, v{vL}")
    else:
        g(f"v_add_u32 v{t0}, {64*i_const}, v{vL}")
    g(f"v_mul_u32_u24 v{t1}, 911, v{t0}")
    g(f"v_lshrrev_b32 v{t1}, 16, v{t1}")
    g(f"v_and_b32 v{dst}, 6, v{t1}")
    g(f"v_xor_b32 v{dst}, v{dst}, v{t0}")
    g(f"v_lshlrev_b32 v{dst}, 4, v{dst}")
    if pitch != 1152:
        g(f"v_mul_u32_u24 v{t1}, {pitch-1152}, v{t1}")
        g(f"v_add_u32 v{dst}, v{dst}, v{t1}")
assert all((911 * u) >> 16 == u // 72 for u in range(640))

def h3_addr(g, vH3, vH3x, vL, vN, vG, t0):
    g(f"v_lshrrev_b32 v{t0}, 3, v{vL}")
    g(f"v_mul_u32_u24 v{vH3}, {USTR}, v{t0}")
    g(f"v_and_b32 v{t0}, 7, v{vL}")
    g(f"v_lshl_add_u32 v{vH3}, v{t0}, 4, v{vH3}")
    g(f"v_lshrrev_b32 v{t0}, 5, v{vL}")
    g(f"v_mul_u32_u24 v{vH3x}, {USTR}, v{t0}")
    g(f"v_and_b32 v{t0}, 31, v{vL}")
    g(f"v_lshl_add_u32 v{vH3x}, v{t0}, 2, v{vH3x}")

def h3_soffs(g, s_main, s_left):
    g(f"s_lshl_b32 s{s_left}, s{sPR}, 7")
    g(f"s_add_u32 s{s_left}, s{s_left}, {H3}")
    g(f"s_mul_i32 s{s_main}, s{sW}, {8*USTR}")
    g(f"s_add_u32 s{s_main}, s{s_main}, s{s_left}")
    g(f"s_mul_i32 s{sTMP}, s{sW}, {2*USTR}")
    g(f"s_add_u32 s{s_left}, s{s_left}, s{sTMP}")
    g(f"s_add_u32 s{s_left}, s{s_left}, {32*USTR}")

def tr_pair_bases(g, vB0, vB1, vK0, vK1, vL, base, t0, t1, t2):
    g(f"v_lshrrev_b32 v{t0}, 2, v{vL}")
    g(f"v_bfe_u32 v{t1}, v{vL}, 1, 1")
    g(f"v_lshl_add_u32 v{t1}, s{sW}, 2, v{t1}")
    g(f"v_and_b32 v{t2}, 6, v{t0}")
    g(f"v_xor_b32 v{t2}, v{t2}, v{t1}")
    g(f"v_lshlrev_b32 v{t2}, 4, v{t2}")
    g(f"v_mul_u32_u24 v{vB0}, 1152, v{t0}")
    g(f"v_add_u32 v{vB0}, v{vB0}, v{t2}")
    g(f"v_and_b32 v{t2}, 1, v{vL}")
    g(f"v_lshlrev_b32 v{t2}, 3, v{t2}")
    g(f"v_add_u32 v{vB0}, v{vB0}, v{t2}")
    g(f"v_xor_b32 v{vB1}, 32, v{vB0}")
    if base:
        g(f"v_add_u32 v{vB0}, {base}, v{vB0}")
        g(f"v_add_u32 v{vB1}, {base}, v{vB1}")
    if vK0 is not None:
        g(f"v_and_b32 v{t0}, 3, v{t0}")
        g(f"v_and_b32 v{vK0}, 2, v{t0}")
        g(f"v_xor_b32 v{vK0}, v{vK0}, v{t1}")
        g(f"v_lshlrev_b32 v{vK0}, 4, v{vK0}")
        g(f"v_mul_u32_u24 v{t0}, 1152, v{t0}")
        g(f"v_add3_u32 v{vK0}, v{vK0}, v{t0}, v{t2}")
        g(f"v_xor_b32 v{vK1}, 32, v{vK0}")
        g(f"v_add_u32 v{vK0}, {base + 32*1152}, v{vK0}")
        g(f"v_add_u32 v{vK1}, {base + 32*1152}, v{vK1}")

MF = "v_mfma_f32_16x16x32_bf16"
MF16 = "v_mfma_f32_16x16x16_bf16"

def role_is_A(wg, opt):
    if opt.get("split"):
        import numpy as np
        return np.isin(wg & 7, list(opt["split"]))
    return wg < 128

def gen(opt):
    g = G(opt)
    NT = opt.get("nt", "")
    PFL = opt.get("pf_lines", 4)
    CODE_BYTES = 32 * 128 * PFL
    vL, vN, vG = 1, 2, 3
    g.stamp(0)
    g(f"s_getpc_b64 s[{sPC}:{sPC+1}]")
    g("s_cmp_ge_u32 s2, 256")
    g("s_cbranch_scc1 L_end")
    g(f"""
    s_load_dwordx2 s[4:5], s[0:1], 112
    s_load_dwordx2 s[8:9], s[0:1], 0
    s_load_dwordx2 s[28:29], s[0:1], 8
    s_load_dwordx2 s[12:13], s[0:1], 16
    s_load_dwordx2 s[16:17], s[0:1], 24
    v_lshrrev_b32 v4, 6, v0
    v_and_b32 v{vL}, 63, v0
    s_and_b32 s{sXCD}, s2, 7
    v_readfirstlane_b32 s{sW}, v4
    s_bfe_u32 s{sI}, s2, 0x40003
    v_and_b32 v{vN}, 15, v0
    v_bfe_u32 v{vG}, v0, 4, 2
    s_mov_b32 s6, {WS_BYTES - opt.get('ws_base', 0)}
    s_mov_b32 s7, 0x00020000
    """)
    if opt.get("xprobe") is not None:
        g(f"""
        s_load_dwordx2 s[32:33], s[0:1], 104
        s_mov_b32 s34, 256
        s_mov_b32 s35, 0x00020000
        s_waitcnt lgkmcnt(0)
        v_mov_b32 v6, s70
        s_lshl_b32 s{sO}, s{sXCD}, 2
        v_mov_b32 v7, s{sO}
        s_mov_b64 exec, 1
        buffer_atomic_umax v6, v7, s[32:35], 0 offen sc1
        s_mov_b64 exec, -1
        """)
    if opt.get("split"):
        aset = list(opt["split"]); bset = [x for x in range(8) if x not in aset]
        tab = 0
        for x in range(8):
            tab |= ((aset.index(x)) if x in aset else (8 | bset.index(x))) << (4 * x)
        g(f"""
        s_lshl_b32 s{sXCD}, s{sXCD}, 2
        s_lshr_b32 s{sO}, {hex(tab)}, s{sXCD}
        s_and_b32 s{sXCD}, s{sO}, 3
        s_lshr_b32 s{sO2}, s2, 7
        s_lshl_b32 s{sO2}, s{sO2}, 2
        s_add_u32 s{sXCD}, s{sXCD}, s{sO2}
        s_bitcmp1_b32 s{sO}, 3
        s_cbranch_scc1 L_B
        """)
    else:
        g("s_cmp_ge_u32 s2, 128")
        g("s_cbranch_scc1 L_B")
    a = RoleA(g, NT, vL, vN, vG)
    b = RoleB(g, NT, vL, vN, vG)
    def prefetch(nw, idx_sgpr_expr, tag):
        g(idx_sgpr_expr)
        g(f"s_mul_i32 s{sTMP}, s{sTMP}, {nw*128}")
        g(f"v_lshl_add_u32 v5, v{vL}, 7, s{sTMP}")
        g(f"s_cmp_lg_u32 s{sW}, 3")
        g(f"s_cbranch_scc1 L_nopf{tag}")
        g(f"s_mov_b64 exec, {(1 << nw) - 1}")
        g(f"global_load_dword v63, v5, s[{sPC}:{sPC+1}]")
        g("s_mov_b64 exec, -1")
        g.lab(f"L_nopf{tag}")
    if opt.get("split") and opt.get("a_pf_first", 1): prefetch(PFL, f"s_lshr_b32 s{sTMP}, s2, 3", "A")
    a.issue()
    if opt.get("split") and not opt.get("a_pf_first", 1): prefetch(PFL, f"s_lshr_b32 s{sTMP}, s2, 3", "A")
    g("s_branch L_A_rest")
    g.lab("L_B")
    if opt.get("split"): prefetch(PFL, f"s_lshr_b32 s{sTMP}, s2, 3", "B")
    else: prefetch(2 * PFL, f"s_mov_b32 s{sTMP}, s{sI}", "B")
    b.issue()
    g("s_branch L_B_rest")
    g.lab("L_A_rest")
    g.inA = True
    a.rest()
    g.inA = False
    g.lab("L_B_rest")
    b.rest()
    g.lab("L_end")
    lines, added = pad(g.l)
    body = "\n".join(lines)
    hdr = open(os.path.join(os.path.dirname(os.path.abspath(__file__)), "header.txt")).read()
    return f"""{hdr}; @launch grid=(256,1,1) block=(256,1,1) lds={LDS_BYTES}
.amdgcn_target "amdgcn-amd-amdhsa--gfx950"
.text
.globl {KNAME}
.p2align 8
.type {KNAME},@function
{KNAME}:
{body}
    s_endpgm
L_code_end:
.fill ({CODE_BYTES} + 256 - (L_code_end - {KNAME})) / 4, 4, 0xbf800000
.section .rodata,"a"
.p2align 6
.amdhsa_kernel {KNAME}
  .amdhsa_next_free_vgpr 512
  .amdhsa_next_free_sgpr 102
  .amdhsa_accum_offset 256
  .amdhsa_group_segment_fixed_size 0
  .amdhsa_kernarg_size 120
  .amdhsa_user_sgpr_count 2
  .amdhsa_user_sgpr_kernarg_segment_ptr 1
  .amdhsa_system_sgpr_workgroup_id_x 1
.end_amdhsa_kernel
"""

def srd_tail(g, base, nbytes):
    g(f"s_mov_b32 s{base+2}, {nbytes}")
    g(f"s_mov_b32 s{base+3}, 0x00020000")

def load_tag(g):
    wb = g.opt.get("ws_base", 0)
    if wb:
        g(f"s_add_u32 s4, s4, {wb}")
        g("s_addc_u32 s5, s5, 0")
    g(f"s_load_dwordx2 s[{sT}:{sT+1}], s[4:5], {EPOCH}")

def finish_tag(g):
    g("s_waitcnt lgkmcnt(0)")
    g(f"s_add_u32 s{sT}, s{sT}, {K0}")
    g(f"s_add_u32 s{sT+1}, s{sT+1}, {K1}")

def bell(g, vdata, vzero, s_index, base, wave, tag):
    g(f"s_cmp_lg_u32 s{sW}, {wave}")
    g(f"s_cbranch_scc1 L_nobell_{tag}")
    g(f"s_lshl_b32 s{sTMP}, s{s_index}, 7")
    g(f"s_add_u32 s{sTMP}, s{sTMP}, {base}")
    g("s_mov_b64 exec, 1")
    g(f"buffer_store_dwordx2 {v(vdata,2)}, v{vzero}, {WS}, s{sTMP} offen sc1")
    g("s_mov_b64 exec, -1")
    g.lab(f"L_nobell_{tag}")

def unit_load(g, SRD, vP, ldsbase, s_unit_base, pitch, tag, NT, rows36=True, vdst=None, thr=None, w0extra=True):
    if tag[:2] in g.opt.get("skip", ""): return
    g(f"s_mul_i32 s{sO}, s{sW}, {8*pitch}")
    g(f"s_add_u32 s{sO}, s{sO}, s{s_unit_base}")
    if vdst is None: g(f"s_mul_i32 s{sTMP}, s{sW}, 9216")
    for i in range(9):
        if thr: g(f"s_waitcnt vmcnt({thr-1})")
        if vdst is None:
            g(f"s_add_u32 m0, s{sTMP}, {ldsbase + i*1024}")
            g(f"buffer_load_dwordx4 v{vP+i}, {SRD}, s{sO} offen {NT} lds")
        else:
            g(f"buffer_load_dwordx4 {v(vdst+4*i,4)}, v{vP+i}, {SRD}, s{sO} offen {NT}")
    if not rows36: return
    g(f"s_add_u32 s{sO}, s{s_unit_base}, {32*pitch}")
    if vdst is None:
        g(f"s_lshl_b32 s{sTMP}, s{sW}, 10")
        g(f"s_add_u32 m0, s{sTMP}, {ldsbase + 36864}")
        g(f"buffer_load_dwordx4 v{vP+9}, {SRD}, s{sO} offen {NT} lds")
    else:
        g(f"buffer_load_dwordx4 {v(vdst+36,4)}, v{vP+9}, {SRD}, s{sO} offen {NT}")
    if w0extra:
        g(f"s_cmp_lg_u32 s{sW}, 0")
        g(f"s_cbranch_scc1 L_not{tag}")
    g("s_mov_b32 exec_hi, 0")
    if vdst is None:
        g(f"s_mov_b32 m0, {ldsbase + 36864 + 4096}")
        g(f"buffer_load_dwordx4 v{vP+4}, {SRD}, s{sO} offen {NT} lds")
    else:
        g(f"buffer_load_dwordx4 {v(vdst+40,4)}, v{vP+4}, {SRD}, s{sO} offen {NT}")
    g("s_mov_b64 exec, -1")
    if w0extra: g.lab(f"L_not{tag}")

class RoleA:
    def __init__(self, g, NT, vL, vN, vG):
        self.g, self.NT, self.vL, self.vN, self.vG = g, NT, vL, vN, vG
    vX = 20
    vA_wq, vA_uk = 108, 109
    aWQ, aUK = 0, 36

    def issue(self):
        g, NT, vL, vN, vG = self.g, self.NT, self.vL, self.vN, self.vG
        WQ, WUK = "s[12:15]", "s[16:19]"
        t0, t1 = 4, 5
        vX, vA_wq, vA_uk, aWQ, aUK = self.vX, self.vA_wq, self.vA_uk, self.aWQ, self.aUK
        srd_tail(g, 12, 576 * 8192)
        srd_tail(g, 8, 2304)
        g(f"""
        s_lshr_b32 s{sH}, s{sI}, 2
        s_lshl_b32 s{sH}, s{sH}, 3
        s_add_u32 s{sH}, s{sH}, s{sXCD}
        s_and_b32 s{sJ}, s{sI}, 3
        v_mul_u32_u24 v{vA_wq}, {36*8192}, v{vG}
        v_lshl_add_u32 v{vA_wq}, v{vN}, 4, v{vA_wq}
        s_lshl_b32 s{sO2}, s{sJ}, 4
        s_add_u32 s{sO2}, s{sO2}, s{sW}
        s_mul_i32 s{sO2}, s{sO2}, 9
        s_lshl_b32 s{sO3}, s{sO2}, 13
        s_lshl_b32 s{sC}, s{sH}, 8
        s_add_u32 s{sO3}, s{sO3}, s{sC}
        v_bfe_u32 v{t0}, v{vL}, 3, 1
        v_mul_u32_u24 v{t0}, 1152, v{t0}
        v_mad_u32_u24 v{t0}, v{vG}, 64, v{t0}
        v_lshl_add_u32 v{t0}, v{vG}, 3, v{t0}
        s_lshr_b32 s{sO2}, s{sO2}, 1
        s_lshl_b32 s{sO2}, s{sO2}, 2
        s_waitcnt lgkmcnt(0)
        """)
        g.fstamp(5)
        g(f"""
        buffer_load_dwordx4 {v(vX,4)}, v{t0}, {X}, s{sO2} offen
        buffer_load_dword v{vX+4}, v{t0}, {X}, s{sO2} offen offset:16
        """)
        for i in range(9):
            g(f"buffer_load_dwordx4 {A(aWQ+4*i,4)}, v{vA_wq}, {WQ}, s{sO3} offen {NT}")
            if i != 8: g(f"s_addk_i32 s{sO3}, 0x2000")
        load_tag(g)
        srd_tail(g, 16, 512 * 8192)
        g(f"""
        v_bfe_u32 v{t0}, v{vL}, 2, 2
        v_lshlrev_b32 v{vA_uk}, 16, v{t0}
        v_lshl_add_u32 v{vA_uk}, v{vG}, 6, v{vA_uk}
        v_and_b32 v{t1}, 3, v{vL}
        v_lshl_add_u32 v{vA_uk}, v{t1}, 4, v{vA_uk}
        s_lshl_b32 s{sO2}, s{sJ}, 2
        s_add_u32 s{sO2}, s{sO2}, s{sW}
        s_lshl_b32 s{sO2}, s{sO2}, 18
        s_add_u32 s{sO2}, s{sO2}, s{sC}
        """)
        self.uk_split = g.opt.get("uk_early", 2)
        self.uk(range(self.uk_split))

    def uk(self, rows):
        g = self.g
        for r in rows:
            u = 2 * (r & 3) + (r >> 2)
            g(f"buffer_load_dwordx4 {A(self.aUK+4*u,4)}, v{self.vA_uk}, s[16:19], s{sO2} offen {self.NT}")
            g(f"s_addk_i32 s{sO2}, 0x2000")

    def rest(self):
        g, NT, vL, vN, vG = self.g, self.NT, self.vL, self.vN, self.vG
        opt = g.opt
        WUV, WO, W1, B2, GATE, OUT = "s[20:23]", "s[24:27]", "s[12:15]", "s[28:31]", "s[32:35]", "s[36:39]"
        t0, t1, t2, t3 = 4, 5, 6, 7
        vPOI = 8
        vSel = 12
        vX = self.vX
        vF = 160
        vQ = 200
        vR = 56
        vQlo, vQhi = 80, 84
        vAcc = 88
        vGr = 104
        vA_h1, vA_l16 = 110, 47
        vA_qlo, vA_qhi = 112, 113
        vTag = 114
        vQw = 46
        aWQ, aUK = self.aWQ, self.aUK
        sQ = 63
        g.stamp(1)
        selectors(g, vSel, vL, t0, t1, t2)
        g(f"""
        s_lshl_b32 s{sA}, s{sH}, 2
        s_add_u32 s{sA}, s{sA}, s{sJ}
        s_mov_b32 s{sPR}, s{sA}
        s_and_b32 s{sO}, s{sW}, 1
        s_lshl_b32 s{sO}, s{sO}, 4
        v_lshlrev_b32 v{vA_l16}, 4, v{vL}
        s_cmp_lg_u32 s{sW}, 1
        s_cbranch_scc1 L_A_e2
        """)
        for k in range(4): g(f"v_mov_b32 v{vPOI+k}, {hex(POISON)}")
        g(f"""
        v_lshlrev_b32 v{t0}, 15, v{vG}
        v_lshl_add_u32 v{t0}, v{vN}, 4, v{t0}
        s_lshl_b32 s{sTMP}, s{sA}, 8
        s_add_u32 s{sTMP}, s{sTMP}, {QB}
        s_mov_b32 exec_hi, 0
        buffer_store_dwordx4 {v(vPOI,4)}, v{t0}, {WS}, s{sTMP} offen sc1
        s_mov_b64 exec, -1
        """)
        g.lab("L_A_e2")
        g.fstamp(6)
        g(f"s_waitcnt vmcnt({9+self.uk_split})")
        g.fstamp(7)
        for k in range(5):
            g(f"v_alignbit_b32 v{vX+k}, v{vX+k+1}, v{vX+k}, s{sO}")
        for i in range(9):
            for d in range(4):
                g(f"v_perm_b32 v{vF+4*i+d}, v{vX+(i>>1)}, v{vX+(i>>1)}, v{vSel+4*(i&1)+d}")
        g.fstamp(8)
        self.uk(range(self.uk_split, 8))
        g.fstamp(9)
        for i in range(9):
            g(f"s_waitcnt vmcnt({8-i+8})")
            g(f"{MF} {v(vQ+2,4)}, {v(vF+4*i,4)}, {A(aWQ+4*i,4)}, {'0' if i == 0 else v(vQ+2,4)}")
        g.fstamp(10)
        g(f"s_cmp_eq_u32 s{sW}, 0")
        g("s_cbranch_scc1 L_A_w0a")
        g(f"v_lshl_add_u32 v{t0}, s{sW}, 10, v{vA_l16}")
        g(f"ds_write_b128 v{t0}, {v(vQ+2,4)} offset:{A_QP-1024}")
        g(f"s_waitcnt vmcnt({8-self.uk_split}) lgkmcnt(0)")
        g("s_barrier")
        g(f"s_add_u32 s{sT}, s{sT}, {K0}")
        g(f"s_add_u32 s{sT+1}, s{sT+1}, {K1}")
        g("s_branch L_A_setup")
        g.lab("L_A_w0a")
        finish_tag(g)
        sib = [0, sO, sO3, sC]
        for k in range(1, 4):
            g(f"s_xor_b32 s{sTMP}, s{sA}, {k}")
            g(f"s_lshl_b32 s{sTMP}, s{sTMP}, 11")
            g(f"s_add_u32 s{sib[k]}, s{sTMP}, {H0+LOC}")
        g(f"""
        v_mov_b32 v{vQ}, s{sT}
        v_mov_b32 v{vQ+1}, s{sT+1}
        v_mov_b32 v{vQ+6}, s{sT}
        v_mov_b32 v{vQ+7}, s{sT+1}
        s_lshl_b32 s{sTMP+1}, s{sA}, 11
        s_add_u32 s{sTMP+1}, s{sTMP+1}, {H0+LOC}
        s_barrier
        """)
        for k in range(3):
            g(f"ds_read_b128 {v(vR+4*k,4)}, v{vA_l16} offset:{A_QP+k*1024}")
        g("s_waitcnt lgkmcnt(1)")
        g(f"v_pk_add_f32 {v(vQ+2,2)}, {v(vQ+2,2)}, {v(vR,2)}")
        g(f"v_pk_add_f32 {v(vQ+4,2)}, {v(vQ+4,2)}, {v(vR+2,2)}")
        g("s_waitcnt lgkmcnt(0)")
        g(f"v_pk_add_f32 {v(vR+4,2)}, {v(vR+4,2)}, {v(vR+8,2)}")
        g(f"v_pk_add_f32 {v(vR+6,2)}, {v(vR+6,2)}, {v(vR+10,2)}")
        g(f"v_pk_add_f32 {v(vQ+2,2)}, {v(vQ+2,2)}, {v(vR+4,2)}")
        g(f"v_pk_add_f32 {v(vQ+4,2)}, {v(vQ+4,2)}, {v(vR+6,2)}")
        g(f"buffer_store_dwordx4 {v(vQ,4)}, v{vA_l16}, {WS}, s{sTMP+1} offen")
        g(f"buffer_store_dwordx4 {v(vQ+4,4)}, v{vA_l16}, {WS}, s{sTMP+1} offen offset:1024")
        def h0_wt():
            g(f"s_lshl_b32 s{sTMP+1}, s{sA}, 11")
            g(f"s_add_u32 s{sTMP+1}, s{sTMP+1}, {H0}")
            g(f"buffer_store_dwordx4 {v(vQ,4)}, v{vA_l16}, {WS}, s{sTMP+1} offen sc1")
            g(f"buffer_store_dwordx4 {v(vQ+4,4)}, v{vA_l16}, {WS}, s{sTMP+1} offen offset:1024 sc1")
        g.stamp(2)
        g.lab("L_A_setup")
        srd(g, 20, 4, 512 * 8192)
        srd(g, 24, 5, 4096 * 1152)
        srd(g, 28, 10, 1152)
        srd(g, 32, 11, 1152)
        srd(g, 36, 12, 2304)
        vBell = 111
        g(f"""
        v_bfe_u32 v{t0}, v{vL}, 2, 2
        v_lshlrev_b32 v{vA_h1}, 15, v{vG}
        v_lshl_add_u32 v{vA_h1}, v{t0}, 4, v{vA_h1}
        s_lshl_b32 s{sQ}, s{sA}, 2
        s_add_u32 s{sQ}, s{sQ}, s{sW}
        s_lshl_b32 s{sQ}, s{sQ}, 6
        s_add_u32 s{sQ}, s{sQ}, {QB}
        v_bfe_u32 v{t0}, v{vL}, 2, 1
        v_lshlrev_b32 v{t0}, 8, v{t0}
        v_lshl_add_u32 v{t0}, v{vG}, 6, v{t0}
        v_and_b32 v{t1}, 3, v{vL}
        v_lshl_add_u32 v{t0}, v{t1}, 4, v{t0}
        v_add_u32 v{t0}, {A_QL}, v{t0}
        v_mov_b32 v{t1}, {A_ZERO}
        v_cmp_gt_u32 vcc, 8, v{vN}
        v_cndmask_b32 v{vA_qlo}, v{t1}, v{t0}, vcc
        v_cndmask_b32 v{vA_qhi}, v{t0}, v{t1}, vcc
        v_and_b32 v{t0}, 1, v{vL}
        v_cmp_eq_u32 s[{sM1}:{sM1+1}], 1, v{t0}
        v_and_b32 v{t0}, 2, v{vL}
        v_cmp_eq_u32 s[{sM2}:{sM2+1}], 2, v{t0}
        v_mov_b32 v{vTag}, s{sT}
        v_mov_b32 v{vTag+1}, s{sT+1}
        v_lshlrev_b32 v{vBell}, 12, v{vL}
        s_lshl_b32 s{sO2}, s{sH}, 5
        s_add_u32 s{sO2}, s{sO2}, s{sJ}
        s_lshl_b32 s{sO2}, s{sO2}, 2
        s_add_u32 s{sO2}, s{sO2}, {D1}
        v_mov_b32 v{t2}, 0
        v_mov_b32 v{t3}, 0
        ds_write_b64 v{t1}, {v(t2,2)}
        ds_write_b64 v{t1}, {v(t2,2)} offset:8
        v_lshrrev_b32 v{vQw}, 1, v{vG}
        v_lshlrev_b32 v{vQw}, 8, v{vQw}
        v_lshl_add_u32 v{vQw}, v{vN}, 4, v{vQw}
        v_and_b32 v{t1}, 1, v{vG}
        v_lshl_add_u32 v{vQw}, v{t1}, 3, v{vQw}
        """)
        def h0loads():
            for k in range(1, 4):
                g(f"buffer_load_dwordx4 {v(vR+8*(k-1),4)}, v{vA_l16}, {WS}, s{sib[k]} offen sc1")
                g(f"buffer_load_dwordx4 {v(vR+8*(k-1)+4,4)}, v{vA_l16}, {WS}, s{sib[k]} offen offset:1024 sc1")
        g(f"s_cmp_lg_u32 s{sW}, 0")
        g("s_cbranch_scc1 L_A_s2")
        h0loads()
        g.lab("L_A_s2")
        vUV0, vUV1 = 20, 21
        vP2 = 22
        g(f"""
        v_lshlrev_b32 v{t0}, 1, v{vG}
        v_xor_b32 v{t0}, v{t0}, v{vN}
        v_lshlrev_b32 v{vUV0}, 17, v{vG}
        v_lshl_add_u32 v{vUV0}, v{t0}, 4, v{vUV0}
        v_xor_b32 v{vUV1}, 128, v{vUV0}
        """)
        for i in range(9):
            unit_pattern(g, vP2 + i, vL, None, i, 1152, t0, t1)
        g(f"s_mov_b32 s{sCNT}, 0")
        g(f"s_cmp_lg_u32 s{sW}, 0")
        g("s_cbranch_scc1 L_A_h0wait")
        g.lab("L_A_h0chk")
        g("s_waitcnt vmcnt(0)")
        if opt.get("fst"):
            g(f"s_cmp_lg_u32 s{sCNT}, 0")
            g("s_cbranch_scc1 L_A_fs11")
            g.fstamp(11)
            g.lab("L_A_fs11")
        for k in range(3):
            g(f"v_cmp_ne_u64 vcc, s[{sT}:{sT+1}], {v(vR+8*k,2)}")
            g(f"v_cmp_ne_u64 s[{sM3}:{sM3+1}], s[{sT}:{sT+1}], {v(vR+8*k+6,2)}")
            if k == 0: g(f"s_or_b64 s[{sM4}:{sM4+1}], vcc, s[{sM3}:{sM3+1}]")
            else:
                g(f"s_or_b64 s[{sM4}:{sM4+1}], s[{sM4}:{sM4+1}], vcc")
                g(f"s_or_b64 s[{sM4}:{sM4+1}], s[{sM4}:{sM4+1}], s[{sM3}:{sM3+1}]")
        g("s_cbranch_scc1 L_A_h0poll")
        g.lab("L_A_h0done")
        def d1bell(tag):
            g("s_mov_b64 exec, 0xff")
            g(f"buffer_store_dword v{vTag}, v{vBell}, {WS}, s{sO2} offen sc1")
            g("s_mov_b64 exec, -1")
        d1p = opt.get("d1_pos", 0)
        if d1p == 0: d1bell("")
        g(f"v_pk_add_f32 {v(vR+2,2)}, {v(vQ+2,2)}, {v(vR+2,2)}")
        g(f"v_pk_add_f32 {v(vR+4,2)}, {v(vQ+4,2)}, {v(vR+4,2)}")
        g(f"v_pk_add_f32 {v(vR+10,2)}, {v(vR+10,2)}, {v(vR+18,2)}")
        g(f"v_pk_add_f32 {v(vR+12,2)}, {v(vR+12,2)}, {v(vR+20,2)}")
        g(f"v_pk_add_f32 {v(vR+2,2)}, {v(vR+2,2)}, {v(vR+10,2)}")
        g(f"v_pk_add_f32 {v(vR+4,2)}, {v(vR+4,2)}, {v(vR+12,2)}")
        g(f"v_cvt_pk_bf16_f32 v{vR}, v{vR+2}, v{vR+3}")
        g(f"v_cvt_pk_bf16_f32 v{vR+1}, v{vR+4}, v{vR+5}")
        g(f"ds_write_b64 v{vQw}, {v(vR,2)} offset:{A_QL}")
        g("s_waitcnt lgkmcnt(0)")
        g("s_barrier")
        g(f"ds_read_b128 {v(vQlo,4)}, v{vA_qlo}")
        g(f"ds_read_b128 {v(vQhi,4)}, v{vA_qhi}")
        if d1p == 1: d1bell("")
        g("s_branch L_A_p1b")
        g.lab("L_A_h0wait")
        g("s_waitcnt vmcnt(0) lgkmcnt(0)")
        g.fstamp(12)
        g("s_barrier")
        g(f"ds_read_b128 {v(vQlo,4)}, v{vA_qlo}")
        g(f"ds_read_b128 {v(vQhi,4)}, v{vA_qhi}")
        g.lab("L_A_p1b")
        g.stamp(3)
        g("s_waitcnt lgkmcnt(0)")
        for t in range(4):
            g(f"{MF} {v(vAcc+4*t,4)}, {v(vQlo,4)}, {A(aUK+8*t,4)}, 0")
        for t in range(4):
            g(f"{MF} {v(vAcc+4*t,4)}, {v(vQhi,4)}, {A(aUK+8*t+4,4)}, {v(vAcc+4*t,4)}")
        if d1p == 2:
            g(f"s_cmp_lg_u32 s{sW}, 0")
            g("s_cbranch_scc1 L_A_nod1")
            d1bell("")
            g.lab("L_A_nod1")
        for t in range(4):
            a0 = vAcc + 4 * t
            g(f"v_cndmask_b32 v{a0}, v{a0}, v{a0+1}, s[{sM1}:{sM1+1}]")
            g(f"v_cndmask_b32 v{a0+2}, v{a0+2}, v{a0+3}, s[{sM1}:{sM1+1}]")
            g(f"v_cndmask_b32 v{a0}, v{a0}, v{a0+2}, s[{sM2}:{sM2+1}]")
        for t in range(4):
            a0 = vAcc + 4 * t
            g(f"v_add_f32_dpp v{a0+1}, v{a0}, v{a0} quad_perm:[1,0,3,2] row_mask:0xf bank_mask:0xf")
        for t in range(4):
            a0 = vAcc + 4 * t
            g(f"v_add_f32_dpp v{a0}, v{a0+1}, v{a0+1} quad_perm:[2,3,0,1] row_mask:0xf bank_mask:0xf")
        g(f"v_cvt_pk_bf16_f32 v{vGr}, v{vAcc}, v{vAcc+4}")
        g(f"v_cvt_pk_bf16_f32 v{vGr+1}, v{vAcc+8}, v{vAcc+12}")
        g(f"v_permlane32_swap_b32 v{vGr}, v{vGr+2}")
        g(f"v_permlane32_swap_b32 v{vGr+1}, v{vGr+3}")
        g(f"""
        s_mov_b64 exec, 0x11111111
        buffer_store_dwordx4 {v(vGr,4)}, v{vA_h1}, {WS}, s{sQ} offen sc1
        s_mov_b64 exec, -1
        """)
        if d1p == 3:
            g(f"s_cmp_lg_u32 s{sW}, 0")
            g("s_cbranch_scc1 L_A_nod1")
            d1bell("")
            g.lab("L_A_nod1")
        g.stamp(4)
        if opt.get("a_wait", 0): g("s_waitcnt vmcnt(0)")
        g(f"""
        s_lshl_b32 s{sO}, s{sJ}, 5
        s_add_u32 s{sO}, s{sO}, s{sW}
        s_lshl_b32 s{sO}, s{sO}, 15
        s_lshl_b32 s{sO3}, s{sH}, 8
        s_add_u32 s{sO}, s{sO}, s{sO3}
        s_lshl_b32 s{sO3}, s{sW}, 13
        """)
        for z in range(8 if "uv" not in opt.get("skip", "") else 0):
            hi, gg = z >> 2, z & 3
            if opt.get("uv_thr"): g(f"s_waitcnt vmcnt({opt['uv_thr']-1})")
            g(f"s_add_u32 m0, s{sO3}, {A_WUV + z*1024}")
            g(f"s_add_u32 s{sTMP}, s{sO}, {(64*hi+gg)*8192}")
            g(f"buffer_load_dwordx4 v{vUV1 if z & 1 else vUV0}, {WUV}, s{sTMP} offen {NT} lds")
        g(f"s_mul_i32 s{sO2}, s{sA}, {32*1152}")
        unit_load(g, WO, vP2, A_WO, sO2, 1152, "wo", NT, rows36=False, thr=opt.get("a_thr"))
        g.stamp(14)
        vGx, vGw, vB2 = 48, 60, 72
        vOA, vFB = 73, 74
        g(f"v_mov_b32 v{vOA}, 0")
        g(f"s_cmp_lg_u32 s{sW}, 0")
        g("s_cbranch_scc1 L_A_nogate")
        h0_wt()
        g(f"""
        s_cmp_ge_u32 s{sA}, 36
        s_cbranch_scc1 L_A_nogate
        v_and_b32 v{t0}, 31, v{vL}
        v_mul_u32_u24 v{t1}, 36, v{t0}
        v_lshrrev_b32 v{t2}, 5, v{vL}
        v_mul_u32_u24 v{t2}, 1152, v{t2}
        v_add_u32 v{t2}, v{t2}, v{t1}
        buffer_load_dwordx4 {v(vGx,4)}, v{t2}, {X}, 0 offen
        buffer_load_dwordx4 {v(vGx+4,4)}, v{t2}, {X}, 0 offen offset:16
        buffer_load_dword v{vGx+8}, v{t2}, {X}, 0 offen offset:32
        buffer_load_dwordx4 {v(vGw,4)}, v{t1}, {GATE}, 0 offen
        buffer_load_dwordx4 {v(vGw+4,4)}, v{t1}, {GATE}, 0 offen offset:16
        buffer_load_dword v{vGw+8}, v{t1}, {GATE}, 0 offen offset:32
        s_cmp_ge_u32 s{sA}, 32
        s_cbranch_scc1 L_A_uleft
        s_lshr_b32 s{sO}, s{sA}, 2
        s_lshl_b32 s{sO}, s{sO}, 4
        s_and_b32 s{sO3}, s{sA}, 1
        s_lshl_b32 s{sO3}, s{sO3}, 3
        s_add_u32 s{sO}, s{sO}, s{sO3}
        v_and_b32 v{t1}, 3, v{t0}
        v_lshlrev_b32 v{t1}, 7, v{t1}
        v_lshrrev_b32 v{t2}, 2, v{t0}
        v_add3_u32 v{t1}, v{t1}, v{t2}, s{sO}
        s_bfe_u32 s{sO3}, s{sA}, 0x10001
        v_mov_b32 v{vFB}, s{sO3}
        s_branch L_A_ujoin
        """)
        g.lab("L_A_uleft")
        g(f"""
        s_lshl_b32 s{sO}, s{sA}, 4
        v_and_b32 v{t1}, 15, v{t0}
        v_add_u32 v{t1}, s{sO}, v{t1}
        v_lshrrev_b32 v{vFB}, 4, v{t0}
        """)
        g.lab("L_A_ujoin")
        g(f"""
        v_lshlrev_b32 v{t1}, 1, v{t1}
        buffer_load_ushort v{vB2}, v{t1}, {B2}, 0 offen
        v_mul_u32_u24 v{vOA}, 1152, v{vFB}
        v_add_u32 v{vOA}, v{vOA}, v{t1}
        """)
        g.lab("L_A_nogate")
        vH3, vH3x = 32, 33
        vHBs, vHs = 39, 45
        sH3m, sH3l, sHB, sHH = 63, 47, 61, 62
        vTU0, vTU1, vTO0, vTO1 = 34, 35, 36, 37
        vCX, vCW, vHBl, vD2, vOg, vWTw, vWTr = 38, 46, 40, 41, 42, 43, 44
        vT1, vK1 = 75, 57
        def later_addresses():
            g(f"""
            s_mul_i32 s{sH3l}, s{sA}, {OSTR}
            s_add_u32 s{sH3l}, s{sH3l}, {OB}
            s_lshl_b32 s{sTMP}, s{sW}, 10
            s_add_u32 s{sH3m}, s{sH3l}, s{sTMP}
            s_lshl_b32 s{sTMP}, s{sW}, 8
            s_add_u32 s{sH3l}, s{sH3l}, s{sTMP}
            s_add_u32 s{sH3l}, s{sH3l}, 4096
            v_lshlrev_b32 v{vH3x}, 2, v{vL}
            """)
            g(f"""
            v_lshlrev_b32 v{vHBs}, 6, v{vG}
            v_lshl_add_u32 v{vHBs}, v{vN}, 4, v{vHBs}
            s_lshl_b32 s{sHB}, s{sH}, 2
            s_add_u32 s{sHB}, s{sHB}, s{sW}
            s_lshl_b32 s{sHB}, s{sHB}, 2
            s_add_u32 s{sHB}, s{sHB}, s{sJ}
            s_lshl_b32 s{sHB}, s{sHB}, 8
            s_add_u32 s{sHB}, s{sHB}, {HB}
            v_lshrrev_b32 v{t0}, 2, v{vL}
            v_bfe_u32 v{t1}, v{vL}, 1, 1
            v_lshl_add_u32 v{t1}, s{sW}, 2, v{t1}
            v_and_b32 v{t2}, 7, v{t0}
            v_lshlrev_b32 v{t2}, 1, v{t2}
            v_xor_b32 v{t1}, v{t1}, v{t2}
            v_lshlrev_b32 v{vTU0}, 8, v{t0}
            v_lshl_add_u32 v{vTU0}, v{t1}, 4, v{vTU0}
            v_and_b32 v{t1}, 1, v{vL}
            v_lshl_add_u32 v{vTU0}, v{t1}, 3, v{vTU0}
            v_xor_b32 v{vTU1}, 32, v{vTU0}
            """)
            assert A_WUV == 0
            tr_pair_bases(g, vTO0, vTO1, None, None, vL, A_WO, t0, t1, t2)
            g(f"""
            v_and_b32 v{t0}, 1, v{vL}
            v_lshlrev_b32 v{vCX}, 9, v{t0}
            v_bfe_u32 v{t0}, v{vL}, 1, 1
            v_lshl_add_u32 v{vCX}, v{t0}, 8, v{vCX}
            v_lshl_add_u32 v{vCX}, v{vG}, 4, v{vCX}
            v_and_b32 v{t0}, 1, v{vG}
            v_lshlrev_b32 v{vCW}, 3, v{t0}
            v_lshl_add_u32 v{vCW}, v{vN}, 4, v{vCW}
            v_lshl_add_u32 v{vCW}, s{sW}, 8, v{vCW}
            v_and_b32 v{t0}, 3, v{vL}
            v_lshlrev_b32 v{vHBl}, 8, v{t0}
            v_lshl_add_u32 v{vHBl}, v{vG}, 6, v{vHBl}
            v_bfe_u32 v{t0}, v{vL}, 2, 1
            v_lshl_add_u32 v{vHBl}, v{t0}, 4, v{vHBl}
            v_and_b32 v{t0}, 31, v{vL}
            v_lshlrev_b32 v{vD2}, 8, v{t0}
            v_lshlrev_b32 v{vOg}, 10, v{vG}
            v_lshl_add_u32 v{vOg}, v{vN}, 4, v{vOg}
            v_lshlrev_b32 v{vWTw}, 1, v{t0}
            v_lshl_add_u32 v{vWTw}, s{sW}, 6, v{vWTw}
            s_and_b32 s{sTMP}, s{sW}, 1
            s_lshl_b32 s{sTMP}, s{sTMP}, 5
            s_lshl_b32 s{sTMP+1}, s{sW}, 6
            s_add_u32 s{sTMP}, s{sTMP}, s{sTMP+1}
            v_lshl_add_u32 v{vWTr}, v{vG}, 3, s{sTMP}
            v_cmp_gt_u32 s[{sM1}:{sM1+1}], 8, v{vN}
            """)
        later_addresses()
        g("s_waitcnt vmcnt(0)")
        g("s_barrier")
        g.stamp(5)
        aUV, aWO = 0, 32
        vDB = 88
        vDL = 92
        vO = 96
        vFr = 116
        vWt = 132
        vD = 136
        vLs, vWr, vEr = 140, 141, 142
        g(f"""
        s_lshr_b32 s{sO}, s{sH}, 4
        s_lshl_b32 s{sO}, s{sO}, 1
        s_lshr_b32 s{sO3}, s{sW}, 1
        s_add_u32 s{sO}, s{sO}, s{sO3}
        s_lshl_b32 s{sO}, s{sO}, 13
        s_and_b32 s{sO3}, s{sH}, 15
        s_lshl_b32 s{sO3}, s{sO3}, 4
        s_add_u32 s{sO}, s{sO}, s{sO3}
        s_add_u32 s{sO2}, s{sO}, {DL}
        s_add_u32 s{sO}, s{sO}, {D2}
        buffer_load_dwordx4 {v(vDB,4)}, v{vD2}, {WS}, s{sO} offen sc1
        """)
        for tau in range(2):
            for ks in range(4):
                for hi in range(2):
                    g(f"ds_read_b64_tr_b16 {A(aUV+(tau*4+ks)*4+2*hi,2)}, v{vTU1 if tau else vTU0} offset:{ks*8192+hi*4096}")
        for t in range(5):
            for x in range(2):
                for hi in range(2):
                    g(f"ds_read_b64_tr_b16 {A(aWO+(t*2+x)*4+2*hi,2)}, v{vTO1 if x else vTO0} offset:{hi*16*1152+t*256}")
        sBP = 34
        sHI, sTT = sPOI, sPC
        sX, sP4 = 32, 33
        g(f"""
        s_and_b32 s{sTMP}, s{sW}, 1
        s_lshl_b32 s{sTMP}, s{sTMP}, 12
        s_add_u32 s{sTMP}, s{sTMP}, s{sO2}
        s_add_u32 s{sBP}, s4, s{sTMP}
        s_addc_u32 s{sBP+1}, s5, 0
        s_mul_i32 s{sO3}, s{sA}, {OSTR}
        s_lshl_b32 s{sTMP}, s{sW}, 12
        s_add_u32 s{sO3}, s{sO3}, s{sTMP}
        s_add_u32 s{sO3}, s{sO3}, {OB}
        s_bitcmp1_b32 s{sT}, 0
        s_cselect_b32 s{sX}, 0x10001, 0
        s_mov_b32 s{sHI}, 0x10000
        s_mov_b32 s{sTT}, s{sT}
        s_mov_b32 s{sTT+1}, s{sT}
        """)
        g(f"v_mov_b32 v{t0}, 0")
        for k in range(9):
            g(f"v_dot2_f32_bf16 v{t0}, v{vGx+k}, v{vGw+k}, v{t0}")
        g("s_nop 2")
        for r in (8, 4, 2, 1):
            g(f"v_add_f32_dpp v{t0}, v{t0}, v{t0} row_ror:{r} row_mask:0xf bank_mask:0xf")
        g(f"""
        v_mov_b32 v{t1}, v{t0}
        v_permlane16_swap_b32 v{t0}, v{t1}
        v_add_f32 v{t0}, v{t0}, v{t1}
        v_mul_f32 v{t0}, {hex(fbits(-math.log2(math.e)))}, v{t0}
        v_exp_f32 v{t0}, v{t0}
        v_add_f32 v{t0}, 1.0, v{t0}
        v_rcp_f32 v{t0}, v{t0}
        v_cmp_eq_u32 vcc, 1, v{vFB}
        v_mov_b32 v{t1}, v{t0}
        v_permlane32_swap_b32 v{t0}, v{t1}
        v_cndmask_b32 v{vFB}, v{t0}, v{t1}, vcc
        v_lshlrev_b32 v{vB2}, 16, v{vB2}
        s_mov_b32 s{sCNT}, 0
        s_waitcnt vmcnt(0)
        s_branch L_A_d2chk
        """)
        g.lab("L_A_d2poll")
        if opt.get("m_shrink"): g("s_mov_b64 exec, vcc")
        if opt.get("m_sleep"): g(f"s_sleep {opt['m_sleep']}")
        g(f"buffer_load_dwordx4 {v(vDB,4)}, v{vD2}, {WS}, s{sO} offen sc1")
        g(f"s_add_u32 s{sCNT}, s{sCNT}, 1")
        g(f"s_cmp_gt_u32 s{sCNT}, {opt.get('spin', SPIN)}")
        g("s_waitcnt vmcnt(0)")
        g("s_cbranch_scc1 L_A_d2done")
        g.lab("L_A_d2chk")
        g(f"v_cmp_ne_u64 vcc, s[{sT}:{sT+1}], {v(vDB+2,2)}")
        g("s_cbranch_vccnz L_A_d2poll")
        g.lab("L_A_d2done")
        if opt.get("m_shrink"): g("s_mov_b64 exec, -1")
        g.stamp(6)
        def lpoll():
            for k in range(16):
                g(f"s_load_dword s{16+k}, s[{sBP}:{sBP+1}], {k*256+8} glc")
        lvec = opt.get("l_vec", 0)
        if lvec == 1: g(f"buffer_load_dwordx4 {v(vDL,4)}, v{vD2}, {WS}, s{sO2} offen sc1")
        elif lvec == 0: lpoll()
        g(f"v_max_f32_dpp v{t0}, v{vDB}, v{vDB} row_ror:8 row_mask:0xf bank_mask:0xf")
        for r in (4, 2, 1):
            g(f"v_max_f32_dpp v{t0}, v{t0}, v{t0} row_ror:{r} row_mask:0xf bank_mask:0xf")
        g(f"""
        v_mov_b32 v{t1}, v{t0}
        v_permlane16_swap_b32 v{t0}, v{t1}
        v_max_f32 v{t0}, v{t0}, v{t1}
        v_sub_f32 v{t0}, v{vDB}, v{t0}
        v_exp_f32 v{t0}, v{t0}
        v_cvt_pk_bf16_f32 v{t0}, v{t0}, v{t0}
        ds_write_b16 v{vWTw}, v{t0} offset:{A_WT}
        ds_read_b64 {v(vWt,2)}, v{vWTr} offset:{A_WT}
        v_and_b32 v{vWr}, 0xffff0000, v{t0}
        s_mov_b32 s{sCNT}, 0
        s_branch {"L_A_lgo" if lvec == 2 else "L_A_lchk"}
        """)
        g.lab("L_A_lpoll")
        if lvec: g(f"buffer_load_dwordx4 {v(vDL,4)}, v{vD2}, {WS}, s{sO2} offen sc1")
        else: lpoll()
        g(f"s_add_u32 s{sCNT}, s{sCNT}, 1")
        g(f"s_cmp_gt_u32 s{sCNT}, {opt.get('spin', SPIN)}")
        g("s_cbranch_scc1 L_A_lgo")
        g.lab("L_A_lchk")
        if lvec:
            g("s_waitcnt vmcnt(0)")
            g(f"v_cmp_ne_u64 vcc, s[{sT}:{sT+1}], {v(vDL+2,2)}")
            g("s_cbranch_vccnz L_A_lpoll")
        else:
            g("s_waitcnt lgkmcnt(0)")
            for k in range(0, 16, 2):
                g(f"s_xor_b64 s[{16+k}:{17+k}], s[{16+k}:{17+k}], s[{sTT}:{sTT+1}]")
            for st_ in (8, 4, 2):
                for k in range(0, st_, 2):
                    g(f"s_or_b64 s[{16+k}:{17+k}], s[{16+k}:{17+k}], s[{16+k+st_}:{17+k+st_}]")
            g("s_cbranch_scc1 L_A_lpoll")
        g.lab("L_A_lgo")
        g(f"s_mov_b32 s{sCNT}, 0")
        g.stamp(11)
        g.lab("L_A_oget")
        g(f"buffer_load_dwordx4 {v(vDL,4)}, v{vD2}, {WS}, s{sO2} offen sc1")
        for u in range(4):
            g(f"buffer_load_dwordx4 {v(vO+4*u,4)}, v{vOg}, {WS}, s{sO3} offen offset:{u*256} sc1")
        g("s_waitcnt lgkmcnt(0)")
        for u in range(4):
            for d in range(4):
                g(f"v_perm_b32 v{vFr+4*u+d}, v{vWt+(u>>1)}, v{vWt+(u>>1)}, v{vSel+4*(u&1)+d}")
        g(f"v_mov_b32 v{vEr}, 0")
        g("s_waitcnt vmcnt(4)")
        g(f"v_mul_f32 v{vLs}, v{vWr}, v{vDL}")
        g(f"v_cmp_ne_u64 s[{sM4}:{sM4+1}], s[{sT}:{sT+1}], {v(vDL+2,2)}")
        for r in (8, 4, 2, 1):
            g(f"v_add_f32_dpp v{vLs}, v{vLs}, v{vLs} row_ror:{r} row_mask:0xf bank_mask:0xf")
        g(f"""
        v_mov_b32 v{t1}, v{vLs}
        v_permlane16_swap_b32 v{vLs}, v{t1}
        v_add_f32 v{vLs}, v{vLs}, v{t1}
        v_rcp_f32 v{vLs}, v{vLs}
        """)
        for u in range(4):
            g(f"s_waitcnt vmcnt({3-u})")
            for d in range(4):
                g(f"v_xor_b32 v{vO+4*u+d}, s{sX}, v{vO+4*u+d}")
            if u:
                for d in range(4):
                    g(f"v_bitop3_b32 v{vEr}, v{vEr}, v{vO+4*(u-1)+d}, s{sHI} bitop3:0xf6")
            g(f"{MF} {v(vD,4)}, {v(vFr+4*u,4)}, {v(vO+4*u,4)}, {'0' if u == 0 else v(vD,4)}")
        for d in range(4):
            g(f"v_bitop3_b32 v{vEr}, v{vEr}, v{vO+12+d}, s{sHI} bitop3:0xf6")
        g(f"v_and_b32 v{vEr}, 0x10001, v{vEr}")
        g(f"v_cmp_ne_u32 vcc, 0, v{vEr}")
        g(f"s_or_b64 vcc, vcc, s[{sM4}:{sM4+1}]")
        g("s_cbranch_scc1 L_A_oslow")
        g.lab("L_A_ook")
        if opt.get("stamps"): g(f"s_mov_b32 s100, s{sCNT}")
        for r in range(4):
            g(f"v_mul_f32 v{vD+r}, v{vLs}, v{vD+r}")
        g(f"v_cvt_pk_bf16_f32 v{vD}, v{vD}, v{vD+1}")
        g(f"v_cvt_pk_bf16_f32 v{vD+1}, v{vD+2}, v{vD+3}")
        g(f"ds_write_b64 v{vCW}, {v(vD,2)} offset:{A_CTXC}")
        g("s_waitcnt lgkmcnt(0)")
        g("s_barrier")
        g.stamp(7)
        vC = 80
        vU = 96
        vG1, vG2 = 104, 108
        vAe, vAo = 116, 120
        vY = 124
        for ks in range(4):
            g(f"ds_read_b128 {v(vC+4*ks,4)}, v{vCX} offset:{A_CTXC+ks*64}")
        g(f"s_lshl_b32 s{sO3}, s{sA}, 10")
        g(f"s_add_u32 s{sO3}, s{sO3}, {HB+LOC}")
        g(f"s_add_u32 s{sO}, s{sHB}, {LOC}")
        g(f"s_and_b32 s{sP4}, s{sT}, 15")
        sD3, vD3 = 16, 58
        g(f"s_xor_b32 s{sD3}, s{sW}, 3")
        g(f"s_or_b32 s{sD3}, s{sD3}, s{sJ}")
        g(f"s_lshl_b32 s{sTMP}, s{sH}, 7")
        g(f"s_add_u32 s{sTMP}, s{sTMP}, {D3}")
        g(f"v_lshl_add_u32 v{vD3}, v{vL}, 12, s{sTMP}")
        for ks in range(4):
            g(f"s_waitcnt lgkmcnt({3-ks})")
            for tau in range(2):
                g(f"{MF} {v(vU+4*tau,4)}, {A(aUV+(tau*4+ks)*4,4)}, {v(vC+4*ks,4)}, {'0' if ks == 0 else v(vU+4*tau,4)}")
        for r in range(4):
            g(f"v_cndmask_b32 v{vC+r}, v{vU+r}, v{vU+4+r}, s[{sM2}:{sM2+1}]")
            g(f"v_cndmask_b32 v{vC+4+r}, v{vU+4+r}, v{vU+r}, s[{sM2}:{sM2+1}]")
        for r in range(4):
            g(f"v_add_f32_dpp v{vC+r}, v{vC+4+r}, v{vC+r} quad_perm:[2,3,0,1] row_mask:0xf bank_mask:0xf")
        g(f"""
        v_cvt_pk_bf16_f32 v{vTag-2}, v{vC}, v{vC+1}
        v_cvt_pk_bf16_f32 v{vTag-1}, v{vC+2}, v{vC+3}
        s_mov_b32 exec_lo, 0x000f000f
        s_mov_b32 exec_hi, 0x000f000f
        buffer_store_dwordx4 {v(vTag-2,4)}, v{vHBs}, {WS}, s{sO} offen
        s_mov_b64 exec, -1
        """)
        def hb_wt():
            g("s_mov_b32 exec_lo, 0x000f000f")
            g("s_mov_b32 exec_hi, 0x000f000f")
            g(f"buffer_store_dwordx4 {v(vTag-2,4)}, v{vHBs}, {WS}, s{sHB} offen sc1")
            g("s_mov_b64 exec, -1")
        g.stamp(8)
        g(f"s_mov_b32 s{sCNT}, 0")
        g.lab("L_A_hbld")
        g(f"buffer_load_dwordx4 {v(vG1,4)}, v{vHBl}, {WS}, s{sO3} offen sc1")
        g(f"buffer_load_dwordx4 {v(vG2,4)}, v{vHBl}, {WS}, s{sO3} offen offset:32 sc1")
        g("s_waitcnt vmcnt(0)")
        g(f"v_cmp_ne_u64 vcc, s[{sT}:{sT+1}], {v(vG1+2,2)}")
        g(f"v_cmp_ne_u64 s[{sM3}:{sM3+1}], s[{sT}:{sT+1}], {v(vG2+2,2)}")
        src = [vG1, vG1 + 1, vG2, vG2 + 1]
        for d in range(4):
            g(f"v_cndmask_b32 v{vAe+d}, 0, v{src[d]}, s[{sM1}:{sM1+1}]")
        g(f"s_or_b64 vcc, vcc, s[{sM3}:{sM3+1}]")
        g("s_cbranch_scc1 L_A_hbpoll")
        g.lab("L_A_hbdone")
        g.stamp(9)
        def d3bell():
            g(f"s_cmp_lg_u32 s{sD3}, 0")
            g("s_cbranch_scc1 L_A_nod3")
            g("s_mov_b64 exec, 0xff")
            g(f"buffer_store_dword v{vTag}, v{vD3}, {WS}, 0 offen sc1")
            g("s_mov_b64 exec, -1")
            g.lab("L_A_nod3")
        if opt.get("d3_pos", 0) == 0: d3bell()
        for d in range(4):
            g(f"v_cndmask_b32 v{vAo+d}, v{src[d]}, 0, s[{sM1}:{sM1+1}]")
        for t in range(4):
            g(f"{MF} {v(vY+4*t,4)}, {v(vAe,4)}, {A(aWO+(t*2)*4,4)}, 0")
        for t in range(4):
            g(f"{MF} {v(vY+4*t,4)}, {v(vAo,4)}, {A(aWO+(t*2+1)*4,4)}, {v(vY+4*t,4)}")
        g(f"{MF} {v(vY+16,4)}, {v(vAe,4)}, {A(aWO+32,4)}, 0")
        g(f"{MF} {v(vY+16,4)}, {v(vAo,4)}, {A(aWO+36,4)}, {v(vY+16,4)}")
        for t in range(4):
            g(f"v_pk_add_f32 {v(vY+4*t,2)}, {v(vY+4*t,2)}, {v(vY+4*t+2,2)}")
        for t in range(4):
            g(f"v_add_f32 v{vC+t}, v{vY+4*t}, v{vY+4*t+1}")
        for t in range(4):
            g(f"v_and_or_b32 v{vC+t}, v{vC+t}, -16, s{sP4}")
        g(f"buffer_store_dwordx4 {v(vC,4)}, v{vA_l16}, {WS}, s{sH3m} offen sc1")
        g(f"s_cmp_gt_u32 s{sW}, 1")
        g("s_cbranch_scc1 L_A_no5b")
        g(f"v_pk_add_f32 {v(vY+16,2)}, {v(vY+16,2)}, {v(vY+18,2)}")
        g(f"v_add_f32 v{vY+16}, v{vY+16}, v{vY+17}")
        g(f"v_and_or_b32 v{vY+16}, v{vY+16}, -16, s{sP4}")
        g(f"buffer_store_dword v{vY+16}, v{vH3x}, {WS}, s{sH3l} offen sc1")
        g.lab("L_A_no5b")
        if opt.get("d3_pos", 0) == 1: d3bell()
        hb_wt()
        g.stamp(10)
        g(f"s_cmp_ge_u32 s{sA}, 36")
        g("s_cbranch_scc1 L_A_exit")
        vRd = [144, 160]
        vRw = 97
        vRa = 59
        sRa = [sO, sO3, sC, sHB]
        g(f"""
        s_lshl_b32 s{sTMP}, s{sXCD}, 2
        s_add_u32 s{sTMP}, s{sTMP}, s{sW}
        s_lshl_b32 s{sTMP}, s{sTMP}, 10
        s_add_u32 s{sTMP}, s{sTMP}, {D3}
        s_add_u32 s{sBP}, s4, s{sTMP}
        s_addc_u32 s{sBP+1}, s5, 0
        """)
        def d3poll():
            for k in range(8):
                g(f"s_load_dword s{16+k}, s[{sBP}:{sBP+1}], {k*128} glc")
        d3poll()
        g(f"""
        s_lshl_b32 s{sO2}, s{sW}, 12
        s_mul_i32 s{sO3}, s{sA}, {USTR}
        s_add_u32 s{sO2}, s{sO2}, s{sO3}
        s_add_u32 s{sO2}, s{sO2}, {H3}
        """)
        def rget(part):
            for u in range(4):
                if part: g(f"buffer_load_dwordx4 {v(vRd[1]+4*u,4)}, v{vA_l16}, {WS}, s{sO2} offen offset:{u*1024} sc1")
                else: g(f"buffer_load_dwordx4 {v(vRd[0]+4*u,4)}, v{vRa}, {WS}, s{sRa[u]} offen sc1")
        rget(1)
        g(f"""
        v_and_b32 v{t0}, 7, v{vL}
        v_lshlrev_b32 v{vRw}, 6, v{t0}
        v_lshrrev_b32 v{t1}, 3, v{vL}
        v_mul_u32_u24 v{vRa}, {OSTR}, v{t1}
        v_lshl_add_u32 v{vRa}, v{t0}, 4, v{vRa}
        v_lshrrev_b32 v{t0}, 5, v{vL}
        v_lshl_add_u32 v{vRw}, v{t0}, 4, v{vRw}
        v_bfe_u32 v{t0}, v{vL}, 4, 1
        v_lshl_add_u32 v{vRw}, v{t0}, 5, v{vRw}
        v_lshl_add_u32 v{vRw}, s{sW}, 2, v{vRw}
        s_mul_i32 s{sO}, s{sW}, {32*OSTR}
        s_lshl_b32 s{sTMP}, s{sA}, 7
        s_add_u32 s{sO}, s{sO}, s{sTMP}
        s_add_u32 s{sO}, s{sO}, {OB}
        s_add_u32 s{sO3}, s{sO}, {8*OSTR}
        s_add_u32 s{sC}, s{sO}, {16*OSTR}
        s_add_u32 s{sHB}, s{sO}, {24*OSTR}
        s_mov_b32 s{sCNT}, 0
        s_branch L_A_d3chk
        """)
        g.lab("L_A_d3poll")
        d3poll()
        spin_guard(g, "L_A_d3go")
        g.lab("L_A_d3chk")
        g("s_waitcnt lgkmcnt(0)")
        for k in range(0, 8, 2):
            g(f"s_xor_b64 s[{16+k}:{17+k}], s[{16+k}:{17+k}], s[{sTT}:{sTT+1}]")
        g("s_or_b64 s[16:17], s[16:17], s[18:19]")
        g("s_or_b64 s[20:21], s[20:21], s[22:23]")
        g("s_or_b64 s[16:17], s[16:17], s[20:21]")
        g("s_cbranch_scc1 L_A_d3poll")
        g.lab("L_A_d3go")
        g(f"s_mov_b32 s{sCNT}, 0")
        if opt.get("h3_ack", 0): g("s_waitcnt vmcnt(4)")
        if opt.get("st14"): g.stamp(14)
        rget(0)
        def rsum(part, waits):
            R = vRd[part]
            for u in range(4):
                if waits[u] is not None: g(f"s_waitcnt vmcnt({waits[u]})")
                for d in range(4):
                    g(f"v_xor_b32 v{R+4*u+d}, s{sP4}, v{R+4*u+d}")
                if u == 0:
                    g(f"v_or3_b32 v{vEr}, v{R}, v{R+1}, v{R+2}")
                    g(f"v_or_b32 v{vEr}, v{vEr}, v{R+3}")
                else:
                    g(f"v_pk_add_f32 {v(vY,2)}, {v(R if u == 1 else vY,2)}, {v(R+4*u,2)}")
                    g(f"v_pk_add_f32 {v(vY+2,2)}, {v(R+2 if u == 1 else vY+2,2)}, {v(R+4*u+2,2)}")
                    g(f"v_or3_b32 v{vEr}, v{vEr}, v{R+4*u}, v{R+4*u+1}")
                    g(f"v_or3_b32 v{vEr}, v{vEr}, v{R+4*u+2}, v{R+4*u+3}")
            g(f"v_permlane32_swap_b32 v{vY}, v{vY+1}")
            g(f"v_permlane32_swap_b32 v{vY+2}, v{vY+3}")
            g(f"v_and_b32 v{vEr}, 15, v{vEr}")
            g(f"v_add_f32 v{vY}, v{vY}, v{vY+1}")
            g(f"v_add_f32 v{vY+2}, v{vY+2}, v{vY+3}")
            g(f"v_cmp_ne_u32 vcc, 0, v{vEr}")
            g(f"v_permlane16_swap_b32 v{vY}, v{vY+2}")
            g(f"v_add_f32 v{vY}, v{vY}, v{vY+2}")
        def rfin(part):
            g(f"v_add_f32_dpp v{vY}, v{vY}, v{vY} row_ror:8 row_mask:0xf bank_mask:0xf")
            g(f"ds_write_b32 v{vRw}, v{vY} offset:{A_RED + part*512}")
        sPend = sM3
        rsum(1, [4, None, None, None])
        g(f"s_mov_b64 s[{sPend}:{sPend+1}], vcc")
        rfin(1)
        g.lab("L_A_r0sum")
        rsum(0, [3, 2, 1, 0])
        g("s_cbranch_vccnz L_A_r0slow")
        g.lab("L_A_r0ok")
        rfin(0)
        g(f"s_cmp_lg_u64 s[{sPend}:{sPend+1}], 0")
        g("s_cbranch_scc1 L_A_r1slow")
        g.lab("L_A_r1ok")
        g.stamp(12)
        if opt.get("stamps"):
            g(f"s_lshl_b32 s{sCNT}, s{sCNT}, 8")
            g(f"s_or_b32 s100, s100, s{sCNT}")
        g("s_waitcnt lgkmcnt(0)")
        g("s_barrier")
        g(f"s_cmp_lg_u32 s{sW}, 0")
        g("s_cbranch_scc1 L_A_exit")
        R = 144
        g(f"""
        s_mov_b32 exec_hi, 0
        ds_read_b128 {v(R,4)}, v{vA_l16} offset:{A_RED}
        ds_read_b128 {v(R+4,4)}, v{vA_l16} offset:{A_RED+512}
        v_sub_f32 v{t0}, 1.0, v{vFB}
        s_waitcnt lgkmcnt(0)
        v_pk_add_f32 {v(R,2)}, {v(R,2)}, {v(R+2,2)}
        v_pk_add_f32 {v(R+4,2)}, {v(R+4,2)}, {v(R+6,2)}
        v_add_f32 v{R}, v{R}, v{R+1}
        v_add_f32 v{R+4}, v{R+4}, v{R+5}
        v_add_f32 v{R+4}, v{R+4}, v{vB2}
        v_mul_f32 v{R+4}, v{t0}, v{R+4}
        v_fma_f32 v{R}, v{vFB}, v{R}, v{R+4}
        v_cvt_pk_bf16_f32 v{R}, v{R}, v{R}
        buffer_store_short v{R}, v{vOA}, {OUT}, 0 offen
        s_cmp_lg_u32 s{sA}, 0
        s_cbranch_scc1 L_A_exit
        s_mov_b64 exec, 1
        buffer_store_dwordx2 {v(vTag,2)}, v{vA_l16}, {WS}, 0 offen offset:{EPOCH} sc1
        """)
        if opt.get("probe") is not None:
            i = opt["probe"]
            g.stamp(13)
            g("s_waitcnt lgkmcnt(0)")
            g(f"s_sub_u32 s{sO}, s{70+2*i}, s70")
            g(f"s_lshl_b32 s{sO}, s{sO}, 2")
            g(f"s_add_u32 s{sO}, s{sO}, 4000")
            g.lab("L_probe")
            g(f"s_memrealtime s[{sTMP}:{sTMP+1}]")
            g("s_waitcnt lgkmcnt(0)")
            g(f"s_sub_u32 s{sTMP}, s{sTMP}, s70")
            g(f"s_cmp_lt_u32 s{sTMP}, s{sO}")
            g("s_cbranch_scc1 L_probe")
            g("s_endpgm")
        g.lab("L_A_exit")
        g.stamp(13)
        dump_stamps(g, 16, 216)
        g("s_endpgm")
        g.lab("L_A_h0poll")
        spin_guard(g, "L_A_h0done")
        g(f"s_cmp_lg_u32 s{sCNT}, 8")
        g("s_cbranch_scc1 L_A_h0ns")
        h0_wt()
        g.lab("L_A_h0ns")
        dual_next(g, sib[1:])
        h0loads()
        g("s_branch L_A_h0chk")
        g.lab("L_A_oslow")
        spin_guard(g, "L_A_ook")
        g("s_branch L_A_oget")
        g.lab("L_A_hbpoll")
        spin_guard(g, "L_A_hbdone")
        g(f"s_cmp_lg_u32 s{sCNT}, 8")
        g("s_cbranch_scc1 L_A_hbns")
        hb_wt()
        g.lab("L_A_hbns")
        dual_next(g, [sO3])
        g("s_branch L_A_hbld")
        g.lab("L_A_r0slow")
        spin_guard(g, "L_A_r0ok")
        rget(0)
        g("s_branch L_A_r0sum")
        g.lab("L_A_r1slow")
        spin_guard(g, "L_A_r1ok")
        rget(1)
        rsum(1, [3, 2, 1, 0])
        g("s_cbranch_vccnz L_A_r1slow")
        rfin(1)
        g("s_branch L_A_r1ok")

class RoleB:
    def __init__(self, g, NT, vL, vN, vG):
        self.g, self.NT, self.vL, self.vN, self.vG = g, NT, vL, vN, vG

    def issue(self):
        g, vL = self.g, self.vL
        g(f"""
        s_lshr_b32 s{sO}, s{sI}, 2
        s_lshl_b32 s{sO}, s{sO}, 3
        s_add_u32 s{sO}, s{sO}, s{sXCD}
        s_lshl_b32 s{sO}, s{sO}, 2
        s_and_b32 s{sO2}, s{sI}, 3
        s_add_u32 s{sO}, s{sO}, s{sO2}
        s_lshl_b32 s{sO2}, s{sO}, 11
        s_add_u32 s{sO2}, s{sO2}, {H0+LOC}
        s_lshl_b32 s{sO}, s{sO}, 10
        s_add_u32 s{sO}, s{sO}, {HB+LOC}
        s_cmp_eq_u32 s{sW}, 1
        s_cselect_b32 s{sO}, s{sO}, s{sO2}
        s_lshl_b32 s{sO2}, s{sXCD}, 4
        s_add_u32 s{sO2}, s{sO2}, s{sI}
        s_lshl_b32 s{sO2}, s{sO2}, 10
        s_add_u32 s{sO2}, s{sO2}, {D3}
        s_cmp_eq_u32 s{sW}, 2
        s_cselect_b32 s{sO}, s{sO2}, s{sO}
        s_cselect_b32 s{sTMP}, 0xff, -1
        s_and_b32 s{sTMP}, s{sTMP}, 0xffff
        s_mov_b32 s{sTMP+1}, 0
        v_lshlrev_b32 v4, 7, v{vL}
        s_waitcnt lgkmcnt(0)
        """)
        load_tag(g)
        g(f"""
        s_cmp_gt_u32 s{sW}, 2
        s_cbranch_scc1 L_B_rest
        s_mov_b64 exec, s[{sTMP}:{sTMP+1}]
        buffer_load_dword v62, v4, {WS}, s{sO} offen
        s_mov_b64 exec, -1
        """)

    def rest(self):
        g, NT, vL, vN, vG = self.g, self.NT, self.vL, self.vN, self.vG
        opt = g.opt
        CKV, W2, B1, W1 = "s[28:31]", "s[20:23]", "s[24:27]", "s[16:19]"
        t0, t1, t2, t3 = 4, 5, 6, 7
        vL16 = 12
        vOa = 13
        vH3, vH3x = 14, 15
        vB1 = 22
        vSB = 24
        vQBs = 28
        vPVb = 16
        vTag = 36
        vML = 34
        vMXw, vMXr = 38, 39
        vD2a = 40
        vPw = 41
        vP2 = 42
        vT20, vT21, vK20, vK21 = 52, 53, 54, 55
        vHg, vHw = 56, 57
        vHe, vHo, vHke, vHko = 58, 59, 60, 61
        vQd = 8
        aS, aP = 0, 128
        sOo = 61
        sH3m, sH3l = 62, 63
        sD2, sGot = 59, 58
        sBP, sTT = 34, sPC
        sQg = 33
        sPat, sMk = 32, 36
        srd_tail(g, 28, 2 * 4096 * 1024)
        srd(g, 20, 9, 4608 * 1152)
        srd(g, 24, 8, 9216)
        srd(g, 16, 7, 576 * 9216)
        srd_tail(g, 8, 2304)
        vP1 = 152
        vW1, vW2 = 168, 212
        vXr = 64
        vXA = 128
        vT1, vK1, vHs = 164, 165, 166
        g(f"""
        s_and_b32 s{sB}, s{sXCD}, 1
        s_lshr_b32 s{sMSG}, s{sI}, 1
        s_lshl_b32 s{sMSG}, s{sMSG}, 2
        s_lshr_b32 s{sO}, s{sXCD}, 1
        s_add_u32 s{sMSG}, s{sMSG}, s{sO}
        s_lshl_b32 s{sO}, s{sB}, 5
        s_add_u32 s{sMSG}, s{sMSG}, s{sO}
        v_lshlrev_b32 v{vL16}, 4, v{vL}
        """)
        sCk = 37
        g(f"""
        s_lshl_b32 s{sCk}, s{sMSG}, 2
        s_add_u32 s{sCk}, s{sCk}, s{sW}
        s_lshl_b32 s{sCk}, s{sCk}, 15
        s_lshl_b32 m0, s{sW}, 15
        s_add_u32 m0, m0, {B_CKV}
        """)
        def ckv_stream(k0, k1):
            thr = opt.get("ckv_thr")
            for k in range(k0, k1):
                f = f16sw(k & 15)
                tmp = t0 + (k & 1)
                g(f"v_xor_b32 v{tmp}, {f*16}, v{vL16}")
                if thr is not None: g(f"s_waitcnt vmcnt({thr-1})")
                g(f"buffer_load_dwordx4 v{tmp}, {CKV}, s{sCk} offen offset:{(k%4)*1024} {NT} lds")
                if k % 4 == 3:
                    g(f"s_addk_i32 s{sCk}, 0x1000")
                    g(f"s_add_u32 m0, m0, 0x1000")
        c1_, c2_ = opt.get("ckv_a", 0), opt.get("ckv_b", 0)
        g.stamp(13)
        ckv_stream(0, c1_)
        g(f"""
        s_and_b32 s{sHG}, s{sI}, 1
        s_lshl_b32 s{sU2}, s{sXCD}, 4
        s_add_u32 s{sU2}, s{sU2}, s{sI}
        s_mov_b32 s{sPR}, s{sU2}
        s_mov_b32 s{sPOI}, {POISON}
        v_mul_u32_u24 v{vOa}, {16*OSTR}, v{vG}
        v_lshl_add_u32 v{vOa}, v{vN}, 4, v{vOa}
        s_lshl_b32 s{sOo}, s{sHG}, 6
        s_add_u32 s{sOo}, s{sOo}, s{sW}
        s_mul_i32 s{sOo}, s{sOo}, {OSTR}
        s_lshl_b32 s{sO}, s{sMSG}, 8
        s_add_u32 s{sOo}, s{sOo}, s{sO}
        s_add_u32 s{sOo}, s{sOo}, {OB}
        s_lshl_b32 s{sD2}, s{sHG}, 6
        s_add_u32 s{sD2}, s{sD2}, s{sMSG}
        s_lshl_b32 s{sD2}, s{sD2}, 8
        s_add_u32 s{sD2}, s{sD2}, {D2}
        """)
        h3_addr(g, vH3, vH3x, vL, vN, vG, t0)
        h3_soffs(g, sH3m, sH3l)
        def fsw(dst, src, tmp):
            g(f"v_lshrrev_b32 v{tmp}, 3, v{src}")
            g(f"v_and_b32 v{dst}, 7, v{src}")
            g(f"v_lshl_add_u32 v{dst}, v{dst}, 1, v{tmp}")
            g(f"v_lshlrev_b32 v{tmp}, 3, v{tmp}")
            g(f"v_xor_b32 v{dst}, v{dst}, v{tmp}")
        fsw(t2, vN, t3)
        g(f"""
        v_xor_b32 v{t2}, v{t2}, v{vG}
        v_lshlrev_b32 v{t2}, 4, v{t2}
        v_lshl_add_u32 v{t2}, v{vN}, 10, v{t2}
        s_lshl_b32 s{sO}, s{sW}, 15
        s_add_u32 s{sO}, s{sO}, {B_CKV}
        """)
        assert B_QF == 0
        for q in range(4):
            g(f"v_xor_b32 v{vQBs+q}, {q*64}, v{t2}")
            g(f"v_add_u32 v{vSB+q}, s{sO}, v{vQBs+q}")
        g(f"v_lshrrev_b32 v{t0}, 2, v{vL}")
        fsw(t2, t0, t3)
        g(f"""
        v_bfe_u32 v{t3}, v{vL}, 1, 1
        v_xor_b32 v{t2}, v{t2}, v{t3}
        v_lshlrev_b32 v{t1}, 10, v{t0}
        v_lshl_add_u32 v{t1}, v{t2}, 4, v{t1}
        v_and_b32 v{t3}, 1, v{vL}
        v_lshl_add_u32 v{t1}, v{t3}, 3, v{t1}
        v_lshl_add_u32 v{t1}, s{sW}, 8, v{t1}
        """)
        for k in range(4):
            g(f"s_add_u32 s{sO}, s{sW}, {k}")
            g(f"s_and_b32 s{sO}, s{sO}, 3")
            g(f"v_lshl_add_u32 v{[vPw,20,21,23][k]}, s{sO}, 10, v{vL16}")
            g(f"s_lshl_b32 s{sO}, s{sO}, 15")
            g(f"s_add_u32 s{sO}, s{sO}, {B_CKV}")
            g(f"v_add_u32 v{vPVb+k}, s{sO}, v{t1}")
        g(f"""
        v_lshlrev_b32 v{vMXr}, 4, v{vN}
        v_lshl_add_u32 v{vMXw}, v{vG}, 2, v{vMXr}
        v_lshl_add_u32 v{vMXw}, s{sW}, 8, v{vMXw}
        s_lshl_b32 s{sQg}, s{sB}, 1
        s_add_u32 s{sQg}, s{sQg}, s{sHG}
        s_lshl_b32 s{sQg}, s{sQg}, 2
        s_add_u32 s{sQg}, s{sQg}, s{sW}
        s_lshl_b32 s{sQg}, s{sQg}, 12
        s_add_u32 s{sQg}, s{sQg}, {QB}
        s_lshr_b32 s{sTMP}, s{sW}, 1
        s_xor_b32 s{sTMP+1}, s{sW}, s{sTMP}
        s_and_b32 s{sTMP+1}, s{sTMP+1}, 1
        s_lshl_b32 s{sTMP+1}, s{sTMP+1}, 3
        s_add_u32 s{sTMP}, s{sTMP}, s{sTMP+1}
        s_lshl_b32 s{sTMP}, s{sTMP}, 4
        v_xor_b32 v{vQd}, s{sTMP}, v{vL16}
        v_xor_b32 v{vQd+1}, 32, v{vQd}
        v_xor_b32 v{vQd+2}, 64, v{vQd}
        v_xor_b32 v{vQd+3}, 0x60, v{vQd}
        v_mov_b32 v{t0}, 0
        v_lshlrev_b32 v{t1}, 2, v{vL}
        s_mov_b32 exec_hi, 0
        ds_write_b32 v{t1}, v{t0} offset:{B_ZERO}
        s_mov_b64 exec, -1
        s_lshl_b32 s{sTMP}, s{sXCD}, 3
        s_lshl_b32 s{sTMP+1}, s{sHG}, 2
        s_add_u32 s{sTMP}, s{sTMP}, s{sTMP+1}
        s_add_u32 s{sTMP}, s{sTMP}, s{sW}
        s_lshl_b32 s{sTMP}, s{sTMP}, 9
        s_add_u32 s{sTMP}, s{sTMP}, {D1}
        s_add_u32 s{sBP}, s4, s{sTMP}
        s_addc_u32 s{sBP+1}, s5, 0
        """)
        g.stamp(14)
        ckv_stream(c1_, c1_ + c2_)
        for i in range(10):
            unit_pattern(g, vP2 + i, vL, sW if i == 9 else None, i, 1152, t0, t1)
            g(f"v_mul_u32_u24 v{t1}, {9216-1152}, v{t1}")
            g(f"v_add_u32 v{vP1+i}, v{vP2+i}, v{t1}")
        g(f"""
        v_lshrrev_b32 v{t0}, 2, v{vL}
        v_bfe_u32 v{t1}, v{vL}, 1, 1
        v_lshl_add_u32 v{t1}, s{sW}, 1, v{t1}
        v_and_b32 v{t2}, 6, v{t0}
        v_xor_b32 v{t2}, v{t2}, v{t1}
        v_lshlrev_b32 v{t2}, 4, v{t2}
        v_mul_u32_u24 v{vT1}, 1152, v{t0}
        v_and_b32 v{t3}, 1, v{vL}
        v_lshlrev_b32 v{t3}, 3, v{t3}
        v_add3_u32 v{vT1}, v{vT1}, v{t2}, v{t3}
        v_and_b32 v{t0}, 3, v{t0}
        v_and_b32 v{t2}, 2, v{t0}
        v_xor_b32 v{t2}, v{t2}, v{t1}
        v_lshlrev_b32 v{t2}, 4, v{t2}
        v_mul_u32_u24 v{vK1}, 1152, v{t0}
        v_add3_u32 v{vK1}, v{vK1}, v{t2}, v{t3}
        v_lshlrev_b32 v{vHs}, 10, v{vG}
        v_lshl_add_u32 v{vHs}, v{vN}, 4, v{vHs}
        """)
        tr_pair_bases(g, vT20, vT21, vK20, vK21, vL, B_W2, t0, t1, t2)
        g(f"""
        v_mul_u32_u24 v{vHg}, 9216, v{vG}
        v_lshl_add_u32 v{vHg}, v{vN}, 4, v{vHg}
        v_lshrrev_b32 v{t0}, 5, v{vL}
        v_lshlrev_b32 v{vHw}, 7, v{t0}
        v_lshl_add_u32 v{vHw}, v{vN}, 1, v{vHw}
        s_mul_i32 s{sO}, s{sW}, 18
        v_add_u32 v{vHw}, s{sO}, v{vHw}
        v_bfe_u32 v{t0}, v{vL}, 2, 1
        v_lshlrev_b32 v{t0}, 7, v{t0}
        v_add_u32 v{t0}, {B_HL}, v{t0}
        v_lshl_add_u32 v{t1}, v{vG}, 3, v{t0}
        v_add_u32 v{t0}, 64, v{t0}
        v_mov_b32 v{t2}, {B_ZERO}
        v_cmp_gt_u32 vcc, 8, v{vN}
        v_cndmask_b32 v{vHe}, v{t2}, v{t1}, vcc
        v_cndmask_b32 v{vHo}, v{t1}, v{t2}, vcc
        v_lshrrev_b32 v{t1}, 3, v{vL}
        v_cmp_eq_u32 vcc, 0, v{t1}
        v_cndmask_b32 v{vHke}, v{t2}, v{t0}, vcc
        v_cmp_eq_u32 vcc, 1, v{t1}
        v_cndmask_b32 v{vHko}, v{t2}, v{t0}, vcc
        """)
        finish_tag(g)
        g(f"""
        v_mov_b32 v{vTag}, s{sT}
        v_mov_b32 v{vTag+1}, s{sT+1}
        s_bitcmp1_b32 s{sT}, 0
        s_cselect_b32 s{sPat}, 1, 0x10000
        v_mov_b32 v{vML+1}, s{sPat}
        s_mov_b32 s{sMk}, 0xfffefffe
        s_mov_b32 s{sTT}, s{sT}
        s_mov_b32 s{sTT+1}, s{sT}
        """)
        vPat = 33
        g(f"v_mov_b32 v{vPat}, s{sPat}")
        g(f"""
        v_and_b32 v{t0}, 1, v{vL}
        v_mul_u32_u24 v{t0}, 1152, v{t0}
        s_mul_i32 s{sO}, s{sI}, 72
        buffer_load_dwordx2 {v(vXr+4,2)}, v{t0}, {X}, s{sO} offen offset:64
        v_lshl_add_u32 v{t0}, v{vG}, 3, v{t0}
        buffer_load_dwordx2 {v(vXr,2)}, v{t0}, {X}, s{sO} offen
        buffer_load_dwordx2 {v(vXr+2,2)}, v{t0}, {X}, s{sO} offen offset:32
        s_mul_i32 s{sO}, s{sU2}, 72
        s_mul_i32 s{sTMP}, s{sW}, 18
        s_add_u32 s{sO}, s{sO}, s{sTMP}
        v_lshlrev_b32 v{t0}, 1, v{vN}
        buffer_load_ushort v{vB1}, v{t0}, {B1}, s{sO} offen
        """)
        for k in range(4):
            g(f"s_load_dwordx4 s[{[8,12,24,52][k]}:{[8,12,24,52][k]+3}], s[{sBP}:{sBP+1}], {k*128} glc")
        assert c1_ + c2_ <= 16
        g.stamp(8)
        ckv_stream(c1_ + c2_, 32)
        NW1 = 0 if "w1" in opt.get("skip", "") else 11
        w1pos = opt.get("w1_pos", 0)
        def w1_stream():
            g(f"s_mul_i32 s{sO2}, s{sI}, {36*9216}")
            g(f"s_mul_i32 s{sO3}, s{sXCD}, 1152")
            g(f"s_add_u32 s{sO2}, s{sO2}, s{sO3}")
            unit_load(g, W1, vP1, None, sO2, 9216, "w1", NT, vdst=vW1, w0extra=False)
        def w2_stream():
            g(f"s_mul_i32 s{sO2}, s{sU2}, {36*1152}")
            unit_load(g, W2, vP2, None, sO2, 1152, "w2", NT, vdst=vW2, w0extra=False)
        if w1pos == 0: w1_stream()
        else: NW1 = 0
        g.stamp(1)
        g(f"s_lshl_b32 m0, s{sW}, 12")
        sD = [8, 12, 24, 52]
        def d1poll():
            for k in range(4):
                g(f"s_load_dwordx4 s[{sD[k]}:{sD[k]+3}], s[{sBP}:{sBP+1}], {k*128} glc")
        def d1chk():
            for k in range(4):
                g(f"s_xor_b64 s[{sD[k]}:{sD[k]+1}], s[{sD[k]}:{sD[k]+1}], s[{sTT}:{sTT+1}]")
                g(f"s_xor_b64 s[{sD[k]+2}:{sD[k]+3}], s[{sD[k]+2}:{sD[k]+3}], s[{sTT}:{sTT+1}]")
                g(f"s_or_b64 s[{sD[k]}:{sD[k]+1}], s[{sD[k]}:{sD[k]+1}], s[{sD[k]+2}:{sD[k]+3}]")
            g("s_or_b64 s[8:9], s[8:9], s[12:13]")
            g("s_or_b64 s[24:25], s[24:25], s[52:53]")
            g("s_or_b64 s[8:9], s[8:9], s[24:25]")
        def qdma():
            for k in range(4):
                g(f"buffer_load_dwordx4 v{vQd+k}, {WS}, s{sQg} offen offset:{k*1024} sc1 lds")
        def look(tag):
            g(f"s_cmp_lg_u32 s{sGot}, 0")
            g(f"s_cbranch_scc1 L_B_lk{tag}")
            g("s_waitcnt lgkmcnt(0)")
            d1chk()
            g(f"s_cbranch_scc1 L_B_lp{tag}")
            g.stamp(3)
            qdma()
            g(f"s_mov_b32 s{sGot}, 1")
            g(f"s_branch L_B_lk{tag}")
            g.lab(f"L_B_lp{tag}")
            d1poll()
            g.lab(f"L_B_lk{tag}")
        g("s_waitcnt lgkmcnt(0)")
        d1poll()
        g(f"s_mov_b32 s{sGot}, 0")
        g(f"s_waitcnt vmcnt({16+NW1})")
        for ks in range(16):
            g(f"ds_read_b128 {A(aS+ks*4,4)}, v{vSB+(ks&3)} offset:{(ks>>2)*256}")
        g(f"v_lshrrev_b32 v{t0}, 1, v{vN}")
        g(f"v_lshrrev_b32 v{t1}, 1, v{vL}")
        for z in range(4):
            g(f"v_cmp_eq_u32 vcc, {2*z}, v{t0}")
            g(f"v_cmp_eq_u32 s[{sM3}:{sM3+1}], {2*z}, v{t1}")
            for d in range(4):
                g(f"v_cndmask_b32 v{vXA+6*z+d}, 0, v{vXr+d}, vcc")
            for d in range(4, 6):
                g(f"v_cndmask_b32 v{vXA+6*z+d}, 0, v{vXr+d}, s[{sM3}:{sM3+1}]")
        for z in range(opt.get("b_looks", 2 if w1pos else 1)): look(f"a{z}")
        g(f"s_cmp_lg_u32 s{sGot}, 0")
        g("s_cbranch_scc1 L_B_cw1")
        g(f"s_waitcnt vmcnt({NW1})")
        g.lab("L_B_cw1")
        g(f"s_waitcnt vmcnt({4+NW1})")
        g.stamp(2)
        look("b")
        for ks in range(16):
            g(f"ds_read_b128 {A(aS+64+ks*4,4)}, v{vSB+(ks&3)} offset:{16384+(ks>>2)*256}")
        g("s_barrier")
        def pvgroup(k):
            for ct in range(8):
                tmp = t0 + (ct & 1)
                g(f"v_xor_b32 v{tmp}, {ct<<5}, v{vPVb+k}")
                for hi in range(2):
                    g(f"ds_read_b64_tr_b16 {A(aP+(ct*4+k)*4+2*hi,2)}, v{tmp} offset:{hi*16384}")
        for k in range(4):
            look(f"c{k}")
            pvgroup(k)
        g(f"s_mov_b32 s{sCNT}, 0")
        g(f"s_cmp_lg_u32 s{sGot}, 0")
        g("s_cbranch_scc1 L_B_qwait")
        g("s_branch L_B_d1chk")
        g.lab("L_B_d1poll")
        d1poll()
        spin_guard(g, "L_B_qget0")
        g.lab("L_B_d1chk")
        g("s_waitcnt lgkmcnt(0)")
        d1chk()
        g("s_cbranch_scc1 L_B_d1poll")
        g.stamp(3)
        g.lab("L_B_qget0")
        g(f"s_mov_b32 s{sCNT}, 0")
        qdma()
        g.lab("L_B_qwait")
        nb = 0
        if w1pos == 0:
            w2_stream(); nb = 0 if "w2" in opt.get("skip", "") else 11
        else:
            w1_stream(); nb = 0 if "w1" in opt.get("skip", "") else 11
        g(f"s_waitcnt vmcnt({nb}) lgkmcnt(0)")
        g.lab("L_B_qbar")
        g("s_barrier")
        g.stamp(4)
        vQ = 64
        vS = 156
        PRE = 6
        for ks in range(PRE):
            g(f"ds_read_b128 {v(vQ+4*ks,4)}, v{vQBs+(ks&3)} offset:{(ks>>2)*256}")
        for ks in range(16):
            if ks + PRE < 16:
                k2 = ks + PRE
                g(f"ds_read_b128 {v(vQ+4*k2,4)}, v{vQBs+(k2&3)} offset:{(k2>>2)*256}")
            g(f"s_waitcnt lgkmcnt({min(PRE, 15-ks)})")
            for kt in range(2):
                g(f"{MF} {v(vS+4*kt,4)}, {A(aS+(kt*16+ks)*4,4)}, {v(vQ+4*ks,4)}, {'0' if ks == 0 else v(vS+4*kt,4)}")
        CS = math.log2(math.e) * 128 ** -0.5
        g(f"s_mov_b32 s{sC}, {hex(fbits(CS))}")
        g(f"""
        v_cmp_u_f32 vcc, v{vS}, v{vS}
        v_max3_f32 v{t0}, v{vS}, v{vS+1}, v{vS+2}
        v_max3_f32 v{t1}, v{vS+3}, v{vS+4}, v{vS+5}
        v_max3_f32 v{t0}, v{t0}, v{vS+6}, v{vS+7}
        v_max_f32 v{t0}, v{t0}, v{t1}
        s_cbranch_vccnz L_B_qslow
        """)
        g.lab("L_B_qok")
        if opt.get("stamps"): g(f"s_mov_b32 s100, s{sCNT}")
        g(f"""
        ds_write_b32 v{vMXw}, v{t0} offset:{B_MX}
        s_waitcnt lgkmcnt(0)
        s_barrier
        """)
        g.stamp(5)
        vM = 64
        for q in range(4):
            g(f"ds_read_b128 {v(vM+4*q,4)}, v{vMXr} offset:{B_MX+q*256}")
        g(f"""
        s_waitcnt lgkmcnt(2)
        v_max3_f32 v{vM}, v{vM}, v{vM+1}, v{vM+2}
        v_max3_f32 v{vM+3}, v{vM+3}, v{vM+4}, v{vM+5}
        v_max3_f32 v{vM}, v{vM}, v{vM+6}, v{vM+7}
        s_waitcnt lgkmcnt(0)
        v_max3_f32 v{vM+8}, v{vM+8}, v{vM+9}, v{vM+10}
        v_max3_f32 v{vM+11}, v{vM+11}, v{vM+12}, v{vM+13}
        v_max3_f32 v{vM+8}, v{vM+8}, v{vM+14}, v{vM+15}
        v_max3_f32 v{vM}, v{vM}, v{vM+3}, v{vM+11}
        v_max_f32 v{vM}, v{vM}, v{vM+8}
        v_mul_f32 v{vML}, s{sC}, v{vM}
        """)
        def stat(wave, off, tag):
            g(f"s_cmp_lg_u32 s{sW}, {wave}")
            g(f"s_cbranch_scc1 L_B_nost{tag}")
            if off: g(f"s_add_u32 s{sD2}, s{sD2}, {off}")
            g("s_mov_b64 exec, 0xffff")
            g(f"buffer_store_dwordx4 {v(vML,4)}, v{vL16}, {WS}, s{sD2} offen sc1")
            g("s_mov_b64 exec, -1")
            g.lab(f"L_B_nost{tag}")
        if opt.get("m_early"): stat(1, 0, "m")
        for k in range(8):
            g(f"v_fma_f32 v{vS+k}, v{vS+k}, s{sC}, -v{vML}")
        for k in range(8):
            g(f"v_exp_f32 v{vS+k}, v{vS+k}")
        vPf = 80
        vO = 96
        for k in range(4):
            g(f"v_cvt_pk_bf16_f32 v{vPf+k}, v{vS+2*k}, v{vS+2*k+1}")
        g(f"ds_write_b128 v{vPw}, {v(vPf,4)} offset:{B_PB}")
        g(f"""
        v_pk_add_f32 {v(vS,2)}, {v(vS,2)}, {v(vS+2,2)}
        v_pk_add_f32 {v(vS+4,2)}, {v(vS+4,2)}, {v(vS+6,2)}
        v_pk_add_f32 {v(vS,2)}, {v(vS,2)}, {v(vS+4,2)}
        v_add_f32 v{vS}, v{vS}, v{vS+1}
        ds_write_b32 v{vMXw}, v{vS} offset:{B_LS}
        """)
        def pv(k, cts=range(8)):
            for ct in cts:
                g(f"{MF} {v(vO+4*ct,4)}, {v(vPf+4*k,4)}, {A(aP+(ct*4+k)*4,4)}, {'0' if k == 0 else v(vO+4*ct,4)}")
        pv(0, range(2))
        if not opt.get("m_early"): stat(1, 0, "m")
        g("s_waitcnt lgkmcnt(0)")
        g("s_barrier")
        g.stamp(6)
        for k in range(1, 4):
            g(f"ds_read_b128 {v(vPf+4*k,4)}, v{[0,20,21,23][k]} offset:{B_PB}")
        for q in range(4):
            g(f"ds_read_b128 {v(vM+4*q,4)}, v{vMXr} offset:{B_LS+q*256}")
        pv(0, range(2, 8))
        g("s_waitcnt lgkmcnt(6)")
        adds = [f"v_pk_add_f32 {v(vM,2)}, {v(vM,2)}, {v(vM+2,2)}", f"v_pk_add_f32 {v(vM+4,2)}, {v(vM+4,2)}, {v(vM+6,2)}",
                f"v_pk_add_f32 {v(vM+8,2)}, {v(vM+8,2)}, {v(vM+10,2)}", f"v_pk_add_f32 {v(vM+12,2)}, {v(vM+12,2)}, {v(vM+14,2)}",
                f"v_pk_add_f32 {v(vM,2)}, {v(vM,2)}, {v(vM+4,2)}", f"v_pk_add_f32 {v(vM+8,2)}, {v(vM+8,2)}, {v(vM+12,2)}",
                f"v_pk_add_f32 {v(vM,2)}, {v(vM,2)}, {v(vM+8,2)}", f"v_add_f32 v{vML}, v{vM}, v{vM+1}"]
        pv(1, range(4))
        g("s_waitcnt lgkmcnt(0)")
        for ct in range(4, 8):
            pv(1, [ct])
            g(adds[2 * (ct - 4)]); g(adds[2 * (ct - 4) + 1])
        dbpos = opt.get("d2_pos", 2)
        if dbpos == 2: stat(0, DL - D2, "l")
        vOo = 64
        def cv(k, rs=range(4)):
            for r in rs:
                g(f"v_cvt_pk_bf16_f32 v{vOo+4*r+k}, v{vO+8*k+r}, v{vO+8*k+4+r}")
        def tg(k, rs=range(4)):
            for r in rs:
                g(f"v_and_or_b32 v{vOo+4*r+k}, v{vOo+4*r+k}, s{sMk}, v{vPat}")
        for p in range(4):
            pv(2, [2 * p, 2 * p + 1])
            if p >= 2: cv(p - 2, (0, 1))
            pv(3, [2 * p])
            if p >= 2: cv(p - 2, (2, 3))
            pv(3, [2 * p + 1])
            if p >= 2: tg(p - 2)
            if dbpos == 3 and p == 1: stat(0, DL - D2, "l")
        cv(2); tg(2)
        for r in range(4):
            cv(3, [r]); tg(3, [r])
            g(f"s_add_u32 s{sO}, s{sOo}, {4*r*OSTR}")
            g(f"buffer_store_dwordx4 {v(vOo+4*r,4)}, v{vOa}, {WS}, s{sO} offen sc1")
        if dbpos == 4: stat(0, DL - D2, "l")
        g.stamp(7)
        if w1pos == 1:
            if opt.get("w2_wait", 0): g("s_waitcnt vmcnt(0)")
            w2_stream()
            g(f"s_waitcnt vmcnt({4 + (0 if 'w2' in opt.get('skip', '') else 11)})")
        g(f"s_mul_i32 s{sTMP}, s{sW}, 9216")
        g(f"v_add_u32 v{t2}, s{sTMP}, v{vL16}")
        def stage(vsrc, base):
            g(f"v_add_u32 v{t0}, {base}, v{t2}")
            for i in range(9):
                g(f"ds_write_b128 v{t0}, {v(vsrc+4*i,4)} offset:{i*1024}")
            g(f"v_add_u32 v{t0}, {base}, v{vPw}")
            g(f"ds_write_b128 v{t0}, {v(vsrc+36,4)} offset:36864")
            g(f"v_add_u32 v{t0}, {base}, v{vL16}")
            g(f"ds_write_b128 v{t0}, {v(vsrc+40,4)} offset:{36864+4096}")
        stage(vW1, B_W1)
        g("s_waitcnt lgkmcnt(0)")
        g("s_barrier")
        aW1 = 0
        vH = 96
        def w1rd(t):
            g(f"ds_read_b64_tr_b16 {A(aW1+6*t,2)}, v{vT1} offset:{B_W1+t*128}")
            g(f"ds_read_b64_tr_b16 {A(aW1+6*t+2,2)}, v{vT1} offset:{B_W1+16*1152+t*128}")
        def w1mf(t):
            g(f"{MF} {v(vH+4*(t>>2),4)}, {v(vXA+6*(t&3),4)}, {A(aW1+6*t,4)}, {'0' if t & 3 == 0 else v(vH+4*(t>>2),4)}")
        for t in range(9):
            w1rd(t)
            if t >= 4:
                g("s_waitcnt lgkmcnt(8)")
                w1mf(t - 4)
        for t in range(9):
            g(f"ds_read_b64_tr_b16 {A(aW1+6*t+4,2)}, v{vK1} offset:{B_W1+32*1152+t*128}")
            if t < 4:
                g(f"s_waitcnt lgkmcnt({2*(3-t)+t+1})")
                w1mf(t + 5)
        g(f"""
        s_mul_i32 s{sO}, s{sU2}, 9216
        s_lshl_b32 s{sO3}, s{sW}, 8
        s_add_u32 s{sO}, s{sO}, s{sO3}
        s_add_u32 s{sO}, s{sO}, {HH}
        """)
        for t in range(9):
            g(f"s_waitcnt lgkmcnt({8-t})")
            g(f"{MF16} {v(vH+4*(t>>2),4)}, {v(vXA+6*(t&3)+4,2)}, {A(aW1+6*t+4,2)}, {v(vH+4*(t>>2),4)}")
        for y in range(3):
            g(f"v_mov_b32 v{vH+4*y+2}, s{sT}")
            g(f"v_mov_b32 v{vH+4*y+3}, s{sT+1}")
            if y == 2: g("s_mov_b64 exec, 0xffff")
            g(f"buffer_store_dwordx4 {v(vH+4*y,4)}, v{vHs}, {WS}, s{sO} offen sc1")
            if y < 2: g(f"s_addk_i32 s{sO}, 0x1000")
        g("s_mov_b64 exec, -1")
        g.stamp(9)
        g(f"""
        s_lshl_b32 s{sTMP}, s{sU2}, 7
        s_add_u32 s{sTMP}, s{sTMP}, {DH}
        v_lshlrev_b32 v{t3}, 3, v{vL}
        s_cmp_lg_u32 s{sW}, 3
        s_cbranch_scc1 L_B_nodh
        s_mov_b64 exec, 0xffff
        buffer_store_dwordx2 {v(vTag,2)}, v{t3}, {WS}, s{sTMP} offen sc1
        s_mov_b64 exec, -1
        """)
        g.lab("L_B_nodh")
        g("s_waitcnt vmcnt(3)")
        stage(vW2, B_W2)
        g(f"""
        v_lshlrev_b32 v{t2}, 7, v{vN}
        s_lshl_b32 s{sO}, s{sXCD}, 11
        s_add_u32 s{sO}, s{sO}, {DH}
        s_mov_b32 s{sCNT}, 0
        """)
        g.lab("L_B_dhpoll")
        g(f"buffer_load_dwordx2 {v(t0,2)}, v{t2}, {WS}, s{sO} offen sc1")
        spin_guard(g, "L_B_dhgo")
        g("s_waitcnt vmcnt(0)")
        g(f"v_cmp_ne_u64 vcc, s[{sT}:{sT+1}], {v(t0,2)}")
        g("s_cbranch_vccnz L_B_dhpoll")
        g.lab("L_B_dhgo")
        vHr = 80
        g(f"""
        s_mul_i32 s{sO}, s{sXCD}, {16*9216}
        s_mul_i32 s{sO3}, s{sI}, 576
        s_add_u32 s{sO}, s{sO}, s{sO3}
        s_mul_i32 s{sO3}, s{sW}, 144
        s_add_u32 s{sO}, s{sO}, s{sO3}
        s_add_u32 s{sO}, s{sO}, {HH}
        s_add_u32 s{sO2}, s{sO}, {4*9216}
        s_add_u32 s{sO3}, s{sO}, {8*9216}
        s_add_u32 s{sC}, s{sO}, {12*9216}
        s_mov_b32 exec_lo, 0x01ff01ff
        s_mov_b32 exec_hi, 0x01ff01ff
        s_mov_b32 s{sCNT}, 0
        s_and_b32 s{sPat}, s{sT}, 15
        """)
        g.lab("L_B_hpoll")
        for u, so in enumerate((sO, sO2, sO3, sC)):
            g(f"buffer_load_dwordx4 {v(vHr+4*u,4)}, v{vHg}, {WS}, s{so} offen sc1")
        spin_guard(g, "L_B_hdone")
        g("s_waitcnt vmcnt(0)")
        g(f"v_cmp_ne_u64 vcc, s[{sT}:{sT+1}], {v(vHr+2,2)}")
        for u in range(1, 4):
            g(f"v_cmp_ne_u64 s[{sM3}:{sM3+1}], s[{sT}:{sT+1}], {v(vHr+4*u+2,2)}")
            g(f"s_or_b64 vcc, vcc, s[{sM3}:{sM3+1}]")
        g("s_cbranch_scc1 L_B_hpoll")
        g.lab("L_B_hdone")
        g("s_waitcnt vmcnt(0)")
        g.stamp(10)
        c1 = -2.0 * math.log2(math.e) * math.sqrt(2.0 / math.pi)
        g(f"""
        v_pk_add_f32 {v(vHr,2)}, {v(vHr,2)}, {v(vHr+4,2)}
        v_pk_add_f32 {v(vHr+8,2)}, {v(vHr+8,2)}, {v(vHr+12,2)}
        v_pk_add_f32 {v(vHr,2)}, {v(vHr,2)}, {v(vHr+8,2)}
        v_lshlrev_b32 v{vB1}, 16, v{vB1}
        v_mov_b32 v{t1}, {hex(fbits(c1))}
        v_permlane32_swap_b32 v{vHr}, v{vHr+1}
        v_add_f32 v{vHr}, v{vHr}, v{vHr+1}
        v_mov_b32 v{vHr+1}, v{vHr}
        s_mov_b32 s{sC}, {hex(fbits(c1*0.044715))}
        v_permlane16_swap_b32 v{vHr}, v{vHr+1}
        v_add_f32 v{vHr}, v{vHr}, v{vHr+1}
        v_add_f32 v{vHr}, v{vHr}, v{vB1}
        v_mul_f32 v{t0}, v{vHr}, v{vHr}
        v_fma_f32 v{t0}, v{t0}, s{sC}, v{t1}
        v_mul_f32 v{t0}, v{t0}, v{vHr}
        v_exp_f32 v{t0}, v{t0}
        v_add_f32 v{t0}, 1.0, v{t0}
        v_rcp_f32 v{t0}, v{t0}
        v_mul_f32 v{t0}, v{t0}, v{vHr}
        v_cvt_pk_bf16_f32 v{t0}, v{t0}, v{t0}
        ds_write_b16 v{vHw}, v{t0} offset:{B_HL}
        s_mov_b64 exec, -1
        s_waitcnt lgkmcnt(0)
        s_barrier
        """)
        g.stamp(11)
        aW = 0
        vHA = 64
        vY = 96
        g(f"ds_read2_b64 {v(vHA,4)}, v{vHe} offset0:0 offset1:4")
        g(f"ds_read2_b64 {v(vHA+6,4)}, v{vHo} offset0:0 offset1:4")
        def w2reads(t):
            for x in range(2):
                b = aW + (t * 2 + x) * 6
                g(f"ds_read_b64_tr_b16 {A(b,2)}, v{vT21 if x else vT20} offset:{t*256}")
                g(f"ds_read_b64_tr_b16 {A(b+2,2)}, v{vT21 if x else vT20} offset:{16*1152+t*256}")
        def w2rk(t):
            for x in range(2):
                b = aW + (t * 2 + x) * 6
                g(f"ds_read_b64_tr_b16 {A(b+4,2)}, v{vK21 if x else vK20} offset:{t*256}")
        def w2mf(t):
            for x in range(2):
                b = aW + (t * 2 + x) * 6
                g(f"{MF} {v(vY+4*t,4)}, {v(vHA+6*x,4)}, {A(b,4)}, {'0' if x == 0 else v(vY+4*t,4)}")
        def w2mf16(t):
            for x in range(2):
                b = aW + (t * 2 + x) * 6
                g(f"{MF16} {v(vY+4*t,4)}, {v(vHA+6*x+4,2)}, {A(b+4,2)}, {v(vY+4*t,4)}")
        w2reads(0); w2reads(1); w2reads(2)
        g("s_waitcnt lgkmcnt(8)")
        w2mf(0)
        w2reads(3)
        g("s_waitcnt lgkmcnt(8)")
        w2mf(1)
        w2reads(4)
        g("s_waitcnt lgkmcnt(8)")
        w2mf(2)
        g(f"ds_read_b64 {v(vHA+4,2)}, v{vHke}")
        g(f"ds_read_b64 {v(vHA+10,2)}, v{vHko}")
        w2rk(0); w2rk(1)
        g("s_waitcnt lgkmcnt(10)")
        w2mf(3)
        w2rk(2); w2rk(3); w2rk(4)
        g("s_waitcnt lgkmcnt(12)")
        w2mf(4)
        for t in range(5):
            g(f"s_waitcnt lgkmcnt({2*(4-t)})")
            w2mf16(t)
        for t in range(4):
            g(f"v_and_or_b32 v{vHA+t}, v{vY+4*t}, -16, s{sPat}")
        g(f"buffer_store_dwordx4 {v(vHA,4)}, v{vH3}, {WS}, s{sH3m} offen sc1")
        g(f"s_cmp_gt_u32 s{sW}, 1")
        g("s_cbranch_scc1 L_B_no5b")
        g(f"v_and_or_b32 v{vY+16}, v{vY+16}, -16, s{sPat}")
        g(f"buffer_store_dword v{vY+16}, v{vH3x}, {WS}, s{sH3l} offen sc1")
        g.lab("L_B_no5b")
        g.stamp(12)
        dump_stamps(g, 16, 216)
        g("s_endpgm")
        g.lab("L_B_qslow")
        spin_guard(g, "L_B_qok")
        g(f"s_mov_b64 s[{sM1}:{sM1+1}], 0")
        for ks in range(16):
            g(f"v_cmp_eq_u32 vcc, s{sPOI}, v{vQ+4*ks}")
            g(f"s_or_b64 s[{sM1}:{sM1+1}], s[{sM1}:{sM1+1}], vcc")
        g("s_cbranch_scc0 L_B_qok")
        g("s_barrier")
        qdma()
        g("s_waitcnt vmcnt(0)")
        g("s_branch L_B_qbar")

if __name__ == "__main__":
    opt = eval("dict(%s)" % (sys.argv[2] if len(sys.argv) > 2 else ""))
    open(sys.argv[1], "w").write(gen(opt))
```

```python
import sys, os, math, struct
sys.path.insert(0, os.path.dirname(os.path.abspath(__file__)))
from hazard import pad

KNAME = "gated_mix__compressed_kv_cla__dense_activation_gelu__decode_kernel"

WS_BYTES = 256 << 20
EPOCH = 0x0
DP = 0x2000
D1 = 0x8000
D3 = 0x10000
DH = 0x18000
DE = 0x1C000
D2 = 0x20000
DL = 0x28000
DE2 = 0x40000
QB = 0x80000
HB = 0xA0000
H0 = 0xC0000
LOC = 0x100000
H3 = 0x200000
USTR = 16384 + 256
HH = 0x340000
OB = 0x480000
OSTR = 16384 + 256
STAMP = 0x1000000
POISON = 0xFFA5FFA5
K0, K1 = 0x9E3779B9, 0x7F4A7C15
SPIN = 1 << 20

A_WUV = 0
A_QL = 32768
A_ZERO = 33280
A_WT = 33536
A_CTXC = 33792
A_RED = 34816
A_WO = 35840
A_W1 = A_WO + 36864
A_QP = A_WO
B_QF = 0
B_PB = 16384
B_MX = 20480
B_HL = 21504
B_ZERO = 21760
B_PHI = 21888
B_LS = 22528
B_CKV = 23552
B_W2 = B_CKV
LDS_BYTES = 154624

def f16sw(i):
    return (((i & 7) ^ ((i >> 3) << 2)) << 1) | (i >> 3)

def fbits(x):
    return struct.unpack("<I", struct.pack("<f", x))[0]

class G:
    def __init__(self, opt):
        self.l = []
        self.opt = opt
        self.nst = 0
        self.inA = False
    def __call__(self, s):
        for x in s.strip("\n").split("\n"):
            x = x.strip()
            if x: self.l.append("    " + x)
    def lab(self, n): self.l.append(n + ":")
    def c(self, s): self.l.append("    ; " + s)
    def stamp(self, i):
        if self.opt.get("stamps") and not (self.opt.get("fst") and 5 <= i <= 12 and self.inA):
            self(f"s_memrealtime s[{70+2*i}:{71+2*i}]")
    def fstamp(self, i):
        if self.opt.get("stamps") and self.opt.get("fst"):
            self(f"s_memrealtime s[{70+2*i}:{71+2*i}]")

def v(a, n=1): return f"v{a}" if n == 1 else f"v[{a}:{a+n-1}]"
def A(a, n=1): return f"a{a}" if n == 1 else f"a[{a}:{a+n-1}]"
def S(a, n=1): return f"s{a}" if n == 1 else f"s[{a}:{a+n-1}]"

sW = 3
WS, X = "s[4:7]", "s[8:11]"
sT = 40
sXCD, sI = 42, 43
sA, sH, sJ = 44, 45, 46
sHG, sB, sMSG, sU2 = 44, 45, 46, 47
sO, sO2, sO3, sCNT = 48, 49, 50, 51
sM1, sM2, sM3, sM4 = 52, 54, 56, 58
sPR = 60
sG0, sG1 = 61, 62
sTMP = 64
sPC = 66
sPOI = 68
sC = 69

def srd(g, base, slot, nbytes):
    g(f"s_load_dwordx2 s[{base}:{base+1}], s[0:1], {slot*8}")
    g(f"s_mov_b32 s{base+2}, {nbytes}")
    g(f"s_mov_b32 s{base+3}, 0x00020000")

def dump_stamps(g, n, tmpv):
    if not g.opt.get("stamps") or g.opt.get("probe") is not None: return
    g("s_waitcnt lgkmcnt(0)")
    g("s_mov_b64 exec, 1")
    g(f"s_lshl_b32 s{sO}, s2, 2")
    g(f"s_add_u32 s{sO}, s{sO}, s{sW}")
    g(f"s_lshl_b32 s{sO}, s{sO}, 6")
    g(f"s_add_u32 s{sO}, s{sO}, {STAMP}")
    g(f"v_mov_b32 v{tmpv+4}, 0")
    for q in range(0, 16, 4):
        for k in range(4):
            g(f"v_mov_b32 v{tmpv+k}, s{70+2*(q+k)}")
        g(f"buffer_store_dwordx4 {v(tmpv,4)}, v{tmpv+4}, {WS}, s{sO} offen offset:{q*4}")
        g("s_nop 1")
    g("s_waitcnt vmcnt(0)")

def dual_next(g, regs):
    if not g.opt.get("dual", 1): return
    g(f"s_and_b32 s{sTMP}, s{sCNT}, 14")
    g(f"s_cmp_eq_u32 s{sTMP}, 14")
    g(f"s_cselect_b32 s{sTMP}, {LOC}, 0")
    for r in regs:
        g(f"s_xor_b32 s{r}, s{r}, s{sTMP}")

def spin_guard(g, out):
    g(f"s_add_u32 s{sCNT}, s{sCNT}, 1")
    g(f"s_cmp_gt_u32 s{sCNT}, {g.opt.get('spin', SPIN)}")
    g(f"s_cbranch_scc1 {out}")

def selectors(g, vSel, vL, t0, t1, t2):
    g(f"v_and_b32 v{t0}, 1, v{vL}")
    g(f"v_cmp_eq_u32 vcc, 1, v{t0}")
    g(f"v_mov_b32 v{t1}, 0x0c0c0100")
    g(f"v_mov_b32 v{t2}, 0x01000c0c")
    g(f"v_cndmask_b32 v{vSel+3}, v{t1}, v{t2}, vcc")
    g(f"v_mov_b32 v{t1}, 0x0c0c0302")
    g(f"v_mov_b32 v{t2}, 0x03020c0c")
    g(f"v_cndmask_b32 v{vSel+7}, v{t1}, v{t2}, vcc")
    g(f"v_bfe_u32 v{t0}, v{vL}, 1, 2")
    g(f"v_mov_b32 v{t1}, 0x0c0c0c0c")
    for d in range(4):
        g(f"v_cmp_eq_u32 vcc, {d}, v{t0}")
        g(f"v_cndmask_b32 v{vSel+d}, v{t1}, v{vSel+3}, vcc")
        g(f"v_cndmask_b32 v{vSel+4+d}, v{t1}, v{vSel+7}, vcc")

def unit_pattern(g, dst, vL, i_expr_sgpr, i_const, pitch, t0, t1):
    if i_expr_sgpr is not None:
        g(f"v_lshl_add_u32 v{t0}, s{i_expr_sgpr}, 6, v{vL}")
    else:
        g(f"v_add_u32 v{t0}, {64*i_const}, v{vL}")
    g(f"v_mul_u32_u24 v{t1}, 911, v{t0}")
    g(f"v_lshrrev_b32 v{t1}, 16, v{t1}")
    g(f"v_and_b32 v{dst}, 6, v{t1}")
    g(f"v_xor_b32 v{dst}, v{dst}, v{t0}")
    g(f"v_lshlrev_b32 v{dst}, 4, v{dst}")
    if pitch != 1152:
        g(f"v_mul_u32_u24 v{t1}, {pitch-1152}, v{t1}")
        g(f"v_add_u32 v{dst}, v{dst}, v{t1}")
assert all((911 * u) >> 16 == u // 72 for u in range(640))

def h3_addr(g, vH3, vH3x, vL, vN, vG, t0):
    g(f"v_lshrrev_b32 v{t0}, 3, v{vL}")
    g(f"v_mul_u32_u24 v{vH3}, {USTR}, v{t0}")
    g(f"v_and_b32 v{t0}, 7, v{vL}")
    g(f"v_lshl_add_u32 v{vH3}, v{t0}, 4, v{vH3}")
    g(f"v_lshrrev_b32 v{t0}, 5, v{vL}")
    g(f"v_mul_u32_u24 v{vH3x}, {USTR}, v{t0}")
    g(f"v_and_b32 v{t0}, 31, v{vL}")
    g(f"v_lshl_add_u32 v{vH3x}, v{t0}, 2, v{vH3x}")

def h3_soffs(g, s_main, s_left):
    g(f"s_lshl_b32 s{s_left}, s{sPR}, 7")
    g(f"s_add_u32 s{s_left}, s{s_left}, {H3}")
    g(f"s_mul_i32 s{s_main}, s{sW}, {8*USTR}")
    g(f"s_add_u32 s{s_main}, s{s_main}, s{s_left}")
    g(f"s_mul_i32 s{sTMP}, s{sW}, {2*USTR}")
    g(f"s_add_u32 s{s_left}, s{s_left}, s{sTMP}")
    g(f"s_add_u32 s{s_left}, s{s_left}, {32*USTR}")

def tr_pair_bases(g, vB0, vB1, vK0, vK1, vL, base, t0, t1, t2):
    g(f"v_lshrrev_b32 v{t0}, 2, v{vL}")
    g(f"v_bfe_u32 v{t1}, v{vL}, 1, 1")
    g(f"v_lshl_add_u32 v{t1}, s{sW}, 2, v{t1}")
    g(f"v_and_b32 v{t2}, 6, v{t0}")
    g(f"v_xor_b32 v{t2}, v{t2}, v{t1}")
    g(f"v_lshlrev_b32 v{t2}, 4, v{t2}")
    g(f"v_mul_u32_u24 v{vB0}, 1152, v{t0}")
    g(f"v_add_u32 v{vB0}, v{vB0}, v{t2}")
    g(f"v_and_b32 v{t2}, 1, v{vL}")
    g(f"v_lshlrev_b32 v{t2}, 3, v{t2}")
    g(f"v_add_u32 v{vB0}, v{vB0}, v{t2}")
    g(f"v_xor_b32 v{vB1}, 32, v{vB0}")
    if base:
        g(f"v_add_u32 v{vB0}, {base}, v{vB0}")
        g(f"v_add_u32 v{vB1}, {base}, v{vB1}")
    if vK0 is not None:
        g(f"v_and_b32 v{t0}, 3, v{t0}")
        g(f"v_and_b32 v{vK0}, 2, v{t0}")
        g(f"v_xor_b32 v{vK0}, v{vK0}, v{t1}")
        g(f"v_lshlrev_b32 v{vK0}, 4, v{vK0}")
        g(f"v_mul_u32_u24 v{t0}, 1152, v{t0}")
        g(f"v_add3_u32 v{vK0}, v{vK0}, v{t0}, v{t2}")
        g(f"v_xor_b32 v{vK1}, 32, v{vK0}")
        g(f"v_add_u32 v{vK0}, {base + 32*1152}, v{vK0}")
        g(f"v_add_u32 v{vK1}, {base + 32*1152}, v{vK1}")

MF = "v_mfma_f32_16x16x32_bf16"
MF16 = "v_mfma_f32_16x16x16_bf16"

def role_is_A(wg, opt):
    if opt.get("split"):
        import numpy as np
        return np.isin(wg & 7, list(opt["split"]))
    return wg < 128

def gen(opt):
    g = G(opt)
    NT = opt.get("nt", "")
    PFL = opt.get("pf_lines", 4)
    CODE_BYTES = 32 * 128 * PFL
    vL, vN, vG = 1, 2, 3
    g.stamp(0)
    g(f"s_getpc_b64 s[{sPC}:{sPC+1}]")
    g("s_cmp_ge_u32 s2, 256")
    g("s_cbranch_scc1 L_end")
    g(f"""
    s_load_dwordx2 s[4:5], s[0:1], 112
    s_load_dwordx2 s[8:9], s[0:1], 0
    s_load_dwordx2 s[28:29], s[0:1], 8
    s_load_dwordx2 s[12:13], s[0:1], 16
    s_load_dwordx2 s[16:17], s[0:1], 24
    v_lshrrev_b32 v4, 6, v0
    v_and_b32 v{vL}, 63, v0
    s_and_b32 s{sXCD}, s2, 7
    v_readfirstlane_b32 s{sW}, v4
    s_bfe_u32 s{sI}, s2, 0x40003
    v_and_b32 v{vN}, 15, v0
    v_bfe_u32 v{vG}, v0, 4, 2
    s_mov_b32 s6, {WS_BYTES - opt.get('ws_base', 0)}
    s_mov_b32 s7, 0x00020000
    """)
    if opt.get("xprobe") is not None:
        g(f"""
        s_load_dwordx2 s[32:33], s[0:1], 104
        s_mov_b32 s34, 256
        s_mov_b32 s35, 0x00020000
        s_waitcnt lgkmcnt(0)
        v_mov_b32 v6, s70
        s_lshl_b32 s{sO}, s{sXCD}, 2
        v_mov_b32 v7, s{sO}
        s_mov_b64 exec, 1
        buffer_atomic_umax v6, v7, s[32:35], 0 offen sc1
        s_mov_b64 exec, -1
        """)
    if opt.get("split"):
        aset = list(opt["split"]); bset = [x for x in range(8) if x not in aset]
        tab = 0
        for x in range(8):
            tab |= ((aset.index(x)) if x in aset else (8 | bset.index(x))) << (4 * x)
        g(f"""
        s_lshl_b32 s{sXCD}, s{sXCD}, 2
        s_lshr_b32 s{sO}, {hex(tab)}, s{sXCD}
        s_and_b32 s{sXCD}, s{sO}, 3
        s_lshr_b32 s{sO2}, s2, 7
        s_lshl_b32 s{sO2}, s{sO2}, 2
        s_add_u32 s{sXCD}, s{sXCD}, s{sO2}
        s_bitcmp1_b32 s{sO}, 3
        s_cbranch_scc1 L_B
        """)
    else:
        g("s_cmp_ge_u32 s2, 128")
        g("s_cbranch_scc1 L_B")
    a = RoleA(g, NT, vL, vN, vG)
    b = RoleB(g, NT, vL, vN, vG)
    def prefetch(nw, idx_sgpr_expr, tag):
        g(idx_sgpr_expr)
        g(f"s_mul_i32 s{sTMP}, s{sTMP}, {nw*128}")
        g(f"v_lshl_add_u32 v5, v{vL}, 7, s{sTMP}")
        g(f"s_cmp_lg_u32 s{sW}, 3")
        g(f"s_cbranch_scc1 L_nopf{tag}")
        g(f"s_mov_b64 exec, {(1 << nw) - 1}")
        g(f"global_load_dword v{63 if tag == 'B' else 254}, v5, s[{sPC}:{sPC+1}]")
        g("s_mov_b64 exec, -1")
        g.lab(f"L_nopf{tag}")
    if opt.get("split") and opt.get("a_pf_first", 1): prefetch(PFL, f"s_lshr_b32 s{sTMP}, s2, 3", "A")
    a.issue()
    if opt.get("split") and not opt.get("a_pf_first", 1): prefetch(PFL, f"s_lshr_b32 s{sTMP}, s2, 3", "A")
    g("s_branch L_A_rest")
    g.lab("L_B")
    if opt.get("p1a_on") == "B" or opt.get("numa"): pass
    elif opt.get("split"): prefetch(PFL, f"s_lshr_b32 s{sTMP}, s2, 3", "B")
    else: prefetch(2 * PFL, f"s_mov_b32 s{sTMP}, s{sI}", "B")
    b.issue()
    if opt.get("p1a_on") == "B": prefetch(PFL, f"s_lshr_b32 s{sTMP}, s2, 3", "B")
    main = g.l
    g.l = []
    b.rest()
    k = g.l.index(";;SPLIT")
    bhead, btail = g.l[:k], g.l[k+1:]
    g.l = main
    g.lab("L_B_head")
    if opt.get("b_head", 1):
        g.l += bhead
    g("s_branch L_B_rest")
    g.lab("L_A_rest")
    g.inA = True
    a.rest()
    g.inA = False
    g.lab("L_B_rest")
    if not opt.get("b_head", 1):
        g.l += bhead
    g.l += btail
    g.lab("L_end")
    lines, added = pad(g.l)
    body = "\n".join(lines)
    hdr = open(os.path.join(os.path.dirname(os.path.abspath(__file__)), "header.txt")).read()
    return f"""{hdr}; @launch grid=(256,1,1) block=(256,1,1) lds={LDS_BYTES}
.amdgcn_target "amdgcn-amd-amdhsa--gfx950"
.text
.globl {KNAME}
.p2align 8
.type {KNAME},@function
{KNAME}:
{body}
    s_endpgm
L_code_end:
.fill ({CODE_BYTES} + 256 - (L_code_end - {KNAME})) / 4, 4, 0xbf800000
.section .rodata,"a"
.p2align 6
.amdhsa_kernel {KNAME}
  .amdhsa_next_free_vgpr 512
  .amdhsa_next_free_sgpr 102
  .amdhsa_accum_offset 256
  .amdhsa_group_segment_fixed_size 0
  .amdhsa_kernarg_size 120
  .amdhsa_user_sgpr_count 2
  .amdhsa_user_sgpr_kernarg_segment_ptr 1
  .amdhsa_system_sgpr_workgroup_id_x 1
.end_amdhsa_kernel
"""

def srd_tail(g, base, nbytes):
    g(f"s_mov_b32 s{base+2}, {nbytes}")
    g(f"s_mov_b32 s{base+3}, 0x00020000")

def load_tag(g):
    wb = g.opt.get("ws_base", 0)
    if wb:
        g(f"s_add_u32 s4, s4, {wb}")
        g("s_addc_u32 s5, s5, 0")
    g(f"s_load_dwordx2 s[{sT}:{sT+1}], s[4:5], {EPOCH}")

def finish_tag(g):
    g("s_waitcnt lgkmcnt(0)")
    g(f"s_add_u32 s{sT}, s{sT}, {K0}")
    g(f"s_add_u32 s{sT+1}, s{sT+1}, {K1}")

def bell(g, vdata, vzero, s_index, base, wave, tag):
    g(f"s_cmp_lg_u32 s{sW}, {wave}")
    g(f"s_cbranch_scc1 L_nobell_{tag}")
    g(f"s_lshl_b32 s{sTMP}, s{s_index}, 7")
    g(f"s_add_u32 s{sTMP}, s{sTMP}, {base}")
    g("s_mov_b64 exec, 1")
    g(f"buffer_store_dwordx2 {v(vdata,2)}, v{vzero}, {WS}, s{sTMP} offen sc1")
    g("s_mov_b64 exec, -1")
    g.lab(f"L_nobell_{tag}")

def unit_load(g, SRD, vP, ldsbase, s_unit_base, pitch, tag, NT, rows36=True, vdst=None, thr=None, w0extra=True):
    if tag[:2] in g.opt.get("skip", ""): return
    g(f"s_mul_i32 s{sO}, s{sW}, {8*pitch}")
    g(f"s_add_u32 s{sO}, s{sO}, s{s_unit_base}")
    if vdst is None: g(f"s_mul_i32 s{sTMP}, s{sW}, 9216")
    for i in range(9):
        if thr: g(f"s_waitcnt vmcnt({thr-1})")
        if vdst is None:
            g(f"s_add_u32 m0, s{sTMP}, {ldsbase + i*1024}")
            g(f"buffer_load_dwordx4 v{vP+i}, {SRD}, s{sO} offen {NT} lds")
        else:
            g(f"buffer_load_dwordx4 {v(vdst+4*i,4)}, v{vP+i}, {SRD}, s{sO} offen {NT}")
    if not rows36: return
    g(f"s_add_u32 s{sO}, s{s_unit_base}, {32*pitch}")
    if vdst is None:
        g(f"s_lshl_b32 s{sTMP}, s{sW}, 10")
        g(f"s_add_u32 m0, s{sTMP}, {ldsbase + 36864}")
        g(f"buffer_load_dwordx4 v{vP+9}, {SRD}, s{sO} offen {NT} lds")
    else:
        g(f"buffer_load_dwordx4 {v(vdst+36,4)}, v{vP+9}, {SRD}, s{sO} offen {NT}")
    if w0extra:
        g(f"s_cmp_lg_u32 s{sW}, 0")
        g(f"s_cbranch_scc1 L_not{tag}")
    g("s_mov_b32 exec_hi, 0")
    if vdst is None:
        g(f"s_mov_b32 m0, {ldsbase + 36864 + 4096}")
        g(f"buffer_load_dwordx4 v{vP+4}, {SRD}, s{sO} offen {NT} lds")
    else:
        g(f"buffer_load_dwordx4 {v(vdst+40,4)}, v{vP+4}, {SRD}, s{sO} offen {NT}")
    g("s_mov_b64 exec, -1")
    if w0extra: g.lab(f"L_not{tag}")

class RoleA:
    def __init__(self, g, NT, vL, vN, vG):
        self.g, self.NT, self.vL, self.vN, self.vG = g, NT, vL, vN, vG
    vX = 20
    vA_wq, vA_uk = 108, 109
    aWQ, aUK = 0, 36

    def issue(self):
        g, NT, vL, vN, vG = self.g, self.NT, self.vL, self.vN, self.vG
        WQ, WUK = "s[12:15]", "s[16:19]"
        t0, t1 = 4, 5
        vX, vA_wq, vA_uk, aWQ, aUK = self.vX, self.vA_wq, self.vA_uk, self.aWQ, self.aUK
        if g.opt.get("p1a_on") == "B":
            srd_tail(g, 16, 512 * 8192)
            g(f"""
            s_lshr_b32 s{sH}, s{sI}, 2
            s_lshl_b32 s{sH}, s{sH}, 3
            s_add_u32 s{sH}, s{sH}, s{sXCD}
            s_and_b32 s{sJ}, s{sI}, 3
            s_lshl_b32 s{sC}, s{sH}, 8
            v_bfe_u32 v{t0}, v{vL}, 2, 2
            v_lshlrev_b32 v{vA_uk}, 16, v{t0}
            v_lshl_add_u32 v{vA_uk}, v{vG}, 6, v{vA_uk}
            v_and_b32 v{t1}, 3, v{vL}
            v_lshl_add_u32 v{vA_uk}, v{t1}, 4, v{vA_uk}
            s_lshl_b32 s{sO2}, s{sJ}, 2
            s_add_u32 s{sO2}, s{sO2}, s{sW}
            s_lshl_b32 s{sO2}, s{sO2}, 18
            s_add_u32 s{sO2}, s{sO2}, s{sC}
            s_waitcnt lgkmcnt(0)
            """)
            g.fstamp(5)
            self.uk(range(8))
            load_tag(g)
            srd_tail(g, 8, 2304)
            return
        srd_tail(g, 12, 576 * 8192)
        srd_tail(g, 8, 2304)
        g(f"""
        s_lshr_b32 s{sH}, s{sI}, 2
        s_lshl_b32 s{sH}, s{sH}, 3
        s_add_u32 s{sH}, s{sH}, s{sXCD}
        s_and_b32 s{sJ}, s{sI}, 3
        v_mul_u32_u24 v{vA_wq}, {36*8192}, v{vG}
        v_lshl_add_u32 v{vA_wq}, v{vN}, 4, v{vA_wq}
        s_lshl_b32 s{sO2}, s{sJ}, 4
        s_add_u32 s{sO2}, s{sO2}, s{sW}
        s_mul_i32 s{sO2}, s{sO2}, 9
        s_lshl_b32 s{sO3}, s{sO2}, 13
        s_lshl_b32 s{sC}, s{sH}, 8
        s_add_u32 s{sO3}, s{sO3}, s{sC}
        v_bfe_u32 v{t0}, v{vL}, 3, 1
        v_mul_u32_u24 v{t0}, 1152, v{t0}
        v_mad_u32_u24 v{t0}, v{vG}, 64, v{t0}
        v_lshl_add_u32 v{t0}, v{vG}, 3, v{t0}
        s_lshr_b32 s{sO2}, s{sO2}, 1
        s_lshl_b32 s{sO2}, s{sO2}, 2
        s_waitcnt lgkmcnt(0)
        """)
        g.fstamp(5)
        g(f"""
        buffer_load_dwordx4 {v(vX,4)}, v{t0}, {X}, s{sO2} offen
        buffer_load_dword v{vX+4}, v{t0}, {X}, s{sO2} offen offset:16
        """)
        for i in range(9):
            g(f"buffer_load_dwordx4 {A(aWQ+4*i,4)}, v{vA_wq}, {WQ}, s{sO3} offen {NT}")
            if i != 8: g(f"s_addk_i32 s{sO3}, 0x2000")
        load_tag(g)
        srd_tail(g, 16, 512 * 8192)
        g(f"""
        v_bfe_u32 v{t0}, v{vL}, 2, 2
        v_lshlrev_b32 v{vA_uk}, 16, v{t0}
        v_lshl_add_u32 v{vA_uk}, v{vG}, 6, v{vA_uk}
        v_and_b32 v{t1}, 3, v{vL}
        v_lshl_add_u32 v{vA_uk}, v{t1}, 4, v{vA_uk}
        s_lshl_b32 s{sO2}, s{sJ}, 2
        s_add_u32 s{sO2}, s{sO2}, s{sW}
        s_lshl_b32 s{sO2}, s{sO2}, 18
        s_add_u32 s{sO2}, s{sO2}, s{sC}
        """)
        self.uk_split = g.opt.get("uk_early", 2)
        self.uk(range(self.uk_split))

    def uk(self, rows):
        g = self.g
        for r in rows:
            u = 2 * (r & 3) + (r >> 2)
            g(f"buffer_load_dwordx4 {A(self.aUK+4*u,4)}, v{self.vA_uk}, s[16:19], s{sO2} offen {self.NT}")
            g(f"s_addk_i32 s{sO2}, 0x2000")

    def rest(self):
        g, NT, vL, vN, vG = self.g, self.NT, self.vL, self.vN, self.vG
        opt = g.opt
        WUV, WO, W1, B2, GATE, OUT = "s[20:23]", "s[24:27]", "s[12:15]", "s[28:31]", "s[32:35]", "s[36:39]"
        t0, t1, t2, t3 = 4, 5, 6, 7
        vPOI = 8
        vSel = 12
        vX = self.vX
        vF = 160
        vQ = 200
        vR = 56
        vQlo, vQhi = 80, 84
        vAcc = 88
        vGr = 104
        vA_h1, vA_l16 = 110, 47
        vA_qlo, vA_qhi = 112, 113
        vTag = 114
        vQw = 46
        aWQ, aUK = self.aWQ, self.aUK
        sQ = 63
        g.stamp(1)
        selectors(g, vSel, vL, t0, t1, t2)
        g(f"""
        s_lshl_b32 s{sA}, s{sH}, 2
        s_add_u32 s{sA}, s{sA}, s{sJ}
        s_and_b32 s{sO}, s{sW}, 1
        s_lshl_b32 s{sO}, s{sO}, 4
        v_lshlrev_b32 v{vA_l16}, 4, v{vL}
        s_cmp_lg_u32 s{sW}, {0 if opt.get("p1a_on") == "B" else 1}
        s_cbranch_scc1 L_A_e2
        """)
        pB = opt.get("p1a_on") == "B"
        for k in range(4): g(f"v_mov_b32 v{vPOI+k}, {hex(POISON)}")
        g(f"""
        v_lshlrev_b32 v{t0}, 15, v{vG}
        v_lshl_add_u32 v{t0}, v{vN}, 4, v{t0}
        s_lshl_b32 s{sTMP}, s{sA}, 8
        s_add_u32 s{sTMP}, s{sTMP}, {QB}
        s_mov_b32 exec_hi, 0
        buffer_store_dwordx4 {v(vPOI,4)}, v{t0}, {WS}, s{sTMP} offen sc1
        s_mov_b64 exec, -1
        """)
        g.lab("L_A_e2")
        if opt.get("split"):
            g(f"""
            s_cmp_lt_u32 s{sW}, {3 if pB else 2}
            s_cbranch_scc1 L_A_e3
            s_lshl_b32 s{sTMP}, s{sA}, 11
            s_add_u32 s{sTMP}, s{sTMP}, {H0+LOC}
            s_lshl_b32 s{sTMP+1}, s{sA}, 10
            s_add_u32 s{sTMP+1}, s{sTMP+1}, {HB+LOC}
            s_cmp_eq_u32 s{sW}, 2
            s_cselect_b32 s{sTMP}, s{sTMP}, s{sTMP+1}
            v_lshlrev_b32 v{t0}, 7, v{vL}
            s_mov_b64 exec, 0xffff
            buffer_load_dword v255, v{t0}, {WS}, s{sTMP} offen
            s_mov_b64 exec, -1
            """)
            g.lab("L_A_e3")
        if pB:
            finish_tag(g)
            sPk = 54
            g(f"""
            s_lshl_b32 s{sO}, s{sH}, 12
            s_add_u32 s{sO}, s{sO}, {H0}
            s_add_u32 s{sC}, s4, s{sO}
            s_addc_u32 s{sO3}, s5, 0
            """)
            def h0_wt(): pass
        else:
            g.fstamp(6)
            g(f"s_waitcnt vmcnt({9+self.uk_split})")
            g.fstamp(7)
            for k in range(5):
                g(f"v_alignbit_b32 v{vX+k}, v{vX+k+1}, v{vX+k}, s{sO}")
            for i in range(9):
                for d in range(4):
                    g(f"v_perm_b32 v{vF+4*i+d}, v{vX+(i>>1)}, v{vX+(i>>1)}, v{vSel+4*(i&1)+d}")
            g.fstamp(8)
            ukp = opt.get("uk_pos", 0)
            for i in range(9):
                if i == ukp: self.uk(range(self.uk_split, 8))
                g(f"s_waitcnt vmcnt({8-i+(8 if i >= ukp else self.uk_split)})")
                g(f"{MF} {v(vQ+2,4)}, {v(vF+4*i,4)}, {A(aWQ+4*i,4)}, {'0' if i == 0 else v(vQ+2,4)}")
            g.fstamp(10)
            g(f"s_cmp_eq_u32 s{sW}, 0")
            g("s_cbranch_scc1 L_A_w0a")
            g(f"v_lshl_add_u32 v{t0}, s{sW}, 10, v{vA_l16}")
            g(f"ds_write_b128 v{t0}, {v(vQ+2,4)} offset:{A_QP-1024}")
            g(f"s_cmp_lg_u32 s{sW}, 1")
            g("s_cbranch_scc1 L_A_nw1")
            g(f"s_waitcnt vmcnt({8-self.uk_split})")
            g.lab("L_A_nw1")
            g("s_waitcnt lgkmcnt(0)")
            g("s_barrier")
            g(f"s_add_u32 s{sT}, s{sT}, {K0}")
            g(f"s_add_u32 s{sT+1}, s{sT+1}, {K1}")
            g("s_branch L_A_setup")
            g.lab("L_A_w0a")
            finish_tag(g)
            sib = [0, sO, sO3, sC]
            for k in range(1, 4):
                g(f"s_xor_b32 s{sTMP}, s{sA}, {k}")
                g(f"s_lshl_b32 s{sTMP}, s{sTMP}, 11")
                g(f"s_add_u32 s{sib[k]}, s{sTMP}, {H0+LOC}")
            g(f"""
            v_mov_b32 v{vQ}, s{sT}
            v_mov_b32 v{vQ+1}, s{sT+1}
            v_mov_b32 v{vQ+6}, s{sT}
            v_mov_b32 v{vQ+7}, s{sT+1}
            s_lshl_b32 s{sTMP+1}, s{sA}, 11
            s_add_u32 s{sTMP+1}, s{sTMP+1}, {H0+LOC}
            s_barrier
            """)
            for k in range(3):
                g(f"ds_read_b128 {v(vR+4*k,4)}, v{vA_l16} offset:{A_QP+k*1024}")
            g("s_waitcnt lgkmcnt(1)")
            g(f"v_pk_add_f32 {v(vQ+2,2)}, {v(vQ+2,2)}, {v(vR,2)}")
            g(f"v_pk_add_f32 {v(vQ+4,2)}, {v(vQ+4,2)}, {v(vR+2,2)}")
            g("s_waitcnt lgkmcnt(0)")
            g(f"v_pk_add_f32 {v(vR+4,2)}, {v(vR+4,2)}, {v(vR+8,2)}")
            g(f"v_pk_add_f32 {v(vR+6,2)}, {v(vR+6,2)}, {v(vR+10,2)}")
            g(f"v_pk_add_f32 {v(vQ+2,2)}, {v(vQ+2,2)}, {v(vR+4,2)}")
            g(f"v_pk_add_f32 {v(vQ+4,2)}, {v(vQ+4,2)}, {v(vR+6,2)}")
            g(f"buffer_store_dwordx4 {v(vQ,4)}, v{vA_l16}, {WS}, s{sTMP+1} offen")
            g(f"buffer_store_dwordx4 {v(vQ+4,4)}, v{vA_l16}, {WS}, s{sTMP+1} offen offset:1024")
            def h0_wt():
                g(f"s_lshl_b32 s{sTMP+1}, s{sA}, 11")
                g(f"s_add_u32 s{sTMP+1}, s{sTMP+1}, {H0}")
                g(f"buffer_store_dwordx4 {v(vQ,4)}, v{vA_l16}, {WS}, s{sTMP+1} offen sc1")
                g(f"buffer_store_dwordx4 {v(vQ+4,4)}, v{vA_l16}, {WS}, s{sTMP+1} offen offset:1024 sc1")
            g.stamp(2)
        g.lab("L_A_setup")
        srd(g, 20, 4, 512 * 8192)
        srd(g, 24, 5, 4096 * 1152)
        srd(g, 32, 11, 1152)
        srd(g, 36, 12, 2304)
        srd(g, 12, 7, 576 * 9216)
        vBell = 111
        g(f"""
        v_bfe_u32 v{t0}, v{vL}, 2, 2
        v_lshlrev_b32 v{vA_h1}, 15, v{vG}
        v_lshl_add_u32 v{vA_h1}, v{t0}, 4, v{vA_h1}
        s_lshl_b32 s{sQ}, s{sA}, 2
        s_add_u32 s{sQ}, s{sQ}, s{sW}
        s_lshl_b32 s{sQ}, s{sQ}, 6
        s_add_u32 s{sQ}, s{sQ}, {QB}
        v_bfe_u32 v{t0}, v{vL}, 2, 1
        v_lshlrev_b32 v{t0}, 8, v{t0}
        v_lshl_add_u32 v{t0}, v{vG}, 6, v{t0}
        v_and_b32 v{t1}, 3, v{vL}
        v_lshl_add_u32 v{t0}, v{t1}, 4, v{t0}
        v_add_u32 v{t0}, {A_QL}, v{t0}
        v_mov_b32 v{t1}, {A_ZERO}
        v_cmp_gt_u32 vcc, 8, v{vN}
        v_cndmask_b32 v{vA_qlo}, v{t1}, v{t0}, vcc
        v_cndmask_b32 v{vA_qhi}, v{t0}, v{t1}, vcc
        v_and_b32 v{t0}, 1, v{vL}
        v_cmp_eq_u32 s[{sM1}:{sM1+1}], 1, v{t0}
        v_and_b32 v{t0}, 2, v{vL}
        v_cmp_eq_u32 s[{sM2}:{sM2+1}], 2, v{t0}
        v_mov_b32 v{vTag}, s{sT}
        v_mov_b32 v{vTag+1}, s{sT+1}
        v_lshlrev_b32 v{vBell}, 12, v{vL}
        s_lshl_b32 s{sO2}, s{sH}, 5
        s_add_u32 s{sO2}, s{sO2}, s{sJ}
        s_lshl_b32 s{sO2}, s{sO2}, 2
        s_add_u32 s{sO2}, s{sO2}, {D1}
        """)
        if opt.get("q_direct", 0):
            g(f"""
            s_cmp_lg_u32 s{sW}, 2
            s_cbranch_scc1 L_A_nordy
            s_mov_b64 exec, 0xff
            buffer_store_dword v{vTag}, v{vBell}, {WS}, s{sO2} offen sc1
            s_mov_b64 exec, -1
            """)
            g.lab("L_A_nordy")
            g(f"""
            v_bfe_u32 v{t0}, v{vL}, 2, 2
            v_lshlrev_b32 v{vA_h1}, 8, v{vG}
            v_lshl_add_u32 v{vA_h1}, v{t0}, 4, v{vA_h1}
            v_lshl_add_u32 v{vA_h1}, s{sW}, 6, v{vA_h1}
            v_lshlrev_b32 v{vBell}, 15, v{vG}
            v_lshl_add_u32 v{vBell}, v{vN}, 4, v{vBell}
            s_lshl_b32 s{sQ}, s{sA}, 8
            s_add_u32 s{sQ}, s{sQ}, {QB}
            """)
        g(f"""
        v_mov_b32 v{t2}, 0
        v_mov_b32 v{t3}, 0
        ds_write_b64 v{t1}, {v(t2,2)}
        ds_write_b64 v{t1}, {v(t2,2)} offset:8
        v_lshrrev_b32 v{vQw}, 1, v{vG}
        v_lshlrev_b32 v{vQw}, 8, v{vQw}
        v_lshl_add_u32 v{vQw}, v{vN}, 4, v{vQw}
        v_and_b32 v{t1}, 1, v{vG}
        v_lshl_add_u32 v{vQw}, v{t1}, 3, v{vQw}
        """)
        def h0loads():
            if pB:
                for k in range(4):
                    g(f"buffer_load_dwordx4 {v(vR+4*k,4)}, v{vA_l16}, {WS}, s{sO} offen offset:{k*1024} sc1")
                return
            for k in range(1, 4):
                g(f"buffer_load_dwordx4 {v(vR+8*(k-1),4)}, v{vA_l16}, {WS}, s{sib[k]} offen sc1")
                g(f"buffer_load_dwordx4 {v(vR+8*(k-1)+4,4)}, v{vA_l16}, {WS}, s{sib[k]} offen offset:1024 sc1")
        sRho, sBlk, sR0 = 60, 43, 62
        vXr, vS1, vXA, vW1a, vHs, vXa = 116, 140, 152, 144, 145, 146
        aW1 = 80
        if opt.get('w1_on', 'A') == 'A':
            g(f"""
            s_lshl_b32 s{sBlk}, s{sA}, 2
            s_add_u32 s{sBlk}, s{sBlk}, s{sW}
            s_mul_i32 s{sRho}, s{sBlk}, 1821
            s_lshr_b32 s{sRho}, s{sRho}, 16
            s_mul_i32 s{sTMP}, s{sRho}, 36
            s_sub_u32 s{sBlk}, s{sBlk}, s{sTMP}
            s_min_u32 s{sTMP}, s{sRho}, 4
            s_mul_i32 s{sR0}, s{sRho}, 10
            s_add_u32 s{sR0}, s{sR0}, s{sTMP}
            s_lshl_b32 s{sR0}, s{sR0}, 2
            v_bfe_u32 v{t0}, v{vL}, 3, 1
            v_mul_u32_u24 v{vXa}, 1152, v{t0}
            v_mul_u32_u24 v{vW1a}, 9216, v{vG}
            v_lshl_add_u32 v{vW1a}, v{vN}, 4, v{vW1a}
            """)
            assert all((i * 1821) >> 16 == i // 36 for i in range(512))
            g(f"s_lshl_b32 s{sTMP}, s{sR0}, 1")
            for k in range(5):
                g(f"buffer_load_dwordx4 {v(vXr+4*k,4)}, v{vXa}, {X}, s{sTMP} offen offset:{16*k}")
            g(f"buffer_load_dwordx2 {v(vXr+20,2)}, v{vXa}, {X}, s{sTMP} offen offset:80")
        if not pB:
            g(f"s_cmp_lg_u32 s{sW}, 0")
            g("s_cbranch_scc1 L_A_s2")
            h0loads()
            g.lab("L_A_s2")
        vUV0, vUV1 = 20, 21
        vP2 = 22
        g(f"""
        v_lshlrev_b32 v{t0}, 1, v{vG}
        v_xor_b32 v{t0}, v{t0}, v{vN}
        v_lshlrev_b32 v{vUV0}, 17, v{vG}
        v_lshl_add_u32 v{vUV0}, v{t0}, 4, v{vUV0}
        v_xor_b32 v{vUV1}, 128, v{vUV0}
        """)
        uve = opt.get("uv_early", 0)
        nuv = 8 if "uv" not in opt.get("skip", "") else 0
        def uv_stream():
            sa, sb = 47, 59
            g(f"""
            s_lshl_b32 s{sa}, s{sJ}, 5
            s_add_u32 s{sa}, s{sa}, s{sW}
            s_lshl_b32 s{sa}, s{sa}, 15
            s_lshl_b32 s{sb}, s{sH}, 8
            s_add_u32 s{sa}, s{sa}, s{sb}
            s_lshl_b32 s{sb}, s{sW}, 13
            """)
            for z in range(nuv):
                hi, gg = z >> 2, z & 3
                if opt.get("uv_thr") and not uve: g(f"s_waitcnt vmcnt({opt['uv_thr']-1})")
                g(f"s_add_u32 m0, s{sb}, {A_WUV + z*1024}")
                g(f"s_add_u32 s{sTMP}, s{sa}, {(64*hi+gg)*8192}")
                g(f"buffer_load_dwordx4 v{vUV1 if z & 1 else vUV0}, {WUV}, s{sTMP} offen {NT} lds")
        if uve == 1:
            g("s_waitcnt lgkmcnt(0)")
            uv_stream()
        for i in range(9):
            unit_pattern(g, vP2 + i, vL, None, i, 1152, t0, t1)
        if opt.get('w1_on', 'A') == 'A':
            g(f"""
            v_lshrrev_b32 v{t0}, 5, v{vL}
            v_mul_u32_u24 v{vHs}, 18432, v{t0}
            v_and_b32 v{t0}, 31, v{vL}
            v_lshl_add_u32 v{vHs}, v{t0}, 4, v{vHs}
            v_mul_u32_u24 v{t0}, 0x0202, v{vG}
            v_add_u32 v{t0}, 0x0100, v{t0}
            v_and_b32 v{t1}, 1, v{vL}
            v_lshlrev_b32 v{t1}, 4, v{t1}
            v_lshlrev_b32 v{t0}, v{t1}, v{t0}
            v_mov_b32 v{t2}, 0x0c0c0000
            v_lshrrev_b32 v{t2}, v{t1}, v{t2}
            v_or_b32 v{t0}, v{t0}, v{t2}
            v_bfe_u32 v{t1}, v{vL}, 1, 2
            v_mov_b32 v{t2}, 0x0c0c0c0c
            """)
            for d in range(4):
                g(f"v_cmp_eq_u32 vcc, {d}, v{t1}")
                g(f"v_cndmask_b32 v{vS1+d}, v{t2}, v{t0}, vcc")
        if uve == 2:
            g("s_waitcnt lgkmcnt(0)")
            uv_stream()
        g(f"s_mov_b32 s{sCNT}, 0")
        g(f"s_cmp_lg_u32 s{sW}, 0")
        g("s_cbranch_scc1 L_A_h0wait")
        if pB:
            g(f"""
            s_mov_b32 s{sTMP}, s{sC}
            s_mov_b32 s{sTMP+1}, s{sO3}
            s_and_b32 s{sC}, s{sT}, 15
            """)
            g.lab("L_A_peek")
            for k in range(4):
                g(f"s_load_dword s{16+k}, s[{sTMP}:{sTMP+1}], {k*1024+opt.get('peek_off', 1020)} glc")
            spin_guard(g, "L_A_peek2")
            g("s_waitcnt lgkmcnt(0)")
            for k in range(4):
                g(f"s_xor_b32 s{16+k}, s{16+k}, s{sC}")
            g("s_or_b64 s[16:17], s[16:17], s[18:19]")
            g("s_or_b32 s16, s16, s17")
            g("s_and_b32 s16, s16, 15")
            g("s_cbranch_scc1 L_A_peek")
            g.lab("L_A_peek2")
            g.stamp(2)
            g.lab("L_A_h0get")
            h0loads()
            g("s_waitcnt vmcnt(0)")
        else:
            g(f"s_waitcnt vmcnt({nuv if uve else 0})")
        g.lab("L_A_h0chk")
        if opt.get("fst"):
            g(f"s_cmp_lg_u32 s{sCNT}, 0")
            g("s_cbranch_scc1 L_A_fs11")
            g.fstamp(11)
            g.lab("L_A_fs11")
        if pB:
            for k in range(16):
                g(f"v_xor_b32 v{vR+k}, s{sC}, v{vR+k}")
            g(f"v_or3_b32 v{t0}, v{vR}, v{vR+1}, v{vR+2}")
            g(f"v_or3_b32 v{t1}, v{vR+3}, v{vR+4}, v{vR+5}")
            for k in range(6, 14, 4):
                g(f"v_or3_b32 v{t0}, v{t0}, v{vR+k}, v{vR+k+1}")
                g(f"v_or3_b32 v{t1}, v{t1}, v{vR+k+2}, v{vR+k+3}")
            g(f"v_or3_b32 v{t0}, v{t0}, v{vR+14}, v{vR+15}")
            g(f"v_bitop3_b32 v{t0}, v{t0}, v{t1}, 15 bitop3:0xa8")
            g(f"v_cmp_ne_u32 vcc, 0, v{t0}")
            g("s_cbranch_vccnz L_A_h0poll")
        else:
            for k in range(3):
                g(f"v_cmp_ne_u64 vcc, s[{sT}:{sT+1}], {v(vR+8*k,2)}")
                g(f"v_cmp_ne_u64 s[{sM3}:{sM3+1}], s[{sT}:{sT+1}], {v(vR+8*k+6,2)}")
                if k == 0: g(f"s_or_b64 s[{sM4}:{sM4+1}], vcc, s[{sM3}:{sM3+1}]")
                else:
                    g(f"s_or_b64 s[{sM4}:{sM4+1}], s[{sM4}:{sM4+1}], vcc")
                    g(f"s_or_b64 s[{sM4}:{sM4+1}], s[{sM4}:{sM4+1}], s[{sM3}:{sM3+1}]")
            g("s_cbranch_scc1 L_A_h0poll")
        g.lab("L_A_h0done")
        def d1bell(tag):
            g("s_mov_b64 exec, 0xff")
            g(f"buffer_store_dword v{vTag}, v{vBell}, {WS}, s{sO2} offen sc1")
            g("s_mov_b64 exec, -1")
        qd = opt.get("q_direct", 0)
        d1p = opt.get("d1_pos", 0) if not qd else -1
        if d1p == 0: d1bell("")
        if pB:
            g(f"v_pk_add_f32 {v(vR,2)}, {v(vR,2)}, {v(vR+4,2)}")
            g(f"v_pk_add_f32 {v(vR+2,2)}, {v(vR+2,2)}, {v(vR+6,2)}")
            g(f"v_pk_add_f32 {v(vR+8,2)}, {v(vR+8,2)}, {v(vR+12,2)}")
            g(f"v_pk_add_f32 {v(vR+10,2)}, {v(vR+10,2)}, {v(vR+14,2)}")
            g(f"v_pk_add_f32 {v(vR,2)}, {v(vR,2)}, {v(vR+8,2)}")
            g(f"v_pk_add_f32 {v(vR+2,2)}, {v(vR+2,2)}, {v(vR+10,2)}")
            g(f"v_cvt_pk_bf16_f32 v{vR}, v{vR}, v{vR+1}")
            g(f"v_cvt_pk_bf16_f32 v{vR+1}, v{vR+2}, v{vR+3}")
        else:
            g(f"v_pk_add_f32 {v(vR+2,2)}, {v(vQ+2,2)}, {v(vR+2,2)}")
            g(f"v_pk_add_f32 {v(vR+4,2)}, {v(vQ+4,2)}, {v(vR+4,2)}")
            g(f"v_pk_add_f32 {v(vR+10,2)}, {v(vR+10,2)}, {v(vR+18,2)}")
            g(f"v_pk_add_f32 {v(vR+12,2)}, {v(vR+12,2)}, {v(vR+20,2)}")
            g(f"v_pk_add_f32 {v(vR+2,2)}, {v(vR+2,2)}, {v(vR+10,2)}")
            g(f"v_pk_add_f32 {v(vR+4,2)}, {v(vR+4,2)}, {v(vR+12,2)}")
            g(f"v_cvt_pk_bf16_f32 v{vR}, v{vR+2}, v{vR+3}")
            g(f"v_cvt_pk_bf16_f32 v{vR+1}, v{vR+4}, v{vR+5}")
        g(f"ds_write_b64 v{vQw}, {v(vR,2)} offset:{A_QL}")
        g("s_waitcnt lgkmcnt(0)")
        g("s_barrier")
        g(f"ds_read_b128 {v(vQlo,4)}, v{vA_qlo}")
        g(f"ds_read_b128 {v(vQhi,4)}, v{vA_qhi}")
        if d1p == 1: d1bell("")
        g("s_branch L_A_p1b")
        g.lab("L_A_h0wait")
        g(f"s_waitcnt vmcnt({nuv if uve else 0}) lgkmcnt(0)")
        g.fstamp(12)
        g("s_barrier")
        g(f"ds_read_b128 {v(vQlo,4)}, v{vA_qlo}")
        g(f"ds_read_b128 {v(vQhi,4)}, v{vA_qhi}")
        g.lab("L_A_p1b")
        g.stamp(3)
        g("s_waitcnt lgkmcnt(0)")
        for t in range(4):
            g(f"{MF} {v(vAcc+4*t,4)}, {v(vQlo,4)}, {A(aUK+8*t,4)}, 0")
        for t in range(4):
            g(f"{MF} {v(vAcc+4*t,4)}, {v(vQhi,4)}, {A(aUK+8*t+4,4)}, {v(vAcc+4*t,4)}")
        if d1p == 2:
            g(f"s_cmp_lg_u32 s{sW}, 0")
            g("s_cbranch_scc1 L_A_nod1")
            d1bell("")
            g.lab("L_A_nod1")
        for t in range(4):
            a0 = vAcc + 4 * t
            g(f"v_cndmask_b32 v{a0}, v{a0}, v{a0+1}, s[{sM1}:{sM1+1}]")
            g(f"v_cndmask_b32 v{a0+2}, v{a0+2}, v{a0+3}, s[{sM1}:{sM1+1}]")
            g(f"v_cndmask_b32 v{a0}, v{a0}, v{a0+2}, s[{sM2}:{sM2+1}]")
        for t in range(4):
            a0 = vAcc + 4 * t
            g(f"v_add_f32_dpp v{a0+1}, v{a0}, v{a0} quad_perm:[1,0,3,2] row_mask:0xf bank_mask:0xf")
        for t in range(4):
            a0 = vAcc + 4 * t
            g(f"v_add_f32_dpp v{a0}, v{a0+1}, v{a0+1} quad_perm:[2,3,0,1] row_mask:0xf bank_mask:0xf")
        g(f"v_cvt_pk_bf16_f32 v{vGr}, v{vAcc}, v{vAcc+4}")
        g(f"v_cvt_pk_bf16_f32 v{vGr+1}, v{vAcc+8}, v{vAcc+12}")
        g(f"v_permlane32_swap_b32 v{vGr}, v{vGr+2}")
        g(f"v_permlane32_swap_b32 v{vGr+1}, v{vGr+3}")
        if qd:
            g(f"""
            s_mov_b64 exec, 0x11111111
            ds_write_b128 v{vA_h1}, {v(vGr,4)} offset:{A_CTXC}
            s_mov_b64 exec, -1
            s_waitcnt lgkmcnt(0)
            s_barrier
            s_cmp_lg_u32 s{sW}, 3
            s_cbranch_scc1 L_A_noq
            s_mov_b32 exec_hi, 0
            ds_read_b128 {v(vGr,4)}, v{vA_l16} offset:{A_CTXC}
            s_waitcnt lgkmcnt(0)
            buffer_store_dwordx4 {v(vGr,4)}, v{vBell}, {WS}, s{sQ} offen sc1
            s_mov_b64 exec, -1
            """)
            g.lab("L_A_noq")
        else:
            g(f"""
            s_mov_b64 exec, 0x11111111
            buffer_store_dwordx4 {v(vGr,4)}, v{vA_h1}, {WS}, s{sQ} offen sc1
            s_mov_b64 exec, -1
            """)
        if d1p == 3:
            g(f"s_cmp_lg_u32 s{sW}, 0")
            g("s_cbranch_scc1 L_A_nod1")
            d1bell("")
            g.lab("L_A_nod1")
        g.stamp(4)
        if opt.get("a_wait", 0): g("s_waitcnt vmcnt(0)")
        if opt.get("a_gate"):
            sD = [16, 52, 56, 28]
            g(f"""
            s_lshl_b32 s{sTMP}, s{sXCD}, 3
            s_lshr_b32 s{sTMP+1}, s{sH}, 4
            s_lshl_b32 s{sTMP+1}, s{sTMP+1}, 2
            s_add_u32 s{sTMP}, s{sTMP}, s{sTMP+1}
            s_add_u32 s{sTMP}, s{sTMP}, s{sW}
            s_lshl_b32 s{sTMP}, s{sTMP}, 9
            s_add_u32 s{sTMP}, s{sTMP}, {D1}
            s_add_u32 s{sTMP}, s4, s{sTMP}
            s_addc_u32 s{sTMP+1}, s5, 0
            s_mov_b32 s{sPC}, s{sT}
            s_mov_b32 s{sPC+1}, s{sT}
            s_mov_b32 s{sCNT}, 0
            """)
            g.lab("L_A_gate")
            for k in range(4):
                g(f"s_load_dwordx4 s[{sD[k]}:{sD[k]+3}], s[{sTMP}:{sTMP+1}], {k*128} glc")
            spin_guard(g, "L_A_gate2")
            g("s_waitcnt lgkmcnt(0)")
            for k in range(4):
                g(f"s_xor_b64 s[{sD[k]}:{sD[k]+1}], s[{sD[k]}:{sD[k]+1}], s[{sPC}:{sPC+1}]")
                g(f"s_xor_b64 s[{sD[k]+2}:{sD[k]+3}], s[{sD[k]+2}:{sD[k]+3}], s[{sPC}:{sPC+1}]")
                g(f"s_or_b64 s[{sD[k]}:{sD[k]+1}], s[{sD[k]}:{sD[k]+1}], s[{sD[k]+2}:{sD[k]+3}]")
            g("s_or_b64 s[16:17], s[16:17], s[52:53]")
            g("s_or_b64 s[56:57], s[56:57], s[28:29]")
            g("s_or_b64 s[16:17], s[16:17], s[56:57]")
            g("s_cbranch_scc1 L_A_gate")
            g.lab("L_A_gate2")
            g("s_waitcnt lgkmcnt(0)")
            if opt["a_gate"] == 2: g("s_barrier")
            g(f"v_and_b32 v{t0}, 2, v{vL}")
            g(f"v_cmp_eq_u32 s[{sM2}:{sM2+1}], 2, v{t0}")
        if opt.get("a_sleep"): g(f"s_sleep {opt['a_sleep']}")
        srd(g, 28, 10, 1152)
        def w1_frags():
            for i in range(11):
                for d in range(4):
                    g(f"v_perm_b32 v{vXA+4*i+d}, v{vXr+2*i+1}, v{vXr+2*i}, v{vS1+d}")
        w1a = opt.get("w1_on", "A") == "A"
        nw1 = 0 if ("w1" in opt.get("skip", "") or not w1a) else 11
        if w1a:
            g(f"s_mul_i32 s{sO2}, s{sR0}, 9216")
            g(f"s_lshl_b32 s{sO3}, s{sBlk}, 8")
            g(f"s_add_u32 s{sO2}, s{sO2}, s{sO3}")
        for i in range(nw1):
            if opt.get("w1_thr") and i >= opt["w1_thr"]: g(f"s_waitcnt vmcnt({opt['w1_thr']-1})")
            g(f"buffer_load_dwordx4 {A(aW1+4*i,4)}, v{vW1a}, {W1}, s{sO2} offen {NT}")
            if i == (opt.get("w1_thr") or 11) - 1: w1_frags()
            if i < 10: g(f"s_add_u32 s{sO2}, s{sO2}, {4*9216}")
            if i == 9:
                g(f"s_cmp_ge_u32 s{sRho}, 4")
                g(f"s_cselect_b32 s{sO2}, {576*9216}, s{sO2}")
        if not uve: uv_stream()
        def w1_gemv(younger):
            if not w1a: return
            vH = 148
            g(f"s_waitcnt vmcnt({younger})")
            for i in range(10):
                g(f"{MF} {v(vH,4)}, {v(vXA+4*i,4)}, {A(aW1+4*i,4)}, {'0' if i == 0 else v(vH,4)}")
            g(f"s_cmp_ge_u32 s{sRho}, 4")
            g("s_cbranch_scc1 L_A_w1s")
            g(f"{MF} {v(vH,4)}, {v(vXA+40,4)}, {A(aW1+40,4)}, {v(vH,4)}")
            g.lab("L_A_w1s")
            g(f"""
            s_mul_i32 s{sO}, s{sRho}, 36864
            s_lshl_b32 s{sO3}, s{sBlk}, 9
            s_add_u32 s{sO}, s{sO}, s{sO3}
            s_add_u32 s{sO}, s{sO}, {HH}
            s_and_b32 s{sO3}, s{sT}, 15
            """)
            for r in range(4):
                g(f"v_and_or_b32 v{vH+r}, v{vH+r}, -16, s{sO3}")
            g(f"buffer_store_dwordx4 {v(vH,4)}, v{vHs}, {WS}, s{sO} offen sc1")
        if not opt.get("w1_late"): w1_gemv(0 if uve else nuv)
        wol = opt.get("wo_late", 0)
        if not wol:
            g(f"s_mul_i32 s{sO2}, s{sA}, {32*1152}")
            unit_load(g, WO, vP2, A_WO, sO2, 1152, "wo", NT, rows36=False, thr=opt.get("a_thr"))
        if opt.get("w1_late") == 1: w1_gemv(9)
        g.stamp(14)
        vGx, vGw, vB2 = 48, 60, 72
        vOA, vFB = 73, 74
        g(f"v_mov_b32 v{vOA}, 0")
        g("s_waitcnt lgkmcnt(0)")
        g(f"s_cmp_lg_u32 s{sW}, 0")
        g("s_cbranch_scc1 L_A_nogate")
        h0_wt()
        g(f"""
        s_cmp_ge_u32 s{sA}, 36
        s_cbranch_scc1 L_A_nogate
        v_and_b32 v{t0}, 31, v{vL}
        v_mul_u32_u24 v{t1}, 36, v{t0}
        v_lshrrev_b32 v{t2}, 5, v{vL}
        v_mul_u32_u24 v{t2}, 1152, v{t2}
        v_add_u32 v{t2}, v{t2}, v{t1}
        buffer_load_dwordx4 {v(vGx,4)}, v{t2}, {X}, 0 offen
        buffer_load_dwordx4 {v(vGx+4,4)}, v{t2}, {X}, 0 offen offset:16
        buffer_load_dword v{vGx+8}, v{t2}, {X}, 0 offen offset:32
        buffer_load_dwordx4 {v(vGw,4)}, v{t1}, {GATE}, 0 offen
        buffer_load_dwordx4 {v(vGw+4,4)}, v{t1}, {GATE}, 0 offen offset:16
        buffer_load_dword v{vGw+8}, v{t1}, {GATE}, 0 offen offset:32
        s_cmp_ge_u32 s{sA}, 32
        s_cbranch_scc1 L_A_uleft
        s_lshr_b32 s{sO}, s{sA}, 2
        s_lshl_b32 s{sO}, s{sO}, 4
        s_and_b32 s{sO3}, s{sA}, 1
        s_lshl_b32 s{sO3}, s{sO3}, 3
        s_add_u32 s{sO}, s{sO}, s{sO3}
        v_and_b32 v{t1}, 3, v{t0}
        v_lshlrev_b32 v{t1}, 7, v{t1}
        v_lshrrev_b32 v{t2}, 2, v{t0}
        v_add3_u32 v{t1}, v{t1}, v{t2}, s{sO}
        s_bfe_u32 s{sO3}, s{sA}, 0x10001
        v_mov_b32 v{vFB}, s{sO3}
        s_branch L_A_ujoin
        """)
        g.lab("L_A_uleft")
        g(f"""
        s_lshl_b32 s{sO}, s{sA}, 4
        v_and_b32 v{t1}, 15, v{t0}
        v_add_u32 v{t1}, s{sO}, v{t1}
        v_lshrrev_b32 v{vFB}, 4, v{t0}
        """)
        g.lab("L_A_ujoin")
        g(f"""
        v_lshlrev_b32 v{t1}, 1, v{t1}
        buffer_load_ushort v{vB2}, v{t1}, {B2}, 0 offen
        v_mul_u32_u24 v{vOA}, 1152, v{vFB}
        v_add_u32 v{vOA}, v{vOA}, v{t1}
        """)
        g.lab("L_A_nogate")
        vH3, vH3x = 32, 33
        vHBs = 39
        sH3m, sH3l, sHB, sHH = 63, 47, 61, 62
        vTU0, vTU1, vTO0, vTO1 = 34, 35, 36, 37
        vCX, vCW, vHBl, vD2, vOg, vWTw, vWTr = 38, 46, 40, 41, 42, 43, 44
        vT1, vK1 = 75, 57
        def later_addresses():
            g(f"""
            s_mul_i32 s{sH3l}, s{sA}, {OSTR}
            s_add_u32 s{sH3l}, s{sH3l}, {OB}
            s_lshl_b32 s{sTMP}, s{sW}, 10
            s_add_u32 s{sH3m}, s{sH3l}, s{sTMP}
            s_lshl_b32 s{sTMP}, s{sW}, 8
            s_add_u32 s{sH3l}, s{sH3l}, s{sTMP}
            s_add_u32 s{sH3l}, s{sH3l}, 4096
            v_lshlrev_b32 v{vH3x}, 2, v{vL}
            """)
            g(f"""
            v_lshlrev_b32 v{vHBs}, 7, v{vG}
            v_and_b32 v{t0}, 1, v{vL}
            v_lshl_add_u32 v{vHBs}, v{t0}, 6, v{vHBs}
            v_bfe_u32 v{t0}, v{vL}, 1, 1
            v_lshl_add_u32 v{vHBs}, v{t0}, 9, v{vHBs}
            s_lshl_b32 s{sHB}, s{sH}, 2
            s_add_u32 s{sHB}, s{sHB}, s{sW}
            s_lshl_b32 s{sHB}, s{sHB}, 6
            s_add_u32 s{sHB}, s{sHB}, s{sJ}
            s_lshl_b32 s{sHB}, s{sHB}, 4
            s_add_u32 s{sHB}, s{sHB}, {HB}
            v_lshrrev_b32 v{t0}, 2, v{vL}
            v_bfe_u32 v{t1}, v{vL}, 1, 1
            v_lshl_add_u32 v{t1}, s{sW}, 2, v{t1}
            v_and_b32 v{t2}, 7, v{t0}
            v_lshlrev_b32 v{t2}, 1, v{t2}
            v_xor_b32 v{t1}, v{t1}, v{t2}
            v_lshlrev_b32 v{vTU0}, 8, v{t0}
            v_lshl_add_u32 v{vTU0}, v{t1}, 4, v{vTU0}
            v_and_b32 v{t1}, 1, v{vL}
            v_lshl_add_u32 v{vTU0}, v{t1}, 3, v{vTU0}
            v_xor_b32 v{vTU1}, 32, v{vTU0}
            """)
            assert A_WUV == 0
            tr_pair_bases(g, vTO0, vTO1, None, None, vL, A_WO, t0, t1, t2)
            g(f"""
            v_and_b32 v{t0}, 1, v{vL}
            v_lshlrev_b32 v{vCX}, 9, v{t0}
            v_bfe_u32 v{t0}, v{vL}, 1, 1
            v_lshl_add_u32 v{vCX}, v{t0}, 8, v{vCX}
            v_lshl_add_u32 v{vCX}, v{vG}, 4, v{vCX}
            v_and_b32 v{t0}, 1, v{vG}
            v_lshlrev_b32 v{vCW}, 3, v{t0}
            v_lshl_add_u32 v{vCW}, v{vN}, 4, v{vCW}
            v_lshl_add_u32 v{vCW}, s{sW}, 8, v{vCW}
            v_and_b32 v{t0}, 7, v{vL}
            v_lshlrev_b32 v{vHBl}, 4, v{t0}
            v_lshl_add_u32 v{vHBl}, v{vG}, 7, v{vHBl}
            v_and_b32 v{t0}, 31, v{vL}
            v_lshlrev_b32 v{vD2}, 8, v{t0}
            v_lshlrev_b32 v{vOg}, 10, v{vG}
            v_lshl_add_u32 v{vOg}, v{vN}, 4, v{vOg}
            v_lshlrev_b32 v{vWTw}, 1, v{t0}
            v_lshl_add_u32 v{vWTw}, s{sW}, 6, v{vWTw}
            s_and_b32 s{sTMP}, s{sW}, 1
            s_lshl_b32 s{sTMP}, s{sTMP}, 5
            s_lshl_b32 s{sTMP+1}, s{sW}, 6
            s_add_u32 s{sTMP}, s{sTMP}, s{sTMP+1}
            v_lshl_add_u32 v{vWTr}, v{vG}, 3, s{sTMP}
            v_cmp_gt_u32 s[{sM1}:{sM1+1}], 8, v{vN}
            """)
        later_addresses()
        g("s_waitcnt vmcnt(0)")
        g("s_barrier")
        g.stamp(5)
        aUV, aWO = 0, 32
        vDB = 88
        vDL = 92
        vO = 96
        vFr = 116
        vWt = 132
        vD = 136
        vLs, vWr, vEr = 140, 141, 142
        g(f"""
        s_lshr_b32 s{sO}, s{sH}, 4
        s_lshl_b32 s{sO}, s{sO}, 1
        s_lshr_b32 s{sO3}, s{sW}, 1
        s_add_u32 s{sO}, s{sO}, s{sO3}
        s_lshl_b32 s{sO}, s{sO}, 13
        s_and_b32 s{sO3}, s{sH}, 15
        s_lshl_b32 s{sO3}, s{sO3}, 4
        s_add_u32 s{sO}, s{sO}, s{sO3}
        s_add_u32 s{sO2}, s{sO}, {DL}
        s_add_u32 s{sO}, s{sO}, {D2}
        """)
        epos = opt.get("e_pos")
        if epos is None: g(f"buffer_load_dwordx4 {v(vDB,4)}, v{vD2}, {WS}, s{sO} offen sc1")
        if opt.get("w1_late") == 2:
            g(f"s_mov_b32 s{sC}, s{sO}")
            w1_gemv(1)
            g(f"s_mov_b32 s{sO}, s{sC}")
        for tau in range(2):
            for ks in range(4):
                for hi in range(2):
                    g(f"ds_read_b64_tr_b16 {A(aUV+(tau*4+ks)*4+2*hi,2)}, v{vTU1 if tau else vTU0} offset:{ks*8192+hi*4096}")
        def wo_frags():
            for t in range(5):
                for x in range(2):
                    for hi in range(2):
                        g(f"ds_read_b64_tr_b16 {A(aWO+(t*2+x)*4+2*hi,2)}, v{vTO1 if x else vTO0} offset:{hi*16*1152+t*256}")
        if not wol: wo_frags()
        sBP = 34
        sHI, sTT = sPOI, sPC
        sX, sP4 = 32, 33
        g(f"""
        s_and_b32 s{sTMP}, s{sW}, 1
        s_lshl_b32 s{sTMP}, s{sTMP}, 12
        s_add_u32 s{sTMP}, s{sTMP}, s{sO2}
        s_add_u32 s{sBP}, s4, s{sTMP}
        s_addc_u32 s{sBP+1}, s5, 0
        s_mul_i32 s{sO3}, s{sA}, {OSTR}
        s_lshl_b32 s{sTMP}, s{sW}, 12
        s_add_u32 s{sO3}, s{sO3}, s{sTMP}
        s_add_u32 s{sO3}, s{sO3}, {OB}
        s_bitcmp1_b32 s{sT}, 0
        s_cselect_b32 s{sX}, 0x10001, 0
        s_mov_b32 s{sHI}, 0x10000
        s_mov_b32 s{sTT}, s{sT}
        s_mov_b32 s{sTT+1}, s{sT}
        """)
        g(f"v_mov_b32 v{t0}, 0")
        for k in range(9):
            g(f"v_dot2_f32_bf16 v{t0}, v{vGx+k}, v{vGw+k}, v{t0}")
        g("s_nop 2")
        for r in (8, 4, 2, 1):
            g(f"v_add_f32_dpp v{t0}, v{t0}, v{t0} row_ror:{r} row_mask:0xf bank_mask:0xf")
        g(f"""
        v_mov_b32 v{t1}, v{t0}
        v_permlane16_swap_b32 v{t0}, v{t1}
        v_add_f32 v{t0}, v{t0}, v{t1}
        v_mul_f32 v{t0}, {hex(fbits(-math.log2(math.e)))}, v{t0}
        v_exp_f32 v{t0}, v{t0}
        v_add_f32 v{t0}, 1.0, v{t0}
        v_rcp_f32 v{t0}, v{t0}
        v_cmp_eq_u32 vcc, 1, v{vFB}
        v_mov_b32 v{t1}, v{t0}
        v_permlane32_swap_b32 v{t0}, v{t1}
        v_cndmask_b32 v{vFB}, v{t0}, v{t1}, vcc
        v_lshlrev_b32 v{vB2}, 16, v{vB2}
        s_mov_b32 s{sCNT}, 0
        """)
        if epos is None:
            g(f"s_waitcnt vmcnt({1 if opt.get('w1_late') == 2 else 0})")
            g("s_branch L_A_d2chk")
        else:
            g(f"""
            s_lshr_b32 s{sTMP}, s{sH}, 4
            s_lshl_b32 s{sTMP}, s{sTMP}, 2
            s_add_u32 s{sTMP}, s{sTMP}, s{sW}
            s_lshl_b32 s{sTMP}, s{sTMP}, 11
            s_mul_i32 s{sTMP+1}, s{sXCD}, {16384 if opt.get("e_rep") else 0}
            s_add_u32 s{sTMP}, s{sTMP}, s{sTMP+1}
            s_add_u32 s{sTMP}, s{sTMP}, {DE2 if opt.get("e_rep") else DE}
            v_lshrrev_b32 v{t2}, 1, v{vD2}
            s_mov_b64 exec, 0xffff
            """)
            g.lab("L_A_epoll")
            g(f"buffer_load_dwordx2 {v(t0,2)}, v{t2}, {WS}, s{sTMP} offen offset:8 sc1")
            spin_guard(g, "L_A_edone")
            g("s_waitcnt vmcnt(0)")
            g(f"v_cmp_ne_u64 vcc, s[{sT}:{sT+1}], {v(t0,2)}")
            g("s_mov_b64 exec, vcc")
            g("s_cbranch_vccnz L_A_epoll")
            g.lab("L_A_edone")
            g("s_mov_b64 exec, -1")
            g("s_mov_b64 vcc, -1")
            if opt.get("st14e"): g.stamp(14)
            if opt.get("e_sleep"): g(f"s_sleep {opt['e_sleep']}")
            g(f"s_mov_b32 s{sCNT}, 0")
        g.lab("L_A_d2poll")
        if opt.get("m_shrink"): g("s_mov_b64 exec, vcc")
        if opt.get("m_sleep"): g(f"s_sleep {opt['m_sleep']}")
        g(f"buffer_load_dwordx4 {v(vDB,4)}, v{vD2}, {WS}, s{sO} offen sc1")
        g(f"s_add_u32 s{sCNT}, s{sCNT}, 1")
        g(f"s_cmp_gt_u32 s{sCNT}, {opt.get('spin', SPIN)}")
        g("s_waitcnt vmcnt(0)")
        g("s_cbranch_scc1 L_A_d2done")
        g.lab("L_A_d2chk")
        g(f"v_cmp_ne_u64 vcc, s[{sT}:{sT+1}], {v(vDB+2,2)}")
        g("s_cbranch_vccnz L_A_d2poll")
        g.lab("L_A_d2done")
        if opt.get("m_shrink"): g("s_mov_b64 exec, -1")
        g.stamp(6)
        def lpoll():
            for k in range(16):
                g(f"s_load_dword s{16+k}, s[{sBP}:{sBP+1}], {k*256+8} glc")
        lvec = opt.get("l_vec", 0)
        if lvec == 1: g(f"buffer_load_dwordx4 {v(vDL,4)}, v{vD2}, {WS}, s{sO2} offen sc1")
        elif lvec == 0: lpoll()
        g(f"v_max_f32_dpp v{t0}, v{vDB}, v{vDB} row_ror:8 row_mask:0xf bank_mask:0xf")
        for r in (4, 2, 1):
            g(f"v_max_f32_dpp v{t0}, v{t0}, v{t0} row_ror:{r} row_mask:0xf bank_mask:0xf")
        g(f"""
        v_mov_b32 v{t1}, v{t0}
        v_permlane16_swap_b32 v{t0}, v{t1}
        v_max_f32 v{t0}, v{t0}, v{t1}
        v_sub_f32 v{t0}, v{vDB}, v{t0}
        v_exp_f32 v{t0}, v{t0}
        v_cvt_pk_bf16_f32 v{t0}, v{t0}, v{t0}
        ds_write_b16 v{vWTw}, v{t0} offset:{A_WT}
        ds_read_b64 {v(vWt,2)}, v{vWTr} offset:{A_WT}
        v_and_b32 v{vWr}, 0xffff0000, v{t0}
        s_mov_b32 s{sCNT}, 0
        s_branch {"L_A_lgo" if lvec == 2 else "L_A_lchk"}
        """)
        g.lab("L_A_lpoll")
        if lvec: g(f"buffer_load_dwordx4 {v(vDL,4)}, v{vD2}, {WS}, s{sO2} offen sc1")
        else: lpoll()
        g(f"s_add_u32 s{sCNT}, s{sCNT}, 1")
        g(f"s_cmp_gt_u32 s{sCNT}, {opt.get('spin', SPIN)}")
        g("s_cbranch_scc1 L_A_lgo")
        g.lab("L_A_lchk")
        if lvec:
            g("s_waitcnt vmcnt(0)")
            g(f"v_cmp_ne_u64 vcc, s[{sT}:{sT+1}], {v(vDL+2,2)}")
            g("s_cbranch_vccnz L_A_lpoll")
        else:
            g("s_waitcnt lgkmcnt(0)")
            for k in range(0, 16, 2):
                g(f"s_xor_b64 s[{16+k}:{17+k}], s[{16+k}:{17+k}], s[{sTT}:{sTT+1}]")
            for st_ in (8, 4, 2):
                for k in range(0, st_, 2):
                    g(f"s_or_b64 s[{16+k}:{17+k}], s[{16+k}:{17+k}], s[{16+k+st_}:{17+k+st_}]")
            g("s_cbranch_scc1 L_A_lpoll")
        g.lab("L_A_lgo")
        g(f"s_mov_b32 s{sCNT}, 0")
        if opt.get("o_sleep"): g(f"s_sleep {opt['o_sleep']}")
        g.stamp(11)
        def oget():
            g(f"buffer_load_dwordx4 {v(vDL,4)}, v{vD2}, {WS}, s{sO2} offen sc1")
            for u in range(4):
                g(f"buffer_load_dwordx4 {v(vO+4*u,4)}, v{vOg}, {WS}, s{sO3} offen offset:{u*256} sc1")
        oget()
        nwo = 0
        if wol in (1, 2):
            assert lvec == 2
            g(f"s_mul_i32 s{sC}, s{sA}, {32*1152}")
            unit_load(g, WO, vP2, A_WO, sC, 1152, "wo", NT, rows36=False)
            nwo = 9 if "wo" not in opt.get("skip", "") else 0
        g("s_waitcnt lgkmcnt(0)")
        for u in range(4):
            for d in range(4):
                g(f"v_perm_b32 v{vFr+4*u+d}, v{vWt+(u>>1)}, v{vWt+(u>>1)}, v{vSel+4*(u&1)+d}")
        g.lab("L_A_ocomb")
        g(f"v_mov_b32 v{vEr}, 0")
        g(f"s_waitcnt vmcnt({4+nwo})")
        g(f"v_mul_f32 v{vLs}, v{vWr}, v{vDL}")
        g(f"v_cmp_ne_u64 s[{sM4}:{sM4+1}], s[{sT}:{sT+1}], {v(vDL+2,2)}")
        for r in (8, 4, 2, 1):
            g(f"v_add_f32_dpp v{vLs}, v{vLs}, v{vLs} row_ror:{r} row_mask:0xf bank_mask:0xf")
        g(f"""
        v_mov_b32 v{t1}, v{vLs}
        v_permlane16_swap_b32 v{vLs}, v{t1}
        v_add_f32 v{vLs}, v{vLs}, v{t1}
        v_rcp_f32 v{vLs}, v{vLs}
        """)
        for u in range(4):
            g(f"s_waitcnt vmcnt({3-u+nwo})")
            for d in range(4):
                g(f"v_xor_b32 v{vO+4*u+d}, s{sX}, v{vO+4*u+d}")
            if u:
                for d in range(4):
                    g(f"v_bitop3_b32 v{vEr}, v{vEr}, v{vO+4*(u-1)+d}, s{sHI} bitop3:0xf6")
            g(f"{MF} {v(vD,4)}, {v(vFr+4*u,4)}, {v(vO+4*u,4)}, {'0' if u == 0 else v(vD,4)}")
        for d in range(4):
            g(f"v_bitop3_b32 v{vEr}, v{vEr}, v{vO+12+d}, s{sHI} bitop3:0xf6")
        g(f"v_and_b32 v{vEr}, 0x10001, v{vEr}")
        g(f"v_cmp_ne_u32 vcc, 0, v{vEr}")
        g(f"s_or_b64 vcc, vcc, s[{sM4}:{sM4+1}]")
        g("s_cbranch_scc1 L_A_oslow")
        g.lab("L_A_ook")
        if opt.get("stamps"): g(f"s_mov_b32 s100, s{sCNT}")
        for r in range(4):
            g(f"v_mul_f32 v{vD+r}, v{vLs}, v{vD+r}")
        g(f"v_cvt_pk_bf16_f32 v{vD}, v{vD}, v{vD+1}")
        g(f"v_cvt_pk_bf16_f32 v{vD+1}, v{vD+2}, v{vD+3}")
        g(f"ds_write_b64 v{vCW}, {v(vD,2)} offset:{A_CTXC}")
        if wol == 3:
            g(f"s_mul_i32 s{sC}, s{sA}, {32*1152}")
            unit_load(g, WO, vP2, A_WO, sC, 1152, "wo", NT, rows36=False)
        g("s_waitcnt vmcnt(0) lgkmcnt(0)" if wol == 1 else "s_waitcnt lgkmcnt(0)")
        g("s_barrier")
        g.stamp(7)
        vC = 80
        vU = 96
        vG1, vG2 = 104, 108
        vAe, vAo = 116, 120
        vY = 124
        for ks in range(4):
            g(f"ds_read_b128 {v(vC+4*ks,4)}, v{vCX} offset:{A_CTXC+ks*64}")
        g(f"s_lshl_b32 s{sO3}, s{sA}, 10")
        g(f"s_add_u32 s{sO3}, s{sO3}, {HB+LOC}")
        g(f"s_add_u32 s{sO}, s{sHB}, {LOC}")
        g(f"s_and_b32 s{sP4}, s{sT}, 15")
        sD3, vD3 = 16, 58
        g(f"s_xor_b32 s{sD3}, s{sW}, 3")
        g(f"s_or_b32 s{sD3}, s{sD3}, s{sJ}")
        g(f"s_lshl_b32 s{sTMP}, s{sH}, 7")
        g(f"s_add_u32 s{sTMP}, s{sTMP}, {D3}")
        g(f"v_lshl_add_u32 v{vD3}, v{vL}, 12, s{sTMP}")
        for ks in range(4):
            g(f"s_waitcnt lgkmcnt({3-ks})")
            for tau in range(2):
                g(f"{MF} {v(vU+4*tau,4)}, {A(aUV+(tau*4+ks)*4,4)}, {v(vC+4*ks,4)}, {'0' if ks == 0 else v(vU+4*tau,4)}")
        for r in range(4):
            g(f"v_cndmask_b32 v{vC+r}, v{vU+r}, v{vU+4+r}, s[{sM2}:{sM2+1}]")
            g(f"v_cndmask_b32 v{vC+4+r}, v{vU+4+r}, v{vU+r}, s[{sM2}:{sM2+1}]")
        for r in range(4):
            g(f"v_add_f32_dpp v{vC+r}, v{vC+4+r}, v{vC+r} quad_perm:[2,3,0,1] row_mask:0xf bank_mask:0xf")
        g(f"""
        v_cvt_pk_bf16_f32 v{vTag-2}, v{vC}, v{vC+1}
        v_cvt_pk_bf16_f32 v{vTag-1}, v{vC+2}, v{vC+3}
        s_mov_b32 exec_lo, 0x000f000f
        s_mov_b32 exec_hi, 0x000f000f
        buffer_store_dwordx4 {v(vTag-2,4)}, v{vHBs}, {WS}, s{sO} offen
        s_mov_b64 exec, -1
        """)
        def hb_wt():
            g("s_mov_b32 exec_lo, 0x000f000f")
            g("s_mov_b32 exec_hi, 0x000f000f")
            g(f"buffer_store_dwordx4 {v(vTag-2,4)}, v{vHBs}, {WS}, s{sHB} offen sc1")
            g("s_mov_b64 exec, -1")
        g.stamp(8)
        g(f"s_mov_b32 s{sCNT}, 0")
        if wol >= 2:
            g("s_waitcnt vmcnt(1)")
            g("s_barrier")
        if wol: wo_frags()
        g.lab("L_A_hbld")
        g(f"buffer_load_dwordx4 {v(vG1,4)}, v{vHBl}, {WS}, s{sO3} offen sc1")
        g(f"buffer_load_dwordx4 {v(vG2,4)}, v{vHBl}, {WS}, s{sO3} offen offset:512 sc1")
        g("s_waitcnt vmcnt(0)")
        g(f"v_cmp_ne_u64 vcc, s[{sT}:{sT+1}], {v(vG1+2,2)}")
        g(f"v_cmp_ne_u64 s[{sM3}:{sM3+1}], s[{sT}:{sT+1}], {v(vG2+2,2)}")
        src = [vG1, vG1 + 1, vG2, vG2 + 1]
        for d in range(4):
            g(f"v_cndmask_b32 v{vAe+d}, 0, v{src[d]}, s[{sM1}:{sM1+1}]")
        g(f"s_or_b64 vcc, vcc, s[{sM3}:{sM3+1}]")
        g("s_cbranch_scc1 L_A_hbpoll")
        g.lab("L_A_hbdone")
        g.stamp(9)
        def d3bell():
            g(f"s_cmp_lg_u32 s{sD3}, 0")
            g("s_cbranch_scc1 L_A_nod3")
            g("s_mov_b64 exec, 0xff")
            g(f"buffer_store_dword v{vTag}, v{vD3}, {WS}, 0 offen sc1")
            g("s_mov_b64 exec, -1")
            g.lab("L_A_nod3")
        if opt.get("d3_pos", 0) == 0 and opt.get("h3_bell", 1): d3bell()
        for d in range(4):
            g(f"v_cndmask_b32 v{vAo+d}, v{src[d]}, 0, s[{sM1}:{sM1+1}]")
        if wol: g("s_waitcnt lgkmcnt(0)")
        for t in range(4):
            g(f"{MF} {v(vY+4*t,4)}, {v(vAe,4)}, {A(aWO+(t*2)*4,4)}, 0")
        for t in range(4):
            g(f"{MF} {v(vY+4*t,4)}, {v(vAo,4)}, {A(aWO+(t*2+1)*4,4)}, {v(vY+4*t,4)}")
        g(f"{MF} {v(vY+16,4)}, {v(vAe,4)}, {A(aWO+32,4)}, 0")
        g(f"{MF} {v(vY+16,4)}, {v(vAo,4)}, {A(aWO+36,4)}, {v(vY+16,4)}")
        for t in range(4):
            g(f"v_pk_add_f32 {v(vY+4*t,2)}, {v(vY+4*t,2)}, {v(vY+4*t+2,2)}")
        for t in range(4):
            g(f"v_add_f32 v{vC+t}, v{vY+4*t}, v{vY+4*t+1}")
        for t in range(4):
            g(f"v_and_or_b32 v{vC+t}, v{vC+t}, -16, s{sP4}")
        g(f"buffer_store_dwordx4 {v(vC,4)}, v{vA_l16}, {WS}, s{sH3m} offen sc1")
        g(f"s_cmp_gt_u32 s{sW}, 1")
        g("s_cbranch_scc1 L_A_no5b")
        g(f"v_pk_add_f32 {v(vY+16,2)}, {v(vY+16,2)}, {v(vY+18,2)}")
        g(f"v_add_f32 v{vY+16}, v{vY+16}, v{vY+17}")
        g(f"v_and_or_b32 v{vY+16}, v{vY+16}, -16, s{sP4}")
        g(f"buffer_store_dword v{vY+16}, v{vH3x}, {WS}, s{sH3l} offen sc1")
        g.lab("L_A_no5b")
        if opt.get("d3_pos", 0) == 1: d3bell()
        hb_wt()
        g.stamp(10)
        g(f"s_cmp_ge_u32 s{sA}, 36")
        g("s_cbranch_scc1 L_A_exit")
        vRd = [144, 160]
        vRw = 97
        vRa = 59
        sRa = [sO, sO3, sC, sHB]
        g(f"""
        s_lshl_b32 s{sTMP}, s{sXCD}, 2
        s_add_u32 s{sTMP}, s{sTMP}, s{sW}
        s_lshl_b32 s{sTMP}, s{sTMP}, 10
        s_add_u32 s{sTMP}, s{sTMP}, {D3}
        s_add_u32 s{sBP}, s4, s{sTMP}
        s_addc_u32 s{sBP+1}, s5, 0
        """)
        def d3poll():
            for k in range(8):
                g(f"s_load_dword s{16+k}, s[{sBP}:{sBP+1}], {k*128} glc")
        if opt.get("h3_bell", 1): d3poll()
        g(f"""
        s_lshl_b32 s{sO2}, s{sW}, 12
        s_mul_i32 s{sO3}, s{sA}, {USTR}
        s_add_u32 s{sO2}, s{sO2}, s{sO3}
        s_add_u32 s{sO2}, s{sO2}, {H3}
        """)
        def rget(part):
            for u in range(4):
                if part: g(f"buffer_load_dwordx4 {v(vRd[1]+4*u,4)}, v{vA_l16}, {WS}, s{sO2} offen offset:{u*1024} sc1")
                else: g(f"buffer_load_dwordx4 {v(vRd[0]+4*u,4)}, v{vRa}, {WS}, s{sRa[u]} offen sc1")
        rget(1)
        g(f"""
        v_and_b32 v{t0}, 7, v{vL}
        v_lshlrev_b32 v{vRw}, 6, v{t0}
        v_lshrrev_b32 v{t1}, 3, v{vL}
        v_mul_u32_u24 v{vRa}, {OSTR}, v{t1}
        v_lshl_add_u32 v{vRa}, v{t0}, 4, v{vRa}
        v_lshrrev_b32 v{t0}, 5, v{vL}
        v_lshl_add_u32 v{vRw}, v{t0}, 4, v{vRw}
        v_bfe_u32 v{t0}, v{vL}, 4, 1
        v_lshl_add_u32 v{vRw}, v{t0}, 5, v{vRw}
        v_lshl_add_u32 v{vRw}, s{sW}, 2, v{vRw}
        s_mul_i32 s{sO}, s{sW}, {32*OSTR}
        s_lshl_b32 s{sTMP}, s{sA}, 7
        s_add_u32 s{sO}, s{sO}, s{sTMP}
        s_add_u32 s{sO}, s{sO}, {OB}
        s_add_u32 s{sO3}, s{sO}, {8*OSTR}
        s_add_u32 s{sC}, s{sO}, {16*OSTR}
        s_add_u32 s{sHB}, s{sO}, {24*OSTR}
        s_mov_b32 s{sCNT}, 0
        s_branch {"L_A_d3chk" if opt.get("h3_bell", 1) else "L_A_d3go"}
        """)
        g.lab("L_A_d3poll")
        d3poll()
        spin_guard(g, "L_A_d3go")
        g.lab("L_A_d3chk")
        g("s_waitcnt lgkmcnt(0)")
        for k in range(0, 8, 2):
            g(f"s_xor_b64 s[{16+k}:{17+k}], s[{16+k}:{17+k}], s[{sTT}:{sTT+1}]")
        g("s_or_b64 s[16:17], s[16:17], s[18:19]")
        g("s_or_b64 s[20:21], s[20:21], s[22:23]")
        g("s_or_b64 s[16:17], s[16:17], s[20:21]")
        g("s_cbranch_scc1 L_A_d3poll")
        g.lab("L_A_d3go")
        g(f"s_mov_b32 s{sCNT}, 0")
        if opt.get("h3_ack", 0): g("s_waitcnt vmcnt(4)")
        if opt.get("st14"): g.stamp(14)
        rget(0)
        def rsum(part, waits):
            R = vRd[part]
            for u in range(4):
                if waits[u] is not None: g(f"s_waitcnt vmcnt({waits[u]})")
                for d in range(4):
                    g(f"v_xor_b32 v{R+4*u+d}, s{sP4}, v{R+4*u+d}")
                if u == 0:
                    g(f"v_or3_b32 v{vEr}, v{R}, v{R+1}, v{R+2}")
                    g(f"v_or_b32 v{vEr}, v{vEr}, v{R+3}")
                else:
                    g(f"v_pk_add_f32 {v(vY,2)}, {v(R if u == 1 else vY,2)}, {v(R+4*u,2)}")
                    g(f"v_pk_add_f32 {v(vY+2,2)}, {v(R+2 if u == 1 else vY+2,2)}, {v(R+4*u+2,2)}")
                    g(f"v_or3_b32 v{vEr}, v{vEr}, v{R+4*u}, v{R+4*u+1}")
                    g(f"v_or3_b32 v{vEr}, v{vEr}, v{R+4*u+2}, v{R+4*u+3}")
            g(f"v_permlane32_swap_b32 v{vY}, v{vY+1}")
            g(f"v_permlane32_swap_b32 v{vY+2}, v{vY+3}")
            g(f"v_and_b32 v{vEr}, 15, v{vEr}")
            g(f"v_add_f32 v{vY}, v{vY}, v{vY+1}")
            g(f"v_add_f32 v{vY+2}, v{vY+2}, v{vY+3}")
            g(f"v_cmp_ne_u32 vcc, 0, v{vEr}")
            g(f"v_permlane16_swap_b32 v{vY}, v{vY+2}")
            g(f"v_add_f32 v{vY}, v{vY}, v{vY+2}")
        def rfin(part):
            g(f"v_add_f32_dpp v{vY}, v{vY}, v{vY} row_ror:8 row_mask:0xf bank_mask:0xf")
            g(f"ds_write_b32 v{vRw}, v{vY} offset:{A_RED + part*512}")
        sPend = sM3
        rsum(1, [4, None, None, None])
        g(f"s_mov_b64 s[{sPend}:{sPend+1}], vcc")
        rfin(1)
        g.lab("L_A_r0sum")
        rsum(0, [3, 2, 1, 0])
        g("s_cbranch_vccnz L_A_r0slow")
        g.lab("L_A_r0ok")
        rfin(0)
        g(f"s_cmp_lg_u64 s[{sPend}:{sPend+1}], 0")
        g("s_cbranch_scc1 L_A_r1slow")
        g.lab("L_A_r1ok")
        g.stamp(12)
        if opt.get("stamps"):
            g(f"s_lshl_b32 s{sCNT}, s{sCNT}, 8")
            g(f"s_or_b32 s100, s100, s{sCNT}")
        g("s_waitcnt lgkmcnt(0)")
        g("s_barrier")
        g(f"s_cmp_lg_u32 s{sW}, 0")
        g("s_cbranch_scc1 L_A_exit")
        R = 144
        g(f"""
        s_mov_b32 exec_hi, 0
        ds_read_b128 {v(R,4)}, v{vA_l16} offset:{A_RED}
        ds_read_b128 {v(R+4,4)}, v{vA_l16} offset:{A_RED+512}
        v_sub_f32 v{t0}, 1.0, v{vFB}
        s_waitcnt lgkmcnt(0)
        v_pk_add_f32 {v(R,2)}, {v(R,2)}, {v(R+2,2)}
        v_pk_add_f32 {v(R+4,2)}, {v(R+4,2)}, {v(R+6,2)}
        v_add_f32 v{R}, v{R}, v{R+1}
        v_add_f32 v{R+4}, v{R+4}, v{R+5}
        v_add_f32 v{R+4}, v{R+4}, v{vB2}
        v_mul_f32 v{R+4}, v{t0}, v{R+4}
        v_fma_f32 v{R}, v{vFB}, v{R}, v{R+4}
        v_cvt_pk_bf16_f32 v{R}, v{R}, v{R}
        buffer_store_short v{R}, v{vOA}, {OUT}, 0 offen
        s_cmp_lg_u32 s{sA}, 0
        s_cbranch_scc1 L_A_exit
        s_mov_b64 exec, 1
        buffer_store_dwordx2 {v(vTag,2)}, v{vA_l16}, {WS}, 0 offen offset:{EPOCH} sc1
        """)
        if opt.get("probe") is not None:
            i = opt["probe"]
            g.stamp(13)
            g("s_waitcnt lgkmcnt(0)")
            g(f"s_sub_u32 s{sO}, s{70+2*i}, s70")
            g(f"s_lshl_b32 s{sO}, s{sO}, 2")
            g(f"s_add_u32 s{sO}, s{sO}, 4000")
            g.lab("L_probe")
            g(f"s_memrealtime s[{sTMP}:{sTMP+1}]")
            g("s_waitcnt lgkmcnt(0)")
            g(f"s_sub_u32 s{sTMP}, s{sTMP}, s70")
            g(f"s_cmp_lt_u32 s{sTMP}, s{sO}")
            g("s_cbranch_scc1 L_probe")
            g("s_endpgm")
        g.lab("L_A_exit")
        g.stamp(13)
        dump_stamps(g, 16, 216)
        g("s_endpgm")
        if pB:
            g.lab("L_A_h0poll")
            spin_guard(g, "L_A_h0done")
            g("s_branch L_A_h0get")
        else:
            g.lab("L_A_h0poll")
            spin_guard(g, "L_A_h0done")
            g(f"s_cmp_lg_u32 s{sCNT}, 8")
            g("s_cbranch_scc1 L_A_h0ns")
            h0_wt()
            g.lab("L_A_h0ns")
            dual_next(g, sib[1:])
            h0loads()
            g("s_waitcnt vmcnt(0)")
            g("s_branch L_A_h0chk")
        g.lab("L_A_oslow")
        spin_guard(g, "L_A_ook")
        oget()
        g("s_waitcnt vmcnt(0)")
        g("s_branch L_A_ocomb")
        g.lab("L_A_hbpoll")
        spin_guard(g, "L_A_hbdone")
        g(f"s_cmp_lg_u32 s{sCNT}, 8")
        g("s_cbranch_scc1 L_A_hbns")
        hb_wt()
        g.lab("L_A_hbns")
        dual_next(g, [sO3])
        g("s_branch L_A_hbld")
        g.lab("L_A_r0slow")
        spin_guard(g, "L_A_r0ok")
        rget(0)
        g("s_branch L_A_r0sum")
        g.lab("L_A_r1slow")
        spin_guard(g, "L_A_r1ok")
        rget(1)
        rsum(1, [3, 2, 1, 0])
        g("s_cbranch_vccnz L_A_r1slow")
        rfin(1)
        g("s_branch L_A_r1ok")

class RoleB:
    def __init__(self, g, NT, vL, vN, vG):
        self.g, self.NT, self.vL, self.vN, self.vG = g, NT, vL, vN, vG

    def issue(self):
        g, vL = self.g, self.vL
        if g.opt.get("p1a_on") == "B":
            vN, vG, NT = self.vN, self.vG, self.NT
            srd_tail(g, 12, 576 * 8192)
            srd_tail(g, 8, 2304)
            g(f"""
            s_lshr_b32 s{sC}, s{sI}, 2
            s_lshl_b32 s{sC}, s{sC}, 3
            s_add_u32 s{sC}, s{sC}, s{sXCD}
            s_and_b32 s{sO}, s{sI}, 3
            v_mul_u32_u24 v5, {36*8192}, v{vG}
            v_lshl_add_u32 v5, v{vN}, 4, v5
            s_lshl_b32 s{sO2}, s{sO}, 4
            s_add_u32 s{sO2}, s{sO2}, s{sW}
            s_mul_i32 s{sO2}, s{sO2}, 9
            s_lshl_b32 s{sO3}, s{sO2}, 13
            s_lshl_b32 s{sTMP}, s{sC}, 8
            s_add_u32 s{sO3}, s{sO3}, s{sTMP}
            v_bfe_u32 v4, v{vL}, 3, 1
            v_mul_u32_u24 v4, 1152, v4
            v_mad_u32_u24 v4, v{vG}, 64, v4
            v_lshl_add_u32 v4, v{vG}, 3, v4
            s_lshr_b32 s{sO2}, s{sO2}, 1
            s_lshl_b32 s{sO2}, s{sO2}, 2
            s_waitcnt lgkmcnt(0)
            buffer_load_dwordx4 v[64:67], v4, {X}, s{sO2} offen
            buffer_load_dword v68, v4, {X}, s{sO2} offen offset:16
            """)
            for i in range(9):
                g(f"buffer_load_dwordx4 {A(4*i,4)}, v5, s[12:15], s{sO3} offen {NT}")
                if i != 8: g(f"s_addk_i32 s{sO3}, 0x2000")
            load_tag(g)
            g(f"""
            s_lshl_b32 s{sC}, s{sC}, 2
            s_add_u32 s{sC}, s{sC}, s{sO}
            s_lshl_b32 s{sC}, s{sC}, 10
            s_add_u32 s{sC}, s{sC}, {H0}
            """)
            return
        if g.opt.get("numa"):
            PFL = g.opt.get("pf_lines", 4)
            srd_tail(g, 28, 2 * 4096 * 1024)
            g(f"""
            s_and_b32 s{sMSG}, s{sXCD}, 1
            s_lshl_b32 s{sMSG}, s{sMSG}, 4
            s_and_b32 s{sO3}, s{sI}, 14
            s_add_u32 s{sMSG}, s{sMSG}, s{sO3}
            s_bfe_u32 s{sO3}, s{sXCD}, 0x10001
            s_add_u32 s{sMSG}, s{sMSG}, s{sO3}
            s_lshl_b32 s{sO3}, s{sMSG}, 18
            s_and_b32 s{sC}, s{sI}, 1
            s_lshl_b32 s{sC}, s{sC}, 8
            s_add_u32 s{sO3}, s{sO3}, s{sC}
            s_add_u32 s{sC}, s{sO3}, 0x2000
            v_lshlrev_b32 v4, 7, v{vL}
            s_waitcnt lgkmcnt(0)
            s_cmp_lg_u32 s{sW}, 3
            s_cbranch_scc1 L_B_nopr
            s_mov_b64 exec, 1
            buffer_load_dword v60, v4, s[28:31], s{sO3} offen
            buffer_load_dword v61, v4, s[28:31], s{sC} offen
            s_mul_i32 s{sTMP}, s{sI}, {2*PFL*128}
            s_mov_b64 exec, {(1 << (2*PFL)) - 1}
            v_add_u32 v5, s{sTMP}, v4
            global_load_dword v63, v5, s[{sPC}:{sPC+1}]
            s_lshr_b32 s{sO}, s{sI}, 2
            s_lshl_b32 s{sO}, s{sO}, 3
            s_add_u32 s{sO}, s{sO}, s{sXCD}
            s_lshl_b32 s{sO}, s{sO}, 2
            s_and_b32 s{sO2}, s{sI}, 3
            s_add_u32 s{sO}, s{sO}, s{sO2}
            s_lshl_b32 s{sO2}, s{sO}, 11
            s_add_u32 s{sO2}, s{sO2}, {H0+LOC}
            s_mov_b64 exec, 0xffff
            buffer_load_dword v62, v4, {WS}, s{sO2} offen
            s_lshl_b32 s{sO}, s{sO}, 10
            s_add_u32 s{sO2}, s{sO}, {HB+LOC}
            s_mov_b64 exec, 0xff
            buffer_load_dword v62, v4, {WS}, s{sO2} offen
            s_add_u32 s{sO2}, s{sO}, {D3}
            buffer_load_dword v62, v4, {WS}, s{sO2} offen
            s_mov_b64 exec, -1
            s_waitcnt vmcnt(5)
            s_memtime s[34:35]
            s_waitcnt vmcnt(4)
            s_memtime s[38:39]
            s_waitcnt lgkmcnt(0)
            s_sub_u32 s38, s38, s34
            s_cmp_lt_u32 s38, {g.opt.get("gap", 100)}
            s_cselect_b32 s{sO3}, 1, 0
            v_mov_b32 v6, s{sO3}
            v_mov_b32 v7, {B_PHI}
            ds_write_b32 v7, v6
            s_waitcnt lgkmcnt(0)
            """)
            if g.opt.get("stamps"): g("s_mov_b32 s88, s38")
            g.lab("L_B_nopr")
            return
        g(f"""
        s_lshr_b32 s{sO}, s{sI}, 2
        s_lshl_b32 s{sO}, s{sO}, 3
        s_add_u32 s{sO}, s{sO}, s{sXCD}
        s_lshl_b32 s{sO}, s{sO}, 2
        s_and_b32 s{sO2}, s{sI}, 3
        s_add_u32 s{sO}, s{sO}, s{sO2}
        s_lshl_b32 s{sO2}, s{sO}, 11
        s_add_u32 s{sO2}, s{sO2}, {H0+LOC}
        s_lshl_b32 s{sO}, s{sO}, 10
        s_add_u32 s{sO}, s{sO}, {HB+LOC}
        s_cmp_eq_u32 s{sW}, 1
        s_cselect_b32 s{sO}, s{sO}, s{sO2}
        s_lshl_b32 s{sO2}, s{sXCD}, 4
        s_add_u32 s{sO2}, s{sO2}, s{sI}
        s_lshl_b32 s{sO2}, s{sO2}, 10
        s_add_u32 s{sO2}, s{sO2}, {D3}
        s_cmp_eq_u32 s{sW}, 2
        s_cselect_b32 s{sO}, s{sO2}, s{sO}
        s_cselect_b32 s{sTMP}, 0xff, -1
        s_and_b32 s{sTMP}, s{sTMP}, 0xffff
        s_mov_b32 s{sTMP+1}, 0
        v_lshlrev_b32 v4, 7, v{vL}
        """)
        g("s_waitcnt lgkmcnt(0)")
        load_tag(g)
        g(f"""
        {"s_cmp_lg_u32" if g.opt.get("split") else "s_cmp_gt_u32"} s{sW}, 2
        s_cbranch_scc1 L_B_head
        s_mov_b64 exec, s[{sTMP}:{sTMP+1}]
        buffer_load_dword v62, v4, {WS}, s{sO} offen
        s_mov_b64 exec, -1
        """)

    def rest(self):
        g, NT, vL, vN, vG = self.g, self.NT, self.vL, self.vN, self.vG
        opt = g.opt
        CKV, W2, B1, W1 = "s[28:31]", "s[20:23]", "s[24:27]", "s[16:19]"
        t0, t1, t2, t3 = 4, 5, 6, 7
        vL16 = 12
        vOa = 13
        vH3, vH3x = 14, 15
        vB1 = 22
        vSB = 24
        vQBs = 28
        vPVb = 16
        vTag = 36
        vML = 34
        vMXw, vMXr = 38, 39
        vD2a = 40
        vPw = 41
        vP2 = 42
        vT20, vT21, vK20, vK21 = 52, 53, 54, 55
        vHg, vHw = 56, 57
        vHe, vHo, vHke, vHko = 58, 59, 60, 61
        vQd = 8
        aS, aP = 0, 128
        sOo = 61
        sH3m, sH3l = 62, 63
        sD2, sGot = 59, 58
        sBP, sTT = 34, sPC
        sQg = 33
        sPat, sMk = 32, 36
        srd_tail(g, 28, 2 * 4096 * 1024)
        vW1, vW2 = 168, 212
        vXr = 64
        vSel = 88
        vXA = 96
        vW1a, vHs = 164, 165
        sRho, sBlk, sR0 = 38, 39, 56
        numa = opt.get("numa", 0)
        sCk = 37
        if numa:
            assert not opt.get("ckv_x", 1)
            sPhi, sDP = 38, 18
            def ckv_base():
                g(f"""
                s_lshl_b32 s{sCk}, s{sMSG}, 2
                s_add_u32 s{sCk}, s{sCk}, s{sW}
                s_lshl_b32 s{sCk}, s{sCk}, 3
                s_add_u32 s{sCk}, s{sCk}, s{sPhi}
                s_lshl_b32 s{sCk}, s{sCk}, 13
                s_lshl_b32 m0, s{sW}, 15
                s_add_u32 m0, m0, {B_CKV}
                """)
            def phi_get():
                g(f"""
                v_mov_b32 v{t0}, {B_PHI}
                s_barrier
                ds_read_b32 v{t1}, v{t0}
                s_waitcnt lgkmcnt(0)
                v_readfirstlane_b32 s{sPhi}, v{t1}
                """)
                if opt.get("numa_force") is not None: g(f"s_xor_b32 s{sPhi}, s{sPhi}, {opt['numa_force']}")
                ckv_base()
            g(f"s_and_b32 s{sB}, s{sXCD}, 1")
            g(f"v_lshlrev_b32 v{vL16}, 4, v{vL}")
            phi_get()
            load_tag(g)
        else:
            g(f"""
            s_and_b32 s{sB}, s{sXCD}, 1
            s_lshr_b32 s{sMSG}, s{sI}, 1
            s_lshl_b32 s{sMSG}, s{sMSG}, 2
            s_lshr_b32 s{sO}, s{sXCD}, 1
            s_add_u32 s{sMSG}, s{sMSG}, s{sO}
            s_lshl_b32 s{sO}, s{sB}, 5
            s_add_u32 s{sMSG}, s{sMSG}, s{sO}
            v_lshlrev_b32 v{vL16}, 4, v{vL}
            """)
            sCk = 37
            g(f"""
            s_lshl_b32 s{sCk}, s{sMSG}, 2
            s_add_u32 s{sCk}, s{sCk}, s{sW}
            s_lshl_b32 s{sCk}, s{sCk}, 15
            s_lshl_b32 m0, s{sW}, 15
            s_add_u32 m0, m0, {B_CKV}
            """)
            if opt.get("ckv_x", 1):
                g(f"s_and_b32 s{sGot}, s{sI}, 1")
                g(f"s_lshl_b32 s{sGot}, s{sGot}, 14")
                g(f"s_add_u32 s{sCk}, s{sCk}, s{sGot}")
                g(f"s_lshl_b32 s{sGot}, s{sGot}, 1")
        def ckv_stream(k0, k1):
            thr = opt.get("ckv_thr")
            for k in range(k0, k1):
                f = f16sw(k & 15)
                tmp = t0 + (k & 1)
                g(f"v_xor_b32 v{tmp}, {f*16}, v{vL16}")
                if thr is not None: g(f"s_waitcnt vmcnt({thr-1})")
                g(f"buffer_load_dwordx4 v{tmp}, {CKV}, s{sCk} offen offset:{(k%4)*1024} {NT} lds")
                if k % 4 == 3:
                    g(f"s_addk_i32 s{sCk}, {0x3000 if (numa and k % 8 == 7) else 0x1000}")
                    g(f"s_add_u32 m0, m0, 0x1000")
                if k == 15 and opt.get("ckv_x", 1): g(f"s_sub_u32 s{sCk}, s{sCk}, s{sGot}")
        c1_, c2_ = opt.get("ckv_a", 0), opt.get("ckv_b", 0)
        g.stamp(13)
        ckv_stream(0, c1_)
        g.l.append(";;SPLIT")
        pB = opt.get("p1a_on") == "B"
        if pB:
            vX, vSl, vF, vQp = 64, 72, 80, 116
            selectors(g, vSl, vL, t0, t1, t2)
            g(f"s_and_b32 s{sO}, s{sW}, 1")
            g(f"s_lshl_b32 s{sO}, s{sO}, 4")
            g(f"""
            s_cmp_lg_u32 s{sW}, 2
            s_cbranch_scc1 L_B_nt
            s_lshl_b32 s{sO2}, s{sXCD}, 4
            s_add_u32 s{sO2}, s{sO2}, s{sI}
            s_lshl_b32 s{sO2}, s{sO2}, 10
            s_add_u32 s{sO2}, s{sO2}, {D3}
            v_lshlrev_b32 v{t0}, 7, v{vL}
            s_mov_b64 exec, 0xff
            buffer_load_dword v62, v{t0}, {WS}, s{sO2} offen
            s_mov_b64 exec, -1
            """)
            g.lab("L_B_nt")
            g(f"s_waitcnt vmcnt({9+c1_})")
            for k in range(5):
                g(f"v_alignbit_b32 v{vX+k}, v{vX+k+1}, v{vX+k}, s{sO}")
            for i in range(9):
                for d in range(4):
                    g(f"v_perm_b32 v{vF+4*i+d}, v{vX+(i>>1)}, v{vX+(i>>1)}, v{vSl+4*(i&1)+d}")
            cm = opt.get("ckv_m", 0)
            c0 = c1_
            for i in range(9):
                g(f"s_waitcnt vmcnt({8-i+c1_})")
                g(f"{MF} {v(vQp,4)}, {v(vF+4*i,4)}, {A(4*i,4)}, {'0' if i == 0 else v(vQp,4)}")
                if i >= 9 - cm:
                    ckv_stream(c1_, c1_ + 1); c1_ += 1
            g(f"s_cmp_eq_u32 s{sW}, 0")
            g("s_cbranch_scc1 L_B_w0a")
            g(f"v_lshl_add_u32 v{t2}, s{sW}, 10, v{vL16}")
            g(f"ds_write_b128 v{t2}, {v(vQp,4)} offset:{B_PB}")
            g("s_waitcnt lgkmcnt(0)")
            g("s_barrier")
            g("s_branch L_B_w0b")
            g.lab("L_B_w0a")
            g("s_waitcnt lgkmcnt(0)")
            g(f"s_add_u32 s{sO}, s{sT}, {K0}")
            g(f"s_and_b32 s{sO}, s{sO}, 15")
            g("s_barrier")
            for k in range(3):
                g(f"ds_read_b128 {v(vF+4*k,4)}, v{vL16} offset:{B_PB+(k+1)*1024}")
            g("s_waitcnt lgkmcnt(1)")
            g(f"v_pk_add_f32 {v(vQp,2)}, {v(vQp,2)}, {v(vF,2)}")
            g(f"v_pk_add_f32 {v(vQp+2,2)}, {v(vQp+2,2)}, {v(vF+2,2)}")
            g("s_waitcnt lgkmcnt(0)")
            g(f"v_pk_add_f32 {v(vF+4,2)}, {v(vF+4,2)}, {v(vF+8,2)}")
            g(f"v_pk_add_f32 {v(vF+6,2)}, {v(vF+6,2)}, {v(vF+10,2)}")
            g(f"v_pk_add_f32 {v(vQp,2)}, {v(vQp,2)}, {v(vF+4,2)}")
            g(f"v_pk_add_f32 {v(vQp+2,2)}, {v(vQp+2,2)}, {v(vF+6,2)}")
            for r in range(4):
                g(f"v_and_or_b32 v{vQp+r}, v{vQp+r}, -16, s{sO}")
            g(f"buffer_store_dwordx4 {v(vQp,4)}, v{vL16}, {WS}, s{sC} offen sc1")
            g.lab("L_B_w0b")
            g.stamp(9)
            cq = opt.get("ckv_q", 0)
            ckv_stream(c1_, c1_ + cq); c1_ += cq
        srd(g, 20, 9, 4608 * 1152)
        srd(g, 24, 8, 9216)
        if opt.get("w1_on") == "B":
            srd(g, 16, 7, 576 * 9216)
            srd_tail(g, 8, 2304)
        g(f"""
        s_and_b32 s{sHG}, s{sI}, 1
        s_lshl_b32 s{sU2}, s{sXCD}, 4
        s_add_u32 s{sU2}, s{sU2}, s{sI}
        s_mov_b32 s{sPR}, s{sU2}
        s_mov_b32 s{sPOI}, {POISON}
        v_mul_u32_u24 v{vOa}, {16*OSTR}, v{vG}
        v_lshl_add_u32 v{vOa}, v{vN}, 4, v{vOa}
        """)
        def msg_addr():
            g(f"""
        s_lshl_b32 s{sOo}, s{sHG}, 6
        s_add_u32 s{sOo}, s{sOo}, s{sW}
        s_mul_i32 s{sOo}, s{sOo}, {OSTR}
        s_lshl_b32 s{sO}, s{sMSG}, 8
        s_add_u32 s{sOo}, s{sOo}, s{sO}
        s_add_u32 s{sOo}, s{sOo}, {OB}
        s_lshl_b32 s{sD2}, s{sHG}, 6
        s_add_u32 s{sD2}, s{sD2}, s{sMSG}
        s_lshl_b32 s{sD2}, s{sD2}, 8
        s_add_u32 s{sD2}, s{sD2}, {D2}
            """)
        if not numa: msg_addr()
        h3_addr(g, vH3, vH3x, vL, vN, vG, t0)
        h3_soffs(g, sH3m, sH3l)
        def fsw(dst, src, tmp):
            g(f"v_lshrrev_b32 v{tmp}, 3, v{src}")
            g(f"v_and_b32 v{dst}, 7, v{src}")
            g(f"v_lshl_add_u32 v{dst}, v{dst}, 1, v{tmp}")
            g(f"v_lshlrev_b32 v{tmp}, 3, v{tmp}")
            g(f"v_xor_b32 v{dst}, v{dst}, v{tmp}")
        fsw(t2, vN, t3)
        g(f"""
        v_xor_b32 v{t2}, v{t2}, v{vG}
        v_lshlrev_b32 v{t2}, 4, v{t2}
        v_lshl_add_u32 v{t2}, v{vN}, 10, v{t2}
        s_lshl_b32 s{sO}, s{sW}, 15
        s_add_u32 s{sO}, s{sO}, {B_CKV}
        """)
        assert B_QF == 0
        for q in range(4):
            g(f"v_xor_b32 v{vQBs+q}, {q*64}, v{t2}")
            g(f"v_add_u32 v{vSB+q}, s{sO}, v{vQBs+q}")
        g(f"v_lshrrev_b32 v{t0}, 2, v{vL}")
        fsw(t2, t0, t3)
        g(f"""
        v_bfe_u32 v{t3}, v{vL}, 1, 1
        v_xor_b32 v{t2}, v{t2}, v{t3}
        v_lshlrev_b32 v{t1}, 10, v{t0}
        v_lshl_add_u32 v{t1}, v{t2}, 4, v{t1}
        v_and_b32 v{t3}, 1, v{vL}
        v_lshl_add_u32 v{t1}, v{t3}, 3, v{t1}
        v_lshl_add_u32 v{t1}, s{sW}, 8, v{t1}
        """)
        for k in range(4):
            g(f"s_add_u32 s{sO}, s{sW}, {k}")
            g(f"s_and_b32 s{sO}, s{sO}, 3")
            g(f"v_lshl_add_u32 v{[vPw,20,21,23][k]}, s{sO}, 10, v{vL16}")
            g(f"s_lshl_b32 s{sO}, s{sO}, 15")
            g(f"s_add_u32 s{sO}, s{sO}, {B_CKV}")
            g(f"v_add_u32 v{vPVb+k}, s{sO}, v{t1}")
        for k in range(opt.get("pv_pre", 4), 4):
            for ct in range(8):
                g(f"v_xor_b32 v{168+8*k+ct}, {ct<<5}, v{vPVb+k}")
        g(f"""
        v_lshlrev_b32 v{vMXr}, 4, v{vN}
        v_lshl_add_u32 v{vMXw}, v{vG}, 2, v{vMXr}
        v_lshl_add_u32 v{vMXw}, s{sW}, 8, v{vMXw}
        s_lshl_b32 s{sQg}, s{sB}, 1
        s_add_u32 s{sQg}, s{sQg}, s{sHG}
        s_lshl_b32 s{sQg}, s{sQg}, 2
        s_add_u32 s{sQg}, s{sQg}, s{sW}
        s_lshl_b32 s{sQg}, s{sQg}, 12
        s_add_u32 s{sQg}, s{sQg}, {QB}
        s_lshr_b32 s{sTMP}, s{sW}, 1
        s_xor_b32 s{sTMP+1}, s{sW}, s{sTMP}
        s_and_b32 s{sTMP+1}, s{sTMP+1}, 1
        s_lshl_b32 s{sTMP+1}, s{sTMP+1}, 3
        s_add_u32 s{sTMP}, s{sTMP}, s{sTMP+1}
        s_lshl_b32 s{sTMP}, s{sTMP}, 4
        v_xor_b32 v{vQd}, s{sTMP}, v{vL16}
        v_xor_b32 v{vQd+1}, 32, v{vQd}
        v_xor_b32 v{vQd+2}, 64, v{vQd}
        v_xor_b32 v{vQd+3}, 0x60, v{vQd}
        v_mov_b32 v{t0}, 0
        v_lshlrev_b32 v{t1}, 2, v{vL}
        s_mov_b32 exec_hi, 0
        ds_write_b32 v{t1}, v{t0} offset:{B_ZERO}
        s_mov_b64 exec, -1
        s_lshl_b32 s{sTMP}, s{sXCD}, 3
        s_lshl_b32 s{sTMP+1}, s{sHG}, 2
        s_add_u32 s{sTMP}, s{sTMP}, s{sTMP+1}
        s_add_u32 s{sTMP}, s{sTMP}, s{sW}
        s_lshl_b32 s{sTMP}, s{sTMP}, 9
        s_add_u32 s{sTMP}, s{sTMP}, {D1}
        s_add_u32 s{sBP}, s4, s{sTMP}
        s_addc_u32 s{sBP+1}, s5, 0
        """)
        if not numa: g.stamp(14)
        ckv_stream(c1_, c1_ + c2_)
        for i in range(10):
            unit_pattern(g, vP2 + i, vL, sW if i == 9 else None, i, 1152, t0, t1)
        tr_pair_bases(g, vT20, vT21, vK20, vK21, vL, B_W2, t0, t1, t2)
        g(f"""
        v_bfe_u32 v{t0}, v{vL}, 2, 1
        v_lshlrev_b32 v{t0}, 7, v{t0}
        v_add_u32 v{t0}, {B_HL}, v{t0}
        v_lshl_add_u32 v{t1}, v{vG}, 3, v{t0}
        v_add_u32 v{t0}, 64, v{t0}
        v_mov_b32 v{t2}, {B_ZERO}
        v_cmp_gt_u32 vcc, 8, v{vN}
        v_cndmask_b32 v{vHe}, v{t2}, v{t1}, vcc
        v_cndmask_b32 v{vHo}, v{t1}, v{t2}, vcc
        v_lshrrev_b32 v{t1}, 3, v{vL}
        v_cmp_eq_u32 vcc, 0, v{t1}
        v_cndmask_b32 v{vHke}, v{t2}, v{t0}, vcc
        v_cmp_eq_u32 vcc, 1, v{t1}
        v_cndmask_b32 v{vHko}, v{t2}, v{t0}, vcc
        """)
        finish_tag(g)
        g(f"""
        v_mov_b32 v{vTag}, s{sT}
        v_mov_b32 v{vTag+1}, s{sT+1}
        s_bitcmp1_b32 s{sT}, 0
        s_cselect_b32 s{sPat}, 1, 0x10000
        v_mov_b32 v{vML+1}, s{sPat}
        s_mov_b32 s{sMk}, 0xfffefffe
        s_mov_b32 s{sTT}, s{sT}
        s_mov_b32 s{sTT+1}, s{sT}
        """)
        vPat = 33
        g(f"v_mov_b32 v{vPat}, s{sPat}")
        w1b = opt.get('w1_on') == 'B'
        if w1b:
            g(f"""
            s_lshl_b32 s{sO}, s{sU2}, 2
            s_add_u32 s{sO}, s{sO}, s{sW}
            s_mul_i32 s{sRho}, s{sO}, 1821
            s_lshr_b32 s{sRho}, s{sRho}, 16
            s_mul_i32 s{sTMP}, s{sRho}, 36
            s_sub_u32 s{sBlk}, s{sO}, s{sTMP}
            s_min_u32 s{sTMP}, s{sRho}, 4
            s_mul_i32 s{sR0}, s{sRho}, 10
            s_add_u32 s{sR0}, s{sR0}, s{sTMP}
            s_lshl_b32 s{sR0}, s{sR0}, 2
            v_bfe_u32 v{t0}, v{vL}, 3, 1
            v_mul_u32_u24 v{t0}, 1152, v{t0}
            s_lshl_b32 s{sO}, s{sR0}, 1
            """)
            assert all((i * 1821) >> 16 == i // 36 for i in range(512))
            for k in range(5):
                g(f"buffer_load_dwordx4 {v(vXr+4*k,4)}, v{t0}, {X}, s{sO} offen offset:{16*k}")
            g(f"buffer_load_dwordx2 {v(vXr+20,2)}, v{t0}, {X}, s{sO} offen offset:80")
            g(f"""
            v_mul_u32_u24 v{vW1a}, 9216, v{vG}
            v_lshl_add_u32 v{vW1a}, v{vN}, 4, v{vW1a}
            v_lshrrev_b32 v{t0}, 5, v{vL}
            v_mul_u32_u24 v{vHs}, 18432, v{t0}
            v_and_b32 v{t0}, 31, v{vL}
            v_lshl_add_u32 v{vHs}, v{t0}, 4, v{vHs}
            v_mul_u32_u24 v{t0}, 0x0202, v{vG}
            v_add_u32 v{t0}, 0x0100, v{t0}
            v_and_b32 v{t1}, 1, v{vL}
            v_lshlrev_b32 v{t1}, 4, v{t1}
            v_lshlrev_b32 v{t0}, v{t1}, v{t0}
            v_mov_b32 v{t2}, 0x0c0c0000
            v_lshrrev_b32 v{t2}, v{t1}, v{t2}
            v_or_b32 v{t0}, v{t0}, v{t2}
            v_bfe_u32 v{t1}, v{vL}, 1, 2
            v_mov_b32 v{t2}, 0x0c0c0c0c
            """)
            for d in range(4):
                g(f"v_cmp_eq_u32 vcc, {d}, v{t1}")
                g(f"v_cndmask_b32 v{vSel+d}, v{t2}, v{t0}, vcc")
        g(f"""
        v_lshrrev_b32 v{t0}, 5, v{vL}
        v_bfe_u32 v{t1}, v{vL}, 4, 1
        v_lshl_add_u32 v{t0}, v{t1}, 1, v{t0}
        v_lshl_add_u32 v{t0}, v{vN}, 2, v{t0}
        v_lshlrev_b32 v{t0}, 1, v{t0}
        s_mul_i32 s{sO}, s{sU2}, 72
        buffer_load_ushort v{vB1}, v{t0}, {B1}, s{sO} offen
        v_lshl_add_u32 v{vHw}, s{sW}, 7, v{t0}
        s_mul_i32 s{sO}, s{sU2}, 9
        v_add_u32 v{t0}, s{sO}, v{vN}
        v_and_b32 v{t1}, 1, v{t0}
        v_lshlrev_b32 v{t1}, 8, v{t1}
        v_bfe_u32 v{t2}, v{t0}, 1, 4
        v_lshl_add_u32 v{t1}, v{t2}, 4, v{t1}
        v_lshrrev_b32 v{t2}, 5, v{t0}
        v_lshl_add_u32 v{t1}, v{t2}, 9, v{t1}
        v_mul_u32_u24 v{vHg}, 36864, v{vG}
        v_add_u32 v{vHg}, v{vHg}, v{t1}
        """)
        for k in range(4):
            g(f"s_load_dwordx4 s[{[8,12,24,52][k]}:{[8,12,24,52][k]+3}], s[{sBP}:{sBP+1}], {k*128} glc")
        assert c1_ + c2_ <= 16
        if opt.get("b_sleep"): g(f"s_sleep {opt['b_sleep']}")
        if numa:
            g(f"""
            s_lshl_b32 s{sO}, s{sMSG}, 1
            s_add_u32 s{sO}, s{sO}, s{sHG}
            s_lshl_b32 s{sO}, s{sO}, 7
            s_add_u32 s{sO}, s{sO}, {DP}
            s_add_u32 s{sDP}, s4, s{sO}
            s_addc_u32 s{sDP+1}, s5, 0
            s_lshr_b32 s{sTMP}, s{sXCD}, 2
            s_or_b32 s{sTMP}, s{sTMP}, s{sW}
            s_cmp_lg_u32 s{sTMP}, 0
            s_cbranch_scc1 L_B_noann
            s_xor_b32 s{sTMP}, s{sT+1}, s{sPhi}
            v_mov_b32 v{t0}, s{sT}
            v_mov_b32 v{t1}, s{sTMP}
            v_lshlrev_b32 v{t2}, 3, v{vL}
            s_mov_b64 exec, 0xffff
            buffer_store_dwordx2 {v(t0,2)}, v{t2}, {WS}, s{sO} offen sc1
            s_mov_b64 exec, -1
            """)
            g.lab("L_B_noann")
        g.stamp(8)
        ckv_stream(c1_ + c2_, 32)
        if numa:
            g(f"""
            s_cmp_lt_u32 s{sXCD}, 4
            s_cbranch_scc1 L_B_phok
            s_mov_b32 s{sCNT}, 0
            """)
            g.lab("L_B_phpoll")
            g(f"s_load_dwordx2 s[16:17], s[{sDP}:{sDP+1}], 0 glc")
            spin_guard(g, "L_B_phok")
            g(f"""
            s_waitcnt lgkmcnt(0)
            s_xor_b64 s[16:17], s[16:17], s[{sT}:{sT+1}]
            s_lshr_b32 s{sTMP}, s17, 1
            s_or_b32 s{sTMP}, s{sTMP}, s16
            s_cbranch_scc1 L_B_phpoll
            s_cmp_lg_u32 s17, s{sPhi}
            s_cbranch_scc1 L_B_phok
            s_branch L_B_refetch
            """)
            g.lab("L_B_phok")
            g(f"s_lshl_b32 s{sMSG}, s{sMSG}, 1")
            g(f"s_add_u32 s{sMSG}, s{sMSG}, s{sPhi}")
            msg_addr()
            if opt.get("stamps"): g(f"s_mov_b32 s98, s{sPhi}")
        NW1 = 0 if "w1" in opt.get("skip", "") else 11
        w1pos = opt.get("w1_pos", 0)
        def w1_stream():
            if "w1" in opt.get("skip", ""): return
            g(f"s_mul_i32 s{sO2}, s{sR0}, 9216")
            g(f"s_lshl_b32 s{sO3}, s{sBlk}, 8")
            g(f"s_add_u32 s{sO2}, s{sO2}, s{sO3}")
            for i in range(11):
                g(f"buffer_load_dwordx4 {v(vW1+4*i,4)}, v{vW1a}, {W1}, s{sO2} offen {NT}")
                if i < 10: g(f"s_add_u32 s{sO2}, s{sO2}, {4*9216}")
                if i == 9:
                    g(f"s_cmp_ge_u32 s{sRho}, 4")
                    g(f"s_cselect_b32 s{sO2}, {576*9216}, s{sO2}")
        def w1_gemv(store=True):
            vH = 140
            for i in range(10):
                g(f"{MF} {v(vH,4)}, {v(vXA+4*i,4)}, {v(vW1+4*i,4)}, {'0' if i == 0 else v(vH,4)}")
            g(f"s_cmp_ge_u32 s{sRho}, 4")
            g("s_cbranch_scc1 L_B_w1s")
            g(f"{MF} {v(vH,4)}, {v(vXA+40,4)}, {v(vW1+40,4)}, {v(vH,4)}")
            g.lab("L_B_w1s")
            g(f"""
            s_mul_i32 s{sO}, s{sRho}, 36864
            s_lshl_b32 s{sO3}, s{sBlk}, 9
            s_add_u32 s{sO}, s{sO}, s{sO3}
            s_add_u32 s{sO}, s{sO}, {HH}
            s_and_b32 s{sO3}, s{sT}, 15
            """)
            for r in range(4):
                g(f"v_and_or_b32 v{vH+r}, v{vH+r}, -16, s{sO3}")
            g(f"s_mov_b32 s{sR0}, s{sO}")
        def w2_stream():
            g(f"s_mul_i32 s{sO2}, s{sU2}, {36*1152}")
            unit_load(g, W2, vP2, None, sO2, 1152, "w2", NT, vdst=vW2, w0extra=False)
        NW1 = 0
        if w1b:
            assert opt.get("w2_pos", 0) != 2 and opt.get("pv_pre", 4) == 4
            w1_stream(); NW1 = 0 if "w1" in opt.get("skip", "") else 11
        if opt.get("w2_pos", 0) == 2:
            w2_stream(); NW1 = 0 if "w2" in opt.get("skip", "") else 11
        g.stamp(1)
        g(f"s_lshl_b32 m0, s{sW}, 12")
        sD = [8, 12, 24, 52]
        def d1poll():
            for k in range(4):
                g(f"s_load_dwordx4 s[{sD[k]}:{sD[k]+3}], s[{sBP}:{sBP+1}], {k*128} glc")
        def d1chk():
            for k in range(4):
                g(f"s_xor_b64 s[{sD[k]}:{sD[k]+1}], s[{sD[k]}:{sD[k]+1}], s[{sTT}:{sTT+1}]")
                g(f"s_xor_b64 s[{sD[k]+2}:{sD[k]+3}], s[{sD[k]+2}:{sD[k]+3}], s[{sTT}:{sTT+1}]")
                g(f"s_or_b64 s[{sD[k]}:{sD[k]+1}], s[{sD[k]}:{sD[k]+1}], s[{sD[k]+2}:{sD[k]+3}]")
            g("s_or_b64 s[8:9], s[8:9], s[12:13]")
            g("s_or_b64 s[24:25], s[24:25], s[52:53]")
            g("s_or_b64 s[8:9], s[8:9], s[24:25]")
        def qdma():
            for k in range(4):
                g(f"buffer_load_dwordx4 v{vQd+k}, {WS}, s{sQg} offen offset:{k*1024} sc1 lds")
        def look(tag):
            if tag[0] not in opt.get("looks", "abcd"): return
            g(f"s_cmp_lg_u32 s{sGot}, 0")
            g(f"s_cbranch_scc1 L_B_lk{tag}")
            g("s_waitcnt lgkmcnt(0)")
            d1chk()
            g(f"s_cbranch_scc1 L_B_lp{tag}")
            g.stamp(3)
            qdma()
            g(f"s_mov_b32 s{sGot}, 1")
            g(f"s_branch L_B_lk{tag}")
            g.lab(f"L_B_lp{tag}")
            d1poll()
            g.lab(f"L_B_lk{tag}")
        def pvgroup(k):
            for ct in range(8):
                tmp = t0 + (ct & 1)
                g(f"v_xor_b32 v{tmp}, {ct<<5}, v{vPVb+k}")
                for hi in range(2):
                    g(f"ds_read_b64_tr_b16 {A(aP+(ct*4+k)*4+2*hi,2)}, v{tmp} offset:{hi*16384}")
        npre = opt.get("pv_pre", 4)
        vPA = 168
        def pvrd(k, ct, hi):
            g(f"ds_read_b64_tr_b16 {A(aP+(ct*4+k)*4+2*hi,2)}, v{vPA+8*k+ct} offset:{hi*16384}")
        qd = opt.get("q_direct", 0)
        if qd:
            vQr = 140
            def qld():
                for k in range(4):
                    g(f"buffer_load_dwordx4 {v(vQr+4*k,4)}, v{vL16}, {WS}, s{sQg} offen offset:{k*1024} sc1")
            def qchk():
                g(f"v_cmp_eq_u32 vcc, s{sPOI}, v{vQr}")
                for k in range(1, 4):
                    g(f"v_cmp_eq_u32 s[{sM1}:{sM1+1}], s{sPOI}, v{vQr+4*k}")
                    g(f"s_or_b64 vcc, vcc, s[{sM1}:{sM1+1}]")
            g("s_waitcnt lgkmcnt(0)")
            g(f"s_mov_b32 s{sCNT}, 0")
            g.lab("L_B_rdy")
            d1poll()
            spin_guard(g, "L_B_rdy2")
            g("s_waitcnt lgkmcnt(0)")
            d1chk()
            g("s_cbranch_scc1 L_B_rdy")
            g.lab("L_B_rdy2")
            g(f"s_lshl_b32 s{sTMP}, s{sW}, 12")
            for k in range(4): g(f"v_add_u32 v{vQd+k}, s{sTMP}, v{vQd+k}")
            g(f"s_waitcnt vmcnt({16+NW1})")
            for ks in range(16):
                g(f"ds_read_b128 {A(aS+ks*4,4)}, v{vSB+(ks&3)} offset:{(ks>>2)*256}")
            g(f"s_waitcnt vmcnt({opt.get('q_at', 0)+NW1})")
            g.stamp(3)
            qld()
            g(f"s_waitcnt vmcnt({4+NW1})")
            g.stamp(2)
            for ks in range(16):
                g(f"ds_read_b128 {A(aS+64+ks*4,4)}, v{vSB+(ks&3)} offset:{16384+(ks>>2)*256}")
            g("s_barrier")
            g(f"s_mov_b32 s{sGot}, 0")
            half = opt.get("q_mid", 2)
            for k in range(npre):
                if k == half:
                    g("s_waitcnt vmcnt(0)")
                    qchk()
                    g("s_cbranch_scc0 L_B_qm")
                    qld()
                    g.lab("L_B_qm")
                pvgroup(k)
            g(f"s_mov_b32 s{sCNT}, 0")
            g.lab("L_B_qchk")
            g("s_waitcnt vmcnt(0)")
            qchk()
            g("s_cbranch_scc1 L_B_qagain")
            g.lab("L_B_qgood")
            if opt.get("stamps"): g(f"s_mov_b32 s100, s{sCNT}")
            for k in range(4):
                g(f"ds_write_b128 v{vQd+k}, {v(vQr+4*k,4)} offset:{k*1024}")
        else:
            g("s_waitcnt lgkmcnt(0)")
            if opt.get("looks", "abcd"): d1poll()
            g(f"s_mov_b32 s{sGot}, 0")
            g(f"s_waitcnt vmcnt({16+NW1})")
            for ks in range(16):
                g(f"ds_read_b128 {A(aS+ks*4,4)}, v{vSB+(ks&3)} offset:{(ks>>2)*256}")
            if w1b:
                for i in range(11):
                    for d in range(4):
                        g(f"v_perm_b32 v{vXA+4*i+d}, v{vXr+2*i+1}, v{vXr+2*i}, v{vSel+d}")
            for z in range(opt.get("b_looks", 2)): look(f"a{z}")
            g(f"s_cmp_lg_u32 s{sGot}, 0")
            g("s_cbranch_scc1 L_B_cw1")
            g(f"s_waitcnt vmcnt({NW1})")
            g.lab("L_B_cw1")
            g(f"s_waitcnt vmcnt({4+NW1})")
            g.stamp(2)
            look("b")
            for ks in range(16):
                g(f"ds_read_b128 {A(aS+64+ks*4,4)}, v{vSB+(ks&3)} offset:{16384+(ks>>2)*256}")
            g("s_barrier")
            def pvgroup(k):
                for ct in range(8):
                    tmp = t0 + (ct & 1)
                    g(f"v_xor_b32 v{tmp}, {ct<<5}, v{vPVb+k}")
                    for hi in range(2):
                        g(f"ds_read_b64_tr_b16 {A(aP+(ct*4+k)*4+2*hi,2)}, v{tmp} offset:{hi*16384}")
            npre = opt.get("pv_pre", 4)
            vPA = 168
            def pvrd(k, ct, hi):
                g(f"ds_read_b64_tr_b16 {A(aP+(ct*4+k)*4+2*hi,2)}, v{vPA+8*k+ct} offset:{hi*16384}")
            for k in range(npre):
                look(f"c{k}")
                pvgroup(k)
            if w1b:
                look("d")
                g(f"s_cmp_lg_u32 s{sGot}, 0")
                g("s_cbranch_scc1 L_B_cw2")
                g("s_waitcnt vmcnt(0)")
                g.lab("L_B_cw2")
                g("s_waitcnt vmcnt(4)")
                w1_gemv(False)
            g(f"s_mov_b32 s{sCNT}, 0")
            g(f"s_cmp_lg_u32 s{sGot}, 0")
            g("s_cbranch_scc1 L_B_qwait")
            if opt.get("looks", "abcd"): g("s_branch L_B_d1chk")
            g.lab("L_B_d1poll")
            d1poll()
            spin_guard(g, "L_B_qget0")
            g.lab("L_B_d1chk")
            g("s_waitcnt lgkmcnt(0)")
            d1chk()
            g("s_cbranch_scc1 L_B_d1poll")
            g.stamp(3)
            g.lab("L_B_qget0")
            g(f"s_mov_b32 s{sCNT}, 0")
            qdma()
            g.lab("L_B_qwait")
        nb = 0
        if w1b:
            g(f"buffer_store_dwordx4 {v(140,4)}, v{vHs}, {WS}, s{sR0} offen sc1")
            nb = 1
        if opt.get("w2_pos", 0) == 3:
            g(f"s_mul_i32 s{sO2}, s{sU2}, {36*1152}")
            g(f"s_mul_i32 s{sO}, s{sW}, {8*1152}")
            g(f"s_add_u32 s{sO}, s{sO}, s{sO2}")
            g(f"s_add_u32 s{sO2}, s{sO2}, {32*1152}")
        if opt.get("w2_pos", 0) == 0:
            w2_stream(); nb += 0 if "w2" in opt.get("skip", "") else 11
        g(f"s_waitcnt vmcnt({nb}) lgkmcnt(0)")
        g.lab("L_B_qbar")
        g("s_barrier")
        g.stamp(4)
        def ebell():
            g(f"""
            s_cmp_lg_u32 s{sW}, 2
            s_cbranch_scc1 L_B_noeb
            s_sub_u32 s{sTMP}, s{sD2}, {D2}
            s_lshr_b32 s{sTMP}, s{sTMP}, 1
            s_add_u32 s{sTMP}, s{sTMP}, {DE2 if opt.get("e_rep") else DE}
            v_lshlrev_b32 v{t3}, {14 if opt.get("e_rep") else 4}, v{vL}
            s_mov_b64 exec, 0xff
            buffer_store_dwordx4 {v(vML,4)}, v{t3}, {WS}, s{sTMP} offen sc1
            s_mov_b64 exec, -1
            """)
            g.lab("L_B_noeb")
        vQ = 64
        vS = 156
        PRE = 4 if npre < 4 else 6
        late = [(k, ct, hi) for k in range(npre, 4) for ct in range(8) for hi in range(2)]
        per = 2 if late else 0
        seq = []
        for ks in range(PRE):
            g(f"ds_read_b128 {v(vQ+4*ks,4)}, v{vQBs+(ks&3)} offset:{(ks>>2)*256}"); seq.append(("q", ks))
        for ks in range(16):
            if opt.get("e_pos") == ks: ebell()
            if ks + PRE < 16:
                k2 = ks + PRE
                g(f"ds_read_b128 {v(vQ+4*k2,4)}, v{vQBs+(k2&3)} offset:{(k2>>2)*256}"); seq.append(("q", k2))
            for _ in range(per if ks + PRE < 16 else per + 1):
                if late:
                    pvrd(*late.pop(0)); seq.append(("p",))
            g(f"s_waitcnt lgkmcnt({min(15, len(seq) - 1 - seq.index(('q', ks)))})")
            for kt in range(2):
                g(f"{MF} {v(vS+4*kt,4)}, {A(aS+(kt*16+ks)*4,4)}, {v(vQ+4*ks,4)}, {'0' if ks == 0 else v(vS+4*kt,4)}")
            if opt.get("w2_pos", 0) == 3 and 4 <= ks < 15:
                i = ks - 4
                if i == 10: g("s_mov_b32 exec_hi, 0")
                g(f"buffer_load_dwordx4 {v(vW2+4*i,4)}, v{vP2+(i if i < 10 else 4)}, {W2}, s{sO if i < 9 else sO2} offen {NT}")
                if i == 10: g("s_mov_b64 exec, -1")
        CS = math.log2(math.e) * 128 ** -0.5
        g(f"s_mov_b32 s{sC}, {hex(fbits(CS))}")
        g(f"""
        {"" if qd else f"v_cmp_u_f32 vcc, v{vS}, v{vS}"}
        v_max3_f32 v{t0}, v{vS}, v{vS+1}, v{vS+2}
        v_max3_f32 v{t1}, v{vS+3}, v{vS+4}, v{vS+5}
        v_max3_f32 v{t0}, v{t0}, v{vS+6}, v{vS+7}
        v_max_f32 v{t0}, v{t0}, v{t1}
        {"" if qd else "s_cbranch_vccnz L_B_qslow"}
        """)
        g.lab("L_B_qok")
        if opt.get("stamps") and not qd: g(f"s_mov_b32 s100, s{sCNT}")
        g(f"""
        ds_write_b32 v{vMXw}, v{t0} offset:{B_MX}
        s_waitcnt lgkmcnt(0)
        s_barrier
        """)
        g.stamp(5)
        vM = 64
        for q in range(4):
            g(f"ds_read_b128 {v(vM+4*q,4)}, v{vMXr} offset:{B_MX+q*256}")
        g(f"""
        s_waitcnt lgkmcnt(2)
        v_max3_f32 v{vM}, v{vM}, v{vM+1}, v{vM+2}
        v_max3_f32 v{vM+3}, v{vM+3}, v{vM+4}, v{vM+5}
        v_max3_f32 v{vM}, v{vM}, v{vM+6}, v{vM+7}
        s_waitcnt lgkmcnt(0)
        v_max3_f32 v{vM+8}, v{vM+8}, v{vM+9}, v{vM+10}
        v_max3_f32 v{vM+11}, v{vM+11}, v{vM+12}, v{vM+13}
        v_max3_f32 v{vM+8}, v{vM+8}, v{vM+14}, v{vM+15}
        v_max3_f32 v{vM}, v{vM}, v{vM+3}, v{vM+11}
        v_max_f32 v{vM}, v{vM}, v{vM+8}
        v_mul_f32 v{vML}, s{sC}, v{vM}
        """)
        n1 = min(len(late), 14)
        for _ in range(n1): pvrd(*late.pop(0))
        def stat(wave, off, tag):
            g(f"s_cmp_lg_u32 s{sW}, {wave}")
            g(f"s_cbranch_scc1 L_B_nost{tag}")
            if off: g(f"s_add_u32 s{sD2}, s{sD2}, {off}")
            g("s_mov_b64 exec, 0xffff")
            g(f"buffer_store_dwordx4 {v(vML,4)}, v{vL16}, {WS}, s{sD2} offen sc1")
            g("s_mov_b64 exec, -1")
            g.lab(f"L_B_nost{tag}")
        if opt.get("m_early"): stat(1, 0, "m")
        for k in range(8):
            g(f"v_fma_f32 v{vS+k}, v{vS+k}, s{sC}, -v{vML}")
        for k in range(8):
            g(f"v_exp_f32 v{vS+k}, v{vS+k}")
        vPf = 80
        vO = 96
        for k in range(4):
            g(f"v_cvt_pk_bf16_f32 v{vPf+k}, v{vS+2*k}, v{vS+2*k+1}")
        g(f"ds_write_b128 v{vPw}, {v(vPf,4)} offset:{B_PB}")
        g(f"""
        v_pk_add_f32 {v(vS,2)}, {v(vS,2)}, {v(vS+2,2)}
        v_pk_add_f32 {v(vS+4,2)}, {v(vS+4,2)}, {v(vS+6,2)}
        v_pk_add_f32 {v(vS,2)}, {v(vS,2)}, {v(vS+4,2)}
        v_add_f32 v{vS}, v{vS}, v{vS+1}
        ds_write_b32 v{vMXw}, v{vS} offset:{B_LS}
        """)
        def pv(k, cts=range(8)):
            for ct in cts:
                g(f"{MF} {v(vO+4*ct,4)}, {v(vPf+4*k,4)}, {A(aP+(ct*4+k)*4,4)}, {'0' if k == 0 else v(vO+4*ct,4)}")
        pv(0, range(2))
        if not opt.get("m_early"): stat(1, 0, "m")
        g("s_waitcnt lgkmcnt(0)")
        g("s_barrier")
        g.stamp(6)
        for k in range(1, 4):
            g(f"ds_read_b128 {v(vPf+4*k,4)}, v{[0,20,21,23][k]} offset:{B_PB}")
        for q in range(4):
            g(f"ds_read_b128 {v(vM+4*q,4)}, v{vMXr} offset:{B_LS+q*256}")
        nl = len(late)
        assert all(k == 3 for k, _, _ in late)
        for ct in range(2, 8):
            pv(0, [ct])
            for _ in range(3):
                if late: pvrd(*late.pop(0))
        assert not late
        g(f"s_waitcnt lgkmcnt({min(15, 6 + nl)})")
        adds = [f"v_pk_add_f32 {v(vM,2)}, {v(vM,2)}, {v(vM+2,2)}", f"v_pk_add_f32 {v(vM+4,2)}, {v(vM+4,2)}, {v(vM+6,2)}",
                f"v_pk_add_f32 {v(vM+8,2)}, {v(vM+8,2)}, {v(vM+10,2)}", f"v_pk_add_f32 {v(vM+12,2)}, {v(vM+12,2)}, {v(vM+14,2)}",
                f"v_pk_add_f32 {v(vM,2)}, {v(vM,2)}, {v(vM+4,2)}", f"v_pk_add_f32 {v(vM+8,2)}, {v(vM+8,2)}, {v(vM+12,2)}",
                f"v_pk_add_f32 {v(vM,2)}, {v(vM,2)}, {v(vM+8,2)}", f"v_add_f32 v{vML}, v{vM}, v{vM+1}"]
        pv(1, range(4))
        g("s_waitcnt lgkmcnt(0)")
        for ct in range(4, 8):
            pv(1, [ct])
            g(adds[2 * (ct - 4)]); g(adds[2 * (ct - 4) + 1])
        dbpos = opt.get("d2_pos", 2)
        if dbpos == 2: stat(0, DL - D2, "l")
        vOo = 64
        def cv(k, rs=range(4)):
            for r in rs:
                g(f"v_cvt_pk_bf16_f32 v{vOo+4*r+k}, v{vO+8*k+r}, v{vO+8*k+4+r}")
        def tg(k, rs=range(4)):
            for r in rs:
                g(f"v_and_or_b32 v{vOo+4*r+k}, v{vOo+4*r+k}, s{sMk}, v{vPat}")
        for p in range(4):
            pv(2, [2 * p, 2 * p + 1])
            if p >= 2: cv(p - 2, (0, 1))
            pv(3, [2 * p])
            if p >= 2: cv(p - 2, (2, 3))
            pv(3, [2 * p + 1])
            if p >= 2: tg(p - 2)
            if dbpos == 3 and p == 1: stat(0, DL - D2, "l")
        cv(2); tg(2)
        for r in range(4):
            cv(3, [r]); tg(3, [r])
            g(f"s_add_u32 s{sO}, s{sOo}, {4*r*OSTR}")
            g(f"buffer_store_dwordx4 {v(vOo+4*r,4)}, v{vOa}, {WS}, s{sO} offen sc1")
        if dbpos == 4: stat(0, DL - D2, "l")
        g.stamp(7)
        vHr = 80
        vEr = 96
        g(f"""
        s_and_b32 s{sTMP}, s{sW}, 1
        s_mul_i32 s{sO}, s{sTMP}, 18432
        s_add_u32 s{sO}, s{sO}, {HH}
        s_add_u32 s{sO2}, s{sO}, {4*36864}
        s_add_u32 s{sO3}, s{sO}, {8*36864}
        s_add_u32 s{sC}, s{sO}, {12*36864}
        s_and_b32 s{sPat}, s{sT}, 15
        s_mov_b32 s{sCNT}, 0
        """)
        for k in range(4): g(f"v_mov_b32 v{vHr+12+k}, s{sPat}")
        def hget():
            g("s_mov_b32 exec_lo, 0x01ff01ff")
            g("s_mov_b32 exec_hi, 0x01ff01ff")
            for u, so in enumerate((sO, sO2, sO3, sC)):
                if u == 3: g("s_mov_b32 exec_hi, 0")
                g(f"buffer_load_dwordx4 {v(vHr+4*u,4)}, v{vHg}, {WS}, s{so} offen sc1")
            g("s_mov_b64 exec, -1")
        g(f"s_cmp_gt_u32 s{sW}, 1")
        g("s_cbranch_scc1 L_B_noh1")
        hget()
        g.lab("L_B_noh1")
        if npre < 4: g("s_barrier")
        if opt.get("w2_pos", 0) == 1:
            if opt.get("w2_wait"): g("s_waitcnt vmcnt(0)")
            if opt.get("b_sleep2"): g(f"s_sleep {opt['b_sleep2']}")
            g(f"s_mul_i32 s{sR0}, s{sU2}, {36*1152}")
            g(f"s_mov_b32 s{sRho}, s{sO}")
            unit_load(g, W2, vP2, B_W2, sR0, 1152, "w2", NT, thr=opt.get("w2_thr"))
            g(f"s_mov_b32 s{sO}, s{sRho}")
        else:
            g(f"s_mul_i32 s{sTMP}, s{sW}, 9216")
            g(f"v_add_u32 v{t2}, s{sTMP}, v{vL16}")
            g("s_waitcnt vmcnt(4)")
            for i in range(9):
                g(f"ds_write_b128 v{t2}, {v(vW2+4*i,4)} offset:{B_W2+i*1024}")
            g(f"ds_write_b128 v{vPw}, {v(vW2+36,4)} offset:{B_W2+36864}")
            g(f"ds_write_b128 v{vL16}, {v(vW2+40,4)} offset:{B_W2+36864+4096}")
        g(f"s_cmp_gt_u32 s{sW}, 1")
        g("s_cbranch_scc1 L_B_hbar")
        g.lab("L_B_hchk")
        g("s_mov_b32 exec_lo, 0x01ff01ff")
        g("s_mov_b32 exec_hi, 0x01ff01ff")
        g("s_waitcnt vmcnt(0)")
        g.stamp(10)
        vHx = 100
        for k in range(16):
            g(f"v_xor_b32 v{vHx+k}, s{sPat}, v{vHr+k}")
        g(f"v_or3_b32 v{vEr}, v{vHx}, v{vHx+1}, v{vHx+2}")
        for k in range(3, 15, 2):
            g(f"v_or3_b32 v{vEr}, v{vEr}, v{vHx+k}, v{vHx+k+1}")
        g(f"v_or_b32 v{vEr}, v{vEr}, v{vHx+15}")
        g(f"v_and_b32 v{vEr}, 15, v{vEr}")
        g(f"v_cmp_ne_u32 vcc, 0, v{vEr}")
        g("s_cbranch_vccnz L_B_hslow")
        g.lab("L_B_hok")
        c1 = -2.0 * math.log2(math.e) * math.sqrt(2.0 / math.pi)
        g(f"""
        v_pk_add_f32 {v(vHx,2)}, {v(vHx,2)}, {v(vHx+4,2)}
        v_pk_add_f32 {v(vHx+2,2)}, {v(vHx+2,2)}, {v(vHx+6,2)}
        v_pk_add_f32 {v(vHx+8,2)}, {v(vHx+8,2)}, {v(vHx+12,2)}
        v_pk_add_f32 {v(vHx+10,2)}, {v(vHx+10,2)}, {v(vHx+14,2)}
        v_pk_add_f32 {v(vHx,2)}, {v(vHx,2)}, {v(vHx+8,2)}
        v_pk_add_f32 {v(vHx+2,2)}, {v(vHx+2,2)}, {v(vHx+10,2)}
        v_lshlrev_b32 v{vB1}, 16, v{vB1}
        v_mov_b32 v{t1}, {hex(fbits(c1))}
        v_permlane32_swap_b32 v{vHx}, v{vHx+1}
        v_permlane32_swap_b32 v{vHx+2}, v{vHx+3}
        v_add_f32 v{vHx}, v{vHx}, v{vHx+1}
        v_add_f32 v{vHx+2}, v{vHx+2}, v{vHx+3}
        s_mov_b32 s{sC}, {hex(fbits(c1*0.044715))}
        v_permlane16_swap_b32 v{vHx}, v{vHx+2}
        v_add_f32 v{vHx}, v{vHx}, v{vHx+2}
        v_add_f32 v{vHx}, v{vHx}, v{vB1}
        v_mul_f32 v{t0}, v{vHx}, v{vHx}
        v_fma_f32 v{t0}, v{t0}, s{sC}, v{t1}
        v_mul_f32 v{t0}, v{t0}, v{vHx}
        v_exp_f32 v{t0}, v{t0}
        v_add_f32 v{t0}, 1.0, v{t0}
        v_rcp_f32 v{t0}, v{t0}
        v_mul_f32 v{t0}, v{t0}, v{vHx}
        v_cvt_pk_bf16_f32 v{t0}, v{t0}, v{t0}
        ds_write_b16 v{vHw}, v{t0} offset:{B_HL}
        s_mov_b64 exec, -1
        """)
        g.lab("L_B_hbar")
        g("s_waitcnt vmcnt(0) lgkmcnt(0)" if opt.get("w2_pos", 0) == 1 else "s_waitcnt lgkmcnt(0)")
        g("s_barrier")
        g.stamp(11)
        aW = 0
        vHA = 64
        vY = 96
        g(f"ds_read2_b64 {v(vHA,4)}, v{vHe} offset0:0 offset1:4")
        g(f"ds_read2_b64 {v(vHA+6,4)}, v{vHo} offset0:0 offset1:4")
        def w2reads(t):
            for x in range(2):
                b = aW + (t * 2 + x) * 6
                g(f"ds_read_b64_tr_b16 {A(b,2)}, v{vT21 if x else vT20} offset:{t*256}")
                g(f"ds_read_b64_tr_b16 {A(b+2,2)}, v{vT21 if x else vT20} offset:{16*1152+t*256}")
        def w2rk(t):
            for x in range(2):
                b = aW + (t * 2 + x) * 6
                g(f"ds_read_b64_tr_b16 {A(b+4,2)}, v{vK21 if x else vK20} offset:{t*256}")
        def w2mf(t):
            for x in range(2):
                b = aW + (t * 2 + x) * 6
                g(f"{MF} {v(vY+4*t,4)}, {v(vHA+6*x,4)}, {A(b,4)}, {'0' if x == 0 else v(vY+4*t,4)}")
        def w2mf16(t):
            for x in range(2):
                b = aW + (t * 2 + x) * 6
                g(f"{MF16} {v(vY+4*t,4)}, {v(vHA+6*x+4,2)}, {A(b+4,2)}, {v(vY+4*t,4)}")
        w2reads(0); w2reads(1); w2reads(2)
        g("s_waitcnt lgkmcnt(8)")
        w2mf(0)
        w2reads(3)
        g("s_waitcnt lgkmcnt(8)")
        w2mf(1)
        w2reads(4)
        g("s_waitcnt lgkmcnt(8)")
        w2mf(2)
        g(f"ds_read_b64 {v(vHA+4,2)}, v{vHke}")
        g(f"ds_read_b64 {v(vHA+10,2)}, v{vHko}")
        w2rk(0); w2rk(1)
        g("s_waitcnt lgkmcnt(10)")
        w2mf(3)
        w2rk(2); w2rk(3); w2rk(4)
        g("s_waitcnt lgkmcnt(12)")
        w2mf(4)
        for t in range(5):
            g(f"s_waitcnt lgkmcnt({2*(4-t)})")
            w2mf16(t)
        for t in range(4):
            g(f"v_and_or_b32 v{vHA+t}, v{vY+4*t}, -16, s{sPat}")
        g(f"buffer_store_dwordx4 {v(vHA,4)}, v{vH3}, {WS}, s{sH3m} offen sc1")
        g(f"s_cmp_gt_u32 s{sW}, 1")
        g("s_cbranch_scc1 L_B_no5b")
        g(f"v_and_or_b32 v{vY+16}, v{vY+16}, -16, s{sPat}")
        g(f"buffer_store_dword v{vY+16}, v{vH3x}, {WS}, s{sH3l} offen sc1")
        g.lab("L_B_no5b")
        g.stamp(12)
        dump_stamps(g, 16, 216)
        g("s_endpgm")
        if numa:
            g.lab("L_B_refetch")
            g(f"s_xor_b32 s{sPhi}, s{sPhi}, 1")
            g("s_waitcnt vmcnt(0)")
            ckv_base()
            ckv_stream(0, 32)
            g("s_branch L_B_phok")
        g.lab("L_B_hslow")
        spin_guard(g, "L_B_hok")
        hget()
        g("s_branch L_B_hchk")
        if qd:
            g.lab("L_B_qagain")
            spin_guard(g, "L_B_qgood")
            qld()
            g("s_branch L_B_qchk")
            return
        g.lab("L_B_qslow")
        spin_guard(g, "L_B_qok")
        g(f"s_mov_b64 s[{sM1}:{sM1+1}], 0")
        for ks in range(16):
            g(f"v_cmp_eq_u32 vcc, s{sPOI}, v{vQ+4*ks}")
            g(f"s_or_b64 s[{sM1}:{sM1+1}], s[{sM1}:{sM1+1}], vcc")
        g("s_cbranch_scc0 L_B_qok")
        g("s_barrier")
        qdma()
        g("s_waitcnt vmcnt(0)")
        g("s_branch L_B_qbar")

if __name__ == "__main__":
    opt = eval("dict(%s)" % (sys.argv[2] if len(sys.argv) > 2 else ""))
    open(sys.argv[1], "w").write(gen(opt))
```

```python
import sys, os, math, struct
sys.path.insert(0, os.path.dirname(os.path.abspath(__file__)))
from hazard import pad

KNAME = "gated_mix__compressed_kv_cla__dense_activation_gelu__decode_kernel"

WS_BYTES = 256 << 20
EPOCH = 0x0
DP = 0x2000
D1 = 0x8000
D3 = 0x10000
DH = 0x18000
DE = 0x1C000
D2 = 0x20000
DL = 0x28000
DE2 = 0x40000
QB = 0x80000
HB = 0xA0000
H0 = 0xC0000
LOC = 0x100000
H3 = 0x200000
USTR = 16384 + 256
HH = 0x340000
OB = 0x480000
OSTR = 16384 + 256
STAMP = 0x1000000
POISON = 0xFFA5FFA5
K0, K1 = 0x9E3779B9, 0x7F4A7C15
SPIN = 1 << 20

A_WUV = 0
A_QL = 32768
A_ZERO = 33280
A_WT = 33536
A_CTXC = 33792
A_RED = 34816
A_WO = 35840
A_W1 = A_WO + 36864
A_QP = A_WO
B_QF = 0
B_PB = 16384
B_MX = 20480
B_HL = 21504
B_ZERO = 21760
B_PHI = 21888
B_LS = 22528
B_CKV = 23552
B_W2 = B_CKV
LDS_BYTES = 154624

def f16sw(i):
    return (((i & 7) ^ ((i >> 3) << 2)) << 1) | (i >> 3)

def fbits(x):
    return struct.unpack("<I", struct.pack("<f", x))[0]

class G:
    def __init__(self, opt):
        self.l = []
        self.opt = opt
        self.nst = 0
        self.inA = False
    def __call__(self, s):
        for x in s.strip("\n").split("\n"):
            x = x.strip()
            if x: self.l.append("    " + x)
    def lab(self, n): self.l.append(n + ":")
    def c(self, s): self.l.append("    ; " + s)
    def stamp(self, i):
        if self.opt.get("stamps") and not (self.opt.get("fst") and 5 <= i <= 12 and self.inA):
            self(f"s_memrealtime s[{70+2*i}:{71+2*i}]")
    def fstamp(self, i):
        if self.opt.get("stamps") and self.opt.get("fst"):
            self(f"s_memrealtime s[{70+2*i}:{71+2*i}]")

def v(a, n=1): return f"v{a}" if n == 1 else f"v[{a}:{a+n-1}]"
def A(a, n=1): return f"a{a}" if n == 1 else f"a[{a}:{a+n-1}]"
def S(a, n=1): return f"s{a}" if n == 1 else f"s[{a}:{a+n-1}]"

sW = 3
WS, X = "s[4:7]", "s[8:11]"
sT = 40
sXCD, sI = 42, 43
sA, sH, sJ = 44, 45, 46
sHG, sB, sMSG, sU2 = 44, 45, 46, 47
sO, sO2, sO3, sCNT = 48, 49, 50, 51
sM1, sM2, sM3, sM4 = 52, 54, 56, 58
sPR = 60
sG0, sG1 = 61, 62
sTMP = 64
sPC = 66
sPOI = 68
sC = 69

def srd(g, base, slot, nbytes):
    g(f"s_load_dwordx2 s[{base}:{base+1}], s[0:1], {slot*8}")
    g(f"s_mov_b32 s{base+2}, {nbytes}")
    g(f"s_mov_b32 s{base+3}, 0x00020000")

def dump_stamps(g, n, tmpv):
    if not g.opt.get("stamps") or g.opt.get("probe") is not None: return
    g("s_waitcnt lgkmcnt(0)")
    g("s_mov_b64 exec, 1")
    g(f"s_lshl_b32 s{sO}, s2, 2")
    g(f"s_add_u32 s{sO}, s{sO}, s{sW}")
    g(f"s_lshl_b32 s{sO}, s{sO}, 6")
    g(f"s_add_u32 s{sO}, s{sO}, {STAMP}")
    g(f"v_mov_b32 v{tmpv+4}, 0")
    for q in range(0, 16, 4):
        for k in range(4):
            g(f"v_mov_b32 v{tmpv+k}, s{70+2*(q+k)}")
        g(f"buffer_store_dwordx4 {v(tmpv,4)}, v{tmpv+4}, {WS}, s{sO} offen offset:{q*4}")
        g("s_nop 1")
    g("s_waitcnt vmcnt(0)")

def dual_next(g, regs):
    if not g.opt.get("dual", 1): return
    g(f"s_and_b32 s{sTMP}, s{sCNT}, 14")
    g(f"s_cmp_eq_u32 s{sTMP}, 14")
    g(f"s_cselect_b32 s{sTMP}, {LOC}, 0")
    for r in regs:
        g(f"s_xor_b32 s{r}, s{r}, s{sTMP}")

def spin_guard(g, out):
    g(f"s_add_u32 s{sCNT}, s{sCNT}, 1")
    g(f"s_cmp_gt_u32 s{sCNT}, {g.opt.get('spin', SPIN)}")
    g(f"s_cbranch_scc1 {out}")

def selectors(g, vSel, vL, t0, t1, t2):
    g(f"v_and_b32 v{t0}, 1, v{vL}")
    g(f"v_cmp_eq_u32 vcc, 1, v{t0}")
    g(f"v_mov_b32 v{t1}, 0x0c0c0100")
    g(f"v_mov_b32 v{t2}, 0x01000c0c")
    g(f"v_cndmask_b32 v{vSel+3}, v{t1}, v{t2}, vcc")
    g(f"v_mov_b32 v{t1}, 0x0c0c0302")
    g(f"v_mov_b32 v{t2}, 0x03020c0c")
    g(f"v_cndmask_b32 v{vSel+7}, v{t1}, v{t2}, vcc")
    g(f"v_bfe_u32 v{t0}, v{vL}, 1, 2")
    g(f"v_mov_b32 v{t1}, 0x0c0c0c0c")
    for d in range(4):
        g(f"v_cmp_eq_u32 vcc, {d}, v{t0}")
        g(f"v_cndmask_b32 v{vSel+d}, v{t1}, v{vSel+3}, vcc")
        g(f"v_cndmask_b32 v{vSel+4+d}, v{t1}, v{vSel+7}, vcc")

def unit_pattern(g, dst, vL, i_expr_sgpr, i_const, pitch, t0, t1):
    if i_expr_sgpr is not None:
        g(f"v_lshl_add_u32 v{t0}, s{i_expr_sgpr}, 6, v{vL}")
    else:
        g(f"v_add_u32 v{t0}, {64*i_const}, v{vL}")
    g(f"v_mul_u32_u24 v{t1}, 911, v{t0}")
    g(f"v_lshrrev_b32 v{t1}, 16, v{t1}")
    g(f"v_and_b32 v{dst}, 6, v{t1}")
    g(f"v_xor_b32 v{dst}, v{dst}, v{t0}")
    g(f"v_lshlrev_b32 v{dst}, 4, v{dst}")
    if pitch != 1152:
        g(f"v_mul_u32_u24 v{t1}, {pitch-1152}, v{t1}")
        g(f"v_add_u32 v{dst}, v{dst}, v{t1}")
assert all((911 * u) >> 16 == u // 72 for u in range(640))

def h3_addr(g, vH3, vH3x, vL, vN, vG, t0):
    g(f"v_lshrrev_b32 v{t0}, 3, v{vL}")
    g(f"v_mul_u32_u24 v{vH3}, {USTR}, v{t0}")
    g(f"v_and_b32 v{t0}, 7, v{vL}")
    g(f"v_lshl_add_u32 v{vH3}, v{t0}, 4, v{vH3}")
    g(f"v_lshrrev_b32 v{t0}, 5, v{vL}")
    g(f"v_mul_u32_u24 v{vH3x}, {USTR}, v{t0}")
    g(f"v_and_b32 v{t0}, 31, v{vL}")
    g(f"v_lshl_add_u32 v{vH3x}, v{t0}, 2, v{vH3x}")

def h3_soffs(g, s_main, s_left):
    g(f"s_lshl_b32 s{s_left}, s{sPR}, 7")
    g(f"s_add_u32 s{s_left}, s{s_left}, {H3}")
    g(f"s_mul_i32 s{s_main}, s{sW}, {8*USTR}")
    g(f"s_add_u32 s{s_main}, s{s_main}, s{s_left}")
    g(f"s_mul_i32 s{sTMP}, s{sW}, {2*USTR}")
    g(f"s_add_u32 s{s_left}, s{s_left}, s{sTMP}")
    g(f"s_add_u32 s{s_left}, s{s_left}, {32*USTR}")

def tr_pair_bases(g, vB0, vB1, vK0, vK1, vL, base, t0, t1, t2):
    g(f"v_lshrrev_b32 v{t0}, 2, v{vL}")
    g(f"v_bfe_u32 v{t1}, v{vL}, 1, 1")
    g(f"v_lshl_add_u32 v{t1}, s{sW}, 2, v{t1}")
    g(f"v_and_b32 v{t2}, 6, v{t0}")
    g(f"v_xor_b32 v{t2}, v{t2}, v{t1}")
    g(f"v_lshlrev_b32 v{t2}, 4, v{t2}")
    g(f"v_mul_u32_u24 v{vB0}, 1152, v{t0}")
    g(f"v_add_u32 v{vB0}, v{vB0}, v{t2}")
    g(f"v_and_b32 v{t2}, 1, v{vL}")
    g(f"v_lshlrev_b32 v{t2}, 3, v{t2}")
    g(f"v_add_u32 v{vB0}, v{vB0}, v{t2}")
    g(f"v_xor_b32 v{vB1}, 32, v{vB0}")
    if base:
        g(f"v_add_u32 v{vB0}, {base}, v{vB0}")
        g(f"v_add_u32 v{vB1}, {base}, v{vB1}")
    if vK0 is not None:
        g(f"v_and_b32 v{t0}, 3, v{t0}")
        g(f"v_and_b32 v{vK0}, 2, v{t0}")
        g(f"v_xor_b32 v{vK0}, v{vK0}, v{t1}")
        g(f"v_lshlrev_b32 v{vK0}, 4, v{vK0}")
        g(f"v_mul_u32_u24 v{t0}, 1152, v{t0}")
        g(f"v_add3_u32 v{vK0}, v{vK0}, v{t0}, v{t2}")
        g(f"v_xor_b32 v{vK1}, 32, v{vK0}")
        g(f"v_add_u32 v{vK0}, {base + 32*1152}, v{vK0}")
        g(f"v_add_u32 v{vK1}, {base + 32*1152}, v{vK1}")

MF = "v_mfma_f32_16x16x32_bf16"
MF16 = "v_mfma_f32_16x16x16_bf16"

def role_is_A(wg, opt):
    if opt.get("split"):
        import numpy as np
        return np.isin(wg & 7, list(opt["split"]))
    return wg < 128

def gen(opt):
    g = G(opt)
    NT = opt.get("nt", "")
    PFL = opt.get("pf_lines", 4)
    CODE_BYTES = 32 * 128 * PFL
    vL, vN, vG = 1, 2, 3
    g.stamp(0)
    g(f"s_getpc_b64 s[{sPC}:{sPC+1}]")
    g("s_cmp_ge_u32 s2, 256")
    g("s_cbranch_scc1 L_end")
    g(f"""
    s_load_dwordx2 s[4:5], s[0:1], 112
    s_load_dwordx2 s[8:9], s[0:1], 0
    s_load_dwordx2 s[28:29], s[0:1], 8
    s_load_dwordx2 s[12:13], s[0:1], 16
    s_load_dwordx2 s[16:17], s[0:1], 24
    v_lshrrev_b32 v4, 6, v0
    v_and_b32 v{vL}, 63, v0
    s_and_b32 s{sXCD}, s2, 7
    v_readfirstlane_b32 s{sW}, v4
    s_bfe_u32 s{sI}, s2, 0x40003
    v_and_b32 v{vN}, 15, v0
    v_bfe_u32 v{vG}, v0, 4, 2
    s_mov_b32 s6, {WS_BYTES - opt.get('ws_base', 0)}
    s_mov_b32 s7, 0x00020000
    """)
    if opt.get("xprobe") is not None:
        g(f"""
        s_load_dwordx2 s[32:33], s[0:1], 104
        s_mov_b32 s34, 256
        s_mov_b32 s35, 0x00020000
        s_waitcnt lgkmcnt(0)
        v_mov_b32 v6, s70
        s_lshl_b32 s{sO}, s{sXCD}, 2
        v_mov_b32 v7, s{sO}
        s_mov_b64 exec, 1
        buffer_atomic_umax v6, v7, s[32:35], 0 offen sc1
        s_mov_b64 exec, -1
        """)
    if opt.get("split"):
        aset = list(opt["split"]); bset = [x for x in range(8) if x not in aset]
        tab = 0
        for x in range(8):
            tab |= ((aset.index(x)) if x in aset else (8 | bset.index(x))) << (4 * x)
        g(f"""
        s_lshl_b32 s{sXCD}, s{sXCD}, 2
        s_lshr_b32 s{sO}, {hex(tab)}, s{sXCD}
        s_and_b32 s{sXCD}, s{sO}, 3
        s_lshr_b32 s{sO2}, s2, 7
        s_lshl_b32 s{sO2}, s{sO2}, 2
        s_add_u32 s{sXCD}, s{sXCD}, s{sO2}
        s_bitcmp1_b32 s{sO}, 3
        s_cbranch_scc1 L_B
        """)
    else:
        g("s_cmp_ge_u32 s2, 128")
        g("s_cbranch_scc1 L_B")
    a = RoleA(g, NT, vL, vN, vG)
    b = RoleB(g, NT, vL, vN, vG)
    def prefetch(nw, idx_sgpr_expr, tag):
        g(idx_sgpr_expr)
        g(f"s_mul_i32 s{sTMP}, s{sTMP}, {nw*128}")
        g(f"v_lshl_add_u32 v5, v{vL}, 7, s{sTMP}")
        g(f"s_cmp_lg_u32 s{sW}, 3")
        g(f"s_cbranch_scc1 L_nopf{tag}")
        g(f"s_mov_b64 exec, {(1 << nw) - 1}")
        g(f"global_load_dword v{63 if tag == 'B' else 254}, v5, s[{sPC}:{sPC+1}]")
        g("s_mov_b64 exec, -1")
        g.lab(f"L_nopf{tag}")
    if opt.get("split") and opt.get("a_pf_first", 1): prefetch(PFL, f"s_lshr_b32 s{sTMP}, s2, 3", "A")
    a.issue()
    if opt.get("split") and not opt.get("a_pf_first", 1): prefetch(PFL, f"s_lshr_b32 s{sTMP}, s2, 3", "A")
    g("s_branch L_A_rest")
    g.lab("L_B")
    if opt.get("p1a_on") == "B" or opt.get("numa"): pass
    elif opt.get("split"): prefetch(PFL, f"s_lshr_b32 s{sTMP}, s2, 3", "B")
    else: prefetch(2 * PFL, f"s_mov_b32 s{sTMP}, s{sI}", "B")
    b.issue()
    if opt.get("p1a_on") == "B": prefetch(PFL, f"s_lshr_b32 s{sTMP}, s2, 3", "B")
    main = g.l
    g.l = []
    b.rest()
    k = g.l.index(";;SPLIT")
    bhead, btail = g.l[:k], g.l[k+1:]
    g.l = main
    g.lab("L_B_head")
    if opt.get("b_head", 1):
        g.l += bhead
    g("s_branch L_B_rest")
    g.lab("L_A_rest")
    g.inA = True
    a.rest()
    g.inA = False
    g.lab("L_B_rest")
    if not opt.get("b_head", 1):
        g.l += bhead
    g.l += btail
    g.lab("L_end")
    lines, added = pad(g.l)
    body = "\n".join(lines)
    hdr = open(os.path.join(os.path.dirname(os.path.abspath(__file__)), "header.txt")).read()
    return f"""{hdr}; @launch grid=(256,1,1) block=(256,1,1) lds={LDS_BYTES}
.amdgcn_target "amdgcn-amd-amdhsa--gfx950"
.text
.globl {KNAME}
.p2align 8
.type {KNAME},@function
{KNAME}:
{body}
    s_endpgm
L_code_end:
.fill ({CODE_BYTES} + 256 - (L_code_end - {KNAME})) / 4, 4, 0xbf800000
.section .rodata,"a"
.p2align 6
.amdhsa_kernel {KNAME}
  .amdhsa_next_free_vgpr 512
  .amdhsa_next_free_sgpr 102
  .amdhsa_accum_offset 256
  .amdhsa_group_segment_fixed_size 0
  .amdhsa_kernarg_size 120
  .amdhsa_user_sgpr_count 2
  .amdhsa_user_sgpr_kernarg_segment_ptr 1
  .amdhsa_system_sgpr_workgroup_id_x 1
.end_amdhsa_kernel
"""

def srd_tail(g, base, nbytes):
    g(f"s_mov_b32 s{base+2}, {nbytes}")
    g(f"s_mov_b32 s{base+3}, 0x00020000")

def load_tag(g):
    wb = g.opt.get("ws_base", 0)
    if wb:
        g(f"s_add_u32 s4, s4, {wb}")
        g("s_addc_u32 s5, s5, 0")
    g(f"s_load_dwordx2 s[{sT}:{sT+1}], s[4:5], {EPOCH}")

def finish_tag(g):
    g("s_waitcnt lgkmcnt(0)")
    g(f"s_add_u32 s{sT}, s{sT}, {K0}")
    g(f"s_add_u32 s{sT+1}, s{sT+1}, {K1}")

def bell(g, vdata, vzero, s_index, base, wave, tag):
    g(f"s_cmp_lg_u32 s{sW}, {wave}")
    g(f"s_cbranch_scc1 L_nobell_{tag}")
    g(f"s_lshl_b32 s{sTMP}, s{s_index}, 7")
    g(f"s_add_u32 s{sTMP}, s{sTMP}, {base}")
    g("s_mov_b64 exec, 1")
    g(f"buffer_store_dwordx2 {v(vdata,2)}, v{vzero}, {WS}, s{sTMP} offen sc1")
    g("s_mov_b64 exec, -1")
    g.lab(f"L_nobell_{tag}")

def unit_load(g, SRD, vP, ldsbase, s_unit_base, pitch, tag, NT, rows36=True, vdst=None, thr=None, w0extra=True):
    if tag[:2] in g.opt.get("skip", ""): return
    g(f"s_mul_i32 s{sO}, s{sW}, {8*pitch}")
    g(f"s_add_u32 s{sO}, s{sO}, s{s_unit_base}")
    if vdst is None: g(f"s_mul_i32 s{sTMP}, s{sW}, 9216")
    for i in range(9):
        if thr: g(f"s_waitcnt vmcnt({thr-1})")
        if vdst is None:
            g(f"s_add_u32 m0, s{sTMP}, {ldsbase + i*1024}")
            g(f"buffer_load_dwordx4 v{vP+i}, {SRD}, s{sO} offen {NT} lds")
        else:
            g(f"buffer_load_dwordx4 {v(vdst+4*i,4)}, v{vP+i}, {SRD}, s{sO} offen {NT}")
    if not rows36: return
    g(f"s_add_u32 s{sO}, s{s_unit_base}, {32*pitch}")
    if vdst is None:
        g(f"s_lshl_b32 s{sTMP}, s{sW}, 10")
        g(f"s_add_u32 m0, s{sTMP}, {ldsbase + 36864}")
        g(f"buffer_load_dwordx4 v{vP+9}, {SRD}, s{sO} offen {NT} lds")
    else:
        g(f"buffer_load_dwordx4 {v(vdst+36,4)}, v{vP+9}, {SRD}, s{sO} offen {NT}")
    if w0extra:
        g(f"s_cmp_lg_u32 s{sW}, 0")
        g(f"s_cbranch_scc1 L_not{tag}")
    g("s_mov_b32 exec_hi, 0")
    if vdst is None:
        g(f"s_mov_b32 m0, {ldsbase + 36864 + 4096}")
        g(f"buffer_load_dwordx4 v{vP+4}, {SRD}, s{sO} offen {NT} lds")
    else:
        g(f"buffer_load_dwordx4 {v(vdst+40,4)}, v{vP+4}, {SRD}, s{sO} offen {NT}")
    g("s_mov_b64 exec, -1")
    if w0extra: g.lab(f"L_not{tag}")

class RoleA:
    def __init__(self, g, NT, vL, vN, vG):
        self.g, self.NT, self.vL, self.vN, self.vG = g, NT, vL, vN, vG
    vX = 20
    vA_wq, vA_uk = 108, 109
    aWQ, aUK = 0, 36

    def issue(self):
        g, NT, vL, vN, vG = self.g, self.NT, self.vL, self.vN, self.vG
        WQ, WUK = "s[12:15]", "s[16:19]"
        t0, t1 = 4, 5
        vX, vA_wq, vA_uk, aWQ, aUK = self.vX, self.vA_wq, self.vA_uk, self.aWQ, self.aUK
        if g.opt.get("p1a_on") == "B":
            srd_tail(g, 16, 512 * 8192)
            g(f"""
            s_lshr_b32 s{sH}, s{sI}, 2
            s_lshl_b32 s{sH}, s{sH}, 3
            s_add_u32 s{sH}, s{sH}, s{sXCD}
            s_and_b32 s{sJ}, s{sI}, 3
            s_lshl_b32 s{sC}, s{sH}, 8
            v_bfe_u32 v{t0}, v{vL}, 2, 2
            v_lshlrev_b32 v{vA_uk}, 16, v{t0}
            v_lshl_add_u32 v{vA_uk}, v{vG}, 6, v{vA_uk}
            v_and_b32 v{t1}, 3, v{vL}
            v_lshl_add_u32 v{vA_uk}, v{t1}, 4, v{vA_uk}
            s_lshl_b32 s{sO2}, s{sJ}, 2
            s_add_u32 s{sO2}, s{sO2}, s{sW}
            s_lshl_b32 s{sO2}, s{sO2}, 18
            s_add_u32 s{sO2}, s{sO2}, s{sC}
            s_waitcnt lgkmcnt(0)
            """)
            g.fstamp(5)
            self.uk(range(8))
            load_tag(g)
            srd_tail(g, 8, 2304)
            return
        srd_tail(g, 12, 576 * 8192)
        srd_tail(g, 8, 2304)
        g(f"""
        s_lshr_b32 s{sH}, s{sI}, 2
        s_lshl_b32 s{sH}, s{sH}, 3
        s_add_u32 s{sH}, s{sH}, s{sXCD}
        s_and_b32 s{sJ}, s{sI}, 3
        v_mul_u32_u24 v{vA_wq}, {36*8192}, v{vG}
        v_lshl_add_u32 v{vA_wq}, v{vN}, 4, v{vA_wq}
        s_lshl_b32 s{sO2}, s{sJ}, 4
        s_add_u32 s{sO2}, s{sO2}, s{sW}
        s_mul_i32 s{sO2}, s{sO2}, 9
        s_lshl_b32 s{sO3}, s{sO2}, 13
        s_lshl_b32 s{sC}, s{sH}, 8
        s_add_u32 s{sO3}, s{sO3}, s{sC}
        v_bfe_u32 v{t0}, v{vL}, 3, 1
        v_mul_u32_u24 v{t0}, 1152, v{t0}
        v_mad_u32_u24 v{t0}, v{vG}, 64, v{t0}
        v_lshl_add_u32 v{t0}, v{vG}, 3, v{t0}
        s_lshr_b32 s{sO2}, s{sO2}, 1
        s_lshl_b32 s{sO2}, s{sO2}, 2
        s_waitcnt lgkmcnt(0)
        """)
        g.fstamp(5)
        g(f"""
        buffer_load_dwordx4 {v(vX,4)}, v{t0}, {X}, s{sO2} offen
        buffer_load_dword v{vX+4}, v{t0}, {X}, s{sO2} offen offset:16
        """)
        for i in range(9):
            g(f"buffer_load_dwordx4 {A(aWQ+4*i,4)}, v{vA_wq}, {WQ}, s{sO3} offen {NT}")
            if i != 8: g(f"s_addk_i32 s{sO3}, 0x2000")
        load_tag(g)
        srd_tail(g, 16, 512 * 8192)
        g(f"""
        v_bfe_u32 v{t0}, v{vL}, 2, 2
        v_lshlrev_b32 v{vA_uk}, 16, v{t0}
        v_lshl_add_u32 v{vA_uk}, v{vG}, 6, v{vA_uk}
        v_and_b32 v{t1}, 3, v{vL}
        v_lshl_add_u32 v{vA_uk}, v{t1}, 4, v{vA_uk}
        s_lshl_b32 s{sO2}, s{sJ}, 2
        s_add_u32 s{sO2}, s{sO2}, s{sW}
        s_lshl_b32 s{sO2}, s{sO2}, 18
        s_add_u32 s{sO2}, s{sO2}, s{sC}
        """)
        self.uk_split = g.opt.get("uk_early", 2)
        self.uk(range(self.uk_split))

    def uk(self, rows):
        g = self.g
        for r in rows:
            u = 2 * (r & 3) + (r >> 2)
            g(f"buffer_load_dwordx4 {A(self.aUK+4*u,4)}, v{self.vA_uk}, s[16:19], s{sO2} offen {self.NT}")
            g(f"s_addk_i32 s{sO2}, 0x2000")

    def rest(self):
        g, NT, vL, vN, vG = self.g, self.NT, self.vL, self.vN, self.vG
        opt = g.opt
        WUV, WO, W1, B2, GATE, OUT = "s[20:23]", "s[24:27]", "s[12:15]", "s[28:31]", "s[32:35]", "s[36:39]"
        t0, t1, t2, t3 = 4, 5, 6, 7
        vPOI = 8
        vSel = 12
        vX = self.vX
        vF = 160
        vQ = 200
        vR = 56
        vQlo, vQhi = 80, 84
        vAcc = 88
        vGr = 104
        vA_h1, vA_l16 = 110, 47
        vA_qlo, vA_qhi = 112, 113
        vTag = 114
        vQw = 46
        aWQ, aUK = self.aWQ, self.aUK
        sQ = 63
        g.stamp(1)
        selectors(g, vSel, vL, t0, t1, t2)
        g(f"""
        s_lshl_b32 s{sA}, s{sH}, 2
        s_add_u32 s{sA}, s{sA}, s{sJ}
        s_and_b32 s{sO}, s{sW}, 1
        s_lshl_b32 s{sO}, s{sO}, 4
        v_lshlrev_b32 v{vA_l16}, 4, v{vL}
        s_cmp_lg_u32 s{sW}, {0 if opt.get("p1a_on") == "B" else 1}
        s_cbranch_scc1 L_A_e2
        """)
        pB = opt.get("p1a_on") == "B"
        for k in range(4): g(f"v_mov_b32 v{vPOI+k}, {hex(POISON)}")
        g(f"""
        v_lshlrev_b32 v{t0}, 15, v{vG}
        v_lshl_add_u32 v{t0}, v{vN}, 4, v{t0}
        s_lshl_b32 s{sTMP}, s{sA}, 8
        s_add_u32 s{sTMP}, s{sTMP}, {QB}
        s_mov_b32 exec_hi, 0
        buffer_store_dwordx4 {v(vPOI,4)}, v{t0}, {WS}, s{sTMP} offen sc1
        s_mov_b64 exec, -1
        """)
        g.lab("L_A_e2")
        if opt.get("split"):
            g(f"""
            s_cmp_lt_u32 s{sW}, {3 if pB else 2}
            s_cbranch_scc1 L_A_e3
            s_lshl_b32 s{sTMP}, s{sA}, 11
            s_add_u32 s{sTMP}, s{sTMP}, {H0+LOC}
            s_lshl_b32 s{sTMP+1}, s{sA}, 10
            s_add_u32 s{sTMP+1}, s{sTMP+1}, {HB+LOC}
            s_cmp_eq_u32 s{sW}, 2
            s_cselect_b32 s{sTMP}, s{sTMP}, s{sTMP+1}
            v_lshlrev_b32 v{t0}, 7, v{vL}
            s_mov_b64 exec, 0xffff
            buffer_load_dword v255, v{t0}, {WS}, s{sTMP} offen
            s_mov_b64 exec, -1
            """)
            g.lab("L_A_e3")
        if pB:
            finish_tag(g)
            sPk = 54
            g(f"""
            s_lshl_b32 s{sO}, s{sH}, 12
            s_add_u32 s{sO}, s{sO}, {H0}
            s_add_u32 s{sC}, s4, s{sO}
            s_addc_u32 s{sO3}, s5, 0
            """)
            def h0_wt(): pass
        else:
            g.fstamp(6)
            g(f"s_waitcnt vmcnt({9+self.uk_split})")
            g.fstamp(7)
            for k in range(5):
                g(f"v_alignbit_b32 v{vX+k}, v{vX+k+1}, v{vX+k}, s{sO}")
            for i in range(9):
                for d in range(4):
                    g(f"v_perm_b32 v{vF+4*i+d}, v{vX+(i>>1)}, v{vX+(i>>1)}, v{vSel+4*(i&1)+d}")
            g.fstamp(8)
            ukp = opt.get("uk_pos", 0)
            for i in range(9):
                if i == ukp: self.uk(range(self.uk_split, 8))
                g(f"s_waitcnt vmcnt({8-i+(8 if i >= ukp else self.uk_split)})")
                g(f"{MF} {v(vQ+2,4)}, {v(vF+4*i,4)}, {A(aWQ+4*i,4)}, {'0' if i == 0 else v(vQ+2,4)}")
            g.fstamp(10)
            g(f"s_cmp_eq_u32 s{sW}, 0")
            g("s_cbranch_scc1 L_A_w0a")
            g(f"v_lshl_add_u32 v{t0}, s{sW}, 10, v{vA_l16}")
            g(f"ds_write_b128 v{t0}, {v(vQ+2,4)} offset:{A_QP-1024}")
            g(f"s_cmp_lg_u32 s{sW}, 1")
            g("s_cbranch_scc1 L_A_nw1")
            g(f"s_waitcnt vmcnt({8-self.uk_split})")
            g.lab("L_A_nw1")
            g("s_waitcnt lgkmcnt(0)")
            g("s_barrier")
            g(f"s_add_u32 s{sT}, s{sT}, {K0}")
            g(f"s_add_u32 s{sT+1}, s{sT+1}, {K1}")
            g("s_branch L_A_setup")
            g.lab("L_A_w0a")
            finish_tag(g)
            sib = [0, sO, sO3, sC]
            for k in range(1, 4):
                g(f"s_xor_b32 s{sTMP}, s{sA}, {k}")
                g(f"s_lshl_b32 s{sTMP}, s{sTMP}, 11")
                g(f"s_add_u32 s{sib[k]}, s{sTMP}, {H0+LOC}")
            g(f"""
            v_mov_b32 v{vQ}, s{sT}
            v_mov_b32 v{vQ+1}, s{sT+1}
            v_mov_b32 v{vQ+6}, s{sT}
            v_mov_b32 v{vQ+7}, s{sT+1}
            s_lshl_b32 s{sTMP+1}, s{sA}, 11
            s_add_u32 s{sTMP+1}, s{sTMP+1}, {H0+LOC}
            s_barrier
            """)
            for k in range(3):
                g(f"ds_read_b128 {v(vR+4*k,4)}, v{vA_l16} offset:{A_QP+k*1024}")
            g("s_waitcnt lgkmcnt(1)")
            g(f"v_pk_add_f32 {v(vQ+2,2)}, {v(vQ+2,2)}, {v(vR,2)}")
            g(f"v_pk_add_f32 {v(vQ+4,2)}, {v(vQ+4,2)}, {v(vR+2,2)}")
            g("s_waitcnt lgkmcnt(0)")
            g(f"v_pk_add_f32 {v(vR+4,2)}, {v(vR+4,2)}, {v(vR+8,2)}")
            g(f"v_pk_add_f32 {v(vR+6,2)}, {v(vR+6,2)}, {v(vR+10,2)}")
            g(f"v_pk_add_f32 {v(vQ+2,2)}, {v(vQ+2,2)}, {v(vR+4,2)}")
            g(f"v_pk_add_f32 {v(vQ+4,2)}, {v(vQ+4,2)}, {v(vR+6,2)}")
            g(f"buffer_store_dwordx4 {v(vQ,4)}, v{vA_l16}, {WS}, s{sTMP+1} offen")
            g(f"buffer_store_dwordx4 {v(vQ+4,4)}, v{vA_l16}, {WS}, s{sTMP+1} offen offset:1024")
            def h0_wt():
                g(f"s_lshl_b32 s{sTMP+1}, s{sA}, 11")
                g(f"s_add_u32 s{sTMP+1}, s{sTMP+1}, {H0}")
                g(f"buffer_store_dwordx4 {v(vQ,4)}, v{vA_l16}, {WS}, s{sTMP+1} offen sc1")
                g(f"buffer_store_dwordx4 {v(vQ+4,4)}, v{vA_l16}, {WS}, s{sTMP+1} offen offset:1024 sc1")
            g.stamp(2)
        g.lab("L_A_setup")
        srd(g, 20, 4, 512 * 8192)
        srd(g, 24, 5, 4096 * 1152)
        srd(g, 32, 11, 1152)
        srd(g, 36, 12, 2304)
        srd(g, 12, 7, 576 * 9216)
        vBell = 111
        g(f"""
        v_bfe_u32 v{t0}, v{vL}, 2, 2
        v_lshlrev_b32 v{vA_h1}, 15, v{vG}
        v_lshl_add_u32 v{vA_h1}, v{t0}, 4, v{vA_h1}
        s_lshl_b32 s{sQ}, s{sA}, 2
        s_add_u32 s{sQ}, s{sQ}, s{sW}
        s_lshl_b32 s{sQ}, s{sQ}, 6
        s_add_u32 s{sQ}, s{sQ}, {QB}
        v_bfe_u32 v{t0}, v{vL}, 2, 1
        v_lshlrev_b32 v{t0}, 8, v{t0}
        v_lshl_add_u32 v{t0}, v{vG}, 6, v{t0}
        v_and_b32 v{t1}, 3, v{vL}
        v_lshl_add_u32 v{t0}, v{t1}, 4, v{t0}
        v_add_u32 v{t0}, {A_QL}, v{t0}
        v_mov_b32 v{t1}, {A_ZERO}
        v_cmp_gt_u32 vcc, 8, v{vN}
        v_cndmask_b32 v{vA_qlo}, v{t1}, v{t0}, vcc
        v_cndmask_b32 v{vA_qhi}, v{t0}, v{t1}, vcc
        v_and_b32 v{t0}, 1, v{vL}
        v_cmp_eq_u32 s[{sM1}:{sM1+1}], 1, v{t0}
        v_and_b32 v{t0}, 2, v{vL}
        v_cmp_eq_u32 s[{sM2}:{sM2+1}], 2, v{t0}
        v_mov_b32 v{vTag}, s{sT}
        v_mov_b32 v{vTag+1}, s{sT+1}
        v_lshlrev_b32 v{vBell}, 12, v{vL}
        s_lshl_b32 s{sO2}, s{sH}, 5
        s_add_u32 s{sO2}, s{sO2}, s{sJ}
        s_lshl_b32 s{sO2}, s{sO2}, 2
        s_add_u32 s{sO2}, s{sO2}, {D1}
        """)
        if opt.get("q_direct", 0):
            g(f"""
            s_cmp_lg_u32 s{sW}, 2
            s_cbranch_scc1 L_A_nordy
            s_mov_b64 exec, 0xff
            buffer_store_dword v{vTag}, v{vBell}, {WS}, s{sO2} offen sc1
            s_mov_b64 exec, -1
            """)
            g.lab("L_A_nordy")
            g(f"""
            v_bfe_u32 v{t0}, v{vL}, 2, 2
            v_lshlrev_b32 v{vA_h1}, 8, v{vG}
            v_lshl_add_u32 v{vA_h1}, v{t0}, 4, v{vA_h1}
            v_lshl_add_u32 v{vA_h1}, s{sW}, 6, v{vA_h1}
            v_lshlrev_b32 v{vBell}, 15, v{vG}
            v_lshl_add_u32 v{vBell}, v{vN}, 4, v{vBell}
            s_lshl_b32 s{sQ}, s{sA}, 8
            s_add_u32 s{sQ}, s{sQ}, {QB}
            """)
        g(f"""
        v_mov_b32 v{t2}, 0
        v_mov_b32 v{t3}, 0
        ds_write_b64 v{t1}, {v(t2,2)}
        ds_write_b64 v{t1}, {v(t2,2)} offset:8
        v_lshrrev_b32 v{vQw}, 1, v{vG}
        v_lshlrev_b32 v{vQw}, 8, v{vQw}
        v_lshl_add_u32 v{vQw}, v{vN}, 4, v{vQw}
        v_and_b32 v{t1}, 1, v{vG}
        v_lshl_add_u32 v{vQw}, v{t1}, 3, v{vQw}
        """)
        def h0loads():
            if pB:
                for k in range(4):
                    g(f"buffer_load_dwordx4 {v(vR+4*k,4)}, v{vA_l16}, {WS}, s{sO} offen offset:{k*1024} sc1")
                return
            for k in range(1, 4):
                g(f"buffer_load_dwordx4 {v(vR+8*(k-1),4)}, v{vA_l16}, {WS}, s{sib[k]} offen sc1")
                g(f"buffer_load_dwordx4 {v(vR+8*(k-1)+4,4)}, v{vA_l16}, {WS}, s{sib[k]} offen offset:1024 sc1")
        sRho, sBlk, sR0 = 60, 43, 62
        vXr, vS1, vXA, vW1a, vHs, vXa = 116, 140, 152, 144, 145, 146
        aW1 = 80
        if opt.get('w1_on', 'A') == 'A':
            g(f"""
            s_lshl_b32 s{sBlk}, s{sA}, 2
            s_add_u32 s{sBlk}, s{sBlk}, s{sW}
            s_mul_i32 s{sRho}, s{sBlk}, 1821
            s_lshr_b32 s{sRho}, s{sRho}, 16
            s_mul_i32 s{sTMP}, s{sRho}, 36
            s_sub_u32 s{sBlk}, s{sBlk}, s{sTMP}
            s_min_u32 s{sTMP}, s{sRho}, 4
            s_mul_i32 s{sR0}, s{sRho}, 10
            s_add_u32 s{sR0}, s{sR0}, s{sTMP}
            s_lshl_b32 s{sR0}, s{sR0}, 2
            v_bfe_u32 v{t0}, v{vL}, 3, 1
            v_mul_u32_u24 v{vXa}, 1152, v{t0}
            v_mul_u32_u24 v{vW1a}, 9216, v{vG}
            v_lshl_add_u32 v{vW1a}, v{vN}, 4, v{vW1a}
            """)
            assert all((i * 1821) >> 16 == i // 36 for i in range(512))
            g(f"s_lshl_b32 s{sTMP}, s{sR0}, 1")
            for k in range(5):
                g(f"buffer_load_dwordx4 {v(vXr+4*k,4)}, v{vXa}, {X}, s{sTMP} offen offset:{16*k}")
            g(f"buffer_load_dwordx2 {v(vXr+20,2)}, v{vXa}, {X}, s{sTMP} offen offset:80")
        if not pB:
            g(f"s_cmp_lg_u32 s{sW}, 0")
            g("s_cbranch_scc1 L_A_s2")
            h0loads()
            g.lab("L_A_s2")
        vUV0, vUV1 = 20, 21
        vP2 = 22
        g(f"""
        v_lshlrev_b32 v{t0}, 1, v{vG}
        v_xor_b32 v{t0}, v{t0}, v{vN}
        v_lshlrev_b32 v{vUV0}, 17, v{vG}
        v_lshl_add_u32 v{vUV0}, v{t0}, 4, v{vUV0}
        v_xor_b32 v{vUV1}, 128, v{vUV0}
        """)
        uve = opt.get("uv_early", 0)
        nuv = 8 if "uv" not in opt.get("skip", "") else 0
        def uv_stream():
            sa, sb = 47, 59
            g(f"""
            s_lshl_b32 s{sa}, s{sJ}, 5
            s_add_u32 s{sa}, s{sa}, s{sW}
            s_lshl_b32 s{sa}, s{sa}, 15
            s_lshl_b32 s{sb}, s{sH}, 8
            s_add_u32 s{sa}, s{sa}, s{sb}
            s_lshl_b32 s{sb}, s{sW}, 13
            """)
            for z in range(nuv):
                hi, gg = z >> 2, z & 3
                if opt.get("uv_thr") and not uve: g(f"s_waitcnt vmcnt({opt['uv_thr']-1})")
                g(f"s_add_u32 m0, s{sb}, {A_WUV + z*1024}")
                g(f"s_add_u32 s{sTMP}, s{sa}, {(64*hi+gg)*8192}")
                g(f"buffer_load_dwordx4 v{vUV1 if z & 1 else vUV0}, {WUV}, s{sTMP} offen {NT} lds")
        if uve == 1:
            g("s_waitcnt lgkmcnt(0)")
            uv_stream()
        for i in range(9):
            unit_pattern(g, vP2 + i, vL, None, i, 1152, t0, t1)
        if opt.get('w1_on', 'A') == 'A':
            g(f"""
            v_lshrrev_b32 v{t0}, 5, v{vL}
            v_mul_u32_u24 v{vHs}, 18432, v{t0}
            v_and_b32 v{t0}, 31, v{vL}
            v_lshl_add_u32 v{vHs}, v{t0}, 4, v{vHs}
            v_mul_u32_u24 v{t0}, 0x0202, v{vG}
            v_add_u32 v{t0}, 0x0100, v{t0}
            v_and_b32 v{t1}, 1, v{vL}
            v_lshlrev_b32 v{t1}, 4, v{t1}
            v_lshlrev_b32 v{t0}, v{t1}, v{t0}
            v_mov_b32 v{t2}, 0x0c0c0000
            v_lshrrev_b32 v{t2}, v{t1}, v{t2}
            v_or_b32 v{t0}, v{t0}, v{t2}
            v_bfe_u32 v{t1}, v{vL}, 1, 2
            v_mov_b32 v{t2}, 0x0c0c0c0c
            """)
            for d in range(4):
                g(f"v_cmp_eq_u32 vcc, {d}, v{t1}")
                g(f"v_cndmask_b32 v{vS1+d}, v{t2}, v{t0}, vcc")
        if uve == 2:
            g("s_waitcnt lgkmcnt(0)")
            uv_stream()
        g(f"s_mov_b32 s{sCNT}, 0")
        g(f"s_cmp_lg_u32 s{sW}, 0")
        g("s_cbranch_scc1 L_A_h0wait")
        if pB:
            g(f"""
            s_mov_b32 s{sTMP}, s{sC}
            s_mov_b32 s{sTMP+1}, s{sO3}
            s_and_b32 s{sC}, s{sT}, 15
            """)
            g.lab("L_A_peek")
            for k in range(4):
                g(f"s_load_dword s{16+k}, s[{sTMP}:{sTMP+1}], {k*1024+opt.get('peek_off', 1020)} glc")
            spin_guard(g, "L_A_peek2")
            g("s_waitcnt lgkmcnt(0)")
            for k in range(4):
                g(f"s_xor_b32 s{16+k}, s{16+k}, s{sC}")
            g("s_or_b64 s[16:17], s[16:17], s[18:19]")
            g("s_or_b32 s16, s16, s17")
            g("s_and_b32 s16, s16, 15")
            g("s_cbranch_scc1 L_A_peek")
            g.lab("L_A_peek2")
            g.stamp(2)
            g.lab("L_A_h0get")
            h0loads()
            g("s_waitcnt vmcnt(0)")
        else:
            g(f"s_waitcnt vmcnt({nuv if uve else 0})")
        g.lab("L_A_h0chk")
        if opt.get("fst"):
            g(f"s_cmp_lg_u32 s{sCNT}, 0")
            g("s_cbranch_scc1 L_A_fs11")
            g.fstamp(11)
            g.lab("L_A_fs11")
        if pB:
            for k in range(16):
                g(f"v_xor_b32 v{vR+k}, s{sC}, v{vR+k}")
            g(f"v_or3_b32 v{t0}, v{vR}, v{vR+1}, v{vR+2}")
            g(f"v_or3_b32 v{t1}, v{vR+3}, v{vR+4}, v{vR+5}")
            for k in range(6, 14, 4):
                g(f"v_or3_b32 v{t0}, v{t0}, v{vR+k}, v{vR+k+1}")
                g(f"v_or3_b32 v{t1}, v{t1}, v{vR+k+2}, v{vR+k+3}")
            g(f"v_or3_b32 v{t0}, v{t0}, v{vR+14}, v{vR+15}")
            g(f"v_bitop3_b32 v{t0}, v{t0}, v{t1}, 15 bitop3:0xa8")
            g(f"v_cmp_ne_u32 vcc, 0, v{t0}")
            g("s_cbranch_vccnz L_A_h0poll")
        else:
            for k in range(3):
                g(f"v_cmp_ne_u64 vcc, s[{sT}:{sT+1}], {v(vR+8*k,2)}")
                g(f"v_cmp_ne_u64 s[{sM3}:{sM3+1}], s[{sT}:{sT+1}], {v(vR+8*k+6,2)}")
                if k == 0: g(f"s_or_b64 s[{sM4}:{sM4+1}], vcc, s[{sM3}:{sM3+1}]")
                else:
                    g(f"s_or_b64 s[{sM4}:{sM4+1}], s[{sM4}:{sM4+1}], vcc")
                    g(f"s_or_b64 s[{sM4}:{sM4+1}], s[{sM4}:{sM4+1}], s[{sM3}:{sM3+1}]")
            g("s_cbranch_scc1 L_A_h0poll")
        g.lab("L_A_h0done")
        def d1bell(tag):
            g("s_mov_b64 exec, 0xff")
            g(f"buffer_store_dword v{vTag}, v{vBell}, {WS}, s{sO2} offen sc1")
            g("s_mov_b64 exec, -1")
        qd = opt.get("q_direct", 0)
        d1p = opt.get("d1_pos", 0) if not qd else -1
        if d1p == 0: d1bell("")
        if pB:
            g(f"v_pk_add_f32 {v(vR,2)}, {v(vR,2)}, {v(vR+4,2)}")
            g(f"v_pk_add_f32 {v(vR+2,2)}, {v(vR+2,2)}, {v(vR+6,2)}")
            g(f"v_pk_add_f32 {v(vR+8,2)}, {v(vR+8,2)}, {v(vR+12,2)}")
            g(f"v_pk_add_f32 {v(vR+10,2)}, {v(vR+10,2)}, {v(vR+14,2)}")
            g(f"v_pk_add_f32 {v(vR,2)}, {v(vR,2)}, {v(vR+8,2)}")
            g(f"v_pk_add_f32 {v(vR+2,2)}, {v(vR+2,2)}, {v(vR+10,2)}")
            g(f"v_cvt_pk_bf16_f32 v{vR}, v{vR}, v{vR+1}")
            g(f"v_cvt_pk_bf16_f32 v{vR+1}, v{vR+2}, v{vR+3}")
        else:
            g(f"v_pk_add_f32 {v(vR+2,2)}, {v(vQ+2,2)}, {v(vR+2,2)}")
            g(f"v_pk_add_f32 {v(vR+4,2)}, {v(vQ+4,2)}, {v(vR+4,2)}")
            g(f"v_pk_add_f32 {v(vR+10,2)}, {v(vR+10,2)}, {v(vR+18,2)}")
            g(f"v_pk_add_f32 {v(vR+12,2)}, {v(vR+12,2)}, {v(vR+20,2)}")
            g(f"v_pk_add_f32 {v(vR+2,2)}, {v(vR+2,2)}, {v(vR+10,2)}")
            g(f"v_pk_add_f32 {v(vR+4,2)}, {v(vR+4,2)}, {v(vR+12,2)}")
            g(f"v_cvt_pk_bf16_f32 v{vR}, v{vR+2}, v{vR+3}")
            g(f"v_cvt_pk_bf16_f32 v{vR+1}, v{vR+4}, v{vR+5}")
        g(f"ds_write_b64 v{vQw}, {v(vR,2)} offset:{A_QL}")
        g("s_waitcnt lgkmcnt(0)")
        g("s_barrier")
        g(f"ds_read_b128 {v(vQlo,4)}, v{vA_qlo}")
        g(f"ds_read_b128 {v(vQhi,4)}, v{vA_qhi}")
        if d1p == 1: d1bell("")
        g("s_branch L_A_p1b")
        g.lab("L_A_h0wait")
        g(f"s_waitcnt vmcnt({nuv if uve else 0}) lgkmcnt(0)")
        g.fstamp(12)
        g("s_barrier")
        g(f"ds_read_b128 {v(vQlo,4)}, v{vA_qlo}")
        g(f"ds_read_b128 {v(vQhi,4)}, v{vA_qhi}")
        g.lab("L_A_p1b")
        g.stamp(3)
        g("s_waitcnt lgkmcnt(0)")
        for t in range(4):
            g(f"{MF} {v(vAcc+4*t,4)}, {v(vQlo,4)}, {A(aUK+8*t,4)}, 0")
        for t in range(4):
            g(f"{MF} {v(vAcc+4*t,4)}, {v(vQhi,4)}, {A(aUK+8*t+4,4)}, {v(vAcc+4*t,4)}")
        if d1p == 2:
            g(f"s_cmp_lg_u32 s{sW}, 0")
            g("s_cbranch_scc1 L_A_nod1")
            d1bell("")
            g.lab("L_A_nod1")
        for t in range(4):
            a0 = vAcc + 4 * t
            g(f"v_cndmask_b32 v{a0}, v{a0}, v{a0+1}, s[{sM1}:{sM1+1}]")
            g(f"v_cndmask_b32 v{a0+2}, v{a0+2}, v{a0+3}, s[{sM1}:{sM1+1}]")
            g(f"v_cndmask_b32 v{a0}, v{a0}, v{a0+2}, s[{sM2}:{sM2+1}]")
        for t in range(4):
            a0 = vAcc + 4 * t
            g(f"v_add_f32_dpp v{a0+1}, v{a0}, v{a0} quad_perm:[1,0,3,2] row_mask:0xf bank_mask:0xf")
        for t in range(4):
            a0 = vAcc + 4 * t
            g(f"v_add_f32_dpp v{a0}, v{a0+1}, v{a0+1} quad_perm:[2,3,0,1] row_mask:0xf bank_mask:0xf")
        g(f"v_cvt_pk_bf16_f32 v{vGr}, v{vAcc}, v{vAcc+4}")
        g(f"v_cvt_pk_bf16_f32 v{vGr+1}, v{vAcc+8}, v{vAcc+12}")
        g(f"v_permlane32_swap_b32 v{vGr}, v{vGr+2}")
        g(f"v_permlane32_swap_b32 v{vGr+1}, v{vGr+3}")
        if qd:
            g(f"""
            s_mov_b64 exec, 0x11111111
            ds_write_b128 v{vA_h1}, {v(vGr,4)} offset:{A_CTXC}
            s_mov_b64 exec, -1
            s_waitcnt lgkmcnt(0)
            s_barrier
            s_cmp_lg_u32 s{sW}, 3
            s_cbranch_scc1 L_A_noq
            s_mov_b32 exec_hi, 0
            ds_read_b128 {v(vGr,4)}, v{vA_l16} offset:{A_CTXC}
            s_waitcnt lgkmcnt(0)
            buffer_store_dwordx4 {v(vGr,4)}, v{vBell}, {WS}, s{sQ} offen sc1
            s_mov_b64 exec, -1
            """)
            g.lab("L_A_noq")
        else:
            g(f"""
            s_mov_b64 exec, 0x11111111
            buffer_store_dwordx4 {v(vGr,4)}, v{vA_h1}, {WS}, s{sQ} offen sc1
            s_mov_b64 exec, -1
            """)
        if d1p == 3:
            g(f"s_cmp_lg_u32 s{sW}, 0")
            g("s_cbranch_scc1 L_A_nod1")
            d1bell("")
            g.lab("L_A_nod1")
        g.stamp(4)
        if opt.get("a_wait", 0): g("s_waitcnt vmcnt(0)")
        if opt.get("a_gate"):
            sD = [16, 52, 56, 28]
            g(f"""
            s_lshl_b32 s{sTMP}, s{sXCD}, 3
            s_lshr_b32 s{sTMP+1}, s{sH}, 4
            s_lshl_b32 s{sTMP+1}, s{sTMP+1}, 2
            s_add_u32 s{sTMP}, s{sTMP}, s{sTMP+1}
            s_add_u32 s{sTMP}, s{sTMP}, s{sW}
            s_lshl_b32 s{sTMP}, s{sTMP}, 9
            s_add_u32 s{sTMP}, s{sTMP}, {D1}
            s_add_u32 s{sTMP}, s4, s{sTMP}
            s_addc_u32 s{sTMP+1}, s5, 0
            s_mov_b32 s{sPC}, s{sT}
            s_mov_b32 s{sPC+1}, s{sT}
            s_mov_b32 s{sCNT}, 0
            """)
            g.lab("L_A_gate")
            for k in range(4):
                g(f"s_load_dwordx4 s[{sD[k]}:{sD[k]+3}], s[{sTMP}:{sTMP+1}], {k*128} glc")
            spin_guard(g, "L_A_gate2")
            g("s_waitcnt lgkmcnt(0)")
            for k in range(4):
                g(f"s_xor_b64 s[{sD[k]}:{sD[k]+1}], s[{sD[k]}:{sD[k]+1}], s[{sPC}:{sPC+1}]")
                g(f"s_xor_b64 s[{sD[k]+2}:{sD[k]+3}], s[{sD[k]+2}:{sD[k]+3}], s[{sPC}:{sPC+1}]")
                g(f"s_or_b64 s[{sD[k]}:{sD[k]+1}], s[{sD[k]}:{sD[k]+1}], s[{sD[k]+2}:{sD[k]+3}]")
            g("s_or_b64 s[16:17], s[16:17], s[52:53]")
            g("s_or_b64 s[56:57], s[56:57], s[28:29]")
            g("s_or_b64 s[16:17], s[16:17], s[56:57]")
            g("s_cbranch_scc1 L_A_gate")
            g.lab("L_A_gate2")
            g("s_waitcnt lgkmcnt(0)")
            if opt["a_gate"] == 2: g("s_barrier")
            g(f"v_and_b32 v{t0}, 2, v{vL}")
            g(f"v_cmp_eq_u32 s[{sM2}:{sM2+1}], 2, v{t0}")
        if opt.get("a_sleep"): g(f"s_sleep {opt['a_sleep']}")
        srd(g, 28, 10, 1152)
        def w1_frags():
            for i in range(11):
                for d in range(4):
                    g(f"v_perm_b32 v{vXA+4*i+d}, v{vXr+2*i+1}, v{vXr+2*i}, v{vS1+d}")
        w1a = opt.get("w1_on", "A") == "A"
        nw1 = 0 if ("w1" in opt.get("skip", "") or not w1a) else 11
        if w1a:
            g(f"s_mul_i32 s{sO2}, s{sR0}, 9216")
            g(f"s_lshl_b32 s{sO3}, s{sBlk}, 8")
            g(f"s_add_u32 s{sO2}, s{sO2}, s{sO3}")
        for i in range(nw1):
            if opt.get("w1_thr") and i >= opt["w1_thr"]: g(f"s_waitcnt vmcnt({opt['w1_thr']-1})")
            g(f"buffer_load_dwordx4 {A(aW1+4*i,4)}, v{vW1a}, {W1}, s{sO2} offen {NT}")
            if i == (opt.get("w1_thr") or 11) - 1: w1_frags()
            if i < 10: g(f"s_add_u32 s{sO2}, s{sO2}, {4*9216}")
            if i == 9:
                g(f"s_cmp_ge_u32 s{sRho}, 4")
                g(f"s_cselect_b32 s{sO2}, {576*9216}, s{sO2}")
        if not uve: uv_stream()
        def w1_gemv(younger):
            if not w1a: return
            vH = 148
            g(f"s_waitcnt vmcnt({younger})")
            for i in range(10):
                g(f"{MF} {v(vH,4)}, {v(vXA+4*i,4)}, {A(aW1+4*i,4)}, {'0' if i == 0 else v(vH,4)}")
            g(f"s_cmp_ge_u32 s{sRho}, 4")
            g("s_cbranch_scc1 L_A_w1s")
            g(f"{MF} {v(vH,4)}, {v(vXA+40,4)}, {A(aW1+40,4)}, {v(vH,4)}")
            g.lab("L_A_w1s")
            g(f"""
            s_mul_i32 s{sO}, s{sRho}, 36864
            s_lshl_b32 s{sO3}, s{sBlk}, 9
            s_add_u32 s{sO}, s{sO}, s{sO3}
            s_add_u32 s{sO}, s{sO}, {HH}
            s_and_b32 s{sO3}, s{sT}, 15
            """)
            for r in range(4):
                g(f"v_and_or_b32 v{vH+r}, v{vH+r}, -16, s{sO3}")
            g(f"buffer_store_dwordx4 {v(vH,4)}, v{vHs}, {WS}, s{sO} offen sc1")
        if not opt.get("w1_late"): w1_gemv(0 if uve else nuv)
        wol = opt.get("wo_late", 0)
        if not wol:
            g(f"s_mul_i32 s{sO2}, s{sA}, {32*1152}")
            unit_load(g, WO, vP2, A_WO, sO2, 1152, "wo", NT, rows36=False, thr=opt.get("a_thr"))
        if opt.get("w1_late") == 1: w1_gemv(9)
        g.stamp(14)
        vGx, vGw, vB2 = 48, 60, 72
        vOA, vFB = 73, 74
        g(f"v_mov_b32 v{vOA}, 0")
        g("s_waitcnt lgkmcnt(0)")
        g(f"s_cmp_lg_u32 s{sW}, 0")
        g("s_cbranch_scc1 L_A_nogate")
        h0_wt()
        g(f"""
        s_cmp_ge_u32 s{sA}, 36
        s_cbranch_scc1 L_A_nogate
        v_and_b32 v{t0}, 31, v{vL}
        v_mul_u32_u24 v{t1}, 36, v{t0}
        v_lshrrev_b32 v{t2}, 5, v{vL}
        v_mul_u32_u24 v{t2}, 1152, v{t2}
        v_add_u32 v{t2}, v{t2}, v{t1}
        buffer_load_dwordx4 {v(vGx,4)}, v{t2}, {X}, 0 offen
        buffer_load_dwordx4 {v(vGx+4,4)}, v{t2}, {X}, 0 offen offset:16
        buffer_load_dword v{vGx+8}, v{t2}, {X}, 0 offen offset:32
        buffer_load_dwordx4 {v(vGw,4)}, v{t1}, {GATE}, 0 offen
        buffer_load_dwordx4 {v(vGw+4,4)}, v{t1}, {GATE}, 0 offen offset:16
        buffer_load_dword v{vGw+8}, v{t1}, {GATE}, 0 offen offset:32
        s_cmp_ge_u32 s{sA}, 32
        s_cbranch_scc1 L_A_uleft
        s_lshr_b32 s{sO}, s{sA}, 2
        s_lshl_b32 s{sO}, s{sO}, 4
        s_and_b32 s{sO3}, s{sA}, 1
        s_lshl_b32 s{sO3}, s{sO3}, 3
        s_add_u32 s{sO}, s{sO}, s{sO3}
        v_and_b32 v{t1}, 3, v{t0}
        v_lshlrev_b32 v{t1}, 7, v{t1}
        v_lshrrev_b32 v{t2}, 2, v{t0}
        v_add3_u32 v{t1}, v{t1}, v{t2}, s{sO}
        s_bfe_u32 s{sO3}, s{sA}, 0x10001
        v_mov_b32 v{vFB}, s{sO3}
        s_branch L_A_ujoin
        """)
        g.lab("L_A_uleft")
        g(f"""
        s_lshl_b32 s{sO}, s{sA}, 4
        v_and_b32 v{t1}, 15, v{t0}
        v_add_u32 v{t1}, s{sO}, v{t1}
        v_lshrrev_b32 v{vFB}, 4, v{t0}
        """)
        g.lab("L_A_ujoin")
        g(f"""
        v_lshlrev_b32 v{t1}, 1, v{t1}
        buffer_load_ushort v{vB2}, v{t1}, {B2}, 0 offen
        v_mul_u32_u24 v{vOA}, 1152, v{vFB}
        v_add_u32 v{vOA}, v{vOA}, v{t1}
        """)
        g.lab("L_A_nogate")
        vH3, vH3x = 32, 33
        vHBs = 39
        sH3m, sH3l, sHB, sHH = 63, 47, 61, 62
        vTU0, vTU1, vTO0, vTO1 = 34, 35, 36, 37
        vCX, vCW, vHBl, vD2, vOg, vWTw, vWTr = 38, 46, 40, 41, 42, 43, 44
        vT1, vK1 = 75, 57
        def later_addresses():
            g(f"""
            s_mul_i32 s{sH3l}, s{sA}, {OSTR}
            s_add_u32 s{sH3l}, s{sH3l}, {OB}
            s_lshl_b32 s{sTMP}, s{sW}, 10
            s_add_u32 s{sH3m}, s{sH3l}, s{sTMP}
            s_lshl_b32 s{sTMP}, s{sW}, 8
            s_add_u32 s{sH3l}, s{sH3l}, s{sTMP}
            s_add_u32 s{sH3l}, s{sH3l}, 4096
            v_lshlrev_b32 v{vH3x}, 2, v{vL}
            """)
            g(f"""
            v_lshlrev_b32 v{vHBs}, 7, v{vG}
            v_and_b32 v{t0}, 1, v{vL}
            v_lshl_add_u32 v{vHBs}, v{t0}, 6, v{vHBs}
            v_bfe_u32 v{t0}, v{vL}, 1, 1
            v_lshl_add_u32 v{vHBs}, v{t0}, 9, v{vHBs}
            s_lshl_b32 s{sHB}, s{sH}, 2
            s_add_u32 s{sHB}, s{sHB}, s{sW}
            s_lshl_b32 s{sHB}, s{sHB}, 6
            s_add_u32 s{sHB}, s{sHB}, s{sJ}
            s_lshl_b32 s{sHB}, s{sHB}, 4
            s_add_u32 s{sHB}, s{sHB}, {HB}
            v_lshrrev_b32 v{t0}, 2, v{vL}
            v_bfe_u32 v{t1}, v{vL}, 1, 1
            v_lshl_add_u32 v{t1}, s{sW}, 2, v{t1}
            v_and_b32 v{t2}, 7, v{t0}
            v_lshlrev_b32 v{t2}, 1, v{t2}
            v_xor_b32 v{t1}, v{t1}, v{t2}
            v_lshlrev_b32 v{vTU0}, 8, v{t0}
            v_lshl_add_u32 v{vTU0}, v{t1}, 4, v{vTU0}
            v_and_b32 v{t1}, 1, v{vL}
            v_lshl_add_u32 v{vTU0}, v{t1}, 3, v{vTU0}
            v_xor_b32 v{vTU1}, 32, v{vTU0}
            """)
            assert A_WUV == 0
            tr_pair_bases(g, vTO0, vTO1, None, None, vL, A_WO, t0, t1, t2)
            g(f"""
            v_and_b32 v{t0}, 1, v{vL}
            v_lshlrev_b32 v{vCX}, 9, v{t0}
            v_bfe_u32 v{t0}, v{vL}, 1, 1
            v_lshl_add_u32 v{vCX}, v{t0}, 8, v{vCX}
            v_lshl_add_u32 v{vCX}, v{vG}, 4, v{vCX}
            v_and_b32 v{t0}, 1, v{vG}
            v_lshlrev_b32 v{vCW}, 3, v{t0}
            v_lshl_add_u32 v{vCW}, v{vN}, 4, v{vCW}
            v_lshl_add_u32 v{vCW}, s{sW}, 8, v{vCW}
            v_and_b32 v{t0}, 7, v{vL}
            v_lshlrev_b32 v{vHBl}, 4, v{t0}
            v_lshl_add_u32 v{vHBl}, v{vG}, 7, v{vHBl}
            v_and_b32 v{t0}, 31, v{vL}
            v_lshlrev_b32 v{vD2}, 8, v{t0}
            v_lshlrev_b32 v{vOg}, 10, v{vG}
            v_lshl_add_u32 v{vOg}, v{vN}, 4, v{vOg}
            v_lshlrev_b32 v{vWTw}, 1, v{t0}
            v_lshl_add_u32 v{vWTw}, s{sW}, 6, v{vWTw}
            s_and_b32 s{sTMP}, s{sW}, 1
            s_lshl_b32 s{sTMP}, s{sTMP}, 5
            s_lshl_b32 s{sTMP+1}, s{sW}, 6
            s_add_u32 s{sTMP}, s{sTMP}, s{sTMP+1}
            v_lshl_add_u32 v{vWTr}, v{vG}, 3, s{sTMP}
            v_cmp_gt_u32 s[{sM1}:{sM1+1}], 8, v{vN}
            """)
        later_addresses()
        g("s_waitcnt vmcnt(0)")
        g("s_barrier")
        g.stamp(5)
        aUV, aWO = 0, 32
        vDB = 88
        vDL = 92
        vO = 96
        vFr = 116
        vWt = 132
        vD = 136
        vLs, vWr, vEr = 140, 141, 142
        g(f"""
        s_lshr_b32 s{sO}, s{sH}, 4
        s_lshl_b32 s{sO}, s{sO}, 1
        s_lshr_b32 s{sO3}, s{sW}, 1
        s_add_u32 s{sO}, s{sO}, s{sO3}
        s_lshl_b32 s{sO}, s{sO}, 13
        s_and_b32 s{sO3}, s{sH}, 15
        s_lshl_b32 s{sO3}, s{sO3}, 4
        s_add_u32 s{sO}, s{sO}, s{sO3}
        s_add_u32 s{sO2}, s{sO}, {DL}
        s_add_u32 s{sO}, s{sO}, {D2}
        """)
        epos = opt.get("e_pos")
        if epos is None: g(f"buffer_load_dwordx4 {v(vDB,4)}, v{vD2}, {WS}, s{sO} offen sc1")
        if opt.get("w1_late") == 2:
            g(f"s_mov_b32 s{sC}, s{sO}")
            w1_gemv(1)
            g(f"s_mov_b32 s{sO}, s{sC}")
        for tau in range(2):
            for ks in range(4):
                for hi in range(2):
                    g(f"ds_read_b64_tr_b16 {A(aUV+(tau*4+ks)*4+2*hi,2)}, v{vTU1 if tau else vTU0} offset:{ks*8192+hi*4096}")
        def wo_frags():
            for t in range(5):
                for x in range(2):
                    for hi in range(2):
                        g(f"ds_read_b64_tr_b16 {A(aWO+(t*2+x)*4+2*hi,2)}, v{vTO1 if x else vTO0} offset:{hi*16*1152+t*256}")
        if not wol: wo_frags()
        sBP = 34
        sHI, sTT = sPOI, sPC
        sX, sP4 = 32, 33
        g(f"""
        s_and_b32 s{sTMP}, s{sW}, 1
        s_lshl_b32 s{sTMP}, s{sTMP}, 12
        s_add_u32 s{sTMP}, s{sTMP}, s{sO2}
        s_add_u32 s{sBP}, s4, s{sTMP}
        s_addc_u32 s{sBP+1}, s5, 0
        s_mul_i32 s{sO3}, s{sA}, {OSTR}
        s_lshl_b32 s{sTMP}, s{sW}, 12
        s_add_u32 s{sO3}, s{sO3}, s{sTMP}
        s_add_u32 s{sO3}, s{sO3}, {OB}
        s_bitcmp1_b32 s{sT}, 0
        s_cselect_b32 s{sX}, 0x10001, 0
        s_mov_b32 s{sHI}, 0x10000
        s_mov_b32 s{sTT}, s{sT}
        s_mov_b32 s{sTT+1}, s{sT}
        """)
        g(f"v_mov_b32 v{t0}, 0")
        for k in range(9):
            g(f"v_dot2_f32_bf16 v{t0}, v{vGx+k}, v{vGw+k}, v{t0}")
        g("s_nop 2")
        for r in (8, 4, 2, 1):
            g(f"v_add_f32_dpp v{t0}, v{t0}, v{t0} row_ror:{r} row_mask:0xf bank_mask:0xf")
        g(f"""
        v_mov_b32 v{t1}, v{t0}
        v_permlane16_swap_b32 v{t0}, v{t1}
        v_add_f32 v{t0}, v{t0}, v{t1}
        v_mul_f32 v{t0}, {hex(fbits(-math.log2(math.e)))}, v{t0}
        v_exp_f32 v{t0}, v{t0}
        v_add_f32 v{t0}, 1.0, v{t0}
        v_rcp_f32 v{t0}, v{t0}
        v_cmp_eq_u32 vcc, 1, v{vFB}
        v_mov_b32 v{t1}, v{t0}
        v_permlane32_swap_b32 v{t0}, v{t1}
        v_cndmask_b32 v{vFB}, v{t0}, v{t1}, vcc
        v_lshlrev_b32 v{vB2}, 16, v{vB2}
        s_mov_b32 s{sCNT}, 0
        """)
        if epos is None:
            g(f"s_waitcnt vmcnt({1 if opt.get('w1_late') == 2 else 0})")
            g("s_branch L_A_d2chk")
        else:
            g(f"""
            s_lshr_b32 s{sTMP}, s{sH}, 4
            s_lshl_b32 s{sTMP}, s{sTMP}, 2
            s_add_u32 s{sTMP}, s{sTMP}, s{sW}
            s_lshl_b32 s{sTMP}, s{sTMP}, 11
            s_mul_i32 s{sTMP+1}, s{sXCD}, {16384 if opt.get("e_rep") else 0}
            s_add_u32 s{sTMP}, s{sTMP}, s{sTMP+1}
            s_add_u32 s{sTMP}, s{sTMP}, {DE2 if opt.get("e_rep") else DE}
            v_lshrrev_b32 v{t2}, 1, v{vD2}
            s_mov_b64 exec, 0xffff
            """)
            g.lab("L_A_epoll")
            g(f"buffer_load_dwordx2 {v(t0,2)}, v{t2}, {WS}, s{sTMP} offen offset:8 sc1")
            spin_guard(g, "L_A_edone")
            g("s_waitcnt vmcnt(0)")
            g(f"v_cmp_ne_u64 vcc, s[{sT}:{sT+1}], {v(t0,2)}")
            g("s_mov_b64 exec, vcc")
            g("s_cbranch_vccnz L_A_epoll")
            g.lab("L_A_edone")
            g("s_mov_b64 exec, -1")
            g("s_mov_b64 vcc, -1")
            if opt.get("st14e"): g.stamp(14)
            if opt.get("e_sleep"): g(f"s_sleep {opt['e_sleep']}")
            g(f"s_mov_b32 s{sCNT}, 0")
        g.lab("L_A_d2poll")
        if opt.get("m_shrink"): g("s_mov_b64 exec, vcc")
        if opt.get("m_sleep"): g(f"s_sleep {opt['m_sleep']}")
        g(f"buffer_load_dwordx4 {v(vDB,4)}, v{vD2}, {WS}, s{sO} offen sc1")
        g(f"s_add_u32 s{sCNT}, s{sCNT}, 1")
        g(f"s_cmp_gt_u32 s{sCNT}, {opt.get('spin', SPIN)}")
        g("s_waitcnt vmcnt(0)")
        g("s_cbranch_scc1 L_A_d2done")
        g.lab("L_A_d2chk")
        g(f"v_cmp_ne_u64 vcc, s[{sT}:{sT+1}], {v(vDB+2,2)}")
        g("s_cbranch_vccnz L_A_d2poll")
        g.lab("L_A_d2done")
        if opt.get("m_shrink"): g("s_mov_b64 exec, -1")
        g.stamp(6)
        def lpoll():
            for k in range(16):
                g(f"s_load_dword s{16+k}, s[{sBP}:{sBP+1}], {k*256+8} glc")
        lvec = opt.get("l_vec", 0)
        if lvec == 1: g(f"buffer_load_dwordx4 {v(vDL,4)}, v{vD2}, {WS}, s{sO2} offen sc1")
        elif lvec == 0: lpoll()
        g(f"v_max_f32_dpp v{t0}, v{vDB}, v{vDB} row_ror:8 row_mask:0xf bank_mask:0xf")
        for r in (4, 2, 1):
            g(f"v_max_f32_dpp v{t0}, v{t0}, v{t0} row_ror:{r} row_mask:0xf bank_mask:0xf")
        g(f"""
        v_mov_b32 v{t1}, v{t0}
        v_permlane16_swap_b32 v{t0}, v{t1}
        v_max_f32 v{t0}, v{t0}, v{t1}
        v_sub_f32 v{t0}, v{vDB}, v{t0}
        v_exp_f32 v{t0}, v{t0}
        v_cvt_pk_bf16_f32 v{t0}, v{t0}, v{t0}
        ds_write_b16 v{vWTw}, v{t0} offset:{A_WT}
        ds_read_b64 {v(vWt,2)}, v{vWTr} offset:{A_WT}
        v_and_b32 v{vWr}, 0xffff0000, v{t0}
        s_mov_b32 s{sCNT}, 0
        s_branch {"L_A_lgo" if lvec == 2 else "L_A_lchk"}
        """)
        g.lab("L_A_lpoll")
        if lvec: g(f"buffer_load_dwordx4 {v(vDL,4)}, v{vD2}, {WS}, s{sO2} offen sc1")
        else: lpoll()
        g(f"s_add_u32 s{sCNT}, s{sCNT}, 1")
        g(f"s_cmp_gt_u32 s{sCNT}, {opt.get('spin', SPIN)}")
        g("s_cbranch_scc1 L_A_lgo")
        g.lab("L_A_lchk")
        if lvec:
            g("s_waitcnt vmcnt(0)")
            g(f"v_cmp_ne_u64 vcc, s[{sT}:{sT+1}], {v(vDL+2,2)}")
            g("s_cbranch_vccnz L_A_lpoll")
        else:
            g("s_waitcnt lgkmcnt(0)")
            for k in range(0, 16, 2):
                g(f"s_xor_b64 s[{16+k}:{17+k}], s[{16+k}:{17+k}], s[{sTT}:{sTT+1}]")
            for st_ in (8, 4, 2):
                for k in range(0, st_, 2):
                    g(f"s_or_b64 s[{16+k}:{17+k}], s[{16+k}:{17+k}], s[{16+k+st_}:{17+k+st_}]")
            g("s_cbranch_scc1 L_A_lpoll")
        g.lab("L_A_lgo")
        g(f"s_mov_b32 s{sCNT}, 0")
        if opt.get("o_sleep"): g(f"s_sleep {opt['o_sleep']}")
        g.stamp(11)
        def oget():
            g(f"buffer_load_dwordx4 {v(vDL,4)}, v{vD2}, {WS}, s{sO2} offen sc1")
            for u in range(4):
                g(f"buffer_load_dwordx4 {v(vO+4*u,4)}, v{vOg}, {WS}, s{sO3} offen offset:{u*256} sc1")
        oget()
        nwo = 0
        if wol in (1, 2):
            assert lvec == 2
            g(f"s_mul_i32 s{sC}, s{sA}, {32*1152}")
            unit_load(g, WO, vP2, A_WO, sC, 1152, "wo", NT, rows36=False)
            nwo = 9 if "wo" not in opt.get("skip", "") else 0
        g("s_waitcnt lgkmcnt(0)")
        for u in range(4):
            for d in range(4):
                g(f"v_perm_b32 v{vFr+4*u+d}, v{vWt+(u>>1)}, v{vWt+(u>>1)}, v{vSel+4*(u&1)+d}")
        g.lab("L_A_ocomb")
        g(f"v_mov_b32 v{vEr}, 0")
        g(f"s_waitcnt vmcnt({4+nwo})")
        g(f"v_mul_f32 v{vLs}, v{vWr}, v{vDL}")
        g(f"v_cmp_ne_u64 s[{sM4}:{sM4+1}], s[{sT}:{sT+1}], {v(vDL+2,2)}")
        for r in (8, 4, 2, 1):
            g(f"v_add_f32_dpp v{vLs}, v{vLs}, v{vLs} row_ror:{r} row_mask:0xf bank_mask:0xf")
        g(f"""
        v_mov_b32 v{t1}, v{vLs}
        v_permlane16_swap_b32 v{vLs}, v{t1}
        v_add_f32 v{vLs}, v{vLs}, v{t1}
        v_rcp_f32 v{vLs}, v{vLs}
        """)
        for u in range(4):
            g(f"s_waitcnt vmcnt({3-u+nwo})")
            for d in range(4):
                g(f"v_xor_b32 v{vO+4*u+d}, s{sX}, v{vO+4*u+d}")
            if u:
                for d in range(4):
                    g(f"v_bitop3_b32 v{vEr}, v{vEr}, v{vO+4*(u-1)+d}, s{sHI} bitop3:0xf6")
            g(f"{MF} {v(vD,4)}, {v(vFr+4*u,4)}, {v(vO+4*u,4)}, {'0' if u == 0 else v(vD,4)}")
        for d in range(4):
            g(f"v_bitop3_b32 v{vEr}, v{vEr}, v{vO+12+d}, s{sHI} bitop3:0xf6")
        g(f"v_and_b32 v{vEr}, 0x10001, v{vEr}")
        g(f"v_cmp_ne_u32 vcc, 0, v{vEr}")
        g(f"s_or_b64 vcc, vcc, s[{sM4}:{sM4+1}]")
        g("s_cbranch_scc1 L_A_oslow")
        g.lab("L_A_ook")
        if opt.get("stamps"): g(f"s_mov_b32 s100, s{sCNT}")
        for r in range(4):
            g(f"v_mul_f32 v{vD+r}, v{vLs}, v{vD+r}")
        g(f"v_cvt_pk_bf16_f32 v{vD}, v{vD}, v{vD+1}")
        g(f"v_cvt_pk_bf16_f32 v{vD+1}, v{vD+2}, v{vD+3}")
        g(f"ds_write_b64 v{vCW}, {v(vD,2)} offset:{A_CTXC}")
        if wol == 3:
            g(f"s_mul_i32 s{sC}, s{sA}, {32*1152}")
            unit_load(g, WO, vP2, A_WO, sC, 1152, "wo", NT, rows36=False)
        g("s_waitcnt vmcnt(0) lgkmcnt(0)" if wol == 1 else "s_waitcnt lgkmcnt(0)")
        g("s_barrier")
        g.stamp(7)
        vC = 80
        vU = 96
        vG1, vG2 = 104, 108
        vAe, vAo = 116, 120
        vY = 124
        for ks in range(4):
            g(f"ds_read_b128 {v(vC+4*ks,4)}, v{vCX} offset:{A_CTXC+ks*64}")
        g(f"s_lshl_b32 s{sO3}, s{sA}, 10")
        g(f"s_add_u32 s{sO3}, s{sO3}, {HB+LOC}")
        g(f"s_add_u32 s{sO}, s{sHB}, {LOC}")
        g(f"s_and_b32 s{sP4}, s{sT}, 15")
        sD3, vD3 = 16, 58
        g(f"s_xor_b32 s{sD3}, s{sW}, 3")
        g(f"s_or_b32 s{sD3}, s{sD3}, s{sJ}")
        g(f"s_lshl_b32 s{sTMP}, s{sH}, 7")
        g(f"s_add_u32 s{sTMP}, s{sTMP}, {D3}")
        g(f"v_lshl_add_u32 v{vD3}, v{vL}, 12, s{sTMP}")
        for ks in range(4):
            g(f"s_waitcnt lgkmcnt({3-ks})")
            for tau in range(2):
                g(f"{MF} {v(vU+4*tau,4)}, {A(aUV+(tau*4+ks)*4,4)}, {v(vC+4*ks,4)}, {'0' if ks == 0 else v(vU+4*tau,4)}")
        for r in range(4):
            g(f"v_cndmask_b32 v{vC+r}, v{vU+r}, v{vU+4+r}, s[{sM2}:{sM2+1}]")
            g(f"v_cndmask_b32 v{vC+4+r}, v{vU+4+r}, v{vU+r}, s[{sM2}:{sM2+1}]")
        for r in range(4):
            g(f"v_add_f32_dpp v{vC+r}, v{vC+4+r}, v{vC+r} quad_perm:[2,3,0,1] row_mask:0xf bank_mask:0xf")
        g(f"""
        v_cvt_pk_bf16_f32 v{vTag-2}, v{vC}, v{vC+1}
        v_cvt_pk_bf16_f32 v{vTag-1}, v{vC+2}, v{vC+3}
        s_mov_b32 exec_lo, 0x000f000f
        s_mov_b32 exec_hi, 0x000f000f
        buffer_store_dwordx4 {v(vTag-2,4)}, v{vHBs}, {WS}, s{sO} offen
        s_mov_b64 exec, -1
        """)
        def hb_wt():
            g("s_mov_b32 exec_lo, 0x000f000f")
            g("s_mov_b32 exec_hi, 0x000f000f")
            g(f"buffer_store_dwordx4 {v(vTag-2,4)}, v{vHBs}, {WS}, s{sHB} offen sc1")
            g("s_mov_b64 exec, -1")
        g.stamp(8)
        g(f"s_mov_b32 s{sCNT}, 0")
        if wol >= 2:
            g("s_waitcnt vmcnt(1)")
            g("s_barrier")
        if wol: wo_frags()
        g.lab("L_A_hbld")
        g(f"buffer_load_dwordx4 {v(vG1,4)}, v{vHBl}, {WS}, s{sO3} offen sc1")
        g(f"buffer_load_dwordx4 {v(vG2,4)}, v{vHBl}, {WS}, s{sO3} offen offset:512 sc1")
        g("s_waitcnt vmcnt(0)")
        g(f"v_cmp_ne_u64 vcc, s[{sT}:{sT+1}], {v(vG1+2,2)}")
        g(f"v_cmp_ne_u64 s[{sM3}:{sM3+1}], s[{sT}:{sT+1}], {v(vG2+2,2)}")
        src = [vG1, vG1 + 1, vG2, vG2 + 1]
        for d in range(4):
            g(f"v_cndmask_b32 v{vAe+d}, 0, v{src[d]}, s[{sM1}:{sM1+1}]")
        g(f"s_or_b64 vcc, vcc, s[{sM3}:{sM3+1}]")
        g("s_cbranch_scc1 L_A_hbpoll")
        g.lab("L_A_hbdone")
        g.stamp(9)
        def d3bell():
            g(f"s_cmp_lg_u32 s{sD3}, 0")
            g("s_cbranch_scc1 L_A_nod3")
            g("s_mov_b64 exec, 0xff")
            g(f"buffer_store_dword v{vTag}, v{vD3}, {WS}, 0 offen sc1")
            g("s_mov_b64 exec, -1")
            g.lab("L_A_nod3")
        if opt.get("d3_pos", 0) == 0 and opt.get("h3_bell", 1): d3bell()
        for d in range(4):
            g(f"v_cndmask_b32 v{vAo+d}, v{src[d]}, 0, s[{sM1}:{sM1+1}]")
        if wol: g("s_waitcnt lgkmcnt(0)")
        for t in range(4):
            g(f"{MF} {v(vY+4*t,4)}, {v(vAe,4)}, {A(aWO+(t*2)*4,4)}, 0")
        for t in range(4):
            g(f"{MF} {v(vY+4*t,4)}, {v(vAo,4)}, {A(aWO+(t*2+1)*4,4)}, {v(vY+4*t,4)}")
        g(f"{MF} {v(vY+16,4)}, {v(vAe,4)}, {A(aWO+32,4)}, 0")
        g(f"{MF} {v(vY+16,4)}, {v(vAo,4)}, {A(aWO+36,4)}, {v(vY+16,4)}")
        for t in range(4):
            g(f"v_pk_add_f32 {v(vY+4*t,2)}, {v(vY+4*t,2)}, {v(vY+4*t+2,2)}")
        for t in range(4):
            g(f"v_add_f32 v{vC+t}, v{vY+4*t}, v{vY+4*t+1}")
        for t in range(4):
            g(f"v_and_or_b32 v{vC+t}, v{vC+t}, -16, s{sP4}")
        g(f"buffer_store_dwordx4 {v(vC,4)}, v{vA_l16}, {WS}, s{sH3m} offen sc1")
        g(f"s_cmp_gt_u32 s{sW}, 1")
        g("s_cbranch_scc1 L_A_no5b")
        g(f"v_pk_add_f32 {v(vY+16,2)}, {v(vY+16,2)}, {v(vY+18,2)}")
        g(f"v_add_f32 v{vY+16}, v{vY+16}, v{vY+17}")
        g(f"v_and_or_b32 v{vY+16}, v{vY+16}, -16, s{sP4}")
        g(f"buffer_store_dword v{vY+16}, v{vH3x}, {WS}, s{sH3l} offen sc1")
        g.lab("L_A_no5b")
        if opt.get("d3_pos", 0) == 1: d3bell()
        hb_wt()
        g.stamp(10)
        g(f"s_cmp_ge_u32 s{sA}, 36")
        g("s_cbranch_scc1 L_A_exit")
        vRd = [144, 160]
        vRw = 97
        vRa = 59
        sRa = [sO, sO3, sC, sHB]
        g(f"""
        s_lshl_b32 s{sTMP}, s{sXCD}, 2
        s_add_u32 s{sTMP}, s{sTMP}, s{sW}
        s_lshl_b32 s{sTMP}, s{sTMP}, 10
        s_add_u32 s{sTMP}, s{sTMP}, {D3}
        s_add_u32 s{sBP}, s4, s{sTMP}
        s_addc_u32 s{sBP+1}, s5, 0
        """)
        def d3poll():
            for k in range(8):
                g(f"s_load_dword s{16+k}, s[{sBP}:{sBP+1}], {k*128} glc")
        if opt.get("h3_bell", 1): d3poll()
        g(f"""
        s_lshl_b32 s{sO2}, s{sW}, 12
        s_mul_i32 s{sO3}, s{sA}, {USTR}
        s_add_u32 s{sO2}, s{sO2}, s{sO3}
        s_add_u32 s{sO2}, s{sO2}, {H3}
        """)
        def rget(part):
            for u in range(4):
                if part: g(f"buffer_load_dwordx4 {v(vRd[1]+4*u,4)}, v{vA_l16}, {WS}, s{sO2} offen offset:{u*1024} sc1")
                else: g(f"buffer_load_dwordx4 {v(vRd[0]+4*u,4)}, v{vRa}, {WS}, s{sRa[u]} offen sc1")
        rget(1)
        g(f"""
        v_and_b32 v{t0}, 7, v{vL}
        v_lshlrev_b32 v{vRw}, 6, v{t0}
        v_lshrrev_b32 v{t1}, 3, v{vL}
        v_mul_u32_u24 v{vRa}, {OSTR}, v{t1}
        v_lshl_add_u32 v{vRa}, v{t0}, 4, v{vRa}
        v_lshrrev_b32 v{t0}, 5, v{vL}
        v_lshl_add_u32 v{vRw}, v{t0}, 4, v{vRw}
        v_bfe_u32 v{t0}, v{vL}, 4, 1
        v_lshl_add_u32 v{vRw}, v{t0}, 5, v{vRw}
        v_lshl_add_u32 v{vRw}, s{sW}, 2, v{vRw}
        s_mul_i32 s{sO}, s{sW}, {32*OSTR}
        s_lshl_b32 s{sTMP}, s{sA}, 7
        s_add_u32 s{sO}, s{sO}, s{sTMP}
        s_add_u32 s{sO}, s{sO}, {OB}
        s_add_u32 s{sO3}, s{sO}, {8*OSTR}
        s_add_u32 s{sC}, s{sO}, {16*OSTR}
        s_add_u32 s{sHB}, s{sO}, {24*OSTR}
        s_mov_b32 s{sCNT}, 0
        s_branch {"L_A_d3chk" if opt.get("h3_bell", 1) else "L_A_d3go"}
        """)
        g.lab("L_A_d3poll")
        d3poll()
        spin_guard(g, "L_A_d3go")
        g.lab("L_A_d3chk")
        g("s_waitcnt lgkmcnt(0)")
        for k in range(0, 8, 2):
            g(f"s_xor_b64 s[{16+k}:{17+k}], s[{16+k}:{17+k}], s[{sTT}:{sTT+1}]")
        g("s_or_b64 s[16:17], s[16:17], s[18:19]")
        g("s_or_b64 s[20:21], s[20:21], s[22:23]")
        g("s_or_b64 s[16:17], s[16:17], s[20:21]")
        g("s_cbranch_scc1 L_A_d3poll")
        g.lab("L_A_d3go")
        g(f"s_mov_b32 s{sCNT}, 0")
        if opt.get("h3_ack", 0): g("s_waitcnt vmcnt(4)")
        if opt.get("st14"): g.stamp(14)
        rget(0)
        def rsum(part, waits):
            R = vRd[part]
            for u in range(4):
                if waits[u] is not None: g(f"s_waitcnt vmcnt({waits[u]})")
                for d in range(4):
                    g(f"v_xor_b32 v{R+4*u+d}, s{sP4}, v{R+4*u+d}")
                if u == 0:
                    g(f"v_or3_b32 v{vEr}, v{R}, v{R+1}, v{R+2}")
                    g(f"v_or_b32 v{vEr}, v{vEr}, v{R+3}")
                else:
                    g(f"v_pk_add_f32 {v(vY,2)}, {v(R if u == 1 else vY,2)}, {v(R+4*u,2)}")
                    g(f"v_pk_add_f32 {v(vY+2,2)}, {v(R+2 if u == 1 else vY+2,2)}, {v(R+4*u+2,2)}")
                    g(f"v_or3_b32 v{vEr}, v{vEr}, v{R+4*u}, v{R+4*u+1}")
                    g(f"v_or3_b32 v{vEr}, v{vEr}, v{R+4*u+2}, v{R+4*u+3}")
            g(f"v_permlane32_swap_b32 v{vY}, v{vY+1}")
            g(f"v_permlane32_swap_b32 v{vY+2}, v{vY+3}")
            g(f"v_and_b32 v{vEr}, 15, v{vEr}")
            g(f"v_add_f32 v{vY}, v{vY}, v{vY+1}")
            g(f"v_add_f32 v{vY+2}, v{vY+2}, v{vY+3}")
            g(f"v_cmp_ne_u32 vcc, 0, v{vEr}")
            g(f"v_permlane16_swap_b32 v{vY}, v{vY+2}")
            g(f"v_add_f32 v{vY}, v{vY}, v{vY+2}")
        def rfin(part):
            g(f"v_add_f32_dpp v{vY}, v{vY}, v{vY} row_ror:8 row_mask:0xf bank_mask:0xf")
            g(f"ds_write_b32 v{vRw}, v{vY} offset:{A_RED + part*512}")
        sPend = sM3
        rsum(1, [4, None, None, None])
        g(f"s_mov_b64 s[{sPend}:{sPend+1}], vcc")
        rfin(1)
        g.lab("L_A_r0sum")
        rsum(0, [3, 2, 1, 0])
        g("s_cbranch_vccnz L_A_r0slow")
        g.lab("L_A_r0ok")
        rfin(0)
        g(f"s_cmp_lg_u64 s[{sPend}:{sPend+1}], 0")
        g("s_cbranch_scc1 L_A_r1slow")
        g.lab("L_A_r1ok")
        g.stamp(12)
        if opt.get("stamps"):
            g(f"s_lshl_b32 s{sCNT}, s{sCNT}, 8")
            g(f"s_or_b32 s100, s100, s{sCNT}")
        g("s_waitcnt lgkmcnt(0)")
        g("s_barrier")
        g(f"s_cmp_lg_u32 s{sW}, 0")
        g("s_cbranch_scc1 L_A_exit")
        R = 144
        g(f"""
        s_mov_b32 exec_hi, 0
        ds_read_b128 {v(R,4)}, v{vA_l16} offset:{A_RED}
        ds_read_b128 {v(R+4,4)}, v{vA_l16} offset:{A_RED+512}
        v_sub_f32 v{t0}, 1.0, v{vFB}
        s_waitcnt lgkmcnt(0)
        v_pk_add_f32 {v(R,2)}, {v(R,2)}, {v(R+2,2)}
        v_pk_add_f32 {v(R+4,2)}, {v(R+4,2)}, {v(R+6,2)}
        v_add_f32 v{R}, v{R}, v{R+1}
        v_add_f32 v{R+4}, v{R+4}, v{R+5}
        v_add_f32 v{R+4}, v{R+4}, v{vB2}
        v_mul_f32 v{R+4}, v{t0}, v{R+4}
        v_fma_f32 v{R}, v{vFB}, v{R}, v{R+4}
        v_cvt_pk_bf16_f32 v{R}, v{R}, v{R}
        buffer_store_short v{R}, v{vOA}, {OUT}, 0 offen
        s_cmp_lg_u32 s{sA}, 0
        s_cbranch_scc1 L_A_exit
        s_mov_b64 exec, 1
        buffer_store_dwordx2 {v(vTag,2)}, v{vA_l16}, {WS}, 0 offen offset:{EPOCH} sc1
        """)
        if opt.get("probe") is not None:
            i = opt["probe"]
            g.stamp(13)
            g("s_waitcnt lgkmcnt(0)")
            g(f"s_sub_u32 s{sO}, s{70+2*i}, s70")
            g(f"s_lshl_b32 s{sO}, s{sO}, 2")
            if opt.get("dcount"):
                g(f"""
                s_load_dwordx2 s[32:33], s[0:1], 104
                s_mov_b32 s34, 256
                s_mov_b32 s35, 0x00020000
                v_mov_b32 v7, {4*(opt["dcount"]-1)}
                s_waitcnt lgkmcnt(0)
                buffer_load_dword v6, v7, s[32:35], 0 offen sc1
                s_waitcnt vmcnt(0)
                v_readfirstlane_b32 s{sO}, v6
                s_mul_i32 s{sO}, s{sO}, 50
                """)
            g(f"s_add_u32 s{sO}, s{sO}, 4000")
            g.lab("L_probe")
            g(f"s_memrealtime s[{sTMP}:{sTMP+1}]")
            g("s_waitcnt lgkmcnt(0)")
            g(f"s_sub_u32 s{sTMP}, s{sTMP}, s70")
            g(f"s_cmp_lt_u32 s{sTMP}, s{sO}")
            g("s_cbranch_scc1 L_probe")
            g("s_endpgm")
        g.lab("L_A_exit")
        g.stamp(13)
        dump_stamps(g, 16, 216)
        g("s_endpgm")
        if pB:
            g.lab("L_A_h0poll")
            spin_guard(g, "L_A_h0done")
            g("s_branch L_A_h0get")
        else:
            g.lab("L_A_h0poll")
            spin_guard(g, "L_A_h0done")
            g(f"s_cmp_lg_u32 s{sCNT}, 8")
            g("s_cbranch_scc1 L_A_h0ns")
            h0_wt()
            g.lab("L_A_h0ns")
            dual_next(g, sib[1:])
            h0loads()
            g("s_waitcnt vmcnt(0)")
            g("s_branch L_A_h0chk")
        g.lab("L_A_oslow")
        spin_guard(g, "L_A_ook")
        oget()
        g("s_waitcnt vmcnt(0)")
        g("s_branch L_A_ocomb")
        g.lab("L_A_hbpoll")
        spin_guard(g, "L_A_hbdone")
        g(f"s_cmp_lg_u32 s{sCNT}, 8")
        g("s_cbranch_scc1 L_A_hbns")
        hb_wt()
        g.lab("L_A_hbns")
        dual_next(g, [sO3])
        g("s_branch L_A_hbld")
        g.lab("L_A_r0slow")
        spin_guard(g, "L_A_r0ok")
        rget(0)
        g("s_branch L_A_r0sum")
        g.lab("L_A_r1slow")
        spin_guard(g, "L_A_r1ok")
        rget(1)
        rsum(1, [3, 2, 1, 0])
        g("s_cbranch_vccnz L_A_r1slow")
        rfin(1)
        g("s_branch L_A_r1ok")

class RoleB:
    def __init__(self, g, NT, vL, vN, vG):
        self.g, self.NT, self.vL, self.vN, self.vG = g, NT, vL, vN, vG

    def issue(self):
        g, vL = self.g, self.vL
        if g.opt.get("p1a_on") == "B":
            vN, vG, NT = self.vN, self.vG, self.NT
            srd_tail(g, 12, 576 * 8192)
            srd_tail(g, 8, 2304)
            g(f"""
            s_lshr_b32 s{sC}, s{sI}, 2
            s_lshl_b32 s{sC}, s{sC}, 3
            s_add_u32 s{sC}, s{sC}, s{sXCD}
            s_and_b32 s{sO}, s{sI}, 3
            v_mul_u32_u24 v5, {36*8192}, v{vG}
            v_lshl_add_u32 v5, v{vN}, 4, v5
            s_lshl_b32 s{sO2}, s{sO}, 4
            s_add_u32 s{sO2}, s{sO2}, s{sW}
            s_mul_i32 s{sO2}, s{sO2}, 9
            s_lshl_b32 s{sO3}, s{sO2}, 13
            s_lshl_b32 s{sTMP}, s{sC}, 8
            s_add_u32 s{sO3}, s{sO3}, s{sTMP}
            v_bfe_u32 v4, v{vL}, 3, 1
            v_mul_u32_u24 v4, 1152, v4
            v_mad_u32_u24 v4, v{vG}, 64, v4
            v_lshl_add_u32 v4, v{vG}, 3, v4
            s_lshr_b32 s{sO2}, s{sO2}, 1
            s_lshl_b32 s{sO2}, s{sO2}, 2
            s_waitcnt lgkmcnt(0)
            buffer_load_dwordx4 v[64:67], v4, {X}, s{sO2} offen
            buffer_load_dword v68, v4, {X}, s{sO2} offen offset:16
            """)
            for i in range(9):
                g(f"buffer_load_dwordx4 {A(4*i,4)}, v5, s[12:15], s{sO3} offen {NT}")
                if i != 8: g(f"s_addk_i32 s{sO3}, 0x2000")
            load_tag(g)
            g(f"""
            s_lshl_b32 s{sC}, s{sC}, 2
            s_add_u32 s{sC}, s{sC}, s{sO}
            s_lshl_b32 s{sC}, s{sC}, 10
            s_add_u32 s{sC}, s{sC}, {H0}
            """)
            return
        if g.opt.get("numa"):
            PFL = g.opt.get("pf_lines", 4)
            srd_tail(g, 28, 2 * 4096 * 1024)
            g(f"""
            s_and_b32 s{sMSG}, s{sXCD}, 1
            s_lshl_b32 s{sMSG}, s{sMSG}, 4
            s_and_b32 s{sO3}, s{sI}, 14
            s_add_u32 s{sMSG}, s{sMSG}, s{sO3}
            s_bfe_u32 s{sO3}, s{sXCD}, 0x10001
            s_add_u32 s{sMSG}, s{sMSG}, s{sO3}
            s_lshl_b32 s{sO3}, s{sMSG}, 18
            s_and_b32 s{sC}, s{sI}, 1
            s_lshl_b32 s{sC}, s{sC}, 8
            s_add_u32 s{sO3}, s{sO3}, s{sC}
            s_add_u32 s{sC}, s{sO3}, 0x2000
            v_lshlrev_b32 v4, 7, v{vL}
            s_waitcnt lgkmcnt(0)
            s_cmp_lg_u32 s{sW}, 3
            s_cbranch_scc1 L_B_nopr
            {"s_memtime s[16:17]" if g.opt.get("dcount") else ""}
            {"s_waitcnt lgkmcnt(0)" if g.opt.get("dcount") else ""}
            s_mov_b64 exec, {(1 << g.opt.get("plines", 1)) - 1}
            {"v_lshlrev_b32 v8, 14, v1" if g.opt.get("plines", 1) > 1 else "v_mov_b32 v8, 0"}
            buffer_load_dword v60, v8, s[28:31], s{sO3} offen
            buffer_load_dword v61, v8, s[28:31], s{sC} offen
            s_mul_i32 s{sTMP}, s{sI}, {2*PFL*128}
            s_mov_b64 exec, {(1 << (2*PFL)) - 1}
            v_add_u32 v5, s{sTMP}, v4
            global_load_dword v63, v5, s[{sPC}:{sPC+1}]
            s_lshr_b32 s{sO}, s{sI}, 2
            s_lshl_b32 s{sO}, s{sO}, 3
            s_add_u32 s{sO}, s{sO}, s{sXCD}
            s_lshl_b32 s{sO}, s{sO}, 2
            s_and_b32 s{sO2}, s{sI}, 3
            s_add_u32 s{sO}, s{sO}, s{sO2}
            s_lshl_b32 s{sO2}, s{sO}, 11
            s_add_u32 s{sO2}, s{sO2}, {H0+LOC}
            s_mov_b64 exec, 0xffff
            buffer_load_dword v62, v4, {WS}, s{sO2} offen
            s_lshl_b32 s{sO}, s{sO}, 10
            s_add_u32 s{sO2}, s{sO}, {HB+LOC}
            s_mov_b64 exec, 0xff
            buffer_load_dword v62, v4, {WS}, s{sO2} offen
            s_add_u32 s{sO2}, s{sO}, {D3}
            buffer_load_dword v62, v4, {WS}, s{sO2} offen
            s_mov_b64 exec, -1
            s_waitcnt vmcnt(5)
            s_memtime s[34:35]
            s_waitcnt vmcnt(4)
            s_memtime s[38:39]
            s_waitcnt lgkmcnt(0)
            s_sub_u32 s38, s38, s34
            s_cmp_lt_u32 s38, {g.opt.get("gap", 100)}
            s_cselect_b32 s{sO3}, 1, 0
            v_mov_b32 v6, s{sO3}
            v_mov_b32 v7, {B_PHI}
            ds_write_b32 v7, v6
            s_waitcnt lgkmcnt(0)
            """)
            if g.opt.get("stamps"): g("s_mov_b32 s88, s38")
            if g.opt.get("dcount"):
                g(f"""
                s_load_dwordx2 s[20:21], s[0:1], 104
                s_mov_b32 s22, 256
                s_mov_b32 s23, 0x00020000
                s_sub_u32 s16, s34, s16
                s_lshr_b32 s16, s16, 8
                s_min_u32 s16, s16, 7
                s_lshl_b32 s16, s16, 2
                s_lshr_b32 s17, s38, 6
                s_min_u32 s17, s17, 6
                s_lshl_b32 s17, s17, 2
                s_add_u32 s17, s17, 32
                v_mov_b32 v6, 1
                v_mov_b32 v7, 0
                s_waitcnt lgkmcnt(0)
                s_mov_b64 exec, 1
                buffer_atomic_add v6, v7, s[20:23], s16 offen sc1
                buffer_atomic_add v6, v7, s[20:23], s17 offen sc1
                s_mov_b64 exec, -1
                """)
            g.lab("L_B_nopr")
            return
        g(f"""
        s_lshr_b32 s{sO}, s{sI}, 2
        s_lshl_b32 s{sO}, s{sO}, 3
        s_add_u32 s{sO}, s{sO}, s{sXCD}
        s_lshl_b32 s{sO}, s{sO}, 2
        s_and_b32 s{sO2}, s{sI}, 3
        s_add_u32 s{sO}, s{sO}, s{sO2}
        s_lshl_b32 s{sO2}, s{sO}, 11
        s_add_u32 s{sO2}, s{sO2}, {H0+LOC}
        s_lshl_b32 s{sO}, s{sO}, 10
        s_add_u32 s{sO}, s{sO}, {HB+LOC}
        s_cmp_eq_u32 s{sW}, 1
        s_cselect_b32 s{sO}, s{sO}, s{sO2}
        s_lshl_b32 s{sO2}, s{sXCD}, 4
        s_add_u32 s{sO2}, s{sO2}, s{sI}
        s_lshl_b32 s{sO2}, s{sO2}, 10
        s_add_u32 s{sO2}, s{sO2}, {D3}
        s_cmp_eq_u32 s{sW}, 2
        s_cselect_b32 s{sO}, s{sO2}, s{sO}
        s_cselect_b32 s{sTMP}, 0xff, -1
        s_and_b32 s{sTMP}, s{sTMP}, 0xffff
        s_mov_b32 s{sTMP+1}, 0
        v_lshlrev_b32 v4, 7, v{vL}
        """)
        g("s_waitcnt lgkmcnt(0)")
        load_tag(g)
        g(f"""
        {"s_cmp_lg_u32" if g.opt.get("split") else "s_cmp_gt_u32"} s{sW}, 2
        s_cbranch_scc1 L_B_head
        s_mov_b64 exec, s[{sTMP}:{sTMP+1}]
        buffer_load_dword v62, v4, {WS}, s{sO} offen
        s_mov_b64 exec, -1
        """)

    def rest(self):
        g, NT, vL, vN, vG = self.g, self.NT, self.vL, self.vN, self.vG
        opt = g.opt
        CKV, W2, B1, W1 = "s[28:31]", "s[20:23]", "s[24:27]", "s[16:19]"
        t0, t1, t2, t3 = 4, 5, 6, 7
        vL16 = 12
        vOa = 13
        vH3, vH3x = 14, 15
        vB1 = 22
        vSB = 24
        vQBs = 28
        vPVb = 16
        vTag = 36
        vML = 34
        vMXw, vMXr = 38, 39
        vD2a = 40
        vPw = 41
        vP2 = 42
        vT20, vT21, vK20, vK21 = 52, 53, 54, 55
        vHg, vHw = 56, 57
        vHe, vHo, vHke, vHko = 58, 59, 60, 61
        vQd = 8
        aS, aP = 0, 128
        sOo = 61
        sH3m, sH3l = 62, 63
        sD2, sGot = 59, 58
        sBP, sTT = 34, sPC
        sQg = 33
        sPat, sMk = 32, 36
        srd_tail(g, 28, 2 * 4096 * 1024)
        vW1, vW2 = 168, 212
        vXr = 64
        vSel = 88
        vXA = 96
        vW1a, vHs = 164, 165
        sRho, sBlk, sR0 = 38, 39, 56
        numa = opt.get("numa", 0)
        sCk = 37
        if numa:
            assert not opt.get("ckv_x", 1)
            sPhi, sDP = 38, 18
            def ckv_base():
                g(f"""
                s_lshl_b32 s{sCk}, s{sMSG}, 2
                s_add_u32 s{sCk}, s{sCk}, s{sW}
                s_lshl_b32 s{sCk}, s{sCk}, 3
                s_add_u32 s{sCk}, s{sCk}, s{sPhi}
                s_lshl_b32 s{sCk}, s{sCk}, 13
                s_lshl_b32 m0, s{sW}, 15
                s_add_u32 m0, m0, {B_CKV}
                """)
            def phi_get():
                g(f"""
                v_mov_b32 v{t0}, {B_PHI}
                s_barrier
                ds_read_b32 v{t1}, v{t0}
                s_waitcnt lgkmcnt(0)
                v_readfirstlane_b32 s{sPhi}, v{t1}
                """)
                if opt.get("numa_force") is not None: g(f"s_xor_b32 s{sPhi}, s{sPhi}, {opt['numa_force']}")
                ckv_base()
            g(f"s_and_b32 s{sB}, s{sXCD}, 1")
            g(f"v_lshlrev_b32 v{vL16}, 4, v{vL}")
            phi_get()
            load_tag(g)
        else:
            g(f"""
            s_and_b32 s{sB}, s{sXCD}, 1
            s_lshr_b32 s{sMSG}, s{sI}, 1
            s_lshl_b32 s{sMSG}, s{sMSG}, 2
            s_lshr_b32 s{sO}, s{sXCD}, 1
            s_add_u32 s{sMSG}, s{sMSG}, s{sO}
            s_lshl_b32 s{sO}, s{sB}, 5
            s_add_u32 s{sMSG}, s{sMSG}, s{sO}
            v_lshlrev_b32 v{vL16}, 4, v{vL}
            """)
            sCk = 37
            g(f"""
            s_lshl_b32 s{sCk}, s{sMSG}, 2
            s_add_u32 s{sCk}, s{sCk}, s{sW}
            s_lshl_b32 s{sCk}, s{sCk}, 15
            s_lshl_b32 m0, s{sW}, 15
            s_add_u32 m0, m0, {B_CKV}
            """)
            if opt.get("ckv_x", 1):
                g(f"s_and_b32 s{sGot}, s{sI}, 1")
                g(f"s_lshl_b32 s{sGot}, s{sGot}, 14")
                g(f"s_add_u32 s{sCk}, s{sCk}, s{sGot}")
                g(f"s_lshl_b32 s{sGot}, s{sGot}, 1")
        def ckv_stream(k0, k1):
            thr = opt.get("ckv_thr")
            for k in range(k0, k1):
                f = f16sw(k & 15)
                tmp = t0 + (k & 1)
                g(f"v_xor_b32 v{tmp}, {f*16}, v{vL16}")
                if thr is not None: g(f"s_waitcnt vmcnt({thr-1})")
                g(f"buffer_load_dwordx4 v{tmp}, {CKV}, s{sCk} offen offset:{(k%4)*1024} {NT} lds")
                if k % 4 == 3:
                    g(f"s_addk_i32 s{sCk}, {0x3000 if (numa and k % 8 == 7) else 0x1000}")
                    g(f"s_add_u32 m0, m0, 0x1000")
                if k == 15 and opt.get("ckv_x", 1): g(f"s_sub_u32 s{sCk}, s{sCk}, s{sGot}")
        c1_, c2_ = opt.get("ckv_a", 0), opt.get("ckv_b", 0)
        g.stamp(13)
        ckv_stream(0, c1_)
        g.l.append(";;SPLIT")
        pB = opt.get("p1a_on") == "B"
        if pB:
            vX, vSl, vF, vQp = 64, 72, 80, 116
            selectors(g, vSl, vL, t0, t1, t2)
            g(f"s_and_b32 s{sO}, s{sW}, 1")
            g(f"s_lshl_b32 s{sO}, s{sO}, 4")
            g(f"""
            s_cmp_lg_u32 s{sW}, 2
            s_cbranch_scc1 L_B_nt
            s_lshl_b32 s{sO2}, s{sXCD}, 4
            s_add_u32 s{sO2}, s{sO2}, s{sI}
            s_lshl_b32 s{sO2}, s{sO2}, 10
            s_add_u32 s{sO2}, s{sO2}, {D3}
            v_lshlrev_b32 v{t0}, 7, v{vL}
            s_mov_b64 exec, 0xff
            buffer_load_dword v62, v{t0}, {WS}, s{sO2} offen
            s_mov_b64 exec, -1
            """)
            g.lab("L_B_nt")
            g(f"s_waitcnt vmcnt({9+c1_})")
            for k in range(5):
                g(f"v_alignbit_b32 v{vX+k}, v{vX+k+1}, v{vX+k}, s{sO}")
            for i in range(9):
                for d in range(4):
                    g(f"v_perm_b32 v{vF+4*i+d}, v{vX+(i>>1)}, v{vX+(i>>1)}, v{vSl+4*(i&1)+d}")
            cm = opt.get("ckv_m", 0)
            c0 = c1_
            for i in range(9):
                g(f"s_waitcnt vmcnt({8-i+c1_})")
                g(f"{MF} {v(vQp,4)}, {v(vF+4*i,4)}, {A(4*i,4)}, {'0' if i == 0 else v(vQp,4)}")
                if i >= 9 - cm:
                    ckv_stream(c1_, c1_ + 1); c1_ += 1
            g(f"s_cmp_eq_u32 s{sW}, 0")
            g("s_cbranch_scc1 L_B_w0a")
            g(f"v_lshl_add_u32 v{t2}, s{sW}, 10, v{vL16}")
            g(f"ds_write_b128 v{t2}, {v(vQp,4)} offset:{B_PB}")
            g("s_waitcnt lgkmcnt(0)")
            g("s_barrier")
            g("s_branch L_B_w0b")
            g.lab("L_B_w0a")
            g("s_waitcnt lgkmcnt(0)")
            g(f"s_add_u32 s{sO}, s{sT}, {K0}")
            g(f"s_and_b32 s{sO}, s{sO}, 15")
            g("s_barrier")
            for k in range(3):
                g(f"ds_read_b128 {v(vF+4*k,4)}, v{vL16} offset:{B_PB+(k+1)*1024}")
            g("s_waitcnt lgkmcnt(1)")
            g(f"v_pk_add_f32 {v(vQp,2)}, {v(vQp,2)}, {v(vF,2)}")
            g(f"v_pk_add_f32 {v(vQp+2,2)}, {v(vQp+2,2)}, {v(vF+2,2)}")
            g("s_waitcnt lgkmcnt(0)")
            g(f"v_pk_add_f32 {v(vF+4,2)}, {v(vF+4,2)}, {v(vF+8,2)}")
            g(f"v_pk_add_f32 {v(vF+6,2)}, {v(vF+6,2)}, {v(vF+10,2)}")
            g(f"v_pk_add_f32 {v(vQp,2)}, {v(vQp,2)}, {v(vF+4,2)}")
            g(f"v_pk_add_f32 {v(vQp+2,2)}, {v(vQp+2,2)}, {v(vF+6,2)}")
            for r in range(4):
                g(f"v_and_or_b32 v{vQp+r}, v{vQp+r}, -16, s{sO}")
            g(f"buffer_store_dwordx4 {v(vQp,4)}, v{vL16}, {WS}, s{sC} offen sc1")
            g.lab("L_B_w0b")
            g.stamp(9)
            cq = opt.get("ckv_q", 0)
            ckv_stream(c1_, c1_ + cq); c1_ += cq
        srd(g, 20, 9, 4608 * 1152)
        srd(g, 24, 8, 9216)
        if opt.get("w1_on") == "B":
            srd(g, 16, 7, 576 * 9216)
            srd_tail(g, 8, 2304)
        g(f"""
        s_and_b32 s{sHG}, s{sI}, 1
        s_lshl_b32 s{sU2}, s{sXCD}, 4
        s_add_u32 s{sU2}, s{sU2}, s{sI}
        s_mov_b32 s{sPR}, s{sU2}
        s_mov_b32 s{sPOI}, {POISON}
        v_mul_u32_u24 v{vOa}, {16*OSTR}, v{vG}
        v_lshl_add_u32 v{vOa}, v{vN}, 4, v{vOa}
        """)
        def msg_addr():
            g(f"""
        s_lshl_b32 s{sOo}, s{sHG}, 6
        s_add_u32 s{sOo}, s{sOo}, s{sW}
        s_mul_i32 s{sOo}, s{sOo}, {OSTR}
        s_lshl_b32 s{sO}, s{sMSG}, 8
        s_add_u32 s{sOo}, s{sOo}, s{sO}
        s_add_u32 s{sOo}, s{sOo}, {OB}
        s_lshl_b32 s{sD2}, s{sHG}, 6
        s_add_u32 s{sD2}, s{sD2}, s{sMSG}
        s_lshl_b32 s{sD2}, s{sD2}, 8
        s_add_u32 s{sD2}, s{sD2}, {D2}
            """)
        if not numa: msg_addr()
        h3_addr(g, vH3, vH3x, vL, vN, vG, t0)
        h3_soffs(g, sH3m, sH3l)
        def fsw(dst, src, tmp):
            g(f"v_lshrrev_b32 v{tmp}, 3, v{src}")
            g(f"v_and_b32 v{dst}, 7, v{src}")
            g(f"v_lshl_add_u32 v{dst}, v{dst}, 1, v{tmp}")
            g(f"v_lshlrev_b32 v{tmp}, 3, v{tmp}")
            g(f"v_xor_b32 v{dst}, v{dst}, v{tmp}")
        fsw(t2, vN, t3)
        g(f"""
        v_xor_b32 v{t2}, v{t2}, v{vG}
        v_lshlrev_b32 v{t2}, 4, v{t2}
        v_lshl_add_u32 v{t2}, v{vN}, 10, v{t2}
        s_lshl_b32 s{sO}, s{sW}, 15
        s_add_u32 s{sO}, s{sO}, {B_CKV}
        """)
        assert B_QF == 0
        for q in range(4):
            g(f"v_xor_b32 v{vQBs+q}, {q*64}, v{t2}")
            g(f"v_add_u32 v{vSB+q}, s{sO}, v{vQBs+q}")
        g(f"v_lshrrev_b32 v{t0}, 2, v{vL}")
        fsw(t2, t0, t3)
        g(f"""
        v_bfe_u32 v{t3}, v{vL}, 1, 1
        v_xor_b32 v{t2}, v{t2}, v{t3}
        v_lshlrev_b32 v{t1}, 10, v{t0}
        v_lshl_add_u32 v{t1}, v{t2}, 4, v{t1}
        v_and_b32 v{t3}, 1, v{vL}
        v_lshl_add_u32 v{t1}, v{t3}, 3, v{t1}
        v_lshl_add_u32 v{t1}, s{sW}, 8, v{t1}
        """)
        for k in range(4):
            g(f"s_add_u32 s{sO}, s{sW}, {k}")
            g(f"s_and_b32 s{sO}, s{sO}, 3")
            g(f"v_lshl_add_u32 v{[vPw,20,21,23][k]}, s{sO}, 10, v{vL16}")
            g(f"s_lshl_b32 s{sO}, s{sO}, 15")
            g(f"s_add_u32 s{sO}, s{sO}, {B_CKV}")
            g(f"v_add_u32 v{vPVb+k}, s{sO}, v{t1}")
        for k in range(opt.get("pv_pre", 4), 4):
            for ct in range(8):
                g(f"v_xor_b32 v{168+8*k+ct}, {ct<<5}, v{vPVb+k}")
        g(f"""
        v_lshlrev_b32 v{vMXr}, 4, v{vN}
        v_lshl_add_u32 v{vMXw}, v{vG}, 2, v{vMXr}
        v_lshl_add_u32 v{vMXw}, s{sW}, 8, v{vMXw}
        s_lshl_b32 s{sQg}, s{sB}, 1
        s_add_u32 s{sQg}, s{sQg}, s{sHG}
        s_lshl_b32 s{sQg}, s{sQg}, 2
        s_add_u32 s{sQg}, s{sQg}, s{sW}
        s_lshl_b32 s{sQg}, s{sQg}, 12
        s_add_u32 s{sQg}, s{sQg}, {QB}
        s_lshr_b32 s{sTMP}, s{sW}, 1
        s_xor_b32 s{sTMP+1}, s{sW}, s{sTMP}
        s_and_b32 s{sTMP+1}, s{sTMP+1}, 1
        s_lshl_b32 s{sTMP+1}, s{sTMP+1}, 3
        s_add_u32 s{sTMP}, s{sTMP}, s{sTMP+1}
        s_lshl_b32 s{sTMP}, s{sTMP}, 4
        v_xor_b32 v{vQd}, s{sTMP}, v{vL16}
        v_xor_b32 v{vQd+1}, 32, v{vQd}
        v_xor_b32 v{vQd+2}, 64, v{vQd}
        v_xor_b32 v{vQd+3}, 0x60, v{vQd}
        v_mov_b32 v{t0}, 0
        v_lshlrev_b32 v{t1}, 2, v{vL}
        s_mov_b32 exec_hi, 0
        ds_write_b32 v{t1}, v{t0} offset:{B_ZERO}
        s_mov_b64 exec, -1
        s_lshl_b32 s{sTMP}, s{sXCD}, 3
        s_lshl_b32 s{sTMP+1}, s{sHG}, 2
        s_add_u32 s{sTMP}, s{sTMP}, s{sTMP+1}
        s_add_u32 s{sTMP}, s{sTMP}, s{sW}
        s_lshl_b32 s{sTMP}, s{sTMP}, 9
        s_add_u32 s{sTMP}, s{sTMP}, {D1}
        s_add_u32 s{sBP}, s4, s{sTMP}
        s_addc_u32 s{sBP+1}, s5, 0
        """)
        if not numa: g.stamp(14)
        ckv_stream(c1_, c1_ + c2_)
        for i in range(10):
            unit_pattern(g, vP2 + i, vL, sW if i == 9 else None, i, 1152, t0, t1)
        tr_pair_bases(g, vT20, vT21, vK20, vK21, vL, B_W2, t0, t1, t2)
        g(f"""
        v_bfe_u32 v{t0}, v{vL}, 2, 1
        v_lshlrev_b32 v{t0}, 7, v{t0}
        v_add_u32 v{t0}, {B_HL}, v{t0}
        v_lshl_add_u32 v{t1}, v{vG}, 3, v{t0}
        v_add_u32 v{t0}, 64, v{t0}
        v_mov_b32 v{t2}, {B_ZERO}
        v_cmp_gt_u32 vcc, 8, v{vN}
        v_cndmask_b32 v{vHe}, v{t2}, v{t1}, vcc
        v_cndmask_b32 v{vHo}, v{t1}, v{t2}, vcc
        v_lshrrev_b32 v{t1}, 3, v{vL}
        v_cmp_eq_u32 vcc, 0, v{t1}
        v_cndmask_b32 v{vHke}, v{t2}, v{t0}, vcc
        v_cmp_eq_u32 vcc, 1, v{t1}
        v_cndmask_b32 v{vHko}, v{t2}, v{t0}, vcc
        """)
        finish_tag(g)
        g(f"""
        v_mov_b32 v{vTag}, s{sT}
        v_mov_b32 v{vTag+1}, s{sT+1}
        s_bitcmp1_b32 s{sT}, 0
        s_cselect_b32 s{sPat}, 1, 0x10000
        v_mov_b32 v{vML+1}, s{sPat}
        s_mov_b32 s{sMk}, 0xfffefffe
        s_mov_b32 s{sTT}, s{sT}
        s_mov_b32 s{sTT+1}, s{sT}
        """)
        vPat = 33
        g(f"v_mov_b32 v{vPat}, s{sPat}")
        w1b = opt.get('w1_on') == 'B'
        if w1b:
            g(f"""
            s_lshl_b32 s{sO}, s{sU2}, 2
            s_add_u32 s{sO}, s{sO}, s{sW}
            s_mul_i32 s{sRho}, s{sO}, 1821
            s_lshr_b32 s{sRho}, s{sRho}, 16
            s_mul_i32 s{sTMP}, s{sRho}, 36
            s_sub_u32 s{sBlk}, s{sO}, s{sTMP}
            s_min_u32 s{sTMP}, s{sRho}, 4
            s_mul_i32 s{sR0}, s{sRho}, 10
            s_add_u32 s{sR0}, s{sR0}, s{sTMP}
            s_lshl_b32 s{sR0}, s{sR0}, 2
            v_bfe_u32 v{t0}, v{vL}, 3, 1
            v_mul_u32_u24 v{t0}, 1152, v{t0}
            s_lshl_b32 s{sO}, s{sR0}, 1
            """)
            assert all((i * 1821) >> 16 == i // 36 for i in range(512))
            for k in range(5):
                g(f"buffer_load_dwordx4 {v(vXr+4*k,4)}, v{t0}, {X}, s{sO} offen offset:{16*k}")
            g(f"buffer_load_dwordx2 {v(vXr+20,2)}, v{t0}, {X}, s{sO} offen offset:80")
            g(f"""
            v_mul_u32_u24 v{vW1a}, 9216, v{vG}
            v_lshl_add_u32 v{vW1a}, v{vN}, 4, v{vW1a}
            v_lshrrev_b32 v{t0}, 5, v{vL}
            v_mul_u32_u24 v{vHs}, 18432, v{t0}
            v_and_b32 v{t0}, 31, v{vL}
            v_lshl_add_u32 v{vHs}, v{t0}, 4, v{vHs}
            v_mul_u32_u24 v{t0}, 0x0202, v{vG}
            v_add_u32 v{t0}, 0x0100, v{t0}
            v_and_b32 v{t1}, 1, v{vL}
            v_lshlrev_b32 v{t1}, 4, v{t1}
            v_lshlrev_b32 v{t0}, v{t1}, v{t0}
            v_mov_b32 v{t2}, 0x0c0c0000
            v_lshrrev_b32 v{t2}, v{t1}, v{t2}
            v_or_b32 v{t0}, v{t0}, v{t2}
            v_bfe_u32 v{t1}, v{vL}, 1, 2
            v_mov_b32 v{t2}, 0x0c0c0c0c
            """)
            for d in range(4):
                g(f"v_cmp_eq_u32 vcc, {d}, v{t1}")
                g(f"v_cndmask_b32 v{vSel+d}, v{t2}, v{t0}, vcc")
        g(f"""
        v_lshrrev_b32 v{t0}, 5, v{vL}
        v_bfe_u32 v{t1}, v{vL}, 4, 1
        v_lshl_add_u32 v{t0}, v{t1}, 1, v{t0}
        v_lshl_add_u32 v{t0}, v{vN}, 2, v{t0}
        v_lshlrev_b32 v{t0}, 1, v{t0}
        s_mul_i32 s{sO}, s{sU2}, 72
        buffer_load_ushort v{vB1}, v{t0}, {B1}, s{sO} offen
        v_lshl_add_u32 v{vHw}, s{sW}, 7, v{t0}
        s_mul_i32 s{sO}, s{sU2}, 9
        v_add_u32 v{t0}, s{sO}, v{vN}
        v_and_b32 v{t1}, 1, v{t0}
        v_lshlrev_b32 v{t1}, 8, v{t1}
        v_bfe_u32 v{t2}, v{t0}, 1, 4
        v_lshl_add_u32 v{t1}, v{t2}, 4, v{t1}
        v_lshrrev_b32 v{t2}, 5, v{t0}
        v_lshl_add_u32 v{t1}, v{t2}, 9, v{t1}
        v_mul_u32_u24 v{vHg}, 36864, v{vG}
        v_add_u32 v{vHg}, v{vHg}, v{t1}
        """)
        for k in range(4):
            g(f"s_load_dwordx4 s[{[8,12,24,52][k]}:{[8,12,24,52][k]+3}], s[{sBP}:{sBP+1}], {k*128} glc")
        assert c1_ + c2_ <= 16
        if opt.get("b_sleep"): g(f"s_sleep {opt['b_sleep']}")
        if numa:
            g(f"""
            s_lshl_b32 s{sO}, s{sMSG}, 1
            s_add_u32 s{sO}, s{sO}, s{sHG}
            s_lshl_b32 s{sO}, s{sO}, 7
            s_add_u32 s{sO}, s{sO}, {DP}
            s_add_u32 s{sDP}, s4, s{sO}
            s_addc_u32 s{sDP+1}, s5, 0
            s_lshr_b32 s{sTMP}, s{sXCD}, 2
            s_or_b32 s{sTMP}, s{sTMP}, s{sW}
            s_cmp_lg_u32 s{sTMP}, 0
            s_cbranch_scc1 L_B_noann
            s_xor_b32 s{sTMP}, s{sT+1}, s{sPhi}
            v_mov_b32 v{t0}, s{sT}
            v_mov_b32 v{t1}, s{sTMP}
            v_lshlrev_b32 v{t2}, 3, v{vL}
            s_mov_b64 exec, 0xffff
            buffer_store_dwordx2 {v(t0,2)}, v{t2}, {WS}, s{sO} offen sc1
            s_mov_b64 exec, -1
            """)
            g.lab("L_B_noann")
        g.stamp(8)
        ckv_stream(c1_ + c2_, 32)
        if numa:
            g(f"""
            s_cmp_lt_u32 s{sXCD}, 4
            s_cbranch_scc1 L_B_phok
            s_mov_b32 s{sCNT}, 0
            """)
            g.lab("L_B_phpoll")
            g(f"s_load_dwordx2 s[16:17], s[{sDP}:{sDP+1}], 0 glc")
            spin_guard(g, "L_B_phok")
            g(f"""
            s_waitcnt lgkmcnt(0)
            s_xor_b64 s[16:17], s[16:17], s[{sT}:{sT+1}]
            s_lshr_b32 s{sTMP}, s17, 1
            s_or_b32 s{sTMP}, s{sTMP}, s16
            s_cbranch_scc1 L_B_phpoll
            s_cmp_lg_u32 s17, s{sPhi}
            s_cbranch_scc1 L_B_phok
            s_branch L_B_refetch
            """)
            g.lab("L_B_phok")
            g(f"s_lshl_b32 s{sMSG}, s{sMSG}, 1")
            g(f"s_add_u32 s{sMSG}, s{sMSG}, s{sPhi}")
            msg_addr()
            if opt.get("stamps"): g(f"s_mov_b32 s98, s{sPhi}")
        NW1 = 0 if "w1" in opt.get("skip", "") else 11
        w1pos = opt.get("w1_pos", 0)
        def w1_stream():
            if "w1" in opt.get("skip", ""): return
            g(f"s_mul_i32 s{sO2}, s{sR0}, 9216")
            g(f"s_lshl_b32 s{sO3}, s{sBlk}, 8")
            g(f"s_add_u32 s{sO2}, s{sO2}, s{sO3}")
            for i in range(11):
                g(f"buffer_load_dwordx4 {v(vW1+4*i,4)}, v{vW1a}, {W1}, s{sO2} offen {NT}")
                if i < 10: g(f"s_add_u32 s{sO2}, s{sO2}, {4*9216}")
                if i == 9:
                    g(f"s_cmp_ge_u32 s{sRho}, 4")
                    g(f"s_cselect_b32 s{sO2}, {576*9216}, s{sO2}")
        def w1_gemv(store=True):
            vH = 140
            for i in range(10):
                g(f"{MF} {v(vH,4)}, {v(vXA+4*i,4)}, {v(vW1+4*i,4)}, {'0' if i == 0 else v(vH,4)}")
            g(f"s_cmp_ge_u32 s{sRho}, 4")
            g("s_cbranch_scc1 L_B_w1s")
            g(f"{MF} {v(vH,4)}, {v(vXA+40,4)}, {v(vW1+40,4)}, {v(vH,4)}")
            g.lab("L_B_w1s")
            g(f"""
            s_mul_i32 s{sO}, s{sRho}, 36864
            s_lshl_b32 s{sO3}, s{sBlk}, 9
            s_add_u32 s{sO}, s{sO}, s{sO3}
            s_add_u32 s{sO}, s{sO}, {HH}
            s_and_b32 s{sO3}, s{sT}, 15
            """)
            for r in range(4):
                g(f"v_and_or_b32 v{vH+r}, v{vH+r}, -16, s{sO3}")
            g(f"s_mov_b32 s{sR0}, s{sO}")
        def w2_stream():
            g(f"s_mul_i32 s{sO2}, s{sU2}, {36*1152}")
            unit_load(g, W2, vP2, None, sO2, 1152, "w2", NT, vdst=vW2, w0extra=False)
        NW1 = 0
        if w1b:
            assert opt.get("w2_pos", 0) != 2 and opt.get("pv_pre", 4) == 4
            w1_stream(); NW1 = 0 if "w1" in opt.get("skip", "") else 11
        if opt.get("w2_pos", 0) == 2:
            w2_stream(); NW1 = 0 if "w2" in opt.get("skip", "") else 11
        g.stamp(1)
        g(f"s_lshl_b32 m0, s{sW}, 12")
        sD = [8, 12, 24, 52]
        def d1poll():
            for k in range(4):
                g(f"s_load_dwordx4 s[{sD[k]}:{sD[k]+3}], s[{sBP}:{sBP+1}], {k*128} glc")
        def d1chk():
            for k in range(4):
                g(f"s_xor_b64 s[{sD[k]}:{sD[k]+1}], s[{sD[k]}:{sD[k]+1}], s[{sTT}:{sTT+1}]")
                g(f"s_xor_b64 s[{sD[k]+2}:{sD[k]+3}], s[{sD[k]+2}:{sD[k]+3}], s[{sTT}:{sTT+1}]")
                g(f"s_or_b64 s[{sD[k]}:{sD[k]+1}], s[{sD[k]}:{sD[k]+1}], s[{sD[k]+2}:{sD[k]+3}]")
            g("s_or_b64 s[8:9], s[8:9], s[12:13]")
            g("s_or_b64 s[24:25], s[24:25], s[52:53]")
            g("s_or_b64 s[8:9], s[8:9], s[24:25]")
        def qdma():
            for k in range(4):
                g(f"buffer_load_dwordx4 v{vQd+k}, {WS}, s{sQg} offen offset:{k*1024} sc1 lds")
        def look(tag):
            if tag[0] not in opt.get("looks", "abcd"): return
            g(f"s_cmp_lg_u32 s{sGot}, 0")
            g(f"s_cbranch_scc1 L_B_lk{tag}")
            g("s_waitcnt lgkmcnt(0)")
            d1chk()
            g(f"s_cbranch_scc1 L_B_lp{tag}")
            g.stamp(3)
            qdma()
            g(f"s_mov_b32 s{sGot}, 1")
            g(f"s_branch L_B_lk{tag}")
            g.lab(f"L_B_lp{tag}")
            d1poll()
            g.lab(f"L_B_lk{tag}")
        def pvgroup(k):
            for ct in range(8):
                tmp = t0 + (ct & 1)
                g(f"v_xor_b32 v{tmp}, {ct<<5}, v{vPVb+k}")
                for hi in range(2):
                    g(f"ds_read_b64_tr_b16 {A(aP+(ct*4+k)*4+2*hi,2)}, v{tmp} offset:{hi*16384}")
        npre = opt.get("pv_pre", 4)
        vPA = 168
        def pvrd(k, ct, hi):
            g(f"ds_read_b64_tr_b16 {A(aP+(ct*4+k)*4+2*hi,2)}, v{vPA+8*k+ct} offset:{hi*16384}")
        qd = opt.get("q_direct", 0)
        if qd:
            vQr = 140
            def qld():
                for k in range(4):
                    g(f"buffer_load_dwordx4 {v(vQr+4*k,4)}, v{vL16}, {WS}, s{sQg} offen offset:{k*1024} sc1")
            def qchk():
                g(f"v_cmp_eq_u32 vcc, s{sPOI}, v{vQr}")
                for k in range(1, 4):
                    g(f"v_cmp_eq_u32 s[{sM1}:{sM1+1}], s{sPOI}, v{vQr+4*k}")
                    g(f"s_or_b64 vcc, vcc, s[{sM1}:{sM1+1}]")
            g("s_waitcnt lgkmcnt(0)")
            g(f"s_mov_b32 s{sCNT}, 0")
            g.lab("L_B_rdy")
            d1poll()
            spin_guard(g, "L_B_rdy2")
            g("s_waitcnt lgkmcnt(0)")
            d1chk()
            g("s_cbranch_scc1 L_B_rdy")
            g.lab("L_B_rdy2")
            g(f"s_lshl_b32 s{sTMP}, s{sW}, 12")
            for k in range(4): g(f"v_add_u32 v{vQd+k}, s{sTMP}, v{vQd+k}")
            g(f"s_waitcnt vmcnt({16+NW1})")
            for ks in range(16):
                g(f"ds_read_b128 {A(aS+ks*4,4)}, v{vSB+(ks&3)} offset:{(ks>>2)*256}")
            g(f"s_waitcnt vmcnt({opt.get('q_at', 0)+NW1})")
            g.stamp(3)
            qld()
            g(f"s_waitcnt vmcnt({4+NW1})")
            g.stamp(2)
            for ks in range(16):
                g(f"ds_read_b128 {A(aS+64+ks*4,4)}, v{vSB+(ks&3)} offset:{16384+(ks>>2)*256}")
            g("s_barrier")
            g(f"s_mov_b32 s{sGot}, 0")
            half = opt.get("q_mid", 2)
            for k in range(npre):
                if k == half:
                    g("s_waitcnt vmcnt(0)")
                    qchk()
                    g("s_cbranch_scc0 L_B_qm")
                    qld()
                    g.lab("L_B_qm")
                pvgroup(k)
            g(f"s_mov_b32 s{sCNT}, 0")
            g.lab("L_B_qchk")
            g("s_waitcnt vmcnt(0)")
            qchk()
            g("s_cbranch_scc1 L_B_qagain")
            g.lab("L_B_qgood")
            if opt.get("stamps"): g(f"s_mov_b32 s100, s{sCNT}")
            for k in range(4):
                g(f"ds_write_b128 v{vQd+k}, {v(vQr+4*k,4)} offset:{k*1024}")
        else:
            g("s_waitcnt lgkmcnt(0)")
            if opt.get("looks", "abcd"): d1poll()
            g(f"s_mov_b32 s{sGot}, 0")
            g(f"s_waitcnt vmcnt({16+NW1})")
            for ks in range(16):
                g(f"ds_read_b128 {A(aS+ks*4,4)}, v{vSB+(ks&3)} offset:{(ks>>2)*256}")
            if w1b:
                for i in range(11):
                    for d in range(4):
                        g(f"v_perm_b32 v{vXA+4*i+d}, v{vXr+2*i+1}, v{vXr+2*i}, v{vSel+d}")
            for z in range(opt.get("b_looks", 2)): look(f"a{z}")
            g(f"s_cmp_lg_u32 s{sGot}, 0")
            g("s_cbranch_scc1 L_B_cw1")
            g(f"s_waitcnt vmcnt({NW1})")
            g.lab("L_B_cw1")
            g(f"s_waitcnt vmcnt({4+NW1})")
            g.stamp(2)
            look("b")
            for ks in range(16):
                g(f"ds_read_b128 {A(aS+64+ks*4,4)}, v{vSB+(ks&3)} offset:{16384+(ks>>2)*256}")
            g("s_barrier")
            def pvgroup(k):
                for ct in range(8):
                    tmp = t0 + (ct & 1)
                    g(f"v_xor_b32 v{tmp}, {ct<<5}, v{vPVb+k}")
                    for hi in range(2):
                        g(f"ds_read_b64_tr_b16 {A(aP+(ct*4+k)*4+2*hi,2)}, v{tmp} offset:{hi*16384}")
            npre = opt.get("pv_pre", 4)
            vPA = 168
            def pvrd(k, ct, hi):
                g(f"ds_read_b64_tr_b16 {A(aP+(ct*4+k)*4+2*hi,2)}, v{vPA+8*k+ct} offset:{hi*16384}")
            for k in range(npre):
                look(f"c{k}")
                pvgroup(k)
            if w1b:
                look("d")
                g(f"s_cmp_lg_u32 s{sGot}, 0")
                g("s_cbranch_scc1 L_B_cw2")
                g("s_waitcnt vmcnt(0)")
                g.lab("L_B_cw2")
                g("s_waitcnt vmcnt(4)")
                w1_gemv(False)
            g(f"s_mov_b32 s{sCNT}, 0")
            g(f"s_cmp_lg_u32 s{sGot}, 0")
            g("s_cbranch_scc1 L_B_qwait")
            if opt.get("looks", "abcd"): g("s_branch L_B_d1chk")
            g.lab("L_B_d1poll")
            d1poll()
            spin_guard(g, "L_B_qget0")
            g.lab("L_B_d1chk")
            g("s_waitcnt lgkmcnt(0)")
            d1chk()
            g("s_cbranch_scc1 L_B_d1poll")
            g.stamp(3)
            g.lab("L_B_qget0")
            g(f"s_mov_b32 s{sCNT}, 0")
            qdma()
            g.lab("L_B_qwait")
        nb = 0
        if w1b:
            g(f"buffer_store_dwordx4 {v(140,4)}, v{vHs}, {WS}, s{sR0} offen sc1")
            nb = 1
        if opt.get("w2_pos", 0) == 3:
            g(f"s_mul_i32 s{sO2}, s{sU2}, {36*1152}")
            g(f"s_mul_i32 s{sO}, s{sW}, {8*1152}")
            g(f"s_add_u32 s{sO}, s{sO}, s{sO2}")
            g(f"s_add_u32 s{sO2}, s{sO2}, {32*1152}")
        if opt.get("w2_pos", 0) == 0:
            w2_stream(); nb += 0 if "w2" in opt.get("skip", "") else 11
        g(f"s_waitcnt vmcnt({nb}) lgkmcnt(0)")
        g.lab("L_B_qbar")
        g("s_barrier")
        g.stamp(4)
        def ebell():
            g(f"""
            s_cmp_lg_u32 s{sW}, 2
            s_cbranch_scc1 L_B_noeb
            s_sub_u32 s{sTMP}, s{sD2}, {D2}
            s_lshr_b32 s{sTMP}, s{sTMP}, 1
            s_add_u32 s{sTMP}, s{sTMP}, {DE2 if opt.get("e_rep") else DE}
            v_lshlrev_b32 v{t3}, {14 if opt.get("e_rep") else 4}, v{vL}
            s_mov_b64 exec, 0xff
            buffer_store_dwordx4 {v(vML,4)}, v{t3}, {WS}, s{sTMP} offen sc1
            s_mov_b64 exec, -1
            """)
            g.lab("L_B_noeb")
        vQ = 64
        vS = 156
        PRE = 4 if npre < 4 else 6
        late = [(k, ct, hi) for k in range(npre, 4) for ct in range(8) for hi in range(2)]
        per = 2 if late else 0
        seq = []
        for ks in range(PRE):
            g(f"ds_read_b128 {v(vQ+4*ks,4)}, v{vQBs+(ks&3)} offset:{(ks>>2)*256}"); seq.append(("q", ks))
        for ks in range(16):
            if opt.get("e_pos") == ks: ebell()
            if ks + PRE < 16:
                k2 = ks + PRE
                g(f"ds_read_b128 {v(vQ+4*k2,4)}, v{vQBs+(k2&3)} offset:{(k2>>2)*256}"); seq.append(("q", k2))
            for _ in range(per if ks + PRE < 16 else per + 1):
                if late:
                    pvrd(*late.pop(0)); seq.append(("p",))
            g(f"s_waitcnt lgkmcnt({min(15, len(seq) - 1 - seq.index(('q', ks)))})")
            for kt in range(2):
                g(f"{MF} {v(vS+4*kt,4)}, {A(aS+(kt*16+ks)*4,4)}, {v(vQ+4*ks,4)}, {'0' if ks == 0 else v(vS+4*kt,4)}")
            if opt.get("w2_pos", 0) == 3 and 4 <= ks < 15:
                i = ks - 4
                if i == 10: g("s_mov_b32 exec_hi, 0")
                g(f"buffer_load_dwordx4 {v(vW2+4*i,4)}, v{vP2+(i if i < 10 else 4)}, {W2}, s{sO if i < 9 else sO2} offen {NT}")
                if i == 10: g("s_mov_b64 exec, -1")
        CS = math.log2(math.e) * 128 ** -0.5
        g(f"s_mov_b32 s{sC}, {hex(fbits(CS))}")
        g(f"""
        {"" if qd else f"v_cmp_u_f32 vcc, v{vS}, v{vS}"}
        v_max3_f32 v{t0}, v{vS}, v{vS+1}, v{vS+2}
        v_max3_f32 v{t1}, v{vS+3}, v{vS+4}, v{vS+5}
        v_max3_f32 v{t0}, v{t0}, v{vS+6}, v{vS+7}
        v_max_f32 v{t0}, v{t0}, v{t1}
        {"" if qd else "s_cbranch_vccnz L_B_qslow"}
        """)
        g.lab("L_B_qok")
        if opt.get("stamps") and not qd: g(f"s_mov_b32 s100, s{sCNT}")
        g(f"""
        ds_write_b32 v{vMXw}, v{t0} offset:{B_MX}
        s_waitcnt lgkmcnt(0)
        s_barrier
        """)
        g.stamp(5)
        vM = 64
        for q in range(4):
            g(f"ds_read_b128 {v(vM+4*q,4)}, v{vMXr} offset:{B_MX+q*256}")
        g(f"""
        s_waitcnt lgkmcnt(2)
        v_max3_f32 v{vM}, v{vM}, v{vM+1}, v{vM+2}
        v_max3_f32 v{vM+3}, v{vM+3}, v{vM+4}, v{vM+5}
        v_max3_f32 v{vM}, v{vM}, v{vM+6}, v{vM+7}
        s_waitcnt lgkmcnt(0)
        v_max3_f32 v{vM+8}, v{vM+8}, v{vM+9}, v{vM+10}
        v_max3_f32 v{vM+11}, v{vM+11}, v{vM+12}, v{vM+13}
        v_max3_f32 v{vM+8}, v{vM+8}, v{vM+14}, v{vM+15}
        v_max3_f32 v{vM}, v{vM}, v{vM+3}, v{vM+11}
        v_max_f32 v{vM}, v{vM}, v{vM+8}
        v_mul_f32 v{vML}, s{sC}, v{vM}
        """)
        n1 = min(len(late), 14)
        for _ in range(n1): pvrd(*late.pop(0))
        def stat(wave, off, tag):
            g(f"s_cmp_lg_u32 s{sW}, {wave}")
            g(f"s_cbranch_scc1 L_B_nost{tag}")
            if off: g(f"s_add_u32 s{sD2}, s{sD2}, {off}")
            g("s_mov_b64 exec, 0xffff")
            g(f"buffer_store_dwordx4 {v(vML,4)}, v{vL16}, {WS}, s{sD2} offen sc1")
            g("s_mov_b64 exec, -1")
            g.lab(f"L_B_nost{tag}")
        if opt.get("m_early"): stat(1, 0, "m")
        for k in range(8):
            g(f"v_fma_f32 v{vS+k}, v{vS+k}, s{sC}, -v{vML}")
        for k in range(8):
            g(f"v_exp_f32 v{vS+k}, v{vS+k}")
        vPf = 80
        vO = 96
        for k in range(4):
            g(f"v_cvt_pk_bf16_f32 v{vPf+k}, v{vS+2*k}, v{vS+2*k+1}")
        g(f"ds_write_b128 v{vPw}, {v(vPf,4)} offset:{B_PB}")
        g(f"""
        v_pk_add_f32 {v(vS,2)}, {v(vS,2)}, {v(vS+2,2)}
        v_pk_add_f32 {v(vS+4,2)}, {v(vS+4,2)}, {v(vS+6,2)}
        v_pk_add_f32 {v(vS,2)}, {v(vS,2)}, {v(vS+4,2)}
        v_add_f32 v{vS}, v{vS}, v{vS+1}
        ds_write_b32 v{vMXw}, v{vS} offset:{B_LS}
        """)
        def pv(k, cts=range(8)):
            for ct in cts:
                g(f"{MF} {v(vO+4*ct,4)}, {v(vPf+4*k,4)}, {A(aP+(ct*4+k)*4,4)}, {'0' if k == 0 else v(vO+4*ct,4)}")
        pv(0, range(2))
        if not opt.get("m_early"): stat(1, 0, "m")
        g("s_waitcnt lgkmcnt(0)")
        g("s_barrier")
        g.stamp(6)
        for k in range(1, 4):
            g(f"ds_read_b128 {v(vPf+4*k,4)}, v{[0,20,21,23][k]} offset:{B_PB}")
        for q in range(4):
            g(f"ds_read_b128 {v(vM+4*q,4)}, v{vMXr} offset:{B_LS+q*256}")
        nl = len(late)
        assert all(k == 3 for k, _, _ in late)
        for ct in range(2, 8):
            pv(0, [ct])
            for _ in range(3):
                if late: pvrd(*late.pop(0))
        assert not late
        g(f"s_waitcnt lgkmcnt({min(15, 6 + nl)})")
        adds = [f"v_pk_add_f32 {v(vM,2)}, {v(vM,2)}, {v(vM+2,2)}", f"v_pk_add_f32 {v(vM+4,2)}, {v(vM+4,2)}, {v(vM+6,2)}",
                f"v_pk_add_f32 {v(vM+8,2)}, {v(vM+8,2)}, {v(vM+10,2)}", f"v_pk_add_f32 {v(vM+12,2)}, {v(vM+12,2)}, {v(vM+14,2)}",
                f"v_pk_add_f32 {v(vM,2)}, {v(vM,2)}, {v(vM+4,2)}", f"v_pk_add_f32 {v(vM+8,2)}, {v(vM+8,2)}, {v(vM+12,2)}",
                f"v_pk_add_f32 {v(vM,2)}, {v(vM,2)}, {v(vM+8,2)}", f"v_add_f32 v{vML}, v{vM}, v{vM+1}"]
        pv(1, range(4))
        g("s_waitcnt lgkmcnt(0)")
        for ct in range(4, 8):
            pv(1, [ct])
            g(adds[2 * (ct - 4)]); g(adds[2 * (ct - 4) + 1])
        dbpos = opt.get("d2_pos", 2)
        if dbpos == 2: stat(0, DL - D2, "l")
        vOo = 64
        def cv(k, rs=range(4)):
            for r in rs:
                g(f"v_cvt_pk_bf16_f32 v{vOo+4*r+k}, v{vO+8*k+r}, v{vO+8*k+4+r}")
        def tg(k, rs=range(4)):
            for r in rs:
                g(f"v_and_or_b32 v{vOo+4*r+k}, v{vOo+4*r+k}, s{sMk}, v{vPat}")
        for p in range(4):
            pv(2, [2 * p, 2 * p + 1])
            if p >= 2: cv(p - 2, (0, 1))
            pv(3, [2 * p])
            if p >= 2: cv(p - 2, (2, 3))
            pv(3, [2 * p + 1])
            if p >= 2: tg(p - 2)
            if dbpos == 3 and p == 1: stat(0, DL - D2, "l")
        cv(2); tg(2)
        for r in range(4):
            cv(3, [r]); tg(3, [r])
            g(f"s_add_u32 s{sO}, s{sOo}, {4*r*OSTR}")
            g(f"buffer_store_dwordx4 {v(vOo+4*r,4)}, v{vOa}, {WS}, s{sO} offen sc1")
        if dbpos == 4: stat(0, DL - D2, "l")
        g.stamp(7)
        vHr = 80
        vEr = 96
        g(f"""
        s_and_b32 s{sTMP}, s{sW}, 1
        s_mul_i32 s{sO}, s{sTMP}, 18432
        s_add_u32 s{sO}, s{sO}, {HH}
        s_add_u32 s{sO2}, s{sO}, {4*36864}
        s_add_u32 s{sO3}, s{sO}, {8*36864}
        s_add_u32 s{sC}, s{sO}, {12*36864}
        s_and_b32 s{sPat}, s{sT}, 15
        s_mov_b32 s{sCNT}, 0
        """)
        for k in range(4): g(f"v_mov_b32 v{vHr+12+k}, s{sPat}")
        def hget():
            g("s_mov_b32 exec_lo, 0x01ff01ff")
            g("s_mov_b32 exec_hi, 0x01ff01ff")
            for u, so in enumerate((sO, sO2, sO3, sC)):
                if u == 3: g("s_mov_b32 exec_hi, 0")
                g(f"buffer_load_dwordx4 {v(vHr+4*u,4)}, v{vHg}, {WS}, s{so} offen sc1")
            g("s_mov_b64 exec, -1")
        g(f"s_cmp_gt_u32 s{sW}, 1")
        g("s_cbranch_scc1 L_B_noh1")
        hget()
        g.lab("L_B_noh1")
        if npre < 4: g("s_barrier")
        if opt.get("w2_pos", 0) == 1:
            if opt.get("w2_wait"): g("s_waitcnt vmcnt(0)")
            if opt.get("b_sleep2"): g(f"s_sleep {opt['b_sleep2']}")
            g(f"s_mul_i32 s{sR0}, s{sU2}, {36*1152}")
            g(f"s_mov_b32 s{sRho}, s{sO}")
            unit_load(g, W2, vP2, B_W2, sR0, 1152, "w2", NT, thr=opt.get("w2_thr"))
            g(f"s_mov_b32 s{sO}, s{sRho}")
        else:
            g(f"s_mul_i32 s{sTMP}, s{sW}, 9216")
            g(f"v_add_u32 v{t2}, s{sTMP}, v{vL16}")
            g("s_waitcnt vmcnt(4)")
            for i in range(9):
                g(f"ds_write_b128 v{t2}, {v(vW2+4*i,4)} offset:{B_W2+i*1024}")
            g(f"ds_write_b128 v{vPw}, {v(vW2+36,4)} offset:{B_W2+36864}")
            g(f"ds_write_b128 v{vL16}, {v(vW2+40,4)} offset:{B_W2+36864+4096}")
        g(f"s_cmp_gt_u32 s{sW}, 1")
        g("s_cbranch_scc1 L_B_hbar")
        g.lab("L_B_hchk")
        g("s_mov_b32 exec_lo, 0x01ff01ff")
        g("s_mov_b32 exec_hi, 0x01ff01ff")
        g("s_waitcnt vmcnt(0)")
        g.stamp(10)
        vHx = 100
        for k in range(16):
            g(f"v_xor_b32 v{vHx+k}, s{sPat}, v{vHr+k}")
        g(f"v_or3_b32 v{vEr}, v{vHx}, v{vHx+1}, v{vHx+2}")
        for k in range(3, 15, 2):
            g(f"v_or3_b32 v{vEr}, v{vEr}, v{vHx+k}, v{vHx+k+1}")
        g(f"v_or_b32 v{vEr}, v{vEr}, v{vHx+15}")
        g(f"v_and_b32 v{vEr}, 15, v{vEr}")
        g(f"v_cmp_ne_u32 vcc, 0, v{vEr}")
        g("s_cbranch_vccnz L_B_hslow")
        g.lab("L_B_hok")
        c1 = -2.0 * math.log2(math.e) * math.sqrt(2.0 / math.pi)
        g(f"""
        v_pk_add_f32 {v(vHx,2)}, {v(vHx,2)}, {v(vHx+4,2)}
        v_pk_add_f32 {v(vHx+2,2)}, {v(vHx+2,2)}, {v(vHx+6,2)}
        v_pk_add_f32 {v(vHx+8,2)}, {v(vHx+8,2)}, {v(vHx+12,2)}
        v_pk_add_f32 {v(vHx+10,2)}, {v(vHx+10,2)}, {v(vHx+14,2)}
        v_pk_add_f32 {v(vHx,2)}, {v(vHx,2)}, {v(vHx+8,2)}
        v_pk_add_f32 {v(vHx+2,2)}, {v(vHx+2,2)}, {v(vHx+10,2)}
        v_lshlrev_b32 v{vB1}, 16, v{vB1}
        v_mov_b32 v{t1}, {hex(fbits(c1))}
        v_permlane32_swap_b32 v{vHx}, v{vHx+1}
        v_permlane32_swap_b32 v{vHx+2}, v{vHx+3}
        v_add_f32 v{vHx}, v{vHx}, v{vHx+1}
        v_add_f32 v{vHx+2}, v{vHx+2}, v{vHx+3}
        s_mov_b32 s{sC}, {hex(fbits(c1*0.044715))}
        v_permlane16_swap_b32 v{vHx}, v{vHx+2}
        v_add_f32 v{vHx}, v{vHx}, v{vHx+2}
        v_add_f32 v{vHx}, v{vHx}, v{vB1}
        v_mul_f32 v{t0}, v{vHx}, v{vHx}
        v_fma_f32 v{t0}, v{t0}, s{sC}, v{t1}
        v_mul_f32 v{t0}, v{t0}, v{vHx}
        v_exp_f32 v{t0}, v{t0}
        v_add_f32 v{t0}, 1.0, v{t0}
        v_rcp_f32 v{t0}, v{t0}
        v_mul_f32 v{t0}, v{t0}, v{vHx}
        v_cvt_pk_bf16_f32 v{t0}, v{t0}, v{t0}
        ds_write_b16 v{vHw}, v{t0} offset:{B_HL}
        s_mov_b64 exec, -1
        """)
        g.lab("L_B_hbar")
        g("s_waitcnt vmcnt(0) lgkmcnt(0)" if opt.get("w2_pos", 0) == 1 else "s_waitcnt lgkmcnt(0)")
        g("s_barrier")
        g.stamp(11)
        aW = 0
        vHA = 64
        vY = 96
        g(f"ds_read2_b64 {v(vHA,4)}, v{vHe} offset0:0 offset1:4")
        g(f"ds_read2_b64 {v(vHA+6,4)}, v{vHo} offset0:0 offset1:4")
        def w2reads(t):
            for x in range(2):
                b = aW + (t * 2 + x) * 6
                g(f"ds_read_b64_tr_b16 {A(b,2)}, v{vT21 if x else vT20} offset:{t*256}")
                g(f"ds_read_b64_tr_b16 {A(b+2,2)}, v{vT21 if x else vT20} offset:{16*1152+t*256}")
        def w2rk(t):
            for x in range(2):
                b = aW + (t * 2 + x) * 6
                g(f"ds_read_b64_tr_b16 {A(b+4,2)}, v{vK21 if x else vK20} offset:{t*256}")
        def w2mf(t):
            for x in range(2):
                b = aW + (t * 2 + x) * 6
                g(f"{MF} {v(vY+4*t,4)}, {v(vHA+6*x,4)}, {A(b,4)}, {'0' if x == 0 else v(vY+4*t,4)}")
        def w2mf16(t):
            for x in range(2):
                b = aW + (t * 2 + x) * 6
                g(f"{MF16} {v(vY+4*t,4)}, {v(vHA+6*x+4,2)}, {A(b+4,2)}, {v(vY+4*t,4)}")
        w2reads(0); w2reads(1); w2reads(2)
        g("s_waitcnt lgkmcnt(8)")
        w2mf(0)
        w2reads(3)
        g("s_waitcnt lgkmcnt(8)")
        w2mf(1)
        w2reads(4)
        g("s_waitcnt lgkmcnt(8)")
        w2mf(2)
        g(f"ds_read_b64 {v(vHA+4,2)}, v{vHke}")
        g(f"ds_read_b64 {v(vHA+10,2)}, v{vHko}")
        w2rk(0); w2rk(1)
        g("s_waitcnt lgkmcnt(10)")
        w2mf(3)
        w2rk(2); w2rk(3); w2rk(4)
        g("s_waitcnt lgkmcnt(12)")
        w2mf(4)
        for t in range(5):
            g(f"s_waitcnt lgkmcnt({2*(4-t)})")
            w2mf16(t)
        for t in range(4):
            g(f"v_and_or_b32 v{vHA+t}, v{vY+4*t}, -16, s{sPat}")
        g(f"buffer_store_dwordx4 {v(vHA,4)}, v{vH3}, {WS}, s{sH3m} offen sc1")
        g(f"s_cmp_gt_u32 s{sW}, 1")
        g("s_cbranch_scc1 L_B_no5b")
        g(f"v_and_or_b32 v{vY+16}, v{vY+16}, -16, s{sPat}")
        g(f"buffer_store_dword v{vY+16}, v{vH3x}, {WS}, s{sH3l} offen sc1")
        g.lab("L_B_no5b")
        g.stamp(12)
        dump_stamps(g, 16, 216)
        g("s_endpgm")
        if numa:
            g.lab("L_B_refetch")
            if opt.get("dcount"):
                g(f"""
                s_load_dwordx2 s[12:13], s[0:1], 104
                s_mov_b32 s14, 256
                s_mov_b32 s15, 0x00020000
                v_mov_b32 v6, 1
                v_mov_b32 v7, 60
                s_waitcnt lgkmcnt(0)
                s_mov_b64 exec, 1
                buffer_atomic_add v6, v7, s[12:15], 0 offen sc1
                s_mov_b64 exec, -1
                """)
            g(f"s_xor_b32 s{sPhi}, s{sPhi}, 1")
            g("s_waitcnt vmcnt(0)")
            ckv_base()
            ckv_stream(0, 32)
            g("s_branch L_B_phok")
        g.lab("L_B_hslow")
        spin_guard(g, "L_B_hok")
        hget()
        g("s_branch L_B_hchk")
        if qd:
            g.lab("L_B_qagain")
            spin_guard(g, "L_B_qgood")
            qld()
            g("s_branch L_B_qchk")
            return
        g.lab("L_B_qslow")
        spin_guard(g, "L_B_qok")
        g(f"s_mov_b64 s[{sM1}:{sM1+1}], 0")
        for ks in range(16):
            g(f"v_cmp_eq_u32 vcc, s{sPOI}, v{vQ+4*ks}")
            g(f"s_or_b64 s[{sM1}:{sM1+1}], s[{sM1}:{sM1+1}], vcc")
        g("s_cbranch_scc0 L_B_qok")
        g("s_barrier")
        qdma()
        g("s_waitcnt vmcnt(0)")
        g("s_branch L_B_qbar")

if __name__ == "__main__":
    opt = eval("dict(%s)" % (sys.argv[2] if len(sys.argv) > 2 else ""))
    open(sys.argv[1], "w").write(gen(opt))
```

```python
import sys, os, math, struct
sys.path.insert(0, os.path.dirname(os.path.abspath(__file__)))
from hazard import pad

KNAME = "gated_mix__compressed_kv_cla__dense_activation_gelu__decode_kernel"

WS_BYTES = 256 << 20
EPOCH = 0x0
DP = 0x2000
D1 = 0x8000
D3 = 0x10000
DH = 0x18000
DE = 0x1C000
D2 = 0x20000
DL = 0x28000
DE2 = 0x40000
QB = 0x80000
HB = 0xA0000
H0 = 0xC0000
LOC = 0x100000
H3 = 0x200000
USTR = 16384 + 256
HH = 0x340000
OB = 0x480000
OSTR = 16384 + 256
STAMP = 0x1000000
POISON = 0xFFA5FFA5
K0, K1 = 0x9E3779B9, 0x7F4A7C15
SPIN = 1 << 20

A_WUV = 0
A_QL = 32768
A_ZERO = 33280
A_WT = 33536
A_CTXC = 33792
A_RED = 34816
A_WO = 35840
A_W1 = A_WO + 36864
A_QP = A_WO
B_QF = 0
B_PB = 16384
B_MX = 20480
B_HL = 21504
B_ZERO = 21760
B_PHI = 21888
B_LS = 22528
B_CKV = 23552
B_W2 = B_CKV
LDS_BYTES = 154624

def f16sw(i):
    return (((i & 7) ^ ((i >> 3) << 2)) << 1) | (i >> 3)

def fbits(x):
    return struct.unpack("<I", struct.pack("<f", x))[0]

class G:
    def __init__(self, opt):
        self.l = []
        self.opt = opt
        self.nst = 0
        self.inA = False
    def __call__(self, s):
        for x in s.strip("\n").split("\n"):
            x = x.strip()
            if x: self.l.append("    " + x)
    def lab(self, n): self.l.append(n + ":")
    def c(self, s): self.l.append("    ; " + s)
    def stamp(self, i):
        if self.opt.get("stamps") and not (self.opt.get("fst") and 5 <= i <= 12 and self.inA):
            self(f"s_memrealtime s[{70+2*i}:{71+2*i}]")
    def fstamp(self, i):
        if self.opt.get("stamps") and self.opt.get("fst"):
            self(f"s_memrealtime s[{70+2*i}:{71+2*i}]")

def v(a, n=1): return f"v{a}" if n == 1 else f"v[{a}:{a+n-1}]"
def A(a, n=1): return f"a{a}" if n == 1 else f"a[{a}:{a+n-1}]"
def S(a, n=1): return f"s{a}" if n == 1 else f"s[{a}:{a+n-1}]"

sW = 3
WS, X = "s[4:7]", "s[8:11]"
sT = 40
sXCD, sI = 42, 43
sA, sH, sJ = 44, 45, 46
sHG, sB, sMSG, sU2 = 44, 45, 46, 47
sO, sO2, sO3, sCNT = 48, 49, 50, 51
sM1, sM2, sM3, sM4 = 52, 54, 56, 58
sPR = 60
sG0, sG1 = 61, 62
sTMP = 64
sPC = 66
sPOI = 68
sC = 69

def srd(g, base, slot, nbytes):
    g(f"s_load_dwordx2 s[{base}:{base+1}], s[0:1], {slot*8}")
    g(f"s_mov_b32 s{base+2}, {nbytes}")
    g(f"s_mov_b32 s{base+3}, 0x00020000")

def dump_stamps(g, n, tmpv):
    if not g.opt.get("stamps") or g.opt.get("probe") is not None: return
    g("s_waitcnt lgkmcnt(0)")
    g("s_mov_b64 exec, 1")
    g(f"s_lshl_b32 s{sO}, s2, 2")
    g(f"s_add_u32 s{sO}, s{sO}, s{sW}")
    g(f"s_lshl_b32 s{sO}, s{sO}, 6")
    g(f"s_add_u32 s{sO}, s{sO}, {STAMP}")
    g(f"v_mov_b32 v{tmpv+4}, 0")
    for q in range(0, 16, 4):
        for k in range(4):
            g(f"v_mov_b32 v{tmpv+k}, s{70+2*(q+k)}")
        g(f"buffer_store_dwordx4 {v(tmpv,4)}, v{tmpv+4}, {WS}, s{sO} offen offset:{q*4}")
        g("s_nop 1")
    g("s_waitcnt vmcnt(0)")

def dual_next(g, regs):
    if not g.opt.get("dual", 1): return
    g(f"s_and_b32 s{sTMP}, s{sCNT}, 14")
    g(f"s_cmp_eq_u32 s{sTMP}, 14")
    g(f"s_cselect_b32 s{sTMP}, {LOC}, 0")
    for r in regs:
        g(f"s_xor_b32 s{r}, s{r}, s{sTMP}")

def spin_guard(g, out):
    g(f"s_add_u32 s{sCNT}, s{sCNT}, 1")
    g(f"s_cmp_gt_u32 s{sCNT}, {g.opt.get('spin', SPIN)}")
    g(f"s_cbranch_scc1 {out}")

def selectors(g, vSel, vL, t0, t1, t2):
    g(f"v_and_b32 v{t0}, 1, v{vL}")
    g(f"v_cmp_eq_u32 vcc, 1, v{t0}")
    g(f"v_mov_b32 v{t1}, 0x0c0c0100")
    g(f"v_mov_b32 v{t2}, 0x01000c0c")
    g(f"v_cndmask_b32 v{vSel+3}, v{t1}, v{t2}, vcc")
    g(f"v_mov_b32 v{t1}, 0x0c0c0302")
    g(f"v_mov_b32 v{t2}, 0x03020c0c")
    g(f"v_cndmask_b32 v{vSel+7}, v{t1}, v{t2}, vcc")
    g(f"v_bfe_u32 v{t0}, v{vL}, 1, 2")
    g(f"v_mov_b32 v{t1}, 0x0c0c0c0c")
    for d in range(4):
        g(f"v_cmp_eq_u32 vcc, {d}, v{t0}")
        g(f"v_cndmask_b32 v{vSel+d}, v{t1}, v{vSel+3}, vcc")
        g(f"v_cndmask_b32 v{vSel+4+d}, v{t1}, v{vSel+7}, vcc")

def unit_pattern(g, dst, vL, i_expr_sgpr, i_const, pitch, t0, t1):
    if i_expr_sgpr is not None:
        g(f"v_lshl_add_u32 v{t0}, s{i_expr_sgpr}, 6, v{vL}")
    else:
        g(f"v_add_u32 v{t0}, {64*i_const}, v{vL}")
    g(f"v_mul_u32_u24 v{t1}, 911, v{t0}")
    g(f"v_lshrrev_b32 v{t1}, 16, v{t1}")
    g(f"v_and_b32 v{dst}, 6, v{t1}")
    g(f"v_xor_b32 v{dst}, v{dst}, v{t0}")
    g(f"v_lshlrev_b32 v{dst}, 4, v{dst}")
    if pitch != 1152:
        g(f"v_mul_u32_u24 v{t1}, {pitch-1152}, v{t1}")
        g(f"v_add_u32 v{dst}, v{dst}, v{t1}")
assert all((911 * u) >> 16 == u // 72 for u in range(640))

def h3_addr(g, vH3, vH3x, vL, vN, vG, t0):
    g(f"v_lshrrev_b32 v{t0}, 3, v{vL}")
    g(f"v_mul_u32_u24 v{vH3}, {USTR}, v{t0}")
    g(f"v_and_b32 v{t0}, 7, v{vL}")
    g(f"v_lshl_add_u32 v{vH3}, v{t0}, 4, v{vH3}")
    g(f"v_lshrrev_b32 v{t0}, 5, v{vL}")
    g(f"v_mul_u32_u24 v{vH3x}, {USTR}, v{t0}")
    g(f"v_and_b32 v{t0}, 31, v{vL}")
    g(f"v_lshl_add_u32 v{vH3x}, v{t0}, 2, v{vH3x}")

def h3_soffs(g, s_main, s_left):
    g(f"s_lshl_b32 s{s_left}, s{sPR}, 7")
    g(f"s_add_u32 s{s_left}, s{s_left}, {H3}")
    g(f"s_mul_i32 s{s_main}, s{sW}, {8*USTR}")
    g(f"s_add_u32 s{s_main}, s{s_main}, s{s_left}")
    g(f"s_mul_i32 s{sTMP}, s{sW}, {2*USTR}")
    g(f"s_add_u32 s{s_left}, s{s_left}, s{sTMP}")
    g(f"s_add_u32 s{s_left}, s{s_left}, {32*USTR}")

def tr_pair_bases(g, vB0, vB1, vK0, vK1, vL, base, t0, t1, t2):
    g(f"v_lshrrev_b32 v{t0}, 2, v{vL}")
    g(f"v_bfe_u32 v{t1}, v{vL}, 1, 1")
    g(f"v_lshl_add_u32 v{t1}, s{sW}, 2, v{t1}")
    g(f"v_and_b32 v{t2}, 6, v{t0}")
    g(f"v_xor_b32 v{t2}, v{t2}, v{t1}")
    g(f"v_lshlrev_b32 v{t2}, 4, v{t2}")
    g(f"v_mul_u32_u24 v{vB0}, 1152, v{t0}")
    g(f"v_add_u32 v{vB0}, v{vB0}, v{t2}")
    g(f"v_and_b32 v{t2}, 1, v{vL}")
    g(f"v_lshlrev_b32 v{t2}, 3, v{t2}")
    g(f"v_add_u32 v{vB0}, v{vB0}, v{t2}")
    g(f"v_xor_b32 v{vB1}, 32, v{vB0}")
    if base:
        g(f"v_add_u32 v{vB0}, {base}, v{vB0}")
        g(f"v_add_u32 v{vB1}, {base}, v{vB1}")
    if vK0 is not None:
        g(f"v_and_b32 v{t0}, 3, v{t0}")
        g(f"v_and_b32 v{vK0}, 2, v{t0}")
        g(f"v_xor_b32 v{vK0}, v{vK0}, v{t1}")
        g(f"v_lshlrev_b32 v{vK0}, 4, v{vK0}")
        g(f"v_mul_u32_u24 v{t0}, 1152, v{t0}")
        g(f"v_add3_u32 v{vK0}, v{vK0}, v{t0}, v{t2}")
        g(f"v_xor_b32 v{vK1}, 32, v{vK0}")
        g(f"v_add_u32 v{vK0}, {base + 32*1152}, v{vK0}")
        g(f"v_add_u32 v{vK1}, {base + 32*1152}, v{vK1}")

MF = "v_mfma_f32_16x16x32_bf16"
MF16 = "v_mfma_f32_16x16x16_bf16"

def role_is_A(wg, opt):
    if opt.get("split"):
        import numpy as np
        return np.isin(wg & 7, list(opt["split"]))
    return wg < 128

def gen(opt):
    g = G(opt)
    NT = opt.get("nt", "")
    PFL = opt.get("pf_lines", 4)
    CODE_BYTES = 32 * 128 * PFL
    vL, vN, vG = 1, 2, 3
    g.stamp(0)
    g(f"s_getpc_b64 s[{sPC}:{sPC+1}]")
    g("s_cmp_ge_u32 s2, 256")
    g("s_cbranch_scc1 L_end")
    g(f"""
    s_load_dwordx2 s[4:5], s[0:1], 112
    s_load_dwordx2 s[8:9], s[0:1], 0
    s_load_dwordx2 s[28:29], s[0:1], 8
    s_load_dwordx2 s[12:13], s[0:1], 16
    s_load_dwordx2 s[16:17], s[0:1], 24
    v_lshrrev_b32 v4, 6, v0
    v_and_b32 v{vL}, 63, v0
    s_and_b32 s{sXCD}, s2, 7
    v_readfirstlane_b32 s{sW}, v4
    s_bfe_u32 s{sI}, s2, 0x40003
    v_and_b32 v{vN}, 15, v0
    v_bfe_u32 v{vG}, v0, 4, 2
    s_mov_b32 s6, {WS_BYTES - opt.get('ws_base', 0)}
    s_mov_b32 s7, 0x00020000
    """)
    if opt.get("resid") is not None:
        g(f"""
        s_load_dwordx2 s[32:33], s[0:1], 104
        s_load_dwordx2 s[20:21], s[0:1], {8*opt["resid"]}
        s_mov_b32 s34, 256
        s_mov_b32 s35, 0x00020000
        s_mov_b32 s22, {4<<20}
        s_mov_b32 s23, 0x00020000
        s_mul_i32 s{sO}, s2, 16128
        v_mov_b32 v7, 0
        s_waitcnt lgkmcnt(0)
        s_cmp_lg_u32 s{sW}, 0
        s_cbranch_scc1 L_nores
        s_mov_b64 exec, 1
        buffer_load_dword v6, v7, s[20:23], s{sO} offen offset:2048
        s_waitcnt vmcnt(0)
        s_memtime s[24:25]
        s_waitcnt lgkmcnt(0)
        buffer_load_dword v6, v7, s[20:23], s{sO} offen
        s_waitcnt vmcnt(0)
        s_memtime s[26:27]
        s_waitcnt lgkmcnt(0)
        s_sub_u32 s26, s26, s24
        s_mul_i32 s26, s26, 468
        s_lshr_b32 s26, s26, 16
        s_min_u32 s26, s26, 15
        s_lshl_b32 s26, s26, 2
        v_mov_b32 v6, 1
        buffer_atomic_add v6, v7, s[32:35], s26 offen sc1
        s_waitcnt vmcnt(0)
        s_mov_b64 exec, -1
        """)
        g.lab("L_nores")
        g("s_barrier")
    if opt.get("xprobe") is not None:
        g(f"""
        s_load_dwordx2 s[32:33], s[0:1], 104
        s_mov_b32 s34, 256
        s_mov_b32 s35, 0x00020000
        s_waitcnt lgkmcnt(0)
        v_mov_b32 v6, s70
        s_lshl_b32 s{sO}, s{sXCD}, 2
        v_mov_b32 v7, s{sO}
        s_mov_b64 exec, 1
        buffer_atomic_umax v6, v7, s[32:35], 0 offen sc1
        s_mov_b64 exec, -1
        """)
    if opt.get("split"):
        aset = list(opt["split"]); bset = [x for x in range(8) if x not in aset]
        tab = 0
        for x in range(8):
            tab |= ((aset.index(x)) if x in aset else (8 | bset.index(x))) << (4 * x)
        g(f"""
        s_lshl_b32 s{sXCD}, s{sXCD}, 2
        s_lshr_b32 s{sO}, {hex(tab)}, s{sXCD}
        s_and_b32 s{sXCD}, s{sO}, 3
        s_lshr_b32 s{sO2}, s2, 7
        s_lshl_b32 s{sO2}, s{sO2}, 2
        s_add_u32 s{sXCD}, s{sXCD}, s{sO2}
        s_bitcmp1_b32 s{sO}, 3
        s_cbranch_scc1 L_B
        """)
    else:
        g("s_cmp_ge_u32 s2, 128")
        g("s_cbranch_scc1 L_B")
    a = RoleA(g, NT, vL, vN, vG)
    b = RoleB(g, NT, vL, vN, vG)
    def prefetch(nw, idx_sgpr_expr, tag):
        g(idx_sgpr_expr)
        g(f"s_mul_i32 s{sTMP}, s{sTMP}, {nw*128}")
        g(f"v_lshl_add_u32 v5, v{vL}, 7, s{sTMP}")
        g(f"s_cmp_lg_u32 s{sW}, 3")
        g(f"s_cbranch_scc1 L_nopf{tag}")
        g(f"s_mov_b64 exec, {(1 << nw) - 1}")
        g(f"global_load_dword v{63 if tag == 'B' else 254}, v5, s[{sPC}:{sPC+1}]")
        g("s_mov_b64 exec, -1")
        g.lab(f"L_nopf{tag}")
    if opt.get("split") and opt.get("a_pf_first", 1): prefetch(PFL, f"s_lshr_b32 s{sTMP}, s2, 3", "A")
    a.issue()
    if opt.get("split") and not opt.get("a_pf_first", 1): prefetch(PFL, f"s_lshr_b32 s{sTMP}, s2, 3", "A")
    g("s_branch L_A_rest")
    g.lab("L_B")
    if opt.get("p1a_on") == "B" or opt.get("numa"): pass
    elif opt.get("split"): prefetch(PFL, f"s_lshr_b32 s{sTMP}, s2, 3", "B")
    else: prefetch(2 * PFL, f"s_mov_b32 s{sTMP}, s{sI}", "B")
    b.issue()
    if opt.get("p1a_on") == "B": prefetch(PFL, f"s_lshr_b32 s{sTMP}, s2, 3", "B")
    main = g.l
    g.l = []
    b.rest()
    k = g.l.index(";;SPLIT")
    bhead, btail = g.l[:k], g.l[k+1:]
    g.l = main
    g.lab("L_B_head")
    if opt.get("b_head", 1):
        g.l += bhead
    g("s_branch L_B_rest")
    g.lab("L_A_rest")
    g.inA = True
    a.rest()
    g.inA = False
    g.lab("L_B_rest")
    if not opt.get("b_head", 1):
        g.l += bhead
    g.l += btail
    g.lab("L_end")
    lines, added = pad(g.l)
    body = "\n".join(lines)
    hdr = open(os.path.join(os.path.dirname(os.path.abspath(__file__)), "header.txt")).read()
    return f"""{hdr}; @launch grid=(256,1,1) block=(256,1,1) lds={LDS_BYTES}
.amdgcn_target "amdgcn-amd-amdhsa--gfx950"
.text
.globl {KNAME}
.p2align 8
.type {KNAME},@function
{KNAME}:
{body}
    s_endpgm
L_code_end:
.fill ({CODE_BYTES} + 256 - (L_code_end - {KNAME})) / 4, 4, 0xbf800000
.section .rodata,"a"
.p2align 6
.amdhsa_kernel {KNAME}
  .amdhsa_next_free_vgpr 512
  .amdhsa_next_free_sgpr 102
  .amdhsa_accum_offset 256
  .amdhsa_group_segment_fixed_size 0
  .amdhsa_kernarg_size 120
  .amdhsa_user_sgpr_count 2
  .amdhsa_user_sgpr_kernarg_segment_ptr 1
  .amdhsa_system_sgpr_workgroup_id_x 1
.end_amdhsa_kernel
"""

def srd_tail(g, base, nbytes):
    g(f"s_mov_b32 s{base+2}, {nbytes}")
    g(f"s_mov_b32 s{base+3}, 0x00020000")

def load_tag(g):
    wb = g.opt.get("ws_base", 0)
    if wb:
        g(f"s_add_u32 s4, s4, {wb}")
        g("s_addc_u32 s5, s5, 0")
    g(f"s_load_dwordx2 s[{sT}:{sT+1}], s[4:5], {EPOCH}")

def finish_tag(g):
    g("s_waitcnt lgkmcnt(0)")
    g(f"s_add_u32 s{sT}, s{sT}, {K0}")
    g(f"s_add_u32 s{sT+1}, s{sT+1}, {K1}")

def bell(g, vdata, vzero, s_index, base, wave, tag):
    g(f"s_cmp_lg_u32 s{sW}, {wave}")
    g(f"s_cbranch_scc1 L_nobell_{tag}")
    g(f"s_lshl_b32 s{sTMP}, s{s_index}, 7")
    g(f"s_add_u32 s{sTMP}, s{sTMP}, {base}")
    g("s_mov_b64 exec, 1")
    g(f"buffer_store_dwordx2 {v(vdata,2)}, v{vzero}, {WS}, s{sTMP} offen sc1")
    g("s_mov_b64 exec, -1")
    g.lab(f"L_nobell_{tag}")

def unit_load(g, SRD, vP, ldsbase, s_unit_base, pitch, tag, NT, rows36=True, vdst=None, thr=None, w0extra=True):
    if tag[:2] in g.opt.get("skip", ""): return
    g(f"s_mul_i32 s{sO}, s{sW}, {8*pitch}")
    g(f"s_add_u32 s{sO}, s{sO}, s{s_unit_base}")
    if vdst is None: g(f"s_mul_i32 s{sTMP}, s{sW}, 9216")
    for i in range(9):
        if thr: g(f"s_waitcnt vmcnt({thr-1})")
        if vdst is None:
            g(f"s_add_u32 m0, s{sTMP}, {ldsbase + i*1024}")
            g(f"buffer_load_dwordx4 v{vP+i}, {SRD}, s{sO} offen {NT} lds")
        else:
            g(f"buffer_load_dwordx4 {v(vdst+4*i,4)}, v{vP+i}, {SRD}, s{sO} offen {NT}")
    if not rows36: return
    g(f"s_add_u32 s{sO}, s{s_unit_base}, {32*pitch}")
    if vdst is None:
        g(f"s_lshl_b32 s{sTMP}, s{sW}, 10")
        g(f"s_add_u32 m0, s{sTMP}, {ldsbase + 36864}")
        g(f"buffer_load_dwordx4 v{vP+9}, {SRD}, s{sO} offen {NT} lds")
    else:
        g(f"buffer_load_dwordx4 {v(vdst+36,4)}, v{vP+9}, {SRD}, s{sO} offen {NT}")
    if w0extra:
        g(f"s_cmp_lg_u32 s{sW}, 0")
        g(f"s_cbranch_scc1 L_not{tag}")
    g("s_mov_b32 exec_hi, 0")
    if vdst is None:
        g(f"s_mov_b32 m0, {ldsbase + 36864 + 4096}")
        g(f"buffer_load_dwordx4 v{vP+4}, {SRD}, s{sO} offen {NT} lds")
    else:
        g(f"buffer_load_dwordx4 {v(vdst+40,4)}, v{vP+4}, {SRD}, s{sO} offen {NT}")
    g("s_mov_b64 exec, -1")
    if w0extra: g.lab(f"L_not{tag}")

class RoleA:
    def __init__(self, g, NT, vL, vN, vG):
        self.g, self.NT, self.vL, self.vN, self.vG = g, NT, vL, vN, vG
    vX = 20
    vA_wq, vA_uk = 108, 109
    aWQ, aUK = 0, 36

    def issue(self):
        g, NT, vL, vN, vG = self.g, self.NT, self.vL, self.vN, self.vG
        WQ, WUK = "s[12:15]", "s[16:19]"
        t0, t1 = 4, 5
        vX, vA_wq, vA_uk, aWQ, aUK = self.vX, self.vA_wq, self.vA_uk, self.aWQ, self.aUK
        if g.opt.get("p1a_on") == "B":
            srd_tail(g, 16, 512 * 8192)
            g(f"""
            s_lshr_b32 s{sH}, s{sI}, 2
            s_lshl_b32 s{sH}, s{sH}, 3
            s_add_u32 s{sH}, s{sH}, s{sXCD}
            s_and_b32 s{sJ}, s{sI}, 3
            s_lshl_b32 s{sC}, s{sH}, 8
            v_bfe_u32 v{t0}, v{vL}, 2, 2
            v_lshlrev_b32 v{vA_uk}, 16, v{t0}
            v_lshl_add_u32 v{vA_uk}, v{vG}, 6, v{vA_uk}
            v_and_b32 v{t1}, 3, v{vL}
            v_lshl_add_u32 v{vA_uk}, v{t1}, 4, v{vA_uk}
            s_lshl_b32 s{sO2}, s{sJ}, 2
            s_add_u32 s{sO2}, s{sO2}, s{sW}
            s_lshl_b32 s{sO2}, s{sO2}, 18
            s_add_u32 s{sO2}, s{sO2}, s{sC}
            s_waitcnt lgkmcnt(0)
            """)
            g.fstamp(5)
            self.uk(range(8))
            load_tag(g)
            srd_tail(g, 8, 2304)
            return
        srd_tail(g, 12, 576 * 8192)
        srd_tail(g, 8, 2304)
        g(f"""
        s_lshr_b32 s{sH}, s{sI}, 2
        s_lshl_b32 s{sH}, s{sH}, 3
        s_add_u32 s{sH}, s{sH}, s{sXCD}
        s_and_b32 s{sJ}, s{sI}, 3
        v_mul_u32_u24 v{vA_wq}, {36*8192}, v{vG}
        v_lshl_add_u32 v{vA_wq}, v{vN}, 4, v{vA_wq}
        s_lshl_b32 s{sO2}, s{sJ}, 4
        s_add_u32 s{sO2}, s{sO2}, s{sW}
        s_mul_i32 s{sO2}, s{sO2}, 9
        s_lshl_b32 s{sO3}, s{sO2}, 13
        s_lshl_b32 s{sC}, s{sH}, 8
        s_add_u32 s{sO3}, s{sO3}, s{sC}
        v_bfe_u32 v{t0}, v{vL}, 3, 1
        v_mul_u32_u24 v{t0}, 1152, v{t0}
        v_mad_u32_u24 v{t0}, v{vG}, 64, v{t0}
        v_lshl_add_u32 v{t0}, v{vG}, 3, v{t0}
        s_lshr_b32 s{sO2}, s{sO2}, 1
        s_lshl_b32 s{sO2}, s{sO2}, 2
        s_waitcnt lgkmcnt(0)
        """)
        g.fstamp(5)
        g(f"""
        buffer_load_dwordx4 {v(vX,4)}, v{t0}, {X}, s{sO2} offen
        buffer_load_dword v{vX+4}, v{t0}, {X}, s{sO2} offen offset:16
        """)
        for i in range(9):
            g(f"buffer_load_dwordx4 {A(aWQ+4*i,4)}, v{vA_wq}, {WQ}, s{sO3} offen {NT}")
            if i != 8: g(f"s_addk_i32 s{sO3}, 0x2000")
        load_tag(g)
        srd_tail(g, 16, 512 * 8192)
        g(f"""
        v_bfe_u32 v{t0}, v{vL}, 2, 2
        v_lshlrev_b32 v{vA_uk}, 16, v{t0}
        v_lshl_add_u32 v{vA_uk}, v{vG}, 6, v{vA_uk}
        v_and_b32 v{t1}, 3, v{vL}
        v_lshl_add_u32 v{vA_uk}, v{t1}, 4, v{vA_uk}
        s_lshl_b32 s{sO2}, s{sJ}, 2
        s_add_u32 s{sO2}, s{sO2}, s{sW}
        s_lshl_b32 s{sO2}, s{sO2}, 18
        s_add_u32 s{sO2}, s{sO2}, s{sC}
        """)
        self.uk_split = g.opt.get("uk_early", 2)
        self.uk(range(self.uk_split))

    def uk(self, rows):
        g = self.g
        for r in rows:
            u = 2 * (r & 3) + (r >> 2)
            g(f"buffer_load_dwordx4 {A(self.aUK+4*u,4)}, v{self.vA_uk}, s[16:19], s{sO2} offen {self.NT}")
            g(f"s_addk_i32 s{sO2}, 0x2000")

    def rest(self):
        g, NT, vL, vN, vG = self.g, self.NT, self.vL, self.vN, self.vG
        opt = g.opt
        WUV, WO, W1, B2, GATE, OUT = "s[20:23]", "s[24:27]", "s[12:15]", "s[28:31]", "s[32:35]", "s[36:39]"
        t0, t1, t2, t3 = 4, 5, 6, 7
        vPOI = 8
        vSel = 12
        vX = self.vX
        vF = 160
        vQ = 200
        vR = 56
        vQlo, vQhi = 80, 84
        vAcc = 88
        vGr = 104
        vA_h1, vA_l16 = 110, 47
        vA_qlo, vA_qhi = 112, 113
        vTag = 114
        vQw = 46
        aWQ, aUK = self.aWQ, self.aUK
        sQ = 63
        g.stamp(1)
        selectors(g, vSel, vL, t0, t1, t2)
        g(f"""
        s_lshl_b32 s{sA}, s{sH}, 2
        s_add_u32 s{sA}, s{sA}, s{sJ}
        s_and_b32 s{sO}, s{sW}, 1
        s_lshl_b32 s{sO}, s{sO}, 4
        v_lshlrev_b32 v{vA_l16}, 4, v{vL}
        s_cmp_lg_u32 s{sW}, {0 if opt.get("p1a_on") == "B" else 1}
        s_cbranch_scc1 L_A_e2
        """)
        pB = opt.get("p1a_on") == "B"
        for k in range(4): g(f"v_mov_b32 v{vPOI+k}, {hex(POISON)}")
        g(f"""
        v_lshlrev_b32 v{t0}, 15, v{vG}
        v_lshl_add_u32 v{t0}, v{vN}, 4, v{t0}
        s_lshl_b32 s{sTMP}, s{sA}, 8
        s_add_u32 s{sTMP}, s{sTMP}, {QB}
        s_mov_b32 exec_hi, 0
        buffer_store_dwordx4 {v(vPOI,4)}, v{t0}, {WS}, s{sTMP} offen sc1
        s_mov_b64 exec, -1
        """)
        g.lab("L_A_e2")
        if opt.get("split"):
            g(f"""
            s_cmp_lt_u32 s{sW}, {3 if pB else 2}
            s_cbranch_scc1 L_A_e3
            s_lshl_b32 s{sTMP}, s{sA}, 11
            s_add_u32 s{sTMP}, s{sTMP}, {H0+LOC}
            s_lshl_b32 s{sTMP+1}, s{sA}, 10
            s_add_u32 s{sTMP+1}, s{sTMP+1}, {HB+LOC}
            s_cmp_eq_u32 s{sW}, 2
            s_cselect_b32 s{sTMP}, s{sTMP}, s{sTMP+1}
            v_lshlrev_b32 v{t0}, 7, v{vL}
            s_mov_b64 exec, 0xffff
            buffer_load_dword v255, v{t0}, {WS}, s{sTMP} offen
            s_mov_b64 exec, -1
            """)
            g.lab("L_A_e3")
        if pB:
            finish_tag(g)
            sPk = 54
            g(f"""
            s_lshl_b32 s{sO}, s{sH}, 12
            s_add_u32 s{sO}, s{sO}, {H0}
            s_add_u32 s{sC}, s4, s{sO}
            s_addc_u32 s{sO3}, s5, 0
            """)
            def h0_wt(): pass
        else:
            g.fstamp(6)
            g(f"s_waitcnt vmcnt({9+self.uk_split})")
            g.fstamp(7)
            for k in range(5):
                g(f"v_alignbit_b32 v{vX+k}, v{vX+k+1}, v{vX+k}, s{sO}")
            for i in range(9):
                for d in range(4):
                    g(f"v_perm_b32 v{vF+4*i+d}, v{vX+(i>>1)}, v{vX+(i>>1)}, v{vSel+4*(i&1)+d}")
            g.fstamp(8)
            ukp = opt.get("uk_pos", 0)
            for i in range(9):
                if i == ukp: self.uk(range(self.uk_split, 8))
                g(f"s_waitcnt vmcnt({8-i+(8 if i >= ukp else self.uk_split)})")
                g(f"{MF} {v(vQ+2,4)}, {v(vF+4*i,4)}, {A(aWQ+4*i,4)}, {'0' if i == 0 else v(vQ+2,4)}")
            g.fstamp(10)
            g(f"s_cmp_eq_u32 s{sW}, 0")
            g("s_cbranch_scc1 L_A_w0a")
            g(f"v_lshl_add_u32 v{t0}, s{sW}, 10, v{vA_l16}")
            g(f"ds_write_b128 v{t0}, {v(vQ+2,4)} offset:{A_QP-1024}")
            g(f"s_cmp_lg_u32 s{sW}, 1")
            g("s_cbranch_scc1 L_A_nw1")
            g(f"s_waitcnt vmcnt({8-self.uk_split})")
            g.lab("L_A_nw1")
            g("s_waitcnt lgkmcnt(0)")
            g("s_barrier")
            g(f"s_add_u32 s{sT}, s{sT}, {K0}")
            g(f"s_add_u32 s{sT+1}, s{sT+1}, {K1}")
            g("s_branch L_A_setup")
            g.lab("L_A_w0a")
            finish_tag(g)
            sib = [0, sO, sO3, sC]
            for k in range(1, 4):
                g(f"s_xor_b32 s{sTMP}, s{sA}, {k}")
                g(f"s_lshl_b32 s{sTMP}, s{sTMP}, 11")
                g(f"s_add_u32 s{sib[k]}, s{sTMP}, {H0+LOC}")
            g(f"""
            v_mov_b32 v{vQ}, s{sT}
            v_mov_b32 v{vQ+1}, s{sT+1}
            v_mov_b32 v{vQ+6}, s{sT}
            v_mov_b32 v{vQ+7}, s{sT+1}
            s_lshl_b32 s{sTMP+1}, s{sA}, 11
            s_add_u32 s{sTMP+1}, s{sTMP+1}, {H0+LOC}
            s_barrier
            """)
            for k in range(3):
                g(f"ds_read_b128 {v(vR+4*k,4)}, v{vA_l16} offset:{A_QP+k*1024}")
            g("s_waitcnt lgkmcnt(1)")
            g(f"v_pk_add_f32 {v(vQ+2,2)}, {v(vQ+2,2)}, {v(vR,2)}")
            g(f"v_pk_add_f32 {v(vQ+4,2)}, {v(vQ+4,2)}, {v(vR+2,2)}")
            g("s_waitcnt lgkmcnt(0)")
            g(f"v_pk_add_f32 {v(vR+4,2)}, {v(vR+4,2)}, {v(vR+8,2)}")
            g(f"v_pk_add_f32 {v(vR+6,2)}, {v(vR+6,2)}, {v(vR+10,2)}")
            g(f"v_pk_add_f32 {v(vQ+2,2)}, {v(vQ+2,2)}, {v(vR+4,2)}")
            g(f"v_pk_add_f32 {v(vQ+4,2)}, {v(vQ+4,2)}, {v(vR+6,2)}")
            g(f"buffer_store_dwordx4 {v(vQ,4)}, v{vA_l16}, {WS}, s{sTMP+1} offen")
            g(f"buffer_store_dwordx4 {v(vQ+4,4)}, v{vA_l16}, {WS}, s{sTMP+1} offen offset:1024")
            def h0_wt():
                g(f"s_lshl_b32 s{sTMP+1}, s{sA}, 11")
                g(f"s_add_u32 s{sTMP+1}, s{sTMP+1}, {H0}")
                g(f"buffer_store_dwordx4 {v(vQ,4)}, v{vA_l16}, {WS}, s{sTMP+1} offen sc1")
                g(f"buffer_store_dwordx4 {v(vQ+4,4)}, v{vA_l16}, {WS}, s{sTMP+1} offen offset:1024 sc1")
            g.stamp(2)
        g.lab("L_A_setup")
        srd(g, 20, 4, 512 * 8192)
        srd(g, 24, 5, 4096 * 1152)
        srd(g, 32, 11, 1152)
        srd(g, 36, 12, 2304)
        srd(g, 12, 7, 576 * 9216)
        vBell = 111
        g(f"""
        v_bfe_u32 v{t0}, v{vL}, 2, 2
        v_lshlrev_b32 v{vA_h1}, 15, v{vG}
        v_lshl_add_u32 v{vA_h1}, v{t0}, 4, v{vA_h1}
        s_lshl_b32 s{sQ}, s{sA}, 2
        s_add_u32 s{sQ}, s{sQ}, s{sW}
        s_lshl_b32 s{sQ}, s{sQ}, 6
        s_add_u32 s{sQ}, s{sQ}, {QB}
        v_bfe_u32 v{t0}, v{vL}, 2, 1
        v_lshlrev_b32 v{t0}, 8, v{t0}
        v_lshl_add_u32 v{t0}, v{vG}, 6, v{t0}
        v_and_b32 v{t1}, 3, v{vL}
        v_lshl_add_u32 v{t0}, v{t1}, 4, v{t0}
        v_add_u32 v{t0}, {A_QL}, v{t0}
        v_mov_b32 v{t1}, {A_ZERO}
        v_cmp_gt_u32 vcc, 8, v{vN}
        v_cndmask_b32 v{vA_qlo}, v{t1}, v{t0}, vcc
        v_cndmask_b32 v{vA_qhi}, v{t0}, v{t1}, vcc
        v_and_b32 v{t0}, 1, v{vL}
        v_cmp_eq_u32 s[{sM1}:{sM1+1}], 1, v{t0}
        v_and_b32 v{t0}, 2, v{vL}
        v_cmp_eq_u32 s[{sM2}:{sM2+1}], 2, v{t0}
        v_mov_b32 v{vTag}, s{sT}
        v_mov_b32 v{vTag+1}, s{sT+1}
        v_lshlrev_b32 v{vBell}, 12, v{vL}
        s_lshl_b32 s{sO2}, s{sH}, 5
        s_add_u32 s{sO2}, s{sO2}, s{sJ}
        s_lshl_b32 s{sO2}, s{sO2}, 2
        s_add_u32 s{sO2}, s{sO2}, {D1}
        """)
        if opt.get("q_direct", 0):
            g(f"""
            s_cmp_lg_u32 s{sW}, 2
            s_cbranch_scc1 L_A_nordy
            s_mov_b64 exec, 0xff
            buffer_store_dword v{vTag}, v{vBell}, {WS}, s{sO2} offen sc1
            s_mov_b64 exec, -1
            """)
            g.lab("L_A_nordy")
            g(f"""
            v_bfe_u32 v{t0}, v{vL}, 2, 2
            v_lshlrev_b32 v{vA_h1}, 8, v{vG}
            v_lshl_add_u32 v{vA_h1}, v{t0}, 4, v{vA_h1}
            v_lshl_add_u32 v{vA_h1}, s{sW}, 6, v{vA_h1}
            v_lshlrev_b32 v{vBell}, 15, v{vG}
            v_lshl_add_u32 v{vBell}, v{vN}, 4, v{vBell}
            s_lshl_b32 s{sQ}, s{sA}, 8
            s_add_u32 s{sQ}, s{sQ}, {QB}
            """)
        g(f"""
        v_mov_b32 v{t2}, 0
        v_mov_b32 v{t3}, 0
        ds_write_b64 v{t1}, {v(t2,2)}
        ds_write_b64 v{t1}, {v(t2,2)} offset:8
        v_lshrrev_b32 v{vQw}, 1, v{vG}
        v_lshlrev_b32 v{vQw}, 8, v{vQw}
        v_lshl_add_u32 v{vQw}, v{vN}, 4, v{vQw}
        v_and_b32 v{t1}, 1, v{vG}
        v_lshl_add_u32 v{vQw}, v{t1}, 3, v{vQw}
        """)
        def h0loads():
            if pB:
                for k in range(4):
                    g(f"buffer_load_dwordx4 {v(vR+4*k,4)}, v{vA_l16}, {WS}, s{sO} offen offset:{k*1024} sc1")
                return
            for k in range(1, 4):
                g(f"buffer_load_dwordx4 {v(vR+8*(k-1),4)}, v{vA_l16}, {WS}, s{sib[k]} offen sc1")
                g(f"buffer_load_dwordx4 {v(vR+8*(k-1)+4,4)}, v{vA_l16}, {WS}, s{sib[k]} offen offset:1024 sc1")
        sRho, sBlk, sR0 = 60, 43, 62
        vXr, vS1, vXA, vW1a, vHs, vXa = 116, 140, 152, 144, 145, 146
        aW1 = 80
        if opt.get('w1_on', 'A') == 'A':
            g(f"""
            s_lshl_b32 s{sBlk}, s{sA}, 2
            s_add_u32 s{sBlk}, s{sBlk}, s{sW}
            s_mul_i32 s{sRho}, s{sBlk}, 1821
            s_lshr_b32 s{sRho}, s{sRho}, 16
            s_mul_i32 s{sTMP}, s{sRho}, 36
            s_sub_u32 s{sBlk}, s{sBlk}, s{sTMP}
            s_min_u32 s{sTMP}, s{sRho}, 4
            s_mul_i32 s{sR0}, s{sRho}, 10
            s_add_u32 s{sR0}, s{sR0}, s{sTMP}
            s_lshl_b32 s{sR0}, s{sR0}, 2
            v_bfe_u32 v{t0}, v{vL}, 3, 1
            v_mul_u32_u24 v{vXa}, 1152, v{t0}
            v_mul_u32_u24 v{vW1a}, 9216, v{vG}
            v_lshl_add_u32 v{vW1a}, v{vN}, 4, v{vW1a}
            """)
            assert all((i * 1821) >> 16 == i // 36 for i in range(512))
            g(f"s_lshl_b32 s{sTMP}, s{sR0}, 1")
            for k in range(5):
                g(f"buffer_load_dwordx4 {v(vXr+4*k,4)}, v{vXa}, {X}, s{sTMP} offen offset:{16*k}")
            g(f"buffer_load_dwordx2 {v(vXr+20,2)}, v{vXa}, {X}, s{sTMP} offen offset:80")
        if not pB:
            g(f"s_cmp_lg_u32 s{sW}, 0")
            g("s_cbranch_scc1 L_A_s2")
            h0loads()
            g.lab("L_A_s2")
        vUV0, vUV1 = 20, 21
        vP2 = 22
        g(f"""
        v_lshlrev_b32 v{t0}, 1, v{vG}
        v_xor_b32 v{t0}, v{t0}, v{vN}
        v_lshlrev_b32 v{vUV0}, 17, v{vG}
        v_lshl_add_u32 v{vUV0}, v{t0}, 4, v{vUV0}
        v_xor_b32 v{vUV1}, 128, v{vUV0}
        """)
        uve = opt.get("uv_early", 0)
        nuv = 8 if "uv" not in opt.get("skip", "") else 0
        def uv_stream():
            sa, sb = 47, 59
            g(f"""
            s_lshl_b32 s{sa}, s{sJ}, 5
            s_add_u32 s{sa}, s{sa}, s{sW}
            s_lshl_b32 s{sa}, s{sa}, 15
            s_lshl_b32 s{sb}, s{sH}, 8
            s_add_u32 s{sa}, s{sa}, s{sb}
            s_lshl_b32 s{sb}, s{sW}, 13
            """)
            for z in range(nuv):
                hi, gg = z >> 2, z & 3
                if opt.get("uv_thr") and not uve: g(f"s_waitcnt vmcnt({opt['uv_thr']-1})")
                g(f"s_add_u32 m0, s{sb}, {A_WUV + z*1024}")
                g(f"s_add_u32 s{sTMP}, s{sa}, {(64*hi+gg)*8192}")
                g(f"buffer_load_dwordx4 v{vUV1 if z & 1 else vUV0}, {WUV}, s{sTMP} offen {NT} lds")
        if uve == 1:
            g("s_waitcnt lgkmcnt(0)")
            uv_stream()
        for i in range(9):
            unit_pattern(g, vP2 + i, vL, None, i, 1152, t0, t1)
        if opt.get('w1_on', 'A') == 'A':
            g(f"""
            v_lshrrev_b32 v{t0}, 5, v{vL}
            v_mul_u32_u24 v{vHs}, 18432, v{t0}
            v_and_b32 v{t0}, 31, v{vL}
            v_lshl_add_u32 v{vHs}, v{t0}, 4, v{vHs}
            v_mul_u32_u24 v{t0}, 0x0202, v{vG}
            v_add_u32 v{t0}, 0x0100, v{t0}
            v_and_b32 v{t1}, 1, v{vL}
            v_lshlrev_b32 v{t1}, 4, v{t1}
            v_lshlrev_b32 v{t0}, v{t1}, v{t0}
            v_mov_b32 v{t2}, 0x0c0c0000
            v_lshrrev_b32 v{t2}, v{t1}, v{t2}
            v_or_b32 v{t0}, v{t0}, v{t2}
            v_bfe_u32 v{t1}, v{vL}, 1, 2
            v_mov_b32 v{t2}, 0x0c0c0c0c
            """)
            for d in range(4):
                g(f"v_cmp_eq_u32 vcc, {d}, v{t1}")
                g(f"v_cndmask_b32 v{vS1+d}, v{t2}, v{t0}, vcc")
        if uve == 2:
            g("s_waitcnt lgkmcnt(0)")
            uv_stream()
        g(f"s_mov_b32 s{sCNT}, 0")
        g(f"s_cmp_lg_u32 s{sW}, 0")
        g("s_cbranch_scc1 L_A_h0wait")
        if pB:
            g(f"""
            s_mov_b32 s{sTMP}, s{sC}
            s_mov_b32 s{sTMP+1}, s{sO3}
            s_and_b32 s{sC}, s{sT}, 15
            """)
            g.lab("L_A_peek")
            for k in range(4):
                g(f"s_load_dword s{16+k}, s[{sTMP}:{sTMP+1}], {k*1024+opt.get('peek_off', 1020)} glc")
            spin_guard(g, "L_A_peek2")
            g("s_waitcnt lgkmcnt(0)")
            for k in range(4):
                g(f"s_xor_b32 s{16+k}, s{16+k}, s{sC}")
            g("s_or_b64 s[16:17], s[16:17], s[18:19]")
            g("s_or_b32 s16, s16, s17")
            g("s_and_b32 s16, s16, 15")
            g("s_cbranch_scc1 L_A_peek")
            g.lab("L_A_peek2")
            g.stamp(2)
            g.lab("L_A_h0get")
            h0loads()
            g("s_waitcnt vmcnt(0)")
        else:
            g(f"s_waitcnt vmcnt({nuv if uve else 0})")
        g.lab("L_A_h0chk")
        if opt.get("fst"):
            g(f"s_cmp_lg_u32 s{sCNT}, 0")
            g("s_cbranch_scc1 L_A_fs11")
            g.fstamp(11)
            g.lab("L_A_fs11")
        if pB:
            for k in range(16):
                g(f"v_xor_b32 v{vR+k}, s{sC}, v{vR+k}")
            g(f"v_or3_b32 v{t0}, v{vR}, v{vR+1}, v{vR+2}")
            g(f"v_or3_b32 v{t1}, v{vR+3}, v{vR+4}, v{vR+5}")
            for k in range(6, 14, 4):
                g(f"v_or3_b32 v{t0}, v{t0}, v{vR+k}, v{vR+k+1}")
                g(f"v_or3_b32 v{t1}, v{t1}, v{vR+k+2}, v{vR+k+3}")
            g(f"v_or3_b32 v{t0}, v{t0}, v{vR+14}, v{vR+15}")
            g(f"v_bitop3_b32 v{t0}, v{t0}, v{t1}, 15 bitop3:0xa8")
            g(f"v_cmp_ne_u32 vcc, 0, v{t0}")
            g("s_cbranch_vccnz L_A_h0poll")
        else:
            for k in range(3):
                g(f"v_cmp_ne_u64 vcc, s[{sT}:{sT+1}], {v(vR+8*k,2)}")
                g(f"v_cmp_ne_u64 s[{sM3}:{sM3+1}], s[{sT}:{sT+1}], {v(vR+8*k+6,2)}")
                if k == 0: g(f"s_or_b64 s[{sM4}:{sM4+1}], vcc, s[{sM3}:{sM3+1}]")
                else:
                    g(f"s_or_b64 s[{sM4}:{sM4+1}], s[{sM4}:{sM4+1}], vcc")
                    g(f"s_or_b64 s[{sM4}:{sM4+1}], s[{sM4}:{sM4+1}], s[{sM3}:{sM3+1}]")
            g("s_cbranch_scc1 L_A_h0poll")
        g.lab("L_A_h0done")
        def d1bell(tag):
            g("s_mov_b64 exec, 0xff")
            g(f"buffer_store_dword v{vTag}, v{vBell}, {WS}, s{sO2} offen sc1")
            g("s_mov_b64 exec, -1")
        qd = opt.get("q_direct", 0)
        d1p = opt.get("d1_pos", 0) if not qd else -1
        if d1p == 0: d1bell("")
        if pB:
            g(f"v_pk_add_f32 {v(vR,2)}, {v(vR,2)}, {v(vR+4,2)}")
            g(f"v_pk_add_f32 {v(vR+2,2)}, {v(vR+2,2)}, {v(vR+6,2)}")
            g(f"v_pk_add_f32 {v(vR+8,2)}, {v(vR+8,2)}, {v(vR+12,2)}")
            g(f"v_pk_add_f32 {v(vR+10,2)}, {v(vR+10,2)}, {v(vR+14,2)}")
            g(f"v_pk_add_f32 {v(vR,2)}, {v(vR,2)}, {v(vR+8,2)}")
            g(f"v_pk_add_f32 {v(vR+2,2)}, {v(vR+2,2)}, {v(vR+10,2)}")
            g(f"v_cvt_pk_bf16_f32 v{vR}, v{vR}, v{vR+1}")
            g(f"v_cvt_pk_bf16_f32 v{vR+1}, v{vR+2}, v{vR+3}")
        else:
            g(f"v_pk_add_f32 {v(vR+2,2)}, {v(vQ+2,2)}, {v(vR+2,2)}")
            g(f"v_pk_add_f32 {v(vR+4,2)}, {v(vQ+4,2)}, {v(vR+4,2)}")
            g(f"v_pk_add_f32 {v(vR+10,2)}, {v(vR+10,2)}, {v(vR+18,2)}")
            g(f"v_pk_add_f32 {v(vR+12,2)}, {v(vR+12,2)}, {v(vR+20,2)}")
            g(f"v_pk_add_f32 {v(vR+2,2)}, {v(vR+2,2)}, {v(vR+10,2)}")
            g(f"v_pk_add_f32 {v(vR+4,2)}, {v(vR+4,2)}, {v(vR+12,2)}")
            g(f"v_cvt_pk_bf16_f32 v{vR}, v{vR+2}, v{vR+3}")
            g(f"v_cvt_pk_bf16_f32 v{vR+1}, v{vR+4}, v{vR+5}")
        g(f"ds_write_b64 v{vQw}, {v(vR,2)} offset:{A_QL}")
        g("s_waitcnt lgkmcnt(0)")
        g("s_barrier")
        g(f"ds_read_b128 {v(vQlo,4)}, v{vA_qlo}")
        g(f"ds_read_b128 {v(vQhi,4)}, v{vA_qhi}")
        if d1p == 1: d1bell("")
        g("s_branch L_A_p1b")
        g.lab("L_A_h0wait")
        g(f"s_waitcnt vmcnt({nuv if uve else 0}) lgkmcnt(0)")
        g.fstamp(12)
        g("s_barrier")
        g(f"ds_read_b128 {v(vQlo,4)}, v{vA_qlo}")
        g(f"ds_read_b128 {v(vQhi,4)}, v{vA_qhi}")
        g.lab("L_A_p1b")
        g.stamp(3)
        g("s_waitcnt lgkmcnt(0)")
        for t in range(4):
            g(f"{MF} {v(vAcc+4*t,4)}, {v(vQlo,4)}, {A(aUK+8*t,4)}, 0")
        for t in range(4):
            g(f"{MF} {v(vAcc+4*t,4)}, {v(vQhi,4)}, {A(aUK+8*t+4,4)}, {v(vAcc+4*t,4)}")
        if d1p == 2:
            g(f"s_cmp_lg_u32 s{sW}, 0")
            g("s_cbranch_scc1 L_A_nod1")
            d1bell("")
            g.lab("L_A_nod1")
        for t in range(4):
            a0 = vAcc + 4 * t
            g(f"v_cndmask_b32 v{a0}, v{a0}, v{a0+1}, s[{sM1}:{sM1+1}]")
            g(f"v_cndmask_b32 v{a0+2}, v{a0+2}, v{a0+3}, s[{sM1}:{sM1+1}]")
            g(f"v_cndmask_b32 v{a0}, v{a0}, v{a0+2}, s[{sM2}:{sM2+1}]")
        for t in range(4):
            a0 = vAcc + 4 * t
            g(f"v_add_f32_dpp v{a0+1}, v{a0}, v{a0} quad_perm:[1,0,3,2] row_mask:0xf bank_mask:0xf")
        for t in range(4):
            a0 = vAcc + 4 * t
            g(f"v_add_f32_dpp v{a0}, v{a0+1}, v{a0+1} quad_perm:[2,3,0,1] row_mask:0xf bank_mask:0xf")
        g(f"v_cvt_pk_bf16_f32 v{vGr}, v{vAcc}, v{vAcc+4}")
        g(f"v_cvt_pk_bf16_f32 v{vGr+1}, v{vAcc+8}, v{vAcc+12}")
        g(f"v_permlane32_swap_b32 v{vGr}, v{vGr+2}")
        g(f"v_permlane32_swap_b32 v{vGr+1}, v{vGr+3}")
        if qd:
            g(f"""
            s_mov_b64 exec, 0x11111111
            ds_write_b128 v{vA_h1}, {v(vGr,4)} offset:{A_CTXC}
            s_mov_b64 exec, -1
            s_waitcnt lgkmcnt(0)
            s_barrier
            s_cmp_lg_u32 s{sW}, 3
            s_cbranch_scc1 L_A_noq
            s_mov_b32 exec_hi, 0
            ds_read_b128 {v(vGr,4)}, v{vA_l16} offset:{A_CTXC}
            s_waitcnt lgkmcnt(0)
            buffer_store_dwordx4 {v(vGr,4)}, v{vBell}, {WS}, s{sQ} offen sc1
            s_mov_b64 exec, -1
            """)
            g.lab("L_A_noq")
        else:
            g(f"""
            s_mov_b64 exec, 0x11111111
            buffer_store_dwordx4 {v(vGr,4)}, v{vA_h1}, {WS}, s{sQ} offen sc1
            s_mov_b64 exec, -1
            """)
        if d1p == 3:
            g(f"s_cmp_lg_u32 s{sW}, 0")
            g("s_cbranch_scc1 L_A_nod1")
            d1bell("")
            g.lab("L_A_nod1")
        g.stamp(4)
        if opt.get("a_wait", 0): g("s_waitcnt vmcnt(0)")
        if opt.get("a_gate"):
            sD = [16, 52, 56, 28]
            g(f"""
            s_lshl_b32 s{sTMP}, s{sXCD}, 3
            s_lshr_b32 s{sTMP+1}, s{sH}, 4
            s_lshl_b32 s{sTMP+1}, s{sTMP+1}, 2
            s_add_u32 s{sTMP}, s{sTMP}, s{sTMP+1}
            s_add_u32 s{sTMP}, s{sTMP}, s{sW}
            s_lshl_b32 s{sTMP}, s{sTMP}, 9
            s_add_u32 s{sTMP}, s{sTMP}, {D1}
            s_add_u32 s{sTMP}, s4, s{sTMP}
            s_addc_u32 s{sTMP+1}, s5, 0
            s_mov_b32 s{sPC}, s{sT}
            s_mov_b32 s{sPC+1}, s{sT}
            s_mov_b32 s{sCNT}, 0
            """)
            g.lab("L_A_gate")
            for k in range(4):
                g(f"s_load_dwordx4 s[{sD[k]}:{sD[k]+3}], s[{sTMP}:{sTMP+1}], {k*128} glc")
            spin_guard(g, "L_A_gate2")
            g("s_waitcnt lgkmcnt(0)")
            for k in range(4):
                g(f"s_xor_b64 s[{sD[k]}:{sD[k]+1}], s[{sD[k]}:{sD[k]+1}], s[{sPC}:{sPC+1}]")
                g(f"s_xor_b64 s[{sD[k]+2}:{sD[k]+3}], s[{sD[k]+2}:{sD[k]+3}], s[{sPC}:{sPC+1}]")
                g(f"s_or_b64 s[{sD[k]}:{sD[k]+1}], s[{sD[k]}:{sD[k]+1}], s[{sD[k]+2}:{sD[k]+3}]")
            g("s_or_b64 s[16:17], s[16:17], s[52:53]")
            g("s_or_b64 s[56:57], s[56:57], s[28:29]")
            g("s_or_b64 s[16:17], s[16:17], s[56:57]")
            g("s_cbranch_scc1 L_A_gate")
            g.lab("L_A_gate2")
            g("s_waitcnt lgkmcnt(0)")
            if opt["a_gate"] == 2: g("s_barrier")
            g(f"v_and_b32 v{t0}, 2, v{vL}")
            g(f"v_cmp_eq_u32 s[{sM2}:{sM2+1}], 2, v{t0}")
        if opt.get("a_sleep"): g(f"s_sleep {opt['a_sleep']}")
        srd(g, 28, 10, 1152)
        def w1_frags():
            for i in range(11):
                for d in range(4):
                    g(f"v_perm_b32 v{vXA+4*i+d}, v{vXr+2*i+1}, v{vXr+2*i}, v{vS1+d}")
        w1a = opt.get("w1_on", "A") == "A"
        nw1 = 0 if ("w1" in opt.get("skip", "") or not w1a) else 11
        if w1a:
            g(f"s_mul_i32 s{sO2}, s{sR0}, 9216")
            g(f"s_lshl_b32 s{sO3}, s{sBlk}, 8")
            g(f"s_add_u32 s{sO2}, s{sO2}, s{sO3}")
        for i in range(nw1):
            if opt.get("w1_thr") and i >= opt["w1_thr"]: g(f"s_waitcnt vmcnt({opt['w1_thr']-1})")
            g(f"buffer_load_dwordx4 {A(aW1+4*i,4)}, v{vW1a}, {W1}, s{sO2} offen {NT}")
            if i == (opt.get("w1_thr") or 11) - 1: w1_frags()
            if i < 10: g(f"s_add_u32 s{sO2}, s{sO2}, {4*9216}")
            if i == 9:
                g(f"s_cmp_ge_u32 s{sRho}, 4")
                g(f"s_cselect_b32 s{sO2}, {576*9216}, s{sO2}")
        if not uve: uv_stream()
        def w1_gemv(younger):
            if not w1a: return
            vH = 148
            g(f"s_waitcnt vmcnt({younger})")
            for i in range(10):
                g(f"{MF} {v(vH,4)}, {v(vXA+4*i,4)}, {A(aW1+4*i,4)}, {'0' if i == 0 else v(vH,4)}")
            g(f"s_cmp_ge_u32 s{sRho}, 4")
            g("s_cbranch_scc1 L_A_w1s")
            g(f"{MF} {v(vH,4)}, {v(vXA+40,4)}, {A(aW1+40,4)}, {v(vH,4)}")
            g.lab("L_A_w1s")
            g(f"""
            s_mul_i32 s{sO}, s{sRho}, 36864
            s_lshl_b32 s{sO3}, s{sBlk}, 9
            s_add_u32 s{sO}, s{sO}, s{sO3}
            s_add_u32 s{sO}, s{sO}, {HH}
            s_and_b32 s{sO3}, s{sT}, 15
            """)
            for r in range(4):
                g(f"v_and_or_b32 v{vH+r}, v{vH+r}, -16, s{sO3}")
            g(f"buffer_store_dwordx4 {v(vH,4)}, v{vHs}, {WS}, s{sO} offen sc1")
        if not opt.get("w1_late"): w1_gemv(0 if uve else nuv)
        wol = opt.get("wo_late", 0)
        if not wol:
            g(f"s_mul_i32 s{sO2}, s{sA}, {32*1152}")
            unit_load(g, WO, vP2, A_WO, sO2, 1152, "wo", NT, rows36=False, thr=opt.get("a_thr"))
        if opt.get("w1_late") == 1: w1_gemv(9)
        g.stamp(14)
        vGx, vGw, vB2 = 48, 60, 72
        vOA, vFB = 73, 74
        g(f"v_mov_b32 v{vOA}, 0")
        g("s_waitcnt lgkmcnt(0)")
        g(f"s_cmp_lg_u32 s{sW}, 0")
        g("s_cbranch_scc1 L_A_nogate")
        h0_wt()
        g(f"""
        s_cmp_ge_u32 s{sA}, 36
        s_cbranch_scc1 L_A_nogate
        v_and_b32 v{t0}, 31, v{vL}
        v_mul_u32_u24 v{t1}, 36, v{t0}
        v_lshrrev_b32 v{t2}, 5, v{vL}
        v_mul_u32_u24 v{t2}, 1152, v{t2}
        v_add_u32 v{t2}, v{t2}, v{t1}
        buffer_load_dwordx4 {v(vGx,4)}, v{t2}, {X}, 0 offen
        buffer_load_dwordx4 {v(vGx+4,4)}, v{t2}, {X}, 0 offen offset:16
        buffer_load_dword v{vGx+8}, v{t2}, {X}, 0 offen offset:32
        buffer_load_dwordx4 {v(vGw,4)}, v{t1}, {GATE}, 0 offen
        buffer_load_dwordx4 {v(vGw+4,4)}, v{t1}, {GATE}, 0 offen offset:16
        buffer_load_dword v{vGw+8}, v{t1}, {GATE}, 0 offen offset:32
        s_cmp_ge_u32 s{sA}, 32
        s_cbranch_scc1 L_A_uleft
        s_lshr_b32 s{sO}, s{sA}, 2
        s_lshl_b32 s{sO}, s{sO}, 4
        s_and_b32 s{sO3}, s{sA}, 1
        s_lshl_b32 s{sO3}, s{sO3}, 3
        s_add_u32 s{sO}, s{sO}, s{sO3}
        v_and_b32 v{t1}, 3, v{t0}
        v_lshlrev_b32 v{t1}, 7, v{t1}
        v_lshrrev_b32 v{t2}, 2, v{t0}
        v_add3_u32 v{t1}, v{t1}, v{t2}, s{sO}
        s_bfe_u32 s{sO3}, s{sA}, 0x10001
        v_mov_b32 v{vFB}, s{sO3}
        s_branch L_A_ujoin
        """)
        g.lab("L_A_uleft")
        g(f"""
        s_lshl_b32 s{sO}, s{sA}, 4
        v_and_b32 v{t1}, 15, v{t0}
        v_add_u32 v{t1}, s{sO}, v{t1}
        v_lshrrev_b32 v{vFB}, 4, v{t0}
        """)
        g.lab("L_A_ujoin")
        g(f"""
        v_lshlrev_b32 v{t1}, 1, v{t1}
        buffer_load_ushort v{vB2}, v{t1}, {B2}, 0 offen
        v_mul_u32_u24 v{vOA}, 1152, v{vFB}
        v_add_u32 v{vOA}, v{vOA}, v{t1}
        """)
        g.lab("L_A_nogate")
        vH3, vH3x = 32, 33
        vHBs = 39
        sH3m, sH3l, sHB, sHH = 63, 47, 61, 62
        vTU0, vTU1, vTO0, vTO1 = 34, 35, 36, 37
        vCX, vCW, vHBl, vD2, vOg, vWTw, vWTr = 38, 46, 40, 41, 42, 43, 44
        vT1, vK1 = 75, 57
        def later_addresses():
            g(f"""
            s_mul_i32 s{sH3l}, s{sA}, {OSTR}
            s_add_u32 s{sH3l}, s{sH3l}, {OB}
            s_lshl_b32 s{sTMP}, s{sW}, 10
            s_add_u32 s{sH3m}, s{sH3l}, s{sTMP}
            s_lshl_b32 s{sTMP}, s{sW}, 8
            s_add_u32 s{sH3l}, s{sH3l}, s{sTMP}
            s_add_u32 s{sH3l}, s{sH3l}, 4096
            v_lshlrev_b32 v{vH3x}, 2, v{vL}
            """)
            g(f"""
            v_lshlrev_b32 v{vHBs}, 7, v{vG}
            v_and_b32 v{t0}, 1, v{vL}
            v_lshl_add_u32 v{vHBs}, v{t0}, 6, v{vHBs}
            v_bfe_u32 v{t0}, v{vL}, 1, 1
            v_lshl_add_u32 v{vHBs}, v{t0}, 9, v{vHBs}
            s_lshl_b32 s{sHB}, s{sH}, 2
            s_add_u32 s{sHB}, s{sHB}, s{sW}
            s_lshl_b32 s{sHB}, s{sHB}, 6
            s_add_u32 s{sHB}, s{sHB}, s{sJ}
            s_lshl_b32 s{sHB}, s{sHB}, 4
            s_add_u32 s{sHB}, s{sHB}, {HB}
            v_lshrrev_b32 v{t0}, 2, v{vL}
            v_bfe_u32 v{t1}, v{vL}, 1, 1
            v_lshl_add_u32 v{t1}, s{sW}, 2, v{t1}
            v_and_b32 v{t2}, 7, v{t0}
            v_lshlrev_b32 v{t2}, 1, v{t2}
            v_xor_b32 v{t1}, v{t1}, v{t2}
            v_lshlrev_b32 v{vTU0}, 8, v{t0}
            v_lshl_add_u32 v{vTU0}, v{t1}, 4, v{vTU0}
            v_and_b32 v{t1}, 1, v{vL}
            v_lshl_add_u32 v{vTU0}, v{t1}, 3, v{vTU0}
            v_xor_b32 v{vTU1}, 32, v{vTU0}
            """)
            assert A_WUV == 0
            tr_pair_bases(g, vTO0, vTO1, None, None, vL, A_WO, t0, t1, t2)
            g(f"""
            v_and_b32 v{t0}, 1, v{vL}
            v_lshlrev_b32 v{vCX}, 9, v{t0}
            v_bfe_u32 v{t0}, v{vL}, 1, 1
            v_lshl_add_u32 v{vCX}, v{t0}, 8, v{vCX}
            v_lshl_add_u32 v{vCX}, v{vG}, 4, v{vCX}
            v_and_b32 v{t0}, 1, v{vG}
            v_lshlrev_b32 v{vCW}, 3, v{t0}
            v_lshl_add_u32 v{vCW}, v{vN}, 4, v{vCW}
            v_lshl_add_u32 v{vCW}, s{sW}, 8, v{vCW}
            v_and_b32 v{t0}, 7, v{vL}
            v_lshlrev_b32 v{vHBl}, 4, v{t0}
            v_lshl_add_u32 v{vHBl}, v{vG}, 7, v{vHBl}
            v_and_b32 v{t0}, 31, v{vL}
            v_lshlrev_b32 v{vD2}, 8, v{t0}
            v_lshlrev_b32 v{vOg}, 10, v{vG}
            v_lshl_add_u32 v{vOg}, v{vN}, 4, v{vOg}
            v_lshlrev_b32 v{vWTw}, 1, v{t0}
            v_lshl_add_u32 v{vWTw}, s{sW}, 6, v{vWTw}
            s_and_b32 s{sTMP}, s{sW}, 1
            s_lshl_b32 s{sTMP}, s{sTMP}, 5
            s_lshl_b32 s{sTMP+1}, s{sW}, 6
            s_add_u32 s{sTMP}, s{sTMP}, s{sTMP+1}
            v_lshl_add_u32 v{vWTr}, v{vG}, 3, s{sTMP}
            v_cmp_gt_u32 s[{sM1}:{sM1+1}], 8, v{vN}
            """)
        later_addresses()
        g("s_waitcnt vmcnt(0)")
        g("s_barrier")
        g.stamp(5)
        aUV, aWO = 0, 32
        vDB = 88
        vDL = 92
        vO = 96
        vFr = 116
        vWt = 132
        vD = 136
        vLs, vWr, vEr = 140, 141, 142
        g(f"""
        s_lshr_b32 s{sO}, s{sH}, 4
        s_lshl_b32 s{sO}, s{sO}, 1
        s_lshr_b32 s{sO3}, s{sW}, 1
        s_add_u32 s{sO}, s{sO}, s{sO3}
        s_lshl_b32 s{sO}, s{sO}, 13
        s_and_b32 s{sO3}, s{sH}, 15
        s_lshl_b32 s{sO3}, s{sO3}, 4
        s_add_u32 s{sO}, s{sO}, s{sO3}
        s_add_u32 s{sO2}, s{sO}, {DL}
        s_add_u32 s{sO}, s{sO}, {D2}
        """)
        epos = opt.get("e_pos")
        if epos is None: g(f"buffer_load_dwordx4 {v(vDB,4)}, v{vD2}, {WS}, s{sO} offen sc1")
        if opt.get("w1_late") == 2:
            g(f"s_mov_b32 s{sC}, s{sO}")
            w1_gemv(1)
            g(f"s_mov_b32 s{sO}, s{sC}")
        for tau in range(2):
            for ks in range(4):
                for hi in range(2):
                    g(f"ds_read_b64_tr_b16 {A(aUV+(tau*4+ks)*4+2*hi,2)}, v{vTU1 if tau else vTU0} offset:{ks*8192+hi*4096}")
        def wo_frags():
            for t in range(5):
                for x in range(2):
                    for hi in range(2):
                        g(f"ds_read_b64_tr_b16 {A(aWO+(t*2+x)*4+2*hi,2)}, v{vTO1 if x else vTO0} offset:{hi*16*1152+t*256}")
        if not wol: wo_frags()
        sBP = 34
        sHI, sTT = sPOI, sPC
        sX, sP4 = 32, 33
        g(f"""
        s_and_b32 s{sTMP}, s{sW}, 1
        s_lshl_b32 s{sTMP}, s{sTMP}, 12
        s_add_u32 s{sTMP}, s{sTMP}, s{sO2}
        s_add_u32 s{sBP}, s4, s{sTMP}
        s_addc_u32 s{sBP+1}, s5, 0
        s_mul_i32 s{sO3}, s{sA}, {OSTR}
        s_lshl_b32 s{sTMP}, s{sW}, 12
        s_add_u32 s{sO3}, s{sO3}, s{sTMP}
        s_add_u32 s{sO3}, s{sO3}, {OB}
        s_bitcmp1_b32 s{sT}, 0
        s_cselect_b32 s{sX}, 0x10001, 0
        s_mov_b32 s{sHI}, 0x10000
        s_mov_b32 s{sTT}, s{sT}
        s_mov_b32 s{sTT+1}, s{sT}
        """)
        g(f"v_mov_b32 v{t0}, 0")
        for k in range(9):
            g(f"v_dot2_f32_bf16 v{t0}, v{vGx+k}, v{vGw+k}, v{t0}")
        g("s_nop 2")
        for r in (8, 4, 2, 1):
            g(f"v_add_f32_dpp v{t0}, v{t0}, v{t0} row_ror:{r} row_mask:0xf bank_mask:0xf")
        g(f"""
        v_mov_b32 v{t1}, v{t0}
        v_permlane16_swap_b32 v{t0}, v{t1}
        v_add_f32 v{t0}, v{t0}, v{t1}
        v_mul_f32 v{t0}, {hex(fbits(-math.log2(math.e)))}, v{t0}
        v_exp_f32 v{t0}, v{t0}
        v_add_f32 v{t0}, 1.0, v{t0}
        v_rcp_f32 v{t0}, v{t0}
        v_cmp_eq_u32 vcc, 1, v{vFB}
        v_mov_b32 v{t1}, v{t0}
        v_permlane32_swap_b32 v{t0}, v{t1}
        v_cndmask_b32 v{vFB}, v{t0}, v{t1}, vcc
        v_lshlrev_b32 v{vB2}, 16, v{vB2}
        s_mov_b32 s{sCNT}, 0
        """)
        if epos is None:
            g(f"s_waitcnt vmcnt({1 if opt.get('w1_late') == 2 else 0})")
            g("s_branch L_A_d2chk")
        else:
            g(f"""
            s_lshr_b32 s{sTMP}, s{sH}, 4
            s_lshl_b32 s{sTMP}, s{sTMP}, 2
            s_add_u32 s{sTMP}, s{sTMP}, s{sW}
            s_lshl_b32 s{sTMP}, s{sTMP}, 11
            s_mul_i32 s{sTMP+1}, s{sXCD}, {16384 if opt.get("e_rep") else 0}
            s_add_u32 s{sTMP}, s{sTMP}, s{sTMP+1}
            s_add_u32 s{sTMP}, s{sTMP}, {DE2 if opt.get("e_rep") else DE}
            v_lshrrev_b32 v{t2}, 1, v{vD2}
            s_mov_b64 exec, 0xffff
            """)
            g.lab("L_A_epoll")
            g(f"buffer_load_dwordx2 {v(t0,2)}, v{t2}, {WS}, s{sTMP} offen offset:8 sc1")
            spin_guard(g, "L_A_edone")
            g("s_waitcnt vmcnt(0)")
            g(f"v_cmp_ne_u64 vcc, s[{sT}:{sT+1}], {v(t0,2)}")
            g("s_mov_b64 exec, vcc")
            g("s_cbranch_vccnz L_A_epoll")
            g.lab("L_A_edone")
            g("s_mov_b64 exec, -1")
            g("s_mov_b64 vcc, -1")
            if opt.get("st14e"): g.stamp(14)
            if opt.get("e_sleep"): g(f"s_sleep {opt['e_sleep']}")
            g(f"s_mov_b32 s{sCNT}, 0")
        g.lab("L_A_d2poll")
        if opt.get("m_shrink"): g("s_mov_b64 exec, vcc")
        if opt.get("m_sleep"): g(f"s_sleep {opt['m_sleep']}")
        g(f"buffer_load_dwordx4 {v(vDB,4)}, v{vD2}, {WS}, s{sO} offen sc1")
        g(f"s_add_u32 s{sCNT}, s{sCNT}, 1")
        g(f"s_cmp_gt_u32 s{sCNT}, {opt.get('spin', SPIN)}")
        g("s_waitcnt vmcnt(0)")
        g("s_cbranch_scc1 L_A_d2done")
        g.lab("L_A_d2chk")
        g(f"v_cmp_ne_u64 vcc, s[{sT}:{sT+1}], {v(vDB+2,2)}")
        g("s_cbranch_vccnz L_A_d2poll")
        g.lab("L_A_d2done")
        if opt.get("m_shrink"): g("s_mov_b64 exec, -1")
        g.stamp(6)
        def lpoll():
            for k in range(16):
                g(f"s_load_dword s{16+k}, s[{sBP}:{sBP+1}], {k*256+8} glc")
        lvec = opt.get("l_vec", 0)
        if lvec == 1: g(f"buffer_load_dwordx4 {v(vDL,4)}, v{vD2}, {WS}, s{sO2} offen sc1")
        elif lvec == 0: lpoll()
        g(f"v_max_f32_dpp v{t0}, v{vDB}, v{vDB} row_ror:8 row_mask:0xf bank_mask:0xf")
        for r in (4, 2, 1):
            g(f"v_max_f32_dpp v{t0}, v{t0}, v{t0} row_ror:{r} row_mask:0xf bank_mask:0xf")
        g(f"""
        v_mov_b32 v{t1}, v{t0}
        v_permlane16_swap_b32 v{t0}, v{t1}
        v_max_f32 v{t0}, v{t0}, v{t1}
        v_sub_f32 v{t0}, v{vDB}, v{t0}
        v_exp_f32 v{t0}, v{t0}
        v_cvt_pk_bf16_f32 v{t0}, v{t0}, v{t0}
        ds_write_b16 v{vWTw}, v{t0} offset:{A_WT}
        ds_read_b64 {v(vWt,2)}, v{vWTr} offset:{A_WT}
        v_and_b32 v{vWr}, 0xffff0000, v{t0}
        s_mov_b32 s{sCNT}, 0
        s_branch {"L_A_lgo" if lvec == 2 else "L_A_lchk"}
        """)
        g.lab("L_A_lpoll")
        if lvec: g(f"buffer_load_dwordx4 {v(vDL,4)}, v{vD2}, {WS}, s{sO2} offen sc1")
        else: lpoll()
        g(f"s_add_u32 s{sCNT}, s{sCNT}, 1")
        g(f"s_cmp_gt_u32 s{sCNT}, {opt.get('spin', SPIN)}")
        g("s_cbranch_scc1 L_A_lgo")
        g.lab("L_A_lchk")
        if lvec:
            g("s_waitcnt vmcnt(0)")
            g(f"v_cmp_ne_u64 vcc, s[{sT}:{sT+1}], {v(vDL+2,2)}")
            g("s_cbranch_vccnz L_A_lpoll")
        else:
            g("s_waitcnt lgkmcnt(0)")
            for k in range(0, 16, 2):
                g(f"s_xor_b64 s[{16+k}:{17+k}], s[{16+k}:{17+k}], s[{sTT}:{sTT+1}]")
            for st_ in (8, 4, 2):
                for k in range(0, st_, 2):
                    g(f"s_or_b64 s[{16+k}:{17+k}], s[{16+k}:{17+k}], s[{16+k+st_}:{17+k+st_}]")
            g("s_cbranch_scc1 L_A_lpoll")
        g.lab("L_A_lgo")
        g(f"s_mov_b32 s{sCNT}, 0")
        if opt.get("o_sleep"): g(f"s_sleep {opt['o_sleep']}")
        g.stamp(11)
        def oget():
            g(f"buffer_load_dwordx4 {v(vDL,4)}, v{vD2}, {WS}, s{sO2} offen sc1")
            for u in range(4):
                g(f"buffer_load_dwordx4 {v(vO+4*u,4)}, v{vOg}, {WS}, s{sO3} offen offset:{u*256} sc1")
        oget()
        nwo = 0
        if wol in (1, 2):
            assert lvec == 2
            g(f"s_mul_i32 s{sC}, s{sA}, {32*1152}")
            unit_load(g, WO, vP2, A_WO, sC, 1152, "wo", NT, rows36=False)
            nwo = 9 if "wo" not in opt.get("skip", "") else 0
        g("s_waitcnt lgkmcnt(0)")
        for u in range(4):
            for d in range(4):
                g(f"v_perm_b32 v{vFr+4*u+d}, v{vWt+(u>>1)}, v{vWt+(u>>1)}, v{vSel+4*(u&1)+d}")
        g.lab("L_A_ocomb")
        g(f"v_mov_b32 v{vEr}, 0")
        g(f"s_waitcnt vmcnt({4+nwo})")
        g(f"v_mul_f32 v{vLs}, v{vWr}, v{vDL}")
        g(f"v_cmp_ne_u64 s[{sM4}:{sM4+1}], s[{sT}:{sT+1}], {v(vDL+2,2)}")
        for r in (8, 4, 2, 1):
            g(f"v_add_f32_dpp v{vLs}, v{vLs}, v{vLs} row_ror:{r} row_mask:0xf bank_mask:0xf")
        g(f"""
        v_mov_b32 v{t1}, v{vLs}
        v_permlane16_swap_b32 v{vLs}, v{t1}
        v_add_f32 v{vLs}, v{vLs}, v{t1}
        v_rcp_f32 v{vLs}, v{vLs}
        """)
        for u in range(4):
            g(f"s_waitcnt vmcnt({3-u+nwo})")
            for d in range(4):
                g(f"v_xor_b32 v{vO+4*u+d}, s{sX}, v{vO+4*u+d}")
            if u:
                for d in range(4):
                    g(f"v_bitop3_b32 v{vEr}, v{vEr}, v{vO+4*(u-1)+d}, s{sHI} bitop3:0xf6")
            g(f"{MF} {v(vD,4)}, {v(vFr+4*u,4)}, {v(vO+4*u,4)}, {'0' if u == 0 else v(vD,4)}")
        for d in range(4):
            g(f"v_bitop3_b32 v{vEr}, v{vEr}, v{vO+12+d}, s{sHI} bitop3:0xf6")
        g(f"v_and_b32 v{vEr}, 0x10001, v{vEr}")
        g(f"v_cmp_ne_u32 vcc, 0, v{vEr}")
        g(f"s_or_b64 vcc, vcc, s[{sM4}:{sM4+1}]")
        g("s_cbranch_scc1 L_A_oslow")
        g.lab("L_A_ook")
        if opt.get("stamps"): g(f"s_mov_b32 s100, s{sCNT}")
        for r in range(4):
            g(f"v_mul_f32 v{vD+r}, v{vLs}, v{vD+r}")
        g(f"v_cvt_pk_bf16_f32 v{vD}, v{vD}, v{vD+1}")
        g(f"v_cvt_pk_bf16_f32 v{vD+1}, v{vD+2}, v{vD+3}")
        g(f"ds_write_b64 v{vCW}, {v(vD,2)} offset:{A_CTXC}")
        if wol == 3:
            g(f"s_mul_i32 s{sC}, s{sA}, {32*1152}")
            unit_load(g, WO, vP2, A_WO, sC, 1152, "wo", NT, rows36=False)
        g("s_waitcnt vmcnt(0) lgkmcnt(0)" if wol == 1 else "s_waitcnt lgkmcnt(0)")
        g("s_barrier")
        g.stamp(7)
        vC = 80
        vU = 96
        vG1, vG2 = 104, 108
        vAe, vAo = 116, 120
        vY = 124
        for ks in range(4):
            g(f"ds_read_b128 {v(vC+4*ks,4)}, v{vCX} offset:{A_CTXC+ks*64}")
        g(f"s_lshl_b32 s{sO3}, s{sA}, 10")
        g(f"s_add_u32 s{sO3}, s{sO3}, {HB+LOC}")
        g(f"s_add_u32 s{sO}, s{sHB}, {LOC}")
        g(f"s_and_b32 s{sP4}, s{sT}, 15")
        sD3, vD3 = 16, 58
        g(f"s_xor_b32 s{sD3}, s{sW}, 3")
        g(f"s_or_b32 s{sD3}, s{sD3}, s{sJ}")
        g(f"s_lshl_b32 s{sTMP}, s{sH}, 7")
        g(f"s_add_u32 s{sTMP}, s{sTMP}, {D3}")
        g(f"v_lshl_add_u32 v{vD3}, v{vL}, 12, s{sTMP}")
        for ks in range(4):
            g(f"s_waitcnt lgkmcnt({3-ks})")
            for tau in range(2):
                g(f"{MF} {v(vU+4*tau,4)}, {A(aUV+(tau*4+ks)*4,4)}, {v(vC+4*ks,4)}, {'0' if ks == 0 else v(vU+4*tau,4)}")
        for r in range(4):
            g(f"v_cndmask_b32 v{vC+r}, v{vU+r}, v{vU+4+r}, s[{sM2}:{sM2+1}]")
            g(f"v_cndmask_b32 v{vC+4+r}, v{vU+4+r}, v{vU+r}, s[{sM2}:{sM2+1}]")
        for r in range(4):
            g(f"v_add_f32_dpp v{vC+r}, v{vC+4+r}, v{vC+r} quad_perm:[2,3,0,1] row_mask:0xf bank_mask:0xf")
        g(f"""
        v_cvt_pk_bf16_f32 v{vTag-2}, v{vC}, v{vC+1}
        v_cvt_pk_bf16_f32 v{vTag-1}, v{vC+2}, v{vC+3}
        s_mov_b32 exec_lo, 0x000f000f
        s_mov_b32 exec_hi, 0x000f000f
        buffer_store_dwordx4 {v(vTag-2,4)}, v{vHBs}, {WS}, s{sO} offen
        s_mov_b64 exec, -1
        """)
        def hb_wt():
            g("s_mov_b32 exec_lo, 0x000f000f")
            g("s_mov_b32 exec_hi, 0x000f000f")
            g(f"buffer_store_dwordx4 {v(vTag-2,4)}, v{vHBs}, {WS}, s{sHB} offen sc1")
            g("s_mov_b64 exec, -1")
        g.stamp(8)
        g(f"s_mov_b32 s{sCNT}, 0")
        if wol >= 2:
            g("s_waitcnt vmcnt(1)")
            g("s_barrier")
        if wol: wo_frags()
        g.lab("L_A_hbld")
        g(f"buffer_load_dwordx4 {v(vG1,4)}, v{vHBl}, {WS}, s{sO3} offen sc1")
        g(f"buffer_load_dwordx4 {v(vG2,4)}, v{vHBl}, {WS}, s{sO3} offen offset:512 sc1")
        g("s_waitcnt vmcnt(0)")
        g(f"v_cmp_ne_u64 vcc, s[{sT}:{sT+1}], {v(vG1+2,2)}")
        g(f"v_cmp_ne_u64 s[{sM3}:{sM3+1}], s[{sT}:{sT+1}], {v(vG2+2,2)}")
        src = [vG1, vG1 + 1, vG2, vG2 + 1]
        for d in range(4):
            g(f"v_cndmask_b32 v{vAe+d}, 0, v{src[d]}, s[{sM1}:{sM1+1}]")
        g(f"s_or_b64 vcc, vcc, s[{sM3}:{sM3+1}]")
        g("s_cbranch_scc1 L_A_hbpoll")
        g.lab("L_A_hbdone")
        g.stamp(9)
        def d3bell():
            g(f"s_cmp_lg_u32 s{sD3}, 0")
            g("s_cbranch_scc1 L_A_nod3")
            g("s_mov_b64 exec, 0xff")
            g(f"buffer_store_dword v{vTag}, v{vD3}, {WS}, 0 offen sc1")
            g("s_mov_b64 exec, -1")
            g.lab("L_A_nod3")
        if opt.get("d3_pos", 0) == 0 and opt.get("h3_bell", 1): d3bell()
        for d in range(4):
            g(f"v_cndmask_b32 v{vAo+d}, v{src[d]}, 0, s[{sM1}:{sM1+1}]")
        if wol: g("s_waitcnt lgkmcnt(0)")
        for t in range(4):
            g(f"{MF} {v(vY+4*t,4)}, {v(vAe,4)}, {A(aWO+(t*2)*4,4)}, 0")
        for t in range(4):
            g(f"{MF} {v(vY+4*t,4)}, {v(vAo,4)}, {A(aWO+(t*2+1)*4,4)}, {v(vY+4*t,4)}")
        g(f"{MF} {v(vY+16,4)}, {v(vAe,4)}, {A(aWO+32,4)}, 0")
        g(f"{MF} {v(vY+16,4)}, {v(vAo,4)}, {A(aWO+36,4)}, {v(vY+16,4)}")
        for t in range(4):
            g(f"v_pk_add_f32 {v(vY+4*t,2)}, {v(vY+4*t,2)}, {v(vY+4*t+2,2)}")
        for t in range(4):
            g(f"v_add_f32 v{vC+t}, v{vY+4*t}, v{vY+4*t+1}")
        for t in range(4):
            g(f"v_and_or_b32 v{vC+t}, v{vC+t}, -16, s{sP4}")
        g(f"buffer_store_dwordx4 {v(vC,4)}, v{vA_l16}, {WS}, s{sH3m} offen sc1")
        g(f"s_cmp_gt_u32 s{sW}, 1")
        g("s_cbranch_scc1 L_A_no5b")
        g(f"v_pk_add_f32 {v(vY+16,2)}, {v(vY+16,2)}, {v(vY+18,2)}")
        g(f"v_add_f32 v{vY+16}, v{vY+16}, v{vY+17}")
        g(f"v_and_or_b32 v{vY+16}, v{vY+16}, -16, s{sP4}")
        g(f"buffer_store_dword v{vY+16}, v{vH3x}, {WS}, s{sH3l} offen sc1")
        g.lab("L_A_no5b")
        if opt.get("d3_pos", 0) == 1: d3bell()
        hb_wt()
        g.stamp(10)
        g(f"s_cmp_ge_u32 s{sA}, 36")
        g("s_cbranch_scc1 L_A_exit")
        vRd = [144, 160]
        vRw = 97
        vRa = 59
        sRa = [sO, sO3, sC, sHB]
        g(f"""
        s_lshl_b32 s{sTMP}, s{sXCD}, 2
        s_add_u32 s{sTMP}, s{sTMP}, s{sW}
        s_lshl_b32 s{sTMP}, s{sTMP}, 10
        s_add_u32 s{sTMP}, s{sTMP}, {D3}
        s_add_u32 s{sBP}, s4, s{sTMP}
        s_addc_u32 s{sBP+1}, s5, 0
        """)
        def d3poll():
            for k in range(8):
                g(f"s_load_dword s{16+k}, s[{sBP}:{sBP+1}], {k*128} glc")
        if opt.get("h3_bell", 1): d3poll()
        g(f"""
        s_lshl_b32 s{sO2}, s{sW}, 12
        s_mul_i32 s{sO3}, s{sA}, {USTR}
        s_add_u32 s{sO2}, s{sO2}, s{sO3}
        s_add_u32 s{sO2}, s{sO2}, {H3}
        """)
        def rget(part):
            for u in range(4):
                if part: g(f"buffer_load_dwordx4 {v(vRd[1]+4*u,4)}, v{vA_l16}, {WS}, s{sO2} offen offset:{u*1024} sc1")
                else: g(f"buffer_load_dwordx4 {v(vRd[0]+4*u,4)}, v{vRa}, {WS}, s{sRa[u]} offen sc1")
        rget(1)
        g(f"""
        v_and_b32 v{t0}, 7, v{vL}
        v_lshlrev_b32 v{vRw}, 6, v{t0}
        v_lshrrev_b32 v{t1}, 3, v{vL}
        v_mul_u32_u24 v{vRa}, {OSTR}, v{t1}
        v_lshl_add_u32 v{vRa}, v{t0}, 4, v{vRa}
        v_lshrrev_b32 v{t0}, 5, v{vL}
        v_lshl_add_u32 v{vRw}, v{t0}, 4, v{vRw}
        v_bfe_u32 v{t0}, v{vL}, 4, 1
        v_lshl_add_u32 v{vRw}, v{t0}, 5, v{vRw}
        v_lshl_add_u32 v{vRw}, s{sW}, 2, v{vRw}
        s_mul_i32 s{sO}, s{sW}, {32*OSTR}
        s_lshl_b32 s{sTMP}, s{sA}, 7
        s_add_u32 s{sO}, s{sO}, s{sTMP}
        s_add_u32 s{sO}, s{sO}, {OB}
        s_add_u32 s{sO3}, s{sO}, {8*OSTR}
        s_add_u32 s{sC}, s{sO}, {16*OSTR}
        s_add_u32 s{sHB}, s{sO}, {24*OSTR}
        s_mov_b32 s{sCNT}, 0
        s_branch {"L_A_d3chk" if opt.get("h3_bell", 1) else "L_A_d3go"}
        """)
        g.lab("L_A_d3poll")
        d3poll()
        spin_guard(g, "L_A_d3go")
        g.lab("L_A_d3chk")
        g("s_waitcnt lgkmcnt(0)")
        for k in range(0, 8, 2):
            g(f"s_xor_b64 s[{16+k}:{17+k}], s[{16+k}:{17+k}], s[{sTT}:{sTT+1}]")
        g("s_or_b64 s[16:17], s[16:17], s[18:19]")
        g("s_or_b64 s[20:21], s[20:21], s[22:23]")
        g("s_or_b64 s[16:17], s[16:17], s[20:21]")
        g("s_cbranch_scc1 L_A_d3poll")
        g.lab("L_A_d3go")
        g(f"s_mov_b32 s{sCNT}, 0")
        if opt.get("h3_ack", 0): g("s_waitcnt vmcnt(4)")
        if opt.get("st14"): g.stamp(14)
        rget(0)
        def rsum(part, waits):
            R = vRd[part]
            for u in range(4):
                if waits[u] is not None: g(f"s_waitcnt vmcnt({waits[u]})")
                for d in range(4):
                    g(f"v_xor_b32 v{R+4*u+d}, s{sP4}, v{R+4*u+d}")
                if u == 0:
                    g(f"v_or3_b32 v{vEr}, v{R}, v{R+1}, v{R+2}")
                    g(f"v_or_b32 v{vEr}, v{vEr}, v{R+3}")
                else:
                    g(f"v_pk_add_f32 {v(vY,2)}, {v(R if u == 1 else vY,2)}, {v(R+4*u,2)}")
                    g(f"v_pk_add_f32 {v(vY+2,2)}, {v(R+2 if u == 1 else vY+2,2)}, {v(R+4*u+2,2)}")
                    g(f"v_or3_b32 v{vEr}, v{vEr}, v{R+4*u}, v{R+4*u+1}")
                    g(f"v_or3_b32 v{vEr}, v{vEr}, v{R+4*u+2}, v{R+4*u+3}")
            g(f"v_permlane32_swap_b32 v{vY}, v{vY+1}")
            g(f"v_permlane32_swap_b32 v{vY+2}, v{vY+3}")
            g(f"v_and_b32 v{vEr}, 15, v{vEr}")
            g(f"v_add_f32 v{vY}, v{vY}, v{vY+1}")
            g(f"v_add_f32 v{vY+2}, v{vY+2}, v{vY+3}")
            g(f"v_cmp_ne_u32 vcc, 0, v{vEr}")
            g(f"v_permlane16_swap_b32 v{vY}, v{vY+2}")
            g(f"v_add_f32 v{vY}, v{vY}, v{vY+2}")
        def rfin(part):
            g(f"v_add_f32_dpp v{vY}, v{vY}, v{vY} row_ror:8 row_mask:0xf bank_mask:0xf")
            g(f"ds_write_b32 v{vRw}, v{vY} offset:{A_RED + part*512}")
        sPend = sM3
        rsum(1, [4, None, None, None])
        g(f"s_mov_b64 s[{sPend}:{sPend+1}], vcc")
        rfin(1)
        g.lab("L_A_r0sum")
        rsum(0, [3, 2, 1, 0])
        g("s_cbranch_vccnz L_A_r0slow")
        g.lab("L_A_r0ok")
        rfin(0)
        g(f"s_cmp_lg_u64 s[{sPend}:{sPend+1}], 0")
        g("s_cbranch_scc1 L_A_r1slow")
        g.lab("L_A_r1ok")
        g.stamp(12)
        if opt.get("stamps"):
            g(f"s_lshl_b32 s{sCNT}, s{sCNT}, 8")
            g(f"s_or_b32 s100, s100, s{sCNT}")
        g("s_waitcnt lgkmcnt(0)")
        g("s_barrier")
        g(f"s_cmp_lg_u32 s{sW}, 0")
        g("s_cbranch_scc1 L_A_exit")
        R = 144
        g(f"""
        s_mov_b32 exec_hi, 0
        ds_read_b128 {v(R,4)}, v{vA_l16} offset:{A_RED}
        ds_read_b128 {v(R+4,4)}, v{vA_l16} offset:{A_RED+512}
        v_sub_f32 v{t0}, 1.0, v{vFB}
        s_waitcnt lgkmcnt(0)
        v_pk_add_f32 {v(R,2)}, {v(R,2)}, {v(R+2,2)}
        v_pk_add_f32 {v(R+4,2)}, {v(R+4,2)}, {v(R+6,2)}
        v_add_f32 v{R}, v{R}, v{R+1}
        v_add_f32 v{R+4}, v{R+4}, v{R+5}
        v_add_f32 v{R+4}, v{R+4}, v{vB2}
        v_mul_f32 v{R+4}, v{t0}, v{R+4}
        v_fma_f32 v{R}, v{vFB}, v{R}, v{R+4}
        v_cvt_pk_bf16_f32 v{R}, v{R}, v{R}
        buffer_store_short v{R}, v{vOA}, {OUT}, 0 offen
        s_cmp_lg_u32 s{sA}, 0
        s_cbranch_scc1 L_A_exit
        s_mov_b64 exec, 1
        buffer_store_dwordx2 {v(vTag,2)}, v{vA_l16}, {WS}, 0 offen offset:{EPOCH} sc1
        """)
        if opt.get("probe") is not None:
            i = opt["probe"]
            g.stamp(13)
            g("s_waitcnt lgkmcnt(0)")
            g(f"s_sub_u32 s{sO}, s{70+2*i}, s70")
            g(f"s_lshl_b32 s{sO}, s{sO}, 2")
            if opt.get("dcount"):
                g(f"""
                s_load_dwordx2 s[32:33], s[0:1], 104
                s_mov_b32 s34, 256
                s_mov_b32 s35, 0x00020000
                v_mov_b32 v7, {4*(opt["dcount"]-1)}
                s_waitcnt lgkmcnt(0)
                buffer_load_dword v6, v7, s[32:35], 0 offen sc1
                s_waitcnt vmcnt(0)
                v_readfirstlane_b32 s{sO}, v6
                s_mul_i32 s{sO}, s{sO}, 50
                """)
            if opt.get("resid") is not None:
                g(f"""
                s_load_dwordx2 s[32:33], s[0:1], 104
                s_mov_b32 s34, 256
                s_mov_b32 s35, 0x00020000
                v_mov_b32 v7, 0
                s_waitcnt lgkmcnt(0)
                buffer_load_dwordx4 v[8:11], v7, s[32:35], 0 offen sc1
                s_waitcnt vmcnt(0)
                v_add3_u32 v6, v8, v9, v10
                v_add_u32 v6, v6, v11
                s_nop 1
                v_readfirstlane_b32 s{sO}, v6
                s_mul_i32 s{sO}, s{sO}, 50
                """)
            g(f"s_add_u32 s{sO}, s{sO}, 4000")
            g.lab("L_probe")
            g(f"s_memrealtime s[{sTMP}:{sTMP+1}]")
            g("s_waitcnt lgkmcnt(0)")
            g(f"s_sub_u32 s{sTMP}, s{sTMP}, s70")
            g(f"s_cmp_lt_u32 s{sTMP}, s{sO}")
            g("s_cbranch_scc1 L_probe")
            g("s_endpgm")
        g.lab("L_A_exit")
        g.stamp(13)
        dump_stamps(g, 16, 216)
        g("s_endpgm")
        if pB:
            g.lab("L_A_h0poll")
            spin_guard(g, "L_A_h0done")
            g("s_branch L_A_h0get")
        else:
            g.lab("L_A_h0poll")
            spin_guard(g, "L_A_h0done")
            g(f"s_cmp_lg_u32 s{sCNT}, 8")
            g("s_cbranch_scc1 L_A_h0ns")
            h0_wt()
            g.lab("L_A_h0ns")
            dual_next(g, sib[1:])
            h0loads()
            g("s_waitcnt vmcnt(0)")
            g("s_branch L_A_h0chk")
        g.lab("L_A_oslow")
        spin_guard(g, "L_A_ook")
        oget()
        g("s_waitcnt vmcnt(0)")
        g("s_branch L_A_ocomb")
        g.lab("L_A_hbpoll")
        spin_guard(g, "L_A_hbdone")
        g(f"s_cmp_lg_u32 s{sCNT}, 8")
        g("s_cbranch_scc1 L_A_hbns")
        hb_wt()
        g.lab("L_A_hbns")
        dual_next(g, [sO3])
        g("s_branch L_A_hbld")
        g.lab("L_A_r0slow")
        spin_guard(g, "L_A_r0ok")
        rget(0)
        g("s_branch L_A_r0sum")
        g.lab("L_A_r1slow")
        spin_guard(g, "L_A_r1ok")
        rget(1)
        rsum(1, [3, 2, 1, 0])
        g("s_cbranch_vccnz L_A_r1slow")
        rfin(1)
        g("s_branch L_A_r1ok")

class RoleB:
    def __init__(self, g, NT, vL, vN, vG):
        self.g, self.NT, self.vL, self.vN, self.vG = g, NT, vL, vN, vG

    def issue(self):
        g, vL = self.g, self.vL
        if g.opt.get("p1a_on") == "B":
            vN, vG, NT = self.vN, self.vG, self.NT
            srd_tail(g, 12, 576 * 8192)
            srd_tail(g, 8, 2304)
            g(f"""
            s_lshr_b32 s{sC}, s{sI}, 2
            s_lshl_b32 s{sC}, s{sC}, 3
            s_add_u32 s{sC}, s{sC}, s{sXCD}
            s_and_b32 s{sO}, s{sI}, 3
            v_mul_u32_u24 v5, {36*8192}, v{vG}
            v_lshl_add_u32 v5, v{vN}, 4, v5
            s_lshl_b32 s{sO2}, s{sO}, 4
            s_add_u32 s{sO2}, s{sO2}, s{sW}
            s_mul_i32 s{sO2}, s{sO2}, 9
            s_lshl_b32 s{sO3}, s{sO2}, 13
            s_lshl_b32 s{sTMP}, s{sC}, 8
            s_add_u32 s{sO3}, s{sO3}, s{sTMP}
            v_bfe_u32 v4, v{vL}, 3, 1
            v_mul_u32_u24 v4, 1152, v4
            v_mad_u32_u24 v4, v{vG}, 64, v4
            v_lshl_add_u32 v4, v{vG}, 3, v4
            s_lshr_b32 s{sO2}, s{sO2}, 1
            s_lshl_b32 s{sO2}, s{sO2}, 2
            s_waitcnt lgkmcnt(0)
            buffer_load_dwordx4 v[64:67], v4, {X}, s{sO2} offen
            buffer_load_dword v68, v4, {X}, s{sO2} offen offset:16
            """)
            for i in range(9):
                g(f"buffer_load_dwordx4 {A(4*i,4)}, v5, s[12:15], s{sO3} offen {NT}")
                if i != 8: g(f"s_addk_i32 s{sO3}, 0x2000")
            load_tag(g)
            g(f"""
            s_lshl_b32 s{sC}, s{sC}, 2
            s_add_u32 s{sC}, s{sC}, s{sO}
            s_lshl_b32 s{sC}, s{sC}, 10
            s_add_u32 s{sC}, s{sC}, {H0}
            """)
            return
        if g.opt.get("numa"):
            PFL = g.opt.get("pf_lines", 4)
            srd_tail(g, 28, 2 * 4096 * 1024)
            g(f"""
            s_and_b32 s{sMSG}, s{sXCD}, 1
            s_lshl_b32 s{sMSG}, s{sMSG}, 4
            s_and_b32 s{sO3}, s{sI}, 14
            s_add_u32 s{sMSG}, s{sMSG}, s{sO3}
            s_bfe_u32 s{sO3}, s{sXCD}, 0x10001
            s_add_u32 s{sMSG}, s{sMSG}, s{sO3}
            s_lshl_b32 s{sO3}, s{sMSG}, 18
            s_and_b32 s{sC}, s{sI}, 1
            s_lshl_b32 s{sC}, s{sC}, 8
            s_add_u32 s{sO3}, s{sO3}, s{sC}
            s_add_u32 s{sC}, s{sO3}, 0x2000
            v_lshlrev_b32 v4, 7, v{vL}
            s_waitcnt lgkmcnt(0)
            s_cmp_lg_u32 s{sW}, 3
            s_cbranch_scc1 L_B_nopr
            {"s_memtime s[16:17]" if g.opt.get("dcount") else ""}
            {"s_waitcnt lgkmcnt(0)" if g.opt.get("dcount") else ""}
            s_mov_b64 exec, {(1 << g.opt.get("plines", 1)) - 1}
            {"v_lshlrev_b32 v8, 14, v1" if g.opt.get("plines", 1) > 1 else "v_mov_b32 v8, 0"}
            buffer_load_dword v60, v8, s[28:31], s{sO3} offen
            buffer_load_dword v61, v8, s[28:31], s{sC} offen
            s_mul_i32 s{sTMP}, s{sI}, {2*PFL*128}
            s_mov_b64 exec, {(1 << (2*PFL)) - 1}
            v_add_u32 v5, s{sTMP}, v4
            global_load_dword v63, v5, s[{sPC}:{sPC+1}]
            s_lshr_b32 s{sO}, s{sI}, 2
            s_lshl_b32 s{sO}, s{sO}, 3
            s_add_u32 s{sO}, s{sO}, s{sXCD}
            s_lshl_b32 s{sO}, s{sO}, 2
            s_and_b32 s{sO2}, s{sI}, 3
            s_add_u32 s{sO}, s{sO}, s{sO2}
            s_lshl_b32 s{sO2}, s{sO}, 11
            s_add_u32 s{sO2}, s{sO2}, {H0+LOC}
            s_mov_b64 exec, 0xffff
            buffer_load_dword v62, v4, {WS}, s{sO2} offen
            s_lshl_b32 s{sO}, s{sO}, 10
            s_add_u32 s{sO2}, s{sO}, {HB+LOC}
            s_mov_b64 exec, 0xff
            buffer_load_dword v62, v4, {WS}, s{sO2} offen
            s_add_u32 s{sO2}, s{sO}, {D3}
            buffer_load_dword v62, v4, {WS}, s{sO2} offen
            s_mov_b64 exec, -1
            s_waitcnt vmcnt(5)
            s_memtime s[34:35]
            s_waitcnt vmcnt(4)
            s_memtime s[38:39]
            s_waitcnt lgkmcnt(0)
            s_sub_u32 s38, s38, s34
            s_cmp_lt_u32 s38, {g.opt.get("gap", 100)}
            s_cselect_b32 s{sO3}, 1, 0
            v_mov_b32 v6, s{sO3}
            v_mov_b32 v7, {B_PHI}
            ds_write_b32 v7, v6
            s_waitcnt lgkmcnt(0)
            """)
            if g.opt.get("stamps"): g("s_mov_b32 s88, s38")
            if g.opt.get("dcount"):
                g(f"""
                s_load_dwordx2 s[20:21], s[0:1], 104
                s_mov_b32 s22, 256
                s_mov_b32 s23, 0x00020000
                s_sub_u32 s16, s34, s16
                s_lshr_b32 s16, s16, 8
                s_min_u32 s16, s16, 7
                s_lshl_b32 s16, s16, 2
                s_lshr_b32 s17, s38, 6
                s_min_u32 s17, s17, 6
                s_lshl_b32 s17, s17, 2
                s_add_u32 s17, s17, 32
                v_mov_b32 v6, 1
                v_mov_b32 v7, 0
                s_waitcnt lgkmcnt(0)
                s_mov_b64 exec, 1
                buffer_atomic_add v6, v7, s[20:23], s16 offen sc1
                buffer_atomic_add v6, v7, s[20:23], s17 offen sc1
                s_mov_b64 exec, -1
                """)
            g.lab("L_B_nopr")
            return
        g(f"""
        s_lshr_b32 s{sO}, s{sI}, 2
        s_lshl_b32 s{sO}, s{sO}, 3
        s_add_u32 s{sO}, s{sO}, s{sXCD}
        s_lshl_b32 s{sO}, s{sO}, 2
        s_and_b32 s{sO2}, s{sI}, 3
        s_add_u32 s{sO}, s{sO}, s{sO2}
        s_lshl_b32 s{sO2}, s{sO}, 11
        s_add_u32 s{sO2}, s{sO2}, {H0+LOC}
        s_lshl_b32 s{sO}, s{sO}, 10
        s_add_u32 s{sO}, s{sO}, {HB+LOC}
        s_cmp_eq_u32 s{sW}, 1
        s_cselect_b32 s{sO}, s{sO}, s{sO2}
        s_lshl_b32 s{sO2}, s{sXCD}, 4
        s_add_u32 s{sO2}, s{sO2}, s{sI}
        s_lshl_b32 s{sO2}, s{sO2}, 10
        s_add_u32 s{sO2}, s{sO2}, {D3}
        s_cmp_eq_u32 s{sW}, 2
        s_cselect_b32 s{sO}, s{sO2}, s{sO}
        s_cselect_b32 s{sTMP}, 0xff, -1
        s_and_b32 s{sTMP}, s{sTMP}, 0xffff
        s_mov_b32 s{sTMP+1}, 0
        v_lshlrev_b32 v4, 7, v{vL}
        """)
        g("s_waitcnt lgkmcnt(0)")
        load_tag(g)
        g(f"""
        {"s_cmp_lg_u32" if g.opt.get("split") else "s_cmp_gt_u32"} s{sW}, 2
        s_cbranch_scc1 L_B_head
        s_mov_b64 exec, s[{sTMP}:{sTMP+1}]
        buffer_load_dword v62, v4, {WS}, s{sO} offen
        s_mov_b64 exec, -1
        """)

    def rest(self):
        g, NT, vL, vN, vG = self.g, self.NT, self.vL, self.vN, self.vG
        opt = g.opt
        CKV, W2, B1, W1 = "s[28:31]", "s[20:23]", "s[24:27]", "s[16:19]"
        t0, t1, t2, t3 = 4, 5, 6, 7
        vL16 = 12
        vOa = 13
        vH3, vH3x = 14, 15
        vB1 = 22
        vSB = 24
        vQBs = 28
        vPVb = 16
        vTag = 36
        vML = 34
        vMXw, vMXr = 38, 39
        vD2a = 40
        vPw = 41
        vP2 = 42
        vT20, vT21, vK20, vK21 = 52, 53, 54, 55
        vHg, vHw = 56, 57
        vHe, vHo, vHke, vHko = 58, 59, 60, 61
        vQd = 8
        aS, aP = 0, 128
        sOo = 61
        sH3m, sH3l = 62, 63
        sD2, sGot = 59, 58
        sBP, sTT = 34, sPC
        sQg = 33
        sPat, sMk = 32, 36
        srd_tail(g, 28, 2 * 4096 * 1024)
        vW1, vW2 = 168, 212
        vXr = 64
        vSel = 88
        vXA = 96
        vW1a, vHs = 164, 165
        sRho, sBlk, sR0 = 38, 39, 56
        numa = opt.get("numa", 0)
        sCk = 37
        if numa:
            assert not opt.get("ckv_x", 1)
            sPhi, sDP = 38, 18
            def ckv_base():
                g(f"""
                s_lshl_b32 s{sCk}, s{sMSG}, 2
                s_add_u32 s{sCk}, s{sCk}, s{sW}
                s_lshl_b32 s{sCk}, s{sCk}, 3
                s_add_u32 s{sCk}, s{sCk}, s{sPhi}
                s_lshl_b32 s{sCk}, s{sCk}, 13
                s_lshl_b32 m0, s{sW}, 15
                s_add_u32 m0, m0, {B_CKV}
                """)
            def phi_get():
                g(f"""
                v_mov_b32 v{t0}, {B_PHI}
                s_barrier
                ds_read_b32 v{t1}, v{t0}
                s_waitcnt lgkmcnt(0)
                v_readfirstlane_b32 s{sPhi}, v{t1}
                """)
                if opt.get("numa_force") is not None: g(f"s_xor_b32 s{sPhi}, s{sPhi}, {opt['numa_force']}")
                ckv_base()
            g(f"s_and_b32 s{sB}, s{sXCD}, 1")
            g(f"v_lshlrev_b32 v{vL16}, 4, v{vL}")
            phi_get()
            load_tag(g)
        else:
            g(f"""
            s_and_b32 s{sB}, s{sXCD}, 1
            s_lshr_b32 s{sMSG}, s{sI}, 1
            s_lshl_b32 s{sMSG}, s{sMSG}, 2
            s_lshr_b32 s{sO}, s{sXCD}, 1
            s_add_u32 s{sMSG}, s{sMSG}, s{sO}
            s_lshl_b32 s{sO}, s{sB}, 5
            s_add_u32 s{sMSG}, s{sMSG}, s{sO}
            v_lshlrev_b32 v{vL16}, 4, v{vL}
            """)
            sCk = 37
            g(f"""
            s_lshl_b32 s{sCk}, s{sMSG}, 2
            s_add_u32 s{sCk}, s{sCk}, s{sW}
            s_lshl_b32 s{sCk}, s{sCk}, 15
            s_lshl_b32 m0, s{sW}, 15
            s_add_u32 m0, m0, {B_CKV}
            """)
            if opt.get("ckv_x", 1):
                g(f"s_and_b32 s{sGot}, s{sI}, 1")
                g(f"s_lshl_b32 s{sGot}, s{sGot}, 14")
                g(f"s_add_u32 s{sCk}, s{sCk}, s{sGot}")
                g(f"s_lshl_b32 s{sGot}, s{sGot}, 1")
        def ckv_stream(k0, k1):
            thr = opt.get("ckv_thr")
            for k in range(k0, k1):
                f = f16sw(k & 15)
                tmp = t0 + (k & 1)
                g(f"v_xor_b32 v{tmp}, {f*16}, v{vL16}")
                if thr is not None: g(f"s_waitcnt vmcnt({thr-1})")
                g(f"buffer_load_dwordx4 v{tmp}, {CKV}, s{sCk} offen offset:{(k%4)*1024} {NT} lds")
                if k % 4 == 3:
                    g(f"s_addk_i32 s{sCk}, {0x3000 if (numa and k % 8 == 7) else 0x1000}")
                    g(f"s_add_u32 m0, m0, 0x1000")
                if k == 15 and opt.get("ckv_x", 1): g(f"s_sub_u32 s{sCk}, s{sCk}, s{sGot}")
        c1_, c2_ = opt.get("ckv_a", 0), opt.get("ckv_b", 0)
        g.stamp(13)
        ckv_stream(0, c1_)
        g.l.append(";;SPLIT")
        pB = opt.get("p1a_on") == "B"
        if pB:
            vX, vSl, vF, vQp = 64, 72, 80, 116
            selectors(g, vSl, vL, t0, t1, t2)
            g(f"s_and_b32 s{sO}, s{sW}, 1")
            g(f"s_lshl_b32 s{sO}, s{sO}, 4")
            g(f"""
            s_cmp_lg_u32 s{sW}, 2
            s_cbranch_scc1 L_B_nt
            s_lshl_b32 s{sO2}, s{sXCD}, 4
            s_add_u32 s{sO2}, s{sO2}, s{sI}
            s_lshl_b32 s{sO2}, s{sO2}, 10
            s_add_u32 s{sO2}, s{sO2}, {D3}
            v_lshlrev_b32 v{t0}, 7, v{vL}
            s_mov_b64 exec, 0xff
            buffer_load_dword v62, v{t0}, {WS}, s{sO2} offen
            s_mov_b64 exec, -1
            """)
            g.lab("L_B_nt")
            g(f"s_waitcnt vmcnt({9+c1_})")
            for k in range(5):
                g(f"v_alignbit_b32 v{vX+k}, v{vX+k+1}, v{vX+k}, s{sO}")
            for i in range(9):
                for d in range(4):
                    g(f"v_perm_b32 v{vF+4*i+d}, v{vX+(i>>1)}, v{vX+(i>>1)}, v{vSl+4*(i&1)+d}")
            cm = opt.get("ckv_m", 0)
            c0 = c1_
            for i in range(9):
                g(f"s_waitcnt vmcnt({8-i+c1_})")
                g(f"{MF} {v(vQp,4)}, {v(vF+4*i,4)}, {A(4*i,4)}, {'0' if i == 0 else v(vQp,4)}")
                if i >= 9 - cm:
                    ckv_stream(c1_, c1_ + 1); c1_ += 1
            g(f"s_cmp_eq_u32 s{sW}, 0")
            g("s_cbranch_scc1 L_B_w0a")
            g(f"v_lshl_add_u32 v{t2}, s{sW}, 10, v{vL16}")
            g(f"ds_write_b128 v{t2}, {v(vQp,4)} offset:{B_PB}")
            g("s_waitcnt lgkmcnt(0)")
            g("s_barrier")
            g("s_branch L_B_w0b")
            g.lab("L_B_w0a")
            g("s_waitcnt lgkmcnt(0)")
            g(f"s_add_u32 s{sO}, s{sT}, {K0}")
            g(f"s_and_b32 s{sO}, s{sO}, 15")
            g("s_barrier")
            for k in range(3):
                g(f"ds_read_b128 {v(vF+4*k,4)}, v{vL16} offset:{B_PB+(k+1)*1024}")
            g("s_waitcnt lgkmcnt(1)")
            g(f"v_pk_add_f32 {v(vQp,2)}, {v(vQp,2)}, {v(vF,2)}")
            g(f"v_pk_add_f32 {v(vQp+2,2)}, {v(vQp+2,2)}, {v(vF+2,2)}")
            g("s_waitcnt lgkmcnt(0)")
            g(f"v_pk_add_f32 {v(vF+4,2)}, {v(vF+4,2)}, {v(vF+8,2)}")
            g(f"v_pk_add_f32 {v(vF+6,2)}, {v(vF+6,2)}, {v(vF+10,2)}")
            g(f"v_pk_add_f32 {v(vQp,2)}, {v(vQp,2)}, {v(vF+4,2)}")
            g(f"v_pk_add_f32 {v(vQp+2,2)}, {v(vQp+2,2)}, {v(vF+6,2)}")
            for r in range(4):
                g(f"v_and_or_b32 v{vQp+r}, v{vQp+r}, -16, s{sO}")
            g(f"buffer_store_dwordx4 {v(vQp,4)}, v{vL16}, {WS}, s{sC} offen sc1")
            g.lab("L_B_w0b")
            g.stamp(9)
            cq = opt.get("ckv_q", 0)
            ckv_stream(c1_, c1_ + cq); c1_ += cq
        srd(g, 20, 9, 4608 * 1152)
        srd(g, 24, 8, 9216)
        if opt.get("w1_on") == "B":
            srd(g, 16, 7, 576 * 9216)
            srd_tail(g, 8, 2304)
        g(f"""
        s_and_b32 s{sHG}, s{sI}, 1
        s_lshl_b32 s{sU2}, s{sXCD}, 4
        s_add_u32 s{sU2}, s{sU2}, s{sI}
        s_mov_b32 s{sPR}, s{sU2}
        s_mov_b32 s{sPOI}, {POISON}
        v_mul_u32_u24 v{vOa}, {16*OSTR}, v{vG}
        v_lshl_add_u32 v{vOa}, v{vN}, 4, v{vOa}
        """)
        def msg_addr():
            g(f"""
        s_lshl_b32 s{sOo}, s{sHG}, 6
        s_add_u32 s{sOo}, s{sOo}, s{sW}
        s_mul_i32 s{sOo}, s{sOo}, {OSTR}
        s_lshl_b32 s{sO}, s{sMSG}, 8
        s_add_u32 s{sOo}, s{sOo}, s{sO}
        s_add_u32 s{sOo}, s{sOo}, {OB}
        s_lshl_b32 s{sD2}, s{sHG}, 6
        s_add_u32 s{sD2}, s{sD2}, s{sMSG}
        s_lshl_b32 s{sD2}, s{sD2}, 8
        s_add_u32 s{sD2}, s{sD2}, {D2}
            """)
        if not numa: msg_addr()
        h3_addr(g, vH3, vH3x, vL, vN, vG, t0)
        h3_soffs(g, sH3m, sH3l)
        def fsw(dst, src, tmp):
            g(f"v_lshrrev_b32 v{tmp}, 3, v{src}")
            g(f"v_and_b32 v{dst}, 7, v{src}")
            g(f"v_lshl_add_u32 v{dst}, v{dst}, 1, v{tmp}")
            g(f"v_lshlrev_b32 v{tmp}, 3, v{tmp}")
            g(f"v_xor_b32 v{dst}, v{dst}, v{tmp}")
        fsw(t2, vN, t3)
        g(f"""
        v_xor_b32 v{t2}, v{t2}, v{vG}
        v_lshlrev_b32 v{t2}, 4, v{t2}
        v_lshl_add_u32 v{t2}, v{vN}, 10, v{t2}
        s_lshl_b32 s{sO}, s{sW}, 15
        s_add_u32 s{sO}, s{sO}, {B_CKV}
        """)
        assert B_QF == 0
        for q in range(4):
            g(f"v_xor_b32 v{vQBs+q}, {q*64}, v{t2}")
            g(f"v_add_u32 v{vSB+q}, s{sO}, v{vQBs+q}")
        g(f"v_lshrrev_b32 v{t0}, 2, v{vL}")
        fsw(t2, t0, t3)
        g(f"""
        v_bfe_u32 v{t3}, v{vL}, 1, 1
        v_xor_b32 v{t2}, v{t2}, v{t3}
        v_lshlrev_b32 v{t1}, 10, v{t0}
        v_lshl_add_u32 v{t1}, v{t2}, 4, v{t1}
        v_and_b32 v{t3}, 1, v{vL}
        v_lshl_add_u32 v{t1}, v{t3}, 3, v{t1}
        v_lshl_add_u32 v{t1}, s{sW}, 8, v{t1}
        """)
        for k in range(4):
            g(f"s_add_u32 s{sO}, s{sW}, {k}")
            g(f"s_and_b32 s{sO}, s{sO}, 3")
            g(f"v_lshl_add_u32 v{[vPw,20,21,23][k]}, s{sO}, 10, v{vL16}")
            g(f"s_lshl_b32 s{sO}, s{sO}, 15")
            g(f"s_add_u32 s{sO}, s{sO}, {B_CKV}")
            g(f"v_add_u32 v{vPVb+k}, s{sO}, v{t1}")
        for k in range(opt.get("pv_pre", 4), 4):
            for ct in range(8):
                g(f"v_xor_b32 v{168+8*k+ct}, {ct<<5}, v{vPVb+k}")
        g(f"""
        v_lshlrev_b32 v{vMXr}, 4, v{vN}
        v_lshl_add_u32 v{vMXw}, v{vG}, 2, v{vMXr}
        v_lshl_add_u32 v{vMXw}, s{sW}, 8, v{vMXw}
        s_lshl_b32 s{sQg}, s{sB}, 1
        s_add_u32 s{sQg}, s{sQg}, s{sHG}
        s_lshl_b32 s{sQg}, s{sQg}, 2
        s_add_u32 s{sQg}, s{sQg}, s{sW}
        s_lshl_b32 s{sQg}, s{sQg}, 12
        s_add_u32 s{sQg}, s{sQg}, {QB}
        s_lshr_b32 s{sTMP}, s{sW}, 1
        s_xor_b32 s{sTMP+1}, s{sW}, s{sTMP}
        s_and_b32 s{sTMP+1}, s{sTMP+1}, 1
        s_lshl_b32 s{sTMP+1}, s{sTMP+1}, 3
        s_add_u32 s{sTMP}, s{sTMP}, s{sTMP+1}
        s_lshl_b32 s{sTMP}, s{sTMP}, 4
        v_xor_b32 v{vQd}, s{sTMP}, v{vL16}
        v_xor_b32 v{vQd+1}, 32, v{vQd}
        v_xor_b32 v{vQd+2}, 64, v{vQd}
        v_xor_b32 v{vQd+3}, 0x60, v{vQd}
        v_mov_b32 v{t0}, 0
        v_lshlrev_b32 v{t1}, 2, v{vL}
        s_mov_b32 exec_hi, 0
        ds_write_b32 v{t1}, v{t0} offset:{B_ZERO}
        s_mov_b64 exec, -1
        s_lshl_b32 s{sTMP}, s{sXCD}, 3
        s_lshl_b32 s{sTMP+1}, s{sHG}, 2
        s_add_u32 s{sTMP}, s{sTMP}, s{sTMP+1}
        s_add_u32 s{sTMP}, s{sTMP}, s{sW}
        s_lshl_b32 s{sTMP}, s{sTMP}, 9
        s_add_u32 s{sTMP}, s{sTMP}, {D1}
        s_add_u32 s{sBP}, s4, s{sTMP}
        s_addc_u32 s{sBP+1}, s5, 0
        """)
        if not numa: g.stamp(14)
        ckv_stream(c1_, c1_ + c2_)
        for i in range(10):
            unit_pattern(g, vP2 + i, vL, sW if i == 9 else None, i, 1152, t0, t1)
        tr_pair_bases(g, vT20, vT21, vK20, vK21, vL, B_W2, t0, t1, t2)
        g(f"""
        v_bfe_u32 v{t0}, v{vL}, 2, 1
        v_lshlrev_b32 v{t0}, 7, v{t0}
        v_add_u32 v{t0}, {B_HL}, v{t0}
        v_lshl_add_u32 v{t1}, v{vG}, 3, v{t0}
        v_add_u32 v{t0}, 64, v{t0}
        v_mov_b32 v{t2}, {B_ZERO}
        v_cmp_gt_u32 vcc, 8, v{vN}
        v_cndmask_b32 v{vHe}, v{t2}, v{t1}, vcc
        v_cndmask_b32 v{vHo}, v{t1}, v{t2}, vcc
        v_lshrrev_b32 v{t1}, 3, v{vL}
        v_cmp_eq_u32 vcc, 0, v{t1}
        v_cndmask_b32 v{vHke}, v{t2}, v{t0}, vcc
        v_cmp_eq_u32 vcc, 1, v{t1}
        v_cndmask_b32 v{vHko}, v{t2}, v{t0}, vcc
        """)
        finish_tag(g)
        g(f"""
        v_mov_b32 v{vTag}, s{sT}
        v_mov_b32 v{vTag+1}, s{sT+1}
        s_bitcmp1_b32 s{sT}, 0
        s_cselect_b32 s{sPat}, 1, 0x10000
        v_mov_b32 v{vML+1}, s{sPat}
        s_mov_b32 s{sMk}, 0xfffefffe
        s_mov_b32 s{sTT}, s{sT}
        s_mov_b32 s{sTT+1}, s{sT}
        """)
        vPat = 33
        g(f"v_mov_b32 v{vPat}, s{sPat}")
        w1b = opt.get('w1_on') == 'B'
        if w1b:
            g(f"""
            s_lshl_b32 s{sO}, s{sU2}, 2
            s_add_u32 s{sO}, s{sO}, s{sW}
            s_mul_i32 s{sRho}, s{sO}, 1821
            s_lshr_b32 s{sRho}, s{sRho}, 16
            s_mul_i32 s{sTMP}, s{sRho}, 36
            s_sub_u32 s{sBlk}, s{sO}, s{sTMP}
            s_min_u32 s{sTMP}, s{sRho}, 4
            s_mul_i32 s{sR0}, s{sRho}, 10
            s_add_u32 s{sR0}, s{sR0}, s{sTMP}
            s_lshl_b32 s{sR0}, s{sR0}, 2
            v_bfe_u32 v{t0}, v{vL}, 3, 1
            v_mul_u32_u24 v{t0}, 1152, v{t0}
            s_lshl_b32 s{sO}, s{sR0}, 1
            """)
            assert all((i * 1821) >> 16 == i // 36 for i in range(512))
            for k in range(5):
                g(f"buffer_load_dwordx4 {v(vXr+4*k,4)}, v{t0}, {X}, s{sO} offen offset:{16*k}")
            g(f"buffer_load_dwordx2 {v(vXr+20,2)}, v{t0}, {X}, s{sO} offen offset:80")
            g(f"""
            v_mul_u32_u24 v{vW1a}, 9216, v{vG}
            v_lshl_add_u32 v{vW1a}, v{vN}, 4, v{vW1a}
            v_lshrrev_b32 v{t0}, 5, v{vL}
            v_mul_u32_u24 v{vHs}, 18432, v{t0}
            v_and_b32 v{t0}, 31, v{vL}
            v_lshl_add_u32 v{vHs}, v{t0}, 4, v{vHs}
            v_mul_u32_u24 v{t0}, 0x0202, v{vG}
            v_add_u32 v{t0}, 0x0100, v{t0}
            v_and_b32 v{t1}, 1, v{vL}
            v_lshlrev_b32 v{t1}, 4, v{t1}
            v_lshlrev_b32 v{t0}, v{t1}, v{t0}
            v_mov_b32 v{t2}, 0x0c0c0000
            v_lshrrev_b32 v{t2}, v{t1}, v{t2}
            v_or_b32 v{t0}, v{t0}, v{t2}
            v_bfe_u32 v{t1}, v{vL}, 1, 2
            v_mov_b32 v{t2}, 0x0c0c0c0c
            """)
            for d in range(4):
                g(f"v_cmp_eq_u32 vcc, {d}, v{t1}")
                g(f"v_cndmask_b32 v{vSel+d}, v{t2}, v{t0}, vcc")
        g(f"""
        v_lshrrev_b32 v{t0}, 5, v{vL}
        v_bfe_u32 v{t1}, v{vL}, 4, 1
        v_lshl_add_u32 v{t0}, v{t1}, 1, v{t0}
        v_lshl_add_u32 v{t0}, v{vN}, 2, v{t0}
        v_lshlrev_b32 v{t0}, 1, v{t0}
        s_mul_i32 s{sO}, s{sU2}, 72
        buffer_load_ushort v{vB1}, v{t0}, {B1}, s{sO} offen
        v_lshl_add_u32 v{vHw}, s{sW}, 7, v{t0}
        s_mul_i32 s{sO}, s{sU2}, 9
        v_add_u32 v{t0}, s{sO}, v{vN}
        v_and_b32 v{t1}, 1, v{t0}
        v_lshlrev_b32 v{t1}, 8, v{t1}
        v_bfe_u32 v{t2}, v{t0}, 1, 4
        v_lshl_add_u32 v{t1}, v{t2}, 4, v{t1}
        v_lshrrev_b32 v{t2}, 5, v{t0}
        v_lshl_add_u32 v{t1}, v{t2}, 9, v{t1}
        v_mul_u32_u24 v{vHg}, 36864, v{vG}
        v_add_u32 v{vHg}, v{vHg}, v{t1}
        """)
        for k in range(4):
            g(f"s_load_dwordx4 s[{[8,12,24,52][k]}:{[8,12,24,52][k]+3}], s[{sBP}:{sBP+1}], {k*128} glc")
        assert c1_ + c2_ <= 16
        if opt.get("b_sleep"): g(f"s_sleep {opt['b_sleep']}")
        if numa:
            g(f"""
            s_lshl_b32 s{sO}, s{sMSG}, 1
            s_add_u32 s{sO}, s{sO}, s{sHG}
            s_lshl_b32 s{sO}, s{sO}, 7
            s_add_u32 s{sO}, s{sO}, {DP}
            s_add_u32 s{sDP}, s4, s{sO}
            s_addc_u32 s{sDP+1}, s5, 0
            s_lshr_b32 s{sTMP}, s{sXCD}, 2
            s_or_b32 s{sTMP}, s{sTMP}, s{sW}
            s_cmp_lg_u32 s{sTMP}, 0
            s_cbranch_scc1 L_B_noann
            s_xor_b32 s{sTMP}, s{sT+1}, s{sPhi}
            v_mov_b32 v{t0}, s{sT}
            v_mov_b32 v{t1}, s{sTMP}
            v_lshlrev_b32 v{t2}, 3, v{vL}
            s_mov_b64 exec, 0xffff
            buffer_store_dwordx2 {v(t0,2)}, v{t2}, {WS}, s{sO} offen sc1
            s_mov_b64 exec, -1
            """)
            g.lab("L_B_noann")
        g.stamp(8)
        ckv_stream(c1_ + c2_, 32)
        if numa:
            g(f"""
            s_cmp_lt_u32 s{sXCD}, 4
            s_cbranch_scc1 L_B_phok
            s_mov_b32 s{sCNT}, 0
            """)
            g.lab("L_B_phpoll")
            g(f"s_load_dwordx2 s[16:17], s[{sDP}:{sDP+1}], 0 glc")
            spin_guard(g, "L_B_phok")
            g(f"""
            s_waitcnt lgkmcnt(0)
            s_xor_b64 s[16:17], s[16:17], s[{sT}:{sT+1}]
            s_lshr_b32 s{sTMP}, s17, 1
            s_or_b32 s{sTMP}, s{sTMP}, s16
            s_cbranch_scc1 L_B_phpoll
            s_cmp_lg_u32 s17, s{sPhi}
            s_cbranch_scc1 L_B_phok
            s_branch L_B_refetch
            """)
            g.lab("L_B_phok")
            g(f"s_lshl_b32 s{sMSG}, s{sMSG}, 1")
            g(f"s_add_u32 s{sMSG}, s{sMSG}, s{sPhi}")
            msg_addr()
            if opt.get("stamps"): g(f"s_mov_b32 s98, s{sPhi}")
        NW1 = 0 if "w1" in opt.get("skip", "") else 11
        w1pos = opt.get("w1_pos", 0)
        def w1_stream():
            if "w1" in opt.get("skip", ""): return
            g(f"s_mul_i32 s{sO2}, s{sR0}, 9216")
            g(f"s_lshl_b32 s{sO3}, s{sBlk}, 8")
            g(f"s_add_u32 s{sO2}, s{sO2}, s{sO3}")
            for i in range(11):
                g(f"buffer_load_dwordx4 {v(vW1+4*i,4)}, v{vW1a}, {W1}, s{sO2} offen {NT}")
                if i < 10: g(f"s_add_u32 s{sO2}, s{sO2}, {4*9216}")
                if i == 9:
                    g(f"s_cmp_ge_u32 s{sRho}, 4")
                    g(f"s_cselect_b32 s{sO2}, {576*9216}, s{sO2}")
        def w1_gemv(store=True):
            vH = 140
            for i in range(10):
                g(f"{MF} {v(vH,4)}, {v(vXA+4*i,4)}, {v(vW1+4*i,4)}, {'0' if i == 0 else v(vH,4)}")
            g(f"s_cmp_ge_u32 s{sRho}, 4")
            g("s_cbranch_scc1 L_B_w1s")
            g(f"{MF} {v(vH,4)}, {v(vXA+40,4)}, {v(vW1+40,4)}, {v(vH,4)}")
            g.lab("L_B_w1s")
            g(f"""
            s_mul_i32 s{sO}, s{sRho}, 36864
            s_lshl_b32 s{sO3}, s{sBlk}, 9
            s_add_u32 s{sO}, s{sO}, s{sO3}
            s_add_u32 s{sO}, s{sO}, {HH}
            s_and_b32 s{sO3}, s{sT}, 15
            """)
            for r in range(4):
                g(f"v_and_or_b32 v{vH+r}, v{vH+r}, -16, s{sO3}")
            g(f"s_mov_b32 s{sR0}, s{sO}")
        def w2_stream():
            g(f"s_mul_i32 s{sO2}, s{sU2}, {36*1152}")
            unit_load(g, W2, vP2, None, sO2, 1152, "w2", NT, vdst=vW2, w0extra=False)
        NW1 = 0
        if w1b:
            assert opt.get("w2_pos", 0) != 2 and opt.get("pv_pre", 4) == 4
            w1_stream(); NW1 = 0 if "w1" in opt.get("skip", "") else 11
        if opt.get("w2_pos", 0) == 2:
            w2_stream(); NW1 = 0 if "w2" in opt.get("skip", "") else 11
        g.stamp(1)
        g(f"s_lshl_b32 m0, s{sW}, 12")
        sD = [8, 12, 24, 52]
        def d1poll():
            for k in range(4):
                g(f"s_load_dwordx4 s[{sD[k]}:{sD[k]+3}], s[{sBP}:{sBP+1}], {k*128} glc")
        def d1chk():
            for k in range(4):
                g(f"s_xor_b64 s[{sD[k]}:{sD[k]+1}], s[{sD[k]}:{sD[k]+1}], s[{sTT}:{sTT+1}]")
                g(f"s_xor_b64 s[{sD[k]+2}:{sD[k]+3}], s[{sD[k]+2}:{sD[k]+3}], s[{sTT}:{sTT+1}]")
                g(f"s_or_b64 s[{sD[k]}:{sD[k]+1}], s[{sD[k]}:{sD[k]+1}], s[{sD[k]+2}:{sD[k]+3}]")
            g("s_or_b64 s[8:9], s[8:9], s[12:13]")
            g("s_or_b64 s[24:25], s[24:25], s[52:53]")
            g("s_or_b64 s[8:9], s[8:9], s[24:25]")
        def qdma():
            for k in range(4):
                g(f"buffer_load_dwordx4 v{vQd+k}, {WS}, s{sQg} offen offset:{k*1024} sc1 lds")
        def look(tag):
            if tag[0] not in opt.get("looks", "abcd"): return
            g(f"s_cmp_lg_u32 s{sGot}, 0")
            g(f"s_cbranch_scc1 L_B_lk{tag}")
            g("s_waitcnt lgkmcnt(0)")
            d1chk()
            g(f"s_cbranch_scc1 L_B_lp{tag}")
            g.stamp(3)
            qdma()
            g(f"s_mov_b32 s{sGot}, 1")
            g(f"s_branch L_B_lk{tag}")
            g.lab(f"L_B_lp{tag}")
            d1poll()
            g.lab(f"L_B_lk{tag}")
        def pvgroup(k):
            for ct in range(8):
                tmp = t0 + (ct & 1)
                g(f"v_xor_b32 v{tmp}, {ct<<5}, v{vPVb+k}")
                for hi in range(2):
                    g(f"ds_read_b64_tr_b16 {A(aP+(ct*4+k)*4+2*hi,2)}, v{tmp} offset:{hi*16384}")
        npre = opt.get("pv_pre", 4)
        vPA = 168
        def pvrd(k, ct, hi):
            g(f"ds_read_b64_tr_b16 {A(aP+(ct*4+k)*4+2*hi,2)}, v{vPA+8*k+ct} offset:{hi*16384}")
        qd = opt.get("q_direct", 0)
        if qd:
            vQr = 140
            def qld():
                for k in range(4):
                    g(f"buffer_load_dwordx4 {v(vQr+4*k,4)}, v{vL16}, {WS}, s{sQg} offen offset:{k*1024} sc1")
            def qchk():
                g(f"v_cmp_eq_u32 vcc, s{sPOI}, v{vQr}")
                for k in range(1, 4):
                    g(f"v_cmp_eq_u32 s[{sM1}:{sM1+1}], s{sPOI}, v{vQr+4*k}")
                    g(f"s_or_b64 vcc, vcc, s[{sM1}:{sM1+1}]")
            g("s_waitcnt lgkmcnt(0)")
            g(f"s_mov_b32 s{sCNT}, 0")
            g.lab("L_B_rdy")
            d1poll()
            spin_guard(g, "L_B_rdy2")
            g("s_waitcnt lgkmcnt(0)")
            d1chk()
            g("s_cbranch_scc1 L_B_rdy")
            g.lab("L_B_rdy2")
            g(f"s_lshl_b32 s{sTMP}, s{sW}, 12")
            for k in range(4): g(f"v_add_u32 v{vQd+k}, s{sTMP}, v{vQd+k}")
            g(f"s_waitcnt vmcnt({16+NW1})")
            for ks in range(16):
                g(f"ds_read_b128 {A(aS+ks*4,4)}, v{vSB+(ks&3)} offset:{(ks>>2)*256}")
            g(f"s_waitcnt vmcnt({opt.get('q_at', 0)+NW1})")
            g.stamp(3)
            qld()
            g(f"s_waitcnt vmcnt({4+NW1})")
            g.stamp(2)
            for ks in range(16):
                g(f"ds_read_b128 {A(aS+64+ks*4,4)}, v{vSB+(ks&3)} offset:{16384+(ks>>2)*256}")
            g("s_barrier")
            g(f"s_mov_b32 s{sGot}, 0")
            half = opt.get("q_mid", 2)
            for k in range(npre):
                if k == half:
                    g("s_waitcnt vmcnt(0)")
                    qchk()
                    g("s_cbranch_scc0 L_B_qm")
                    qld()
                    g.lab("L_B_qm")
                pvgroup(k)
            g(f"s_mov_b32 s{sCNT}, 0")
            g.lab("L_B_qchk")
            g("s_waitcnt vmcnt(0)")
            qchk()
            g("s_cbranch_scc1 L_B_qagain")
            g.lab("L_B_qgood")
            if opt.get("stamps"): g(f"s_mov_b32 s100, s{sCNT}")
            for k in range(4):
                g(f"ds_write_b128 v{vQd+k}, {v(vQr+4*k,4)} offset:{k*1024}")
        else:
            g("s_waitcnt lgkmcnt(0)")
            if opt.get("looks", "abcd"): d1poll()
            g(f"s_mov_b32 s{sGot}, 0")
            g(f"s_waitcnt vmcnt({16+NW1})")
            for ks in range(16):
                g(f"ds_read_b128 {A(aS+ks*4,4)}, v{vSB+(ks&3)} offset:{(ks>>2)*256}")
            if w1b:
                for i in range(11):
                    for d in range(4):
                        g(f"v_perm_b32 v{vXA+4*i+d}, v{vXr+2*i+1}, v{vXr+2*i}, v{vSel+d}")
            for z in range(opt.get("b_looks", 2)): look(f"a{z}")
            g(f"s_cmp_lg_u32 s{sGot}, 0")
            g("s_cbranch_scc1 L_B_cw1")
            g(f"s_waitcnt vmcnt({NW1})")
            g.lab("L_B_cw1")
            g(f"s_waitcnt vmcnt({4+NW1})")
            g.stamp(2)
            look("b")
            for ks in range(16):
                g(f"ds_read_b128 {A(aS+64+ks*4,4)}, v{vSB+(ks&3)} offset:{16384+(ks>>2)*256}")
            g("s_barrier")
            def pvgroup(k):
                for ct in range(8):
                    tmp = t0 + (ct & 1)
                    g(f"v_xor_b32 v{tmp}, {ct<<5}, v{vPVb+k}")
                    for hi in range(2):
                        g(f"ds_read_b64_tr_b16 {A(aP+(ct*4+k)*4+2*hi,2)}, v{tmp} offset:{hi*16384}")
            npre = opt.get("pv_pre", 4)
            vPA = 168
            def pvrd(k, ct, hi):
                g(f"ds_read_b64_tr_b16 {A(aP+(ct*4+k)*4+2*hi,2)}, v{vPA+8*k+ct} offset:{hi*16384}")
            for k in range(npre):
                look(f"c{k}")
                pvgroup(k)
            if w1b:
                look("d")
                g(f"s_cmp_lg_u32 s{sGot}, 0")
                g("s_cbranch_scc1 L_B_cw2")
                g("s_waitcnt vmcnt(0)")
                g.lab("L_B_cw2")
                g("s_waitcnt vmcnt(4)")
                w1_gemv(False)
            g(f"s_mov_b32 s{sCNT}, 0")
            g(f"s_cmp_lg_u32 s{sGot}, 0")
            g("s_cbranch_scc1 L_B_qwait")
            if opt.get("looks", "abcd"): g("s_branch L_B_d1chk")
            g.lab("L_B_d1poll")
            d1poll()
            spin_guard(g, "L_B_qget0")
            g.lab("L_B_d1chk")
            g("s_waitcnt lgkmcnt(0)")
            d1chk()
            g("s_cbranch_scc1 L_B_d1poll")
            g.stamp(3)
            g.lab("L_B_qget0")
            g(f"s_mov_b32 s{sCNT}, 0")
            qdma()
            g.lab("L_B_qwait")
        nb = 0
        if w1b:
            g(f"buffer_store_dwordx4 {v(140,4)}, v{vHs}, {WS}, s{sR0} offen sc1")
            nb = 1
        if opt.get("w2_pos", 0) == 3:
            g(f"s_mul_i32 s{sO2}, s{sU2}, {36*1152}")
            g(f"s_mul_i32 s{sO}, s{sW}, {8*1152}")
            g(f"s_add_u32 s{sO}, s{sO}, s{sO2}")
            g(f"s_add_u32 s{sO2}, s{sO2}, {32*1152}")
        if opt.get("w2_pos", 0) == 0:
            w2_stream(); nb += 0 if "w2" in opt.get("skip", "") else 11
        g(f"s_waitcnt vmcnt({nb}) lgkmcnt(0)")
        g.lab("L_B_qbar")
        g("s_barrier")
        g.stamp(4)
        def ebell():
            g(f"""
            s_cmp_lg_u32 s{sW}, 2
            s_cbranch_scc1 L_B_noeb
            s_sub_u32 s{sTMP}, s{sD2}, {D2}
            s_lshr_b32 s{sTMP}, s{sTMP}, 1
            s_add_u32 s{sTMP}, s{sTMP}, {DE2 if opt.get("e_rep") else DE}
            v_lshlrev_b32 v{t3}, {14 if opt.get("e_rep") else 4}, v{vL}
            s_mov_b64 exec, 0xff
            buffer_store_dwordx4 {v(vML,4)}, v{t3}, {WS}, s{sTMP} offen sc1
            s_mov_b64 exec, -1
            """)
            g.lab("L_B_noeb")
        vQ = 64
        vS = 156
        PRE = 4 if npre < 4 else 6
        late = [(k, ct, hi) for k in range(npre, 4) for ct in range(8) for hi in range(2)]
        per = 2 if late else 0
        seq = []
        for ks in range(PRE):
            g(f"ds_read_b128 {v(vQ+4*ks,4)}, v{vQBs+(ks&3)} offset:{(ks>>2)*256}"); seq.append(("q", ks))
        for ks in range(16):
            if opt.get("e_pos") == ks: ebell()
            if ks + PRE < 16:
                k2 = ks + PRE
                g(f"ds_read_b128 {v(vQ+4*k2,4)}, v{vQBs+(k2&3)} offset:{(k2>>2)*256}"); seq.append(("q", k2))
            for _ in range(per if ks + PRE < 16 else per + 1):
                if late:
                    pvrd(*late.pop(0)); seq.append(("p",))
            g(f"s_waitcnt lgkmcnt({min(15, len(seq) - 1 - seq.index(('q', ks)))})")
            for kt in range(2):
                g(f"{MF} {v(vS+4*kt,4)}, {A(aS+(kt*16+ks)*4,4)}, {v(vQ+4*ks,4)}, {'0' if ks == 0 else v(vS+4*kt,4)}")
            if opt.get("w2_pos", 0) == 3 and 4 <= ks < 15:
                i = ks - 4
                if i == 10: g("s_mov_b32 exec_hi, 0")
                g(f"buffer_load_dwordx4 {v(vW2+4*i,4)}, v{vP2+(i if i < 10 else 4)}, {W2}, s{sO if i < 9 else sO2} offen {NT}")
                if i == 10: g("s_mov_b64 exec, -1")
        CS = math.log2(math.e) * 128 ** -0.5
        g(f"s_mov_b32 s{sC}, {hex(fbits(CS))}")
        g(f"""
        {"" if qd else f"v_cmp_u_f32 vcc, v{vS}, v{vS}"}
        v_max3_f32 v{t0}, v{vS}, v{vS+1}, v{vS+2}
        v_max3_f32 v{t1}, v{vS+3}, v{vS+4}, v{vS+5}
        v_max3_f32 v{t0}, v{t0}, v{vS+6}, v{vS+7}
        v_max_f32 v{t0}, v{t0}, v{t1}
        {"" if qd else "s_cbranch_vccnz L_B_qslow"}
        """)
        g.lab("L_B_qok")
        if opt.get("stamps") and not qd: g(f"s_mov_b32 s100, s{sCNT}")
        g(f"""
        ds_write_b32 v{vMXw}, v{t0} offset:{B_MX}
        s_waitcnt lgkmcnt(0)
        s_barrier
        """)
        g.stamp(5)
        vM = 64
        for q in range(4):
            g(f"ds_read_b128 {v(vM+4*q,4)}, v{vMXr} offset:{B_MX+q*256}")
        g(f"""
        s_waitcnt lgkmcnt(2)
        v_max3_f32 v{vM}, v{vM}, v{vM+1}, v{vM+2}
        v_max3_f32 v{vM+3}, v{vM+3}, v{vM+4}, v{vM+5}
        v_max3_f32 v{vM}, v{vM}, v{vM+6}, v{vM+7}
        s_waitcnt lgkmcnt(0)
        v_max3_f32 v{vM+8}, v{vM+8}, v{vM+9}, v{vM+10}
        v_max3_f32 v{vM+11}, v{vM+11}, v{vM+12}, v{vM+13}
        v_max3_f32 v{vM+8}, v{vM+8}, v{vM+14}, v{vM+15}
        v_max3_f32 v{vM}, v{vM}, v{vM+3}, v{vM+11}
        v_max_f32 v{vM}, v{vM}, v{vM+8}
        v_mul_f32 v{vML}, s{sC}, v{vM}
        """)
        n1 = min(len(late), 14)
        for _ in range(n1): pvrd(*late.pop(0))
        def stat(wave, off, tag):
            g(f"s_cmp_lg_u32 s{sW}, {wave}")
            g(f"s_cbranch_scc1 L_B_nost{tag}")
            if off: g(f"s_add_u32 s{sD2}, s{sD2}, {off}")
            g("s_mov_b64 exec, 0xffff")
            g(f"buffer_store_dwordx4 {v(vML,4)}, v{vL16}, {WS}, s{sD2} offen sc1")
            g("s_mov_b64 exec, -1")
            g.lab(f"L_B_nost{tag}")
        if opt.get("m_early"): stat(1, 0, "m")
        for k in range(8):
            g(f"v_fma_f32 v{vS+k}, v{vS+k}, s{sC}, -v{vML}")
        for k in range(8):
            g(f"v_exp_f32 v{vS+k}, v{vS+k}")
        vPf = 80
        vO = 96
        for k in range(4):
            g(f"v_cvt_pk_bf16_f32 v{vPf+k}, v{vS+2*k}, v{vS+2*k+1}")
        g(f"ds_write_b128 v{vPw}, {v(vPf,4)} offset:{B_PB}")
        g(f"""
        v_pk_add_f32 {v(vS,2)}, {v(vS,2)}, {v(vS+2,2)}
        v_pk_add_f32 {v(vS+4,2)}, {v(vS+4,2)}, {v(vS+6,2)}
        v_pk_add_f32 {v(vS,2)}, {v(vS,2)}, {v(vS+4,2)}
        v_add_f32 v{vS}, v{vS}, v{vS+1}
        ds_write_b32 v{vMXw}, v{vS} offset:{B_LS}
        """)
        def pv(k, cts=range(8)):
            for ct in cts:
                g(f"{MF} {v(vO+4*ct,4)}, {v(vPf+4*k,4)}, {A(aP+(ct*4+k)*4,4)}, {'0' if k == 0 else v(vO+4*ct,4)}")
        pv(0, range(2))
        if not opt.get("m_early"): stat(1, 0, "m")
        g("s_waitcnt lgkmcnt(0)")
        g("s_barrier")
        g.stamp(6)
        for k in range(1, 4):
            g(f"ds_read_b128 {v(vPf+4*k,4)}, v{[0,20,21,23][k]} offset:{B_PB}")
        for q in range(4):
            g(f"ds_read_b128 {v(vM+4*q,4)}, v{vMXr} offset:{B_LS+q*256}")
        nl = len(late)
        assert all(k == 3 for k, _, _ in late)
        for ct in range(2, 8):
            pv(0, [ct])
            for _ in range(3):
                if late: pvrd(*late.pop(0))
        assert not late
        g(f"s_waitcnt lgkmcnt({min(15, 6 + nl)})")
        adds = [f"v_pk_add_f32 {v(vM,2)}, {v(vM,2)}, {v(vM+2,2)}", f"v_pk_add_f32 {v(vM+4,2)}, {v(vM+4,2)}, {v(vM+6,2)}",
                f"v_pk_add_f32 {v(vM+8,2)}, {v(vM+8,2)}, {v(vM+10,2)}", f"v_pk_add_f32 {v(vM+12,2)}, {v(vM+12,2)}, {v(vM+14,2)}",
                f"v_pk_add_f32 {v(vM,2)}, {v(vM,2)}, {v(vM+4,2)}", f"v_pk_add_f32 {v(vM+8,2)}, {v(vM+8,2)}, {v(vM+12,2)}",
                f"v_pk_add_f32 {v(vM,2)}, {v(vM,2)}, {v(vM+8,2)}", f"v_add_f32 v{vML}, v{vM}, v{vM+1}"]
        pv(1, range(4))
        g("s_waitcnt lgkmcnt(0)")
        for ct in range(4, 8):
            pv(1, [ct])
            g(adds[2 * (ct - 4)]); g(adds[2 * (ct - 4) + 1])
        dbpos = opt.get("d2_pos", 2)
        if dbpos == 2: stat(0, DL - D2, "l")
        vOo = 64
        def cv(k, rs=range(4)):
            for r in rs:
                g(f"v_cvt_pk_bf16_f32 v{vOo+4*r+k}, v{vO+8*k+r}, v{vO+8*k+4+r}")
        def tg(k, rs=range(4)):
            for r in rs:
                g(f"v_and_or_b32 v{vOo+4*r+k}, v{vOo+4*r+k}, s{sMk}, v{vPat}")
        for p in range(4):
            pv(2, [2 * p, 2 * p + 1])
            if p >= 2: cv(p - 2, (0, 1))
            pv(3, [2 * p])
            if p >= 2: cv(p - 2, (2, 3))
            pv(3, [2 * p + 1])
            if p >= 2: tg(p - 2)
            if dbpos == 3 and p == 1: stat(0, DL - D2, "l")
        cv(2); tg(2)
        for r in range(4):
            cv(3, [r]); tg(3, [r])
            g(f"s_add_u32 s{sO}, s{sOo}, {4*r*OSTR}")
            g(f"buffer_store_dwordx4 {v(vOo+4*r,4)}, v{vOa}, {WS}, s{sO} offen sc1")
        if dbpos == 4: stat(0, DL - D2, "l")
        g.stamp(7)
        vHr = 80
        vEr = 96
        g(f"""
        s_and_b32 s{sTMP}, s{sW}, 1
        s_mul_i32 s{sO}, s{sTMP}, 18432
        s_add_u32 s{sO}, s{sO}, {HH}
        s_add_u32 s{sO2}, s{sO}, {4*36864}
        s_add_u32 s{sO3}, s{sO}, {8*36864}
        s_add_u32 s{sC}, s{sO}, {12*36864}
        s_and_b32 s{sPat}, s{sT}, 15
        s_mov_b32 s{sCNT}, 0
        """)
        for k in range(4): g(f"v_mov_b32 v{vHr+12+k}, s{sPat}")
        def hget():
            g("s_mov_b32 exec_lo, 0x01ff01ff")
            g("s_mov_b32 exec_hi, 0x01ff01ff")
            for u, so in enumerate((sO, sO2, sO3, sC)):
                if u == 3: g("s_mov_b32 exec_hi, 0")
                g(f"buffer_load_dwordx4 {v(vHr+4*u,4)}, v{vHg}, {WS}, s{so} offen sc1")
            g("s_mov_b64 exec, -1")
        g(f"s_cmp_gt_u32 s{sW}, 1")
        g("s_cbranch_scc1 L_B_noh1")
        hget()
        g.lab("L_B_noh1")
        if npre < 4: g("s_barrier")
        if opt.get("w2_pos", 0) == 1:
            if opt.get("w2_wait"): g("s_waitcnt vmcnt(0)")
            if opt.get("b_sleep2"): g(f"s_sleep {opt['b_sleep2']}")
            g(f"s_mul_i32 s{sR0}, s{sU2}, {36*1152}")
            g(f"s_mov_b32 s{sRho}, s{sO}")
            unit_load(g, W2, vP2, B_W2, sR0, 1152, "w2", NT, thr=opt.get("w2_thr"))
            g(f"s_mov_b32 s{sO}, s{sRho}")
        else:
            g(f"s_mul_i32 s{sTMP}, s{sW}, 9216")
            g(f"v_add_u32 v{t2}, s{sTMP}, v{vL16}")
            g("s_waitcnt vmcnt(4)")
            for i in range(9):
                g(f"ds_write_b128 v{t2}, {v(vW2+4*i,4)} offset:{B_W2+i*1024}")
            g(f"ds_write_b128 v{vPw}, {v(vW2+36,4)} offset:{B_W2+36864}")
            g(f"ds_write_b128 v{vL16}, {v(vW2+40,4)} offset:{B_W2+36864+4096}")
        g(f"s_cmp_gt_u32 s{sW}, 1")
        g("s_cbranch_scc1 L_B_hbar")
        g.lab("L_B_hchk")
        g("s_mov_b32 exec_lo, 0x01ff01ff")
        g("s_mov_b32 exec_hi, 0x01ff01ff")
        g("s_waitcnt vmcnt(0)")
        g.stamp(10)
        vHx = 100
        for k in range(16):
            g(f"v_xor_b32 v{vHx+k}, s{sPat}, v{vHr+k}")
        g(f"v_or3_b32 v{vEr}, v{vHx}, v{vHx+1}, v{vHx+2}")
        for k in range(3, 15, 2):
            g(f"v_or3_b32 v{vEr}, v{vEr}, v{vHx+k}, v{vHx+k+1}")
        g(f"v_or_b32 v{vEr}, v{vEr}, v{vHx+15}")
        g(f"v_and_b32 v{vEr}, 15, v{vEr}")
        g(f"v_cmp_ne_u32 vcc, 0, v{vEr}")
        g("s_cbranch_vccnz L_B_hslow")
        g.lab("L_B_hok")
        c1 = -2.0 * math.log2(math.e) * math.sqrt(2.0 / math.pi)
        g(f"""
        v_pk_add_f32 {v(vHx,2)}, {v(vHx,2)}, {v(vHx+4,2)}
        v_pk_add_f32 {v(vHx+2,2)}, {v(vHx+2,2)}, {v(vHx+6,2)}
        v_pk_add_f32 {v(vHx+8,2)}, {v(vHx+8,2)}, {v(vHx+12,2)}
        v_pk_add_f32 {v(vHx+10,2)}, {v(vHx+10,2)}, {v(vHx+14,2)}
        v_pk_add_f32 {v(vHx,2)}, {v(vHx,2)}, {v(vHx+8,2)}
        v_pk_add_f32 {v(vHx+2,2)}, {v(vHx+2,2)}, {v(vHx+10,2)}
        v_lshlrev_b32 v{vB1}, 16, v{vB1}
        v_mov_b32 v{t1}, {hex(fbits(c1))}
        v_permlane32_swap_b32 v{vHx}, v{vHx+1}
        v_permlane32_swap_b32 v{vHx+2}, v{vHx+3}
        v_add_f32 v{vHx}, v{vHx}, v{vHx+1}
        v_add_f32 v{vHx+2}, v{vHx+2}, v{vHx+3}
        s_mov_b32 s{sC}, {hex(fbits(c1*0.044715))}
        v_permlane16_swap_b32 v{vHx}, v{vHx+2}
        v_add_f32 v{vHx}, v{vHx}, v{vHx+2}
        v_add_f32 v{vHx}, v{vHx}, v{vB1}
        v_mul_f32 v{t0}, v{vHx}, v{vHx}
        v_fma_f32 v{t0}, v{t0}, s{sC}, v{t1}
        v_mul_f32 v{t0}, v{t0}, v{vHx}
        v_exp_f32 v{t0}, v{t0}
        v_add_f32 v{t0}, 1.0, v{t0}
        v_rcp_f32 v{t0}, v{t0}
        v_mul_f32 v{t0}, v{t0}, v{vHx}
        v_cvt_pk_bf16_f32 v{t0}, v{t0}, v{t0}
        ds_write_b16 v{vHw}, v{t0} offset:{B_HL}
        s_mov_b64 exec, -1
        """)
        g.lab("L_B_hbar")
        g("s_waitcnt vmcnt(0) lgkmcnt(0)" if opt.get("w2_pos", 0) == 1 else "s_waitcnt lgkmcnt(0)")
        g("s_barrier")
        g.stamp(11)
        aW = 0
        vHA = 64
        vY = 96
        g(f"ds_read2_b64 {v(vHA,4)}, v{vHe} offset0:0 offset1:4")
        g(f"ds_read2_b64 {v(vHA+6,4)}, v{vHo} offset0:0 offset1:4")
        def w2reads(t):
            for x in range(2):
                b = aW + (t * 2 + x) * 6
                g(f"ds_read_b64_tr_b16 {A(b,2)}, v{vT21 if x else vT20} offset:{t*256}")
                g(f"ds_read_b64_tr_b16 {A(b+2,2)}, v{vT21 if x else vT20} offset:{16*1152+t*256}")
        def w2rk(t):
            for x in range(2):
                b = aW + (t * 2 + x) * 6
                g(f"ds_read_b64_tr_b16 {A(b+4,2)}, v{vK21 if x else vK20} offset:{t*256}")
        def w2mf(t):
            for x in range(2):
                b = aW + (t * 2 + x) * 6
                g(f"{MF} {v(vY+4*t,4)}, {v(vHA+6*x,4)}, {A(b,4)}, {'0' if x == 0 else v(vY+4*t,4)}")
        def w2mf16(t):
            for x in range(2):
                b = aW + (t * 2 + x) * 6
                g(f"{MF16} {v(vY+4*t,4)}, {v(vHA+6*x+4,2)}, {A(b+4,2)}, {v(vY+4*t,4)}")
        w2reads(0); w2reads(1); w2reads(2)
        g("s_waitcnt lgkmcnt(8)")
        w2mf(0)
        w2reads(3)
        g("s_waitcnt lgkmcnt(8)")
        w2mf(1)
        w2reads(4)
        g("s_waitcnt lgkmcnt(8)")
        w2mf(2)
        g(f"ds_read_b64 {v(vHA+4,2)}, v{vHke}")
        g(f"ds_read_b64 {v(vHA+10,2)}, v{vHko}")
        w2rk(0); w2rk(1)
        g("s_waitcnt lgkmcnt(10)")
        w2mf(3)
        w2rk(2); w2rk(3); w2rk(4)
        g("s_waitcnt lgkmcnt(12)")
        w2mf(4)
        for t in range(5):
            g(f"s_waitcnt lgkmcnt({2*(4-t)})")
            w2mf16(t)
        for t in range(4):
            g(f"v_and_or_b32 v{vHA+t}, v{vY+4*t}, -16, s{sPat}")
        g(f"buffer_store_dwordx4 {v(vHA,4)}, v{vH3}, {WS}, s{sH3m} offen sc1")
        g(f"s_cmp_gt_u32 s{sW}, 1")
        g("s_cbranch_scc1 L_B_no5b")
        g(f"v_and_or_b32 v{vY+16}, v{vY+16}, -16, s{sPat}")
        g(f"buffer_store_dword v{vY+16}, v{vH3x}, {WS}, s{sH3l} offen sc1")
        g.lab("L_B_no5b")
        g.stamp(12)
        dump_stamps(g, 16, 216)
        g("s_endpgm")
        if numa:
            g.lab("L_B_refetch")
            if opt.get("dcount"):
                g(f"""
                s_load_dwordx2 s[12:13], s[0:1], 104
                s_mov_b32 s14, 256
                s_mov_b32 s15, 0x00020000
                v_mov_b32 v6, 1
                v_mov_b32 v7, 60
                s_waitcnt lgkmcnt(0)
                s_mov_b64 exec, 1
                buffer_atomic_add v6, v7, s[12:15], 0 offen sc1
                s_mov_b64 exec, -1
                """)
            g(f"s_xor_b32 s{sPhi}, s{sPhi}, 1")
            g("s_waitcnt vmcnt(0)")
            ckv_base()
            ckv_stream(0, 32)
            g("s_branch L_B_phok")
        g.lab("L_B_hslow")
        spin_guard(g, "L_B_hok")
        hget()
        g("s_branch L_B_hchk")
        if qd:
            g.lab("L_B_qagain")
            spin_guard(g, "L_B_qgood")
            qld()
            g("s_branch L_B_qchk")
            return
        g.lab("L_B_qslow")
        spin_guard(g, "L_B_qok")
        g(f"s_mov_b64 s[{sM1}:{sM1+1}], 0")
        for ks in range(16):
            g(f"v_cmp_eq_u32 vcc, s{sPOI}, v{vQ+4*ks}")
            g(f"s_or_b64 s[{sM1}:{sM1+1}], s[{sM1}:{sM1+1}], vcc")
        g("s_cbranch_scc0 L_B_qok")
        g("s_barrier")
        qdma()
        g("s_waitcnt vmcnt(0)")
        g("s_branch L_B_qbar")

if __name__ == "__main__":
    opt = eval("dict(%s)" % (sys.argv[2] if len(sys.argv) > 2 else ""))
    open(sys.argv[1], "w").write(gen(opt))
```

```python
import sys, os, math, struct
sys.path.insert(0, os.path.dirname(os.path.abspath(__file__)))
from hazard import pad

KNAME = "gated_mix__compressed_kv_cla__dense_activation_gelu__decode_kernel"

WS_BYTES = 256 << 20
EPOCH = 0x0
DP = 0x2000
D1 = 0x8000
D3 = 0x10000
DH = 0x18000
DE = 0x1C000
D2 = 0x20000
DL = 0x28000
DE2 = 0x40000
QB = 0x80000
HB = 0xA0000
H0 = 0xC0000
LOC = 0x100000
H3 = 0x200000
USTR = 16384 + 256
HH = 0x340000
OB = 0x480000
OSTR = 16384 + 256
STAMP = 0x1000000
POISON = 0xFFA5FFA5
K0, K1 = 0x9E3779B9, 0x7F4A7C15
SPIN = 1 << 20

A_WUV = 0
A_QL = 32768
A_ZERO = 33280
A_WT = 33536
A_CTXC = 33792
A_RED = 34816
A_WO = 35840
A_W1 = A_WO + 36864
A_QP = A_WO
B_QF = 0
B_PB = 16384
B_MX = 20480
B_HL = 21504
B_ZERO = 21760
B_PHI = 21888
B_LS = 22528
B_CKV = 23552
B_W2 = B_CKV
LDS_BYTES = 154624

def f16sw(i):
    return (((i & 7) ^ ((i >> 3) << 2)) << 1) | (i >> 3)

def fbits(x):
    return struct.unpack("<I", struct.pack("<f", x))[0]

class G:
    def __init__(self, opt):
        self.l = []
        self.opt = opt
        self.nst = 0
        self.inA = False
    def __call__(self, s):
        for x in s.strip("\n").split("\n"):
            x = x.strip()
            if x: self.l.append("    " + x)
    def lab(self, n): self.l.append(n + ":")
    def c(self, s): self.l.append("    ; " + s)
    def stamp(self, i):
        if self.opt.get("stamps") and not (self.opt.get("fst") and 5 <= i <= 12 and self.inA):
            self(f"s_memrealtime s[{70+2*i}:{71+2*i}]")
    def fstamp(self, i):
        if self.opt.get("stamps") and self.opt.get("fst"):
            self(f"s_memrealtime s[{70+2*i}:{71+2*i}]")

def v(a, n=1): return f"v{a}" if n == 1 else f"v[{a}:{a+n-1}]"
def A(a, n=1): return f"a{a}" if n == 1 else f"a[{a}:{a+n-1}]"
def S(a, n=1): return f"s{a}" if n == 1 else f"s[{a}:{a+n-1}]"

sW = 3
WS, X = "s[4:7]", "s[8:11]"
sT = 40
sXCD, sI = 42, 43
sA, sH, sJ = 44, 45, 46
sHG, sB, sMSG, sU2 = 44, 45, 46, 47
sO, sO2, sO3, sCNT = 48, 49, 50, 51
sM1, sM2, sM3, sM4 = 52, 54, 56, 58
sPR = 60
sG0, sG1 = 61, 62
sTMP = 64
sPC = 66
sPOI = 68
sC = 69

def srd(g, base, slot, nbytes):
    g(f"s_load_dwordx2 s[{base}:{base+1}], s[0:1], {slot*8}")
    g(f"s_mov_b32 s{base+2}, {nbytes}")
    g(f"s_mov_b32 s{base+3}, 0x00020000")

def dump_stamps(g, n, tmpv):
    if not g.opt.get("stamps") or g.opt.get("probe") is not None: return
    g("s_waitcnt lgkmcnt(0)")
    g("s_mov_b64 exec, 1")
    g(f"s_lshl_b32 s{sO}, s2, 2")
    g(f"s_add_u32 s{sO}, s{sO}, s{sW}")
    g(f"s_lshl_b32 s{sO}, s{sO}, 6")
    g(f"s_add_u32 s{sO}, s{sO}, {STAMP}")
    g(f"v_mov_b32 v{tmpv+4}, 0")
    for q in range(0, 16, 4):
        for k in range(4):
            g(f"v_mov_b32 v{tmpv+k}, s{70+2*(q+k)}")
        g(f"buffer_store_dwordx4 {v(tmpv,4)}, v{tmpv+4}, {WS}, s{sO} offen offset:{q*4}")
        g("s_nop 1")
    g("s_waitcnt vmcnt(0)")

def dual_next(g, regs):
    if not g.opt.get("dual", 1): return
    g(f"s_and_b32 s{sTMP}, s{sCNT}, 14")
    g(f"s_cmp_eq_u32 s{sTMP}, 14")
    g(f"s_cselect_b32 s{sTMP}, {LOC}, 0")
    for r in regs:
        g(f"s_xor_b32 s{r}, s{r}, s{sTMP}")

def spin_guard(g, out):
    g(f"s_add_u32 s{sCNT}, s{sCNT}, 1")
    g(f"s_cmp_gt_u32 s{sCNT}, {g.opt.get('spin', SPIN)}")
    g(f"s_cbranch_scc1 {out}")

def selectors(g, vSel, vL, t0, t1, t2):
    g(f"v_and_b32 v{t0}, 1, v{vL}")
    g(f"v_cmp_eq_u32 vcc, 1, v{t0}")
    g(f"v_mov_b32 v{t1}, 0x0c0c0100")
    g(f"v_mov_b32 v{t2}, 0x01000c0c")
    g(f"v_cndmask_b32 v{vSel+3}, v{t1}, v{t2}, vcc")
    g(f"v_mov_b32 v{t1}, 0x0c0c0302")
    g(f"v_mov_b32 v{t2}, 0x03020c0c")
    g(f"v_cndmask_b32 v{vSel+7}, v{t1}, v{t2}, vcc")
    g(f"v_bfe_u32 v{t0}, v{vL}, 1, 2")
    g(f"v_mov_b32 v{t1}, 0x0c0c0c0c")
    for d in range(4):
        g(f"v_cmp_eq_u32 vcc, {d}, v{t0}")
        g(f"v_cndmask_b32 v{vSel+d}, v{t1}, v{vSel+3}, vcc")
        g(f"v_cndmask_b32 v{vSel+4+d}, v{t1}, v{vSel+7}, vcc")

def unit_pattern(g, dst, vL, i_expr_sgpr, i_const, pitch, t0, t1):
    if i_expr_sgpr is not None:
        g(f"v_lshl_add_u32 v{t0}, s{i_expr_sgpr}, 6, v{vL}")
    else:
        g(f"v_add_u32 v{t0}, {64*i_const}, v{vL}")
    g(f"v_mul_u32_u24 v{t1}, 911, v{t0}")
    g(f"v_lshrrev_b32 v{t1}, 16, v{t1}")
    g(f"v_and_b32 v{dst}, 6, v{t1}")
    g(f"v_xor_b32 v{dst}, v{dst}, v{t0}")
    g(f"v_lshlrev_b32 v{dst}, 4, v{dst}")
    if pitch != 1152:
        g(f"v_mul_u32_u24 v{t1}, {pitch-1152}, v{t1}")
        g(f"v_add_u32 v{dst}, v{dst}, v{t1}")
assert all((911 * u) >> 16 == u // 72 for u in range(640))

def h3_addr(g, vH3, vH3x, vL, vN, vG, t0):
    g(f"v_lshrrev_b32 v{t0}, 3, v{vL}")
    g(f"v_mul_u32_u24 v{vH3}, {USTR}, v{t0}")
    g(f"v_and_b32 v{t0}, 7, v{vL}")
    g(f"v_lshl_add_u32 v{vH3}, v{t0}, 4, v{vH3}")
    g(f"v_lshrrev_b32 v{t0}, 5, v{vL}")
    g(f"v_mul_u32_u24 v{vH3x}, {USTR}, v{t0}")
    g(f"v_and_b32 v{t0}, 31, v{vL}")
    g(f"v_lshl_add_u32 v{vH3x}, v{t0}, 2, v{vH3x}")

def h3_soffs(g, s_main, s_left):
    g(f"s_lshl_b32 s{s_left}, s{sPR}, 7")
    g(f"s_add_u32 s{s_left}, s{s_left}, {H3}")
    g(f"s_mul_i32 s{s_main}, s{sW}, {8*USTR}")
    g(f"s_add_u32 s{s_main}, s{s_main}, s{s_left}")
    g(f"s_mul_i32 s{sTMP}, s{sW}, {2*USTR}")
    g(f"s_add_u32 s{s_left}, s{s_left}, s{sTMP}")
    g(f"s_add_u32 s{s_left}, s{s_left}, {32*USTR}")

def tr_pair_bases(g, vB0, vB1, vK0, vK1, vL, base, t0, t1, t2):
    g(f"v_lshrrev_b32 v{t0}, 2, v{vL}")
    g(f"v_bfe_u32 v{t1}, v{vL}, 1, 1")
    g(f"v_lshl_add_u32 v{t1}, s{sW}, 2, v{t1}")
    g(f"v_and_b32 v{t2}, 6, v{t0}")
    g(f"v_xor_b32 v{t2}, v{t2}, v{t1}")
    g(f"v_lshlrev_b32 v{t2}, 4, v{t2}")
    g(f"v_mul_u32_u24 v{vB0}, 1152, v{t0}")
    g(f"v_add_u32 v{vB0}, v{vB0}, v{t2}")
    g(f"v_and_b32 v{t2}, 1, v{vL}")
    g(f"v_lshlrev_b32 v{t2}, 3, v{t2}")
    g(f"v_add_u32 v{vB0}, v{vB0}, v{t2}")
    g(f"v_xor_b32 v{vB1}, 32, v{vB0}")
    if base:
        g(f"v_add_u32 v{vB0}, {base}, v{vB0}")
        g(f"v_add_u32 v{vB1}, {base}, v{vB1}")
    if vK0 is not None:
        g(f"v_and_b32 v{t0}, 3, v{t0}")
        g(f"v_and_b32 v{vK0}, 2, v{t0}")
        g(f"v_xor_b32 v{vK0}, v{vK0}, v{t1}")
        g(f"v_lshlrev_b32 v{vK0}, 4, v{vK0}")
        g(f"v_mul_u32_u24 v{t0}, 1152, v{t0}")
        g(f"v_add3_u32 v{vK0}, v{vK0}, v{t0}, v{t2}")
        g(f"v_xor_b32 v{vK1}, 32, v{vK0}")
        g(f"v_add_u32 v{vK0}, {base + 32*1152}, v{vK0}")
        g(f"v_add_u32 v{vK1}, {base + 32*1152}, v{vK1}")

MF = "v_mfma_f32_16x16x32_bf16"
MF16 = "v_mfma_f32_16x16x16_bf16"

def role_is_A(wg, opt):
    if opt.get("split"):
        import numpy as np
        return np.isin(wg & 7, list(opt["split"]))
    return wg < 128

def gen(opt):
    g = G(opt)
    NT = opt.get("nt", "")
    PFL = opt.get("pf_lines", 4)
    CODE_BYTES = 32 * 128 * PFL
    vL, vN, vG = 1, 2, 3
    g.stamp(0)
    if opt.get("clk"): g("s_memtime s[98:99]")
    g(f"s_getpc_b64 s[{sPC}:{sPC+1}]")
    g("s_cmp_ge_u32 s2, 256")
    g("s_cbranch_scc1 L_end")
    g(f"""
    s_load_dwordx2 s[4:5], s[0:1], 112
    s_load_dwordx2 s[8:9], s[0:1], 0
    s_load_dwordx2 s[28:29], s[0:1], 8
    s_load_dwordx2 s[12:13], s[0:1], 16
    s_load_dwordx2 s[16:17], s[0:1], 24
    v_lshrrev_b32 v4, 6, v0
    v_and_b32 v{vL}, 63, v0
    s_and_b32 s{sXCD}, s2, 7
    v_readfirstlane_b32 s{sW}, v4
    s_bfe_u32 s{sI}, s2, 0x40003
    v_and_b32 v{vN}, 15, v0
    v_bfe_u32 v{vG}, v0, 4, 2
    s_mov_b32 s6, {WS_BYTES - opt.get('ws_base', 0)}
    s_mov_b32 s7, 0x00020000
    """)
    if opt.get("resid") is not None:
        g(f"""
        s_load_dwordx2 s[32:33], s[0:1], 104
        s_load_dwordx2 s[20:21], s[0:1], {8*opt["resid"]}
        s_mov_b32 s34, 256
        s_mov_b32 s35, 0x00020000
        s_mov_b32 s22, {4<<20}
        s_mov_b32 s23, 0x00020000
        s_mul_i32 s{sO}, s2, 16128
        v_mov_b32 v7, 0
        s_waitcnt lgkmcnt(0)
        s_cmp_lg_u32 s{sW}, 0
        s_cbranch_scc1 L_nores
        s_mov_b64 exec, 1
        buffer_load_dword v6, v7, s[20:23], s{sO} offen offset:2048
        s_waitcnt vmcnt(0)
        s_memtime s[24:25]
        s_waitcnt lgkmcnt(0)
        buffer_load_dword v6, v7, s[20:23], s{sO} offen
        s_waitcnt vmcnt(0)
        s_memtime s[26:27]
        s_waitcnt lgkmcnt(0)
        s_sub_u32 s26, s26, s24
        s_mul_i32 s26, s26, 468
        s_lshr_b32 s26, s26, 16
        s_min_u32 s26, s26, 15
        s_lshl_b32 s26, s26, 2
        v_mov_b32 v6, 1
        buffer_atomic_add v6, v7, s[32:35], s26 offen sc1
        s_waitcnt vmcnt(0)
        s_mov_b64 exec, -1
        """)
        g.lab("L_nores")
        g("s_barrier")
    if opt.get("xprobe") is not None:
        g(f"""
        s_load_dwordx2 s[32:33], s[0:1], 104
        s_mov_b32 s34, 256
        s_mov_b32 s35, 0x00020000
        s_waitcnt lgkmcnt(0)
        v_mov_b32 v6, s70
        s_lshl_b32 s{sO}, s{sXCD}, 2
        v_mov_b32 v7, s{sO}
        s_mov_b64 exec, 1
        buffer_atomic_umax v6, v7, s[32:35], 0 offen sc1
        s_mov_b64 exec, -1
        """)
    if opt.get("split"):
        aset = list(opt["split"]); bset = [x for x in range(8) if x not in aset]
        tab = 0
        for x in range(8):
            tab |= ((aset.index(x)) if x in aset else (8 | bset.index(x))) << (4 * x)
        g(f"""
        s_lshl_b32 s{sXCD}, s{sXCD}, 2
        s_lshr_b32 s{sO}, {hex(tab)}, s{sXCD}
        s_and_b32 s{sXCD}, s{sO}, 3
        s_lshr_b32 s{sO2}, s2, 7
        s_lshl_b32 s{sO2}, s{sO2}, 2
        s_add_u32 s{sXCD}, s{sXCD}, s{sO2}
        s_bitcmp1_b32 s{sO}, 3
        s_cbranch_scc1 L_B
        """)
    else:
        g("s_cmp_ge_u32 s2, 128")
        g("s_cbranch_scc1 L_B")
    a = RoleA(g, NT, vL, vN, vG)
    b = RoleB(g, NT, vL, vN, vG)
    def prefetch(nw, idx_sgpr_expr, tag):
        g(idx_sgpr_expr)
        g(f"s_mul_i32 s{sTMP}, s{sTMP}, {nw*128}")
        g(f"v_lshl_add_u32 v5, v{vL}, 7, s{sTMP}")
        g(f"s_cmp_lg_u32 s{sW}, 3")
        g(f"s_cbranch_scc1 L_nopf{tag}")
        g(f"s_mov_b64 exec, {(1 << nw) - 1}")
        g(f"global_load_dword v{63 if tag == 'B' else 254}, v5, s[{sPC}:{sPC+1}]")
        g("s_mov_b64 exec, -1")
        g.lab(f"L_nopf{tag}")
    if opt.get("split") and opt.get("a_pf_first", 1): prefetch(PFL, f"s_lshr_b32 s{sTMP}, s2, 3", "A")
    a.issue()
    if opt.get("split") and not opt.get("a_pf_first", 1): prefetch(PFL, f"s_lshr_b32 s{sTMP}, s2, 3", "A")
    g("s_branch L_A_rest")
    g.lab("L_B")
    if opt.get("p1a_on") == "B" or opt.get("numa"): pass
    elif opt.get("split"): prefetch(PFL, f"s_lshr_b32 s{sTMP}, s2, 3", "B")
    else: prefetch(2 * PFL, f"s_mov_b32 s{sTMP}, s{sI}", "B")
    b.issue()
    if opt.get("p1a_on") == "B": prefetch(PFL, f"s_lshr_b32 s{sTMP}, s2, 3", "B")
    main = g.l
    g.l = []
    b.rest()
    k = g.l.index(";;SPLIT")
    bhead, btail = g.l[:k], g.l[k+1:]
    g.l = main
    g.lab("L_B_head")
    if opt.get("b_head", 1):
        g.l += bhead
    g("s_branch L_B_rest")
    g.lab("L_A_rest")
    g.inA = True
    a.rest()
    g.inA = False
    g.lab("L_B_rest")
    if not opt.get("b_head", 1):
        g.l += bhead
    g.l += btail
    g.lab("L_end")
    lines, added = pad(g.l)
    body = "\n".join(lines)
    hdr = open(os.path.join(os.path.dirname(os.path.abspath(__file__)), "header.txt")).read()
    return f"""{hdr}; @launch grid=(256,1,1) block=(256,1,1) lds={LDS_BYTES}
.amdgcn_target "amdgcn-amd-amdhsa--gfx950"
.text
.globl {KNAME}
.p2align 8
.type {KNAME},@function
{KNAME}:
{body}
    s_endpgm
L_code_end:
.fill ({CODE_BYTES} + 256 - (L_code_end - {KNAME})) / 4, 4, 0xbf800000
.section .rodata,"a"
.p2align 6
.amdhsa_kernel {KNAME}
  .amdhsa_next_free_vgpr 512
  .amdhsa_next_free_sgpr 102
  .amdhsa_accum_offset 256
  .amdhsa_group_segment_fixed_size 0
  .amdhsa_kernarg_size 120
  .amdhsa_user_sgpr_count 2
  .amdhsa_user_sgpr_kernarg_segment_ptr 1
  .amdhsa_system_sgpr_workgroup_id_x 1
.end_amdhsa_kernel
"""

def srd_tail(g, base, nbytes):
    g(f"s_mov_b32 s{base+2}, {nbytes}")
    g(f"s_mov_b32 s{base+3}, 0x00020000")

def load_tag(g):
    wb = g.opt.get("ws_base", 0)
    if wb:
        g(f"s_add_u32 s4, s4, {wb}")
        g("s_addc_u32 s5, s5, 0")
    g(f"s_load_dwordx2 s[{sT}:{sT+1}], s[4:5], {EPOCH}")

def finish_tag(g):
    g("s_waitcnt lgkmcnt(0)")
    g(f"s_add_u32 s{sT}, s{sT}, {K0}")
    g(f"s_add_u32 s{sT+1}, s{sT+1}, {K1}")

def bell(g, vdata, vzero, s_index, base, wave, tag):
    g(f"s_cmp_lg_u32 s{sW}, {wave}")
    g(f"s_cbranch_scc1 L_nobell_{tag}")
    g(f"s_lshl_b32 s{sTMP}, s{s_index}, 7")
    g(f"s_add_u32 s{sTMP}, s{sTMP}, {base}")
    g("s_mov_b64 exec, 1")
    g(f"buffer_store_dwordx2 {v(vdata,2)}, v{vzero}, {WS}, s{sTMP} offen sc1")
    g("s_mov_b64 exec, -1")
    g.lab(f"L_nobell_{tag}")

def unit_load(g, SRD, vP, ldsbase, s_unit_base, pitch, tag, NT, rows36=True, vdst=None, thr=None, w0extra=True):
    if tag[:2] in g.opt.get("skip", ""): return
    g(f"s_mul_i32 s{sO}, s{sW}, {8*pitch}")
    g(f"s_add_u32 s{sO}, s{sO}, s{s_unit_base}")
    if vdst is None: g(f"s_mul_i32 s{sTMP}, s{sW}, 9216")
    for i in range(9):
        if thr: g(f"s_waitcnt vmcnt({thr-1})")
        if vdst is None:
            g(f"s_add_u32 m0, s{sTMP}, {ldsbase + i*1024}")
            g(f"buffer_load_dwordx4 v{vP+i}, {SRD}, s{sO} offen {NT} lds")
        else:
            g(f"buffer_load_dwordx4 {v(vdst+4*i,4)}, v{vP+i}, {SRD}, s{sO} offen {NT}")
    if not rows36: return
    g(f"s_add_u32 s{sO}, s{s_unit_base}, {32*pitch}")
    if vdst is None:
        g(f"s_lshl_b32 s{sTMP}, s{sW}, 10")
        g(f"s_add_u32 m0, s{sTMP}, {ldsbase + 36864}")
        g(f"buffer_load_dwordx4 v{vP+9}, {SRD}, s{sO} offen {NT} lds")
    else:
        g(f"buffer_load_dwordx4 {v(vdst+36,4)}, v{vP+9}, {SRD}, s{sO} offen {NT}")
    if w0extra:
        g(f"s_cmp_lg_u32 s{sW}, 0")
        g(f"s_cbranch_scc1 L_not{tag}")
    g("s_mov_b32 exec_hi, 0")
    if vdst is None:
        g(f"s_mov_b32 m0, {ldsbase + 36864 + 4096}")
        g(f"buffer_load_dwordx4 v{vP+4}, {SRD}, s{sO} offen {NT} lds")
    else:
        g(f"buffer_load_dwordx4 {v(vdst+40,4)}, v{vP+4}, {SRD}, s{sO} offen {NT}")
    g("s_mov_b64 exec, -1")
    if w0extra: g.lab(f"L_not{tag}")

class RoleA:
    def __init__(self, g, NT, vL, vN, vG):
        self.g, self.NT, self.vL, self.vN, self.vG = g, NT, vL, vN, vG
    vX = 20
    vA_wq, vA_uk = 108, 109
    aWQ, aUK = 0, 36

    def issue(self):
        g, NT, vL, vN, vG = self.g, self.NT, self.vL, self.vN, self.vG
        WQ, WUK = "s[12:15]", "s[16:19]"
        t0, t1 = 4, 5
        vX, vA_wq, vA_uk, aWQ, aUK = self.vX, self.vA_wq, self.vA_uk, self.aWQ, self.aUK
        if g.opt.get("p1a_on") == "B":
            srd_tail(g, 16, 512 * 8192)
            g(f"""
            s_lshr_b32 s{sH}, s{sI}, 2
            s_lshl_b32 s{sH}, s{sH}, 3
            s_add_u32 s{sH}, s{sH}, s{sXCD}
            s_and_b32 s{sJ}, s{sI}, 3
            s_lshl_b32 s{sC}, s{sH}, 8
            v_bfe_u32 v{t0}, v{vL}, 2, 2
            v_lshlrev_b32 v{vA_uk}, 16, v{t0}
            v_lshl_add_u32 v{vA_uk}, v{vG}, 6, v{vA_uk}
            v_and_b32 v{t1}, 3, v{vL}
            v_lshl_add_u32 v{vA_uk}, v{t1}, 4, v{vA_uk}
            s_lshl_b32 s{sO2}, s{sJ}, 2
            s_add_u32 s{sO2}, s{sO2}, s{sW}
            s_lshl_b32 s{sO2}, s{sO2}, 18
            s_add_u32 s{sO2}, s{sO2}, s{sC}
            s_waitcnt lgkmcnt(0)
            """)
            g.fstamp(5)
            self.uk(range(8))
            load_tag(g)
            srd_tail(g, 8, 2304)
            return
        srd_tail(g, 12, 576 * 8192)
        srd_tail(g, 8, 2304)
        g(f"""
        s_lshr_b32 s{sH}, s{sI}, 2
        s_lshl_b32 s{sH}, s{sH}, 3
        s_add_u32 s{sH}, s{sH}, s{sXCD}
        s_and_b32 s{sJ}, s{sI}, 3
        v_mul_u32_u24 v{vA_wq}, {36*8192}, v{vG}
        v_lshl_add_u32 v{vA_wq}, v{vN}, 4, v{vA_wq}
        s_lshl_b32 s{sO2}, s{sJ}, 4
        s_add_u32 s{sO2}, s{sO2}, s{sW}
        s_mul_i32 s{sO2}, s{sO2}, 9
        s_lshl_b32 s{sO3}, s{sO2}, 13
        s_lshl_b32 s{sC}, s{sH}, 8
        s_add_u32 s{sO3}, s{sO3}, s{sC}
        v_bfe_u32 v{t0}, v{vL}, 3, 1
        v_mul_u32_u24 v{t0}, 1152, v{t0}
        v_mad_u32_u24 v{t0}, v{vG}, 64, v{t0}
        v_lshl_add_u32 v{t0}, v{vG}, 3, v{t0}
        s_lshr_b32 s{sO2}, s{sO2}, 1
        s_lshl_b32 s{sO2}, s{sO2}, 2
        s_waitcnt lgkmcnt(0)
        """)
        g.fstamp(5)
        g(f"""
        buffer_load_dwordx4 {v(vX,4)}, v{t0}, {X}, s{sO2} offen
        buffer_load_dword v{vX+4}, v{t0}, {X}, s{sO2} offen offset:16
        """)
        for i in range(9):
            g(f"buffer_load_dwordx4 {A(aWQ+4*i,4)}, v{vA_wq}, {WQ}, s{sO3} offen {NT}")
            if i != 8: g(f"s_addk_i32 s{sO3}, 0x2000")
        load_tag(g)
        srd_tail(g, 16, 512 * 8192)
        g(f"""
        v_bfe_u32 v{t0}, v{vL}, 2, 2
        v_lshlrev_b32 v{vA_uk}, 16, v{t0}
        v_lshl_add_u32 v{vA_uk}, v{vG}, 6, v{vA_uk}
        v_and_b32 v{t1}, 3, v{vL}
        v_lshl_add_u32 v{vA_uk}, v{t1}, 4, v{vA_uk}
        s_lshl_b32 s{sO2}, s{sJ}, 2
        s_add_u32 s{sO2}, s{sO2}, s{sW}
        s_lshl_b32 s{sO2}, s{sO2}, 18
        s_add_u32 s{sO2}, s{sO2}, s{sC}
        """)
        self.uk_split = g.opt.get("uk_early", 2)
        self.uk(range(self.uk_split))

    def uk(self, rows):
        g = self.g
        for r in rows:
            u = 2 * (r & 3) + (r >> 2)
            g(f"buffer_load_dwordx4 {A(self.aUK+4*u,4)}, v{self.vA_uk}, s[16:19], s{sO2} offen {self.NT}")
            g(f"s_addk_i32 s{sO2}, 0x2000")

    def rest(self):
        g, NT, vL, vN, vG = self.g, self.NT, self.vL, self.vN, self.vG
        opt = g.opt
        WUV, WO, W1, B2, GATE, OUT = "s[20:23]", "s[24:27]", "s[12:15]", "s[28:31]", "s[32:35]", "s[36:39]"
        t0, t1, t2, t3 = 4, 5, 6, 7
        vPOI = 8
        vSel = 12
        vX = self.vX
        vF = 160
        vQ = 200
        vR = 56
        vQlo, vQhi = 80, 84
        vAcc = 88
        vGr = 104
        vA_h1, vA_l16 = 110, 47
        vA_qlo, vA_qhi = 112, 113
        vTag = 114
        vQw = 46
        aWQ, aUK = self.aWQ, self.aUK
        sQ = 63
        g.stamp(1)
        selectors(g, vSel, vL, t0, t1, t2)
        g(f"""
        s_lshl_b32 s{sA}, s{sH}, 2
        s_add_u32 s{sA}, s{sA}, s{sJ}
        s_and_b32 s{sO}, s{sW}, 1
        s_lshl_b32 s{sO}, s{sO}, 4
        v_lshlrev_b32 v{vA_l16}, 4, v{vL}
        s_cmp_lg_u32 s{sW}, {0 if opt.get("p1a_on") == "B" else 1}
        s_cbranch_scc1 L_A_e2
        """)
        pB = opt.get("p1a_on") == "B"
        for k in range(4): g(f"v_mov_b32 v{vPOI+k}, {hex(POISON)}")
        g(f"""
        v_lshlrev_b32 v{t0}, 15, v{vG}
        v_lshl_add_u32 v{t0}, v{vN}, 4, v{t0}
        s_lshl_b32 s{sTMP}, s{sA}, 8
        s_add_u32 s{sTMP}, s{sTMP}, {QB}
        s_mov_b32 exec_hi, 0
        buffer_store_dwordx4 {v(vPOI,4)}, v{t0}, {WS}, s{sTMP} offen sc1
        s_mov_b64 exec, -1
        """)
        g.lab("L_A_e2")
        if opt.get("split"):
            g(f"""
            s_cmp_lt_u32 s{sW}, {3 if pB else 2}
            s_cbranch_scc1 L_A_e3
            s_lshl_b32 s{sTMP}, s{sA}, 11
            s_add_u32 s{sTMP}, s{sTMP}, {H0+LOC}
            s_lshl_b32 s{sTMP+1}, s{sA}, 10
            s_add_u32 s{sTMP+1}, s{sTMP+1}, {HB+LOC}
            s_cmp_eq_u32 s{sW}, 2
            s_cselect_b32 s{sTMP}, s{sTMP}, s{sTMP+1}
            v_lshlrev_b32 v{t0}, 7, v{vL}
            s_mov_b64 exec, 0xffff
            buffer_load_dword v255, v{t0}, {WS}, s{sTMP} offen
            s_mov_b64 exec, -1
            """)
            g.lab("L_A_e3")
        if pB:
            finish_tag(g)
            sPk = 54
            g(f"""
            s_lshl_b32 s{sO}, s{sH}, 12
            s_add_u32 s{sO}, s{sO}, {H0}
            s_add_u32 s{sC}, s4, s{sO}
            s_addc_u32 s{sO3}, s5, 0
            """)
            def h0_wt(): pass
        else:
            g.fstamp(6)
            g(f"s_waitcnt vmcnt({9+self.uk_split})")
            g.fstamp(7)
            for k in range(5):
                g(f"v_alignbit_b32 v{vX+k}, v{vX+k+1}, v{vX+k}, s{sO}")
            for i in range(9):
                for d in range(4):
                    g(f"v_perm_b32 v{vF+4*i+d}, v{vX+(i>>1)}, v{vX+(i>>1)}, v{vSel+4*(i&1)+d}")
            g.fstamp(8)
            ukp = opt.get("uk_pos", 0)
            for i in range(9):
                if i == ukp: self.uk(range(self.uk_split, 8))
                g(f"s_waitcnt vmcnt({8-i+(8 if i >= ukp else self.uk_split)})")
                g(f"{MF} {v(vQ+2,4)}, {v(vF+4*i,4)}, {A(aWQ+4*i,4)}, {'0' if i == 0 else v(vQ+2,4)}")
            g.fstamp(10)
            g(f"s_cmp_eq_u32 s{sW}, 0")
            g("s_cbranch_scc1 L_A_w0a")
            g(f"v_lshl_add_u32 v{t0}, s{sW}, 10, v{vA_l16}")
            g(f"ds_write_b128 v{t0}, {v(vQ+2,4)} offset:{A_QP-1024}")
            g(f"s_cmp_lg_u32 s{sW}, 1")
            g("s_cbranch_scc1 L_A_nw1")
            g(f"s_waitcnt vmcnt({8-self.uk_split})")
            g.lab("L_A_nw1")
            g("s_waitcnt lgkmcnt(0)")
            g("s_barrier")
            g(f"s_add_u32 s{sT}, s{sT}, {K0}")
            g(f"s_add_u32 s{sT+1}, s{sT+1}, {K1}")
            g("s_branch L_A_setup")
            g.lab("L_A_w0a")
            finish_tag(g)
            sib = [0, sO, sO3, sC]
            for k in range(1, 4):
                g(f"s_xor_b32 s{sTMP}, s{sA}, {k}")
                g(f"s_lshl_b32 s{sTMP}, s{sTMP}, 11")
                g(f"s_add_u32 s{sib[k]}, s{sTMP}, {H0+LOC}")
            g(f"""
            v_mov_b32 v{vQ}, s{sT}
            v_mov_b32 v{vQ+1}, s{sT+1}
            v_mov_b32 v{vQ+6}, s{sT}
            v_mov_b32 v{vQ+7}, s{sT+1}
            s_lshl_b32 s{sTMP+1}, s{sA}, 11
            s_add_u32 s{sTMP+1}, s{sTMP+1}, {H0+LOC}
            s_barrier
            """)
            for k in range(3):
                g(f"ds_read_b128 {v(vR+4*k,4)}, v{vA_l16} offset:{A_QP+k*1024}")
            g("s_waitcnt lgkmcnt(1)")
            g(f"v_pk_add_f32 {v(vQ+2,2)}, {v(vQ+2,2)}, {v(vR,2)}")
            g(f"v_pk_add_f32 {v(vQ+4,2)}, {v(vQ+4,2)}, {v(vR+2,2)}")
            g("s_waitcnt lgkmcnt(0)")
            g(f"v_pk_add_f32 {v(vR+4,2)}, {v(vR+4,2)}, {v(vR+8,2)}")
            g(f"v_pk_add_f32 {v(vR+6,2)}, {v(vR+6,2)}, {v(vR+10,2)}")
            g(f"v_pk_add_f32 {v(vQ+2,2)}, {v(vQ+2,2)}, {v(vR+4,2)}")
            g(f"v_pk_add_f32 {v(vQ+4,2)}, {v(vQ+4,2)}, {v(vR+6,2)}")
            g(f"buffer_store_dwordx4 {v(vQ,4)}, v{vA_l16}, {WS}, s{sTMP+1} offen")
            g(f"buffer_store_dwordx4 {v(vQ+4,4)}, v{vA_l16}, {WS}, s{sTMP+1} offen offset:1024")
            def h0_wt():
                g(f"s_lshl_b32 s{sTMP+1}, s{sA}, 11")
                g(f"s_add_u32 s{sTMP+1}, s{sTMP+1}, {H0}")
                g(f"buffer_store_dwordx4 {v(vQ,4)}, v{vA_l16}, {WS}, s{sTMP+1} offen sc1")
                g(f"buffer_store_dwordx4 {v(vQ+4,4)}, v{vA_l16}, {WS}, s{sTMP+1} offen offset:1024 sc1")
            g.stamp(2)
        g.lab("L_A_setup")
        srd(g, 20, 4, 512 * 8192)
        srd(g, 24, 5, 4096 * 1152)
        srd(g, 32, 11, 1152)
        srd(g, 36, 12, 2304)
        srd(g, 12, 7, 576 * 9216)
        vBell = 111
        g(f"""
        v_bfe_u32 v{t0}, v{vL}, 2, 2
        v_lshlrev_b32 v{vA_h1}, 15, v{vG}
        v_lshl_add_u32 v{vA_h1}, v{t0}, 4, v{vA_h1}
        s_lshl_b32 s{sQ}, s{sA}, 2
        s_add_u32 s{sQ}, s{sQ}, s{sW}
        s_lshl_b32 s{sQ}, s{sQ}, 6
        s_add_u32 s{sQ}, s{sQ}, {QB}
        v_bfe_u32 v{t0}, v{vL}, 2, 1
        v_lshlrev_b32 v{t0}, 8, v{t0}
        v_lshl_add_u32 v{t0}, v{vG}, 6, v{t0}
        v_and_b32 v{t1}, 3, v{vL}
        v_lshl_add_u32 v{t0}, v{t1}, 4, v{t0}
        v_add_u32 v{t0}, {A_QL}, v{t0}
        v_mov_b32 v{t1}, {A_ZERO}
        v_cmp_gt_u32 vcc, 8, v{vN}
        v_cndmask_b32 v{vA_qlo}, v{t1}, v{t0}, vcc
        v_cndmask_b32 v{vA_qhi}, v{t0}, v{t1}, vcc
        v_and_b32 v{t0}, 1, v{vL}
        v_cmp_eq_u32 s[{sM1}:{sM1+1}], 1, v{t0}
        v_and_b32 v{t0}, 2, v{vL}
        v_cmp_eq_u32 s[{sM2}:{sM2+1}], 2, v{t0}
        v_mov_b32 v{vTag}, s{sT}
        v_mov_b32 v{vTag+1}, s{sT+1}
        v_lshlrev_b32 v{vBell}, 12, v{vL}
        s_lshl_b32 s{sO2}, s{sH}, 5
        s_add_u32 s{sO2}, s{sO2}, s{sJ}
        s_lshl_b32 s{sO2}, s{sO2}, 2
        s_add_u32 s{sO2}, s{sO2}, {D1}
        """)
        if opt.get("q_direct", 0):
            g(f"""
            s_cmp_lg_u32 s{sW}, 2
            s_cbranch_scc1 L_A_nordy
            s_mov_b64 exec, 0xff
            buffer_store_dword v{vTag}, v{vBell}, {WS}, s{sO2} offen sc1
            s_mov_b64 exec, -1
            """)
            g.lab("L_A_nordy")
            g(f"""
            v_bfe_u32 v{t0}, v{vL}, 2, 2
            v_lshlrev_b32 v{vA_h1}, 8, v{vG}
            v_lshl_add_u32 v{vA_h1}, v{t0}, 4, v{vA_h1}
            v_lshl_add_u32 v{vA_h1}, s{sW}, 6, v{vA_h1}
            v_lshlrev_b32 v{vBell}, 15, v{vG}
            v_lshl_add_u32 v{vBell}, v{vN}, 4, v{vBell}
            s_lshl_b32 s{sQ}, s{sA}, 8
            s_add_u32 s{sQ}, s{sQ}, {QB}
            """)
        g(f"""
        v_mov_b32 v{t2}, 0
        v_mov_b32 v{t3}, 0
        ds_write_b64 v{t1}, {v(t2,2)}
        ds_write_b64 v{t1}, {v(t2,2)} offset:8
        v_lshrrev_b32 v{vQw}, 1, v{vG}
        v_lshlrev_b32 v{vQw}, 8, v{vQw}
        v_lshl_add_u32 v{vQw}, v{vN}, 4, v{vQw}
        v_and_b32 v{t1}, 1, v{vG}
        v_lshl_add_u32 v{vQw}, v{t1}, 3, v{vQw}
        """)
        def h0loads():
            if pB:
                for k in range(4):
                    g(f"buffer_load_dwordx4 {v(vR+4*k,4)}, v{vA_l16}, {WS}, s{sO} offen offset:{k*1024} sc1")
                return
            for k in range(1, 4):
                g(f"buffer_load_dwordx4 {v(vR+8*(k-1),4)}, v{vA_l16}, {WS}, s{sib[k]} offen sc1")
                g(f"buffer_load_dwordx4 {v(vR+8*(k-1)+4,4)}, v{vA_l16}, {WS}, s{sib[k]} offen offset:1024 sc1")
        sRho, sBlk, sR0 = 60, 43, 62
        vXr, vS1, vXA, vW1a, vHs, vXa = 116, 140, 152, 144, 145, 146
        aW1 = 80
        if opt.get('w1_on', 'A') == 'A':
            g(f"""
            s_lshl_b32 s{sBlk}, s{sA}, 2
            s_add_u32 s{sBlk}, s{sBlk}, s{sW}
            s_mul_i32 s{sRho}, s{sBlk}, 1821
            s_lshr_b32 s{sRho}, s{sRho}, 16
            s_mul_i32 s{sTMP}, s{sRho}, 36
            s_sub_u32 s{sBlk}, s{sBlk}, s{sTMP}
            s_min_u32 s{sTMP}, s{sRho}, 4
            s_mul_i32 s{sR0}, s{sRho}, 10
            s_add_u32 s{sR0}, s{sR0}, s{sTMP}
            s_lshl_b32 s{sR0}, s{sR0}, 2
            v_bfe_u32 v{t0}, v{vL}, 3, 1
            v_mul_u32_u24 v{vXa}, 1152, v{t0}
            v_mul_u32_u24 v{vW1a}, 9216, v{vG}
            v_lshl_add_u32 v{vW1a}, v{vN}, 4, v{vW1a}
            """)
            assert all((i * 1821) >> 16 == i // 36 for i in range(512))
            g(f"s_lshl_b32 s{sTMP}, s{sR0}, 1")
            for k in range(5):
                g(f"buffer_load_dwordx4 {v(vXr+4*k,4)}, v{vXa}, {X}, s{sTMP} offen offset:{16*k}")
            g(f"buffer_load_dwordx2 {v(vXr+20,2)}, v{vXa}, {X}, s{sTMP} offen offset:80")
        if not pB:
            g(f"s_cmp_lg_u32 s{sW}, 0")
            g("s_cbranch_scc1 L_A_s2")
            h0loads()
            g.lab("L_A_s2")
        vUV0, vUV1 = 20, 21
        vP2 = 22
        g(f"""
        v_lshlrev_b32 v{t0}, 1, v{vG}
        v_xor_b32 v{t0}, v{t0}, v{vN}
        v_lshlrev_b32 v{vUV0}, 17, v{vG}
        v_lshl_add_u32 v{vUV0}, v{t0}, 4, v{vUV0}
        v_xor_b32 v{vUV1}, 128, v{vUV0}
        """)
        uve = opt.get("uv_early", 0)
        nuv = 8 if "uv" not in opt.get("skip", "") else 0
        def uv_stream():
            sa, sb = 47, 59
            g(f"""
            s_lshl_b32 s{sa}, s{sJ}, 5
            s_add_u32 s{sa}, s{sa}, s{sW}
            s_lshl_b32 s{sa}, s{sa}, 15
            s_lshl_b32 s{sb}, s{sH}, 8
            s_add_u32 s{sa}, s{sa}, s{sb}
            s_lshl_b32 s{sb}, s{sW}, 13
            """)
            for z in range(nuv):
                hi, gg = z >> 2, z & 3
                if opt.get("uv_thr") and not uve: g(f"s_waitcnt vmcnt({opt['uv_thr']-1})")
                g(f"s_add_u32 m0, s{sb}, {A_WUV + z*1024}")
                g(f"s_add_u32 s{sTMP}, s{sa}, {(64*hi+gg)*8192}")
                g(f"buffer_load_dwordx4 v{vUV1 if z & 1 else vUV0}, {WUV}, s{sTMP} offen {NT} lds")
        if uve == 1:
            g("s_waitcnt lgkmcnt(0)")
            uv_stream()
        for i in range(9):
            unit_pattern(g, vP2 + i, vL, None, i, 1152, t0, t1)
        if opt.get('w1_on', 'A') == 'A':
            g(f"""
            v_lshrrev_b32 v{t0}, 5, v{vL}
            v_mul_u32_u24 v{vHs}, 18432, v{t0}
            v_and_b32 v{t0}, 31, v{vL}
            v_lshl_add_u32 v{vHs}, v{t0}, 4, v{vHs}
            v_mul_u32_u24 v{t0}, 0x0202, v{vG}
            v_add_u32 v{t0}, 0x0100, v{t0}
            v_and_b32 v{t1}, 1, v{vL}
            v_lshlrev_b32 v{t1}, 4, v{t1}
            v_lshlrev_b32 v{t0}, v{t1}, v{t0}
            v_mov_b32 v{t2}, 0x0c0c0000
            v_lshrrev_b32 v{t2}, v{t1}, v{t2}
            v_or_b32 v{t0}, v{t0}, v{t2}
            v_bfe_u32 v{t1}, v{vL}, 1, 2
            v_mov_b32 v{t2}, 0x0c0c0c0c
            """)
            for d in range(4):
                g(f"v_cmp_eq_u32 vcc, {d}, v{t1}")
                g(f"v_cndmask_b32 v{vS1+d}, v{t2}, v{t0}, vcc")
        if uve == 2:
            g("s_waitcnt lgkmcnt(0)")
            uv_stream()
        g(f"s_mov_b32 s{sCNT}, 0")
        g(f"s_cmp_lg_u32 s{sW}, 0")
        g("s_cbranch_scc1 L_A_h0wait")
        if pB:
            g(f"""
            s_mov_b32 s{sTMP}, s{sC}
            s_mov_b32 s{sTMP+1}, s{sO3}
            s_and_b32 s{sC}, s{sT}, 15
            """)
            g.lab("L_A_peek")
            for k in range(4):
                g(f"s_load_dword s{16+k}, s[{sTMP}:{sTMP+1}], {k*1024+opt.get('peek_off', 1020)} glc")
            spin_guard(g, "L_A_peek2")
            g("s_waitcnt lgkmcnt(0)")
            for k in range(4):
                g(f"s_xor_b32 s{16+k}, s{16+k}, s{sC}")
            g("s_or_b64 s[16:17], s[16:17], s[18:19]")
            g("s_or_b32 s16, s16, s17")
            g("s_and_b32 s16, s16, 15")
            g("s_cbranch_scc1 L_A_peek")
            g.lab("L_A_peek2")
            g.stamp(2)
            g.lab("L_A_h0get")
            h0loads()
            g("s_waitcnt vmcnt(0)")
        else:
            g(f"s_waitcnt vmcnt({nuv if uve else 0})")
        g.lab("L_A_h0chk")
        if opt.get("fst"):
            g(f"s_cmp_lg_u32 s{sCNT}, 0")
            g("s_cbranch_scc1 L_A_fs11")
            g.fstamp(11)
            g.lab("L_A_fs11")
        if pB:
            for k in range(16):
                g(f"v_xor_b32 v{vR+k}, s{sC}, v{vR+k}")
            g(f"v_or3_b32 v{t0}, v{vR}, v{vR+1}, v{vR+2}")
            g(f"v_or3_b32 v{t1}, v{vR+3}, v{vR+4}, v{vR+5}")
            for k in range(6, 14, 4):
                g(f"v_or3_b32 v{t0}, v{t0}, v{vR+k}, v{vR+k+1}")
                g(f"v_or3_b32 v{t1}, v{t1}, v{vR+k+2}, v{vR+k+3}")
            g(f"v_or3_b32 v{t0}, v{t0}, v{vR+14}, v{vR+15}")
            g(f"v_bitop3_b32 v{t0}, v{t0}, v{t1}, 15 bitop3:0xa8")
            g(f"v_cmp_ne_u32 vcc, 0, v{t0}")
            g("s_cbranch_vccnz L_A_h0poll")
        else:
            for k in range(3):
                g(f"v_cmp_ne_u64 vcc, s[{sT}:{sT+1}], {v(vR+8*k,2)}")
                g(f"v_cmp_ne_u64 s[{sM3}:{sM3+1}], s[{sT}:{sT+1}], {v(vR+8*k+6,2)}")
                if k == 0: g(f"s_or_b64 s[{sM4}:{sM4+1}], vcc, s[{sM3}:{sM3+1}]")
                else:
                    g(f"s_or_b64 s[{sM4}:{sM4+1}], s[{sM4}:{sM4+1}], vcc")
                    g(f"s_or_b64 s[{sM4}:{sM4+1}], s[{sM4}:{sM4+1}], s[{sM3}:{sM3+1}]")
            g("s_cbranch_scc1 L_A_h0poll")
        g.lab("L_A_h0done")
        def d1bell(tag):
            g("s_mov_b64 exec, 0xff")
            g(f"buffer_store_dword v{vTag}, v{vBell}, {WS}, s{sO2} offen sc1")
            g("s_mov_b64 exec, -1")
        qd = opt.get("q_direct", 0)
        d1p = opt.get("d1_pos", 0) if not qd else -1
        if d1p == 0: d1bell("")
        if pB:
            g(f"v_pk_add_f32 {v(vR,2)}, {v(vR,2)}, {v(vR+4,2)}")
            g(f"v_pk_add_f32 {v(vR+2,2)}, {v(vR+2,2)}, {v(vR+6,2)}")
            g(f"v_pk_add_f32 {v(vR+8,2)}, {v(vR+8,2)}, {v(vR+12,2)}")
            g(f"v_pk_add_f32 {v(vR+10,2)}, {v(vR+10,2)}, {v(vR+14,2)}")
            g(f"v_pk_add_f32 {v(vR,2)}, {v(vR,2)}, {v(vR+8,2)}")
            g(f"v_pk_add_f32 {v(vR+2,2)}, {v(vR+2,2)}, {v(vR+10,2)}")
            g(f"v_cvt_pk_bf16_f32 v{vR}, v{vR}, v{vR+1}")
            g(f"v_cvt_pk_bf16_f32 v{vR+1}, v{vR+2}, v{vR+3}")
        else:
            g(f"v_pk_add_f32 {v(vR+2,2)}, {v(vQ+2,2)}, {v(vR+2,2)}")
            g(f"v_pk_add_f32 {v(vR+4,2)}, {v(vQ+4,2)}, {v(vR+4,2)}")
            g(f"v_pk_add_f32 {v(vR+10,2)}, {v(vR+10,2)}, {v(vR+18,2)}")
            g(f"v_pk_add_f32 {v(vR+12,2)}, {v(vR+12,2)}, {v(vR+20,2)}")
            g(f"v_pk_add_f32 {v(vR+2,2)}, {v(vR+2,2)}, {v(vR+10,2)}")
            g(f"v_pk_add_f32 {v(vR+4,2)}, {v(vR+4,2)}, {v(vR+12,2)}")
            g(f"v_cvt_pk_bf16_f32 v{vR}, v{vR+2}, v{vR+3}")
            g(f"v_cvt_pk_bf16_f32 v{vR+1}, v{vR+4}, v{vR+5}")
        g(f"ds_write_b64 v{vQw}, {v(vR,2)} offset:{A_QL}")
        g("s_waitcnt lgkmcnt(0)")
        g("s_barrier")
        g(f"ds_read_b128 {v(vQlo,4)}, v{vA_qlo}")
        g(f"ds_read_b128 {v(vQhi,4)}, v{vA_qhi}")
        if d1p == 1: d1bell("")
        g("s_branch L_A_p1b")
        g.lab("L_A_h0wait")
        g(f"s_waitcnt vmcnt({nuv if uve else 0}) lgkmcnt(0)")
        g.fstamp(12)
        g("s_barrier")
        g(f"ds_read_b128 {v(vQlo,4)}, v{vA_qlo}")
        g(f"ds_read_b128 {v(vQhi,4)}, v{vA_qhi}")
        g.lab("L_A_p1b")
        g.stamp(3)
        g("s_waitcnt lgkmcnt(0)")
        for t in range(4):
            g(f"{MF} {v(vAcc+4*t,4)}, {v(vQlo,4)}, {A(aUK+8*t,4)}, 0")
        for t in range(4):
            g(f"{MF} {v(vAcc+4*t,4)}, {v(vQhi,4)}, {A(aUK+8*t+4,4)}, {v(vAcc+4*t,4)}")
        if d1p == 2:
            g(f"s_cmp_lg_u32 s{sW}, 0")
            g("s_cbranch_scc1 L_A_nod1")
            d1bell("")
            g.lab("L_A_nod1")
        for t in range(4):
            a0 = vAcc + 4 * t
            g(f"v_cndmask_b32 v{a0}, v{a0}, v{a0+1}, s[{sM1}:{sM1+1}]")
            g(f"v_cndmask_b32 v{a0+2}, v{a0+2}, v{a0+3}, s[{sM1}:{sM1+1}]")
            g(f"v_cndmask_b32 v{a0}, v{a0}, v{a0+2}, s[{sM2}:{sM2+1}]")
        for t in range(4):
            a0 = vAcc + 4 * t
            g(f"v_add_f32_dpp v{a0+1}, v{a0}, v{a0} quad_perm:[1,0,3,2] row_mask:0xf bank_mask:0xf")
        for t in range(4):
            a0 = vAcc + 4 * t
            g(f"v_add_f32_dpp v{a0}, v{a0+1}, v{a0+1} quad_perm:[2,3,0,1] row_mask:0xf bank_mask:0xf")
        g(f"v_cvt_pk_bf16_f32 v{vGr}, v{vAcc}, v{vAcc+4}")
        g(f"v_cvt_pk_bf16_f32 v{vGr+1}, v{vAcc+8}, v{vAcc+12}")
        g(f"v_permlane32_swap_b32 v{vGr}, v{vGr+2}")
        g(f"v_permlane32_swap_b32 v{vGr+1}, v{vGr+3}")
        if qd:
            g(f"""
            s_mov_b64 exec, 0x11111111
            ds_write_b128 v{vA_h1}, {v(vGr,4)} offset:{A_CTXC}
            s_mov_b64 exec, -1
            s_waitcnt lgkmcnt(0)
            s_barrier
            s_cmp_lg_u32 s{sW}, 3
            s_cbranch_scc1 L_A_noq
            s_mov_b32 exec_hi, 0
            ds_read_b128 {v(vGr,4)}, v{vA_l16} offset:{A_CTXC}
            s_waitcnt lgkmcnt(0)
            buffer_store_dwordx4 {v(vGr,4)}, v{vBell}, {WS}, s{sQ} offen sc1
            s_mov_b64 exec, -1
            """)
            g.lab("L_A_noq")
        else:
            g(f"""
            s_mov_b64 exec, 0x11111111
            buffer_store_dwordx4 {v(vGr,4)}, v{vA_h1}, {WS}, s{sQ} offen sc1
            s_mov_b64 exec, -1
            """)
        if d1p == 3:
            g(f"s_cmp_lg_u32 s{sW}, 0")
            g("s_cbranch_scc1 L_A_nod1")
            d1bell("")
            g.lab("L_A_nod1")
        g.stamp(4)
        if opt.get("a_wait", 0): g("s_waitcnt vmcnt(0)")
        if opt.get("a_gate"):
            sD = [16, 52, 56, 28]
            g(f"""
            s_lshl_b32 s{sTMP}, s{sXCD}, 3
            s_lshr_b32 s{sTMP+1}, s{sH}, 4
            s_lshl_b32 s{sTMP+1}, s{sTMP+1}, 2
            s_add_u32 s{sTMP}, s{sTMP}, s{sTMP+1}
            s_add_u32 s{sTMP}, s{sTMP}, s{sW}
            s_lshl_b32 s{sTMP}, s{sTMP}, 9
            s_add_u32 s{sTMP}, s{sTMP}, {D1}
            s_add_u32 s{sTMP}, s4, s{sTMP}
            s_addc_u32 s{sTMP+1}, s5, 0
            s_mov_b32 s{sPC}, s{sT}
            s_mov_b32 s{sPC+1}, s{sT}
            s_mov_b32 s{sCNT}, 0
            """)
            g.lab("L_A_gate")
            for k in range(4):
                g(f"s_load_dwordx4 s[{sD[k]}:{sD[k]+3}], s[{sTMP}:{sTMP+1}], {k*128} glc")
            spin_guard(g, "L_A_gate2")
            g("s_waitcnt lgkmcnt(0)")
            for k in range(4):
                g(f"s_xor_b64 s[{sD[k]}:{sD[k]+1}], s[{sD[k]}:{sD[k]+1}], s[{sPC}:{sPC+1}]")
                g(f"s_xor_b64 s[{sD[k]+2}:{sD[k]+3}], s[{sD[k]+2}:{sD[k]+3}], s[{sPC}:{sPC+1}]")
                g(f"s_or_b64 s[{sD[k]}:{sD[k]+1}], s[{sD[k]}:{sD[k]+1}], s[{sD[k]+2}:{sD[k]+3}]")
            g("s_or_b64 s[16:17], s[16:17], s[52:53]")
            g("s_or_b64 s[56:57], s[56:57], s[28:29]")
            g("s_or_b64 s[16:17], s[16:17], s[56:57]")
            g("s_cbranch_scc1 L_A_gate")
            g.lab("L_A_gate2")
            g("s_waitcnt lgkmcnt(0)")
            if opt["a_gate"] == 2: g("s_barrier")
            g(f"v_and_b32 v{t0}, 2, v{vL}")
            g(f"v_cmp_eq_u32 s[{sM2}:{sM2+1}], 2, v{t0}")
        if opt.get("a_sleep"): g(f"s_sleep {opt['a_sleep']}")
        srd(g, 28, 10, 1152)
        def w1_frags():
            for i in range(11):
                for d in range(4):
                    g(f"v_perm_b32 v{vXA+4*i+d}, v{vXr+2*i+1}, v{vXr+2*i}, v{vS1+d}")
        w1a = opt.get("w1_on", "A") == "A"
        nw1 = 0 if ("w1" in opt.get("skip", "") or not w1a) else 11
        if w1a:
            g(f"s_mul_i32 s{sO2}, s{sR0}, 9216")
            g(f"s_lshl_b32 s{sO3}, s{sBlk}, 8")
            g(f"s_add_u32 s{sO2}, s{sO2}, s{sO3}")
        for i in range(nw1):
            if opt.get("w1_thr") and i >= opt["w1_thr"]: g(f"s_waitcnt vmcnt({opt['w1_thr']-1})")
            g(f"buffer_load_dwordx4 {A(aW1+4*i,4)}, v{vW1a}, {W1}, s{sO2} offen {NT}")
            if i == (opt.get("w1_thr") or 11) - 1: w1_frags()
            if i < 10: g(f"s_add_u32 s{sO2}, s{sO2}, {4*9216}")
            if i == 9:
                g(f"s_cmp_ge_u32 s{sRho}, 4")
                g(f"s_cselect_b32 s{sO2}, {576*9216}, s{sO2}")
        if not uve: uv_stream()
        def w1_gemv(younger):
            if not w1a: return
            vH = 148
            g(f"s_waitcnt vmcnt({younger})")
            for i in range(10):
                g(f"{MF} {v(vH,4)}, {v(vXA+4*i,4)}, {A(aW1+4*i,4)}, {'0' if i == 0 else v(vH,4)}")
            g(f"s_cmp_ge_u32 s{sRho}, 4")
            g("s_cbranch_scc1 L_A_w1s")
            g(f"{MF} {v(vH,4)}, {v(vXA+40,4)}, {A(aW1+40,4)}, {v(vH,4)}")
            g.lab("L_A_w1s")
            g(f"""
            s_mul_i32 s{sO}, s{sRho}, 36864
            s_lshl_b32 s{sO3}, s{sBlk}, 9
            s_add_u32 s{sO}, s{sO}, s{sO3}
            s_add_u32 s{sO}, s{sO}, {HH}
            s_and_b32 s{sO3}, s{sT}, 15
            """)
            for r in range(4):
                g(f"v_and_or_b32 v{vH+r}, v{vH+r}, -16, s{sO3}")
            g(f"buffer_store_dwordx4 {v(vH,4)}, v{vHs}, {WS}, s{sO} offen sc1")
        if not opt.get("w1_late"): w1_gemv(0 if uve else nuv)
        wol = opt.get("wo_late", 0)
        if not wol:
            g(f"s_mul_i32 s{sO2}, s{sA}, {32*1152}")
            unit_load(g, WO, vP2, A_WO, sO2, 1152, "wo", NT, rows36=False, thr=opt.get("a_thr"))
        if opt.get("w1_late") == 1: w1_gemv(9)
        if not opt.get('clk'): g.stamp(14)
        vGx, vGw, vB2 = 48, 60, 72
        vOA, vFB = 73, 74
        g(f"v_mov_b32 v{vOA}, 0")
        g("s_waitcnt lgkmcnt(0)")
        g(f"s_cmp_lg_u32 s{sW}, 0")
        g("s_cbranch_scc1 L_A_nogate")
        h0_wt()
        g(f"""
        s_cmp_ge_u32 s{sA}, 36
        s_cbranch_scc1 L_A_nogate
        v_and_b32 v{t0}, 31, v{vL}
        v_mul_u32_u24 v{t1}, 36, v{t0}
        v_lshrrev_b32 v{t2}, 5, v{vL}
        v_mul_u32_u24 v{t2}, 1152, v{t2}
        v_add_u32 v{t2}, v{t2}, v{t1}
        buffer_load_dwordx4 {v(vGx,4)}, v{t2}, {X}, 0 offen
        buffer_load_dwordx4 {v(vGx+4,4)}, v{t2}, {X}, 0 offen offset:16
        buffer_load_dword v{vGx+8}, v{t2}, {X}, 0 offen offset:32
        buffer_load_dwordx4 {v(vGw,4)}, v{t1}, {GATE}, 0 offen
        buffer_load_dwordx4 {v(vGw+4,4)}, v{t1}, {GATE}, 0 offen offset:16
        buffer_load_dword v{vGw+8}, v{t1}, {GATE}, 0 offen offset:32
        s_cmp_ge_u32 s{sA}, 32
        s_cbranch_scc1 L_A_uleft
        s_lshr_b32 s{sO}, s{sA}, 2
        s_lshl_b32 s{sO}, s{sO}, 4
        s_and_b32 s{sO3}, s{sA}, 1
        s_lshl_b32 s{sO3}, s{sO3}, 3
        s_add_u32 s{sO}, s{sO}, s{sO3}
        v_and_b32 v{t1}, 3, v{t0}
        v_lshlrev_b32 v{t1}, 7, v{t1}
        v_lshrrev_b32 v{t2}, 2, v{t0}
        v_add3_u32 v{t1}, v{t1}, v{t2}, s{sO}
        s_bfe_u32 s{sO3}, s{sA}, 0x10001
        v_mov_b32 v{vFB}, s{sO3}
        s_branch L_A_ujoin
        """)
        g.lab("L_A_uleft")
        g(f"""
        s_lshl_b32 s{sO}, s{sA}, 4
        v_and_b32 v{t1}, 15, v{t0}
        v_add_u32 v{t1}, s{sO}, v{t1}
        v_lshrrev_b32 v{vFB}, 4, v{t0}
        """)
        g.lab("L_A_ujoin")
        g(f"""
        v_lshlrev_b32 v{t1}, 1, v{t1}
        buffer_load_ushort v{vB2}, v{t1}, {B2}, 0 offen
        v_mul_u32_u24 v{vOA}, 1152, v{vFB}
        v_add_u32 v{vOA}, v{vOA}, v{t1}
        """)
        g.lab("L_A_nogate")
        vH3, vH3x = 32, 33
        vHBs = 39
        sH3m, sH3l, sHB, sHH = 63, 47, 61, 62
        vTU0, vTU1, vTO0, vTO1 = 34, 35, 36, 37
        vCX, vCW, vHBl, vD2, vOg, vWTw, vWTr = 38, 46, 40, 41, 42, 43, 44
        vT1, vK1 = 75, 57
        def later_addresses():
            g(f"""
            s_mul_i32 s{sH3l}, s{sA}, {OSTR}
            s_add_u32 s{sH3l}, s{sH3l}, {OB}
            s_lshl_b32 s{sTMP}, s{sW}, 10
            s_add_u32 s{sH3m}, s{sH3l}, s{sTMP}
            s_lshl_b32 s{sTMP}, s{sW}, 8
            s_add_u32 s{sH3l}, s{sH3l}, s{sTMP}
            s_add_u32 s{sH3l}, s{sH3l}, 4096
            v_lshlrev_b32 v{vH3x}, 2, v{vL}
            """)
            g(f"""
            v_lshlrev_b32 v{vHBs}, 7, v{vG}
            v_and_b32 v{t0}, 1, v{vL}
            v_lshl_add_u32 v{vHBs}, v{t0}, 6, v{vHBs}
            v_bfe_u32 v{t0}, v{vL}, 1, 1
            v_lshl_add_u32 v{vHBs}, v{t0}, 9, v{vHBs}
            s_lshl_b32 s{sHB}, s{sH}, 2
            s_add_u32 s{sHB}, s{sHB}, s{sW}
            s_lshl_b32 s{sHB}, s{sHB}, 6
            s_add_u32 s{sHB}, s{sHB}, s{sJ}
            s_lshl_b32 s{sHB}, s{sHB}, 4
            s_add_u32 s{sHB}, s{sHB}, {HB}
            v_lshrrev_b32 v{t0}, 2, v{vL}
            v_bfe_u32 v{t1}, v{vL}, 1, 1
            v_lshl_add_u32 v{t1}, s{sW}, 2, v{t1}
            v_and_b32 v{t2}, 7, v{t0}
            v_lshlrev_b32 v{t2}, 1, v{t2}
            v_xor_b32 v{t1}, v{t1}, v{t2}
            v_lshlrev_b32 v{vTU0}, 8, v{t0}
            v_lshl_add_u32 v{vTU0}, v{t1}, 4, v{vTU0}
            v_and_b32 v{t1}, 1, v{vL}
            v_lshl_add_u32 v{vTU0}, v{t1}, 3, v{vTU0}
            v_xor_b32 v{vTU1}, 32, v{vTU0}
            """)
            assert A_WUV == 0
            tr_pair_bases(g, vTO0, vTO1, None, None, vL, A_WO, t0, t1, t2)
            g(f"""
            v_and_b32 v{t0}, 1, v{vL}
            v_lshlrev_b32 v{vCX}, 9, v{t0}
            v_bfe_u32 v{t0}, v{vL}, 1, 1
            v_lshl_add_u32 v{vCX}, v{t0}, 8, v{vCX}
            v_lshl_add_u32 v{vCX}, v{vG}, 4, v{vCX}
            v_and_b32 v{t0}, 1, v{vG}
            v_lshlrev_b32 v{vCW}, 3, v{t0}
            v_lshl_add_u32 v{vCW}, v{vN}, 4, v{vCW}
            v_lshl_add_u32 v{vCW}, s{sW}, 8, v{vCW}
            v_and_b32 v{t0}, 7, v{vL}
            v_lshlrev_b32 v{vHBl}, 4, v{t0}
            v_lshl_add_u32 v{vHBl}, v{vG}, 7, v{vHBl}
            v_and_b32 v{t0}, 31, v{vL}
            v_lshlrev_b32 v{vD2}, 8, v{t0}
            v_lshlrev_b32 v{vOg}, 10, v{vG}
            v_lshl_add_u32 v{vOg}, v{vN}, 4, v{vOg}
            v_lshlrev_b32 v{vWTw}, 1, v{t0}
            v_lshl_add_u32 v{vWTw}, s{sW}, 6, v{vWTw}
            s_and_b32 s{sTMP}, s{sW}, 1
            s_lshl_b32 s{sTMP}, s{sTMP}, 5
            s_lshl_b32 s{sTMP+1}, s{sW}, 6
            s_add_u32 s{sTMP}, s{sTMP}, s{sTMP+1}
            v_lshl_add_u32 v{vWTr}, v{vG}, 3, s{sTMP}
            v_cmp_gt_u32 s[{sM1}:{sM1+1}], 8, v{vN}
            """)
        later_addresses()
        g("s_waitcnt vmcnt(0)")
        g("s_barrier")
        g.stamp(5)
        aUV, aWO = 0, 32
        vDB = 88
        vDL = 92
        vO = 96
        vFr = 116
        vWt = 132
        vD = 136
        vLs, vWr, vEr = 140, 141, 142
        g(f"""
        s_lshr_b32 s{sO}, s{sH}, 4
        s_lshl_b32 s{sO}, s{sO}, 1
        s_lshr_b32 s{sO3}, s{sW}, 1
        s_add_u32 s{sO}, s{sO}, s{sO3}
        s_lshl_b32 s{sO}, s{sO}, 13
        s_and_b32 s{sO3}, s{sH}, 15
        s_lshl_b32 s{sO3}, s{sO3}, 4
        s_add_u32 s{sO}, s{sO}, s{sO3}
        s_add_u32 s{sO2}, s{sO}, {DL}
        s_add_u32 s{sO}, s{sO}, {D2}
        """)
        epos = opt.get("e_pos")
        if epos is None: g(f"buffer_load_dwordx4 {v(vDB,4)}, v{vD2}, {WS}, s{sO} offen sc1")
        if opt.get("w1_late") == 2:
            g(f"s_mov_b32 s{sC}, s{sO}")
            w1_gemv(1)
            g(f"s_mov_b32 s{sO}, s{sC}")
        for tau in range(2):
            for ks in range(4):
                for hi in range(2):
                    g(f"ds_read_b64_tr_b16 {A(aUV+(tau*4+ks)*4+2*hi,2)}, v{vTU1 if tau else vTU0} offset:{ks*8192+hi*4096}")
        def wo_frags():
            for t in range(5):
                for x in range(2):
                    for hi in range(2):
                        g(f"ds_read_b64_tr_b16 {A(aWO+(t*2+x)*4+2*hi,2)}, v{vTO1 if x else vTO0} offset:{hi*16*1152+t*256}")
        if not wol: wo_frags()
        sBP = 34
        sHI, sTT = sPOI, sPC
        sX, sP4 = 32, 33
        g(f"""
        s_and_b32 s{sTMP}, s{sW}, 1
        s_lshl_b32 s{sTMP}, s{sTMP}, 12
        s_add_u32 s{sTMP}, s{sTMP}, s{sO2}
        s_add_u32 s{sBP}, s4, s{sTMP}
        s_addc_u32 s{sBP+1}, s5, 0
        s_mul_i32 s{sO3}, s{sA}, {OSTR}
        s_lshl_b32 s{sTMP}, s{sW}, 12
        s_add_u32 s{sO3}, s{sO3}, s{sTMP}
        s_add_u32 s{sO3}, s{sO3}, {OB}
        s_bitcmp1_b32 s{sT}, 0
        s_cselect_b32 s{sX}, 0x10001, 0
        s_mov_b32 s{sHI}, 0x10000
        s_mov_b32 s{sTT}, s{sT}
        s_mov_b32 s{sTT+1}, s{sT}
        """)
        g(f"v_mov_b32 v{t0}, 0")
        for k in range(9):
            g(f"v_dot2_f32_bf16 v{t0}, v{vGx+k}, v{vGw+k}, v{t0}")
        g("s_nop 2")
        for r in (8, 4, 2, 1):
            g(f"v_add_f32_dpp v{t0}, v{t0}, v{t0} row_ror:{r} row_mask:0xf bank_mask:0xf")
        g(f"""
        v_mov_b32 v{t1}, v{t0}
        v_permlane16_swap_b32 v{t0}, v{t1}
        v_add_f32 v{t0}, v{t0}, v{t1}
        v_mul_f32 v{t0}, {hex(fbits(-math.log2(math.e)))}, v{t0}
        v_exp_f32 v{t0}, v{t0}
        v_add_f32 v{t0}, 1.0, v{t0}
        v_rcp_f32 v{t0}, v{t0}
        v_cmp_eq_u32 vcc, 1, v{vFB}
        v_mov_b32 v{t1}, v{t0}
        v_permlane32_swap_b32 v{t0}, v{t1}
        v_cndmask_b32 v{vFB}, v{t0}, v{t1}, vcc
        v_lshlrev_b32 v{vB2}, 16, v{vB2}
        s_mov_b32 s{sCNT}, 0
        """)
        if epos is None:
            g(f"s_waitcnt vmcnt({1 if opt.get('w1_late') == 2 else 0})")
            g("s_branch L_A_d2chk")
        else:
            g(f"""
            s_lshr_b32 s{sTMP}, s{sH}, 4
            s_lshl_b32 s{sTMP}, s{sTMP}, 2
            s_add_u32 s{sTMP}, s{sTMP}, s{sW}
            s_lshl_b32 s{sTMP}, s{sTMP}, 11
            s_mul_i32 s{sTMP+1}, s{sXCD}, {16384 if opt.get("e_rep") else 0}
            s_add_u32 s{sTMP}, s{sTMP}, s{sTMP+1}
            s_add_u32 s{sTMP}, s{sTMP}, {DE2 if opt.get("e_rep") else DE}
            v_lshrrev_b32 v{t2}, 1, v{vD2}
            s_mov_b64 exec, 0xffff
            """)
            g.lab("L_A_epoll")
            g(f"buffer_load_dwordx2 {v(t0,2)}, v{t2}, {WS}, s{sTMP} offen offset:8 sc1")
            spin_guard(g, "L_A_edone")
            g("s_waitcnt vmcnt(0)")
            g(f"v_cmp_ne_u64 vcc, s[{sT}:{sT+1}], {v(t0,2)}")
            g("s_mov_b64 exec, vcc")
            g("s_cbranch_vccnz L_A_epoll")
            g.lab("L_A_edone")
            g("s_mov_b64 exec, -1")
            g("s_mov_b64 vcc, -1")
            if opt.get("st14e"): g.stamp(14)
            if opt.get("e_sleep"): g(f"s_sleep {opt['e_sleep']}")
            g(f"s_mov_b32 s{sCNT}, 0")
        g.lab("L_A_d2poll")
        if opt.get("m_shrink"): g("s_mov_b64 exec, vcc")
        if opt.get("m_sleep"): g(f"s_sleep {opt['m_sleep']}")
        g(f"buffer_load_dwordx4 {v(vDB,4)}, v{vD2}, {WS}, s{sO} offen sc1")
        g(f"s_add_u32 s{sCNT}, s{sCNT}, 1")
        g(f"s_cmp_gt_u32 s{sCNT}, {opt.get('spin', SPIN)}")
        g("s_waitcnt vmcnt(0)")
        g("s_cbranch_scc1 L_A_d2done")
        g.lab("L_A_d2chk")
        g(f"v_cmp_ne_u64 vcc, s[{sT}:{sT+1}], {v(vDB+2,2)}")
        g("s_cbranch_vccnz L_A_d2poll")
        g.lab("L_A_d2done")
        if opt.get("m_shrink"): g("s_mov_b64 exec, -1")
        g.stamp(6)
        def lpoll():
            for k in range(16):
                g(f"s_load_dword s{16+k}, s[{sBP}:{sBP+1}], {k*256+8} glc")
        lvec = opt.get("l_vec", 0)
        if lvec == 1: g(f"buffer_load_dwordx4 {v(vDL,4)}, v{vD2}, {WS}, s{sO2} offen sc1")
        elif lvec == 0: lpoll()
        g(f"v_max_f32_dpp v{t0}, v{vDB}, v{vDB} row_ror:8 row_mask:0xf bank_mask:0xf")
        for r in (4, 2, 1):
            g(f"v_max_f32_dpp v{t0}, v{t0}, v{t0} row_ror:{r} row_mask:0xf bank_mask:0xf")
        g(f"""
        v_mov_b32 v{t1}, v{t0}
        v_permlane16_swap_b32 v{t0}, v{t1}
        v_max_f32 v{t0}, v{t0}, v{t1}
        v_sub_f32 v{t0}, v{vDB}, v{t0}
        v_exp_f32 v{t0}, v{t0}
        v_cvt_pk_bf16_f32 v{t0}, v{t0}, v{t0}
        ds_write_b16 v{vWTw}, v{t0} offset:{A_WT}
        ds_read_b64 {v(vWt,2)}, v{vWTr} offset:{A_WT}
        v_and_b32 v{vWr}, 0xffff0000, v{t0}
        s_mov_b32 s{sCNT}, 0
        s_branch {"L_A_lgo" if lvec == 2 else "L_A_lchk"}
        """)
        g.lab("L_A_lpoll")
        if lvec: g(f"buffer_load_dwordx4 {v(vDL,4)}, v{vD2}, {WS}, s{sO2} offen sc1")
        else: lpoll()
        g(f"s_add_u32 s{sCNT}, s{sCNT}, 1")
        g(f"s_cmp_gt_u32 s{sCNT}, {opt.get('spin', SPIN)}")
        g("s_cbranch_scc1 L_A_lgo")
        g.lab("L_A_lchk")
        if lvec:
            g("s_waitcnt vmcnt(0)")
            g(f"v_cmp_ne_u64 vcc, s[{sT}:{sT+1}], {v(vDL+2,2)}")
            g("s_cbranch_vccnz L_A_lpoll")
        else:
            g("s_waitcnt lgkmcnt(0)")
            for k in range(0, 16, 2):
                g(f"s_xor_b64 s[{16+k}:{17+k}], s[{16+k}:{17+k}], s[{sTT}:{sTT+1}]")
            for st_ in (8, 4, 2):
                for k in range(0, st_, 2):
                    g(f"s_or_b64 s[{16+k}:{17+k}], s[{16+k}:{17+k}], s[{16+k+st_}:{17+k+st_}]")
            g("s_cbranch_scc1 L_A_lpoll")
        g.lab("L_A_lgo")
        g(f"s_mov_b32 s{sCNT}, 0")
        if opt.get("o_sleep"): g(f"s_sleep {opt['o_sleep']}")
        g.stamp(11)
        def oget():
            g(f"buffer_load_dwordx4 {v(vDL,4)}, v{vD2}, {WS}, s{sO2} offen sc1")
            for u in range(4):
                g(f"buffer_load_dwordx4 {v(vO+4*u,4)}, v{vOg}, {WS}, s{sO3} offen offset:{u*256} sc1")
        oget()
        nwo = 0
        if wol in (1, 2):
            assert lvec == 2
            g(f"s_mul_i32 s{sC}, s{sA}, {32*1152}")
            unit_load(g, WO, vP2, A_WO, sC, 1152, "wo", NT, rows36=False)
            nwo = 9 if "wo" not in opt.get("skip", "") else 0
        g("s_waitcnt lgkmcnt(0)")
        for u in range(4):
            for d in range(4):
                g(f"v_perm_b32 v{vFr+4*u+d}, v{vWt+(u>>1)}, v{vWt+(u>>1)}, v{vSel+4*(u&1)+d}")
        g.lab("L_A_ocomb")
        g(f"v_mov_b32 v{vEr}, 0")
        g(f"s_waitcnt vmcnt({4+nwo})")
        g(f"v_mul_f32 v{vLs}, v{vWr}, v{vDL}")
        g(f"v_cmp_ne_u64 s[{sM4}:{sM4+1}], s[{sT}:{sT+1}], {v(vDL+2,2)}")
        for r in (8, 4, 2, 1):
            g(f"v_add_f32_dpp v{vLs}, v{vLs}, v{vLs} row_ror:{r} row_mask:0xf bank_mask:0xf")
        g(f"""
        v_mov_b32 v{t1}, v{vLs}
        v_permlane16_swap_b32 v{vLs}, v{t1}
        v_add_f32 v{vLs}, v{vLs}, v{t1}
        v_rcp_f32 v{vLs}, v{vLs}
        """)
        for u in range(4):
            g(f"s_waitcnt vmcnt({3-u+nwo})")
            for d in range(4):
                g(f"v_xor_b32 v{vO+4*u+d}, s{sX}, v{vO+4*u+d}")
            if u:
                for d in range(4):
                    g(f"v_bitop3_b32 v{vEr}, v{vEr}, v{vO+4*(u-1)+d}, s{sHI} bitop3:0xf6")
            g(f"{MF} {v(vD,4)}, {v(vFr+4*u,4)}, {v(vO+4*u,4)}, {'0' if u == 0 else v(vD,4)}")
        for d in range(4):
            g(f"v_bitop3_b32 v{vEr}, v{vEr}, v{vO+12+d}, s{sHI} bitop3:0xf6")
        g(f"v_and_b32 v{vEr}, 0x10001, v{vEr}")
        g(f"v_cmp_ne_u32 vcc, 0, v{vEr}")
        g(f"s_or_b64 vcc, vcc, s[{sM4}:{sM4+1}]")
        g("s_cbranch_scc1 L_A_oslow")
        g.lab("L_A_ook")
        if opt.get("stamps"): g(f"s_mov_b32 s100, s{sCNT}")
        for r in range(4):
            g(f"v_mul_f32 v{vD+r}, v{vLs}, v{vD+r}")
        g(f"v_cvt_pk_bf16_f32 v{vD}, v{vD}, v{vD+1}")
        g(f"v_cvt_pk_bf16_f32 v{vD+1}, v{vD+2}, v{vD+3}")
        g(f"ds_write_b64 v{vCW}, {v(vD,2)} offset:{A_CTXC}")
        if wol == 3:
            g(f"s_mul_i32 s{sC}, s{sA}, {32*1152}")
            unit_load(g, WO, vP2, A_WO, sC, 1152, "wo", NT, rows36=False)
        g("s_waitcnt vmcnt(0) lgkmcnt(0)" if wol == 1 else "s_waitcnt lgkmcnt(0)")
        g("s_barrier")
        g.stamp(7)
        vC = 80
        vU = 96
        vG1, vG2 = 104, 108
        vAe, vAo = 116, 120
        vY = 124
        for ks in range(4):
            g(f"ds_read_b128 {v(vC+4*ks,4)}, v{vCX} offset:{A_CTXC+ks*64}")
        g(f"s_lshl_b32 s{sO3}, s{sA}, 10")
        g(f"s_add_u32 s{sO3}, s{sO3}, {HB+LOC}")
        g(f"s_add_u32 s{sO}, s{sHB}, {LOC}")
        g(f"s_and_b32 s{sP4}, s{sT}, 15")
        sD3, vD3 = 16, 58
        g(f"s_xor_b32 s{sD3}, s{sW}, 3")
        g(f"s_or_b32 s{sD3}, s{sD3}, s{sJ}")
        g(f"s_lshl_b32 s{sTMP}, s{sH}, 7")
        g(f"s_add_u32 s{sTMP}, s{sTMP}, {D3}")
        g(f"v_lshl_add_u32 v{vD3}, v{vL}, 12, s{sTMP}")
        for ks in range(4):
            g(f"s_waitcnt lgkmcnt({3-ks})")
            for tau in range(2):
                g(f"{MF} {v(vU+4*tau,4)}, {A(aUV+(tau*4+ks)*4,4)}, {v(vC+4*ks,4)}, {'0' if ks == 0 else v(vU+4*tau,4)}")
        for r in range(4):
            g(f"v_cndmask_b32 v{vC+r}, v{vU+r}, v{vU+4+r}, s[{sM2}:{sM2+1}]")
            g(f"v_cndmask_b32 v{vC+4+r}, v{vU+4+r}, v{vU+r}, s[{sM2}:{sM2+1}]")
        for r in range(4):
            g(f"v_add_f32_dpp v{vC+r}, v{vC+4+r}, v{vC+r} quad_perm:[2,3,0,1] row_mask:0xf bank_mask:0xf")
        g(f"""
        v_cvt_pk_bf16_f32 v{vTag-2}, v{vC}, v{vC+1}
        v_cvt_pk_bf16_f32 v{vTag-1}, v{vC+2}, v{vC+3}
        s_mov_b32 exec_lo, 0x000f000f
        s_mov_b32 exec_hi, 0x000f000f
        buffer_store_dwordx4 {v(vTag-2,4)}, v{vHBs}, {WS}, s{sO} offen
        s_mov_b64 exec, -1
        """)
        def hb_wt():
            g("s_mov_b32 exec_lo, 0x000f000f")
            g("s_mov_b32 exec_hi, 0x000f000f")
            g(f"buffer_store_dwordx4 {v(vTag-2,4)}, v{vHBs}, {WS}, s{sHB} offen sc1")
            g("s_mov_b64 exec, -1")
        g.stamp(8)
        g(f"s_mov_b32 s{sCNT}, 0")
        if wol >= 2:
            g("s_waitcnt vmcnt(1)")
            g("s_barrier")
        if wol: wo_frags()
        g.lab("L_A_hbld")
        g(f"buffer_load_dwordx4 {v(vG1,4)}, v{vHBl}, {WS}, s{sO3} offen sc1")
        g(f"buffer_load_dwordx4 {v(vG2,4)}, v{vHBl}, {WS}, s{sO3} offen offset:512 sc1")
        g("s_waitcnt vmcnt(0)")
        g(f"v_cmp_ne_u64 vcc, s[{sT}:{sT+1}], {v(vG1+2,2)}")
        g(f"v_cmp_ne_u64 s[{sM3}:{sM3+1}], s[{sT}:{sT+1}], {v(vG2+2,2)}")
        src = [vG1, vG1 + 1, vG2, vG2 + 1]
        for d in range(4):
            g(f"v_cndmask_b32 v{vAe+d}, 0, v{src[d]}, s[{sM1}:{sM1+1}]")
        g(f"s_or_b64 vcc, vcc, s[{sM3}:{sM3+1}]")
        g("s_cbranch_scc1 L_A_hbpoll")
        g.lab("L_A_hbdone")
        g.stamp(9)
        def d3bell():
            g(f"s_cmp_lg_u32 s{sD3}, 0")
            g("s_cbranch_scc1 L_A_nod3")
            g("s_mov_b64 exec, 0xff")
            g(f"buffer_store_dword v{vTag}, v{vD3}, {WS}, 0 offen sc1")
            g("s_mov_b64 exec, -1")
            g.lab("L_A_nod3")
        if opt.get("d3_pos", 0) == 0 and opt.get("h3_bell", 1): d3bell()
        for d in range(4):
            g(f"v_cndmask_b32 v{vAo+d}, v{src[d]}, 0, s[{sM1}:{sM1+1}]")
        if wol: g("s_waitcnt lgkmcnt(0)")
        for t in range(4):
            g(f"{MF} {v(vY+4*t,4)}, {v(vAe,4)}, {A(aWO+(t*2)*4,4)}, 0")
        for t in range(4):
            g(f"{MF} {v(vY+4*t,4)}, {v(vAo,4)}, {A(aWO+(t*2+1)*4,4)}, {v(vY+4*t,4)}")
        g(f"{MF} {v(vY+16,4)}, {v(vAe,4)}, {A(aWO+32,4)}, 0")
        g(f"{MF} {v(vY+16,4)}, {v(vAo,4)}, {A(aWO+36,4)}, {v(vY+16,4)}")
        for t in range(4):
            g(f"v_pk_add_f32 {v(vY+4*t,2)}, {v(vY+4*t,2)}, {v(vY+4*t+2,2)}")
        for t in range(4):
            g(f"v_add_f32 v{vC+t}, v{vY+4*t}, v{vY+4*t+1}")
        for t in range(4):
            g(f"v_and_or_b32 v{vC+t}, v{vC+t}, -16, s{sP4}")
        g(f"buffer_store_dwordx4 {v(vC,4)}, v{vA_l16}, {WS}, s{sH3m} offen sc1")
        g(f"s_cmp_gt_u32 s{sW}, 1")
        g("s_cbranch_scc1 L_A_no5b")
        g(f"v_pk_add_f32 {v(vY+16,2)}, {v(vY+16,2)}, {v(vY+18,2)}")
        g(f"v_add_f32 v{vY+16}, v{vY+16}, v{vY+17}")
        g(f"v_and_or_b32 v{vY+16}, v{vY+16}, -16, s{sP4}")
        g(f"buffer_store_dword v{vY+16}, v{vH3x}, {WS}, s{sH3l} offen sc1")
        g.lab("L_A_no5b")
        if opt.get("d3_pos", 0) == 1: d3bell()
        hb_wt()
        g.stamp(10)
        g(f"s_cmp_ge_u32 s{sA}, 36")
        g("s_cbranch_scc1 L_A_exit")
        vRd = [144, 160]
        vRw = 97
        vRa = 59
        sRa = [sO, sO3, sC, sHB]
        g(f"""
        s_lshl_b32 s{sTMP}, s{sXCD}, 2
        s_add_u32 s{sTMP}, s{sTMP}, s{sW}
        s_lshl_b32 s{sTMP}, s{sTMP}, 10
        s_add_u32 s{sTMP}, s{sTMP}, {D3}
        s_add_u32 s{sBP}, s4, s{sTMP}
        s_addc_u32 s{sBP+1}, s5, 0
        """)
        def d3poll():
            for k in range(8):
                g(f"s_load_dword s{16+k}, s[{sBP}:{sBP+1}], {k*128} glc")
        if opt.get("h3_bell", 1): d3poll()
        g(f"""
        s_lshl_b32 s{sO2}, s{sW}, 12
        s_mul_i32 s{sO3}, s{sA}, {USTR}
        s_add_u32 s{sO2}, s{sO2}, s{sO3}
        s_add_u32 s{sO2}, s{sO2}, {H3}
        """)
        def rget(part):
            for u in range(4):
                if part: g(f"buffer_load_dwordx4 {v(vRd[1]+4*u,4)}, v{vA_l16}, {WS}, s{sO2} offen offset:{u*1024} sc1")
                else: g(f"buffer_load_dwordx4 {v(vRd[0]+4*u,4)}, v{vRa}, {WS}, s{sRa[u]} offen sc1")
        rget(1)
        g(f"""
        v_and_b32 v{t0}, 7, v{vL}
        v_lshlrev_b32 v{vRw}, 6, v{t0}
        v_lshrrev_b32 v{t1}, 3, v{vL}
        v_mul_u32_u24 v{vRa}, {OSTR}, v{t1}
        v_lshl_add_u32 v{vRa}, v{t0}, 4, v{vRa}
        v_lshrrev_b32 v{t0}, 5, v{vL}
        v_lshl_add_u32 v{vRw}, v{t0}, 4, v{vRw}
        v_bfe_u32 v{t0}, v{vL}, 4, 1
        v_lshl_add_u32 v{vRw}, v{t0}, 5, v{vRw}
        v_lshl_add_u32 v{vRw}, s{sW}, 2, v{vRw}
        s_mul_i32 s{sO}, s{sW}, {32*OSTR}
        s_lshl_b32 s{sTMP}, s{sA}, 7
        s_add_u32 s{sO}, s{sO}, s{sTMP}
        s_add_u32 s{sO}, s{sO}, {OB}
        s_add_u32 s{sO3}, s{sO}, {8*OSTR}
        s_add_u32 s{sC}, s{sO}, {16*OSTR}
        s_add_u32 s{sHB}, s{sO}, {24*OSTR}
        s_mov_b32 s{sCNT}, 0
        s_branch {"L_A_d3chk" if opt.get("h3_bell", 1) else "L_A_d3go"}
        """)
        g.lab("L_A_d3poll")
        d3poll()
        spin_guard(g, "L_A_d3go")
        g.lab("L_A_d3chk")
        g("s_waitcnt lgkmcnt(0)")
        for k in range(0, 8, 2):
            g(f"s_xor_b64 s[{16+k}:{17+k}], s[{16+k}:{17+k}], s[{sTT}:{sTT+1}]")
        g("s_or_b64 s[16:17], s[16:17], s[18:19]")
        g("s_or_b64 s[20:21], s[20:21], s[22:23]")
        g("s_or_b64 s[16:17], s[16:17], s[20:21]")
        g("s_cbranch_scc1 L_A_d3poll")
        g.lab("L_A_d3go")
        g(f"s_mov_b32 s{sCNT}, 0")
        if opt.get("h3_ack", 0): g("s_waitcnt vmcnt(4)")
        if opt.get("st14"): g.stamp(14)
        rget(0)
        def rsum(part, waits):
            R = vRd[part]
            for u in range(4):
                if waits[u] is not None: g(f"s_waitcnt vmcnt({waits[u]})")
                for d in range(4):
                    g(f"v_xor_b32 v{R+4*u+d}, s{sP4}, v{R+4*u+d}")
                if u == 0:
                    g(f"v_or3_b32 v{vEr}, v{R}, v{R+1}, v{R+2}")
                    g(f"v_or_b32 v{vEr}, v{vEr}, v{R+3}")
                else:
                    g(f"v_pk_add_f32 {v(vY,2)}, {v(R if u == 1 else vY,2)}, {v(R+4*u,2)}")
                    g(f"v_pk_add_f32 {v(vY+2,2)}, {v(R+2 if u == 1 else vY+2,2)}, {v(R+4*u+2,2)}")
                    g(f"v_or3_b32 v{vEr}, v{vEr}, v{R+4*u}, v{R+4*u+1}")
                    g(f"v_or3_b32 v{vEr}, v{vEr}, v{R+4*u+2}, v{R+4*u+3}")
            g(f"v_permlane32_swap_b32 v{vY}, v{vY+1}")
            g(f"v_permlane32_swap_b32 v{vY+2}, v{vY+3}")
            g(f"v_and_b32 v{vEr}, 15, v{vEr}")
            g(f"v_add_f32 v{vY}, v{vY}, v{vY+1}")
            g(f"v_add_f32 v{vY+2}, v{vY+2}, v{vY+3}")
            g(f"v_cmp_ne_u32 vcc, 0, v{vEr}")
            g(f"v_permlane16_swap_b32 v{vY}, v{vY+2}")
            g(f"v_add_f32 v{vY}, v{vY}, v{vY+2}")
        def rfin(part):
            g(f"v_add_f32_dpp v{vY}, v{vY}, v{vY} row_ror:8 row_mask:0xf bank_mask:0xf")
            g(f"ds_write_b32 v{vRw}, v{vY} offset:{A_RED + part*512}")
        sPend = sM3
        rsum(1, [4, None, None, None])
        g(f"s_mov_b64 s[{sPend}:{sPend+1}], vcc")
        rfin(1)
        g.lab("L_A_r0sum")
        rsum(0, [3, 2, 1, 0])
        g("s_cbranch_vccnz L_A_r0slow")
        g.lab("L_A_r0ok")
        rfin(0)
        g(f"s_cmp_lg_u64 s[{sPend}:{sPend+1}], 0")
        g("s_cbranch_scc1 L_A_r1slow")
        g.lab("L_A_r1ok")
        g.stamp(12)
        if opt.get("stamps"):
            g(f"s_lshl_b32 s{sCNT}, s{sCNT}, 8")
            g(f"s_or_b32 s100, s100, s{sCNT}")
        g("s_waitcnt lgkmcnt(0)")
        g("s_barrier")
        g(f"s_cmp_lg_u32 s{sW}, 0")
        g("s_cbranch_scc1 L_A_exit")
        R = 144
        g(f"""
        s_mov_b32 exec_hi, 0
        ds_read_b128 {v(R,4)}, v{vA_l16} offset:{A_RED}
        ds_read_b128 {v(R+4,4)}, v{vA_l16} offset:{A_RED+512}
        v_sub_f32 v{t0}, 1.0, v{vFB}
        s_waitcnt lgkmcnt(0)
        v_pk_add_f32 {v(R,2)}, {v(R,2)}, {v(R+2,2)}
        v_pk_add_f32 {v(R+4,2)}, {v(R+4,2)}, {v(R+6,2)}
        v_add_f32 v{R}, v{R}, v{R+1}
        v_add_f32 v{R+4}, v{R+4}, v{R+5}
        v_add_f32 v{R+4}, v{R+4}, v{vB2}
        v_mul_f32 v{R+4}, v{t0}, v{R+4}
        v_fma_f32 v{R}, v{vFB}, v{R}, v{R+4}
        v_cvt_pk_bf16_f32 v{R}, v{R}, v{R}
        buffer_store_short v{R}, v{vOA}, {OUT}, 0 offen
        s_cmp_lg_u32 s{sA}, 0
        s_cbranch_scc1 L_A_exit
        s_mov_b64 exec, 1
        buffer_store_dwordx2 {v(vTag,2)}, v{vA_l16}, {WS}, 0 offen offset:{EPOCH} sc1
        """)
        if opt.get("probe") is not None:
            i = opt["probe"]
            g.stamp(13)
            g("s_waitcnt lgkmcnt(0)")
            g(f"s_sub_u32 s{sO}, s{70+2*i}, s70")
            g(f"s_lshl_b32 s{sO}, s{sO}, 2")
            if opt.get("dcount"):
                g(f"""
                s_load_dwordx2 s[32:33], s[0:1], 104
                s_mov_b32 s34, 256
                s_mov_b32 s35, 0x00020000
                v_mov_b32 v7, {4*(opt["dcount"]-1)}
                s_waitcnt lgkmcnt(0)
                buffer_load_dword v6, v7, s[32:35], 0 offen sc1
                s_waitcnt vmcnt(0)
                v_readfirstlane_b32 s{sO}, v6
                s_mul_i32 s{sO}, s{sO}, 50
                """)
            if opt.get("resid") is not None:
                g(f"""
                s_load_dwordx2 s[32:33], s[0:1], 104
                s_mov_b32 s34, 256
                s_mov_b32 s35, 0x00020000
                v_mov_b32 v7, 0
                s_waitcnt lgkmcnt(0)
                buffer_load_dwordx4 v[8:11], v7, s[32:35], 0 offen sc1
                s_waitcnt vmcnt(0)
                v_add3_u32 v6, v8, v9, v10
                {"v_add_u32 v6, v6, v11" if not opt.get("rb3") else "s_nop 0"}
                s_nop 1
                v_readfirstlane_b32 s{sO}, v6
                s_mul_i32 s{sO}, s{sO}, 50
                """)
            if opt.get("clk"):
                g.lab("L_clk")
                g(f"s_memrealtime s[{sTMP}:{sTMP+1}]")
                g("s_waitcnt lgkmcnt(0)")
                g(f"s_sub_u32 s{sTMP}, s{sTMP}, s70")
                g(f"s_cmp_lt_u32 s{sTMP}, {opt['clk']}")
                g("s_cbranch_scc1 L_clk")
                g(f"s_memtime s[{sTMP}:{sTMP+1}]")
                g("s_waitcnt lgkmcnt(0)")
                g(f"s_sub_u32 s{sO}, s{sTMP}, s98")
                g(f"s_lshr_b32 s{sO}, s{sO}, 3")
            g(f"s_add_u32 s{sO}, s{sO}, 4000")
            g.lab("L_probe")
            g(f"s_memrealtime s[{sTMP}:{sTMP+1}]")
            g("s_waitcnt lgkmcnt(0)")
            g(f"s_sub_u32 s{sTMP}, s{sTMP}, s70")
            g(f"s_cmp_lt_u32 s{sTMP}, s{sO}")
            g("s_cbranch_scc1 L_probe")
            g("s_endpgm")
        g.lab("L_A_exit")
        g.stamp(13)
        dump_stamps(g, 16, 216)
        g("s_endpgm")
        if pB:
            g.lab("L_A_h0poll")
            spin_guard(g, "L_A_h0done")
            g("s_branch L_A_h0get")
        else:
            g.lab("L_A_h0poll")
            spin_guard(g, "L_A_h0done")
            g(f"s_cmp_lg_u32 s{sCNT}, 8")
            g("s_cbranch_scc1 L_A_h0ns")
            h0_wt()
            g.lab("L_A_h0ns")
            dual_next(g, sib[1:])
            h0loads()
            g("s_waitcnt vmcnt(0)")
            g("s_branch L_A_h0chk")
        g.lab("L_A_oslow")
        spin_guard(g, "L_A_ook")
        oget()
        g("s_waitcnt vmcnt(0)")
        g("s_branch L_A_ocomb")
        g.lab("L_A_hbpoll")
        spin_guard(g, "L_A_hbdone")
        g(f"s_cmp_lg_u32 s{sCNT}, 8")
        g("s_cbranch_scc1 L_A_hbns")
        hb_wt()
        g.lab("L_A_hbns")
        dual_next(g, [sO3])
        g("s_branch L_A_hbld")
        g.lab("L_A_r0slow")
        spin_guard(g, "L_A_r0ok")
        rget(0)
        g("s_branch L_A_r0sum")
        g.lab("L_A_r1slow")
        spin_guard(g, "L_A_r1ok")
        rget(1)
        rsum(1, [3, 2, 1, 0])
        g("s_cbranch_vccnz L_A_r1slow")
        rfin(1)
        g("s_branch L_A_r1ok")

class RoleB:
    def __init__(self, g, NT, vL, vN, vG):
        self.g, self.NT, self.vL, self.vN, self.vG = g, NT, vL, vN, vG

    def issue(self):
        g, vL = self.g, self.vL
        if g.opt.get("p1a_on") == "B":
            vN, vG, NT = self.vN, self.vG, self.NT
            srd_tail(g, 12, 576 * 8192)
            srd_tail(g, 8, 2304)
            g(f"""
            s_lshr_b32 s{sC}, s{sI}, 2
            s_lshl_b32 s{sC}, s{sC}, 3
            s_add_u32 s{sC}, s{sC}, s{sXCD}
            s_and_b32 s{sO}, s{sI}, 3
            v_mul_u32_u24 v5, {36*8192}, v{vG}
            v_lshl_add_u32 v5, v{vN}, 4, v5
            s_lshl_b32 s{sO2}, s{sO}, 4
            s_add_u32 s{sO2}, s{sO2}, s{sW}
            s_mul_i32 s{sO2}, s{sO2}, 9
            s_lshl_b32 s{sO3}, s{sO2}, 13
            s_lshl_b32 s{sTMP}, s{sC}, 8
            s_add_u32 s{sO3}, s{sO3}, s{sTMP}
            v_bfe_u32 v4, v{vL}, 3, 1
            v_mul_u32_u24 v4, 1152, v4
            v_mad_u32_u24 v4, v{vG}, 64, v4
            v_lshl_add_u32 v4, v{vG}, 3, v4
            s_lshr_b32 s{sO2}, s{sO2}, 1
            s_lshl_b32 s{sO2}, s{sO2}, 2
            s_waitcnt lgkmcnt(0)
            buffer_load_dwordx4 v[64:67], v4, {X}, s{sO2} offen
            buffer_load_dword v68, v4, {X}, s{sO2} offen offset:16
            """)
            for i in range(9):
                g(f"buffer_load_dwordx4 {A(4*i,4)}, v5, s[12:15], s{sO3} offen {NT}")
                if i != 8: g(f"s_addk_i32 s{sO3}, 0x2000")
            load_tag(g)
            g(f"""
            s_lshl_b32 s{sC}, s{sC}, 2
            s_add_u32 s{sC}, s{sC}, s{sO}
            s_lshl_b32 s{sC}, s{sC}, 10
            s_add_u32 s{sC}, s{sC}, {H0}
            """)
            return
        if g.opt.get("numa"):
            PFL = g.opt.get("pf_lines", 4)
            srd_tail(g, 28, 2 * 4096 * 1024)
            g(f"""
            s_and_b32 s{sMSG}, s{sXCD}, 1
            s_lshl_b32 s{sMSG}, s{sMSG}, 4
            s_and_b32 s{sO3}, s{sI}, 14
            s_add_u32 s{sMSG}, s{sMSG}, s{sO3}
            s_bfe_u32 s{sO3}, s{sXCD}, 0x10001
            s_add_u32 s{sMSG}, s{sMSG}, s{sO3}
            s_lshl_b32 s{sO3}, s{sMSG}, 18
            s_and_b32 s{sC}, s{sI}, 1
            s_lshl_b32 s{sC}, s{sC}, 8
            s_add_u32 s{sO3}, s{sO3}, s{sC}
            s_add_u32 s{sC}, s{sO3}, 0x2000
            v_lshlrev_b32 v4, 7, v{vL}
            s_waitcnt lgkmcnt(0)
            s_cmp_lg_u32 s{sW}, 3
            s_cbranch_scc1 L_B_nopr
            {"s_memtime s[16:17]" if g.opt.get("dcount") else ""}
            {"s_waitcnt lgkmcnt(0)" if g.opt.get("dcount") else ""}
            s_mov_b64 exec, {(1 << g.opt.get("plines", 1)) - 1}
            {"v_lshlrev_b32 v8, 14, v1" if g.opt.get("plines", 1) > 1 else "v_mov_b32 v8, 0"}
            buffer_load_dword v60, v8, s[28:31], s{sO3} offen
            buffer_load_dword v61, v8, s[28:31], s{sC} offen
            s_mul_i32 s{sTMP}, s{sI}, {2*PFL*128}
            s_mov_b64 exec, {(1 << (2*PFL)) - 1}
            v_add_u32 v5, s{sTMP}, v4
            global_load_dword v63, v5, s[{sPC}:{sPC+1}]
            s_lshr_b32 s{sO}, s{sI}, 2
            s_lshl_b32 s{sO}, s{sO}, 3
            s_add_u32 s{sO}, s{sO}, s{sXCD}
            s_lshl_b32 s{sO}, s{sO}, 2
            s_and_b32 s{sO2}, s{sI}, 3
            s_add_u32 s{sO}, s{sO}, s{sO2}
            s_lshl_b32 s{sO2}, s{sO}, 11
            s_add_u32 s{sO2}, s{sO2}, {H0+LOC}
            s_mov_b64 exec, 0xffff
            buffer_load_dword v62, v4, {WS}, s{sO2} offen
            s_lshl_b32 s{sO}, s{sO}, 10
            s_add_u32 s{sO2}, s{sO}, {HB+LOC}
            s_mov_b64 exec, 0xff
            buffer_load_dword v62, v4, {WS}, s{sO2} offen
            s_add_u32 s{sO2}, s{sO}, {D3}
            buffer_load_dword v62, v4, {WS}, s{sO2} offen
            s_mov_b64 exec, -1
            s_waitcnt vmcnt(5)
            s_memtime s[34:35]
            s_waitcnt vmcnt(4)
            s_memtime s[38:39]
            s_waitcnt lgkmcnt(0)
            s_sub_u32 s38, s38, s34
            s_cmp_lt_u32 s38, {g.opt.get("gap", 100)}
            s_cselect_b32 s{sO3}, 1, 0
            v_mov_b32 v6, s{sO3}
            v_mov_b32 v7, {B_PHI}
            ds_write_b32 v7, v6
            s_waitcnt lgkmcnt(0)
            """)
            if g.opt.get("stamps"): g("s_mov_b32 s88, s38")
            if g.opt.get("dcount"):
                g(f"""
                s_load_dwordx2 s[20:21], s[0:1], 104
                s_mov_b32 s22, 256
                s_mov_b32 s23, 0x00020000
                s_sub_u32 s16, s34, s16
                s_lshr_b32 s16, s16, 8
                s_min_u32 s16, s16, 7
                s_lshl_b32 s16, s16, 2
                s_lshr_b32 s17, s38, 6
                s_min_u32 s17, s17, 6
                s_lshl_b32 s17, s17, 2
                s_add_u32 s17, s17, 32
                v_mov_b32 v6, 1
                v_mov_b32 v7, 0
                s_waitcnt lgkmcnt(0)
                s_mov_b64 exec, 1
                buffer_atomic_add v6, v7, s[20:23], s16 offen sc1
                buffer_atomic_add v6, v7, s[20:23], s17 offen sc1
                s_mov_b64 exec, -1
                """)
            g.lab("L_B_nopr")
            return
        g(f"""
        s_lshr_b32 s{sO}, s{sI}, 2
        s_lshl_b32 s{sO}, s{sO}, 3
        s_add_u32 s{sO}, s{sO}, s{sXCD}
        s_lshl_b32 s{sO}, s{sO}, 2
        s_and_b32 s{sO2}, s{sI}, 3
        s_add_u32 s{sO}, s{sO}, s{sO2}
        s_lshl_b32 s{sO2}, s{sO}, 11
        s_add_u32 s{sO2}, s{sO2}, {H0+LOC}
        s_lshl_b32 s{sO}, s{sO}, 10
        s_add_u32 s{sO}, s{sO}, {HB+LOC}
        s_cmp_eq_u32 s{sW}, 1
        s_cselect_b32 s{sO}, s{sO}, s{sO2}
        s_lshl_b32 s{sO2}, s{sXCD}, 4
        s_add_u32 s{sO2}, s{sO2}, s{sI}
        s_lshl_b32 s{sO2}, s{sO2}, 10
        s_add_u32 s{sO2}, s{sO2}, {D3}
        s_cmp_eq_u32 s{sW}, 2
        s_cselect_b32 s{sO}, s{sO2}, s{sO}
        s_cselect_b32 s{sTMP}, 0xff, -1
        s_and_b32 s{sTMP}, s{sTMP}, 0xffff
        s_mov_b32 s{sTMP+1}, 0
        v_lshlrev_b32 v4, 7, v{vL}
        """)
        g("s_waitcnt lgkmcnt(0)")
        load_tag(g)
        g(f"""
        {"s_cmp_lg_u32" if g.opt.get("split") else "s_cmp_gt_u32"} s{sW}, 2
        s_cbranch_scc1 L_B_head
        s_mov_b64 exec, s[{sTMP}:{sTMP+1}]
        buffer_load_dword v62, v4, {WS}, s{sO} offen
        s_mov_b64 exec, -1
        """)

    def rest(self):
        g, NT, vL, vN, vG = self.g, self.NT, self.vL, self.vN, self.vG
        opt = g.opt
        CKV, W2, B1, W1 = "s[28:31]", "s[20:23]", "s[24:27]", "s[16:19]"
        t0, t1, t2, t3 = 4, 5, 6, 7
        vL16 = 12
        vOa = 13
        vH3, vH3x = 14, 15
        vB1 = 22
        vSB = 24
        vQBs = 28
        vPVb = 16
        vTag = 36
        vML = 34
        vMXw, vMXr = 38, 39
        vD2a = 40
        vPw = 41
        vP2 = 42
        vT20, vT21, vK20, vK21 = 52, 53, 54, 55
        vHg, vHw = 56, 57
        vHe, vHo, vHke, vHko = 58, 59, 60, 61
        vQd = 8
        aS, aP = 0, 128
        sOo = 61
        sH3m, sH3l = 62, 63
        sD2, sGot = 59, 58
        sBP, sTT = 34, sPC
        sQg = 33
        sPat, sMk = 32, 36
        srd_tail(g, 28, 2 * 4096 * 1024)
        vW1, vW2 = 168, 212
        vXr = 64
        vSel = 88
        vXA = 96
        vW1a, vHs = 164, 165
        sRho, sBlk, sR0 = 38, 39, 56
        numa = opt.get("numa", 0)
        sCk = 37
        if numa:
            assert not opt.get("ckv_x", 1)
            sPhi, sDP = 38, 18
            def ckv_base():
                g(f"""
                s_lshl_b32 s{sCk}, s{sMSG}, 2
                s_add_u32 s{sCk}, s{sCk}, s{sW}
                s_lshl_b32 s{sCk}, s{sCk}, 3
                s_add_u32 s{sCk}, s{sCk}, s{sPhi}
                s_lshl_b32 s{sCk}, s{sCk}, 13
                s_lshl_b32 m0, s{sW}, 15
                s_add_u32 m0, m0, {B_CKV}
                """)
            def phi_get():
                g(f"""
                v_mov_b32 v{t0}, {B_PHI}
                s_barrier
                ds_read_b32 v{t1}, v{t0}
                s_waitcnt lgkmcnt(0)
                v_readfirstlane_b32 s{sPhi}, v{t1}
                """)
                if opt.get("numa_force") is not None: g(f"s_xor_b32 s{sPhi}, s{sPhi}, {opt['numa_force']}")
                ckv_base()
            g(f"s_and_b32 s{sB}, s{sXCD}, 1")
            g(f"v_lshlrev_b32 v{vL16}, 4, v{vL}")
            phi_get()
            load_tag(g)
        else:
            g(f"""
            s_and_b32 s{sB}, s{sXCD}, 1
            s_lshr_b32 s{sMSG}, s{sI}, 1
            s_lshl_b32 s{sMSG}, s{sMSG}, 2
            s_lshr_b32 s{sO}, s{sXCD}, 1
            s_add_u32 s{sMSG}, s{sMSG}, s{sO}
            s_lshl_b32 s{sO}, s{sB}, 5
            s_add_u32 s{sMSG}, s{sMSG}, s{sO}
            v_lshlrev_b32 v{vL16}, 4, v{vL}
            """)
            sCk = 37
            g(f"""
            s_lshl_b32 s{sCk}, s{sMSG}, 2
            s_add_u32 s{sCk}, s{sCk}, s{sW}
            s_lshl_b32 s{sCk}, s{sCk}, 15
            s_lshl_b32 m0, s{sW}, 15
            s_add_u32 m0, m0, {B_CKV}
            """)
            if opt.get("ckv_x", 1):
                g(f"s_and_b32 s{sGot}, s{sI}, 1")
                g(f"s_lshl_b32 s{sGot}, s{sGot}, 14")
                g(f"s_add_u32 s{sCk}, s{sCk}, s{sGot}")
                g(f"s_lshl_b32 s{sGot}, s{sGot}, 1")
        def ckv_stream(k0, k1):
            thr = opt.get("ckv_thr")
            for k in range(k0, k1):
                f = f16sw(k & 15)
                tmp = t0 + (k & 1)
                g(f"v_xor_b32 v{tmp}, {f*16}, v{vL16}")
                if thr is not None: g(f"s_waitcnt vmcnt({thr-1})")
                g(f"buffer_load_dwordx4 v{tmp}, {CKV}, s{sCk} offen offset:{(k%4)*1024} {NT} lds")
                if k % 4 == 3:
                    g(f"s_addk_i32 s{sCk}, {0x3000 if (numa and k % 8 == 7) else 0x1000}")
                    g(f"s_add_u32 m0, m0, 0x1000")
                if k == 15 and opt.get("ckv_x", 1): g(f"s_sub_u32 s{sCk}, s{sCk}, s{sGot}")
        c1_, c2_ = opt.get("ckv_a", 0), opt.get("ckv_b", 0)
        g.stamp(13)
        ckv_stream(0, c1_)
        g.l.append(";;SPLIT")
        pB = opt.get("p1a_on") == "B"
        if pB:
            vX, vSl, vF, vQp = 64, 72, 80, 116
            selectors(g, vSl, vL, t0, t1, t2)
            g(f"s_and_b32 s{sO}, s{sW}, 1")
            g(f"s_lshl_b32 s{sO}, s{sO}, 4")
            g(f"""
            s_cmp_lg_u32 s{sW}, 2
            s_cbranch_scc1 L_B_nt
            s_lshl_b32 s{sO2}, s{sXCD}, 4
            s_add_u32 s{sO2}, s{sO2}, s{sI}
            s_lshl_b32 s{sO2}, s{sO2}, 10
            s_add_u32 s{sO2}, s{sO2}, {D3}
            v_lshlrev_b32 v{t0}, 7, v{vL}
            s_mov_b64 exec, 0xff
            buffer_load_dword v62, v{t0}, {WS}, s{sO2} offen
            s_mov_b64 exec, -1
            """)
            g.lab("L_B_nt")
            g(f"s_waitcnt vmcnt({9+c1_})")
            for k in range(5):
                g(f"v_alignbit_b32 v{vX+k}, v{vX+k+1}, v{vX+k}, s{sO}")
            for i in range(9):
                for d in range(4):
                    g(f"v_perm_b32 v{vF+4*i+d}, v{vX+(i>>1)}, v{vX+(i>>1)}, v{vSl+4*(i&1)+d}")
            cm = opt.get("ckv_m", 0)
            c0 = c1_
            for i in range(9):
                g(f"s_waitcnt vmcnt({8-i+c1_})")
                g(f"{MF} {v(vQp,4)}, {v(vF+4*i,4)}, {A(4*i,4)}, {'0' if i == 0 else v(vQp,4)}")
                if i >= 9 - cm:
                    ckv_stream(c1_, c1_ + 1); c1_ += 1
            g(f"s_cmp_eq_u32 s{sW}, 0")
            g("s_cbranch_scc1 L_B_w0a")
            g(f"v_lshl_add_u32 v{t2}, s{sW}, 10, v{vL16}")
            g(f"ds_write_b128 v{t2}, {v(vQp,4)} offset:{B_PB}")
            g("s_waitcnt lgkmcnt(0)")
            g("s_barrier")
            g("s_branch L_B_w0b")
            g.lab("L_B_w0a")
            g("s_waitcnt lgkmcnt(0)")
            g(f"s_add_u32 s{sO}, s{sT}, {K0}")
            g(f"s_and_b32 s{sO}, s{sO}, 15")
            g("s_barrier")
            for k in range(3):
                g(f"ds_read_b128 {v(vF+4*k,4)}, v{vL16} offset:{B_PB+(k+1)*1024}")
            g("s_waitcnt lgkmcnt(1)")
            g(f"v_pk_add_f32 {v(vQp,2)}, {v(vQp,2)}, {v(vF,2)}")
            g(f"v_pk_add_f32 {v(vQp+2,2)}, {v(vQp+2,2)}, {v(vF+2,2)}")
            g("s_waitcnt lgkmcnt(0)")
            g(f"v_pk_add_f32 {v(vF+4,2)}, {v(vF+4,2)}, {v(vF+8,2)}")
            g(f"v_pk_add_f32 {v(vF+6,2)}, {v(vF+6,2)}, {v(vF+10,2)}")
            g(f"v_pk_add_f32 {v(vQp,2)}, {v(vQp,2)}, {v(vF+4,2)}")
            g(f"v_pk_add_f32 {v(vQp+2,2)}, {v(vQp+2,2)}, {v(vF+6,2)}")
            for r in range(4):
                g(f"v_and_or_b32 v{vQp+r}, v{vQp+r}, -16, s{sO}")
            g(f"buffer_store_dwordx4 {v(vQp,4)}, v{vL16}, {WS}, s{sC} offen sc1")
            g.lab("L_B_w0b")
            g.stamp(9)
            cq = opt.get("ckv_q", 0)
            ckv_stream(c1_, c1_ + cq); c1_ += cq
        srd(g, 20, 9, 4608 * 1152)
        srd(g, 24, 8, 9216)
        if opt.get("w1_on") == "B":
            srd(g, 16, 7, 576 * 9216)
            srd_tail(g, 8, 2304)
        g(f"""
        s_and_b32 s{sHG}, s{sI}, 1
        s_lshl_b32 s{sU2}, s{sXCD}, 4
        s_add_u32 s{sU2}, s{sU2}, s{sI}
        s_mov_b32 s{sPR}, s{sU2}
        s_mov_b32 s{sPOI}, {POISON}
        v_mul_u32_u24 v{vOa}, {16*OSTR}, v{vG}
        v_lshl_add_u32 v{vOa}, v{vN}, 4, v{vOa}
        """)
        def msg_addr():
            g(f"""
        s_lshl_b32 s{sOo}, s{sHG}, 6
        s_add_u32 s{sOo}, s{sOo}, s{sW}
        s_mul_i32 s{sOo}, s{sOo}, {OSTR}
        s_lshl_b32 s{sO}, s{sMSG}, 8
        s_add_u32 s{sOo}, s{sOo}, s{sO}
        s_add_u32 s{sOo}, s{sOo}, {OB}
        s_lshl_b32 s{sD2}, s{sHG}, 6
        s_add_u32 s{sD2}, s{sD2}, s{sMSG}
        s_lshl_b32 s{sD2}, s{sD2}, 8
        s_add_u32 s{sD2}, s{sD2}, {D2}
            """)
        if not numa: msg_addr()
        h3_addr(g, vH3, vH3x, vL, vN, vG, t0)
        h3_soffs(g, sH3m, sH3l)
        def fsw(dst, src, tmp):
            g(f"v_lshrrev_b32 v{tmp}, 3, v{src}")
            g(f"v_and_b32 v{dst}, 7, v{src}")
            g(f"v_lshl_add_u32 v{dst}, v{dst}, 1, v{tmp}")
            g(f"v_lshlrev_b32 v{tmp}, 3, v{tmp}")
            g(f"v_xor_b32 v{dst}, v{dst}, v{tmp}")
        fsw(t2, vN, t3)
        g(f"""
        v_xor_b32 v{t2}, v{t2}, v{vG}
        v_lshlrev_b32 v{t2}, 4, v{t2}
        v_lshl_add_u32 v{t2}, v{vN}, 10, v{t2}
        s_lshl_b32 s{sO}, s{sW}, 15
        s_add_u32 s{sO}, s{sO}, {B_CKV}
        """)
        assert B_QF == 0
        for q in range(4):
            g(f"v_xor_b32 v{vQBs+q}, {q*64}, v{t2}")
            g(f"v_add_u32 v{vSB+q}, s{sO}, v{vQBs+q}")
        g(f"v_lshrrev_b32 v{t0}, 2, v{vL}")
        fsw(t2, t0, t3)
        g(f"""
        v_bfe_u32 v{t3}, v{vL}, 1, 1
        v_xor_b32 v{t2}, v{t2}, v{t3}
        v_lshlrev_b32 v{t1}, 10, v{t0}
        v_lshl_add_u32 v{t1}, v{t2}, 4, v{t1}
        v_and_b32 v{t3}, 1, v{vL}
        v_lshl_add_u32 v{t1}, v{t3}, 3, v{t1}
        v_lshl_add_u32 v{t1}, s{sW}, 8, v{t1}
        """)
        for k in range(4):
            g(f"s_add_u32 s{sO}, s{sW}, {k}")
            g(f"s_and_b32 s{sO}, s{sO}, 3")
            g(f"v_lshl_add_u32 v{[vPw,20,21,23][k]}, s{sO}, 10, v{vL16}")
            g(f"s_lshl_b32 s{sO}, s{sO}, 15")
            g(f"s_add_u32 s{sO}, s{sO}, {B_CKV}")
            g(f"v_add_u32 v{vPVb+k}, s{sO}, v{t1}")
        for k in range(opt.get("pv_pre", 4), 4):
            for ct in range(8):
                g(f"v_xor_b32 v{168+8*k+ct}, {ct<<5}, v{vPVb+k}")
        g(f"""
        v_lshlrev_b32 v{vMXr}, 4, v{vN}
        v_lshl_add_u32 v{vMXw}, v{vG}, 2, v{vMXr}
        v_lshl_add_u32 v{vMXw}, s{sW}, 8, v{vMXw}
        s_lshl_b32 s{sQg}, s{sB}, 1
        s_add_u32 s{sQg}, s{sQg}, s{sHG}
        s_lshl_b32 s{sQg}, s{sQg}, 2
        s_add_u32 s{sQg}, s{sQg}, s{sW}
        s_lshl_b32 s{sQg}, s{sQg}, 12
        s_add_u32 s{sQg}, s{sQg}, {QB}
        s_lshr_b32 s{sTMP}, s{sW}, 1
        s_xor_b32 s{sTMP+1}, s{sW}, s{sTMP}
        s_and_b32 s{sTMP+1}, s{sTMP+1}, 1
        s_lshl_b32 s{sTMP+1}, s{sTMP+1}, 3
        s_add_u32 s{sTMP}, s{sTMP}, s{sTMP+1}
        s_lshl_b32 s{sTMP}, s{sTMP}, 4
        v_xor_b32 v{vQd}, s{sTMP}, v{vL16}
        v_xor_b32 v{vQd+1}, 32, v{vQd}
        v_xor_b32 v{vQd+2}, 64, v{vQd}
        v_xor_b32 v{vQd+3}, 0x60, v{vQd}
        v_mov_b32 v{t0}, 0
        v_lshlrev_b32 v{t1}, 2, v{vL}
        s_mov_b32 exec_hi, 0
        ds_write_b32 v{t1}, v{t0} offset:{B_ZERO}
        s_mov_b64 exec, -1
        s_lshl_b32 s{sTMP}, s{sXCD}, 3
        s_lshl_b32 s{sTMP+1}, s{sHG}, 2
        s_add_u32 s{sTMP}, s{sTMP}, s{sTMP+1}
        s_add_u32 s{sTMP}, s{sTMP}, s{sW}
        s_lshl_b32 s{sTMP}, s{sTMP}, 9
        s_add_u32 s{sTMP}, s{sTMP}, {D1}
        s_add_u32 s{sBP}, s4, s{sTMP}
        s_addc_u32 s{sBP+1}, s5, 0
        """)
        if not numa: g.stamp(14)
        ckv_stream(c1_, c1_ + c2_)
        for i in range(10):
            unit_pattern(g, vP2 + i, vL, sW if i == 9 else None, i, 1152, t0, t1)
        tr_pair_bases(g, vT20, vT21, vK20, vK21, vL, B_W2, t0, t1, t2)
        g(f"""
        v_bfe_u32 v{t0}, v{vL}, 2, 1
        v_lshlrev_b32 v{t0}, 7, v{t0}
        v_add_u32 v{t0}, {B_HL}, v{t0}
        v_lshl_add_u32 v{t1}, v{vG}, 3, v{t0}
        v_add_u32 v{t0}, 64, v{t0}
        v_mov_b32 v{t2}, {B_ZERO}
        v_cmp_gt_u32 vcc, 8, v{vN}
        v_cndmask_b32 v{vHe}, v{t2}, v{t1}, vcc
        v_cndmask_b32 v{vHo}, v{t1}, v{t2}, vcc
        v_lshrrev_b32 v{t1}, 3, v{vL}
        v_cmp_eq_u32 vcc, 0, v{t1}
        v_cndmask_b32 v{vHke}, v{t2}, v{t0}, vcc
        v_cmp_eq_u32 vcc, 1, v{t1}
        v_cndmask_b32 v{vHko}, v{t2}, v{t0}, vcc
        """)
        finish_tag(g)
        g(f"""
        v_mov_b32 v{vTag}, s{sT}
        v_mov_b32 v{vTag+1}, s{sT+1}
        s_bitcmp1_b32 s{sT}, 0
        s_cselect_b32 s{sPat}, 1, 0x10000
        v_mov_b32 v{vML+1}, s{sPat}
        s_mov_b32 s{sMk}, 0xfffefffe
        s_mov_b32 s{sTT}, s{sT}
        s_mov_b32 s{sTT+1}, s{sT}
        """)
        vPat = 33
        g(f"v_mov_b32 v{vPat}, s{sPat}")
        w1b = opt.get('w1_on') == 'B'
        if w1b:
            g(f"""
            s_lshl_b32 s{sO}, s{sU2}, 2
            s_add_u32 s{sO}, s{sO}, s{sW}
            s_mul_i32 s{sRho}, s{sO}, 1821
            s_lshr_b32 s{sRho}, s{sRho}, 16
            s_mul_i32 s{sTMP}, s{sRho}, 36
            s_sub_u32 s{sBlk}, s{sO}, s{sTMP}
            s_min_u32 s{sTMP}, s{sRho}, 4
            s_mul_i32 s{sR0}, s{sRho}, 10
            s_add_u32 s{sR0}, s{sR0}, s{sTMP}
            s_lshl_b32 s{sR0}, s{sR0}, 2
            v_bfe_u32 v{t0}, v{vL}, 3, 1
            v_mul_u32_u24 v{t0}, 1152, v{t0}
            s_lshl_b32 s{sO}, s{sR0}, 1
            """)
            assert all((i * 1821) >> 16 == i // 36 for i in range(512))
            for k in range(5):
                g(f"buffer_load_dwordx4 {v(vXr+4*k,4)}, v{t0}, {X}, s{sO} offen offset:{16*k}")
            g(f"buffer_load_dwordx2 {v(vXr+20,2)}, v{t0}, {X}, s{sO} offen offset:80")
            g(f"""
            v_mul_u32_u24 v{vW1a}, 9216, v{vG}
            v_lshl_add_u32 v{vW1a}, v{vN}, 4, v{vW1a}
            v_lshrrev_b32 v{t0}, 5, v{vL}
            v_mul_u32_u24 v{vHs}, 18432, v{t0}
            v_and_b32 v{t0}, 31, v{vL}
            v_lshl_add_u32 v{vHs}, v{t0}, 4, v{vHs}
            v_mul_u32_u24 v{t0}, 0x0202, v{vG}
            v_add_u32 v{t0}, 0x0100, v{t0}
            v_and_b32 v{t1}, 1, v{vL}
            v_lshlrev_b32 v{t1}, 4, v{t1}
            v_lshlrev_b32 v{t0}, v{t1}, v{t0}
            v_mov_b32 v{t2}, 0x0c0c0000
            v_lshrrev_b32 v{t2}, v{t1}, v{t2}
            v_or_b32 v{t0}, v{t0}, v{t2}
            v_bfe_u32 v{t1}, v{vL}, 1, 2
            v_mov_b32 v{t2}, 0x0c0c0c0c
            """)
            for d in range(4):
                g(f"v_cmp_eq_u32 vcc, {d}, v{t1}")
                g(f"v_cndmask_b32 v{vSel+d}, v{t2}, v{t0}, vcc")
        g(f"""
        v_lshrrev_b32 v{t0}, 5, v{vL}
        v_bfe_u32 v{t1}, v{vL}, 4, 1
        v_lshl_add_u32 v{t0}, v{t1}, 1, v{t0}
        v_lshl_add_u32 v{t0}, v{vN}, 2, v{t0}
        v_lshlrev_b32 v{t0}, 1, v{t0}
        s_mul_i32 s{sO}, s{sU2}, 72
        buffer_load_ushort v{vB1}, v{t0}, {B1}, s{sO} offen
        v_lshl_add_u32 v{vHw}, s{sW}, 7, v{t0}
        s_mul_i32 s{sO}, s{sU2}, 9
        v_add_u32 v{t0}, s{sO}, v{vN}
        v_and_b32 v{t1}, 1, v{t0}
        v_lshlrev_b32 v{t1}, 8, v{t1}
        v_bfe_u32 v{t2}, v{t0}, 1, 4
        v_lshl_add_u32 v{t1}, v{t2}, 4, v{t1}
        v_lshrrev_b32 v{t2}, 5, v{t0}
        v_lshl_add_u32 v{t1}, v{t2}, 9, v{t1}
        v_mul_u32_u24 v{vHg}, 36864, v{vG}
        v_add_u32 v{vHg}, v{vHg}, v{t1}
        """)
        for k in range(4):
            g(f"s_load_dwordx4 s[{[8,12,24,52][k]}:{[8,12,24,52][k]+3}], s[{sBP}:{sBP+1}], {k*128} glc")
        assert c1_ + c2_ <= 16
        if opt.get("b_sleep"): g(f"s_sleep {opt['b_sleep']}")
        if numa:
            g(f"""
            s_lshl_b32 s{sO}, s{sMSG}, 1
            s_add_u32 s{sO}, s{sO}, s{sHG}
            s_lshl_b32 s{sO}, s{sO}, 7
            s_add_u32 s{sO}, s{sO}, {DP}
            s_add_u32 s{sDP}, s4, s{sO}
            s_addc_u32 s{sDP+1}, s5, 0
            s_lshr_b32 s{sTMP}, s{sXCD}, 2
            s_or_b32 s{sTMP}, s{sTMP}, s{sW}
            s_cmp_lg_u32 s{sTMP}, 0
            s_cbranch_scc1 L_B_noann
            s_xor_b32 s{sTMP}, s{sT+1}, s{sPhi}
            v_mov_b32 v{t0}, s{sT}
            v_mov_b32 v{t1}, s{sTMP}
            v_lshlrev_b32 v{t2}, 3, v{vL}
            s_mov_b64 exec, 0xffff
            buffer_store_dwordx2 {v(t0,2)}, v{t2}, {WS}, s{sO} offen sc1
            s_mov_b64 exec, -1
            """)
            g.lab("L_B_noann")
        g.stamp(8)
        ckv_stream(c1_ + c2_, 32)
        if numa:
            g(f"""
            s_cmp_lt_u32 s{sXCD}, 4
            s_cbranch_scc1 L_B_phok
            s_mov_b32 s{sCNT}, 0
            """)
            g.lab("L_B_phpoll")
            g(f"s_load_dwordx2 s[16:17], s[{sDP}:{sDP+1}], 0 glc")
            spin_guard(g, "L_B_phok")
            g(f"""
            s_waitcnt lgkmcnt(0)
            s_xor_b64 s[16:17], s[16:17], s[{sT}:{sT+1}]
            s_lshr_b32 s{sTMP}, s17, 1
            s_or_b32 s{sTMP}, s{sTMP}, s16
            s_cbranch_scc1 L_B_phpoll
            s_cmp_lg_u32 s17, s{sPhi}
            s_cbranch_scc1 L_B_phok
            s_branch L_B_refetch
            """)
            g.lab("L_B_phok")
            g(f"s_lshl_b32 s{sMSG}, s{sMSG}, 1")
            g(f"s_add_u32 s{sMSG}, s{sMSG}, s{sPhi}")
            msg_addr()
            if opt.get("stamps"): g(f"s_mov_b32 s98, s{sPhi}")
        NW1 = 0 if "w1" in opt.get("skip", "") else 11
        w1pos = opt.get("w1_pos", 0)
        def w1_stream():
            if "w1" in opt.get("skip", ""): return
            g(f"s_mul_i32 s{sO2}, s{sR0}, 9216")
            g(f"s_lshl_b32 s{sO3}, s{sBlk}, 8")
            g(f"s_add_u32 s{sO2}, s{sO2}, s{sO3}")
            for i in range(11):
                g(f"buffer_load_dwordx4 {v(vW1+4*i,4)}, v{vW1a}, {W1}, s{sO2} offen {NT}")
                if i < 10: g(f"s_add_u32 s{sO2}, s{sO2}, {4*9216}")
                if i == 9:
                    g(f"s_cmp_ge_u32 s{sRho}, 4")
                    g(f"s_cselect_b32 s{sO2}, {576*9216}, s{sO2}")
        def w1_gemv(store=True):
            vH = 140
            for i in range(10):
                g(f"{MF} {v(vH,4)}, {v(vXA+4*i,4)}, {v(vW1+4*i,4)}, {'0' if i == 0 else v(vH,4)}")
            g(f"s_cmp_ge_u32 s{sRho}, 4")
            g("s_cbranch_scc1 L_B_w1s")
            g(f"{MF} {v(vH,4)}, {v(vXA+40,4)}, {v(vW1+40,4)}, {v(vH,4)}")
            g.lab("L_B_w1s")
            g(f"""
            s_mul_i32 s{sO}, s{sRho}, 36864
            s_lshl_b32 s{sO3}, s{sBlk}, 9
            s_add_u32 s{sO}, s{sO}, s{sO3}
            s_add_u32 s{sO}, s{sO}, {HH}
            s_and_b32 s{sO3}, s{sT}, 15
            """)
            for r in range(4):
                g(f"v_and_or_b32 v{vH+r}, v{vH+r}, -16, s{sO3}")
            g(f"s_mov_b32 s{sR0}, s{sO}")
        def w2_stream():
            g(f"s_mul_i32 s{sO2}, s{sU2}, {36*1152}")
            unit_load(g, W2, vP2, None, sO2, 1152, "w2", NT, vdst=vW2, w0extra=False)
        NW1 = 0
        if w1b:
            assert opt.get("w2_pos", 0) != 2 and opt.get("pv_pre", 4) == 4
            w1_stream(); NW1 = 0 if "w1" in opt.get("skip", "") else 11
        if opt.get("w2_pos", 0) == 2:
            w2_stream(); NW1 = 0 if "w2" in opt.get("skip", "") else 11
        g.stamp(1)
        g(f"s_lshl_b32 m0, s{sW}, 12")
        sD = [8, 12, 24, 52]
        def d1poll():
            for k in range(4):
                g(f"s_load_dwordx4 s[{sD[k]}:{sD[k]+3}], s[{sBP}:{sBP+1}], {k*128} glc")
        def d1chk():
            for k in range(4):
                g(f"s_xor_b64 s[{sD[k]}:{sD[k]+1}], s[{sD[k]}:{sD[k]+1}], s[{sTT}:{sTT+1}]")
                g(f"s_xor_b64 s[{sD[k]+2}:{sD[k]+3}], s[{sD[k]+2}:{sD[k]+3}], s[{sTT}:{sTT+1}]")
                g(f"s_or_b64 s[{sD[k]}:{sD[k]+1}], s[{sD[k]}:{sD[k]+1}], s[{sD[k]+2}:{sD[k]+3}]")
            g("s_or_b64 s[8:9], s[8:9], s[12:13]")
            g("s_or_b64 s[24:25], s[24:25], s[52:53]")
            g("s_or_b64 s[8:9], s[8:9], s[24:25]")
        def qdma():
            for k in range(4):
                g(f"buffer_load_dwordx4 v{vQd+k}, {WS}, s{sQg} offen offset:{k*1024} sc1 lds")
        def look(tag):
            if tag[0] not in opt.get("looks", "abcd"): return
            g(f"s_cmp_lg_u32 s{sGot}, 0")
            g(f"s_cbranch_scc1 L_B_lk{tag}")
            g("s_waitcnt lgkmcnt(0)")
            d1chk()
            g(f"s_cbranch_scc1 L_B_lp{tag}")
            g.stamp(3)
            qdma()
            g(f"s_mov_b32 s{sGot}, 1")
            g(f"s_branch L_B_lk{tag}")
            g.lab(f"L_B_lp{tag}")
            d1poll()
            g.lab(f"L_B_lk{tag}")
        def pvgroup(k):
            for ct in range(8):
                tmp = t0 + (ct & 1)
                g(f"v_xor_b32 v{tmp}, {ct<<5}, v{vPVb+k}")
                for hi in range(2):
                    g(f"ds_read_b64_tr_b16 {A(aP+(ct*4+k)*4+2*hi,2)}, v{tmp} offset:{hi*16384}")
        npre = opt.get("pv_pre", 4)
        vPA = 168
        def pvrd(k, ct, hi):
            g(f"ds_read_b64_tr_b16 {A(aP+(ct*4+k)*4+2*hi,2)}, v{vPA+8*k+ct} offset:{hi*16384}")
        qd = opt.get("q_direct", 0)
        if qd:
            vQr = 140
            def qld():
                for k in range(4):
                    g(f"buffer_load_dwordx4 {v(vQr+4*k,4)}, v{vL16}, {WS}, s{sQg} offen offset:{k*1024} sc1")
            def qchk():
                g(f"v_cmp_eq_u32 vcc, s{sPOI}, v{vQr}")
                for k in range(1, 4):
                    g(f"v_cmp_eq_u32 s[{sM1}:{sM1+1}], s{sPOI}, v{vQr+4*k}")
                    g(f"s_or_b64 vcc, vcc, s[{sM1}:{sM1+1}]")
            g("s_waitcnt lgkmcnt(0)")
            g(f"s_mov_b32 s{sCNT}, 0")
            g.lab("L_B_rdy")
            d1poll()
            spin_guard(g, "L_B_rdy2")
            g("s_waitcnt lgkmcnt(0)")
            d1chk()
            g("s_cbranch_scc1 L_B_rdy")
            g.lab("L_B_rdy2")
            g(f"s_lshl_b32 s{sTMP}, s{sW}, 12")
            for k in range(4): g(f"v_add_u32 v{vQd+k}, s{sTMP}, v{vQd+k}")
            g(f"s_waitcnt vmcnt({16+NW1})")
            for ks in range(16):
                g(f"ds_read_b128 {A(aS+ks*4,4)}, v{vSB+(ks&3)} offset:{(ks>>2)*256}")
            g(f"s_waitcnt vmcnt({opt.get('q_at', 0)+NW1})")
            g.stamp(3)
            qld()
            g(f"s_waitcnt vmcnt({4+NW1})")
            g.stamp(2)
            for ks in range(16):
                g(f"ds_read_b128 {A(aS+64+ks*4,4)}, v{vSB+(ks&3)} offset:{16384+(ks>>2)*256}")
            g("s_barrier")
            g(f"s_mov_b32 s{sGot}, 0")
            half = opt.get("q_mid", 2)
            for k in range(npre):
                if k == half:
                    g("s_waitcnt vmcnt(0)")
                    qchk()
                    g("s_cbranch_scc0 L_B_qm")
                    qld()
                    g.lab("L_B_qm")
                pvgroup(k)
            g(f"s_mov_b32 s{sCNT}, 0")
            g.lab("L_B_qchk")
            g("s_waitcnt vmcnt(0)")
            qchk()
            g("s_cbranch_scc1 L_B_qagain")
            g.lab("L_B_qgood")
            if opt.get("stamps"): g(f"s_mov_b32 s100, s{sCNT}")
            for k in range(4):
                g(f"ds_write_b128 v{vQd+k}, {v(vQr+4*k,4)} offset:{k*1024}")
        else:
            g("s_waitcnt lgkmcnt(0)")
            if opt.get("looks", "abcd"): d1poll()
            g(f"s_mov_b32 s{sGot}, 0")
            g(f"s_waitcnt vmcnt({16+NW1})")
            for ks in range(16):
                g(f"ds_read_b128 {A(aS+ks*4,4)}, v{vSB+(ks&3)} offset:{(ks>>2)*256}")
            if w1b:
                for i in range(11):
                    for d in range(4):
                        g(f"v_perm_b32 v{vXA+4*i+d}, v{vXr+2*i+1}, v{vXr+2*i}, v{vSel+d}")
            for z in range(opt.get("b_looks", 2)): look(f"a{z}")
            g(f"s_cmp_lg_u32 s{sGot}, 0")
            g("s_cbranch_scc1 L_B_cw1")
            g(f"s_waitcnt vmcnt({NW1})")
            g.lab("L_B_cw1")
            g(f"s_waitcnt vmcnt({4+NW1})")
            g.stamp(2)
            look("b")
            for ks in range(16):
                g(f"ds_read_b128 {A(aS+64+ks*4,4)}, v{vSB+(ks&3)} offset:{16384+(ks>>2)*256}")
            g("s_barrier")
            def pvgroup(k):
                for ct in range(8):
                    tmp = t0 + (ct & 1)
                    g(f"v_xor_b32 v{tmp}, {ct<<5}, v{vPVb+k}")
                    for hi in range(2):
                        g(f"ds_read_b64_tr_b16 {A(aP+(ct*4+k)*4+2*hi,2)}, v{tmp} offset:{hi*16384}")
            npre = opt.get("pv_pre", 4)
            vPA = 168
            def pvrd(k, ct, hi):
                g(f"ds_read_b64_tr_b16 {A(aP+(ct*4+k)*4+2*hi,2)}, v{vPA+8*k+ct} offset:{hi*16384}")
            for k in range(npre):
                look(f"c{k}")
                pvgroup(k)
            if w1b:
                look("d")
                g(f"s_cmp_lg_u32 s{sGot}, 0")
                g("s_cbranch_scc1 L_B_cw2")
                g("s_waitcnt vmcnt(0)")
                g.lab("L_B_cw2")
                g("s_waitcnt vmcnt(4)")
                w1_gemv(False)
            g(f"s_mov_b32 s{sCNT}, 0")
            g(f"s_cmp_lg_u32 s{sGot}, 0")
            g("s_cbranch_scc1 L_B_qwait")
            if opt.get("looks", "abcd"): g("s_branch L_B_d1chk")
            g.lab("L_B_d1poll")
            d1poll()
            spin_guard(g, "L_B_qget0")
            g.lab("L_B_d1chk")
            g("s_waitcnt lgkmcnt(0)")
            d1chk()
            g("s_cbranch_scc1 L_B_d1poll")
            g.stamp(3)
            g.lab("L_B_qget0")
            g(f"s_mov_b32 s{sCNT}, 0")
            qdma()
            g.lab("L_B_qwait")
        nb = 0
        if w1b:
            g(f"buffer_store_dwordx4 {v(140,4)}, v{vHs}, {WS}, s{sR0} offen sc1")
            nb = 1
        if opt.get("w2_pos", 0) == 3:
            g(f"s_mul_i32 s{sO2}, s{sU2}, {36*1152}")
            g(f"s_mul_i32 s{sO}, s{sW}, {8*1152}")
            g(f"s_add_u32 s{sO}, s{sO}, s{sO2}")
            g(f"s_add_u32 s{sO2}, s{sO2}, {32*1152}")
        if opt.get("w2_pos", 0) == 0:
            w2_stream(); nb += 0 if "w2" in opt.get("skip", "") else 11
        g(f"s_waitcnt vmcnt({nb}) lgkmcnt(0)")
        g.lab("L_B_qbar")
        g("s_barrier")
        g.stamp(4)
        def ebell():
            g(f"""
            s_cmp_lg_u32 s{sW}, 2
            s_cbranch_scc1 L_B_noeb
            s_sub_u32 s{sTMP}, s{sD2}, {D2}
            s_lshr_b32 s{sTMP}, s{sTMP}, 1
            s_add_u32 s{sTMP}, s{sTMP}, {DE2 if opt.get("e_rep") else DE}
            v_lshlrev_b32 v{t3}, {14 if opt.get("e_rep") else 4}, v{vL}
            s_mov_b64 exec, 0xff
            buffer_store_dwordx4 {v(vML,4)}, v{t3}, {WS}, s{sTMP} offen sc1
            s_mov_b64 exec, -1
            """)
            g.lab("L_B_noeb")
        vQ = 64
        vS = 156
        PRE = 4 if npre < 4 else 6
        late = [(k, ct, hi) for k in range(npre, 4) for ct in range(8) for hi in range(2)]
        per = 2 if late else 0
        seq = []
        for ks in range(PRE):
            g(f"ds_read_b128 {v(vQ+4*ks,4)}, v{vQBs+(ks&3)} offset:{(ks>>2)*256}"); seq.append(("q", ks))
        for ks in range(16):
            if opt.get("e_pos") == ks: ebell()
            if ks + PRE < 16:
                k2 = ks + PRE
                g(f"ds_read_b128 {v(vQ+4*k2,4)}, v{vQBs+(k2&3)} offset:{(k2>>2)*256}"); seq.append(("q", k2))
            for _ in range(per if ks + PRE < 16 else per + 1):
                if late:
                    pvrd(*late.pop(0)); seq.append(("p",))
            g(f"s_waitcnt lgkmcnt({min(15, len(seq) - 1 - seq.index(('q', ks)))})")
            for kt in range(2):
                g(f"{MF} {v(vS+4*kt,4)}, {A(aS+(kt*16+ks)*4,4)}, {v(vQ+4*ks,4)}, {'0' if ks == 0 else v(vS+4*kt,4)}")
            if opt.get("w2_pos", 0) == 3 and 4 <= ks < 15:
                i = ks - 4
                if i == 10: g("s_mov_b32 exec_hi, 0")
                g(f"buffer_load_dwordx4 {v(vW2+4*i,4)}, v{vP2+(i if i < 10 else 4)}, {W2}, s{sO if i < 9 else sO2} offen {NT}")
                if i == 10: g("s_mov_b64 exec, -1")
        CS = math.log2(math.e) * 128 ** -0.5
        g(f"s_mov_b32 s{sC}, {hex(fbits(CS))}")
        g(f"""
        {"" if qd else f"v_cmp_u_f32 vcc, v{vS}, v{vS}"}
        v_max3_f32 v{t0}, v{vS}, v{vS+1}, v{vS+2}
        v_max3_f32 v{t1}, v{vS+3}, v{vS+4}, v{vS+5}
        v_max3_f32 v{t0}, v{t0}, v{vS+6}, v{vS+7}
        v_max_f32 v{t0}, v{t0}, v{t1}
        {"" if qd else "s_cbranch_vccnz L_B_qslow"}
        """)
        g.lab("L_B_qok")
        if opt.get("stamps") and not qd: g(f"s_mov_b32 s100, s{sCNT}")
        g(f"""
        ds_write_b32 v{vMXw}, v{t0} offset:{B_MX}
        s_waitcnt lgkmcnt(0)
        s_barrier
        """)
        g.stamp(5)
        vM = 64
        for q in range(4):
            g(f"ds_read_b128 {v(vM+4*q,4)}, v{vMXr} offset:{B_MX+q*256}")
        g(f"""
        s_waitcnt lgkmcnt(2)
        v_max3_f32 v{vM}, v{vM}, v{vM+1}, v{vM+2}
        v_max3_f32 v{vM+3}, v{vM+3}, v{vM+4}, v{vM+5}
        v_max3_f32 v{vM}, v{vM}, v{vM+6}, v{vM+7}
        s_waitcnt lgkmcnt(0)
        v_max3_f32 v{vM+8}, v{vM+8}, v{vM+9}, v{vM+10}
        v_max3_f32 v{vM+11}, v{vM+11}, v{vM+12}, v{vM+13}
        v_max3_f32 v{vM+8}, v{vM+8}, v{vM+14}, v{vM+15}
        v_max3_f32 v{vM}, v{vM}, v{vM+3}, v{vM+11}
        v_max_f32 v{vM}, v{vM}, v{vM+8}
        v_mul_f32 v{vML}, s{sC}, v{vM}
        """)
        n1 = min(len(late), 14)
        for _ in range(n1): pvrd(*late.pop(0))
        def stat(wave, off, tag):
            g(f"s_cmp_lg_u32 s{sW}, {wave}")
            g(f"s_cbranch_scc1 L_B_nost{tag}")
            if off: g(f"s_add_u32 s{sD2}, s{sD2}, {off}")
            g("s_mov_b64 exec, 0xffff")
            g(f"buffer_store_dwordx4 {v(vML,4)}, v{vL16}, {WS}, s{sD2} offen sc1")
            g("s_mov_b64 exec, -1")
            g.lab(f"L_B_nost{tag}")
        if opt.get("m_early"): stat(1, 0, "m")
        for k in range(8):
            g(f"v_fma_f32 v{vS+k}, v{vS+k}, s{sC}, -v{vML}")
        for k in range(8):
            g(f"v_exp_f32 v{vS+k}, v{vS+k}")
        vPf = 80
        vO = 96
        for k in range(4):
            g(f"v_cvt_pk_bf16_f32 v{vPf+k}, v{vS+2*k}, v{vS+2*k+1}")
        g(f"ds_write_b128 v{vPw}, {v(vPf,4)} offset:{B_PB}")
        g(f"""
        v_pk_add_f32 {v(vS,2)}, {v(vS,2)}, {v(vS+2,2)}
        v_pk_add_f32 {v(vS+4,2)}, {v(vS+4,2)}, {v(vS+6,2)}
        v_pk_add_f32 {v(vS,2)}, {v(vS,2)}, {v(vS+4,2)}
        v_add_f32 v{vS}, v{vS}, v{vS+1}
        ds_write_b32 v{vMXw}, v{vS} offset:{B_LS}
        """)
        def pv(k, cts=range(8)):
            for ct in cts:
                g(f"{MF} {v(vO+4*ct,4)}, {v(vPf+4*k,4)}, {A(aP+(ct*4+k)*4,4)}, {'0' if k == 0 else v(vO+4*ct,4)}")
        pv(0, range(2))
        if not opt.get("m_early"): stat(1, 0, "m")
        g("s_waitcnt lgkmcnt(0)")
        g("s_barrier")
        g.stamp(6)
        for k in range(1, 4):
            g(f"ds_read_b128 {v(vPf+4*k,4)}, v{[0,20,21,23][k]} offset:{B_PB}")
        for q in range(4):
            g(f"ds_read_b128 {v(vM+4*q,4)}, v{vMXr} offset:{B_LS+q*256}")
        nl = len(late)
        assert all(k == 3 for k, _, _ in late)
        for ct in range(2, 8):
            pv(0, [ct])
            for _ in range(3):
                if late: pvrd(*late.pop(0))
        assert not late
        g(f"s_waitcnt lgkmcnt({min(15, 6 + nl)})")
        adds = [f"v_pk_add_f32 {v(vM,2)}, {v(vM,2)}, {v(vM+2,2)}", f"v_pk_add_f32 {v(vM+4,2)}, {v(vM+4,2)}, {v(vM+6,2)}",
                f"v_pk_add_f32 {v(vM+8,2)}, {v(vM+8,2)}, {v(vM+10,2)}", f"v_pk_add_f32 {v(vM+12,2)}, {v(vM+12,2)}, {v(vM+14,2)}",
                f"v_pk_add_f32 {v(vM,2)}, {v(vM,2)}, {v(vM+4,2)}", f"v_pk_add_f32 {v(vM+8,2)}, {v(vM+8,2)}, {v(vM+12,2)}",
                f"v_pk_add_f32 {v(vM,2)}, {v(vM,2)}, {v(vM+8,2)}", f"v_add_f32 v{vML}, v{vM}, v{vM+1}"]
        pv(1, range(4))
        g("s_waitcnt lgkmcnt(0)")
        for ct in range(4, 8):
            pv(1, [ct])
            g(adds[2 * (ct - 4)]); g(adds[2 * (ct - 4) + 1])
        dbpos = opt.get("d2_pos", 2)
        if dbpos == 2: stat(0, DL - D2, "l")
        vOo = 64
        def cv(k, rs=range(4)):
            for r in rs:
                g(f"v_cvt_pk_bf16_f32 v{vOo+4*r+k}, v{vO+8*k+r}, v{vO+8*k+4+r}")
        def tg(k, rs=range(4)):
            for r in rs:
                g(f"v_and_or_b32 v{vOo+4*r+k}, v{vOo+4*r+k}, s{sMk}, v{vPat}")
        for p in range(4):
            pv(2, [2 * p, 2 * p + 1])
            if p >= 2: cv(p - 2, (0, 1))
            pv(3, [2 * p])
            if p >= 2: cv(p - 2, (2, 3))
            pv(3, [2 * p + 1])
            if p >= 2: tg(p - 2)
            if dbpos == 3 and p == 1: stat(0, DL - D2, "l")
        cv(2); tg(2)
        for r in range(4):
            cv(3, [r]); tg(3, [r])
            g(f"s_add_u32 s{sO}, s{sOo}, {4*r*OSTR}")
            g(f"buffer_store_dwordx4 {v(vOo+4*r,4)}, v{vOa}, {WS}, s{sO} offen sc1")
        if dbpos == 4: stat(0, DL - D2, "l")
        g.stamp(7)
        vHr = 80
        vEr = 96
        g(f"""
        s_and_b32 s{sTMP}, s{sW}, 1
        s_mul_i32 s{sO}, s{sTMP}, 18432
        s_add_u32 s{sO}, s{sO}, {HH}
        s_add_u32 s{sO2}, s{sO}, {4*36864}
        s_add_u32 s{sO3}, s{sO}, {8*36864}
        s_add_u32 s{sC}, s{sO}, {12*36864}
        s_and_b32 s{sPat}, s{sT}, 15
        s_mov_b32 s{sCNT}, 0
        """)
        for k in range(4): g(f"v_mov_b32 v{vHr+12+k}, s{sPat}")
        def hget():
            g("s_mov_b32 exec_lo, 0x01ff01ff")
            g("s_mov_b32 exec_hi, 0x01ff01ff")
            for u, so in enumerate((sO, sO2, sO3, sC)):
                if u == 3: g("s_mov_b32 exec_hi, 0")
                g(f"buffer_load_dwordx4 {v(vHr+4*u,4)}, v{vHg}, {WS}, s{so} offen sc1")
            g("s_mov_b64 exec, -1")
        g(f"s_cmp_gt_u32 s{sW}, 1")
        g("s_cbranch_scc1 L_B_noh1")
        hget()
        g.lab("L_B_noh1")
        if npre < 4: g("s_barrier")
        if opt.get("w2_pos", 0) == 1:
            if opt.get("w2_wait"): g("s_waitcnt vmcnt(0)")
            if opt.get("b_sleep2"): g(f"s_sleep {opt['b_sleep2']}")
            g(f"s_mul_i32 s{sR0}, s{sU2}, {36*1152}")
            g(f"s_mov_b32 s{sRho}, s{sO}")
            unit_load(g, W2, vP2, B_W2, sR0, 1152, "w2", NT, thr=opt.get("w2_thr"))
            g(f"s_mov_b32 s{sO}, s{sRho}")
        else:
            g(f"s_mul_i32 s{sTMP}, s{sW}, 9216")
            g(f"v_add_u32 v{t2}, s{sTMP}, v{vL16}")
            g("s_waitcnt vmcnt(4)")
            for i in range(9):
                g(f"ds_write_b128 v{t2}, {v(vW2+4*i,4)} offset:{B_W2+i*1024}")
            g(f"ds_write_b128 v{vPw}, {v(vW2+36,4)} offset:{B_W2+36864}")
            g(f"ds_write_b128 v{vL16}, {v(vW2+40,4)} offset:{B_W2+36864+4096}")
        g(f"s_cmp_gt_u32 s{sW}, 1")
        g("s_cbranch_scc1 L_B_hbar")
        g.lab("L_B_hchk")
        g("s_mov_b32 exec_lo, 0x01ff01ff")
        g("s_mov_b32 exec_hi, 0x01ff01ff")
        g("s_waitcnt vmcnt(0)")
        g.stamp(10)
        vHx = 100
        for k in range(16):
            g(f"v_xor_b32 v{vHx+k}, s{sPat}, v{vHr+k}")
        g(f"v_or3_b32 v{vEr}, v{vHx}, v{vHx+1}, v{vHx+2}")
        for k in range(3, 15, 2):
            g(f"v_or3_b32 v{vEr}, v{vEr}, v{vHx+k}, v{vHx+k+1}")
        g(f"v_or_b32 v{vEr}, v{vEr}, v{vHx+15}")
        g(f"v_and_b32 v{vEr}, 15, v{vEr}")
        g(f"v_cmp_ne_u32 vcc, 0, v{vEr}")
        g("s_cbranch_vccnz L_B_hslow")
        g.lab("L_B_hok")
        c1 = -2.0 * math.log2(math.e) * math.sqrt(2.0 / math.pi)
        g(f"""
        v_pk_add_f32 {v(vHx,2)}, {v(vHx,2)}, {v(vHx+4,2)}
        v_pk_add_f32 {v(vHx+2,2)}, {v(vHx+2,2)}, {v(vHx+6,2)}
        v_pk_add_f32 {v(vHx+8,2)}, {v(vHx+8,2)}, {v(vHx+12,2)}
        v_pk_add_f32 {v(vHx+10,2)}, {v(vHx+10,2)}, {v(vHx+14,2)}
        v_pk_add_f32 {v(vHx,2)}, {v(vHx,2)}, {v(vHx+8,2)}
        v_pk_add_f32 {v(vHx+2,2)}, {v(vHx+2,2)}, {v(vHx+10,2)}
        v_lshlrev_b32 v{vB1}, 16, v{vB1}
        v_mov_b32 v{t1}, {hex(fbits(c1))}
        v_permlane32_swap_b32 v{vHx}, v{vHx+1}
        v_permlane32_swap_b32 v{vHx+2}, v{vHx+3}
        v_add_f32 v{vHx}, v{vHx}, v{vHx+1}
        v_add_f32 v{vHx+2}, v{vHx+2}, v{vHx+3}
        s_mov_b32 s{sC}, {hex(fbits(c1*0.044715))}
        v_permlane16_swap_b32 v{vHx}, v{vHx+2}
        v_add_f32 v{vHx}, v{vHx}, v{vHx+2}
        v_add_f32 v{vHx}, v{vHx}, v{vB1}
        v_mul_f32 v{t0}, v{vHx}, v{vHx}
        v_fma_f32 v{t0}, v{t0}, s{sC}, v{t1}
        v_mul_f32 v{t0}, v{t0}, v{vHx}
        v_exp_f32 v{t0}, v{t0}
        v_add_f32 v{t0}, 1.0, v{t0}
        v_rcp_f32 v{t0}, v{t0}
        v_mul_f32 v{t0}, v{t0}, v{vHx}
        v_cvt_pk_bf16_f32 v{t0}, v{t0}, v{t0}
        ds_write_b16 v{vHw}, v{t0} offset:{B_HL}
        s_mov_b64 exec, -1
        """)
        g.lab("L_B_hbar")
        g("s_waitcnt vmcnt(0) lgkmcnt(0)" if opt.get("w2_pos", 0) == 1 else "s_waitcnt lgkmcnt(0)")
        g("s_barrier")
        g.stamp(11)
        aW = 0
        vHA = 64
        vY = 96
        g(f"ds_read2_b64 {v(vHA,4)}, v{vHe} offset0:0 offset1:4")
        g(f"ds_read2_b64 {v(vHA+6,4)}, v{vHo} offset0:0 offset1:4")
        def w2reads(t):
            for x in range(2):
                b = aW + (t * 2 + x) * 6
                g(f"ds_read_b64_tr_b16 {A(b,2)}, v{vT21 if x else vT20} offset:{t*256}")
                g(f"ds_read_b64_tr_b16 {A(b+2,2)}, v{vT21 if x else vT20} offset:{16*1152+t*256}")
        def w2rk(t):
            for x in range(2):
                b = aW + (t * 2 + x) * 6
                g(f"ds_read_b64_tr_b16 {A(b+4,2)}, v{vK21 if x else vK20} offset:{t*256}")
        def w2mf(t):
            for x in range(2):
                b = aW + (t * 2 + x) * 6
                g(f"{MF} {v(vY+4*t,4)}, {v(vHA+6*x,4)}, {A(b,4)}, {'0' if x == 0 else v(vY+4*t,4)}")
        def w2mf16(t):
            for x in range(2):
                b = aW + (t * 2 + x) * 6
                g(f"{MF16} {v(vY+4*t,4)}, {v(vHA+6*x+4,2)}, {A(b+4,2)}, {v(vY+4*t,4)}")
        w2reads(0); w2reads(1); w2reads(2)
        g("s_waitcnt lgkmcnt(8)")
        w2mf(0)
        w2reads(3)
        g("s_waitcnt lgkmcnt(8)")
        w2mf(1)
        w2reads(4)
        g("s_waitcnt lgkmcnt(8)")
        w2mf(2)
        g(f"ds_read_b64 {v(vHA+4,2)}, v{vHke}")
        g(f"ds_read_b64 {v(vHA+10,2)}, v{vHko}")
        w2rk(0); w2rk(1)
        g("s_waitcnt lgkmcnt(10)")
        w2mf(3)
        w2rk(2); w2rk(3); w2rk(4)
        g("s_waitcnt lgkmcnt(12)")
        w2mf(4)
        for t in range(5):
            g(f"s_waitcnt lgkmcnt({2*(4-t)})")
            w2mf16(t)
        for t in range(4):
            g(f"v_and_or_b32 v{vHA+t}, v{vY+4*t}, -16, s{sPat}")
        g(f"buffer_store_dwordx4 {v(vHA,4)}, v{vH3}, {WS}, s{sH3m} offen sc1")
        g(f"s_cmp_gt_u32 s{sW}, 1")
        g("s_cbranch_scc1 L_B_no5b")
        g(f"v_and_or_b32 v{vY+16}, v{vY+16}, -16, s{sPat}")
        g(f"buffer_store_dword v{vY+16}, v{vH3x}, {WS}, s{sH3l} offen sc1")
        g.lab("L_B_no5b")
        g.stamp(12)
        dump_stamps(g, 16, 216)
        g("s_endpgm")
        if numa:
            g.lab("L_B_refetch")
            if opt.get("dcount"):
                g(f"""
                s_load_dwordx2 s[12:13], s[0:1], 104
                s_mov_b32 s14, 256
                s_mov_b32 s15, 0x00020000
                v_mov_b32 v6, 1
                v_mov_b32 v7, 60
                s_waitcnt lgkmcnt(0)
                s_mov_b64 exec, 1
                buffer_atomic_add v6, v7, s[12:15], 0 offen sc1
                s_mov_b64 exec, -1
                """)
            g(f"s_xor_b32 s{sPhi}, s{sPhi}, 1")
            g("s_waitcnt vmcnt(0)")
            ckv_base()
            ckv_stream(0, 32)
            g("s_branch L_B_phok")
        g.lab("L_B_hslow")
        spin_guard(g, "L_B_hok")
        hget()
        g("s_branch L_B_hchk")
        if qd:
            g.lab("L_B_qagain")
            spin_guard(g, "L_B_qgood")
            qld()
            g("s_branch L_B_qchk")
            return
        g.lab("L_B_qslow")
        spin_guard(g, "L_B_qok")
        g(f"s_mov_b64 s[{sM1}:{sM1+1}], 0")
        for ks in range(16):
            g(f"v_cmp_eq_u32 vcc, s{sPOI}, v{vQ+4*ks}")
            g(f"s_or_b64 s[{sM1}:{sM1+1}], s[{sM1}:{sM1+1}], vcc")
        g("s_cbranch_scc0 L_B_qok")
        g("s_barrier")
        qdma()
        g("s_waitcnt vmcnt(0)")
        g("s_branch L_B_qbar")

if __name__ == "__main__":
    opt = eval("dict(%s)" % (sys.argv[2] if len(sys.argv) > 2 else ""))
    open(sys.argv[1], "w").write(gen(opt))
```

```python
import sys, os, math, struct
sys.path.insert(0, os.path.dirname(os.path.abspath(__file__)))
from hazard import pad

KNAME = "gated_mix__compressed_kv_cla__dense_activation_gelu__decode_kernel"

WS_BYTES = 256 << 20
EPOCH = 0x0
DP = 0x2000
D1 = 0x8000
D3 = 0x10000
DH = 0x18000
DE = 0x1C000
D2 = 0x20000
DL = 0x28000
DE2 = 0x40000
QB = 0x80000
HB = 0xA0000
H0 = 0xC0000
LOC = 0x100000
H3 = 0x200000
USTR = 16384 + 256
HH = 0x340000
OB = 0x480000
OSTR = 16384 + 256
STAMP = 0x1000000
POISON = 0xFFA5FFA5
K0, K1 = 0x9E3779B9, 0x7F4A7C15
SPIN = 1 << 20

A_WUV = 0
A_QL = 32768
A_ZERO = 33280
A_WT = 33536
A_CTXC = 33792
A_RED = 34816
A_WO = 35840
A_W1 = A_WO + 36864
A_QP = A_WO
B_QF = 0
B_PB = 16384
B_MX = 20480
B_HL = 21504
B_ZERO = 21760
B_PHI = 21888
B_LS = 22528
B_CKV = 23552
B_W2 = B_CKV
LDS_BYTES = 154624

def f16sw(i):
    return (((i & 7) ^ ((i >> 3) << 2)) << 1) | (i >> 3)

def fbits(x):
    return struct.unpack("<I", struct.pack("<f", x))[0]

class G:
    def __init__(self, opt):
        self.l = []
        self.opt = opt
        self.nst = 0
        self.inA = False
    def __call__(self, s):
        for x in s.strip("\n").split("\n"):
            x = x.strip()
            if x: self.l.append("    " + x)
    def lab(self, n): self.l.append(n + ":")
    def c(self, s): self.l.append("    ; " + s)
    def stamp(self, i):
        if self.opt.get("stamps") and not (self.opt.get("fst") and 5 <= i <= 12 and self.inA):
            self(f"s_memrealtime s[{70+2*i}:{71+2*i}]")
    def fstamp(self, i):
        if self.opt.get("stamps") and self.opt.get("fst"):
            self(f"s_memrealtime s[{70+2*i}:{71+2*i}]")

def v(a, n=1): return f"v{a}" if n == 1 else f"v[{a}:{a+n-1}]"
def A(a, n=1): return f"a{a}" if n == 1 else f"a[{a}:{a+n-1}]"
def S(a, n=1): return f"s{a}" if n == 1 else f"s[{a}:{a+n-1}]"

sW = 3
WS, X = "s[4:7]", "s[8:11]"
sT = 40
sXCD, sI = 42, 43
sA, sH, sJ = 44, 45, 46
sHG, sB, sMSG, sU2 = 44, 45, 46, 47
sO, sO2, sO3, sCNT = 48, 49, 50, 51
sM1, sM2, sM3, sM4 = 52, 54, 56, 58
sPR = 60
sG0, sG1 = 61, 62
sTMP = 64
sPC = 66
sPOI = 68
sC = 69

def srd(g, base, slot, nbytes):
    g(f"s_load_dwordx2 s[{base}:{base+1}], s[0:1], {slot*8}")
    g(f"s_mov_b32 s{base+2}, {nbytes}")
    g(f"s_mov_b32 s{base+3}, 0x00020000")

def dump_stamps(g, n, tmpv):
    if not g.opt.get("stamps") or g.opt.get("probe") is not None: return
    g("s_waitcnt lgkmcnt(0)")
    g("s_mov_b64 exec, 1")
    g(f"s_lshl_b32 s{sO}, s2, 2")
    g(f"s_add_u32 s{sO}, s{sO}, s{sW}")
    g(f"s_lshl_b32 s{sO}, s{sO}, 6")
    g(f"s_add_u32 s{sO}, s{sO}, {STAMP}")
    g(f"v_mov_b32 v{tmpv+4}, 0")
    for q in range(0, 16, 4):
        for k in range(4):
            g(f"v_mov_b32 v{tmpv+k}, s{70+2*(q+k)}")
        g(f"buffer_store_dwordx4 {v(tmpv,4)}, v{tmpv+4}, {WS}, s{sO} offen offset:{q*4}")
        g("s_nop 1")
    g("s_waitcnt vmcnt(0)")

def dual_next(g, regs):
    if not g.opt.get("dual", 1): return
    g(f"s_and_b32 s{sTMP}, s{sCNT}, 14")
    g(f"s_cmp_eq_u32 s{sTMP}, 14")
    g(f"s_cselect_b32 s{sTMP}, {LOC}, 0")
    for r in regs:
        g(f"s_xor_b32 s{r}, s{r}, s{sTMP}")

def spin_guard(g, out):
    g(f"s_add_u32 s{sCNT}, s{sCNT}, 1")
    g(f"s_cmp_gt_u32 s{sCNT}, {g.opt.get('spin', SPIN)}")
    g(f"s_cbranch_scc1 {out}")

def selectors(g, vSel, vL, t0, t1, t2):
    g(f"v_and_b32 v{t0}, 1, v{vL}")
    g(f"v_cmp_eq_u32 vcc, 1, v{t0}")
    g(f"v_mov_b32 v{t1}, 0x0c0c0100")
    g(f"v_mov_b32 v{t2}, 0x01000c0c")
    g(f"v_cndmask_b32 v{vSel+3}, v{t1}, v{t2}, vcc")
    g(f"v_mov_b32 v{t1}, 0x0c0c0302")
    g(f"v_mov_b32 v{t2}, 0x03020c0c")
    g(f"v_cndmask_b32 v{vSel+7}, v{t1}, v{t2}, vcc")
    g(f"v_bfe_u32 v{t0}, v{vL}, 1, 2")
    g(f"v_mov_b32 v{t1}, 0x0c0c0c0c")
    for d in range(4):
        g(f"v_cmp_eq_u32 vcc, {d}, v{t0}")
        g(f"v_cndmask_b32 v{vSel+d}, v{t1}, v{vSel+3}, vcc")
        g(f"v_cndmask_b32 v{vSel+4+d}, v{t1}, v{vSel+7}, vcc")

def unit_pattern(g, dst, vL, i_expr_sgpr, i_const, pitch, t0, t1):
    if i_expr_sgpr is not None:
        g(f"v_lshl_add_u32 v{t0}, s{i_expr_sgpr}, 6, v{vL}")
    else:
        g(f"v_add_u32 v{t0}, {64*i_const}, v{vL}")
    g(f"v_mul_u32_u24 v{t1}, 911, v{t0}")
    g(f"v_lshrrev_b32 v{t1}, 16, v{t1}")
    g(f"v_and_b32 v{dst}, 6, v{t1}")
    g(f"v_xor_b32 v{dst}, v{dst}, v{t0}")
    g(f"v_lshlrev_b32 v{dst}, 4, v{dst}")
    if pitch != 1152:
        g(f"v_mul_u32_u24 v{t1}, {pitch-1152}, v{t1}")
        g(f"v_add_u32 v{dst}, v{dst}, v{t1}")
assert all((911 * u) >> 16 == u // 72 for u in range(640))

def h3_addr(g, vH3, vH3x, vL, vN, vG, t0):
    g(f"v_lshrrev_b32 v{t0}, 3, v{vL}")
    g(f"v_mul_u32_u24 v{vH3}, {USTR}, v{t0}")
    g(f"v_and_b32 v{t0}, 7, v{vL}")
    g(f"v_lshl_add_u32 v{vH3}, v{t0}, 4, v{vH3}")
    g(f"v_lshrrev_b32 v{t0}, 5, v{vL}")
    g(f"v_mul_u32_u24 v{vH3x}, {USTR}, v{t0}")
    g(f"v_and_b32 v{t0}, 31, v{vL}")
    g(f"v_lshl_add_u32 v{vH3x}, v{t0}, 2, v{vH3x}")

def h3_soffs(g, s_main, s_left):
    g(f"s_lshl_b32 s{s_left}, s{sPR}, 7")
    g(f"s_add_u32 s{s_left}, s{s_left}, {H3}")
    g(f"s_mul_i32 s{s_main}, s{sW}, {8*USTR}")
    g(f"s_add_u32 s{s_main}, s{s_main}, s{s_left}")
    g(f"s_mul_i32 s{sTMP}, s{sW}, {2*USTR}")
    g(f"s_add_u32 s{s_left}, s{s_left}, s{sTMP}")
    g(f"s_add_u32 s{s_left}, s{s_left}, {32*USTR}")

def tr_pair_bases(g, vB0, vB1, vK0, vK1, vL, base, t0, t1, t2):
    g(f"v_lshrrev_b32 v{t0}, 2, v{vL}")
    g(f"v_bfe_u32 v{t1}, v{vL}, 1, 1")
    g(f"v_lshl_add_u32 v{t1}, s{sW}, 2, v{t1}")
    g(f"v_and_b32 v{t2}, 6, v{t0}")
    g(f"v_xor_b32 v{t2}, v{t2}, v{t1}")
    g(f"v_lshlrev_b32 v{t2}, 4, v{t2}")
    g(f"v_mul_u32_u24 v{vB0}, 1152, v{t0}")
    g(f"v_add_u32 v{vB0}, v{vB0}, v{t2}")
    g(f"v_and_b32 v{t2}, 1, v{vL}")
    g(f"v_lshlrev_b32 v{t2}, 3, v{t2}")
    g(f"v_add_u32 v{vB0}, v{vB0}, v{t2}")
    g(f"v_xor_b32 v{vB1}, 32, v{vB0}")
    if base:
        g(f"v_add_u32 v{vB0}, {base}, v{vB0}")
        g(f"v_add_u32 v{vB1}, {base}, v{vB1}")
    if vK0 is not None:
        g(f"v_and_b32 v{t0}, 3, v{t0}")
        g(f"v_and_b32 v{vK0}, 2, v{t0}")
        g(f"v_xor_b32 v{vK0}, v{vK0}, v{t1}")
        g(f"v_lshlrev_b32 v{vK0}, 4, v{vK0}")
        g(f"v_mul_u32_u24 v{t0}, 1152, v{t0}")
        g(f"v_add3_u32 v{vK0}, v{vK0}, v{t0}, v{t2}")
        g(f"v_xor_b32 v{vK1}, 32, v{vK0}")
        g(f"v_add_u32 v{vK0}, {base + 32*1152}, v{vK0}")
        g(f"v_add_u32 v{vK1}, {base + 32*1152}, v{vK1}")

MF = "v_mfma_f32_16x16x32_bf16"
MF16 = "v_mfma_f32_16x16x16_bf16"

def role_is_A(wg, opt):
    if opt.get("split"):
        import numpy as np
        return np.isin(wg & 7, list(opt["split"]))
    return wg < 128

def gen(opt):
    g = G(opt)
    NT = opt.get("nt", "")
    PFL = opt.get("pf_lines", 4)
    CODE_BYTES = 32 * 128 * PFL
    vL, vN, vG = 1, 2, 3
    g.stamp(0)
    if opt.get("clk"): g("s_memtime s[98:99]")
    g(f"s_getpc_b64 s[{sPC}:{sPC+1}]")
    g("s_cmp_ge_u32 s2, 256")
    g("s_cbranch_scc1 L_end")
    g(f"""
    s_load_dwordx2 s[4:5], s[0:1], 112
    s_load_dwordx2 s[8:9], s[0:1], 0
    s_load_dwordx2 s[28:29], s[0:1], 8
    s_load_dwordx2 s[12:13], s[0:1], 16
    s_load_dwordx2 s[16:17], s[0:1], 24
    v_lshrrev_b32 v4, 6, v0
    v_and_b32 v{vL}, 63, v0
    s_and_b32 s{sXCD}, s2, 7
    v_readfirstlane_b32 s{sW}, v4
    s_bfe_u32 s{sI}, s2, 0x40003
    v_and_b32 v{vN}, 15, v0
    v_bfe_u32 v{vG}, v0, 4, 2
    s_mov_b32 s6, {WS_BYTES - opt.get('ws_base', 0)}
    s_mov_b32 s7, 0x00020000
    """)
    if opt.get("resid") is not None:
        g(f"""
        s_load_dwordx2 s[32:33], s[0:1], 104
        s_load_dwordx2 s[20:21], s[0:1], {8*opt["resid"]}
        s_mov_b32 s34, 256
        s_mov_b32 s35, 0x00020000
        s_mov_b32 s22, {4<<20}
        s_mov_b32 s23, 0x00020000
        s_mul_i32 s{sO}, s2, 16128
        v_mov_b32 v7, 0
        s_waitcnt lgkmcnt(0)
        s_cmp_lg_u32 s{sW}, 0
        s_cbranch_scc1 L_nores
        s_mov_b64 exec, 1
        buffer_load_dword v6, v7, s[20:23], s{sO} offen offset:2048
        s_waitcnt vmcnt(0)
        s_memtime s[24:25]
        s_waitcnt lgkmcnt(0)
        buffer_load_dword v6, v7, s[20:23], s{sO} offen
        s_waitcnt vmcnt(0)
        s_memtime s[26:27]
        s_waitcnt lgkmcnt(0)
        s_sub_u32 s26, s26, s24
        s_mul_i32 s26, s26, 468
        s_lshr_b32 s26, s26, 16
        s_min_u32 s26, s26, 15
        s_lshl_b32 s26, s26, 2
        v_mov_b32 v6, 1
        buffer_atomic_add v6, v7, s[32:35], s26 offen sc1
        s_waitcnt vmcnt(0)
        s_mov_b64 exec, -1
        """)
        g.lab("L_nores")
        g("s_barrier")
    if opt.get("xprobe") is not None:
        g(f"""
        s_load_dwordx2 s[32:33], s[0:1], 104
        s_mov_b32 s34, 256
        s_mov_b32 s35, 0x00020000
        s_waitcnt lgkmcnt(0)
        v_mov_b32 v6, s70
        s_lshl_b32 s{sO}, s{sXCD}, 2
        v_mov_b32 v7, s{sO}
        s_mov_b64 exec, 1
        buffer_atomic_umax v6, v7, s[32:35], 0 offen sc1
        s_mov_b64 exec, -1
        """)
    if opt.get("split"):
        aset = list(opt["split"]); bset = [x for x in range(8) if x not in aset]
        tab = 0
        for x in range(8):
            tab |= ((aset.index(x)) if x in aset else (8 | bset.index(x))) << (4 * x)
        g(f"""
        s_lshl_b32 s{sXCD}, s{sXCD}, 2
        s_lshr_b32 s{sO}, {hex(tab)}, s{sXCD}
        s_and_b32 s{sXCD}, s{sO}, 3
        s_lshr_b32 s{sO2}, s2, 7
        s_lshl_b32 s{sO2}, s{sO2}, 2
        s_add_u32 s{sXCD}, s{sXCD}, s{sO2}
        s_bitcmp1_b32 s{sO}, 3
        s_cbranch_scc1 L_B
        """)
    else:
        g("s_cmp_ge_u32 s2, 128")
        g("s_cbranch_scc1 L_B")
    a = RoleA(g, NT, vL, vN, vG)
    b = RoleB(g, NT, vL, vN, vG)
    def prefetch(nw, idx_sgpr_expr, tag):
        g(idx_sgpr_expr)
        g(f"s_mul_i32 s{sTMP}, s{sTMP}, {nw*128}")
        g(f"v_lshl_add_u32 v5, v{vL}, 7, s{sTMP}")
        g(f"s_cmp_lg_u32 s{sW}, 3")
        g(f"s_cbranch_scc1 L_nopf{tag}")
        g(f"s_mov_b64 exec, {(1 << nw) - 1}")
        g(f"global_load_dword v{63 if tag == 'B' else 254}, v5, s[{sPC}:{sPC+1}]")
        g("s_mov_b64 exec, -1")
        g.lab(f"L_nopf{tag}")
    if opt.get("split") and opt.get("a_pf_first", 1): prefetch(PFL, f"s_lshr_b32 s{sTMP}, s2, 3", "A")
    a.issue()
    if opt.get("split") and not opt.get("a_pf_first", 1): prefetch(PFL, f"s_lshr_b32 s{sTMP}, s2, 3", "A")
    g("s_branch L_A_rest")
    g.lab("L_B")
    if opt.get("tlb"):
        maxp = [0, 3, 2, 1, 1, 2, 0, 2, 0, 2, 0, 0, 0, 0, 3, 3]
        tab = sum(m << (2 * k) for k, m in enumerate(maxp))
        g(f"""
        s_min_u32 s{sTMP}, s{sI}, 14
        s_lshl_b32 s{sTMP}, s{sTMP}, 3
        s_load_dwordx2 s[90:91], s[0:1], s{sTMP}
        s_lshl_b32 s{sTMP}, s{sI}, 1
        s_lshr_b32 s{sTMP}, {hex(tab)}, s{sTMP}
        s_and_b32 s{sTMP}, s{sTMP}, 3
        s_min_u32 s{sTMP}, s{sTMP}, s{sW}
        s_lshl_b32 s{sTMP}, s{sTMP}, 21
        s_waitcnt lgkmcnt(0)
        s_load_dword s89, s[90:91], s{sTMP}
        """)
    if opt.get("p1a_on") == "B" or opt.get("numa"): pass
    elif opt.get("split"): prefetch(PFL, f"s_lshr_b32 s{sTMP}, s2, 3", "B")
    else: prefetch(2 * PFL, f"s_mov_b32 s{sTMP}, s{sI}", "B")
    b.issue()
    if opt.get("p1a_on") == "B": prefetch(PFL, f"s_lshr_b32 s{sTMP}, s2, 3", "B")
    main = g.l
    g.l = []
    b.rest()
    k = g.l.index(";;SPLIT")
    bhead, btail = g.l[:k], g.l[k+1:]
    g.l = main
    g.lab("L_B_head")
    if opt.get("b_head", 1):
        g.l += bhead
    g("s_branch L_B_rest")
    g.lab("L_A_rest")
    g.inA = True
    a.rest()
    g.inA = False
    g.lab("L_B_rest")
    if not opt.get("b_head", 1):
        g.l += bhead
    g.l += btail
    g.lab("L_end")
    lines, added = pad(g.l)
    body = "\n".join(lines)
    hdr = open(os.path.join(os.path.dirname(os.path.abspath(__file__)), "header.txt")).read()
    return f"""{hdr}; @launch grid=(256,1,1) block=(256,1,1) lds={LDS_BYTES}
.amdgcn_target "amdgcn-amd-amdhsa--gfx950"
.text
.globl {KNAME}
.p2align 8
.type {KNAME},@function
{KNAME}:
{body}
    s_endpgm
L_code_end:
.fill ({CODE_BYTES} + 256 - (L_code_end - {KNAME})) / 4, 4, 0xbf800000
.section .rodata,"a"
.p2align 6
.amdhsa_kernel {KNAME}
  .amdhsa_next_free_vgpr 512
  .amdhsa_next_free_sgpr 102
  .amdhsa_accum_offset 256
  .amdhsa_group_segment_fixed_size 0
  .amdhsa_kernarg_size 120
  .amdhsa_user_sgpr_count 2
  .amdhsa_user_sgpr_kernarg_segment_ptr 1
  .amdhsa_system_sgpr_workgroup_id_x 1
.end_amdhsa_kernel
"""

def srd_tail(g, base, nbytes):
    g(f"s_mov_b32 s{base+2}, {nbytes}")
    g(f"s_mov_b32 s{base+3}, 0x00020000")

def load_tag(g):
    wb = g.opt.get("ws_base", 0)
    if wb:
        g(f"s_add_u32 s4, s4, {wb}")
        g("s_addc_u32 s5, s5, 0")
    g(f"s_load_dwordx2 s[{sT}:{sT+1}], s[4:5], {EPOCH}")

def finish_tag(g):
    g("s_waitcnt lgkmcnt(0)")
    g(f"s_add_u32 s{sT}, s{sT}, {K0}")
    g(f"s_add_u32 s{sT+1}, s{sT+1}, {K1}")

def bell(g, vdata, vzero, s_index, base, wave, tag):
    g(f"s_cmp_lg_u32 s{sW}, {wave}")
    g(f"s_cbranch_scc1 L_nobell_{tag}")
    g(f"s_lshl_b32 s{sTMP}, s{s_index}, 7")
    g(f"s_add_u32 s{sTMP}, s{sTMP}, {base}")
    g("s_mov_b64 exec, 1")
    g(f"buffer_store_dwordx2 {v(vdata,2)}, v{vzero}, {WS}, s{sTMP} offen sc1")
    g("s_mov_b64 exec, -1")
    g.lab(f"L_nobell_{tag}")

def unit_load(g, SRD, vP, ldsbase, s_unit_base, pitch, tag, NT, rows36=True, vdst=None, thr=None, w0extra=True):
    if tag[:2] in g.opt.get("skip", ""): return
    g(f"s_mul_i32 s{sO}, s{sW}, {8*pitch}")
    g(f"s_add_u32 s{sO}, s{sO}, s{s_unit_base}")
    if vdst is None: g(f"s_mul_i32 s{sTMP}, s{sW}, 9216")
    for i in range(9):
        if thr: g(f"s_waitcnt vmcnt({thr-1})")
        if vdst is None:
            g(f"s_add_u32 m0, s{sTMP}, {ldsbase + i*1024}")
            g(f"buffer_load_dwordx4 v{vP+i}, {SRD}, s{sO} offen {NT} lds")
        else:
            g(f"buffer_load_dwordx4 {v(vdst+4*i,4)}, v{vP+i}, {SRD}, s{sO} offen {NT}")
    if not rows36: return
    g(f"s_add_u32 s{sO}, s{s_unit_base}, {32*pitch}")
    if vdst is None:
        g(f"s_lshl_b32 s{sTMP}, s{sW}, 10")
        g(f"s_add_u32 m0, s{sTMP}, {ldsbase + 36864}")
        g(f"buffer_load_dwordx4 v{vP+9}, {SRD}, s{sO} offen {NT} lds")
    else:
        g(f"buffer_load_dwordx4 {v(vdst+36,4)}, v{vP+9}, {SRD}, s{sO} offen {NT}")
    if w0extra:
        g(f"s_cmp_lg_u32 s{sW}, 0")
        g(f"s_cbranch_scc1 L_not{tag}")
    g("s_mov_b32 exec_hi, 0")
    if vdst is None:
        g(f"s_mov_b32 m0, {ldsbase + 36864 + 4096}")
        g(f"buffer_load_dwordx4 v{vP+4}, {SRD}, s{sO} offen {NT} lds")
    else:
        g(f"buffer_load_dwordx4 {v(vdst+40,4)}, v{vP+4}, {SRD}, s{sO} offen {NT}")
    g("s_mov_b64 exec, -1")
    if w0extra: g.lab(f"L_not{tag}")

class RoleA:
    def __init__(self, g, NT, vL, vN, vG):
        self.g, self.NT, self.vL, self.vN, self.vG = g, NT, vL, vN, vG
    vX = 20
    vA_wq, vA_uk = 108, 109
    aWQ, aUK = 0, 36

    def issue(self):
        g, NT, vL, vN, vG = self.g, self.NT, self.vL, self.vN, self.vG
        WQ, WUK = "s[12:15]", "s[16:19]"
        t0, t1 = 4, 5
        vX, vA_wq, vA_uk, aWQ, aUK = self.vX, self.vA_wq, self.vA_uk, self.aWQ, self.aUK
        if g.opt.get("p1a_on") == "B":
            srd_tail(g, 16, 512 * 8192)
            g(f"""
            s_lshr_b32 s{sH}, s{sI}, 2
            s_lshl_b32 s{sH}, s{sH}, 3
            s_add_u32 s{sH}, s{sH}, s{sXCD}
            s_and_b32 s{sJ}, s{sI}, 3
            s_lshl_b32 s{sC}, s{sH}, 8
            v_bfe_u32 v{t0}, v{vL}, 2, 2
            v_lshlrev_b32 v{vA_uk}, 16, v{t0}
            v_lshl_add_u32 v{vA_uk}, v{vG}, 6, v{vA_uk}
            v_and_b32 v{t1}, 3, v{vL}
            v_lshl_add_u32 v{vA_uk}, v{t1}, 4, v{vA_uk}
            s_lshl_b32 s{sO2}, s{sJ}, 2
            s_add_u32 s{sO2}, s{sO2}, s{sW}
            s_lshl_b32 s{sO2}, s{sO2}, 18
            s_add_u32 s{sO2}, s{sO2}, s{sC}
            s_waitcnt lgkmcnt(0)
            """)
            g.fstamp(5)
            self.uk(range(8))
            load_tag(g)
            srd_tail(g, 8, 2304)
            return
        srd_tail(g, 12, 576 * 8192)
        srd_tail(g, 8, 2304)
        g(f"""
        s_lshr_b32 s{sH}, s{sI}, 2
        s_lshl_b32 s{sH}, s{sH}, 3
        s_add_u32 s{sH}, s{sH}, s{sXCD}
        s_and_b32 s{sJ}, s{sI}, 3
        v_mul_u32_u24 v{vA_wq}, {36*8192}, v{vG}
        v_lshl_add_u32 v{vA_wq}, v{vN}, 4, v{vA_wq}
        s_lshl_b32 s{sO2}, s{sJ}, 4
        s_add_u32 s{sO2}, s{sO2}, s{sW}
        s_mul_i32 s{sO2}, s{sO2}, 9
        s_lshl_b32 s{sO3}, s{sO2}, 13
        s_lshl_b32 s{sC}, s{sH}, 8
        s_add_u32 s{sO3}, s{sO3}, s{sC}
        v_bfe_u32 v{t0}, v{vL}, 3, 1
        v_mul_u32_u24 v{t0}, 1152, v{t0}
        v_mad_u32_u24 v{t0}, v{vG}, 64, v{t0}
        v_lshl_add_u32 v{t0}, v{vG}, 3, v{t0}
        s_lshr_b32 s{sO2}, s{sO2}, 1
        s_lshl_b32 s{sO2}, s{sO2}, 2
        s_waitcnt lgkmcnt(0)
        """)
        g.fstamp(5)
        g(f"""
        buffer_load_dwordx4 {v(vX,4)}, v{t0}, {X}, s{sO2} offen
        buffer_load_dword v{vX+4}, v{t0}, {X}, s{sO2} offen offset:16
        """)
        for i in range(9):
            g(f"buffer_load_dwordx4 {A(aWQ+4*i,4)}, v{vA_wq}, {WQ}, s{sO3} offen {NT}")
            if i != 8: g(f"s_addk_i32 s{sO3}, 0x2000")
        load_tag(g)
        srd_tail(g, 16, 512 * 8192)
        g(f"""
        v_bfe_u32 v{t0}, v{vL}, 2, 2
        v_lshlrev_b32 v{vA_uk}, 16, v{t0}
        v_lshl_add_u32 v{vA_uk}, v{vG}, 6, v{vA_uk}
        v_and_b32 v{t1}, 3, v{vL}
        v_lshl_add_u32 v{vA_uk}, v{t1}, 4, v{vA_uk}
        s_lshl_b32 s{sO2}, s{sJ}, 2
        s_add_u32 s{sO2}, s{sO2}, s{sW}
        s_lshl_b32 s{sO2}, s{sO2}, 18
        s_add_u32 s{sO2}, s{sO2}, s{sC}
        """)
        self.uk_split = g.opt.get("uk_early", 2)
        self.uk(range(self.uk_split))

    def uk(self, rows):
        g = self.g
        for r in rows:
            u = 2 * (r & 3) + (r >> 2)
            g(f"buffer_load_dwordx4 {A(self.aUK+4*u,4)}, v{self.vA_uk}, s[16:19], s{sO2} offen {self.NT}")
            g(f"s_addk_i32 s{sO2}, 0x2000")

    def rest(self):
        g, NT, vL, vN, vG = self.g, self.NT, self.vL, self.vN, self.vG
        opt = g.opt
        WUV, WO, W1, B2, GATE, OUT = "s[20:23]", "s[24:27]", "s[12:15]", "s[28:31]", "s[32:35]", "s[36:39]"
        t0, t1, t2, t3 = 4, 5, 6, 7
        vPOI = 8
        vSel = 12
        vX = self.vX
        vF = 160
        vQ = 200
        vR = 56
        vQlo, vQhi = 80, 84
        vAcc = 88
        vGr = 104
        vA_h1, vA_l16 = 110, 47
        vA_qlo, vA_qhi = 112, 113
        vTag = 114
        vQw = 46
        aWQ, aUK = self.aWQ, self.aUK
        sQ = 63
        g.stamp(1)
        selectors(g, vSel, vL, t0, t1, t2)
        g(f"""
        s_lshl_b32 s{sA}, s{sH}, 2
        s_add_u32 s{sA}, s{sA}, s{sJ}
        s_and_b32 s{sO}, s{sW}, 1
        s_lshl_b32 s{sO}, s{sO}, 4
        v_lshlrev_b32 v{vA_l16}, 4, v{vL}
        s_cmp_lg_u32 s{sW}, {0 if opt.get("p1a_on") == "B" else 1}
        s_cbranch_scc1 L_A_e2
        """)
        pB = opt.get("p1a_on") == "B"
        for k in range(4): g(f"v_mov_b32 v{vPOI+k}, {hex(POISON)}")
        g(f"""
        v_lshlrev_b32 v{t0}, 15, v{vG}
        v_lshl_add_u32 v{t0}, v{vN}, 4, v{t0}
        s_lshl_b32 s{sTMP}, s{sA}, 8
        s_add_u32 s{sTMP}, s{sTMP}, {QB}
        s_mov_b32 exec_hi, 0
        buffer_store_dwordx4 {v(vPOI,4)}, v{t0}, {WS}, s{sTMP} offen sc1
        s_mov_b64 exec, -1
        """)
        g.lab("L_A_e2")
        if opt.get("split"):
            g(f"""
            s_cmp_lt_u32 s{sW}, {3 if pB else 2}
            s_cbranch_scc1 L_A_e3
            s_lshl_b32 s{sTMP}, s{sA}, 11
            s_add_u32 s{sTMP}, s{sTMP}, {H0+LOC}
            s_lshl_b32 s{sTMP+1}, s{sA}, 10
            s_add_u32 s{sTMP+1}, s{sTMP+1}, {HB+LOC}
            s_cmp_eq_u32 s{sW}, 2
            s_cselect_b32 s{sTMP}, s{sTMP}, s{sTMP+1}
            v_lshlrev_b32 v{t0}, 7, v{vL}
            s_mov_b64 exec, 0xffff
            buffer_load_dword v255, v{t0}, {WS}, s{sTMP} offen
            s_mov_b64 exec, -1
            """)
            g.lab("L_A_e3")
        if pB:
            finish_tag(g)
            sPk = 54
            g(f"""
            s_lshl_b32 s{sO}, s{sH}, 12
            s_add_u32 s{sO}, s{sO}, {H0}
            s_add_u32 s{sC}, s4, s{sO}
            s_addc_u32 s{sO3}, s5, 0
            """)
            def h0_wt(): pass
        else:
            g.fstamp(6)
            g(f"s_waitcnt vmcnt({9+self.uk_split})")
            g.fstamp(7)
            for k in range(5):
                g(f"v_alignbit_b32 v{vX+k}, v{vX+k+1}, v{vX+k}, s{sO}")
            for i in range(9):
                for d in range(4):
                    g(f"v_perm_b32 v{vF+4*i+d}, v{vX+(i>>1)}, v{vX+(i>>1)}, v{vSel+4*(i&1)+d}")
            g.fstamp(8)
            ukp = opt.get("uk_pos", 0)
            for i in range(9):
                if i == ukp: self.uk(range(self.uk_split, 8))
                g(f"s_waitcnt vmcnt({8-i+(8 if i >= ukp else self.uk_split)})")
                g(f"{MF} {v(vQ+2,4)}, {v(vF+4*i,4)}, {A(aWQ+4*i,4)}, {'0' if i == 0 else v(vQ+2,4)}")
            g.fstamp(10)
            g(f"s_cmp_eq_u32 s{sW}, 0")
            g("s_cbranch_scc1 L_A_w0a")
            g(f"v_lshl_add_u32 v{t0}, s{sW}, 10, v{vA_l16}")
            g(f"ds_write_b128 v{t0}, {v(vQ+2,4)} offset:{A_QP-1024}")
            g(f"s_cmp_lg_u32 s{sW}, 1")
            g("s_cbranch_scc1 L_A_nw1")
            g(f"s_waitcnt vmcnt({8-self.uk_split})")
            g.lab("L_A_nw1")
            g("s_waitcnt lgkmcnt(0)")
            g("s_barrier")
            g(f"s_add_u32 s{sT}, s{sT}, {K0}")
            g(f"s_add_u32 s{sT+1}, s{sT+1}, {K1}")
            g("s_branch L_A_setup")
            g.lab("L_A_w0a")
            finish_tag(g)
            sib = [0, sO, sO3, sC]
            for k in range(1, 4):
                g(f"s_xor_b32 s{sTMP}, s{sA}, {k}")
                g(f"s_lshl_b32 s{sTMP}, s{sTMP}, 11")
                g(f"s_add_u32 s{sib[k]}, s{sTMP}, {H0+LOC}")
            g(f"""
            v_mov_b32 v{vQ}, s{sT}
            v_mov_b32 v{vQ+1}, s{sT+1}
            v_mov_b32 v{vQ+6}, s{sT}
            v_mov_b32 v{vQ+7}, s{sT+1}
            s_lshl_b32 s{sTMP+1}, s{sA}, 11
            s_add_u32 s{sTMP+1}, s{sTMP+1}, {H0+LOC}
            s_barrier
            """)
            for k in range(3):
                g(f"ds_read_b128 {v(vR+4*k,4)}, v{vA_l16} offset:{A_QP+k*1024}")
            g("s_waitcnt lgkmcnt(1)")
            g(f"v_pk_add_f32 {v(vQ+2,2)}, {v(vQ+2,2)}, {v(vR,2)}")
            g(f"v_pk_add_f32 {v(vQ+4,2)}, {v(vQ+4,2)}, {v(vR+2,2)}")
            g("s_waitcnt lgkmcnt(0)")
            g(f"v_pk_add_f32 {v(vR+4,2)}, {v(vR+4,2)}, {v(vR+8,2)}")
            g(f"v_pk_add_f32 {v(vR+6,2)}, {v(vR+6,2)}, {v(vR+10,2)}")
            g(f"v_pk_add_f32 {v(vQ+2,2)}, {v(vQ+2,2)}, {v(vR+4,2)}")
            g(f"v_pk_add_f32 {v(vQ+4,2)}, {v(vQ+4,2)}, {v(vR+6,2)}")
            g(f"buffer_store_dwordx4 {v(vQ,4)}, v{vA_l16}, {WS}, s{sTMP+1} offen")
            g(f"buffer_store_dwordx4 {v(vQ+4,4)}, v{vA_l16}, {WS}, s{sTMP+1} offen offset:1024")
            def h0_wt():
                g(f"s_lshl_b32 s{sTMP+1}, s{sA}, 11")
                g(f"s_add_u32 s{sTMP+1}, s{sTMP+1}, {H0}")
                g(f"buffer_store_dwordx4 {v(vQ,4)}, v{vA_l16}, {WS}, s{sTMP+1} offen sc1")
                g(f"buffer_store_dwordx4 {v(vQ+4,4)}, v{vA_l16}, {WS}, s{sTMP+1} offen offset:1024 sc1")
            g.stamp(2)
        g.lab("L_A_setup")
        srd(g, 20, 4, 512 * 8192)
        srd(g, 24, 5, 4096 * 1152)
        srd(g, 32, 11, 1152)
        srd(g, 36, 12, 2304)
        srd(g, 12, 7, 576 * 9216)
        vBell = 111
        g(f"""
        v_bfe_u32 v{t0}, v{vL}, 2, 2
        v_lshlrev_b32 v{vA_h1}, 15, v{vG}
        v_lshl_add_u32 v{vA_h1}, v{t0}, 4, v{vA_h1}
        s_lshl_b32 s{sQ}, s{sA}, 2
        s_add_u32 s{sQ}, s{sQ}, s{sW}
        s_lshl_b32 s{sQ}, s{sQ}, 6
        s_add_u32 s{sQ}, s{sQ}, {QB}
        v_bfe_u32 v{t0}, v{vL}, 2, 1
        v_lshlrev_b32 v{t0}, 8, v{t0}
        v_lshl_add_u32 v{t0}, v{vG}, 6, v{t0}
        v_and_b32 v{t1}, 3, v{vL}
        v_lshl_add_u32 v{t0}, v{t1}, 4, v{t0}
        v_add_u32 v{t0}, {A_QL}, v{t0}
        v_mov_b32 v{t1}, {A_ZERO}
        v_cmp_gt_u32 vcc, 8, v{vN}
        v_cndmask_b32 v{vA_qlo}, v{t1}, v{t0}, vcc
        v_cndmask_b32 v{vA_qhi}, v{t0}, v{t1}, vcc
        v_and_b32 v{t0}, 1, v{vL}
        v_cmp_eq_u32 s[{sM1}:{sM1+1}], 1, v{t0}
        v_and_b32 v{t0}, 2, v{vL}
        v_cmp_eq_u32 s[{sM2}:{sM2+1}], 2, v{t0}
        v_mov_b32 v{vTag}, s{sT}
        v_mov_b32 v{vTag+1}, s{sT+1}
        v_lshlrev_b32 v{vBell}, 12, v{vL}
        s_lshl_b32 s{sO2}, s{sH}, 5
        s_add_u32 s{sO2}, s{sO2}, s{sJ}
        s_lshl_b32 s{sO2}, s{sO2}, 2
        s_add_u32 s{sO2}, s{sO2}, {D1}
        """)
        if opt.get("q_direct", 0):
            g(f"""
            s_cmp_lg_u32 s{sW}, 2
            s_cbranch_scc1 L_A_nordy
            s_mov_b64 exec, 0xff
            buffer_store_dword v{vTag}, v{vBell}, {WS}, s{sO2} offen sc1
            s_mov_b64 exec, -1
            """)
            g.lab("L_A_nordy")
            g(f"""
            v_bfe_u32 v{t0}, v{vL}, 2, 2
            v_lshlrev_b32 v{vA_h1}, 8, v{vG}
            v_lshl_add_u32 v{vA_h1}, v{t0}, 4, v{vA_h1}
            v_lshl_add_u32 v{vA_h1}, s{sW}, 6, v{vA_h1}
            v_lshlrev_b32 v{vBell}, 15, v{vG}
            v_lshl_add_u32 v{vBell}, v{vN}, 4, v{vBell}
            s_lshl_b32 s{sQ}, s{sA}, 8
            s_add_u32 s{sQ}, s{sQ}, {QB}
            """)
        g(f"""
        v_mov_b32 v{t2}, 0
        v_mov_b32 v{t3}, 0
        ds_write_b64 v{t1}, {v(t2,2)}
        ds_write_b64 v{t1}, {v(t2,2)} offset:8
        v_lshrrev_b32 v{vQw}, 1, v{vG}
        v_lshlrev_b32 v{vQw}, 8, v{vQw}
        v_lshl_add_u32 v{vQw}, v{vN}, 4, v{vQw}
        v_and_b32 v{t1}, 1, v{vG}
        v_lshl_add_u32 v{vQw}, v{t1}, 3, v{vQw}
        """)
        def h0loads():
            if pB:
                for k in range(4):
                    g(f"buffer_load_dwordx4 {v(vR+4*k,4)}, v{vA_l16}, {WS}, s{sO} offen offset:{k*1024} sc1")
                return
            for k in range(1, 4):
                g(f"buffer_load_dwordx4 {v(vR+8*(k-1),4)}, v{vA_l16}, {WS}, s{sib[k]} offen sc1")
                g(f"buffer_load_dwordx4 {v(vR+8*(k-1)+4,4)}, v{vA_l16}, {WS}, s{sib[k]} offen offset:1024 sc1")
        sRho, sBlk, sR0 = 60, 43, 62
        vXr, vS1, vXA, vW1a, vHs, vXa = 116, 140, 152, 144, 145, 146
        aW1 = 80
        if opt.get('w1_on', 'A') == 'A':
            g(f"""
            s_lshl_b32 s{sBlk}, s{sA}, 2
            s_add_u32 s{sBlk}, s{sBlk}, s{sW}
            s_mul_i32 s{sRho}, s{sBlk}, 1821
            s_lshr_b32 s{sRho}, s{sRho}, 16
            s_mul_i32 s{sTMP}, s{sRho}, 36
            s_sub_u32 s{sBlk}, s{sBlk}, s{sTMP}
            s_min_u32 s{sTMP}, s{sRho}, 4
            s_mul_i32 s{sR0}, s{sRho}, 10
            s_add_u32 s{sR0}, s{sR0}, s{sTMP}
            s_lshl_b32 s{sR0}, s{sR0}, 2
            v_bfe_u32 v{t0}, v{vL}, 3, 1
            v_mul_u32_u24 v{vXa}, 1152, v{t0}
            v_mul_u32_u24 v{vW1a}, 9216, v{vG}
            v_lshl_add_u32 v{vW1a}, v{vN}, 4, v{vW1a}
            """)
            assert all((i * 1821) >> 16 == i // 36 for i in range(512))
            g(f"s_lshl_b32 s{sTMP}, s{sR0}, 1")
            for k in range(5):
                g(f"buffer_load_dwordx4 {v(vXr+4*k,4)}, v{vXa}, {X}, s{sTMP} offen offset:{16*k}")
            g(f"buffer_load_dwordx2 {v(vXr+20,2)}, v{vXa}, {X}, s{sTMP} offen offset:80")
        if not pB:
            g(f"s_cmp_lg_u32 s{sW}, 0")
            g("s_cbranch_scc1 L_A_s2")
            h0loads()
            g.lab("L_A_s2")
        vUV0, vUV1 = 20, 21
        vP2 = 22
        g(f"""
        v_lshlrev_b32 v{t0}, 1, v{vG}
        v_xor_b32 v{t0}, v{t0}, v{vN}
        v_lshlrev_b32 v{vUV0}, 17, v{vG}
        v_lshl_add_u32 v{vUV0}, v{t0}, 4, v{vUV0}
        v_xor_b32 v{vUV1}, 128, v{vUV0}
        """)
        uve = opt.get("uv_early", 0)
        nuv = 8 if "uv" not in opt.get("skip", "") else 0
        def uv_stream():
            sa, sb = 47, 59
            g(f"""
            s_lshl_b32 s{sa}, s{sJ}, 5
            s_add_u32 s{sa}, s{sa}, s{sW}
            s_lshl_b32 s{sa}, s{sa}, 15
            s_lshl_b32 s{sb}, s{sH}, 8
            s_add_u32 s{sa}, s{sa}, s{sb}
            s_lshl_b32 s{sb}, s{sW}, 13
            """)
            for z in range(nuv):
                hi, gg = z >> 2, z & 3
                if opt.get("uv_thr") and not uve: g(f"s_waitcnt vmcnt({opt['uv_thr']-1})")
                g(f"s_add_u32 m0, s{sb}, {A_WUV + z*1024}")
                g(f"s_add_u32 s{sTMP}, s{sa}, {(64*hi+gg)*8192}")
                g(f"buffer_load_dwordx4 v{vUV1 if z & 1 else vUV0}, {WUV}, s{sTMP} offen {NT} lds")
        if uve == 1:
            g("s_waitcnt lgkmcnt(0)")
            uv_stream()
        for i in range(9):
            unit_pattern(g, vP2 + i, vL, None, i, 1152, t0, t1)
        if opt.get('w1_on', 'A') == 'A':
            g(f"""
            v_lshrrev_b32 v{t0}, 5, v{vL}
            v_mul_u32_u24 v{vHs}, 18432, v{t0}
            v_and_b32 v{t0}, 31, v{vL}
            v_lshl_add_u32 v{vHs}, v{t0}, 4, v{vHs}
            v_mul_u32_u24 v{t0}, 0x0202, v{vG}
            v_add_u32 v{t0}, 0x0100, v{t0}
            v_and_b32 v{t1}, 1, v{vL}
            v_lshlrev_b32 v{t1}, 4, v{t1}
            v_lshlrev_b32 v{t0}, v{t1}, v{t0}
            v_mov_b32 v{t2}, 0x0c0c0000
            v_lshrrev_b32 v{t2}, v{t1}, v{t2}
            v_or_b32 v{t0}, v{t0}, v{t2}
            v_bfe_u32 v{t1}, v{vL}, 1, 2
            v_mov_b32 v{t2}, 0x0c0c0c0c
            """)
            for d in range(4):
                g(f"v_cmp_eq_u32 vcc, {d}, v{t1}")
                g(f"v_cndmask_b32 v{vS1+d}, v{t2}, v{t0}, vcc")
        if uve == 2:
            g("s_waitcnt lgkmcnt(0)")
            uv_stream()
        g(f"s_mov_b32 s{sCNT}, 0")
        g(f"s_cmp_lg_u32 s{sW}, 0")
        g("s_cbranch_scc1 L_A_h0wait")
        if pB:
            g(f"""
            s_mov_b32 s{sTMP}, s{sC}
            s_mov_b32 s{sTMP+1}, s{sO3}
            s_and_b32 s{sC}, s{sT}, 15
            """)
            g.lab("L_A_peek")
            for k in range(4):
                g(f"s_load_dword s{16+k}, s[{sTMP}:{sTMP+1}], {k*1024+opt.get('peek_off', 1020)} glc")
            spin_guard(g, "L_A_peek2")
            g("s_waitcnt lgkmcnt(0)")
            for k in range(4):
                g(f"s_xor_b32 s{16+k}, s{16+k}, s{sC}")
            g("s_or_b64 s[16:17], s[16:17], s[18:19]")
            g("s_or_b32 s16, s16, s17")
            g("s_and_b32 s16, s16, 15")
            g("s_cbranch_scc1 L_A_peek")
            g.lab("L_A_peek2")
            g.stamp(2)
            g.lab("L_A_h0get")
            h0loads()
            g("s_waitcnt vmcnt(0)")
        else:
            g(f"s_waitcnt vmcnt({nuv if uve else 0})")
        g.lab("L_A_h0chk")
        if opt.get("fst"):
            g(f"s_cmp_lg_u32 s{sCNT}, 0")
            g("s_cbranch_scc1 L_A_fs11")
            g.fstamp(11)
            g.lab("L_A_fs11")
        if pB:
            for k in range(16):
                g(f"v_xor_b32 v{vR+k}, s{sC}, v{vR+k}")
            g(f"v_or3_b32 v{t0}, v{vR}, v{vR+1}, v{vR+2}")
            g(f"v_or3_b32 v{t1}, v{vR+3}, v{vR+4}, v{vR+5}")
            for k in range(6, 14, 4):
                g(f"v_or3_b32 v{t0}, v{t0}, v{vR+k}, v{vR+k+1}")
                g(f"v_or3_b32 v{t1}, v{t1}, v{vR+k+2}, v{vR+k+3}")
            g(f"v_or3_b32 v{t0}, v{t0}, v{vR+14}, v{vR+15}")
            g(f"v_bitop3_b32 v{t0}, v{t0}, v{t1}, 15 bitop3:0xa8")
            g(f"v_cmp_ne_u32 vcc, 0, v{t0}")
            g("s_cbranch_vccnz L_A_h0poll")
        else:
            for k in range(3):
                g(f"v_cmp_ne_u64 vcc, s[{sT}:{sT+1}], {v(vR+8*k,2)}")
                g(f"v_cmp_ne_u64 s[{sM3}:{sM3+1}], s[{sT}:{sT+1}], {v(vR+8*k+6,2)}")
                if k == 0: g(f"s_or_b64 s[{sM4}:{sM4+1}], vcc, s[{sM3}:{sM3+1}]")
                else:
                    g(f"s_or_b64 s[{sM4}:{sM4+1}], s[{sM4}:{sM4+1}], vcc")
                    g(f"s_or_b64 s[{sM4}:{sM4+1}], s[{sM4}:{sM4+1}], s[{sM3}:{sM3+1}]")
            g("s_cbranch_scc1 L_A_h0poll")
        g.lab("L_A_h0done")
        def d1bell(tag):
            g("s_mov_b64 exec, 0xff")
            g(f"buffer_store_dword v{vTag}, v{vBell}, {WS}, s{sO2} offen sc1")
            g("s_mov_b64 exec, -1")
        qd = opt.get("q_direct", 0)
        d1p = opt.get("d1_pos", 0) if not qd else -1
        if d1p == 0: d1bell("")
        if pB:
            g(f"v_pk_add_f32 {v(vR,2)}, {v(vR,2)}, {v(vR+4,2)}")
            g(f"v_pk_add_f32 {v(vR+2,2)}, {v(vR+2,2)}, {v(vR+6,2)}")
            g(f"v_pk_add_f32 {v(vR+8,2)}, {v(vR+8,2)}, {v(vR+12,2)}")
            g(f"v_pk_add_f32 {v(vR+10,2)}, {v(vR+10,2)}, {v(vR+14,2)}")
            g(f"v_pk_add_f32 {v(vR,2)}, {v(vR,2)}, {v(vR+8,2)}")
            g(f"v_pk_add_f32 {v(vR+2,2)}, {v(vR+2,2)}, {v(vR+10,2)}")
            g(f"v_cvt_pk_bf16_f32 v{vR}, v{vR}, v{vR+1}")
            g(f"v_cvt_pk_bf16_f32 v{vR+1}, v{vR+2}, v{vR+3}")
        else:
            g(f"v_pk_add_f32 {v(vR+2,2)}, {v(vQ+2,2)}, {v(vR+2,2)}")
            g(f"v_pk_add_f32 {v(vR+4,2)}, {v(vQ+4,2)}, {v(vR+4,2)}")
            g(f"v_pk_add_f32 {v(vR+10,2)}, {v(vR+10,2)}, {v(vR+18,2)}")
            g(f"v_pk_add_f32 {v(vR+12,2)}, {v(vR+12,2)}, {v(vR+20,2)}")
            g(f"v_pk_add_f32 {v(vR+2,2)}, {v(vR+2,2)}, {v(vR+10,2)}")
            g(f"v_pk_add_f32 {v(vR+4,2)}, {v(vR+4,2)}, {v(vR+12,2)}")
            g(f"v_cvt_pk_bf16_f32 v{vR}, v{vR+2}, v{vR+3}")
            g(f"v_cvt_pk_bf16_f32 v{vR+1}, v{vR+4}, v{vR+5}")
        g(f"ds_write_b64 v{vQw}, {v(vR,2)} offset:{A_QL}")
        g("s_waitcnt lgkmcnt(0)")
        g("s_barrier")
        g(f"ds_read_b128 {v(vQlo,4)}, v{vA_qlo}")
        g(f"ds_read_b128 {v(vQhi,4)}, v{vA_qhi}")
        if d1p == 1: d1bell("")
        g("s_branch L_A_p1b")
        g.lab("L_A_h0wait")
        g(f"s_waitcnt vmcnt({nuv if uve else 0}) lgkmcnt(0)")
        g.fstamp(12)
        g("s_barrier")
        g(f"ds_read_b128 {v(vQlo,4)}, v{vA_qlo}")
        g(f"ds_read_b128 {v(vQhi,4)}, v{vA_qhi}")
        g.lab("L_A_p1b")
        g.stamp(3)
        g("s_waitcnt lgkmcnt(0)")
        for t in range(4):
            g(f"{MF} {v(vAcc+4*t,4)}, {v(vQlo,4)}, {A(aUK+8*t,4)}, 0")
        for t in range(4):
            g(f"{MF} {v(vAcc+4*t,4)}, {v(vQhi,4)}, {A(aUK+8*t+4,4)}, {v(vAcc+4*t,4)}")
        if d1p == 2:
            g(f"s_cmp_lg_u32 s{sW}, 0")
            g("s_cbranch_scc1 L_A_nod1")
            d1bell("")
            g.lab("L_A_nod1")
        for t in range(4):
            a0 = vAcc + 4 * t
            g(f"v_cndmask_b32 v{a0}, v{a0}, v{a0+1}, s[{sM1}:{sM1+1}]")
            g(f"v_cndmask_b32 v{a0+2}, v{a0+2}, v{a0+3}, s[{sM1}:{sM1+1}]")
            g(f"v_cndmask_b32 v{a0}, v{a0}, v{a0+2}, s[{sM2}:{sM2+1}]")
        for t in range(4):
            a0 = vAcc + 4 * t
            g(f"v_add_f32_dpp v{a0+1}, v{a0}, v{a0} quad_perm:[1,0,3,2] row_mask:0xf bank_mask:0xf")
        for t in range(4):
            a0 = vAcc + 4 * t
            g(f"v_add_f32_dpp v{a0}, v{a0+1}, v{a0+1} quad_perm:[2,3,0,1] row_mask:0xf bank_mask:0xf")
        g(f"v_cvt_pk_bf16_f32 v{vGr}, v{vAcc}, v{vAcc+4}")
        g(f"v_cvt_pk_bf16_f32 v{vGr+1}, v{vAcc+8}, v{vAcc+12}")
        g(f"v_permlane32_swap_b32 v{vGr}, v{vGr+2}")
        g(f"v_permlane32_swap_b32 v{vGr+1}, v{vGr+3}")
        if qd:
            g(f"""
            s_mov_b64 exec, 0x11111111
            ds_write_b128 v{vA_h1}, {v(vGr,4)} offset:{A_CTXC}
            s_mov_b64 exec, -1
            s_waitcnt lgkmcnt(0)
            s_barrier
            s_cmp_lg_u32 s{sW}, 3
            s_cbranch_scc1 L_A_noq
            s_mov_b32 exec_hi, 0
            ds_read_b128 {v(vGr,4)}, v{vA_l16} offset:{A_CTXC}
            s_waitcnt lgkmcnt(0)
            buffer_store_dwordx4 {v(vGr,4)}, v{vBell}, {WS}, s{sQ} offen sc1
            s_mov_b64 exec, -1
            """)
            g.lab("L_A_noq")
        else:
            g(f"""
            s_mov_b64 exec, 0x11111111
            buffer_store_dwordx4 {v(vGr,4)}, v{vA_h1}, {WS}, s{sQ} offen sc1
            s_mov_b64 exec, -1
            """)
        if d1p == 3:
            g(f"s_cmp_lg_u32 s{sW}, 0")
            g("s_cbranch_scc1 L_A_nod1")
            d1bell("")
            g.lab("L_A_nod1")
        g.stamp(4)
        if opt.get("a_wait", 0): g("s_waitcnt vmcnt(0)")
        if opt.get("a_gate"):
            sD = [16, 52, 56, 28]
            g(f"""
            s_lshl_b32 s{sTMP}, s{sXCD}, 3
            s_lshr_b32 s{sTMP+1}, s{sH}, 4
            s_lshl_b32 s{sTMP+1}, s{sTMP+1}, 2
            s_add_u32 s{sTMP}, s{sTMP}, s{sTMP+1}
            s_add_u32 s{sTMP}, s{sTMP}, s{sW}
            s_lshl_b32 s{sTMP}, s{sTMP}, 9
            s_add_u32 s{sTMP}, s{sTMP}, {D1}
            s_add_u32 s{sTMP}, s4, s{sTMP}
            s_addc_u32 s{sTMP+1}, s5, 0
            s_mov_b32 s{sPC}, s{sT}
            s_mov_b32 s{sPC+1}, s{sT}
            s_mov_b32 s{sCNT}, 0
            """)
            g.lab("L_A_gate")
            for k in range(4):
                g(f"s_load_dwordx4 s[{sD[k]}:{sD[k]+3}], s[{sTMP}:{sTMP+1}], {k*128} glc")
            spin_guard(g, "L_A_gate2")
            g("s_waitcnt lgkmcnt(0)")
            for k in range(4):
                g(f"s_xor_b64 s[{sD[k]}:{sD[k]+1}], s[{sD[k]}:{sD[k]+1}], s[{sPC}:{sPC+1}]")
                g(f"s_xor_b64 s[{sD[k]+2}:{sD[k]+3}], s[{sD[k]+2}:{sD[k]+3}], s[{sPC}:{sPC+1}]")
                g(f"s_or_b64 s[{sD[k]}:{sD[k]+1}], s[{sD[k]}:{sD[k]+1}], s[{sD[k]+2}:{sD[k]+3}]")
            g("s_or_b64 s[16:17], s[16:17], s[52:53]")
            g("s_or_b64 s[56:57], s[56:57], s[28:29]")
            g("s_or_b64 s[16:17], s[16:17], s[56:57]")
            g("s_cbranch_scc1 L_A_gate")
            g.lab("L_A_gate2")
            g("s_waitcnt lgkmcnt(0)")
            if opt["a_gate"] == 2: g("s_barrier")
            g(f"v_and_b32 v{t0}, 2, v{vL}")
            g(f"v_cmp_eq_u32 s[{sM2}:{sM2+1}], 2, v{t0}")
        if opt.get("a_sleep"): g(f"s_sleep {opt['a_sleep']}")
        srd(g, 28, 10, 1152)
        def w1_frags():
            for i in range(11):
                for d in range(4):
                    g(f"v_perm_b32 v{vXA+4*i+d}, v{vXr+2*i+1}, v{vXr+2*i}, v{vS1+d}")
        w1a = opt.get("w1_on", "A") == "A"
        nw1 = 0 if ("w1" in opt.get("skip", "") or not w1a) else 11
        if w1a:
            g(f"s_mul_i32 s{sO2}, s{sR0}, 9216")
            g(f"s_lshl_b32 s{sO3}, s{sBlk}, 8")
            g(f"s_add_u32 s{sO2}, s{sO2}, s{sO3}")
        for i in range(nw1):
            if opt.get("w1_thr") and i >= opt["w1_thr"]: g(f"s_waitcnt vmcnt({opt['w1_thr']-1})")
            g(f"buffer_load_dwordx4 {A(aW1+4*i,4)}, v{vW1a}, {W1}, s{sO2} offen {NT}")
            if i == (opt.get("w1_thr") or 11) - 1: w1_frags()
            if i < 10: g(f"s_add_u32 s{sO2}, s{sO2}, {4*9216}")
            if i == 9:
                g(f"s_cmp_ge_u32 s{sRho}, 4")
                g(f"s_cselect_b32 s{sO2}, {576*9216}, s{sO2}")
        if not uve: uv_stream()
        def w1_gemv(younger):
            if not w1a: return
            vH = 148
            g(f"s_waitcnt vmcnt({younger})")
            for i in range(10):
                g(f"{MF} {v(vH,4)}, {v(vXA+4*i,4)}, {A(aW1+4*i,4)}, {'0' if i == 0 else v(vH,4)}")
            g(f"s_cmp_ge_u32 s{sRho}, 4")
            g("s_cbranch_scc1 L_A_w1s")
            g(f"{MF} {v(vH,4)}, {v(vXA+40,4)}, {A(aW1+40,4)}, {v(vH,4)}")
            g.lab("L_A_w1s")
            g(f"""
            s_mul_i32 s{sO}, s{sRho}, 36864
            s_lshl_b32 s{sO3}, s{sBlk}, 9
            s_add_u32 s{sO}, s{sO}, s{sO3}
            s_add_u32 s{sO}, s{sO}, {HH}
            s_and_b32 s{sO3}, s{sT}, 15
            """)
            for r in range(4):
                g(f"v_and_or_b32 v{vH+r}, v{vH+r}, -16, s{sO3}")
            g(f"buffer_store_dwordx4 {v(vH,4)}, v{vHs}, {WS}, s{sO} offen sc1")
        if not opt.get("w1_late"): w1_gemv(0 if uve else nuv)
        wol = opt.get("wo_late", 0)
        if not wol:
            g(f"s_mul_i32 s{sO2}, s{sA}, {32*1152}")
            unit_load(g, WO, vP2, A_WO, sO2, 1152, "wo", NT, rows36=False, thr=opt.get("a_thr"))
        if opt.get("w1_late") == 1: w1_gemv(9)
        if not opt.get('clk'): g.stamp(14)
        vGx, vGw, vB2 = 48, 60, 72
        vOA, vFB = 73, 74
        g(f"v_mov_b32 v{vOA}, 0")
        g("s_waitcnt lgkmcnt(0)")
        g(f"s_cmp_lg_u32 s{sW}, 0")
        g("s_cbranch_scc1 L_A_nogate")
        h0_wt()
        g(f"""
        s_cmp_ge_u32 s{sA}, 36
        s_cbranch_scc1 L_A_nogate
        v_and_b32 v{t0}, 31, v{vL}
        v_mul_u32_u24 v{t1}, 36, v{t0}
        v_lshrrev_b32 v{t2}, 5, v{vL}
        v_mul_u32_u24 v{t2}, 1152, v{t2}
        v_add_u32 v{t2}, v{t2}, v{t1}
        buffer_load_dwordx4 {v(vGx,4)}, v{t2}, {X}, 0 offen
        buffer_load_dwordx4 {v(vGx+4,4)}, v{t2}, {X}, 0 offen offset:16
        buffer_load_dword v{vGx+8}, v{t2}, {X}, 0 offen offset:32
        buffer_load_dwordx4 {v(vGw,4)}, v{t1}, {GATE}, 0 offen
        buffer_load_dwordx4 {v(vGw+4,4)}, v{t1}, {GATE}, 0 offen offset:16
        buffer_load_dword v{vGw+8}, v{t1}, {GATE}, 0 offen offset:32
        s_cmp_ge_u32 s{sA}, 32
        s_cbranch_scc1 L_A_uleft
        s_lshr_b32 s{sO}, s{sA}, 2
        s_lshl_b32 s{sO}, s{sO}, 4
        s_and_b32 s{sO3}, s{sA}, 1
        s_lshl_b32 s{sO3}, s{sO3}, 3
        s_add_u32 s{sO}, s{sO}, s{sO3}
        v_and_b32 v{t1}, 3, v{t0}
        v_lshlrev_b32 v{t1}, 7, v{t1}
        v_lshrrev_b32 v{t2}, 2, v{t0}
        v_add3_u32 v{t1}, v{t1}, v{t2}, s{sO}
        s_bfe_u32 s{sO3}, s{sA}, 0x10001
        v_mov_b32 v{vFB}, s{sO3}
        s_branch L_A_ujoin
        """)
        g.lab("L_A_uleft")
        g(f"""
        s_lshl_b32 s{sO}, s{sA}, 4
        v_and_b32 v{t1}, 15, v{t0}
        v_add_u32 v{t1}, s{sO}, v{t1}
        v_lshrrev_b32 v{vFB}, 4, v{t0}
        """)
        g.lab("L_A_ujoin")
        g(f"""
        v_lshlrev_b32 v{t1}, 1, v{t1}
        buffer_load_ushort v{vB2}, v{t1}, {B2}, 0 offen
        v_mul_u32_u24 v{vOA}, 1152, v{vFB}
        v_add_u32 v{vOA}, v{vOA}, v{t1}
        """)
        g.lab("L_A_nogate")
        vH3, vH3x = 32, 33
        vHBs = 39
        sH3m, sH3l, sHB, sHH = 63, 47, 61, 62
        vTU0, vTU1, vTO0, vTO1 = 34, 35, 36, 37
        vCX, vCW, vHBl, vD2, vOg, vWTw, vWTr = 38, 46, 40, 41, 42, 43, 44
        vT1, vK1 = 75, 57
        def later_addresses():
            g(f"""
            s_mul_i32 s{sH3l}, s{sA}, {OSTR}
            s_add_u32 s{sH3l}, s{sH3l}, {OB}
            s_lshl_b32 s{sTMP}, s{sW}, 10
            s_add_u32 s{sH3m}, s{sH3l}, s{sTMP}
            s_lshl_b32 s{sTMP}, s{sW}, 8
            s_add_u32 s{sH3l}, s{sH3l}, s{sTMP}
            s_add_u32 s{sH3l}, s{sH3l}, 4096
            v_lshlrev_b32 v{vH3x}, 2, v{vL}
            """)
            g(f"""
            v_lshlrev_b32 v{vHBs}, 7, v{vG}
            v_and_b32 v{t0}, 1, v{vL}
            v_lshl_add_u32 v{vHBs}, v{t0}, 6, v{vHBs}
            v_bfe_u32 v{t0}, v{vL}, 1, 1
            v_lshl_add_u32 v{vHBs}, v{t0}, 9, v{vHBs}
            s_lshl_b32 s{sHB}, s{sH}, 2
            s_add_u32 s{sHB}, s{sHB}, s{sW}
            s_lshl_b32 s{sHB}, s{sHB}, 6
            s_add_u32 s{sHB}, s{sHB}, s{sJ}
            s_lshl_b32 s{sHB}, s{sHB}, 4
            s_add_u32 s{sHB}, s{sHB}, {HB}
            v_lshrrev_b32 v{t0}, 2, v{vL}
            v_bfe_u32 v{t1}, v{vL}, 1, 1
            v_lshl_add_u32 v{t1}, s{sW}, 2, v{t1}
            v_and_b32 v{t2}, 7, v{t0}
            v_lshlrev_b32 v{t2}, 1, v{t2}
            v_xor_b32 v{t1}, v{t1}, v{t2}
            v_lshlrev_b32 v{vTU0}, 8, v{t0}
            v_lshl_add_u32 v{vTU0}, v{t1}, 4, v{vTU0}
            v_and_b32 v{t1}, 1, v{vL}
            v_lshl_add_u32 v{vTU0}, v{t1}, 3, v{vTU0}
            v_xor_b32 v{vTU1}, 32, v{vTU0}
            """)
            assert A_WUV == 0
            tr_pair_bases(g, vTO0, vTO1, None, None, vL, A_WO, t0, t1, t2)
            g(f"""
            v_and_b32 v{t0}, 1, v{vL}
            v_lshlrev_b32 v{vCX}, 9, v{t0}
            v_bfe_u32 v{t0}, v{vL}, 1, 1
            v_lshl_add_u32 v{vCX}, v{t0}, 8, v{vCX}
            v_lshl_add_u32 v{vCX}, v{vG}, 4, v{vCX}
            v_and_b32 v{t0}, 1, v{vG}
            v_lshlrev_b32 v{vCW}, 3, v{t0}
            v_lshl_add_u32 v{vCW}, v{vN}, 4, v{vCW}
            v_lshl_add_u32 v{vCW}, s{sW}, 8, v{vCW}
            v_and_b32 v{t0}, 7, v{vL}
            v_lshlrev_b32 v{vHBl}, 4, v{t0}
            v_lshl_add_u32 v{vHBl}, v{vG}, 7, v{vHBl}
            v_and_b32 v{t0}, 31, v{vL}
            v_lshlrev_b32 v{vD2}, 8, v{t0}
            v_lshlrev_b32 v{vOg}, 10, v{vG}
            v_lshl_add_u32 v{vOg}, v{vN}, 4, v{vOg}
            v_lshlrev_b32 v{vWTw}, 1, v{t0}
            v_lshl_add_u32 v{vWTw}, s{sW}, 6, v{vWTw}
            s_and_b32 s{sTMP}, s{sW}, 1
            s_lshl_b32 s{sTMP}, s{sTMP}, 5
            s_lshl_b32 s{sTMP+1}, s{sW}, 6
            s_add_u32 s{sTMP}, s{sTMP}, s{sTMP+1}
            v_lshl_add_u32 v{vWTr}, v{vG}, 3, s{sTMP}
            v_cmp_gt_u32 s[{sM1}:{sM1+1}], 8, v{vN}
            """)
        later_addresses()
        g("s_waitcnt vmcnt(0)")
        g("s_barrier")
        g.stamp(5)
        aUV, aWO = 0, 32
        vDB = 88
        vDL = 92
        vO = 96
        vFr = 116
        vWt = 132
        vD = 136
        vLs, vWr, vEr = 140, 141, 142
        g(f"""
        s_lshr_b32 s{sO}, s{sH}, 4
        s_lshl_b32 s{sO}, s{sO}, 1
        s_lshr_b32 s{sO3}, s{sW}, 1
        s_add_u32 s{sO}, s{sO}, s{sO3}
        s_lshl_b32 s{sO}, s{sO}, 13
        s_and_b32 s{sO3}, s{sH}, 15
        s_lshl_b32 s{sO3}, s{sO3}, 4
        s_add_u32 s{sO}, s{sO}, s{sO3}
        s_add_u32 s{sO2}, s{sO}, {DL}
        s_add_u32 s{sO}, s{sO}, {D2}
        """)
        epos = opt.get("e_pos")
        if epos is None: g(f"buffer_load_dwordx4 {v(vDB,4)}, v{vD2}, {WS}, s{sO} offen sc1")
        if opt.get("w1_late") == 2:
            g(f"s_mov_b32 s{sC}, s{sO}")
            w1_gemv(1)
            g(f"s_mov_b32 s{sO}, s{sC}")
        for tau in range(2):
            for ks in range(4):
                for hi in range(2):
                    g(f"ds_read_b64_tr_b16 {A(aUV+(tau*4+ks)*4+2*hi,2)}, v{vTU1 if tau else vTU0} offset:{ks*8192+hi*4096}")
        def wo_frags():
            for t in range(5):
                for x in range(2):
                    for hi in range(2):
                        g(f"ds_read_b64_tr_b16 {A(aWO+(t*2+x)*4+2*hi,2)}, v{vTO1 if x else vTO0} offset:{hi*16*1152+t*256}")
        if not wol: wo_frags()
        sBP = 34
        sHI, sTT = sPOI, sPC
        sX, sP4 = 32, 33
        g(f"""
        s_and_b32 s{sTMP}, s{sW}, 1
        s_lshl_b32 s{sTMP}, s{sTMP}, 12
        s_add_u32 s{sTMP}, s{sTMP}, s{sO2}
        s_add_u32 s{sBP}, s4, s{sTMP}
        s_addc_u32 s{sBP+1}, s5, 0
        s_mul_i32 s{sO3}, s{sA}, {OSTR}
        s_lshl_b32 s{sTMP}, s{sW}, 12
        s_add_u32 s{sO3}, s{sO3}, s{sTMP}
        s_add_u32 s{sO3}, s{sO3}, {OB}
        s_bitcmp1_b32 s{sT}, 0
        s_cselect_b32 s{sX}, 0x10001, 0
        s_mov_b32 s{sHI}, 0x10000
        s_mov_b32 s{sTT}, s{sT}
        s_mov_b32 s{sTT+1}, s{sT}
        """)
        g(f"v_mov_b32 v{t0}, 0")
        for k in range(9):
            g(f"v_dot2_f32_bf16 v{t0}, v{vGx+k}, v{vGw+k}, v{t0}")
        g("s_nop 2")
        for r in (8, 4, 2, 1):
            g(f"v_add_f32_dpp v{t0}, v{t0}, v{t0} row_ror:{r} row_mask:0xf bank_mask:0xf")
        g(f"""
        v_mov_b32 v{t1}, v{t0}
        v_permlane16_swap_b32 v{t0}, v{t1}
        v_add_f32 v{t0}, v{t0}, v{t1}
        v_mul_f32 v{t0}, {hex(fbits(-math.log2(math.e)))}, v{t0}
        v_exp_f32 v{t0}, v{t0}
        v_add_f32 v{t0}, 1.0, v{t0}
        v_rcp_f32 v{t0}, v{t0}
        v_cmp_eq_u32 vcc, 1, v{vFB}
        v_mov_b32 v{t1}, v{t0}
        v_permlane32_swap_b32 v{t0}, v{t1}
        v_cndmask_b32 v{vFB}, v{t0}, v{t1}, vcc
        v_lshlrev_b32 v{vB2}, 16, v{vB2}
        s_mov_b32 s{sCNT}, 0
        """)
        if epos is None:
            g(f"s_waitcnt vmcnt({1 if opt.get('w1_late') == 2 else 0})")
            g("s_branch L_A_d2chk")
        else:
            g(f"""
            s_lshr_b32 s{sTMP}, s{sH}, 4
            s_lshl_b32 s{sTMP}, s{sTMP}, 2
            s_add_u32 s{sTMP}, s{sTMP}, s{sW}
            s_lshl_b32 s{sTMP}, s{sTMP}, 11
            s_mul_i32 s{sTMP+1}, s{sXCD}, {16384 if opt.get("e_rep") else 0}
            s_add_u32 s{sTMP}, s{sTMP}, s{sTMP+1}
            s_add_u32 s{sTMP}, s{sTMP}, {DE2 if opt.get("e_rep") else DE}
            v_lshrrev_b32 v{t2}, 1, v{vD2}
            s_mov_b64 exec, 0xffff
            """)
            g.lab("L_A_epoll")
            g(f"buffer_load_dwordx2 {v(t0,2)}, v{t2}, {WS}, s{sTMP} offen offset:8 sc1")
            spin_guard(g, "L_A_edone")
            g("s_waitcnt vmcnt(0)")
            g(f"v_cmp_ne_u64 vcc, s[{sT}:{sT+1}], {v(t0,2)}")
            g("s_mov_b64 exec, vcc")
            g("s_cbranch_vccnz L_A_epoll")
            g.lab("L_A_edone")
            g("s_mov_b64 exec, -1")
            g("s_mov_b64 vcc, -1")
            if opt.get("st14e"): g.stamp(14)
            if opt.get("e_sleep"): g(f"s_sleep {opt['e_sleep']}")
            g(f"s_mov_b32 s{sCNT}, 0")
        g.lab("L_A_d2poll")
        if opt.get("m_shrink"): g("s_mov_b64 exec, vcc")
        if opt.get("m_sleep"): g(f"s_sleep {opt['m_sleep']}")
        g(f"buffer_load_dwordx4 {v(vDB,4)}, v{vD2}, {WS}, s{sO} offen sc1")
        g(f"s_add_u32 s{sCNT}, s{sCNT}, 1")
        g(f"s_cmp_gt_u32 s{sCNT}, {opt.get('spin', SPIN)}")
        g("s_waitcnt vmcnt(0)")
        g("s_cbranch_scc1 L_A_d2done")
        g.lab("L_A_d2chk")
        g(f"v_cmp_ne_u64 vcc, s[{sT}:{sT+1}], {v(vDB+2,2)}")
        g("s_cbranch_vccnz L_A_d2poll")
        g.lab("L_A_d2done")
        if opt.get("m_shrink"): g("s_mov_b64 exec, -1")
        g.stamp(6)
        def lpoll():
            for k in range(16):
                g(f"s_load_dword s{16+k}, s[{sBP}:{sBP+1}], {k*256+8} glc")
        lvec = opt.get("l_vec", 0)
        if lvec == 1: g(f"buffer_load_dwordx4 {v(vDL,4)}, v{vD2}, {WS}, s{sO2} offen sc1")
        elif lvec == 0: lpoll()
        g(f"v_max_f32_dpp v{t0}, v{vDB}, v{vDB} row_ror:8 row_mask:0xf bank_mask:0xf")
        for r in (4, 2, 1):
            g(f"v_max_f32_dpp v{t0}, v{t0}, v{t0} row_ror:{r} row_mask:0xf bank_mask:0xf")
        g(f"""
        v_mov_b32 v{t1}, v{t0}
        v_permlane16_swap_b32 v{t0}, v{t1}
        v_max_f32 v{t0}, v{t0}, v{t1}
        v_sub_f32 v{t0}, v{vDB}, v{t0}
        v_exp_f32 v{t0}, v{t0}
        v_cvt_pk_bf16_f32 v{t0}, v{t0}, v{t0}
        ds_write_b16 v{vWTw}, v{t0} offset:{A_WT}
        ds_read_b64 {v(vWt,2)}, v{vWTr} offset:{A_WT}
        v_and_b32 v{vWr}, 0xffff0000, v{t0}
        s_mov_b32 s{sCNT}, 0
        s_branch {"L_A_lgo" if lvec == 2 else "L_A_lchk"}
        """)
        g.lab("L_A_lpoll")
        if lvec: g(f"buffer_load_dwordx4 {v(vDL,4)}, v{vD2}, {WS}, s{sO2} offen sc1")
        else: lpoll()
        g(f"s_add_u32 s{sCNT}, s{sCNT}, 1")
        g(f"s_cmp_gt_u32 s{sCNT}, {opt.get('spin', SPIN)}")
        g("s_cbranch_scc1 L_A_lgo")
        g.lab("L_A_lchk")
        if lvec:
            g("s_waitcnt vmcnt(0)")
            g(f"v_cmp_ne_u64 vcc, s[{sT}:{sT+1}], {v(vDL+2,2)}")
            g("s_cbranch_vccnz L_A_lpoll")
        else:
            g("s_waitcnt lgkmcnt(0)")
            for k in range(0, 16, 2):
                g(f"s_xor_b64 s[{16+k}:{17+k}], s[{16+k}:{17+k}], s[{sTT}:{sTT+1}]")
            for st_ in (8, 4, 2):
                for k in range(0, st_, 2):
                    g(f"s_or_b64 s[{16+k}:{17+k}], s[{16+k}:{17+k}], s[{16+k+st_}:{17+k+st_}]")
            g("s_cbranch_scc1 L_A_lpoll")
        g.lab("L_A_lgo")
        g(f"s_mov_b32 s{sCNT}, 0")
        if opt.get("o_sleep"): g(f"s_sleep {opt['o_sleep']}")
        g.stamp(11)
        def oget():
            g(f"buffer_load_dwordx4 {v(vDL,4)}, v{vD2}, {WS}, s{sO2} offen sc1")
            for u in range(4):
                g(f"buffer_load_dwordx4 {v(vO+4*u,4)}, v{vOg}, {WS}, s{sO3} offen offset:{u*256} sc1")
        oget()
        nwo = 0
        if wol in (1, 2):
            assert lvec == 2
            g(f"s_mul_i32 s{sC}, s{sA}, {32*1152}")
            unit_load(g, WO, vP2, A_WO, sC, 1152, "wo", NT, rows36=False)
            nwo = 9 if "wo" not in opt.get("skip", "") else 0
        g("s_waitcnt lgkmcnt(0)")
        for u in range(4):
            for d in range(4):
                g(f"v_perm_b32 v{vFr+4*u+d}, v{vWt+(u>>1)}, v{vWt+(u>>1)}, v{vSel+4*(u&1)+d}")
        g.lab("L_A_ocomb")
        g(f"v_mov_b32 v{vEr}, 0")
        g(f"s_waitcnt vmcnt({4+nwo})")
        g(f"v_mul_f32 v{vLs}, v{vWr}, v{vDL}")
        g(f"v_cmp_ne_u64 s[{sM4}:{sM4+1}], s[{sT}:{sT+1}], {v(vDL+2,2)}")
        for r in (8, 4, 2, 1):
            g(f"v_add_f32_dpp v{vLs}, v{vLs}, v{vLs} row_ror:{r} row_mask:0xf bank_mask:0xf")
        g(f"""
        v_mov_b32 v{t1}, v{vLs}
        v_permlane16_swap_b32 v{vLs}, v{t1}
        v_add_f32 v{vLs}, v{vLs}, v{t1}
        v_rcp_f32 v{vLs}, v{vLs}
        """)
        for u in range(4):
            g(f"s_waitcnt vmcnt({3-u+nwo})")
            for d in range(4):
                g(f"v_xor_b32 v{vO+4*u+d}, s{sX}, v{vO+4*u+d}")
            if u:
                for d in range(4):
                    g(f"v_bitop3_b32 v{vEr}, v{vEr}, v{vO+4*(u-1)+d}, s{sHI} bitop3:0xf6")
            g(f"{MF} {v(vD,4)}, {v(vFr+4*u,4)}, {v(vO+4*u,4)}, {'0' if u == 0 else v(vD,4)}")
        for d in range(4):
            g(f"v_bitop3_b32 v{vEr}, v{vEr}, v{vO+12+d}, s{sHI} bitop3:0xf6")
        g(f"v_and_b32 v{vEr}, 0x10001, v{vEr}")
        g(f"v_cmp_ne_u32 vcc, 0, v{vEr}")
        g(f"s_or_b64 vcc, vcc, s[{sM4}:{sM4+1}]")
        g("s_cbranch_scc1 L_A_oslow")
        g.lab("L_A_ook")
        if opt.get("stamps"): g(f"s_mov_b32 s100, s{sCNT}")
        for r in range(4):
            g(f"v_mul_f32 v{vD+r}, v{vLs}, v{vD+r}")
        g(f"v_cvt_pk_bf16_f32 v{vD}, v{vD}, v{vD+1}")
        g(f"v_cvt_pk_bf16_f32 v{vD+1}, v{vD+2}, v{vD+3}")
        g(f"ds_write_b64 v{vCW}, {v(vD,2)} offset:{A_CTXC}")
        if wol == 3:
            g(f"s_mul_i32 s{sC}, s{sA}, {32*1152}")
            unit_load(g, WO, vP2, A_WO, sC, 1152, "wo", NT, rows36=False)
        g("s_waitcnt vmcnt(0) lgkmcnt(0)" if wol == 1 else "s_waitcnt lgkmcnt(0)")
        g("s_barrier")
        g.stamp(7)
        vC = 80
        vU = 96
        vG1, vG2 = 104, 108
        vAe, vAo = 116, 120
        vY = 124
        for ks in range(4):
            g(f"ds_read_b128 {v(vC+4*ks,4)}, v{vCX} offset:{A_CTXC+ks*64}")
        g(f"s_lshl_b32 s{sO3}, s{sA}, 10")
        g(f"s_add_u32 s{sO3}, s{sO3}, {HB+LOC}")
        g(f"s_add_u32 s{sO}, s{sHB}, {LOC}")
        g(f"s_and_b32 s{sP4}, s{sT}, 15")
        sD3, vD3 = 16, 58
        g(f"s_xor_b32 s{sD3}, s{sW}, 3")
        g(f"s_or_b32 s{sD3}, s{sD3}, s{sJ}")
        g(f"s_lshl_b32 s{sTMP}, s{sH}, 7")
        g(f"s_add_u32 s{sTMP}, s{sTMP}, {D3}")
        g(f"v_lshl_add_u32 v{vD3}, v{vL}, 12, s{sTMP}")
        for ks in range(4):
            g(f"s_waitcnt lgkmcnt({3-ks})")
            for tau in range(2):
                g(f"{MF} {v(vU+4*tau,4)}, {A(aUV+(tau*4+ks)*4,4)}, {v(vC+4*ks,4)}, {'0' if ks == 0 else v(vU+4*tau,4)}")
        for r in range(4):
            g(f"v_cndmask_b32 v{vC+r}, v{vU+r}, v{vU+4+r}, s[{sM2}:{sM2+1}]")
            g(f"v_cndmask_b32 v{vC+4+r}, v{vU+4+r}, v{vU+r}, s[{sM2}:{sM2+1}]")
        for r in range(4):
            g(f"v_add_f32_dpp v{vC+r}, v{vC+4+r}, v{vC+r} quad_perm:[2,3,0,1] row_mask:0xf bank_mask:0xf")
        g(f"""
        v_cvt_pk_bf16_f32 v{vTag-2}, v{vC}, v{vC+1}
        v_cvt_pk_bf16_f32 v{vTag-1}, v{vC+2}, v{vC+3}
        s_mov_b32 exec_lo, 0x000f000f
        s_mov_b32 exec_hi, 0x000f000f
        buffer_store_dwordx4 {v(vTag-2,4)}, v{vHBs}, {WS}, s{sO} offen
        s_mov_b64 exec, -1
        """)
        def hb_wt():
            g("s_mov_b32 exec_lo, 0x000f000f")
            g("s_mov_b32 exec_hi, 0x000f000f")
            g(f"buffer_store_dwordx4 {v(vTag-2,4)}, v{vHBs}, {WS}, s{sHB} offen sc1")
            g("s_mov_b64 exec, -1")
        g.stamp(8)
        g(f"s_mov_b32 s{sCNT}, 0")
        if wol >= 2:
            g("s_waitcnt vmcnt(1)")
            g("s_barrier")
        if wol: wo_frags()
        g.lab("L_A_hbld")
        g(f"buffer_load_dwordx4 {v(vG1,4)}, v{vHBl}, {WS}, s{sO3} offen sc1")
        g(f"buffer_load_dwordx4 {v(vG2,4)}, v{vHBl}, {WS}, s{sO3} offen offset:512 sc1")
        g("s_waitcnt vmcnt(0)")
        g(f"v_cmp_ne_u64 vcc, s[{sT}:{sT+1}], {v(vG1+2,2)}")
        g(f"v_cmp_ne_u64 s[{sM3}:{sM3+1}], s[{sT}:{sT+1}], {v(vG2+2,2)}")
        src = [vG1, vG1 + 1, vG2, vG2 + 1]
        for d in range(4):
            g(f"v_cndmask_b32 v{vAe+d}, 0, v{src[d]}, s[{sM1}:{sM1+1}]")
        g(f"s_or_b64 vcc, vcc, s[{sM3}:{sM3+1}]")
        g("s_cbranch_scc1 L_A_hbpoll")
        g.lab("L_A_hbdone")
        g.stamp(9)
        def d3bell():
            g(f"s_cmp_lg_u32 s{sD3}, 0")
            g("s_cbranch_scc1 L_A_nod3")
            g("s_mov_b64 exec, 0xff")
            g(f"buffer_store_dword v{vTag}, v{vD3}, {WS}, 0 offen sc1")
            g("s_mov_b64 exec, -1")
            g.lab("L_A_nod3")
        if opt.get("d3_pos", 0) == 0 and opt.get("h3_bell", 1): d3bell()
        for d in range(4):
            g(f"v_cndmask_b32 v{vAo+d}, v{src[d]}, 0, s[{sM1}:{sM1+1}]")
        if wol: g("s_waitcnt lgkmcnt(0)")
        for t in range(4):
            g(f"{MF} {v(vY+4*t,4)}, {v(vAe,4)}, {A(aWO+(t*2)*4,4)}, 0")
        for t in range(4):
            g(f"{MF} {v(vY+4*t,4)}, {v(vAo,4)}, {A(aWO+(t*2+1)*4,4)}, {v(vY+4*t,4)}")
        g(f"{MF} {v(vY+16,4)}, {v(vAe,4)}, {A(aWO+32,4)}, 0")
        g(f"{MF} {v(vY+16,4)}, {v(vAo,4)}, {A(aWO+36,4)}, {v(vY+16,4)}")
        for t in range(4):
            g(f"v_pk_add_f32 {v(vY+4*t,2)}, {v(vY+4*t,2)}, {v(vY+4*t+2,2)}")
        for t in range(4):
            g(f"v_add_f32 v{vC+t}, v{vY+4*t}, v{vY+4*t+1}")
        for t in range(4):
            g(f"v_and_or_b32 v{vC+t}, v{vC+t}, -16, s{sP4}")
        g(f"buffer_store_dwordx4 {v(vC,4)}, v{vA_l16}, {WS}, s{sH3m} offen sc1")
        g(f"s_cmp_gt_u32 s{sW}, 1")
        g("s_cbranch_scc1 L_A_no5b")
        g(f"v_pk_add_f32 {v(vY+16,2)}, {v(vY+16,2)}, {v(vY+18,2)}")
        g(f"v_add_f32 v{vY+16}, v{vY+16}, v{vY+17}")
        g(f"v_and_or_b32 v{vY+16}, v{vY+16}, -16, s{sP4}")
        g(f"buffer_store_dword v{vY+16}, v{vH3x}, {WS}, s{sH3l} offen sc1")
        g.lab("L_A_no5b")
        if opt.get("d3_pos", 0) == 1: d3bell()
        hb_wt()
        g.stamp(10)
        g(f"s_cmp_ge_u32 s{sA}, 36")
        g("s_cbranch_scc1 L_A_exit")
        vRd = [144, 160]
        vRw = 97
        vRa = 59
        sRa = [sO, sO3, sC, sHB]
        g(f"""
        s_lshl_b32 s{sTMP}, s{sXCD}, 2
        s_add_u32 s{sTMP}, s{sTMP}, s{sW}
        s_lshl_b32 s{sTMP}, s{sTMP}, 10
        s_add_u32 s{sTMP}, s{sTMP}, {D3}
        s_add_u32 s{sBP}, s4, s{sTMP}
        s_addc_u32 s{sBP+1}, s5, 0
        """)
        def d3poll():
            for k in range(8):
                g(f"s_load_dword s{16+k}, s[{sBP}:{sBP+1}], {k*128} glc")
        if opt.get("h3_bell", 1): d3poll()
        g(f"""
        s_lshl_b32 s{sO2}, s{sW}, 12
        s_mul_i32 s{sO3}, s{sA}, {USTR}
        s_add_u32 s{sO2}, s{sO2}, s{sO3}
        s_add_u32 s{sO2}, s{sO2}, {H3}
        """)
        def rget(part):
            for u in range(4):
                if part: g(f"buffer_load_dwordx4 {v(vRd[1]+4*u,4)}, v{vA_l16}, {WS}, s{sO2} offen offset:{u*1024} sc1")
                else: g(f"buffer_load_dwordx4 {v(vRd[0]+4*u,4)}, v{vRa}, {WS}, s{sRa[u]} offen sc1")
        rget(1)
        g(f"""
        v_and_b32 v{t0}, 7, v{vL}
        v_lshlrev_b32 v{vRw}, 6, v{t0}
        v_lshrrev_b32 v{t1}, 3, v{vL}
        v_mul_u32_u24 v{vRa}, {OSTR}, v{t1}
        v_lshl_add_u32 v{vRa}, v{t0}, 4, v{vRa}
        v_lshrrev_b32 v{t0}, 5, v{vL}
        v_lshl_add_u32 v{vRw}, v{t0}, 4, v{vRw}
        v_bfe_u32 v{t0}, v{vL}, 4, 1
        v_lshl_add_u32 v{vRw}, v{t0}, 5, v{vRw}
        v_lshl_add_u32 v{vRw}, s{sW}, 2, v{vRw}
        s_mul_i32 s{sO}, s{sW}, {32*OSTR}
        s_lshl_b32 s{sTMP}, s{sA}, 7
        s_add_u32 s{sO}, s{sO}, s{sTMP}
        s_add_u32 s{sO}, s{sO}, {OB}
        s_add_u32 s{sO3}, s{sO}, {8*OSTR}
        s_add_u32 s{sC}, s{sO}, {16*OSTR}
        s_add_u32 s{sHB}, s{sO}, {24*OSTR}
        s_mov_b32 s{sCNT}, 0
        s_branch {"L_A_d3chk" if opt.get("h3_bell", 1) else "L_A_d3go"}
        """)
        g.lab("L_A_d3poll")
        d3poll()
        spin_guard(g, "L_A_d3go")
        g.lab("L_A_d3chk")
        g("s_waitcnt lgkmcnt(0)")
        for k in range(0, 8, 2):
            g(f"s_xor_b64 s[{16+k}:{17+k}], s[{16+k}:{17+k}], s[{sTT}:{sTT+1}]")
        g("s_or_b64 s[16:17], s[16:17], s[18:19]")
        g("s_or_b64 s[20:21], s[20:21], s[22:23]")
        g("s_or_b64 s[16:17], s[16:17], s[20:21]")
        g("s_cbranch_scc1 L_A_d3poll")
        g.lab("L_A_d3go")
        g(f"s_mov_b32 s{sCNT}, 0")
        if opt.get("h3_ack", 0): g("s_waitcnt vmcnt(4)")
        if opt.get("st14"): g.stamp(14)
        rget(0)
        def rsum(part, waits):
            R = vRd[part]
            for u in range(4):
                if waits[u] is not None: g(f"s_waitcnt vmcnt({waits[u]})")
                for d in range(4):
                    g(f"v_xor_b32 v{R+4*u+d}, s{sP4}, v{R+4*u+d}")
                if u == 0:
                    g(f"v_or3_b32 v{vEr}, v{R}, v{R+1}, v{R+2}")
                    g(f"v_or_b32 v{vEr}, v{vEr}, v{R+3}")
                else:
                    g(f"v_pk_add_f32 {v(vY,2)}, {v(R if u == 1 else vY,2)}, {v(R+4*u,2)}")
                    g(f"v_pk_add_f32 {v(vY+2,2)}, {v(R+2 if u == 1 else vY+2,2)}, {v(R+4*u+2,2)}")
                    g(f"v_or3_b32 v{vEr}, v{vEr}, v{R+4*u}, v{R+4*u+1}")
                    g(f"v_or3_b32 v{vEr}, v{vEr}, v{R+4*u+2}, v{R+4*u+3}")
            g(f"v_permlane32_swap_b32 v{vY}, v{vY+1}")
            g(f"v_permlane32_swap_b32 v{vY+2}, v{vY+3}")
            g(f"v_and_b32 v{vEr}, 15, v{vEr}")
            g(f"v_add_f32 v{vY}, v{vY}, v{vY+1}")
            g(f"v_add_f32 v{vY+2}, v{vY+2}, v{vY+3}")
            g(f"v_cmp_ne_u32 vcc, 0, v{vEr}")
            g(f"v_permlane16_swap_b32 v{vY}, v{vY+2}")
            g(f"v_add_f32 v{vY}, v{vY}, v{vY+2}")
        def rfin(part):
            g(f"v_add_f32_dpp v{vY}, v{vY}, v{vY} row_ror:8 row_mask:0xf bank_mask:0xf")
            g(f"ds_write_b32 v{vRw}, v{vY} offset:{A_RED + part*512}")
        sPend = sM3
        rsum(1, [4, None, None, None])
        g(f"s_mov_b64 s[{sPend}:{sPend+1}], vcc")
        rfin(1)
        g.lab("L_A_r0sum")
        rsum(0, [3, 2, 1, 0])
        g("s_cbranch_vccnz L_A_r0slow")
        g.lab("L_A_r0ok")
        rfin(0)
        g(f"s_cmp_lg_u64 s[{sPend}:{sPend+1}], 0")
        g("s_cbranch_scc1 L_A_r1slow")
        g.lab("L_A_r1ok")
        g.stamp(12)
        if opt.get("stamps"):
            g(f"s_lshl_b32 s{sCNT}, s{sCNT}, 8")
            g(f"s_or_b32 s100, s100, s{sCNT}")
        g("s_waitcnt lgkmcnt(0)")
        g("s_barrier")
        g(f"s_cmp_lg_u32 s{sW}, 0")
        g("s_cbranch_scc1 L_A_exit")
        R = 144
        g(f"""
        s_mov_b32 exec_hi, 0
        ds_read_b128 {v(R,4)}, v{vA_l16} offset:{A_RED}
        ds_read_b128 {v(R+4,4)}, v{vA_l16} offset:{A_RED+512}
        v_sub_f32 v{t0}, 1.0, v{vFB}
        s_waitcnt lgkmcnt(0)
        v_pk_add_f32 {v(R,2)}, {v(R,2)}, {v(R+2,2)}
        v_pk_add_f32 {v(R+4,2)}, {v(R+4,2)}, {v(R+6,2)}
        v_add_f32 v{R}, v{R}, v{R+1}
        v_add_f32 v{R+4}, v{R+4}, v{R+5}
        v_add_f32 v{R+4}, v{R+4}, v{vB2}
        v_mul_f32 v{R+4}, v{t0}, v{R+4}
        v_fma_f32 v{R}, v{vFB}, v{R}, v{R+4}
        v_cvt_pk_bf16_f32 v{R}, v{R}, v{R}
        buffer_store_short v{R}, v{vOA}, {OUT}, 0 offen
        s_cmp_lg_u32 s{sA}, 0
        s_cbranch_scc1 L_A_exit
        s_mov_b64 exec, 1
        buffer_store_dwordx2 {v(vTag,2)}, v{vA_l16}, {WS}, 0 offen offset:{EPOCH} sc1
        """)
        if opt.get("probe") is not None:
            i = opt["probe"]
            g.stamp(13)
            g("s_waitcnt lgkmcnt(0)")
            g(f"s_sub_u32 s{sO}, s{70+2*i}, s70")
            g(f"s_lshl_b32 s{sO}, s{sO}, 2")
            if opt.get("dcount"):
                g(f"""
                s_load_dwordx2 s[32:33], s[0:1], 104
                s_mov_b32 s34, 256
                s_mov_b32 s35, 0x00020000
                v_mov_b32 v7, {4*(opt["dcount"]-1)}
                s_waitcnt lgkmcnt(0)
                buffer_load_dword v6, v7, s[32:35], 0 offen sc1
                s_waitcnt vmcnt(0)
                v_readfirstlane_b32 s{sO}, v6
                s_mul_i32 s{sO}, s{sO}, 50
                """)
            if opt.get("resid") is not None:
                g(f"""
                s_load_dwordx2 s[32:33], s[0:1], 104
                s_mov_b32 s34, 256
                s_mov_b32 s35, 0x00020000
                v_mov_b32 v7, 0
                s_waitcnt lgkmcnt(0)
                buffer_load_dwordx4 v[8:11], v7, s[32:35], 0 offen sc1
                s_waitcnt vmcnt(0)
                v_add3_u32 v6, v8, v9, v10
                {"v_add_u32 v6, v6, v11" if not opt.get("rb3") else "s_nop 0"}
                s_nop 1
                v_readfirstlane_b32 s{sO}, v6
                s_mul_i32 s{sO}, s{sO}, 50
                """)
            if opt.get("clk"):
                g.lab("L_clk")
                g(f"s_memrealtime s[{sTMP}:{sTMP+1}]")
                g("s_waitcnt lgkmcnt(0)")
                g(f"s_sub_u32 s{sTMP}, s{sTMP}, s70")
                g(f"s_cmp_lt_u32 s{sTMP}, {opt['clk']}")
                g("s_cbranch_scc1 L_clk")
                g(f"s_memtime s[{sTMP}:{sTMP+1}]")
                g("s_waitcnt lgkmcnt(0)")
                g(f"s_sub_u32 s{sO}, s{sTMP}, s98")
                g(f"s_lshr_b32 s{sO}, s{sO}, 3")
            g(f"s_add_u32 s{sO}, s{sO}, 4000")
            g.lab("L_probe")
            g(f"s_memrealtime s[{sTMP}:{sTMP+1}]")
            g("s_waitcnt lgkmcnt(0)")
            g(f"s_sub_u32 s{sTMP}, s{sTMP}, s70")
            g(f"s_cmp_lt_u32 s{sTMP}, s{sO}")
            g("s_cbranch_scc1 L_probe")
            g("s_endpgm")
        g.lab("L_A_exit")
        g.stamp(13)
        dump_stamps(g, 16, 216)
        g("s_endpgm")
        if pB:
            g.lab("L_A_h0poll")
            spin_guard(g, "L_A_h0done")
            g("s_branch L_A_h0get")
        else:
            g.lab("L_A_h0poll")
            spin_guard(g, "L_A_h0done")
            g(f"s_cmp_lg_u32 s{sCNT}, 8")
            g("s_cbranch_scc1 L_A_h0ns")
            h0_wt()
            g.lab("L_A_h0ns")
            dual_next(g, sib[1:])
            h0loads()
            g("s_waitcnt vmcnt(0)")
            g("s_branch L_A_h0chk")
        g.lab("L_A_oslow")
        spin_guard(g, "L_A_ook")
        oget()
        g("s_waitcnt vmcnt(0)")
        g("s_branch L_A_ocomb")
        g.lab("L_A_hbpoll")
        spin_guard(g, "L_A_hbdone")
        g(f"s_cmp_lg_u32 s{sCNT}, 8")
        g("s_cbranch_scc1 L_A_hbns")
        hb_wt()
        g.lab("L_A_hbns")
        dual_next(g, [sO3])
        g("s_branch L_A_hbld")
        g.lab("L_A_r0slow")
        spin_guard(g, "L_A_r0ok")
        rget(0)
        g("s_branch L_A_r0sum")
        g.lab("L_A_r1slow")
        spin_guard(g, "L_A_r1ok")
        rget(1)
        rsum(1, [3, 2, 1, 0])
        g("s_cbranch_vccnz L_A_r1slow")
        rfin(1)
        g("s_branch L_A_r1ok")

class RoleB:
    def __init__(self, g, NT, vL, vN, vG):
        self.g, self.NT, self.vL, self.vN, self.vG = g, NT, vL, vN, vG

    def issue(self):
        g, vL = self.g, self.vL
        if g.opt.get("p1a_on") == "B":
            vN, vG, NT = self.vN, self.vG, self.NT
            srd_tail(g, 12, 576 * 8192)
            srd_tail(g, 8, 2304)
            g(f"""
            s_lshr_b32 s{sC}, s{sI}, 2
            s_lshl_b32 s{sC}, s{sC}, 3
            s_add_u32 s{sC}, s{sC}, s{sXCD}
            s_and_b32 s{sO}, s{sI}, 3
            v_mul_u32_u24 v5, {36*8192}, v{vG}
            v_lshl_add_u32 v5, v{vN}, 4, v5
            s_lshl_b32 s{sO2}, s{sO}, 4
            s_add_u32 s{sO2}, s{sO2}, s{sW}
            s_mul_i32 s{sO2}, s{sO2}, 9
            s_lshl_b32 s{sO3}, s{sO2}, 13
            s_lshl_b32 s{sTMP}, s{sC}, 8
            s_add_u32 s{sO3}, s{sO3}, s{sTMP}
            v_bfe_u32 v4, v{vL}, 3, 1
            v_mul_u32_u24 v4, 1152, v4
            v_mad_u32_u24 v4, v{vG}, 64, v4
            v_lshl_add_u32 v4, v{vG}, 3, v4
            s_lshr_b32 s{sO2}, s{sO2}, 1
            s_lshl_b32 s{sO2}, s{sO2}, 2
            s_waitcnt lgkmcnt(0)
            buffer_load_dwordx4 v[64:67], v4, {X}, s{sO2} offen
            buffer_load_dword v68, v4, {X}, s{sO2} offen offset:16
            """)
            for i in range(9):
                g(f"buffer_load_dwordx4 {A(4*i,4)}, v5, s[12:15], s{sO3} offen {NT}")
                if i != 8: g(f"s_addk_i32 s{sO3}, 0x2000")
            load_tag(g)
            g(f"""
            s_lshl_b32 s{sC}, s{sC}, 2
            s_add_u32 s{sC}, s{sC}, s{sO}
            s_lshl_b32 s{sC}, s{sC}, 10
            s_add_u32 s{sC}, s{sC}, {H0}
            """)
            return
        if g.opt.get("numa"):
            PFL = g.opt.get("pf_lines", 4)
            srd_tail(g, 28, 2 * 4096 * 1024)
            g(f"""
            s_and_b32 s{sMSG}, s{sXCD}, 1
            s_lshl_b32 s{sMSG}, s{sMSG}, 4
            s_and_b32 s{sO3}, s{sI}, 14
            s_add_u32 s{sMSG}, s{sMSG}, s{sO3}
            s_bfe_u32 s{sO3}, s{sXCD}, 0x10001
            s_add_u32 s{sMSG}, s{sMSG}, s{sO3}
            s_lshl_b32 s{sO3}, s{sMSG}, 18
            s_and_b32 s{sC}, s{sI}, 1
            s_lshl_b32 s{sC}, s{sC}, 8
            s_add_u32 s{sO3}, s{sO3}, s{sC}
            s_add_u32 s{sC}, s{sO3}, 0x2000
            v_lshlrev_b32 v4, 7, v{vL}
            {"" if g.opt.get("tlb") else "s_waitcnt lgkmcnt(0)"}
            s_cmp_lg_u32 s{sW}, 3
            s_cbranch_scc1 L_B_nopr
            {"s_memtime s[16:17]" if g.opt.get("dcount") else ""}
            {"s_waitcnt lgkmcnt(0)" if g.opt.get("dcount") else ""}
            s_mov_b64 exec, {(1 << g.opt.get("plines", 1)) - 1}
            {"v_lshlrev_b32 v8, 14, v1" if g.opt.get("plines", 1) > 1 else "v_mov_b32 v8, 0"}
            {f"buffer_load_dword v60, v8, s[28:31], s{sO3} offen offset:2048" if g.opt.get("pwarm") else ""}
            {f"buffer_load_dword v61, v8, s[28:31], s{sC} offen offset:2048" if g.opt.get("pwarm") else ""}
            {"s_waitcnt vmcnt(0) lgkmcnt(0)" if g.opt.get("pwarm") else ""}
            buffer_load_dword v60, v8, s[28:31], s{sO3} offen
            buffer_load_dword v61, v8, s[28:31], s{sC} offen
            s_mul_i32 s{sTMP}, s{sI}, {2*PFL*128}
            s_mov_b64 exec, {(1 << (2*PFL)) - 1}
            v_add_u32 v5, s{sTMP}, v4
            global_load_dword v63, v5, s[{sPC}:{sPC+1}]
            s_lshr_b32 s{sO}, s{sI}, 2
            s_lshl_b32 s{sO}, s{sO}, 3
            s_add_u32 s{sO}, s{sO}, s{sXCD}
            s_lshl_b32 s{sO}, s{sO}, 2
            s_and_b32 s{sO2}, s{sI}, 3
            s_add_u32 s{sO}, s{sO}, s{sO2}
            s_lshl_b32 s{sO2}, s{sO}, 11
            s_add_u32 s{sO2}, s{sO2}, {H0+LOC}
            s_mov_b64 exec, 0xffff
            buffer_load_dword v62, v4, {WS}, s{sO2} offen
            s_lshl_b32 s{sO}, s{sO}, 10
            s_add_u32 s{sO2}, s{sO}, {HB+LOC}
            s_mov_b64 exec, 0xff
            buffer_load_dword v62, v4, {WS}, s{sO2} offen
            s_add_u32 s{sO2}, s{sO}, {D3}
            buffer_load_dword v62, v4, {WS}, s{sO2} offen
            s_mov_b64 exec, -1
            s_waitcnt vmcnt(5)
            s_memtime s[34:35]
            s_waitcnt vmcnt(4)
            s_memtime s[38:39]
            s_waitcnt lgkmcnt(0)
            s_sub_u32 s38, s38, s34
            s_cmp_lt_u32 s38, {g.opt.get("gap", 100)}
            s_cselect_b32 s{sO3}, 1, 0
            v_mov_b32 v6, s{sO3}
            v_mov_b32 v7, {B_PHI}
            ds_write_b32 v7, v6
            s_waitcnt lgkmcnt(0)
            """)
            if g.opt.get("stamps"): g("s_mov_b32 s88, s38")
            if g.opt.get("dcount"):
                g(f"""
                s_load_dwordx2 s[20:21], s[0:1], 104
                s_mov_b32 s22, 256
                s_mov_b32 s23, 0x00020000
                s_sub_u32 s16, s34, s16
                s_lshr_b32 s16, s16, 8
                s_min_u32 s16, s16, 7
                s_lshl_b32 s16, s16, 2
                s_lshr_b32 s17, s38, 6
                s_min_u32 s17, s17, 6
                s_lshl_b32 s17, s17, 2
                s_add_u32 s17, s17, 32
                v_mov_b32 v6, 1
                v_mov_b32 v7, 0
                s_waitcnt lgkmcnt(0)
                s_mov_b64 exec, 1
                buffer_atomic_add v6, v7, s[20:23], s16 offen sc1
                buffer_atomic_add v6, v7, s[20:23], s17 offen sc1
                s_mov_b64 exec, -1
                """)
            g.lab("L_B_nopr")
            return
        g(f"""
        s_lshr_b32 s{sO}, s{sI}, 2
        s_lshl_b32 s{sO}, s{sO}, 3
        s_add_u32 s{sO}, s{sO}, s{sXCD}
        s_lshl_b32 s{sO}, s{sO}, 2
        s_and_b32 s{sO2}, s{sI}, 3
        s_add_u32 s{sO}, s{sO}, s{sO2}
        s_lshl_b32 s{sO2}, s{sO}, 11
        s_add_u32 s{sO2}, s{sO2}, {H0+LOC}
        s_lshl_b32 s{sO}, s{sO}, 10
        s_add_u32 s{sO}, s{sO}, {HB+LOC}
        s_cmp_eq_u32 s{sW}, 1
        s_cselect_b32 s{sO}, s{sO}, s{sO2}
        s_lshl_b32 s{sO2}, s{sXCD}, 4
        s_add_u32 s{sO2}, s{sO2}, s{sI}
        s_lshl_b32 s{sO2}, s{sO2}, 10
        s_add_u32 s{sO2}, s{sO2}, {D3}
        s_cmp_eq_u32 s{sW}, 2
        s_cselect_b32 s{sO}, s{sO2}, s{sO}
        s_cselect_b32 s{sTMP}, 0xff, -1
        s_and_b32 s{sTMP}, s{sTMP}, 0xffff
        s_mov_b32 s{sTMP+1}, 0
        v_lshlrev_b32 v4, 7, v{vL}
        """)
        if not g.opt.get("tlb"): g("s_waitcnt lgkmcnt(0)")
        load_tag(g)
        g(f"""
        {"s_cmp_lg_u32" if g.opt.get("split") else "s_cmp_gt_u32"} s{sW}, 2
        s_cbranch_scc1 L_B_head
        s_mov_b64 exec, s[{sTMP}:{sTMP+1}]
        buffer_load_dword v62, v4, {WS}, s{sO} offen
        s_mov_b64 exec, -1
        """)

    def rest(self):
        g, NT, vL, vN, vG = self.g, self.NT, self.vL, self.vN, self.vG
        opt = g.opt
        CKV, W2, B1, W1 = "s[28:31]", "s[20:23]", "s[24:27]", "s[16:19]"
        t0, t1, t2, t3 = 4, 5, 6, 7
        vL16 = 12
        vOa = 13
        vH3, vH3x = 14, 15
        vB1 = 22
        vSB = 24
        vQBs = 28
        vPVb = 16
        vTag = 36
        vML = 34
        vMXw, vMXr = 38, 39
        vD2a = 40
        vPw = 41
        vP2 = 42
        vT20, vT21, vK20, vK21 = 52, 53, 54, 55
        vHg, vHw = 56, 57
        vHe, vHo, vHke, vHko = 58, 59, 60, 61
        vQd = 8
        aS, aP = 0, 128
        sOo = 61
        sH3m, sH3l = 62, 63
        sD2, sGot = 59, 58
        sBP, sTT = 34, sPC
        sQg = 33
        sPat, sMk = 32, 36
        srd_tail(g, 28, 2 * 4096 * 1024)
        vW1, vW2 = 168, 212
        vXr = 64
        vSel = 88
        vXA = 96
        vW1a, vHs = 164, 165
        sRho, sBlk, sR0 = 38, 39, 56
        numa = opt.get("numa", 0)
        sCk = 37
        if numa:
            assert not opt.get("ckv_x", 1)
            sPhi, sDP = 38, 18
            def ckv_base():
                g(f"""
                s_lshl_b32 s{sCk}, s{sMSG}, 2
                s_add_u32 s{sCk}, s{sCk}, s{sW}
                s_lshl_b32 s{sCk}, s{sCk}, 3
                s_add_u32 s{sCk}, s{sCk}, s{sPhi}
                s_lshl_b32 s{sCk}, s{sCk}, 13
                s_lshl_b32 m0, s{sW}, 15
                s_add_u32 m0, m0, {B_CKV}
                """)
            def phi_get():
                g(f"""
                v_mov_b32 v{t0}, {B_PHI}
                s_barrier
                ds_read_b32 v{t1}, v{t0}
                s_waitcnt lgkmcnt(0)
                v_readfirstlane_b32 s{sPhi}, v{t1}
                """)
                if opt.get("numa_force") is not None: g(f"s_xor_b32 s{sPhi}, s{sPhi}, {opt['numa_force']}")
                ckv_base()
            g(f"s_and_b32 s{sB}, s{sXCD}, 1")
            g(f"v_lshlrev_b32 v{vL16}, 4, v{vL}")
            phi_get()
            load_tag(g)
        else:
            g(f"""
            s_and_b32 s{sB}, s{sXCD}, 1
            s_lshr_b32 s{sMSG}, s{sI}, 1
            s_lshl_b32 s{sMSG}, s{sMSG}, 2
            s_lshr_b32 s{sO}, s{sXCD}, 1
            s_add_u32 s{sMSG}, s{sMSG}, s{sO}
            s_lshl_b32 s{sO}, s{sB}, 5
            s_add_u32 s{sMSG}, s{sMSG}, s{sO}
            v_lshlrev_b32 v{vL16}, 4, v{vL}
            """)
            sCk = 37
            g(f"""
            s_lshl_b32 s{sCk}, s{sMSG}, 2
            s_add_u32 s{sCk}, s{sCk}, s{sW}
            s_lshl_b32 s{sCk}, s{sCk}, 15
            s_lshl_b32 m0, s{sW}, 15
            s_add_u32 m0, m0, {B_CKV}
            """)
            if opt.get("ckv_x", 1):
                g(f"s_and_b32 s{sGot}, s{sI}, 1")
                g(f"s_lshl_b32 s{sGot}, s{sGot}, 14")
                g(f"s_add_u32 s{sCk}, s{sCk}, s{sGot}")
                g(f"s_lshl_b32 s{sGot}, s{sGot}, 1")
        def ckv_stream(k0, k1):
            thr = opt.get("ckv_thr")
            for k in range(k0, k1):
                f = f16sw(k & 15)
                tmp = t0 + (k & 1)
                g(f"v_xor_b32 v{tmp}, {f*16}, v{vL16}")
                if thr is not None: g(f"s_waitcnt vmcnt({thr-1})")
                g(f"buffer_load_dwordx4 v{tmp}, {CKV}, s{sCk} offen offset:{(k%4)*1024} {NT} lds")
                if k % 4 == 3:
                    g(f"s_addk_i32 s{sCk}, {0x3000 if (numa and k % 8 == 7) else 0x1000}")
                    g(f"s_add_u32 m0, m0, 0x1000")
                if k == 15 and opt.get("ckv_x", 1): g(f"s_sub_u32 s{sCk}, s{sCk}, s{sGot}")
        c1_, c2_ = opt.get("ckv_a", 0), opt.get("ckv_b", 0)
        g.stamp(13)
        ckv_stream(0, c1_)
        g.l.append(";;SPLIT")
        pB = opt.get("p1a_on") == "B"
        if pB:
            vX, vSl, vF, vQp = 64, 72, 80, 116
            selectors(g, vSl, vL, t0, t1, t2)
            g(f"s_and_b32 s{sO}, s{sW}, 1")
            g(f"s_lshl_b32 s{sO}, s{sO}, 4")
            g(f"""
            s_cmp_lg_u32 s{sW}, 2
            s_cbranch_scc1 L_B_nt
            s_lshl_b32 s{sO2}, s{sXCD}, 4
            s_add_u32 s{sO2}, s{sO2}, s{sI}
            s_lshl_b32 s{sO2}, s{sO2}, 10
            s_add_u32 s{sO2}, s{sO2}, {D3}
            v_lshlrev_b32 v{t0}, 7, v{vL}
            s_mov_b64 exec, 0xff
            buffer_load_dword v62, v{t0}, {WS}, s{sO2} offen
            s_mov_b64 exec, -1
            """)
            g.lab("L_B_nt")
            g(f"s_waitcnt vmcnt({9+c1_})")
            for k in range(5):
                g(f"v_alignbit_b32 v{vX+k}, v{vX+k+1}, v{vX+k}, s{sO}")
            for i in range(9):
                for d in range(4):
                    g(f"v_perm_b32 v{vF+4*i+d}, v{vX+(i>>1)}, v{vX+(i>>1)}, v{vSl+4*(i&1)+d}")
            cm = opt.get("ckv_m", 0)
            c0 = c1_
            for i in range(9):
                g(f"s_waitcnt vmcnt({8-i+c1_})")
                g(f"{MF} {v(vQp,4)}, {v(vF+4*i,4)}, {A(4*i,4)}, {'0' if i == 0 else v(vQp,4)}")
                if i >= 9 - cm:
                    ckv_stream(c1_, c1_ + 1); c1_ += 1
            g(f"s_cmp_eq_u32 s{sW}, 0")
            g("s_cbranch_scc1 L_B_w0a")
            g(f"v_lshl_add_u32 v{t2}, s{sW}, 10, v{vL16}")
            g(f"ds_write_b128 v{t2}, {v(vQp,4)} offset:{B_PB}")
            g("s_waitcnt lgkmcnt(0)")
            g("s_barrier")
            g("s_branch L_B_w0b")
            g.lab("L_B_w0a")
            g("s_waitcnt lgkmcnt(0)")
            g(f"s_add_u32 s{sO}, s{sT}, {K0}")
            g(f"s_and_b32 s{sO}, s{sO}, 15")
            g("s_barrier")
            for k in range(3):
                g(f"ds_read_b128 {v(vF+4*k,4)}, v{vL16} offset:{B_PB+(k+1)*1024}")
            g("s_waitcnt lgkmcnt(1)")
            g(f"v_pk_add_f32 {v(vQp,2)}, {v(vQp,2)}, {v(vF,2)}")
            g(f"v_pk_add_f32 {v(vQp+2,2)}, {v(vQp+2,2)}, {v(vF+2,2)}")
            g("s_waitcnt lgkmcnt(0)")
            g(f"v_pk_add_f32 {v(vF+4,2)}, {v(vF+4,2)}, {v(vF+8,2)}")
            g(f"v_pk_add_f32 {v(vF+6,2)}, {v(vF+6,2)}, {v(vF+10,2)}")
            g(f"v_pk_add_f32 {v(vQp,2)}, {v(vQp,2)}, {v(vF+4,2)}")
            g(f"v_pk_add_f32 {v(vQp+2,2)}, {v(vQp+2,2)}, {v(vF+6,2)}")
            for r in range(4):
                g(f"v_and_or_b32 v{vQp+r}, v{vQp+r}, -16, s{sO}")
            g(f"buffer_store_dwordx4 {v(vQp,4)}, v{vL16}, {WS}, s{sC} offen sc1")
            g.lab("L_B_w0b")
            g.stamp(9)
            cq = opt.get("ckv_q", 0)
            ckv_stream(c1_, c1_ + cq); c1_ += cq
        srd(g, 20, 9, 4608 * 1152)
        srd(g, 24, 8, 9216)
        if opt.get("w1_on") == "B":
            srd(g, 16, 7, 576 * 9216)
            srd_tail(g, 8, 2304)
        g(f"""
        s_and_b32 s{sHG}, s{sI}, 1
        s_lshl_b32 s{sU2}, s{sXCD}, 4
        s_add_u32 s{sU2}, s{sU2}, s{sI}
        s_mov_b32 s{sPR}, s{sU2}
        s_mov_b32 s{sPOI}, {POISON}
        v_mul_u32_u24 v{vOa}, {16*OSTR}, v{vG}
        v_lshl_add_u32 v{vOa}, v{vN}, 4, v{vOa}
        """)
        def msg_addr():
            g(f"""
        s_lshl_b32 s{sOo}, s{sHG}, 6
        s_add_u32 s{sOo}, s{sOo}, s{sW}
        s_mul_i32 s{sOo}, s{sOo}, {OSTR}
        s_lshl_b32 s{sO}, s{sMSG}, 8
        s_add_u32 s{sOo}, s{sOo}, s{sO}
        s_add_u32 s{sOo}, s{sOo}, {OB}
        s_lshl_b32 s{sD2}, s{sHG}, 6
        s_add_u32 s{sD2}, s{sD2}, s{sMSG}
        s_lshl_b32 s{sD2}, s{sD2}, 8
        s_add_u32 s{sD2}, s{sD2}, {D2}
            """)
        if not numa: msg_addr()
        h3_addr(g, vH3, vH3x, vL, vN, vG, t0)
        h3_soffs(g, sH3m, sH3l)
        def fsw(dst, src, tmp):
            g(f"v_lshrrev_b32 v{tmp}, 3, v{src}")
            g(f"v_and_b32 v{dst}, 7, v{src}")
            g(f"v_lshl_add_u32 v{dst}, v{dst}, 1, v{tmp}")
            g(f"v_lshlrev_b32 v{tmp}, 3, v{tmp}")
            g(f"v_xor_b32 v{dst}, v{dst}, v{tmp}")
        fsw(t2, vN, t3)
        g(f"""
        v_xor_b32 v{t2}, v{t2}, v{vG}
        v_lshlrev_b32 v{t2}, 4, v{t2}
        v_lshl_add_u32 v{t2}, v{vN}, 10, v{t2}
        s_lshl_b32 s{sO}, s{sW}, 15
        s_add_u32 s{sO}, s{sO}, {B_CKV}
        """)
        assert B_QF == 0
        for q in range(4):
            g(f"v_xor_b32 v{vQBs+q}, {q*64}, v{t2}")
            g(f"v_add_u32 v{vSB+q}, s{sO}, v{vQBs+q}")
        g(f"v_lshrrev_b32 v{t0}, 2, v{vL}")
        fsw(t2, t0, t3)
        g(f"""
        v_bfe_u32 v{t3}, v{vL}, 1, 1
        v_xor_b32 v{t2}, v{t2}, v{t3}
        v_lshlrev_b32 v{t1}, 10, v{t0}
        v_lshl_add_u32 v{t1}, v{t2}, 4, v{t1}
        v_and_b32 v{t3}, 1, v{vL}
        v_lshl_add_u32 v{t1}, v{t3}, 3, v{t1}
        v_lshl_add_u32 v{t1}, s{sW}, 8, v{t1}
        """)
        for k in range(4):
            g(f"s_add_u32 s{sO}, s{sW}, {k}")
            g(f"s_and_b32 s{sO}, s{sO}, 3")
            g(f"v_lshl_add_u32 v{[vPw,20,21,23][k]}, s{sO}, 10, v{vL16}")
            g(f"s_lshl_b32 s{sO}, s{sO}, 15")
            g(f"s_add_u32 s{sO}, s{sO}, {B_CKV}")
            g(f"v_add_u32 v{vPVb+k}, s{sO}, v{t1}")
        for k in range(opt.get("pv_pre", 4), 4):
            for ct in range(8):
                g(f"v_xor_b32 v{168+8*k+ct}, {ct<<5}, v{vPVb+k}")
        g(f"""
        v_lshlrev_b32 v{vMXr}, 4, v{vN}
        v_lshl_add_u32 v{vMXw}, v{vG}, 2, v{vMXr}
        v_lshl_add_u32 v{vMXw}, s{sW}, 8, v{vMXw}
        s_lshl_b32 s{sQg}, s{sB}, 1
        s_add_u32 s{sQg}, s{sQg}, s{sHG}
        s_lshl_b32 s{sQg}, s{sQg}, 2
        s_add_u32 s{sQg}, s{sQg}, s{sW}
        s_lshl_b32 s{sQg}, s{sQg}, 12
        s_add_u32 s{sQg}, s{sQg}, {QB}
        s_lshr_b32 s{sTMP}, s{sW}, 1
        s_xor_b32 s{sTMP+1}, s{sW}, s{sTMP}
        s_and_b32 s{sTMP+1}, s{sTMP+1}, 1
        s_lshl_b32 s{sTMP+1}, s{sTMP+1}, 3
        s_add_u32 s{sTMP}, s{sTMP}, s{sTMP+1}
        s_lshl_b32 s{sTMP}, s{sTMP}, 4
        v_xor_b32 v{vQd}, s{sTMP}, v{vL16}
        v_xor_b32 v{vQd+1}, 32, v{vQd}
        v_xor_b32 v{vQd+2}, 64, v{vQd}
        v_xor_b32 v{vQd+3}, 0x60, v{vQd}
        v_mov_b32 v{t0}, 0
        v_lshlrev_b32 v{t1}, 2, v{vL}
        s_mov_b32 exec_hi, 0
        ds_write_b32 v{t1}, v{t0} offset:{B_ZERO}
        s_mov_b64 exec, -1
        s_lshl_b32 s{sTMP}, s{sXCD}, 3
        s_lshl_b32 s{sTMP+1}, s{sHG}, 2
        s_add_u32 s{sTMP}, s{sTMP}, s{sTMP+1}
        s_add_u32 s{sTMP}, s{sTMP}, s{sW}
        s_lshl_b32 s{sTMP}, s{sTMP}, 9
        s_add_u32 s{sTMP}, s{sTMP}, {D1}
        s_add_u32 s{sBP}, s4, s{sTMP}
        s_addc_u32 s{sBP+1}, s5, 0
        """)
        if not numa: g.stamp(14)
        ckv_stream(c1_, c1_ + c2_)
        for i in range(10):
            unit_pattern(g, vP2 + i, vL, sW if i == 9 else None, i, 1152, t0, t1)
        tr_pair_bases(g, vT20, vT21, vK20, vK21, vL, B_W2, t0, t1, t2)
        g(f"""
        v_bfe_u32 v{t0}, v{vL}, 2, 1
        v_lshlrev_b32 v{t0}, 7, v{t0}
        v_add_u32 v{t0}, {B_HL}, v{t0}
        v_lshl_add_u32 v{t1}, v{vG}, 3, v{t0}
        v_add_u32 v{t0}, 64, v{t0}
        v_mov_b32 v{t2}, {B_ZERO}
        v_cmp_gt_u32 vcc, 8, v{vN}
        v_cndmask_b32 v{vHe}, v{t2}, v{t1}, vcc
        v_cndmask_b32 v{vHo}, v{t1}, v{t2}, vcc
        v_lshrrev_b32 v{t1}, 3, v{vL}
        v_cmp_eq_u32 vcc, 0, v{t1}
        v_cndmask_b32 v{vHke}, v{t2}, v{t0}, vcc
        v_cmp_eq_u32 vcc, 1, v{t1}
        v_cndmask_b32 v{vHko}, v{t2}, v{t0}, vcc
        """)
        finish_tag(g)
        g(f"""
        v_mov_b32 v{vTag}, s{sT}
        v_mov_b32 v{vTag+1}, s{sT+1}
        s_bitcmp1_b32 s{sT}, 0
        s_cselect_b32 s{sPat}, 1, 0x10000
        v_mov_b32 v{vML+1}, s{sPat}
        s_mov_b32 s{sMk}, 0xfffefffe
        s_mov_b32 s{sTT}, s{sT}
        s_mov_b32 s{sTT+1}, s{sT}
        """)
        vPat = 33
        g(f"v_mov_b32 v{vPat}, s{sPat}")
        w1b = opt.get('w1_on') == 'B'
        if w1b:
            g(f"""
            s_lshl_b32 s{sO}, s{sU2}, 2
            s_add_u32 s{sO}, s{sO}, s{sW}
            s_mul_i32 s{sRho}, s{sO}, 1821
            s_lshr_b32 s{sRho}, s{sRho}, 16
            s_mul_i32 s{sTMP}, s{sRho}, 36
            s_sub_u32 s{sBlk}, s{sO}, s{sTMP}
            s_min_u32 s{sTMP}, s{sRho}, 4
            s_mul_i32 s{sR0}, s{sRho}, 10
            s_add_u32 s{sR0}, s{sR0}, s{sTMP}
            s_lshl_b32 s{sR0}, s{sR0}, 2
            v_bfe_u32 v{t0}, v{vL}, 3, 1
            v_mul_u32_u24 v{t0}, 1152, v{t0}
            s_lshl_b32 s{sO}, s{sR0}, 1
            """)
            assert all((i * 1821) >> 16 == i // 36 for i in range(512))
            for k in range(5):
                g(f"buffer_load_dwordx4 {v(vXr+4*k,4)}, v{t0}, {X}, s{sO} offen offset:{16*k}")
            g(f"buffer_load_dwordx2 {v(vXr+20,2)}, v{t0}, {X}, s{sO} offen offset:80")
            g(f"""
            v_mul_u32_u24 v{vW1a}, 9216, v{vG}
            v_lshl_add_u32 v{vW1a}, v{vN}, 4, v{vW1a}
            v_lshrrev_b32 v{t0}, 5, v{vL}
            v_mul_u32_u24 v{vHs}, 18432, v{t0}
            v_and_b32 v{t0}, 31, v{vL}
            v_lshl_add_u32 v{vHs}, v{t0}, 4, v{vHs}
            v_mul_u32_u24 v{t0}, 0x0202, v{vG}
            v_add_u32 v{t0}, 0x0100, v{t0}
            v_and_b32 v{t1}, 1, v{vL}
            v_lshlrev_b32 v{t1}, 4, v{t1}
            v_lshlrev_b32 v{t0}, v{t1}, v{t0}
            v_mov_b32 v{t2}, 0x0c0c0000
            v_lshrrev_b32 v{t2}, v{t1}, v{t2}
            v_or_b32 v{t0}, v{t0}, v{t2}
            v_bfe_u32 v{t1}, v{vL}, 1, 2
            v_mov_b32 v{t2}, 0x0c0c0c0c
            """)
            for d in range(4):
                g(f"v_cmp_eq_u32 vcc, {d}, v{t1}")
                g(f"v_cndmask_b32 v{vSel+d}, v{t2}, v{t0}, vcc")
        g(f"""
        v_lshrrev_b32 v{t0}, 5, v{vL}
        v_bfe_u32 v{t1}, v{vL}, 4, 1
        v_lshl_add_u32 v{t0}, v{t1}, 1, v{t0}
        v_lshl_add_u32 v{t0}, v{vN}, 2, v{t0}
        v_lshlrev_b32 v{t0}, 1, v{t0}
        s_mul_i32 s{sO}, s{sU2}, 72
        buffer_load_ushort v{vB1}, v{t0}, {B1}, s{sO} offen
        v_lshl_add_u32 v{vHw}, s{sW}, 7, v{t0}
        s_mul_i32 s{sO}, s{sU2}, 9
        v_add_u32 v{t0}, s{sO}, v{vN}
        v_and_b32 v{t1}, 1, v{t0}
        v_lshlrev_b32 v{t1}, 8, v{t1}
        v_bfe_u32 v{t2}, v{t0}, 1, 4
        v_lshl_add_u32 v{t1}, v{t2}, 4, v{t1}
        v_lshrrev_b32 v{t2}, 5, v{t0}
        v_lshl_add_u32 v{t1}, v{t2}, 9, v{t1}
        v_mul_u32_u24 v{vHg}, 36864, v{vG}
        v_add_u32 v{vHg}, v{vHg}, v{t1}
        """)
        for k in range(4):
            g(f"s_load_dwordx4 s[{[8,12,24,52][k]}:{[8,12,24,52][k]+3}], s[{sBP}:{sBP+1}], {k*128} glc")
        assert c1_ + c2_ <= 16
        if opt.get("b_sleep"): g(f"s_sleep {opt['b_sleep']}")
        if numa:
            g(f"""
            s_lshl_b32 s{sO}, s{sMSG}, 1
            s_add_u32 s{sO}, s{sO}, s{sHG}
            s_lshl_b32 s{sO}, s{sO}, 7
            s_add_u32 s{sO}, s{sO}, {DP}
            s_add_u32 s{sDP}, s4, s{sO}
            s_addc_u32 s{sDP+1}, s5, 0
            s_lshr_b32 s{sTMP}, s{sXCD}, 2
            s_or_b32 s{sTMP}, s{sTMP}, s{sW}
            s_cmp_lg_u32 s{sTMP}, 0
            s_cbranch_scc1 L_B_noann
            s_xor_b32 s{sTMP}, s{sT+1}, s{sPhi}
            v_mov_b32 v{t0}, s{sT}
            v_mov_b32 v{t1}, s{sTMP}
            v_lshlrev_b32 v{t2}, 3, v{vL}
            s_mov_b64 exec, 0xffff
            buffer_store_dwordx2 {v(t0,2)}, v{t2}, {WS}, s{sO} offen sc1
            s_mov_b64 exec, -1
            """)
            g.lab("L_B_noann")
        g.stamp(8)
        ckv_stream(c1_ + c2_, 32)
        if numa:
            g(f"""
            s_cmp_lt_u32 s{sXCD}, 4
            s_cbranch_scc1 L_B_phok
            s_mov_b32 s{sCNT}, 0
            """)
            g.lab("L_B_phpoll")
            g(f"s_load_dwordx2 s[16:17], s[{sDP}:{sDP+1}], 0 glc")
            spin_guard(g, "L_B_phok")
            g(f"""
            s_waitcnt lgkmcnt(0)
            s_xor_b64 s[16:17], s[16:17], s[{sT}:{sT+1}]
            s_lshr_b32 s{sTMP}, s17, 1
            s_or_b32 s{sTMP}, s{sTMP}, s16
            s_cbranch_scc1 L_B_phpoll
            s_cmp_lg_u32 s17, s{sPhi}
            s_cbranch_scc1 L_B_phok
            s_branch L_B_refetch
            """)
            g.lab("L_B_phok")
            g(f"s_lshl_b32 s{sMSG}, s{sMSG}, 1")
            g(f"s_add_u32 s{sMSG}, s{sMSG}, s{sPhi}")
            msg_addr()
            if opt.get("stamps"): g(f"s_mov_b32 s98, s{sPhi}")
        NW1 = 0 if "w1" in opt.get("skip", "") else 11
        w1pos = opt.get("w1_pos", 0)
        def w1_stream():
            if "w1" in opt.get("skip", ""): return
            g(f"s_mul_i32 s{sO2}, s{sR0}, 9216")
            g(f"s_lshl_b32 s{sO3}, s{sBlk}, 8")
            g(f"s_add_u32 s{sO2}, s{sO2}, s{sO3}")
            for i in range(11):
                g(f"buffer_load_dwordx4 {v(vW1+4*i,4)}, v{vW1a}, {W1}, s{sO2} offen {NT}")
                if i < 10: g(f"s_add_u32 s{sO2}, s{sO2}, {4*9216}")
                if i == 9:
                    g(f"s_cmp_ge_u32 s{sRho}, 4")
                    g(f"s_cselect_b32 s{sO2}, {576*9216}, s{sO2}")
        def w1_gemv(store=True):
            vH = 140
            for i in range(10):
                g(f"{MF} {v(vH,4)}, {v(vXA+4*i,4)}, {v(vW1+4*i,4)}, {'0' if i == 0 else v(vH,4)}")
            g(f"s_cmp_ge_u32 s{sRho}, 4")
            g("s_cbranch_scc1 L_B_w1s")
            g(f"{MF} {v(vH,4)}, {v(vXA+40,4)}, {v(vW1+40,4)}, {v(vH,4)}")
            g.lab("L_B_w1s")
            g(f"""
            s_mul_i32 s{sO}, s{sRho}, 36864
            s_lshl_b32 s{sO3}, s{sBlk}, 9
            s_add_u32 s{sO}, s{sO}, s{sO3}
            s_add_u32 s{sO}, s{sO}, {HH}
            s_and_b32 s{sO3}, s{sT}, 15
            """)
            for r in range(4):
                g(f"v_and_or_b32 v{vH+r}, v{vH+r}, -16, s{sO3}")
            g(f"s_mov_b32 s{sR0}, s{sO}")
        def w2_stream():
            g(f"s_mul_i32 s{sO2}, s{sU2}, {36*1152}")
            unit_load(g, W2, vP2, None, sO2, 1152, "w2", NT, vdst=vW2, w0extra=False)
        NW1 = 0
        if w1b:
            assert opt.get("w2_pos", 0) != 2 and opt.get("pv_pre", 4) == 4
            w1_stream(); NW1 = 0 if "w1" in opt.get("skip", "") else 11
        if opt.get("w2_pos", 0) == 2:
            w2_stream(); NW1 = 0 if "w2" in opt.get("skip", "") else 11
        g.stamp(1)
        g(f"s_lshl_b32 m0, s{sW}, 12")
        sD = [8, 12, 24, 52]
        def d1poll():
            for k in range(4):
                g(f"s_load_dwordx4 s[{sD[k]}:{sD[k]+3}], s[{sBP}:{sBP+1}], {k*128} glc")
        def d1chk():
            for k in range(4):
                g(f"s_xor_b64 s[{sD[k]}:{sD[k]+1}], s[{sD[k]}:{sD[k]+1}], s[{sTT}:{sTT+1}]")
                g(f"s_xor_b64 s[{sD[k]+2}:{sD[k]+3}], s[{sD[k]+2}:{sD[k]+3}], s[{sTT}:{sTT+1}]")
                g(f"s_or_b64 s[{sD[k]}:{sD[k]+1}], s[{sD[k]}:{sD[k]+1}], s[{sD[k]+2}:{sD[k]+3}]")
            g("s_or_b64 s[8:9], s[8:9], s[12:13]")
            g("s_or_b64 s[24:25], s[24:25], s[52:53]")
            g("s_or_b64 s[8:9], s[8:9], s[24:25]")
        def qdma():
            for k in range(4):
                g(f"buffer_load_dwordx4 v{vQd+k}, {WS}, s{sQg} offen offset:{k*1024} sc1 lds")
        def look(tag):
            if tag[0] not in opt.get("looks", "abcd"): return
            g(f"s_cmp_lg_u32 s{sGot}, 0")
            g(f"s_cbranch_scc1 L_B_lk{tag}")
            g("s_waitcnt lgkmcnt(0)")
            d1chk()
            g(f"s_cbranch_scc1 L_B_lp{tag}")
            g.stamp(3)
            qdma()
            g(f"s_mov_b32 s{sGot}, 1")
            g(f"s_branch L_B_lk{tag}")
            g.lab(f"L_B_lp{tag}")
            d1poll()
            g.lab(f"L_B_lk{tag}")
        def pvgroup(k):
            for ct in range(8):
                tmp = t0 + (ct & 1)
                g(f"v_xor_b32 v{tmp}, {ct<<5}, v{vPVb+k}")
                for hi in range(2):
                    g(f"ds_read_b64_tr_b16 {A(aP+(ct*4+k)*4+2*hi,2)}, v{tmp} offset:{hi*16384}")
        npre = opt.get("pv_pre", 4)
        vPA = 168
        def pvrd(k, ct, hi):
            g(f"ds_read_b64_tr_b16 {A(aP+(ct*4+k)*4+2*hi,2)}, v{vPA+8*k+ct} offset:{hi*16384}")
        qd = opt.get("q_direct", 0)
        if qd:
            vQr = 140
            def qld():
                for k in range(4):
                    g(f"buffer_load_dwordx4 {v(vQr+4*k,4)}, v{vL16}, {WS}, s{sQg} offen offset:{k*1024} sc1")
            def qchk():
                g(f"v_cmp_eq_u32 vcc, s{sPOI}, v{vQr}")
                for k in range(1, 4):
                    g(f"v_cmp_eq_u32 s[{sM1}:{sM1+1}], s{sPOI}, v{vQr+4*k}")
                    g(f"s_or_b64 vcc, vcc, s[{sM1}:{sM1+1}]")
            g("s_waitcnt lgkmcnt(0)")
            g(f"s_mov_b32 s{sCNT}, 0")
            g.lab("L_B_rdy")
            d1poll()
            spin_guard(g, "L_B_rdy2")
            g("s_waitcnt lgkmcnt(0)")
            d1chk()
            g("s_cbranch_scc1 L_B_rdy")
            g.lab("L_B_rdy2")
            g(f"s_lshl_b32 s{sTMP}, s{sW}, 12")
            for k in range(4): g(f"v_add_u32 v{vQd+k}, s{sTMP}, v{vQd+k}")
            g(f"s_waitcnt vmcnt({16+NW1})")
            for ks in range(16):
                g(f"ds_read_b128 {A(aS+ks*4,4)}, v{vSB+(ks&3)} offset:{(ks>>2)*256}")
            g(f"s_waitcnt vmcnt({opt.get('q_at', 0)+NW1})")
            g.stamp(3)
            qld()
            g(f"s_waitcnt vmcnt({4+NW1})")
            g.stamp(2)
            for ks in range(16):
                g(f"ds_read_b128 {A(aS+64+ks*4,4)}, v{vSB+(ks&3)} offset:{16384+(ks>>2)*256}")
            g("s_barrier")
            g(f"s_mov_b32 s{sGot}, 0")
            half = opt.get("q_mid", 2)
            for k in range(npre):
                if k == half:
                    g("s_waitcnt vmcnt(0)")
                    qchk()
                    g("s_cbranch_scc0 L_B_qm")
                    qld()
                    g.lab("L_B_qm")
                pvgroup(k)
            g(f"s_mov_b32 s{sCNT}, 0")
            g.lab("L_B_qchk")
            g("s_waitcnt vmcnt(0)")
            qchk()
            g("s_cbranch_scc1 L_B_qagain")
            g.lab("L_B_qgood")
            if opt.get("stamps"): g(f"s_mov_b32 s100, s{sCNT}")
            for k in range(4):
                g(f"ds_write_b128 v{vQd+k}, {v(vQr+4*k,4)} offset:{k*1024}")
        else:
            g("s_waitcnt lgkmcnt(0)")
            if opt.get("looks", "abcd"): d1poll()
            g(f"s_mov_b32 s{sGot}, 0")
            g(f"s_waitcnt vmcnt({16+NW1})")
            for ks in range(16):
                g(f"ds_read_b128 {A(aS+ks*4,4)}, v{vSB+(ks&3)} offset:{(ks>>2)*256}")
            if w1b:
                for i in range(11):
                    for d in range(4):
                        g(f"v_perm_b32 v{vXA+4*i+d}, v{vXr+2*i+1}, v{vXr+2*i}, v{vSel+d}")
            for z in range(opt.get("b_looks", 2)): look(f"a{z}")
            g(f"s_cmp_lg_u32 s{sGot}, 0")
            g("s_cbranch_scc1 L_B_cw1")
            g(f"s_waitcnt vmcnt({NW1})")
            g.lab("L_B_cw1")
            g(f"s_waitcnt vmcnt({4+NW1})")
            g.stamp(2)
            look("b")
            for ks in range(16):
                g(f"ds_read_b128 {A(aS+64+ks*4,4)}, v{vSB+(ks&3)} offset:{16384+(ks>>2)*256}")
            g("s_barrier")
            def pvgroup(k):
                for ct in range(8):
                    tmp = t0 + (ct & 1)
                    g(f"v_xor_b32 v{tmp}, {ct<<5}, v{vPVb+k}")
                    for hi in range(2):
                        g(f"ds_read_b64_tr_b16 {A(aP+(ct*4+k)*4+2*hi,2)}, v{tmp} offset:{hi*16384}")
            npre = opt.get("pv_pre", 4)
            vPA = 168
            def pvrd(k, ct, hi):
                g(f"ds_read_b64_tr_b16 {A(aP+(ct*4+k)*4+2*hi,2)}, v{vPA+8*k+ct} offset:{hi*16384}")
            for k in range(npre):
                look(f"c{k}")
                pvgroup(k)
            if w1b:
                look("d")
                g(f"s_cmp_lg_u32 s{sGot}, 0")
                g("s_cbranch_scc1 L_B_cw2")
                g("s_waitcnt vmcnt(0)")
                g.lab("L_B_cw2")
                g("s_waitcnt vmcnt(4)")
                w1_gemv(False)
            g(f"s_mov_b32 s{sCNT}, 0")
            g(f"s_cmp_lg_u32 s{sGot}, 0")
            g("s_cbranch_scc1 L_B_qwait")
            if opt.get("looks", "abcd"): g("s_branch L_B_d1chk")
            g.lab("L_B_d1poll")
            d1poll()
            spin_guard(g, "L_B_qget0")
            g.lab("L_B_d1chk")
            g("s_waitcnt lgkmcnt(0)")
            d1chk()
            g("s_cbranch_scc1 L_B_d1poll")
            g.stamp(3)
            g.lab("L_B_qget0")
            g(f"s_mov_b32 s{sCNT}, 0")
            qdma()
            g.lab("L_B_qwait")
        nb = 0
        if w1b:
            g(f"buffer_store_dwordx4 {v(140,4)}, v{vHs}, {WS}, s{sR0} offen sc1")
            nb = 1
        if opt.get("w2_pos", 0) == 3:
            g(f"s_mul_i32 s{sO2}, s{sU2}, {36*1152}")
            g(f"s_mul_i32 s{sO}, s{sW}, {8*1152}")
            g(f"s_add_u32 s{sO}, s{sO}, s{sO2}")
            g(f"s_add_u32 s{sO2}, s{sO2}, {32*1152}")
        if opt.get("w2_pos", 0) == 0:
            w2_stream(); nb += 0 if "w2" in opt.get("skip", "") else 11
        g(f"s_waitcnt vmcnt({nb}) lgkmcnt(0)")
        g.lab("L_B_qbar")
        g("s_barrier")
        g.stamp(4)
        def ebell():
            g(f"""
            s_cmp_lg_u32 s{sW}, 2
            s_cbranch_scc1 L_B_noeb
            s_sub_u32 s{sTMP}, s{sD2}, {D2}
            s_lshr_b32 s{sTMP}, s{sTMP}, 1
            s_add_u32 s{sTMP}, s{sTMP}, {DE2 if opt.get("e_rep") else DE}
            v_lshlrev_b32 v{t3}, {14 if opt.get("e_rep") else 4}, v{vL}
            s_mov_b64 exec, 0xff
            buffer_store_dwordx4 {v(vML,4)}, v{t3}, {WS}, s{sTMP} offen sc1
            s_mov_b64 exec, -1
            """)
            g.lab("L_B_noeb")
        vQ = 64
        vS = 156
        PRE = 4 if npre < 4 else 6
        late = [(k, ct, hi) for k in range(npre, 4) for ct in range(8) for hi in range(2)]
        per = 2 if late else 0
        seq = []
        for ks in range(PRE):
            g(f"ds_read_b128 {v(vQ+4*ks,4)}, v{vQBs+(ks&3)} offset:{(ks>>2)*256}"); seq.append(("q", ks))
        for ks in range(16):
            if opt.get("e_pos") == ks: ebell()
            if ks + PRE < 16:
                k2 = ks + PRE
                g(f"ds_read_b128 {v(vQ+4*k2,4)}, v{vQBs+(k2&3)} offset:{(k2>>2)*256}"); seq.append(("q", k2))
            for _ in range(per if ks + PRE < 16 else per + 1):
                if late:
                    pvrd(*late.pop(0)); seq.append(("p",))
            g(f"s_waitcnt lgkmcnt({min(15, len(seq) - 1 - seq.index(('q', ks)))})")
            for kt in range(2):
                g(f"{MF} {v(vS+4*kt,4)}, {A(aS+(kt*16+ks)*4,4)}, {v(vQ+4*ks,4)}, {'0' if ks == 0 else v(vS+4*kt,4)}")
            if opt.get("w2_pos", 0) == 3 and 4 <= ks < 15:
                i = ks - 4
                if i == 10: g("s_mov_b32 exec_hi, 0")
                g(f"buffer_load_dwordx4 {v(vW2+4*i,4)}, v{vP2+(i if i < 10 else 4)}, {W2}, s{sO if i < 9 else sO2} offen {NT}")
                if i == 10: g("s_mov_b64 exec, -1")
        CS = math.log2(math.e) * 128 ** -0.5
        g(f"s_mov_b32 s{sC}, {hex(fbits(CS))}")
        g(f"""
        {"" if qd else f"v_cmp_u_f32 vcc, v{vS}, v{vS}"}
        v_max3_f32 v{t0}, v{vS}, v{vS+1}, v{vS+2}
        v_max3_f32 v{t1}, v{vS+3}, v{vS+4}, v{vS+5}
        v_max3_f32 v{t0}, v{t0}, v{vS+6}, v{vS+7}
        v_max_f32 v{t0}, v{t0}, v{t1}
        {"" if qd else "s_cbranch_vccnz L_B_qslow"}
        """)
        g.lab("L_B_qok")
        if opt.get("stamps") and not qd: g(f"s_mov_b32 s100, s{sCNT}")
        g(f"""
        ds_write_b32 v{vMXw}, v{t0} offset:{B_MX}
        s_waitcnt lgkmcnt(0)
        s_barrier
        """)
        g.stamp(5)
        vM = 64
        for q in range(4):
            g(f"ds_read_b128 {v(vM+4*q,4)}, v{vMXr} offset:{B_MX+q*256}")
        g(f"""
        s_waitcnt lgkmcnt(2)
        v_max3_f32 v{vM}, v{vM}, v{vM+1}, v{vM+2}
        v_max3_f32 v{vM+3}, v{vM+3}, v{vM+4}, v{vM+5}
        v_max3_f32 v{vM}, v{vM}, v{vM+6}, v{vM+7}
        s_waitcnt lgkmcnt(0)
        v_max3_f32 v{vM+8}, v{vM+8}, v{vM+9}, v{vM+10}
        v_max3_f32 v{vM+11}, v{vM+11}, v{vM+12}, v{vM+13}
        v_max3_f32 v{vM+8}, v{vM+8}, v{vM+14}, v{vM+15}
        v_max3_f32 v{vM}, v{vM}, v{vM+3}, v{vM+11}
        v_max_f32 v{vM}, v{vM}, v{vM+8}
        v_mul_f32 v{vML}, s{sC}, v{vM}
        """)
        n1 = min(len(late), 14)
        for _ in range(n1): pvrd(*late.pop(0))
        def stat(wave, off, tag):
            g(f"s_cmp_lg_u32 s{sW}, {wave}")
            g(f"s_cbranch_scc1 L_B_nost{tag}")
            if off: g(f"s_add_u32 s{sD2}, s{sD2}, {off}")
            g("s_mov_b64 exec, 0xffff")
            g(f"buffer_store_dwordx4 {v(vML,4)}, v{vL16}, {WS}, s{sD2} offen sc1")
            g("s_mov_b64 exec, -1")
            g.lab(f"L_B_nost{tag}")
        if opt.get("m_early"): stat(1, 0, "m")
        for k in range(8):
            g(f"v_fma_f32 v{vS+k}, v{vS+k}, s{sC}, -v{vML}")
        for k in range(8):
            g(f"v_exp_f32 v{vS+k}, v{vS+k}")
        vPf = 80
        vO = 96
        for k in range(4):
            g(f"v_cvt_pk_bf16_f32 v{vPf+k}, v{vS+2*k}, v{vS+2*k+1}")
        g(f"ds_write_b128 v{vPw}, {v(vPf,4)} offset:{B_PB}")
        g(f"""
        v_pk_add_f32 {v(vS,2)}, {v(vS,2)}, {v(vS+2,2)}
        v_pk_add_f32 {v(vS+4,2)}, {v(vS+4,2)}, {v(vS+6,2)}
        v_pk_add_f32 {v(vS,2)}, {v(vS,2)}, {v(vS+4,2)}
        v_add_f32 v{vS}, v{vS}, v{vS+1}
        ds_write_b32 v{vMXw}, v{vS} offset:{B_LS}
        """)
        def pv(k, cts=range(8)):
            for ct in cts:
                g(f"{MF} {v(vO+4*ct,4)}, {v(vPf+4*k,4)}, {A(aP+(ct*4+k)*4,4)}, {'0' if k == 0 else v(vO+4*ct,4)}")
        pv(0, range(2))
        if not opt.get("m_early"): stat(1, 0, "m")
        g("s_waitcnt lgkmcnt(0)")
        g("s_barrier")
        g.stamp(6)
        for k in range(1, 4):
            g(f"ds_read_b128 {v(vPf+4*k,4)}, v{[0,20,21,23][k]} offset:{B_PB}")
        for q in range(4):
            g(f"ds_read_b128 {v(vM+4*q,4)}, v{vMXr} offset:{B_LS+q*256}")
        nl = len(late)
        assert all(k == 3 for k, _, _ in late)
        for ct in range(2, 8):
            pv(0, [ct])
            for _ in range(3):
                if late: pvrd(*late.pop(0))
        assert not late
        g(f"s_waitcnt lgkmcnt({min(15, 6 + nl)})")
        adds = [f"v_pk_add_f32 {v(vM,2)}, {v(vM,2)}, {v(vM+2,2)}", f"v_pk_add_f32 {v(vM+4,2)}, {v(vM+4,2)}, {v(vM+6,2)}",
                f"v_pk_add_f32 {v(vM+8,2)}, {v(vM+8,2)}, {v(vM+10,2)}", f"v_pk_add_f32 {v(vM+12,2)}, {v(vM+12,2)}, {v(vM+14,2)}",
                f"v_pk_add_f32 {v(vM,2)}, {v(vM,2)}, {v(vM+4,2)}", f"v_pk_add_f32 {v(vM+8,2)}, {v(vM+8,2)}, {v(vM+12,2)}",
                f"v_pk_add_f32 {v(vM,2)}, {v(vM,2)}, {v(vM+8,2)}", f"v_add_f32 v{vML}, v{vM}, v{vM+1}"]
        pv(1, range(4))
        g("s_waitcnt lgkmcnt(0)")
        for ct in range(4, 8):
            pv(1, [ct])
            g(adds[2 * (ct - 4)]); g(adds[2 * (ct - 4) + 1])
        dbpos = opt.get("d2_pos", 2)
        if dbpos == 2: stat(0, DL - D2, "l")
        vOo = 64
        def cv(k, rs=range(4)):
            for r in rs:
                g(f"v_cvt_pk_bf16_f32 v{vOo+4*r+k}, v{vO+8*k+r}, v{vO+8*k+4+r}")
        def tg(k, rs=range(4)):
            for r in rs:
                g(f"v_and_or_b32 v{vOo+4*r+k}, v{vOo+4*r+k}, s{sMk}, v{vPat}")
        for p in range(4):
            pv(2, [2 * p, 2 * p + 1])
            if p >= 2: cv(p - 2, (0, 1))
            pv(3, [2 * p])
            if p >= 2: cv(p - 2, (2, 3))
            pv(3, [2 * p + 1])
            if p >= 2: tg(p - 2)
            if dbpos == 3 and p == 1: stat(0, DL - D2, "l")
        cv(2); tg(2)
        for r in range(4):
            cv(3, [r]); tg(3, [r])
            g(f"s_add_u32 s{sO}, s{sOo}, {4*r*OSTR}")
            g(f"buffer_store_dwordx4 {v(vOo+4*r,4)}, v{vOa}, {WS}, s{sO} offen sc1")
        if dbpos == 4: stat(0, DL - D2, "l")
        g.stamp(7)
        vHr = 80
        vEr = 96
        g(f"""
        s_and_b32 s{sTMP}, s{sW}, 1
        s_mul_i32 s{sO}, s{sTMP}, 18432
        s_add_u32 s{sO}, s{sO}, {HH}
        s_add_u32 s{sO2}, s{sO}, {4*36864}
        s_add_u32 s{sO3}, s{sO}, {8*36864}
        s_add_u32 s{sC}, s{sO}, {12*36864}
        s_and_b32 s{sPat}, s{sT}, 15
        s_mov_b32 s{sCNT}, 0
        """)
        for k in range(4): g(f"v_mov_b32 v{vHr+12+k}, s{sPat}")
        def hget():
            g("s_mov_b32 exec_lo, 0x01ff01ff")
            g("s_mov_b32 exec_hi, 0x01ff01ff")
            for u, so in enumerate((sO, sO2, sO3, sC)):
                if u == 3: g("s_mov_b32 exec_hi, 0")
                g(f"buffer_load_dwordx4 {v(vHr+4*u,4)}, v{vHg}, {WS}, s{so} offen sc1")
            g("s_mov_b64 exec, -1")
        g(f"s_cmp_gt_u32 s{sW}, 1")
        g("s_cbranch_scc1 L_B_noh1")
        hget()
        g.lab("L_B_noh1")
        if npre < 4: g("s_barrier")
        if opt.get("w2_pos", 0) == 1:
            if opt.get("w2_wait"): g("s_waitcnt vmcnt(0)")
            if opt.get("b_sleep2"): g(f"s_sleep {opt['b_sleep2']}")
            g(f"s_mul_i32 s{sR0}, s{sU2}, {36*1152}")
            g(f"s_mov_b32 s{sRho}, s{sO}")
            unit_load(g, W2, vP2, B_W2, sR0, 1152, "w2", NT, thr=opt.get("w2_thr"))
            g(f"s_mov_b32 s{sO}, s{sRho}")
        else:
            g(f"s_mul_i32 s{sTMP}, s{sW}, 9216")
            g(f"v_add_u32 v{t2}, s{sTMP}, v{vL16}")
            g("s_waitcnt vmcnt(4)")
            for i in range(9):
                g(f"ds_write_b128 v{t2}, {v(vW2+4*i,4)} offset:{B_W2+i*1024}")
            g(f"ds_write_b128 v{vPw}, {v(vW2+36,4)} offset:{B_W2+36864}")
            g(f"ds_write_b128 v{vL16}, {v(vW2+40,4)} offset:{B_W2+36864+4096}")
        g(f"s_cmp_gt_u32 s{sW}, 1")
        g("s_cbranch_scc1 L_B_hbar")
        g.lab("L_B_hchk")
        g("s_mov_b32 exec_lo, 0x01ff01ff")
        g("s_mov_b32 exec_hi, 0x01ff01ff")
        g("s_waitcnt vmcnt(0)")
        g.stamp(10)
        vHx = 100
        for k in range(16):
            g(f"v_xor_b32 v{vHx+k}, s{sPat}, v{vHr+k}")
        g(f"v_or3_b32 v{vEr}, v{vHx}, v{vHx+1}, v{vHx+2}")
        for k in range(3, 15, 2):
            g(f"v_or3_b32 v{vEr}, v{vEr}, v{vHx+k}, v{vHx+k+1}")
        g(f"v_or_b32 v{vEr}, v{vEr}, v{vHx+15}")
        g(f"v_and_b32 v{vEr}, 15, v{vEr}")
        g(f"v_cmp_ne_u32 vcc, 0, v{vEr}")
        g("s_cbranch_vccnz L_B_hslow")
        g.lab("L_B_hok")
        c1 = -2.0 * math.log2(math.e) * math.sqrt(2.0 / math.pi)
        g(f"""
        v_pk_add_f32 {v(vHx,2)}, {v(vHx,2)}, {v(vHx+4,2)}
        v_pk_add_f32 {v(vHx+2,2)}, {v(vHx+2,2)}, {v(vHx+6,2)}
        v_pk_add_f32 {v(vHx+8,2)}, {v(vHx+8,2)}, {v(vHx+12,2)}
        v_pk_add_f32 {v(vHx+10,2)}, {v(vHx+10,2)}, {v(vHx+14,2)}
        v_pk_add_f32 {v(vHx,2)}, {v(vHx,2)}, {v(vHx+8,2)}
        v_pk_add_f32 {v(vHx+2,2)}, {v(vHx+2,2)}, {v(vHx+10,2)}
        v_lshlrev_b32 v{vB1}, 16, v{vB1}
        v_mov_b32 v{t1}, {hex(fbits(c1))}
        v_permlane32_swap_b32 v{vHx}, v{vHx+1}
        v_permlane32_swap_b32 v{vHx+2}, v{vHx+3}
        v_add_f32 v{vHx}, v{vHx}, v{vHx+1}
        v_add_f32 v{vHx+2}, v{vHx+2}, v{vHx+3}
        s_mov_b32 s{sC}, {hex(fbits(c1*0.044715))}
        v_permlane16_swap_b32 v{vHx}, v{vHx+2}
        v_add_f32 v{vHx}, v{vHx}, v{vHx+2}
        v_add_f32 v{vHx}, v{vHx}, v{vB1}
        v_mul_f32 v{t0}, v{vHx}, v{vHx}
        v_fma_f32 v{t0}, v{t0}, s{sC}, v{t1}
        v_mul_f32 v{t0}, v{t0}, v{vHx}
        v_exp_f32 v{t0}, v{t0}
        v_add_f32 v{t0}, 1.0, v{t0}
        v_rcp_f32 v{t0}, v{t0}
        v_mul_f32 v{t0}, v{t0}, v{vHx}
        v_cvt_pk_bf16_f32 v{t0}, v{t0}, v{t0}
        ds_write_b16 v{vHw}, v{t0} offset:{B_HL}
        s_mov_b64 exec, -1
        """)
        g.lab("L_B_hbar")
        g("s_waitcnt vmcnt(0) lgkmcnt(0)" if opt.get("w2_pos", 0) == 1 else "s_waitcnt lgkmcnt(0)")
        g("s_barrier")
        g.stamp(11)
        aW = 0
        vHA = 64
        vY = 96
        g(f"ds_read2_b64 {v(vHA,4)}, v{vHe} offset0:0 offset1:4")
        g(f"ds_read2_b64 {v(vHA+6,4)}, v{vHo} offset0:0 offset1:4")
        def w2reads(t):
            for x in range(2):
                b = aW + (t * 2 + x) * 6
                g(f"ds_read_b64_tr_b16 {A(b,2)}, v{vT21 if x else vT20} offset:{t*256}")
                g(f"ds_read_b64_tr_b16 {A(b+2,2)}, v{vT21 if x else vT20} offset:{16*1152+t*256}")
        def w2rk(t):
            for x in range(2):
                b = aW + (t * 2 + x) * 6
                g(f"ds_read_b64_tr_b16 {A(b+4,2)}, v{vK21 if x else vK20} offset:{t*256}")
        def w2mf(t):
            for x in range(2):
                b = aW + (t * 2 + x) * 6
                g(f"{MF} {v(vY+4*t,4)}, {v(vHA+6*x,4)}, {A(b,4)}, {'0' if x == 0 else v(vY+4*t,4)}")
        def w2mf16(t):
            for x in range(2):
                b = aW + (t * 2 + x) * 6
                g(f"{MF16} {v(vY+4*t,4)}, {v(vHA+6*x+4,2)}, {A(b+4,2)}, {v(vY+4*t,4)}")
        w2reads(0); w2reads(1); w2reads(2)
        g("s_waitcnt lgkmcnt(8)")
        w2mf(0)
        w2reads(3)
        g("s_waitcnt lgkmcnt(8)")
        w2mf(1)
        w2reads(4)
        g("s_waitcnt lgkmcnt(8)")
        w2mf(2)
        g(f"ds_read_b64 {v(vHA+4,2)}, v{vHke}")
        g(f"ds_read_b64 {v(vHA+10,2)}, v{vHko}")
        w2rk(0); w2rk(1)
        g("s_waitcnt lgkmcnt(10)")
        w2mf(3)
        w2rk(2); w2rk(3); w2rk(4)
        g("s_waitcnt lgkmcnt(12)")
        w2mf(4)
        for t in range(5):
            g(f"s_waitcnt lgkmcnt({2*(4-t)})")
            w2mf16(t)
        for t in range(4):
            g(f"v_and_or_b32 v{vHA+t}, v{vY+4*t}, -16, s{sPat}")
        g(f"buffer_store_dwordx4 {v(vHA,4)}, v{vH3}, {WS}, s{sH3m} offen sc1")
        g(f"s_cmp_gt_u32 s{sW}, 1")
        g("s_cbranch_scc1 L_B_no5b")
        g(f"v_and_or_b32 v{vY+16}, v{vY+16}, -16, s{sPat}")
        g(f"buffer_store_dword v{vY+16}, v{vH3x}, {WS}, s{sH3l} offen sc1")
        g.lab("L_B_no5b")
        g.stamp(12)
        dump_stamps(g, 16, 216)
        g("s_endpgm")
        if numa:
            g.lab("L_B_refetch")
            if opt.get("dcount"):
                g(f"""
                s_load_dwordx2 s[12:13], s[0:1], 104
                s_mov_b32 s14, 256
                s_mov_b32 s15, 0x00020000
                v_mov_b32 v6, 1
                v_mov_b32 v7, 60
                s_waitcnt lgkmcnt(0)
                s_mov_b64 exec, 1
                buffer_atomic_add v6, v7, s[12:15], 0 offen sc1
                s_mov_b64 exec, -1
                """)
            g(f"s_xor_b32 s{sPhi}, s{sPhi}, 1")
            g("s_waitcnt vmcnt(0)")
            ckv_base()
            ckv_stream(0, 32)
            g("s_branch L_B_phok")
        g.lab("L_B_hslow")
        spin_guard(g, "L_B_hok")
        hget()
        g("s_branch L_B_hchk")
        if qd:
            g.lab("L_B_qagain")
            spin_guard(g, "L_B_qgood")
            qld()
            g("s_branch L_B_qchk")
            return
        g.lab("L_B_qslow")
        spin_guard(g, "L_B_qok")
        g(f"s_mov_b64 s[{sM1}:{sM1+1}], 0")
        for ks in range(16):
            g(f"v_cmp_eq_u32 vcc, s{sPOI}, v{vQ+4*ks}")
            g(f"s_or_b64 s[{sM1}:{sM1+1}], s[{sM1}:{sM1+1}], vcc")
        g("s_cbranch_scc0 L_B_qok")
        g("s_barrier")
        qdma()
        g("s_waitcnt vmcnt(0)")
        g("s_branch L_B_qbar")

if __name__ == "__main__":
    opt = eval("dict(%s)" % (sys.argv[2] if len(sys.argv) > 2 else ""))
    open(sys.argv[1], "w").write(gen(opt))
```

```python
import sys, os, math, struct
sys.path.insert(0, os.path.dirname(os.path.abspath(__file__)))
from hazard import pad

KNAME = "gated_mix__compressed_kv_cla__dense_activation_gelu__decode_kernel"

WS_BYTES = 256 << 20
EPOCH = 0x0
DP = 0x2000
D1 = 0x8000
D3 = 0x10000
DH = 0x18000
DE = 0x1C000
D2 = 0x20000
DL = 0x28000
DE2 = 0x40000
QB = 0x80000
HB = 0xA0000
H0 = 0xC0000
LOC = 0x100000
H3 = 0x200000
USTR = 16384 + 256
HH = 0x340000
OB = 0x480000
OSTR = 16384 + 256
STAMP = 0x1000000
POISON = 0xFFA5FFA5
K0, K1 = 0x9E3779B9, 0x7F4A7C15
SPIN = 1 << 20

A_WUV = 0
A_QL = 32768
A_ZERO = 33280
A_WT = 33536
A_CTXC = 33792
A_RED = 34816
A_WO = 35840
A_W1 = A_WO + 36864
A_QP = A_WO
B_QF = 0
B_PB = 16384
B_MX = 20480
B_HL = 21504
B_ZERO = 21760
B_PHI = 21888
B_LS = 22528
B_CKV = 23552
B_W2 = B_CKV
LDS_BYTES = 154624

def f16sw(i):
    return (((i & 7) ^ ((i >> 3) << 2)) << 1) | (i >> 3)

def fbits(x):
    return struct.unpack("<I", struct.pack("<f", x))[0]

class G:
    def __init__(self, opt):
        self.l = []
        self.opt = opt
        self.nst = 0
        self.inA = False
    def __call__(self, s):
        for x in s.strip("\n").split("\n"):
            x = x.strip()
            if x: self.l.append("    " + x)
    def lab(self, n): self.l.append(n + ":")
    def c(self, s): self.l.append("    ; " + s)
    def stamp(self, i):
        if self.opt.get("stamps") and not (self.opt.get("fst") and 5 <= i <= 12 and self.inA):
            self(f"s_memrealtime s[{70+2*i}:{71+2*i}]")
    def fstamp(self, i):
        if self.opt.get("stamps") and self.opt.get("fst"):
            self(f"s_memrealtime s[{70+2*i}:{71+2*i}]")

def v(a, n=1): return f"v{a}" if n == 1 else f"v[{a}:{a+n-1}]"
def A(a, n=1): return f"a{a}" if n == 1 else f"a[{a}:{a+n-1}]"
def S(a, n=1): return f"s{a}" if n == 1 else f"s[{a}:{a+n-1}]"

sW = 3
WS, X = "s[4:7]", "s[8:11]"
sT = 40
sXCD, sI = 42, 43
sA, sH, sJ = 44, 45, 46
sHG, sB, sMSG, sU2 = 44, 45, 46, 47
sO, sO2, sO3, sCNT = 48, 49, 50, 51
sM1, sM2, sM3, sM4 = 52, 54, 56, 58
sPR = 60
sG0, sG1 = 61, 62
sTMP = 64
sPC = 66
sPOI = 68
sC = 69

def srd(g, base, slot, nbytes):
    g(f"s_load_dwordx2 s[{base}:{base+1}], s[0:1], {slot*8}")
    g(f"s_mov_b32 s{base+2}, {nbytes}")
    g(f"s_mov_b32 s{base+3}, 0x00020000")

def dump_stamps(g, n, tmpv):
    if not g.opt.get("stamps") or g.opt.get("probe") is not None: return
    g("s_waitcnt lgkmcnt(0)")
    g("s_mov_b64 exec, 1")
    g(f"s_lshl_b32 s{sO}, s2, 2")
    g(f"s_add_u32 s{sO}, s{sO}, s{sW}")
    g(f"s_lshl_b32 s{sO}, s{sO}, 6")
    g(f"s_add_u32 s{sO}, s{sO}, {STAMP}")
    g(f"v_mov_b32 v{tmpv+4}, 0")
    for q in range(0, 16, 4):
        for k in range(4):
            g(f"v_mov_b32 v{tmpv+k}, s{70+2*(q+k)}")
        g(f"buffer_store_dwordx4 {v(tmpv,4)}, v{tmpv+4}, {WS}, s{sO} offen offset:{q*4}")
        g("s_nop 1")
    g("s_waitcnt vmcnt(0)")

def dual_next(g, regs):
    if not g.opt.get("dual", 1): return
    g(f"s_and_b32 s{sTMP}, s{sCNT}, 14")
    g(f"s_cmp_eq_u32 s{sTMP}, 14")
    g(f"s_cselect_b32 s{sTMP}, {LOC}, 0")
    for r in regs:
        g(f"s_xor_b32 s{r}, s{r}, s{sTMP}")

def spin_guard(g, out):
    g(f"s_add_u32 s{sCNT}, s{sCNT}, 1")
    g(f"s_cmp_gt_u32 s{sCNT}, {g.opt.get('spin', SPIN)}")
    g(f"s_cbranch_scc1 {out}")

def selectors(g, vSel, vL, t0, t1, t2):
    g(f"v_and_b32 v{t0}, 1, v{vL}")
    g(f"v_cmp_eq_u32 vcc, 1, v{t0}")
    g(f"v_mov_b32 v{t1}, 0x0c0c0100")
    g(f"v_mov_b32 v{t2}, 0x01000c0c")
    g(f"v_cndmask_b32 v{vSel+3}, v{t1}, v{t2}, vcc")
    g(f"v_mov_b32 v{t1}, 0x0c0c0302")
    g(f"v_mov_b32 v{t2}, 0x03020c0c")
    g(f"v_cndmask_b32 v{vSel+7}, v{t1}, v{t2}, vcc")
    g(f"v_bfe_u32 v{t0}, v{vL}, 1, 2")
    g(f"v_mov_b32 v{t1}, 0x0c0c0c0c")
    for d in range(4):
        g(f"v_cmp_eq_u32 vcc, {d}, v{t0}")
        g(f"v_cndmask_b32 v{vSel+d}, v{t1}, v{vSel+3}, vcc")
        g(f"v_cndmask_b32 v{vSel+4+d}, v{t1}, v{vSel+7}, vcc")

def unit_pattern(g, dst, vL, i_expr_sgpr, i_const, pitch, t0, t1):
    if i_expr_sgpr is not None:
        g(f"v_lshl_add_u32 v{t0}, s{i_expr_sgpr}, 6, v{vL}")
    else:
        g(f"v_add_u32 v{t0}, {64*i_const}, v{vL}")
    g(f"v_mul_u32_u24 v{t1}, 911, v{t0}")
    g(f"v_lshrrev_b32 v{t1}, 16, v{t1}")
    g(f"v_and_b32 v{dst}, 6, v{t1}")
    g(f"v_xor_b32 v{dst}, v{dst}, v{t0}")
    g(f"v_lshlrev_b32 v{dst}, 4, v{dst}")
    if pitch != 1152:
        g(f"v_mul_u32_u24 v{t1}, {pitch-1152}, v{t1}")
        g(f"v_add_u32 v{dst}, v{dst}, v{t1}")
assert all((911 * u) >> 16 == u // 72 for u in range(640))

def h3_addr(g, vH3, vH3x, vL, vN, vG, t0):
    g(f"v_lshrrev_b32 v{t0}, 3, v{vL}")
    g(f"v_mul_u32_u24 v{vH3}, {USTR}, v{t0}")
    g(f"v_and_b32 v{t0}, 7, v{vL}")
    g(f"v_lshl_add_u32 v{vH3}, v{t0}, 4, v{vH3}")
    g(f"v_lshrrev_b32 v{t0}, 5, v{vL}")
    g(f"v_mul_u32_u24 v{vH3x}, {USTR}, v{t0}")
    g(f"v_and_b32 v{t0}, 31, v{vL}")
    g(f"v_lshl_add_u32 v{vH3x}, v{t0}, 2, v{vH3x}")

def h3_soffs(g, s_main, s_left):
    g(f"s_lshl_b32 s{s_left}, s{sPR}, 7")
    g(f"s_add_u32 s{s_left}, s{s_left}, {H3}")
    g(f"s_mul_i32 s{s_main}, s{sW}, {8*USTR}")
    g(f"s_add_u32 s{s_main}, s{s_main}, s{s_left}")
    g(f"s_mul_i32 s{sTMP}, s{sW}, {2*USTR}")
    g(f"s_add_u32 s{s_left}, s{s_left}, s{sTMP}")
    g(f"s_add_u32 s{s_left}, s{s_left}, {32*USTR}")

def tr_pair_bases(g, vB0, vB1, vK0, vK1, vL, base, t0, t1, t2):
    g(f"v_lshrrev_b32 v{t0}, 2, v{vL}")
    g(f"v_bfe_u32 v{t1}, v{vL}, 1, 1")
    g(f"v_lshl_add_u32 v{t1}, s{sW}, 2, v{t1}")
    g(f"v_and_b32 v{t2}, 6, v{t0}")
    g(f"v_xor_b32 v{t2}, v{t2}, v{t1}")
    g(f"v_lshlrev_b32 v{t2}, 4, v{t2}")
    g(f"v_mul_u32_u24 v{vB0}, 1152, v{t0}")
    g(f"v_add_u32 v{vB0}, v{vB0}, v{t2}")
    g(f"v_and_b32 v{t2}, 1, v{vL}")
    g(f"v_lshlrev_b32 v{t2}, 3, v{t2}")
    g(f"v_add_u32 v{vB0}, v{vB0}, v{t2}")
    g(f"v_xor_b32 v{vB1}, 32, v{vB0}")
    if base:
        g(f"v_add_u32 v{vB0}, {base}, v{vB0}")
        g(f"v_add_u32 v{vB1}, {base}, v{vB1}")
    if vK0 is not None:
        g(f"v_and_b32 v{t0}, 3, v{t0}")
        g(f"v_and_b32 v{vK0}, 2, v{t0}")
        g(f"v_xor_b32 v{vK0}, v{vK0}, v{t1}")
        g(f"v_lshlrev_b32 v{vK0}, 4, v{vK0}")
        g(f"v_mul_u32_u24 v{t0}, 1152, v{t0}")
        g(f"v_add3_u32 v{vK0}, v{vK0}, v{t0}, v{t2}")
        g(f"v_xor_b32 v{vK1}, 32, v{vK0}")
        g(f"v_add_u32 v{vK0}, {base + 32*1152}, v{vK0}")
        g(f"v_add_u32 v{vK1}, {base + 32*1152}, v{vK1}")

MF = "v_mfma_f32_16x16x32_bf16"
MF16 = "v_mfma_f32_16x16x16_bf16"

def role_is_A(wg, opt):
    if opt.get("split"):
        import numpy as np
        return np.isin(wg & 7, list(opt["split"]))
    return wg < 128

def gen(opt):
    g = G(opt)
    NT = opt.get("nt", "")
    PFL = opt.get("pf_lines", 4)
    CODE_BYTES = 32 * 128 * PFL
    vL, vN, vG = 1, 2, 3
    g.stamp(0)
    if opt.get("clk"): g("s_memtime s[98:99]")
    g(f"s_getpc_b64 s[{sPC}:{sPC+1}]")
    g("s_cmp_ge_u32 s2, 256")
    g("s_cbranch_scc1 L_end")
    g(f"""
    s_load_dwordx2 s[4:5], s[0:1], 112
    s_load_dwordx2 s[8:9], s[0:1], 0
    s_load_dwordx2 s[28:29], s[0:1], 8
    s_load_dwordx2 s[12:13], s[0:1], 16
    s_load_dwordx2 s[16:17], s[0:1], 24
    v_lshrrev_b32 v4, 6, v0
    v_and_b32 v{vL}, 63, v0
    s_and_b32 s{sXCD}, s2, 7
    v_readfirstlane_b32 s{sW}, v4
    s_bfe_u32 s{sI}, s2, 0x40003
    v_and_b32 v{vN}, 15, v0
    v_bfe_u32 v{vG}, v0, 4, 2
    s_mov_b32 s6, {WS_BYTES - opt.get('ws_base', 0)}
    s_mov_b32 s7, 0x00020000
    """)
    if opt.get("resid") is not None:
        g(f"""
        s_load_dwordx2 s[32:33], s[0:1], 104
        s_load_dwordx2 s[20:21], s[0:1], {8*opt["resid"]}
        s_mov_b32 s34, 256
        s_mov_b32 s35, 0x00020000
        s_mov_b32 s22, {4<<20}
        s_mov_b32 s23, 0x00020000
        s_mul_i32 s{sO}, s2, 16128
        v_mov_b32 v7, 0
        s_waitcnt lgkmcnt(0)
        s_cmp_lg_u32 s{sW}, 0
        s_cbranch_scc1 L_nores
        s_mov_b64 exec, 1
        buffer_load_dword v6, v7, s[20:23], s{sO} offen offset:2048
        s_waitcnt vmcnt(0)
        s_memtime s[24:25]
        s_waitcnt lgkmcnt(0)
        buffer_load_dword v6, v7, s[20:23], s{sO} offen
        s_waitcnt vmcnt(0)
        s_memtime s[26:27]
        s_waitcnt lgkmcnt(0)
        s_sub_u32 s26, s26, s24
        s_mul_i32 s26, s26, 468
        s_lshr_b32 s26, s26, 16
        s_min_u32 s26, s26, 15
        s_lshl_b32 s26, s26, 2
        v_mov_b32 v6, 1
        buffer_atomic_add v6, v7, s[32:35], s26 offen sc1
        s_waitcnt vmcnt(0)
        s_mov_b64 exec, -1
        """)
        g.lab("L_nores")
        g("s_barrier")
    if opt.get("xprobe") is not None:
        g(f"""
        s_load_dwordx2 s[32:33], s[0:1], 104
        s_mov_b32 s34, 256
        s_mov_b32 s35, 0x00020000
        s_waitcnt lgkmcnt(0)
        v_mov_b32 v6, s70
        s_lshl_b32 s{sO}, s{sXCD}, 2
        v_mov_b32 v7, s{sO}
        s_mov_b64 exec, 1
        buffer_atomic_umax v6, v7, s[32:35], 0 offen sc1
        s_mov_b64 exec, -1
        """)
    if opt.get("split"):
        aset = list(opt["split"]); bset = [x for x in range(8) if x not in aset]
        tab = 0
        for x in range(8):
            tab |= ((aset.index(x)) if x in aset else (8 | bset.index(x))) << (4 * x)
        g(f"""
        s_lshl_b32 s{sXCD}, s{sXCD}, 2
        s_lshr_b32 s{sO}, {hex(tab)}, s{sXCD}
        s_and_b32 s{sXCD}, s{sO}, 3
        s_lshr_b32 s{sO2}, s2, 7
        s_lshl_b32 s{sO2}, s{sO2}, 2
        s_add_u32 s{sXCD}, s{sXCD}, s{sO2}
        s_bitcmp1_b32 s{sO}, 3
        s_cbranch_scc1 L_B
        """)
    else:
        g("s_cmp_ge_u32 s2, 128")
        g("s_cbranch_scc1 L_B")
    a = RoleA(g, NT, vL, vN, vG)
    b = RoleB(g, NT, vL, vN, vG)
    def prefetch(nw, idx_sgpr_expr, tag):
        g(idx_sgpr_expr)
        g(f"s_mul_i32 s{sTMP}, s{sTMP}, {nw*128}")
        g(f"v_lshl_add_u32 v5, v{vL}, 7, s{sTMP}")
        g(f"s_cmp_lg_u32 s{sW}, 3")
        g(f"s_cbranch_scc1 L_nopf{tag}")
        g(f"s_mov_b64 exec, {(1 << nw) - 1}")
        g(f"global_load_dword v{63 if tag == 'B' else 254}, v5, s[{sPC}:{sPC+1}]")
        g("s_mov_b64 exec, -1")
        g.lab(f"L_nopf{tag}")
    if opt.get("split") and opt.get("a_pf_first", 1): prefetch(PFL, f"s_lshr_b32 s{sTMP}, s2, 3", "A")
    a.issue()
    if opt.get("split") and not opt.get("a_pf_first", 1): prefetch(PFL, f"s_lshr_b32 s{sTMP}, s2, 3", "A")
    g("s_branch L_A_rest")
    g.lab("L_B")
    if opt.get("tlb"):
        maxp = [0, 3, 2, 1, 1, 2, 0, 2, 0, 2, 0, 0, 0, 0, 3, 3]
        tab = sum(m << (2 * k) for k, m in enumerate(maxp))
        g(f"""
        s_min_u32 s{sTMP}, s{sI}, 14
        s_lshl_b32 s{sTMP}, s{sTMP}, 3
        s_load_dwordx2 s[90:91], s[0:1], s{sTMP}
        s_lshl_b32 s{sTMP}, s{sI}, 1
        s_lshr_b32 s{sTMP}, {hex(tab)}, s{sTMP}
        s_and_b32 s{sTMP}, s{sTMP}, 3
        s_min_u32 s{sTMP}, s{sTMP}, s{sW}
        s_lshl_b32 s{sTMP}, s{sTMP}, 21
        s_waitcnt lgkmcnt(0)
        s_load_dword s89, s[90:91], s{sTMP}
        """)
    if opt.get("p1a_on") == "B" or opt.get("numa"): pass
    elif opt.get("split"): prefetch(PFL, f"s_lshr_b32 s{sTMP}, s2, 3", "B")
    else: prefetch(2 * PFL, f"s_mov_b32 s{sTMP}, s{sI}", "B")
    b.issue()
    if opt.get("p1a_on") == "B": prefetch(PFL, f"s_lshr_b32 s{sTMP}, s2, 3", "B")
    main = g.l
    g.l = []
    b.rest()
    k = g.l.index(";;SPLIT")
    bhead, btail = g.l[:k], g.l[k+1:]
    g.l = main
    g.lab("L_B_head")
    if opt.get("b_head", 1):
        g.l += bhead
    g("s_branch L_B_rest")
    g.lab("L_A_rest")
    g.inA = True
    a.rest()
    g.inA = False
    g.lab("L_B_rest")
    if not opt.get("b_head", 1):
        g.l += bhead
    g.l += btail
    g.lab("L_end")
    lines, added = pad(g.l)
    body = "\n".join(lines)
    hdr = open(os.path.join(os.path.dirname(os.path.abspath(__file__)), "header.txt")).read()
    return f"""{hdr}; @launch grid=(256,1,1) block=(256,1,1) lds={LDS_BYTES}
.amdgcn_target "amdgcn-amd-amdhsa--gfx950"
.text
.globl {KNAME}
.p2align 8
.type {KNAME},@function
{KNAME}:
{body}
    s_endpgm
L_code_end:
.fill ({CODE_BYTES} + 256 - (L_code_end - {KNAME})) / 4, 4, 0xbf800000
.section .rodata,"a"
.p2align 6
.amdhsa_kernel {KNAME}
  .amdhsa_next_free_vgpr 512
  .amdhsa_next_free_sgpr 102
  .amdhsa_accum_offset 256
  .amdhsa_group_segment_fixed_size 0
  .amdhsa_kernarg_size 120
  .amdhsa_user_sgpr_count 2
  .amdhsa_user_sgpr_kernarg_segment_ptr 1
  .amdhsa_system_sgpr_workgroup_id_x 1
.end_amdhsa_kernel
"""

def srd_tail(g, base, nbytes):
    g(f"s_mov_b32 s{base+2}, {nbytes}")
    g(f"s_mov_b32 s{base+3}, 0x00020000")

def load_tag(g):
    wb = g.opt.get("ws_base", 0)
    if wb:
        g(f"s_add_u32 s4, s4, {wb}")
        g("s_addc_u32 s5, s5, 0")
    g(f"s_load_dwordx2 s[{sT}:{sT+1}], s[4:5], {EPOCH}")

def finish_tag(g):
    g("s_waitcnt lgkmcnt(0)")
    g(f"s_add_u32 s{sT}, s{sT}, {K0}")
    g(f"s_add_u32 s{sT+1}, s{sT+1}, {K1}")

def bell(g, vdata, vzero, s_index, base, wave, tag):
    g(f"s_cmp_lg_u32 s{sW}, {wave}")
    g(f"s_cbranch_scc1 L_nobell_{tag}")
    g(f"s_lshl_b32 s{sTMP}, s{s_index}, 7")
    g(f"s_add_u32 s{sTMP}, s{sTMP}, {base}")
    g("s_mov_b64 exec, 1")
    g(f"buffer_store_dwordx2 {v(vdata,2)}, v{vzero}, {WS}, s{sTMP} offen sc1")
    g("s_mov_b64 exec, -1")
    g.lab(f"L_nobell_{tag}")

def unit_load(g, SRD, vP, ldsbase, s_unit_base, pitch, tag, NT, rows36=True, vdst=None, thr=None, w0extra=True):
    if tag[:2] in g.opt.get("skip", ""): return
    g(f"s_mul_i32 s{sO}, s{sW}, {8*pitch}")
    g(f"s_add_u32 s{sO}, s{sO}, s{s_unit_base}")
    if vdst is None: g(f"s_mul_i32 s{sTMP}, s{sW}, 9216")
    for i in range(9):
        if thr: g(f"s_waitcnt vmcnt({thr-1})")
        if vdst is None:
            g(f"s_add_u32 m0, s{sTMP}, {ldsbase + i*1024}")
            g(f"buffer_load_dwordx4 v{vP+i}, {SRD}, s{sO} offen {NT} lds")
        else:
            g(f"buffer_load_dwordx4 {v(vdst+4*i,4)}, v{vP+i}, {SRD}, s{sO} offen {NT}")
    if not rows36: return
    g(f"s_add_u32 s{sO}, s{s_unit_base}, {32*pitch}")
    if vdst is None:
        g(f"s_lshl_b32 s{sTMP}, s{sW}, 10")
        g(f"s_add_u32 m0, s{sTMP}, {ldsbase + 36864}")
        g(f"buffer_load_dwordx4 v{vP+9}, {SRD}, s{sO} offen {NT} lds")
    else:
        g(f"buffer_load_dwordx4 {v(vdst+36,4)}, v{vP+9}, {SRD}, s{sO} offen {NT}")
    if w0extra:
        g(f"s_cmp_lg_u32 s{sW}, 0")
        g(f"s_cbranch_scc1 L_not{tag}")
    g("s_mov_b32 exec_hi, 0")
    if vdst is None:
        g(f"s_mov_b32 m0, {ldsbase + 36864 + 4096}")
        g(f"buffer_load_dwordx4 v{vP+4}, {SRD}, s{sO} offen {NT} lds")
    else:
        g(f"buffer_load_dwordx4 {v(vdst+40,4)}, v{vP+4}, {SRD}, s{sO} offen {NT}")
    g("s_mov_b64 exec, -1")
    if w0extra: g.lab(f"L_not{tag}")

class RoleA:
    def __init__(self, g, NT, vL, vN, vG):
        self.g, self.NT, self.vL, self.vN, self.vG = g, NT, vL, vN, vG
    vX = 20
    vA_wq, vA_uk = 108, 109
    aWQ, aUK = 0, 36

    def issue(self):
        g, NT, vL, vN, vG = self.g, self.NT, self.vL, self.vN, self.vG
        WQ, WUK = "s[12:15]", "s[16:19]"
        t0, t1 = 4, 5
        vX, vA_wq, vA_uk, aWQ, aUK = self.vX, self.vA_wq, self.vA_uk, self.aWQ, self.aUK
        if g.opt.get("p1a_on") == "B":
            srd_tail(g, 16, 512 * 8192)
            g(f"""
            s_lshr_b32 s{sH}, s{sI}, 2
            s_lshl_b32 s{sH}, s{sH}, 3
            s_add_u32 s{sH}, s{sH}, s{sXCD}
            s_and_b32 s{sJ}, s{sI}, 3
            s_lshl_b32 s{sC}, s{sH}, 8
            v_bfe_u32 v{t0}, v{vL}, 2, 2
            v_lshlrev_b32 v{vA_uk}, 16, v{t0}
            v_lshl_add_u32 v{vA_uk}, v{vG}, 6, v{vA_uk}
            v_and_b32 v{t1}, 3, v{vL}
            v_lshl_add_u32 v{vA_uk}, v{t1}, 4, v{vA_uk}
            s_lshl_b32 s{sO2}, s{sJ}, 2
            s_add_u32 s{sO2}, s{sO2}, s{sW}
            s_lshl_b32 s{sO2}, s{sO2}, 18
            s_add_u32 s{sO2}, s{sO2}, s{sC}
            s_waitcnt lgkmcnt(0)
            """)
            g.fstamp(5)
            self.uk(range(8))
            load_tag(g)
            srd_tail(g, 8, 2304)
            return
        srd_tail(g, 12, 576 * 8192)
        srd_tail(g, 8, 2304)
        g(f"""
        s_lshr_b32 s{sH}, s{sI}, 2
        s_lshl_b32 s{sH}, s{sH}, 3
        s_add_u32 s{sH}, s{sH}, s{sXCD}
        s_and_b32 s{sJ}, s{sI}, 3
        v_mul_u32_u24 v{vA_wq}, {36*8192}, v{vG}
        v_lshl_add_u32 v{vA_wq}, v{vN}, 4, v{vA_wq}
        s_lshl_b32 s{sO2}, s{sJ}, 4
        s_add_u32 s{sO2}, s{sO2}, s{sW}
        s_mul_i32 s{sO2}, s{sO2}, 9
        s_lshl_b32 s{sO3}, s{sO2}, 13
        s_lshl_b32 s{sC}, s{sH}, 8
        s_add_u32 s{sO3}, s{sO3}, s{sC}
        v_bfe_u32 v{t0}, v{vL}, 3, 1
        v_mul_u32_u24 v{t0}, 1152, v{t0}
        v_mad_u32_u24 v{t0}, v{vG}, 64, v{t0}
        v_lshl_add_u32 v{t0}, v{vG}, 3, v{t0}
        s_lshr_b32 s{sO2}, s{sO2}, 1
        s_lshl_b32 s{sO2}, s{sO2}, 2
        s_waitcnt lgkmcnt(0)
        """)
        g.fstamp(5)
        g(f"""
        buffer_load_dwordx4 {v(vX,4)}, v{t0}, {X}, s{sO2} offen
        buffer_load_dword v{vX+4}, v{t0}, {X}, s{sO2} offen offset:16
        """)
        for i in range(9):
            g(f"buffer_load_dwordx4 {A(aWQ+4*i,4)}, v{vA_wq}, {WQ}, s{sO3} offen {NT}")
            if i != 8: g(f"s_addk_i32 s{sO3}, 0x2000")
        load_tag(g)
        srd_tail(g, 16, 512 * 8192)
        g(f"""
        v_bfe_u32 v{t0}, v{vL}, 2, 2
        v_lshlrev_b32 v{vA_uk}, 16, v{t0}
        v_lshl_add_u32 v{vA_uk}, v{vG}, 6, v{vA_uk}
        v_and_b32 v{t1}, 3, v{vL}
        v_lshl_add_u32 v{vA_uk}, v{t1}, 4, v{vA_uk}
        s_lshl_b32 s{sO2}, s{sJ}, 2
        s_add_u32 s{sO2}, s{sO2}, s{sW}
        s_lshl_b32 s{sO2}, s{sO2}, 18
        s_add_u32 s{sO2}, s{sO2}, s{sC}
        """)
        self.uk_split = g.opt.get("uk_early", 2)
        self.uk(range(self.uk_split))

    def uk(self, rows):
        g = self.g
        for r in rows:
            u = 2 * (r & 3) + (r >> 2)
            g(f"buffer_load_dwordx4 {A(self.aUK+4*u,4)}, v{self.vA_uk}, s[16:19], s{sO2} offen {self.NT}")
            g(f"s_addk_i32 s{sO2}, 0x2000")

    def rest(self):
        g, NT, vL, vN, vG = self.g, self.NT, self.vL, self.vN, self.vG
        opt = g.opt
        WUV, WO, W1, B2, GATE, OUT = "s[20:23]", "s[24:27]", "s[12:15]", "s[28:31]", "s[32:35]", "s[36:39]"
        t0, t1, t2, t3 = 4, 5, 6, 7
        vPOI = 8
        vSel = 12
        vX = self.vX
        vF = 160
        vQ = 200
        vR = 56
        vQlo, vQhi = 80, 84
        vAcc = 88
        vGr = 104
        vA_h1, vA_l16 = 110, 47
        vA_qlo, vA_qhi = 112, 113
        vTag = 114
        vQw = 46
        aWQ, aUK = self.aWQ, self.aUK
        sQ = 63
        g.stamp(1)
        selectors(g, vSel, vL, t0, t1, t2)
        g(f"""
        s_lshl_b32 s{sA}, s{sH}, 2
        s_add_u32 s{sA}, s{sA}, s{sJ}
        s_and_b32 s{sO}, s{sW}, 1
        s_lshl_b32 s{sO}, s{sO}, 4
        v_lshlrev_b32 v{vA_l16}, 4, v{vL}
        s_cmp_lg_u32 s{sW}, {0 if opt.get("p1a_on") == "B" else 1}
        s_cbranch_scc1 L_A_e2
        """)
        pB = opt.get("p1a_on") == "B"
        for k in range(4): g(f"v_mov_b32 v{vPOI+k}, {hex(POISON)}")
        g(f"""
        v_lshlrev_b32 v{t0}, 15, v{vG}
        v_lshl_add_u32 v{t0}, v{vN}, 4, v{t0}
        s_lshl_b32 s{sTMP}, s{sA}, 8
        s_add_u32 s{sTMP}, s{sTMP}, {QB}
        s_mov_b32 exec_hi, 0
        buffer_store_dwordx4 {v(vPOI,4)}, v{t0}, {WS}, s{sTMP} offen sc1
        s_mov_b64 exec, -1
        """)
        g.lab("L_A_e2")
        if opt.get("split"):
            g(f"""
            s_cmp_lt_u32 s{sW}, {3 if pB else 2}
            s_cbranch_scc1 L_A_e3
            s_lshl_b32 s{sTMP}, s{sA}, 11
            s_add_u32 s{sTMP}, s{sTMP}, {H0+LOC}
            s_lshl_b32 s{sTMP+1}, s{sA}, 10
            s_add_u32 s{sTMP+1}, s{sTMP+1}, {HB+LOC}
            s_cmp_eq_u32 s{sW}, 2
            s_cselect_b32 s{sTMP}, s{sTMP}, s{sTMP+1}
            v_lshlrev_b32 v{t0}, 7, v{vL}
            s_mov_b64 exec, 0xffff
            buffer_load_dword v255, v{t0}, {WS}, s{sTMP} offen
            s_mov_b64 exec, -1
            """)
            g.lab("L_A_e3")
        if pB:
            finish_tag(g)
            sPk = 54
            g(f"""
            s_lshl_b32 s{sO}, s{sH}, 12
            s_add_u32 s{sO}, s{sO}, {H0}
            s_add_u32 s{sC}, s4, s{sO}
            s_addc_u32 s{sO3}, s5, 0
            """)
            def h0_wt(): pass
        else:
            g.fstamp(6)
            g(f"s_waitcnt vmcnt({9+self.uk_split})")
            g.fstamp(7)
            for k in range(5):
                g(f"v_alignbit_b32 v{vX+k}, v{vX+k+1}, v{vX+k}, s{sO}")
            for i in range(9):
                for d in range(4):
                    g(f"v_perm_b32 v{vF+4*i+d}, v{vX+(i>>1)}, v{vX+(i>>1)}, v{vSel+4*(i&1)+d}")
            g.fstamp(8)
            ukp = opt.get("uk_pos", 0)
            for i in range(9):
                if i == ukp: self.uk(range(self.uk_split, 8))
                g(f"s_waitcnt vmcnt({8-i+(8 if i >= ukp else self.uk_split)})")
                g(f"{MF} {v(vQ+2,4)}, {v(vF+4*i,4)}, {A(aWQ+4*i,4)}, {'0' if i == 0 else v(vQ+2,4)}")
            g.fstamp(10)
            g(f"s_cmp_eq_u32 s{sW}, 0")
            g("s_cbranch_scc1 L_A_w0a")
            g(f"v_lshl_add_u32 v{t0}, s{sW}, 10, v{vA_l16}")
            g(f"ds_write_b128 v{t0}, {v(vQ+2,4)} offset:{A_QP-1024}")
            g(f"s_cmp_lg_u32 s{sW}, 1")
            g("s_cbranch_scc1 L_A_nw1")
            g(f"s_waitcnt vmcnt({8-self.uk_split})")
            g.lab("L_A_nw1")
            g("s_waitcnt lgkmcnt(0)")
            g("s_barrier")
            g(f"s_add_u32 s{sT}, s{sT}, {K0}")
            g(f"s_add_u32 s{sT+1}, s{sT+1}, {K1}")
            g("s_branch L_A_setup")
            g.lab("L_A_w0a")
            finish_tag(g)
            sib = [0, sO, sO3, sC]
            for k in range(1, 4):
                g(f"s_xor_b32 s{sTMP}, s{sA}, {k}")
                g(f"s_lshl_b32 s{sTMP}, s{sTMP}, 11")
                g(f"s_add_u32 s{sib[k]}, s{sTMP}, {H0+LOC}")
            g(f"""
            v_mov_b32 v{vQ}, s{sT}
            v_mov_b32 v{vQ+1}, s{sT+1}
            v_mov_b32 v{vQ+6}, s{sT}
            v_mov_b32 v{vQ+7}, s{sT+1}
            s_lshl_b32 s{sTMP+1}, s{sA}, 11
            s_add_u32 s{sTMP+1}, s{sTMP+1}, {H0+LOC}
            s_barrier
            """)
            for k in range(3):
                g(f"ds_read_b128 {v(vR+4*k,4)}, v{vA_l16} offset:{A_QP+k*1024}")
            g("s_waitcnt lgkmcnt(1)")
            g(f"v_pk_add_f32 {v(vQ+2,2)}, {v(vQ+2,2)}, {v(vR,2)}")
            g(f"v_pk_add_f32 {v(vQ+4,2)}, {v(vQ+4,2)}, {v(vR+2,2)}")
            g("s_waitcnt lgkmcnt(0)")
            g(f"v_pk_add_f32 {v(vR+4,2)}, {v(vR+4,2)}, {v(vR+8,2)}")
            g(f"v_pk_add_f32 {v(vR+6,2)}, {v(vR+6,2)}, {v(vR+10,2)}")
            g(f"v_pk_add_f32 {v(vQ+2,2)}, {v(vQ+2,2)}, {v(vR+4,2)}")
            g(f"v_pk_add_f32 {v(vQ+4,2)}, {v(vQ+4,2)}, {v(vR+6,2)}")
            g(f"buffer_store_dwordx4 {v(vQ,4)}, v{vA_l16}, {WS}, s{sTMP+1} offen")
            g(f"buffer_store_dwordx4 {v(vQ+4,4)}, v{vA_l16}, {WS}, s{sTMP+1} offen offset:1024")
            def h0_wt():
                g(f"s_lshl_b32 s{sTMP+1}, s{sA}, 11")
                g(f"s_add_u32 s{sTMP+1}, s{sTMP+1}, {H0}")
                g(f"buffer_store_dwordx4 {v(vQ,4)}, v{vA_l16}, {WS}, s{sTMP+1} offen sc1")
                g(f"buffer_store_dwordx4 {v(vQ+4,4)}, v{vA_l16}, {WS}, s{sTMP+1} offen offset:1024 sc1")
            g.stamp(2)
        g.lab("L_A_setup")
        srd(g, 20, 4, 512 * 8192)
        srd(g, 24, 5, 4096 * 1152)
        srd(g, 32, 11, 1152)
        srd(g, 36, 12, 2304)
        srd(g, 12, 7, 576 * 9216)
        vBell = 111
        g(f"""
        v_bfe_u32 v{t0}, v{vL}, 2, 2
        v_lshlrev_b32 v{vA_h1}, 15, v{vG}
        v_lshl_add_u32 v{vA_h1}, v{t0}, 4, v{vA_h1}
        s_lshl_b32 s{sQ}, s{sA}, 2
        s_add_u32 s{sQ}, s{sQ}, s{sW}
        s_lshl_b32 s{sQ}, s{sQ}, 6
        s_add_u32 s{sQ}, s{sQ}, {QB}
        v_bfe_u32 v{t0}, v{vL}, 2, 1
        v_lshlrev_b32 v{t0}, 8, v{t0}
        v_lshl_add_u32 v{t0}, v{vG}, 6, v{t0}
        v_and_b32 v{t1}, 3, v{vL}
        v_lshl_add_u32 v{t0}, v{t1}, 4, v{t0}
        v_add_u32 v{t0}, {A_QL}, v{t0}
        v_mov_b32 v{t1}, {A_ZERO}
        v_cmp_gt_u32 vcc, 8, v{vN}
        v_cndmask_b32 v{vA_qlo}, v{t1}, v{t0}, vcc
        v_cndmask_b32 v{vA_qhi}, v{t0}, v{t1}, vcc
        v_and_b32 v{t0}, 1, v{vL}
        v_cmp_eq_u32 s[{sM1}:{sM1+1}], 1, v{t0}
        v_and_b32 v{t0}, 2, v{vL}
        v_cmp_eq_u32 s[{sM2}:{sM2+1}], 2, v{t0}
        v_mov_b32 v{vTag}, s{sT}
        v_mov_b32 v{vTag+1}, s{sT+1}
        v_lshlrev_b32 v{vBell}, 12, v{vL}
        s_lshl_b32 s{sO2}, s{sH}, 5
        s_add_u32 s{sO2}, s{sO2}, s{sJ}
        s_lshl_b32 s{sO2}, s{sO2}, 2
        s_add_u32 s{sO2}, s{sO2}, {D1}
        """)
        if opt.get("q_direct", 0):
            g(f"""
            s_cmp_lg_u32 s{sW}, 2
            s_cbranch_scc1 L_A_nordy
            s_mov_b64 exec, 0xff
            buffer_store_dword v{vTag}, v{vBell}, {WS}, s{sO2} offen sc1
            s_mov_b64 exec, -1
            """)
            g.lab("L_A_nordy")
            g(f"""
            v_bfe_u32 v{t0}, v{vL}, 2, 2
            v_lshlrev_b32 v{vA_h1}, 8, v{vG}
            v_lshl_add_u32 v{vA_h1}, v{t0}, 4, v{vA_h1}
            v_lshl_add_u32 v{vA_h1}, s{sW}, 6, v{vA_h1}
            v_lshlrev_b32 v{vBell}, 15, v{vG}
            v_lshl_add_u32 v{vBell}, v{vN}, 4, v{vBell}
            s_lshl_b32 s{sQ}, s{sA}, 8
            s_add_u32 s{sQ}, s{sQ}, {QB}
            """)
        g(f"""
        v_mov_b32 v{t2}, 0
        v_mov_b32 v{t3}, 0
        ds_write_b64 v{t1}, {v(t2,2)}
        ds_write_b64 v{t1}, {v(t2,2)} offset:8
        v_lshrrev_b32 v{vQw}, 1, v{vG}
        v_lshlrev_b32 v{vQw}, 8, v{vQw}
        v_lshl_add_u32 v{vQw}, v{vN}, 4, v{vQw}
        v_and_b32 v{t1}, 1, v{vG}
        v_lshl_add_u32 v{vQw}, v{t1}, 3, v{vQw}
        """)
        def h0loads():
            if pB:
                for k in range(4):
                    g(f"buffer_load_dwordx4 {v(vR+4*k,4)}, v{vA_l16}, {WS}, s{sO} offen offset:{k*1024} sc1")
                return
            for k in range(1, 4):
                g(f"buffer_load_dwordx4 {v(vR+8*(k-1),4)}, v{vA_l16}, {WS}, s{sib[k]} offen sc1")
                g(f"buffer_load_dwordx4 {v(vR+8*(k-1)+4,4)}, v{vA_l16}, {WS}, s{sib[k]} offen offset:1024 sc1")
        sRho, sBlk, sR0 = 60, 43, 62
        vXr, vS1, vXA, vW1a, vHs, vXa = 116, 140, 152, 144, 145, 146
        aW1 = 80
        if opt.get('w1_on', 'A') == 'A':
            g(f"""
            s_lshl_b32 s{sBlk}, s{sA}, 2
            s_add_u32 s{sBlk}, s{sBlk}, s{sW}
            s_mul_i32 s{sRho}, s{sBlk}, 1821
            s_lshr_b32 s{sRho}, s{sRho}, 16
            s_mul_i32 s{sTMP}, s{sRho}, 36
            s_sub_u32 s{sBlk}, s{sBlk}, s{sTMP}
            s_min_u32 s{sTMP}, s{sRho}, 4
            s_mul_i32 s{sR0}, s{sRho}, 10
            s_add_u32 s{sR0}, s{sR0}, s{sTMP}
            s_lshl_b32 s{sR0}, s{sR0}, 2
            v_bfe_u32 v{t0}, v{vL}, 3, 1
            v_mul_u32_u24 v{vXa}, 1152, v{t0}
            v_mul_u32_u24 v{vW1a}, 9216, v{vG}
            v_lshl_add_u32 v{vW1a}, v{vN}, 4, v{vW1a}
            """)
            assert all((i * 1821) >> 16 == i // 36 for i in range(512))
            g(f"s_lshl_b32 s{sTMP}, s{sR0}, 1")
            for k in range(5):
                g(f"buffer_load_dwordx4 {v(vXr+4*k,4)}, v{vXa}, {X}, s{sTMP} offen offset:{16*k}")
            g(f"buffer_load_dwordx2 {v(vXr+20,2)}, v{vXa}, {X}, s{sTMP} offen offset:80")
        if not pB:
            g(f"s_cmp_lg_u32 s{sW}, 0")
            g("s_cbranch_scc1 L_A_s2")
            h0loads()
            g.lab("L_A_s2")
        vUV0, vUV1 = 20, 21
        vP2 = 22
        g(f"""
        v_lshlrev_b32 v{t0}, 1, v{vG}
        v_xor_b32 v{t0}, v{t0}, v{vN}
        v_lshlrev_b32 v{vUV0}, 17, v{vG}
        v_lshl_add_u32 v{vUV0}, v{t0}, 4, v{vUV0}
        v_xor_b32 v{vUV1}, 128, v{vUV0}
        """)
        uve = opt.get("uv_early", 0)
        nuv = 8 if "uv" not in opt.get("skip", "") else 0
        def uv_stream():
            sa, sb = 47, 59
            g(f"""
            s_lshl_b32 s{sa}, s{sJ}, 5
            s_add_u32 s{sa}, s{sa}, s{sW}
            s_lshl_b32 s{sa}, s{sa}, 15
            s_lshl_b32 s{sb}, s{sH}, 8
            s_add_u32 s{sa}, s{sa}, s{sb}
            s_lshl_b32 s{sb}, s{sW}, 13
            """)
            for z in range(nuv):
                hi, gg = z >> 2, z & 3
                if opt.get("uv_thr") and not uve: g(f"s_waitcnt vmcnt({opt['uv_thr']-1})")
                g(f"s_add_u32 m0, s{sb}, {A_WUV + z*1024}")
                g(f"s_add_u32 s{sTMP}, s{sa}, {(64*hi+gg)*8192}")
                g(f"buffer_load_dwordx4 v{vUV1 if z & 1 else vUV0}, {WUV}, s{sTMP} offen {NT} lds")
        if uve == 1:
            g("s_waitcnt lgkmcnt(0)")
            uv_stream()
        for i in range(9):
            unit_pattern(g, vP2 + i, vL, None, i, 1152, t0, t1)
        if opt.get('w1_on', 'A') == 'A':
            g(f"""
            v_lshrrev_b32 v{t0}, 5, v{vL}
            v_mul_u32_u24 v{vHs}, 18432, v{t0}
            v_and_b32 v{t0}, 31, v{vL}
            v_lshl_add_u32 v{vHs}, v{t0}, 4, v{vHs}
            v_mul_u32_u24 v{t0}, 0x0202, v{vG}
            v_add_u32 v{t0}, 0x0100, v{t0}
            v_and_b32 v{t1}, 1, v{vL}
            v_lshlrev_b32 v{t1}, 4, v{t1}
            v_lshlrev_b32 v{t0}, v{t1}, v{t0}
            v_mov_b32 v{t2}, 0x0c0c0000
            v_lshrrev_b32 v{t2}, v{t1}, v{t2}
            v_or_b32 v{t0}, v{t0}, v{t2}
            v_bfe_u32 v{t1}, v{vL}, 1, 2
            v_mov_b32 v{t2}, 0x0c0c0c0c
            """)
            for d in range(4):
                g(f"v_cmp_eq_u32 vcc, {d}, v{t1}")
                g(f"v_cndmask_b32 v{vS1+d}, v{t2}, v{t0}, vcc")
        if uve == 2:
            g("s_waitcnt lgkmcnt(0)")
            uv_stream()
        g(f"s_mov_b32 s{sCNT}, 0")
        g(f"s_cmp_lg_u32 s{sW}, 0")
        g("s_cbranch_scc1 L_A_h0wait")
        if pB:
            g(f"""
            s_mov_b32 s{sTMP}, s{sC}
            s_mov_b32 s{sTMP+1}, s{sO3}
            s_and_b32 s{sC}, s{sT}, 15
            """)
            g.lab("L_A_peek")
            for k in range(4):
                g(f"s_load_dword s{16+k}, s[{sTMP}:{sTMP+1}], {k*1024+opt.get('peek_off', 1020)} glc")
            spin_guard(g, "L_A_peek2")
            g("s_waitcnt lgkmcnt(0)")
            for k in range(4):
                g(f"s_xor_b32 s{16+k}, s{16+k}, s{sC}")
            g("s_or_b64 s[16:17], s[16:17], s[18:19]")
            g("s_or_b32 s16, s16, s17")
            g("s_and_b32 s16, s16, 15")
            g("s_cbranch_scc1 L_A_peek")
            g.lab("L_A_peek2")
            g.stamp(2)
            g.lab("L_A_h0get")
            h0loads()
            g("s_waitcnt vmcnt(0)")
        else:
            g(f"s_waitcnt vmcnt({nuv if uve else 0})")
        g.lab("L_A_h0chk")
        if opt.get("fst"):
            g(f"s_cmp_lg_u32 s{sCNT}, 0")
            g("s_cbranch_scc1 L_A_fs11")
            g.fstamp(11)
            g.lab("L_A_fs11")
        if pB:
            for k in range(16):
                g(f"v_xor_b32 v{vR+k}, s{sC}, v{vR+k}")
            g(f"v_or3_b32 v{t0}, v{vR}, v{vR+1}, v{vR+2}")
            g(f"v_or3_b32 v{t1}, v{vR+3}, v{vR+4}, v{vR+5}")
            for k in range(6, 14, 4):
                g(f"v_or3_b32 v{t0}, v{t0}, v{vR+k}, v{vR+k+1}")
                g(f"v_or3_b32 v{t1}, v{t1}, v{vR+k+2}, v{vR+k+3}")
            g(f"v_or3_b32 v{t0}, v{t0}, v{vR+14}, v{vR+15}")
            g(f"v_bitop3_b32 v{t0}, v{t0}, v{t1}, 15 bitop3:0xa8")
            g(f"v_cmp_ne_u32 vcc, 0, v{t0}")
            g("s_cbranch_vccnz L_A_h0poll")
        else:
            for k in range(3):
                g(f"v_cmp_ne_u64 vcc, s[{sT}:{sT+1}], {v(vR+8*k,2)}")
                g(f"v_cmp_ne_u64 s[{sM3}:{sM3+1}], s[{sT}:{sT+1}], {v(vR+8*k+6,2)}")
                if k == 0: g(f"s_or_b64 s[{sM4}:{sM4+1}], vcc, s[{sM3}:{sM3+1}]")
                else:
                    g(f"s_or_b64 s[{sM4}:{sM4+1}], s[{sM4}:{sM4+1}], vcc")
                    g(f"s_or_b64 s[{sM4}:{sM4+1}], s[{sM4}:{sM4+1}], s[{sM3}:{sM3+1}]")
            g("s_cbranch_scc1 L_A_h0poll")
        g.lab("L_A_h0done")
        def d1bell(tag):
            g("s_mov_b64 exec, 0xff")
            g(f"buffer_store_dword v{vTag}, v{vBell}, {WS}, s{sO2} offen sc1")
            g("s_mov_b64 exec, -1")
        qd = opt.get("q_direct", 0)
        d1p = opt.get("d1_pos", 0) if not qd else -1
        if d1p == 0: d1bell("")
        if pB:
            g(f"v_pk_add_f32 {v(vR,2)}, {v(vR,2)}, {v(vR+4,2)}")
            g(f"v_pk_add_f32 {v(vR+2,2)}, {v(vR+2,2)}, {v(vR+6,2)}")
            g(f"v_pk_add_f32 {v(vR+8,2)}, {v(vR+8,2)}, {v(vR+12,2)}")
            g(f"v_pk_add_f32 {v(vR+10,2)}, {v(vR+10,2)}, {v(vR+14,2)}")
            g(f"v_pk_add_f32 {v(vR,2)}, {v(vR,2)}, {v(vR+8,2)}")
            g(f"v_pk_add_f32 {v(vR+2,2)}, {v(vR+2,2)}, {v(vR+10,2)}")
            g(f"v_cvt_pk_bf16_f32 v{vR}, v{vR}, v{vR+1}")
            g(f"v_cvt_pk_bf16_f32 v{vR+1}, v{vR+2}, v{vR+3}")
        else:
            g(f"v_pk_add_f32 {v(vR+2,2)}, {v(vQ+2,2)}, {v(vR+2,2)}")
            g(f"v_pk_add_f32 {v(vR+4,2)}, {v(vQ+4,2)}, {v(vR+4,2)}")
            g(f"v_pk_add_f32 {v(vR+10,2)}, {v(vR+10,2)}, {v(vR+18,2)}")
            g(f"v_pk_add_f32 {v(vR+12,2)}, {v(vR+12,2)}, {v(vR+20,2)}")
            g(f"v_pk_add_f32 {v(vR+2,2)}, {v(vR+2,2)}, {v(vR+10,2)}")
            g(f"v_pk_add_f32 {v(vR+4,2)}, {v(vR+4,2)}, {v(vR+12,2)}")
            g(f"v_cvt_pk_bf16_f32 v{vR}, v{vR+2}, v{vR+3}")
            g(f"v_cvt_pk_bf16_f32 v{vR+1}, v{vR+4}, v{vR+5}")
        g(f"ds_write_b64 v{vQw}, {v(vR,2)} offset:{A_QL}")
        g("s_waitcnt lgkmcnt(0)")
        g("s_barrier")
        g(f"ds_read_b128 {v(vQlo,4)}, v{vA_qlo}")
        g(f"ds_read_b128 {v(vQhi,4)}, v{vA_qhi}")
        if d1p == 1: d1bell("")
        g("s_branch L_A_p1b")
        g.lab("L_A_h0wait")
        g(f"s_waitcnt vmcnt({nuv if uve else 0}) lgkmcnt(0)")
        g.fstamp(12)
        g("s_barrier")
        g(f"ds_read_b128 {v(vQlo,4)}, v{vA_qlo}")
        g(f"ds_read_b128 {v(vQhi,4)}, v{vA_qhi}")
        g.lab("L_A_p1b")
        g.stamp(3)
        g("s_waitcnt lgkmcnt(0)")
        for t in range(4):
            g(f"{MF} {v(vAcc+4*t,4)}, {v(vQlo,4)}, {A(aUK+8*t,4)}, 0")
        for t in range(4):
            g(f"{MF} {v(vAcc+4*t,4)}, {v(vQhi,4)}, {A(aUK+8*t+4,4)}, {v(vAcc+4*t,4)}")
        if d1p == 2:
            g(f"s_cmp_lg_u32 s{sW}, 0")
            g("s_cbranch_scc1 L_A_nod1")
            d1bell("")
            g.lab("L_A_nod1")
        for t in range(4):
            a0 = vAcc + 4 * t
            g(f"v_cndmask_b32 v{a0}, v{a0}, v{a0+1}, s[{sM1}:{sM1+1}]")
            g(f"v_cndmask_b32 v{a0+2}, v{a0+2}, v{a0+3}, s[{sM1}:{sM1+1}]")
            g(f"v_cndmask_b32 v{a0}, v{a0}, v{a0+2}, s[{sM2}:{sM2+1}]")
        for t in range(4):
            a0 = vAcc + 4 * t
            g(f"v_add_f32_dpp v{a0+1}, v{a0}, v{a0} quad_perm:[1,0,3,2] row_mask:0xf bank_mask:0xf")
        for t in range(4):
            a0 = vAcc + 4 * t
            g(f"v_add_f32_dpp v{a0}, v{a0+1}, v{a0+1} quad_perm:[2,3,0,1] row_mask:0xf bank_mask:0xf")
        g(f"v_cvt_pk_bf16_f32 v{vGr}, v{vAcc}, v{vAcc+4}")
        g(f"v_cvt_pk_bf16_f32 v{vGr+1}, v{vAcc+8}, v{vAcc+12}")
        g(f"v_permlane32_swap_b32 v{vGr}, v{vGr+2}")
        g(f"v_permlane32_swap_b32 v{vGr+1}, v{vGr+3}")
        if qd:
            g(f"""
            s_mov_b64 exec, 0x11111111
            ds_write_b128 v{vA_h1}, {v(vGr,4)} offset:{A_CTXC}
            s_mov_b64 exec, -1
            s_waitcnt lgkmcnt(0)
            s_barrier
            s_cmp_lg_u32 s{sW}, 3
            s_cbranch_scc1 L_A_noq
            s_mov_b32 exec_hi, 0
            ds_read_b128 {v(vGr,4)}, v{vA_l16} offset:{A_CTXC}
            s_waitcnt lgkmcnt(0)
            buffer_store_dwordx4 {v(vGr,4)}, v{vBell}, {WS}, s{sQ} offen sc1
            s_mov_b64 exec, -1
            """)
            g.lab("L_A_noq")
        else:
            g(f"""
            s_mov_b64 exec, 0x11111111
            buffer_store_dwordx4 {v(vGr,4)}, v{vA_h1}, {WS}, s{sQ} offen sc1
            s_mov_b64 exec, -1
            """)
        if d1p == 3:
            g(f"s_cmp_lg_u32 s{sW}, 0")
            g("s_cbranch_scc1 L_A_nod1")
            d1bell("")
            g.lab("L_A_nod1")
        g.stamp(4)
        if opt.get("a_wait", 0): g("s_waitcnt vmcnt(0)")
        if opt.get("a_gate"):
            sD = [16, 52, 56, 28]
            g(f"""
            s_lshl_b32 s{sTMP}, s{sXCD}, 3
            s_lshr_b32 s{sTMP+1}, s{sH}, 4
            s_lshl_b32 s{sTMP+1}, s{sTMP+1}, 2
            s_add_u32 s{sTMP}, s{sTMP}, s{sTMP+1}
            s_add_u32 s{sTMP}, s{sTMP}, s{sW}
            s_lshl_b32 s{sTMP}, s{sTMP}, 9
            s_add_u32 s{sTMP}, s{sTMP}, {D1}
            s_add_u32 s{sTMP}, s4, s{sTMP}
            s_addc_u32 s{sTMP+1}, s5, 0
            s_mov_b32 s{sPC}, s{sT}
            s_mov_b32 s{sPC+1}, s{sT}
            s_mov_b32 s{sCNT}, 0
            """)
            g.lab("L_A_gate")
            for k in range(4):
                g(f"s_load_dwordx4 s[{sD[k]}:{sD[k]+3}], s[{sTMP}:{sTMP+1}], {k*128} glc")
            spin_guard(g, "L_A_gate2")
            g("s_waitcnt lgkmcnt(0)")
            for k in range(4):
                g(f"s_xor_b64 s[{sD[k]}:{sD[k]+1}], s[{sD[k]}:{sD[k]+1}], s[{sPC}:{sPC+1}]")
                g(f"s_xor_b64 s[{sD[k]+2}:{sD[k]+3}], s[{sD[k]+2}:{sD[k]+3}], s[{sPC}:{sPC+1}]")
                g(f"s_or_b64 s[{sD[k]}:{sD[k]+1}], s[{sD[k]}:{sD[k]+1}], s[{sD[k]+2}:{sD[k]+3}]")
            g("s_or_b64 s[16:17], s[16:17], s[52:53]")
            g("s_or_b64 s[56:57], s[56:57], s[28:29]")
            g("s_or_b64 s[16:17], s[16:17], s[56:57]")
            g("s_cbranch_scc1 L_A_gate")
            g.lab("L_A_gate2")
            g("s_waitcnt lgkmcnt(0)")
            if opt["a_gate"] == 2: g("s_barrier")
            g(f"v_and_b32 v{t0}, 2, v{vL}")
            g(f"v_cmp_eq_u32 s[{sM2}:{sM2+1}], 2, v{t0}")
        if opt.get("a_sleep"): g(f"s_sleep {opt['a_sleep']}")
        srd(g, 28, 10, 1152)
        def w1_frags():
            for i in range(11):
                for d in range(4):
                    g(f"v_perm_b32 v{vXA+4*i+d}, v{vXr+2*i+1}, v{vXr+2*i}, v{vS1+d}")
        w1a = opt.get("w1_on", "A") == "A"
        nw1 = 0 if ("w1" in opt.get("skip", "") or not w1a) else 11
        if w1a:
            g(f"s_mul_i32 s{sO2}, s{sR0}, 9216")
            g(f"s_lshl_b32 s{sO3}, s{sBlk}, 8")
            g(f"s_add_u32 s{sO2}, s{sO2}, s{sO3}")
        for i in range(nw1):
            if opt.get("w1_thr") and i >= opt["w1_thr"]: g(f"s_waitcnt vmcnt({opt['w1_thr']-1})")
            g(f"buffer_load_dwordx4 {A(aW1+4*i,4)}, v{vW1a}, {W1}, s{sO2} offen {NT}")
            if i == (opt.get("w1_thr") or 11) - 1: w1_frags()
            if i < 10: g(f"s_add_u32 s{sO2}, s{sO2}, {4*9216}")
            if i == 9:
                g(f"s_cmp_ge_u32 s{sRho}, 4")
                g(f"s_cselect_b32 s{sO2}, {576*9216}, s{sO2}")
        if not uve: uv_stream()
        def w1_gemv(younger):
            if not w1a: return
            vH = 148
            g(f"s_waitcnt vmcnt({younger})")
            for i in range(10):
                g(f"{MF} {v(vH,4)}, {v(vXA+4*i,4)}, {A(aW1+4*i,4)}, {'0' if i == 0 else v(vH,4)}")
            g(f"s_cmp_ge_u32 s{sRho}, 4")
            g("s_cbranch_scc1 L_A_w1s")
            g(f"{MF} {v(vH,4)}, {v(vXA+40,4)}, {A(aW1+40,4)}, {v(vH,4)}")
            g.lab("L_A_w1s")
            g(f"""
            s_mul_i32 s{sO}, s{sRho}, 36864
            s_lshl_b32 s{sO3}, s{sBlk}, 9
            s_add_u32 s{sO}, s{sO}, s{sO3}
            s_add_u32 s{sO}, s{sO}, {HH}
            s_and_b32 s{sO3}, s{sT}, 15
            """)
            for r in range(4):
                g(f"v_and_or_b32 v{vH+r}, v{vH+r}, -16, s{sO3}")
            g(f"buffer_store_dwordx4 {v(vH,4)}, v{vHs}, {WS}, s{sO} offen sc1")
        if not opt.get("w1_late"): w1_gemv(0 if uve else nuv)
        wol = opt.get("wo_late", 0)
        if not wol:
            g(f"s_mul_i32 s{sO2}, s{sA}, {32*1152}")
            unit_load(g, WO, vP2, A_WO, sO2, 1152, "wo", NT, rows36=False, thr=opt.get("a_thr"))
        if opt.get("w1_late") == 1: w1_gemv(9)
        if not opt.get('clk'): g.stamp(14)
        vGx, vGw, vB2 = 48, 60, 72
        vOA, vFB = 73, 74
        g(f"v_mov_b32 v{vOA}, 0")
        g("s_waitcnt lgkmcnt(0)")
        g(f"s_cmp_lg_u32 s{sW}, 0")
        g("s_cbranch_scc1 L_A_nogate")
        h0_wt()
        g(f"""
        s_cmp_ge_u32 s{sA}, 36
        s_cbranch_scc1 L_A_nogate
        v_and_b32 v{t0}, 31, v{vL}
        v_mul_u32_u24 v{t1}, 36, v{t0}
        v_lshrrev_b32 v{t2}, 5, v{vL}
        v_mul_u32_u24 v{t2}, 1152, v{t2}
        v_add_u32 v{t2}, v{t2}, v{t1}
        buffer_load_dwordx4 {v(vGx,4)}, v{t2}, {X}, 0 offen
        buffer_load_dwordx4 {v(vGx+4,4)}, v{t2}, {X}, 0 offen offset:16
        buffer_load_dword v{vGx+8}, v{t2}, {X}, 0 offen offset:32
        buffer_load_dwordx4 {v(vGw,4)}, v{t1}, {GATE}, 0 offen
        buffer_load_dwordx4 {v(vGw+4,4)}, v{t1}, {GATE}, 0 offen offset:16
        buffer_load_dword v{vGw+8}, v{t1}, {GATE}, 0 offen offset:32
        s_cmp_ge_u32 s{sA}, 32
        s_cbranch_scc1 L_A_uleft
        s_lshr_b32 s{sO}, s{sA}, 2
        s_lshl_b32 s{sO}, s{sO}, 4
        s_and_b32 s{sO3}, s{sA}, 1
        s_lshl_b32 s{sO3}, s{sO3}, 3
        s_add_u32 s{sO}, s{sO}, s{sO3}
        v_and_b32 v{t1}, 3, v{t0}
        v_lshlrev_b32 v{t1}, 7, v{t1}
        v_lshrrev_b32 v{t2}, 2, v{t0}
        v_add3_u32 v{t1}, v{t1}, v{t2}, s{sO}
        s_bfe_u32 s{sO3}, s{sA}, 0x10001
        v_mov_b32 v{vFB}, s{sO3}
        s_branch L_A_ujoin
        """)
        g.lab("L_A_uleft")
        g(f"""
        s_lshl_b32 s{sO}, s{sA}, 4
        v_and_b32 v{t1}, 15, v{t0}
        v_add_u32 v{t1}, s{sO}, v{t1}
        v_lshrrev_b32 v{vFB}, 4, v{t0}
        """)
        g.lab("L_A_ujoin")
        g(f"""
        v_lshlrev_b32 v{t1}, 1, v{t1}
        buffer_load_ushort v{vB2}, v{t1}, {B2}, 0 offen
        v_mul_u32_u24 v{vOA}, 1152, v{vFB}
        v_add_u32 v{vOA}, v{vOA}, v{t1}
        """)
        g.lab("L_A_nogate")
        vH3, vH3x = 32, 33
        vHBs = 39
        sH3m, sH3l, sHB, sHH = 63, 47, 61, 62
        vTU0, vTU1, vTO0, vTO1 = 34, 35, 36, 37
        vCX, vCW, vHBl, vD2, vOg, vWTw, vWTr = 38, 46, 40, 41, 42, 43, 44
        vT1, vK1 = 75, 57
        def later_addresses():
            g(f"""
            s_mul_i32 s{sH3l}, s{sA}, {OSTR}
            s_add_u32 s{sH3l}, s{sH3l}, {OB}
            s_lshl_b32 s{sTMP}, s{sW}, 10
            s_add_u32 s{sH3m}, s{sH3l}, s{sTMP}
            s_lshl_b32 s{sTMP}, s{sW}, 8
            s_add_u32 s{sH3l}, s{sH3l}, s{sTMP}
            s_add_u32 s{sH3l}, s{sH3l}, 4096
            v_lshlrev_b32 v{vH3x}, 2, v{vL}
            """)
            g(f"""
            v_lshlrev_b32 v{vHBs}, 7, v{vG}
            v_and_b32 v{t0}, 1, v{vL}
            v_lshl_add_u32 v{vHBs}, v{t0}, 6, v{vHBs}
            v_bfe_u32 v{t0}, v{vL}, 1, 1
            v_lshl_add_u32 v{vHBs}, v{t0}, 9, v{vHBs}
            s_lshl_b32 s{sHB}, s{sH}, 2
            s_add_u32 s{sHB}, s{sHB}, s{sW}
            s_lshl_b32 s{sHB}, s{sHB}, 6
            s_add_u32 s{sHB}, s{sHB}, s{sJ}
            s_lshl_b32 s{sHB}, s{sHB}, 4
            s_add_u32 s{sHB}, s{sHB}, {HB}
            v_lshrrev_b32 v{t0}, 2, v{vL}
            v_bfe_u32 v{t1}, v{vL}, 1, 1
            v_lshl_add_u32 v{t1}, s{sW}, 2, v{t1}
            v_and_b32 v{t2}, 7, v{t0}
            v_lshlrev_b32 v{t2}, 1, v{t2}
            v_xor_b32 v{t1}, v{t1}, v{t2}
            v_lshlrev_b32 v{vTU0}, 8, v{t0}
            v_lshl_add_u32 v{vTU0}, v{t1}, 4, v{vTU0}
            v_and_b32 v{t1}, 1, v{vL}
            v_lshl_add_u32 v{vTU0}, v{t1}, 3, v{vTU0}
            v_xor_b32 v{vTU1}, 32, v{vTU0}
            """)
            assert A_WUV == 0
            tr_pair_bases(g, vTO0, vTO1, None, None, vL, A_WO, t0, t1, t2)
            g(f"""
            v_and_b32 v{t0}, 1, v{vL}
            v_lshlrev_b32 v{vCX}, 9, v{t0}
            v_bfe_u32 v{t0}, v{vL}, 1, 1
            v_lshl_add_u32 v{vCX}, v{t0}, 8, v{vCX}
            v_lshl_add_u32 v{vCX}, v{vG}, 4, v{vCX}
            v_and_b32 v{t0}, 1, v{vG}
            v_lshlrev_b32 v{vCW}, 3, v{t0}
            v_lshl_add_u32 v{vCW}, v{vN}, 4, v{vCW}
            v_lshl_add_u32 v{vCW}, s{sW}, 8, v{vCW}
            v_and_b32 v{t0}, 7, v{vL}
            v_lshlrev_b32 v{vHBl}, 4, v{t0}
            v_lshl_add_u32 v{vHBl}, v{vG}, 7, v{vHBl}
            v_and_b32 v{t0}, 31, v{vL}
            v_lshlrev_b32 v{vD2}, 8, v{t0}
            v_lshlrev_b32 v{vOg}, 10, v{vG}
            v_lshl_add_u32 v{vOg}, v{vN}, 4, v{vOg}
            v_lshlrev_b32 v{vWTw}, 1, v{t0}
            v_lshl_add_u32 v{vWTw}, s{sW}, 6, v{vWTw}
            s_and_b32 s{sTMP}, s{sW}, 1
            s_lshl_b32 s{sTMP}, s{sTMP}, 5
            s_lshl_b32 s{sTMP+1}, s{sW}, 6
            s_add_u32 s{sTMP}, s{sTMP}, s{sTMP+1}
            v_lshl_add_u32 v{vWTr}, v{vG}, 3, s{sTMP}
            v_cmp_gt_u32 s[{sM1}:{sM1+1}], 8, v{vN}
            """)
        later_addresses()
        g("s_waitcnt vmcnt(0)")
        g("s_barrier")
        g.stamp(5)
        aUV, aWO = 0, 32
        vDB = 88
        vDL = 92
        vO = 96
        vFr = 116
        vWt = 132
        vD = 136
        vLs, vWr, vEr = 140, 141, 142
        g(f"""
        s_lshr_b32 s{sO}, s{sH}, 4
        s_lshl_b32 s{sO}, s{sO}, 1
        s_lshr_b32 s{sO3}, s{sW}, 1
        s_add_u32 s{sO}, s{sO}, s{sO3}
        s_lshl_b32 s{sO}, s{sO}, 13
        s_and_b32 s{sO3}, s{sH}, 15
        s_lshl_b32 s{sO3}, s{sO3}, 4
        s_add_u32 s{sO}, s{sO}, s{sO3}
        s_add_u32 s{sO2}, s{sO}, {DL}
        s_add_u32 s{sO}, s{sO}, {D2}
        """)
        epos = opt.get("e_pos")
        if epos is None: g(f"buffer_load_dwordx4 {v(vDB,4)}, v{vD2}, {WS}, s{sO} offen sc1")
        if opt.get("w1_late") == 2:
            g(f"s_mov_b32 s{sC}, s{sO}")
            w1_gemv(1)
            g(f"s_mov_b32 s{sO}, s{sC}")
        for tau in range(2):
            for ks in range(4):
                for hi in range(2):
                    g(f"ds_read_b64_tr_b16 {A(aUV+(tau*4+ks)*4+2*hi,2)}, v{vTU1 if tau else vTU0} offset:{ks*8192+hi*4096}")
        def wo_frags():
            for t in range(5):
                for x in range(2):
                    for hi in range(2):
                        g(f"ds_read_b64_tr_b16 {A(aWO+(t*2+x)*4+2*hi,2)}, v{vTO1 if x else vTO0} offset:{hi*16*1152+t*256}")
        if not wol: wo_frags()
        sBP = 34
        sHI, sTT = sPOI, sPC
        sX, sP4 = 32, 33
        g(f"""
        s_and_b32 s{sTMP}, s{sW}, 1
        s_lshl_b32 s{sTMP}, s{sTMP}, 12
        s_add_u32 s{sTMP}, s{sTMP}, s{sO2}
        s_add_u32 s{sBP}, s4, s{sTMP}
        s_addc_u32 s{sBP+1}, s5, 0
        s_mul_i32 s{sO3}, s{sA}, {OSTR}
        s_lshl_b32 s{sTMP}, s{sW}, 12
        s_add_u32 s{sO3}, s{sO3}, s{sTMP}
        s_add_u32 s{sO3}, s{sO3}, {OB}
        s_bitcmp1_b32 s{sT}, 0
        s_cselect_b32 s{sX}, 0x10001, 0
        s_mov_b32 s{sHI}, 0x10000
        s_mov_b32 s{sTT}, s{sT}
        s_mov_b32 s{sTT+1}, s{sT}
        """)
        g(f"v_mov_b32 v{t0}, 0")
        for k in range(9):
            g(f"v_dot2_f32_bf16 v{t0}, v{vGx+k}, v{vGw+k}, v{t0}")
        g("s_nop 2")
        for r in (8, 4, 2, 1):
            g(f"v_add_f32_dpp v{t0}, v{t0}, v{t0} row_ror:{r} row_mask:0xf bank_mask:0xf")
        g(f"""
        v_mov_b32 v{t1}, v{t0}
        v_permlane16_swap_b32 v{t0}, v{t1}
        v_add_f32 v{t0}, v{t0}, v{t1}
        v_mul_f32 v{t0}, {hex(fbits(-math.log2(math.e)))}, v{t0}
        v_exp_f32 v{t0}, v{t0}
        v_add_f32 v{t0}, 1.0, v{t0}
        v_rcp_f32 v{t0}, v{t0}
        v_cmp_eq_u32 vcc, 1, v{vFB}
        v_mov_b32 v{t1}, v{t0}
        v_permlane32_swap_b32 v{t0}, v{t1}
        v_cndmask_b32 v{vFB}, v{t0}, v{t1}, vcc
        v_lshlrev_b32 v{vB2}, 16, v{vB2}
        s_mov_b32 s{sCNT}, 0
        """)
        if epos is None:
            g(f"s_waitcnt vmcnt({1 if opt.get('w1_late') == 2 else 0})")
            g("s_branch L_A_d2chk")
        else:
            g(f"""
            s_lshr_b32 s{sTMP}, s{sH}, 4
            s_lshl_b32 s{sTMP}, s{sTMP}, 2
            s_add_u32 s{sTMP}, s{sTMP}, s{sW}
            s_lshl_b32 s{sTMP}, s{sTMP}, 11
            s_mul_i32 s{sTMP+1}, s{sXCD}, {16384 if opt.get("e_rep") else 0}
            s_add_u32 s{sTMP}, s{sTMP}, s{sTMP+1}
            s_add_u32 s{sTMP}, s{sTMP}, {DE2 if opt.get("e_rep") else DE}
            v_lshrrev_b32 v{t2}, 1, v{vD2}
            s_mov_b64 exec, 0xffff
            """)
            g.lab("L_A_epoll")
            g(f"buffer_load_dwordx2 {v(t0,2)}, v{t2}, {WS}, s{sTMP} offen offset:8 sc1")
            spin_guard(g, "L_A_edone")
            g("s_waitcnt vmcnt(0)")
            g(f"v_cmp_ne_u64 vcc, s[{sT}:{sT+1}], {v(t0,2)}")
            g("s_mov_b64 exec, vcc")
            g("s_cbranch_vccnz L_A_epoll")
            g.lab("L_A_edone")
            g("s_mov_b64 exec, -1")
            g("s_mov_b64 vcc, -1")
            if opt.get("st14e"): g.stamp(14)
            if opt.get("e_sleep"): g(f"s_sleep {opt['e_sleep']}")
            g(f"s_mov_b32 s{sCNT}, 0")
        g.lab("L_A_d2poll")
        if opt.get("m_shrink"): g("s_mov_b64 exec, vcc")
        if opt.get("m_sleep"): g(f"s_sleep {opt['m_sleep']}")
        g(f"buffer_load_dwordx4 {v(vDB,4)}, v{vD2}, {WS}, s{sO} offen sc1")
        g(f"s_add_u32 s{sCNT}, s{sCNT}, 1")
        g(f"s_cmp_gt_u32 s{sCNT}, {opt.get('spin', SPIN)}")
        g("s_waitcnt vmcnt(0)")
        g("s_cbranch_scc1 L_A_d2done")
        g.lab("L_A_d2chk")
        g(f"v_cmp_ne_u64 vcc, s[{sT}:{sT+1}], {v(vDB+2,2)}")
        g("s_cbranch_vccnz L_A_d2poll")
        g.lab("L_A_d2done")
        if opt.get("m_shrink"): g("s_mov_b64 exec, -1")
        g.stamp(6)
        def lpoll():
            for k in range(16):
                g(f"s_load_dword s{16+k}, s[{sBP}:{sBP+1}], {k*256+8} glc")
        lvec = opt.get("l_vec", 0)
        if lvec == 1: g(f"buffer_load_dwordx4 {v(vDL,4)}, v{vD2}, {WS}, s{sO2} offen sc1")
        elif lvec == 0: lpoll()
        g(f"v_max_f32_dpp v{t0}, v{vDB}, v{vDB} row_ror:8 row_mask:0xf bank_mask:0xf")
        for r in (4, 2, 1):
            g(f"v_max_f32_dpp v{t0}, v{t0}, v{t0} row_ror:{r} row_mask:0xf bank_mask:0xf")
        g(f"""
        v_mov_b32 v{t1}, v{t0}
        v_permlane16_swap_b32 v{t0}, v{t1}
        v_max_f32 v{t0}, v{t0}, v{t1}
        v_sub_f32 v{t0}, v{vDB}, v{t0}
        v_exp_f32 v{t0}, v{t0}
        v_cvt_pk_bf16_f32 v{t0}, v{t0}, v{t0}
        ds_write_b16 v{vWTw}, v{t0} offset:{A_WT}
        ds_read_b64 {v(vWt,2)}, v{vWTr} offset:{A_WT}
        v_and_b32 v{vWr}, 0xffff0000, v{t0}
        s_mov_b32 s{sCNT}, 0
        s_branch {"L_A_lgo" if lvec == 2 else "L_A_lchk"}
        """)
        g.lab("L_A_lpoll")
        if lvec: g(f"buffer_load_dwordx4 {v(vDL,4)}, v{vD2}, {WS}, s{sO2} offen sc1")
        else: lpoll()
        g(f"s_add_u32 s{sCNT}, s{sCNT}, 1")
        g(f"s_cmp_gt_u32 s{sCNT}, {opt.get('spin', SPIN)}")
        g("s_cbranch_scc1 L_A_lgo")
        g.lab("L_A_lchk")
        if lvec:
            g("s_waitcnt vmcnt(0)")
            g(f"v_cmp_ne_u64 vcc, s[{sT}:{sT+1}], {v(vDL+2,2)}")
            g("s_cbranch_vccnz L_A_lpoll")
        else:
            g("s_waitcnt lgkmcnt(0)")
            for k in range(0, 16, 2):
                g(f"s_xor_b64 s[{16+k}:{17+k}], s[{16+k}:{17+k}], s[{sTT}:{sTT+1}]")
            for st_ in (8, 4, 2):
                for k in range(0, st_, 2):
                    g(f"s_or_b64 s[{16+k}:{17+k}], s[{16+k}:{17+k}], s[{16+k+st_}:{17+k+st_}]")
            g("s_cbranch_scc1 L_A_lpoll")
        g.lab("L_A_lgo")
        g(f"s_mov_b32 s{sCNT}, 0")
        if opt.get("o_sleep"): g(f"s_sleep {opt['o_sleep']}")
        g.stamp(11)
        def oget():
            g(f"buffer_load_dwordx4 {v(vDL,4)}, v{vD2}, {WS}, s{sO2} offen sc1")
            for u in range(4):
                g(f"buffer_load_dwordx4 {v(vO+4*u,4)}, v{vOg}, {WS}, s{sO3} offen offset:{u*256} sc1")
        oget()
        nwo = 0
        if wol in (1, 2):
            assert lvec == 2
            g(f"s_mul_i32 s{sC}, s{sA}, {32*1152}")
            unit_load(g, WO, vP2, A_WO, sC, 1152, "wo", NT, rows36=False)
            nwo = 9 if "wo" not in opt.get("skip", "") else 0
        g("s_waitcnt lgkmcnt(0)")
        for u in range(4):
            for d in range(4):
                g(f"v_perm_b32 v{vFr+4*u+d}, v{vWt+(u>>1)}, v{vWt+(u>>1)}, v{vSel+4*(u&1)+d}")
        g.lab("L_A_ocomb")
        g(f"v_mov_b32 v{vEr}, 0")
        g(f"s_waitcnt vmcnt({4+nwo})")
        g(f"v_mul_f32 v{vLs}, v{vWr}, v{vDL}")
        g(f"v_cmp_ne_u64 s[{sM4}:{sM4+1}], s[{sT}:{sT+1}], {v(vDL+2,2)}")
        for r in (8, 4, 2, 1):
            g(f"v_add_f32_dpp v{vLs}, v{vLs}, v{vLs} row_ror:{r} row_mask:0xf bank_mask:0xf")
        g(f"""
        v_mov_b32 v{t1}, v{vLs}
        v_permlane16_swap_b32 v{vLs}, v{t1}
        v_add_f32 v{vLs}, v{vLs}, v{t1}
        v_rcp_f32 v{vLs}, v{vLs}
        """)
        for u in range(4):
            g(f"s_waitcnt vmcnt({3-u+nwo})")
            for d in range(4):
                g(f"v_xor_b32 v{vO+4*u+d}, s{sX}, v{vO+4*u+d}")
            if u:
                for d in range(4):
                    g(f"v_bitop3_b32 v{vEr}, v{vEr}, v{vO+4*(u-1)+d}, s{sHI} bitop3:0xf6")
            g(f"{MF} {v(vD,4)}, {v(vFr+4*u,4)}, {v(vO+4*u,4)}, {'0' if u == 0 else v(vD,4)}")
        for d in range(4):
            g(f"v_bitop3_b32 v{vEr}, v{vEr}, v{vO+12+d}, s{sHI} bitop3:0xf6")
        g(f"v_and_b32 v{vEr}, 0x10001, v{vEr}")
        g(f"v_cmp_ne_u32 vcc, 0, v{vEr}")
        g(f"s_or_b64 vcc, vcc, s[{sM4}:{sM4+1}]")
        g("s_cbranch_scc1 L_A_oslow")
        g.lab("L_A_ook")
        if opt.get("stamps"): g(f"s_mov_b32 s100, s{sCNT}")
        for r in range(4):
            g(f"v_mul_f32 v{vD+r}, v{vLs}, v{vD+r}")
        g(f"v_cvt_pk_bf16_f32 v{vD}, v{vD}, v{vD+1}")
        g(f"v_cvt_pk_bf16_f32 v{vD+1}, v{vD+2}, v{vD+3}")
        g(f"ds_write_b64 v{vCW}, {v(vD,2)} offset:{A_CTXC}")
        if wol == 3:
            g(f"s_mul_i32 s{sC}, s{sA}, {32*1152}")
            unit_load(g, WO, vP2, A_WO, sC, 1152, "wo", NT, rows36=False)
        g("s_waitcnt vmcnt(0) lgkmcnt(0)" if wol == 1 else "s_waitcnt lgkmcnt(0)")
        g("s_barrier")
        g.stamp(7)
        vC = 80
        vU = 96
        vG1, vG2 = 104, 108
        vAe, vAo = 116, 120
        vY = 124
        for ks in range(4):
            g(f"ds_read_b128 {v(vC+4*ks,4)}, v{vCX} offset:{A_CTXC+ks*64}")
        g(f"s_lshl_b32 s{sO3}, s{sA}, 10")
        g(f"s_add_u32 s{sO3}, s{sO3}, {HB+LOC}")
        g(f"s_add_u32 s{sO}, s{sHB}, {LOC}")
        g(f"s_and_b32 s{sP4}, s{sT}, 15")
        sD3, vD3 = 16, 58
        g(f"s_xor_b32 s{sD3}, s{sW}, 3")
        g(f"s_or_b32 s{sD3}, s{sD3}, s{sJ}")
        g(f"s_lshl_b32 s{sTMP}, s{sH}, 7")
        g(f"s_add_u32 s{sTMP}, s{sTMP}, {D3}")
        g(f"v_lshl_add_u32 v{vD3}, v{vL}, 12, s{sTMP}")
        for ks in range(4):
            g(f"s_waitcnt lgkmcnt({3-ks})")
            for tau in range(2):
                g(f"{MF} {v(vU+4*tau,4)}, {A(aUV+(tau*4+ks)*4,4)}, {v(vC+4*ks,4)}, {'0' if ks == 0 else v(vU+4*tau,4)}")
        for r in range(4):
            g(f"v_cndmask_b32 v{vC+r}, v{vU+r}, v{vU+4+r}, s[{sM2}:{sM2+1}]")
            g(f"v_cndmask_b32 v{vC+4+r}, v{vU+4+r}, v{vU+r}, s[{sM2}:{sM2+1}]")
        for r in range(4):
            g(f"v_add_f32_dpp v{vC+r}, v{vC+4+r}, v{vC+r} quad_perm:[2,3,0,1] row_mask:0xf bank_mask:0xf")
        g(f"""
        v_cvt_pk_bf16_f32 v{vTag-2}, v{vC}, v{vC+1}
        v_cvt_pk_bf16_f32 v{vTag-1}, v{vC+2}, v{vC+3}
        s_mov_b32 exec_lo, 0x000f000f
        s_mov_b32 exec_hi, 0x000f000f
        buffer_store_dwordx4 {v(vTag-2,4)}, v{vHBs}, {WS}, s{sO} offen
        s_mov_b64 exec, -1
        """)
        def hb_wt():
            g("s_mov_b32 exec_lo, 0x000f000f")
            g("s_mov_b32 exec_hi, 0x000f000f")
            g(f"buffer_store_dwordx4 {v(vTag-2,4)}, v{vHBs}, {WS}, s{sHB} offen sc1")
            g("s_mov_b64 exec, -1")
        g.stamp(8)
        g(f"s_mov_b32 s{sCNT}, 0")
        if wol >= 2:
            g("s_waitcnt vmcnt(1)")
            g("s_barrier")
        if wol: wo_frags()
        g.lab("L_A_hbld")
        g(f"buffer_load_dwordx4 {v(vG1,4)}, v{vHBl}, {WS}, s{sO3} offen sc1")
        g(f"buffer_load_dwordx4 {v(vG2,4)}, v{vHBl}, {WS}, s{sO3} offen offset:512 sc1")
        g("s_waitcnt vmcnt(0)")
        g(f"v_cmp_ne_u64 vcc, s[{sT}:{sT+1}], {v(vG1+2,2)}")
        g(f"v_cmp_ne_u64 s[{sM3}:{sM3+1}], s[{sT}:{sT+1}], {v(vG2+2,2)}")
        src = [vG1, vG1 + 1, vG2, vG2 + 1]
        for d in range(4):
            g(f"v_cndmask_b32 v{vAe+d}, 0, v{src[d]}, s[{sM1}:{sM1+1}]")
        g(f"s_or_b64 vcc, vcc, s[{sM3}:{sM3+1}]")
        g("s_cbranch_scc1 L_A_hbpoll")
        g.lab("L_A_hbdone")
        g.stamp(9)
        def d3bell():
            g(f"s_cmp_lg_u32 s{sD3}, 0")
            g("s_cbranch_scc1 L_A_nod3")
            g("s_mov_b64 exec, 0xff")
            g(f"buffer_store_dword v{vTag}, v{vD3}, {WS}, 0 offen sc1")
            g("s_mov_b64 exec, -1")
            g.lab("L_A_nod3")
        if opt.get("d3_pos", 0) == 0 and opt.get("h3_bell", 1): d3bell()
        for d in range(4):
            g(f"v_cndmask_b32 v{vAo+d}, v{src[d]}, 0, s[{sM1}:{sM1+1}]")
        if wol: g("s_waitcnt lgkmcnt(0)")
        for t in range(4):
            g(f"{MF} {v(vY+4*t,4)}, {v(vAe,4)}, {A(aWO+(t*2)*4,4)}, 0")
        for t in range(4):
            g(f"{MF} {v(vY+4*t,4)}, {v(vAo,4)}, {A(aWO+(t*2+1)*4,4)}, {v(vY+4*t,4)}")
        g(f"{MF} {v(vY+16,4)}, {v(vAe,4)}, {A(aWO+32,4)}, 0")
        g(f"{MF} {v(vY+16,4)}, {v(vAo,4)}, {A(aWO+36,4)}, {v(vY+16,4)}")
        for t in range(4):
            g(f"v_pk_add_f32 {v(vY+4*t,2)}, {v(vY+4*t,2)}, {v(vY+4*t+2,2)}")
        for t in range(4):
            g(f"v_add_f32 v{vC+t}, v{vY+4*t}, v{vY+4*t+1}")
        for t in range(4):
            g(f"v_and_or_b32 v{vC+t}, v{vC+t}, -16, s{sP4}")
        g(f"buffer_store_dwordx4 {v(vC,4)}, v{vA_l16}, {WS}, s{sH3m} offen sc1")
        g(f"s_cmp_gt_u32 s{sW}, 1")
        g("s_cbranch_scc1 L_A_no5b")
        g(f"v_pk_add_f32 {v(vY+16,2)}, {v(vY+16,2)}, {v(vY+18,2)}")
        g(f"v_add_f32 v{vY+16}, v{vY+16}, v{vY+17}")
        g(f"v_and_or_b32 v{vY+16}, v{vY+16}, -16, s{sP4}")
        g(f"buffer_store_dword v{vY+16}, v{vH3x}, {WS}, s{sH3l} offen sc1")
        g.lab("L_A_no5b")
        if opt.get("d3_pos", 0) == 1: d3bell()
        hb_wt()
        g.stamp(10)
        g(f"s_cmp_ge_u32 s{sA}, 36")
        g("s_cbranch_scc1 L_A_exit")
        vRd = [144, 160]
        vRw = 97
        vRa = 59
        sRa = [sO, sO3, sC, sHB]
        g(f"""
        s_lshl_b32 s{sTMP}, s{sXCD}, 2
        s_add_u32 s{sTMP}, s{sTMP}, s{sW}
        s_lshl_b32 s{sTMP}, s{sTMP}, 10
        s_add_u32 s{sTMP}, s{sTMP}, {D3}
        s_add_u32 s{sBP}, s4, s{sTMP}
        s_addc_u32 s{sBP+1}, s5, 0
        """)
        def d3poll():
            for k in range(8):
                g(f"s_load_dword s{16+k}, s[{sBP}:{sBP+1}], {k*128} glc")
        if opt.get("h3_bell", 1): d3poll()
        g(f"""
        s_lshl_b32 s{sO2}, s{sW}, 12
        s_mul_i32 s{sO3}, s{sA}, {USTR}
        s_add_u32 s{sO2}, s{sO2}, s{sO3}
        s_add_u32 s{sO2}, s{sO2}, {H3}
        """)
        def rget(part):
            for u in range(4):
                if part: g(f"buffer_load_dwordx4 {v(vRd[1]+4*u,4)}, v{vA_l16}, {WS}, s{sO2} offen offset:{u*1024} sc1")
                else: g(f"buffer_load_dwordx4 {v(vRd[0]+4*u,4)}, v{vRa}, {WS}, s{sRa[u]} offen sc1")
        rget(1)
        g(f"""
        v_and_b32 v{t0}, 7, v{vL}
        v_lshlrev_b32 v{vRw}, 6, v{t0}
        v_lshrrev_b32 v{t1}, 3, v{vL}
        v_mul_u32_u24 v{vRa}, {OSTR}, v{t1}
        v_lshl_add_u32 v{vRa}, v{t0}, 4, v{vRa}
        v_lshrrev_b32 v{t0}, 5, v{vL}
        v_lshl_add_u32 v{vRw}, v{t0}, 4, v{vRw}
        v_bfe_u32 v{t0}, v{vL}, 4, 1
        v_lshl_add_u32 v{vRw}, v{t0}, 5, v{vRw}
        v_lshl_add_u32 v{vRw}, s{sW}, 2, v{vRw}
        s_mul_i32 s{sO}, s{sW}, {32*OSTR}
        s_lshl_b32 s{sTMP}, s{sA}, 7
        s_add_u32 s{sO}, s{sO}, s{sTMP}
        s_add_u32 s{sO}, s{sO}, {OB}
        s_add_u32 s{sO3}, s{sO}, {8*OSTR}
        s_add_u32 s{sC}, s{sO}, {16*OSTR}
        s_add_u32 s{sHB}, s{sO}, {24*OSTR}
        s_mov_b32 s{sCNT}, 0
        s_branch {"L_A_d3chk" if opt.get("h3_bell", 1) else "L_A_d3go"}
        """)
        g.lab("L_A_d3poll")
        d3poll()
        spin_guard(g, "L_A_d3go")
        g.lab("L_A_d3chk")
        g("s_waitcnt lgkmcnt(0)")
        for k in range(0, 8, 2):
            g(f"s_xor_b64 s[{16+k}:{17+k}], s[{16+k}:{17+k}], s[{sTT}:{sTT+1}]")
        g("s_or_b64 s[16:17], s[16:17], s[18:19]")
        g("s_or_b64 s[20:21], s[20:21], s[22:23]")
        g("s_or_b64 s[16:17], s[16:17], s[20:21]")
        g("s_cbranch_scc1 L_A_d3poll")
        g.lab("L_A_d3go")
        g(f"s_mov_b32 s{sCNT}, 0")
        if opt.get("h3_ack", 0): g("s_waitcnt vmcnt(4)")
        if opt.get("st14"): g.stamp(14)
        rget(0)
        def rsum(part, waits):
            R = vRd[part]
            for u in range(4):
                if waits[u] is not None: g(f"s_waitcnt vmcnt({waits[u]})")
                for d in range(4):
                    g(f"v_xor_b32 v{R+4*u+d}, s{sP4}, v{R+4*u+d}")
                if u == 0:
                    g(f"v_or3_b32 v{vEr}, v{R}, v{R+1}, v{R+2}")
                    g(f"v_or_b32 v{vEr}, v{vEr}, v{R+3}")
                else:
                    g(f"v_pk_add_f32 {v(vY,2)}, {v(R if u == 1 else vY,2)}, {v(R+4*u,2)}")
                    g(f"v_pk_add_f32 {v(vY+2,2)}, {v(R+2 if u == 1 else vY+2,2)}, {v(R+4*u+2,2)}")
                    g(f"v_or3_b32 v{vEr}, v{vEr}, v{R+4*u}, v{R+4*u+1}")
                    g(f"v_or3_b32 v{vEr}, v{vEr}, v{R+4*u+2}, v{R+4*u+3}")
            g(f"v_permlane32_swap_b32 v{vY}, v{vY+1}")
            g(f"v_permlane32_swap_b32 v{vY+2}, v{vY+3}")
            g(f"v_and_b32 v{vEr}, 15, v{vEr}")
            g(f"v_add_f32 v{vY}, v{vY}, v{vY+1}")
            g(f"v_add_f32 v{vY+2}, v{vY+2}, v{vY+3}")
            g(f"v_cmp_ne_u32 vcc, 0, v{vEr}")
            g(f"v_permlane16_swap_b32 v{vY}, v{vY+2}")
            g(f"v_add_f32 v{vY}, v{vY}, v{vY+2}")
        def rfin(part):
            g(f"v_add_f32_dpp v{vY}, v{vY}, v{vY} row_ror:8 row_mask:0xf bank_mask:0xf")
            g(f"ds_write_b32 v{vRw}, v{vY} offset:{A_RED + part*512}")
        sPend = sM3
        rsum(1, [4, None, None, None])
        g(f"s_mov_b64 s[{sPend}:{sPend+1}], vcc")
        rfin(1)
        g.lab("L_A_r0sum")
        rsum(0, [3, 2, 1, 0])
        g("s_cbranch_vccnz L_A_r0slow")
        g.lab("L_A_r0ok")
        rfin(0)
        g(f"s_cmp_lg_u64 s[{sPend}:{sPend+1}], 0")
        g("s_cbranch_scc1 L_A_r1slow")
        g.lab("L_A_r1ok")
        g.stamp(12)
        if opt.get("stamps"):
            g(f"s_lshl_b32 s{sCNT}, s{sCNT}, 8")
            g(f"s_or_b32 s100, s100, s{sCNT}")
        g("s_waitcnt lgkmcnt(0)")
        g("s_barrier")
        g(f"s_cmp_lg_u32 s{sW}, 0")
        g("s_cbranch_scc1 L_A_exit")
        R = 144
        g(f"""
        s_mov_b32 exec_hi, 0
        ds_read_b128 {v(R,4)}, v{vA_l16} offset:{A_RED}
        ds_read_b128 {v(R+4,4)}, v{vA_l16} offset:{A_RED+512}
        v_sub_f32 v{t0}, 1.0, v{vFB}
        s_waitcnt lgkmcnt(0)
        v_pk_add_f32 {v(R,2)}, {v(R,2)}, {v(R+2,2)}
        v_pk_add_f32 {v(R+4,2)}, {v(R+4,2)}, {v(R+6,2)}
        v_add_f32 v{R}, v{R}, v{R+1}
        v_add_f32 v{R+4}, v{R+4}, v{R+5}
        v_add_f32 v{R+4}, v{R+4}, v{vB2}
        v_mul_f32 v{R+4}, v{t0}, v{R+4}
        v_fma_f32 v{R}, v{vFB}, v{R}, v{R+4}
        v_cvt_pk_bf16_f32 v{R}, v{R}, v{R}
        buffer_store_short v{R}, v{vOA}, {OUT}, 0 offen
        s_cmp_lg_u32 s{sA}, 0
        s_cbranch_scc1 L_A_exit
        s_mov_b64 exec, 1
        buffer_store_dwordx2 {v(vTag,2)}, v{vA_l16}, {WS}, 0 offen offset:{EPOCH} sc1
        """)
        if opt.get("probe") is not None:
            i = opt["probe"]
            g.stamp(13)
            g("s_waitcnt lgkmcnt(0)")
            g(f"s_sub_u32 s{sO}, s{70+2*i}, s70")
            g(f"s_lshl_b32 s{sO}, s{sO}, 2")
            if opt.get("dcount"):
                g(f"""
                s_load_dwordx2 s[32:33], s[0:1], 104
                s_mov_b32 s34, 256
                s_mov_b32 s35, 0x00020000
                v_mov_b32 v7, {4*(opt["dcount"]-1)}
                s_waitcnt lgkmcnt(0)
                buffer_load_dword v6, v7, s[32:35], 0 offen sc1
                s_waitcnt vmcnt(0)
                v_readfirstlane_b32 s{sO}, v6
                s_mul_i32 s{sO}, s{sO}, 50
                """)
            if opt.get("resid") is not None:
                g(f"""
                s_load_dwordx2 s[32:33], s[0:1], 104
                s_mov_b32 s34, 256
                s_mov_b32 s35, 0x00020000
                v_mov_b32 v7, 0
                s_waitcnt lgkmcnt(0)
                buffer_load_dword v6, v7, s[32:35], 0 offen offset:{4*opt.get("rbin", 1)} sc1
                s_waitcnt vmcnt(0)
                s_nop 1
                v_readfirstlane_b32 s{sO}, v6
                s_mul_i32 s{sO}, s{sO}, 50
                """)
            if opt.get("clk"):
                g.lab("L_clk")
                g(f"s_memrealtime s[{sTMP}:{sTMP+1}]")
                g("s_waitcnt lgkmcnt(0)")
                g(f"s_sub_u32 s{sTMP}, s{sTMP}, s70")
                g(f"s_cmp_lt_u32 s{sTMP}, {opt['clk']}")
                g("s_cbranch_scc1 L_clk")
                g(f"s_memtime s[{sTMP}:{sTMP+1}]")
                g("s_waitcnt lgkmcnt(0)")
                g(f"s_sub_u32 s{sO}, s{sTMP}, s98")
                g(f"s_lshr_b32 s{sO}, s{sO}, 3")
            g(f"s_add_u32 s{sO}, s{sO}, 4000")
            g.lab("L_probe")
            g(f"s_memrealtime s[{sTMP}:{sTMP+1}]")
            g("s_waitcnt lgkmcnt(0)")
            g(f"s_sub_u32 s{sTMP}, s{sTMP}, s70")
            g(f"s_cmp_lt_u32 s{sTMP}, s{sO}")
            g("s_cbranch_scc1 L_probe")
            g("s_endpgm")
        g.lab("L_A_exit")
        g.stamp(13)
        dump_stamps(g, 16, 216)
        g("s_endpgm")
        if pB:
            g.lab("L_A_h0poll")
            spin_guard(g, "L_A_h0done")
            g("s_branch L_A_h0get")
        else:
            g.lab("L_A_h0poll")
            spin_guard(g, "L_A_h0done")
            g(f"s_cmp_lg_u32 s{sCNT}, 8")
            g("s_cbranch_scc1 L_A_h0ns")
            h0_wt()
            g.lab("L_A_h0ns")
            dual_next(g, sib[1:])
            h0loads()
            g("s_waitcnt vmcnt(0)")
            g("s_branch L_A_h0chk")
        g.lab("L_A_oslow")
        spin_guard(g, "L_A_ook")
        oget()
        g("s_waitcnt vmcnt(0)")
        g("s_branch L_A_ocomb")
        g.lab("L_A_hbpoll")
        spin_guard(g, "L_A_hbdone")
        g(f"s_cmp_lg_u32 s{sCNT}, 8")
        g("s_cbranch_scc1 L_A_hbns")
        hb_wt()
        g.lab("L_A_hbns")
        dual_next(g, [sO3])
        g("s_branch L_A_hbld")
        g.lab("L_A_r0slow")
        spin_guard(g, "L_A_r0ok")
        rget(0)
        g("s_branch L_A_r0sum")
        g.lab("L_A_r1slow")
        spin_guard(g, "L_A_r1ok")
        rget(1)
        rsum(1, [3, 2, 1, 0])
        g("s_cbranch_vccnz L_A_r1slow")
        rfin(1)
        g("s_branch L_A_r1ok")

class RoleB:
    def __init__(self, g, NT, vL, vN, vG):
        self.g, self.NT, self.vL, self.vN, self.vG = g, NT, vL, vN, vG

    def issue(self):
        g, vL = self.g, self.vL
        if g.opt.get("p1a_on") == "B":
            vN, vG, NT = self.vN, self.vG, self.NT
            srd_tail(g, 12, 576 * 8192)
            srd_tail(g, 8, 2304)
            g(f"""
            s_lshr_b32 s{sC}, s{sI}, 2
            s_lshl_b32 s{sC}, s{sC}, 3
            s_add_u32 s{sC}, s{sC}, s{sXCD}
            s_and_b32 s{sO}, s{sI}, 3
            v_mul_u32_u24 v5, {36*8192}, v{vG}
            v_lshl_add_u32 v5, v{vN}, 4, v5
            s_lshl_b32 s{sO2}, s{sO}, 4
            s_add_u32 s{sO2}, s{sO2}, s{sW}
            s_mul_i32 s{sO2}, s{sO2}, 9
            s_lshl_b32 s{sO3}, s{sO2}, 13
            s_lshl_b32 s{sTMP}, s{sC}, 8
            s_add_u32 s{sO3}, s{sO3}, s{sTMP}
            v_bfe_u32 v4, v{vL}, 3, 1
            v_mul_u32_u24 v4, 1152, v4
            v_mad_u32_u24 v4, v{vG}, 64, v4
            v_lshl_add_u32 v4, v{vG}, 3, v4
            s_lshr_b32 s{sO2}, s{sO2}, 1
            s_lshl_b32 s{sO2}, s{sO2}, 2
            s_waitcnt lgkmcnt(0)
            buffer_load_dwordx4 v[64:67], v4, {X}, s{sO2} offen
            buffer_load_dword v68, v4, {X}, s{sO2} offen offset:16
            """)
            for i in range(9):
                g(f"buffer_load_dwordx4 {A(4*i,4)}, v5, s[12:15], s{sO3} offen {NT}")
                if i != 8: g(f"s_addk_i32 s{sO3}, 0x2000")
            load_tag(g)
            g(f"""
            s_lshl_b32 s{sC}, s{sC}, 2
            s_add_u32 s{sC}, s{sC}, s{sO}
            s_lshl_b32 s{sC}, s{sC}, 10
            s_add_u32 s{sC}, s{sC}, {H0}
            """)
            return
        if g.opt.get("numa"):
            PFL = g.opt.get("pf_lines", 4)
            srd_tail(g, 28, 2 * 4096 * 1024)
            g(f"""
            s_and_b32 s{sMSG}, s{sXCD}, 1
            s_lshl_b32 s{sMSG}, s{sMSG}, 4
            s_and_b32 s{sO3}, s{sI}, 14
            s_add_u32 s{sMSG}, s{sMSG}, s{sO3}
            s_bfe_u32 s{sO3}, s{sXCD}, 0x10001
            s_add_u32 s{sMSG}, s{sMSG}, s{sO3}
            s_lshl_b32 s{sO3}, s{sMSG}, 18
            s_and_b32 s{sC}, s{sI}, 1
            s_lshl_b32 s{sC}, s{sC}, 8
            s_add_u32 s{sO3}, s{sO3}, s{sC}
            s_add_u32 s{sC}, s{sO3}, 0x2000
            v_lshlrev_b32 v4, 7, v{vL}
            {"" if g.opt.get("tlb") else "s_waitcnt lgkmcnt(0)"}
            s_cmp_lg_u32 s{sW}, 3
            s_cbranch_scc1 L_B_nopr
            {"s_memtime s[16:17]" if g.opt.get("dcount") else ""}
            {"s_waitcnt lgkmcnt(0)" if g.opt.get("dcount") else ""}
            s_mov_b64 exec, {(1 << g.opt.get("plines", 1)) - 1}
            {"v_lshlrev_b32 v8, 14, v1" if g.opt.get("plines", 1) > 1 else "v_mov_b32 v8, 0"}
            {f"buffer_load_dword v60, v8, s[28:31], s{sO3} offen offset:2048" if g.opt.get("pwarm") else ""}
            {f"buffer_load_dword v61, v8, s[28:31], s{sC} offen offset:2048" if g.opt.get("pwarm") else ""}
            {"s_waitcnt vmcnt(0) lgkmcnt(0)" if g.opt.get("pwarm") else ""}
            buffer_load_dword v60, v8, s[28:31], s{sO3} offen
            buffer_load_dword v61, v8, s[28:31], s{sC} offen
            s_mul_i32 s{sTMP}, s{sI}, {2*PFL*128}
            s_mov_b64 exec, {(1 << (2*PFL)) - 1}
            v_add_u32 v5, s{sTMP}, v4
            global_load_dword v63, v5, s[{sPC}:{sPC+1}]
            s_lshr_b32 s{sO}, s{sI}, 2
            s_lshl_b32 s{sO}, s{sO}, 3
            s_add_u32 s{sO}, s{sO}, s{sXCD}
            s_lshl_b32 s{sO}, s{sO}, 2
            s_and_b32 s{sO2}, s{sI}, 3
            s_add_u32 s{sO}, s{sO}, s{sO2}
            s_lshl_b32 s{sO2}, s{sO}, 11
            s_add_u32 s{sO2}, s{sO2}, {H0+LOC}
            s_mov_b64 exec, 0xffff
            buffer_load_dword v62, v4, {WS}, s{sO2} offen
            s_lshl_b32 s{sO}, s{sO}, 10
            s_add_u32 s{sO2}, s{sO}, {HB+LOC}
            s_mov_b64 exec, 0xff
            buffer_load_dword v62, v4, {WS}, s{sO2} offen
            s_add_u32 s{sO2}, s{sO}, {D3}
            buffer_load_dword v62, v4, {WS}, s{sO2} offen
            s_mov_b64 exec, -1
            s_waitcnt vmcnt(5)
            s_memtime s[34:35]
            s_waitcnt vmcnt(4)
            s_memtime s[38:39]
            s_waitcnt lgkmcnt(0)
            s_sub_u32 s38, s38, s34
            s_cmp_lt_u32 s38, {g.opt.get("gap", 100)}
            s_cselect_b32 s{sO3}, 1, 0
            v_mov_b32 v6, s{sO3}
            v_mov_b32 v7, {B_PHI}
            ds_write_b32 v7, v6
            s_waitcnt lgkmcnt(0)
            """)
            if g.opt.get("stamps"): g("s_mov_b32 s88, s38")
            if g.opt.get("dcount"):
                g(f"""
                s_load_dwordx2 s[20:21], s[0:1], 104
                s_mov_b32 s22, 256
                s_mov_b32 s23, 0x00020000
                s_sub_u32 s16, s34, s16
                s_lshr_b32 s16, s16, 8
                s_min_u32 s16, s16, 7
                s_lshl_b32 s16, s16, 2
                s_lshr_b32 s17, s38, 6
                s_min_u32 s17, s17, 6
                s_lshl_b32 s17, s17, 2
                s_add_u32 s17, s17, 32
                v_mov_b32 v6, 1
                v_mov_b32 v7, 0
                s_waitcnt lgkmcnt(0)
                s_mov_b64 exec, 1
                buffer_atomic_add v6, v7, s[20:23], s16 offen sc1
                buffer_atomic_add v6, v7, s[20:23], s17 offen sc1
                s_mov_b64 exec, -1
                """)
            g.lab("L_B_nopr")
            return
        g(f"""
        s_lshr_b32 s{sO}, s{sI}, 2
        s_lshl_b32 s{sO}, s{sO}, 3
        s_add_u32 s{sO}, s{sO}, s{sXCD}
        s_lshl_b32 s{sO}, s{sO}, 2
        s_and_b32 s{sO2}, s{sI}, 3
        s_add_u32 s{sO}, s{sO}, s{sO2}
        s_lshl_b32 s{sO2}, s{sO}, 11
        s_add_u32 s{sO2}, s{sO2}, {H0+LOC}
        s_lshl_b32 s{sO}, s{sO}, 10
        s_add_u32 s{sO}, s{sO}, {HB+LOC}
        s_cmp_eq_u32 s{sW}, 1
        s_cselect_b32 s{sO}, s{sO}, s{sO2}
        s_lshl_b32 s{sO2}, s{sXCD}, 4
        s_add_u32 s{sO2}, s{sO2}, s{sI}
        s_lshl_b32 s{sO2}, s{sO2}, 10
        s_add_u32 s{sO2}, s{sO2}, {D3}
        s_cmp_eq_u32 s{sW}, 2
        s_cselect_b32 s{sO}, s{sO2}, s{sO}
        s_cselect_b32 s{sTMP}, 0xff, -1
        s_and_b32 s{sTMP}, s{sTMP}, 0xffff
        s_mov_b32 s{sTMP+1}, 0
        v_lshlrev_b32 v4, 7, v{vL}
        """)
        if not g.opt.get("tlb"): g("s_waitcnt lgkmcnt(0)")
        load_tag(g)
        g(f"""
        {"s_cmp_lg_u32" if g.opt.get("split") else "s_cmp_gt_u32"} s{sW}, 2
        s_cbranch_scc1 L_B_head
        s_mov_b64 exec, s[{sTMP}:{sTMP+1}]
        buffer_load_dword v62, v4, {WS}, s{sO} offen
        s_mov_b64 exec, -1
        """)

    def rest(self):
        g, NT, vL, vN, vG = self.g, self.NT, self.vL, self.vN, self.vG
        opt = g.opt
        CKV, W2, B1, W1 = "s[28:31]", "s[20:23]", "s[24:27]", "s[16:19]"
        t0, t1, t2, t3 = 4, 5, 6, 7
        vL16 = 12
        vOa = 13
        vH3, vH3x = 14, 15
        vB1 = 22
        vSB = 24
        vQBs = 28
        vPVb = 16
        vTag = 36
        vML = 34
        vMXw, vMXr = 38, 39
        vD2a = 40
        vPw = 41
        vP2 = 42
        vT20, vT21, vK20, vK21 = 52, 53, 54, 55
        vHg, vHw = 56, 57
        vHe, vHo, vHke, vHko = 58, 59, 60, 61
        vQd = 8
        aS, aP = 0, 128
        sOo = 61
        sH3m, sH3l = 62, 63
        sD2, sGot = 59, 58
        sBP, sTT = 34, sPC
        sQg = 33
        sPat, sMk = 32, 36
        srd_tail(g, 28, 2 * 4096 * 1024)
        vW1, vW2 = 168, 212
        vXr = 64
        vSel = 88
        vXA = 96
        vW1a, vHs = 164, 165
        sRho, sBlk, sR0 = 38, 39, 56
        numa = opt.get("numa", 0)
        sCk = 37
        if numa:
            assert not opt.get("ckv_x", 1)
            sPhi, sDP = 38, 18
            def ckv_base():
                g(f"""
                s_lshl_b32 s{sCk}, s{sMSG}, 2
                s_add_u32 s{sCk}, s{sCk}, s{sW}
                s_lshl_b32 s{sCk}, s{sCk}, 3
                s_add_u32 s{sCk}, s{sCk}, s{sPhi}
                s_lshl_b32 s{sCk}, s{sCk}, 13
                s_lshl_b32 m0, s{sW}, 15
                s_add_u32 m0, m0, {B_CKV}
                """)
            def phi_get():
                g(f"""
                v_mov_b32 v{t0}, {B_PHI}
                s_barrier
                ds_read_b32 v{t1}, v{t0}
                s_waitcnt lgkmcnt(0)
                v_readfirstlane_b32 s{sPhi}, v{t1}
                """)
                if opt.get("numa_force") is not None: g(f"s_xor_b32 s{sPhi}, s{sPhi}, {opt['numa_force']}")
                ckv_base()
            g(f"s_and_b32 s{sB}, s{sXCD}, 1")
            g(f"v_lshlrev_b32 v{vL16}, 4, v{vL}")
            phi_get()
            load_tag(g)
        else:
            g(f"""
            s_and_b32 s{sB}, s{sXCD}, 1
            s_lshr_b32 s{sMSG}, s{sI}, 1
            s_lshl_b32 s{sMSG}, s{sMSG}, 2
            s_lshr_b32 s{sO}, s{sXCD}, 1
            s_add_u32 s{sMSG}, s{sMSG}, s{sO}
            s_lshl_b32 s{sO}, s{sB}, 5
            s_add_u32 s{sMSG}, s{sMSG}, s{sO}
            v_lshlrev_b32 v{vL16}, 4, v{vL}
            """)
            sCk = 37
            g(f"""
            s_lshl_b32 s{sCk}, s{sMSG}, 2
            s_add_u32 s{sCk}, s{sCk}, s{sW}
            s_lshl_b32 s{sCk}, s{sCk}, 15
            s_lshl_b32 m0, s{sW}, 15
            s_add_u32 m0, m0, {B_CKV}
            """)
            if opt.get("ckv_x", 1):
                g(f"s_and_b32 s{sGot}, s{sI}, 1")
                g(f"s_lshl_b32 s{sGot}, s{sGot}, 14")
                g(f"s_add_u32 s{sCk}, s{sCk}, s{sGot}")
                g(f"s_lshl_b32 s{sGot}, s{sGot}, 1")
        def ckv_stream(k0, k1):
            thr = opt.get("ckv_thr")
            for k in range(k0, k1):
                f = f16sw(k & 15)
                tmp = t0 + (k & 1)
                g(f"v_xor_b32 v{tmp}, {f*16}, v{vL16}")
                if thr is not None: g(f"s_waitcnt vmcnt({thr-1})")
                g(f"buffer_load_dwordx4 v{tmp}, {CKV}, s{sCk} offen offset:{(k%4)*1024} {NT} lds")
                if k % 4 == 3:
                    g(f"s_addk_i32 s{sCk}, {0x3000 if (numa and k % 8 == 7) else 0x1000}")
                    g(f"s_add_u32 m0, m0, 0x1000")
                if k == 15 and opt.get("ckv_x", 1): g(f"s_sub_u32 s{sCk}, s{sCk}, s{sGot}")
        c1_, c2_ = opt.get("ckv_a", 0), opt.get("ckv_b", 0)
        g.stamp(13)
        ckv_stream(0, c1_)
        g.l.append(";;SPLIT")
        pB = opt.get("p1a_on") == "B"
        if pB:
            vX, vSl, vF, vQp = 64, 72, 80, 116
            selectors(g, vSl, vL, t0, t1, t2)
            g(f"s_and_b32 s{sO}, s{sW}, 1")
            g(f"s_lshl_b32 s{sO}, s{sO}, 4")
            g(f"""
            s_cmp_lg_u32 s{sW}, 2
            s_cbranch_scc1 L_B_nt
            s_lshl_b32 s{sO2}, s{sXCD}, 4
            s_add_u32 s{sO2}, s{sO2}, s{sI}
            s_lshl_b32 s{sO2}, s{sO2}, 10
            s_add_u32 s{sO2}, s{sO2}, {D3}
            v_lshlrev_b32 v{t0}, 7, v{vL}
            s_mov_b64 exec, 0xff
            buffer_load_dword v62, v{t0}, {WS}, s{sO2} offen
            s_mov_b64 exec, -1
            """)
            g.lab("L_B_nt")
            g(f"s_waitcnt vmcnt({9+c1_})")
            for k in range(5):
                g(f"v_alignbit_b32 v{vX+k}, v{vX+k+1}, v{vX+k}, s{sO}")
            for i in range(9):
                for d in range(4):
                    g(f"v_perm_b32 v{vF+4*i+d}, v{vX+(i>>1)}, v{vX+(i>>1)}, v{vSl+4*(i&1)+d}")
            cm = opt.get("ckv_m", 0)
            c0 = c1_
            for i in range(9):
                g(f"s_waitcnt vmcnt({8-i+c1_})")
                g(f"{MF} {v(vQp,4)}, {v(vF+4*i,4)}, {A(4*i,4)}, {'0' if i == 0 else v(vQp,4)}")
                if i >= 9 - cm:
                    ckv_stream(c1_, c1_ + 1); c1_ += 1
            g(f"s_cmp_eq_u32 s{sW}, 0")
            g("s_cbranch_scc1 L_B_w0a")
            g(f"v_lshl_add_u32 v{t2}, s{sW}, 10, v{vL16}")
            g(f"ds_write_b128 v{t2}, {v(vQp,4)} offset:{B_PB}")
            g("s_waitcnt lgkmcnt(0)")
            g("s_barrier")
            g("s_branch L_B_w0b")
            g.lab("L_B_w0a")
            g("s_waitcnt lgkmcnt(0)")
            g(f"s_add_u32 s{sO}, s{sT}, {K0}")
            g(f"s_and_b32 s{sO}, s{sO}, 15")
            g("s_barrier")
            for k in range(3):
                g(f"ds_read_b128 {v(vF+4*k,4)}, v{vL16} offset:{B_PB+(k+1)*1024}")
            g("s_waitcnt lgkmcnt(1)")
            g(f"v_pk_add_f32 {v(vQp,2)}, {v(vQp,2)}, {v(vF,2)}")
            g(f"v_pk_add_f32 {v(vQp+2,2)}, {v(vQp+2,2)}, {v(vF+2,2)}")
            g("s_waitcnt lgkmcnt(0)")
            g(f"v_pk_add_f32 {v(vF+4,2)}, {v(vF+4,2)}, {v(vF+8,2)}")
            g(f"v_pk_add_f32 {v(vF+6,2)}, {v(vF+6,2)}, {v(vF+10,2)}")
            g(f"v_pk_add_f32 {v(vQp,2)}, {v(vQp,2)}, {v(vF+4,2)}")
            g(f"v_pk_add_f32 {v(vQp+2,2)}, {v(vQp+2,2)}, {v(vF+6,2)}")
            for r in range(4):
                g(f"v_and_or_b32 v{vQp+r}, v{vQp+r}, -16, s{sO}")
            g(f"buffer_store_dwordx4 {v(vQp,4)}, v{vL16}, {WS}, s{sC} offen sc1")
            g.lab("L_B_w0b")
            g.stamp(9)
            cq = opt.get("ckv_q", 0)
            ckv_stream(c1_, c1_ + cq); c1_ += cq
        srd(g, 20, 9, 4608 * 1152)
        srd(g, 24, 8, 9216)
        if opt.get("w1_on") == "B":
            srd(g, 16, 7, 576 * 9216)
            srd_tail(g, 8, 2304)
        g(f"""
        s_and_b32 s{sHG}, s{sI}, 1
        s_lshl_b32 s{sU2}, s{sXCD}, 4
        s_add_u32 s{sU2}, s{sU2}, s{sI}
        s_mov_b32 s{sPR}, s{sU2}
        s_mov_b32 s{sPOI}, {POISON}
        v_mul_u32_u24 v{vOa}, {16*OSTR}, v{vG}
        v_lshl_add_u32 v{vOa}, v{vN}, 4, v{vOa}
        """)
        def msg_addr():
            g(f"""
        s_lshl_b32 s{sOo}, s{sHG}, 6
        s_add_u32 s{sOo}, s{sOo}, s{sW}
        s_mul_i32 s{sOo}, s{sOo}, {OSTR}
        s_lshl_b32 s{sO}, s{sMSG}, 8
        s_add_u32 s{sOo}, s{sOo}, s{sO}
        s_add_u32 s{sOo}, s{sOo}, {OB}
        s_lshl_b32 s{sD2}, s{sHG}, 6
        s_add_u32 s{sD2}, s{sD2}, s{sMSG}
        s_lshl_b32 s{sD2}, s{sD2}, 8
        s_add_u32 s{sD2}, s{sD2}, {D2}
            """)
        if not numa: msg_addr()
        h3_addr(g, vH3, vH3x, vL, vN, vG, t0)
        h3_soffs(g, sH3m, sH3l)
        def fsw(dst, src, tmp):
            g(f"v_lshrrev_b32 v{tmp}, 3, v{src}")
            g(f"v_and_b32 v{dst}, 7, v{src}")
            g(f"v_lshl_add_u32 v{dst}, v{dst}, 1, v{tmp}")
            g(f"v_lshlrev_b32 v{tmp}, 3, v{tmp}")
            g(f"v_xor_b32 v{dst}, v{dst}, v{tmp}")
        fsw(t2, vN, t3)
        g(f"""
        v_xor_b32 v{t2}, v{t2}, v{vG}
        v_lshlrev_b32 v{t2}, 4, v{t2}
        v_lshl_add_u32 v{t2}, v{vN}, 10, v{t2}
        s_lshl_b32 s{sO}, s{sW}, 15
        s_add_u32 s{sO}, s{sO}, {B_CKV}
        """)
        assert B_QF == 0
        for q in range(4):
            g(f"v_xor_b32 v{vQBs+q}, {q*64}, v{t2}")
            g(f"v_add_u32 v{vSB+q}, s{sO}, v{vQBs+q}")
        g(f"v_lshrrev_b32 v{t0}, 2, v{vL}")
        fsw(t2, t0, t3)
        g(f"""
        v_bfe_u32 v{t3}, v{vL}, 1, 1
        v_xor_b32 v{t2}, v{t2}, v{t3}
        v_lshlrev_b32 v{t1}, 10, v{t0}
        v_lshl_add_u32 v{t1}, v{t2}, 4, v{t1}
        v_and_b32 v{t3}, 1, v{vL}
        v_lshl_add_u32 v{t1}, v{t3}, 3, v{t1}
        v_lshl_add_u32 v{t1}, s{sW}, 8, v{t1}
        """)
        for k in range(4):
            g(f"s_add_u32 s{sO}, s{sW}, {k}")
            g(f"s_and_b32 s{sO}, s{sO}, 3")
            g(f"v_lshl_add_u32 v{[vPw,20,21,23][k]}, s{sO}, 10, v{vL16}")
            g(f"s_lshl_b32 s{sO}, s{sO}, 15")
            g(f"s_add_u32 s{sO}, s{sO}, {B_CKV}")
            g(f"v_add_u32 v{vPVb+k}, s{sO}, v{t1}")
        for k in range(opt.get("pv_pre", 4), 4):
            for ct in range(8):
                g(f"v_xor_b32 v{168+8*k+ct}, {ct<<5}, v{vPVb+k}")
        g(f"""
        v_lshlrev_b32 v{vMXr}, 4, v{vN}
        v_lshl_add_u32 v{vMXw}, v{vG}, 2, v{vMXr}
        v_lshl_add_u32 v{vMXw}, s{sW}, 8, v{vMXw}
        s_lshl_b32 s{sQg}, s{sB}, 1
        s_add_u32 s{sQg}, s{sQg}, s{sHG}
        s_lshl_b32 s{sQg}, s{sQg}, 2
        s_add_u32 s{sQg}, s{sQg}, s{sW}
        s_lshl_b32 s{sQg}, s{sQg}, 12
        s_add_u32 s{sQg}, s{sQg}, {QB}
        s_lshr_b32 s{sTMP}, s{sW}, 1
        s_xor_b32 s{sTMP+1}, s{sW}, s{sTMP}
        s_and_b32 s{sTMP+1}, s{sTMP+1}, 1
        s_lshl_b32 s{sTMP+1}, s{sTMP+1}, 3
        s_add_u32 s{sTMP}, s{sTMP}, s{sTMP+1}
        s_lshl_b32 s{sTMP}, s{sTMP}, 4
        v_xor_b32 v{vQd}, s{sTMP}, v{vL16}
        v_xor_b32 v{vQd+1}, 32, v{vQd}
        v_xor_b32 v{vQd+2}, 64, v{vQd}
        v_xor_b32 v{vQd+3}, 0x60, v{vQd}
        v_mov_b32 v{t0}, 0
        v_lshlrev_b32 v{t1}, 2, v{vL}
        s_mov_b32 exec_hi, 0
        ds_write_b32 v{t1}, v{t0} offset:{B_ZERO}
        s_mov_b64 exec, -1
        s_lshl_b32 s{sTMP}, s{sXCD}, 3
        s_lshl_b32 s{sTMP+1}, s{sHG}, 2
        s_add_u32 s{sTMP}, s{sTMP}, s{sTMP+1}
        s_add_u32 s{sTMP}, s{sTMP}, s{sW}
        s_lshl_b32 s{sTMP}, s{sTMP}, 9
        s_add_u32 s{sTMP}, s{sTMP}, {D1}
        s_add_u32 s{sBP}, s4, s{sTMP}
        s_addc_u32 s{sBP+1}, s5, 0
        """)
        if not numa: g.stamp(14)
        ckv_stream(c1_, c1_ + c2_)
        for i in range(10):
            unit_pattern(g, vP2 + i, vL, sW if i == 9 else None, i, 1152, t0, t1)
        tr_pair_bases(g, vT20, vT21, vK20, vK21, vL, B_W2, t0, t1, t2)
        g(f"""
        v_bfe_u32 v{t0}, v{vL}, 2, 1
        v_lshlrev_b32 v{t0}, 7, v{t0}
        v_add_u32 v{t0}, {B_HL}, v{t0}
        v_lshl_add_u32 v{t1}, v{vG}, 3, v{t0}
        v_add_u32 v{t0}, 64, v{t0}
        v_mov_b32 v{t2}, {B_ZERO}
        v_cmp_gt_u32 vcc, 8, v{vN}
        v_cndmask_b32 v{vHe}, v{t2}, v{t1}, vcc
        v_cndmask_b32 v{vHo}, v{t1}, v{t2}, vcc
        v_lshrrev_b32 v{t1}, 3, v{vL}
        v_cmp_eq_u32 vcc, 0, v{t1}
        v_cndmask_b32 v{vHke}, v{t2}, v{t0}, vcc
        v_cmp_eq_u32 vcc, 1, v{t1}
        v_cndmask_b32 v{vHko}, v{t2}, v{t0}, vcc
        """)
        finish_tag(g)
        g(f"""
        v_mov_b32 v{vTag}, s{sT}
        v_mov_b32 v{vTag+1}, s{sT+1}
        s_bitcmp1_b32 s{sT}, 0
        s_cselect_b32 s{sPat}, 1, 0x10000
        v_mov_b32 v{vML+1}, s{sPat}
        s_mov_b32 s{sMk}, 0xfffefffe
        s_mov_b32 s{sTT}, s{sT}
        s_mov_b32 s{sTT+1}, s{sT}
        """)
        vPat = 33
        g(f"v_mov_b32 v{vPat}, s{sPat}")
        w1b = opt.get('w1_on') == 'B'
        if w1b:
            g(f"""
            s_lshl_b32 s{sO}, s{sU2}, 2
            s_add_u32 s{sO}, s{sO}, s{sW}
            s_mul_i32 s{sRho}, s{sO}, 1821
            s_lshr_b32 s{sRho}, s{sRho}, 16
            s_mul_i32 s{sTMP}, s{sRho}, 36
            s_sub_u32 s{sBlk}, s{sO}, s{sTMP}
            s_min_u32 s{sTMP}, s{sRho}, 4
            s_mul_i32 s{sR0}, s{sRho}, 10
            s_add_u32 s{sR0}, s{sR0}, s{sTMP}
            s_lshl_b32 s{sR0}, s{sR0}, 2
            v_bfe_u32 v{t0}, v{vL}, 3, 1
            v_mul_u32_u24 v{t0}, 1152, v{t0}
            s_lshl_b32 s{sO}, s{sR0}, 1
            """)
            assert all((i * 1821) >> 16 == i // 36 for i in range(512))
            for k in range(5):
                g(f"buffer_load_dwordx4 {v(vXr+4*k,4)}, v{t0}, {X}, s{sO} offen offset:{16*k}")
            g(f"buffer_load_dwordx2 {v(vXr+20,2)}, v{t0}, {X}, s{sO} offen offset:80")
            g(f"""
            v_mul_u32_u24 v{vW1a}, 9216, v{vG}
            v_lshl_add_u32 v{vW1a}, v{vN}, 4, v{vW1a}
            v_lshrrev_b32 v{t0}, 5, v{vL}
            v_mul_u32_u24 v{vHs}, 18432, v{t0}
            v_and_b32 v{t0}, 31, v{vL}
            v_lshl_add_u32 v{vHs}, v{t0}, 4, v{vHs}
            v_mul_u32_u24 v{t0}, 0x0202, v{vG}
            v_add_u32 v{t0}, 0x0100, v{t0}
            v_and_b32 v{t1}, 1, v{vL}
            v_lshlrev_b32 v{t1}, 4, v{t1}
            v_lshlrev_b32 v{t0}, v{t1}, v{t0}
            v_mov_b32 v{t2}, 0x0c0c0000
            v_lshrrev_b32 v{t2}, v{t1}, v{t2}
            v_or_b32 v{t0}, v{t0}, v{t2}
            v_bfe_u32 v{t1}, v{vL}, 1, 2
            v_mov_b32 v{t2}, 0x0c0c0c0c
            """)
            for d in range(4):
                g(f"v_cmp_eq_u32 vcc, {d}, v{t1}")
                g(f"v_cndmask_b32 v{vSel+d}, v{t2}, v{t0}, vcc")
        g(f"""
        v_lshrrev_b32 v{t0}, 5, v{vL}
        v_bfe_u32 v{t1}, v{vL}, 4, 1
        v_lshl_add_u32 v{t0}, v{t1}, 1, v{t0}
        v_lshl_add_u32 v{t0}, v{vN}, 2, v{t0}
        v_lshlrev_b32 v{t0}, 1, v{t0}
        s_mul_i32 s{sO}, s{sU2}, 72
        buffer_load_ushort v{vB1}, v{t0}, {B1}, s{sO} offen
        v_lshl_add_u32 v{vHw}, s{sW}, 7, v{t0}
        s_mul_i32 s{sO}, s{sU2}, 9
        v_add_u32 v{t0}, s{sO}, v{vN}
        v_and_b32 v{t1}, 1, v{t0}
        v_lshlrev_b32 v{t1}, 8, v{t1}
        v_bfe_u32 v{t2}, v{t0}, 1, 4
        v_lshl_add_u32 v{t1}, v{t2}, 4, v{t1}
        v_lshrrev_b32 v{t2}, 5, v{t0}
        v_lshl_add_u32 v{t1}, v{t2}, 9, v{t1}
        v_mul_u32_u24 v{vHg}, 36864, v{vG}
        v_add_u32 v{vHg}, v{vHg}, v{t1}
        """)
        for k in range(4):
            g(f"s_load_dwordx4 s[{[8,12,24,52][k]}:{[8,12,24,52][k]+3}], s[{sBP}:{sBP+1}], {k*128} glc")
        assert c1_ + c2_ <= 16
        if opt.get("b_sleep"): g(f"s_sleep {opt['b_sleep']}")
        if numa:
            g(f"""
            s_lshl_b32 s{sO}, s{sMSG}, 1
            s_add_u32 s{sO}, s{sO}, s{sHG}
            s_lshl_b32 s{sO}, s{sO}, 7
            s_add_u32 s{sO}, s{sO}, {DP}
            s_add_u32 s{sDP}, s4, s{sO}
            s_addc_u32 s{sDP+1}, s5, 0
            s_lshr_b32 s{sTMP}, s{sXCD}, 2
            s_or_b32 s{sTMP}, s{sTMP}, s{sW}
            s_cmp_lg_u32 s{sTMP}, 0
            s_cbranch_scc1 L_B_noann
            s_xor_b32 s{sTMP}, s{sT+1}, s{sPhi}
            v_mov_b32 v{t0}, s{sT}
            v_mov_b32 v{t1}, s{sTMP}
            v_lshlrev_b32 v{t2}, 3, v{vL}
            s_mov_b64 exec, 0xffff
            buffer_store_dwordx2 {v(t0,2)}, v{t2}, {WS}, s{sO} offen sc1
            s_mov_b64 exec, -1
            """)
            g.lab("L_B_noann")
        g.stamp(8)
        ckv_stream(c1_ + c2_, 32)
        if numa:
            g(f"""
            s_cmp_lt_u32 s{sXCD}, 4
            s_cbranch_scc1 L_B_phok
            s_mov_b32 s{sCNT}, 0
            """)
            g.lab("L_B_phpoll")
            g(f"s_load_dwordx2 s[16:17], s[{sDP}:{sDP+1}], 0 glc")
            spin_guard(g, "L_B_phok")
            g(f"""
            s_waitcnt lgkmcnt(0)
            s_xor_b64 s[16:17], s[16:17], s[{sT}:{sT+1}]
            s_lshr_b32 s{sTMP}, s17, 1
            s_or_b32 s{sTMP}, s{sTMP}, s16
            s_cbranch_scc1 L_B_phpoll
            s_cmp_lg_u32 s17, s{sPhi}
            s_cbranch_scc1 L_B_phok
            s_branch L_B_refetch
            """)
            g.lab("L_B_phok")
            g(f"s_lshl_b32 s{sMSG}, s{sMSG}, 1")
            g(f"s_add_u32 s{sMSG}, s{sMSG}, s{sPhi}")
            msg_addr()
            if opt.get("stamps"): g(f"s_mov_b32 s98, s{sPhi}")
        NW1 = 0 if "w1" in opt.get("skip", "") else 11
        w1pos = opt.get("w1_pos", 0)
        def w1_stream():
            if "w1" in opt.get("skip", ""): return
            g(f"s_mul_i32 s{sO2}, s{sR0}, 9216")
            g(f"s_lshl_b32 s{sO3}, s{sBlk}, 8")
            g(f"s_add_u32 s{sO2}, s{sO2}, s{sO3}")
            for i in range(11):
                g(f"buffer_load_dwordx4 {v(vW1+4*i,4)}, v{vW1a}, {W1}, s{sO2} offen {NT}")
                if i < 10: g(f"s_add_u32 s{sO2}, s{sO2}, {4*9216}")
                if i == 9:
                    g(f"s_cmp_ge_u32 s{sRho}, 4")
                    g(f"s_cselect_b32 s{sO2}, {576*9216}, s{sO2}")
        def w1_gemv(store=True):
            vH = 140
            for i in range(10):
                g(f"{MF} {v(vH,4)}, {v(vXA+4*i,4)}, {v(vW1+4*i,4)}, {'0' if i == 0 else v(vH,4)}")
            g(f"s_cmp_ge_u32 s{sRho}, 4")
            g("s_cbranch_scc1 L_B_w1s")
            g(f"{MF} {v(vH,4)}, {v(vXA+40,4)}, {v(vW1+40,4)}, {v(vH,4)}")
            g.lab("L_B_w1s")
            g(f"""
            s_mul_i32 s{sO}, s{sRho}, 36864
            s_lshl_b32 s{sO3}, s{sBlk}, 9
            s_add_u32 s{sO}, s{sO}, s{sO3}
            s_add_u32 s{sO}, s{sO}, {HH}
            s_and_b32 s{sO3}, s{sT}, 15
            """)
            for r in range(4):
                g(f"v_and_or_b32 v{vH+r}, v{vH+r}, -16, s{sO3}")
            g(f"s_mov_b32 s{sR0}, s{sO}")
        def w2_stream():
            g(f"s_mul_i32 s{sO2}, s{sU2}, {36*1152}")
            unit_load(g, W2, vP2, None, sO2, 1152, "w2", NT, vdst=vW2, w0extra=False)
        NW1 = 0
        if w1b:
            assert opt.get("w2_pos", 0) != 2 and opt.get("pv_pre", 4) == 4
            w1_stream(); NW1 = 0 if "w1" in opt.get("skip", "") else 11
        if opt.get("w2_pos", 0) == 2:
            w2_stream(); NW1 = 0 if "w2" in opt.get("skip", "") else 11
        g.stamp(1)
        g(f"s_lshl_b32 m0, s{sW}, 12")
        sD = [8, 12, 24, 52]
        def d1poll():
            for k in range(4):
                g(f"s_load_dwordx4 s[{sD[k]}:{sD[k]+3}], s[{sBP}:{sBP+1}], {k*128} glc")
        def d1chk():
            for k in range(4):
                g(f"s_xor_b64 s[{sD[k]}:{sD[k]+1}], s[{sD[k]}:{sD[k]+1}], s[{sTT}:{sTT+1}]")
                g(f"s_xor_b64 s[{sD[k]+2}:{sD[k]+3}], s[{sD[k]+2}:{sD[k]+3}], s[{sTT}:{sTT+1}]")
                g(f"s_or_b64 s[{sD[k]}:{sD[k]+1}], s[{sD[k]}:{sD[k]+1}], s[{sD[k]+2}:{sD[k]+3}]")
            g("s_or_b64 s[8:9], s[8:9], s[12:13]")
            g("s_or_b64 s[24:25], s[24:25], s[52:53]")
            g("s_or_b64 s[8:9], s[8:9], s[24:25]")
        def qdma():
            for k in range(4):
                g(f"buffer_load_dwordx4 v{vQd+k}, {WS}, s{sQg} offen offset:{k*1024} sc1 lds")
        def look(tag):
            if tag[0] not in opt.get("looks", "abcd"): return
            g(f"s_cmp_lg_u32 s{sGot}, 0")
            g(f"s_cbranch_scc1 L_B_lk{tag}")
            g("s_waitcnt lgkmcnt(0)")
            d1chk()
            g(f"s_cbranch_scc1 L_B_lp{tag}")
            g.stamp(3)
            qdma()
            g(f"s_mov_b32 s{sGot}, 1")
            g(f"s_branch L_B_lk{tag}")
            g.lab(f"L_B_lp{tag}")
            d1poll()
            g.lab(f"L_B_lk{tag}")
        def pvgroup(k):
            for ct in range(8):
                tmp = t0 + (ct & 1)
                g(f"v_xor_b32 v{tmp}, {ct<<5}, v{vPVb+k}")
                for hi in range(2):
                    g(f"ds_read_b64_tr_b16 {A(aP+(ct*4+k)*4+2*hi,2)}, v{tmp} offset:{hi*16384}")
        npre = opt.get("pv_pre", 4)
        vPA = 168
        def pvrd(k, ct, hi):
            g(f"ds_read_b64_tr_b16 {A(aP+(ct*4+k)*4+2*hi,2)}, v{vPA+8*k+ct} offset:{hi*16384}")
        qd = opt.get("q_direct", 0)
        if qd:
            vQr = 140
            def qld():
                for k in range(4):
                    g(f"buffer_load_dwordx4 {v(vQr+4*k,4)}, v{vL16}, {WS}, s{sQg} offen offset:{k*1024} sc1")
            def qchk():
                g(f"v_cmp_eq_u32 vcc, s{sPOI}, v{vQr}")
                for k in range(1, 4):
                    g(f"v_cmp_eq_u32 s[{sM1}:{sM1+1}], s{sPOI}, v{vQr+4*k}")
                    g(f"s_or_b64 vcc, vcc, s[{sM1}:{sM1+1}]")
            g("s_waitcnt lgkmcnt(0)")
            g(f"s_mov_b32 s{sCNT}, 0")
            g.lab("L_B_rdy")
            d1poll()
            spin_guard(g, "L_B_rdy2")
            g("s_waitcnt lgkmcnt(0)")
            d1chk()
            g("s_cbranch_scc1 L_B_rdy")
            g.lab("L_B_rdy2")
            g(f"s_lshl_b32 s{sTMP}, s{sW}, 12")
            for k in range(4): g(f"v_add_u32 v{vQd+k}, s{sTMP}, v{vQd+k}")
            g(f"s_waitcnt vmcnt({16+NW1})")
            for ks in range(16):
                g(f"ds_read_b128 {A(aS+ks*4,4)}, v{vSB+(ks&3)} offset:{(ks>>2)*256}")
            g(f"s_waitcnt vmcnt({opt.get('q_at', 0)+NW1})")
            g.stamp(3)
            qld()
            g(f"s_waitcnt vmcnt({4+NW1})")
            g.stamp(2)
            for ks in range(16):
                g(f"ds_read_b128 {A(aS+64+ks*4,4)}, v{vSB+(ks&3)} offset:{16384+(ks>>2)*256}")
            g("s_barrier")
            g(f"s_mov_b32 s{sGot}, 0")
            half = opt.get("q_mid", 2)
            for k in range(npre):
                if k == half:
                    g("s_waitcnt vmcnt(0)")
                    qchk()
                    g("s_cbranch_scc0 L_B_qm")
                    qld()
                    g.lab("L_B_qm")
                pvgroup(k)
            g(f"s_mov_b32 s{sCNT}, 0")
            g.lab("L_B_qchk")
            g("s_waitcnt vmcnt(0)")
            qchk()
            g("s_cbranch_scc1 L_B_qagain")
            g.lab("L_B_qgood")
            if opt.get("stamps"): g(f"s_mov_b32 s100, s{sCNT}")
            for k in range(4):
                g(f"ds_write_b128 v{vQd+k}, {v(vQr+4*k,4)} offset:{k*1024}")
        else:
            g("s_waitcnt lgkmcnt(0)")
            if opt.get("looks", "abcd"): d1poll()
            g(f"s_mov_b32 s{sGot}, 0")
            g(f"s_waitcnt vmcnt({16+NW1})")
            for ks in range(16):
                g(f"ds_read_b128 {A(aS+ks*4,4)}, v{vSB+(ks&3)} offset:{(ks>>2)*256}")
            if w1b:
                for i in range(11):
                    for d in range(4):
                        g(f"v_perm_b32 v{vXA+4*i+d}, v{vXr+2*i+1}, v{vXr+2*i}, v{vSel+d}")
            for z in range(opt.get("b_looks", 2)): look(f"a{z}")
            g(f"s_cmp_lg_u32 s{sGot}, 0")
            g("s_cbranch_scc1 L_B_cw1")
            g(f"s_waitcnt vmcnt({NW1})")
            g.lab("L_B_cw1")
            g(f"s_waitcnt vmcnt({4+NW1})")
            g.stamp(2)
            look("b")
            for ks in range(16):
                g(f"ds_read_b128 {A(aS+64+ks*4,4)}, v{vSB+(ks&3)} offset:{16384+(ks>>2)*256}")
            g("s_barrier")
            def pvgroup(k):
                for ct in range(8):
                    tmp = t0 + (ct & 1)
                    g(f"v_xor_b32 v{tmp}, {ct<<5}, v{vPVb+k}")
                    for hi in range(2):
                        g(f"ds_read_b64_tr_b16 {A(aP+(ct*4+k)*4+2*hi,2)}, v{tmp} offset:{hi*16384}")
            npre = opt.get("pv_pre", 4)
            vPA = 168
            def pvrd(k, ct, hi):
                g(f"ds_read_b64_tr_b16 {A(aP+(ct*4+k)*4+2*hi,2)}, v{vPA+8*k+ct} offset:{hi*16384}")
            for k in range(npre):
                look(f"c{k}")
                pvgroup(k)
            if w1b:
                look("d")
                g(f"s_cmp_lg_u32 s{sGot}, 0")
                g("s_cbranch_scc1 L_B_cw2")
                g("s_waitcnt vmcnt(0)")
                g.lab("L_B_cw2")
                g("s_waitcnt vmcnt(4)")
                w1_gemv(False)
            g(f"s_mov_b32 s{sCNT}, 0")
            g(f"s_cmp_lg_u32 s{sGot}, 0")
            g("s_cbranch_scc1 L_B_qwait")
            if opt.get("looks", "abcd"): g("s_branch L_B_d1chk")
            g.lab("L_B_d1poll")
            d1poll()
            spin_guard(g, "L_B_qget0")
            g.lab("L_B_d1chk")
            g("s_waitcnt lgkmcnt(0)")
            d1chk()
            g("s_cbranch_scc1 L_B_d1poll")
            g.stamp(3)
            g.lab("L_B_qget0")
            g(f"s_mov_b32 s{sCNT}, 0")
            qdma()
            g.lab("L_B_qwait")
        nb = 0
        if w1b:
            g(f"buffer_store_dwordx4 {v(140,4)}, v{vHs}, {WS}, s{sR0} offen sc1")
            nb = 1
        if opt.get("w2_pos", 0) == 3:
            g(f"s_mul_i32 s{sO2}, s{sU2}, {36*1152}")
            g(f"s_mul_i32 s{sO}, s{sW}, {8*1152}")
            g(f"s_add_u32 s{sO}, s{sO}, s{sO2}")
            g(f"s_add_u32 s{sO2}, s{sO2}, {32*1152}")
        if opt.get("w2_pos", 0) == 0:
            w2_stream(); nb += 0 if "w2" in opt.get("skip", "") else 11
        g(f"s_waitcnt vmcnt({nb}) lgkmcnt(0)")
        g.lab("L_B_qbar")
        g("s_barrier")
        g.stamp(4)
        def ebell():
            g(f"""
            s_cmp_lg_u32 s{sW}, 2
            s_cbranch_scc1 L_B_noeb
            s_sub_u32 s{sTMP}, s{sD2}, {D2}
            s_lshr_b32 s{sTMP}, s{sTMP}, 1
            s_add_u32 s{sTMP}, s{sTMP}, {DE2 if opt.get("e_rep") else DE}
            v_lshlrev_b32 v{t3}, {14 if opt.get("e_rep") else 4}, v{vL}
            s_mov_b64 exec, 0xff
            buffer_store_dwordx4 {v(vML,4)}, v{t3}, {WS}, s{sTMP} offen sc1
            s_mov_b64 exec, -1
            """)
            g.lab("L_B_noeb")
        vQ = 64
        vS = 156
        PRE = 4 if npre < 4 else 6
        late = [(k, ct, hi) for k in range(npre, 4) for ct in range(8) for hi in range(2)]
        per = 2 if late else 0
        seq = []
        for ks in range(PRE):
            g(f"ds_read_b128 {v(vQ+4*ks,4)}, v{vQBs+(ks&3)} offset:{(ks>>2)*256}"); seq.append(("q", ks))
        for ks in range(16):
            if opt.get("e_pos") == ks: ebell()
            if ks + PRE < 16:
                k2 = ks + PRE
                g(f"ds_read_b128 {v(vQ+4*k2,4)}, v{vQBs+(k2&3)} offset:{(k2>>2)*256}"); seq.append(("q", k2))
            for _ in range(per if ks + PRE < 16 else per + 1):
                if late:
                    pvrd(*late.pop(0)); seq.append(("p",))
            g(f"s_waitcnt lgkmcnt({min(15, len(seq) - 1 - seq.index(('q', ks)))})")
            for kt in range(2):
                g(f"{MF} {v(vS+4*kt,4)}, {A(aS+(kt*16+ks)*4,4)}, {v(vQ+4*ks,4)}, {'0' if ks == 0 else v(vS+4*kt,4)}")
            if opt.get("w2_pos", 0) == 3 and 4 <= ks < 15:
                i = ks - 4
                if i == 10: g("s_mov_b32 exec_hi, 0")
                g(f"buffer_load_dwordx4 {v(vW2+4*i,4)}, v{vP2+(i if i < 10 else 4)}, {W2}, s{sO if i < 9 else sO2} offen {NT}")
                if i == 10: g("s_mov_b64 exec, -1")
        CS = math.log2(math.e) * 128 ** -0.5
        g(f"s_mov_b32 s{sC}, {hex(fbits(CS))}")
        g(f"""
        {"" if qd else f"v_cmp_u_f32 vcc, v{vS}, v{vS}"}
        v_max3_f32 v{t0}, v{vS}, v{vS+1}, v{vS+2}
        v_max3_f32 v{t1}, v{vS+3}, v{vS+4}, v{vS+5}
        v_max3_f32 v{t0}, v{t0}, v{vS+6}, v{vS+7}
        v_max_f32 v{t0}, v{t0}, v{t1}
        {"" if qd else "s_cbranch_vccnz L_B_qslow"}
        """)
        g.lab("L_B_qok")
        if opt.get("stamps") and not qd: g(f"s_mov_b32 s100, s{sCNT}")
        g(f"""
        ds_write_b32 v{vMXw}, v{t0} offset:{B_MX}
        s_waitcnt lgkmcnt(0)
        s_barrier
        """)
        g.stamp(5)
        vM = 64
        for q in range(4):
            g(f"ds_read_b128 {v(vM+4*q,4)}, v{vMXr} offset:{B_MX+q*256}")
        g(f"""
        s_waitcnt lgkmcnt(2)
        v_max3_f32 v{vM}, v{vM}, v{vM+1}, v{vM+2}
        v_max3_f32 v{vM+3}, v{vM+3}, v{vM+4}, v{vM+5}
        v_max3_f32 v{vM}, v{vM}, v{vM+6}, v{vM+7}
        s_waitcnt lgkmcnt(0)
        v_max3_f32 v{vM+8}, v{vM+8}, v{vM+9}, v{vM+10}
        v_max3_f32 v{vM+11}, v{vM+11}, v{vM+12}, v{vM+13}
        v_max3_f32 v{vM+8}, v{vM+8}, v{vM+14}, v{vM+15}
        v_max3_f32 v{vM}, v{vM}, v{vM+3}, v{vM+11}
        v_max_f32 v{vM}, v{vM}, v{vM+8}
        v_mul_f32 v{vML}, s{sC}, v{vM}
        """)
        n1 = min(len(late), 14)
        for _ in range(n1): pvrd(*late.pop(0))
        def stat(wave, off, tag):
            g(f"s_cmp_lg_u32 s{sW}, {wave}")
            g(f"s_cbranch_scc1 L_B_nost{tag}")
            if off: g(f"s_add_u32 s{sD2}, s{sD2}, {off}")
            g("s_mov_b64 exec, 0xffff")
            g(f"buffer_store_dwordx4 {v(vML,4)}, v{vL16}, {WS}, s{sD2} offen sc1")
            g("s_mov_b64 exec, -1")
            g.lab(f"L_B_nost{tag}")
        if opt.get("m_early"): stat(1, 0, "m")
        for k in range(8):
            g(f"v_fma_f32 v{vS+k}, v{vS+k}, s{sC}, -v{vML}")
        for k in range(8):
            g(f"v_exp_f32 v{vS+k}, v{vS+k}")
        vPf = 80
        vO = 96
        for k in range(4):
            g(f"v_cvt_pk_bf16_f32 v{vPf+k}, v{vS+2*k}, v{vS+2*k+1}")
        g(f"ds_write_b128 v{vPw}, {v(vPf,4)} offset:{B_PB}")
        g(f"""
        v_pk_add_f32 {v(vS,2)}, {v(vS,2)}, {v(vS+2,2)}
        v_pk_add_f32 {v(vS+4,2)}, {v(vS+4,2)}, {v(vS+6,2)}
        v_pk_add_f32 {v(vS,2)}, {v(vS,2)}, {v(vS+4,2)}
        v_add_f32 v{vS}, v{vS}, v{vS+1}
        ds_write_b32 v{vMXw}, v{vS} offset:{B_LS}
        """)
        def pv(k, cts=range(8)):
            for ct in cts:
                g(f"{MF} {v(vO+4*ct,4)}, {v(vPf+4*k,4)}, {A(aP+(ct*4+k)*4,4)}, {'0' if k == 0 else v(vO+4*ct,4)}")
        pv(0, range(2))
        if not opt.get("m_early"): stat(1, 0, "m")
        g("s_waitcnt lgkmcnt(0)")
        g("s_barrier")
        g.stamp(6)
        for k in range(1, 4):
            g(f"ds_read_b128 {v(vPf+4*k,4)}, v{[0,20,21,23][k]} offset:{B_PB}")
        for q in range(4):
            g(f"ds_read_b128 {v(vM+4*q,4)}, v{vMXr} offset:{B_LS+q*256}")
        nl = len(late)
        assert all(k == 3 for k, _, _ in late)
        for ct in range(2, 8):
            pv(0, [ct])
            for _ in range(3):
                if late: pvrd(*late.pop(0))
        assert not late
        g(f"s_waitcnt lgkmcnt({min(15, 6 + nl)})")
        adds = [f"v_pk_add_f32 {v(vM,2)}, {v(vM,2)}, {v(vM+2,2)}", f"v_pk_add_f32 {v(vM+4,2)}, {v(vM+4,2)}, {v(vM+6,2)}",
                f"v_pk_add_f32 {v(vM+8,2)}, {v(vM+8,2)}, {v(vM+10,2)}", f"v_pk_add_f32 {v(vM+12,2)}, {v(vM+12,2)}, {v(vM+14,2)}",
                f"v_pk_add_f32 {v(vM,2)}, {v(vM,2)}, {v(vM+4,2)}", f"v_pk_add_f32 {v(vM+8,2)}, {v(vM+8,2)}, {v(vM+12,2)}",
                f"v_pk_add_f32 {v(vM,2)}, {v(vM,2)}, {v(vM+8,2)}", f"v_add_f32 v{vML}, v{vM}, v{vM+1}"]
        pv(1, range(4))
        g("s_waitcnt lgkmcnt(0)")
        for ct in range(4, 8):
            pv(1, [ct])
            g(adds[2 * (ct - 4)]); g(adds[2 * (ct - 4) + 1])
        dbpos = opt.get("d2_pos", 2)
        if dbpos == 2: stat(0, DL - D2, "l")
        vOo = 64
        def cv(k, rs=range(4)):
            for r in rs:
                g(f"v_cvt_pk_bf16_f32 v{vOo+4*r+k}, v{vO+8*k+r}, v{vO+8*k+4+r}")
        def tg(k, rs=range(4)):
            for r in rs:
                g(f"v_and_or_b32 v{vOo+4*r+k}, v{vOo+4*r+k}, s{sMk}, v{vPat}")
        for p in range(4):
            pv(2, [2 * p, 2 * p + 1])
            if p >= 2: cv(p - 2, (0, 1))
            pv(3, [2 * p])
            if p >= 2: cv(p - 2, (2, 3))
            pv(3, [2 * p + 1])
            if p >= 2: tg(p - 2)
            if dbpos == 3 and p == 1: stat(0, DL - D2, "l")
        cv(2); tg(2)
        for r in range(4):
            cv(3, [r]); tg(3, [r])
            g(f"s_add_u32 s{sO}, s{sOo}, {4*r*OSTR}")
            g(f"buffer_store_dwordx4 {v(vOo+4*r,4)}, v{vOa}, {WS}, s{sO} offen sc1")
        if dbpos == 4: stat(0, DL - D2, "l")
        g.stamp(7)
        vHr = 80
        vEr = 96
        g(f"""
        s_and_b32 s{sTMP}, s{sW}, 1
        s_mul_i32 s{sO}, s{sTMP}, 18432
        s_add_u32 s{sO}, s{sO}, {HH}
        s_add_u32 s{sO2}, s{sO}, {4*36864}
        s_add_u32 s{sO3}, s{sO}, {8*36864}
        s_add_u32 s{sC}, s{sO}, {12*36864}
        s_and_b32 s{sPat}, s{sT}, 15
        s_mov_b32 s{sCNT}, 0
        """)
        for k in range(4): g(f"v_mov_b32 v{vHr+12+k}, s{sPat}")
        def hget():
            g("s_mov_b32 exec_lo, 0x01ff01ff")
            g("s_mov_b32 exec_hi, 0x01ff01ff")
            for u, so in enumerate((sO, sO2, sO3, sC)):
                if u == 3: g("s_mov_b32 exec_hi, 0")
                g(f"buffer_load_dwordx4 {v(vHr+4*u,4)}, v{vHg}, {WS}, s{so} offen sc1")
            g("s_mov_b64 exec, -1")
        g(f"s_cmp_gt_u32 s{sW}, 1")
        g("s_cbranch_scc1 L_B_noh1")
        hget()
        g.lab("L_B_noh1")
        if npre < 4: g("s_barrier")
        if opt.get("w2_pos", 0) == 1:
            if opt.get("w2_wait"): g("s_waitcnt vmcnt(0)")
            if opt.get("b_sleep2"): g(f"s_sleep {opt['b_sleep2']}")
            g(f"s_mul_i32 s{sR0}, s{sU2}, {36*1152}")
            g(f"s_mov_b32 s{sRho}, s{sO}")
            unit_load(g, W2, vP2, B_W2, sR0, 1152, "w2", NT, thr=opt.get("w2_thr"))
            g(f"s_mov_b32 s{sO}, s{sRho}")
        else:
            g(f"s_mul_i32 s{sTMP}, s{sW}, 9216")
            g(f"v_add_u32 v{t2}, s{sTMP}, v{vL16}")
            g("s_waitcnt vmcnt(4)")
            for i in range(9):
                g(f"ds_write_b128 v{t2}, {v(vW2+4*i,4)} offset:{B_W2+i*1024}")
            g(f"ds_write_b128 v{vPw}, {v(vW2+36,4)} offset:{B_W2+36864}")
            g(f"ds_write_b128 v{vL16}, {v(vW2+40,4)} offset:{B_W2+36864+4096}")
        g(f"s_cmp_gt_u32 s{sW}, 1")
        g("s_cbranch_scc1 L_B_hbar")
        g.lab("L_B_hchk")
        g("s_mov_b32 exec_lo, 0x01ff01ff")
        g("s_mov_b32 exec_hi, 0x01ff01ff")
        g("s_waitcnt vmcnt(0)")
        g.stamp(10)
        vHx = 100
        for k in range(16):
            g(f"v_xor_b32 v{vHx+k}, s{sPat}, v{vHr+k}")
        g(f"v_or3_b32 v{vEr}, v{vHx}, v{vHx+1}, v{vHx+2}")
        for k in range(3, 15, 2):
            g(f"v_or3_b32 v{vEr}, v{vEr}, v{vHx+k}, v{vHx+k+1}")
        g(f"v_or_b32 v{vEr}, v{vEr}, v{vHx+15}")
        g(f"v_and_b32 v{vEr}, 15, v{vEr}")
        g(f"v_cmp_ne_u32 vcc, 0, v{vEr}")
        g("s_cbranch_vccnz L_B_hslow")
        g.lab("L_B_hok")
        c1 = -2.0 * math.log2(math.e) * math.sqrt(2.0 / math.pi)
        g(f"""
        v_pk_add_f32 {v(vHx,2)}, {v(vHx,2)}, {v(vHx+4,2)}
        v_pk_add_f32 {v(vHx+2,2)}, {v(vHx+2,2)}, {v(vHx+6,2)}
        v_pk_add_f32 {v(vHx+8,2)}, {v(vHx+8,2)}, {v(vHx+12,2)}
        v_pk_add_f32 {v(vHx+10,2)}, {v(vHx+10,2)}, {v(vHx+14,2)}
        v_pk_add_f32 {v(vHx,2)}, {v(vHx,2)}, {v(vHx+8,2)}
        v_pk_add_f32 {v(vHx+2,2)}, {v(vHx+2,2)}, {v(vHx+10,2)}
        v_lshlrev_b32 v{vB1}, 16, v{vB1}
        v_mov_b32 v{t1}, {hex(fbits(c1))}
        v_permlane32_swap_b32 v{vHx}, v{vHx+1}
        v_permlane32_swap_b32 v{vHx+2}, v{vHx+3}
        v_add_f32 v{vHx}, v{vHx}, v{vHx+1}
        v_add_f32 v{vHx+2}, v{vHx+2}, v{vHx+3}
        s_mov_b32 s{sC}, {hex(fbits(c1*0.044715))}
        v_permlane16_swap_b32 v{vHx}, v{vHx+2}
        v_add_f32 v{vHx}, v{vHx}, v{vHx+2}
        v_add_f32 v{vHx}, v{vHx}, v{vB1}
        v_mul_f32 v{t0}, v{vHx}, v{vHx}
        v_fma_f32 v{t0}, v{t0}, s{sC}, v{t1}
        v_mul_f32 v{t0}, v{t0}, v{vHx}
        v_exp_f32 v{t0}, v{t0}
        v_add_f32 v{t0}, 1.0, v{t0}
        v_rcp_f32 v{t0}, v{t0}
        v_mul_f32 v{t0}, v{t0}, v{vHx}
        v_cvt_pk_bf16_f32 v{t0}, v{t0}, v{t0}
        ds_write_b16 v{vHw}, v{t0} offset:{B_HL}
        s_mov_b64 exec, -1
        """)
        g.lab("L_B_hbar")
        g("s_waitcnt vmcnt(0) lgkmcnt(0)" if opt.get("w2_pos", 0) == 1 else "s_waitcnt lgkmcnt(0)")
        g("s_barrier")
        g.stamp(11)
        aW = 0
        vHA = 64
        vY = 96
        g(f"ds_read2_b64 {v(vHA,4)}, v{vHe} offset0:0 offset1:4")
        g(f"ds_read2_b64 {v(vHA+6,4)}, v{vHo} offset0:0 offset1:4")
        def w2reads(t):
            for x in range(2):
                b = aW + (t * 2 + x) * 6
                g(f"ds_read_b64_tr_b16 {A(b,2)}, v{vT21 if x else vT20} offset:{t*256}")
                g(f"ds_read_b64_tr_b16 {A(b+2,2)}, v{vT21 if x else vT20} offset:{16*1152+t*256}")
        def w2rk(t):
            for x in range(2):
                b = aW + (t * 2 + x) * 6
                g(f"ds_read_b64_tr_b16 {A(b+4,2)}, v{vK21 if x else vK20} offset:{t*256}")
        def w2mf(t):
            for x in range(2):
                b = aW + (t * 2 + x) * 6
                g(f"{MF} {v(vY+4*t,4)}, {v(vHA+6*x,4)}, {A(b,4)}, {'0' if x == 0 else v(vY+4*t,4)}")
        def w2mf16(t):
            for x in range(2):
                b = aW + (t * 2 + x) * 6
                g(f"{MF16} {v(vY+4*t,4)}, {v(vHA+6*x+4,2)}, {A(b+4,2)}, {v(vY+4*t,4)}")
        w2reads(0); w2reads(1); w2reads(2)
        g("s_waitcnt lgkmcnt(8)")
        w2mf(0)
        w2reads(3)
        g("s_waitcnt lgkmcnt(8)")
        w2mf(1)
        w2reads(4)
        g("s_waitcnt lgkmcnt(8)")
        w2mf(2)
        g(f"ds_read_b64 {v(vHA+4,2)}, v{vHke}")
        g(f"ds_read_b64 {v(vHA+10,2)}, v{vHko}")
        w2rk(0); w2rk(1)
        g("s_waitcnt lgkmcnt(10)")
        w2mf(3)
        w2rk(2); w2rk(3); w2rk(4)
        g("s_waitcnt lgkmcnt(12)")
        w2mf(4)
        for t in range(5):
            g(f"s_waitcnt lgkmcnt({2*(4-t)})")
            w2mf16(t)
        for t in range(4):
            g(f"v_and_or_b32 v{vHA+t}, v{vY+4*t}, -16, s{sPat}")
        g(f"buffer_store_dwordx4 {v(vHA,4)}, v{vH3}, {WS}, s{sH3m} offen sc1")
        g(f"s_cmp_gt_u32 s{sW}, 1")
        g("s_cbranch_scc1 L_B_no5b")
        g(f"v_and_or_b32 v{vY+16}, v{vY+16}, -16, s{sPat}")
        g(f"buffer_store_dword v{vY+16}, v{vH3x}, {WS}, s{sH3l} offen sc1")
        g.lab("L_B_no5b")
        g.stamp(12)
        dump_stamps(g, 16, 216)
        g("s_endpgm")
        if numa:
            g.lab("L_B_refetch")
            if opt.get("dcount"):
                g(f"""
                s_load_dwordx2 s[12:13], s[0:1], 104
                s_mov_b32 s14, 256
                s_mov_b32 s15, 0x00020000
                v_mov_b32 v6, 1
                v_mov_b32 v7, 60
                s_waitcnt lgkmcnt(0)
                s_mov_b64 exec, 1
                buffer_atomic_add v6, v7, s[12:15], 0 offen sc1
                s_mov_b64 exec, -1
                """)
            g(f"s_xor_b32 s{sPhi}, s{sPhi}, 1")
            g("s_waitcnt vmcnt(0)")
            ckv_base()
            ckv_stream(0, 32)
            g("s_branch L_B_phok")
        g.lab("L_B_hslow")
        spin_guard(g, "L_B_hok")
        hget()
        g("s_branch L_B_hchk")
        if qd:
            g.lab("L_B_qagain")
            spin_guard(g, "L_B_qgood")
            qld()
            g("s_branch L_B_qchk")
            return
        g.lab("L_B_qslow")
        spin_guard(g, "L_B_qok")
        g(f"s_mov_b64 s[{sM1}:{sM1+1}], 0")
        for ks in range(16):
            g(f"v_cmp_eq_u32 vcc, s{sPOI}, v{vQ+4*ks}")
            g(f"s_or_b64 s[{sM1}:{sM1+1}], s[{sM1}:{sM1+1}], vcc")
        g("s_cbranch_scc0 L_B_qok")
        g("s_barrier")
        qdma()
        g("s_waitcnt vmcnt(0)")
        g("s_branch L_B_qbar")

if __name__ == "__main__":
    opt = eval("dict(%s)" % (sys.argv[2] if len(sys.argv) > 2 else ""))
    open(sys.argv[1], "w").write(gen(opt))
```

```python
import sys, os, math, struct
sys.path.insert(0, os.path.dirname(os.path.abspath(__file__)))
from hazard import pad

KNAME = "gated_mix__compressed_kv_cla__dense_activation_gelu__decode_kernel"

WS_BYTES = 256 << 20
EPOCH = 0x0
DP = 0x2000
D1 = 0x8000
D3 = 0x10000
DH = 0x18000
DE = 0x1C000
D2 = 0x20000
DL = 0x28000
DE2 = 0x40000
QB = 0x80000
HB = 0xA0000
H0 = 0xC0000
LOC = 0x100000
H3 = 0x200000
USTR = 16384 + 256
HH = 0x340000
OB = 0x480000
OSTR = 16384 + 256
STAMP = 0x1000000
POISON = 0xFFA5FFA5
K0, K1 = 0x9E3779B9, 0x7F4A7C15
SPIN = 1 << 20

A_WUV = 0
A_QL = 32768
A_ZERO = 33280
A_WT = 33536
A_CTXC = 33792
A_RED = 34816
A_WO = 35840
A_W1 = A_WO + 36864
A_QP = A_WO
B_QF = 0
B_PB = 16384
B_MX = 20480
B_HL = 21504
B_ZERO = 21760
B_PHI = 21888
B_LS = 22528
B_CKV = 23552
B_W2 = B_CKV
LDS_BYTES = 154624

def f16sw(i):
    return (((i & 7) ^ ((i >> 3) << 2)) << 1) | (i >> 3)

def fbits(x):
    return struct.unpack("<I", struct.pack("<f", x))[0]

class G:
    def __init__(self, opt):
        self.l = []
        self.opt = opt
        self.nst = 0
        self.inA = False
    def __call__(self, s):
        for x in s.strip("\n").split("\n"):
            x = x.strip()
            if x: self.l.append("    " + x)
    def lab(self, n): self.l.append(n + ":")
    def c(self, s): self.l.append("    ; " + s)
    def stamp(self, i):
        if self.opt.get("stamps") and not (self.opt.get("fst") and 5 <= i <= 12 and self.inA):
            self(f"s_memrealtime s[{70+2*i}:{71+2*i}]")
    def fstamp(self, i):
        if self.opt.get("stamps") and self.opt.get("fst"):
            self(f"s_memrealtime s[{70+2*i}:{71+2*i}]")

def v(a, n=1): return f"v{a}" if n == 1 else f"v[{a}:{a+n-1}]"
def A(a, n=1): return f"a{a}" if n == 1 else f"a[{a}:{a+n-1}]"
def S(a, n=1): return f"s{a}" if n == 1 else f"s[{a}:{a+n-1}]"

sW = 3
WS, X = "s[4:7]", "s[8:11]"
sT = 40
sXCD, sI = 42, 43
sA, sH, sJ = 44, 45, 46
sHG, sB, sMSG, sU2 = 44, 45, 46, 47
sO, sO2, sO3, sCNT = 48, 49, 50, 51
sM1, sM2, sM3, sM4 = 52, 54, 56, 58
sPR = 60
sG0, sG1 = 61, 62
sTMP = 64
sPC = 66
sPOI = 68
sC = 69

def srd(g, base, slot, nbytes):
    g(f"s_load_dwordx2 s[{base}:{base+1}], s[0:1], {slot*8}")
    g(f"s_mov_b32 s{base+2}, {nbytes}")
    g(f"s_mov_b32 s{base+3}, 0x00020000")

def dump_stamps(g, n, tmpv):
    if not g.opt.get("stamps") or g.opt.get("probe") is not None: return
    g("s_waitcnt lgkmcnt(0)")
    g("s_mov_b64 exec, 1")
    g(f"s_lshl_b32 s{sO}, s2, 2")
    g(f"s_add_u32 s{sO}, s{sO}, s{sW}")
    g(f"s_lshl_b32 s{sO}, s{sO}, 6")
    g(f"s_add_u32 s{sO}, s{sO}, {STAMP}")
    g(f"v_mov_b32 v{tmpv+4}, 0")
    for q in range(0, 16, 4):
        for k in range(4):
            g(f"v_mov_b32 v{tmpv+k}, s{70+2*(q+k)}")
        g(f"buffer_store_dwordx4 {v(tmpv,4)}, v{tmpv+4}, {WS}, s{sO} offen offset:{q*4}")
        g("s_nop 1")
    g("s_waitcnt vmcnt(0)")

def dual_next(g, regs):
    if not g.opt.get("dual", 1): return
    g(f"s_and_b32 s{sTMP}, s{sCNT}, 14")
    g(f"s_cmp_eq_u32 s{sTMP}, 14")
    g(f"s_cselect_b32 s{sTMP}, {LOC}, 0")
    for r in regs:
        g(f"s_xor_b32 s{r}, s{r}, s{sTMP}")

def spin_guard(g, out):
    g(f"s_add_u32 s{sCNT}, s{sCNT}, 1")
    g(f"s_cmp_gt_u32 s{sCNT}, {g.opt.get('spin', SPIN)}")
    g(f"s_cbranch_scc1 {out}")

def selectors(g, vSel, vL, t0, t1, t2):
    g(f"v_and_b32 v{t0}, 1, v{vL}")
    g(f"v_cmp_eq_u32 vcc, 1, v{t0}")
    g(f"v_mov_b32 v{t1}, 0x0c0c0100")
    g(f"v_mov_b32 v{t2}, 0x01000c0c")
    g(f"v_cndmask_b32 v{vSel+3}, v{t1}, v{t2}, vcc")
    g(f"v_mov_b32 v{t1}, 0x0c0c0302")
    g(f"v_mov_b32 v{t2}, 0x03020c0c")
    g(f"v_cndmask_b32 v{vSel+7}, v{t1}, v{t2}, vcc")
    g(f"v_bfe_u32 v{t0}, v{vL}, 1, 2")
    g(f"v_mov_b32 v{t1}, 0x0c0c0c0c")
    for d in range(4):
        g(f"v_cmp_eq_u32 vcc, {d}, v{t0}")
        g(f"v_cndmask_b32 v{vSel+d}, v{t1}, v{vSel+3}, vcc")
        g(f"v_cndmask_b32 v{vSel+4+d}, v{t1}, v{vSel+7}, vcc")

def unit_pattern(g, dst, vL, i_expr_sgpr, i_const, pitch, t0, t1):
    if i_expr_sgpr is not None:
        g(f"v_lshl_add_u32 v{t0}, s{i_expr_sgpr}, 6, v{vL}")
    else:
        g(f"v_add_u32 v{t0}, {64*i_const}, v{vL}")
    g(f"v_mul_u32_u24 v{t1}, 911, v{t0}")
    g(f"v_lshrrev_b32 v{t1}, 16, v{t1}")
    g(f"v_and_b32 v{dst}, 6, v{t1}")
    g(f"v_xor_b32 v{dst}, v{dst}, v{t0}")
    g(f"v_lshlrev_b32 v{dst}, 4, v{dst}")
    if pitch != 1152:
        g(f"v_mul_u32_u24 v{t1}, {pitch-1152}, v{t1}")
        g(f"v_add_u32 v{dst}, v{dst}, v{t1}")
assert all((911 * u) >> 16 == u // 72 for u in range(640))

def h3_addr(g, vH3, vH3x, vL, vN, vG, t0):
    g(f"v_lshrrev_b32 v{t0}, 3, v{vL}")
    g(f"v_mul_u32_u24 v{vH3}, {USTR}, v{t0}")
    g(f"v_and_b32 v{t0}, 7, v{vL}")
    g(f"v_lshl_add_u32 v{vH3}, v{t0}, 4, v{vH3}")
    g(f"v_lshrrev_b32 v{t0}, 5, v{vL}")
    g(f"v_mul_u32_u24 v{vH3x}, {USTR}, v{t0}")
    g(f"v_and_b32 v{t0}, 31, v{vL}")
    g(f"v_lshl_add_u32 v{vH3x}, v{t0}, 2, v{vH3x}")

def h3_soffs(g, s_main, s_left):
    g(f"s_lshl_b32 s{s_left}, s{sPR}, 7")
    g(f"s_add_u32 s{s_left}, s{s_left}, {H3}")
    g(f"s_mul_i32 s{s_main}, s{sW}, {8*USTR}")
    g(f"s_add_u32 s{s_main}, s{s_main}, s{s_left}")
    g(f"s_mul_i32 s{sTMP}, s{sW}, {2*USTR}")
    g(f"s_add_u32 s{s_left}, s{s_left}, s{sTMP}")
    g(f"s_add_u32 s{s_left}, s{s_left}, {32*USTR}")

def tr_pair_bases(g, vB0, vB1, vK0, vK1, vL, base, t0, t1, t2):
    g(f"v_lshrrev_b32 v{t0}, 2, v{vL}")
    g(f"v_bfe_u32 v{t1}, v{vL}, 1, 1")
    g(f"v_lshl_add_u32 v{t1}, s{sW}, 2, v{t1}")
    g(f"v_and_b32 v{t2}, 6, v{t0}")
    g(f"v_xor_b32 v{t2}, v{t2}, v{t1}")
    g(f"v_lshlrev_b32 v{t2}, 4, v{t2}")
    g(f"v_mul_u32_u24 v{vB0}, 1152, v{t0}")
    g(f"v_add_u32 v{vB0}, v{vB0}, v{t2}")
    g(f"v_and_b32 v{t2}, 1, v{vL}")
    g(f"v_lshlrev_b32 v{t2}, 3, v{t2}")
    g(f"v_add_u32 v{vB0}, v{vB0}, v{t2}")
    g(f"v_xor_b32 v{vB1}, 32, v{vB0}")
    if base:
        g(f"v_add_u32 v{vB0}, {base}, v{vB0}")
        g(f"v_add_u32 v{vB1}, {base}, v{vB1}")
    if vK0 is not None:
        g(f"v_and_b32 v{t0}, 3, v{t0}")
        g(f"v_and_b32 v{vK0}, 2, v{t0}")
        g(f"v_xor_b32 v{vK0}, v{vK0}, v{t1}")
        g(f"v_lshlrev_b32 v{vK0}, 4, v{vK0}")
        g(f"v_mul_u32_u24 v{t0}, 1152, v{t0}")
        g(f"v_add3_u32 v{vK0}, v{vK0}, v{t0}, v{t2}")
        g(f"v_xor_b32 v{vK1}, 32, v{vK0}")
        g(f"v_add_u32 v{vK0}, {base + 32*1152}, v{vK0}")
        g(f"v_add_u32 v{vK1}, {base + 32*1152}, v{vK1}")

MF = "v_mfma_f32_16x16x32_bf16"
MF16 = "v_mfma_f32_16x16x16_bf16"

def role_is_A(wg, opt):
    if opt.get("split"):
        import numpy as np
        return np.isin(wg & 7, list(opt["split"]))
    return wg < 128

def gen(opt):
    g = G(opt)
    NT = opt.get("nt", "")
    PFL = opt.get("pf_lines", 4)
    CODE_BYTES = 32 * 128 * PFL
    vL, vN, vG = 1, 2, 3
    g.stamp(0)
    if opt.get("clk"): g("s_memtime s[98:99]")
    g(f"s_getpc_b64 s[{sPC}:{sPC+1}]")
    g("s_cmp_ge_u32 s2, 256")
    g("s_cbranch_scc1 L_end")
    g(f"""
    s_load_dwordx2 s[4:5], s[0:1], 112
    s_load_dwordx2 s[8:9], s[0:1], 0
    s_load_dwordx2 s[28:29], s[0:1], 8
    s_load_dwordx2 s[12:13], s[0:1], 16
    s_load_dwordx2 s[16:17], s[0:1], 24
    v_lshrrev_b32 v4, 6, v0
    v_and_b32 v{vL}, 63, v0
    s_and_b32 s{sXCD}, s2, 7
    v_readfirstlane_b32 s{sW}, v4
    s_bfe_u32 s{sI}, s2, 0x40003
    v_and_b32 v{vN}, 15, v0
    v_bfe_u32 v{vG}, v0, 4, 2
    s_mov_b32 s6, {WS_BYTES - opt.get('ws_base', 0)}
    s_mov_b32 s7, 0x00020000
    """)
    if opt.get("resid") is not None:
        g(f"""
        s_load_dwordx2 s[32:33], s[0:1], 104
        s_load_dwordx2 s[20:21], s[0:1], {8*opt["resid"]}
        s_mov_b32 s34, 256
        s_mov_b32 s35, 0x00020000
        s_mov_b32 s22, {4<<20}
        s_mov_b32 s23, 0x00020000
        s_mul_i32 s{sO}, s2, 16128
        v_mov_b32 v7, 0
        s_waitcnt lgkmcnt(0)
        s_cmp_lg_u32 s{sW}, 0
        s_cbranch_scc1 L_nores
        s_mov_b64 exec, 1
        buffer_load_dword v6, v7, s[20:23], s{sO} offen offset:2048
        s_waitcnt vmcnt(0)
        s_memtime s[24:25]
        s_waitcnt lgkmcnt(0)
        buffer_load_dword v6, v7, s[20:23], s{sO} offen
        s_waitcnt vmcnt(0)
        s_memtime s[26:27]
        s_waitcnt lgkmcnt(0)
        s_sub_u32 s26, s26, s24
        s_mul_i32 s26, s26, 468
        s_lshr_b32 s26, s26, 16
        s_min_u32 s26, s26, 15
        s_lshl_b32 s26, s26, 2
        v_mov_b32 v6, 1
        buffer_atomic_add v6, v7, s[32:35], s26 offen sc1
        s_waitcnt vmcnt(0)
        s_mov_b64 exec, -1
        """)
        g.lab("L_nores")
        g("s_barrier")
    if opt.get("xprobe") is not None:
        g(f"""
        s_load_dwordx2 s[32:33], s[0:1], 104
        s_mov_b32 s34, 256
        s_mov_b32 s35, 0x00020000
        s_waitcnt lgkmcnt(0)
        v_mov_b32 v6, s70
        s_lshl_b32 s{sO}, s{sXCD}, 2
        v_mov_b32 v7, s{sO}
        s_mov_b64 exec, 1
        buffer_atomic_umax v6, v7, s[32:35], 0 offen sc1
        s_mov_b64 exec, -1
        """)
    if opt.get("split"):
        aset = list(opt["split"]); bset = [x for x in range(8) if x not in aset]
        tab = 0
        for x in range(8):
            tab |= ((aset.index(x)) if x in aset else (8 | bset.index(x))) << (4 * x)
        g(f"""
        s_lshl_b32 s{sXCD}, s{sXCD}, 2
        s_lshr_b32 s{sO}, {hex(tab)}, s{sXCD}
        s_and_b32 s{sXCD}, s{sO}, 3
        s_lshr_b32 s{sO2}, s2, 7
        s_lshl_b32 s{sO2}, s{sO2}, 2
        s_add_u32 s{sXCD}, s{sXCD}, s{sO2}
        s_bitcmp1_b32 s{sO}, 3
        s_cbranch_scc1 L_B
        """)
    else:
        g("s_cmp_ge_u32 s2, 128")
        g("s_cbranch_scc1 L_B")
    a = RoleA(g, NT, vL, vN, vG)
    b = RoleB(g, NT, vL, vN, vG)
    def prefetch(nw, idx_sgpr_expr, tag):
        g(idx_sgpr_expr)
        g(f"s_mul_i32 s{sTMP}, s{sTMP}, {nw*128}")
        g(f"v_lshl_add_u32 v5, v{vL}, 7, s{sTMP}")
        g(f"s_cmp_lg_u32 s{sW}, 3")
        g(f"s_cbranch_scc1 L_nopf{tag}")
        g(f"s_mov_b64 exec, {(1 << nw) - 1}")
        g(f"global_load_dword v{63 if tag == 'B' else 254}, v5, s[{sPC}:{sPC+1}]")
        g("s_mov_b64 exec, -1")
        g.lab(f"L_nopf{tag}")
    if opt.get("split") and opt.get("a_pf_first", 1): prefetch(PFL, f"s_lshr_b32 s{sTMP}, s2, 3", "A")
    a.issue()
    if opt.get("split") and not opt.get("a_pf_first", 1): prefetch(PFL, f"s_lshr_b32 s{sTMP}, s2, 3", "A")
    g("s_branch L_A_rest")
    g.lab("L_B")
    if opt.get("tlb"):
        maxp = [0, 3, 2, 1, 1, 2, 0, 2, 0, 2, 0, 0, 0, 0, 3, 3]
        tab = sum(m << (2 * k) for k, m in enumerate(maxp))
        g(f"""
        s_min_u32 s{sTMP}, s{sI}, 14
        s_lshl_b32 s{sTMP}, s{sTMP}, 3
        s_load_dwordx2 s[90:91], s[0:1], s{sTMP}
        s_lshl_b32 s{sTMP}, s{sI}, 1
        s_lshr_b32 s{sTMP}, {hex(tab)}, s{sTMP}
        s_and_b32 s{sTMP}, s{sTMP}, 3
        s_min_u32 s{sTMP}, s{sTMP}, s{sW}
        s_lshl_b32 s{sTMP}, s{sTMP}, 21
        s_waitcnt lgkmcnt(0)
        s_load_dword s89, s[90:91], s{sTMP}
        """)
    if opt.get("p1a_on") == "B" or opt.get("numa"): pass
    elif opt.get("split"): prefetch(PFL, f"s_lshr_b32 s{sTMP}, s2, 3", "B")
    else: prefetch(2 * PFL, f"s_mov_b32 s{sTMP}, s{sI}", "B")
    b.issue()
    if opt.get("p1a_on") == "B": prefetch(PFL, f"s_lshr_b32 s{sTMP}, s2, 3", "B")
    main = g.l
    g.l = []
    b.rest()
    k = g.l.index(";;SPLIT")
    bhead, btail = g.l[:k], g.l[k+1:]
    g.l = main
    g.lab("L_B_head")
    if opt.get("b_head", 1):
        g.l += bhead
    g("s_branch L_B_rest")
    g.lab("L_A_rest")
    g.inA = True
    a.rest()
    g.inA = False
    g.lab("L_B_rest")
    if not opt.get("b_head", 1):
        g.l += bhead
    g.l += btail
    g.lab("L_end")
    lines, added = pad(g.l)
    body = "\n".join(lines)
    hdr = open(os.path.join(os.path.dirname(os.path.abspath(__file__)), "header.txt")).read()
    return f"""{hdr}; @launch grid=(256,1,1) block=(256,1,1) lds={LDS_BYTES}
.amdgcn_target "amdgcn-amd-amdhsa--gfx950"
.text
.globl {KNAME}
.p2align 8
.type {KNAME},@function
{KNAME}:
{body}
    s_endpgm
L_code_end:
.fill ({CODE_BYTES} + 256 - (L_code_end - {KNAME})) / 4, 4, 0xbf800000
.section .rodata,"a"
.p2align 6
.amdhsa_kernel {KNAME}
  .amdhsa_next_free_vgpr 512
  .amdhsa_next_free_sgpr 102
  .amdhsa_accum_offset 256
  .amdhsa_group_segment_fixed_size 0
  .amdhsa_kernarg_size 120
  .amdhsa_user_sgpr_count 2
  .amdhsa_user_sgpr_kernarg_segment_ptr 1
  .amdhsa_system_sgpr_workgroup_id_x 1
.end_amdhsa_kernel
"""

def srd_tail(g, base, nbytes):
    g(f"s_mov_b32 s{base+2}, {nbytes}")
    g(f"s_mov_b32 s{base+3}, 0x00020000")

def load_tag(g):
    wb = g.opt.get("ws_base", 0)
    if wb:
        g(f"s_add_u32 s4, s4, {wb}")
        g("s_addc_u32 s5, s5, 0")
    g(f"s_load_dwordx2 s[{sT}:{sT+1}], s[4:5], {EPOCH}")

def finish_tag(g):
    g("s_waitcnt lgkmcnt(0)")
    g(f"s_add_u32 s{sT}, s{sT}, {K0}")
    g(f"s_add_u32 s{sT+1}, s{sT+1}, {K1}")

def bell(g, vdata, vzero, s_index, base, wave, tag):
    g(f"s_cmp_lg_u32 s{sW}, {wave}")
    g(f"s_cbranch_scc1 L_nobell_{tag}")
    g(f"s_lshl_b32 s{sTMP}, s{s_index}, 7")
    g(f"s_add_u32 s{sTMP}, s{sTMP}, {base}")
    g("s_mov_b64 exec, 1")
    g(f"buffer_store_dwordx2 {v(vdata,2)}, v{vzero}, {WS}, s{sTMP} offen sc1")
    g("s_mov_b64 exec, -1")
    g.lab(f"L_nobell_{tag}")

def unit_load(g, SRD, vP, ldsbase, s_unit_base, pitch, tag, NT, rows36=True, vdst=None, thr=None, w0extra=True):
    if tag[:2] in g.opt.get("skip", ""): return
    g(f"s_mul_i32 s{sO}, s{sW}, {8*pitch}")
    g(f"s_add_u32 s{sO}, s{sO}, s{s_unit_base}")
    if vdst is None: g(f"s_mul_i32 s{sTMP}, s{sW}, 9216")
    for i in range(9):
        if thr: g(f"s_waitcnt vmcnt({thr-1})")
        if vdst is None:
            g(f"s_add_u32 m0, s{sTMP}, {ldsbase + i*1024}")
            g(f"buffer_load_dwordx4 v{vP+i}, {SRD}, s{sO} offen {NT} lds")
        else:
            g(f"buffer_load_dwordx4 {v(vdst+4*i,4)}, v{vP+i}, {SRD}, s{sO} offen {NT}")
    if not rows36: return
    g(f"s_add_u32 s{sO}, s{s_unit_base}, {32*pitch}")
    if vdst is None:
        g(f"s_lshl_b32 s{sTMP}, s{sW}, 10")
        g(f"s_add_u32 m0, s{sTMP}, {ldsbase + 36864}")
        g(f"buffer_load_dwordx4 v{vP+9}, {SRD}, s{sO} offen {NT} lds")
    else:
        g(f"buffer_load_dwordx4 {v(vdst+36,4)}, v{vP+9}, {SRD}, s{sO} offen {NT}")
    if w0extra:
        g(f"s_cmp_lg_u32 s{sW}, 0")
        g(f"s_cbranch_scc1 L_not{tag}")
    g("s_mov_b32 exec_hi, 0")
    if vdst is None:
        g(f"s_mov_b32 m0, {ldsbase + 36864 + 4096}")
        g(f"buffer_load_dwordx4 v{vP+4}, {SRD}, s{sO} offen {NT} lds")
    else:
        g(f"buffer_load_dwordx4 {v(vdst+40,4)}, v{vP+4}, {SRD}, s{sO} offen {NT}")
    g("s_mov_b64 exec, -1")
    if w0extra: g.lab(f"L_not{tag}")

class RoleA:
    def __init__(self, g, NT, vL, vN, vG):
        self.g, self.NT, self.vL, self.vN, self.vG = g, NT, vL, vN, vG
    vX = 20
    vA_wq, vA_uk = 108, 109
    aWQ, aUK = 0, 36

    def issue(self):
        g, NT, vL, vN, vG = self.g, self.NT, self.vL, self.vN, self.vG
        WQ, WUK = "s[12:15]", "s[16:19]"
        t0, t1 = 4, 5
        vX, vA_wq, vA_uk, aWQ, aUK = self.vX, self.vA_wq, self.vA_uk, self.aWQ, self.aUK
        if g.opt.get("p1a_on") == "B":
            srd_tail(g, 16, 512 * 8192)
            g(f"""
            s_lshr_b32 s{sH}, s{sI}, 2
            s_lshl_b32 s{sH}, s{sH}, 3
            s_add_u32 s{sH}, s{sH}, s{sXCD}
            s_and_b32 s{sJ}, s{sI}, 3
            s_lshl_b32 s{sC}, s{sH}, 8
            v_bfe_u32 v{t0}, v{vL}, 2, 2
            v_lshlrev_b32 v{vA_uk}, 16, v{t0}
            v_lshl_add_u32 v{vA_uk}, v{vG}, 6, v{vA_uk}
            v_and_b32 v{t1}, 3, v{vL}
            v_lshl_add_u32 v{vA_uk}, v{t1}, 4, v{vA_uk}
            s_lshl_b32 s{sO2}, s{sJ}, 2
            s_add_u32 s{sO2}, s{sO2}, s{sW}
            s_lshl_b32 s{sO2}, s{sO2}, 18
            s_add_u32 s{sO2}, s{sO2}, s{sC}
            s_waitcnt lgkmcnt(0)
            """)
            g.fstamp(5)
            self.uk(range(8))
            load_tag(g)
            srd_tail(g, 8, 2304)
            return
        srd_tail(g, 12, 576 * 8192)
        srd_tail(g, 8, 2304)
        g(f"""
        s_lshr_b32 s{sH}, s{sI}, 2
        s_lshl_b32 s{sH}, s{sH}, 3
        s_add_u32 s{sH}, s{sH}, s{sXCD}
        s_and_b32 s{sJ}, s{sI}, 3
        v_mul_u32_u24 v{vA_wq}, {36*8192}, v{vG}
        v_lshl_add_u32 v{vA_wq}, v{vN}, 4, v{vA_wq}
        s_lshl_b32 s{sO2}, s{sJ}, 4
        s_add_u32 s{sO2}, s{sO2}, s{sW}
        s_mul_i32 s{sO2}, s{sO2}, 9
        s_lshl_b32 s{sO3}, s{sO2}, 13
        s_lshl_b32 s{sC}, s{sH}, 8
        s_add_u32 s{sO3}, s{sO3}, s{sC}
        v_bfe_u32 v{t0}, v{vL}, 3, 1
        v_mul_u32_u24 v{t0}, 1152, v{t0}
        v_mad_u32_u24 v{t0}, v{vG}, 64, v{t0}
        v_lshl_add_u32 v{t0}, v{vG}, 3, v{t0}
        s_lshr_b32 s{sO2}, s{sO2}, 1
        s_lshl_b32 s{sO2}, s{sO2}, 2
        s_waitcnt lgkmcnt(0)
        """)
        g.fstamp(5)
        g(f"""
        buffer_load_dwordx4 {v(vX,4)}, v{t0}, {X}, s{sO2} offen
        buffer_load_dword v{vX+4}, v{t0}, {X}, s{sO2} offen offset:16
        """)
        for i in range(9):
            g(f"buffer_load_dwordx4 {A(aWQ+4*i,4)}, v{vA_wq}, {WQ}, s{sO3} offen {NT}")
            if i != 8: g(f"s_addk_i32 s{sO3}, 0x2000")
        load_tag(g)
        srd_tail(g, 16, 512 * 8192)
        g(f"""
        v_bfe_u32 v{t0}, v{vL}, 2, 2
        v_lshlrev_b32 v{vA_uk}, 16, v{t0}
        v_lshl_add_u32 v{vA_uk}, v{vG}, 6, v{vA_uk}
        v_and_b32 v{t1}, 3, v{vL}
        v_lshl_add_u32 v{vA_uk}, v{t1}, 4, v{vA_uk}
        s_lshl_b32 s{sO2}, s{sJ}, 2
        s_add_u32 s{sO2}, s{sO2}, s{sW}
        s_lshl_b32 s{sO2}, s{sO2}, 18
        s_add_u32 s{sO2}, s{sO2}, s{sC}
        """)
        self.uk_split = g.opt.get("uk_early", 2)
        self.uk(range(self.uk_split))

    def uk(self, rows):
        g = self.g
        for r in rows:
            u = 2 * (r & 3) + (r >> 2)
            g(f"buffer_load_dwordx4 {A(self.aUK+4*u,4)}, v{self.vA_uk}, s[16:19], s{sO2} offen {self.NT}")
            g(f"s_addk_i32 s{sO2}, 0x2000")

    def rest(self):
        g, NT, vL, vN, vG = self.g, self.NT, self.vL, self.vN, self.vG
        opt = g.opt
        WUV, WO, W1, B2, GATE, OUT = "s[20:23]", "s[24:27]", "s[12:15]", "s[28:31]", "s[32:35]", "s[36:39]"
        t0, t1, t2, t3 = 4, 5, 6, 7
        vPOI = 8
        vSel = 12
        vX = self.vX
        vF = 160
        vQ = 200
        vR = 56
        vQlo, vQhi = 80, 84
        vAcc = 88
        vGr = 104
        vA_h1, vA_l16 = 110, 47
        vA_qlo, vA_qhi = 112, 113
        vTag = 114
        vQw = 46
        aWQ, aUK = self.aWQ, self.aUK
        sQ = 63
        g.stamp(1)
        selectors(g, vSel, vL, t0, t1, t2)
        g(f"""
        s_lshl_b32 s{sA}, s{sH}, 2
        s_add_u32 s{sA}, s{sA}, s{sJ}
        s_and_b32 s{sO}, s{sW}, 1
        s_lshl_b32 s{sO}, s{sO}, 4
        v_lshlrev_b32 v{vA_l16}, 4, v{vL}
        s_cmp_lg_u32 s{sW}, {0 if opt.get("p1a_on") == "B" else 1}
        s_cbranch_scc1 L_A_e2
        """)
        pB = opt.get("p1a_on") == "B"
        for k in range(4): g(f"v_mov_b32 v{vPOI+k}, {hex(POISON)}")
        g(f"""
        v_lshlrev_b32 v{t0}, 15, v{vG}
        v_lshl_add_u32 v{t0}, v{vN}, 4, v{t0}
        s_lshl_b32 s{sTMP}, s{sA}, 8
        s_add_u32 s{sTMP}, s{sTMP}, {QB}
        s_mov_b32 exec_hi, 0
        buffer_store_dwordx4 {v(vPOI,4)}, v{t0}, {WS}, s{sTMP} offen sc1
        s_mov_b64 exec, -1
        """)
        g.lab("L_A_e2")
        if opt.get("split"):
            g(f"""
            s_cmp_lt_u32 s{sW}, {3 if pB else 2}
            s_cbranch_scc1 L_A_e3
            s_lshl_b32 s{sTMP}, s{sA}, 11
            s_add_u32 s{sTMP}, s{sTMP}, {H0+LOC}
            s_lshl_b32 s{sTMP+1}, s{sA}, 10
            s_add_u32 s{sTMP+1}, s{sTMP+1}, {HB+LOC}
            s_cmp_eq_u32 s{sW}, 2
            s_cselect_b32 s{sTMP}, s{sTMP}, s{sTMP+1}
            v_lshlrev_b32 v{t0}, 7, v{vL}
            s_mov_b64 exec, 0xffff
            buffer_load_dword v255, v{t0}, {WS}, s{sTMP} offen
            s_mov_b64 exec, -1
            """)
            g.lab("L_A_e3")
        if pB:
            finish_tag(g)
            sPk = 54
            g(f"""
            s_lshl_b32 s{sO}, s{sH}, 12
            s_add_u32 s{sO}, s{sO}, {H0}
            s_add_u32 s{sC}, s4, s{sO}
            s_addc_u32 s{sO3}, s5, 0
            """)
            def h0_wt(): pass
        else:
            g.fstamp(6)
            g(f"s_waitcnt vmcnt({9+self.uk_split})")
            g.fstamp(7)
            for k in range(5):
                g(f"v_alignbit_b32 v{vX+k}, v{vX+k+1}, v{vX+k}, s{sO}")
            for i in range(9):
                for d in range(4):
                    g(f"v_perm_b32 v{vF+4*i+d}, v{vX+(i>>1)}, v{vX+(i>>1)}, v{vSel+4*(i&1)+d}")
            g.fstamp(8)
            ukp = opt.get("uk_pos", 0)
            for i in range(9):
                if i == ukp: self.uk(range(self.uk_split, 8))
                g(f"s_waitcnt vmcnt({8-i+(8 if i >= ukp else self.uk_split)})")
                g(f"{MF} {v(vQ+2,4)}, {v(vF+4*i,4)}, {A(aWQ+4*i,4)}, {'0' if i == 0 else v(vQ+2,4)}")
            g.fstamp(10)
            g(f"s_cmp_eq_u32 s{sW}, 0")
            g("s_cbranch_scc1 L_A_w0a")
            g(f"v_lshl_add_u32 v{t0}, s{sW}, 10, v{vA_l16}")
            g(f"ds_write_b128 v{t0}, {v(vQ+2,4)} offset:{A_QP-1024}")
            g(f"s_cmp_lg_u32 s{sW}, 1")
            g("s_cbranch_scc1 L_A_nw1")
            g(f"s_waitcnt vmcnt({8-self.uk_split})")
            g.lab("L_A_nw1")
            g("s_waitcnt lgkmcnt(0)")
            g("s_barrier")
            g(f"s_add_u32 s{sT}, s{sT}, {K0}")
            g(f"s_add_u32 s{sT+1}, s{sT+1}, {K1}")
            g("s_branch L_A_setup")
            g.lab("L_A_w0a")
            finish_tag(g)
            sib = [0, sO, sO3, sC]
            for k in range(1, 4):
                g(f"s_xor_b32 s{sTMP}, s{sA}, {k}")
                g(f"s_lshl_b32 s{sTMP}, s{sTMP}, 11")
                g(f"s_add_u32 s{sib[k]}, s{sTMP}, {H0+LOC}")
            g(f"""
            v_mov_b32 v{vQ}, s{sT}
            v_mov_b32 v{vQ+1}, s{sT+1}
            v_mov_b32 v{vQ+6}, s{sT}
            v_mov_b32 v{vQ+7}, s{sT+1}
            s_lshl_b32 s{sTMP+1}, s{sA}, 11
            s_add_u32 s{sTMP+1}, s{sTMP+1}, {H0+LOC}
            s_barrier
            """)
            for k in range(3):
                g(f"ds_read_b128 {v(vR+4*k,4)}, v{vA_l16} offset:{A_QP+k*1024}")
            g("s_waitcnt lgkmcnt(1)")
            g(f"v_pk_add_f32 {v(vQ+2,2)}, {v(vQ+2,2)}, {v(vR,2)}")
            g(f"v_pk_add_f32 {v(vQ+4,2)}, {v(vQ+4,2)}, {v(vR+2,2)}")
            g("s_waitcnt lgkmcnt(0)")
            g(f"v_pk_add_f32 {v(vR+4,2)}, {v(vR+4,2)}, {v(vR+8,2)}")
            g(f"v_pk_add_f32 {v(vR+6,2)}, {v(vR+6,2)}, {v(vR+10,2)}")
            g(f"v_pk_add_f32 {v(vQ+2,2)}, {v(vQ+2,2)}, {v(vR+4,2)}")
            g(f"v_pk_add_f32 {v(vQ+4,2)}, {v(vQ+4,2)}, {v(vR+6,2)}")
            g(f"buffer_store_dwordx4 {v(vQ,4)}, v{vA_l16}, {WS}, s{sTMP+1} offen")
            g(f"buffer_store_dwordx4 {v(vQ+4,4)}, v{vA_l16}, {WS}, s{sTMP+1} offen offset:1024")
            def h0_wt():
                g(f"s_lshl_b32 s{sTMP+1}, s{sA}, 11")
                g(f"s_add_u32 s{sTMP+1}, s{sTMP+1}, {H0}")
                g(f"buffer_store_dwordx4 {v(vQ,4)}, v{vA_l16}, {WS}, s{sTMP+1} offen sc1")
                g(f"buffer_store_dwordx4 {v(vQ+4,4)}, v{vA_l16}, {WS}, s{sTMP+1} offen offset:1024 sc1")
            g.stamp(2)
        g.lab("L_A_setup")
        srd(g, 20, 4, 512 * 8192)
        srd(g, 24, 5, 4096 * 1152)
        srd(g, 32, 11, 1152)
        srd(g, 36, 12, 2304)
        srd(g, 12, 7, 576 * 9216)
        vBell = 111
        g(f"""
        v_bfe_u32 v{t0}, v{vL}, 2, 2
        v_lshlrev_b32 v{vA_h1}, 15, v{vG}
        v_lshl_add_u32 v{vA_h1}, v{t0}, 4, v{vA_h1}
        s_lshl_b32 s{sQ}, s{sA}, 2
        s_add_u32 s{sQ}, s{sQ}, s{sW}
        s_lshl_b32 s{sQ}, s{sQ}, 6
        s_add_u32 s{sQ}, s{sQ}, {QB}
        v_bfe_u32 v{t0}, v{vL}, 2, 1
        v_lshlrev_b32 v{t0}, 8, v{t0}
        v_lshl_add_u32 v{t0}, v{vG}, 6, v{t0}
        v_and_b32 v{t1}, 3, v{vL}
        v_lshl_add_u32 v{t0}, v{t1}, 4, v{t0}
        v_add_u32 v{t0}, {A_QL}, v{t0}
        v_mov_b32 v{t1}, {A_ZERO}
        v_cmp_gt_u32 vcc, 8, v{vN}
        v_cndmask_b32 v{vA_qlo}, v{t1}, v{t0}, vcc
        v_cndmask_b32 v{vA_qhi}, v{t0}, v{t1}, vcc
        v_and_b32 v{t0}, 1, v{vL}
        v_cmp_eq_u32 s[{sM1}:{sM1+1}], 1, v{t0}
        v_and_b32 v{t0}, 2, v{vL}
        v_cmp_eq_u32 s[{sM2}:{sM2+1}], 2, v{t0}
        v_mov_b32 v{vTag}, s{sT}
        v_mov_b32 v{vTag+1}, s{sT+1}
        v_lshlrev_b32 v{vBell}, 12, v{vL}
        s_lshl_b32 s{sO2}, s{sH}, 5
        s_add_u32 s{sO2}, s{sO2}, s{sJ}
        s_lshl_b32 s{sO2}, s{sO2}, 2
        s_add_u32 s{sO2}, s{sO2}, {D1}
        """)
        if opt.get("q_direct", 0):
            g(f"""
            s_cmp_lg_u32 s{sW}, 2
            s_cbranch_scc1 L_A_nordy
            s_mov_b64 exec, 0xff
            buffer_store_dword v{vTag}, v{vBell}, {WS}, s{sO2} offen sc1
            s_mov_b64 exec, -1
            """)
            g.lab("L_A_nordy")
            g(f"""
            v_bfe_u32 v{t0}, v{vL}, 2, 2
            v_lshlrev_b32 v{vA_h1}, 8, v{vG}
            v_lshl_add_u32 v{vA_h1}, v{t0}, 4, v{vA_h1}
            v_lshl_add_u32 v{vA_h1}, s{sW}, 6, v{vA_h1}
            v_lshlrev_b32 v{vBell}, 15, v{vG}
            v_lshl_add_u32 v{vBell}, v{vN}, 4, v{vBell}
            s_lshl_b32 s{sQ}, s{sA}, 8
            s_add_u32 s{sQ}, s{sQ}, {QB}
            """)
        g(f"""
        v_mov_b32 v{t2}, 0
        v_mov_b32 v{t3}, 0
        ds_write_b64 v{t1}, {v(t2,2)}
        ds_write_b64 v{t1}, {v(t2,2)} offset:8
        v_lshrrev_b32 v{vQw}, 1, v{vG}
        v_lshlrev_b32 v{vQw}, 8, v{vQw}
        v_lshl_add_u32 v{vQw}, v{vN}, 4, v{vQw}
        v_and_b32 v{t1}, 1, v{vG}
        v_lshl_add_u32 v{vQw}, v{t1}, 3, v{vQw}
        """)
        def h0loads():
            if pB:
                for k in range(4):
                    g(f"buffer_load_dwordx4 {v(vR+4*k,4)}, v{vA_l16}, {WS}, s{sO} offen offset:{k*1024} sc1")
                return
            for k in range(1, 4):
                g(f"buffer_load_dwordx4 {v(vR+8*(k-1),4)}, v{vA_l16}, {WS}, s{sib[k]} offen sc1")
                g(f"buffer_load_dwordx4 {v(vR+8*(k-1)+4,4)}, v{vA_l16}, {WS}, s{sib[k]} offen offset:1024 sc1")
        sRho, sBlk, sR0 = 60, 43, 62
        vXr, vS1, vXA, vW1a, vHs, vXa = 116, 140, 152, 144, 145, 146
        aW1 = 80
        if opt.get('w1_on', 'A') == 'A':
            g(f"""
            s_lshl_b32 s{sBlk}, s{sA}, 2
            s_add_u32 s{sBlk}, s{sBlk}, s{sW}
            s_mul_i32 s{sRho}, s{sBlk}, 1821
            s_lshr_b32 s{sRho}, s{sRho}, 16
            s_mul_i32 s{sTMP}, s{sRho}, 36
            s_sub_u32 s{sBlk}, s{sBlk}, s{sTMP}
            s_min_u32 s{sTMP}, s{sRho}, 4
            s_mul_i32 s{sR0}, s{sRho}, 10
            s_add_u32 s{sR0}, s{sR0}, s{sTMP}
            s_lshl_b32 s{sR0}, s{sR0}, 2
            v_bfe_u32 v{t0}, v{vL}, 3, 1
            v_mul_u32_u24 v{vXa}, 1152, v{t0}
            v_mul_u32_u24 v{vW1a}, 9216, v{vG}
            v_lshl_add_u32 v{vW1a}, v{vN}, 4, v{vW1a}
            """)
            assert all((i * 1821) >> 16 == i // 36 for i in range(512))
            g(f"s_lshl_b32 s{sTMP}, s{sR0}, 1")
            for k in range(5):
                g(f"buffer_load_dwordx4 {v(vXr+4*k,4)}, v{vXa}, {X}, s{sTMP} offen offset:{16*k}")
            g(f"buffer_load_dwordx2 {v(vXr+20,2)}, v{vXa}, {X}, s{sTMP} offen offset:80")
        if not pB:
            g(f"s_cmp_lg_u32 s{sW}, 0")
            g("s_cbranch_scc1 L_A_s2")
            h0loads()
            g.lab("L_A_s2")
        vUV0, vUV1 = 20, 21
        vP2 = 22
        g(f"""
        v_lshlrev_b32 v{t0}, 1, v{vG}
        v_xor_b32 v{t0}, v{t0}, v{vN}
        v_lshlrev_b32 v{vUV0}, 17, v{vG}
        v_lshl_add_u32 v{vUV0}, v{t0}, 4, v{vUV0}
        v_xor_b32 v{vUV1}, 128, v{vUV0}
        """)
        uve = opt.get("uv_early", 0)
        nuv = 8 if "uv" not in opt.get("skip", "") else 0
        def uv_stream():
            sa, sb = 47, 59
            g(f"""
            s_lshl_b32 s{sa}, s{sJ}, 5
            s_add_u32 s{sa}, s{sa}, s{sW}
            s_lshl_b32 s{sa}, s{sa}, 15
            s_lshl_b32 s{sb}, s{sH}, 8
            s_add_u32 s{sa}, s{sa}, s{sb}
            s_lshl_b32 s{sb}, s{sW}, 13
            """)
            for z in range(nuv):
                hi, gg = z >> 2, z & 3
                if opt.get("uv_thr") and not uve: g(f"s_waitcnt vmcnt({opt['uv_thr']-1})")
                g(f"s_add_u32 m0, s{sb}, {A_WUV + z*1024}")
                g(f"s_add_u32 s{sTMP}, s{sa}, {(64*hi+gg)*8192}")
                g(f"buffer_load_dwordx4 v{vUV1 if z & 1 else vUV0}, {WUV}, s{sTMP} offen {NT} lds")
        if uve == 1:
            g("s_waitcnt lgkmcnt(0)")
            uv_stream()
        for i in range(9):
            unit_pattern(g, vP2 + i, vL, None, i, 1152, t0, t1)
        if opt.get('w1_on', 'A') == 'A':
            g(f"""
            v_lshrrev_b32 v{t0}, 5, v{vL}
            v_mul_u32_u24 v{vHs}, 18432, v{t0}
            v_and_b32 v{t0}, 31, v{vL}
            v_lshl_add_u32 v{vHs}, v{t0}, 4, v{vHs}
            v_mul_u32_u24 v{t0}, 0x0202, v{vG}
            v_add_u32 v{t0}, 0x0100, v{t0}
            v_and_b32 v{t1}, 1, v{vL}
            v_lshlrev_b32 v{t1}, 4, v{t1}
            v_lshlrev_b32 v{t0}, v{t1}, v{t0}
            v_mov_b32 v{t2}, 0x0c0c0000
            v_lshrrev_b32 v{t2}, v{t1}, v{t2}
            v_or_b32 v{t0}, v{t0}, v{t2}
            v_bfe_u32 v{t1}, v{vL}, 1, 2
            v_mov_b32 v{t2}, 0x0c0c0c0c
            """)
            for d in range(4):
                g(f"v_cmp_eq_u32 vcc, {d}, v{t1}")
                g(f"v_cndmask_b32 v{vS1+d}, v{t2}, v{t0}, vcc")
        if uve == 2:
            g("s_waitcnt lgkmcnt(0)")
            uv_stream()
        g(f"s_mov_b32 s{sCNT}, 0")
        g(f"s_cmp_lg_u32 s{sW}, 0")
        g("s_cbranch_scc1 L_A_h0wait")
        if pB:
            g(f"""
            s_mov_b32 s{sTMP}, s{sC}
            s_mov_b32 s{sTMP+1}, s{sO3}
            s_and_b32 s{sC}, s{sT}, 15
            """)
            g.lab("L_A_peek")
            for k in range(4):
                g(f"s_load_dword s{16+k}, s[{sTMP}:{sTMP+1}], {k*1024+opt.get('peek_off', 1020)} glc")
            spin_guard(g, "L_A_peek2")
            g("s_waitcnt lgkmcnt(0)")
            for k in range(4):
                g(f"s_xor_b32 s{16+k}, s{16+k}, s{sC}")
            g("s_or_b64 s[16:17], s[16:17], s[18:19]")
            g("s_or_b32 s16, s16, s17")
            g("s_and_b32 s16, s16, 15")
            g("s_cbranch_scc1 L_A_peek")
            g.lab("L_A_peek2")
            g.stamp(2)
            g.lab("L_A_h0get")
            h0loads()
            g("s_waitcnt vmcnt(0)")
        else:
            g(f"s_waitcnt vmcnt({nuv if uve else 0})")
        g.lab("L_A_h0chk")
        if opt.get("fst"):
            g(f"s_cmp_lg_u32 s{sCNT}, 0")
            g("s_cbranch_scc1 L_A_fs11")
            g.fstamp(11)
            g.lab("L_A_fs11")
        if pB:
            for k in range(16):
                g(f"v_xor_b32 v{vR+k}, s{sC}, v{vR+k}")
            g(f"v_or3_b32 v{t0}, v{vR}, v{vR+1}, v{vR+2}")
            g(f"v_or3_b32 v{t1}, v{vR+3}, v{vR+4}, v{vR+5}")
            for k in range(6, 14, 4):
                g(f"v_or3_b32 v{t0}, v{t0}, v{vR+k}, v{vR+k+1}")
                g(f"v_or3_b32 v{t1}, v{t1}, v{vR+k+2}, v{vR+k+3}")
            g(f"v_or3_b32 v{t0}, v{t0}, v{vR+14}, v{vR+15}")
            g(f"v_bitop3_b32 v{t0}, v{t0}, v{t1}, 15 bitop3:0xa8")
            g(f"v_cmp_ne_u32 vcc, 0, v{t0}")
            g("s_cbranch_vccnz L_A_h0poll")
        else:
            for k in range(3):
                g(f"v_cmp_ne_u64 vcc, s[{sT}:{sT+1}], {v(vR+8*k,2)}")
                g(f"v_cmp_ne_u64 s[{sM3}:{sM3+1}], s[{sT}:{sT+1}], {v(vR+8*k+6,2)}")
                if k == 0: g(f"s_or_b64 s[{sM4}:{sM4+1}], vcc, s[{sM3}:{sM3+1}]")
                else:
                    g(f"s_or_b64 s[{sM4}:{sM4+1}], s[{sM4}:{sM4+1}], vcc")
                    g(f"s_or_b64 s[{sM4}:{sM4+1}], s[{sM4}:{sM4+1}], s[{sM3}:{sM3+1}]")
            g("s_cbranch_scc1 L_A_h0poll")
        g.lab("L_A_h0done")
        def d1bell(tag):
            g("s_mov_b64 exec, 0xff")
            g(f"buffer_store_dword v{vTag}, v{vBell}, {WS}, s{sO2} offen sc1")
            g("s_mov_b64 exec, -1")
        qd = opt.get("q_direct", 0)
        d1p = opt.get("d1_pos", 0) if not qd else -1
        if d1p == 0: d1bell("")
        if pB:
            g(f"v_pk_add_f32 {v(vR,2)}, {v(vR,2)}, {v(vR+4,2)}")
            g(f"v_pk_add_f32 {v(vR+2,2)}, {v(vR+2,2)}, {v(vR+6,2)}")
            g(f"v_pk_add_f32 {v(vR+8,2)}, {v(vR+8,2)}, {v(vR+12,2)}")
            g(f"v_pk_add_f32 {v(vR+10,2)}, {v(vR+10,2)}, {v(vR+14,2)}")
            g(f"v_pk_add_f32 {v(vR,2)}, {v(vR,2)}, {v(vR+8,2)}")
            g(f"v_pk_add_f32 {v(vR+2,2)}, {v(vR+2,2)}, {v(vR+10,2)}")
            g(f"v_cvt_pk_bf16_f32 v{vR}, v{vR}, v{vR+1}")
            g(f"v_cvt_pk_bf16_f32 v{vR+1}, v{vR+2}, v{vR+3}")
        else:
            g(f"v_pk_add_f32 {v(vR+2,2)}, {v(vQ+2,2)}, {v(vR+2,2)}")
            g(f"v_pk_add_f32 {v(vR+4,2)}, {v(vQ+4,2)}, {v(vR+4,2)}")
            g(f"v_pk_add_f32 {v(vR+10,2)}, {v(vR+10,2)}, {v(vR+18,2)}")
            g(f"v_pk_add_f32 {v(vR+12,2)}, {v(vR+12,2)}, {v(vR+20,2)}")
            g(f"v_pk_add_f32 {v(vR+2,2)}, {v(vR+2,2)}, {v(vR+10,2)}")
            g(f"v_pk_add_f32 {v(vR+4,2)}, {v(vR+4,2)}, {v(vR+12,2)}")
            g(f"v_cvt_pk_bf16_f32 v{vR}, v{vR+2}, v{vR+3}")
            g(f"v_cvt_pk_bf16_f32 v{vR+1}, v{vR+4}, v{vR+5}")
        g(f"ds_write_b64 v{vQw}, {v(vR,2)} offset:{A_QL}")
        g("s_waitcnt lgkmcnt(0)")
        g("s_barrier")
        g(f"ds_read_b128 {v(vQlo,4)}, v{vA_qlo}")
        g(f"ds_read_b128 {v(vQhi,4)}, v{vA_qhi}")
        if d1p == 1: d1bell("")
        g("s_branch L_A_p1b")
        g.lab("L_A_h0wait")
        g(f"s_waitcnt vmcnt({nuv if uve else 0}) lgkmcnt(0)")
        g.fstamp(12)
        g("s_barrier")
        g(f"ds_read_b128 {v(vQlo,4)}, v{vA_qlo}")
        g(f"ds_read_b128 {v(vQhi,4)}, v{vA_qhi}")
        g.lab("L_A_p1b")
        g.stamp(3)
        g("s_waitcnt lgkmcnt(0)")
        for t in range(4):
            g(f"{MF} {v(vAcc+4*t,4)}, {v(vQlo,4)}, {A(aUK+8*t,4)}, 0")
        for t in range(4):
            g(f"{MF} {v(vAcc+4*t,4)}, {v(vQhi,4)}, {A(aUK+8*t+4,4)}, {v(vAcc+4*t,4)}")
        if d1p == 2:
            g(f"s_cmp_lg_u32 s{sW}, 0")
            g("s_cbranch_scc1 L_A_nod1")
            d1bell("")
            g.lab("L_A_nod1")
        for t in range(4):
            a0 = vAcc + 4 * t
            g(f"v_cndmask_b32 v{a0}, v{a0}, v{a0+1}, s[{sM1}:{sM1+1}]")
            g(f"v_cndmask_b32 v{a0+2}, v{a0+2}, v{a0+3}, s[{sM1}:{sM1+1}]")
            g(f"v_cndmask_b32 v{a0}, v{a0}, v{a0+2}, s[{sM2}:{sM2+1}]")
        for t in range(4):
            a0 = vAcc + 4 * t
            g(f"v_add_f32_dpp v{a0+1}, v{a0}, v{a0} quad_perm:[1,0,3,2] row_mask:0xf bank_mask:0xf")
        for t in range(4):
            a0 = vAcc + 4 * t
            g(f"v_add_f32_dpp v{a0}, v{a0+1}, v{a0+1} quad_perm:[2,3,0,1] row_mask:0xf bank_mask:0xf")
        g(f"v_cvt_pk_bf16_f32 v{vGr}, v{vAcc}, v{vAcc+4}")
        g(f"v_cvt_pk_bf16_f32 v{vGr+1}, v{vAcc+8}, v{vAcc+12}")
        g(f"v_permlane32_swap_b32 v{vGr}, v{vGr+2}")
        g(f"v_permlane32_swap_b32 v{vGr+1}, v{vGr+3}")
        if qd:
            g(f"""
            s_mov_b64 exec, 0x11111111
            ds_write_b128 v{vA_h1}, {v(vGr,4)} offset:{A_CTXC}
            s_mov_b64 exec, -1
            s_waitcnt lgkmcnt(0)
            s_barrier
            s_cmp_lg_u32 s{sW}, 3
            s_cbranch_scc1 L_A_noq
            s_mov_b32 exec_hi, 0
            ds_read_b128 {v(vGr,4)}, v{vA_l16} offset:{A_CTXC}
            s_waitcnt lgkmcnt(0)
            buffer_store_dwordx4 {v(vGr,4)}, v{vBell}, {WS}, s{sQ} offen sc1
            s_mov_b64 exec, -1
            """)
            g.lab("L_A_noq")
        else:
            g(f"""
            s_mov_b64 exec, 0x11111111
            buffer_store_dwordx4 {v(vGr,4)}, v{vA_h1}, {WS}, s{sQ} offen sc1
            s_mov_b64 exec, -1
            """)
        if d1p == 3:
            g(f"s_cmp_lg_u32 s{sW}, 0")
            g("s_cbranch_scc1 L_A_nod1")
            d1bell("")
            g.lab("L_A_nod1")
        g.stamp(4)
        if opt.get("a_wait", 0): g("s_waitcnt vmcnt(0)")
        if opt.get("a_gate"):
            sD = [16, 52, 56, 28]
            g(f"""
            s_lshl_b32 s{sTMP}, s{sXCD}, 3
            s_lshr_b32 s{sTMP+1}, s{sH}, 4
            s_lshl_b32 s{sTMP+1}, s{sTMP+1}, 2
            s_add_u32 s{sTMP}, s{sTMP}, s{sTMP+1}
            s_add_u32 s{sTMP}, s{sTMP}, s{sW}
            s_lshl_b32 s{sTMP}, s{sTMP}, 9
            s_add_u32 s{sTMP}, s{sTMP}, {D1}
            s_add_u32 s{sTMP}, s4, s{sTMP}
            s_addc_u32 s{sTMP+1}, s5, 0
            s_mov_b32 s{sPC}, s{sT}
            s_mov_b32 s{sPC+1}, s{sT}
            s_mov_b32 s{sCNT}, 0
            """)
            g.lab("L_A_gate")
            for k in range(4):
                g(f"s_load_dwordx4 s[{sD[k]}:{sD[k]+3}], s[{sTMP}:{sTMP+1}], {k*128} glc")
            spin_guard(g, "L_A_gate2")
            g("s_waitcnt lgkmcnt(0)")
            for k in range(4):
                g(f"s_xor_b64 s[{sD[k]}:{sD[k]+1}], s[{sD[k]}:{sD[k]+1}], s[{sPC}:{sPC+1}]")
                g(f"s_xor_b64 s[{sD[k]+2}:{sD[k]+3}], s[{sD[k]+2}:{sD[k]+3}], s[{sPC}:{sPC+1}]")
                g(f"s_or_b64 s[{sD[k]}:{sD[k]+1}], s[{sD[k]}:{sD[k]+1}], s[{sD[k]+2}:{sD[k]+3}]")
            g("s_or_b64 s[16:17], s[16:17], s[52:53]")
            g("s_or_b64 s[56:57], s[56:57], s[28:29]")
            g("s_or_b64 s[16:17], s[16:17], s[56:57]")
            g("s_cbranch_scc1 L_A_gate")
            g.lab("L_A_gate2")
            g("s_waitcnt lgkmcnt(0)")
            if opt["a_gate"] == 2: g("s_barrier")
            g(f"v_and_b32 v{t0}, 2, v{vL}")
            g(f"v_cmp_eq_u32 s[{sM2}:{sM2+1}], 2, v{t0}")
        if opt.get("a_sleep"): g(f"s_sleep {opt['a_sleep']}")
        srd(g, 28, 10, 1152)
        def w1_frags():
            for i in range(11):
                for d in range(4):
                    g(f"v_perm_b32 v{vXA+4*i+d}, v{vXr+2*i+1}, v{vXr+2*i}, v{vS1+d}")
        w1a = opt.get("w1_on", "A") == "A"
        nw1 = 0 if ("w1" in opt.get("skip", "") or not w1a) else 11
        if w1a:
            g(f"s_mul_i32 s{sO2}, s{sR0}, 9216")
            g(f"s_lshl_b32 s{sO3}, s{sBlk}, 8")
            g(f"s_add_u32 s{sO2}, s{sO2}, s{sO3}")
        for i in range(nw1):
            if opt.get("w1_thr") and i >= opt["w1_thr"]: g(f"s_waitcnt vmcnt({opt['w1_thr']-1})")
            g(f"buffer_load_dwordx4 {A(aW1+4*i,4)}, v{vW1a}, {W1}, s{sO2} offen {NT}")
            if i == (opt.get("w1_thr") or 11) - 1: w1_frags()
            if i < 10: g(f"s_add_u32 s{sO2}, s{sO2}, {4*9216}")
            if i == 9:
                g(f"s_cmp_ge_u32 s{sRho}, 4")
                g(f"s_cselect_b32 s{sO2}, {576*9216}, s{sO2}")
        if not uve: uv_stream()
        def w1_gemv(younger):
            if not w1a: return
            vH = 148
            g(f"s_waitcnt vmcnt({younger})")
            for i in range(10):
                g(f"{MF} {v(vH,4)}, {v(vXA+4*i,4)}, {A(aW1+4*i,4)}, {'0' if i == 0 else v(vH,4)}")
            g(f"s_cmp_ge_u32 s{sRho}, 4")
            g("s_cbranch_scc1 L_A_w1s")
            g(f"{MF} {v(vH,4)}, {v(vXA+40,4)}, {A(aW1+40,4)}, {v(vH,4)}")
            g.lab("L_A_w1s")
            g(f"""
            s_mul_i32 s{sO}, s{sRho}, 36864
            s_lshl_b32 s{sO3}, s{sBlk}, 9
            s_add_u32 s{sO}, s{sO}, s{sO3}
            s_add_u32 s{sO}, s{sO}, {HH}
            s_and_b32 s{sO3}, s{sT}, 15
            """)
            for r in range(4):
                g(f"v_and_or_b32 v{vH+r}, v{vH+r}, -16, s{sO3}")
            g(f"buffer_store_dwordx4 {v(vH,4)}, v{vHs}, {WS}, s{sO} offen sc1")
        if not opt.get("w1_late"): w1_gemv(0 if uve else nuv)
        wol = opt.get("wo_late", 0)
        if not wol:
            g(f"s_mul_i32 s{sO2}, s{sA}, {32*1152}")
            unit_load(g, WO, vP2, A_WO, sO2, 1152, "wo", NT, rows36=False, thr=opt.get("a_thr"))
        if opt.get("w1_late") == 1: w1_gemv(9)
        if not opt.get('clk'): g.stamp(14)
        vGx, vGw, vB2 = 48, 60, 72
        vOA, vFB = 73, 74
        g(f"v_mov_b32 v{vOA}, 0")
        g("s_waitcnt lgkmcnt(0)")
        g(f"s_cmp_lg_u32 s{sW}, 0")
        g("s_cbranch_scc1 L_A_nogate")
        h0_wt()
        g(f"""
        s_cmp_ge_u32 s{sA}, 36
        s_cbranch_scc1 L_A_nogate
        v_and_b32 v{t0}, 31, v{vL}
        v_mul_u32_u24 v{t1}, 36, v{t0}
        v_lshrrev_b32 v{t2}, 5, v{vL}
        v_mul_u32_u24 v{t2}, 1152, v{t2}
        v_add_u32 v{t2}, v{t2}, v{t1}
        buffer_load_dwordx4 {v(vGx,4)}, v{t2}, {X}, 0 offen
        buffer_load_dwordx4 {v(vGx+4,4)}, v{t2}, {X}, 0 offen offset:16
        buffer_load_dword v{vGx+8}, v{t2}, {X}, 0 offen offset:32
        buffer_load_dwordx4 {v(vGw,4)}, v{t1}, {GATE}, 0 offen
        buffer_load_dwordx4 {v(vGw+4,4)}, v{t1}, {GATE}, 0 offen offset:16
        buffer_load_dword v{vGw+8}, v{t1}, {GATE}, 0 offen offset:32
        s_cmp_ge_u32 s{sA}, 32
        s_cbranch_scc1 L_A_uleft
        s_lshr_b32 s{sO}, s{sA}, 2
        s_lshl_b32 s{sO}, s{sO}, 4
        s_and_b32 s{sO3}, s{sA}, 1
        s_lshl_b32 s{sO3}, s{sO3}, 3
        s_add_u32 s{sO}, s{sO}, s{sO3}
        v_and_b32 v{t1}, 3, v{t0}
        v_lshlrev_b32 v{t1}, 7, v{t1}
        v_lshrrev_b32 v{t2}, 2, v{t0}
        v_add3_u32 v{t1}, v{t1}, v{t2}, s{sO}
        s_bfe_u32 s{sO3}, s{sA}, 0x10001
        v_mov_b32 v{vFB}, s{sO3}
        s_branch L_A_ujoin
        """)
        g.lab("L_A_uleft")
        g(f"""
        s_lshl_b32 s{sO}, s{sA}, 4
        v_and_b32 v{t1}, 15, v{t0}
        v_add_u32 v{t1}, s{sO}, v{t1}
        v_lshrrev_b32 v{vFB}, 4, v{t0}
        """)
        g.lab("L_A_ujoin")
        g(f"""
        v_lshlrev_b32 v{t1}, 1, v{t1}
        buffer_load_ushort v{vB2}, v{t1}, {B2}, 0 offen
        v_mul_u32_u24 v{vOA}, 1152, v{vFB}
        v_add_u32 v{vOA}, v{vOA}, v{t1}
        """)
        g.lab("L_A_nogate")
        vH3, vH3x = 32, 33
        vHBs = 39
        sH3m, sH3l, sHB, sHH = 63, 47, 61, 62
        vTU0, vTU1, vTO0, vTO1 = 34, 35, 36, 37
        vCX, vCW, vHBl, vD2, vOg, vWTw, vWTr = 38, 46, 40, 41, 42, 43, 44
        vT1, vK1 = 75, 57
        def later_addresses():
            g(f"""
            s_mul_i32 s{sH3l}, s{sA}, {OSTR}
            s_add_u32 s{sH3l}, s{sH3l}, {OB}
            s_lshl_b32 s{sTMP}, s{sW}, 10
            s_add_u32 s{sH3m}, s{sH3l}, s{sTMP}
            s_lshl_b32 s{sTMP}, s{sW}, 8
            s_add_u32 s{sH3l}, s{sH3l}, s{sTMP}
            s_add_u32 s{sH3l}, s{sH3l}, 4096
            v_lshlrev_b32 v{vH3x}, 2, v{vL}
            """)
            g(f"""
            v_lshlrev_b32 v{vHBs}, 7, v{vG}
            v_and_b32 v{t0}, 1, v{vL}
            v_lshl_add_u32 v{vHBs}, v{t0}, 6, v{vHBs}
            v_bfe_u32 v{t0}, v{vL}, 1, 1
            v_lshl_add_u32 v{vHBs}, v{t0}, 9, v{vHBs}
            s_lshl_b32 s{sHB}, s{sH}, 2
            s_add_u32 s{sHB}, s{sHB}, s{sW}
            s_lshl_b32 s{sHB}, s{sHB}, 6
            s_add_u32 s{sHB}, s{sHB}, s{sJ}
            s_lshl_b32 s{sHB}, s{sHB}, 4
            s_add_u32 s{sHB}, s{sHB}, {HB}
            v_lshrrev_b32 v{t0}, 2, v{vL}
            v_bfe_u32 v{t1}, v{vL}, 1, 1
            v_lshl_add_u32 v{t1}, s{sW}, 2, v{t1}
            v_and_b32 v{t2}, 7, v{t0}
            v_lshlrev_b32 v{t2}, 1, v{t2}
            v_xor_b32 v{t1}, v{t1}, v{t2}
            v_lshlrev_b32 v{vTU0}, 8, v{t0}
            v_lshl_add_u32 v{vTU0}, v{t1}, 4, v{vTU0}
            v_and_b32 v{t1}, 1, v{vL}
            v_lshl_add_u32 v{vTU0}, v{t1}, 3, v{vTU0}
            v_xor_b32 v{vTU1}, 32, v{vTU0}
            """)
            assert A_WUV == 0
            tr_pair_bases(g, vTO0, vTO1, None, None, vL, A_WO, t0, t1, t2)
            g(f"""
            v_and_b32 v{t0}, 1, v{vL}
            v_lshlrev_b32 v{vCX}, 9, v{t0}
            v_bfe_u32 v{t0}, v{vL}, 1, 1
            v_lshl_add_u32 v{vCX}, v{t0}, 8, v{vCX}
            v_lshl_add_u32 v{vCX}, v{vG}, 4, v{vCX}
            v_and_b32 v{t0}, 1, v{vG}
            v_lshlrev_b32 v{vCW}, 3, v{t0}
            v_lshl_add_u32 v{vCW}, v{vN}, 4, v{vCW}
            v_lshl_add_u32 v{vCW}, s{sW}, 8, v{vCW}
            v_and_b32 v{t0}, 7, v{vL}
            v_lshlrev_b32 v{vHBl}, 4, v{t0}
            v_lshl_add_u32 v{vHBl}, v{vG}, 7, v{vHBl}
            v_and_b32 v{t0}, 31, v{vL}
            v_lshlrev_b32 v{vD2}, 8, v{t0}
            v_lshlrev_b32 v{vOg}, 10, v{vG}
            v_lshl_add_u32 v{vOg}, v{vN}, 4, v{vOg}
            v_lshlrev_b32 v{vWTw}, 1, v{t0}
            v_lshl_add_u32 v{vWTw}, s{sW}, 6, v{vWTw}
            s_and_b32 s{sTMP}, s{sW}, 1
            s_lshl_b32 s{sTMP}, s{sTMP}, 5
            s_lshl_b32 s{sTMP+1}, s{sW}, 6
            s_add_u32 s{sTMP}, s{sTMP}, s{sTMP+1}
            v_lshl_add_u32 v{vWTr}, v{vG}, 3, s{sTMP}
            v_cmp_gt_u32 s[{sM1}:{sM1+1}], 8, v{vN}
            """)
        later_addresses()
        g("s_waitcnt vmcnt(0)")
        g("s_barrier")
        g.stamp(5)
        aUV, aWO = 0, 32
        vDB = 88
        vDL = 92
        vO = 96
        vFr = 116
        vWt = 132
        vD = 136
        vLs, vWr, vEr = 140, 141, 142
        g(f"""
        s_lshr_b32 s{sO}, s{sH}, 4
        s_lshl_b32 s{sO}, s{sO}, 1
        s_lshr_b32 s{sO3}, s{sW}, 1
        s_add_u32 s{sO}, s{sO}, s{sO3}
        s_lshl_b32 s{sO}, s{sO}, 13
        s_and_b32 s{sO3}, s{sH}, 15
        s_lshl_b32 s{sO3}, s{sO3}, 4
        s_add_u32 s{sO}, s{sO}, s{sO3}
        s_add_u32 s{sO2}, s{sO}, {DL}
        s_add_u32 s{sO}, s{sO}, {D2}
        """)
        epos = opt.get("e_pos")
        if epos is None: g(f"buffer_load_dwordx4 {v(vDB,4)}, v{vD2}, {WS}, s{sO} offen sc1")
        if opt.get("w1_late") == 2:
            g(f"s_mov_b32 s{sC}, s{sO}")
            w1_gemv(1)
            g(f"s_mov_b32 s{sO}, s{sC}")
        for tau in range(2):
            for ks in range(4):
                for hi in range(2):
                    g(f"ds_read_b64_tr_b16 {A(aUV+(tau*4+ks)*4+2*hi,2)}, v{vTU1 if tau else vTU0} offset:{ks*8192+hi*4096}")
        def wo_frags():
            for t in range(5):
                for x in range(2):
                    for hi in range(2):
                        g(f"ds_read_b64_tr_b16 {A(aWO+(t*2+x)*4+2*hi,2)}, v{vTO1 if x else vTO0} offset:{hi*16*1152+t*256}")
        if not wol: wo_frags()
        sBP = 34
        sHI, sTT = sPOI, sPC
        sX, sP4 = 32, 33
        g(f"""
        s_and_b32 s{sTMP}, s{sW}, 1
        s_lshl_b32 s{sTMP}, s{sTMP}, 12
        s_add_u32 s{sTMP}, s{sTMP}, s{sO2}
        s_add_u32 s{sBP}, s4, s{sTMP}
        s_addc_u32 s{sBP+1}, s5, 0
        s_mul_i32 s{sO3}, s{sA}, {OSTR}
        s_lshl_b32 s{sTMP}, s{sW}, 12
        s_add_u32 s{sO3}, s{sO3}, s{sTMP}
        s_add_u32 s{sO3}, s{sO3}, {OB}
        s_bitcmp1_b32 s{sT}, 0
        s_cselect_b32 s{sX}, 0x10001, 0
        s_mov_b32 s{sHI}, 0x10000
        s_mov_b32 s{sTT}, s{sT}
        s_mov_b32 s{sTT+1}, s{sT}
        """)
        g(f"v_mov_b32 v{t0}, 0")
        for k in range(9):
            g(f"v_dot2_f32_bf16 v{t0}, v{vGx+k}, v{vGw+k}, v{t0}")
        g("s_nop 2")
        for r in (8, 4, 2, 1):
            g(f"v_add_f32_dpp v{t0}, v{t0}, v{t0} row_ror:{r} row_mask:0xf bank_mask:0xf")
        g(f"""
        v_mov_b32 v{t1}, v{t0}
        v_permlane16_swap_b32 v{t0}, v{t1}
        v_add_f32 v{t0}, v{t0}, v{t1}
        v_mul_f32 v{t0}, {hex(fbits(-math.log2(math.e)))}, v{t0}
        v_exp_f32 v{t0}, v{t0}
        v_add_f32 v{t0}, 1.0, v{t0}
        v_rcp_f32 v{t0}, v{t0}
        v_cmp_eq_u32 vcc, 1, v{vFB}
        v_mov_b32 v{t1}, v{t0}
        v_permlane32_swap_b32 v{t0}, v{t1}
        v_cndmask_b32 v{vFB}, v{t0}, v{t1}, vcc
        v_lshlrev_b32 v{vB2}, 16, v{vB2}
        s_mov_b32 s{sCNT}, 0
        """)
        if epos is None:
            g(f"s_waitcnt vmcnt({1 if opt.get('w1_late') == 2 else 0})")
            g("s_branch L_A_d2chk")
        else:
            g(f"""
            s_lshr_b32 s{sTMP}, s{sH}, 4
            s_lshl_b32 s{sTMP}, s{sTMP}, 2
            s_add_u32 s{sTMP}, s{sTMP}, s{sW}
            s_lshl_b32 s{sTMP}, s{sTMP}, 11
            s_mul_i32 s{sTMP+1}, s{sXCD}, {16384 if opt.get("e_rep") else 0}
            s_add_u32 s{sTMP}, s{sTMP}, s{sTMP+1}
            s_add_u32 s{sTMP}, s{sTMP}, {DE2 if opt.get("e_rep") else DE}
            v_lshrrev_b32 v{t2}, 1, v{vD2}
            s_mov_b64 exec, 0xffff
            """)
            g.lab("L_A_epoll")
            g(f"buffer_load_dwordx2 {v(t0,2)}, v{t2}, {WS}, s{sTMP} offen offset:8 sc1")
            spin_guard(g, "L_A_edone")
            g("s_waitcnt vmcnt(0)")
            g(f"v_cmp_ne_u64 vcc, s[{sT}:{sT+1}], {v(t0,2)}")
            g("s_mov_b64 exec, vcc")
            g("s_cbranch_vccnz L_A_epoll")
            g.lab("L_A_edone")
            g("s_mov_b64 exec, -1")
            g("s_mov_b64 vcc, -1")
            if opt.get("st14e"): g.stamp(14)
            if opt.get("e_sleep"): g(f"s_sleep {opt['e_sleep']}")
            g(f"s_mov_b32 s{sCNT}, 0")
        g.lab("L_A_d2poll")
        if opt.get("m_shrink"): g("s_mov_b64 exec, vcc")
        if opt.get("m_sleep"): g(f"s_sleep {opt['m_sleep']}")
        g(f"buffer_load_dwordx4 {v(vDB,4)}, v{vD2}, {WS}, s{sO} offen sc1")
        g(f"s_add_u32 s{sCNT}, s{sCNT}, 1")
        g(f"s_cmp_gt_u32 s{sCNT}, {opt.get('spin', SPIN)}")
        g("s_waitcnt vmcnt(0)")
        g("s_cbranch_scc1 L_A_d2done")
        g.lab("L_A_d2chk")
        g(f"v_cmp_ne_u64 vcc, s[{sT}:{sT+1}], {v(vDB+2,2)}")
        g("s_cbranch_vccnz L_A_d2poll")
        g.lab("L_A_d2done")
        if opt.get("m_shrink"): g("s_mov_b64 exec, -1")
        g.stamp(6)
        def lpoll():
            for k in range(16):
                g(f"s_load_dword s{16+k}, s[{sBP}:{sBP+1}], {k*256+8} glc")
        lvec = opt.get("l_vec", 0)
        if lvec == 1: g(f"buffer_load_dwordx4 {v(vDL,4)}, v{vD2}, {WS}, s{sO2} offen sc1")
        elif lvec == 0: lpoll()
        g(f"v_max_f32_dpp v{t0}, v{vDB}, v{vDB} row_ror:8 row_mask:0xf bank_mask:0xf")
        for r in (4, 2, 1):
            g(f"v_max_f32_dpp v{t0}, v{t0}, v{t0} row_ror:{r} row_mask:0xf bank_mask:0xf")
        g(f"""
        v_mov_b32 v{t1}, v{t0}
        v_permlane16_swap_b32 v{t0}, v{t1}
        v_max_f32 v{t0}, v{t0}, v{t1}
        v_sub_f32 v{t0}, v{vDB}, v{t0}
        v_exp_f32 v{t0}, v{t0}
        v_cvt_pk_bf16_f32 v{t0}, v{t0}, v{t0}
        ds_write_b16 v{vWTw}, v{t0} offset:{A_WT}
        ds_read_b64 {v(vWt,2)}, v{vWTr} offset:{A_WT}
        v_and_b32 v{vWr}, 0xffff0000, v{t0}
        s_mov_b32 s{sCNT}, 0
        s_branch {"L_A_lgo" if lvec == 2 else "L_A_lchk"}
        """)
        g.lab("L_A_lpoll")
        if lvec: g(f"buffer_load_dwordx4 {v(vDL,4)}, v{vD2}, {WS}, s{sO2} offen sc1")
        else: lpoll()
        g(f"s_add_u32 s{sCNT}, s{sCNT}, 1")
        g(f"s_cmp_gt_u32 s{sCNT}, {opt.get('spin', SPIN)}")
        g("s_cbranch_scc1 L_A_lgo")
        g.lab("L_A_lchk")
        if lvec:
            g("s_waitcnt vmcnt(0)")
            g(f"v_cmp_ne_u64 vcc, s[{sT}:{sT+1}], {v(vDL+2,2)}")
            g("s_cbranch_vccnz L_A_lpoll")
        else:
            g("s_waitcnt lgkmcnt(0)")
            for k in range(0, 16, 2):
                g(f"s_xor_b64 s[{16+k}:{17+k}], s[{16+k}:{17+k}], s[{sTT}:{sTT+1}]")
            for st_ in (8, 4, 2):
                for k in range(0, st_, 2):
                    g(f"s_or_b64 s[{16+k}:{17+k}], s[{16+k}:{17+k}], s[{16+k+st_}:{17+k+st_}]")
            g("s_cbranch_scc1 L_A_lpoll")
        g.lab("L_A_lgo")
        g(f"s_mov_b32 s{sCNT}, 0")
        if opt.get("o_sleep"): g(f"s_sleep {opt['o_sleep']}")
        g.stamp(11)
        def oget():
            g(f"buffer_load_dwordx4 {v(vDL,4)}, v{vD2}, {WS}, s{sO2} offen sc1")
            for u in range(4):
                g(f"buffer_load_dwordx4 {v(vO+4*u,4)}, v{vOg}, {WS}, s{sO3} offen offset:{u*256} sc1")
        oget()
        nwo = 0
        if wol in (1, 2):
            assert lvec == 2
            g(f"s_mul_i32 s{sC}, s{sA}, {32*1152}")
            unit_load(g, WO, vP2, A_WO, sC, 1152, "wo", NT, rows36=False)
            nwo = 9 if "wo" not in opt.get("skip", "") else 0
        g("s_waitcnt lgkmcnt(0)")
        for u in range(4):
            for d in range(4):
                g(f"v_perm_b32 v{vFr+4*u+d}, v{vWt+(u>>1)}, v{vWt+(u>>1)}, v{vSel+4*(u&1)+d}")
        g.lab("L_A_ocomb")
        g(f"v_mov_b32 v{vEr}, 0")
        g(f"s_waitcnt vmcnt({4+nwo})")
        g(f"v_mul_f32 v{vLs}, v{vWr}, v{vDL}")
        g(f"v_cmp_ne_u64 s[{sM4}:{sM4+1}], s[{sT}:{sT+1}], {v(vDL+2,2)}")
        for r in (8, 4, 2, 1):
            g(f"v_add_f32_dpp v{vLs}, v{vLs}, v{vLs} row_ror:{r} row_mask:0xf bank_mask:0xf")
        g(f"""
        v_mov_b32 v{t1}, v{vLs}
        v_permlane16_swap_b32 v{vLs}, v{t1}
        v_add_f32 v{vLs}, v{vLs}, v{t1}
        v_rcp_f32 v{vLs}, v{vLs}
        """)
        for u in range(4):
            g(f"s_waitcnt vmcnt({3-u+nwo})")
            for d in range(4):
                g(f"v_xor_b32 v{vO+4*u+d}, s{sX}, v{vO+4*u+d}")
            if u:
                for d in range(4):
                    g(f"v_bitop3_b32 v{vEr}, v{vEr}, v{vO+4*(u-1)+d}, s{sHI} bitop3:0xf6")
            g(f"{MF} {v(vD,4)}, {v(vFr+4*u,4)}, {v(vO+4*u,4)}, {'0' if u == 0 else v(vD,4)}")
        for d in range(4):
            g(f"v_bitop3_b32 v{vEr}, v{vEr}, v{vO+12+d}, s{sHI} bitop3:0xf6")
        g(f"v_and_b32 v{vEr}, 0x10001, v{vEr}")
        g(f"v_cmp_ne_u32 vcc, 0, v{vEr}")
        g(f"s_or_b64 vcc, vcc, s[{sM4}:{sM4+1}]")
        g("s_cbranch_scc1 L_A_oslow")
        g.lab("L_A_ook")
        if opt.get("stamps"): g(f"s_mov_b32 s100, s{sCNT}")
        for r in range(4):
            g(f"v_mul_f32 v{vD+r}, v{vLs}, v{vD+r}")
        g(f"v_cvt_pk_bf16_f32 v{vD}, v{vD}, v{vD+1}")
        g(f"v_cvt_pk_bf16_f32 v{vD+1}, v{vD+2}, v{vD+3}")
        g(f"ds_write_b64 v{vCW}, {v(vD,2)} offset:{A_CTXC}")
        if wol == 3:
            g(f"s_mul_i32 s{sC}, s{sA}, {32*1152}")
            unit_load(g, WO, vP2, A_WO, sC, 1152, "wo", NT, rows36=False)
        g("s_waitcnt vmcnt(0) lgkmcnt(0)" if wol == 1 else "s_waitcnt lgkmcnt(0)")
        g("s_barrier")
        g.stamp(7)
        vC = 80
        vU = 96
        vG1, vG2 = 104, 108
        vAe, vAo = 116, 120
        vY = 124
        for ks in range(4):
            g(f"ds_read_b128 {v(vC+4*ks,4)}, v{vCX} offset:{A_CTXC+ks*64}")
        g(f"s_lshl_b32 s{sO3}, s{sA}, 10")
        g(f"s_add_u32 s{sO3}, s{sO3}, {HB+LOC}")
        g(f"s_add_u32 s{sO}, s{sHB}, {LOC}")
        g(f"s_and_b32 s{sP4}, s{sT}, 15")
        sD3, vD3 = 16, 58
        g(f"s_xor_b32 s{sD3}, s{sW}, 3")
        g(f"s_or_b32 s{sD3}, s{sD3}, s{sJ}")
        g(f"s_lshl_b32 s{sTMP}, s{sH}, 7")
        g(f"s_add_u32 s{sTMP}, s{sTMP}, {D3}")
        g(f"v_lshl_add_u32 v{vD3}, v{vL}, 12, s{sTMP}")
        for ks in range(4):
            g(f"s_waitcnt lgkmcnt({3-ks})")
            for tau in range(2):
                g(f"{MF} {v(vU+4*tau,4)}, {A(aUV+(tau*4+ks)*4,4)}, {v(vC+4*ks,4)}, {'0' if ks == 0 else v(vU+4*tau,4)}")
        for r in range(4):
            g(f"v_cndmask_b32 v{vC+r}, v{vU+r}, v{vU+4+r}, s[{sM2}:{sM2+1}]")
            g(f"v_cndmask_b32 v{vC+4+r}, v{vU+4+r}, v{vU+r}, s[{sM2}:{sM2+1}]")
        for r in range(4):
            g(f"v_add_f32_dpp v{vC+r}, v{vC+4+r}, v{vC+r} quad_perm:[2,3,0,1] row_mask:0xf bank_mask:0xf")
        g(f"""
        v_cvt_pk_bf16_f32 v{vTag-2}, v{vC}, v{vC+1}
        v_cvt_pk_bf16_f32 v{vTag-1}, v{vC+2}, v{vC+3}
        s_mov_b32 exec_lo, 0x000f000f
        s_mov_b32 exec_hi, 0x000f000f
        buffer_store_dwordx4 {v(vTag-2,4)}, v{vHBs}, {WS}, s{sO} offen
        s_mov_b64 exec, -1
        """)
        def hb_wt():
            g("s_mov_b32 exec_lo, 0x000f000f")
            g("s_mov_b32 exec_hi, 0x000f000f")
            g(f"buffer_store_dwordx4 {v(vTag-2,4)}, v{vHBs}, {WS}, s{sHB} offen sc1")
            g("s_mov_b64 exec, -1")
        g.stamp(8)
        g(f"s_mov_b32 s{sCNT}, 0")
        if wol >= 2:
            g("s_waitcnt vmcnt(1)")
            g("s_barrier")
        if wol: wo_frags()
        g.lab("L_A_hbld")
        g(f"buffer_load_dwordx4 {v(vG1,4)}, v{vHBl}, {WS}, s{sO3} offen sc1")
        g(f"buffer_load_dwordx4 {v(vG2,4)}, v{vHBl}, {WS}, s{sO3} offen offset:512 sc1")
        g("s_waitcnt vmcnt(0)")
        g(f"v_cmp_ne_u64 vcc, s[{sT}:{sT+1}], {v(vG1+2,2)}")
        g(f"v_cmp_ne_u64 s[{sM3}:{sM3+1}], s[{sT}:{sT+1}], {v(vG2+2,2)}")
        src = [vG1, vG1 + 1, vG2, vG2 + 1]
        for d in range(4):
            g(f"v_cndmask_b32 v{vAe+d}, 0, v{src[d]}, s[{sM1}:{sM1+1}]")
        g(f"s_or_b64 vcc, vcc, s[{sM3}:{sM3+1}]")
        g("s_cbranch_scc1 L_A_hbpoll")
        g.lab("L_A_hbdone")
        g.stamp(9)
        def d3bell():
            g(f"s_cmp_lg_u32 s{sD3}, 0")
            g("s_cbranch_scc1 L_A_nod3")
            g("s_mov_b64 exec, 0xff")
            g(f"buffer_store_dword v{vTag}, v{vD3}, {WS}, 0 offen sc1")
            g("s_mov_b64 exec, -1")
            g.lab("L_A_nod3")
        if opt.get("d3_pos", 0) == 0 and opt.get("h3_bell", 1): d3bell()
        for d in range(4):
            g(f"v_cndmask_b32 v{vAo+d}, v{src[d]}, 0, s[{sM1}:{sM1+1}]")
        if wol: g("s_waitcnt lgkmcnt(0)")
        for t in range(4):
            g(f"{MF} {v(vY+4*t,4)}, {v(vAe,4)}, {A(aWO+(t*2)*4,4)}, 0")
        for t in range(4):
            g(f"{MF} {v(vY+4*t,4)}, {v(vAo,4)}, {A(aWO+(t*2+1)*4,4)}, {v(vY+4*t,4)}")
        g(f"{MF} {v(vY+16,4)}, {v(vAe,4)}, {A(aWO+32,4)}, 0")
        g(f"{MF} {v(vY+16,4)}, {v(vAo,4)}, {A(aWO+36,4)}, {v(vY+16,4)}")
        for t in range(4):
            g(f"v_pk_add_f32 {v(vY+4*t,2)}, {v(vY+4*t,2)}, {v(vY+4*t+2,2)}")
        for t in range(4):
            g(f"v_add_f32 v{vC+t}, v{vY+4*t}, v{vY+4*t+1}")
        for t in range(4):
            g(f"v_and_or_b32 v{vC+t}, v{vC+t}, -16, s{sP4}")
        g(f"buffer_store_dwordx4 {v(vC,4)}, v{vA_l16}, {WS}, s{sH3m} offen sc1")
        g(f"s_cmp_gt_u32 s{sW}, 1")
        g("s_cbranch_scc1 L_A_no5b")
        g(f"v_pk_add_f32 {v(vY+16,2)}, {v(vY+16,2)}, {v(vY+18,2)}")
        g(f"v_add_f32 v{vY+16}, v{vY+16}, v{vY+17}")
        g(f"v_and_or_b32 v{vY+16}, v{vY+16}, -16, s{sP4}")
        g(f"buffer_store_dword v{vY+16}, v{vH3x}, {WS}, s{sH3l} offen sc1")
        g.lab("L_A_no5b")
        if opt.get("d3_pos", 0) == 1: d3bell()
        hb_wt()
        g.stamp(10)
        g(f"s_cmp_ge_u32 s{sA}, 36")
        g("s_cbranch_scc1 L_A_exit")
        vRd = [144, 160]
        vRw = 97
        vRa = 59
        sRa = [sO, sO3, sC, sHB]
        g(f"""
        s_lshl_b32 s{sTMP}, s{sXCD}, 2
        s_add_u32 s{sTMP}, s{sTMP}, s{sW}
        s_lshl_b32 s{sTMP}, s{sTMP}, 10
        s_add_u32 s{sTMP}, s{sTMP}, {D3}
        s_add_u32 s{sBP}, s4, s{sTMP}
        s_addc_u32 s{sBP+1}, s5, 0
        """)
        def d3poll():
            for k in range(8):
                g(f"s_load_dword s{16+k}, s[{sBP}:{sBP+1}], {k*128} glc")
        if opt.get("h3_bell", 1): d3poll()
        g(f"""
        s_lshl_b32 s{sO2}, s{sW}, 12
        s_mul_i32 s{sO3}, s{sA}, {USTR}
        s_add_u32 s{sO2}, s{sO2}, s{sO3}
        s_add_u32 s{sO2}, s{sO2}, {H3}
        """)
        def rget(part):
            for u in range(4):
                if part: g(f"buffer_load_dwordx4 {v(vRd[1]+4*u,4)}, v{vA_l16}, {WS}, s{sO2} offen offset:{u*1024} sc1")
                else: g(f"buffer_load_dwordx4 {v(vRd[0]+4*u,4)}, v{vRa}, {WS}, s{sRa[u]} offen sc1")
        rget(1)
        g(f"""
        v_and_b32 v{t0}, 7, v{vL}
        v_lshlrev_b32 v{vRw}, 6, v{t0}
        v_lshrrev_b32 v{t1}, 3, v{vL}
        v_mul_u32_u24 v{vRa}, {OSTR}, v{t1}
        v_lshl_add_u32 v{vRa}, v{t0}, 4, v{vRa}
        v_lshrrev_b32 v{t0}, 5, v{vL}
        v_lshl_add_u32 v{vRw}, v{t0}, 4, v{vRw}
        v_bfe_u32 v{t0}, v{vL}, 4, 1
        v_lshl_add_u32 v{vRw}, v{t0}, 5, v{vRw}
        v_lshl_add_u32 v{vRw}, s{sW}, 2, v{vRw}
        s_mul_i32 s{sO}, s{sW}, {32*OSTR}
        s_lshl_b32 s{sTMP}, s{sA}, 7
        s_add_u32 s{sO}, s{sO}, s{sTMP}
        s_add_u32 s{sO}, s{sO}, {OB}
        s_add_u32 s{sO3}, s{sO}, {8*OSTR}
        s_add_u32 s{sC}, s{sO}, {16*OSTR}
        s_add_u32 s{sHB}, s{sO}, {24*OSTR}
        s_mov_b32 s{sCNT}, 0
        s_branch {"L_A_d3chk" if opt.get("h3_bell", 1) else "L_A_d3go"}
        """)
        g.lab("L_A_d3poll")
        d3poll()
        spin_guard(g, "L_A_d3go")
        g.lab("L_A_d3chk")
        g("s_waitcnt lgkmcnt(0)")
        for k in range(0, 8, 2):
            g(f"s_xor_b64 s[{16+k}:{17+k}], s[{16+k}:{17+k}], s[{sTT}:{sTT+1}]")
        g("s_or_b64 s[16:17], s[16:17], s[18:19]")
        g("s_or_b64 s[20:21], s[20:21], s[22:23]")
        g("s_or_b64 s[16:17], s[16:17], s[20:21]")
        g("s_cbranch_scc1 L_A_d3poll")
        g.lab("L_A_d3go")
        g(f"s_mov_b32 s{sCNT}, 0")
        if opt.get("h3_ack", 0): g("s_waitcnt vmcnt(4)")
        if opt.get("st14"): g.stamp(14)
        rget(0)
        def rsum(part, waits):
            R = vRd[part]
            for u in range(4):
                if waits[u] is not None: g(f"s_waitcnt vmcnt({waits[u]})")
                for d in range(4):
                    g(f"v_xor_b32 v{R+4*u+d}, s{sP4}, v{R+4*u+d}")
                if u == 0:
                    g(f"v_or3_b32 v{vEr}, v{R}, v{R+1}, v{R+2}")
                    g(f"v_or_b32 v{vEr}, v{vEr}, v{R+3}")
                else:
                    g(f"v_pk_add_f32 {v(vY,2)}, {v(R if u == 1 else vY,2)}, {v(R+4*u,2)}")
                    g(f"v_pk_add_f32 {v(vY+2,2)}, {v(R+2 if u == 1 else vY+2,2)}, {v(R+4*u+2,2)}")
                    g(f"v_or3_b32 v{vEr}, v{vEr}, v{R+4*u}, v{R+4*u+1}")
                    g(f"v_or3_b32 v{vEr}, v{vEr}, v{R+4*u+2}, v{R+4*u+3}")
            g(f"v_permlane32_swap_b32 v{vY}, v{vY+1}")
            g(f"v_permlane32_swap_b32 v{vY+2}, v{vY+3}")
            g(f"v_and_b32 v{vEr}, 15, v{vEr}")
            g(f"v_add_f32 v{vY}, v{vY}, v{vY+1}")
            g(f"v_add_f32 v{vY+2}, v{vY+2}, v{vY+3}")
            g(f"v_cmp_ne_u32 vcc, 0, v{vEr}")
            g(f"v_permlane16_swap_b32 v{vY}, v{vY+2}")
            g(f"v_add_f32 v{vY}, v{vY}, v{vY+2}")
        def rfin(part):
            g(f"v_add_f32_dpp v{vY}, v{vY}, v{vY} row_ror:8 row_mask:0xf bank_mask:0xf")
            g(f"ds_write_b32 v{vRw}, v{vY} offset:{A_RED + part*512}")
        sPend = sM3
        rsum(1, [4, None, None, None])
        g(f"s_mov_b64 s[{sPend}:{sPend+1}], vcc")
        rfin(1)
        g.lab("L_A_r0sum")
        rsum(0, [3, 2, 1, 0])
        g("s_cbranch_vccnz L_A_r0slow")
        g.lab("L_A_r0ok")
        rfin(0)
        g(f"s_cmp_lg_u64 s[{sPend}:{sPend+1}], 0")
        g("s_cbranch_scc1 L_A_r1slow")
        g.lab("L_A_r1ok")
        g.stamp(12)
        if opt.get("stamps"):
            g(f"s_lshl_b32 s{sCNT}, s{sCNT}, 8")
            g(f"s_or_b32 s100, s100, s{sCNT}")
        g("s_waitcnt lgkmcnt(0)")
        g("s_barrier")
        g(f"s_cmp_lg_u32 s{sW}, 0")
        g("s_cbranch_scc1 L_A_exit")
        R = 144
        g(f"""
        s_mov_b32 exec_hi, 0
        ds_read_b128 {v(R,4)}, v{vA_l16} offset:{A_RED}
        ds_read_b128 {v(R+4,4)}, v{vA_l16} offset:{A_RED+512}
        v_sub_f32 v{t0}, 1.0, v{vFB}
        s_waitcnt lgkmcnt(0)
        v_pk_add_f32 {v(R,2)}, {v(R,2)}, {v(R+2,2)}
        v_pk_add_f32 {v(R+4,2)}, {v(R+4,2)}, {v(R+6,2)}
        v_add_f32 v{R}, v{R}, v{R+1}
        v_add_f32 v{R+4}, v{R+4}, v{R+5}
        v_add_f32 v{R+4}, v{R+4}, v{vB2}
        v_mul_f32 v{R+4}, v{t0}, v{R+4}
        v_fma_f32 v{R}, v{vFB}, v{R}, v{R+4}
        v_cvt_pk_bf16_f32 v{R}, v{R}, v{R}
        buffer_store_short v{R}, v{vOA}, {OUT}, 0 offen
        s_cmp_lg_u32 s{sA}, 0
        s_cbranch_scc1 L_A_exit
        s_mov_b64 exec, 1
        buffer_store_dwordx2 {v(vTag,2)}, v{vA_l16}, {WS}, 0 offen offset:{EPOCH} sc1
        """)
        if opt.get("probe") is not None:
            i = opt["probe"]
            g.stamp(13)
            g("s_waitcnt lgkmcnt(0)")
            g(f"s_sub_u32 s{sO}, s{70+2*i}, s70")
            g(f"s_lshl_b32 s{sO}, s{sO}, 2")
            if opt.get("dcount"):
                g(f"""
                s_load_dwordx2 s[32:33], s[0:1], 104
                s_mov_b32 s34, 256
                s_mov_b32 s35, 0x00020000
                v_mov_b32 v7, {4*(opt["dcount"]-1)}
                s_waitcnt lgkmcnt(0)
                buffer_load_dword v6, v7, s[32:35], 0 offen sc1
                s_waitcnt vmcnt(0)
                v_readfirstlane_b32 s{sO}, v6
                s_mul_i32 s{sO}, s{sO}, 50
                """)
            if opt.get("resid") is not None:
                g(f"""
                s_load_dwordx2 s[32:33], s[0:1], 104
                s_mov_b32 s34, 256
                s_mov_b32 s35, 0x00020000
                v_mov_b32 v7, 0
                s_waitcnt lgkmcnt(0)
                buffer_load_dword v6, v7, s[32:35], 0 offen offset:{4*opt.get("rbin", 1)} sc1
                s_waitcnt vmcnt(0)
                s_nop 1
                v_readfirstlane_b32 s{sO}, v6
                s_mul_i32 s{sO}, s{sO}, 50
                """)
            if opt.get("clk"):
                g.lab("L_clk")
                g(f"s_memrealtime s[{sTMP}:{sTMP+1}]")
                g("s_waitcnt lgkmcnt(0)")
                g(f"s_sub_u32 s{sTMP}, s{sTMP}, s70")
                g(f"s_cmp_lt_u32 s{sTMP}, {opt['clk']}")
                g("s_cbranch_scc1 L_clk")
                g(f"s_memtime s[{sTMP}:{sTMP+1}]")
                g("s_waitcnt lgkmcnt(0)")
                g(f"s_sub_u32 s{sO}, s{sTMP}, s98")
                g(f"s_lshr_b32 s{sO}, s{sO}, 3")
            g(f"s_add_u32 s{sO}, s{sO}, 4000")
            g.lab("L_probe")
            g(f"s_memrealtime s[{sTMP}:{sTMP+1}]")
            g("s_waitcnt lgkmcnt(0)")
            g(f"s_sub_u32 s{sTMP}, s{sTMP}, s70")
            g(f"s_cmp_lt_u32 s{sTMP}, s{sO}")
            g("s_cbranch_scc1 L_probe")
            g("s_endpgm")
        g.lab("L_A_exit")
        g.stamp(13)
        dump_stamps(g, 16, 216)
        g("s_endpgm")
        if pB:
            g.lab("L_A_h0poll")
            spin_guard(g, "L_A_h0done")
            g("s_branch L_A_h0get")
        else:
            g.lab("L_A_h0poll")
            spin_guard(g, "L_A_h0done")
            g(f"s_cmp_lg_u32 s{sCNT}, 8")
            g("s_cbranch_scc1 L_A_h0ns")
            h0_wt()
            g.lab("L_A_h0ns")
            dual_next(g, sib[1:])
            h0loads()
            g("s_waitcnt vmcnt(0)")
            g("s_branch L_A_h0chk")
        g.lab("L_A_oslow")
        spin_guard(g, "L_A_ook")
        oget()
        g("s_waitcnt vmcnt(0)")
        g("s_branch L_A_ocomb")
        g.lab("L_A_hbpoll")
        spin_guard(g, "L_A_hbdone")
        g(f"s_cmp_lg_u32 s{sCNT}, 8")
        g("s_cbranch_scc1 L_A_hbns")
        hb_wt()
        g.lab("L_A_hbns")
        dual_next(g, [sO3])
        g("s_branch L_A_hbld")
        g.lab("L_A_r0slow")
        spin_guard(g, "L_A_r0ok")
        rget(0)
        g("s_branch L_A_r0sum")
        g.lab("L_A_r1slow")
        spin_guard(g, "L_A_r1ok")
        rget(1)
        rsum(1, [3, 2, 1, 0])
        g("s_cbranch_vccnz L_A_r1slow")
        rfin(1)
        g("s_branch L_A_r1ok")

class RoleB:
    def __init__(self, g, NT, vL, vN, vG):
        self.g, self.NT, self.vL, self.vN, self.vG = g, NT, vL, vN, vG

    def issue(self):
        g, vL = self.g, self.vL
        if g.opt.get("p1a_on") == "B":
            vN, vG, NT = self.vN, self.vG, self.NT
            srd_tail(g, 12, 576 * 8192)
            srd_tail(g, 8, 2304)
            g(f"""
            s_lshr_b32 s{sC}, s{sI}, 2
            s_lshl_b32 s{sC}, s{sC}, 3
            s_add_u32 s{sC}, s{sC}, s{sXCD}
            s_and_b32 s{sO}, s{sI}, 3
            v_mul_u32_u24 v5, {36*8192}, v{vG}
            v_lshl_add_u32 v5, v{vN}, 4, v5
            s_lshl_b32 s{sO2}, s{sO}, 4
            s_add_u32 s{sO2}, s{sO2}, s{sW}
            s_mul_i32 s{sO2}, s{sO2}, 9
            s_lshl_b32 s{sO3}, s{sO2}, 13
            s_lshl_b32 s{sTMP}, s{sC}, 8
            s_add_u32 s{sO3}, s{sO3}, s{sTMP}
            v_bfe_u32 v4, v{vL}, 3, 1
            v_mul_u32_u24 v4, 1152, v4
            v_mad_u32_u24 v4, v{vG}, 64, v4
            v_lshl_add_u32 v4, v{vG}, 3, v4
            s_lshr_b32 s{sO2}, s{sO2}, 1
            s_lshl_b32 s{sO2}, s{sO2}, 2
            s_waitcnt lgkmcnt(0)
            buffer_load_dwordx4 v[64:67], v4, {X}, s{sO2} offen
            buffer_load_dword v68, v4, {X}, s{sO2} offen offset:16
            """)
            for i in range(9):
                g(f"buffer_load_dwordx4 {A(4*i,4)}, v5, s[12:15], s{sO3} offen {NT}")
                if i != 8: g(f"s_addk_i32 s{sO3}, 0x2000")
            load_tag(g)
            g(f"""
            s_lshl_b32 s{sC}, s{sC}, 2
            s_add_u32 s{sC}, s{sC}, s{sO}
            s_lshl_b32 s{sC}, s{sC}, 10
            s_add_u32 s{sC}, s{sC}, {H0}
            """)
            return
        if g.opt.get("numa"):
            PFL = g.opt.get("pf_lines", 4)
            srd_tail(g, 28, 2 * 4096 * 1024)
            g(f"""
            s_and_b32 s{sMSG}, s{sXCD}, 1
            s_lshl_b32 s{sMSG}, s{sMSG}, 4
            s_and_b32 s{sO3}, s{sI}, 14
            s_add_u32 s{sMSG}, s{sMSG}, s{sO3}
            s_bfe_u32 s{sO3}, s{sXCD}, 0x10001
            s_add_u32 s{sMSG}, s{sMSG}, s{sO3}
            s_lshl_b32 s{sO3}, s{sMSG}, 18
            s_and_b32 s{sC}, s{sI}, 1
            s_lshl_b32 s{sC}, s{sC}, 8
            s_add_u32 s{sO3}, s{sO3}, s{sC}
            s_add_u32 s{sC}, s{sO3}, 0x2000
            v_lshlrev_b32 v4, 7, v{vL}
            {"" if g.opt.get("tlb") else "s_waitcnt lgkmcnt(0)"}
            s_cmp_lg_u32 s{sW}, 3
            s_cbranch_scc1 L_B_nopr
            {"s_memtime s[16:17]" if g.opt.get("dcount") else ""}
            {"s_waitcnt lgkmcnt(0)" if g.opt.get("dcount") else ""}
            s_mov_b64 exec, {(1 << g.opt.get("plines", 1)) - 1}
            {"v_lshlrev_b32 v8, 14, v1" if g.opt.get("plines", 1) > 1 else "v_mov_b32 v8, 0"}
            {f"buffer_load_dword v60, v8, s[28:31], s{sO3} offen offset:2048" if g.opt.get("pwarm") else ""}
            {f"buffer_load_dword v61, v8, s[28:31], s{sC} offen offset:2048" if g.opt.get("pwarm") else ""}
            {"s_waitcnt vmcnt(0) lgkmcnt(0)" if g.opt.get("pwarm") else ""}
            buffer_load_dword v60, v8, s[28:31], s{sO3} offen
            buffer_load_dword v61, v8, s[28:31], s{sC} offen
            s_mul_i32 s{sTMP}, s{sI}, {2*PFL*128}
            s_mov_b64 exec, {(1 << (2*PFL)) - 1}
            v_add_u32 v5, s{sTMP}, v4
            global_load_dword v63, v5, s[{sPC}:{sPC+1}]
            s_lshr_b32 s{sO}, s{sI}, 2
            s_lshl_b32 s{sO}, s{sO}, 3
            s_add_u32 s{sO}, s{sO}, s{sXCD}
            s_lshl_b32 s{sO}, s{sO}, 2
            s_and_b32 s{sO2}, s{sI}, 3
            s_add_u32 s{sO}, s{sO}, s{sO2}
            s_lshl_b32 s{sO2}, s{sO}, 11
            s_add_u32 s{sO2}, s{sO2}, {H0+LOC}
            s_mov_b64 exec, 0xffff
            buffer_load_dword v62, v4, {WS}, s{sO2} offen
            s_lshl_b32 s{sO}, s{sO}, 10
            s_add_u32 s{sO2}, s{sO}, {HB+LOC}
            s_mov_b64 exec, 0xff
            buffer_load_dword v62, v4, {WS}, s{sO2} offen
            s_add_u32 s{sO2}, s{sO}, {D3}
            buffer_load_dword v62, v4, {WS}, s{sO2} offen
            s_mov_b64 exec, -1
            s_waitcnt vmcnt(5)
            s_memtime s[34:35]
            s_waitcnt vmcnt(4)
            s_memtime s[38:39]
            s_waitcnt lgkmcnt(0)
            s_sub_u32 s38, s38, s34
            s_cmp_lt_u32 s38, {g.opt.get("gap", 100)}
            s_cselect_b32 s{sO3}, 1, 0
            v_mov_b32 v6, s{sO3}
            v_mov_b32 v7, {B_PHI}
            ds_write_b32 v7, v6
            s_waitcnt lgkmcnt(0)
            """)
            if g.opt.get("stamps"): g("s_mov_b32 s88, s38")
            if g.opt.get("dcount"):
                g(f"""
                s_load_dwordx2 s[20:21], s[0:1], 104
                s_mov_b32 s22, 256
                s_mov_b32 s23, 0x00020000
                s_sub_u32 s16, s34, s16
                s_lshr_b32 s16, s16, 8
                s_min_u32 s16, s16, 7
                s_lshl_b32 s16, s16, 2
                s_lshr_b32 s17, s38, 6
                s_min_u32 s17, s17, 6
                s_lshl_b32 s17, s17, 2
                s_add_u32 s17, s17, 32
                v_mov_b32 v6, 1
                v_mov_b32 v7, 0
                s_waitcnt lgkmcnt(0)
                s_mov_b64 exec, 1
                buffer_atomic_add v6, v7, s[20:23], s16 offen sc1
                buffer_atomic_add v6, v7, s[20:23], s17 offen sc1
                s_mov_b64 exec, -1
                """)
            g.lab("L_B_nopr")
            return
        g(f"""
        s_lshr_b32 s{sO}, s{sI}, 2
        s_lshl_b32 s{sO}, s{sO}, 3
        s_add_u32 s{sO}, s{sO}, s{sXCD}
        s_lshl_b32 s{sO}, s{sO}, 2
        s_and_b32 s{sO2}, s{sI}, 3
        s_add_u32 s{sO}, s{sO}, s{sO2}
        s_lshl_b32 s{sO2}, s{sO}, 11
        s_add_u32 s{sO2}, s{sO2}, {H0+LOC}
        s_lshl_b32 s{sO}, s{sO}, 10
        s_add_u32 s{sO}, s{sO}, {HB+LOC}
        s_cmp_eq_u32 s{sW}, 1
        s_cselect_b32 s{sO}, s{sO}, s{sO2}
        s_lshl_b32 s{sO2}, s{sXCD}, 4
        s_add_u32 s{sO2}, s{sO2}, s{sI}
        s_lshl_b32 s{sO2}, s{sO2}, 10
        s_add_u32 s{sO2}, s{sO2}, {D3}
        s_cmp_eq_u32 s{sW}, 2
        s_cselect_b32 s{sO}, s{sO2}, s{sO}
        s_cselect_b32 s{sTMP}, 0xff, -1
        s_and_b32 s{sTMP}, s{sTMP}, 0xffff
        s_mov_b32 s{sTMP+1}, 0
        v_lshlrev_b32 v4, 7, v{vL}
        """)
        if not g.opt.get("tlb"): g("s_waitcnt lgkmcnt(0)")
        load_tag(g)
        g(f"""
        {"s_cmp_lg_u32" if g.opt.get("split") else "s_cmp_gt_u32"} s{sW}, 2
        s_cbranch_scc1 L_B_head
        s_mov_b64 exec, s[{sTMP}:{sTMP+1}]
        buffer_load_dword v62, v4, {WS}, s{sO} offen
        s_mov_b64 exec, -1
        """)

    def rest(self):
        g, NT, vL, vN, vG = self.g, self.NT, self.vL, self.vN, self.vG
        opt = g.opt
        CKV, W2, B1, W1 = "s[28:31]", "s[20:23]", "s[24:27]", "s[16:19]"
        t0, t1, t2, t3 = 4, 5, 6, 7
        vL16 = 12
        vOa = 13
        vH3, vH3x = 14, 15
        vB1 = 22
        vSB = 24
        vQBs = 28
        vPVb = 16
        vTag = 36
        vML = 34
        vMXw, vMXr = 38, 39
        vD2a = 40
        vPw = 41
        vP2 = 42
        vT20, vT21, vK20, vK21 = 52, 53, 54, 55
        vHg, vHw = 56, 57
        vHe, vHo, vHke, vHko = 58, 59, 60, 61
        vQd = 8
        aS, aP = 0, 128
        sOo = 61
        sH3m, sH3l = 62, 63
        sD2, sGot = 59, 58
        sBP, sTT = 34, sPC
        sQg = 33
        sPat, sMk = 32, 36
        srd_tail(g, 28, 2 * 4096 * 1024)
        vW1, vW2 = 168, 212
        vXr = 64
        vSel = 88
        vXA = 96
        vW1a, vHs = 164, 165
        sRho, sBlk, sR0 = 38, 39, 56
        numa = opt.get("numa", 0)
        sCk = 37
        if numa:
            assert not opt.get("ckv_x", 1)
            sPhi, sDP = 38, 18
            def ckv_base():
                g(f"""
                s_lshl_b32 s{sCk}, s{sMSG}, 2
                s_add_u32 s{sCk}, s{sCk}, s{sW}
                s_lshl_b32 s{sCk}, s{sCk}, 3
                s_add_u32 s{sCk}, s{sCk}, s{sPhi}
                s_lshl_b32 s{sCk}, s{sCk}, 13
                s_lshl_b32 m0, s{sW}, 15
                s_add_u32 m0, m0, {B_CKV}
                """)
            def phi_get():
                g(f"""
                v_mov_b32 v{t0}, {B_PHI}
                s_barrier
                ds_read_b32 v{t1}, v{t0}
                s_waitcnt lgkmcnt(0)
                v_readfirstlane_b32 s{sPhi}, v{t1}
                """)
                if opt.get("numa_force") is not None: g(f"s_xor_b32 s{sPhi}, s{sPhi}, {opt['numa_force']}")
                ckv_base()
            g(f"s_and_b32 s{sB}, s{sXCD}, 1")
            g(f"v_lshlrev_b32 v{vL16}, 4, v{vL}")
            phi_get()
            load_tag(g)
        else:
            g(f"""
            s_and_b32 s{sB}, s{sXCD}, 1
            s_lshr_b32 s{sMSG}, s{sI}, 1
            s_lshl_b32 s{sMSG}, s{sMSG}, 2
            s_lshr_b32 s{sO}, s{sXCD}, 1
            s_add_u32 s{sMSG}, s{sMSG}, s{sO}
            s_lshl_b32 s{sO}, s{sB}, 5
            s_add_u32 s{sMSG}, s{sMSG}, s{sO}
            v_lshlrev_b32 v{vL16}, 4, v{vL}
            """)
            sCk = 37
            g(f"""
            s_lshl_b32 s{sCk}, s{sMSG}, 2
            s_add_u32 s{sCk}, s{sCk}, s{sW}
            s_lshl_b32 s{sCk}, s{sCk}, 15
            s_lshl_b32 m0, s{sW}, 15
            s_add_u32 m0, m0, {B_CKV}
            """)
            if opt.get("ckv_x", 1):
                g(f"s_and_b32 s{sGot}, s{sI}, 1")
                g(f"s_lshl_b32 s{sGot}, s{sGot}, 14")
                g(f"s_add_u32 s{sCk}, s{sCk}, s{sGot}")
                g(f"s_lshl_b32 s{sGot}, s{sGot}, 1")
        rot = opt.get("ckv_rot", 0)
        sCb = 57
        if rot:
            assert not numa and not opt.get("ckv_x", 1)
            g(f"""
            s_mov_b32 s{sCb}, s{sCk}
            s_lshl_b32 s{sGot}, s{sW}, 1
            s_add_u32 s{sGot}, s{sGot}, s{sMSG}
            """)
            if rot == 2:
                g(f"s_lshl_b32 s{sTMP}, s{sI}, 2")
                g(f"s_add_u32 s{sGot}, s{sGot}, s{sTMP}")
            g(f"""
            s_and_b32 s{sGot}, s{sGot}, 7
            s_lshl_b32 s{sGot}, s{sGot}, 12
            s_add_u32 s{sCk}, s{sCb}, s{sGot}
            """)
        def ckv_stream(k0, k1):
            thr = opt.get("ckv_thr")
            for k in range(k0, k1):
                f = f16sw(k & 15)
                tmp = t0 + (k & 1)
                g(f"v_xor_b32 v{tmp}, {f*16}, v{vL16}")
                if thr is not None: g(f"s_waitcnt vmcnt({thr-1})")
                g(f"buffer_load_dwordx4 v{tmp}, {CKV}, s{sCk} offen offset:{(k%4)*1024} {NT} lds")
                if k % 4 == 3:
                    if rot:
                        g(f"s_addk_i32 s{sGot}, 0x1000")
                        g(f"s_and_b32 s{sGot}, s{sGot}, 0x7000")
                        g(f"s_add_u32 s{sCk}, s{sCb}, s{sGot}")
                    else:
                        g(f"s_addk_i32 s{sCk}, {0x3000 if (numa and k % 8 == 7) else 0x1000}")
                    g(f"s_add_u32 m0, m0, 0x1000")
                if k == 15 and opt.get("ckv_x", 1): g(f"s_sub_u32 s{sCk}, s{sCk}, s{sGot}")
        c1_, c2_ = opt.get("ckv_a", 0), opt.get("ckv_b", 0)
        g.stamp(13)
        ckv_stream(0, c1_)
        g.l.append(";;SPLIT")
        pB = opt.get("p1a_on") == "B"
        if pB:
            vX, vSl, vF, vQp = 64, 72, 80, 116
            selectors(g, vSl, vL, t0, t1, t2)
            g(f"s_and_b32 s{sO}, s{sW}, 1")
            g(f"s_lshl_b32 s{sO}, s{sO}, 4")
            g(f"""
            s_cmp_lg_u32 s{sW}, 2
            s_cbranch_scc1 L_B_nt
            s_lshl_b32 s{sO2}, s{sXCD}, 4
            s_add_u32 s{sO2}, s{sO2}, s{sI}
            s_lshl_b32 s{sO2}, s{sO2}, 10
            s_add_u32 s{sO2}, s{sO2}, {D3}
            v_lshlrev_b32 v{t0}, 7, v{vL}
            s_mov_b64 exec, 0xff
            buffer_load_dword v62, v{t0}, {WS}, s{sO2} offen
            s_mov_b64 exec, -1
            """)
            g.lab("L_B_nt")
            g(f"s_waitcnt vmcnt({9+c1_})")
            for k in range(5):
                g(f"v_alignbit_b32 v{vX+k}, v{vX+k+1}, v{vX+k}, s{sO}")
            for i in range(9):
                for d in range(4):
                    g(f"v_perm_b32 v{vF+4*i+d}, v{vX+(i>>1)}, v{vX+(i>>1)}, v{vSl+4*(i&1)+d}")
            cm = opt.get("ckv_m", 0)
            c0 = c1_
            for i in range(9):
                g(f"s_waitcnt vmcnt({8-i+c1_})")
                g(f"{MF} {v(vQp,4)}, {v(vF+4*i,4)}, {A(4*i,4)}, {'0' if i == 0 else v(vQp,4)}")
                if i >= 9 - cm:
                    ckv_stream(c1_, c1_ + 1); c1_ += 1
            g(f"s_cmp_eq_u32 s{sW}, 0")
            g("s_cbranch_scc1 L_B_w0a")
            g(f"v_lshl_add_u32 v{t2}, s{sW}, 10, v{vL16}")
            g(f"ds_write_b128 v{t2}, {v(vQp,4)} offset:{B_PB}")
            g("s_waitcnt lgkmcnt(0)")
            g("s_barrier")
            g("s_branch L_B_w0b")
            g.lab("L_B_w0a")
            g("s_waitcnt lgkmcnt(0)")
            g(f"s_add_u32 s{sO}, s{sT}, {K0}")
            g(f"s_and_b32 s{sO}, s{sO}, 15")
            g("s_barrier")
            for k in range(3):
                g(f"ds_read_b128 {v(vF+4*k,4)}, v{vL16} offset:{B_PB+(k+1)*1024}")
            g("s_waitcnt lgkmcnt(1)")
            g(f"v_pk_add_f32 {v(vQp,2)}, {v(vQp,2)}, {v(vF,2)}")
            g(f"v_pk_add_f32 {v(vQp+2,2)}, {v(vQp+2,2)}, {v(vF+2,2)}")
            g("s_waitcnt lgkmcnt(0)")
            g(f"v_pk_add_f32 {v(vF+4,2)}, {v(vF+4,2)}, {v(vF+8,2)}")
            g(f"v_pk_add_f32 {v(vF+6,2)}, {v(vF+6,2)}, {v(vF+10,2)}")
            g(f"v_pk_add_f32 {v(vQp,2)}, {v(vQp,2)}, {v(vF+4,2)}")
            g(f"v_pk_add_f32 {v(vQp+2,2)}, {v(vQp+2,2)}, {v(vF+6,2)}")
            for r in range(4):
                g(f"v_and_or_b32 v{vQp+r}, v{vQp+r}, -16, s{sO}")
            g(f"buffer_store_dwordx4 {v(vQp,4)}, v{vL16}, {WS}, s{sC} offen sc1")
            g.lab("L_B_w0b")
            g.stamp(9)
            cq = opt.get("ckv_q", 0)
            ckv_stream(c1_, c1_ + cq); c1_ += cq
        srd(g, 20, 9, 4608 * 1152)
        srd(g, 24, 8, 9216)
        if opt.get("w1_on") == "B":
            srd(g, 16, 7, 576 * 9216)
            srd_tail(g, 8, 2304)
        g(f"""
        s_and_b32 s{sHG}, s{sI}, 1
        s_lshl_b32 s{sU2}, s{sXCD}, 4
        s_add_u32 s{sU2}, s{sU2}, s{sI}
        s_mov_b32 s{sPR}, s{sU2}
        s_mov_b32 s{sPOI}, {POISON}
        v_mul_u32_u24 v{vOa}, {16*OSTR}, v{vG}
        v_lshl_add_u32 v{vOa}, v{vN}, 4, v{vOa}
        """)
        def msg_addr():
            g(f"""
        s_lshl_b32 s{sOo}, s{sHG}, 6
        s_add_u32 s{sOo}, s{sOo}, s{sW}
        s_mul_i32 s{sOo}, s{sOo}, {OSTR}
        s_lshl_b32 s{sO}, s{sMSG}, 8
        s_add_u32 s{sOo}, s{sOo}, s{sO}
        s_add_u32 s{sOo}, s{sOo}, {OB}
        s_lshl_b32 s{sD2}, s{sHG}, 6
        s_add_u32 s{sD2}, s{sD2}, s{sMSG}
        s_lshl_b32 s{sD2}, s{sD2}, 8
        s_add_u32 s{sD2}, s{sD2}, {D2}
            """)
        if not numa: msg_addr()
        h3_addr(g, vH3, vH3x, vL, vN, vG, t0)
        h3_soffs(g, sH3m, sH3l)
        def fsw(dst, src, tmp):
            g(f"v_lshrrev_b32 v{tmp}, 3, v{src}")
            g(f"v_and_b32 v{dst}, 7, v{src}")
            g(f"v_lshl_add_u32 v{dst}, v{dst}, 1, v{tmp}")
            g(f"v_lshlrev_b32 v{tmp}, 3, v{tmp}")
            g(f"v_xor_b32 v{dst}, v{dst}, v{tmp}")
        fsw(t2, vN, t3)
        g(f"""
        v_xor_b32 v{t2}, v{t2}, v{vG}
        v_lshlrev_b32 v{t2}, 4, v{t2}
        v_lshl_add_u32 v{t2}, v{vN}, 10, v{t2}
        s_lshl_b32 s{sO}, s{sW}, 15
        s_add_u32 s{sO}, s{sO}, {B_CKV}
        """)
        assert B_QF == 0
        for q in range(4):
            g(f"v_xor_b32 v{vQBs+q}, {q*64}, v{t2}")
            g(f"v_add_u32 v{vSB+q}, s{sO}, v{vQBs+q}")
        g(f"v_lshrrev_b32 v{t0}, 2, v{vL}")
        fsw(t2, t0, t3)
        g(f"""
        v_bfe_u32 v{t3}, v{vL}, 1, 1
        v_xor_b32 v{t2}, v{t2}, v{t3}
        v_lshlrev_b32 v{t1}, 10, v{t0}
        v_lshl_add_u32 v{t1}, v{t2}, 4, v{t1}
        v_and_b32 v{t3}, 1, v{vL}
        v_lshl_add_u32 v{t1}, v{t3}, 3, v{t1}
        v_lshl_add_u32 v{t1}, s{sW}, 8, v{t1}
        """)
        for k in range(4):
            g(f"s_add_u32 s{sO}, s{sW}, {k}")
            g(f"s_and_b32 s{sO}, s{sO}, 3")
            g(f"v_lshl_add_u32 v{[vPw,20,21,23][k]}, s{sO}, 10, v{vL16}")
            g(f"s_lshl_b32 s{sO}, s{sO}, 15")
            g(f"s_add_u32 s{sO}, s{sO}, {B_CKV}")
            g(f"v_add_u32 v{vPVb+k}, s{sO}, v{t1}")
        for k in range(opt.get("pv_pre", 4), 4):
            for ct in range(8):
                g(f"v_xor_b32 v{168+8*k+ct}, {ct<<5}, v{vPVb+k}")
        g(f"""
        v_lshlrev_b32 v{vMXr}, 4, v{vN}
        v_lshl_add_u32 v{vMXw}, v{vG}, 2, v{vMXr}
        v_lshl_add_u32 v{vMXw}, s{sW}, 8, v{vMXw}
        s_lshl_b32 s{sQg}, s{sB}, 1
        s_add_u32 s{sQg}, s{sQg}, s{sHG}
        s_lshl_b32 s{sQg}, s{sQg}, 2
        s_add_u32 s{sQg}, s{sQg}, s{sW}
        s_lshl_b32 s{sQg}, s{sQg}, 12
        s_add_u32 s{sQg}, s{sQg}, {QB}
        s_lshr_b32 s{sTMP}, s{sW}, 1
        s_xor_b32 s{sTMP+1}, s{sW}, s{sTMP}
        s_and_b32 s{sTMP+1}, s{sTMP+1}, 1
        s_lshl_b32 s{sTMP+1}, s{sTMP+1}, 3
        s_add_u32 s{sTMP}, s{sTMP}, s{sTMP+1}
        s_lshl_b32 s{sTMP}, s{sTMP}, 4
        v_xor_b32 v{vQd}, s{sTMP}, v{vL16}
        v_xor_b32 v{vQd+1}, 32, v{vQd}
        v_xor_b32 v{vQd+2}, 64, v{vQd}
        v_xor_b32 v{vQd+3}, 0x60, v{vQd}
        v_mov_b32 v{t0}, 0
        v_lshlrev_b32 v{t1}, 2, v{vL}
        s_mov_b32 exec_hi, 0
        ds_write_b32 v{t1}, v{t0} offset:{B_ZERO}
        s_mov_b64 exec, -1
        s_lshl_b32 s{sTMP}, s{sXCD}, 3
        s_lshl_b32 s{sTMP+1}, s{sHG}, 2
        s_add_u32 s{sTMP}, s{sTMP}, s{sTMP+1}
        s_add_u32 s{sTMP}, s{sTMP}, s{sW}
        s_lshl_b32 s{sTMP}, s{sTMP}, 9
        s_add_u32 s{sTMP}, s{sTMP}, {D1}
        s_add_u32 s{sBP}, s4, s{sTMP}
        s_addc_u32 s{sBP+1}, s5, 0
        """)
        if not numa: g.stamp(14)
        ckv_stream(c1_, c1_ + c2_)
        for i in range(10):
            unit_pattern(g, vP2 + i, vL, sW if i == 9 else None, i, 1152, t0, t1)
        tr_pair_bases(g, vT20, vT21, vK20, vK21, vL, B_W2, t0, t1, t2)
        g(f"""
        v_bfe_u32 v{t0}, v{vL}, 2, 1
        v_lshlrev_b32 v{t0}, 7, v{t0}
        v_add_u32 v{t0}, {B_HL}, v{t0}
        v_lshl_add_u32 v{t1}, v{vG}, 3, v{t0}
        v_add_u32 v{t0}, 64, v{t0}
        v_mov_b32 v{t2}, {B_ZERO}
        v_cmp_gt_u32 vcc, 8, v{vN}
        v_cndmask_b32 v{vHe}, v{t2}, v{t1}, vcc
        v_cndmask_b32 v{vHo}, v{t1}, v{t2}, vcc
        v_lshrrev_b32 v{t1}, 3, v{vL}
        v_cmp_eq_u32 vcc, 0, v{t1}
        v_cndmask_b32 v{vHke}, v{t2}, v{t0}, vcc
        v_cmp_eq_u32 vcc, 1, v{t1}
        v_cndmask_b32 v{vHko}, v{t2}, v{t0}, vcc
        """)
        finish_tag(g)
        g(f"""
        v_mov_b32 v{vTag}, s{sT}
        v_mov_b32 v{vTag+1}, s{sT+1}
        s_bitcmp1_b32 s{sT}, 0
        s_cselect_b32 s{sPat}, 1, 0x10000
        v_mov_b32 v{vML+1}, s{sPat}
        s_mov_b32 s{sMk}, 0xfffefffe
        s_mov_b32 s{sTT}, s{sT}
        s_mov_b32 s{sTT+1}, s{sT}
        """)
        vPat = 33
        g(f"v_mov_b32 v{vPat}, s{sPat}")
        w1b = opt.get('w1_on') == 'B'
        if w1b:
            g(f"""
            s_lshl_b32 s{sO}, s{sU2}, 2
            s_add_u32 s{sO}, s{sO}, s{sW}
            s_mul_i32 s{sRho}, s{sO}, 1821
            s_lshr_b32 s{sRho}, s{sRho}, 16
            s_mul_i32 s{sTMP}, s{sRho}, 36
            s_sub_u32 s{sBlk}, s{sO}, s{sTMP}
            s_min_u32 s{sTMP}, s{sRho}, 4
            s_mul_i32 s{sR0}, s{sRho}, 10
            s_add_u32 s{sR0}, s{sR0}, s{sTMP}
            s_lshl_b32 s{sR0}, s{sR0}, 2
            v_bfe_u32 v{t0}, v{vL}, 3, 1
            v_mul_u32_u24 v{t0}, 1152, v{t0}
            s_lshl_b32 s{sO}, s{sR0}, 1
            """)
            assert all((i * 1821) >> 16 == i // 36 for i in range(512))
            for k in range(5):
                g(f"buffer_load_dwordx4 {v(vXr+4*k,4)}, v{t0}, {X}, s{sO} offen offset:{16*k}")
            g(f"buffer_load_dwordx2 {v(vXr+20,2)}, v{t0}, {X}, s{sO} offen offset:80")
            g(f"""
            v_mul_u32_u24 v{vW1a}, 9216, v{vG}
            v_lshl_add_u32 v{vW1a}, v{vN}, 4, v{vW1a}
            v_lshrrev_b32 v{t0}, 5, v{vL}
            v_mul_u32_u24 v{vHs}, 18432, v{t0}
            v_and_b32 v{t0}, 31, v{vL}
            v_lshl_add_u32 v{vHs}, v{t0}, 4, v{vHs}
            v_mul_u32_u24 v{t0}, 0x0202, v{vG}
            v_add_u32 v{t0}, 0x0100, v{t0}
            v_and_b32 v{t1}, 1, v{vL}
            v_lshlrev_b32 v{t1}, 4, v{t1}
            v_lshlrev_b32 v{t0}, v{t1}, v{t0}
            v_mov_b32 v{t2}, 0x0c0c0000
            v_lshrrev_b32 v{t2}, v{t1}, v{t2}
            v_or_b32 v{t0}, v{t0}, v{t2}
            v_bfe_u32 v{t1}, v{vL}, 1, 2
            v_mov_b32 v{t2}, 0x0c0c0c0c
            """)
            for d in range(4):
                g(f"v_cmp_eq_u32 vcc, {d}, v{t1}")
                g(f"v_cndmask_b32 v{vSel+d}, v{t2}, v{t0}, vcc")
        g(f"""
        v_lshrrev_b32 v{t0}, 5, v{vL}
        v_bfe_u32 v{t1}, v{vL}, 4, 1
        v_lshl_add_u32 v{t0}, v{t1}, 1, v{t0}
        v_lshl_add_u32 v{t0}, v{vN}, 2, v{t0}
        v_lshlrev_b32 v{t0}, 1, v{t0}
        s_mul_i32 s{sO}, s{sU2}, 72
        buffer_load_ushort v{vB1}, v{t0}, {B1}, s{sO} offen
        v_lshl_add_u32 v{vHw}, s{sW}, 7, v{t0}
        s_mul_i32 s{sO}, s{sU2}, 9
        v_add_u32 v{t0}, s{sO}, v{vN}
        v_and_b32 v{t1}, 1, v{t0}
        v_lshlrev_b32 v{t1}, 8, v{t1}
        v_bfe_u32 v{t2}, v{t0}, 1, 4
        v_lshl_add_u32 v{t1}, v{t2}, 4, v{t1}
        v_lshrrev_b32 v{t2}, 5, v{t0}
        v_lshl_add_u32 v{t1}, v{t2}, 9, v{t1}
        v_mul_u32_u24 v{vHg}, 36864, v{vG}
        v_add_u32 v{vHg}, v{vHg}, v{t1}
        """)
        for k in range(4):
            g(f"s_load_dwordx4 s[{[8,12,24,52][k]}:{[8,12,24,52][k]+3}], s[{sBP}:{sBP+1}], {k*128} glc")
        assert c1_ + c2_ <= 16
        if opt.get("b_sleep"): g(f"s_sleep {opt['b_sleep']}")
        if numa:
            g(f"""
            s_lshl_b32 s{sO}, s{sMSG}, 1
            s_add_u32 s{sO}, s{sO}, s{sHG}
            s_lshl_b32 s{sO}, s{sO}, 7
            s_add_u32 s{sO}, s{sO}, {DP}
            s_add_u32 s{sDP}, s4, s{sO}
            s_addc_u32 s{sDP+1}, s5, 0
            s_lshr_b32 s{sTMP}, s{sXCD}, 2
            s_or_b32 s{sTMP}, s{sTMP}, s{sW}
            s_cmp_lg_u32 s{sTMP}, 0
            s_cbranch_scc1 L_B_noann
            s_xor_b32 s{sTMP}, s{sT+1}, s{sPhi}
            v_mov_b32 v{t0}, s{sT}
            v_mov_b32 v{t1}, s{sTMP}
            v_lshlrev_b32 v{t2}, 3, v{vL}
            s_mov_b64 exec, 0xffff
            buffer_store_dwordx2 {v(t0,2)}, v{t2}, {WS}, s{sO} offen sc1
            s_mov_b64 exec, -1
            """)
            g.lab("L_B_noann")
        g.stamp(8)
        ckv_stream(c1_ + c2_, 32)
        if numa:
            g(f"""
            s_cmp_lt_u32 s{sXCD}, 4
            s_cbranch_scc1 L_B_phok
            s_mov_b32 s{sCNT}, 0
            """)
            g.lab("L_B_phpoll")
            g(f"s_load_dwordx2 s[16:17], s[{sDP}:{sDP+1}], 0 glc")
            spin_guard(g, "L_B_phok")
            g(f"""
            s_waitcnt lgkmcnt(0)
            s_xor_b64 s[16:17], s[16:17], s[{sT}:{sT+1}]
            s_lshr_b32 s{sTMP}, s17, 1
            s_or_b32 s{sTMP}, s{sTMP}, s16
            s_cbranch_scc1 L_B_phpoll
            s_cmp_lg_u32 s17, s{sPhi}
            s_cbranch_scc1 L_B_phok
            s_branch L_B_refetch
            """)
            g.lab("L_B_phok")
            g(f"s_lshl_b32 s{sMSG}, s{sMSG}, 1")
            g(f"s_add_u32 s{sMSG}, s{sMSG}, s{sPhi}")
            msg_addr()
            if opt.get("stamps"): g(f"s_mov_b32 s98, s{sPhi}")
        NW1 = 0 if "w1" in opt.get("skip", "") else 11
        w1pos = opt.get("w1_pos", 0)
        def w1_stream():
            if "w1" in opt.get("skip", ""): return
            g(f"s_mul_i32 s{sO2}, s{sR0}, 9216")
            g(f"s_lshl_b32 s{sO3}, s{sBlk}, 8")
            g(f"s_add_u32 s{sO2}, s{sO2}, s{sO3}")
            for i in range(11):
                g(f"buffer_load_dwordx4 {v(vW1+4*i,4)}, v{vW1a}, {W1}, s{sO2} offen {NT}")
                if i < 10: g(f"s_add_u32 s{sO2}, s{sO2}, {4*9216}")
                if i == 9:
                    g(f"s_cmp_ge_u32 s{sRho}, 4")
                    g(f"s_cselect_b32 s{sO2}, {576*9216}, s{sO2}")
        def w1_gemv(store=True):
            vH = 140
            for i in range(10):
                g(f"{MF} {v(vH,4)}, {v(vXA+4*i,4)}, {v(vW1+4*i,4)}, {'0' if i == 0 else v(vH,4)}")
            g(f"s_cmp_ge_u32 s{sRho}, 4")
            g("s_cbranch_scc1 L_B_w1s")
            g(f"{MF} {v(vH,4)}, {v(vXA+40,4)}, {v(vW1+40,4)}, {v(vH,4)}")
            g.lab("L_B_w1s")
            g(f"""
            s_mul_i32 s{sO}, s{sRho}, 36864
            s_lshl_b32 s{sO3}, s{sBlk}, 9
            s_add_u32 s{sO}, s{sO}, s{sO3}
            s_add_u32 s{sO}, s{sO}, {HH}
            s_and_b32 s{sO3}, s{sT}, 15
            """)
            for r in range(4):
                g(f"v_and_or_b32 v{vH+r}, v{vH+r}, -16, s{sO3}")
            g(f"s_mov_b32 s{sR0}, s{sO}")
        def w2_stream():
            g(f"s_mul_i32 s{sO2}, s{sU2}, {36*1152}")
            unit_load(g, W2, vP2, None, sO2, 1152, "w2", NT, vdst=vW2, w0extra=False)
        NW1 = 0
        w1s = w1b and opt.get("w1_sc", 0)
        if w1s: vXA = 212
        if w1b and not w1s:
            assert opt.get("w2_pos", 0) != 2 and opt.get("pv_pre", 4) == 4
            w1_stream(); NW1 = 0 if "w1" in opt.get("skip", "") else 11
        if opt.get("w2_pos", 0) == 2:
            w2_stream(); NW1 = 0 if "w2" in opt.get("skip", "") else 11
        g.stamp(1)
        g(f"s_lshl_b32 m0, s{sW}, 12")
        sD = [8, 12, 24, 52]
        def d1poll():
            for k in range(4):
                g(f"s_load_dwordx4 s[{sD[k]}:{sD[k]+3}], s[{sBP}:{sBP+1}], {k*128} glc")
        def d1chk():
            for k in range(4):
                g(f"s_xor_b64 s[{sD[k]}:{sD[k]+1}], s[{sD[k]}:{sD[k]+1}], s[{sTT}:{sTT+1}]")
                g(f"s_xor_b64 s[{sD[k]+2}:{sD[k]+3}], s[{sD[k]+2}:{sD[k]+3}], s[{sTT}:{sTT+1}]")
                g(f"s_or_b64 s[{sD[k]}:{sD[k]+1}], s[{sD[k]}:{sD[k]+1}], s[{sD[k]+2}:{sD[k]+3}]")
            g("s_or_b64 s[8:9], s[8:9], s[12:13]")
            g("s_or_b64 s[24:25], s[24:25], s[52:53]")
            g("s_or_b64 s[8:9], s[8:9], s[24:25]")
        def qdma():
            for k in range(4):
                g(f"buffer_load_dwordx4 v{vQd+k}, {WS}, s{sQg} offen offset:{k*1024} sc1 lds")
        def look(tag):
            if tag[0] not in opt.get("looks", "abcd"): return
            g(f"s_cmp_lg_u32 s{sGot}, 0")
            g(f"s_cbranch_scc1 L_B_lk{tag}")
            g("s_waitcnt lgkmcnt(0)")
            d1chk()
            g(f"s_cbranch_scc1 L_B_lp{tag}")
            g.stamp(3)
            qdma()
            g(f"s_mov_b32 s{sGot}, 1")
            g(f"s_branch L_B_lk{tag}")
            g.lab(f"L_B_lp{tag}")
            d1poll()
            g.lab(f"L_B_lk{tag}")
        def pvgroup(k):
            for ct in range(8):
                tmp = t0 + (ct & 1)
                g(f"v_xor_b32 v{tmp}, {ct<<5}, v{vPVb+k}")
                for hi in range(2):
                    g(f"ds_read_b64_tr_b16 {A(aP+(ct*4+k)*4+2*hi,2)}, v{tmp} offset:{hi*16384}")
        npre = opt.get("pv_pre", 4)
        vPA = 168
        def pvrd(k, ct, hi):
            g(f"ds_read_b64_tr_b16 {A(aP+(ct*4+k)*4+2*hi,2)}, v{vPA+8*k+ct} offset:{hi*16384}")
        qd = opt.get("q_direct", 0)
        if qd:
            vQr = 140
            def qld():
                for k in range(4):
                    g(f"buffer_load_dwordx4 {v(vQr+4*k,4)}, v{vL16}, {WS}, s{sQg} offen offset:{k*1024} sc1")
            def qchk():
                g(f"v_cmp_eq_u32 vcc, s{sPOI}, v{vQr}")
                for k in range(1, 4):
                    g(f"v_cmp_eq_u32 s[{sM1}:{sM1+1}], s{sPOI}, v{vQr+4*k}")
                    g(f"s_or_b64 vcc, vcc, s[{sM1}:{sM1+1}]")
            g("s_waitcnt lgkmcnt(0)")
            g(f"s_mov_b32 s{sCNT}, 0")
            g.lab("L_B_rdy")
            d1poll()
            spin_guard(g, "L_B_rdy2")
            g("s_waitcnt lgkmcnt(0)")
            d1chk()
            g("s_cbranch_scc1 L_B_rdy")
            g.lab("L_B_rdy2")
            g(f"s_lshl_b32 s{sTMP}, s{sW}, 12")
            for k in range(4): g(f"v_add_u32 v{vQd+k}, s{sTMP}, v{vQd+k}")
            g(f"s_waitcnt vmcnt({16+NW1})")
            for ks in range(16):
                g(f"ds_read_b128 {A(aS+ks*4,4)}, v{vSB+(ks&3)} offset:{(ks>>2)*256}")
            g(f"s_waitcnt vmcnt({opt.get('q_at', 0)+NW1})")
            g.stamp(3)
            qld()
            g(f"s_waitcnt vmcnt({4+NW1})")
            g.stamp(2)
            for ks in range(16):
                g(f"ds_read_b128 {A(aS+64+ks*4,4)}, v{vSB+(ks&3)} offset:{16384+(ks>>2)*256}")
            g("s_barrier")
            g(f"s_mov_b32 s{sGot}, 0")
            half = opt.get("q_mid", 2)
            for k in range(npre):
                if k == half:
                    g("s_waitcnt vmcnt(0)")
                    qchk()
                    g("s_cbranch_scc0 L_B_qm")
                    qld()
                    g.lab("L_B_qm")
                pvgroup(k)
            g(f"s_mov_b32 s{sCNT}, 0")
            g.lab("L_B_qchk")
            g("s_waitcnt vmcnt(0)")
            qchk()
            g("s_cbranch_scc1 L_B_qagain")
            g.lab("L_B_qgood")
            if opt.get("stamps"): g(f"s_mov_b32 s100, s{sCNT}")
            for k in range(4):
                g(f"ds_write_b128 v{vQd+k}, {v(vQr+4*k,4)} offset:{k*1024}")
        else:
            g("s_waitcnt lgkmcnt(0)")
            if opt.get("looks", "abcd"): d1poll()
            g(f"s_mov_b32 s{sGot}, 0")
            g(f"s_waitcnt vmcnt({16+NW1})")
            for ks in range(16):
                g(f"ds_read_b128 {A(aS+ks*4,4)}, v{vSB+(ks&3)} offset:{(ks>>2)*256}")
            if w1b:
                for i in range(11):
                    for d in range(4):
                        g(f"v_perm_b32 v{vXA+4*i+d}, v{vXr+2*i+1}, v{vXr+2*i}, v{vSel+d}")
            for z in range(opt.get("b_looks", 2)): look(f"a{z}")
            g(f"s_cmp_lg_u32 s{sGot}, 0")
            g("s_cbranch_scc1 L_B_cw1")
            g(f"s_waitcnt vmcnt({NW1})")
            g.lab("L_B_cw1")
            g(f"s_waitcnt vmcnt({4+NW1})")
            g.stamp(2)
            look("b")
            for ks in range(16):
                g(f"ds_read_b128 {A(aS+64+ks*4,4)}, v{vSB+(ks&3)} offset:{16384+(ks>>2)*256}")
            g("s_barrier")
            def pvgroup(k):
                for ct in range(8):
                    tmp = t0 + (ct & 1)
                    g(f"v_xor_b32 v{tmp}, {ct<<5}, v{vPVb+k}")
                    for hi in range(2):
                        g(f"ds_read_b64_tr_b16 {A(aP+(ct*4+k)*4+2*hi,2)}, v{tmp} offset:{hi*16384}")
            npre = opt.get("pv_pre", 4)
            vPA = 168
            def pvrd(k, ct, hi):
                g(f"ds_read_b64_tr_b16 {A(aP+(ct*4+k)*4+2*hi,2)}, v{vPA+8*k+ct} offset:{hi*16384}")
            for k in range(npre):
                look(f"c{k}")
                pvgroup(k)
            if w1b and not w1s:
                look("d")
                g(f"s_cmp_lg_u32 s{sGot}, 0")
                g("s_cbranch_scc1 L_B_cw2")
                g("s_waitcnt vmcnt(0)")
                g.lab("L_B_cw2")
                g("s_waitcnt vmcnt(4)")
                w1_gemv(False)
            g(f"s_mov_b32 s{sCNT}, 0")
            g(f"s_cmp_lg_u32 s{sGot}, 0")
            g("s_cbranch_scc1 L_B_qwait")
            if opt.get("looks", "abcd"): g("s_branch L_B_d1chk")
            g.lab("L_B_d1poll")
            d1poll()
            spin_guard(g, "L_B_qget0")
            g.lab("L_B_d1chk")
            g("s_waitcnt lgkmcnt(0)")
            d1chk()
            g("s_cbranch_scc1 L_B_d1poll")
            g.stamp(3)
            g.lab("L_B_qget0")
            g(f"s_mov_b32 s{sCNT}, 0")
            qdma()
            g.lab("L_B_qwait")
        nb = 0
        if w1b and not w1s:
            g(f"buffer_store_dwordx4 {v(140,4)}, v{vHs}, {WS}, s{sR0} offen sc1")
            nb = 1
        def w1_base():
            g(f"s_mul_i32 s{sO2}, s{sR0}, 9216")
            g(f"s_lshl_b32 s{sO3}, s{sBlk}, 8")
            g(f"s_add_u32 s{sO2}, s{sO2}, s{sO3}")
        if opt.get("w2_pos", 0) == 3:
            g(f"s_mul_i32 s{sO2}, s{sU2}, {36*1152}")
            g(f"s_mul_i32 s{sO}, s{sW}, {8*1152}")
            g(f"s_add_u32 s{sO}, s{sO}, s{sO2}")
            g(f"s_add_u32 s{sO2}, s{sO2}, {32*1152}")
        if opt.get("w2_pos", 0) == 0:
            w2_stream(); nb += 0 if "w2" in opt.get("skip", "") else 11
        g(f"s_waitcnt vmcnt({nb}) lgkmcnt(0)")
        g.lab("L_B_qbar")
        if w1s: w1_base()
        g("s_barrier")
        g.stamp(4)
        def ebell():
            g(f"""
            s_cmp_lg_u32 s{sW}, 2
            s_cbranch_scc1 L_B_noeb
            s_sub_u32 s{sTMP}, s{sD2}, {D2}
            s_lshr_b32 s{sTMP}, s{sTMP}, 1
            s_add_u32 s{sTMP}, s{sTMP}, {DE2 if opt.get("e_rep") else DE}
            v_lshlrev_b32 v{t3}, {14 if opt.get("e_rep") else 4}, v{vL}
            s_mov_b64 exec, 0xff
            buffer_store_dwordx4 {v(vML,4)}, v{t3}, {WS}, s{sTMP} offen sc1
            s_mov_b64 exec, -1
            """)
            g.lab("L_B_noeb")
        vQ = 64
        vS = 156
        PRE = 4 if npre < 4 else 6
        late = [(k, ct, hi) for k in range(npre, 4) for ct in range(8) for hi in range(2)]
        per = 2 if late else 0
        seq = []
        for ks in range(PRE):
            g(f"ds_read_b128 {v(vQ+4*ks,4)}, v{vQBs+(ks&3)} offset:{(ks>>2)*256}"); seq.append(("q", ks))
        for ks in range(16):
            if opt.get("e_pos") == ks: ebell()
            if ks + PRE < 16:
                k2 = ks + PRE
                g(f"ds_read_b128 {v(vQ+4*k2,4)}, v{vQBs+(k2&3)} offset:{(k2>>2)*256}"); seq.append(("q", k2))
            for _ in range(per if ks + PRE < 16 else per + 1):
                if late:
                    pvrd(*late.pop(0)); seq.append(("p",))
            g(f"s_waitcnt lgkmcnt({min(15, len(seq) - 1 - seq.index(('q', ks)))})")
            for kt in range(2):
                g(f"{MF} {v(vS+4*kt,4)}, {A(aS+(kt*16+ks)*4,4)}, {v(vQ+4*ks,4)}, {'0' if ks == 0 else v(vS+4*kt,4)}")
            if w1s and 4 <= ks < 15:
                i = ks - 4
                g(f"buffer_load_dwordx4 {v(vW1+4*i,4)}, v{vW1a}, {W1}, s{sO2} offen {NT}")
                if i < 10: g(f"s_add_u32 s{sO2}, s{sO2}, {4*9216}")
                if i == 9:
                    g(f"s_cmp_ge_u32 s{sRho}, 4")
                    g(f"s_cselect_b32 s{sO2}, {576*9216}, s{sO2}")
            if opt.get("w2_pos", 0) == 3 and 4 <= ks < 15:
                i = ks - 4
                if i == 10: g("s_mov_b32 exec_hi, 0")
                g(f"buffer_load_dwordx4 {v(vW2+4*i,4)}, v{vP2+(i if i < 10 else 4)}, {W2}, s{sO if i < 9 else sO2} offen {NT}")
                if i == 10: g("s_mov_b64 exec, -1")
        CS = math.log2(math.e) * 128 ** -0.5
        g(f"s_mov_b32 s{sC}, {hex(fbits(CS))}")
        g(f"""
        {"" if qd else f"v_cmp_u_f32 vcc, v{vS}, v{vS}"}
        v_max3_f32 v{t0}, v{vS}, v{vS+1}, v{vS+2}
        v_max3_f32 v{t1}, v{vS+3}, v{vS+4}, v{vS+5}
        v_max3_f32 v{t0}, v{t0}, v{vS+6}, v{vS+7}
        v_max_f32 v{t0}, v{t0}, v{t1}
        {"" if qd else "s_cbranch_vccnz L_B_qslow"}
        """)
        g.lab("L_B_qok")
        if opt.get("stamps") and not qd: g(f"s_mov_b32 s100, s{sCNT}")
        g(f"""
        ds_write_b32 v{vMXw}, v{t0} offset:{B_MX}
        s_waitcnt lgkmcnt(0)
        s_barrier
        """)
        g.stamp(5)
        vM = 64
        for q in range(4):
            g(f"ds_read_b128 {v(vM+4*q,4)}, v{vMXr} offset:{B_MX+q*256}")
        g(f"""
        s_waitcnt lgkmcnt(2)
        v_max3_f32 v{vM}, v{vM}, v{vM+1}, v{vM+2}
        v_max3_f32 v{vM+3}, v{vM+3}, v{vM+4}, v{vM+5}
        v_max3_f32 v{vM}, v{vM}, v{vM+6}, v{vM+7}
        s_waitcnt lgkmcnt(0)
        v_max3_f32 v{vM+8}, v{vM+8}, v{vM+9}, v{vM+10}
        v_max3_f32 v{vM+11}, v{vM+11}, v{vM+12}, v{vM+13}
        v_max3_f32 v{vM+8}, v{vM+8}, v{vM+14}, v{vM+15}
        v_max3_f32 v{vM}, v{vM}, v{vM+3}, v{vM+11}
        v_max_f32 v{vM}, v{vM}, v{vM+8}
        v_mul_f32 v{vML}, s{sC}, v{vM}
        """)
        n1 = min(len(late), 14)
        for _ in range(n1): pvrd(*late.pop(0))
        def stat(wave, off, tag):
            g(f"s_cmp_lg_u32 s{sW}, {wave}")
            g(f"s_cbranch_scc1 L_B_nost{tag}")
            if off: g(f"s_add_u32 s{sD2}, s{sD2}, {off}")
            g("s_mov_b64 exec, 0xffff")
            g(f"buffer_store_dwordx4 {v(vML,4)}, v{vL16}, {WS}, s{sD2} offen sc1")
            g("s_mov_b64 exec, -1")
            g.lab(f"L_B_nost{tag}")
        if opt.get("m_early"): stat(1, 0, "m")
        for k in range(8):
            g(f"v_fma_f32 v{vS+k}, v{vS+k}, s{sC}, -v{vML}")
        for k in range(8):
            g(f"v_exp_f32 v{vS+k}, v{vS+k}")
        vPf = 80
        vO = 96
        for k in range(4):
            g(f"v_cvt_pk_bf16_f32 v{vPf+k}, v{vS+2*k}, v{vS+2*k+1}")
        g(f"ds_write_b128 v{vPw}, {v(vPf,4)} offset:{B_PB}")
        g(f"""
        v_pk_add_f32 {v(vS,2)}, {v(vS,2)}, {v(vS+2,2)}
        v_pk_add_f32 {v(vS+4,2)}, {v(vS+4,2)}, {v(vS+6,2)}
        v_pk_add_f32 {v(vS,2)}, {v(vS,2)}, {v(vS+4,2)}
        v_add_f32 v{vS}, v{vS}, v{vS+1}
        ds_write_b32 v{vMXw}, v{vS} offset:{B_LS}
        """)
        def pv(k, cts=range(8)):
            for ct in cts:
                g(f"{MF} {v(vO+4*ct,4)}, {v(vPf+4*k,4)}, {A(aP+(ct*4+k)*4,4)}, {'0' if k == 0 else v(vO+4*ct,4)}")
        pv(0, range(2))
        if not opt.get("m_early"): stat(1, 0, "m")
        g("s_waitcnt lgkmcnt(0)")
        g("s_barrier")
        g.stamp(6)
        for k in range(1, 4):
            g(f"ds_read_b128 {v(vPf+4*k,4)}, v{[0,20,21,23][k]} offset:{B_PB}")
        for q in range(4):
            g(f"ds_read_b128 {v(vM+4*q,4)}, v{vMXr} offset:{B_LS+q*256}")
        nl = len(late)
        assert all(k == 3 for k, _, _ in late)
        for ct in range(2, 8):
            pv(0, [ct])
            for _ in range(3):
                if late: pvrd(*late.pop(0))
        assert not late
        g(f"s_waitcnt lgkmcnt({min(15, 6 + nl)})")
        adds = [f"v_pk_add_f32 {v(vM,2)}, {v(vM,2)}, {v(vM+2,2)}", f"v_pk_add_f32 {v(vM+4,2)}, {v(vM+4,2)}, {v(vM+6,2)}",
                f"v_pk_add_f32 {v(vM+8,2)}, {v(vM+8,2)}, {v(vM+10,2)}", f"v_pk_add_f32 {v(vM+12,2)}, {v(vM+12,2)}, {v(vM+14,2)}",
                f"v_pk_add_f32 {v(vM,2)}, {v(vM,2)}, {v(vM+4,2)}", f"v_pk_add_f32 {v(vM+8,2)}, {v(vM+8,2)}, {v(vM+12,2)}",
                f"v_pk_add_f32 {v(vM,2)}, {v(vM,2)}, {v(vM+8,2)}", f"v_add_f32 v{vML}, v{vM}, v{vM+1}"]
        pv(1, range(4))
        g("s_waitcnt lgkmcnt(0)")
        for ct in range(4, 8):
            pv(1, [ct])
            g(adds[2 * (ct - 4)]); g(adds[2 * (ct - 4) + 1])
        dbpos = opt.get("d2_pos", 2)
        if dbpos == 2: stat(0, DL - D2, "l")
        vOo = 64
        def cv(k, rs=range(4)):
            for r in rs:
                g(f"v_cvt_pk_bf16_f32 v{vOo+4*r+k}, v{vO+8*k+r}, v{vO+8*k+4+r}")
        def tg(k, rs=range(4)):
            for r in rs:
                g(f"v_and_or_b32 v{vOo+4*r+k}, v{vOo+4*r+k}, s{sMk}, v{vPat}")
        for p in range(4):
            pv(2, [2 * p, 2 * p + 1])
            if p >= 2: cv(p - 2, (0, 1))
            pv(3, [2 * p])
            if p >= 2: cv(p - 2, (2, 3))
            pv(3, [2 * p + 1])
            if p >= 2: tg(p - 2)
            if dbpos == 3 and p == 1: stat(0, DL - D2, "l")
        cv(2); tg(2)
        for r in range(4):
            cv(3, [r]); tg(3, [r])
            g(f"s_add_u32 s{sO}, s{sOo}, {4*r*OSTR}")
            g(f"buffer_store_dwordx4 {v(vOo+4*r,4)}, v{vOa}, {WS}, s{sO} offen sc1")
        if dbpos == 4: stat(0, DL - D2, "l")
        g.stamp(7)
        if w1s:
            assert opt.get("w2_pos", 0) == 1
            g(f"s_mul_i32 s{sC}, s{sU2}, {36*1152}")
            unit_load(g, W2, vP2, B_W2, sC, 1152, "w2", NT, w0extra=False)
            g("s_waitcnt vmcnt(15)")
            w1_gemv()
            g(f"buffer_store_dwordx4 {v(140,4)}, v{vHs}, {WS}, s{sR0} offen sc1")
            g.stamp(9)
            g("s_waitcnt vmcnt(0)")
        vHr = 80
        vEr = 96
        g(f"""
        s_and_b32 s{sTMP}, s{sW}, 1
        s_mul_i32 s{sO}, s{sTMP}, 18432
        s_add_u32 s{sO}, s{sO}, {HH}
        s_add_u32 s{sO2}, s{sO}, {4*36864}
        s_add_u32 s{sO3}, s{sO}, {8*36864}
        s_add_u32 s{sC}, s{sO}, {12*36864}
        s_and_b32 s{sPat}, s{sT}, 15
        s_mov_b32 s{sCNT}, 0
        """)
        for k in range(4): g(f"v_mov_b32 v{vHr+12+k}, s{sPat}")
        def hget():
            g("s_mov_b32 exec_lo, 0x01ff01ff")
            g("s_mov_b32 exec_hi, 0x01ff01ff")
            for u, so in enumerate((sO, sO2, sO3, sC)):
                if u == 3: g("s_mov_b32 exec_hi, 0")
                g(f"buffer_load_dwordx4 {v(vHr+4*u,4)}, v{vHg}, {WS}, s{so} offen sc1")
            g("s_mov_b64 exec, -1")
        g(f"s_cmp_gt_u32 s{sW}, 1")
        g("s_cbranch_scc1 L_B_noh1")
        hget()
        g.lab("L_B_noh1")
        if npre < 4: g("s_barrier")
        if w1s: pass
        elif opt.get("w2_pos", 0) == 1:
            if opt.get("w2_wait"): g("s_waitcnt vmcnt(0)")
            if opt.get("b_sleep2"): g(f"s_sleep {opt['b_sleep2']}")
            g(f"s_mul_i32 s{sR0}, s{sU2}, {36*1152}")
            g(f"s_mov_b32 s{sRho}, s{sO}")
            unit_load(g, W2, vP2, B_W2, sR0, 1152, "w2", NT, thr=opt.get("w2_thr"))
            g(f"s_mov_b32 s{sO}, s{sRho}")
        else:
            g(f"s_mul_i32 s{sTMP}, s{sW}, 9216")
            g(f"v_add_u32 v{t2}, s{sTMP}, v{vL16}")
            g("s_waitcnt vmcnt(4)")
            for i in range(9):
                g(f"ds_write_b128 v{t2}, {v(vW2+4*i,4)} offset:{B_W2+i*1024}")
            g(f"ds_write_b128 v{vPw}, {v(vW2+36,4)} offset:{B_W2+36864}")
            g(f"ds_write_b128 v{vL16}, {v(vW2+40,4)} offset:{B_W2+36864+4096}")
        g(f"s_cmp_gt_u32 s{sW}, 1")
        g("s_cbranch_scc1 L_B_hbar")
        g.lab("L_B_hchk")
        g("s_mov_b32 exec_lo, 0x01ff01ff")
        g("s_mov_b32 exec_hi, 0x01ff01ff")
        g("s_waitcnt vmcnt(0)")
        g.stamp(10)
        vHx = 100
        for k in range(16):
            g(f"v_xor_b32 v{vHx+k}, s{sPat}, v{vHr+k}")
        g(f"v_or3_b32 v{vEr}, v{vHx}, v{vHx+1}, v{vHx+2}")
        for k in range(3, 15, 2):
            g(f"v_or3_b32 v{vEr}, v{vEr}, v{vHx+k}, v{vHx+k+1}")
        g(f"v_or_b32 v{vEr}, v{vEr}, v{vHx+15}")
        g(f"v_and_b32 v{vEr}, 15, v{vEr}")
        g(f"v_cmp_ne_u32 vcc, 0, v{vEr}")
        g("s_cbranch_vccnz L_B_hslow")
        g.lab("L_B_hok")
        c1 = -2.0 * math.log2(math.e) * math.sqrt(2.0 / math.pi)
        g(f"""
        v_pk_add_f32 {v(vHx,2)}, {v(vHx,2)}, {v(vHx+4,2)}
        v_pk_add_f32 {v(vHx+2,2)}, {v(vHx+2,2)}, {v(vHx+6,2)}
        v_pk_add_f32 {v(vHx+8,2)}, {v(vHx+8,2)}, {v(vHx+12,2)}
        v_pk_add_f32 {v(vHx+10,2)}, {v(vHx+10,2)}, {v(vHx+14,2)}
        v_pk_add_f32 {v(vHx,2)}, {v(vHx,2)}, {v(vHx+8,2)}
        v_pk_add_f32 {v(vHx+2,2)}, {v(vHx+2,2)}, {v(vHx+10,2)}
        v_lshlrev_b32 v{vB1}, 16, v{vB1}
        v_mov_b32 v{t1}, {hex(fbits(c1))}
        v_permlane32_swap_b32 v{vHx}, v{vHx+1}
        v_permlane32_swap_b32 v{vHx+2}, v{vHx+3}
        v_add_f32 v{vHx}, v{vHx}, v{vHx+1}
        v_add_f32 v{vHx+2}, v{vHx+2}, v{vHx+3}
        s_mov_b32 s{sC}, {hex(fbits(c1*0.044715))}
        v_permlane16_swap_b32 v{vHx}, v{vHx+2}
        v_add_f32 v{vHx}, v{vHx}, v{vHx+2}
        v_add_f32 v{vHx}, v{vHx}, v{vB1}
        v_mul_f32 v{t0}, v{vHx}, v{vHx}
        v_fma_f32 v{t0}, v{t0}, s{sC}, v{t1}
        v_mul_f32 v{t0}, v{t0}, v{vHx}
        v_exp_f32 v{t0}, v{t0}
        v_add_f32 v{t0}, 1.0, v{t0}
        v_rcp_f32 v{t0}, v{t0}
        v_mul_f32 v{t0}, v{t0}, v{vHx}
        v_cvt_pk_bf16_f32 v{t0}, v{t0}, v{t0}
        ds_write_b16 v{vHw}, v{t0} offset:{B_HL}
        s_mov_b64 exec, -1
        """)
        g.lab("L_B_hbar")
        g("s_waitcnt vmcnt(0) lgkmcnt(0)" if opt.get("w2_pos", 0) == 1 else "s_waitcnt lgkmcnt(0)")
        g("s_barrier")
        g.stamp(11)
        aW = 0
        vHA = 64
        vY = 96
        g(f"ds_read2_b64 {v(vHA,4)}, v{vHe} offset0:0 offset1:4")
        g(f"ds_read2_b64 {v(vHA+6,4)}, v{vHo} offset0:0 offset1:4")
        def w2reads(t):
            for x in range(2):
                b = aW + (t * 2 + x) * 6
                g(f"ds_read_b64_tr_b16 {A(b,2)}, v{vT21 if x else vT20} offset:{t*256}")
                g(f"ds_read_b64_tr_b16 {A(b+2,2)}, v{vT21 if x else vT20} offset:{16*1152+t*256}")
        def w2rk(t):
            for x in range(2):
                b = aW + (t * 2 + x) * 6
                g(f"ds_read_b64_tr_b16 {A(b+4,2)}, v{vK21 if x else vK20} offset:{t*256}")
        def w2mf(t):
            for x in range(2):
                b = aW + (t * 2 + x) * 6
                g(f"{MF} {v(vY+4*t,4)}, {v(vHA+6*x,4)}, {A(b,4)}, {'0' if x == 0 else v(vY+4*t,4)}")
        def w2mf16(t):
            for x in range(2):
                b = aW + (t * 2 + x) * 6
                g(f"{MF16} {v(vY+4*t,4)}, {v(vHA+6*x+4,2)}, {A(b+4,2)}, {v(vY+4*t,4)}")
        w2reads(0); w2reads(1); w2reads(2)
        g("s_waitcnt lgkmcnt(8)")
        w2mf(0)
        w2reads(3)
        g("s_waitcnt lgkmcnt(8)")
        w2mf(1)
        w2reads(4)
        g("s_waitcnt lgkmcnt(8)")
        w2mf(2)
        g(f"ds_read_b64 {v(vHA+4,2)}, v{vHke}")
        g(f"ds_read_b64 {v(vHA+10,2)}, v{vHko}")
        w2rk(0); w2rk(1)
        g("s_waitcnt lgkmcnt(10)")
        w2mf(3)
        w2rk(2); w2rk(3); w2rk(4)
        g("s_waitcnt lgkmcnt(12)")
        w2mf(4)
        for t in range(5):
            g(f"s_waitcnt lgkmcnt({2*(4-t)})")
            w2mf16(t)
        for t in range(4):
            g(f"v_and_or_b32 v{vHA+t}, v{vY+4*t}, -16, s{sPat}")
        g(f"buffer_store_dwordx4 {v(vHA,4)}, v{vH3}, {WS}, s{sH3m} offen sc1")
        g(f"s_cmp_gt_u32 s{sW}, 1")
        g("s_cbranch_scc1 L_B_no5b")
        g(f"v_and_or_b32 v{vY+16}, v{vY+16}, -16, s{sPat}")
        g(f"buffer_store_dword v{vY+16}, v{vH3x}, {WS}, s{sH3l} offen sc1")
        g.lab("L_B_no5b")
        g.stamp(12)
        dump_stamps(g, 16, 216)
        g("s_endpgm")
        if numa:
            g.lab("L_B_refetch")
            if opt.get("dcount"):
                g(f"""
                s_load_dwordx2 s[12:13], s[0:1], 104
                s_mov_b32 s14, 256
                s_mov_b32 s15, 0x00020000
                v_mov_b32 v6, 1
                v_mov_b32 v7, 60
                s_waitcnt lgkmcnt(0)
                s_mov_b64 exec, 1
                buffer_atomic_add v6, v7, s[12:15], 0 offen sc1
                s_mov_b64 exec, -1
                """)
            g(f"s_xor_b32 s{sPhi}, s{sPhi}, 1")
            g("s_waitcnt vmcnt(0)")
            ckv_base()
            ckv_stream(0, 32)
            g("s_branch L_B_phok")
        g.lab("L_B_hslow")
        spin_guard(g, "L_B_hok")
        hget()
        g("s_branch L_B_hchk")
        if qd:
            g.lab("L_B_qagain")
            spin_guard(g, "L_B_qgood")
            qld()
            g("s_branch L_B_qchk")
            return
        g.lab("L_B_qslow")
        spin_guard(g, "L_B_qok")
        g(f"s_mov_b64 s[{sM1}:{sM1+1}], 0")
        for ks in range(16):
            g(f"v_cmp_eq_u32 vcc, s{sPOI}, v{vQ+4*ks}")
            g(f"s_or_b64 s[{sM1}:{sM1+1}], s[{sM1}:{sM1+1}], vcc")
        g("s_cbranch_scc0 L_B_qok")
        g("s_barrier")
        qdma()
        g("s_waitcnt vmcnt(0)")
        g("s_branch L_B_qbar")

if __name__ == "__main__":
    opt = eval("dict(%s)" % (sys.argv[2] if len(sys.argv) > 2 else ""))
    open(sys.argv[1], "w").write(gen(opt))
```

```python
import sys, os, math, struct
sys.path.insert(0, os.path.dirname(os.path.abspath(__file__)))
from hazard import pad

KNAME = "gated_mix__compressed_kv_cla__dense_activation_gelu__decode_kernel"

WS_BYTES = 256 << 20
EPOCH = 0x0
DP = 0x2000
D1 = 0x8000
D3 = 0x10000
DH = 0x18000
DE = 0x1C000
D2 = 0x20000
DL = 0x28000
DE2 = 0x40000
QB = 0x80000
HB = 0xA0000
H0 = 0xC0000
LOC = 0x100000
H3 = 0x200000
USTR = 16384 + 256
HH = 0x340000
OB = 0x480000
OSTR = 16384 + 256
STAMP = 0x1000000
POISON = 0xFFA5FFA5
K0, K1 = 0x9E3779B9, 0x7F4A7C15
SPIN = 1 << 20

A_WUV = 0
A_QL = 32768
A_ZERO = 33280
A_WT = 33536
A_CTXC = 33792
A_RED = 34816
A_WO = 35840
A_W1 = A_WO + 36864
A_QP = A_WO
B_QF = 0
B_PB = 16384
B_MX = 20480
B_HL = 21504
B_ZERO = 21760
B_PHI = 21888
B_LS = 22528
B_CKV = 23552
B_W2 = B_CKV
LDS_BYTES = 154624

def f16sw(i):
    return (((i & 7) ^ ((i >> 3) << 2)) << 1) | (i >> 3)

def fbits(x):
    return struct.unpack("<I", struct.pack("<f", x))[0]

class G:
    def __init__(self, opt):
        self.l = []
        self.opt = opt
        self.nst = 0
        self.inA = False
    def __call__(self, s):
        for x in s.strip("\n").split("\n"):
            x = x.strip()
            if x: self.l.append("    " + x)
    def lab(self, n): self.l.append(n + ":")
    def c(self, s): self.l.append("    ; " + s)
    def stamp(self, i):
        if self.opt.get("stamps") and not (self.opt.get("fst") and 5 <= i <= 12 and self.inA):
            self(f"s_memrealtime s[{70+2*i}:{71+2*i}]")
    def fstamp(self, i):
        if self.opt.get("stamps") and self.opt.get("fst"):
            self(f"s_memrealtime s[{70+2*i}:{71+2*i}]")

def v(a, n=1): return f"v{a}" if n == 1 else f"v[{a}:{a+n-1}]"
def A(a, n=1): return f"a{a}" if n == 1 else f"a[{a}:{a+n-1}]"
def S(a, n=1): return f"s{a}" if n == 1 else f"s[{a}:{a+n-1}]"

sW = 3
WS, X = "s[4:7]", "s[8:11]"
sT = 40
sXCD, sI = 42, 43
sA, sH, sJ = 44, 45, 46
sHG, sB, sMSG, sU2 = 44, 45, 46, 47
sO, sO2, sO3, sCNT = 48, 49, 50, 51
sM1, sM2, sM3, sM4 = 52, 54, 56, 58
sPR = 60
sG0, sG1 = 61, 62
sTMP = 64
sPC = 66
sPOI = 68
sC = 69

def srd(g, base, slot, nbytes):
    g(f"s_load_dwordx2 s[{base}:{base+1}], s[0:1], {slot*8}")
    g(f"s_mov_b32 s{base+2}, {nbytes}")
    g(f"s_mov_b32 s{base+3}, 0x00020000")

def dump_stamps(g, n, tmpv):
    if not g.opt.get("stamps") or g.opt.get("probe") is not None: return
    g("s_waitcnt lgkmcnt(0)")
    g("s_mov_b64 exec, 1")
    g(f"s_lshl_b32 s{sO}, s2, 2")
    g(f"s_add_u32 s{sO}, s{sO}, s{sW}")
    g(f"s_lshl_b32 s{sO}, s{sO}, 6")
    g(f"s_add_u32 s{sO}, s{sO}, {STAMP}")
    g(f"v_mov_b32 v{tmpv+4}, 0")
    for q in range(0, 16, 4):
        for k in range(4):
            g(f"v_mov_b32 v{tmpv+k}, s{70+2*(q+k)}")
        g(f"buffer_store_dwordx4 {v(tmpv,4)}, v{tmpv+4}, {WS}, s{sO} offen offset:{q*4}")
        g("s_nop 1")
    g("s_waitcnt vmcnt(0)")

def dual_next(g, regs):
    if not g.opt.get("dual", 1): return
    g(f"s_and_b32 s{sTMP}, s{sCNT}, 14")
    g(f"s_cmp_eq_u32 s{sTMP}, 14")
    g(f"s_cselect_b32 s{sTMP}, {LOC}, 0")
    for r in regs:
        g(f"s_xor_b32 s{r}, s{r}, s{sTMP}")

def spin_guard(g, out):
    g(f"s_add_u32 s{sCNT}, s{sCNT}, 1")
    g(f"s_cmp_gt_u32 s{sCNT}, {g.opt.get('spin', SPIN)}")
    g(f"s_cbranch_scc1 {out}")

def selectors(g, vSel, vL, t0, t1, t2):
    g(f"v_and_b32 v{t0}, 1, v{vL}")
    g(f"v_cmp_eq_u32 vcc, 1, v{t0}")
    g(f"v_mov_b32 v{t1}, 0x0c0c0100")
    g(f"v_mov_b32 v{t2}, 0x01000c0c")
    g(f"v_cndmask_b32 v{vSel+3}, v{t1}, v{t2}, vcc")
    g(f"v_mov_b32 v{t1}, 0x0c0c0302")
    g(f"v_mov_b32 v{t2}, 0x03020c0c")
    g(f"v_cndmask_b32 v{vSel+7}, v{t1}, v{t2}, vcc")
    g(f"v_bfe_u32 v{t0}, v{vL}, 1, 2")
    g(f"v_mov_b32 v{t1}, 0x0c0c0c0c")
    for d in range(4):
        g(f"v_cmp_eq_u32 vcc, {d}, v{t0}")
        g(f"v_cndmask_b32 v{vSel+d}, v{t1}, v{vSel+3}, vcc")
        g(f"v_cndmask_b32 v{vSel+4+d}, v{t1}, v{vSel+7}, vcc")

def unit_pattern(g, dst, vL, i_expr_sgpr, i_const, pitch, t0, t1):
    if i_expr_sgpr is not None:
        g(f"v_lshl_add_u32 v{t0}, s{i_expr_sgpr}, 6, v{vL}")
    else:
        g(f"v_add_u32 v{t0}, {64*i_const}, v{vL}")
    g(f"v_mul_u32_u24 v{t1}, 911, v{t0}")
    g(f"v_lshrrev_b32 v{t1}, 16, v{t1}")
    g(f"v_and_b32 v{dst}, 6, v{t1}")
    g(f"v_xor_b32 v{dst}, v{dst}, v{t0}")
    g(f"v_lshlrev_b32 v{dst}, 4, v{dst}")
    if pitch != 1152:
        g(f"v_mul_u32_u24 v{t1}, {pitch-1152}, v{t1}")
        g(f"v_add_u32 v{dst}, v{dst}, v{t1}")
assert all((911 * u) >> 16 == u // 72 for u in range(640))

def h3_addr(g, vH3, vH3x, vL, vN, vG, t0):
    g(f"v_lshrrev_b32 v{t0}, 3, v{vL}")
    g(f"v_mul_u32_u24 v{vH3}, {USTR}, v{t0}")
    g(f"v_and_b32 v{t0}, 7, v{vL}")
    g(f"v_lshl_add_u32 v{vH3}, v{t0}, 4, v{vH3}")
    g(f"v_lshrrev_b32 v{t0}, 5, v{vL}")
    g(f"v_mul_u32_u24 v{vH3x}, {USTR}, v{t0}")
    g(f"v_and_b32 v{t0}, 31, v{vL}")
    g(f"v_lshl_add_u32 v{vH3x}, v{t0}, 2, v{vH3x}")

def h3_soffs(g, s_main, s_left):
    g(f"s_lshl_b32 s{s_left}, s{sPR}, 7")
    g(f"s_add_u32 s{s_left}, s{s_left}, {H3}")
    g(f"s_mul_i32 s{s_main}, s{sW}, {8*USTR}")
    g(f"s_add_u32 s{s_main}, s{s_main}, s{s_left}")
    g(f"s_mul_i32 s{sTMP}, s{sW}, {2*USTR}")
    g(f"s_add_u32 s{s_left}, s{s_left}, s{sTMP}")
    g(f"s_add_u32 s{s_left}, s{s_left}, {32*USTR}")

def tr_pair_bases(g, vB0, vB1, vK0, vK1, vL, base, t0, t1, t2):
    g(f"v_lshrrev_b32 v{t0}, 2, v{vL}")
    g(f"v_bfe_u32 v{t1}, v{vL}, 1, 1")
    g(f"v_lshl_add_u32 v{t1}, s{sW}, 2, v{t1}")
    g(f"v_and_b32 v{t2}, 6, v{t0}")
    g(f"v_xor_b32 v{t2}, v{t2}, v{t1}")
    g(f"v_lshlrev_b32 v{t2}, 4, v{t2}")
    g(f"v_mul_u32_u24 v{vB0}, 1152, v{t0}")
    g(f"v_add_u32 v{vB0}, v{vB0}, v{t2}")
    g(f"v_and_b32 v{t2}, 1, v{vL}")
    g(f"v_lshlrev_b32 v{t2}, 3, v{t2}")
    g(f"v_add_u32 v{vB0}, v{vB0}, v{t2}")
    g(f"v_xor_b32 v{vB1}, 32, v{vB0}")
    if base:
        g(f"v_add_u32 v{vB0}, {base}, v{vB0}")
        g(f"v_add_u32 v{vB1}, {base}, v{vB1}")
    if vK0 is not None:
        g(f"v_and_b32 v{t0}, 3, v{t0}")
        g(f"v_and_b32 v{vK0}, 2, v{t0}")
        g(f"v_xor_b32 v{vK0}, v{vK0}, v{t1}")
        g(f"v_lshlrev_b32 v{vK0}, 4, v{vK0}")
        g(f"v_mul_u32_u24 v{t0}, 1152, v{t0}")
        g(f"v_add3_u32 v{vK0}, v{vK0}, v{t0}, v{t2}")
        g(f"v_xor_b32 v{vK1}, 32, v{vK0}")
        g(f"v_add_u32 v{vK0}, {base + 32*1152}, v{vK0}")
        g(f"v_add_u32 v{vK1}, {base + 32*1152}, v{vK1}")

MF = "v_mfma_f32_16x16x32_bf16"
MF16 = "v_mfma_f32_16x16x16_bf16"

def role_is_A(wg, opt):
    if opt.get("split"):
        import numpy as np
        return np.isin(wg & 7, list(opt["split"]))
    return wg < 128

def gen(opt):
    g = G(opt)
    NT = opt.get("nt", "")
    PFL = opt.get("pf_lines", 4)
    CODE_BYTES = 32 * 128 * PFL
    vL, vN, vG = 1, 2, 3
    g.stamp(0)
    if opt.get("clk"): g("s_memtime s[98:99]")
    g(f"s_getpc_b64 s[{sPC}:{sPC+1}]")
    g("s_cmp_ge_u32 s2, 256")
    g("s_cbranch_scc1 L_end")
    g(f"""
    s_load_dwordx2 s[4:5], s[0:1], 112
    s_load_dwordx2 s[8:9], s[0:1], 0
    s_load_dwordx2 s[28:29], s[0:1], 8
    s_load_dwordx2 s[12:13], s[0:1], 16
    s_load_dwordx2 s[16:17], s[0:1], 24
    v_lshrrev_b32 v4, 6, v0
    v_and_b32 v{vL}, 63, v0
    s_and_b32 s{sXCD}, s2, 7
    v_readfirstlane_b32 s{sW}, v4
    s_bfe_u32 s{sI}, s2, 0x40003
    v_and_b32 v{vN}, 15, v0
    v_bfe_u32 v{vG}, v0, 4, 2
    s_mov_b32 s6, {WS_BYTES - opt.get('ws_base', 0)}
    s_mov_b32 s7, 0x00020000
    """)
    if opt.get("resid") is not None:
        g(f"""
        s_load_dwordx2 s[32:33], s[0:1], 104
        s_load_dwordx2 s[20:21], s[0:1], {8*opt["resid"]}
        s_mov_b32 s34, 256
        s_mov_b32 s35, 0x00020000
        s_mov_b32 s22, {4<<20}
        s_mov_b32 s23, 0x00020000
        s_mul_i32 s{sO}, s2, 16128
        v_mov_b32 v7, 0
        s_waitcnt lgkmcnt(0)
        s_cmp_lg_u32 s{sW}, 0
        s_cbranch_scc1 L_nores
        s_mov_b64 exec, 1
        buffer_load_dword v6, v7, s[20:23], s{sO} offen offset:2048
        s_waitcnt vmcnt(0)
        s_memtime s[24:25]
        s_waitcnt lgkmcnt(0)
        buffer_load_dword v6, v7, s[20:23], s{sO} offen
        s_waitcnt vmcnt(0)
        s_memtime s[26:27]
        s_waitcnt lgkmcnt(0)
        s_sub_u32 s26, s26, s24
        s_mul_i32 s26, s26, 468
        s_lshr_b32 s26, s26, 16
        s_min_u32 s26, s26, 15
        s_lshl_b32 s26, s26, 2
        v_mov_b32 v6, 1
        buffer_atomic_add v6, v7, s[32:35], s26 offen sc1
        s_waitcnt vmcnt(0)
        s_mov_b64 exec, -1
        """)
        g.lab("L_nores")
        g("s_barrier")
    if opt.get("xprobe") is not None:
        g(f"""
        s_load_dwordx2 s[32:33], s[0:1], 104
        s_mov_b32 s34, 256
        s_mov_b32 s35, 0x00020000
        s_waitcnt lgkmcnt(0)
        v_mov_b32 v6, s70
        s_lshl_b32 s{sO}, s{sXCD}, 2
        v_mov_b32 v7, s{sO}
        s_mov_b64 exec, 1
        buffer_atomic_umax v6, v7, s[32:35], 0 offen sc1
        s_mov_b64 exec, -1
        """)
    if opt.get("split"):
        aset = list(opt["split"]); bset = [x for x in range(8) if x not in aset]
        tab = 0
        for x in range(8):
            tab |= ((aset.index(x)) if x in aset else (8 | bset.index(x))) << (4 * x)
        g(f"""
        s_lshl_b32 s{sXCD}, s{sXCD}, 2
        s_lshr_b32 s{sO}, {hex(tab)}, s{sXCD}
        s_and_b32 s{sXCD}, s{sO}, 3
        s_lshr_b32 s{sO2}, s2, 7
        s_lshl_b32 s{sO2}, s{sO2}, 2
        s_add_u32 s{sXCD}, s{sXCD}, s{sO2}
        s_bitcmp1_b32 s{sO}, 3
        s_cbranch_scc1 L_B
        """)
    else:
        g("s_cmp_ge_u32 s2, 128")
        g("s_cbranch_scc1 L_B")
    a = RoleA(g, NT, vL, vN, vG)
    b = RoleB(g, NT, vL, vN, vG)
    def prefetch(nw, idx_sgpr_expr, tag):
        if opt.get("s_pf"): return
        g(idx_sgpr_expr)
        g(f"s_mul_i32 s{sTMP}, s{sTMP}, {nw*128}")
        g(f"v_lshl_add_u32 v5, v{vL}, 7, s{sTMP}")
        g(f"s_cmp_lg_u32 s{sW}, 3")
        g(f"s_cbranch_scc1 L_nopf{tag}")
        g(f"s_mov_b64 exec, {(1 << nw) - 1}")
        g(f"global_load_dword v{63 if tag == 'B' else 254}, v5, s[{sPC}:{sPC+1}]")
        g("s_mov_b64 exec, -1")
        g.lab(f"L_nopf{tag}")
    if opt.get("split") and opt.get("a_pf_first", 1): prefetch(PFL, f"s_lshr_b32 s{sTMP}, s2, 3", "A")
    a.issue()
    if opt.get("split") and not opt.get("a_pf_first", 1): prefetch(PFL, f"s_lshr_b32 s{sTMP}, s2, 3", "A")
    g("s_branch L_A_rest")
    g.lab("L_B")
    if opt.get("tlb"):
        maxp = [0, 3, 2, 1, 1, 2, 0, 2, 0, 2, 0, 0, 0, 0, 3, 3]
        tab = sum(m << (2 * k) for k, m in enumerate(maxp))
        g(f"""
        s_min_u32 s{sTMP}, s{sI}, 14
        s_lshl_b32 s{sTMP}, s{sTMP}, 3
        s_load_dwordx2 s[90:91], s[0:1], s{sTMP}
        s_lshl_b32 s{sTMP}, s{sI}, 1
        s_lshr_b32 s{sTMP}, {hex(tab)}, s{sTMP}
        s_and_b32 s{sTMP}, s{sTMP}, 3
        s_min_u32 s{sTMP}, s{sTMP}, s{sW}
        s_lshl_b32 s{sTMP}, s{sTMP}, 21
        s_waitcnt lgkmcnt(0)
        s_load_dword s89, s[90:91], s{sTMP}
        """)
        code_touch(g)
    if opt.get("p1a_on") == "B" or opt.get("numa"): pass
    elif opt.get("split"): prefetch(PFL, f"s_lshr_b32 s{sTMP}, s2, 3", "B")
    else: prefetch(2 * PFL, f"s_mov_b32 s{sTMP}, s{sI}", "B")
    b.issue()
    if opt.get("p1a_on") == "B": prefetch(PFL, f"s_lshr_b32 s{sTMP}, s2, 3", "B")
    main = g.l
    g.l = []
    b.rest()
    k = g.l.index(";;SPLIT")
    bhead, btail = g.l[:k], g.l[k+1:]
    g.l = main
    g.lab("L_B_head")
    if opt.get("b_head", 1):
        g.l += bhead
    g("s_branch L_B_rest")
    g.lab("L_A_rest")
    g.inA = True
    a.rest()
    g.inA = False
    g.lab("L_B_rest")
    if not opt.get("b_head", 1):
        g.l += bhead
    g.l += btail
    g.lab("L_end")
    lines, added = pad(g.l)
    body = "\n".join(lines)
    hdr = open(os.path.join(os.path.dirname(os.path.abspath(__file__)), "header.txt")).read()
    return f"""{hdr}; @launch grid=(256,1,1) block=(256,1,1) lds={LDS_BYTES}
.amdgcn_target "amdgcn-amd-amdhsa--gfx950"
.text
.globl {KNAME}
.p2align 8
.type {KNAME},@function
{KNAME}:
{body}
    s_endpgm
L_code_end:
.fill ({CODE_BYTES} + 256 - (L_code_end - {KNAME})) / 4, 4, 0xbf800000
.section .rodata,"a"
.p2align 6
.amdhsa_kernel {KNAME}
  .amdhsa_next_free_vgpr 512
  .amdhsa_next_free_sgpr 102
  .amdhsa_accum_offset 256
  .amdhsa_group_segment_fixed_size 0
  .amdhsa_kernarg_size 120
  .amdhsa_user_sgpr_count 2
  .amdhsa_user_sgpr_kernarg_segment_ptr 1
  .amdhsa_system_sgpr_workgroup_id_x 1
.end_amdhsa_kernel
"""

def srd_tail(g, base, nbytes):
    g(f"s_mov_b32 s{base+2}, {nbytes}")
    g(f"s_mov_b32 s{base+3}, 0x00020000")

def code_touch(g):
    if not g.opt.get("s_pf"): return
    g(f"s_lshr_b32 s92, s2, 3")
    g(f"s_lshl_b32 s92, s92, 2")
    g(f"s_add_u32 s92, s92, s{sW}")
    g(f"s_mul_i32 s92, s92, {g.opt.get('pf_lines', 4) * 32}")
    g(f"s_and_b32 s92, s92, -4")
    g(f"s_load_dword s93, s[{sPC}:{sPC+1}], s92")
    g(f"s_add_u32 s92, s92, 96")
    g(f"s_load_dword s94, s[{sPC}:{sPC+1}], s92")

def load_tag(g):
    wb = g.opt.get("ws_base", 0)
    if wb:
        g(f"s_add_u32 s4, s4, {wb}")
        g("s_addc_u32 s5, s5, 0")
    g(f"s_load_dwordx2 s[{sT}:{sT+1}], s[4:5], {EPOCH}")

def finish_tag(g):
    g("s_waitcnt lgkmcnt(0)")
    g(f"s_add_u32 s{sT}, s{sT}, {K0}")
    g(f"s_add_u32 s{sT+1}, s{sT+1}, {K1}")

def bell(g, vdata, vzero, s_index, base, wave, tag):
    g(f"s_cmp_lg_u32 s{sW}, {wave}")
    g(f"s_cbranch_scc1 L_nobell_{tag}")
    g(f"s_lshl_b32 s{sTMP}, s{s_index}, 7")
    g(f"s_add_u32 s{sTMP}, s{sTMP}, {base}")
    g("s_mov_b64 exec, 1")
    g(f"buffer_store_dwordx2 {v(vdata,2)}, v{vzero}, {WS}, s{sTMP} offen sc1")
    g("s_mov_b64 exec, -1")
    g.lab(f"L_nobell_{tag}")

def unit_load(g, SRD, vP, ldsbase, s_unit_base, pitch, tag, NT, rows36=True, vdst=None, thr=None, w0extra=True, first=0):
    if tag[:2] in g.opt.get("skip", ""): return
    g(f"s_mul_i32 s{sO}, s{sW}, {8*pitch}")
    g(f"s_add_u32 s{sO}, s{sO}, s{s_unit_base}")
    if vdst is None: g(f"s_mul_i32 s{sTMP}, s{sW}, 9216")
    for i in range(first, 9):
        if thr: g(f"s_waitcnt vmcnt({thr-1})")
        if vdst is None:
            g(f"s_add_u32 m0, s{sTMP}, {ldsbase + i*1024}")
            g(f"buffer_load_dwordx4 v{vP+i}, {SRD}, s{sO} offen {NT} lds")
        else:
            g(f"buffer_load_dwordx4 {v(vdst+4*i,4)}, v{vP+i}, {SRD}, s{sO} offen {NT}")
    if not rows36: return
    g(f"s_add_u32 s{sO}, s{s_unit_base}, {32*pitch}")
    if vdst is None:
        g(f"s_lshl_b32 s{sTMP}, s{sW}, 10")
        g(f"s_add_u32 m0, s{sTMP}, {ldsbase + 36864}")
        g(f"buffer_load_dwordx4 v{vP+9}, {SRD}, s{sO} offen {NT} lds")
    else:
        g(f"buffer_load_dwordx4 {v(vdst+36,4)}, v{vP+9}, {SRD}, s{sO} offen {NT}")
    if w0extra:
        g(f"s_cmp_lg_u32 s{sW}, 0")
        g(f"s_cbranch_scc1 L_not{tag}")
    g("s_mov_b32 exec_hi, 0")
    if vdst is None:
        g(f"s_mov_b32 m0, {ldsbase + 36864 + 4096}")
        g(f"buffer_load_dwordx4 v{vP+4}, {SRD}, s{sO} offen {NT} lds")
    else:
        g(f"buffer_load_dwordx4 {v(vdst+40,4)}, v{vP+4}, {SRD}, s{sO} offen {NT}")
    g("s_mov_b64 exec, -1")
    if w0extra: g.lab(f"L_not{tag}")

class RoleA:
    def __init__(self, g, NT, vL, vN, vG):
        self.g, self.NT, self.vL, self.vN, self.vG = g, NT, vL, vN, vG
    vX = 20
    vA_wq, vA_uk = 108, 109
    aWQ, aUK = 0, 36

    def issue(self):
        g, NT, vL, vN, vG = self.g, self.NT, self.vL, self.vN, self.vG
        WQ, WUK = "s[12:15]", "s[16:19]"
        t0, t1 = 4, 5
        vX, vA_wq, vA_uk, aWQ, aUK = self.vX, self.vA_wq, self.vA_uk, self.aWQ, self.aUK
        if g.opt.get("p1a_on") == "B":
            srd_tail(g, 16, 512 * 8192)
            g(f"""
            s_lshr_b32 s{sH}, s{sI}, 2
            s_lshl_b32 s{sH}, s{sH}, 3
            s_add_u32 s{sH}, s{sH}, s{sXCD}
            s_and_b32 s{sJ}, s{sI}, 3
            s_lshl_b32 s{sC}, s{sH}, 8
            v_bfe_u32 v{t0}, v{vL}, 2, 2
            v_lshlrev_b32 v{vA_uk}, 16, v{t0}
            v_lshl_add_u32 v{vA_uk}, v{vG}, 6, v{vA_uk}
            v_and_b32 v{t1}, 3, v{vL}
            v_lshl_add_u32 v{vA_uk}, v{t1}, 4, v{vA_uk}
            s_lshl_b32 s{sO2}, s{sJ}, 2
            s_add_u32 s{sO2}, s{sO2}, s{sW}
            s_lshl_b32 s{sO2}, s{sO2}, 18
            s_add_u32 s{sO2}, s{sO2}, s{sC}
            s_waitcnt lgkmcnt(0)
            """)
            g.fstamp(5)
            self.uk(range(8))
            load_tag(g)
            srd_tail(g, 8, 2304)
            return
        srd_tail(g, 12, 576 * 8192)
        srd_tail(g, 8, 2304)
        g(f"""
        s_lshr_b32 s{sH}, s{sI}, 2
        s_lshl_b32 s{sH}, s{sH}, 3
        s_add_u32 s{sH}, s{sH}, s{sXCD}
        s_and_b32 s{sJ}, s{sI}, 3
        v_mul_u32_u24 v{vA_wq}, {36*8192}, v{vG}
        v_lshl_add_u32 v{vA_wq}, v{vN}, 4, v{vA_wq}
        s_lshl_b32 s{sO2}, s{sJ}, 4
        s_add_u32 s{sO2}, s{sO2}, s{sW}
        s_mul_i32 s{sO2}, s{sO2}, 9
        s_lshl_b32 s{sO3}, s{sO2}, 13
        s_lshl_b32 s{sC}, s{sH}, 8
        s_add_u32 s{sO3}, s{sO3}, s{sC}
        v_bfe_u32 v{t0}, v{vL}, 3, 1
        v_mul_u32_u24 v{t0}, 1152, v{t0}
        v_mad_u32_u24 v{t0}, v{vG}, 64, v{t0}
        v_lshl_add_u32 v{t0}, v{vG}, 3, v{t0}
        s_lshr_b32 s{sO2}, s{sO2}, 1
        s_lshl_b32 s{sO2}, s{sO2}, 2
        s_waitcnt lgkmcnt(0)
        """)
        g.fstamp(5)
        code_touch(g)
        g(f"""
        buffer_load_dwordx4 {v(vX,4)}, v{t0}, {X}, s{sO2} offen
        buffer_load_dword v{vX+4}, v{t0}, {X}, s{sO2} offen offset:16
        """)
        for i in range(9):
            g(f"buffer_load_dwordx4 {A(aWQ+4*i,4)}, v{vA_wq}, {WQ}, s{sO3} offen {g.opt.get('nt_q', NT)}")
            if i != 8: g(f"s_addk_i32 s{sO3}, 0x2000")
        load_tag(g)
        srd_tail(g, 16, 512 * 8192)
        g(f"""
        v_bfe_u32 v{t0}, v{vL}, 2, 2
        v_lshlrev_b32 v{vA_uk}, 16, v{t0}
        v_lshl_add_u32 v{vA_uk}, v{vG}, 6, v{vA_uk}
        v_and_b32 v{t1}, 3, v{vL}
        v_lshl_add_u32 v{vA_uk}, v{t1}, 4, v{vA_uk}
        s_lshl_b32 s{sO2}, s{sJ}, 2
        s_add_u32 s{sO2}, s{sO2}, s{sW}
        s_lshl_b32 s{sO2}, s{sO2}, 18
        s_add_u32 s{sO2}, s{sO2}, s{sC}
        """)
        self.uk_split = g.opt.get("uk_early", 2)
        self.uk(range(self.uk_split))

    def uk(self, rows):
        g = self.g
        for r in rows:
            u = 2 * (r & 3) + (r >> 2)
            g(f"buffer_load_dwordx4 {A(self.aUK+4*u,4)}, v{self.vA_uk}, s[16:19], s{sO2} offen {g.opt.get('nt_q', self.NT)}")
            g(f"s_addk_i32 s{sO2}, 0x2000")

    def rest(self):
        g, NT, vL, vN, vG = self.g, self.NT, self.vL, self.vN, self.vG
        opt = g.opt
        WUV, WO, W1, B2, GATE, OUT = "s[20:23]", "s[24:27]", "s[12:15]", "s[28:31]", "s[32:35]", "s[36:39]"
        t0, t1, t2, t3 = 4, 5, 6, 7
        vPOI = 8
        vSel = 12
        vX = self.vX
        vF = 160
        vQ = 200
        vR = 56
        vQlo, vQhi = 80, 84
        vAcc = 88
        vGr = 104
        vA_h1, vA_l16 = 110, 47
        vA_qlo, vA_qhi = 112, 113
        vTag = 114
        vQw = 46
        aWQ, aUK = self.aWQ, self.aUK
        sQ = 63
        g.stamp(1)
        selectors(g, vSel, vL, t0, t1, t2)
        g(f"""
        s_lshl_b32 s{sA}, s{sH}, 2
        s_add_u32 s{sA}, s{sA}, s{sJ}
        s_and_b32 s{sO}, s{sW}, 1
        s_lshl_b32 s{sO}, s{sO}, 4
        v_lshlrev_b32 v{vA_l16}, 4, v{vL}
        s_cmp_lg_u32 s{sW}, {0 if opt.get("p1a_on") == "B" else 1}
        s_cbranch_scc1 L_A_e2
        """)
        pB = opt.get("p1a_on") == "B"
        for k in range(4): g(f"v_mov_b32 v{vPOI+k}, {hex(POISON)}")
        g(f"""
        v_lshlrev_b32 v{t0}, 15, v{vG}
        v_lshl_add_u32 v{t0}, v{vN}, 4, v{t0}
        s_lshl_b32 s{sTMP}, s{sA}, 8
        s_add_u32 s{sTMP}, s{sTMP}, {QB}
        s_mov_b32 exec_hi, 0
        buffer_store_dwordx4 {v(vPOI,4)}, v{t0}, {WS}, s{sTMP} offen sc1
        s_mov_b64 exec, -1
        """)
        g.lab("L_A_e2")
        if opt.get("split") and opt.get("s_touch"):
            g(f"""
            s_lshl_b32 s{sTMP}, s{sA}, 2
            s_add_u32 s{sTMP}, s{sTMP}, s{sW}
            s_lshl_b32 s{sCNT}, s{sTMP}, 8
            s_lshl_b32 s{sTMP}, s{sTMP}, 9
            s_add_u32 s{sTMP}, s{sTMP}, {H0+LOC}
            s_add_u32 s20, s4, s{sTMP}
            s_addc_u32 s21, s5, 0
            s_add_u32 s{sCNT}, s{sCNT}, {HB+LOC}
            s_add_u32 s22, s4, s{sCNT}
            s_addc_u32 s23, s5, 0
            s_load_dword s24, s[20:21], 0
            s_load_dword s25, s[20:21], 128
            s_load_dword s26, s[20:21], 256
            s_load_dword s27, s[20:21], 384
            s_load_dword s28, s[22:23], 0
            s_load_dword s29, s[22:23], 128
            """)
        elif opt.get("split"):
            g(f"""
            s_cmp_lt_u32 s{sW}, {3 if pB else 2}
            s_cbranch_scc1 L_A_e3
            s_lshl_b32 s{sTMP}, s{sA}, 11
            s_add_u32 s{sTMP}, s{sTMP}, {H0+LOC}
            s_lshl_b32 s{sTMP+1}, s{sA}, 10
            s_add_u32 s{sTMP+1}, s{sTMP+1}, {HB+LOC}
            s_cmp_eq_u32 s{sW}, 2
            s_cselect_b32 s{sTMP}, s{sTMP}, s{sTMP+1}
            v_lshlrev_b32 v{t0}, 7, v{vL}
            s_mov_b64 exec, 0xffff
            buffer_load_dword v255, v{t0}, {WS}, s{sTMP} offen
            s_mov_b64 exec, -1
            """)
            g.lab("L_A_e3")
        if pB:
            finish_tag(g)
            sPk = 54
            g(f"""
            s_lshl_b32 s{sO}, s{sH}, 12
            s_add_u32 s{sO}, s{sO}, {H0}
            s_add_u32 s{sC}, s4, s{sO}
            s_addc_u32 s{sO3}, s5, 0
            """)
            def h0_wt(): pass
        else:
            g.fstamp(6)
            g(f"s_waitcnt vmcnt({9+self.uk_split})")
            g.fstamp(7)
            for k in range(5):
                g(f"v_alignbit_b32 v{vX+k}, v{vX+k+1}, v{vX+k}, s{sO}")
            for i in range(9):
                for d in range(4):
                    g(f"v_perm_b32 v{vF+4*i+d}, v{vX+(i>>1)}, v{vX+(i>>1)}, v{vSel+4*(i&1)+d}")
            g.fstamp(8)
            ukp = opt.get("uk_pos", 0)
            for i in range(9):
                if i == ukp: self.uk(range(self.uk_split, 8))
                g(f"s_waitcnt vmcnt({8-i+(8 if i >= ukp else self.uk_split)})")
                g(f"{MF} {v(vQ+2,4)}, {v(vF+4*i,4)}, {A(aWQ+4*i,4)}, {'0' if i == 0 else v(vQ+2,4)}")
            if ukp == 9: self.uk(range(self.uk_split, 8))
            g.fstamp(10)
            g(f"s_cmp_eq_u32 s{sW}, 0")
            g("s_cbranch_scc1 L_A_w0a")
            g(f"v_lshl_add_u32 v{t0}, s{sW}, 10, v{vA_l16}")
            g(f"ds_write_b128 v{t0}, {v(vQ+2,4)} offset:{A_QP-1024}")
            g(f"s_cmp_lg_u32 s{sW}, 1")
            g("s_cbranch_scc1 L_A_nw1")
            g(f"s_waitcnt vmcnt({8-self.uk_split})")
            g.lab("L_A_nw1")
            g("s_waitcnt lgkmcnt(0)")
            g("s_barrier")
            g(f"s_add_u32 s{sT}, s{sT}, {K0}")
            g(f"s_add_u32 s{sT+1}, s{sT+1}, {K1}")
            g("s_branch L_A_setup")
            g.lab("L_A_w0a")
            finish_tag(g)
            sib = [0, sO, sO3, sC]
            for k in range(1, 4):
                g(f"s_xor_b32 s{sTMP}, s{sA}, {k}")
                g(f"s_lshl_b32 s{sTMP}, s{sTMP}, 11")
                g(f"s_add_u32 s{sib[k]}, s{sTMP}, {H0+LOC}")
            g(f"""
            v_mov_b32 v{vQ}, s{sT}
            v_mov_b32 v{vQ+1}, s{sT+1}
            v_mov_b32 v{vQ+6}, s{sT}
            v_mov_b32 v{vQ+7}, s{sT+1}
            s_lshl_b32 s{sTMP+1}, s{sA}, 11
            s_add_u32 s{sTMP+1}, s{sTMP+1}, {H0+LOC}
            s_barrier
            """)
            for k in range(3):
                g(f"ds_read_b128 {v(vR+4*k,4)}, v{vA_l16} offset:{A_QP+k*1024}")
            g("s_waitcnt lgkmcnt(1)")
            g(f"v_pk_add_f32 {v(vQ+2,2)}, {v(vQ+2,2)}, {v(vR,2)}")
            g(f"v_pk_add_f32 {v(vQ+4,2)}, {v(vQ+4,2)}, {v(vR+2,2)}")
            g("s_waitcnt lgkmcnt(0)")
            g(f"v_pk_add_f32 {v(vR+4,2)}, {v(vR+4,2)}, {v(vR+8,2)}")
            g(f"v_pk_add_f32 {v(vR+6,2)}, {v(vR+6,2)}, {v(vR+10,2)}")
            g(f"v_pk_add_f32 {v(vQ+2,2)}, {v(vQ+2,2)}, {v(vR+4,2)}")
            g(f"v_pk_add_f32 {v(vQ+4,2)}, {v(vQ+4,2)}, {v(vR+6,2)}")
            g(f"buffer_store_dwordx4 {v(vQ,4)}, v{vA_l16}, {WS}, s{sTMP+1} offen")
            g(f"buffer_store_dwordx4 {v(vQ+4,4)}, v{vA_l16}, {WS}, s{sTMP+1} offen offset:1024")
            def h0_wt():
                g(f"s_lshl_b32 s{sTMP+1}, s{sA}, 11")
                g(f"s_add_u32 s{sTMP+1}, s{sTMP+1}, {H0}")
                g(f"buffer_store_dwordx4 {v(vQ,4)}, v{vA_l16}, {WS}, s{sTMP+1} offen sc1")
                g(f"buffer_store_dwordx4 {v(vQ+4,4)}, v{vA_l16}, {WS}, s{sTMP+1} offen offset:1024 sc1")
            g.stamp(2)
        g.lab("L_A_setup")
        srd(g, 20, 4, 512 * 8192)
        srd(g, 24, 5, 4096 * 1152)
        srd(g, 32, 11, 1152)
        srd(g, 36, 12, 2304)
        srd(g, 12, 7, 576 * 9216)
        vBell = 111
        g(f"""
        v_bfe_u32 v{t0}, v{vL}, 2, 2
        v_lshlrev_b32 v{vA_h1}, 15, v{vG}
        v_lshl_add_u32 v{vA_h1}, v{t0}, 4, v{vA_h1}
        s_lshl_b32 s{sQ}, s{sA}, 2
        s_add_u32 s{sQ}, s{sQ}, s{sW}
        s_lshl_b32 s{sQ}, s{sQ}, 6
        s_add_u32 s{sQ}, s{sQ}, {QB}
        v_bfe_u32 v{t0}, v{vL}, 2, 1
        v_lshlrev_b32 v{t0}, 8, v{t0}
        v_lshl_add_u32 v{t0}, v{vG}, 6, v{t0}
        v_and_b32 v{t1}, 3, v{vL}
        v_lshl_add_u32 v{t0}, v{t1}, 4, v{t0}
        v_add_u32 v{t0}, {A_QL}, v{t0}
        v_mov_b32 v{t1}, {A_ZERO}
        v_cmp_gt_u32 vcc, 8, v{vN}
        v_cndmask_b32 v{vA_qlo}, v{t1}, v{t0}, vcc
        v_cndmask_b32 v{vA_qhi}, v{t0}, v{t1}, vcc
        v_and_b32 v{t0}, 1, v{vL}
        v_cmp_eq_u32 s[{sM1}:{sM1+1}], 1, v{t0}
        v_and_b32 v{t0}, 2, v{vL}
        v_cmp_eq_u32 s[{sM2}:{sM2+1}], 2, v{t0}
        v_mov_b32 v{vTag}, s{sT}
        v_mov_b32 v{vTag+1}, s{sT+1}
        v_lshlrev_b32 v{vBell}, 12, v{vL}
        s_lshl_b32 s{sO2}, s{sH}, 5
        s_add_u32 s{sO2}, s{sO2}, s{sJ}
        s_lshl_b32 s{sO2}, s{sO2}, 2
        s_add_u32 s{sO2}, s{sO2}, {D1}
        """)
        if opt.get("q_direct", 0):
            g(f"""
            s_cmp_lg_u32 s{sW}, 2
            s_cbranch_scc1 L_A_nordy
            s_mov_b64 exec, 0xff
            buffer_store_dword v{vTag}, v{vBell}, {WS}, s{sO2} offen sc1
            s_mov_b64 exec, -1
            """)
            g.lab("L_A_nordy")
            g(f"""
            v_bfe_u32 v{t0}, v{vL}, 2, 2
            v_lshlrev_b32 v{vA_h1}, 8, v{vG}
            v_lshl_add_u32 v{vA_h1}, v{t0}, 4, v{vA_h1}
            v_lshl_add_u32 v{vA_h1}, s{sW}, 6, v{vA_h1}
            v_lshlrev_b32 v{vBell}, 15, v{vG}
            v_lshl_add_u32 v{vBell}, v{vN}, 4, v{vBell}
            s_lshl_b32 s{sQ}, s{sA}, 8
            s_add_u32 s{sQ}, s{sQ}, {QB}
            """)
        g(f"""
        v_mov_b32 v{t2}, 0
        v_mov_b32 v{t3}, 0
        ds_write_b64 v{t1}, {v(t2,2)}
        ds_write_b64 v{t1}, {v(t2,2)} offset:8
        v_lshrrev_b32 v{vQw}, 1, v{vG}
        v_lshlrev_b32 v{vQw}, 8, v{vQw}
        v_lshl_add_u32 v{vQw}, v{vN}, 4, v{vQw}
        v_and_b32 v{t1}, 1, v{vG}
        v_lshl_add_u32 v{vQw}, v{t1}, 3, v{vQw}
        """)
        def h0loads():
            if pB:
                for k in range(4):
                    g(f"buffer_load_dwordx4 {v(vR+4*k,4)}, v{vA_l16}, {WS}, s{sO} offen offset:{k*1024} sc1")
                return
            for k in range(1, 4):
                g(f"buffer_load_dwordx4 {v(vR+8*(k-1),4)}, v{vA_l16}, {WS}, s{sib[k]} offen sc1")
                g(f"buffer_load_dwordx4 {v(vR+8*(k-1)+4,4)}, v{vA_l16}, {WS}, s{sib[k]} offen offset:1024 sc1")
        sRho, sBlk, sR0 = 60, 43, 62
        vXr, vS1, vXA, vW1a, vHs, vXa = 116, 140, 152, 144, 145, 146
        aW1 = 80
        if opt.get('w1_on', 'A') == 'A':
            g(f"""
            s_lshl_b32 s{sBlk}, s{sA}, 2
            s_add_u32 s{sBlk}, s{sBlk}, s{sW}
            s_mul_i32 s{sRho}, s{sBlk}, 1821
            s_lshr_b32 s{sRho}, s{sRho}, 16
            s_mul_i32 s{sTMP}, s{sRho}, 36
            s_sub_u32 s{sBlk}, s{sBlk}, s{sTMP}
            s_min_u32 s{sTMP}, s{sRho}, 4
            s_mul_i32 s{sR0}, s{sRho}, 10
            s_add_u32 s{sR0}, s{sR0}, s{sTMP}
            s_lshl_b32 s{sR0}, s{sR0}, 2
            v_bfe_u32 v{t0}, v{vL}, 3, 1
            v_mul_u32_u24 v{vXa}, 1152, v{t0}
            v_mul_u32_u24 v{vW1a}, 9216, v{vG}
            v_lshl_add_u32 v{vW1a}, v{vN}, 4, v{vW1a}
            """)
            assert all((i * 1821) >> 16 == i // 36 for i in range(512))
            g(f"s_lshl_b32 s{sTMP}, s{sR0}, 1")
            for k in range(5):
                g(f"buffer_load_dwordx4 {v(vXr+4*k,4)}, v{vXa}, {X}, s{sTMP} offen offset:{16*k}")
            g(f"buffer_load_dwordx2 {v(vXr+20,2)}, v{vXa}, {X}, s{sTMP} offen offset:80")
        pk = opt.get("h0_peek", 0)
        h0at = opt.get("h0_at")
        if not pB and not pk and h0at is None:
            g(f"s_cmp_lg_u32 s{sW}, 0")
            g("s_cbranch_scc1 L_A_s2")
            h0loads()
            g.lab("L_A_s2")
        vUV0, vUV1 = 20, 21
        vP2 = 22
        g(f"""
        v_lshlrev_b32 v{t0}, 1, v{vG}
        v_xor_b32 v{t0}, v{t0}, v{vN}
        v_lshlrev_b32 v{vUV0}, 17, v{vG}
        v_lshl_add_u32 v{vUV0}, v{t0}, 4, v{vUV0}
        v_xor_b32 v{vUV1}, 128, v{vUV0}
        """)
        uve = opt.get("uv_early", 0)
        nuv = 8 if "uv" not in opt.get("skip", "") else 0
        uvn = opt.get("uv_n", 0)
        def uv_stream(z0=0, z1=8):
            sa, sb = 47, 61
            g(f"""
            s_lshl_b32 s{sa}, s{sJ}, 5
            s_add_u32 s{sa}, s{sa}, s{sW}
            s_lshl_b32 s{sa}, s{sa}, 15
            s_lshl_b32 s{sb}, s{sH}, 8
            s_add_u32 s{sa}, s{sa}, s{sb}
            s_lshl_b32 s{sb}, s{sW}, 13
            """)
            for z in range(z0, min(z1, nuv)):
                hi, gg = z >> 2, z & 3
                if opt.get("uv_thr") and not uve and z >= uvn: g(f"s_waitcnt vmcnt({opt['uv_thr']-1})")
                g(f"s_add_u32 m0, s{sb}, {A_WUV + z*1024}")
                g(f"s_add_u32 s{sTMP}, s{sa}, {(64*hi+gg)*8192}")
                g(f"buffer_load_dwordx4 v{vUV1 if z & 1 else vUV0}, {WUV}, s{sTMP} offen {NT} lds")
        if uve == 1:
            g("s_waitcnt lgkmcnt(0)")
            uv_stream()
        for i in range(9):
            unit_pattern(g, vP2 + i, vL, None, i, 1152, t0, t1)
        if opt.get('w1_on', 'A') == 'A':
            g(f"""
            v_lshrrev_b32 v{t0}, 5, v{vL}
            v_mul_u32_u24 v{vHs}, 18432, v{t0}
            v_and_b32 v{t0}, 31, v{vL}
            v_lshl_add_u32 v{vHs}, v{t0}, 4, v{vHs}
            v_mul_u32_u24 v{t0}, 0x0202, v{vG}
            v_add_u32 v{t0}, 0x0100, v{t0}
            v_and_b32 v{t1}, 1, v{vL}
            v_lshlrev_b32 v{t1}, 4, v{t1}
            v_lshlrev_b32 v{t0}, v{t1}, v{t0}
            v_mov_b32 v{t2}, 0x0c0c0000
            v_lshrrev_b32 v{t2}, v{t1}, v{t2}
            v_or_b32 v{t0}, v{t0}, v{t2}
            v_bfe_u32 v{t1}, v{vL}, 1, 2
            v_mov_b32 v{t2}, 0x0c0c0c0c
            """)
            for d in range(4):
                g(f"v_cmp_eq_u32 vcc, {d}, v{t1}")
                g(f"v_cndmask_b32 v{vS1+d}, v{t2}, v{t0}, vcc")
        if uve == 2:
            g("s_waitcnt lgkmcnt(0)")
            uv_stream()
        g(f"s_mov_b32 s{sCNT}, 0")
        g(f"s_cmp_lg_u32 s{sW}, 0")
        g("s_cbranch_scc1 L_A_h0wait")
        if pB:
            g(f"""
            s_mov_b32 s{sTMP}, s{sC}
            s_mov_b32 s{sTMP+1}, s{sO3}
            s_and_b32 s{sC}, s{sT}, 15
            """)
            g.lab("L_A_peek")
            for k in range(4):
                g(f"s_load_dword s{16+k}, s[{sTMP}:{sTMP+1}], {k*1024+opt.get('peek_off', 1020)} glc")
            spin_guard(g, "L_A_peek2")
            g("s_waitcnt lgkmcnt(0)")
            for k in range(4):
                g(f"s_xor_b32 s{16+k}, s{16+k}, s{sC}")
            g("s_or_b64 s[16:17], s[16:17], s[18:19]")
            g("s_or_b32 s16, s16, s17")
            g("s_and_b32 s16, s16, 15")
            g("s_cbranch_scc1 L_A_peek")
            g.lab("L_A_peek2")
            g.stamp(2)
            g.lab("L_A_h0get")
            h0loads()
            g("s_waitcnt vmcnt(0)")
        elif pk:
            assert not uve
            g(f"""
            s_lshl_b32 s{sTMP}, s{sH}, 13
            s_add_u32 s{sTMP}, s{sTMP}, {H0+LOC}
            s_add_u32 s{sTMP}, s4, s{sTMP}
            s_addc_u32 s{sTMP+1}, s5, 0
            s_waitcnt lgkmcnt(0)
            """)
            g.lab("L_A_peek")
            for k in range(4):
                g(f"s_load_dword s{16+k}, s[{sTMP}:{sTMP+1}], {k*2048+2040} glc")
            g(f"s_add_u32 s{sCNT}, s{sCNT}, 1")
            g(f"s_cmp_gt_u32 s{sCNT}, {pk}")
            g("s_waitcnt lgkmcnt(0)")
            g("s_cbranch_scc1 L_A_peek2")
            for k in range(4):
                g(f"s_xor_b32 s{16+k}, s{16+k}, s{sT}")
            g("s_or_b64 s[16:17], s[16:17], s[18:19]")
            g("s_cbranch_scc1 L_A_peek")
            g.lab("L_A_peek2")
            g(f"s_mov_b32 s{sCNT}, 0")
            h0loads()
            g("s_waitcnt vmcnt(0)")
        elif h0at is not None:
            assert not uve
            nx = 6 if opt.get("w1_on", "A") == "A" else 0
            g(f"s_waitcnt vmcnt({h0at + 2 + nx})")
            h0loads()
            if uvn:
                g("s_waitcnt lgkmcnt(0)")
                g("s_barrier")
                uv_stream(0, uvn)
            g(f"s_waitcnt vmcnt({uvn})")
        else:
            g(f"s_waitcnt vmcnt({nuv if uve else 0})")
        g.lab("L_A_h0chk")
        if opt.get("fst"):
            g(f"s_cmp_lg_u32 s{sCNT}, 0")
            g("s_cbranch_scc1 L_A_fs11")
            g.fstamp(11)
            g.lab("L_A_fs11")
        if pB:
            for k in range(16):
                g(f"v_xor_b32 v{vR+k}, s{sC}, v{vR+k}")
            g(f"v_or3_b32 v{t0}, v{vR}, v{vR+1}, v{vR+2}")
            g(f"v_or3_b32 v{t1}, v{vR+3}, v{vR+4}, v{vR+5}")
            for k in range(6, 14, 4):
                g(f"v_or3_b32 v{t0}, v{t0}, v{vR+k}, v{vR+k+1}")
                g(f"v_or3_b32 v{t1}, v{t1}, v{vR+k+2}, v{vR+k+3}")
            g(f"v_or3_b32 v{t0}, v{t0}, v{vR+14}, v{vR+15}")
            g(f"v_bitop3_b32 v{t0}, v{t0}, v{t1}, 15 bitop3:0xa8")
            g(f"v_cmp_ne_u32 vcc, 0, v{t0}")
            g("s_cbranch_vccnz L_A_h0poll")
        else:
            for k in range(3):
                g(f"v_cmp_ne_u64 vcc, s[{sT}:{sT+1}], {v(vR+8*k,2)}")
                g(f"v_cmp_ne_u64 s[{sM3}:{sM3+1}], s[{sT}:{sT+1}], {v(vR+8*k+6,2)}")
                if k == 0: g(f"s_or_b64 s[{sM4}:{sM4+1}], vcc, s[{sM3}:{sM3+1}]")
                else:
                    g(f"s_or_b64 s[{sM4}:{sM4+1}], s[{sM4}:{sM4+1}], vcc")
                    g(f"s_or_b64 s[{sM4}:{sM4+1}], s[{sM4}:{sM4+1}], s[{sM3}:{sM3+1}]")
            g("s_cbranch_scc1 L_A_h0poll")
        g.lab("L_A_h0done")
        def d1bell(tag):
            g("s_mov_b64 exec, 0xff")
            g(f"buffer_store_dword v{vTag}, v{vBell}, {WS}, s{sO2} offen sc1")
            g("s_mov_b64 exec, -1")
        qd = opt.get("q_direct", 0)
        d1p = opt.get("d1_pos", 0) if not qd else -1
        if d1p == 0: d1bell("")
        if pB:
            g(f"v_pk_add_f32 {v(vR,2)}, {v(vR,2)}, {v(vR+4,2)}")
            g(f"v_pk_add_f32 {v(vR+2,2)}, {v(vR+2,2)}, {v(vR+6,2)}")
            g(f"v_pk_add_f32 {v(vR+8,2)}, {v(vR+8,2)}, {v(vR+12,2)}")
            g(f"v_pk_add_f32 {v(vR+10,2)}, {v(vR+10,2)}, {v(vR+14,2)}")
            g(f"v_pk_add_f32 {v(vR,2)}, {v(vR,2)}, {v(vR+8,2)}")
            g(f"v_pk_add_f32 {v(vR+2,2)}, {v(vR+2,2)}, {v(vR+10,2)}")
            g(f"v_cvt_pk_bf16_f32 v{vR}, v{vR}, v{vR+1}")
            g(f"v_cvt_pk_bf16_f32 v{vR+1}, v{vR+2}, v{vR+3}")
        else:
            g(f"v_pk_add_f32 {v(vR+2,2)}, {v(vQ+2,2)}, {v(vR+2,2)}")
            g(f"v_pk_add_f32 {v(vR+4,2)}, {v(vQ+4,2)}, {v(vR+4,2)}")
            g(f"v_pk_add_f32 {v(vR+10,2)}, {v(vR+10,2)}, {v(vR+18,2)}")
            g(f"v_pk_add_f32 {v(vR+12,2)}, {v(vR+12,2)}, {v(vR+20,2)}")
            g(f"v_pk_add_f32 {v(vR+2,2)}, {v(vR+2,2)}, {v(vR+10,2)}")
            g(f"v_pk_add_f32 {v(vR+4,2)}, {v(vR+4,2)}, {v(vR+12,2)}")
            g(f"v_cvt_pk_bf16_f32 v{vR}, v{vR+2}, v{vR+3}")
            g(f"v_cvt_pk_bf16_f32 v{vR+1}, v{vR+4}, v{vR+5}")
        g(f"ds_write_b64 v{vQw}, {v(vR,2)} offset:{A_QL}")
        g("s_waitcnt lgkmcnt(0)")
        g("s_barrier")
        g(f"ds_read_b128 {v(vQlo,4)}, v{vA_qlo}")
        g(f"ds_read_b128 {v(vQhi,4)}, v{vA_qhi}")
        if d1p == 1: d1bell("")
        g("s_branch L_A_p1b")
        g.lab("L_A_h0wait")
        if uvn:
            assert h0at is not None
            g("s_waitcnt lgkmcnt(0)")
            g("s_barrier")
            uv_stream(0, uvn)
        g(f"s_waitcnt vmcnt({nuv if uve else uvn}) lgkmcnt(0)")
        g.fstamp(12)
        g("s_barrier")
        g(f"ds_read_b128 {v(vQlo,4)}, v{vA_qlo}")
        g(f"ds_read_b128 {v(vQhi,4)}, v{vA_qhi}")
        g.lab("L_A_p1b")
        g.stamp(3)
        g("s_waitcnt lgkmcnt(0)")
        for t in range(4):
            g(f"{MF} {v(vAcc+4*t,4)}, {v(vQlo,4)}, {A(aUK+8*t,4)}, 0")
        for t in range(4):
            g(f"{MF} {v(vAcc+4*t,4)}, {v(vQhi,4)}, {A(aUK+8*t+4,4)}, {v(vAcc+4*t,4)}")
        if d1p == 2:
            g(f"s_cmp_lg_u32 s{sW}, 0")
            g("s_cbranch_scc1 L_A_nod1")
            d1bell("")
            g.lab("L_A_nod1")
        for t in range(4):
            a0 = vAcc + 4 * t
            g(f"v_cndmask_b32 v{a0}, v{a0}, v{a0+1}, s[{sM1}:{sM1+1}]")
            g(f"v_cndmask_b32 v{a0+2}, v{a0+2}, v{a0+3}, s[{sM1}:{sM1+1}]")
            g(f"v_cndmask_b32 v{a0}, v{a0}, v{a0+2}, s[{sM2}:{sM2+1}]")
        for t in range(4):
            a0 = vAcc + 4 * t
            g(f"v_add_f32_dpp v{a0+1}, v{a0}, v{a0} quad_perm:[1,0,3,2] row_mask:0xf bank_mask:0xf")
        for t in range(4):
            a0 = vAcc + 4 * t
            g(f"v_add_f32_dpp v{a0}, v{a0+1}, v{a0+1} quad_perm:[2,3,0,1] row_mask:0xf bank_mask:0xf")
        g(f"v_cvt_pk_bf16_f32 v{vGr}, v{vAcc}, v{vAcc+4}")
        g(f"v_cvt_pk_bf16_f32 v{vGr+1}, v{vAcc+8}, v{vAcc+12}")
        g(f"v_permlane32_swap_b32 v{vGr}, v{vGr+2}")
        g(f"v_permlane32_swap_b32 v{vGr+1}, v{vGr+3}")
        if qd:
            g(f"""
            s_mov_b64 exec, 0x11111111
            ds_write_b128 v{vA_h1}, {v(vGr,4)} offset:{A_CTXC}
            s_mov_b64 exec, -1
            s_waitcnt lgkmcnt(0)
            s_barrier
            s_cmp_lg_u32 s{sW}, 3
            s_cbranch_scc1 L_A_noq
            s_mov_b32 exec_hi, 0
            ds_read_b128 {v(vGr,4)}, v{vA_l16} offset:{A_CTXC}
            s_waitcnt lgkmcnt(0)
            buffer_store_dwordx4 {v(vGr,4)}, v{vBell}, {WS}, s{sQ} offen sc1
            s_mov_b64 exec, -1
            """)
            g.lab("L_A_noq")
        else:
            g(f"""
            s_mov_b64 exec, 0x11111111
            buffer_store_dwordx4 {v(vGr,4)}, v{vA_h1}, {WS}, s{sQ} offen sc1
            s_mov_b64 exec, -1
            """)
        if d1p == 3:
            g(f"s_cmp_lg_u32 s{sW}, 0")
            g("s_cbranch_scc1 L_A_nod1")
            d1bell("")
            g.lab("L_A_nod1")
        g.stamp(4)
        if opt.get("a_wait", 0): g("s_waitcnt vmcnt(0)")
        if opt.get("a_gate"):
            sD = [16, 52, 56, 28]
            g(f"""
            s_lshl_b32 s{sTMP}, s{sXCD}, 3
            s_lshr_b32 s{sTMP+1}, s{sH}, 4
            s_lshl_b32 s{sTMP+1}, s{sTMP+1}, 2
            s_add_u32 s{sTMP}, s{sTMP}, s{sTMP+1}
            s_add_u32 s{sTMP}, s{sTMP}, s{sW}
            s_lshl_b32 s{sTMP}, s{sTMP}, 9
            s_add_u32 s{sTMP}, s{sTMP}, {D1}
            s_add_u32 s{sTMP}, s4, s{sTMP}
            s_addc_u32 s{sTMP+1}, s5, 0
            s_mov_b32 s{sPC}, s{sT}
            s_mov_b32 s{sPC+1}, s{sT}
            s_mov_b32 s{sCNT}, 0
            """)
            g.lab("L_A_gate")
            for k in range(4):
                g(f"s_load_dwordx4 s[{sD[k]}:{sD[k]+3}], s[{sTMP}:{sTMP+1}], {k*128} glc")
            spin_guard(g, "L_A_gate2")
            g("s_waitcnt lgkmcnt(0)")
            for k in range(4):
                g(f"s_xor_b64 s[{sD[k]}:{sD[k]+1}], s[{sD[k]}:{sD[k]+1}], s[{sPC}:{sPC+1}]")
                g(f"s_xor_b64 s[{sD[k]+2}:{sD[k]+3}], s[{sD[k]+2}:{sD[k]+3}], s[{sPC}:{sPC+1}]")
                g(f"s_or_b64 s[{sD[k]}:{sD[k]+1}], s[{sD[k]}:{sD[k]+1}], s[{sD[k]+2}:{sD[k]+3}]")
            g("s_or_b64 s[16:17], s[16:17], s[52:53]")
            g("s_or_b64 s[56:57], s[56:57], s[28:29]")
            g("s_or_b64 s[16:17], s[16:17], s[56:57]")
            g("s_cbranch_scc1 L_A_gate")
            g.lab("L_A_gate2")
            g("s_waitcnt lgkmcnt(0)")
            if opt["a_gate"] == 2: g("s_barrier")
            g(f"v_and_b32 v{t0}, 2, v{vL}")
            g(f"v_cmp_eq_u32 s[{sM2}:{sM2+1}], 2, v{t0}")
        if opt.get("a_sleep"): g(f"s_sleep {opt['a_sleep']}")
        srd(g, 28, 10, 1152)
        def w1_frags():
            for i in range(11):
                for d in range(4):
                    g(f"v_perm_b32 v{vXA+4*i+d}, v{vXr+2*i+1}, v{vXr+2*i}, v{vS1+d}")
        w1a = opt.get("w1_on", "A") == "A"
        nw1 = 0 if ("w1" in opt.get("skip", "") or not w1a) else 11
        if w1a:
            g(f"s_mul_i32 s{sO2}, s{sR0}, 9216")
            g(f"s_lshl_b32 s{sO3}, s{sBlk}, 8")
            g(f"s_add_u32 s{sO2}, s{sO2}, s{sO3}")
        for i in range(nw1):
            if opt.get("w1_thr") and i >= opt["w1_thr"]: g(f"s_waitcnt vmcnt({opt['w1_thr']-1})")
            g(f"buffer_load_dwordx4 {A(aW1+4*i,4)}, v{vW1a}, {W1}, s{sO2} offen {NT}")
            if i == (opt.get("w1_thr") or 11) - 1: w1_frags()
            if i < 10: g(f"s_add_u32 s{sO2}, s{sO2}, {4*9216}")
            if i == 9:
                g(f"s_cmp_ge_u32 s{sRho}, 4")
                g(f"s_cselect_b32 s{sO2}, {576*9216}, s{sO2}")
        if not uve: uv_stream(uvn, 8)
        def w1_gemv(younger):
            if not w1a: return
            vH = 148
            g(f"s_waitcnt vmcnt({younger})")
            for i in range(10):
                g(f"{MF} {v(vH,4)}, {v(vXA+4*i,4)}, {A(aW1+4*i,4)}, {'0' if i == 0 else v(vH,4)}")
            g(f"s_cmp_ge_u32 s{sRho}, 4")
            g("s_cbranch_scc1 L_A_w1s")
            g(f"{MF} {v(vH,4)}, {v(vXA+40,4)}, {A(aW1+40,4)}, {v(vH,4)}")
            g.lab("L_A_w1s")
            g(f"""
            s_mul_i32 s{sO}, s{sRho}, 36864
            s_lshl_b32 s{sO3}, s{sBlk}, 9
            s_add_u32 s{sO}, s{sO}, s{sO3}
            s_add_u32 s{sO}, s{sO}, {HH}
            s_and_b32 s{sO3}, s{sT}, 15
            """)
            for r in range(4):
                g(f"v_and_or_b32 v{vH+r}, v{vH+r}, -16, s{sO3}")
            g(f"buffer_store_dwordx4 {v(vH,4)}, v{vHs}, {WS}, s{sO} offen sc1")
        if not opt.get("w1_late"): w1_gemv(0 if uve else nuv)
        wol = opt.get("wo_late", 0)
        if not wol:
            g(f"s_mul_i32 s{sO2}, s{sA}, {32*1152}")
            unit_load(g, WO, vP2, A_WO, sO2, 1152, "wo", NT, rows36=False, thr=opt.get("a_thr"))
        if opt.get("w1_late") == 1: w1_gemv(9)
        if not opt.get('clk'): g.stamp(14)
        vGx, vGw, vB2 = 48, 60, 72
        vOA, vFB = 73, 74
        g(f"v_mov_b32 v{vOA}, 0")
        g("s_waitcnt lgkmcnt(0)")
        g(f"s_cmp_lg_u32 s{sW}, 0")
        g("s_cbranch_scc1 L_A_nogate")
        h0_wt()
        g(f"""
        s_cmp_ge_u32 s{sA}, 36
        s_cbranch_scc1 L_A_nogate
        v_and_b32 v{t0}, 31, v{vL}
        v_mul_u32_u24 v{t1}, 36, v{t0}
        v_lshrrev_b32 v{t2}, 5, v{vL}
        v_mul_u32_u24 v{t2}, 1152, v{t2}
        v_add_u32 v{t2}, v{t2}, v{t1}
        buffer_load_dwordx4 {v(vGx,4)}, v{t2}, {X}, 0 offen
        buffer_load_dwordx4 {v(vGx+4,4)}, v{t2}, {X}, 0 offen offset:16
        buffer_load_dword v{vGx+8}, v{t2}, {X}, 0 offen offset:32
        buffer_load_dwordx4 {v(vGw,4)}, v{t1}, {GATE}, 0 offen
        buffer_load_dwordx4 {v(vGw+4,4)}, v{t1}, {GATE}, 0 offen offset:16
        buffer_load_dword v{vGw+8}, v{t1}, {GATE}, 0 offen offset:32
        s_cmp_ge_u32 s{sA}, 32
        s_cbranch_scc1 L_A_uleft
        s_lshr_b32 s{sO}, s{sA}, 2
        s_lshl_b32 s{sO}, s{sO}, 4
        s_and_b32 s{sO3}, s{sA}, 1
        s_lshl_b32 s{sO3}, s{sO3}, 3
        s_add_u32 s{sO}, s{sO}, s{sO3}
        v_and_b32 v{t1}, 3, v{t0}
        v_lshlrev_b32 v{t1}, 7, v{t1}
        v_lshrrev_b32 v{t2}, 2, v{t0}
        v_add3_u32 v{t1}, v{t1}, v{t2}, s{sO}
        s_bfe_u32 s{sO3}, s{sA}, 0x10001
        v_mov_b32 v{vFB}, s{sO3}
        s_branch L_A_ujoin
        """)
        g.lab("L_A_uleft")
        g(f"""
        s_lshl_b32 s{sO}, s{sA}, 4
        v_and_b32 v{t1}, 15, v{t0}
        v_add_u32 v{t1}, s{sO}, v{t1}
        v_lshrrev_b32 v{vFB}, 4, v{t0}
        """)
        g.lab("L_A_ujoin")
        g(f"""
        v_lshlrev_b32 v{t1}, 1, v{t1}
        buffer_load_ushort v{vB2}, v{t1}, {B2}, 0 offen
        v_mul_u32_u24 v{vOA}, 1152, v{vFB}
        v_add_u32 v{vOA}, v{vOA}, v{t1}
        """)
        if opt.get("out_touch"): g(f"buffer_load_ushort v253, v{vOA}, {OUT}, 0 offen")
        g.lab("L_A_nogate")
        vH3, vH3x = 32, 33
        vHBs = 39
        sH3m, sH3l, sHB, sHH = 63, 47, 61, 62
        vTU0, vTU1, vTO0, vTO1 = 34, 35, 36, 37
        vCX, vCW, vHBl, vD2, vOg, vWTw, vWTr = 38, 46, 40, 41, 42, 43, 44
        vT1, vK1 = 75, 57
        def later_addresses():
            g(f"""
            s_mul_i32 s{sH3l}, s{sA}, {OSTR}
            s_add_u32 s{sH3l}, s{sH3l}, {OB}
            s_lshl_b32 s{sTMP}, s{sW}, 10
            s_add_u32 s{sH3m}, s{sH3l}, s{sTMP}
            s_lshl_b32 s{sTMP}, s{sW}, 8
            s_add_u32 s{sH3l}, s{sH3l}, s{sTMP}
            s_add_u32 s{sH3l}, s{sH3l}, 4096
            v_lshlrev_b32 v{vH3x}, 2, v{vL}
            """)
            g(f"""
            v_lshlrev_b32 v{vHBs}, 7, v{vG}
            v_and_b32 v{t0}, 1, v{vL}
            v_lshl_add_u32 v{vHBs}, v{t0}, 6, v{vHBs}
            v_bfe_u32 v{t0}, v{vL}, 1, 1
            v_lshl_add_u32 v{vHBs}, v{t0}, 9, v{vHBs}
            s_lshl_b32 s{sHB}, s{sH}, 2
            s_add_u32 s{sHB}, s{sHB}, s{sW}
            s_lshl_b32 s{sHB}, s{sHB}, 6
            s_add_u32 s{sHB}, s{sHB}, s{sJ}
            s_lshl_b32 s{sHB}, s{sHB}, 4
            s_add_u32 s{sHB}, s{sHB}, {HB}
            v_lshrrev_b32 v{t0}, 2, v{vL}
            v_bfe_u32 v{t1}, v{vL}, 1, 1
            v_lshl_add_u32 v{t1}, s{sW}, 2, v{t1}
            v_and_b32 v{t2}, 7, v{t0}
            v_lshlrev_b32 v{t2}, 1, v{t2}
            v_xor_b32 v{t1}, v{t1}, v{t2}
            v_lshlrev_b32 v{vTU0}, 8, v{t0}
            v_lshl_add_u32 v{vTU0}, v{t1}, 4, v{vTU0}
            v_and_b32 v{t1}, 1, v{vL}
            v_lshl_add_u32 v{vTU0}, v{t1}, 3, v{vTU0}
            v_xor_b32 v{vTU1}, 32, v{vTU0}
            """)
            assert A_WUV == 0
            tr_pair_bases(g, vTO0, vTO1, None, None, vL, A_WO, t0, t1, t2)
            g(f"""
            v_and_b32 v{t0}, 1, v{vL}
            v_lshlrev_b32 v{vCX}, 9, v{t0}
            v_bfe_u32 v{t0}, v{vL}, 1, 1
            v_lshl_add_u32 v{vCX}, v{t0}, 8, v{vCX}
            v_lshl_add_u32 v{vCX}, v{vG}, 4, v{vCX}
            v_and_b32 v{t0}, 1, v{vG}
            v_lshlrev_b32 v{vCW}, 3, v{t0}
            v_lshl_add_u32 v{vCW}, v{vN}, 4, v{vCW}
            v_lshl_add_u32 v{vCW}, s{sW}, 8, v{vCW}
            v_and_b32 v{t0}, 7, v{vL}
            v_lshlrev_b32 v{vHBl}, 4, v{t0}
            v_lshl_add_u32 v{vHBl}, v{vG}, 7, v{vHBl}
            v_and_b32 v{t0}, 31, v{vL}
            v_lshlrev_b32 v{vD2}, 8, v{t0}
            v_lshlrev_b32 v{vOg}, 10, v{vG}
            v_lshl_add_u32 v{vOg}, v{vN}, 4, v{vOg}
            v_lshlrev_b32 v{vWTw}, 1, v{t0}
            v_lshl_add_u32 v{vWTw}, s{sW}, 6, v{vWTw}
            s_and_b32 s{sTMP}, s{sW}, 1
            s_lshl_b32 s{sTMP}, s{sTMP}, 5
            s_lshl_b32 s{sTMP+1}, s{sW}, 6
            s_add_u32 s{sTMP}, s{sTMP}, s{sTMP+1}
            v_lshl_add_u32 v{vWTr}, v{vG}, 3, s{sTMP}
            v_cmp_gt_u32 s[{sM1}:{sM1+1}], 8, v{vN}
            """)
        later_addresses()
        lb = opt.get("late_bar", 0)
        if not lb:
            g("s_waitcnt vmcnt(0)")
            g("s_barrier")
        g.stamp(5)
        aUV, aWO = 0, 32
        vDB = 88
        vDL = 92
        vO = 96
        vFr = 116
        vWt = 132
        vD = 136
        vLs, vWr, vEr = 140, 141, 142
        g(f"""
        s_lshr_b32 s{sO}, s{sH}, 4
        s_lshl_b32 s{sO}, s{sO}, 1
        s_lshr_b32 s{sO3}, s{sW}, 1
        s_add_u32 s{sO}, s{sO}, s{sO3}
        s_lshl_b32 s{sO}, s{sO}, 13
        s_and_b32 s{sO3}, s{sH}, 15
        s_lshl_b32 s{sO3}, s{sO3}, 4
        s_add_u32 s{sO}, s{sO}, s{sO3}
        s_add_u32 s{sO2}, s{sO}, {DL}
        s_add_u32 s{sO}, s{sO}, {D2}
        """)
        epos = opt.get("e_pos")
        if epos is None: g(f"buffer_load_dwordx4 {v(vDB,4)}, v{vD2}, {WS}, s{sO} offen sc1")
        if opt.get("w1_late") == 2:
            g(f"s_mov_b32 s{sC}, s{sO}")
            w1_gemv(1)
            g(f"s_mov_b32 s{sO}, s{sC}")
        def uv_frags():
            for tau in range(2):
                for ks in range(4):
                    for hi in range(2):
                        g(f"ds_read_b64_tr_b16 {A(aUV+(tau*4+ks)*4+2*hi,2)}, v{vTU1 if tau else vTU0} offset:{ks*8192+hi*4096}")
        if not lb: uv_frags()
        def wo_frags():
            for t in range(5):
                for x in range(2):
                    for hi in range(2):
                        g(f"ds_read_b64_tr_b16 {A(aWO+(t*2+x)*4+2*hi,2)}, v{vTO1 if x else vTO0} offset:{hi*16*1152+t*256}")
        if not wol and not lb: wo_frags()
        sBP = 34
        sHI, sTT = sPOI, sPC
        sX, sP4 = 32, 33
        g(f"""
        s_and_b32 s{sTMP}, s{sW}, 1
        s_lshl_b32 s{sTMP}, s{sTMP}, 12
        s_add_u32 s{sTMP}, s{sTMP}, s{sO2}
        s_add_u32 s{sBP}, s4, s{sTMP}
        s_addc_u32 s{sBP+1}, s5, 0
        s_mul_i32 s{sO3}, s{sA}, {OSTR}
        s_lshl_b32 s{sTMP}, s{sW}, 12
        s_add_u32 s{sO3}, s{sO3}, s{sTMP}
        s_add_u32 s{sO3}, s{sO3}, {OB}
        s_bitcmp1_b32 s{sT}, 0
        s_cselect_b32 s{sX}, 0x10001, 0
        s_mov_b32 s{sHI}, 0x10000
        s_mov_b32 s{sTT}, s{sT}
        s_mov_b32 s{sTT+1}, s{sT}
        """)
        def gate_math():
            g(f"v_mov_b32 v{t0}, 0")
            for k in range(9):
                g(f"v_dot2_f32_bf16 v{t0}, v{vGx+k}, v{vGw+k}, v{t0}")
            g("s_nop 2")
            for r in (8, 4, 2, 1):
                g(f"v_add_f32_dpp v{t0}, v{t0}, v{t0} row_ror:{r} row_mask:0xf bank_mask:0xf")
            g(f"""
            v_mov_b32 v{t1}, v{t0}
            v_permlane16_swap_b32 v{t0}, v{t1}
            v_add_f32 v{t0}, v{t0}, v{t1}
            v_mul_f32 v{t0}, {hex(fbits(-math.log2(math.e)))}, v{t0}
            v_exp_f32 v{t0}, v{t0}
            v_add_f32 v{t0}, 1.0, v{t0}
            v_rcp_f32 v{t0}, v{t0}
            v_cmp_eq_u32 vcc, 1, v{vFB}
            v_mov_b32 v{t1}, v{t0}
            v_permlane32_swap_b32 v{t0}, v{t1}
            v_cndmask_b32 v{vFB}, v{t0}, v{t1}, vcc
            v_lshlrev_b32 v{vB2}, 16, v{vB2}
            """)
        if not lb: gate_math()
        g(f"""
        s_mov_b32 s{sCNT}, 0
        """)
        if epos is None:
            g(f"s_waitcnt vmcnt({1 if opt.get('w1_late') == 2 else 0})")
            g("s_branch L_A_d2chk")
        else:
            g(f"""
            s_lshr_b32 s{sTMP}, s{sH}, 4
            s_lshl_b32 s{sTMP}, s{sTMP}, 2
            s_add_u32 s{sTMP}, s{sTMP}, s{sW}
            s_lshl_b32 s{sTMP}, s{sTMP}, 11
            s_mul_i32 s{sTMP+1}, s{sXCD}, {16384 if opt.get("e_rep") else 0}
            s_add_u32 s{sTMP}, s{sTMP}, s{sTMP+1}
            s_add_u32 s{sTMP}, s{sTMP}, {DE2 if opt.get("e_rep") else DE}
            v_lshrrev_b32 v{t2}, 1, v{vD2}
            s_mov_b64 exec, 0xffff
            """)
            g.lab("L_A_epoll")
            g(f"buffer_load_dwordx2 {v(t0,2)}, v{t2}, {WS}, s{sTMP} offen offset:8 sc1")
            spin_guard(g, "L_A_edone")
            g("s_waitcnt vmcnt(0)")
            g(f"v_cmp_ne_u64 vcc, s[{sT}:{sT+1}], {v(t0,2)}")
            g("s_mov_b64 exec, vcc")
            g("s_cbranch_vccnz L_A_epoll")
            g.lab("L_A_edone")
            g("s_mov_b64 exec, -1")
            g("s_mov_b64 vcc, -1")
            if opt.get("st14e"): g.stamp(14)
            if opt.get("e_sleep"): g(f"s_sleep {opt['e_sleep']}")
            g(f"s_mov_b32 s{sCNT}, 0")
        g.lab("L_A_d2poll")
        if opt.get("m_shrink"): g("s_mov_b64 exec, vcc")
        if opt.get("m_sleep"): g(f"s_sleep {opt['m_sleep']}")
        g(f"buffer_load_dwordx4 {v(vDB,4)}, v{vD2}, {WS}, s{sO} offen sc1")
        g(f"s_add_u32 s{sCNT}, s{sCNT}, 1")
        g(f"s_cmp_gt_u32 s{sCNT}, {opt.get('spin', SPIN)}")
        g("s_waitcnt vmcnt(0)")
        g("s_cbranch_scc1 L_A_d2done")
        g.lab("L_A_d2chk")
        g(f"v_cmp_ne_u64 vcc, s[{sT}:{sT+1}], {v(vDB+2,2)}")
        g("s_cbranch_vccnz L_A_d2poll")
        g.lab("L_A_d2done")
        if opt.get("m_shrink"): g("s_mov_b64 exec, -1")
        g.stamp(6)
        def lpoll():
            for k in range(16):
                g(f"s_load_dword s{16+k}, s[{sBP}:{sBP+1}], {k*256+8} glc")
        lvec = opt.get("l_vec", 0)
        if lvec == 1: g(f"buffer_load_dwordx4 {v(vDL,4)}, v{vD2}, {WS}, s{sO2} offen sc1")
        elif lvec == 0: lpoll()
        g(f"v_max_f32_dpp v{t0}, v{vDB}, v{vDB} row_ror:8 row_mask:0xf bank_mask:0xf")
        for r in (4, 2, 1):
            g(f"v_max_f32_dpp v{t0}, v{t0}, v{t0} row_ror:{r} row_mask:0xf bank_mask:0xf")
        g(f"""
        v_mov_b32 v{t1}, v{t0}
        v_permlane16_swap_b32 v{t0}, v{t1}
        v_max_f32 v{t0}, v{t0}, v{t1}
        v_sub_f32 v{t0}, v{vDB}, v{t0}
        v_exp_f32 v{t0}, v{t0}
        v_cvt_pk_bf16_f32 v{t0}, v{t0}, v{t0}
        ds_write_b16 v{vWTw}, v{t0} offset:{A_WT}
        ds_read_b64 {v(vWt,2)}, v{vWTr} offset:{A_WT}
        v_and_b32 v{vWr}, 0xffff0000, v{t0}
        s_mov_b32 s{sCNT}, 0
        s_branch {"L_A_lgo" if lvec == 2 else "L_A_lchk"}
        """)
        g.lab("L_A_lpoll")
        if lvec: g(f"buffer_load_dwordx4 {v(vDL,4)}, v{vD2}, {WS}, s{sO2} offen sc1")
        else: lpoll()
        g(f"s_add_u32 s{sCNT}, s{sCNT}, 1")
        g(f"s_cmp_gt_u32 s{sCNT}, {opt.get('spin', SPIN)}")
        g("s_cbranch_scc1 L_A_lgo")
        g.lab("L_A_lchk")
        if lvec:
            g("s_waitcnt vmcnt(0)")
            g(f"v_cmp_ne_u64 vcc, s[{sT}:{sT+1}], {v(vDL+2,2)}")
            g("s_cbranch_vccnz L_A_lpoll")
        else:
            g("s_waitcnt lgkmcnt(0)")
            for k in range(0, 16, 2):
                g(f"s_xor_b64 s[{16+k}:{17+k}], s[{16+k}:{17+k}], s[{sTT}:{sTT+1}]")
            for st_ in (8, 4, 2):
                for k in range(0, st_, 2):
                    g(f"s_or_b64 s[{16+k}:{17+k}], s[{16+k}:{17+k}], s[{16+k+st_}:{17+k+st_}]")
            g("s_cbranch_scc1 L_A_lpoll")
        g.lab("L_A_lgo")
        g(f"s_mov_b32 s{sCNT}, 0")
        if opt.get("o_sleep"): g(f"s_sleep {opt['o_sleep']}")
        g.stamp(11)
        def oget():
            g(f"buffer_load_dwordx4 {v(vDL,4)}, v{vD2}, {WS}, s{sO2} offen sc1")
            for u in range(4):
                g(f"buffer_load_dwordx4 {v(vO+4*u,4)}, v{vOg}, {WS}, s{sO3} offen offset:{u*256} sc1")
        oget()
        nwo = 0
        if lb:
            assert lvec == 2
            g("s_barrier")
        if wol in (1, 2):
            assert lvec == 2
            g(f"s_mul_i32 s{sC}, s{sA}, {32*1152}")
            unit_load(g, WO, vP2, A_WO, sC, 1152, "wo", NT, rows36=False)
            nwo = 9 if "wo" not in opt.get("skip", "") else 0
        g("s_waitcnt lgkmcnt(0)")
        if lb:
            uv_frags()
            if not wol: wo_frags()
        for u in range(4):
            for d in range(4):
                g(f"v_perm_b32 v{vFr+4*u+d}, v{vWt+(u>>1)}, v{vWt+(u>>1)}, v{vSel+4*(u&1)+d}")
        if lb: gate_math()
        g.lab("L_A_ocomb")
        g(f"v_mov_b32 v{vEr}, 0")
        g(f"s_waitcnt vmcnt({4+nwo})")
        g(f"v_mul_f32 v{vLs}, v{vWr}, v{vDL}")
        g(f"v_cmp_ne_u64 s[{sM4}:{sM4+1}], s[{sT}:{sT+1}], {v(vDL+2,2)}")
        for r in (8, 4, 2, 1):
            g(f"v_add_f32_dpp v{vLs}, v{vLs}, v{vLs} row_ror:{r} row_mask:0xf bank_mask:0xf")
        g(f"""
        v_mov_b32 v{t1}, v{vLs}
        v_permlane16_swap_b32 v{vLs}, v{t1}
        v_add_f32 v{vLs}, v{vLs}, v{t1}
        v_rcp_f32 v{vLs}, v{vLs}
        """)
        for u in range(4):
            g(f"s_waitcnt vmcnt({3-u+nwo})")
            for d in range(4):
                g(f"v_xor_b32 v{vO+4*u+d}, s{sX}, v{vO+4*u+d}")
            if u:
                for d in range(4):
                    g(f"v_bitop3_b32 v{vEr}, v{vEr}, v{vO+4*(u-1)+d}, s{sHI} bitop3:0xf6")
            g(f"{MF} {v(vD,4)}, {v(vFr+4*u,4)}, {v(vO+4*u,4)}, {'0' if u == 0 else v(vD,4)}")
        for d in range(4):
            g(f"v_bitop3_b32 v{vEr}, v{vEr}, v{vO+12+d}, s{sHI} bitop3:0xf6")
        g(f"v_and_b32 v{vEr}, 0x10001, v{vEr}")
        g(f"v_cmp_ne_u32 vcc, 0, v{vEr}")
        g(f"s_or_b64 vcc, vcc, s[{sM4}:{sM4+1}]")
        g("s_cbranch_scc1 L_A_oslow")
        g.lab("L_A_ook")
        if opt.get("stamps"): g(f"s_mov_b32 s100, s{sCNT}")
        for r in range(4):
            g(f"v_mul_f32 v{vD+r}, v{vLs}, v{vD+r}")
        g(f"v_cvt_pk_bf16_f32 v{vD}, v{vD}, v{vD+1}")
        g(f"v_cvt_pk_bf16_f32 v{vD+1}, v{vD+2}, v{vD+3}")
        g(f"ds_write_b64 v{vCW}, {v(vD,2)} offset:{A_CTXC}")
        if wol == 3:
            g(f"s_mul_i32 s{sC}, s{sA}, {32*1152}")
            unit_load(g, WO, vP2, A_WO, sC, 1152, "wo", NT, rows36=False)
        g("s_waitcnt vmcnt(0) lgkmcnt(0)" if wol == 1 else "s_waitcnt lgkmcnt(0)")
        g("s_barrier")
        g.stamp(7)
        vC = 80
        vU = 96
        vG1, vG2 = 104, 108
        vAe, vAo = 116, 120
        vY = 124
        for ks in range(4):
            g(f"ds_read_b128 {v(vC+4*ks,4)}, v{vCX} offset:{A_CTXC+ks*64}")
        g(f"s_lshl_b32 s{sO3}, s{sA}, 10")
        g(f"s_add_u32 s{sO3}, s{sO3}, {HB+LOC}")
        g(f"s_add_u32 s{sO}, s{sHB}, {LOC}")
        g(f"s_and_b32 s{sP4}, s{sT}, 15")
        sD3, vD3 = 16, 58
        g(f"s_xor_b32 s{sD3}, s{sW}, 3")
        g(f"s_or_b32 s{sD3}, s{sD3}, s{sJ}")
        g(f"s_lshl_b32 s{sTMP}, s{sH}, 7")
        g(f"s_add_u32 s{sTMP}, s{sTMP}, {D3}")
        g(f"v_lshl_add_u32 v{vD3}, v{vL}, 12, s{sTMP}")
        for ks in range(4):
            g(f"s_waitcnt lgkmcnt({3-ks})")
            for tau in range(2):
                g(f"{MF} {v(vU+4*tau,4)}, {A(aUV+(tau*4+ks)*4,4)}, {v(vC+4*ks,4)}, {'0' if ks == 0 else v(vU+4*tau,4)}")
        for r in range(4):
            g(f"v_cndmask_b32 v{vC+r}, v{vU+r}, v{vU+4+r}, s[{sM2}:{sM2+1}]")
            g(f"v_cndmask_b32 v{vC+4+r}, v{vU+4+r}, v{vU+r}, s[{sM2}:{sM2+1}]")
        for r in range(4):
            g(f"v_add_f32_dpp v{vC+r}, v{vC+4+r}, v{vC+r} quad_perm:[2,3,0,1] row_mask:0xf bank_mask:0xf")
        g(f"""
        v_cvt_pk_bf16_f32 v{vTag-2}, v{vC}, v{vC+1}
        v_cvt_pk_bf16_f32 v{vTag-1}, v{vC+2}, v{vC+3}
        s_mov_b32 exec_lo, 0x000f000f
        s_mov_b32 exec_hi, 0x000f000f
        buffer_store_dwordx4 {v(vTag-2,4)}, v{vHBs}, {WS}, s{sO} offen
        s_mov_b64 exec, -1
        """)
        def hb_wt():
            g("s_mov_b32 exec_lo, 0x000f000f")
            g("s_mov_b32 exec_hi, 0x000f000f")
            g(f"buffer_store_dwordx4 {v(vTag-2,4)}, v{vHBs}, {WS}, s{sHB} offen sc1")
            g("s_mov_b64 exec, -1")
        g.stamp(8)
        g(f"s_mov_b32 s{sCNT}, 0")
        if wol >= 2:
            g("s_waitcnt vmcnt(1)")
            g("s_barrier")
        if wol: wo_frags()
        g.lab("L_A_hbld")
        g(f"buffer_load_dwordx4 {v(vG1,4)}, v{vHBl}, {WS}, s{sO3} offen sc1")
        g(f"buffer_load_dwordx4 {v(vG2,4)}, v{vHBl}, {WS}, s{sO3} offen offset:512 sc1")
        g("s_waitcnt vmcnt(0)")
        g(f"v_cmp_ne_u64 vcc, s[{sT}:{sT+1}], {v(vG1+2,2)}")
        g(f"v_cmp_ne_u64 s[{sM3}:{sM3+1}], s[{sT}:{sT+1}], {v(vG2+2,2)}")
        src = [vG1, vG1 + 1, vG2, vG2 + 1]
        for d in range(4):
            g(f"v_cndmask_b32 v{vAe+d}, 0, v{src[d]}, s[{sM1}:{sM1+1}]")
        g(f"s_or_b64 vcc, vcc, s[{sM3}:{sM3+1}]")
        g("s_cbranch_scc1 L_A_hbpoll")
        g.lab("L_A_hbdone")
        g.stamp(9)
        def d3bell():
            g(f"s_cmp_lg_u32 s{sD3}, 0")
            g("s_cbranch_scc1 L_A_nod3")
            g("s_mov_b64 exec, 0xff")
            g(f"buffer_store_dword v{vTag}, v{vD3}, {WS}, 0 offen sc1")
            g("s_mov_b64 exec, -1")
            g.lab("L_A_nod3")
        if opt.get("d3_pos", 0) == 0 and opt.get("h3_bell", 1): d3bell()
        for d in range(4):
            g(f"v_cndmask_b32 v{vAo+d}, v{src[d]}, 0, s[{sM1}:{sM1+1}]")
        if wol: g("s_waitcnt lgkmcnt(0)")
        for t in range(4):
            g(f"{MF} {v(vY+4*t,4)}, {v(vAe,4)}, {A(aWO+(t*2)*4,4)}, 0")
        for t in range(4):
            g(f"{MF} {v(vY+4*t,4)}, {v(vAo,4)}, {A(aWO+(t*2+1)*4,4)}, {v(vY+4*t,4)}")
        g(f"{MF} {v(vY+16,4)}, {v(vAe,4)}, {A(aWO+32,4)}, 0")
        g(f"{MF} {v(vY+16,4)}, {v(vAo,4)}, {A(aWO+36,4)}, {v(vY+16,4)}")
        for t in range(4):
            g(f"v_pk_add_f32 {v(vY+4*t,2)}, {v(vY+4*t,2)}, {v(vY+4*t+2,2)}")
        for t in range(4):
            g(f"v_add_f32 v{vC+t}, v{vY+4*t}, v{vY+4*t+1}")
        for t in range(4):
            g(f"v_and_or_b32 v{vC+t}, v{vC+t}, -16, s{sP4}")
        g(f"buffer_store_dwordx4 {v(vC,4)}, v{vA_l16}, {WS}, s{sH3m} offen sc1")
        g(f"s_cmp_gt_u32 s{sW}, 1")
        g("s_cbranch_scc1 L_A_no5b")
        g(f"v_pk_add_f32 {v(vY+16,2)}, {v(vY+16,2)}, {v(vY+18,2)}")
        g(f"v_add_f32 v{vY+16}, v{vY+16}, v{vY+17}")
        g(f"v_and_or_b32 v{vY+16}, v{vY+16}, -16, s{sP4}")
        g(f"buffer_store_dword v{vY+16}, v{vH3x}, {WS}, s{sH3l} offen sc1")
        g.lab("L_A_no5b")
        if opt.get("d3_pos", 0) == 1: d3bell()
        hb_wt()
        g.stamp(10)
        g(f"s_cmp_ge_u32 s{sA}, 36")
        g("s_cbranch_scc1 L_A_exit")
        vRd = [144, 160]
        vRw = 97
        vRa = 59
        sRa = [sO, sO3, sC, sHB]
        g(f"""
        s_lshl_b32 s{sTMP}, s{sXCD}, 2
        s_add_u32 s{sTMP}, s{sTMP}, s{sW}
        s_lshl_b32 s{sTMP}, s{sTMP}, 10
        s_add_u32 s{sTMP}, s{sTMP}, {D3}
        s_add_u32 s{sBP}, s4, s{sTMP}
        s_addc_u32 s{sBP+1}, s5, 0
        """)
        def d3poll():
            for k in range(8):
                g(f"s_load_dword s{16+k}, s[{sBP}:{sBP+1}], {k*128} glc")
        if opt.get("h3_bell", 1): d3poll()
        g(f"""
        s_lshl_b32 s{sO2}, s{sW}, 12
        s_mul_i32 s{sO3}, s{sA}, {USTR}
        s_add_u32 s{sO2}, s{sO2}, s{sO3}
        s_add_u32 s{sO2}, s{sO2}, {H3}
        """)
        def rget(part):
            for u in range(4):
                if part: g(f"buffer_load_dwordx4 {v(vRd[1]+4*u,4)}, v{vA_l16}, {WS}, s{sO2} offen offset:{u*1024} sc1")
                else: g(f"buffer_load_dwordx4 {v(vRd[0]+4*u,4)}, v{vRa}, {WS}, s{sRa[u]} offen sc1")
        if not opt.get("r_both"): rget(1)
        g(f"""
        v_and_b32 v{t0}, 7, v{vL}
        v_lshlrev_b32 v{vRw}, 6, v{t0}
        v_lshrrev_b32 v{t1}, 3, v{vL}
        v_mul_u32_u24 v{vRa}, {OSTR}, v{t1}
        v_lshl_add_u32 v{vRa}, v{t0}, 4, v{vRa}
        v_lshrrev_b32 v{t0}, 5, v{vL}
        v_lshl_add_u32 v{vRw}, v{t0}, 4, v{vRw}
        v_bfe_u32 v{t0}, v{vL}, 4, 1
        v_lshl_add_u32 v{vRw}, v{t0}, 5, v{vRw}
        v_lshl_add_u32 v{vRw}, s{sW}, 2, v{vRw}
        s_mul_i32 s{sO}, s{sW}, {32*OSTR}
        s_lshl_b32 s{sTMP}, s{sA}, 7
        s_add_u32 s{sO}, s{sO}, s{sTMP}
        s_add_u32 s{sO}, s{sO}, {OB}
        s_add_u32 s{sO3}, s{sO}, {8*OSTR}
        s_add_u32 s{sC}, s{sO}, {16*OSTR}
        s_add_u32 s{sHB}, s{sO}, {24*OSTR}
        s_mov_b32 s{sCNT}, 0
        s_branch {"L_A_d3chk" if opt.get("h3_bell", 1) else "L_A_d3go"}
        """)
        g.lab("L_A_d3poll")
        d3poll()
        spin_guard(g, "L_A_d3go")
        g.lab("L_A_d3chk")
        g("s_waitcnt lgkmcnt(0)")
        for k in range(0, 8, 2):
            g(f"s_xor_b64 s[{16+k}:{17+k}], s[{16+k}:{17+k}], s[{sTT}:{sTT+1}]")
        g("s_or_b64 s[16:17], s[16:17], s[18:19]")
        g("s_or_b64 s[20:21], s[20:21], s[22:23]")
        g("s_or_b64 s[16:17], s[16:17], s[20:21]")
        g("s_cbranch_scc1 L_A_d3poll")
        g.lab("L_A_d3go")
        g(f"s_mov_b32 s{sCNT}, 0")
        if opt.get("h3_ack", 0): g(f"s_waitcnt vmcnt({0 if opt.get('r_both') else 4})")
        if opt.get("r_both"): rget(1)
        if opt.get("st14"): g.stamp(14)
        rget(0)
        def rsum(part, waits):
            R = vRd[part]
            for u in range(4):
                if waits[u] is not None: g(f"s_waitcnt vmcnt({waits[u]})")
                for d in range(4):
                    g(f"v_xor_b32 v{R+4*u+d}, s{sP4}, v{R+4*u+d}")
                if u == 0:
                    g(f"v_or3_b32 v{vEr}, v{R}, v{R+1}, v{R+2}")
                    g(f"v_or_b32 v{vEr}, v{vEr}, v{R+3}")
                else:
                    g(f"v_pk_add_f32 {v(vY,2)}, {v(R if u == 1 else vY,2)}, {v(R+4*u,2)}")
                    g(f"v_pk_add_f32 {v(vY+2,2)}, {v(R+2 if u == 1 else vY+2,2)}, {v(R+4*u+2,2)}")
                    g(f"v_or3_b32 v{vEr}, v{vEr}, v{R+4*u}, v{R+4*u+1}")
                    g(f"v_or3_b32 v{vEr}, v{vEr}, v{R+4*u+2}, v{R+4*u+3}")
            g(f"v_permlane32_swap_b32 v{vY}, v{vY+1}")
            g(f"v_permlane32_swap_b32 v{vY+2}, v{vY+3}")
            g(f"v_and_b32 v{vEr}, 15, v{vEr}")
            g(f"v_add_f32 v{vY}, v{vY}, v{vY+1}")
            g(f"v_add_f32 v{vY+2}, v{vY+2}, v{vY+3}")
            g(f"v_cmp_ne_u32 vcc, 0, v{vEr}")
            g(f"v_permlane16_swap_b32 v{vY}, v{vY+2}")
            g(f"v_add_f32 v{vY}, v{vY}, v{vY+2}")
        def rfin(part):
            g(f"v_add_f32_dpp v{vY}, v{vY}, v{vY} row_ror:8 row_mask:0xf bank_mask:0xf")
            g(f"ds_write_b32 v{vRw}, v{vY} offset:{A_RED + part*512}")
        sPend = sM3
        rsum(1, [4, None, None, None])
        g(f"s_mov_b64 s[{sPend}:{sPend+1}], vcc")
        rfin(1)
        g.lab("L_A_r0sum")
        rsum(0, [3, 2, 1, 0])
        g("s_cbranch_vccnz L_A_r0slow")
        g.lab("L_A_r0ok")
        rfin(0)
        g(f"s_cmp_lg_u64 s[{sPend}:{sPend+1}], 0")
        g("s_cbranch_scc1 L_A_r1slow")
        g.lab("L_A_r1ok")
        g.stamp(12)
        if opt.get("stamps"):
            g(f"s_lshl_b32 s{sCNT}, s{sCNT}, 8")
            g(f"s_or_b32 s100, s100, s{sCNT}")
        g("s_waitcnt lgkmcnt(0)")
        g("s_barrier")
        g(f"s_cmp_lg_u32 s{sW}, 0")
        g("s_cbranch_scc1 L_A_exit")
        R = 144
        g(f"""
        s_mov_b32 exec_hi, 0
        ds_read_b128 {v(R,4)}, v{vA_l16} offset:{A_RED}
        ds_read_b128 {v(R+4,4)}, v{vA_l16} offset:{A_RED+512}
        v_sub_f32 v{t0}, 1.0, v{vFB}
        s_waitcnt lgkmcnt(0)
        v_pk_add_f32 {v(R,2)}, {v(R,2)}, {v(R+2,2)}
        v_pk_add_f32 {v(R+4,2)}, {v(R+4,2)}, {v(R+6,2)}
        v_add_f32 v{R}, v{R}, v{R+1}
        v_add_f32 v{R+4}, v{R+4}, v{R+5}
        v_add_f32 v{R+4}, v{R+4}, v{vB2}
        v_mul_f32 v{R+4}, v{t0}, v{R+4}
        v_fma_f32 v{R}, v{vFB}, v{R}, v{R+4}
        v_cvt_pk_bf16_f32 v{R}, v{R}, v{R}
        buffer_store_short v{R}, v{vOA}, {OUT}, 0 offen {opt.get("out_fl", "")}
        s_cmp_lg_u32 s{sA}, 0
        s_cbranch_scc1 L_A_exit
        s_mov_b64 exec, 1
        buffer_store_dwordx2 {v(vTag,2)}, v{vA_l16}, {WS}, 0 offen offset:{EPOCH} {opt.get("ep_fl", "sc1")}
        """)
        if opt.get("probe") is not None:
            i = opt["probe"]
            g.stamp(13)
            g("s_waitcnt lgkmcnt(0)")
            g(f"s_sub_u32 s{sO}, s{70+2*i}, s70")
            g(f"s_lshl_b32 s{sO}, s{sO}, 2")
            if opt.get("dcount"):
                g(f"""
                s_load_dwordx2 s[32:33], s[0:1], 104
                s_mov_b32 s34, 256
                s_mov_b32 s35, 0x00020000
                v_mov_b32 v7, {4*(opt["dcount"]-1)}
                s_waitcnt lgkmcnt(0)
                buffer_load_dword v6, v7, s[32:35], 0 offen sc1
                s_waitcnt vmcnt(0)
                v_readfirstlane_b32 s{sO}, v6
                s_mul_i32 s{sO}, s{sO}, 50
                """)
            if opt.get("resid") is not None:
                g(f"""
                s_load_dwordx2 s[32:33], s[0:1], 104
                s_mov_b32 s34, 256
                s_mov_b32 s35, 0x00020000
                v_mov_b32 v7, 0
                s_waitcnt lgkmcnt(0)
                buffer_load_dword v6, v7, s[32:35], 0 offen offset:{4*opt.get("rbin", 1)} sc1
                s_waitcnt vmcnt(0)
                s_nop 1
                v_readfirstlane_b32 s{sO}, v6
                s_mul_i32 s{sO}, s{sO}, 50
                """)
            if opt.get("clk"):
                g.lab("L_clk")
                g(f"s_memrealtime s[{sTMP}:{sTMP+1}]")
                g("s_waitcnt lgkmcnt(0)")
                g(f"s_sub_u32 s{sTMP}, s{sTMP}, s70")
                g(f"s_cmp_lt_u32 s{sTMP}, {opt['clk']}")
                g("s_cbranch_scc1 L_clk")
                g(f"s_memtime s[{sTMP}:{sTMP+1}]")
                g("s_waitcnt lgkmcnt(0)")
                g(f"s_sub_u32 s{sO}, s{sTMP}, s98")
                g(f"s_lshr_b32 s{sO}, s{sO}, 3")
            g(f"s_add_u32 s{sO}, s{sO}, 4000")
            g.lab("L_probe")
            g(f"s_memrealtime s[{sTMP}:{sTMP+1}]")
            g("s_waitcnt lgkmcnt(0)")
            g(f"s_sub_u32 s{sTMP}, s{sTMP}, s70")
            g(f"s_cmp_lt_u32 s{sTMP}, s{sO}")
            g("s_cbranch_scc1 L_probe")
            g("s_endpgm")
        g.lab("L_A_exit")
        g.stamp(13)
        dump_stamps(g, 16, 216)
        g("s_endpgm")
        if pB:
            g.lab("L_A_h0poll")
            spin_guard(g, "L_A_h0done")
            g("s_branch L_A_h0get")
        else:
            g.lab("L_A_h0poll")
            spin_guard(g, "L_A_h0done")
            g(f"s_cmp_lg_u32 s{sCNT}, 8")
            g("s_cbranch_scc1 L_A_h0ns")
            h0_wt()
            g.lab("L_A_h0ns")
            dual_next(g, sib[1:])
            h0loads()
            g("s_waitcnt vmcnt(0)")
            g("s_branch L_A_h0chk")
        g.lab("L_A_oslow")
        spin_guard(g, "L_A_ook")
        oget()
        g("s_waitcnt vmcnt(0)")
        g("s_branch L_A_ocomb")
        g.lab("L_A_hbpoll")
        spin_guard(g, "L_A_hbdone")
        g(f"s_cmp_lg_u32 s{sCNT}, 8")
        g("s_cbranch_scc1 L_A_hbns")
        hb_wt()
        g.lab("L_A_hbns")
        dual_next(g, [sO3])
        g("s_branch L_A_hbld")
        g.lab("L_A_r0slow")
        spin_guard(g, "L_A_r0ok")
        rget(0)
        g("s_branch L_A_r0sum")
        g.lab("L_A_r1slow")
        spin_guard(g, "L_A_r1ok")
        rget(1)
        rsum(1, [3, 2, 1, 0])
        g("s_cbranch_vccnz L_A_r1slow")
        rfin(1)
        g("s_branch L_A_r1ok")

class RoleB:
    def __init__(self, g, NT, vL, vN, vG):
        self.g, self.NT, self.vL, self.vN, self.vG = g, NT, vL, vN, vG

    def issue(self):
        g, vL = self.g, self.vL
        if g.opt.get("p1a_on") == "B":
            vN, vG, NT = self.vN, self.vG, self.NT
            srd_tail(g, 12, 576 * 8192)
            srd_tail(g, 8, 2304)
            g(f"""
            s_lshr_b32 s{sC}, s{sI}, 2
            s_lshl_b32 s{sC}, s{sC}, 3
            s_add_u32 s{sC}, s{sC}, s{sXCD}
            s_and_b32 s{sO}, s{sI}, 3
            v_mul_u32_u24 v5, {36*8192}, v{vG}
            v_lshl_add_u32 v5, v{vN}, 4, v5
            s_lshl_b32 s{sO2}, s{sO}, 4
            s_add_u32 s{sO2}, s{sO2}, s{sW}
            s_mul_i32 s{sO2}, s{sO2}, 9
            s_lshl_b32 s{sO3}, s{sO2}, 13
            s_lshl_b32 s{sTMP}, s{sC}, 8
            s_add_u32 s{sO3}, s{sO3}, s{sTMP}
            v_bfe_u32 v4, v{vL}, 3, 1
            v_mul_u32_u24 v4, 1152, v4
            v_mad_u32_u24 v4, v{vG}, 64, v4
            v_lshl_add_u32 v4, v{vG}, 3, v4
            s_lshr_b32 s{sO2}, s{sO2}, 1
            s_lshl_b32 s{sO2}, s{sO2}, 2
            s_waitcnt lgkmcnt(0)
            buffer_load_dwordx4 v[64:67], v4, {X}, s{sO2} offen
            buffer_load_dword v68, v4, {X}, s{sO2} offen offset:16
            """)
            for i in range(9):
                g(f"buffer_load_dwordx4 {A(4*i,4)}, v5, s[12:15], s{sO3} offen {NT}")
                if i != 8: g(f"s_addk_i32 s{sO3}, 0x2000")
            load_tag(g)
            g(f"""
            s_lshl_b32 s{sC}, s{sC}, 2
            s_add_u32 s{sC}, s{sC}, s{sO}
            s_lshl_b32 s{sC}, s{sC}, 10
            s_add_u32 s{sC}, s{sC}, {H0}
            """)
            return
        if g.opt.get("numa"):
            PFL = g.opt.get("pf_lines", 4)
            srd_tail(g, 28, 2 * 4096 * 1024)
            g(f"""
            s_and_b32 s{sMSG}, s{sXCD}, 1
            s_lshl_b32 s{sMSG}, s{sMSG}, 4
            s_and_b32 s{sO3}, s{sI}, 14
            s_add_u32 s{sMSG}, s{sMSG}, s{sO3}
            s_bfe_u32 s{sO3}, s{sXCD}, 0x10001
            s_add_u32 s{sMSG}, s{sMSG}, s{sO3}
            s_lshl_b32 s{sO3}, s{sMSG}, 18
            s_and_b32 s{sC}, s{sI}, 1
            s_lshl_b32 s{sC}, s{sC}, 8
            s_add_u32 s{sO3}, s{sO3}, s{sC}
            s_add_u32 s{sC}, s{sO3}, 0x2000
            v_lshlrev_b32 v4, 7, v{vL}
            {"" if g.opt.get("tlb") else "s_waitcnt lgkmcnt(0)"}
            s_cmp_lg_u32 s{sW}, 3
            s_cbranch_scc1 L_B_nopr
            {"s_memtime s[16:17]" if g.opt.get("dcount") else ""}
            {"s_waitcnt lgkmcnt(0)" if g.opt.get("dcount") else ""}
            s_mov_b64 exec, {(1 << g.opt.get("plines", 1)) - 1}
            {"v_lshlrev_b32 v8, 14, v1" if g.opt.get("plines", 1) > 1 else "v_mov_b32 v8, 0"}
            {f"buffer_load_dword v60, v8, s[28:31], s{sO3} offen offset:2048" if g.opt.get("pwarm") else ""}
            {f"buffer_load_dword v61, v8, s[28:31], s{sC} offen offset:2048" if g.opt.get("pwarm") else ""}
            {"s_waitcnt vmcnt(0) lgkmcnt(0)" if g.opt.get("pwarm") else ""}
            buffer_load_dword v60, v8, s[28:31], s{sO3} offen
            buffer_load_dword v61, v8, s[28:31], s{sC} offen
            s_mul_i32 s{sTMP}, s{sI}, {2*PFL*128}
            s_mov_b64 exec, {(1 << (2*PFL)) - 1}
            v_add_u32 v5, s{sTMP}, v4
            global_load_dword v63, v5, s[{sPC}:{sPC+1}]
            s_lshr_b32 s{sO}, s{sI}, 2
            s_lshl_b32 s{sO}, s{sO}, 3
            s_add_u32 s{sO}, s{sO}, s{sXCD}
            s_lshl_b32 s{sO}, s{sO}, 2
            s_and_b32 s{sO2}, s{sI}, 3
            s_add_u32 s{sO}, s{sO}, s{sO2}
            s_lshl_b32 s{sO2}, s{sO}, 11
            s_add_u32 s{sO2}, s{sO2}, {H0+LOC}
            s_mov_b64 exec, 0xffff
            buffer_load_dword v62, v4, {WS}, s{sO2} offen
            s_lshl_b32 s{sO}, s{sO}, 10
            s_add_u32 s{sO2}, s{sO}, {HB+LOC}
            s_mov_b64 exec, 0xff
            buffer_load_dword v62, v4, {WS}, s{sO2} offen
            s_add_u32 s{sO2}, s{sO}, {D3}
            buffer_load_dword v62, v4, {WS}, s{sO2} offen
            s_mov_b64 exec, -1
            s_waitcnt vmcnt(5)
            s_memtime s[34:35]
            s_waitcnt vmcnt(4)
            s_memtime s[38:39]
            s_waitcnt lgkmcnt(0)
            s_sub_u32 s38, s38, s34
            s_cmp_lt_u32 s38, {g.opt.get("gap", 100)}
            s_cselect_b32 s{sO3}, 1, 0
            v_mov_b32 v6, s{sO3}
            v_mov_b32 v7, {B_PHI}
            ds_write_b32 v7, v6
            s_waitcnt lgkmcnt(0)
            """)
            if g.opt.get("stamps"): g("s_mov_b32 s88, s38")
            if g.opt.get("dcount"):
                g(f"""
                s_load_dwordx2 s[20:21], s[0:1], 104
                s_mov_b32 s22, 256
                s_mov_b32 s23, 0x00020000
                s_sub_u32 s16, s34, s16
                s_lshr_b32 s16, s16, 8
                s_min_u32 s16, s16, 7
                s_lshl_b32 s16, s16, 2
                s_lshr_b32 s17, s38, 6
                s_min_u32 s17, s17, 6
                s_lshl_b32 s17, s17, 2
                s_add_u32 s17, s17, 32
                v_mov_b32 v6, 1
                v_mov_b32 v7, 0
                s_waitcnt lgkmcnt(0)
                s_mov_b64 exec, 1
                buffer_atomic_add v6, v7, s[20:23], s16 offen sc1
                buffer_atomic_add v6, v7, s[20:23], s17 offen sc1
                s_mov_b64 exec, -1
                """)
            g.lab("L_B_nopr")
            return
        g(f"""
        s_lshr_b32 s{sO}, s{sI}, 2
        s_lshl_b32 s{sO}, s{sO}, 3
        s_add_u32 s{sO}, s{sO}, s{sXCD}
        s_lshl_b32 s{sO}, s{sO}, 2
        s_and_b32 s{sO2}, s{sI}, 3
        s_add_u32 s{sO}, s{sO}, s{sO2}
        s_lshl_b32 s{sO2}, s{sO}, 11
        s_add_u32 s{sO2}, s{sO2}, {H0+LOC}
        s_lshl_b32 s{sO}, s{sO}, 10
        s_add_u32 s{sO}, s{sO}, {HB+LOC}
        s_cmp_eq_u32 s{sW}, 1
        s_cselect_b32 s{sO}, s{sO}, s{sO2}
        s_lshl_b32 s{sO2}, s{sXCD}, 4
        s_add_u32 s{sO2}, s{sO2}, s{sI}
        s_lshl_b32 s{sO2}, s{sO2}, 10
        s_add_u32 s{sO2}, s{sO2}, {D3}
        s_cmp_eq_u32 s{sW}, 2
        s_cselect_b32 s{sO}, s{sO2}, s{sO}
        s_cselect_b32 s{sTMP}, 0xff, -1
        s_and_b32 s{sTMP}, s{sTMP}, 0xffff
        s_mov_b32 s{sTMP+1}, 0
        v_lshlrev_b32 v4, 7, v{vL}
        """)
        if not g.opt.get("tlb"): g("s_waitcnt lgkmcnt(0)")
        if g.opt.get("uk_help"):
            srd_tail(g, 16, 512 * 8192)
            g(f"""
            v_lshlrev_b32 v6, 13, v{self.vG}
            v_lshl_add_u32 v6, v{self.vN}, 4, v6
            s_and_b32 s{sO3}, s{sI}, 3
            s_lshl_b32 s{sO3}, s{sO3}, 2
            s_add_u32 s{sO3}, s{sO3}, s{sW}
            s_lshl_b32 s{sO3}, s{sO3}, 18
            s_lshr_b32 s{sC}, s{sI}, 2
            s_lshl_b32 s{sC}, s{sC}, 3
            s_add_u32 s{sC}, s{sC}, s{sXCD}
            s_lshl_b32 s{sC}, s{sC}, 8
            s_add_u32 s{sO3}, s{sO3}, s{sC}
            """)
            for k in range(8):
                g(f"buffer_load_dwordx4 {A(252,4)}, v6, s[16:19], s{sO3} offen")
                if k < 7: g(f"s_add_u32 s{sO3}, s{sO3}, 0x8000")
        load_tag(g)
        g(f"""
        {"s_cmp_lg_u32" if g.opt.get("split") else "s_cmp_gt_u32"} s{sW}, 2
        s_cbranch_scc1 L_B_head
        s_mov_b64 exec, s[{sTMP}:{sTMP+1}]
        buffer_load_dword v62, v4, {WS}, s{sO} offen
        s_mov_b64 exec, -1
        """)

    def rest(self):
        g, NT, vL, vN, vG = self.g, self.NT, self.vL, self.vN, self.vG
        opt = g.opt
        CKV, W2, B1, W1 = "s[28:31]", "s[20:23]", "s[24:27]", "s[16:19]"
        t0, t1, t2, t3 = 4, 5, 6, 7
        vL16 = 12
        vOa = 13
        vH3, vH3x = 14, 15
        vB1 = 22
        vSB = 24
        vQBs = 28
        vPVb = 16
        vTag = 36
        vML = 34
        vMXw, vMXr = 38, 39
        vD2a = 40
        vPw = 41
        vP2 = 42
        vT20, vT21, vK20, vK21 = 52, 53, 54, 55
        vHg, vHw = 56, 57
        vHe, vHo, vHke, vHko = 58, 59, 60, 61
        vQd = 8
        aS, aP = 0, 128
        sOo = 61
        sH3m, sH3l = 62, 63
        sD2, sGot = 59, 58
        sBP, sTT = 34, sPC
        sQg = 33
        sPat, sMk = 32, 36
        srd_tail(g, 28, 2 * 4096 * 1024)
        vW1, vW2 = 168, 212
        vXr = 64
        vSel = 88
        vXA = 96
        vW1a, vHs = 164, 165
        sRho, sBlk, sR0 = 38, 39, 56
        numa = opt.get("numa", 0)
        sCk = 37
        if numa:
            assert not opt.get("ckv_x", 1)
            sPhi, sDP = 38, 18
            def ckv_base():
                g(f"""
                s_lshl_b32 s{sCk}, s{sMSG}, 2
                s_add_u32 s{sCk}, s{sCk}, s{sW}
                s_lshl_b32 s{sCk}, s{sCk}, 3
                s_add_u32 s{sCk}, s{sCk}, s{sPhi}
                s_lshl_b32 s{sCk}, s{sCk}, 13
                s_lshl_b32 m0, s{sW}, 15
                s_add_u32 m0, m0, {B_CKV}
                """)
            def phi_get():
                g(f"""
                v_mov_b32 v{t0}, {B_PHI}
                s_barrier
                ds_read_b32 v{t1}, v{t0}
                s_waitcnt lgkmcnt(0)
                v_readfirstlane_b32 s{sPhi}, v{t1}
                """)
                if opt.get("numa_force") is not None: g(f"s_xor_b32 s{sPhi}, s{sPhi}, {opt['numa_force']}")
                ckv_base()
            g(f"s_and_b32 s{sB}, s{sXCD}, 1")
            g(f"v_lshlrev_b32 v{vL16}, 4, v{vL}")
            phi_get()
            load_tag(g)
        else:
            g(f"""
            s_and_b32 s{sB}, s{sXCD}, 1
            s_lshr_b32 s{sMSG}, s{sI}, 1
            s_lshl_b32 s{sMSG}, s{sMSG}, 2
            s_lshr_b32 s{sO}, s{sXCD}, 1
            s_add_u32 s{sMSG}, s{sMSG}, s{sO}
            s_lshl_b32 s{sO}, s{sB}, 5
            s_add_u32 s{sMSG}, s{sMSG}, s{sO}
            v_lshlrev_b32 v{vL16}, 4, v{vL}
            """)
            sCk = 37
            g(f"""
            s_lshl_b32 s{sCk}, s{sMSG}, 2
            s_add_u32 s{sCk}, s{sCk}, s{sW}
            s_lshl_b32 s{sCk}, s{sCk}, 15
            s_lshl_b32 m0, s{sW}, 15
            s_add_u32 m0, m0, {B_CKV}
            """)
            if opt.get("ckv_x", 1):
                g(f"s_and_b32 s{sGot}, s{sI}, 1")
                g(f"s_lshl_b32 s{sGot}, s{sGot}, 14")
                g(f"s_add_u32 s{sCk}, s{sCk}, s{sGot}")
                g(f"s_lshl_b32 s{sGot}, s{sGot}, 1")
        rot = opt.get("ckv_rot", 0)
        sCb = 57
        if rot:
            assert not numa and not opt.get("ckv_x", 1)
            g(f"""
            s_mov_b32 s{sCb}, s{sCk}
            s_lshl_b32 s{sGot}, s{sW}, 1
            s_add_u32 s{sGot}, s{sGot}, s{sMSG}
            """)
            if rot == 2:
                g(f"s_lshl_b32 s{sTMP}, s{sI}, 2")
                g(f"s_add_u32 s{sGot}, s{sGot}, s{sTMP}")
            g(f"""
            s_and_b32 s{sGot}, s{sGot}, 7
            s_lshl_b32 s{sGot}, s{sGot}, 12
            s_add_u32 s{sCk}, s{sCb}, s{sGot}
            """)
        def ckv_stream(k0, k1):
            thr = opt.get("ckv_thr")
            for k in range(k0, k1):
                f = f16sw(k & 15)
                tmp = t0 + (k & 1)
                g(f"v_xor_b32 v{tmp}, {f*16}, v{vL16}")
                if thr is not None: g(f"s_waitcnt vmcnt({thr-1})")
                g(f"buffer_load_dwordx4 v{tmp}, {CKV}, s{sCk} offen offset:{(k%4)*1024} {opt.get('nt_c', NT)} lds")
                if k % 4 == 3:
                    if rot:
                        g(f"s_addk_i32 s{sGot}, 0x1000")
                        g(f"s_and_b32 s{sGot}, s{sGot}, 0x7000")
                        g(f"s_add_u32 s{sCk}, s{sCb}, s{sGot}")
                    else:
                        g(f"s_addk_i32 s{sCk}, {0x3000 if (numa and k % 8 == 7) else 0x1000}")
                    g(f"s_add_u32 m0, m0, 0x1000")
                if k == 15 and opt.get("ckv_x", 1): g(f"s_sub_u32 s{sCk}, s{sCk}, s{sGot}")
        c1_, c2_ = opt.get("ckv_a", 0), opt.get("ckv_b", 0)
        g.stamp(13)
        ckv_stream(0, c1_)
        g.l.append(";;SPLIT")
        pB = opt.get("p1a_on") == "B"
        if pB:
            vX, vSl, vF, vQp = 64, 72, 80, 116
            selectors(g, vSl, vL, t0, t1, t2)
            g(f"s_and_b32 s{sO}, s{sW}, 1")
            g(f"s_lshl_b32 s{sO}, s{sO}, 4")
            g(f"""
            s_cmp_lg_u32 s{sW}, 2
            s_cbranch_scc1 L_B_nt
            s_lshl_b32 s{sO2}, s{sXCD}, 4
            s_add_u32 s{sO2}, s{sO2}, s{sI}
            s_lshl_b32 s{sO2}, s{sO2}, 10
            s_add_u32 s{sO2}, s{sO2}, {D3}
            v_lshlrev_b32 v{t0}, 7, v{vL}
            s_mov_b64 exec, 0xff
            buffer_load_dword v62, v{t0}, {WS}, s{sO2} offen
            s_mov_b64 exec, -1
            """)
            g.lab("L_B_nt")
            g(f"s_waitcnt vmcnt({9+c1_})")
            for k in range(5):
                g(f"v_alignbit_b32 v{vX+k}, v{vX+k+1}, v{vX+k}, s{sO}")
            for i in range(9):
                for d in range(4):
                    g(f"v_perm_b32 v{vF+4*i+d}, v{vX+(i>>1)}, v{vX+(i>>1)}, v{vSl+4*(i&1)+d}")
            cm = opt.get("ckv_m", 0)
            c0 = c1_
            for i in range(9):
                g(f"s_waitcnt vmcnt({8-i+c1_})")
                g(f"{MF} {v(vQp,4)}, {v(vF+4*i,4)}, {A(4*i,4)}, {'0' if i == 0 else v(vQp,4)}")
                if i >= 9 - cm:
                    ckv_stream(c1_, c1_ + 1); c1_ += 1
            g(f"s_cmp_eq_u32 s{sW}, 0")
            g("s_cbranch_scc1 L_B_w0a")
            g(f"v_lshl_add_u32 v{t2}, s{sW}, 10, v{vL16}")
            g(f"ds_write_b128 v{t2}, {v(vQp,4)} offset:{B_PB}")
            g("s_waitcnt lgkmcnt(0)")
            g("s_barrier")
            g("s_branch L_B_w0b")
            g.lab("L_B_w0a")
            g("s_waitcnt lgkmcnt(0)")
            g(f"s_add_u32 s{sO}, s{sT}, {K0}")
            g(f"s_and_b32 s{sO}, s{sO}, 15")
            g("s_barrier")
            for k in range(3):
                g(f"ds_read_b128 {v(vF+4*k,4)}, v{vL16} offset:{B_PB+(k+1)*1024}")
            g("s_waitcnt lgkmcnt(1)")
            g(f"v_pk_add_f32 {v(vQp,2)}, {v(vQp,2)}, {v(vF,2)}")
            g(f"v_pk_add_f32 {v(vQp+2,2)}, {v(vQp+2,2)}, {v(vF+2,2)}")
            g("s_waitcnt lgkmcnt(0)")
            g(f"v_pk_add_f32 {v(vF+4,2)}, {v(vF+4,2)}, {v(vF+8,2)}")
            g(f"v_pk_add_f32 {v(vF+6,2)}, {v(vF+6,2)}, {v(vF+10,2)}")
            g(f"v_pk_add_f32 {v(vQp,2)}, {v(vQp,2)}, {v(vF+4,2)}")
            g(f"v_pk_add_f32 {v(vQp+2,2)}, {v(vQp+2,2)}, {v(vF+6,2)}")
            for r in range(4):
                g(f"v_and_or_b32 v{vQp+r}, v{vQp+r}, -16, s{sO}")
            g(f"buffer_store_dwordx4 {v(vQp,4)}, v{vL16}, {WS}, s{sC} offen sc1")
            g.lab("L_B_w0b")
            g.stamp(9)
            cq = opt.get("ckv_q", 0)
            ckv_stream(c1_, c1_ + cq); c1_ += cq
        srd(g, 20, 9, 4608 * 1152)
        srd(g, 24, 8, 9216)
        if opt.get("w1_on") == "B":
            srd(g, 16, 7, 576 * 9216)
            srd_tail(g, 8, 2304)
        g(f"""
        s_and_b32 s{sHG}, s{sI}, 1
        s_lshl_b32 s{sU2}, s{sXCD}, 4
        s_add_u32 s{sU2}, s{sU2}, s{sI}
        s_mov_b32 s{sPR}, s{sU2}
        s_mov_b32 s{sPOI}, {POISON}
        v_mul_u32_u24 v{vOa}, {16*OSTR}, v{vG}
        v_lshl_add_u32 v{vOa}, v{vN}, 4, v{vOa}
        """)
        def msg_addr():
            g(f"""
        s_lshl_b32 s{sOo}, s{sHG}, 6
        s_add_u32 s{sOo}, s{sOo}, s{sW}
        s_mul_i32 s{sOo}, s{sOo}, {OSTR}
        s_lshl_b32 s{sO}, s{sMSG}, 8
        s_add_u32 s{sOo}, s{sOo}, s{sO}
        s_add_u32 s{sOo}, s{sOo}, {OB}
        s_lshl_b32 s{sD2}, s{sHG}, 6
        s_add_u32 s{sD2}, s{sD2}, s{sMSG}
        s_lshl_b32 s{sD2}, s{sD2}, 8
        s_add_u32 s{sD2}, s{sD2}, {D2}
            """)
        if not numa: msg_addr()
        h3_addr(g, vH3, vH3x, vL, vN, vG, t0)
        h3_soffs(g, sH3m, sH3l)
        def fsw(dst, src, tmp):
            g(f"v_lshrrev_b32 v{tmp}, 3, v{src}")
            g(f"v_and_b32 v{dst}, 7, v{src}")
            g(f"v_lshl_add_u32 v{dst}, v{dst}, 1, v{tmp}")
            g(f"v_lshlrev_b32 v{tmp}, 3, v{tmp}")
            g(f"v_xor_b32 v{dst}, v{dst}, v{tmp}")
        fsw(t2, vN, t3)
        g(f"""
        v_xor_b32 v{t2}, v{t2}, v{vG}
        v_lshlrev_b32 v{t2}, 4, v{t2}
        v_lshl_add_u32 v{t2}, v{vN}, 10, v{t2}
        s_lshl_b32 s{sO}, s{sW}, 15
        s_add_u32 s{sO}, s{sO}, {B_CKV}
        """)
        assert B_QF == 0
        for q in range(4):
            g(f"v_xor_b32 v{vQBs+q}, {q*64}, v{t2}")
            g(f"v_add_u32 v{vSB+q}, s{sO}, v{vQBs+q}")
        g(f"v_lshrrev_b32 v{t0}, 2, v{vL}")
        fsw(t2, t0, t3)
        g(f"""
        v_bfe_u32 v{t3}, v{vL}, 1, 1
        v_xor_b32 v{t2}, v{t2}, v{t3}
        v_lshlrev_b32 v{t1}, 10, v{t0}
        v_lshl_add_u32 v{t1}, v{t2}, 4, v{t1}
        v_and_b32 v{t3}, 1, v{vL}
        v_lshl_add_u32 v{t1}, v{t3}, 3, v{t1}
        v_lshl_add_u32 v{t1}, s{sW}, 8, v{t1}
        """)
        for k in range(4):
            g(f"s_add_u32 s{sO}, s{sW}, {k}")
            g(f"s_and_b32 s{sO}, s{sO}, 3")
            g(f"v_lshl_add_u32 v{[vPw,20,21,23][k]}, s{sO}, 10, v{vL16}")
            g(f"s_lshl_b32 s{sO}, s{sO}, 15")
            g(f"s_add_u32 s{sO}, s{sO}, {B_CKV}")
            g(f"v_add_u32 v{vPVb+k}, s{sO}, v{t1}")
        for k in range(opt.get("pv_pre", 4), 4):
            for ct in range(8):
                g(f"v_xor_b32 v{(212 if opt.get('w1_on') == 'B' else 168)+8*k+ct}, {ct<<5}, v{vPVb+k}")
        g(f"""
        v_lshlrev_b32 v{vMXr}, 4, v{vN}
        v_lshl_add_u32 v{vMXw}, v{vG}, 2, v{vMXr}
        v_lshl_add_u32 v{vMXw}, s{sW}, 8, v{vMXw}
        s_lshl_b32 s{sQg}, s{sB}, 1
        s_add_u32 s{sQg}, s{sQg}, s{sHG}
        s_lshl_b32 s{sQg}, s{sQg}, 2
        s_add_u32 s{sQg}, s{sQg}, s{sW}
        s_lshl_b32 s{sQg}, s{sQg}, 12
        s_add_u32 s{sQg}, s{sQg}, {QB}
        s_lshr_b32 s{sTMP}, s{sW}, 1
        s_xor_b32 s{sTMP+1}, s{sW}, s{sTMP}
        s_and_b32 s{sTMP+1}, s{sTMP+1}, 1
        s_lshl_b32 s{sTMP+1}, s{sTMP+1}, 3
        s_add_u32 s{sTMP}, s{sTMP}, s{sTMP+1}
        s_lshl_b32 s{sTMP}, s{sTMP}, 4
        v_xor_b32 v{vQd}, s{sTMP}, v{vL16}
        v_xor_b32 v{vQd+1}, 32, v{vQd}
        v_xor_b32 v{vQd+2}, 64, v{vQd}
        v_xor_b32 v{vQd+3}, 0x60, v{vQd}
        v_mov_b32 v{t0}, 0
        v_lshlrev_b32 v{t1}, 2, v{vL}
        s_mov_b32 exec_hi, 0
        ds_write_b32 v{t1}, v{t0} offset:{B_ZERO}
        s_mov_b64 exec, -1
        s_lshl_b32 s{sTMP}, s{sXCD}, 3
        s_lshl_b32 s{sTMP+1}, s{sHG}, 2
        s_add_u32 s{sTMP}, s{sTMP}, s{sTMP+1}
        s_add_u32 s{sTMP}, s{sTMP}, s{sW}
        s_lshl_b32 s{sTMP}, s{sTMP}, 9
        s_add_u32 s{sTMP}, s{sTMP}, {D1}
        s_add_u32 s{sBP}, s4, s{sTMP}
        s_addc_u32 s{sBP+1}, s5, 0
        """)
        if not numa: g.stamp(14)
        ckv_stream(c1_, c1_ + c2_)
        for i in range(10):
            unit_pattern(g, vP2 + i, vL, sW if i == 9 else None, i, 1152, t0, t1)
        tr_pair_bases(g, vT20, vT21, vK20, vK21, vL, B_W2, t0, t1, t2)
        g(f"""
        v_bfe_u32 v{t0}, v{vL}, 2, 1
        v_lshlrev_b32 v{t0}, 7, v{t0}
        v_add_u32 v{t0}, {B_HL}, v{t0}
        v_lshl_add_u32 v{t1}, v{vG}, 3, v{t0}
        v_add_u32 v{t0}, 64, v{t0}
        v_mov_b32 v{t2}, {B_ZERO}
        v_cmp_gt_u32 vcc, 8, v{vN}
        v_cndmask_b32 v{vHe}, v{t2}, v{t1}, vcc
        v_cndmask_b32 v{vHo}, v{t1}, v{t2}, vcc
        v_lshrrev_b32 v{t1}, 3, v{vL}
        v_cmp_eq_u32 vcc, 0, v{t1}
        v_cndmask_b32 v{vHke}, v{t2}, v{t0}, vcc
        v_cmp_eq_u32 vcc, 1, v{t1}
        v_cndmask_b32 v{vHko}, v{t2}, v{t0}, vcc
        """)
        finish_tag(g)
        g(f"""
        v_mov_b32 v{vTag}, s{sT}
        v_mov_b32 v{vTag+1}, s{sT+1}
        s_bitcmp1_b32 s{sT}, 0
        s_cselect_b32 s{sPat}, 1, 0x10000
        v_mov_b32 v{vML+1}, s{sPat}
        s_mov_b32 s{sMk}, 0xfffefffe
        s_mov_b32 s{sTT}, s{sT}
        s_mov_b32 s{sTT+1}, s{sT}
        """)
        vPat = 33
        g(f"v_mov_b32 v{vPat}, s{sPat}")
        w1b = opt.get('w1_on') == 'B'
        if w1b:
            g(f"""
            s_lshl_b32 s{sO}, s{sU2}, 2
            s_add_u32 s{sO}, s{sO}, s{sW}
            s_mul_i32 s{sRho}, s{sO}, 1821
            s_lshr_b32 s{sRho}, s{sRho}, 16
            s_mul_i32 s{sTMP}, s{sRho}, 36
            s_sub_u32 s{sBlk}, s{sO}, s{sTMP}
            s_min_u32 s{sTMP}, s{sRho}, 4
            s_mul_i32 s{sR0}, s{sRho}, 10
            s_add_u32 s{sR0}, s{sR0}, s{sTMP}
            s_lshl_b32 s{sR0}, s{sR0}, 2
            v_bfe_u32 v{t0}, v{vL}, 3, 1
            v_mul_u32_u24 v{t0}, 1152, v{t0}
            s_lshl_b32 s{sO}, s{sR0}, 1
            """)
            assert all((i * 1821) >> 16 == i // 36 for i in range(512))
            for k in range(5):
                g(f"buffer_load_dwordx4 {v(vXr+4*k,4)}, v{t0}, {X}, s{sO} offen offset:{16*k}")
            g(f"buffer_load_dwordx2 {v(vXr+20,2)}, v{t0}, {X}, s{sO} offen offset:80")
            g(f"""
            v_mul_u32_u24 v{vW1a}, 9216, v{vG}
            v_lshl_add_u32 v{vW1a}, v{vN}, 4, v{vW1a}
            v_lshrrev_b32 v{t0}, 5, v{vL}
            v_mul_u32_u24 v{vHs}, 18432, v{t0}
            v_and_b32 v{t0}, 31, v{vL}
            v_lshl_add_u32 v{vHs}, v{t0}, 4, v{vHs}
            v_mul_u32_u24 v{t0}, 0x0202, v{vG}
            v_add_u32 v{t0}, 0x0100, v{t0}
            v_and_b32 v{t1}, 1, v{vL}
            v_lshlrev_b32 v{t1}, 4, v{t1}
            v_lshlrev_b32 v{t0}, v{t1}, v{t0}
            v_mov_b32 v{t2}, 0x0c0c0000
            v_lshrrev_b32 v{t2}, v{t1}, v{t2}
            v_or_b32 v{t0}, v{t0}, v{t2}
            v_bfe_u32 v{t1}, v{vL}, 1, 2
            v_mov_b32 v{t2}, 0x0c0c0c0c
            """)
            for d in range(4):
                g(f"v_cmp_eq_u32 vcc, {d}, v{t1}")
                g(f"v_cndmask_b32 v{vSel+d}, v{t2}, v{t0}, vcc")
        g(f"""
        v_lshrrev_b32 v{t0}, 5, v{vL}
        v_bfe_u32 v{t1}, v{vL}, 4, 1
        v_lshl_add_u32 v{t0}, v{t1}, 1, v{t0}
        v_lshl_add_u32 v{t0}, v{vN}, 2, v{t0}
        v_lshlrev_b32 v{t0}, 1, v{t0}
        s_mul_i32 s{sO}, s{sU2}, 72
        buffer_load_ushort v{vB1}, v{t0}, {B1}, s{sO} offen
        v_lshl_add_u32 v{vHw}, s{sW}, 7, v{t0}
        s_mul_i32 s{sO}, s{sU2}, 9
        v_add_u32 v{t0}, s{sO}, v{vN}
        v_and_b32 v{t1}, 1, v{t0}
        v_lshlrev_b32 v{t1}, 8, v{t1}
        v_bfe_u32 v{t2}, v{t0}, 1, 4
        v_lshl_add_u32 v{t1}, v{t2}, 4, v{t1}
        v_lshrrev_b32 v{t2}, 5, v{t0}
        v_lshl_add_u32 v{t1}, v{t2}, 9, v{t1}
        v_mul_u32_u24 v{vHg}, 36864, v{vG}
        v_add_u32 v{vHg}, v{vHg}, v{t1}
        """)
        for k in range(4):
            g(f"s_load_dwordx4 s[{[8,12,24,52][k]}:{[8,12,24,52][k]+3}], s[{sBP}:{sBP+1}], {k*128} glc")
        assert c1_ + c2_ <= 16
        if opt.get("b_sleep"): g(f"s_sleep {opt['b_sleep']}")
        if numa:
            g(f"""
            s_lshl_b32 s{sO}, s{sMSG}, 1
            s_add_u32 s{sO}, s{sO}, s{sHG}
            s_lshl_b32 s{sO}, s{sO}, 7
            s_add_u32 s{sO}, s{sO}, {DP}
            s_add_u32 s{sDP}, s4, s{sO}
            s_addc_u32 s{sDP+1}, s5, 0
            s_lshr_b32 s{sTMP}, s{sXCD}, 2
            s_or_b32 s{sTMP}, s{sTMP}, s{sW}
            s_cmp_lg_u32 s{sTMP}, 0
            s_cbranch_scc1 L_B_noann
            s_xor_b32 s{sTMP}, s{sT+1}, s{sPhi}
            v_mov_b32 v{t0}, s{sT}
            v_mov_b32 v{t1}, s{sTMP}
            v_lshlrev_b32 v{t2}, 3, v{vL}
            s_mov_b64 exec, 0xffff
            buffer_store_dwordx2 {v(t0,2)}, v{t2}, {WS}, s{sO} offen sc1
            s_mov_b64 exec, -1
            """)
            g.lab("L_B_noann")
        g.stamp(8)
        ckv_stream(c1_ + c2_, 32)
        if numa:
            g(f"""
            s_cmp_lt_u32 s{sXCD}, 4
            s_cbranch_scc1 L_B_phok
            s_mov_b32 s{sCNT}, 0
            """)
            g.lab("L_B_phpoll")
            g(f"s_load_dwordx2 s[16:17], s[{sDP}:{sDP+1}], 0 glc")
            spin_guard(g, "L_B_phok")
            g(f"""
            s_waitcnt lgkmcnt(0)
            s_xor_b64 s[16:17], s[16:17], s[{sT}:{sT+1}]
            s_lshr_b32 s{sTMP}, s17, 1
            s_or_b32 s{sTMP}, s{sTMP}, s16
            s_cbranch_scc1 L_B_phpoll
            s_cmp_lg_u32 s17, s{sPhi}
            s_cbranch_scc1 L_B_phok
            s_branch L_B_refetch
            """)
            g.lab("L_B_phok")
            g(f"s_lshl_b32 s{sMSG}, s{sMSG}, 1")
            g(f"s_add_u32 s{sMSG}, s{sMSG}, s{sPhi}")
            msg_addr()
            if opt.get("stamps"): g(f"s_mov_b32 s98, s{sPhi}")
        NW1 = 0 if "w1" in opt.get("skip", "") else 11
        w1pos = opt.get("w1_pos", 0)
        def w1_stream():
            if "w1" in opt.get("skip", ""): return
            g(f"s_mul_i32 s{sO2}, s{sR0}, 9216")
            g(f"s_lshl_b32 s{sO3}, s{sBlk}, 8")
            g(f"s_add_u32 s{sO2}, s{sO2}, s{sO3}")
            for i in range(11):
                g(f"buffer_load_dwordx4 {v(vW1+4*i,4)}, v{vW1a}, {W1}, s{sO2} offen {NT}")
                if i < 10: g(f"s_add_u32 s{sO2}, s{sO2}, {4*9216}")
                if i == 9:
                    g(f"s_cmp_ge_u32 s{sRho}, 4")
                    g(f"s_cselect_b32 s{sO2}, {576*9216}, s{sO2}")
        def w1_gemv(store=True):
            vH = 140
            for i in range(10):
                g(f"{MF} {v(vH,4)}, {v(vXA+4*i,4)}, {v(vW1+4*i,4)}, {'0' if i == 0 else v(vH,4)}")
            g(f"s_cmp_ge_u32 s{sRho}, 4")
            g("s_cbranch_scc1 L_B_w1s")
            g(f"{MF} {v(vH,4)}, {v(vXA+40,4)}, {v(vW1+40,4)}, {v(vH,4)}")
            g.lab("L_B_w1s")
            g(f"""
            s_mul_i32 s{sO}, s{sRho}, 36864
            s_lshl_b32 s{sO3}, s{sBlk}, 9
            s_add_u32 s{sO}, s{sO}, s{sO3}
            s_add_u32 s{sO}, s{sO}, {HH}
            s_and_b32 s{sO3}, s{sT}, 15
            """)
            for r in range(4):
                g(f"v_and_or_b32 v{vH+r}, v{vH+r}, -16, s{sO3}")
            g(f"s_mov_b32 s{sR0}, s{sO}")
        def w2_stream():
            g(f"s_mul_i32 s{sO2}, s{sU2}, {36*1152}")
            unit_load(g, W2, vP2, None, sO2, 1152, "w2", NT, vdst=vW2, w0extra=False)
        NW1 = 0
        w1s = w1b and opt.get("w1_sc", 0)
        if w1s: vXA = 212
        w1p = opt.get("w1_pre", 0)
        sW1o = 57
        def w1one(i):
            g(f"buffer_load_dwordx4 {v(vW1+4*i,4)}, v{vW1a}, {W1}, s{sW1o} offen {NT}")
            if i < 10: g(f"s_add_u32 s{sW1o}, s{sW1o}, {4*9216}")
            if i == 9:
                g(f"s_cmp_ge_u32 s{sRho}, 4")
                g(f"s_cselect_b32 s{sW1o}, {576*9216}, s{sW1o}")
        def w1_base(i0):
            g(f"s_add_u32 s{sW1o}, s{sR0}, {4*i0}")
            g(f"s_mul_i32 s{sW1o}, s{sW1o}, 9216")
            g(f"s_lshl_b32 s{sO3}, s{sBlk}, 8")
            g(f"s_add_u32 s{sW1o}, s{sW1o}, s{sO3}")
        if w1s and w1p:
            assert w1p <= 9
            w1_base(0)
            for i in range(w1p): w1one(i)
            NW1 = w1p
        if w1b and not w1s:
            assert opt.get("w2_pos", 0) != 2 and (opt.get("pv_pre", 4) == 4 or opt.get("w2_pos", 0) == 1)
            w1_stream(); NW1 = 0 if "w1" in opt.get("skip", "") else 11
        if opt.get("w2_pos", 0) == 2:
            w2_stream(); NW1 = 0 if "w2" in opt.get("skip", "") else 11
        g.stamp(1)
        g(f"s_lshl_b32 m0, s{sW}, 12")
        sD = [8, 12, 24, 52]
        def d1poll():
            for k in range(4):
                g(f"s_load_dwordx4 s[{sD[k]}:{sD[k]+3}], s[{sBP}:{sBP+1}], {k*128} glc")
        def d1chk():
            for k in range(4):
                g(f"s_xor_b64 s[{sD[k]}:{sD[k]+1}], s[{sD[k]}:{sD[k]+1}], s[{sTT}:{sTT+1}]")
                g(f"s_xor_b64 s[{sD[k]+2}:{sD[k]+3}], s[{sD[k]+2}:{sD[k]+3}], s[{sTT}:{sTT+1}]")
                g(f"s_or_b64 s[{sD[k]}:{sD[k]+1}], s[{sD[k]}:{sD[k]+1}], s[{sD[k]+2}:{sD[k]+3}]")
            g("s_or_b64 s[8:9], s[8:9], s[12:13]")
            g("s_or_b64 s[24:25], s[24:25], s[52:53]")
            g("s_or_b64 s[8:9], s[8:9], s[24:25]")
        def qdma():
            for k in range(4):
                g(f"buffer_load_dwordx4 v{vQd+k}, {WS}, s{sQg} offen offset:{k*1024} sc1 lds")
        def look(tag):
            if tag[0] not in opt.get("looks", "abcd"): return
            g(f"s_cmp_lg_u32 s{sGot}, 0")
            g(f"s_cbranch_scc1 L_B_lk{tag}")
            g("s_waitcnt lgkmcnt(0)")
            d1chk()
            g(f"s_cbranch_scc1 L_B_lp{tag}")
            g.stamp(3)
            qdma()
            g(f"s_mov_b32 s{sGot}, 1")
            g(f"s_branch L_B_lk{tag}")
            g.lab(f"L_B_lp{tag}")
            d1poll()
            g.lab(f"L_B_lk{tag}")
        def pvgroup(k):
            for ct in range(8):
                tmp = t0 + (ct & 1)
                g(f"v_xor_b32 v{tmp}, {ct<<5}, v{vPVb+k}")
                for hi in range(2):
                    g(f"ds_read_b64_tr_b16 {A(aP+(ct*4+k)*4+2*hi,2)}, v{tmp} offset:{hi*16384}")
        npre = opt.get("pv_pre", 4)
        vPA = 168 if not w1b else 212
        def pvrd(k, ct, hi):
            g(f"ds_read_b64_tr_b16 {A(aP+(ct*4+k)*4+2*hi,2)}, v{vPA+8*k+ct} offset:{hi*16384}")
        qd = opt.get("q_direct", 0)
        if qd:
            vQr = 140
            def qld():
                for k in range(4):
                    g(f"buffer_load_dwordx4 {v(vQr+4*k,4)}, v{vL16}, {WS}, s{sQg} offen offset:{k*1024} sc1")
            def qchk():
                g(f"v_cmp_eq_u32 vcc, s{sPOI}, v{vQr}")
                for k in range(1, 4):
                    g(f"v_cmp_eq_u32 s[{sM1}:{sM1+1}], s{sPOI}, v{vQr+4*k}")
                    g(f"s_or_b64 vcc, vcc, s[{sM1}:{sM1+1}]")
            g("s_waitcnt lgkmcnt(0)")
            g(f"s_mov_b32 s{sCNT}, 0")
            g.lab("L_B_rdy")
            d1poll()
            spin_guard(g, "L_B_rdy2")
            g("s_waitcnt lgkmcnt(0)")
            d1chk()
            g("s_cbranch_scc1 L_B_rdy")
            g.lab("L_B_rdy2")
            g(f"s_lshl_b32 s{sTMP}, s{sW}, 12")
            for k in range(4): g(f"v_add_u32 v{vQd+k}, s{sTMP}, v{vQd+k}")
            g(f"s_waitcnt vmcnt({16+NW1})")
            for ks in range(16):
                g(f"ds_read_b128 {A(aS+ks*4,4)}, v{vSB+(ks&3)} offset:{(ks>>2)*256}")
            g(f"s_waitcnt vmcnt({opt.get('q_at', 0)+NW1})")
            g.stamp(3)
            qld()
            g(f"s_waitcnt vmcnt({4+NW1})")
            g.stamp(2)
            for ks in range(16):
                g(f"ds_read_b128 {A(aS+64+ks*4,4)}, v{vSB+(ks&3)} offset:{16384+(ks>>2)*256}")
            g("s_barrier")
            g(f"s_mov_b32 s{sGot}, 0")
            half = opt.get("q_mid", 2)
            for k in range(npre):
                if k == half:
                    g("s_waitcnt vmcnt(0)")
                    qchk()
                    g("s_cbranch_scc0 L_B_qm")
                    qld()
                    g.lab("L_B_qm")
                pvgroup(k)
            g(f"s_mov_b32 s{sCNT}, 0")
            g.lab("L_B_qchk")
            g("s_waitcnt vmcnt(0)")
            qchk()
            g("s_cbranch_scc1 L_B_qagain")
            g.lab("L_B_qgood")
            if opt.get("stamps"): g(f"s_mov_b32 s100, s{sCNT}")
            for k in range(4):
                g(f"ds_write_b128 v{vQd+k}, {v(vQr+4*k,4)} offset:{k*1024}")
        else:
            g("s_waitcnt lgkmcnt(0)")
            if opt.get("looks", "abcd"): d1poll()
            g(f"s_mov_b32 s{sGot}, 0")
            g(f"s_waitcnt vmcnt({16+NW1})")
            for ks in range(16):
                g(f"ds_read_b128 {A(aS+ks*4,4)}, v{vSB+(ks&3)} offset:{(ks>>2)*256}")
            if w1b:
                for i in range(11):
                    for d in range(4):
                        g(f"v_perm_b32 v{vXA+4*i+d}, v{vXr+2*i+1}, v{vXr+2*i}, v{vSel+d}")
            for z in range(opt.get("b_looks", 2)): look(f"a{z}")
            g(f"s_cmp_lg_u32 s{sGot}, 0")
            g("s_cbranch_scc1 L_B_cw1")
            g(f"s_waitcnt vmcnt({NW1})")
            g.lab("L_B_cw1")
            g(f"s_waitcnt vmcnt({4+NW1})")
            g.stamp(2)
            look("b")
            for ks in range(16):
                g(f"ds_read_b128 {A(aS+64+ks*4,4)}, v{vSB+(ks&3)} offset:{16384+(ks>>2)*256}")
            g("s_barrier")
            def pvgroup(k):
                for ct in range(8):
                    tmp = t0 + (ct & 1)
                    g(f"v_xor_b32 v{tmp}, {ct<<5}, v{vPVb+k}")
                    for hi in range(2):
                        g(f"ds_read_b64_tr_b16 {A(aP+(ct*4+k)*4+2*hi,2)}, v{tmp} offset:{hi*16384}")
            npre = opt.get("pv_pre", 4)
            def pvrd(k, ct, hi):
                g(f"ds_read_b64_tr_b16 {A(aP+(ct*4+k)*4+2*hi,2)}, v{vPA+8*k+ct} offset:{hi*16384}")
            for k in range(npre):
                look(f"c{k}")
                pvgroup(k)
            if w1b and not w1s:
                look("d")
                g(f"s_cmp_lg_u32 s{sGot}, 0")
                g("s_cbranch_scc1 L_B_cw2")
                g("s_waitcnt vmcnt(0)")
                g.lab("L_B_cw2")
                g("s_waitcnt vmcnt(4)")
                w1_gemv(False)
            g(f"s_mov_b32 s{sCNT}, 0")
            g(f"s_cmp_lg_u32 s{sGot}, 0")
            g("s_cbranch_scc1 L_B_qwait")
            if opt.get("looks", "abcd"): g("s_branch L_B_d1chk")
            g.lab("L_B_d1poll")
            d1poll()
            spin_guard(g, "L_B_qget0")
            g.lab("L_B_d1chk")
            g("s_waitcnt lgkmcnt(0)")
            d1chk()
            g("s_cbranch_scc1 L_B_d1poll")
            g.stamp(3)
            g.lab("L_B_qget0")
            g(f"s_mov_b32 s{sCNT}, 0")
            qdma()
            g.lab("L_B_qwait")
        nb = 0
        if w1b and not w1s:
            g(f"buffer_store_dwordx4 {v(140,4)}, v{vHs}, {WS}, s{sR0} offen sc1")
            nb = 1
        if opt.get("w2_pos", 0) == 3:
            g(f"s_mul_i32 s{sO2}, s{sU2}, {36*1152}")
            g(f"s_mul_i32 s{sO3}, s{sW}, {8*1152}")
            g(f"s_add_u32 s{sO3}, s{sO3}, s{sO2}")
            g(f"s_add_u32 s{sO2}, s{sO2}, {32*1152}")
        if opt.get("w2_pos", 0) == 0:
            w2_stream(); nb += 0 if "w2" in opt.get("skip", "") else 11
        g(f"s_waitcnt vmcnt({nb}) lgkmcnt(0)")
        g.lab("L_B_qbar")
        w2d = opt.get("w2_d", 0)
        if w1s:
            w1_base(w1p)
            assert 13 - w1p + w2d <= 16 and opt.get("pv_pre", 4) == 4
            g(f"s_mul_i32 s{sO2}, s{sU2}, {36*1152}")
            g(f"s_mul_i32 s{sO3}, s{sW}, 9216")
            g(f"s_add_u32 s{sO2}, s{sO2}, s{sO3}")
        g("s_barrier")
        g.stamp(4)
        def ebell():
            g(f"""
            s_cmp_lg_u32 s{sW}, 2
            s_cbranch_scc1 L_B_noeb
            s_sub_u32 s{sTMP}, s{sD2}, {D2}
            s_lshr_b32 s{sTMP}, s{sTMP}, 1
            s_add_u32 s{sTMP}, s{sTMP}, {DE2 if opt.get("e_rep") else DE}
            v_lshlrev_b32 v{t3}, {14 if opt.get("e_rep") else 4}, v{vL}
            s_mov_b64 exec, 0xff
            buffer_store_dwordx4 {v(vML,4)}, v{t3}, {WS}, s{sTMP} offen sc1
            s_mov_b64 exec, -1
            """)
            g.lab("L_B_noeb")
        vQ = 64
        vS = 156
        w2n = opt.get("w2_n", 11)
        def w2one(i):
            if i == 10: g("s_mov_b32 exec_hi, 0")
            g(f"buffer_load_dwordx4 {v(vW2+4*i,4)}, v{vP2+(i if i < 10 else 4)}, {W2}, s{sO3 if i < 9 else sO2} offen {NT}")
            if i == 10: g("s_mov_b64 exec, -1")
        PRE = 4 if npre < 4 else 6
        late = [(k, ct, hi) for k in range(npre, 4) for ct in range(8) for hi in range(2)]
        per = 2 if late else 0
        seq = []
        for ks in range(PRE):
            g(f"ds_read_b128 {v(vQ+4*ks,4)}, v{vQBs+(ks&3)} offset:{(ks>>2)*256}"); seq.append(("q", ks))
        for ks in range(16):
            if opt.get("e_pos") == ks: ebell()
            if ks + PRE < 16:
                k2 = ks + PRE
                g(f"ds_read_b128 {v(vQ+4*k2,4)}, v{vQBs+(k2&3)} offset:{(k2>>2)*256}"); seq.append(("q", k2))
            for _ in range(per if ks + PRE < 16 else per + 1):
                if late:
                    pvrd(*late.pop(0)); seq.append(("p",))
            g(f"s_waitcnt lgkmcnt({min(15, len(seq) - 1 - seq.index(('q', ks)))})")
            for kt in range(2):
                g(f"{MF} {v(vS+4*kt,4)}, {A(aS+(kt*16+ks)*4,4)}, {v(vQ+4*ks,4)}, {'0' if ks == 0 else v(vS+4*kt,4)}")
            if w1s and 2 <= ks < 13 - w1p: w1one(ks - 2 + w1p)
            if w1s and 13 - w1p <= ks < 13 - w1p + w2d:
                i = ks - (13 - w1p)
                g(f"s_add_u32 m0, s{sO3}, {B_W2 + i*1024}")
                g(f"buffer_load_dwordx4 v{vP2+i}, {W2}, s{sO2} offen {NT} lds")
            if opt.get("w2_pos", 0) == 3 and 4 <= ks < 4 + w2n: w2one(ks - 4)
        CS = math.log2(math.e) * 128 ** -0.5
        g(f"s_mov_b32 s{sC}, {hex(fbits(CS))}")
        g(f"""
        {"" if qd else f"v_cmp_u_f32 vcc, v{vS}, v{vS}"}
        v_max3_f32 v{t0}, v{vS}, v{vS+1}, v{vS+2}
        v_max3_f32 v{t1}, v{vS+3}, v{vS+4}, v{vS+5}
        v_max3_f32 v{t0}, v{t0}, v{vS+6}, v{vS+7}
        v_max_f32 v{t0}, v{t0}, v{t1}
        {"" if qd else "s_cbranch_vccnz L_B_qslow"}
        """)
        g.lab("L_B_qok")
        if opt.get("stamps") and not qd: g(f"s_mov_b32 s100, s{sCNT}")
        g(f"""
        ds_write_b32 v{vMXw}, v{t0} offset:{B_MX}
        s_waitcnt lgkmcnt(0)
        s_barrier
        """)
        g.stamp(5)
        vM = 64
        for q in range(4):
            g(f"ds_read_b128 {v(vM+4*q,4)}, v{vMXr} offset:{B_MX+q*256}")
        g(f"""
        s_waitcnt lgkmcnt(2)
        v_max3_f32 v{vM}, v{vM}, v{vM+1}, v{vM+2}
        v_max3_f32 v{vM+3}, v{vM+3}, v{vM+4}, v{vM+5}
        v_max3_f32 v{vM}, v{vM}, v{vM+6}, v{vM+7}
        s_waitcnt lgkmcnt(0)
        v_max3_f32 v{vM+8}, v{vM+8}, v{vM+9}, v{vM+10}
        v_max3_f32 v{vM+11}, v{vM+11}, v{vM+12}, v{vM+13}
        v_max3_f32 v{vM+8}, v{vM+8}, v{vM+14}, v{vM+15}
        v_max3_f32 v{vM}, v{vM}, v{vM+3}, v{vM+11}
        v_max_f32 v{vM}, v{vM}, v{vM+8}
        v_mul_f32 v{vML}, s{sC}, v{vM}
        """)
        n1 = min(len(late), 14)
        for _ in range(n1): pvrd(*late.pop(0))
        def stat(wave, off, tag):
            g(f"s_cmp_lg_u32 s{sW}, {wave}")
            g(f"s_cbranch_scc1 L_B_nost{tag}")
            if off: g(f"s_add_u32 s{sD2}, s{sD2}, {off}")
            g("s_mov_b64 exec, 0xffff")
            g(f"buffer_store_dwordx4 {v(vML,4)}, v{vL16}, {WS}, s{sD2} offen sc1")
            g("s_mov_b64 exec, -1")
            g.lab(f"L_B_nost{tag}")
        if opt.get("m_early"): stat(1, 0, "m")
        for k in range(8):
            g(f"v_fma_f32 v{vS+k}, v{vS+k}, s{sC}, -v{vML}")
        for k in range(8):
            g(f"v_exp_f32 v{vS+k}, v{vS+k}")
        vPf = 80
        vO = 96
        for k in range(4):
            g(f"v_cvt_pk_bf16_f32 v{vPf+k}, v{vS+2*k}, v{vS+2*k+1}")
        g(f"ds_write_b128 v{vPw}, {v(vPf,4)} offset:{B_PB}")
        g(f"""
        v_pk_add_f32 {v(vS,2)}, {v(vS,2)}, {v(vS+2,2)}
        v_pk_add_f32 {v(vS+4,2)}, {v(vS+4,2)}, {v(vS+6,2)}
        v_pk_add_f32 {v(vS,2)}, {v(vS,2)}, {v(vS+4,2)}
        v_add_f32 v{vS}, v{vS}, v{vS+1}
        ds_write_b32 v{vMXw}, v{vS} offset:{B_LS}
        """)
        def pv(k, cts=range(8)):
            for ct in cts:
                g(f"{MF} {v(vO+4*ct,4)}, {v(vPf+4*k,4)}, {A(aP+(ct*4+k)*4,4)}, {'0' if k == 0 else v(vO+4*ct,4)}")
        pv(0, range(2))
        if not opt.get("m_early"): stat(1, 0, "m")
        g("s_waitcnt lgkmcnt(0)")
        g("s_barrier")
        g.stamp(6)
        for k in range(1, 4):
            g(f"ds_read_b128 {v(vPf+4*k,4)}, v{[0,20,21,23][k]} offset:{B_PB}")
        for q in range(4):
            g(f"ds_read_b128 {v(vM+4*q,4)}, v{vMXr} offset:{B_LS+q*256}")
        nl = len(late)
        assert all(k == 3 for k, _, _ in late)
        for ct in range(2, 8):
            pv(0, [ct])
            for _ in range(3):
                if late: pvrd(*late.pop(0))
        assert not late
        g(f"s_waitcnt lgkmcnt({min(15, 6 + nl)})")
        adds = [f"v_pk_add_f32 {v(vM,2)}, {v(vM,2)}, {v(vM+2,2)}", f"v_pk_add_f32 {v(vM+4,2)}, {v(vM+4,2)}, {v(vM+6,2)}",
                f"v_pk_add_f32 {v(vM+8,2)}, {v(vM+8,2)}, {v(vM+10,2)}", f"v_pk_add_f32 {v(vM+12,2)}, {v(vM+12,2)}, {v(vM+14,2)}",
                f"v_pk_add_f32 {v(vM,2)}, {v(vM,2)}, {v(vM+4,2)}", f"v_pk_add_f32 {v(vM+8,2)}, {v(vM+8,2)}, {v(vM+12,2)}",
                f"v_pk_add_f32 {v(vM,2)}, {v(vM,2)}, {v(vM+8,2)}", f"v_add_f32 v{vML}, v{vM}, v{vM+1}"]
        pv(1, range(4))
        g("s_waitcnt lgkmcnt(0)")
        for ct in range(4, 8):
            pv(1, [ct])
            g(adds[2 * (ct - 4)]); g(adds[2 * (ct - 4) + 1])
        dbpos = opt.get("d2_pos", 2)
        if dbpos == 2: stat(0, DL - D2, "l")
        vOo = 64
        def cv(k, rs=range(4)):
            for r in rs:
                g(f"v_cvt_pk_bf16_f32 v{vOo+4*r+k}, v{vO+8*k+r}, v{vO+8*k+4+r}")
        def tg(k, rs=range(4)):
            for r in rs:
                g(f"v_and_or_b32 v{vOo+4*r+k}, v{vOo+4*r+k}, s{sMk}, v{vPat}")
        for p in range(4):
            pv(2, [2 * p, 2 * p + 1])
            if p >= 2: cv(p - 2, (0, 1))
            pv(3, [2 * p])
            if p >= 2: cv(p - 2, (2, 3))
            pv(3, [2 * p + 1])
            if p >= 2: tg(p - 2)
            if dbpos == 3 and p == 1: stat(0, DL - D2, "l")
        cv(2); tg(2)
        for r in range(4):
            cv(3, [r]); tg(3, [r])
            g(f"s_add_u32 s{sO}, s{sOo}, {4*r*OSTR}")
            g(f"buffer_store_dwordx4 {v(vOo+4*r,4)}, v{vOa}, {WS}, s{sO} offen sc1")
        if dbpos == 4: stat(0, DL - D2, "l")
        g.stamp(7)
        if opt.get("w2_pos", 0) == 3:
            for i in range(w2n, 11): w2one(i)
        if w1s:
            assert opt.get("w2_pos", 0) == 1
            g(f"s_waitcnt vmcnt({4+w2d})")
            w1_gemv()
            g(f"buffer_store_dwordx4 {v(140,4)}, v{vHs}, {WS}, s{sR0} offen sc1")
            g.stamp(9)
            g(f"s_mul_i32 s{sC}, s{sU2}, {36*1152}")
            unit_load(g, W2, vP2, B_W2, sC, 1152, "w2", NT, w0extra=False, first=w2d)
            g(f"s_waitcnt vmcnt({opt.get('h_at', 4)})")
        vHr = 80
        vEr = 96
        g(f"""
        s_and_b32 s{sTMP}, s{sW}, 1
        s_mul_i32 s{sO}, s{sTMP}, 18432
        s_add_u32 s{sO}, s{sO}, {HH}
        s_add_u32 s{sO2}, s{sO}, {4*36864}
        s_add_u32 s{sO3}, s{sO}, {8*36864}
        s_add_u32 s{sC}, s{sO}, {12*36864}
        s_and_b32 s{sPat}, s{sT}, 15
        s_mov_b32 s{sCNT}, 0
        """)
        for k in range(4): g(f"v_mov_b32 v{vHr+12+k}, s{sPat}")
        def hget():
            g("s_mov_b32 exec_lo, 0x01ff01ff")
            g("s_mov_b32 exec_hi, 0x01ff01ff")
            for u, so in enumerate((sO, sO2, sO3, sC)):
                if u == 3: g("s_mov_b32 exec_hi, 0")
                g(f"buffer_load_dwordx4 {v(vHr+4*u,4)}, v{vHg}, {WS}, s{so} offen sc1")
            g("s_mov_b64 exec, -1")
        g(f"s_cmp_gt_u32 s{sW}, 1")
        g("s_cbranch_scc1 L_B_noh1")
        hget()
        g.lab("L_B_noh1")
        nwh = 0
        if opt.get("wo_help"):
            srd(g, 16, 5, 4096 * 1152)
            g(f"""
            s_lshr_b32 s{sRho}, s{sI}, 2
            s_lshl_b32 s{sRho}, s{sRho}, 3
            s_add_u32 s{sRho}, s{sRho}, s{sXCD}
            s_lshl_b32 s{sRho}, s{sRho}, 2
            s_and_b32 s{sBlk}, s{sI}, 3
            s_add_u32 s{sRho}, s{sRho}, s{sBlk}
            s_lshl_b32 s{sRho}, s{sRho}, 2
            s_add_u32 s{sRho}, s{sRho}, s{sW}
            s_mul_i32 s{sRho}, s{sRho}, 9216
            s_waitcnt lgkmcnt(0)
            """)
            for k in range(9):
                g(f"buffer_load_dwordx4 {A(252,4)}, v{vL16}, s[16:19], s{sRho} offen")
                if k < 8: g(f"s_addk_i32 s{sRho}, 0x400")
            nwh = 9
        if npre < 4: g("s_barrier")
        if w1s: pass
        elif opt.get("w2_pos", 0) == 1:
            if opt.get("w2_wait"): g("s_waitcnt vmcnt(0)")
            if opt.get("b_sleep2"): g(f"s_sleep {opt['b_sleep2']}")
            g(f"s_mul_i32 s{sR0}, s{sU2}, {36*1152}")
            g(f"s_mov_b32 s{sRho}, s{sO}")
            unit_load(g, W2, vP2, B_W2, sR0, 1152, "w2", NT, thr=opt.get("w2_thr"))
            g(f"s_mov_b32 s{sO}, s{sRho}")
        else:
            g(f"s_mul_i32 s{sTMP}, s{sW}, 9216")
            g(f"v_add_u32 v{t2}, s{sTMP}, v{vL16}")
            g(f"s_waitcnt vmcnt({(4 if opt.get('w2_n', 11) == 11 else 0)+nwh})")
            for i in range(9):
                g(f"ds_write_b128 v{t2}, {v(vW2+4*i,4)} offset:{B_W2+i*1024}")
            g(f"ds_write_b128 v{vPw}, {v(vW2+36,4)} offset:{B_W2+36864}")
            g(f"ds_write_b128 v{vL16}, {v(vW2+40,4)} offset:{B_W2+36864+4096}")
        g(f"s_cmp_gt_u32 s{sW}, 1")
        g("s_cbranch_scc1 L_B_hbar")
        g(f"s_waitcnt vmcnt({nwh if opt.get('w2_pos', 0) != 1 else 0})")
        g.lab("L_B_hchk")
        g("s_mov_b32 exec_lo, 0x01ff01ff")
        g("s_mov_b32 exec_hi, 0x01ff01ff")
        g.stamp(10)
        vHx = 100
        for k in range(16):
            g(f"v_xor_b32 v{vHx+k}, s{sPat}, v{vHr+k}")
        g(f"v_or3_b32 v{vEr}, v{vHx}, v{vHx+1}, v{vHx+2}")
        for k in range(3, 15, 2):
            g(f"v_or3_b32 v{vEr}, v{vEr}, v{vHx+k}, v{vHx+k+1}")
        g(f"v_or_b32 v{vEr}, v{vEr}, v{vHx+15}")
        g(f"v_and_b32 v{vEr}, 15, v{vEr}")
        g(f"v_cmp_ne_u32 vcc, 0, v{vEr}")
        g("s_cbranch_vccnz L_B_hslow")
        g.lab("L_B_hok")
        c1 = -2.0 * math.log2(math.e) * math.sqrt(2.0 / math.pi)
        g(f"""
        v_pk_add_f32 {v(vHx,2)}, {v(vHx,2)}, {v(vHx+4,2)}
        v_pk_add_f32 {v(vHx+2,2)}, {v(vHx+2,2)}, {v(vHx+6,2)}
        v_pk_add_f32 {v(vHx+8,2)}, {v(vHx+8,2)}, {v(vHx+12,2)}
        v_pk_add_f32 {v(vHx+10,2)}, {v(vHx+10,2)}, {v(vHx+14,2)}
        v_pk_add_f32 {v(vHx,2)}, {v(vHx,2)}, {v(vHx+8,2)}
        v_pk_add_f32 {v(vHx+2,2)}, {v(vHx+2,2)}, {v(vHx+10,2)}
        v_lshlrev_b32 v{vB1}, 16, v{vB1}
        v_mov_b32 v{t1}, {hex(fbits(c1))}
        v_permlane32_swap_b32 v{vHx}, v{vHx+1}
        v_permlane32_swap_b32 v{vHx+2}, v{vHx+3}
        v_add_f32 v{vHx}, v{vHx}, v{vHx+1}
        v_add_f32 v{vHx+2}, v{vHx+2}, v{vHx+3}
        s_mov_b32 s{sC}, {hex(fbits(c1*0.044715))}
        v_permlane16_swap_b32 v{vHx}, v{vHx+2}
        v_add_f32 v{vHx}, v{vHx}, v{vHx+2}
        v_add_f32 v{vHx}, v{vHx}, v{vB1}
        v_mul_f32 v{t0}, v{vHx}, v{vHx}
        v_fma_f32 v{t0}, v{t0}, s{sC}, v{t1}
        v_mul_f32 v{t0}, v{t0}, v{vHx}
        v_exp_f32 v{t0}, v{t0}
        v_add_f32 v{t0}, 1.0, v{t0}
        v_rcp_f32 v{t0}, v{t0}
        v_mul_f32 v{t0}, v{t0}, v{vHx}
        v_cvt_pk_bf16_f32 v{t0}, v{t0}, v{t0}
        ds_write_b16 v{vHw}, v{t0} offset:{B_HL}
        s_mov_b64 exec, -1
        """)
        g.lab("L_B_hbar")
        g("s_waitcnt vmcnt(0) lgkmcnt(0)" if opt.get("w2_pos", 0) == 1 else "s_waitcnt lgkmcnt(0)")
        g("s_barrier")
        g.stamp(11)
        aW = 0
        vHA = 64
        vY = 96
        g(f"ds_read2_b64 {v(vHA,4)}, v{vHe} offset0:0 offset1:4")
        g(f"ds_read2_b64 {v(vHA+6,4)}, v{vHo} offset0:0 offset1:4")
        def w2reads(t):
            for x in range(2):
                b = aW + (t * 2 + x) * 6
                g(f"ds_read_b64_tr_b16 {A(b,2)}, v{vT21 if x else vT20} offset:{t*256}")
                g(f"ds_read_b64_tr_b16 {A(b+2,2)}, v{vT21 if x else vT20} offset:{16*1152+t*256}")
        def w2rk(t):
            for x in range(2):
                b = aW + (t * 2 + x) * 6
                g(f"ds_read_b64_tr_b16 {A(b+4,2)}, v{vK21 if x else vK20} offset:{t*256}")
        def w2mf(t):
            for x in range(2):
                b = aW + (t * 2 + x) * 6
                g(f"{MF} {v(vY+4*t,4)}, {v(vHA+6*x,4)}, {A(b,4)}, {'0' if x == 0 else v(vY+4*t,4)}")
        def w2mf16(t):
            for x in range(2):
                b = aW + (t * 2 + x) * 6
                g(f"{MF16} {v(vY+4*t,4)}, {v(vHA+6*x+4,2)}, {A(b+4,2)}, {v(vY+4*t,4)}")
        w2reads(0); w2reads(1); w2reads(2)
        g("s_waitcnt lgkmcnt(8)")
        w2mf(0)
        w2reads(3)
        g("s_waitcnt lgkmcnt(8)")
        w2mf(1)
        w2reads(4)
        g("s_waitcnt lgkmcnt(8)")
        w2mf(2)
        g(f"ds_read_b64 {v(vHA+4,2)}, v{vHke}")
        g(f"ds_read_b64 {v(vHA+10,2)}, v{vHko}")
        w2rk(0); w2rk(1)
        g("s_waitcnt lgkmcnt(10)")
        w2mf(3)
        w2rk(2); w2rk(3); w2rk(4)
        g("s_waitcnt lgkmcnt(12)")
        w2mf(4)
        for t in range(5):
            g(f"s_waitcnt lgkmcnt({2*(4-t)})")
            w2mf16(t)
        for t in range(4):
            g(f"v_and_or_b32 v{vHA+t}, v{vY+4*t}, -16, s{sPat}")
        g(f"buffer_store_dwordx4 {v(vHA,4)}, v{vH3}, {WS}, s{sH3m} offen sc1")
        g(f"s_cmp_gt_u32 s{sW}, 1")
        g("s_cbranch_scc1 L_B_no5b")
        g(f"v_and_or_b32 v{vY+16}, v{vY+16}, -16, s{sPat}")
        g(f"buffer_store_dword v{vY+16}, v{vH3x}, {WS}, s{sH3l} offen sc1")
        g.lab("L_B_no5b")
        g.stamp(12)
        dump_stamps(g, 16, 216)
        g("s_endpgm")
        if numa:
            g.lab("L_B_refetch")
            if opt.get("dcount"):
                g(f"""
                s_load_dwordx2 s[12:13], s[0:1], 104
                s_mov_b32 s14, 256
                s_mov_b32 s15, 0x00020000
                v_mov_b32 v6, 1
                v_mov_b32 v7, 60
                s_waitcnt lgkmcnt(0)
                s_mov_b64 exec, 1
                buffer_atomic_add v6, v7, s[12:15], 0 offen sc1
                s_mov_b64 exec, -1
                """)
            g(f"s_xor_b32 s{sPhi}, s{sPhi}, 1")
            g("s_waitcnt vmcnt(0)")
            ckv_base()
            ckv_stream(0, 32)
            g("s_branch L_B_phok")
        g.lab("L_B_hslow")
        spin_guard(g, "L_B_hok")
        hget()
        g("s_waitcnt vmcnt(0)")
        g("s_branch L_B_hchk")
        if qd:
            g.lab("L_B_qagain")
            spin_guard(g, "L_B_qgood")
            qld()
            g("s_branch L_B_qchk")
            return
        g.lab("L_B_qslow")
        spin_guard(g, "L_B_qok")
        g(f"s_mov_b64 s[{sM1}:{sM1+1}], 0")
        for ks in range(16):
            g(f"v_cmp_eq_u32 vcc, s{sPOI}, v{vQ+4*ks}")
            g(f"s_or_b64 s[{sM1}:{sM1+1}], s[{sM1}:{sM1+1}], vcc")
        g("s_cbranch_scc0 L_B_qok")
        g("s_barrier")
        g(f"s_lshl_b32 m0, s{sW}, 12")
        qdma()
        g("s_waitcnt vmcnt(0)")
        g("s_branch L_B_qbar")

if __name__ == "__main__":
    opt = eval("dict(%s)" % (sys.argv[2] if len(sys.argv) > 2 else ""))
    open(sys.argv[1], "w").write(gen(opt))
```

```python
import sys, os, math, struct
sys.path.insert(0, os.path.dirname(os.path.abspath(__file__)))
from hazard import pad

KNAME = "gated_mix__compressed_kv_cla__dense_activation_gelu__decode_kernel"

WS_BYTES = 256 << 20
EPOCH = 0x0
DP = 0x2000
D1 = 0x8000
D3 = 0x10000
DH = 0x18000
DE = 0x1C000
D2 = 0x20000
DL = 0x28000
DE2 = 0x40000
QB = 0x80000
HB = 0xA0000
H0 = 0xC0000
LOC = 0x100000
H3 = 0x200000
USTR = 16384 + 256
HH = 0x340000
OB = 0x480000
OSTR = 16384 + 256
STAMP = 0x1000000
POISON = 0xFFA5FFA5
K0, K1 = 0x9E3779B9, 0x7F4A7C15
SPIN = 1 << 20

A_WUV = 0
A_QL = 32768
A_ZERO = 33280
A_WT = 33536
A_CTXC = 33792
A_RED = 34816
A_WO = 35840
A_W1 = A_WO + 36864
A_QP = A_WO
B_QF = 0
B_PB = 16384
B_MX = 20480
B_HL = 21504
B_ZERO = 21760
B_PHI = 21888
B_LS = 22528
B_CKV = 23552
B_W2 = B_CKV
LDS_BYTES = 154624

def f16sw(i):
    return (((i & 7) ^ ((i >> 3) << 2)) << 1) | (i >> 3)

def fbits(x):
    return struct.unpack("<I", struct.pack("<f", x))[0]

class G:
    def __init__(self, opt):
        self.l = []
        self.opt = opt
        self.nst = 0
        self.inA = False
    def __call__(self, s):
        for x in s.strip("\n").split("\n"):
            x = x.strip()
            if x: self.l.append("    " + x)
    def lab(self, n): self.l.append(n + ":")
    def c(self, s): self.l.append("    ; " + s)
    def stamp(self, i):
        if self.opt.get("stamps") and not (self.opt.get("fst") and 5 <= i <= 12 and self.inA):
            if i == 11 and self.inA:
                self("s_mov_b32 s91, s93"); self("s_memrealtime s[92:93]"); self("s_waitcnt lgkmcnt(0)"); self("s_mov_b32 s93, s91")
            else:
                self(f"s_memrealtime s[{70+2*i}:{71+2*i}]")
    def fstamp(self, i):
        if self.opt.get("stamps") and self.opt.get("fst"):
            self(f"s_memrealtime s[{70+2*i}:{71+2*i}]")

def v(a, n=1): return f"v{a}" if n == 1 else f"v[{a}:{a+n-1}]"
def A(a, n=1): return f"a{a}" if n == 1 else f"a[{a}:{a+n-1}]"
def S(a, n=1): return f"s{a}" if n == 1 else f"s[{a}:{a+n-1}]"

sW = 3
WS, X = "s[4:7]", "s[8:11]"
sT = 40
sXCD, sI = 42, 43
sA, sH, sJ = 44, 45, 46
sHG, sB, sMSG, sU2 = 44, 45, 46, 47
sO, sO2, sO3, sCNT = 48, 49, 50, 51
sM1, sM2, sM3, sM4 = 52, 54, 56, 58
sPR = 60
sG0, sG1 = 61, 62
sTMP = 64
sPC = 66
sPOI = 68
sC = 69
sTL = 96
sXC = 95

def srd(g, base, slot, nbytes):
    g(f"s_load_dwordx2 s[{base}:{base+1}], s[0:1], {slot*8}")
    g(f"s_mov_b32 s{base+2}, {nbytes}")
    g(f"s_mov_b32 s{base+3}, 0x00020000")

def dump_stamps(g, n, tmpv):
    if not g.opt.get("stamps") or g.opt.get("probe") is not None: return
    g("s_waitcnt lgkmcnt(0)")
    g("s_mov_b64 exec, 1")
    g(f"s_lshl_b32 s{sO}, s2, 2")
    g(f"s_add_u32 s{sO}, s{sO}, s{sW}")
    g(f"s_lshl_b32 s{sO}, s{sO}, 6")
    g(f"s_add_u32 s{sO}, s{sO}, {STAMP}")
    g(f"v_mov_b32 v{tmpv+4}, 0")
    for q in range(0, 16, 4):
        for k in range(4):
            g(f"v_mov_b32 v{tmpv+k}, s{70+2*(q+k)}")
        g(f"buffer_store_dwordx4 {v(tmpv,4)}, v{tmpv+4}, {WS}, s{sO} offen offset:{q*4}")
        g("s_nop 1")
    g("s_waitcnt vmcnt(0)")

def dual_next(g, regs):
    if not g.opt.get("dual", 1): return
    g(f"s_and_b32 s{sTMP}, s{sCNT}, 14")
    g(f"s_cmp_eq_u32 s{sTMP}, 14")
    g(f"s_cselect_b32 s{sTMP}, {LOC}, 0")
    if g.opt.get("xcc_tag"):
        g(f"s_cselect_b32 s{sTMP+1}, s{sXC}, 0")
        g(f"s_xor_b32 s{sTL+1}, s{sTL+1}, s{sTMP+1}")
    for r in regs:
        g(f"s_xor_b32 s{r}, s{r}, s{sTMP}")

def spin_guard(g, out):
    g(f"s_add_u32 s{sCNT}, s{sCNT}, 1")
    g(f"s_cmp_gt_u32 s{sCNT}, {g.opt.get('spin', SPIN)}")
    g(f"s_cbranch_scc1 {out}")

def selectors(g, vSel, vL, t0, t1, t2):
    g(f"v_and_b32 v{t0}, 1, v{vL}")
    g(f"v_cmp_eq_u32 vcc, 1, v{t0}")
    g(f"v_mov_b32 v{t1}, 0x0c0c0100")
    g(f"v_mov_b32 v{t2}, 0x01000c0c")
    g(f"v_cndmask_b32 v{vSel+3}, v{t1}, v{t2}, vcc")
    g(f"v_mov_b32 v{t1}, 0x0c0c0302")
    g(f"v_mov_b32 v{t2}, 0x03020c0c")
    g(f"v_cndmask_b32 v{vSel+7}, v{t1}, v{t2}, vcc")
    g(f"v_bfe_u32 v{t0}, v{vL}, 1, 2")
    g(f"v_mov_b32 v{t1}, 0x0c0c0c0c")
    for d in range(4):
        g(f"v_cmp_eq_u32 vcc, {d}, v{t0}")
        g(f"v_cndmask_b32 v{vSel+d}, v{t1}, v{vSel+3}, vcc")
        g(f"v_cndmask_b32 v{vSel+4+d}, v{t1}, v{vSel+7}, vcc")

def unit_pattern(g, dst, vL, i_expr_sgpr, i_const, pitch, t0, t1):
    if i_expr_sgpr is not None:
        g(f"v_lshl_add_u32 v{t0}, s{i_expr_sgpr}, 6, v{vL}")
    else:
        g(f"v_add_u32 v{t0}, {64*i_const}, v{vL}")
    g(f"v_mul_u32_u24 v{t1}, 911, v{t0}")
    g(f"v_lshrrev_b32 v{t1}, 16, v{t1}")
    g(f"v_and_b32 v{dst}, 6, v{t1}")
    g(f"v_xor_b32 v{dst}, v{dst}, v{t0}")
    g(f"v_lshlrev_b32 v{dst}, 4, v{dst}")
    if pitch != 1152:
        g(f"v_mul_u32_u24 v{t1}, {pitch-1152}, v{t1}")
        g(f"v_add_u32 v{dst}, v{dst}, v{t1}")
assert all((911 * u) >> 16 == u // 72 for u in range(640))

def h3_addr(g, vH3, vH3x, vL, vN, vG, t0):
    g(f"v_lshrrev_b32 v{t0}, 3, v{vL}")
    g(f"v_mul_u32_u24 v{vH3}, {USTR}, v{t0}")
    g(f"v_and_b32 v{t0}, 7, v{vL}")
    g(f"v_lshl_add_u32 v{vH3}, v{t0}, 4, v{vH3}")
    g(f"v_lshrrev_b32 v{t0}, 5, v{vL}")
    g(f"v_mul_u32_u24 v{vH3x}, {USTR}, v{t0}")
    g(f"v_and_b32 v{t0}, 31, v{vL}")
    g(f"v_lshl_add_u32 v{vH3x}, v{t0}, 2, v{vH3x}")

def h3_soffs(g, s_main, s_left):
    g(f"s_lshl_b32 s{s_left}, s{sPR}, 7")
    g(f"s_add_u32 s{s_left}, s{s_left}, {H3}")
    g(f"s_mul_i32 s{s_main}, s{sW}, {8*USTR}")
    g(f"s_add_u32 s{s_main}, s{s_main}, s{s_left}")
    g(f"s_mul_i32 s{sTMP}, s{sW}, {2*USTR}")
    g(f"s_add_u32 s{s_left}, s{s_left}, s{sTMP}")
    g(f"s_add_u32 s{s_left}, s{s_left}, {32*USTR}")

def tr_pair_bases(g, vB0, vB1, vK0, vK1, vL, base, t0, t1, t2):
    g(f"v_lshrrev_b32 v{t0}, 2, v{vL}")
    g(f"v_bfe_u32 v{t1}, v{vL}, 1, 1")
    g(f"v_lshl_add_u32 v{t1}, s{sW}, 2, v{t1}")
    g(f"v_and_b32 v{t2}, 6, v{t0}")
    g(f"v_xor_b32 v{t2}, v{t2}, v{t1}")
    g(f"v_lshlrev_b32 v{t2}, 4, v{t2}")
    g(f"v_mul_u32_u24 v{vB0}, 1152, v{t0}")
    g(f"v_add_u32 v{vB0}, v{vB0}, v{t2}")
    g(f"v_and_b32 v{t2}, 1, v{vL}")
    g(f"v_lshlrev_b32 v{t2}, 3, v{t2}")
    g(f"v_add_u32 v{vB0}, v{vB0}, v{t2}")
    g(f"v_xor_b32 v{vB1}, 32, v{vB0}")
    if base:
        g(f"v_add_u32 v{vB0}, {base}, v{vB0}")
        g(f"v_add_u32 v{vB1}, {base}, v{vB1}")
    if vK0 is not None:
        g(f"v_and_b32 v{t0}, 3, v{t0}")
        g(f"v_and_b32 v{vK0}, 2, v{t0}")
        g(f"v_xor_b32 v{vK0}, v{vK0}, v{t1}")
        g(f"v_lshlrev_b32 v{vK0}, 4, v{vK0}")
        g(f"v_mul_u32_u24 v{t0}, 1152, v{t0}")
        g(f"v_add3_u32 v{vK0}, v{vK0}, v{t0}, v{t2}")
        g(f"v_xor_b32 v{vK1}, 32, v{vK0}")
        g(f"v_add_u32 v{vK0}, {base + 32*1152}, v{vK0}")
        g(f"v_add_u32 v{vK1}, {base + 32*1152}, v{vK1}")

MF = "v_mfma_f32_16x16x32_bf16"
MF16 = "v_mfma_f32_16x16x16_bf16"

def role_is_A(wg, opt):
    if opt.get("split"):
        import numpy as np
        return np.isin(wg & 7, list(opt["split"]))
    return wg < 128

def gen(opt):
    g = G(opt)
    NT = opt.get("nt", "")
    PFL = opt.get("pf_lines", 4)
    CODE_BYTES = 32 * 128 * PFL
    vL, vN, vG = 1, 2, 3
    g.stamp(0)
    if opt.get("clk"): g("s_memtime s[98:99]")
    g(f"s_getpc_b64 s[{sPC}:{sPC+1}]")
    g("s_cmp_ge_u32 s2, 256")
    g("s_cbranch_scc1 L_end")
    g(f"""
    s_load_dwordx2 s[4:5], s[0:1], 112
    s_load_dwordx2 s[8:9], s[0:1], 0
    s_load_dwordx2 s[28:29], s[0:1], 8
    s_load_dwordx2 s[12:13], s[0:1], 16
    s_load_dwordx2 s[16:17], s[0:1], 24
    v_lshrrev_b32 v4, 6, v0
    v_and_b32 v{vL}, 63, v0
    s_and_b32 s{sXCD}, s2, 7
    v_readfirstlane_b32 s{sW}, v4
    s_bfe_u32 s{sI}, s2, 0x40003
    v_and_b32 v{vN}, 15, v0
    v_bfe_u32 v{vG}, v0, 4, 2
    s_mov_b32 s6, {WS_BYTES - opt.get('ws_base', 0)}
    s_mov_b32 s7, 0x00020000
    """)
    if opt.get("resid") is not None:
        g(f"""
        s_load_dwordx2 s[32:33], s[0:1], 104
        s_load_dwordx2 s[20:21], s[0:1], {8*opt["resid"]}
        s_mov_b32 s34, 256
        s_mov_b32 s35, 0x00020000
        s_mov_b32 s22, {4<<20}
        s_mov_b32 s23, 0x00020000
        s_mul_i32 s{sO}, s2, 16128
        v_mov_b32 v7, 0
        s_waitcnt lgkmcnt(0)
        s_cmp_lg_u32 s{sW}, 0
        s_cbranch_scc1 L_nores
        s_mov_b64 exec, 1
        buffer_load_dword v6, v7, s[20:23], s{sO} offen offset:2048
        s_waitcnt vmcnt(0)
        s_memtime s[24:25]
        s_waitcnt lgkmcnt(0)
        buffer_load_dword v6, v7, s[20:23], s{sO} offen
        s_waitcnt vmcnt(0)
        s_memtime s[26:27]
        s_waitcnt lgkmcnt(0)
        s_sub_u32 s26, s26, s24
        s_mul_i32 s26, s26, 468
        s_lshr_b32 s26, s26, 16
        s_min_u32 s26, s26, 15
        s_lshl_b32 s26, s26, 2
        v_mov_b32 v6, 1
        buffer_atomic_add v6, v7, s[32:35], s26 offen sc1
        s_waitcnt vmcnt(0)
        s_mov_b64 exec, -1
        """)
        g.lab("L_nores")
        g("s_barrier")
    if opt.get("xprobe") is not None:
        g(f"""
        s_load_dwordx2 s[32:33], s[0:1], 104
        s_mov_b32 s34, 256
        s_mov_b32 s35, 0x00020000
        s_waitcnt lgkmcnt(0)
        v_mov_b32 v6, s70
        s_lshl_b32 s{sO}, s{sXCD}, 2
        v_mov_b32 v7, s{sO}
        s_mov_b64 exec, 1
        buffer_atomic_umax v6, v7, s[32:35], 0 offen sc1
        s_mov_b64 exec, -1
        """)
    if opt.get("split"):
        aset = list(opt["split"]); bset = [x for x in range(8) if x not in aset]
        tab = 0
        for x in range(8):
            tab |= ((aset.index(x)) if x in aset else (8 | bset.index(x))) << (4 * x)
        g(f"""
        s_lshl_b32 s{sXCD}, s{sXCD}, 2
        s_lshr_b32 s{sO}, {hex(tab)}, s{sXCD}
        s_and_b32 s{sXCD}, s{sO}, 3
        s_lshr_b32 s{sO2}, s2, 7
        s_lshl_b32 s{sO2}, s{sO2}, 2
        s_add_u32 s{sXCD}, s{sXCD}, s{sO2}
        s_bitcmp1_b32 s{sO}, 3
        s_cbranch_scc1 L_B
        """)
    else:
        g("s_cmp_ge_u32 s2, 128")
        g("s_cbranch_scc1 L_B")
    a = RoleA(g, NT, vL, vN, vG)
    b = RoleB(g, NT, vL, vN, vG)
    def prefetch(nw, idx_sgpr_expr, tag):
        if opt.get("s_pf"): return
        g(idx_sgpr_expr)
        g(f"s_mul_i32 s{sTMP}, s{sTMP}, {nw*128}")
        g(f"v_lshl_add_u32 v5, v{vL}, 7, s{sTMP}")
        g(f"s_cmp_lg_u32 s{sW}, 3")
        g(f"s_cbranch_scc1 L_nopf{tag}")
        g(f"s_mov_b64 exec, {(1 << nw) - 1}")
        g(f"global_load_dword v{63 if tag == 'B' else 254}, v5, s[{sPC}:{sPC+1}]")
        g("s_mov_b64 exec, -1")
        g.lab(f"L_nopf{tag}")
    if opt.get("split") and opt.get("a_pf_first", 1): prefetch(PFL, f"s_lshr_b32 s{sTMP}, s2, 3", "A")
    a.issue()
    if opt.get("split") and not opt.get("a_pf_first", 1): prefetch(PFL, f"s_lshr_b32 s{sTMP}, s2, 3", "A")
    g("s_branch L_A_rest")
    g.lab("L_B")
    if opt.get("tlb"):
        maxp = [0, 3, 2, 1, 1, 2, 0, 2, 0, 2, 0, 0, 0, 0, 3, 3]
        tab = sum(m << (2 * k) for k, m in enumerate(maxp))
        g(f"""
        s_min_u32 s{sTMP}, s{sI}, 14
        s_lshl_b32 s{sTMP}, s{sTMP}, 3
        s_load_dwordx2 s[90:91], s[0:1], s{sTMP}
        s_lshl_b32 s{sTMP}, s{sI}, 1
        s_lshr_b32 s{sTMP}, {hex(tab)}, s{sTMP}
        s_and_b32 s{sTMP}, s{sTMP}, 3
        s_min_u32 s{sTMP}, s{sTMP}, s{sW}
        s_lshl_b32 s{sTMP}, s{sTMP}, 21
        s_waitcnt lgkmcnt(0)
        s_load_dword s89, s[90:91], s{sTMP}
        """)
        code_touch(g)
    if opt.get("p1a_on") == "B" or opt.get("numa"): pass
    elif opt.get("split"): prefetch(PFL, f"s_lshr_b32 s{sTMP}, s2, 3", "B")
    else: prefetch(2 * PFL, f"s_mov_b32 s{sTMP}, s{sI}", "B")
    b.issue()
    if opt.get("p1a_on") == "B": prefetch(PFL, f"s_lshr_b32 s{sTMP}, s2, 3", "B")
    main = g.l
    g.l = []
    b.rest()
    k = g.l.index(";;SPLIT")
    bhead, btail = g.l[:k], g.l[k+1:]
    g.l = main
    g.lab("L_B_head")
    if opt.get("b_head", 1):
        g.l += bhead
    g("s_branch L_B_rest")
    g.lab("L_A_rest")
    g.inA = True
    a.rest()
    g.inA = False
    g.lab("L_B_rest")
    if not opt.get("b_head", 1):
        g.l += bhead
    g.l += btail
    g.lab("L_end")
    lines, added = pad(g.l)
    body = "\n".join(lines)
    hdr = open(os.path.join(os.path.dirname(os.path.abspath(__file__)), "header.txt")).read()
    return f"""{hdr}; @launch grid=(256,1,1) block=(256,1,1) lds={LDS_BYTES}
.amdgcn_target "amdgcn-amd-amdhsa--gfx950"
.text
.globl {KNAME}
.p2align 8
.type {KNAME},@function
{KNAME}:
{body}
    s_endpgm
L_code_end:
.fill ({CODE_BYTES} + 256 - (L_code_end - {KNAME})) / 4, 4, 0xbf800000
.section .rodata,"a"
.p2align 6
.amdhsa_kernel {KNAME}
  .amdhsa_next_free_vgpr 512
  .amdhsa_next_free_sgpr 102
  .amdhsa_accum_offset 256
  .amdhsa_group_segment_fixed_size 0
  .amdhsa_kernarg_size 120
  .amdhsa_user_sgpr_count 2
  .amdhsa_user_sgpr_kernarg_segment_ptr 1
  .amdhsa_system_sgpr_workgroup_id_x 1
.end_amdhsa_kernel
"""

def srd_tail(g, base, nbytes):
    g(f"s_mov_b32 s{base+2}, {nbytes}")
    g(f"s_mov_b32 s{base+3}, 0x00020000")

def code_touch(g):
    if not g.opt.get("s_pf"): return
    g(f"s_lshr_b32 s92, s2, 3")
    g(f"s_lshl_b32 s92, s92, 2")
    g(f"s_add_u32 s92, s92, s{sW}")
    g(f"s_mul_i32 s92, s92, {g.opt.get('pf_lines', 4) * 32}")
    g(f"s_and_b32 s92, s92, -4")
    g(f"s_load_dword s93, s[{sPC}:{sPC+1}], s92")
    g(f"s_add_u32 s92, s92, 96")
    g(f"s_load_dword s94, s[{sPC}:{sPC+1}], s92")

def load_tag(g):
    wb = g.opt.get("ws_base", 0)
    if wb:
        g(f"s_add_u32 s4, s4, {wb}")
        g("s_addc_u32 s5, s5, 0")
    g(f"s_load_dwordx2 s[{sT}:{sT+1}], s[4:5], {EPOCH}")

def finish_tag(g):
    g("s_waitcnt lgkmcnt(0)")
    g(f"s_add_u32 s{sT}, s{sT}, {K0}")
    g(f"s_add_u32 s{sT+1}, s{sT+1}, {K1}")

def bell(g, vdata, vzero, s_index, base, wave, tag):
    g(f"s_cmp_lg_u32 s{sW}, {wave}")
    g(f"s_cbranch_scc1 L_nobell_{tag}")
    g(f"s_lshl_b32 s{sTMP}, s{s_index}, 7")
    g(f"s_add_u32 s{sTMP}, s{sTMP}, {base}")
    g("s_mov_b64 exec, 1")
    g(f"buffer_store_dwordx2 {v(vdata,2)}, v{vzero}, {WS}, s{sTMP} offen sc1")
    g("s_mov_b64 exec, -1")
    g.lab(f"L_nobell_{tag}")

def unit_load(g, SRD, vP, ldsbase, s_unit_base, pitch, tag, NT, rows36=True, vdst=None, thr=None, w0extra=True, first=0):
    if tag[:2] in g.opt.get("skip", ""): return
    g(f"s_mul_i32 s{sO}, s{sW}, {8*pitch}")
    g(f"s_add_u32 s{sO}, s{sO}, s{s_unit_base}")
    if vdst is None: g(f"s_mul_i32 s{sTMP}, s{sW}, 9216")
    for i in range(first, 9):
        if thr: g(f"s_waitcnt vmcnt({thr-1})")
        if vdst is None:
            g(f"s_add_u32 m0, s{sTMP}, {ldsbase + i*1024}")
            g(f"buffer_load_dwordx4 v{vP+i}, {SRD}, s{sO} offen {NT} lds")
        else:
            g(f"buffer_load_dwordx4 {v(vdst+4*i,4)}, v{vP+i}, {SRD}, s{sO} offen {NT}")
    if not rows36: return
    g(f"s_add_u32 s{sO}, s{s_unit_base}, {32*pitch}")
    if vdst is None:
        g(f"s_lshl_b32 s{sTMP}, s{sW}, 10")
        g(f"s_add_u32 m0, s{sTMP}, {ldsbase + 36864}")
        g(f"buffer_load_dwordx4 v{vP+9}, {SRD}, s{sO} offen {NT} lds")
    else:
        g(f"buffer_load_dwordx4 {v(vdst+36,4)}, v{vP+9}, {SRD}, s{sO} offen {NT}")
    if w0extra:
        g(f"s_cmp_lg_u32 s{sW}, 0")
        g(f"s_cbranch_scc1 L_not{tag}")
    g("s_mov_b32 exec_hi, 0")
    if vdst is None:
        g(f"s_mov_b32 m0, {ldsbase + 36864 + 4096}")
        g(f"buffer_load_dwordx4 v{vP+4}, {SRD}, s{sO} offen {NT} lds")
    else:
        g(f"buffer_load_dwordx4 {v(vdst+40,4)}, v{vP+4}, {SRD}, s{sO} offen {NT}")
    g("s_mov_b64 exec, -1")
    if w0extra: g.lab(f"L_not{tag}")

class RoleA:
    def __init__(self, g, NT, vL, vN, vG):
        self.g, self.NT, self.vL, self.vN, self.vG = g, NT, vL, vN, vG
    vX = 20
    vA_wq, vA_uk = 108, 109
    aWQ, aUK = 0, 36

    def issue(self):
        g, NT, vL, vN, vG = self.g, self.NT, self.vL, self.vN, self.vG
        WQ, WUK = "s[12:15]", "s[16:19]"
        t0, t1 = 4, 5
        vX, vA_wq, vA_uk, aWQ, aUK = self.vX, self.vA_wq, self.vA_uk, self.aWQ, self.aUK
        if g.opt.get("p1a_on") == "B":
            srd_tail(g, 16, 512 * 8192)
            g(f"""
            s_lshr_b32 s{sH}, s{sI}, 2
            s_lshl_b32 s{sH}, s{sH}, 3
            s_add_u32 s{sH}, s{sH}, s{sXCD}
            s_and_b32 s{sJ}, s{sI}, 3
            s_lshl_b32 s{sC}, s{sH}, 8
            v_bfe_u32 v{t0}, v{vL}, 2, 2
            v_lshlrev_b32 v{vA_uk}, 16, v{t0}
            v_lshl_add_u32 v{vA_uk}, v{vG}, 6, v{vA_uk}
            v_and_b32 v{t1}, 3, v{vL}
            v_lshl_add_u32 v{vA_uk}, v{t1}, 4, v{vA_uk}
            s_lshl_b32 s{sO2}, s{sJ}, 2
            s_add_u32 s{sO2}, s{sO2}, s{sW}
            s_lshl_b32 s{sO2}, s{sO2}, 18
            s_add_u32 s{sO2}, s{sO2}, s{sC}
            s_waitcnt lgkmcnt(0)
            """)
            g.fstamp(5)
            self.uk(range(8))
            load_tag(g)
            srd_tail(g, 8, 2304)
            return
        srd_tail(g, 12, 576 * 8192)
        srd_tail(g, 8, 2304)
        g(f"""
        s_lshr_b32 s{sH}, s{sI}, 2
        s_lshl_b32 s{sH}, s{sH}, 3
        s_add_u32 s{sH}, s{sH}, s{sXCD}
        s_and_b32 s{sJ}, s{sI}, 3
        v_mul_u32_u24 v{vA_wq}, {36*8192}, v{vG}
        v_lshl_add_u32 v{vA_wq}, v{vN}, 4, v{vA_wq}
        s_lshl_b32 s{sO2}, s{sJ}, 4
        s_add_u32 s{sO2}, s{sO2}, s{sW}
        s_mul_i32 s{sO2}, s{sO2}, 9
        s_lshl_b32 s{sO3}, s{sO2}, 13
        s_lshl_b32 s{sC}, s{sH}, 8
        s_add_u32 s{sO3}, s{sO3}, s{sC}
        v_bfe_u32 v{t0}, v{vL}, 3, 1
        v_mul_u32_u24 v{t0}, 1152, v{t0}
        v_mad_u32_u24 v{t0}, v{vG}, 64, v{t0}
        v_lshl_add_u32 v{t0}, v{vG}, 3, v{t0}
        s_lshr_b32 s{sO2}, s{sO2}, 1
        s_lshl_b32 s{sO2}, s{sO2}, 2
        s_waitcnt lgkmcnt(0)
        """)
        g.fstamp(5)
        code_touch(g)
        g(f"""
        buffer_load_dwordx4 {v(vX,4)}, v{t0}, {X}, s{sO2} offen
        buffer_load_dword v{vX+4}, v{t0}, {X}, s{sO2} offen offset:16
        """)
        for i in range(9):
            g(f"buffer_load_dwordx4 {A(aWQ+4*i,4)}, v{vA_wq}, {WQ}, s{sO3} offen {g.opt.get('nt_q', NT)}")
            if i != 8: g(f"s_addk_i32 s{sO3}, 0x2000")
        load_tag(g)
        srd_tail(g, 16, 512 * 8192)
        g(f"""
        v_bfe_u32 v{t0}, v{vL}, 2, 2
        v_lshlrev_b32 v{vA_uk}, 16, v{t0}
        v_lshl_add_u32 v{vA_uk}, v{vG}, 6, v{vA_uk}
        v_and_b32 v{t1}, 3, v{vL}
        v_lshl_add_u32 v{vA_uk}, v{t1}, 4, v{vA_uk}
        s_lshl_b32 s{sO2}, s{sJ}, 2
        s_add_u32 s{sO2}, s{sO2}, s{sW}
        s_lshl_b32 s{sO2}, s{sO2}, 18
        s_add_u32 s{sO2}, s{sO2}, s{sC}
        """)
        self.uk_split = g.opt.get("uk_early", 2)
        self.uk(range(self.uk_split))

    def uk(self, rows):
        g = self.g
        for r in rows:
            u = 2 * (r & 3) + (r >> 2)
            g(f"buffer_load_dwordx4 {A(self.aUK+4*u,4)}, v{self.vA_uk}, s[16:19], s{sO2} offen {g.opt.get('nt_q', self.NT)}")
            g(f"s_addk_i32 s{sO2}, 0x2000")

    def rest(self):
        g, NT, vL, vN, vG = self.g, self.NT, self.vL, self.vN, self.vG
        opt = g.opt
        WUV, WO, W1, B2, GATE, OUT = "s[20:23]", "s[24:27]", "s[12:15]", "s[28:31]", "s[32:35]", "s[36:39]"
        t0, t1, t2, t3 = 4, 5, 6, 7
        vPOI = 8
        vSel = 12
        vX = self.vX
        vF = 160
        vQ = 200
        vR = 56
        vQlo, vQhi = 80, 84
        vAcc = 88
        vGr = 104
        vA_h1, vA_l16 = 110, 47
        vA_qlo, vA_qhi = 112, 113
        vTag = 114
        vQw = 46
        aWQ, aUK = self.aWQ, self.aUK
        sQ = 63
        g.stamp(1)
        selectors(g, vSel, vL, t0, t1, t2)
        g(f"""
        s_lshl_b32 s{sA}, s{sH}, 2
        s_add_u32 s{sA}, s{sA}, s{sJ}
        s_and_b32 s{sO}, s{sW}, 1
        s_lshl_b32 s{sO}, s{sO}, 4
        v_lshlrev_b32 v{vA_l16}, 4, v{vL}
        s_cmp_lg_u32 s{sW}, {0 if opt.get("p1a_on") == "B" else 1}
        s_cbranch_scc1 L_A_e2
        """)
        pB = opt.get("p1a_on") == "B"
        for k in range(4): g(f"v_mov_b32 v{vPOI+k}, {hex(POISON)}")
        g(f"""
        v_lshlrev_b32 v{t0}, 15, v{vG}
        v_lshl_add_u32 v{t0}, v{vN}, 4, v{t0}
        s_lshl_b32 s{sTMP}, s{sA}, 8
        s_add_u32 s{sTMP}, s{sTMP}, {QB}
        s_mov_b32 exec_hi, 0
        buffer_store_dwordx4 {v(vPOI,4)}, v{t0}, {WS}, s{sTMP} offen sc1
        s_mov_b64 exec, -1
        """)
        g.lab("L_A_e2")
        if opt.get("split") and opt.get("s_touch"):
            g(f"""
            s_lshl_b32 s{sTMP}, s{sA}, 2
            s_add_u32 s{sTMP}, s{sTMP}, s{sW}
            s_lshl_b32 s{sCNT}, s{sTMP}, 8
            s_lshl_b32 s{sTMP}, s{sTMP}, 9
            s_add_u32 s{sTMP}, s{sTMP}, {H0+LOC}
            s_add_u32 s20, s4, s{sTMP}
            s_addc_u32 s21, s5, 0
            s_add_u32 s{sCNT}, s{sCNT}, {HB+LOC}
            s_add_u32 s22, s4, s{sCNT}
            s_addc_u32 s23, s5, 0
            s_load_dword s24, s[20:21], 0
            s_load_dword s25, s[20:21], 128
            s_load_dword s26, s[20:21], 256
            s_load_dword s27, s[20:21], 384
            s_load_dword s28, s[22:23], 0
            s_load_dword s29, s[22:23], 128
            """)
        elif opt.get("split"):
            g(f"""
            s_cmp_lt_u32 s{sW}, {3 if pB else 2}
            s_cbranch_scc1 L_A_e3
            s_lshl_b32 s{sTMP}, s{sA}, 11
            s_add_u32 s{sTMP}, s{sTMP}, {H0+LOC}
            s_lshl_b32 s{sTMP+1}, s{sA}, 10
            s_add_u32 s{sTMP+1}, s{sTMP+1}, {HB+LOC}
            s_cmp_eq_u32 s{sW}, 2
            s_cselect_b32 s{sTMP}, s{sTMP}, s{sTMP+1}
            v_lshlrev_b32 v{t0}, 7, v{vL}
            s_mov_b64 exec, 0xffff
            buffer_load_dword v255, v{t0}, {WS}, s{sTMP} offen
            s_mov_b64 exec, -1
            """)
            g.lab("L_A_e3")
        if pB:
            finish_tag(g)
            sPk = 54
            g(f"""
            s_lshl_b32 s{sO}, s{sH}, 12
            s_add_u32 s{sO}, s{sO}, {H0}
            s_add_u32 s{sC}, s4, s{sO}
            s_addc_u32 s{sO3}, s5, 0
            """)
            def h0_wt(): pass
        else:
            g.fstamp(6)
            g(f"s_waitcnt vmcnt({9+self.uk_split})")
            g.fstamp(7)
            for k in range(5):
                g(f"v_alignbit_b32 v{vX+k}, v{vX+k+1}, v{vX+k}, s{sO}")
            for i in range(9):
                for d in range(4):
                    g(f"v_perm_b32 v{vF+4*i+d}, v{vX+(i>>1)}, v{vX+(i>>1)}, v{vSel+4*(i&1)+d}")
            g.fstamp(8)
            ukh = opt.get("uk_hold", 0)
            ukp = opt.get("uk_pos", 0)
            for i in range(9):
                if i == ukp: self.uk(range(self.uk_split, 8 - ukh))
                g(f"s_waitcnt vmcnt({8-i+(8-ukh if i >= ukp else self.uk_split)})")
                g(f"{MF} {v(vQ+2,4)}, {v(vF+4*i,4)}, {A(aWQ+4*i,4)}, {'0' if i == 0 else v(vQ+2,4)}")
            if ukp == 9: self.uk(range(self.uk_split, 8 - ukh))
            g.fstamp(10)
            g(f"s_cmp_eq_u32 s{sW}, 0")
            g("s_cbranch_scc1 L_A_w0a")
            g(f"v_lshl_add_u32 v{t0}, s{sW}, 10, v{vA_l16}")
            g(f"ds_write_b128 v{t0}, {v(vQ+2,4)} offset:{A_QP-1024}")
            g(f"s_cmp_lg_u32 s{sW}, 1")
            g("s_cbranch_scc1 L_A_nw1")
            g(f"s_waitcnt vmcnt({8-ukh-self.uk_split})")
            g.lab("L_A_nw1")
            g("s_waitcnt lgkmcnt(0)")
            g("s_barrier")
            g(f"s_add_u32 s{sT}, s{sT}, {K0}")
            g(f"s_add_u32 s{sT+1}, s{sT+1}, {K1}")
            g("s_branch L_A_setup")
            g.lab("L_A_w0a")
            finish_tag(g)
            xt = opt.get("xcc_tag", 0)
            def local_tag():
                g(f"s_getreg_b32 s{sXC}, hwreg(HW_REG_XCC_ID, 0, 4)")
                g(f"s_mov_b32 s{sTL}, s{sT}")
                g(f"s_xor_b32 s{sTL+1}, s{sT+1}, s{sXC}")
            if xt: local_tag()
            TL = sTL if xt else sT
            sib = [0, sO, sO3, sC]
            for k in range(1, 4):
                g(f"s_xor_b32 s{sTMP}, s{sA}, {k}")
                g(f"s_lshl_b32 s{sTMP}, s{sTMP}, 11")
                g(f"s_add_u32 s{sib[k]}, s{sTMP}, {H0+LOC}")
            g(f"""
            v_mov_b32 v{vQ}, s{sT}
            v_mov_b32 v{vQ+1}, s{TL+1}
            v_mov_b32 v{vQ+6}, s{sT}
            v_mov_b32 v{vQ+7}, s{TL+1}
            s_lshl_b32 s{sTMP+1}, s{sA}, 11
            s_add_u32 s{sTMP+1}, s{sTMP+1}, {H0+LOC}
            s_barrier
            """)
            for k in range(3):
                g(f"ds_read_b128 {v(vR+4*k,4)}, v{vA_l16} offset:{A_QP+k*1024}")
            g("s_waitcnt lgkmcnt(1)")
            g(f"v_pk_add_f32 {v(vQ+2,2)}, {v(vQ+2,2)}, {v(vR,2)}")
            g(f"v_pk_add_f32 {v(vQ+4,2)}, {v(vQ+4,2)}, {v(vR+2,2)}")
            g("s_waitcnt lgkmcnt(0)")
            g(f"v_pk_add_f32 {v(vR+4,2)}, {v(vR+4,2)}, {v(vR+8,2)}")
            g(f"v_pk_add_f32 {v(vR+6,2)}, {v(vR+6,2)}, {v(vR+10,2)}")
            g(f"v_pk_add_f32 {v(vQ+2,2)}, {v(vQ+2,2)}, {v(vR+4,2)}")
            g(f"v_pk_add_f32 {v(vQ+4,2)}, {v(vQ+4,2)}, {v(vR+6,2)}")
            g(f"buffer_store_dwordx4 {v(vQ,4)}, v{vA_l16}, {WS}, s{sTMP+1} offen")
            g(f"buffer_store_dwordx4 {v(vQ+4,4)}, v{vA_l16}, {WS}, s{sTMP+1} offen offset:1024")
            def h0_wt():
                if xt:
                    g(f"v_mov_b32 v{vQ+1}, s{sT+1}")
                    g(f"v_mov_b32 v{vQ+7}, s{sT+1}")
                g(f"s_lshl_b32 s{sTMP+1}, s{sA}, 11")
                g(f"s_add_u32 s{sTMP+1}, s{sTMP+1}, {H0}")
                g(f"buffer_store_dwordx4 {v(vQ,4)}, v{vA_l16}, {WS}, s{sTMP+1} offen sc1")
                g(f"buffer_store_dwordx4 {v(vQ+4,4)}, v{vA_l16}, {WS}, s{sTMP+1} offen offset:1024 sc1")
            g.stamp(2)
        g.lab("L_A_setup")
        srd(g, 20, 4, 512 * 8192)
        srd(g, 24, 5, 4096 * 1152)
        srd(g, 32, 11, 1152)
        srd(g, 36, 12, 2304)
        srd(g, 12, 7, 576 * 9216)
        vBell = 111
        g(f"""
        v_bfe_u32 v{t0}, v{vL}, 2, 2
        v_lshlrev_b32 v{vA_h1}, 15, v{vG}
        v_lshl_add_u32 v{vA_h1}, v{t0}, 4, v{vA_h1}
        s_lshl_b32 s{sQ}, s{sA}, 2
        s_add_u32 s{sQ}, s{sQ}, s{sW}
        s_lshl_b32 s{sQ}, s{sQ}, 6
        s_add_u32 s{sQ}, s{sQ}, {QB}
        v_bfe_u32 v{t0}, v{vL}, 2, 1
        v_lshlrev_b32 v{t0}, 8, v{t0}
        v_lshl_add_u32 v{t0}, v{vG}, 6, v{t0}
        v_and_b32 v{t1}, 3, v{vL}
        v_lshl_add_u32 v{t0}, v{t1}, 4, v{t0}
        v_add_u32 v{t0}, {A_QL}, v{t0}
        v_mov_b32 v{t1}, {A_ZERO}
        v_cmp_gt_u32 vcc, 8, v{vN}
        v_cndmask_b32 v{vA_qlo}, v{t1}, v{t0}, vcc
        v_cndmask_b32 v{vA_qhi}, v{t0}, v{t1}, vcc
        v_and_b32 v{t0}, 1, v{vL}
        v_cmp_eq_u32 s[{sM1}:{sM1+1}], 1, v{t0}
        v_and_b32 v{t0}, 2, v{vL}
        v_cmp_eq_u32 s[{sM2}:{sM2+1}], 2, v{t0}
        v_mov_b32 v{vTag}, s{sT}
        v_mov_b32 v{vTag+1}, s{sT+1}
        """)
        if opt.get("uk_hold"): self.uk(range(8 - opt["uk_hold"], 8))
        g(f"""
        v_lshlrev_b32 v{vBell}, 12, v{vL}
        s_lshl_b32 s{sO2}, s{sH}, 5
        s_add_u32 s{sO2}, s{sO2}, s{sJ}
        s_lshl_b32 s{sO2}, s{sO2}, 2
        s_add_u32 s{sO2}, s{sO2}, {D1}
        """)
        if opt.get("q_direct", 0):
            g(f"""
            s_cmp_lg_u32 s{sW}, 2
            s_cbranch_scc1 L_A_nordy
            s_mov_b64 exec, 0xff
            buffer_store_dword v{vTag}, v{vBell}, {WS}, s{sO2} offen sc1
            s_mov_b64 exec, -1
            """)
            g.lab("L_A_nordy")
            g(f"""
            v_bfe_u32 v{t0}, v{vL}, 2, 2
            v_lshlrev_b32 v{vA_h1}, 8, v{vG}
            v_lshl_add_u32 v{vA_h1}, v{t0}, 4, v{vA_h1}
            v_lshl_add_u32 v{vA_h1}, s{sW}, 6, v{vA_h1}
            v_lshlrev_b32 v{vBell}, 15, v{vG}
            v_lshl_add_u32 v{vBell}, v{vN}, 4, v{vBell}
            s_lshl_b32 s{sQ}, s{sA}, 8
            s_add_u32 s{sQ}, s{sQ}, {QB}
            """)
        g(f"""
        v_mov_b32 v{t2}, 0
        v_mov_b32 v{t3}, 0
        ds_write_b64 v{t1}, {v(t2,2)}
        ds_write_b64 v{t1}, {v(t2,2)} offset:8
        v_lshrrev_b32 v{vQw}, 1, v{vG}
        v_lshlrev_b32 v{vQw}, 8, v{vQw}
        v_lshl_add_u32 v{vQw}, v{vN}, 4, v{vQw}
        v_and_b32 v{t1}, 1, v{vG}
        v_lshl_add_u32 v{vQw}, v{t1}, 3, v{vQw}
        """)
        def h0loads():
            if pB:
                for k in range(4):
                    g(f"buffer_load_dwordx4 {v(vR+4*k,4)}, v{vA_l16}, {WS}, s{sO} offen offset:{k*1024} sc1")
                return
            for k in range(1, 4):
                g(f"buffer_load_dwordx4 {v(vR+8*(k-1),4)}, v{vA_l16}, {WS}, s{sib[k]} offen sc1")
                g(f"buffer_load_dwordx4 {v(vR+8*(k-1)+4,4)}, v{vA_l16}, {WS}, s{sib[k]} offen offset:1024 sc1")
        sRho, sBlk, sR0 = 60, 43, 62
        vXr, vS1, vXA, vW1a, vHs, vXa = 116, 140, 152, 144, 145, 146
        aW1 = 80
        if opt.get('w1_on', 'A') == 'A':
            g(f"""
            s_lshl_b32 s{sBlk}, s{sA}, 2
            s_add_u32 s{sBlk}, s{sBlk}, s{sW}
            s_mul_i32 s{sRho}, s{sBlk}, 1821
            s_lshr_b32 s{sRho}, s{sRho}, 16
            s_mul_i32 s{sTMP}, s{sRho}, 36
            s_sub_u32 s{sBlk}, s{sBlk}, s{sTMP}
            s_min_u32 s{sTMP}, s{sRho}, 4
            s_mul_i32 s{sR0}, s{sRho}, 10
            s_add_u32 s{sR0}, s{sR0}, s{sTMP}
            s_lshl_b32 s{sR0}, s{sR0}, 2
            v_bfe_u32 v{t0}, v{vL}, 3, 1
            v_mul_u32_u24 v{vXa}, 1152, v{t0}
            v_mul_u32_u24 v{vW1a}, 9216, v{vG}
            v_lshl_add_u32 v{vW1a}, v{vN}, 4, v{vW1a}
            """)
            assert all((i * 1821) >> 16 == i // 36 for i in range(512))
            g(f"s_lshl_b32 s{sTMP}, s{sR0}, 1")
            for k in range(5):
                g(f"buffer_load_dwordx4 {v(vXr+4*k,4)}, v{vXa}, {X}, s{sTMP} offen offset:{16*k}")
            g(f"buffer_load_dwordx2 {v(vXr+20,2)}, v{vXa}, {X}, s{sTMP} offen offset:80")
        pk = opt.get("h0_peek", 0)
        h0at = opt.get("h0_at")
        if not pB and not pk and h0at is None:
            g(f"s_cmp_lg_u32 s{sW}, 0")
            g("s_cbranch_scc1 L_A_s2")
            h0loads()
            g.lab("L_A_s2")
        vUV0, vUV1 = 20, 21
        vP2 = 22
        g(f"""
        v_lshlrev_b32 v{t0}, 1, v{vG}
        v_xor_b32 v{t0}, v{t0}, v{vN}
        v_lshlrev_b32 v{vUV0}, 17, v{vG}
        v_lshl_add_u32 v{vUV0}, v{t0}, 4, v{vUV0}
        v_xor_b32 v{vUV1}, 128, v{vUV0}
        """)
        uve = opt.get("uv_early", 0)
        nuv = 8 if "uv" not in opt.get("skip", "") else 0
        uvn = opt.get("uv_n", 0)
        def uv_stream(z0=0, z1=8):
            sa, sb = 47, 61
            g(f"""
            s_lshl_b32 s{sa}, s{sJ}, 5
            s_add_u32 s{sa}, s{sa}, s{sW}
            s_lshl_b32 s{sa}, s{sa}, 15
            s_lshl_b32 s{sb}, s{sH}, 8
            s_add_u32 s{sa}, s{sa}, s{sb}
            s_lshl_b32 s{sb}, s{sW}, 13
            """)
            for z in range(z0, min(z1, nuv)):
                hi, gg = z >> 2, z & 3
                if opt.get("uv_thr") and not uve and z >= uvn: g(f"s_waitcnt vmcnt({opt['uv_thr']-1})")
                g(f"s_add_u32 m0, s{sb}, {A_WUV + z*1024}")
                g(f"s_add_u32 s{sTMP}, s{sa}, {(64*hi+gg)*8192}")
                g(f"buffer_load_dwordx4 v{vUV1 if z & 1 else vUV0}, {WUV}, s{sTMP} offen {NT} lds")
        if uve == 1:
            g("s_waitcnt lgkmcnt(0)")
            uv_stream()
        for i in range(9):
            unit_pattern(g, vP2 + i, vL, None, i, 1152, t0, t1)
        if opt.get('w1_on', 'A') == 'A':
            g(f"""
            v_lshrrev_b32 v{t0}, 5, v{vL}
            v_mul_u32_u24 v{vHs}, 18432, v{t0}
            v_and_b32 v{t0}, 31, v{vL}
            v_lshl_add_u32 v{vHs}, v{t0}, 4, v{vHs}
            v_mul_u32_u24 v{t0}, 0x0202, v{vG}
            v_add_u32 v{t0}, 0x0100, v{t0}
            v_and_b32 v{t1}, 1, v{vL}
            v_lshlrev_b32 v{t1}, 4, v{t1}
            v_lshlrev_b32 v{t0}, v{t1}, v{t0}
            v_mov_b32 v{t2}, 0x0c0c0000
            v_lshrrev_b32 v{t2}, v{t1}, v{t2}
            v_or_b32 v{t0}, v{t0}, v{t2}
            v_bfe_u32 v{t1}, v{vL}, 1, 2
            v_mov_b32 v{t2}, 0x0c0c0c0c
            """)
            for d in range(4):
                g(f"v_cmp_eq_u32 vcc, {d}, v{t1}")
                g(f"v_cndmask_b32 v{vS1+d}, v{t2}, v{t0}, vcc")
        if uve == 2:
            g("s_waitcnt lgkmcnt(0)")
            uv_stream()
        g(f"s_mov_b32 s{sCNT}, 0")
        g(f"s_cmp_lg_u32 s{sW}, 0")
        g("s_cbranch_scc1 L_A_h0wait")
        if pB:
            g(f"""
            s_mov_b32 s{sTMP}, s{sC}
            s_mov_b32 s{sTMP+1}, s{sO3}
            s_and_b32 s{sC}, s{sT}, 15
            """)
            g.lab("L_A_peek")
            for k in range(4):
                g(f"s_load_dword s{16+k}, s[{sTMP}:{sTMP+1}], {k*1024+opt.get('peek_off', 1020)} glc")
            spin_guard(g, "L_A_peek2")
            g("s_waitcnt lgkmcnt(0)")
            for k in range(4):
                g(f"s_xor_b32 s{16+k}, s{16+k}, s{sC}")
            g("s_or_b64 s[16:17], s[16:17], s[18:19]")
            g("s_or_b32 s16, s16, s17")
            g("s_and_b32 s16, s16, 15")
            g("s_cbranch_scc1 L_A_peek")
            g.lab("L_A_peek2")
            g.stamp(2)
            g.lab("L_A_h0get")
            h0loads()
            g("s_waitcnt vmcnt(0)")
        elif pk:
            assert not uve
            g(f"""
            s_lshl_b32 s{sTMP}, s{sH}, 13
            s_add_u32 s{sTMP}, s{sTMP}, {H0+LOC}
            s_add_u32 s{sTMP}, s4, s{sTMP}
            s_addc_u32 s{sTMP+1}, s5, 0
            s_waitcnt lgkmcnt(0)
            """)
            g.lab("L_A_peek")
            for k in range(4):
                g(f"s_load_dword s{16+k}, s[{sTMP}:{sTMP+1}], {k*2048+2040} glc")
            g(f"s_add_u32 s{sCNT}, s{sCNT}, 1")
            g(f"s_cmp_gt_u32 s{sCNT}, {pk}")
            g("s_waitcnt lgkmcnt(0)")
            g("s_cbranch_scc1 L_A_peek2")
            for k in range(4):
                g(f"s_xor_b32 s{16+k}, s{16+k}, s{sT}")
            g("s_or_b64 s[16:17], s[16:17], s[18:19]")
            g("s_cbranch_scc1 L_A_peek")
            g.lab("L_A_peek2")
            g(f"s_mov_b32 s{sCNT}, 0")
            h0loads()
            g("s_waitcnt vmcnt(0)")
        elif h0at is not None:
            assert not uve
            nx = 6 if opt.get("w1_on", "A") == "A" else 0
            g(f"s_waitcnt vmcnt({h0at + (2 if h0at > opt.get('uk_hold', 0) or not opt.get('uk_hold') else 0) + nx})")
            h0loads()
            if uvn:
                g("s_waitcnt lgkmcnt(0)")
                g("s_barrier")
                uv_stream(0, uvn)
            g(f"s_waitcnt vmcnt({uvn})")
        else:
            g(f"s_waitcnt vmcnt({nuv if uve else 0})")
        g.lab("L_A_h0chk")
        if opt.get("fst"):
            g(f"s_cmp_lg_u32 s{sCNT}, 0")
            g("s_cbranch_scc1 L_A_fs11")
            g.fstamp(11)
            g.lab("L_A_fs11")
        if pB:
            for k in range(16):
                g(f"v_xor_b32 v{vR+k}, s{sC}, v{vR+k}")
            g(f"v_or3_b32 v{t0}, v{vR}, v{vR+1}, v{vR+2}")
            g(f"v_or3_b32 v{t1}, v{vR+3}, v{vR+4}, v{vR+5}")
            for k in range(6, 14, 4):
                g(f"v_or3_b32 v{t0}, v{t0}, v{vR+k}, v{vR+k+1}")
                g(f"v_or3_b32 v{t1}, v{t1}, v{vR+k+2}, v{vR+k+3}")
            g(f"v_or3_b32 v{t0}, v{t0}, v{vR+14}, v{vR+15}")
            g(f"v_bitop3_b32 v{t0}, v{t0}, v{t1}, 15 bitop3:0xa8")
            g(f"v_cmp_ne_u32 vcc, 0, v{t0}")
            g("s_cbranch_vccnz L_A_h0poll")
        else:
            for k in range(3):
                g(f"v_cmp_ne_u64 vcc, s[{TL}:{TL+1}], {v(vR+8*k,2)}")
                g(f"v_cmp_ne_u64 s[{sM3}:{sM3+1}], s[{TL}:{TL+1}], {v(vR+8*k+6,2)}")
                if k == 0: g(f"s_or_b64 s[{sM4}:{sM4+1}], vcc, s[{sM3}:{sM3+1}]")
                else:
                    g(f"s_or_b64 s[{sM4}:{sM4+1}], s[{sM4}:{sM4+1}], vcc")
                    g(f"s_or_b64 s[{sM4}:{sM4+1}], s[{sM4}:{sM4+1}], s[{sM3}:{sM3+1}]")
            g("s_cbranch_scc1 L_A_h0poll")
        g.lab("L_A_h0done")
        def d1bell(tag):
            g("s_mov_b64 exec, 0xff")
            g(f"buffer_store_dword v{vTag}, v{vBell}, {WS}, s{sO2} offen sc1")
            g("s_mov_b64 exec, -1")
        qd = opt.get("q_direct", 0)
        d1p = opt.get("d1_pos", 0) if not qd else -1
        if d1p == 0: d1bell("")
        if pB:
            g(f"v_pk_add_f32 {v(vR,2)}, {v(vR,2)}, {v(vR+4,2)}")
            g(f"v_pk_add_f32 {v(vR+2,2)}, {v(vR+2,2)}, {v(vR+6,2)}")
            g(f"v_pk_add_f32 {v(vR+8,2)}, {v(vR+8,2)}, {v(vR+12,2)}")
            g(f"v_pk_add_f32 {v(vR+10,2)}, {v(vR+10,2)}, {v(vR+14,2)}")
            g(f"v_pk_add_f32 {v(vR,2)}, {v(vR,2)}, {v(vR+8,2)}")
            g(f"v_pk_add_f32 {v(vR+2,2)}, {v(vR+2,2)}, {v(vR+10,2)}")
            g(f"v_cvt_pk_bf16_f32 v{vR}, v{vR}, v{vR+1}")
            g(f"v_cvt_pk_bf16_f32 v{vR+1}, v{vR+2}, v{vR+3}")
        else:
            g(f"v_pk_add_f32 {v(vR+2,2)}, {v(vQ+2,2)}, {v(vR+2,2)}")
            g(f"v_pk_add_f32 {v(vR+4,2)}, {v(vQ+4,2)}, {v(vR+4,2)}")
            g(f"v_pk_add_f32 {v(vR+10,2)}, {v(vR+10,2)}, {v(vR+18,2)}")
            g(f"v_pk_add_f32 {v(vR+12,2)}, {v(vR+12,2)}, {v(vR+20,2)}")
            g(f"v_pk_add_f32 {v(vR+2,2)}, {v(vR+2,2)}, {v(vR+10,2)}")
            g(f"v_pk_add_f32 {v(vR+4,2)}, {v(vR+4,2)}, {v(vR+12,2)}")
            g(f"v_cvt_pk_bf16_f32 v{vR}, v{vR+2}, v{vR+3}")
            g(f"v_cvt_pk_bf16_f32 v{vR+1}, v{vR+4}, v{vR+5}")
        g(f"ds_write_b64 v{vQw}, {v(vR,2)} offset:{A_QL}")
        g("s_waitcnt lgkmcnt(0)")
        g("s_barrier")
        g(f"ds_read_b128 {v(vQlo,4)}, v{vA_qlo}")
        g(f"ds_read_b128 {v(vQhi,4)}, v{vA_qhi}")
        if d1p == 1: d1bell("")
        g("s_branch L_A_p1b")
        g.lab("L_A_h0wait")
        if uvn:
            assert h0at is not None
            g("s_waitcnt lgkmcnt(0)")
            g("s_barrier")
            uv_stream(0, uvn)
        g(f"s_waitcnt vmcnt({nuv if uve else uvn}) lgkmcnt(0)")
        g.fstamp(12)
        g("s_barrier")
        g(f"ds_read_b128 {v(vQlo,4)}, v{vA_qlo}")
        g(f"ds_read_b128 {v(vQhi,4)}, v{vA_qhi}")
        g.lab("L_A_p1b")
        g.stamp(3)
        g("s_waitcnt lgkmcnt(0)")
        for t in range(4):
            g(f"{MF} {v(vAcc+4*t,4)}, {v(vQlo,4)}, {A(aUK+8*t,4)}, 0")
        for t in range(4):
            g(f"{MF} {v(vAcc+4*t,4)}, {v(vQhi,4)}, {A(aUK+8*t+4,4)}, {v(vAcc+4*t,4)}")
        if d1p == 2:
            g(f"s_cmp_lg_u32 s{sW}, 0")
            g("s_cbranch_scc1 L_A_nod1")
            d1bell("")
            g.lab("L_A_nod1")
        for t in range(4):
            a0 = vAcc + 4 * t
            g(f"v_cndmask_b32 v{a0}, v{a0}, v{a0+1}, s[{sM1}:{sM1+1}]")
            g(f"v_cndmask_b32 v{a0+2}, v{a0+2}, v{a0+3}, s[{sM1}:{sM1+1}]")
            g(f"v_cndmask_b32 v{a0}, v{a0}, v{a0+2}, s[{sM2}:{sM2+1}]")
        for t in range(4):
            a0 = vAcc + 4 * t
            g(f"v_add_f32_dpp v{a0+1}, v{a0}, v{a0} quad_perm:[1,0,3,2] row_mask:0xf bank_mask:0xf")
        for t in range(4):
            a0 = vAcc + 4 * t
            g(f"v_add_f32_dpp v{a0}, v{a0+1}, v{a0+1} quad_perm:[2,3,0,1] row_mask:0xf bank_mask:0xf")
        g(f"v_cvt_pk_bf16_f32 v{vGr}, v{vAcc}, v{vAcc+4}")
        g(f"v_cvt_pk_bf16_f32 v{vGr+1}, v{vAcc+8}, v{vAcc+12}")
        g(f"v_permlane32_swap_b32 v{vGr}, v{vGr+2}")
        g(f"v_permlane32_swap_b32 v{vGr+1}, v{vGr+3}")
        if qd:
            g(f"""
            s_mov_b64 exec, 0x11111111
            ds_write_b128 v{vA_h1}, {v(vGr,4)} offset:{A_CTXC}
            s_mov_b64 exec, -1
            s_waitcnt lgkmcnt(0)
            s_barrier
            s_cmp_lg_u32 s{sW}, 3
            s_cbranch_scc1 L_A_noq
            s_mov_b32 exec_hi, 0
            ds_read_b128 {v(vGr,4)}, v{vA_l16} offset:{A_CTXC}
            s_waitcnt lgkmcnt(0)
            buffer_store_dwordx4 {v(vGr,4)}, v{vBell}, {WS}, s{sQ} offen sc1
            s_mov_b64 exec, -1
            """)
            g.lab("L_A_noq")
        else:
            g(f"""
            s_mov_b64 exec, 0x11111111
            buffer_store_dwordx4 {v(vGr,4)}, v{vA_h1}, {WS}, s{sQ} offen sc1
            s_mov_b64 exec, -1
            """)
        if d1p == 3:
            g(f"s_cmp_lg_u32 s{sW}, 0")
            g("s_cbranch_scc1 L_A_nod1")
            d1bell("")
            g.lab("L_A_nod1")
        g.stamp(4)
        if opt.get("a_wait", 0): g("s_waitcnt vmcnt(0)")
        if opt.get("a_gate"):
            sD = [16, 52, 56, 28]
            g(f"""
            s_lshl_b32 s{sTMP}, s{sXCD}, 3
            s_lshr_b32 s{sTMP+1}, s{sH}, 4
            s_lshl_b32 s{sTMP+1}, s{sTMP+1}, 2
            s_add_u32 s{sTMP}, s{sTMP}, s{sTMP+1}
            s_add_u32 s{sTMP}, s{sTMP}, s{sW}
            s_lshl_b32 s{sTMP}, s{sTMP}, 9
            s_add_u32 s{sTMP}, s{sTMP}, {D1}
            s_add_u32 s{sTMP}, s4, s{sTMP}
            s_addc_u32 s{sTMP+1}, s5, 0
            s_mov_b32 s{sPC}, s{sT}
            s_mov_b32 s{sPC+1}, s{sT}
            s_mov_b32 s{sCNT}, 0
            """)
            g.lab("L_A_gate")
            for k in range(4):
                g(f"s_load_dwordx4 s[{sD[k]}:{sD[k]+3}], s[{sTMP}:{sTMP+1}], {k*128} glc")
            spin_guard(g, "L_A_gate2")
            g("s_waitcnt lgkmcnt(0)")
            for k in range(4):
                g(f"s_xor_b64 s[{sD[k]}:{sD[k]+1}], s[{sD[k]}:{sD[k]+1}], s[{sPC}:{sPC+1}]")
                g(f"s_xor_b64 s[{sD[k]+2}:{sD[k]+3}], s[{sD[k]+2}:{sD[k]+3}], s[{sPC}:{sPC+1}]")
                g(f"s_or_b64 s[{sD[k]}:{sD[k]+1}], s[{sD[k]}:{sD[k]+1}], s[{sD[k]+2}:{sD[k]+3}]")
            g("s_or_b64 s[16:17], s[16:17], s[52:53]")
            g("s_or_b64 s[56:57], s[56:57], s[28:29]")
            g("s_or_b64 s[16:17], s[16:17], s[56:57]")
            g("s_cbranch_scc1 L_A_gate")
            g.lab("L_A_gate2")
            g("s_waitcnt lgkmcnt(0)")
            if opt["a_gate"] == 2: g("s_barrier")
            g(f"v_and_b32 v{t0}, 2, v{vL}")
            g(f"v_cmp_eq_u32 s[{sM2}:{sM2+1}], 2, v{t0}")
        if opt.get("a_sleep"): g(f"s_sleep {opt['a_sleep']}")
        srd(g, 28, 10, 1152)
        def w1_frags():
            for i in range(11):
                for d in range(4):
                    g(f"v_perm_b32 v{vXA+4*i+d}, v{vXr+2*i+1}, v{vXr+2*i}, v{vS1+d}")
        w1a = opt.get("w1_on", "A") == "A"
        nw1 = 0 if ("w1" in opt.get("skip", "") or not w1a) else 11
        if w1a:
            g(f"s_mul_i32 s{sO2}, s{sR0}, 9216")
            g(f"s_lshl_b32 s{sO3}, s{sBlk}, 8")
            g(f"s_add_u32 s{sO2}, s{sO2}, s{sO3}")
        for i in range(nw1):
            if opt.get("w1_thr") and i >= opt["w1_thr"]: g(f"s_waitcnt vmcnt({opt['w1_thr']-1})")
            g(f"buffer_load_dwordx4 {A(aW1+4*i,4)}, v{vW1a}, {W1}, s{sO2} offen {NT}")
            if i == (opt.get("w1_thr") or 11) - 1: w1_frags()
            if i < 10: g(f"s_add_u32 s{sO2}, s{sO2}, {4*9216}")
            if i == 9:
                g(f"s_cmp_ge_u32 s{sRho}, 4")
                g(f"s_cselect_b32 s{sO2}, {576*9216}, s{sO2}")
        if not uve: uv_stream(uvn, 8)
        def w1_gemv(younger):
            if not w1a: return
            vH = 148
            g(f"s_waitcnt vmcnt({younger})")
            for i in range(10):
                g(f"{MF} {v(vH,4)}, {v(vXA+4*i,4)}, {A(aW1+4*i,4)}, {'0' if i == 0 else v(vH,4)}")
            g(f"s_cmp_ge_u32 s{sRho}, 4")
            g("s_cbranch_scc1 L_A_w1s")
            g(f"{MF} {v(vH,4)}, {v(vXA+40,4)}, {A(aW1+40,4)}, {v(vH,4)}")
            g.lab("L_A_w1s")
            g(f"""
            s_mul_i32 s{sO}, s{sRho}, 36864
            s_lshl_b32 s{sO3}, s{sBlk}, 9
            s_add_u32 s{sO}, s{sO}, s{sO3}
            s_add_u32 s{sO}, s{sO}, {HH}
            s_and_b32 s{sO3}, s{sT}, 15
            """)
            for r in range(4):
                g(f"v_and_or_b32 v{vH+r}, v{vH+r}, -16, s{sO3}")
            g(f"buffer_store_dwordx4 {v(vH,4)}, v{vHs}, {WS}, s{sO} offen sc1")
        if not opt.get("w1_late"): w1_gemv(0 if uve else nuv)
        wol = opt.get("wo_late", 0)
        if not wol:
            g(f"s_mul_i32 s{sO2}, s{sA}, {32*1152}")
            unit_load(g, WO, vP2, A_WO, sO2, 1152, "wo", NT, rows36=False, thr=opt.get("a_thr"))
        if opt.get("w1_late") == 1: w1_gemv(9)
        if not opt.get('clk'): g.stamp(14)
        vGx, vGw, vB2 = 48, 60, 72
        vOA, vFB = 73, 74
        sU = 93
        if opt.get("red_map"):
            g(f"s_sub_u32 s{sU}, s{sJ}, 1")
            g(f"s_lshl_b32 s{sU}, s{sU}, 5")
            g(f"s_add_u32 s{sU}, s{sU}, s{sH}")
        else:
            g(f"s_mov_b32 s{sU}, s{sA}")
        g(f"v_mov_b32 v{vOA}, 0")
        g("s_waitcnt lgkmcnt(0)")
        g(f"s_cmp_lg_u32 s{sW}, 0")
        g("s_cbranch_scc1 L_A_nogate")
        if not opt.get("xcc_tag"): h0_wt()
        g(f"""
        s_cmp_ge_u32 s{sU}, 36
        s_cbranch_scc1 L_A_nogate
        v_and_b32 v{t0}, 31, v{vL}
        v_mul_u32_u24 v{t1}, 36, v{t0}
        v_lshrrev_b32 v{t2}, 5, v{vL}
        v_mul_u32_u24 v{t2}, 1152, v{t2}
        v_add_u32 v{t2}, v{t2}, v{t1}
        buffer_load_dwordx4 {v(vGx,4)}, v{t2}, {X}, 0 offen
        buffer_load_dwordx4 {v(vGx+4,4)}, v{t2}, {X}, 0 offen offset:16
        buffer_load_dword v{vGx+8}, v{t2}, {X}, 0 offen offset:32
        buffer_load_dwordx4 {v(vGw,4)}, v{t1}, {GATE}, 0 offen
        buffer_load_dwordx4 {v(vGw+4,4)}, v{t1}, {GATE}, 0 offen offset:16
        buffer_load_dword v{vGw+8}, v{t1}, {GATE}, 0 offen offset:32
        s_cmp_ge_u32 s{sU}, 32
        s_cbranch_scc1 L_A_uleft
        s_lshr_b32 s{sO}, s{sU}, 2
        s_lshl_b32 s{sO}, s{sO}, 4
        s_and_b32 s{sO3}, s{sU}, 1
        s_lshl_b32 s{sO3}, s{sO3}, 3
        s_add_u32 s{sO}, s{sO}, s{sO3}
        v_and_b32 v{t1}, 3, v{t0}
        v_lshlrev_b32 v{t1}, 7, v{t1}
        v_lshrrev_b32 v{t2}, 2, v{t0}
        v_add3_u32 v{t1}, v{t1}, v{t2}, s{sO}
        s_bfe_u32 s{sO3}, s{sU}, 0x10001
        v_mov_b32 v{vFB}, s{sO3}
        s_branch L_A_ujoin
        """)
        g.lab("L_A_uleft")
        g(f"""
        s_lshl_b32 s{sO}, s{sU}, 4
        v_and_b32 v{t1}, 15, v{t0}
        v_add_u32 v{t1}, s{sO}, v{t1}
        v_lshrrev_b32 v{vFB}, 4, v{t0}
        """)
        g.lab("L_A_ujoin")
        g(f"""
        v_lshlrev_b32 v{t1}, 1, v{t1}
        buffer_load_ushort v{vB2}, v{t1}, {B2}, 0 offen
        v_mul_u32_u24 v{vOA}, 1152, v{vFB}
        v_add_u32 v{vOA}, v{vOA}, v{t1}
        """)
        if opt.get("out_touch"): g(f"buffer_load_ushort v253, v{vOA}, {OUT}, 0 offen")
        g.lab("L_A_nogate")
        vH3, vH3x = 32, 33
        vHBs = 39
        sH3m, sH3l, sHB, sHH = 63, 47, 61, 62
        vTU0, vTU1, vTO0, vTO1 = 34, 35, 36, 37
        vCX, vCW, vHBl, vD2, vOg, vWTw, vWTr = 38, 46, 40, 41, 42, 43, 44
        vT1, vK1 = 75, 57
        def later_addresses():
            g(f"""
            s_mul_i32 s{sH3l}, s{sA}, {OSTR}
            s_add_u32 s{sH3l}, s{sH3l}, {OB}
            s_lshl_b32 s{sTMP}, s{sW}, 10
            s_add_u32 s{sH3m}, s{sH3l}, s{sTMP}
            s_lshl_b32 s{sTMP}, s{sW}, 8
            s_add_u32 s{sH3l}, s{sH3l}, s{sTMP}
            s_add_u32 s{sH3l}, s{sH3l}, 4096
            v_lshlrev_b32 v{vH3x}, 2, v{vL}
            """)
            g(f"""
            v_lshlrev_b32 v{vHBs}, 7, v{vG}
            v_and_b32 v{t0}, 1, v{vL}
            v_lshl_add_u32 v{vHBs}, v{t0}, 6, v{vHBs}
            v_bfe_u32 v{t0}, v{vL}, 1, 1
            v_lshl_add_u32 v{vHBs}, v{t0}, 9, v{vHBs}
            s_lshl_b32 s{sHB}, s{sH}, 2
            s_add_u32 s{sHB}, s{sHB}, s{sW}
            s_lshl_b32 s{sHB}, s{sHB}, 6
            s_add_u32 s{sHB}, s{sHB}, s{sJ}
            s_lshl_b32 s{sHB}, s{sHB}, 4
            s_add_u32 s{sHB}, s{sHB}, {HB}
            v_lshrrev_b32 v{t0}, 2, v{vL}
            v_bfe_u32 v{t1}, v{vL}, 1, 1
            v_lshl_add_u32 v{t1}, s{sW}, 2, v{t1}
            v_and_b32 v{t2}, 7, v{t0}
            v_lshlrev_b32 v{t2}, 1, v{t2}
            v_xor_b32 v{t1}, v{t1}, v{t2}
            v_lshlrev_b32 v{vTU0}, 8, v{t0}
            v_lshl_add_u32 v{vTU0}, v{t1}, 4, v{vTU0}
            v_and_b32 v{t1}, 1, v{vL}
            v_lshl_add_u32 v{vTU0}, v{t1}, 3, v{vTU0}
            v_xor_b32 v{vTU1}, 32, v{vTU0}
            """)
            assert A_WUV == 0
            tr_pair_bases(g, vTO0, vTO1, None, None, vL, A_WO, t0, t1, t2)
            g(f"""
            v_and_b32 v{t0}, 1, v{vL}
            v_lshlrev_b32 v{vCX}, 9, v{t0}
            v_bfe_u32 v{t0}, v{vL}, 1, 1
            v_lshl_add_u32 v{vCX}, v{t0}, 8, v{vCX}
            v_lshl_add_u32 v{vCX}, v{vG}, 4, v{vCX}
            v_and_b32 v{t0}, 1, v{vG}
            v_lshlrev_b32 v{vCW}, 3, v{t0}
            v_lshl_add_u32 v{vCW}, v{vN}, 4, v{vCW}
            v_lshl_add_u32 v{vCW}, s{sW}, 8, v{vCW}
            v_and_b32 v{t0}, 7, v{vL}
            v_lshlrev_b32 v{vHBl}, 4, v{t0}
            v_lshl_add_u32 v{vHBl}, v{vG}, 7, v{vHBl}
            v_and_b32 v{t0}, 31, v{vL}
            v_lshlrev_b32 v{vD2}, 8, v{t0}
            v_lshlrev_b32 v{vOg}, 10, v{vG}
            v_lshl_add_u32 v{vOg}, v{vN}, 4, v{vOg}
            v_lshlrev_b32 v{vWTw}, 1, v{t0}
            v_lshl_add_u32 v{vWTw}, s{sW}, 6, v{vWTw}
            s_and_b32 s{sTMP}, s{sW}, 1
            s_lshl_b32 s{sTMP}, s{sTMP}, 5
            s_lshl_b32 s{sTMP+1}, s{sW}, 6
            s_add_u32 s{sTMP}, s{sTMP}, s{sTMP+1}
            v_lshl_add_u32 v{vWTr}, v{vG}, 3, s{sTMP}
            v_cmp_gt_u32 s[{sM1}:{sM1+1}], 8, v{vN}
            """)
        later_addresses()
        lb = opt.get("late_bar", 0)
        if not lb:
            g("s_waitcnt vmcnt(0)")
            g("s_barrier")
        g.stamp(5)
        aUV, aWO = 0, 32
        vDB = 88
        vDL = 92
        vO = 96
        vFr = 116
        vWt = 132
        vD = 136
        vLs, vWr, vEr = 140, 141, 142
        g(f"""
        s_lshr_b32 s{sO}, s{sH}, 4
        s_lshl_b32 s{sO}, s{sO}, 1
        s_lshr_b32 s{sO3}, s{sW}, 1
        s_add_u32 s{sO}, s{sO}, s{sO3}
        s_lshl_b32 s{sO}, s{sO}, 13
        s_and_b32 s{sO3}, s{sH}, 15
        s_lshl_b32 s{sO3}, s{sO3}, 4
        s_add_u32 s{sO}, s{sO}, s{sO3}
        s_add_u32 s{sO2}, s{sO}, {DL}
        s_add_u32 s{sO}, s{sO}, {D2}
        """)
        epos = opt.get("e_pos")
        if epos is None: g(f"buffer_load_dwordx4 {v(vDB,4)}, v{vD2}, {WS}, s{sO} offen sc1")
        if opt.get("w1_late") == 2:
            g(f"s_mov_b32 s{sC}, s{sO}")
            w1_gemv(1)
            g(f"s_mov_b32 s{sO}, s{sC}")
        def uv_frags():
            for tau in range(2):
                for ks in range(4):
                    for hi in range(2):
                        g(f"ds_read_b64_tr_b16 {A(aUV+(tau*4+ks)*4+2*hi,2)}, v{vTU1 if tau else vTU0} offset:{ks*8192+hi*4096}")
        if not lb: uv_frags()
        def wo_frags():
            for t in range(5):
                for x in range(2):
                    for hi in range(2):
                        g(f"ds_read_b64_tr_b16 {A(aWO+(t*2+x)*4+2*hi,2)}, v{vTO1 if x else vTO0} offset:{hi*16*1152+t*256}")
        if not wol and not lb: wo_frags()
        sBP = 34
        sHI, sTT = sPOI, sPC
        sX, sP4 = 32, 33
        g(f"""
        s_and_b32 s{sTMP}, s{sW}, 1
        s_lshl_b32 s{sTMP}, s{sTMP}, 12
        s_add_u32 s{sTMP}, s{sTMP}, s{sO2}
        s_add_u32 s{sBP}, s4, s{sTMP}
        s_addc_u32 s{sBP+1}, s5, 0
        s_mul_i32 s{sO3}, s{sA}, {OSTR}
        s_lshl_b32 s{sTMP}, s{sW}, 12
        s_add_u32 s{sO3}, s{sO3}, s{sTMP}
        s_add_u32 s{sO3}, s{sO3}, {OB}
        s_bitcmp1_b32 s{sT}, 0
        s_cselect_b32 s{sX}, 0x10001, 0
        s_mov_b32 s{sHI}, 0x10000
        s_mov_b32 s{sTT}, s{sT}
        s_mov_b32 s{sTT+1}, s{sT}
        """)
        def gate_math():
            g(f"v_mov_b32 v{t0}, 0")
            for k in range(9):
                g(f"v_dot2_f32_bf16 v{t0}, v{vGx+k}, v{vGw+k}, v{t0}")
            g("s_nop 2")
            for r in (8, 4, 2, 1):
                g(f"v_add_f32_dpp v{t0}, v{t0}, v{t0} row_ror:{r} row_mask:0xf bank_mask:0xf")
            g(f"""
            v_mov_b32 v{t1}, v{t0}
            v_permlane16_swap_b32 v{t0}, v{t1}
            v_add_f32 v{t0}, v{t0}, v{t1}
            v_mul_f32 v{t0}, {hex(fbits(-math.log2(math.e)))}, v{t0}
            v_exp_f32 v{t0}, v{t0}
            v_add_f32 v{t0}, 1.0, v{t0}
            v_rcp_f32 v{t0}, v{t0}
            v_cmp_eq_u32 vcc, 1, v{vFB}
            v_mov_b32 v{t1}, v{t0}
            v_permlane32_swap_b32 v{t0}, v{t1}
            v_cndmask_b32 v{vFB}, v{t0}, v{t1}, vcc
            v_lshlrev_b32 v{vB2}, 16, v{vB2}
            """)
        if not lb: gate_math()
        g(f"""
        s_mov_b32 s{sCNT}, 0
        """)
        if epos is None:
            g(f"s_waitcnt vmcnt({1 if opt.get('w1_late') == 2 else 0})")
            g("s_branch L_A_d2chk")
        else:
            g(f"""
            s_lshr_b32 s{sTMP}, s{sH}, 4
            s_lshl_b32 s{sTMP}, s{sTMP}, 2
            s_add_u32 s{sTMP}, s{sTMP}, s{sW}
            s_lshl_b32 s{sTMP}, s{sTMP}, 11
            s_mul_i32 s{sTMP+1}, s{sXCD}, {16384 if opt.get("e_rep") else 0}
            s_add_u32 s{sTMP}, s{sTMP}, s{sTMP+1}
            s_add_u32 s{sTMP}, s{sTMP}, {DE2 if opt.get("e_rep") else DE}
            v_lshrrev_b32 v{t2}, 1, v{vD2}
            s_mov_b64 exec, 0xffff
            """)
            g.lab("L_A_epoll")
            g(f"buffer_load_dwordx2 {v(t0,2)}, v{t2}, {WS}, s{sTMP} offen offset:8 sc1")
            spin_guard(g, "L_A_edone")
            g("s_waitcnt vmcnt(0)")
            g(f"v_cmp_ne_u64 vcc, s[{sT}:{sT+1}], {v(t0,2)}")
            g("s_mov_b64 exec, vcc")
            g("s_cbranch_vccnz L_A_epoll")
            g.lab("L_A_edone")
            g("s_mov_b64 exec, -1")
            g("s_mov_b64 vcc, -1")
            if opt.get("st14e"): g.stamp(14)
            if opt.get("e_sleep"): g(f"s_sleep {opt['e_sleep']}")
            g(f"s_mov_b32 s{sCNT}, 0")
        g.lab("L_A_d2poll")
        if opt.get("m_shrink"): g("s_mov_b64 exec, vcc")
        if opt.get("m_sleep"): g(f"s_sleep {opt['m_sleep']}")
        g(f"buffer_load_dwordx4 {v(vDB,4)}, v{vD2}, {WS}, s{sO} offen sc1")
        g(f"s_add_u32 s{sCNT}, s{sCNT}, 1")
        g(f"s_cmp_gt_u32 s{sCNT}, {opt.get('spin', SPIN)}")
        g("s_waitcnt vmcnt(0)")
        g("s_cbranch_scc1 L_A_d2done")
        g.lab("L_A_d2chk")
        g(f"v_cmp_ne_u64 vcc, s[{sT}:{sT+1}], {v(vDB+2,2)}")
        g("s_cbranch_vccnz L_A_d2poll")
        g.lab("L_A_d2done")
        if opt.get("m_shrink"): g("s_mov_b64 exec, -1")
        g.stamp(6)
        def lpoll():
            for k in range(16):
                g(f"s_load_dword s{16+k}, s[{sBP}:{sBP+1}], {k*256+8} glc")
        lvec = opt.get("l_vec", 0)
        if lvec == 1: g(f"buffer_load_dwordx4 {v(vDL,4)}, v{vD2}, {WS}, s{sO2} offen sc1")
        elif lvec == 0: lpoll()
        g(f"v_max_f32_dpp v{t0}, v{vDB}, v{vDB} row_ror:8 row_mask:0xf bank_mask:0xf")
        for r in (4, 2, 1):
            g(f"v_max_f32_dpp v{t0}, v{t0}, v{t0} row_ror:{r} row_mask:0xf bank_mask:0xf")
        g(f"""
        v_mov_b32 v{t1}, v{t0}
        v_permlane16_swap_b32 v{t0}, v{t1}
        v_max_f32 v{t0}, v{t0}, v{t1}
        v_sub_f32 v{t0}, v{vDB}, v{t0}
        v_exp_f32 v{t0}, v{t0}
        v_cvt_pk_bf16_f32 v{t0}, v{t0}, v{t0}
        ds_write_b16 v{vWTw}, v{t0} offset:{A_WT}
        ds_read_b64 {v(vWt,2)}, v{vWTr} offset:{A_WT}
        v_and_b32 v{vWr}, 0xffff0000, v{t0}
        s_mov_b32 s{sCNT}, 0
        s_branch {"L_A_lgo" if lvec == 2 else "L_A_lchk"}
        """)
        g.lab("L_A_lpoll")
        if lvec: g(f"buffer_load_dwordx4 {v(vDL,4)}, v{vD2}, {WS}, s{sO2} offen sc1")
        else: lpoll()
        g(f"s_add_u32 s{sCNT}, s{sCNT}, 1")
        g(f"s_cmp_gt_u32 s{sCNT}, {opt.get('spin', SPIN)}")
        g("s_cbranch_scc1 L_A_lgo")
        g.lab("L_A_lchk")
        if lvec:
            g("s_waitcnt vmcnt(0)")
            g(f"v_cmp_ne_u64 vcc, s[{sT}:{sT+1}], {v(vDL+2,2)}")
            g("s_cbranch_vccnz L_A_lpoll")
        else:
            g("s_waitcnt lgkmcnt(0)")
            for k in range(0, 16, 2):
                g(f"s_xor_b64 s[{16+k}:{17+k}], s[{16+k}:{17+k}], s[{sTT}:{sTT+1}]")
            for st_ in (8, 4, 2):
                for k in range(0, st_, 2):
                    g(f"s_or_b64 s[{16+k}:{17+k}], s[{16+k}:{17+k}], s[{16+k+st_}:{17+k+st_}]")
            g("s_cbranch_scc1 L_A_lpoll")
        g.lab("L_A_lgo")
        g(f"s_mov_b32 s{sCNT}, 0")
        if opt.get("o_sleep"): g(f"s_sleep {opt['o_sleep']}")
        g.stamp(11)
        def oget():
            g(f"buffer_load_dwordx4 {v(vDL,4)}, v{vD2}, {WS}, s{sO2} offen sc1")
            for u in range(4):
                g(f"buffer_load_dwordx4 {v(vO+4*u,4)}, v{vOg}, {WS}, s{sO3} offen offset:{u*256} sc1")
        oget()
        nwo = 0
        if lb:
            assert lvec == 2
            g("s_barrier")
        if wol in (1, 2):
            assert lvec == 2
            g(f"s_mul_i32 s{sC}, s{sA}, {32*1152}")
            unit_load(g, WO, vP2, A_WO, sC, 1152, "wo", NT, rows36=False)
            nwo = 9 if "wo" not in opt.get("skip", "") else 0
        g("s_waitcnt lgkmcnt(0)")
        if lb:
            uv_frags()
            if not wol: wo_frags()
        for u in range(4):
            for d in range(4):
                g(f"v_perm_b32 v{vFr+4*u+d}, v{vWt+(u>>1)}, v{vWt+(u>>1)}, v{vSel+4*(u&1)+d}")
        if lb: gate_math()
        g.lab("L_A_ocomb")
        g(f"v_mov_b32 v{vEr}, 0")
        g(f"s_waitcnt vmcnt({4+nwo})")
        g(f"v_mul_f32 v{vLs}, v{vWr}, v{vDL}")
        g(f"v_cmp_ne_u64 s[{sM4}:{sM4+1}], s[{sT}:{sT+1}], {v(vDL+2,2)}")
        for r in (8, 4, 2, 1):
            g(f"v_add_f32_dpp v{vLs}, v{vLs}, v{vLs} row_ror:{r} row_mask:0xf bank_mask:0xf")
        g(f"""
        v_mov_b32 v{t1}, v{vLs}
        v_permlane16_swap_b32 v{vLs}, v{t1}
        v_add_f32 v{vLs}, v{vLs}, v{t1}
        v_rcp_f32 v{vLs}, v{vLs}
        """)
        for u in range(4):
            g(f"s_waitcnt vmcnt({3-u+nwo})")
            for d in range(4):
                g(f"v_xor_b32 v{vO+4*u+d}, s{sX}, v{vO+4*u+d}")
            if u:
                for d in range(4):
                    g(f"v_bitop3_b32 v{vEr}, v{vEr}, v{vO+4*(u-1)+d}, s{sHI} bitop3:0xf6")
            g(f"{MF} {v(vD,4)}, {v(vFr+4*u,4)}, {v(vO+4*u,4)}, {'0' if u == 0 else v(vD,4)}")
        for d in range(4):
            g(f"v_bitop3_b32 v{vEr}, v{vEr}, v{vO+12+d}, s{sHI} bitop3:0xf6")
        g(f"v_and_b32 v{vEr}, 0x10001, v{vEr}")
        g(f"v_cmp_ne_u32 vcc, 0, v{vEr}")
        g(f"s_or_b64 vcc, vcc, s[{sM4}:{sM4+1}]")
        g("s_cbranch_scc1 L_A_oslow")
        g.lab("L_A_ook")
        if opt.get("stamps"): g(f"s_mov_b32 s100, s{sCNT}")
        for r in range(4):
            g(f"v_mul_f32 v{vD+r}, v{vLs}, v{vD+r}")
        g(f"v_cvt_pk_bf16_f32 v{vD}, v{vD}, v{vD+1}")
        g(f"v_cvt_pk_bf16_f32 v{vD+1}, v{vD+2}, v{vD+3}")
        g(f"ds_write_b64 v{vCW}, {v(vD,2)} offset:{A_CTXC}")
        if wol == 3:
            g(f"s_mul_i32 s{sC}, s{sA}, {32*1152}")
            unit_load(g, WO, vP2, A_WO, sC, 1152, "wo", NT, rows36=False)
        g("s_waitcnt vmcnt(0) lgkmcnt(0)" if wol == 1 else "s_waitcnt lgkmcnt(0)")
        g("s_barrier")
        g.stamp(7)
        vC = 80
        vU = 96
        vG1, vG2 = 104, 108
        vAe, vAo = 116, 120
        vY = 124
        for ks in range(4):
            g(f"ds_read_b128 {v(vC+4*ks,4)}, v{vCX} offset:{A_CTXC+ks*64}")
        g(f"s_lshl_b32 s{sO3}, s{sA}, 10")
        g(f"s_add_u32 s{sO3}, s{sO3}, {HB+LOC}")
        g(f"s_add_u32 s{sO}, s{sHB}, {LOC}")
        g(f"s_and_b32 s{sP4}, s{sT}, 15")
        if opt.get("xcc_tag"):
            local_tag()
            g(f"v_mov_b32 v{vTag+1}, s{sTL+1}")
        sD3, vD3 = 16, 58
        g(f"s_xor_b32 s{sD3}, s{sW}, 3")
        g(f"s_or_b32 s{sD3}, s{sD3}, s{sJ}")
        g(f"s_lshl_b32 s{sTMP}, s{sH}, 7")
        g(f"s_add_u32 s{sTMP}, s{sTMP}, {D3}")
        g(f"v_lshl_add_u32 v{vD3}, v{vL}, 12, s{sTMP}")
        for ks in range(4):
            g(f"s_waitcnt lgkmcnt({3-ks})")
            for tau in range(2):
                g(f"{MF} {v(vU+4*tau,4)}, {A(aUV+(tau*4+ks)*4,4)}, {v(vC+4*ks,4)}, {'0' if ks == 0 else v(vU+4*tau,4)}")
        for r in range(4):
            g(f"v_cndmask_b32 v{vC+r}, v{vU+r}, v{vU+4+r}, s[{sM2}:{sM2+1}]")
            g(f"v_cndmask_b32 v{vC+4+r}, v{vU+4+r}, v{vU+r}, s[{sM2}:{sM2+1}]")
        for r in range(4):
            g(f"v_add_f32_dpp v{vC+r}, v{vC+4+r}, v{vC+r} quad_perm:[2,3,0,1] row_mask:0xf bank_mask:0xf")
        g(f"""
        v_cvt_pk_bf16_f32 v{vTag-2}, v{vC}, v{vC+1}
        v_cvt_pk_bf16_f32 v{vTag-1}, v{vC+2}, v{vC+3}
        s_mov_b32 exec_lo, 0x000f000f
        s_mov_b32 exec_hi, 0x000f000f
        buffer_store_dwordx4 {v(vTag-2,4)}, v{vHBs}, {WS}, s{sO} offen
        s_mov_b64 exec, -1
        """)
        def hb_wt():
            if opt.get("xcc_tag"): g(f"v_mov_b32 v{vTag+1}, s{sT+1}")
            g("s_mov_b32 exec_lo, 0x000f000f")
            g("s_mov_b32 exec_hi, 0x000f000f")
            g(f"buffer_store_dwordx4 {v(vTag-2,4)}, v{vHBs}, {WS}, s{sHB} offen sc1")
            g("s_mov_b64 exec, -1")
        g.stamp(8)
        vRw, vRa = 57, 59
        g(f"""
        v_and_b32 v{t0}, 7, v{vL}
        v_lshlrev_b32 v{vRw}, 6, v{t0}
        v_lshrrev_b32 v{t1}, 3, v{vL}
        v_mul_u32_u24 v{vRa}, {OSTR}, v{t1}
        v_lshl_add_u32 v{vRa}, v{t0}, 4, v{vRa}
        v_lshrrev_b32 v{t0}, 5, v{vL}
        v_lshl_add_u32 v{vRw}, v{t0}, 4, v{vRw}
        v_bfe_u32 v{t0}, v{vL}, 4, 1
        v_lshl_add_u32 v{vRw}, v{t0}, 5, v{vRw}
        v_lshl_add_u32 v{vRw}, s{sW}, 2, v{vRw}
        """)
        if opt.get("hb_nop"): g(f"s_nop {opt['hb_nop']}")
        g(f"s_mov_b32 s{sCNT}, 0")
        if wol >= 2:
            g("s_waitcnt vmcnt(1)")
            g("s_barrier")
        if wol: wo_frags()
        g.lab("L_A_hbld")
        g(f"buffer_load_dwordx4 {v(vG1,4)}, v{vHBl}, {WS}, s{sO3} offen sc1")
        g(f"buffer_load_dwordx4 {v(vG2,4)}, v{vHBl}, {WS}, s{sO3} offen offset:512 sc1")
        g("s_waitcnt vmcnt(0)")
        TL = sTL if opt.get("xcc_tag") else sT
        g(f"v_cmp_ne_u64 vcc, s[{TL}:{TL+1}], {v(vG1+2,2)}")
        g(f"v_cmp_ne_u64 s[{sM3}:{sM3+1}], s[{TL}:{TL+1}], {v(vG2+2,2)}")
        src = [vG1, vG1 + 1, vG2, vG2 + 1]
        for d in range(4):
            g(f"v_cndmask_b32 v{vAe+d}, 0, v{src[d]}, s[{sM1}:{sM1+1}]")
        g(f"s_or_b64 vcc, vcc, s[{sM3}:{sM3+1}]")
        g("s_cbranch_scc1 L_A_hbpoll")
        g.lab("L_A_hbdone")
        g.stamp(9)
        def d3bell():
            g(f"s_cmp_lg_u32 s{sD3}, 0")
            g("s_cbranch_scc1 L_A_nod3")
            g("s_mov_b64 exec, 0xff")
            g(f"buffer_store_dword v{vTag}, v{vD3}, {WS}, 0 offen sc1")
            g("s_mov_b64 exec, -1")
            g.lab("L_A_nod3")
        if opt.get("d3_pos", 0) == 0 and opt.get("h3_bell", 1): d3bell()
        for d in range(4):
            g(f"v_cndmask_b32 v{vAo+d}, v{src[d]}, 0, s[{sM1}:{sM1+1}]")
        if wol: g("s_waitcnt lgkmcnt(0)")
        for t in range(4):
            g(f"{MF} {v(vY+4*t,4)}, {v(vAe,4)}, {A(aWO+(t*2)*4,4)}, 0")
        for t in range(4):
            g(f"{MF} {v(vY+4*t,4)}, {v(vAo,4)}, {A(aWO+(t*2+1)*4,4)}, {v(vY+4*t,4)}")
        g(f"{MF} {v(vY+16,4)}, {v(vAe,4)}, {A(aWO+32,4)}, 0")
        g(f"{MF} {v(vY+16,4)}, {v(vAo,4)}, {A(aWO+36,4)}, {v(vY+16,4)}")
        for t in range(4):
            g(f"v_pk_add_f32 {v(vY+4*t,2)}, {v(vY+4*t,2)}, {v(vY+4*t+2,2)}")
        for t in range(4):
            g(f"v_add_f32 v{vC+t}, v{vY+4*t}, v{vY+4*t+1}")
        for t in range(4):
            g(f"v_and_or_b32 v{vC+t}, v{vC+t}, -16, s{sP4}")
        g(f"buffer_store_dwordx4 {v(vC,4)}, v{vA_l16}, {WS}, s{sH3m} offen sc1")
        g(f"s_cmp_gt_u32 s{sW}, 1")
        g("s_cbranch_scc1 L_A_no5b")
        g(f"v_pk_add_f32 {v(vY+16,2)}, {v(vY+16,2)}, {v(vY+18,2)}")
        g(f"v_add_f32 v{vY+16}, v{vY+16}, v{vY+17}")
        g(f"v_and_or_b32 v{vY+16}, v{vY+16}, -16, s{sP4}")
        g(f"buffer_store_dword v{vY+16}, v{vH3x}, {WS}, s{sH3l} offen sc1")
        g.lab("L_A_no5b")
        if opt.get("d3_pos", 0) == 1: d3bell()
        if not opt.get("xcc_tag"): hb_wt()
        else: g(f"v_mov_b32 v{vTag+1}, s{sT+1}")
        g.stamp(10)
        g(f"s_cmp_ge_u32 s{sU}, 36")
        g("s_cbranch_scc1 L_A_exit")
        vRd = [144, 160]
        sRa = [sO, sO3, sC, sHB]
        g(f"""
        s_lshl_b32 s{sTMP}, s{sXCD}, 2
        s_add_u32 s{sTMP}, s{sTMP}, s{sW}
        s_lshl_b32 s{sTMP}, s{sTMP}, 10
        s_add_u32 s{sTMP}, s{sTMP}, {D3}
        s_add_u32 s{sBP}, s4, s{sTMP}
        s_addc_u32 s{sBP+1}, s5, 0
        """)
        def d3poll():
            for k in range(8):
                g(f"s_load_dword s{16+k}, s[{sBP}:{sBP+1}], {k*128} glc")
        if opt.get("h3_bell", 1): d3poll()
        g(f"""
        s_lshl_b32 s{sO2}, s{sW}, 12
        s_mul_i32 s{sO3}, s{sU}, {USTR}
        s_add_u32 s{sO2}, s{sO2}, s{sO3}
        s_add_u32 s{sO2}, s{sO2}, {H3}
        """)
        def rget(part):
            for u in range(4):
                if part: g(f"buffer_load_dwordx4 {v(vRd[1]+4*u,4)}, v{vA_l16}, {WS}, s{sO2} offen offset:{u*1024} sc1")
                else: g(f"buffer_load_dwordx4 {v(vRd[0]+4*u,4)}, v{vRa}, {WS}, s{sRa[u]} offen sc1")
        if not opt.get("r_both"): rget(1)
        g(f"""
        s_mul_i32 s{sO}, s{sW}, {32*OSTR}
        s_lshl_b32 s{sTMP}, s{sU}, 7
        s_add_u32 s{sO}, s{sO}, s{sTMP}
        s_add_u32 s{sO}, s{sO}, {OB}
        s_add_u32 s{sO3}, s{sO}, {8*OSTR}
        s_add_u32 s{sC}, s{sO}, {16*OSTR}
        s_add_u32 s{sHB}, s{sO}, {24*OSTR}
        s_mov_b32 s{sCNT}, 0
        s_branch {"L_A_d3chk" if opt.get("h3_bell", 1) else "L_A_d3go"}
        """)
        g.lab("L_A_d3poll")
        d3poll()
        spin_guard(g, "L_A_d3go")
        g.lab("L_A_d3chk")
        g("s_waitcnt lgkmcnt(0)")
        for k in range(0, 8, 2):
            g(f"s_xor_b64 s[{16+k}:{17+k}], s[{16+k}:{17+k}], s[{sTT}:{sTT+1}]")
        g("s_or_b64 s[16:17], s[16:17], s[18:19]")
        g("s_or_b64 s[20:21], s[20:21], s[22:23]")
        g("s_or_b64 s[16:17], s[16:17], s[20:21]")
        g("s_cbranch_scc1 L_A_d3poll")
        g.lab("L_A_d3go")
        g(f"s_mov_b32 s{sCNT}, 0")
        if opt.get("h3_ack", 0): g(f"s_waitcnt vmcnt({0 if opt.get('r_both') else 4})")
        if opt.get("r_both"): rget(1)
        if opt.get("st14"): g.stamp(14)
        rget(0)
        def rsum(part, waits):
            R = vRd[part]
            for u in range(4):
                if waits[u] is not None: g(f"s_waitcnt vmcnt({waits[u]})")
                for d in range(4):
                    g(f"v_xor_b32 v{R+4*u+d}, s{sP4}, v{R+4*u+d}")
                if u == 0:
                    g(f"v_or3_b32 v{vEr}, v{R}, v{R+1}, v{R+2}")
                    g(f"v_or_b32 v{vEr}, v{vEr}, v{R+3}")
                else:
                    g(f"v_pk_add_f32 {v(vY,2)}, {v(R if u == 1 else vY,2)}, {v(R+4*u,2)}")
                    g(f"v_pk_add_f32 {v(vY+2,2)}, {v(R+2 if u == 1 else vY+2,2)}, {v(R+4*u+2,2)}")
                    g(f"v_or3_b32 v{vEr}, v{vEr}, v{R+4*u}, v{R+4*u+1}")
                    g(f"v_or3_b32 v{vEr}, v{vEr}, v{R+4*u+2}, v{R+4*u+3}")
            g(f"v_permlane32_swap_b32 v{vY}, v{vY+1}")
            g(f"v_permlane32_swap_b32 v{vY+2}, v{vY+3}")
            g(f"v_and_b32 v{vEr}, 15, v{vEr}")
            g(f"v_add_f32 v{vY}, v{vY}, v{vY+1}")
            g(f"v_add_f32 v{vY+2}, v{vY+2}, v{vY+3}")
            g(f"v_cmp_ne_u32 vcc, 0, v{vEr}")
            g(f"v_permlane16_swap_b32 v{vY}, v{vY+2}")
            g(f"v_add_f32 v{vY}, v{vY}, v{vY+2}")
        def rfin(part):
            g(f"v_add_f32_dpp v{vY}, v{vY}, v{vY} row_ror:8 row_mask:0xf bank_mask:0xf")
            g(f"ds_write_b32 v{vRw}, v{vY} offset:{A_RED + part*512}")
        sPend = sM3
        rsum(1, [4, None, None, None])
        g(f"s_mov_b64 s[{sPend}:{sPend+1}], vcc")
        rfin(1)
        g.lab("L_A_r0sum")
        rsum(0, [3, 2, 1, 0])
        g("s_cbranch_vccnz L_A_r0slow")
        g.lab("L_A_r0ok")
        rfin(0)
        g(f"s_cmp_lg_u64 s[{sPend}:{sPend+1}], 0")
        g("s_cbranch_scc1 L_A_r1slow")
        g.lab("L_A_r1ok")
        g.stamp(12)
        if opt.get("stamps"):
            g(f"s_lshl_b32 s{sCNT}, s{sCNT}, 8")
            g(f"s_or_b32 s100, s100, s{sCNT}")
        g("s_waitcnt lgkmcnt(0)")
        g("s_barrier")
        g(f"s_cmp_lg_u32 s{sW}, 0")
        g("s_cbranch_scc1 L_A_exit")
        R = 144
        g(f"""
        s_mov_b32 exec_hi, 0
        ds_read_b128 {v(R,4)}, v{vA_l16} offset:{A_RED}
        ds_read_b128 {v(R+4,4)}, v{vA_l16} offset:{A_RED+512}
        v_sub_f32 v{t0}, 1.0, v{vFB}
        s_waitcnt lgkmcnt(0)
        v_pk_add_f32 {v(R,2)}, {v(R,2)}, {v(R+2,2)}
        v_pk_add_f32 {v(R+4,2)}, {v(R+4,2)}, {v(R+6,2)}
        v_add_f32 v{R}, v{R}, v{R+1}
        v_add_f32 v{R+4}, v{R+4}, v{R+5}
        v_add_f32 v{R+4}, v{R+4}, v{vB2}
        v_mul_f32 v{R+4}, v{t0}, v{R+4}
        v_fma_f32 v{R}, v{vFB}, v{R}, v{R+4}
        v_cvt_pk_bf16_f32 v{R}, v{R}, v{R}
        buffer_store_short v{R}, v{vOA}, {OUT}, 0 offen {opt.get("out_fl", "")}
        s_cmp_lg_u32 s{sU}, 0
        s_cbranch_scc1 L_A_exit
        s_mov_b64 exec, 1
        buffer_store_dwordx2 {v(vTag,2)}, v{vA_l16}, {WS}, 0 offen offset:{EPOCH} {opt.get("ep_fl", "sc1")}
        """)
        if opt.get("probe") is not None:
            i = opt["probe"]
            g.stamp(13)
            g("s_waitcnt lgkmcnt(0)")
            g(f"s_sub_u32 s{sO}, s{70+2*i}, s70")
            g(f"s_lshl_b32 s{sO}, s{sO}, 2")
            if opt.get("dcount"):
                g(f"""
                s_load_dwordx2 s[32:33], s[0:1], 104
                s_mov_b32 s34, 256
                s_mov_b32 s35, 0x00020000
                v_mov_b32 v7, {4*(opt["dcount"]-1)}
                s_waitcnt lgkmcnt(0)
                buffer_load_dword v6, v7, s[32:35], 0 offen sc1
                s_waitcnt vmcnt(0)
                v_readfirstlane_b32 s{sO}, v6
                s_mul_i32 s{sO}, s{sO}, 50
                """)
            if opt.get("resid") is not None:
                g(f"""
                s_load_dwordx2 s[32:33], s[0:1], 104
                s_mov_b32 s34, 256
                s_mov_b32 s35, 0x00020000
                v_mov_b32 v7, 0
                s_waitcnt lgkmcnt(0)
                buffer_load_dword v6, v7, s[32:35], 0 offen offset:{4*opt.get("rbin", 1)} sc1
                s_waitcnt vmcnt(0)
                s_nop 1
                v_readfirstlane_b32 s{sO}, v6
                s_mul_i32 s{sO}, s{sO}, 50
                """)
            if opt.get("clk"):
                g.lab("L_clk")
                g(f"s_memrealtime s[{sTMP}:{sTMP+1}]")
                g("s_waitcnt lgkmcnt(0)")
                g(f"s_sub_u32 s{sTMP}, s{sTMP}, s70")
                g(f"s_cmp_lt_u32 s{sTMP}, {opt['clk']}")
                g("s_cbranch_scc1 L_clk")
                g(f"s_memtime s[{sTMP}:{sTMP+1}]")
                g("s_waitcnt lgkmcnt(0)")
                g(f"s_sub_u32 s{sO}, s{sTMP}, s98")
                g(f"s_lshr_b32 s{sO}, s{sO}, 3")
            g(f"s_add_u32 s{sO}, s{sO}, 4000")
            g.lab("L_probe")
            g(f"s_memrealtime s[{sTMP}:{sTMP+1}]")
            g("s_waitcnt lgkmcnt(0)")
            g(f"s_sub_u32 s{sTMP}, s{sTMP}, s70")
            g(f"s_cmp_lt_u32 s{sTMP}, s{sO}")
            g("s_cbranch_scc1 L_probe")
            g("s_endpgm")
        g.lab("L_A_exit")
        g.stamp(13)
        dump_stamps(g, 16, 216)
        g("s_endpgm")
        if pB:
            g.lab("L_A_h0poll")
            spin_guard(g, "L_A_h0done")
            g("s_branch L_A_h0get")
        else:
            g.lab("L_A_h0poll")
            spin_guard(g, "L_A_h0done")
            g(f"s_cmp_lg_u32 s{sCNT}, 8")
            g("s_cbranch_scc1 L_A_h0ns")
            h0_wt()
            g.lab("L_A_h0ns")
            dual_next(g, sib[1:])
            h0loads()
            g("s_waitcnt vmcnt(0)")
            g("s_branch L_A_h0chk")
        g.lab("L_A_oslow")
        spin_guard(g, "L_A_ook")
        oget()
        g("s_waitcnt vmcnt(0)")
        g("s_branch L_A_ocomb")
        g.lab("L_A_hbpoll")
        spin_guard(g, "L_A_hbdone")
        g(f"s_cmp_lg_u32 s{sCNT}, 8")
        g("s_cbranch_scc1 L_A_hbns")
        hb_wt()
        g.lab("L_A_hbns")
        dual_next(g, [sO3])
        g("s_branch L_A_hbld")
        g.lab("L_A_r0slow")
        spin_guard(g, "L_A_r0ok")
        rget(0)
        g("s_branch L_A_r0sum")
        g.lab("L_A_r1slow")
        spin_guard(g, "L_A_r1ok")
        rget(1)
        rsum(1, [3, 2, 1, 0])
        g("s_cbranch_vccnz L_A_r1slow")
        rfin(1)
        g("s_branch L_A_r1ok")

class RoleB:
    def __init__(self, g, NT, vL, vN, vG):
        self.g, self.NT, self.vL, self.vN, self.vG = g, NT, vL, vN, vG

    def issue(self):
        g, vL = self.g, self.vL
        if g.opt.get("p1a_on") == "B":
            vN, vG, NT = self.vN, self.vG, self.NT
            srd_tail(g, 12, 576 * 8192)
            srd_tail(g, 8, 2304)
            g(f"""
            s_lshr_b32 s{sC}, s{sI}, 2
            s_lshl_b32 s{sC}, s{sC}, 3
            s_add_u32 s{sC}, s{sC}, s{sXCD}
            s_and_b32 s{sO}, s{sI}, 3
            v_mul_u32_u24 v5, {36*8192}, v{vG}
            v_lshl_add_u32 v5, v{vN}, 4, v5
            s_lshl_b32 s{sO2}, s{sO}, 4
            s_add_u32 s{sO2}, s{sO2}, s{sW}
            s_mul_i32 s{sO2}, s{sO2}, 9
            s_lshl_b32 s{sO3}, s{sO2}, 13
            s_lshl_b32 s{sTMP}, s{sC}, 8
            s_add_u32 s{sO3}, s{sO3}, s{sTMP}
            v_bfe_u32 v4, v{vL}, 3, 1
            v_mul_u32_u24 v4, 1152, v4
            v_mad_u32_u24 v4, v{vG}, 64, v4
            v_lshl_add_u32 v4, v{vG}, 3, v4
            s_lshr_b32 s{sO2}, s{sO2}, 1
            s_lshl_b32 s{sO2}, s{sO2}, 2
            s_waitcnt lgkmcnt(0)
            buffer_load_dwordx4 v[64:67], v4, {X}, s{sO2} offen
            buffer_load_dword v68, v4, {X}, s{sO2} offen offset:16
            """)
            for i in range(9):
                g(f"buffer_load_dwordx4 {A(4*i,4)}, v5, s[12:15], s{sO3} offen {NT}")
                if i != 8: g(f"s_addk_i32 s{sO3}, 0x2000")
            load_tag(g)
            g(f"""
            s_lshl_b32 s{sC}, s{sC}, 2
            s_add_u32 s{sC}, s{sC}, s{sO}
            s_lshl_b32 s{sC}, s{sC}, 10
            s_add_u32 s{sC}, s{sC}, {H0}
            """)
            return
        if g.opt.get("numa"):
            PFL = g.opt.get("pf_lines", 4)
            srd_tail(g, 28, 2 * 4096 * 1024)
            g(f"""
            s_and_b32 s{sMSG}, s{sXCD}, 1
            s_lshl_b32 s{sMSG}, s{sMSG}, 4
            s_and_b32 s{sO3}, s{sI}, 14
            s_add_u32 s{sMSG}, s{sMSG}, s{sO3}
            s_bfe_u32 s{sO3}, s{sXCD}, 0x10001
            s_add_u32 s{sMSG}, s{sMSG}, s{sO3}
            s_lshl_b32 s{sO3}, s{sMSG}, 18
            s_and_b32 s{sC}, s{sI}, 1
            s_lshl_b32 s{sC}, s{sC}, 8
            s_add_u32 s{sO3}, s{sO3}, s{sC}
            s_add_u32 s{sC}, s{sO3}, 0x2000
            v_lshlrev_b32 v4, 7, v{vL}
            {"" if g.opt.get("tlb") else "s_waitcnt lgkmcnt(0)"}
            s_cmp_lg_u32 s{sW}, 3
            s_cbranch_scc1 L_B_nopr
            {"s_memtime s[16:17]" if g.opt.get("dcount") else ""}
            {"s_waitcnt lgkmcnt(0)" if g.opt.get("dcount") else ""}
            s_mov_b64 exec, {(1 << g.opt.get("plines", 1)) - 1}
            {"v_lshlrev_b32 v8, 14, v1" if g.opt.get("plines", 1) > 1 else "v_mov_b32 v8, 0"}
            {f"buffer_load_dword v60, v8, s[28:31], s{sO3} offen offset:2048" if g.opt.get("pwarm") else ""}
            {f"buffer_load_dword v61, v8, s[28:31], s{sC} offen offset:2048" if g.opt.get("pwarm") else ""}
            {"s_waitcnt vmcnt(0) lgkmcnt(0)" if g.opt.get("pwarm") else ""}
            buffer_load_dword v60, v8, s[28:31], s{sO3} offen
            buffer_load_dword v61, v8, s[28:31], s{sC} offen
            s_mul_i32 s{sTMP}, s{sI}, {2*PFL*128}
            s_mov_b64 exec, {(1 << (2*PFL)) - 1}
            v_add_u32 v5, s{sTMP}, v4
            global_load_dword v63, v5, s[{sPC}:{sPC+1}]
            s_lshr_b32 s{sO}, s{sI}, 2
            s_lshl_b32 s{sO}, s{sO}, 3
            s_add_u32 s{sO}, s{sO}, s{sXCD}
            s_lshl_b32 s{sO}, s{sO}, 2
            s_and_b32 s{sO2}, s{sI}, 3
            s_add_u32 s{sO}, s{sO}, s{sO2}
            s_lshl_b32 s{sO2}, s{sO}, 11
            s_add_u32 s{sO2}, s{sO2}, {H0+LOC}
            s_mov_b64 exec, 0xffff
            buffer_load_dword v62, v4, {WS}, s{sO2} offen
            s_lshl_b32 s{sO}, s{sO}, 10
            s_add_u32 s{sO2}, s{sO}, {HB+LOC}
            s_mov_b64 exec, 0xff
            buffer_load_dword v62, v4, {WS}, s{sO2} offen
            s_add_u32 s{sO2}, s{sO}, {D3}
            buffer_load_dword v62, v4, {WS}, s{sO2} offen
            s_mov_b64 exec, -1
            s_waitcnt vmcnt(5)
            s_memtime s[34:35]
            s_waitcnt vmcnt(4)
            s_memtime s[38:39]
            s_waitcnt lgkmcnt(0)
            s_sub_u32 s38, s38, s34
            s_cmp_lt_u32 s38, {g.opt.get("gap", 100)}
            s_cselect_b32 s{sO3}, 1, 0
            v_mov_b32 v6, s{sO3}
            v_mov_b32 v7, {B_PHI}
            ds_write_b32 v7, v6
            s_waitcnt lgkmcnt(0)
            """)
            if g.opt.get("stamps"): g("s_mov_b32 s88, s38")
            if g.opt.get("dcount"):
                g(f"""
                s_load_dwordx2 s[20:21], s[0:1], 104
                s_mov_b32 s22, 256
                s_mov_b32 s23, 0x00020000
                s_sub_u32 s16, s34, s16
                s_lshr_b32 s16, s16, 8
                s_min_u32 s16, s16, 7
                s_lshl_b32 s16, s16, 2
                s_lshr_b32 s17, s38, 6
                s_min_u32 s17, s17, 6
                s_lshl_b32 s17, s17, 2
                s_add_u32 s17, s17, 32
                v_mov_b32 v6, 1
                v_mov_b32 v7, 0
                s_waitcnt lgkmcnt(0)
                s_mov_b64 exec, 1
                buffer_atomic_add v6, v7, s[20:23], s16 offen sc1
                buffer_atomic_add v6, v7, s[20:23], s17 offen sc1
                s_mov_b64 exec, -1
                """)
            g.lab("L_B_nopr")
            return
        g(f"""
        s_lshr_b32 s{sO}, s{sI}, 2
        s_lshl_b32 s{sO}, s{sO}, 3
        s_add_u32 s{sO}, s{sO}, s{sXCD}
        s_lshl_b32 s{sO}, s{sO}, 2
        s_and_b32 s{sO2}, s{sI}, 3
        s_add_u32 s{sO}, s{sO}, s{sO2}
        s_lshl_b32 s{sO2}, s{sO}, 11
        s_add_u32 s{sO2}, s{sO2}, {H0+LOC}
        s_lshl_b32 s{sO}, s{sO}, 10
        s_add_u32 s{sO}, s{sO}, {HB+LOC}
        s_cmp_eq_u32 s{sW}, 1
        s_cselect_b32 s{sO}, s{sO}, s{sO2}
        s_lshl_b32 s{sO2}, s{sXCD}, 4
        s_add_u32 s{sO2}, s{sO2}, s{sI}
        s_lshl_b32 s{sO2}, s{sO2}, 10
        s_add_u32 s{sO2}, s{sO2}, {D3}
        s_cmp_eq_u32 s{sW}, 2
        s_cselect_b32 s{sO}, s{sO2}, s{sO}
        s_cselect_b32 s{sTMP}, 0xff, -1
        s_and_b32 s{sTMP}, s{sTMP}, 0xffff
        s_mov_b32 s{sTMP+1}, 0
        v_lshlrev_b32 v4, 7, v{vL}
        """)
        if not g.opt.get("tlb"): g("s_waitcnt lgkmcnt(0)")
        if g.opt.get("uk_help"):
            srd_tail(g, 16, 512 * 8192)
            g(f"""
            v_lshlrev_b32 v6, 13, v{self.vG}
            v_lshl_add_u32 v6, v{self.vN}, 4, v6
            s_and_b32 s{sO3}, s{sI}, 3
            s_lshl_b32 s{sO3}, s{sO3}, 2
            s_add_u32 s{sO3}, s{sO3}, s{sW}
            s_lshl_b32 s{sO3}, s{sO3}, 18
            s_lshr_b32 s{sC}, s{sI}, 2
            s_lshl_b32 s{sC}, s{sC}, 3
            s_add_u32 s{sC}, s{sC}, s{sXCD}
            s_lshl_b32 s{sC}, s{sC}, 8
            s_add_u32 s{sO3}, s{sO3}, s{sC}
            """)
            for k in range(8):
                g(f"buffer_load_dwordx4 {A(252,4)}, v6, s[16:19], s{sO3} offen")
                if k < 7: g(f"s_add_u32 s{sO3}, s{sO3}, 0x8000")
        load_tag(g)
        g(f"""
        {"s_cmp_lg_u32" if g.opt.get("split") else "s_cmp_gt_u32"} s{sW}, 2
        s_cbranch_scc1 L_B_head
        s_mov_b64 exec, s[{sTMP}:{sTMP+1}]
        buffer_load_dword v62, v4, {WS}, s{sO} offen
        s_mov_b64 exec, -1
        """)

    def rest(self):
        g, NT, vL, vN, vG = self.g, self.NT, self.vL, self.vN, self.vG
        opt = g.opt
        CKV, W2, B1, W1 = "s[28:31]", "s[20:23]", "s[24:27]", "s[16:19]"
        t0, t1, t2, t3 = 4, 5, 6, 7
        vL16 = 12
        vOa = 13
        vH3, vH3x = 14, 15
        vB1 = 22
        vSB = 24
        vQBs = 28
        vPVb = 16
        vTag = 36
        vML = 34
        vMXw, vMXr = 38, 39
        vD2a = 40
        vPw = 41
        vP2 = 42
        vT20, vT21, vK20, vK21 = 52, 53, 54, 55
        vHg, vHw = 56, 57
        vHe, vHo, vHke, vHko = 58, 59, 60, 61
        vQd = 8
        aS, aP = 0, 128
        sOo = 61
        sH3m, sH3l = 62, 63
        sD2, sGot = 59, 58
        sBP, sTT = 34, sPC
        sQg = 33
        sPat, sMk = 32, 36
        srd_tail(g, 28, 2 * 4096 * 1024)
        vW1, vW2 = 168, 212
        vXr = 64
        vSel = 88
        vXA = 96
        vW1a, vHs = 164, 165
        sRho, sBlk, sR0 = 38, 39, 56
        numa = opt.get("numa", 0)
        sCk = 37
        if numa:
            assert not opt.get("ckv_x", 1)
            sPhi, sDP = 38, 18
            def ckv_base():
                g(f"""
                s_lshl_b32 s{sCk}, s{sMSG}, 2
                s_add_u32 s{sCk}, s{sCk}, s{sW}
                s_lshl_b32 s{sCk}, s{sCk}, 3
                s_add_u32 s{sCk}, s{sCk}, s{sPhi}
                s_lshl_b32 s{sCk}, s{sCk}, 13
                s_lshl_b32 m0, s{sW}, 15
                s_add_u32 m0, m0, {B_CKV}
                """)
            def phi_get():
                g(f"""
                v_mov_b32 v{t0}, {B_PHI}
                s_barrier
                ds_read_b32 v{t1}, v{t0}
                s_waitcnt lgkmcnt(0)
                v_readfirstlane_b32 s{sPhi}, v{t1}
                """)
                if opt.get("numa_force") is not None: g(f"s_xor_b32 s{sPhi}, s{sPhi}, {opt['numa_force']}")
                ckv_base()
            g(f"s_and_b32 s{sB}, s{sXCD}, 1")
            g(f"v_lshlrev_b32 v{vL16}, 4, v{vL}")
            phi_get()
            load_tag(g)
        else:
            g(f"""
            s_and_b32 s{sB}, s{sXCD}, 1
            s_lshr_b32 s{sMSG}, s{sI}, 1
            s_lshl_b32 s{sMSG}, s{sMSG}, 2
            s_lshr_b32 s{sO}, s{sXCD}, 1
            s_add_u32 s{sMSG}, s{sMSG}, s{sO}
            s_lshl_b32 s{sO}, s{sB}, 5
            s_add_u32 s{sMSG}, s{sMSG}, s{sO}
            v_lshlrev_b32 v{vL16}, 4, v{vL}
            """)
            sCk = 37
            g(f"""
            s_lshl_b32 s{sCk}, s{sMSG}, 2
            s_add_u32 s{sCk}, s{sCk}, s{sW}
            s_lshl_b32 s{sCk}, s{sCk}, 15
            s_lshl_b32 m0, s{sW}, 15
            s_add_u32 m0, m0, {B_CKV}
            """)
            if opt.get("ckv_x", 1):
                g(f"s_and_b32 s{sGot}, s{sI}, 1")
                g(f"s_lshl_b32 s{sGot}, s{sGot}, 14")
                g(f"s_add_u32 s{sCk}, s{sCk}, s{sGot}")
                g(f"s_lshl_b32 s{sGot}, s{sGot}, 1")
        rot = opt.get("ckv_rot", 0)
        sCb = 57
        if rot:
            assert not numa and not opt.get("ckv_x", 1)
            g(f"""
            s_mov_b32 s{sCb}, s{sCk}
            s_lshl_b32 s{sGot}, s{sW}, 1
            s_add_u32 s{sGot}, s{sGot}, s{sMSG}
            """)
            if rot == 2:
                g(f"s_lshl_b32 s{sTMP}, s{sI}, 2")
                g(f"s_add_u32 s{sGot}, s{sGot}, s{sTMP}")
            g(f"""
            s_and_b32 s{sGot}, s{sGot}, 7
            s_lshl_b32 s{sGot}, s{sGot}, 12
            s_add_u32 s{sCk}, s{sCb}, s{sGot}
            """)
        def ckv_stream(k0, k1):
            thr = opt.get("ckv_thr")
            for k in range(k0, k1):
                f = f16sw(k & 15)
                tmp = t0 + (k & 1)
                g(f"v_xor_b32 v{tmp}, {f*16}, v{vL16}")
                if thr is not None: g(f"s_waitcnt vmcnt({thr-1})")
                g(f"buffer_load_dwordx4 v{tmp}, {CKV}, s{sCk} offen offset:{(k%4)*1024} {opt.get('nt_c', NT)} lds")
                if k % 4 == 3:
                    if rot:
                        g(f"s_addk_i32 s{sGot}, 0x1000")
                        g(f"s_and_b32 s{sGot}, s{sGot}, 0x7000")
                        g(f"s_add_u32 s{sCk}, s{sCb}, s{sGot}")
                    else:
                        g(f"s_addk_i32 s{sCk}, {0x3000 if (numa and k % 8 == 7) else 0x1000}")
                    g(f"s_add_u32 m0, m0, 0x1000")
                if k == 15 and opt.get("ckv_x", 1): g(f"s_sub_u32 s{sCk}, s{sCk}, s{sGot}")
        c1_, c2_ = opt.get("ckv_a", 0), opt.get("ckv_b", 0)
        g.stamp(13)
        ckv_stream(0, c1_)
        g.l.append(";;SPLIT")
        pB = opt.get("p1a_on") == "B"
        if pB:
            vX, vSl, vF, vQp = 64, 72, 80, 116
            selectors(g, vSl, vL, t0, t1, t2)
            g(f"s_and_b32 s{sO}, s{sW}, 1")
            g(f"s_lshl_b32 s{sO}, s{sO}, 4")
            g(f"""
            s_cmp_lg_u32 s{sW}, 2
            s_cbranch_scc1 L_B_nt
            s_lshl_b32 s{sO2}, s{sXCD}, 4
            s_add_u32 s{sO2}, s{sO2}, s{sI}
            s_lshl_b32 s{sO2}, s{sO2}, 10
            s_add_u32 s{sO2}, s{sO2}, {D3}
            v_lshlrev_b32 v{t0}, 7, v{vL}
            s_mov_b64 exec, 0xff
            buffer_load_dword v62, v{t0}, {WS}, s{sO2} offen
            s_mov_b64 exec, -1
            """)
            g.lab("L_B_nt")
            g(f"s_waitcnt vmcnt({9+c1_})")
            for k in range(5):
                g(f"v_alignbit_b32 v{vX+k}, v{vX+k+1}, v{vX+k}, s{sO}")
            for i in range(9):
                for d in range(4):
                    g(f"v_perm_b32 v{vF+4*i+d}, v{vX+(i>>1)}, v{vX+(i>>1)}, v{vSl+4*(i&1)+d}")
            cm = opt.get("ckv_m", 0)
            c0 = c1_
            for i in range(9):
                g(f"s_waitcnt vmcnt({8-i+c1_})")
                g(f"{MF} {v(vQp,4)}, {v(vF+4*i,4)}, {A(4*i,4)}, {'0' if i == 0 else v(vQp,4)}")
                if i >= 9 - cm:
                    ckv_stream(c1_, c1_ + 1); c1_ += 1
            g(f"s_cmp_eq_u32 s{sW}, 0")
            g("s_cbranch_scc1 L_B_w0a")
            g(f"v_lshl_add_u32 v{t2}, s{sW}, 10, v{vL16}")
            g(f"ds_write_b128 v{t2}, {v(vQp,4)} offset:{B_PB}")
            g("s_waitcnt lgkmcnt(0)")
            g("s_barrier")
            g("s_branch L_B_w0b")
            g.lab("L_B_w0a")
            g("s_waitcnt lgkmcnt(0)")
            g(f"s_add_u32 s{sO}, s{sT}, {K0}")
            g(f"s_and_b32 s{sO}, s{sO}, 15")
            g("s_barrier")
            for k in range(3):
                g(f"ds_read_b128 {v(vF+4*k,4)}, v{vL16} offset:{B_PB+(k+1)*1024}")
            g("s_waitcnt lgkmcnt(1)")
            g(f"v_pk_add_f32 {v(vQp,2)}, {v(vQp,2)}, {v(vF,2)}")
            g(f"v_pk_add_f32 {v(vQp+2,2)}, {v(vQp+2,2)}, {v(vF+2,2)}")
            g("s_waitcnt lgkmcnt(0)")
            g(f"v_pk_add_f32 {v(vF+4,2)}, {v(vF+4,2)}, {v(vF+8,2)}")
            g(f"v_pk_add_f32 {v(vF+6,2)}, {v(vF+6,2)}, {v(vF+10,2)}")
            g(f"v_pk_add_f32 {v(vQp,2)}, {v(vQp,2)}, {v(vF+4,2)}")
            g(f"v_pk_add_f32 {v(vQp+2,2)}, {v(vQp+2,2)}, {v(vF+6,2)}")
            for r in range(4):
                g(f"v_and_or_b32 v{vQp+r}, v{vQp+r}, -16, s{sO}")
            g(f"buffer_store_dwordx4 {v(vQp,4)}, v{vL16}, {WS}, s{sC} offen sc1")
            g.lab("L_B_w0b")
            g.stamp(9)
            cq = opt.get("ckv_q", 0)
            ckv_stream(c1_, c1_ + cq); c1_ += cq
        srd(g, 20, 9, 4608 * 1152)
        srd(g, 24, 8, 9216)
        if opt.get("w1_on") == "B":
            srd(g, 16, 7, 576 * 9216)
            srd_tail(g, 8, 2304)
        g(f"""
        s_and_b32 s{sHG}, s{sI}, 1
        s_lshl_b32 s{sU2}, s{sXCD}, 4
        s_add_u32 s{sU2}, s{sU2}, s{sI}
        s_mov_b32 s{sPR}, s{sU2}
        s_mov_b32 s{sPOI}, {POISON}
        v_mul_u32_u24 v{vOa}, {16*OSTR}, v{vG}
        v_lshl_add_u32 v{vOa}, v{vN}, 4, v{vOa}
        """)
        def msg_addr():
            g(f"""
        s_lshl_b32 s{sOo}, s{sHG}, 6
        s_add_u32 s{sOo}, s{sOo}, s{sW}
        s_mul_i32 s{sOo}, s{sOo}, {OSTR}
        s_lshl_b32 s{sO}, s{sMSG}, 8
        s_add_u32 s{sOo}, s{sOo}, s{sO}
        s_add_u32 s{sOo}, s{sOo}, {OB}
        s_lshl_b32 s{sD2}, s{sHG}, 6
        s_add_u32 s{sD2}, s{sD2}, s{sMSG}
        s_lshl_b32 s{sD2}, s{sD2}, 8
        s_add_u32 s{sD2}, s{sD2}, {D2}
            """)
        if not numa: msg_addr()
        h3_addr(g, vH3, vH3x, vL, vN, vG, t0)
        h3_soffs(g, sH3m, sH3l)
        def fsw(dst, src, tmp):
            g(f"v_lshrrev_b32 v{tmp}, 3, v{src}")
            g(f"v_and_b32 v{dst}, 7, v{src}")
            g(f"v_lshl_add_u32 v{dst}, v{dst}, 1, v{tmp}")
            g(f"v_lshlrev_b32 v{tmp}, 3, v{tmp}")
            g(f"v_xor_b32 v{dst}, v{dst}, v{tmp}")
        fsw(t2, vN, t3)
        g(f"""
        v_xor_b32 v{t2}, v{t2}, v{vG}
        v_lshlrev_b32 v{t2}, 4, v{t2}
        v_lshl_add_u32 v{t2}, v{vN}, 10, v{t2}
        s_lshl_b32 s{sO}, s{sW}, 15
        s_add_u32 s{sO}, s{sO}, {B_CKV}
        """)
        assert B_QF == 0
        for q in range(4):
            g(f"v_xor_b32 v{vQBs+q}, {q*64}, v{t2}")
            g(f"v_add_u32 v{vSB+q}, s{sO}, v{vQBs+q}")
        g(f"v_lshrrev_b32 v{t0}, 2, v{vL}")
        fsw(t2, t0, t3)
        g(f"""
        v_bfe_u32 v{t3}, v{vL}, 1, 1
        v_xor_b32 v{t2}, v{t2}, v{t3}
        v_lshlrev_b32 v{t1}, 10, v{t0}
        v_lshl_add_u32 v{t1}, v{t2}, 4, v{t1}
        v_and_b32 v{t3}, 1, v{vL}
        v_lshl_add_u32 v{t1}, v{t3}, 3, v{t1}
        v_lshl_add_u32 v{t1}, s{sW}, 8, v{t1}
        """)
        for k in range(4):
            g(f"s_add_u32 s{sO}, s{sW}, {k}")
            g(f"s_and_b32 s{sO}, s{sO}, 3")
            g(f"v_lshl_add_u32 v{[vPw,20,21,23][k]}, s{sO}, 10, v{vL16}")
            g(f"s_lshl_b32 s{sO}, s{sO}, 15")
            g(f"s_add_u32 s{sO}, s{sO}, {B_CKV}")
            g(f"v_add_u32 v{vPVb+k}, s{sO}, v{t1}")
        for k in range(opt.get("pv_pre", 4), 4):
            for ct in range(8):
                g(f"v_xor_b32 v{(212 if opt.get('w1_on') == 'B' else 168)+8*k+ct}, {ct<<5}, v{vPVb+k}")
        g(f"""
        v_lshlrev_b32 v{vMXr}, 4, v{vN}
        v_lshl_add_u32 v{vMXw}, v{vG}, 2, v{vMXr}
        v_lshl_add_u32 v{vMXw}, s{sW}, 8, v{vMXw}
        s_lshl_b32 s{sQg}, s{sB}, 1
        s_add_u32 s{sQg}, s{sQg}, s{sHG}
        s_lshl_b32 s{sQg}, s{sQg}, 2
        s_add_u32 s{sQg}, s{sQg}, s{sW}
        s_lshl_b32 s{sQg}, s{sQg}, 12
        s_add_u32 s{sQg}, s{sQg}, {QB}
        s_lshr_b32 s{sTMP}, s{sW}, 1
        s_xor_b32 s{sTMP+1}, s{sW}, s{sTMP}
        s_and_b32 s{sTMP+1}, s{sTMP+1}, 1
        s_lshl_b32 s{sTMP+1}, s{sTMP+1}, 3
        s_add_u32 s{sTMP}, s{sTMP}, s{sTMP+1}
        s_lshl_b32 s{sTMP}, s{sTMP}, 4
        v_xor_b32 v{vQd}, s{sTMP}, v{vL16}
        v_xor_b32 v{vQd+1}, 32, v{vQd}
        v_xor_b32 v{vQd+2}, 64, v{vQd}
        v_xor_b32 v{vQd+3}, 0x60, v{vQd}
        v_mov_b32 v{t0}, 0
        v_lshlrev_b32 v{t1}, 2, v{vL}
        s_mov_b32 exec_hi, 0
        ds_write_b32 v{t1}, v{t0} offset:{B_ZERO}
        s_mov_b64 exec, -1
        s_lshl_b32 s{sTMP}, s{sXCD}, 3
        s_lshl_b32 s{sTMP+1}, s{sHG}, 2
        s_add_u32 s{sTMP}, s{sTMP}, s{sTMP+1}
        s_add_u32 s{sTMP}, s{sTMP}, s{sW}
        s_lshl_b32 s{sTMP}, s{sTMP}, 9
        s_add_u32 s{sTMP}, s{sTMP}, {D1}
        s_add_u32 s{sBP}, s4, s{sTMP}
        s_addc_u32 s{sBP+1}, s5, 0
        """)
        if not numa: g.stamp(14)
        ckv_stream(c1_, c1_ + c2_)
        for i in range(10):
            unit_pattern(g, vP2 + i, vL, sW if i == 9 else None, i, 1152, t0, t1)
        tr_pair_bases(g, vT20, vT21, vK20, vK21, vL, B_W2, t0, t1, t2)
        g(f"""
        v_bfe_u32 v{t0}, v{vL}, 2, 1
        v_lshlrev_b32 v{t0}, 7, v{t0}
        v_add_u32 v{t0}, {B_HL}, v{t0}
        v_lshl_add_u32 v{t1}, v{vG}, 3, v{t0}
        v_add_u32 v{t0}, 64, v{t0}
        v_mov_b32 v{t2}, {B_ZERO}
        v_cmp_gt_u32 vcc, 8, v{vN}
        v_cndmask_b32 v{vHe}, v{t2}, v{t1}, vcc
        v_cndmask_b32 v{vHo}, v{t1}, v{t2}, vcc
        v_lshrrev_b32 v{t1}, 3, v{vL}
        v_cmp_eq_u32 vcc, 0, v{t1}
        v_cndmask_b32 v{vHke}, v{t2}, v{t0}, vcc
        v_cmp_eq_u32 vcc, 1, v{t1}
        v_cndmask_b32 v{vHko}, v{t2}, v{t0}, vcc
        """)
        finish_tag(g)
        g(f"""
        v_mov_b32 v{vTag}, s{sT}
        v_mov_b32 v{vTag+1}, s{sT+1}
        s_bitcmp1_b32 s{sT}, 0
        s_cselect_b32 s{sPat}, 1, 0x10000
        v_mov_b32 v{vML+1}, s{sPat}
        s_mov_b32 s{sMk}, 0xfffefffe
        s_mov_b32 s{sTT}, s{sT}
        s_mov_b32 s{sTT+1}, s{sT}
        """)
        vPat = 33
        g(f"v_mov_b32 v{vPat}, s{sPat}")
        w1b = opt.get('w1_on') == 'B'
        if w1b:
            g(f"""
            s_lshl_b32 s{sO}, s{sU2}, 2
            s_add_u32 s{sO}, s{sO}, s{sW}
            s_mul_i32 s{sRho}, s{sO}, 1821
            s_lshr_b32 s{sRho}, s{sRho}, 16
            s_mul_i32 s{sTMP}, s{sRho}, 36
            s_sub_u32 s{sBlk}, s{sO}, s{sTMP}
            s_min_u32 s{sTMP}, s{sRho}, 4
            s_mul_i32 s{sR0}, s{sRho}, 10
            s_add_u32 s{sR0}, s{sR0}, s{sTMP}
            s_lshl_b32 s{sR0}, s{sR0}, 2
            v_bfe_u32 v{t0}, v{vL}, 3, 1
            v_mul_u32_u24 v{t0}, 1152, v{t0}
            s_lshl_b32 s{sO}, s{sR0}, 1
            """)
            assert all((i * 1821) >> 16 == i // 36 for i in range(512))
            for k in range(5):
                g(f"buffer_load_dwordx4 {v(vXr+4*k,4)}, v{t0}, {X}, s{sO} offen offset:{16*k}")
            g(f"buffer_load_dwordx2 {v(vXr+20,2)}, v{t0}, {X}, s{sO} offen offset:80")
            g(f"""
            v_mul_u32_u24 v{vW1a}, 9216, v{vG}
            v_lshl_add_u32 v{vW1a}, v{vN}, 4, v{vW1a}
            v_lshrrev_b32 v{t0}, 5, v{vL}
            v_mul_u32_u24 v{vHs}, 18432, v{t0}
            v_and_b32 v{t0}, 31, v{vL}
            v_lshl_add_u32 v{vHs}, v{t0}, 4, v{vHs}
            v_mul_u32_u24 v{t0}, 0x0202, v{vG}
            v_add_u32 v{t0}, 0x0100, v{t0}
            v_and_b32 v{t1}, 1, v{vL}
            v_lshlrev_b32 v{t1}, 4, v{t1}
            v_lshlrev_b32 v{t0}, v{t1}, v{t0}
            v_mov_b32 v{t2}, 0x0c0c0000
            v_lshrrev_b32 v{t2}, v{t1}, v{t2}
            v_or_b32 v{t0}, v{t0}, v{t2}
            v_bfe_u32 v{t1}, v{vL}, 1, 2
            v_mov_b32 v{t2}, 0x0c0c0c0c
            """)
            for d in range(4):
                g(f"v_cmp_eq_u32 vcc, {d}, v{t1}")
                g(f"v_cndmask_b32 v{vSel+d}, v{t2}, v{t0}, vcc")
        g(f"""
        v_lshrrev_b32 v{t0}, 5, v{vL}
        v_bfe_u32 v{t1}, v{vL}, 4, 1
        v_lshl_add_u32 v{t0}, v{t1}, 1, v{t0}
        v_lshl_add_u32 v{t0}, v{vN}, 2, v{t0}
        v_lshlrev_b32 v{t0}, 1, v{t0}
        s_mul_i32 s{sO}, s{sU2}, 72
        buffer_load_ushort v{vB1}, v{t0}, {B1}, s{sO} offen
        v_lshl_add_u32 v{vHw}, s{sW}, 7, v{t0}
        s_mul_i32 s{sO}, s{sU2}, 9
        v_add_u32 v{t0}, s{sO}, v{vN}
        v_and_b32 v{t1}, 1, v{t0}
        v_lshlrev_b32 v{t1}, 8, v{t1}
        v_bfe_u32 v{t2}, v{t0}, 1, 4
        v_lshl_add_u32 v{t1}, v{t2}, 4, v{t1}
        v_lshrrev_b32 v{t2}, 5, v{t0}
        v_lshl_add_u32 v{t1}, v{t2}, 9, v{t1}
        v_mul_u32_u24 v{vHg}, 36864, v{vG}
        v_add_u32 v{vHg}, v{vHg}, v{t1}
        """)
        for k in range(4):
            g(f"s_load_dwordx4 s[{[8,12,24,52][k]}:{[8,12,24,52][k]+3}], s[{sBP}:{sBP+1}], {k*128} glc")
        assert c1_ + c2_ <= 16
        if opt.get("b_sleep"): g(f"s_sleep {opt['b_sleep']}")
        if numa:
            g(f"""
            s_lshl_b32 s{sO}, s{sMSG}, 1
            s_add_u32 s{sO}, s{sO}, s{sHG}
            s_lshl_b32 s{sO}, s{sO}, 7
            s_add_u32 s{sO}, s{sO}, {DP}
            s_add_u32 s{sDP}, s4, s{sO}
            s_addc_u32 s{sDP+1}, s5, 0
            s_lshr_b32 s{sTMP}, s{sXCD}, 2
            s_or_b32 s{sTMP}, s{sTMP}, s{sW}
            s_cmp_lg_u32 s{sTMP}, 0
            s_cbranch_scc1 L_B_noann
            s_xor_b32 s{sTMP}, s{sT+1}, s{sPhi}
            v_mov_b32 v{t0}, s{sT}
            v_mov_b32 v{t1}, s{sTMP}
            v_lshlrev_b32 v{t2}, 3, v{vL}
            s_mov_b64 exec, 0xffff
            buffer_store_dwordx2 {v(t0,2)}, v{t2}, {WS}, s{sO} offen sc1
            s_mov_b64 exec, -1
            """)
            g.lab("L_B_noann")
        g.stamp(8)
        ckv_stream(c1_ + c2_, 32)
        if numa:
            g(f"""
            s_cmp_lt_u32 s{sXCD}, 4
            s_cbranch_scc1 L_B_phok
            s_mov_b32 s{sCNT}, 0
            """)
            g.lab("L_B_phpoll")
            g(f"s_load_dwordx2 s[16:17], s[{sDP}:{sDP+1}], 0 glc")
            spin_guard(g, "L_B_phok")
            g(f"""
            s_waitcnt lgkmcnt(0)
            s_xor_b64 s[16:17], s[16:17], s[{sT}:{sT+1}]
            s_lshr_b32 s{sTMP}, s17, 1
            s_or_b32 s{sTMP}, s{sTMP}, s16
            s_cbranch_scc1 L_B_phpoll
            s_cmp_lg_u32 s17, s{sPhi}
            s_cbranch_scc1 L_B_phok
            s_branch L_B_refetch
            """)
            g.lab("L_B_phok")
            g(f"s_lshl_b32 s{sMSG}, s{sMSG}, 1")
            g(f"s_add_u32 s{sMSG}, s{sMSG}, s{sPhi}")
            msg_addr()
            if opt.get("stamps"): g(f"s_mov_b32 s98, s{sPhi}")
        NW1 = 0 if "w1" in opt.get("skip", "") else 11
        w1pos = opt.get("w1_pos", 0)
        def w1_stream():
            if "w1" in opt.get("skip", ""): return
            g(f"s_mul_i32 s{sO2}, s{sR0}, 9216")
            g(f"s_lshl_b32 s{sO3}, s{sBlk}, 8")
            g(f"s_add_u32 s{sO2}, s{sO2}, s{sO3}")
            for i in range(11):
                g(f"buffer_load_dwordx4 {v(vW1+4*i,4)}, v{vW1a}, {W1}, s{sO2} offen {NT}")
                if i < 10: g(f"s_add_u32 s{sO2}, s{sO2}, {4*9216}")
                if i == 9:
                    g(f"s_cmp_ge_u32 s{sRho}, 4")
                    g(f"s_cselect_b32 s{sO2}, {576*9216}, s{sO2}")
        def w1_gemv(store=True):
            vH = 140
            for i in range(10):
                g(f"{MF} {v(vH,4)}, {v(vXA+4*i,4)}, {v(vW1+4*i,4)}, {'0' if i == 0 else v(vH,4)}")
            g(f"s_cmp_ge_u32 s{sRho}, 4")
            g("s_cbranch_scc1 L_B_w1s")
            g(f"{MF} {v(vH,4)}, {v(vXA+40,4)}, {v(vW1+40,4)}, {v(vH,4)}")
            g.lab("L_B_w1s")
            g(f"""
            s_mul_i32 s{sO}, s{sRho}, 36864
            s_lshl_b32 s{sO3}, s{sBlk}, 9
            s_add_u32 s{sO}, s{sO}, s{sO3}
            s_add_u32 s{sO}, s{sO}, {HH}
            s_and_b32 s{sO3}, s{sT}, 15
            """)
            for r in range(4):
                g(f"v_and_or_b32 v{vH+r}, v{vH+r}, -16, s{sO3}")
            g(f"s_mov_b32 s{sR0}, s{sO}")
        def w2_stream():
            g(f"s_mul_i32 s{sO2}, s{sU2}, {36*1152}")
            unit_load(g, W2, vP2, None, sO2, 1152, "w2", NT, vdst=vW2, w0extra=False)
        NW1 = 0
        w1s = w1b and opt.get("w1_sc", 0)
        if w1s: vXA = 212
        w1p = opt.get("w1_pre", 0)
        sW1o = 57
        def w1one(i):
            g(f"buffer_load_dwordx4 {v(vW1+4*i,4)}, v{vW1a}, {W1}, s{sW1o} offen {NT}")
            if i < 10: g(f"s_add_u32 s{sW1o}, s{sW1o}, {4*9216}")
            if i == 9:
                g(f"s_cmp_ge_u32 s{sRho}, 4")
                g(f"s_cselect_b32 s{sW1o}, {576*9216}, s{sW1o}")
        def w1_base(i0):
            g(f"s_add_u32 s{sW1o}, s{sR0}, {4*i0}")
            g(f"s_mul_i32 s{sW1o}, s{sW1o}, 9216")
            g(f"s_lshl_b32 s{sO3}, s{sBlk}, 8")
            g(f"s_add_u32 s{sW1o}, s{sW1o}, s{sO3}")
        if w1s and w1p:
            assert w1p <= 9
            w1_base(0)
            for i in range(w1p): w1one(i)
            NW1 = w1p
        if w1b and not w1s:
            assert opt.get("w2_pos", 0) != 2 and (opt.get("pv_pre", 4) == 4 or opt.get("w2_pos", 0) == 1)
            w1_stream(); NW1 = 0 if "w1" in opt.get("skip", "") else 11
        if opt.get("w2_pos", 0) == 2:
            w2_stream(); NW1 = 0 if "w2" in opt.get("skip", "") else 11
        g.stamp(1)
        g(f"s_lshl_b32 m0, s{sW}, 12")
        sD = [8, 12, 24, 52]
        def d1poll():
            for k in range(4):
                g(f"s_load_dwordx4 s[{sD[k]}:{sD[k]+3}], s[{sBP}:{sBP+1}], {k*128} glc")
        def d1chk():
            for k in range(4):
                g(f"s_xor_b64 s[{sD[k]}:{sD[k]+1}], s[{sD[k]}:{sD[k]+1}], s[{sTT}:{sTT+1}]")
                g(f"s_xor_b64 s[{sD[k]+2}:{sD[k]+3}], s[{sD[k]+2}:{sD[k]+3}], s[{sTT}:{sTT+1}]")
                g(f"s_or_b64 s[{sD[k]}:{sD[k]+1}], s[{sD[k]}:{sD[k]+1}], s[{sD[k]+2}:{sD[k]+3}]")
            g("s_or_b64 s[8:9], s[8:9], s[12:13]")
            g("s_or_b64 s[24:25], s[24:25], s[52:53]")
            g("s_or_b64 s[8:9], s[8:9], s[24:25]")
        def qdma():
            for k in range(4):
                g(f"buffer_load_dwordx4 v{vQd+k}, {WS}, s{sQg} offen offset:{k*1024} sc1 lds")
        def look(tag):
            if tag[0] not in opt.get("looks", "abcd"): return
            g(f"s_cmp_lg_u32 s{sGot}, 0")
            g(f"s_cbranch_scc1 L_B_lk{tag}")
            g("s_waitcnt lgkmcnt(0)")
            d1chk()
            g(f"s_cbranch_scc1 L_B_lp{tag}")
            g.stamp(3)
            qdma()
            g(f"s_mov_b32 s{sGot}, 1")
            g(f"s_branch L_B_lk{tag}")
            g.lab(f"L_B_lp{tag}")
            d1poll()
            g.lab(f"L_B_lk{tag}")
        def pvgroup(k):
            for ct in range(8):
                tmp = t0 + (ct & 1)
                g(f"v_xor_b32 v{tmp}, {ct<<5}, v{vPVb+k}")
                for hi in range(2):
                    g(f"ds_read_b64_tr_b16 {A(aP+(ct*4+k)*4+2*hi,2)}, v{tmp} offset:{hi*16384}")
        npre = opt.get("pv_pre", 4)
        vPA = 168 if not w1b else 212
        def pvrd(k, ct, hi):
            g(f"ds_read_b64_tr_b16 {A(aP+(ct*4+k)*4+2*hi,2)}, v{vPA+8*k+ct} offset:{hi*16384}")
        qd = opt.get("q_direct", 0)
        if qd:
            vQr = 140
            def qld():
                for k in range(4):
                    g(f"buffer_load_dwordx4 {v(vQr+4*k,4)}, v{vL16}, {WS}, s{sQg} offen offset:{k*1024} sc1")
            def qchk():
                g(f"v_cmp_eq_u32 vcc, s{sPOI}, v{vQr}")
                for k in range(1, 4):
                    g(f"v_cmp_eq_u32 s[{sM1}:{sM1+1}], s{sPOI}, v{vQr+4*k}")
                    g(f"s_or_b64 vcc, vcc, s[{sM1}:{sM1+1}]")
            g("s_waitcnt lgkmcnt(0)")
            g(f"s_mov_b32 s{sCNT}, 0")
            g.lab("L_B_rdy")
            d1poll()
            spin_guard(g, "L_B_rdy2")
            g("s_waitcnt lgkmcnt(0)")
            d1chk()
            g("s_cbranch_scc1 L_B_rdy")
            g.lab("L_B_rdy2")
            g(f"s_lshl_b32 s{sTMP}, s{sW}, 12")
            for k in range(4): g(f"v_add_u32 v{vQd+k}, s{sTMP}, v{vQd+k}")
            g(f"s_waitcnt vmcnt({16+NW1})")
            for ks in range(16):
                g(f"ds_read_b128 {A(aS+ks*4,4)}, v{vSB+(ks&3)} offset:{(ks>>2)*256}")
            g(f"s_waitcnt vmcnt({opt.get('q_at', 0)+NW1})")
            g.stamp(3)
            qld()
            g(f"s_waitcnt vmcnt({4+NW1})")
            g.stamp(2)
            for ks in range(16):
                g(f"ds_read_b128 {A(aS+64+ks*4,4)}, v{vSB+(ks&3)} offset:{16384+(ks>>2)*256}")
            g("s_barrier")
            g(f"s_mov_b32 s{sGot}, 0")
            half = opt.get("q_mid", 2)
            for k in range(npre):
                if k == half:
                    g("s_waitcnt vmcnt(0)")
                    qchk()
                    g("s_cbranch_scc0 L_B_qm")
                    qld()
                    g.lab("L_B_qm")
                pvgroup(k)
            g(f"s_mov_b32 s{sCNT}, 0")
            g.lab("L_B_qchk")
            g("s_waitcnt vmcnt(0)")
            qchk()
            g("s_cbranch_scc1 L_B_qagain")
            g.lab("L_B_qgood")
            if opt.get("stamps"): g(f"s_mov_b32 s100, s{sCNT}")
            for k in range(4):
                g(f"ds_write_b128 v{vQd+k}, {v(vQr+4*k,4)} offset:{k*1024}")
        else:
            g("s_waitcnt lgkmcnt(0)")
            if opt.get("looks", "abcd"): d1poll()
            g(f"s_mov_b32 s{sGot}, 0")
            g(f"s_waitcnt vmcnt({16+NW1})")
            for ks in range(16):
                g(f"ds_read_b128 {A(aS+ks*4,4)}, v{vSB+(ks&3)} offset:{(ks>>2)*256}")
            if w1b:
                for i in range(11):
                    for d in range(4):
                        g(f"v_perm_b32 v{vXA+4*i+d}, v{vXr+2*i+1}, v{vXr+2*i}, v{vSel+d}")
            for z in range(opt.get("b_looks", 2)): look(f"a{z}")
            g(f"s_cmp_lg_u32 s{sGot}, 0")
            g("s_cbranch_scc1 L_B_cw1")
            g(f"s_waitcnt vmcnt({NW1})")
            g.lab("L_B_cw1")
            g(f"s_waitcnt vmcnt({4+NW1})")
            g.stamp(2)
            look("b")
            for ks in range(16):
                g(f"ds_read_b128 {A(aS+64+ks*4,4)}, v{vSB+(ks&3)} offset:{16384+(ks>>2)*256}")
            g("s_barrier")
            def pvgroup(k):
                for ct in range(8):
                    tmp = t0 + (ct & 1)
                    g(f"v_xor_b32 v{tmp}, {ct<<5}, v{vPVb+k}")
                    for hi in range(2):
                        g(f"ds_read_b64_tr_b16 {A(aP+(ct*4+k)*4+2*hi,2)}, v{tmp} offset:{hi*16384}")
            npre = opt.get("pv_pre", 4)
            def pvrd(k, ct, hi):
                g(f"ds_read_b64_tr_b16 {A(aP+(ct*4+k)*4+2*hi,2)}, v{vPA+8*k+ct} offset:{hi*16384}")
            for k in range(npre):
                look(f"c{k}")
                pvgroup(k)
            if w1b and not w1s:
                look("d")
                g(f"s_cmp_lg_u32 s{sGot}, 0")
                g("s_cbranch_scc1 L_B_cw2")
                g("s_waitcnt vmcnt(0)")
                g.lab("L_B_cw2")
                g("s_waitcnt vmcnt(4)")
                w1_gemv(False)
            g(f"s_mov_b32 s{sCNT}, 0")
            g(f"s_cmp_lg_u32 s{sGot}, 0")
            g("s_cbranch_scc1 L_B_qwait")
            if opt.get("looks", "abcd"): g("s_branch L_B_d1chk")
            g.lab("L_B_d1poll")
            d1poll()
            spin_guard(g, "L_B_qget0")
            g.lab("L_B_d1chk")
            g("s_waitcnt lgkmcnt(0)")
            d1chk()
            g("s_cbranch_scc1 L_B_d1poll")
            g.stamp(3)
            g.lab("L_B_qget0")
            g(f"s_mov_b32 s{sCNT}, 0")
            qdma()
            g.lab("L_B_qwait")
        nb = 0
        if w1b and not w1s:
            g(f"buffer_store_dwordx4 {v(140,4)}, v{vHs}, {WS}, s{sR0} offen sc1")
            nb = 1
        if opt.get("w2_pos", 0) == 3:
            g(f"s_mul_i32 s{sO2}, s{sU2}, {36*1152}")
            g(f"s_mul_i32 s{sO3}, s{sW}, {8*1152}")
            g(f"s_add_u32 s{sO3}, s{sO3}, s{sO2}")
            g(f"s_add_u32 s{sO2}, s{sO2}, {32*1152}")
        if opt.get("w2_pos", 0) == 0:
            w2_stream(); nb += 0 if "w2" in opt.get("skip", "") else 11
        g(f"s_waitcnt vmcnt({nb}) lgkmcnt(0)")
        g.lab("L_B_qbar")
        w2d = opt.get("w2_d", 0)
        if w1s:
            w1_base(w1p)
            assert 13 - w1p + w2d <= 16 and opt.get("pv_pre", 4) == 4
            g(f"s_mul_i32 s{sO2}, s{sU2}, {36*1152}")
            g(f"s_mul_i32 s{sO3}, s{sW}, 9216")
            g(f"s_add_u32 s{sO2}, s{sO2}, s{sO3}")
        g("s_barrier")
        g.stamp(4)
        def ebell():
            g(f"""
            s_cmp_lg_u32 s{sW}, 2
            s_cbranch_scc1 L_B_noeb
            s_sub_u32 s{sTMP}, s{sD2}, {D2}
            s_lshr_b32 s{sTMP}, s{sTMP}, 1
            s_add_u32 s{sTMP}, s{sTMP}, {DE2 if opt.get("e_rep") else DE}
            v_lshlrev_b32 v{t3}, {14 if opt.get("e_rep") else 4}, v{vL}
            s_mov_b64 exec, 0xff
            buffer_store_dwordx4 {v(vML,4)}, v{t3}, {WS}, s{sTMP} offen sc1
            s_mov_b64 exec, -1
            """)
            g.lab("L_B_noeb")
        vQ = 64
        vS = 156
        w2n = opt.get("w2_n", 11)
        def w2one(i):
            if i == 10: g("s_mov_b32 exec_hi, 0")
            g(f"buffer_load_dwordx4 {v(vW2+4*i,4)}, v{vP2+(i if i < 10 else 4)}, {W2}, s{sO3 if i < 9 else sO2} offen {NT}")
            if i == 10: g("s_mov_b64 exec, -1")
        PRE = 4 if npre < 4 else 6
        late = [(k, ct, hi) for k in range(npre, 4) for ct in range(8) for hi in range(2)]
        per = 2 if late else 0
        seq = []
        for ks in range(PRE):
            g(f"ds_read_b128 {v(vQ+4*ks,4)}, v{vQBs+(ks&3)} offset:{(ks>>2)*256}"); seq.append(("q", ks))
        for ks in range(16):
            if opt.get("e_pos") == ks: ebell()
            if ks + PRE < 16:
                k2 = ks + PRE
                g(f"ds_read_b128 {v(vQ+4*k2,4)}, v{vQBs+(k2&3)} offset:{(k2>>2)*256}"); seq.append(("q", k2))
            for _ in range(per if ks + PRE < 16 else per + 1):
                if late:
                    pvrd(*late.pop(0)); seq.append(("p",))
            g(f"s_waitcnt lgkmcnt({min(15, len(seq) - 1 - seq.index(('q', ks)))})")
            for kt in range(2):
                g(f"{MF} {v(vS+4*kt,4)}, {A(aS+(kt*16+ks)*4,4)}, {v(vQ+4*ks,4)}, {'0' if ks == 0 else v(vS+4*kt,4)}")
            if w1s and 2 <= ks < 13 - w1p: w1one(ks - 2 + w1p)
            if w1s and 13 - w1p <= ks < 13 - w1p + w2d:
                i = ks - (13 - w1p)
                g(f"s_add_u32 m0, s{sO3}, {B_W2 + i*1024}")
                g(f"buffer_load_dwordx4 v{vP2+i}, {W2}, s{sO2} offen {NT} lds")
            if opt.get("w2_pos", 0) == 3 and 4 <= ks < 4 + w2n: w2one(ks - 4)
        CS = math.log2(math.e) * 128 ** -0.5
        g(f"s_mov_b32 s{sC}, {hex(fbits(CS))}")
        g(f"""
        {"" if qd else f"v_cmp_u_f32 vcc, v{vS}, v{vS}"}
        v_max3_f32 v{t0}, v{vS}, v{vS+1}, v{vS+2}
        v_max3_f32 v{t1}, v{vS+3}, v{vS+4}, v{vS+5}
        v_max3_f32 v{t0}, v{t0}, v{vS+6}, v{vS+7}
        v_max_f32 v{t0}, v{t0}, v{t1}
        {"" if qd else "s_cbranch_vccnz L_B_qslow"}
        """)
        g.lab("L_B_qok")
        if opt.get("stamps") and not qd: g(f"s_mov_b32 s100, s{sCNT}")
        g(f"""
        ds_write_b32 v{vMXw}, v{t0} offset:{B_MX}
        s_waitcnt lgkmcnt(0)
        s_barrier
        """)
        g.stamp(5)
        vM = 64
        for q in range(4):
            g(f"ds_read_b128 {v(vM+4*q,4)}, v{vMXr} offset:{B_MX+q*256}")
        g(f"""
        s_waitcnt lgkmcnt(2)
        v_max3_f32 v{vM}, v{vM}, v{vM+1}, v{vM+2}
        v_max3_f32 v{vM+3}, v{vM+3}, v{vM+4}, v{vM+5}
        v_max3_f32 v{vM}, v{vM}, v{vM+6}, v{vM+7}
        s_waitcnt lgkmcnt(0)
        v_max3_f32 v{vM+8}, v{vM+8}, v{vM+9}, v{vM+10}
        v_max3_f32 v{vM+11}, v{vM+11}, v{vM+12}, v{vM+13}
        v_max3_f32 v{vM+8}, v{vM+8}, v{vM+14}, v{vM+15}
        v_max3_f32 v{vM}, v{vM}, v{vM+3}, v{vM+11}
        v_max_f32 v{vM}, v{vM}, v{vM+8}
        v_mul_f32 v{vML}, s{sC}, v{vM}
        """)
        n1 = min(len(late), 14)
        for _ in range(n1): pvrd(*late.pop(0))
        def stat(wave, off, tag):
            g(f"s_cmp_lg_u32 s{sW}, {wave}")
            g(f"s_cbranch_scc1 L_B_nost{tag}")
            if off: g(f"s_add_u32 s{sD2}, s{sD2}, {off}")
            g("s_mov_b64 exec, 0xffff")
            g(f"buffer_store_dwordx4 {v(vML,4)}, v{vL16}, {WS}, s{sD2} offen sc1")
            g("s_mov_b64 exec, -1")
            g.lab(f"L_B_nost{tag}")
        if opt.get("m_early"): stat(1, 0, "m")
        for k in range(8):
            g(f"v_fma_f32 v{vS+k}, v{vS+k}, s{sC}, -v{vML}")
        for k in range(8):
            g(f"v_exp_f32 v{vS+k}, v{vS+k}")
        vPf = 80
        vO = 96
        for k in range(4):
            g(f"v_cvt_pk_bf16_f32 v{vPf+k}, v{vS+2*k}, v{vS+2*k+1}")
        g(f"ds_write_b128 v{vPw}, {v(vPf,4)} offset:{B_PB}")
        g(f"""
        v_pk_add_f32 {v(vS,2)}, {v(vS,2)}, {v(vS+2,2)}
        v_pk_add_f32 {v(vS+4,2)}, {v(vS+4,2)}, {v(vS+6,2)}
        v_pk_add_f32 {v(vS,2)}, {v(vS,2)}, {v(vS+4,2)}
        v_add_f32 v{vS}, v{vS}, v{vS+1}
        ds_write_b32 v{vMXw}, v{vS} offset:{B_LS}
        """)
        def pv(k, cts=range(8)):
            for ct in cts:
                g(f"{MF} {v(vO+4*ct,4)}, {v(vPf+4*k,4)}, {A(aP+(ct*4+k)*4,4)}, {'0' if k == 0 else v(vO+4*ct,4)}")
        pv(0, range(2))
        if not opt.get("m_early"): stat(1, 0, "m")
        g("s_waitcnt lgkmcnt(0)")
        g("s_barrier")
        g.stamp(6)
        for k in range(1, 4):
            g(f"ds_read_b128 {v(vPf+4*k,4)}, v{[0,20,21,23][k]} offset:{B_PB}")
        llate = opt.get("l_late", 0)
        vM2 = 128 if llate else vM
        def lsreads():
            for q in range(4):
                g(f"ds_read_b128 {v(vM2+4*q,4)}, v{vMXr} offset:{B_LS+q*256}")
        if not llate: lsreads()
        nl = len(late)
        assert all(k == 3 for k, _, _ in late)
        for ct in range(2, 8):
            pv(0, [ct])
            for _ in range(3):
                if late: pvrd(*late.pop(0))
        assert not late
        g(f"s_waitcnt lgkmcnt({min(15, (2 if llate else 6) + nl)})")
        adds = [f"v_pk_add_f32 {v(vM2,2)}, {v(vM2,2)}, {v(vM2+2,2)}", f"v_pk_add_f32 {v(vM2+4,2)}, {v(vM2+4,2)}, {v(vM2+6,2)}",
                f"v_pk_add_f32 {v(vM2+8,2)}, {v(vM2+8,2)}, {v(vM2+10,2)}", f"v_pk_add_f32 {v(vM2+12,2)}, {v(vM2+12,2)}, {v(vM2+14,2)}",
                f"v_pk_add_f32 {v(vM2,2)}, {v(vM2,2)}, {v(vM2+4,2)}", f"v_pk_add_f32 {v(vM2+8,2)}, {v(vM2+8,2)}, {v(vM2+12,2)}",
                f"v_pk_add_f32 {v(vM2,2)}, {v(vM2,2)}, {v(vM2+8,2)}", f"v_add_f32 v{vML}, v{vM2}, v{vM2+1}"]
        pv(1, range(4))
        g("s_waitcnt lgkmcnt(0)")
        for ct in range(4, 8):
            pv(1, [ct])
            if not llate: g(adds[2 * (ct - 4)]); g(adds[2 * (ct - 4) + 1])
        dbpos = opt.get("d2_pos", 2) if not llate else 5
        if llate: lsreads()
        if dbpos == 2: stat(0, DL - D2, "l")
        vOo = 64
        def cv(k, rs=range(4)):
            for r in rs:
                g(f"v_cvt_pk_bf16_f32 v{vOo+4*r+k}, v{vO+8*k+r}, v{vO+8*k+4+r}")
        def tg(k, rs=range(4)):
            for r in rs:
                g(f"v_and_or_b32 v{vOo+4*r+k}, v{vOo+4*r+k}, s{sMk}, v{vPat}")
        for p in range(4):
            pv(2, [2 * p, 2 * p + 1])
            if p >= 2: cv(p - 2, (0, 1))
            pv(3, [2 * p])
            if p >= 2: cv(p - 2, (2, 3))
            pv(3, [2 * p + 1])
            if p >= 2: tg(p - 2)
            if dbpos == 3 and p == 1: stat(0, DL - D2, "l")
        cv(2); tg(2)
        for r in range(4):
            cv(3, [r]); tg(3, [r])
            g(f"s_add_u32 s{sO}, s{sOo}, {4*r*OSTR}")
            g(f"buffer_store_dwordx4 {v(vOo+4*r,4)}, v{vOa}, {WS}, s{sO} offen sc1")
        if dbpos == 4: stat(0, DL - D2, "l")
        if llate:
            g("s_waitcnt lgkmcnt(0)")
            for a_ in adds: g(a_)
            stat(0, DL - D2, "l")
        g.stamp(7)
        if opt.get("w2_pos", 0) == 3:
            for i in range(w2n, 11): w2one(i)
        if w1s:
            assert opt.get("w2_pos", 0) == 1
            g(f"s_waitcnt vmcnt({4+w2d})")
            w1_gemv()
            g(f"buffer_store_dwordx4 {v(140,4)}, v{vHs}, {WS}, s{sR0} offen sc1")
            g.stamp(9)
            g(f"s_mul_i32 s{sC}, s{sU2}, {36*1152}")
            unit_load(g, W2, vP2, B_W2, sC, 1152, "w2", NT, w0extra=False, first=w2d)
            g(f"s_waitcnt vmcnt({opt.get('h_at', 4)})")
        vHr = 80
        vEr = 96
        g(f"""
        s_and_b32 s{sTMP}, s{sW}, 1
        s_mul_i32 s{sO}, s{sTMP}, 18432
        s_add_u32 s{sO}, s{sO}, {HH}
        s_add_u32 s{sO2}, s{sO}, {4*36864}
        s_add_u32 s{sO3}, s{sO}, {8*36864}
        s_add_u32 s{sC}, s{sO}, {12*36864}
        s_and_b32 s{sPat}, s{sT}, 15
        s_mov_b32 s{sCNT}, 0
        """)
        for k in range(4): g(f"v_mov_b32 v{vHr+12+k}, s{sPat}")
        def hget():
            g("s_mov_b32 exec_lo, 0x01ff01ff")
            g("s_mov_b32 exec_hi, 0x01ff01ff")
            for u, so in enumerate((sO, sO2, sO3, sC)):
                if u == 3: g("s_mov_b32 exec_hi, 0")
                g(f"buffer_load_dwordx4 {v(vHr+4*u,4)}, v{vHg}, {WS}, s{so} offen sc1")
            g("s_mov_b64 exec, -1")
        g(f"s_cmp_gt_u32 s{sW}, 1")
        g("s_cbranch_scc1 L_B_noh1")
        hget()
        g.lab("L_B_noh1")
        nwh = 0
        if opt.get("wo_help"):
            srd(g, 16, 5, 4096 * 1152)
            g(f"""
            s_lshr_b32 s{sRho}, s{sI}, 2
            s_lshl_b32 s{sRho}, s{sRho}, 3
            s_add_u32 s{sRho}, s{sRho}, s{sXCD}
            s_lshl_b32 s{sRho}, s{sRho}, 2
            s_and_b32 s{sBlk}, s{sI}, 3
            s_add_u32 s{sRho}, s{sRho}, s{sBlk}
            s_lshl_b32 s{sRho}, s{sRho}, 2
            s_add_u32 s{sRho}, s{sRho}, s{sW}
            s_mul_i32 s{sRho}, s{sRho}, 9216
            s_waitcnt lgkmcnt(0)
            """)
            for k in range(9):
                g(f"buffer_load_dwordx4 {A(252,4)}, v{vL16}, s[16:19], s{sRho} offen")
                if k < 8: g(f"s_addk_i32 s{sRho}, 0x400")
            nwh = 9
        if npre < 4: g("s_barrier")
        if w1s: pass
        elif opt.get("w2_pos", 0) == 1:
            if opt.get("w2_wait"): g("s_waitcnt vmcnt(0)")
            if opt.get("b_sleep2"): g(f"s_sleep {opt['b_sleep2']}")
            g(f"s_mul_i32 s{sR0}, s{sU2}, {36*1152}")
            g(f"s_mov_b32 s{sRho}, s{sO}")
            unit_load(g, W2, vP2, B_W2, sR0, 1152, "w2", NT, thr=opt.get("w2_thr"))
            g(f"s_mov_b32 s{sO}, s{sRho}")
        else:
            g(f"s_mul_i32 s{sTMP}, s{sW}, 9216")
            g(f"v_add_u32 v{t2}, s{sTMP}, v{vL16}")
            g(f"s_waitcnt vmcnt({(4 if opt.get('w2_n', 11) == 11 else 0)+nwh})")
            for i in range(9):
                g(f"ds_write_b128 v{t2}, {v(vW2+4*i,4)} offset:{B_W2+i*1024}")
            g(f"ds_write_b128 v{vPw}, {v(vW2+36,4)} offset:{B_W2+36864}")
            g(f"ds_write_b128 v{vL16}, {v(vW2+40,4)} offset:{B_W2+36864+4096}")
        g(f"s_cmp_gt_u32 s{sW}, 1")
        g("s_cbranch_scc1 L_B_hbar")
        g(f"s_waitcnt vmcnt({nwh if opt.get('w2_pos', 0) != 1 else 0})")
        g.lab("L_B_hchk")
        g("s_mov_b32 exec_lo, 0x01ff01ff")
        g("s_mov_b32 exec_hi, 0x01ff01ff")
        g.stamp(10)
        vHx = 100
        for k in range(16):
            g(f"v_xor_b32 v{vHx+k}, s{sPat}, v{vHr+k}")
        g(f"v_or3_b32 v{vEr}, v{vHx}, v{vHx+1}, v{vHx+2}")
        for k in range(3, 15, 2):
            g(f"v_or3_b32 v{vEr}, v{vEr}, v{vHx+k}, v{vHx+k+1}")
        g(f"v_or_b32 v{vEr}, v{vEr}, v{vHx+15}")
        g(f"v_and_b32 v{vEr}, 15, v{vEr}")
        g(f"v_cmp_ne_u32 vcc, 0, v{vEr}")
        g("s_cbranch_vccnz L_B_hslow")
        g.lab("L_B_hok")
        c1 = -2.0 * math.log2(math.e) * math.sqrt(2.0 / math.pi)
        g(f"""
        v_pk_add_f32 {v(vHx,2)}, {v(vHx,2)}, {v(vHx+4,2)}
        v_pk_add_f32 {v(vHx+2,2)}, {v(vHx+2,2)}, {v(vHx+6,2)}
        v_pk_add_f32 {v(vHx+8,2)}, {v(vHx+8,2)}, {v(vHx+12,2)}
        v_pk_add_f32 {v(vHx+10,2)}, {v(vHx+10,2)}, {v(vHx+14,2)}
        v_pk_add_f32 {v(vHx,2)}, {v(vHx,2)}, {v(vHx+8,2)}
        v_pk_add_f32 {v(vHx+2,2)}, {v(vHx+2,2)}, {v(vHx+10,2)}
        v_lshlrev_b32 v{vB1}, 16, v{vB1}
        v_mov_b32 v{t1}, {hex(fbits(c1))}
        v_permlane32_swap_b32 v{vHx}, v{vHx+1}
        v_permlane32_swap_b32 v{vHx+2}, v{vHx+3}
        v_add_f32 v{vHx}, v{vHx}, v{vHx+1}
        v_add_f32 v{vHx+2}, v{vHx+2}, v{vHx+3}
        s_mov_b32 s{sC}, {hex(fbits(c1*0.044715))}
        v_permlane16_swap_b32 v{vHx}, v{vHx+2}
        v_add_f32 v{vHx}, v{vHx}, v{vHx+2}
        v_add_f32 v{vHx}, v{vHx}, v{vB1}
        v_mul_f32 v{t0}, v{vHx}, v{vHx}
        v_fma_f32 v{t0}, v{t0}, s{sC}, v{t1}
        v_mul_f32 v{t0}, v{t0}, v{vHx}
        v_exp_f32 v{t0}, v{t0}
        v_add_f32 v{t0}, 1.0, v{t0}
        v_rcp_f32 v{t0}, v{t0}
        v_mul_f32 v{t0}, v{t0}, v{vHx}
        v_cvt_pk_bf16_f32 v{t0}, v{t0}, v{t0}
        ds_write_b16 v{vHw}, v{t0} offset:{B_HL}
        s_mov_b64 exec, -1
        """)
        g.lab("L_B_hbar")
        g("s_waitcnt vmcnt(0) lgkmcnt(0)" if opt.get("w2_pos", 0) == 1 else "s_waitcnt lgkmcnt(0)")
        g("s_barrier")
        g.stamp(11)
        aW = 0
        vHA = 64
        vY = 96
        g(f"ds_read2_b64 {v(vHA,4)}, v{vHe} offset0:0 offset1:4")
        g(f"ds_read2_b64 {v(vHA+6,4)}, v{vHo} offset0:0 offset1:4")
        def w2reads(t):
            for x in range(2):
                b = aW + (t * 2 + x) * 6
                g(f"ds_read_b64_tr_b16 {A(b,2)}, v{vT21 if x else vT20} offset:{t*256}")
                g(f"ds_read_b64_tr_b16 {A(b+2,2)}, v{vT21 if x else vT20} offset:{16*1152+t*256}")
        def w2rk(t):
            for x in range(2):
                b = aW + (t * 2 + x) * 6
                g(f"ds_read_b64_tr_b16 {A(b+4,2)}, v{vK21 if x else vK20} offset:{t*256}")
        def w2mf(t):
            for x in range(2):
                b = aW + (t * 2 + x) * 6
                g(f"{MF} {v(vY+4*t,4)}, {v(vHA+6*x,4)}, {A(b,4)}, {'0' if x == 0 else v(vY+4*t,4)}")
        def w2mf16(t):
            for x in range(2):
                b = aW + (t * 2 + x) * 6
                g(f"{MF16} {v(vY+4*t,4)}, {v(vHA+6*x+4,2)}, {A(b+4,2)}, {v(vY+4*t,4)}")
        w2reads(0); w2reads(1); w2reads(2)
        g("s_waitcnt lgkmcnt(8)")
        w2mf(0)
        w2reads(3)
        g("s_waitcnt lgkmcnt(8)")
        w2mf(1)
        w2reads(4)
        g("s_waitcnt lgkmcnt(8)")
        w2mf(2)
        g(f"ds_read_b64 {v(vHA+4,2)}, v{vHke}")
        g(f"ds_read_b64 {v(vHA+10,2)}, v{vHko}")
        w2rk(0); w2rk(1)
        g("s_waitcnt lgkmcnt(10)")
        w2mf(3)
        w2rk(2); w2rk(3); w2rk(4)
        g("s_waitcnt lgkmcnt(12)")
        w2mf(4)
        for t in range(5):
            g(f"s_waitcnt lgkmcnt({2*(4-t)})")
            w2mf16(t)
        for t in range(4):
            g(f"v_and_or_b32 v{vHA+t}, v{vY+4*t}, -16, s{sPat}")
        g(f"buffer_store_dwordx4 {v(vHA,4)}, v{vH3}, {WS}, s{sH3m} offen sc1")
        g(f"s_cmp_gt_u32 s{sW}, 1")
        g("s_cbranch_scc1 L_B_no5b")
        g(f"v_and_or_b32 v{vY+16}, v{vY+16}, -16, s{sPat}")
        g(f"buffer_store_dword v{vY+16}, v{vH3x}, {WS}, s{sH3l} offen sc1")
        g.lab("L_B_no5b")
        g.stamp(12)
        dump_stamps(g, 16, 216)
        g("s_endpgm")
        if numa:
            g.lab("L_B_refetch")
            if opt.get("dcount"):
                g(f"""
                s_load_dwordx2 s[12:13], s[0:1], 104
                s_mov_b32 s14, 256
                s_mov_b32 s15, 0x00020000
                v_mov_b32 v6, 1
                v_mov_b32 v7, 60
                s_waitcnt lgkmcnt(0)
                s_mov_b64 exec, 1
                buffer_atomic_add v6, v7, s[12:15], 0 offen sc1
                s_mov_b64 exec, -1
                """)
            g(f"s_xor_b32 s{sPhi}, s{sPhi}, 1")
            g("s_waitcnt vmcnt(0)")
            ckv_base()
            ckv_stream(0, 32)
            g("s_branch L_B_phok")
        g.lab("L_B_hslow")
        spin_guard(g, "L_B_hok")
        hget()
        g("s_waitcnt vmcnt(0)")
        g("s_branch L_B_hchk")
        if qd:
            g.lab("L_B_qagain")
            spin_guard(g, "L_B_qgood")
            qld()
            g("s_branch L_B_qchk")
            return
        g.lab("L_B_qslow")
        spin_guard(g, "L_B_qok")
        g(f"s_mov_b64 s[{sM1}:{sM1+1}], 0")
        for ks in range(16):
            g(f"v_cmp_eq_u32 vcc, s{sPOI}, v{vQ+4*ks}")
            g(f"s_or_b64 s[{sM1}:{sM1+1}], s[{sM1}:{sM1+1}], vcc")
        g("s_cbranch_scc0 L_B_qok")
        g("s_barrier")
        g(f"s_lshl_b32 m0, s{sW}, 12")
        qdma()
        g("s_waitcnt vmcnt(0)")
        g("s_branch L_B_qbar")

if __name__ == "__main__":
    opt = eval("dict(%s)" % (sys.argv[2] if len(sys.argv) > 2 else ""))
    open(sys.argv[1], "w").write(gen(opt))
```
